```python
import torch

def _softmax(x, axis=-1):
    return torch.softmax(x, dim=axis)
def _gelu(x):
    return torch.nn.functional.gelu(x, approximate="tanh")
def _silu(x):
    return torch.nn.functional.silu(x)
def _sigmoid(x):
    return torch.sigmoid(x)
def _layernorm(x, axis=-1, eps=1e-5):
    m = x.mean(dim=axis, keepdim=True)
    v = x.var(dim=axis, keepdim=True, unbiased=False)
    return (x - m) / torch.sqrt(v + eps)
def _scatter_add(tgt, idx, src, axis=0):
    return tgt.clone().index_add_(axis, idx, src)
def _segment_sum(src, seg, n):
    out = torch.zeros((n,) + src.shape[1:], dtype=src.dtype)
    return out.index_add_(0, seg, src)
def _pad(x, pw):
    flat = tuple(v for pair in reversed(pw) for v in pair)
    return torch.nn.functional.pad(x, flat)

kernel_name = 'concat_heads__spectral_gfnet__softmax_full_mha__prompt'

def setup_inputs():

    _w = (lambda a: (lambda t: t.to(torch.bfloat16) if t.is_floating_point() else t)(torch.as_tensor(a)))
    def _A_setup():
        B, S, D = 1, 2048, 448
        Df = D // 2 + 1
        return {
            "x": _w((lambda *s: torch.randn(*s, dtype=torch.bfloat16) * 0.05)(B, S, D)),
            "w_r": _w((lambda *s: torch.randn(*s, dtype=torch.bfloat16) * 6.4)(S, Df) * 0.02),
            "w_i": _w((lambda *s: torch.randn(*s, dtype=torch.bfloat16) * 6.4)(S, Df) * 0.02),
        }
    _A_in = _A_setup()

    def _B_setup():
        B, S, D = 1, 2048, 448
        return {
            "x": _w((lambda *s: torch.randn(*s, dtype=torch.bfloat16) * 0.2)(B, S, D)),
            "wqkv": _w((lambda *s: torch.randn(*s, dtype=torch.bfloat16) * 0.2)(D, 3 * D)),
            "wo": _w((lambda *s: torch.randn(*s, dtype=torch.bfloat16) * 0.05)(D, D)),
        }
    _B_in = _B_setup()

    return {
        "A_x": _A_in["x"],
        "A_w_r": _A_in["w_r"],
        "A_w_i": _A_in["w_i"],
        "B_x": _B_in["x"],
        "B_wqkv": _B_in["wqkv"],
        "B_wo": _B_in["wo"],
    }

def reference(A_x, A_w_r, A_w_i, B_x, B_wqkv, B_wo):
    def _A_ref(x, w_r, w_i):
        B, S, D = x.shape
        X = (lambda x, axes=(-2,-1): torch.fft.rfft2(x.float(), dim=axes))(x, axes=(-2, -1))
        W = w_r + 1j * w_i
        X = X * W
        y = (lambda x, s, axes=(-2,-1): torch.fft.irfft2(x, s=s, dim=axes).to(torch.bfloat16))(X, (S, D), axes=(-2, -1))
        return y

    def _B_ref(x, wqkv, wo):
        B, S, D = x.shape
        H = 16; Dh = D // H
        qkv = (lambda x, *d: x.permute(*d))((x @ wqkv).reshape(B, S, 3, H, Dh), 2, 0, 3, 1, 4)
        q, k, v = qkv[0], qkv[1], qkv[2]
        scale = Dh ** -0.5
        scores = torch.einsum("bhqd,bhkd->bhqk", q, k) * scale
        p = _softmax(scores, axis=-1)
        o = torch.einsum("bhqk,bhkd->bhqd", p, v)
        return (lambda x, *d: x.permute(*d))(o, 0, 2, 1, 3).reshape(B, S, D) @ wo

    a = _A_ref(A_x, A_w_r, A_w_i)
    b = _B_ref(B_x, B_wqkv, B_wo)
    return torch.concatenate([a, b], axis=-1)
```

```python
import re

TRANS = ("v_exp_f32","v_log_f32","v_rcp_f32","v_rsq_f32","v_sqrt_f32","v_sin_f32","v_cos_f32","v_rcp_iflag_f32",
         "v_exp_f16","v_log_f16","v_rcp_f16","v_rsq_f16","v_sqrt_f16","v_sin_f16","v_cos_f16")

def regs_of(tok):
    tok = tok.strip()
    tok = re.sub(r"^-", "", tok)
    m = re.match(r"^abs\((.*)\)$", tok) or re.match(r"^\|(.*)\|$", tok)
    if m: tok = m.group(1)
    if tok == "vcc": return {("s", "vcc")}
    if tok in ("vcc_lo","vcc_hi"): return {("s","vcc")}
    if tok in ("exec","exec_lo","exec_hi"): return {("s", "exec")}
    if tok == "m0": return {("s", "m0")}
    m = re.match(r"^([vas])(\d+)$", tok)
    if m: return {(m.group(1), int(m.group(2)))}
    m = re.match(r"^([vas])\[(\d+):(\d+)\]$", tok)
    if m: return {(m.group(1), i) for i in range(int(m.group(2)), int(m.group(3)) + 1)}
    return set()

class Ins:
    def __init__(self, text):
        self.text = text
        t = text.split(";")[0].strip()
        self.label = t.endswith(":")
        self.directive = t.startswith(".")
        self.empty = (t == "")
        self.mn = "" if (self.label or self.directive or self.empty) else t.split()[0]
        rest = t[len(self.mn):].strip() if self.mn else ""
        rest = re.sub(r"(\w+):\[([^\]]*)\]", lambda m: m.group(1) + ":(" + m.group(2).replace(",", "|") + ")", rest)
        ops = [o.strip() for o in rest.split(",")] if rest else []
        self.mods = []
        if ops:
            parts = ops[-1].split()
            ops[-1] = parts[0]
            self.mods = parts[1:]
        self.ops = ops
        mn = self.mn
        self.mfma = mn.startswith("v_mfma") or mn.startswith("v_smfmac")
        self.valu = mn.startswith("v_") and not self.mfma
        self.vmem = mn.startswith(("buffer_", "global_", "flat_"))
        self.ds = mn.startswith("ds_")
        self.salu = mn.startswith("s_")
        base = re.sub(r"_(e32|e64|dpp|sdwa)$", "", mn)
        self.base = base
        self.trans = base in TRANS
        self.dpp = mn.endswith("_dpp") or any(m.startswith(("quad_perm","row_","wave_")) for m in self.mods)
        self.permlane = mn.startswith("v_permlane")
        R = [regs_of(o) for o in ops]
        w = set(); r = set()
        self.srcA = self.srcB = self.srcC = set()
        self.passes = 0
        self.stdata = set()
        if self.mfma:
            w = R[0]; self.srcA = R[1]; self.srcB = R[2]
            if mn.startswith("v_smfmac"):
                self.srcC = R[0]; self.srcB = R[2] | R[3]
            else:
                self.srcC = R[3]
            r = self.srcA | self.srcB | self.srcC
            self.passes = 8 if "32x32" in mn else 4
        elif self.valu:
            if self.permlane and "swap" in mn:
                w = R[0] | R[1]; r = R[0] | R[1]
            elif base in ("v_add_co_u32","v_sub_co_u32","v_addc_co_u32","v_subb_co_u32","v_mad_u64_u32"):
                w = R[0] | R[1]; r = set().union(*R[2:])
            elif base == "v_nop":
                pass
            else:
                w = R[0]; r = set().union(*R[1:]) if len(R) > 1 else set()
                if base in ("v_fmac_f32","v_writelane_b32") or self.dpp: r |= R[0]
                if base.startswith("v_cmpx"): w |= {("s","exec")}
        elif self.vmem:
            lds = "lds" in self.mods or "_lds_" in mn
            if "_load" in mn and not lds:
                w = R[0]; r = set().union(*R[1:])
                if "d16" in mn: r |= R[0]
            elif lds:
                r = set().union(*R) | {("s","m0")}
            else:
                r = set().union(*R)
                if mn.startswith("buffer_"): d = R[0]
                else: d = R[1]
                if "x3" in mn or "x4" in mn: self.stdata = d
                if "atomic" in mn and "sc0" in self.mods: w = R[0]
            self.lds_dma = lds
        elif self.ds:
            if "read" in mn or "permute" in mn or "rtn" in mn or "swizzle" in mn:
                w = R[0]; r = set().union(*R[1:])
            else:
                r = set().union(*R)
        elif self.salu:
            if mn.startswith(("s_cmp","s_cbranch","s_branch","s_waitcnt","s_nop","s_barrier","s_endpgm","s_sleep","s_setprio","s_bitcmp")):
                r = set().union(*R) if R else set()
            else:
                w = R[0] if R else set(); r = set().union(*R[1:]) if len(R) > 1 else set()
                if "saveexec" in mn: w |= {("s","exec")}
        self.w = w; self.r = r
    def states(self):
        if self.mn == "s_nop": return int(self.ops[0], 0) + 1
        return 1 if self.mn else 0

def need(p, c):
    n = 0
    pv = {x for x in p.w if x[0] in "va"}
    ps = {x for x in p.w if x[0] == "s"}
    if p.mfma:
        k = 12 if p.passes == 8 else 8
        if c.mfma:
            if pv & (c.srcA | c.srcB): n = max(n, k)
            if pv & c.srcC and not (c.srcC == pv and c.passes == p.passes): n = max(n, k - 2)
            if pv & c.w and not (pv & c.srcC): n = max(n, 0)
        elif c.valu or c.vmem or c.ds:
            if pv & (c.r | c.w): n = max(n, k)
        if c.valu and (p.srcC & c.w): n = max(n, 7 if p.passes == 8 else 3)
    if p.valu:
        if c.mfma and pv & c.r: n = max(n, 2)
        if c.mfma and ("s","exec") in ps: n = max(n, 4)
        if p.trans and (c.valu or c.mfma) and not c.trans and pv & c.r: n = max(n, 2 if c.mfma else 1)
        if p.trans and (c.vmem or c.ds) and pv & c.r: n = max(n, 1)
        if c.vmem and ps & c.r: n = max(n, 5)
        if c.valu and ps & c.r:
            n = max(n, 4 if c.base in ("v_readlane_b32","v_writelane_b32") else 2)
        if c.valu and c.base == "v_cndmask_b32" and ("s","vcc") in ps and ("s","vcc") in c.r: n = max(n, 2)
        if c.base in ("v_readfirstlane_b32","v_readlane_b32") and pv & c.r: n = max(n, 1)
        if (c.permlane or c.dpp) and pv & c.r: n = max(n, 2)
        if c.dpp and ("s","exec") in ps: n = max(n, 5)
        if c.salu and ps & c.r: n = max(n, 1)
        if c.mn.startswith("s_cbranch_vcc") and ("s","vcc") in ps: n = max(n, 1)
    if p.salu:
        if ("s","m0") in ps and c.vmem and getattr(c, "lds_dma", False): n = max(n, 1)
        if ("s","exec") in ps and c.dpp: n = max(n, 1)
    if p.vmem and p.stdata:
        if p.stdata & c.w: n = max(n, 2 if c.valu else 1)
    return n

class Asm:
    def __init__(self):
        self.ins = []
        self.nlab = 0
    def __call__(self, text):
        for line in text.split("\n"):
            if line.strip(): self.ins.append(Ins(line.strip()))
    def lab(self, name="L"):
        self.nlab += 1
        return f"{name}_{self.nlab}"
    def finish(self, report=True):
        out = []
        WIN = 24
        inserted = 0
        for c in self.ins:
            if c.mn:
                dist = 0; req = 0
                for p in reversed(out):
                    if p.mn in ("s_branch","s_endpgm","s_setpc_b64"): break
                    if not p.mn: continue
                    k = need(p, c)
                    if k - dist > req: req = k - dist
                    dist += p.states()
                    if dist >= WIN: break
                while req > 0:
                    k = min(req, 16)
                    out.append(Ins(f"s_nop {k-1}")); req -= k; inserted += 1
            out.append(c)
        labels = {i.text.split(";")[0].strip()[:-1]: n for n, i in enumerate(out) if i.label}
        problems = []
        for n, b in enumerate(out):
            if b.mn.startswith(("s_cbranch", "s_branch")) and b.ops and b.ops[0] in labels:
                pre = []; d = 0
                for p in reversed(out[:n+1]):
                    if p is not b and p.mn in ("s_branch","s_endpgm"): break
                    if not p.mn: continue
                    pre.append(p); d += p.states()
                    if d >= WIN: break
                post = []; d = 0
                for c in out[labels[b.ops[0]]:]:
                    if not c.mn: continue
                    post.append(c); d += c.states()
                    if d >= WIN or c.mn in ("s_branch","s_endpgm"): break
                d2 = 0
                for c in post:
                    dist = d2
                    for p in pre:
                        k = need(p, c)
                        if k > dist: problems.append((b.text, p.text, c.text, k, dist))
                        dist += p.states()
                    d2 += c.states()
        if problems:
            for p in problems: print("HAZARD across branch:", p)
            raise SystemExit(1)
        txt = []
        for i in out:
            txt.append(i.text if (i.label or i.directive) else "    " + i.text)
        return "\n".join(txt) + "\n"
```

```python
import math, struct
from emit import Asm

def f32(x):
    return "0x%08x" % struct.unpack("<I", struct.pack("<f", x))[0]

QK_OFF = 0x0
QK_PART = 64*56*512
QK_TILE = 56*512
V_OFF  = 0x380000
T_OFF  = 0x580000
T_ROW = 30*1024
T2_OFF = 0x760000
T2_Q = 232*16
T2_ROW = 8*T2_Q
O_OFF  = 0x930000
WS_USED = 0xB30000

X_BYTES = 2048*448*2
W_BYTES = 2048*225*2
WQKV_BYTES = 448*1344*2
WO_BYTES = 448*448*2
OUT_BYTES = 2048*896*2
QSCALE = math.log2(math.e)/math.sqrt(28.0)

P_AX, P_WR, P_WI, P_BX, P_WQKV, P_WO, P_OUT, P_DBG, P_WS = 8,10,12,14,16,18,20,22,24

def vr(a, n=1):
    return f"v{a}" if n == 1 else f"v[{a}:{a+n-1}]"
def sr(a, n=1):
    return f"s{a}" if n == 1 else f"s[{a}:{a+n-1}]"

def srd(A, d, p, nbytes):
    A(f"s_mov_b32 s{d}, s{p}\ns_mov_b32 s{d+1}, s{p+1}\ns_mov_b32 s{d+2}, {nbytes}\ns_mov_b32 s{d+3}, 0x00020000")

def prologue(A, end):
    A(f"""s_cmp_ge_u32 s2, 256
s_cbranch_scc1 {end}
s_load_dwordx16 s[8:23], s[0:1], 0
s_load_dwordx2 s[24:25], s[0:1], 64
v_lshrrev_b32 v1, 6, v0
v_readfirstlane_b32 s3, v1
v_and_b32 v0, 63, v0""")

def pi32(A, d, s, t):
    A(f"""v_and_b32 v{d}, 0x13, v{s}
v_and_b32 v{t}, 4, v{s}
v_lshl_or_b32 v{d}, v{t}, 1, v{d}
v_and_b32 v{t}, 8, v{s}
v_lshrrev_b32 v{t}, 1, v{t}
v_or_b32 v{d}, v{d}, v{t}""")

MFMA = "v_mfma_f32_32x32x16_bf16"
SMF = "v_smfmac_f32_32x32x32_bf16"

K1_LDS = 7*16384 + 42*1024
def phase1(A, SC, done):
    SX, SW, SWS = 28, 32, 36
    LA1, LB1L, LA1L, LV = A.lab("A1"), A.lab("B1L"), A.lab("A1L"), A.lab("B1V")
    A(f"""s_and_b32 s4, s2, 7
s_lshr_b32 s5, s2, 3
s_cmp_ge_u32 s5, 22
s_cbranch_scc1 {LA1}
s_lshl_b32 s6, s4, 1
s_and_b32 s7, s5, 1
s_or_b32 s6, s6, s7            ; tb
s_lshr_b32 s7, s5, 1           ; cg
s_add_u32 s26, s6, s7
s_mul_i32 s27, s26, 37
s_lshr_b32 s27, s27, 8
s_mul_i32 s27, s27, 7
s_sub_u32 s26, s26, s27        ; start chunk = (tb+cg)%7
s_cmp_ge_u32 s3, 4
s_cbranch_scc1 {LB1L}""")
    ACC = 64
    def acc(a, b): return ACC + 32*a + 16*b
    for i in range(64): A(f"v_mov_b32 v{ACC+i}, 0")
    A(f"""s_and_b32 s41, s3, 1           ; wr
s_lshr_b32 s42, s3, 1          ; wc
v_and_b32 v14, 31, v0
v_lshrrev_b32 v15, 5, v0       ; h
s_cmp_ge_u32 s7, 7
s_cbranch_scc1 {LV}""")
    def b1_body(vtype):
        if vtype: pi32(A, 48, 14, 49)
        else: A("v_mov_b32 v48, v14")
        A(f"""v_lshrrev_b32 v49, 1, v48
v_and_b32 v49, 7, v49
v_xor_b32 v49, v49, v15
v_lshlrev_b32 v49, 4, v49
v_lshl_or_b32 v2, v48, 7, v49
s_lshl_b32 s43, s41, 13
v_add_u32 v2, s43, v2
v_xor_b32 v3, 32, v2
v_xor_b32 v4, 64, v2
v_xor_b32 v5, 96, v2""")
        A(f"""v_bfe_u32 v48, v0, 2, 2        ; rr
v_and_b32 v49, 3, v0           ; cc""")
        if not vtype:
            A("""v_lshrrev_b32 v50, 1, v49
v_and_b32 v49, 1, v49
v_lshl_or_b32 v49, v49, 1, v50 ; sigma(cc)""")
        A(f"""v_bfe_u32 v50, v0, 4, 1        ; colhalf
v_lshlrev_b32 v50, 5, v50
v_lshl_or_b32 v50, v49, 3, v50
s_lshl_b32 s43, s42, 7
v_or_b32 v50, s43, v50
v_lshlrev_b32 v51, 6, v48
v_xor_b32 v50, v50, v51
v_lshl_add_u32 v51, v15, 3, v48 ; 8h+rr
v_lshl_or_b32 v6, v51, 8, v50
v_add_u32 v6, 16384, v6
v_xor_b32 v7, 64, v6""")
        def reads(kap, p):
            xb, wb = 16+16*p, 24+16*p
            for a in range(2):
                A(f"ds_read_b128 {vr(xb+4*a,4)}, v{8+kap} offset:{4096*a}")
            for b in range(2):
                for u in range(2):
                    A(f"ds_read_b64_tr_b16 {vr(wb+4*b+2*u,2)}, v{12+b} offset:{(16*kap+4*u)*256}")
        def setaddr():
            for i in range(6): A(f"v_add_u32 v{8+i}, s44, v{2+i}")
        LL, LS = A.lab("b1loop"), A.lab("b1skip")
        A("s_mov_b32 s44, 0\ns_mov_b32 s45, 0")
        setaddr()
        A("s_barrier")
        reads(0, 0)
        A(f"{LL}:")
        for kap in range(4):
            p = kap & 1
            if kap < 3:
                reads(kap+1, p^1)
                A("s_waitcnt lgkmcnt(6)")
            else:
                A(f"""s_waitcnt lgkmcnt(0)
s_add_u32 s45, s45, 1
s_cmp_eq_u32 s45, 7
s_cbranch_scc1 {LS}
s_add_u32 s44, s44, 0x8000
s_and_b32 s44, s44, 0x1ffff""")
                setaddr()
                A("s_barrier")
                reads(0, 0)
                A(f"{LS}:")
            xb, wb = 16+16*p, 24+16*p
            for a in range(2):
                for b in range(2):
                    x, w = vr(xb+4*a,4), vr(wb+4*b,4)
                    o = (x, w) if vtype else (w, x)
                    A(f"{MFMA} {vr(acc(a,b),16)}, {o[0]}, {o[1]}, {vr(acc(a,b),16)}")
        A(f"s_cmp_lg_u32 s45, 7\ns_cbranch_scc1 {LL}")
        srd(A, SWS, P_WS, WS_USED)
        A(f"""s_lshl_b32 s46, s6, 2
s_lshl_b32 s47, s41, 1
s_add_u32 s46, s46, s47
s_lshl_b32 s47, s7, 2
s_lshl_b32 s48, s42, 1
s_add_u32 s47, s47, s48""")
        if not vtype:
            LK = A.lab("b1k")
            A(f"""s_mul_i32 s46, s46, {QK_TILE}
s_lshl_b32 s48, s47, 11
s_add_u32 s46, s46, s48
v_lshlrev_b32 v2, 4, v0
s_cmp_ge_u32 s47, 14
s_cselect_b32 s48, {QK_PART - 14*2048 + QK_OFF}, {QK_OFF}
s_add_u32 s46, s46, s48
s_add_u32 s49, s46, {QK_TILE}
s_nop 7
s_cmp_ge_u32 s47, 14
s_cbranch_scc1 {LK}""")
            for i in range(64): A(f"v_mul_f32 v{ACC+i}, {f32(QSCALE)}, v{ACC+i}")
            A(f"{LK}:")
            for a in range(2):
                for b in range(2):
                    d = 16 + 8*(2*a+b)
                    for i in range(8): A(f"v_cvt_pk_bf16_f32 v{d+i}, v{acc(a,b)+2*i}, v{acc(a,b)+2*i+1}")
                    for i in range(2):
                        A(f"buffer_store_dwordx4 {vr(d+4*i,4)}, v2, {sr(SWS,4)}, s{46 if a==0 else 49} offen offset:{2048*b+1024*i} {SC}")
        else:
            A(f"""s_sub_u32 s47, s47, 28
s_cmp_ge_u32 s47, 14
s_cbranch_scc1 {done}
s_lshl_b32 s46, s46, 11
s_add_u32 s46, s46, {V_OFF}
s_lshl_b32 s47, s47, 5""")
            for b in range(2):
                A(f"""v_add_u32 v48, s47, v14
v_add_u32 v48, {32*b}, v48
v_mul_u32_u24 v49, 2341, v48
v_lshrrev_b32 v49, 16, v49     ; head
v_mul_u32_u24 v50, 28, v49
v_sub_u32 v48, v48, v50        ; d
v_lshlrev_b32 v48, 4, v48
v_lshl_or_b32 v48, v15, 9, v48
v_lshl_or_b32 v{2+b}, v49, 17, v48""")
            for a in range(2):
                for b in range(2):
                    d = 16 + 8*(2*a+b)
                    for i in range(8): A(f"v_cvt_pk_bf16_f32 v{d+i}, v{acc(a,b)+2*i}, v{acc(a,b)+2*i+1}")
                    for i in range(2):
                        A(f"buffer_store_dwordx4 {vr(d+4*i,4)}, v{2+b}, {sr(SWS,4)}, s46 offen offset:{2048*a+1024*i} {SC}")
        A(f"s_branch {done}")
    A("s_waitcnt lgkmcnt(0)")
    b1_body(False)
    A(f"{LV}:\ns_waitcnt lgkmcnt(0)")
    b1_body(True)

    def xaddr(rs):
        A(f"""v_lshrrev_b32 v1, 3, v0
v_and_b32 v14, 7, v0
v_lshrrev_b32 v15, 4, v0
v_xor_b32 v14, v14, v15
v_lshlrev_b32 v14, 4, v14
v_xor_b32 v16, 64, v14
v_mul_u32_u24 v1, {rs}, v1
v_add_u32 v2, v1, v14
v_add_u32 v3, v1, v16
v_add_u32 v3, {8*rs-1024}, v3
v_add_u32 v4, {2*(8*rs-1024)}, v2
v_add_u32 v5, {2*(8*rs-1024)}, v3""")
    A(f"{LB1L}:\ns_sub_u32 s40, s3, 4")
    xaddr(896)
    A(f"""v_and_b32 v14, 15, v0
v_lshlrev_b32 v16, 2, v15
v_xor_b32 v14, v14, v16
v_lshlrev_b32 v14, 4, v14
v_mul_u32_u24 v15, 2688, v15
v_add_u32 v6, v14, v15
v_add_u32 v7, {4*2688-1024}, v6
v_add_u32 v8, {2*(4*2688-1024)}, v6
v_add_u32 v9, {3*(4*2688-1024)}, v6
s_lshl_b32 s41, s6, 2
s_add_u32 s41, s41, s40
s_mul_i32 s41, s41, {32*896}     ; x base
s_mul_i32 s42, s40, {16*2688}
s_lshl_b32 s43, s7, 8
s_add_u32 s42, s42, s43          ; w base
s_lshl_b32 s44, s40, 12
s_waitcnt lgkmcnt(0)""")
    srd(A, SX, P_BX, X_BYTES); srd(A, SW, P_WQKV, WQKV_BYTES)
    def b1_issue(slot):
        A(f"""s_lshl_b32 s45, s26, 7
s_add_u32 s45, s45, s41
s_mul_i32 s46, s26, {64*2688}
s_add_u32 s46, s46, s42
s_add_u32 m0, s44, {slot*32768}""")
        for i in range(4): A(f"buffer_load_dwordx4 v{2+i}, {sr(SX,4)}, s45 offen offset:{1024*i} lds")
        A(f"s_add_u32 m0, s44, {slot*32768+16384}")
        for i in range(4): A(f"buffer_load_dwordx4 v{6+i}, {sr(SW,4)}, s46 offen offset:{1024*i} lds")
        A("s_add_u32 s26, s26, 1\ns_cmp_eq_u32 s26, 7\ns_cselect_b32 s26, 0, s26")
    b1_issue(0); b1_issue(1)
    for n in range(7):
        A(f"s_waitcnt vmcnt({8 if n < 6 else 0})\ns_barrier")
        if n + 2 <= 6: b1_issue((n+2) % 4)
    A(f"""s_cmp_lt_u32 s7, 7
s_cbranch_scc1 {done}
s_cmp_lg_u32 s40, 0
s_cbranch_scc1 {done}""")
    srd(A, SWS, P_WS, WS_USED)
    A(f"""v_and_b32 v1, 3, v0
v_lshrrev_b32 v2, 2, v0
v_lshlrev_b32 v2, 9, v2
v_lshl_or_b32 v2, v1, 17, v2
s_sub_u32 s45, s7, 7
s_lshl_b32 s45, s45, 19
s_lshl_b32 s46, s6, 13
s_add_u32 s45, s45, s46
s_add_u32 s45, s45, {V_OFF + 28*16}
v_mov_b32 v4, 0x3f803f80
v_mov_b32 v5, 0x3f803f80
v_mov_b32 v6, 0x3f803f80
v_mov_b32 v7, 0x3f803f80
buffer_store_dwordx4 v[4:7], v2, {sr(SWS,4)}, s45 offen {SC}
s_branch {done}""")

    FOFF = 7*16384
    A(f"""{LA1}:
s_sub_u32 s5, s5, 22
s_lshl_b32 s6, s4, 1
s_and_b32 s7, s5, 1
s_or_b32 s6, s6, s7            ; q  (s2 quad)
s_lshr_b32 s7, s5, 1           ; g5
s_mul_i32 s26, s7, 3
s_lshr_b32 s26, s26, 1         ; e0 in 0,1,3,4,6
s_cmp_ge_u32 s3, 4
s_cbranch_scc1 {LA1L}""")
    A("v_and_b32 v14, 31, v0\nv_lshrrev_b32 v15, 5, v0")
    pi32(A, 48, 14, 49)
    A(f"""v_lshrrev_b32 v48, 1, v48       ; k_local
s_mul_i32 s41, s7, 48
v_add_u32 v48, s41, v48
v_cvt_f32_u32 v48, v48
v_mul_f32 v56, {f32(1/448)}, v48
v_add_f32 v48, {f32(16.0)}, v48
v_mul_f32 v57, {f32(1/448)}, v48
v_add_f32 v48, {f32(16.0)}, v48
v_mul_f32 v58, {f32(1/448)}, v48
v_and_b32 v48, 1, v14
v_cvt_f32_u32 v48, v48
v_mul_f32 v59, {f32(0.25)}, v48  ; c/4
v_lshlrev_b32 v60, 3, v15        ; 8h
v_lshlrev_b32 v61, 4, v0
v_add_u32 v61, {FOFF}, v61
s_mov_b32 s42, s3""")
    LF = A.lab("fgen")
    A(f"""{LF}:
s_lshl_b32 s43, s42, 4
v_add_u32 v52, s43, v60
v_cvt_f32_u32 v52, v52
s_lshl_b32 s43, s42, 10
v_add_u32 v53, s43, v61""")
    for kgi in range(3):
        t = 16 + 12*kgi
        A(f"v_fma_f32 v{t}, v{56+kgi}, v52, v59")
        for j in range(1, 8): A(f"v_fmamk_f32 v{t+j}, v{56+kgi}, {f32(float(j))}, v{t}")
        for j in range(8): A(f"v_cos_f32 v{t+j}, v{t+j}")
        for j in range(4): A(f"v_cvt_pk_bf16_f32 v{t+8+j}, v{t+2*j}, v{t+2*j+1}")
        A(f"ds_write_b128 v53, {vr(t+8,4)} offset:{14336*kgi}")
    A(f"s_add_u32 s42, s42, 4\ns_cmp_lt_u32 s42, 14\ns_cbranch_scc1 {LF}")
    A(f"""s_lshl_b32 s41, s6, 2
s_add_u32 s41, s41, s3          ; s2 index
v_lshlrev_b32 v48, 8, v15
v_add_u32 v48, s41, v48
v_mul_u32_u24 v48, v14, v48
v_cvt_f32_u32 v48, v48
v_mul_f32 v48, {f32(1/2048)}, v48
v_cvt_f32_u32 v49, v14
v_mul_f32 v49, {f32(1/32)}, v49""")
    for i in range(2):
        for j in range(8):
            A(f"v_fmamk_f32 v{16+j}, v49, {f32(float(16*i+8*(j>>2)+(j&3)))}, v48")
        for j in range(8): A(f"v_cos_f32 v{24+j}, v{16+j}")
        for j in range(8): A(f"v_sin_f32 v{32+j}, v{16+j}")
        for j in range(4): A(f"v_cvt_pk_bf16_f32 v{160+4*i+j}, v{24+2*j}, v{25+2*j}")
        for j in range(4): A(f"v_cvt_pk_bf16_f32 v{168+4*i+j}, -v{32+2*j}, -v{33+2*j}")
    for i in range(96): A(f"v_mov_b32 v{64+i}, 0")
    A(f"""v_lshrrev_b32 v49, 1, v14
v_and_b32 v49, 7, v49
v_xor_b32 v49, v49, v15
v_lshlrev_b32 v49, 4, v49
v_lshl_or_b32 v2, v14, 7, v49
s_lshl_b32 s43, s3, 12
v_add_u32 v2, s43, v2""")
    def a1addr():
        A(f"""s_lshr_b32 s43, s26, 1
s_lshl_b32 s43, s43, 14
s_and_b32 s44, s26, 1
s_lshl_b32 s44, s44, 6
s_or_b32 s43, s43, s44
v_xor_b32 v8, s43, v2
v_xor_b32 v9, 32, v8
s_add_u32 s43, s26, 7
s_lshr_b32 s43, s43, 1
s_lshl_b32 s43, s43, 14
s_xor_b32 s44, s44, 64
s_or_b32 s43, s43, s44
v_xor_b32 v10, s43, v2
v_xor_b32 v11, 32, v10
s_lshl_b32 s43, s26, 11
v_add_u32 v12, s43, v61""")
    def a1reads(t):
        b = 16 + 20*t
        A(f"ds_read_b128 {vr(b,4)}, v{8+t}")
        for kgi in range(3): A(f"ds_read_b128 {vr(b+8+4*kgi,4)}, v12 offset:{1024*t+14336*kgi}")
        A(f"ds_read_b128 {vr(b+4,4)}, v{10+t}")
    def a1mfma(t):
        b = 16 + 20*t
        for hi in range(2):
            for kgi in range(3):
                d = 64 + 32*kgi + 16*hi
                A(f"{MFMA} {vr(d,16)}, {vr(b+4*hi,4)}, {vr(b+8+4*kgi,4)}, {vr(d,16)}")
    LL, LS, LNB = A.lab("a1loop"), A.lab("a1skip"), A.lab("a1nb")
    a1addr()
    A("s_mov_b32 s45, 0\ns_waitcnt lgkmcnt(0)\ns_barrier")
    a1reads(0)
    A(f"{LL}:")
    a1reads(1)
    A("s_waitcnt lgkmcnt(5)")
    a1mfma(0)
    A(f"""s_waitcnt lgkmcnt(0)
s_add_u32 s45, s45, 1
s_cmp_eq_u32 s45, 7
s_cbranch_scc1 {LS}
s_add_u32 s26, s26, 1
s_cmp_eq_u32 s26, 7
s_cselect_b32 s26, 0, s26""")
    a1addr()
    A(f"s_cmp_eq_u32 s45, 6\ns_cbranch_scc1 {LNB}\ns_barrier\n{LNB}:")
    a1reads(0)
    A(f"{LS}:")
    a1mfma(1)
    A(f"s_cmp_lg_u32 s45, 7\ns_cbranch_scc1 {LL}")
    srd(A, SWS, P_WS, WS_USED)
    A(f"""v_and_b32 v3, 2, v14
v_lshlrev_b32 v3, 30, v3
v_or_b32 v3, 1.0, v3            ; (-1)^k
v_lshlrev_b32 v4, 5, v14
v_lshl_or_b32 v4, v15, 4, v4
s_mul_i32 s41, s41, {T_ROW}
s_mul_i32 s42, s7, 6144
s_add_u32 s41, s41, s42
s_add_u32 s41, s41, {T_OFF}
s_add_u32 s42, s41, 2048
s_add_u32 s43, s41, 4096""")
    for kgi in range(3):
        P, Q = 64+32*kgi, 80+32*kgi
        for i in range(16): A(f"v_fmac_f32 v{P+i}, v3, v{Q+i}")
        for i in range(8): A(f"v_cvt_pk_bf16_f32 v{16+8*kgi+i}, v{P+2*i}, v{P+2*i+1}")
        A(f"""{MFMA} {vr(P,16)}, {vr(16+8*kgi,4)}, v[160:163], 0
{MFMA} {vr(Q,16)}, {vr(16+8*kgi,4)}, v[168:171], 0
{MFMA} {vr(P,16)}, {vr(20+8*kgi,4)}, v[164:167], {vr(P,16)}
{MFMA} {vr(Q,16)}, {vr(20+8*kgi,4)}, v[172:175], {vr(Q,16)}""")
    for kgi in range(3):
        P, Q = 64+32*kgi, 80+32*kgi
        for j in range(8):
            A(f"v_sub_f32 v{P+2*j}, v{P+2*j}, v{Q+2*j+1}\nv_add_f32 v{Q+2*j}, v{Q+2*j}, v{P+2*j+1}")
        for j in range(8): A(f"v_cvt_pk_bf16_f32 v{40+8*kgi+j}, v{P+2*j}, v{Q+2*j}")
        for i in range(2):
            A(f"buffer_store_dwordx4 {vr(40+8*kgi+4*i,4)}, v4, {sr(SWS,4)}, s{41+kgi} offen offset:{1024*i} {SC}")
    A(f"s_branch {done}")
    A(f"{LA1L}:\ns_sub_u32 s40, s3, 4")
    xaddr(64*896)
    A(f"""s_lshl_b32 s41, s6, 2
s_add_u32 s41, s41, s40
s_mul_i32 s41, s41, 896
s_lshl_b32 s44, s40, 12
s_lshl_b32 s26, s26, 2
s_add_u32 s26, s26, 3
s_mul_i32 s27, s26, 37
s_lshr_b32 s27, s27, 8
s_mul_i32 s27, s27, 7
s_sub_u32 s26, s26, s27        ; first chunk = (3+4*e0)%7
s_waitcnt lgkmcnt(0)""")
    srd(A, SX, P_AX, X_BYTES)
    def a1_issue():
        A(f"""s_lshl_b32 s45, s26, 7
s_add_u32 s45, s45, s41
s_lshl_b32 s46, s26, 14
s_add_u32 m0, s44, s46""")
        for i in range(4): A(f"buffer_load_dwordx4 v{2+i}, {sr(SX,4)}, s45 offen offset:{1024*i} lds")
        A("s_add_u32 s26, s26, 4\ns_sub_u32 s27, s26, 7\ns_cmp_ge_u32 s26, 7\ns_cselect_b32 s26, s27, s26")
    for n in range(4): a1_issue()
    for n in range(6):
        A(f"s_waitcnt vmcnt({8 if n < 4 else (4 if n == 4 else 0)})\ns_barrier")
        if n < 3: a1_issue()
    A(f"s_branch {done}")

def lds_sync(A, addr, target, vt=6, st=60):
    L = A.lab("sync")
    A(f"""s_waitcnt lgkmcnt(0)
v_mov_b32 v{vt}, {addr}
v_mov_b32 v{vt+1}, 1
s_mov_b64 exec, 1
ds_add_u32 v{vt}, v{vt+1}
s_mov_b64 exec, -1
{L}:
ds_read_b32 v{vt+1}, v{vt}
s_waitcnt lgkmcnt(0)
v_readfirstlane_b32 s{st}, v{vt+1}
s_cmp_lt_u32 s{st}, {target}
s_cbranch_scc1 {L}""")

def attention(A, SC, done, MERGE, sync):
    SWS = 36
    Q, S, O, KV = 16, 48, 112, 176
    def q(j,i): return vr(Q+8*j+4*i, 4)
    def kb(b,i): return KV+16*b+4*i
    HI = "quad_perm:[0,1,2,3] row_mask:0xc bank_mask:0xf"
    A(f"""s_and_b32 s4, s2, 7
s_lshl_b32 s4, s4, 1
s_bfe_u32 s5, s2, 0x10003
s_or_b32 s4, s4, s5            ; head
s_lshr_b32 s5, s2, 4           ; qb
s_mul_i32 s6, s4, 7
s_add_u32 s6, s6, 1
s_lshr_b32 s6, s6, 1
s_lshl_b32 s6, s6, 9
v_lshlrev_b32 v3, 4, v0
v_add_u32 v1, s6, v3
s_bitcmp1_b32 s4, 0
s_cselect_b32 s7, -2040, 0
v_add_u32 v2, 1024, v1
v_add_u32 v6, s7, v2
v_mov_b32 v4, 0x3f80
v_mov_b32_dpp v2, v6 {HI}
s_lshl_b32 s7, s4, 17
v_add_u32 v3, s7, v3           ; V offset
v_mov_b32 v5, 0xdddd
v_mov_b32 v7, 0
s_lshl_b32 s40, s3, 4          ; 16*w
s_mov_b32 s41, s5
s_waitcnt lgkmcnt(0)""")
    srd(A, SWS, P_WS, WS_USED)
    W = sr(SWS,4)
    for j in range(4):
        A(f"""s_add_u32 s42, s3, {j}
s_and_b32 s42, s42, 3
s_lshl_b32 s43, s5, 2
s_add_u32 s42, s42, s43
s_mul_i32 s42, s42, {QK_TILE}
s_add_u32 s42, s42, {QK_OFF}
buffer_load_dwordx4 {q(j,0)}, v1, {W}, s42 offen {SC}
buffer_load_dwordx4 {q(j,1)}, v2, {W}, s42 offen {SC}""")
    A(f"""s_mul_i32 s42, s5, {4*QK_TILE}
s_add_u32 s42, s42, {QK_OFF+QK_PART}
buffer_load_dwordx4 {vr(kb(3,0),4)}, v1, {W}, s42 offen {SC}
buffer_load_dwordx4 {vr(kb(3,1),4)}, v2, {W}, s42 offen {SC}""")
    def tile_addr():
        return [f"s_and_b32 s42, s41, 15", "s_add_u32 s42, s42, s40", f"s_mul_i32 s43, s42, {QK_TILE}",
                f"s_add_u32 s43, s43, {QK_OFF+QK_PART}", "s_lshl_b32 s44, s42, 11", f"s_add_u32 s44, s44, {V_OFF}",
                "s_add_u32 s41, s41, 1"]
    def tile_loads(b):
        return [f"buffer_load_dwordx4 {vr(kb(b,0),4)}, v1, {W}, s43 offen {SC}",
                f"buffer_load_dwordx4 {vr(kb(b,1),4)}, v2, {W}, s43 offen {SC}",
                f"buffer_load_dwordx4 {vr(kb(b,2),4)}, v3, {W}, s44 offen {SC}",
                f"buffer_load_dwordx4 {vr(kb(b,3),4)}, v3, {W}, s44 offen offset:1024 {SC}"]
    for b in range(3):
        for x in tile_addr() + tile_loads(b): A(x)
    for i in range(64): A(f"v_mov_b32 v{O+i}, 0")
    A("s_waitcnt vmcnt(12)")
    for j in range(4):
        A(f"v_mov_b32_dpp v{Q+8*j+6}, v7 {HI}\nv_mov_b32_dpp v{Q+8*j+7}, v7 {HI}")
    for j in range(4):
        A(f"{MFMA} {vr(S+16*j,16)}, {vr(kb(3,0),4)}, {q(j,0)}, 0")
        A(f"{MFMA} {vr(S+16*j,16)}, {vr(kb(3,1),4)}, {q(j,1)}, {vr(S+16*j,16)}")
    for j in range(4):
        s = S+16*j
        A(f"v_max3_f32 v{8+j}, v{s}, v{s+1}, v{s+2}")
        for i in range(3, 15, 2): A(f"v_max3_f32 v{8+j}, v{8+j}, v{s+i}, v{s+i+1}")
        A(f"v_max_f32 v{8+j}, v{8+j}, v{s+15}")
        A(f"v_cvt_pk_bf16_f32 v{8+j}, -v{8+j}, v7")
    for j in range(4): A(f"v_mov_b32_dpp v{Q+8*j+6}, v{8+j} {HI}")
    A(f"s_waitcnt vmcnt(8)\nv_mov_b32_dpp v{kb(0,1)+2}, v4 {HI}")
    A(f"{MFMA} {vr(S,16)}, {vr(kb(0,0),4)}, {q(0,0)}, 0")
    A(f"{MFMA} {vr(S,16)}, {vr(kb(0,1),4)}, {q(0,1)}, {vr(S,16)}")
    for n in range(64):
        i, j = n >> 2, n & 3
        extra = []
        if j == 1 and i + 3 < 16: extra = tile_addr() + tile_loads((i+3) & 3)
        m = [None]*4
        pre = []
        if n < 63:
            i2, j2 = (n+1) >> 2, (n+1) & 3
            if j2 == 0:
                left = min(15, i+3) - (i+1)
                pre = [f"s_waitcnt vmcnt({4*left})", f"v_mov_b32_dpp v{kb(i2&3,1)+2}, v4 {HI}"]
            m[0] = f"{MFMA} {vr(S+16*j2,16)}, {vr(kb(i2&3,0),4)}, {q(j2,0)}, 0"
            m[1] = f"{MFMA} {vr(S+16*j2,16)}, {vr(kb(i2&3,1),4)}, {q(j2,1)}, {vr(S+16*j2,16)}"
        if n > 0:
            i0, j0 = (n-1) >> 2, (n-1) & 3
            m[2] = f"{SMF} {vr(O+16*j0,16)}, {vr(kb(i0&3,3),4)}, {vr(S+16*j0+8,8)}, v5"
        m[3] = f"{SMF} {vr(O+16*j,16)}, {vr(kb(i&3,2),4)}, {vr(S+16*j,8)}, v5"
        for x in pre: A(x)
        for g in range(4):
            if m[g]: A(m[g])
            for e in range(4):
                r = S+16*j+4*g+e
                A(f"v_exp_f32 v{r}, v{r}")
                if extra: A(extra.pop(0))
        assert not extra
    A(f"{SMF} {vr(O+48,16)}, {vr(kb(3,3),4)}, {vr(S+48+8,8)}, v5")
    A("v_lshlrev_b32 v8, 4, v0")
    for j in range(1, 4):
        A(f"""s_add_u32 s42, s3, {j}
s_and_b32 s42, s42, 3
s_mul_i32 s42, s42, 12288
s_add_u32 s42, s42, {MERGE + 4096*(j-1)}
v_add_u32 v9, s42, v8""")
        for g in range(4): A(f"ds_write_b128 v9, {vr(O+16*j+4*g,4)} offset:{1024*g}")
    A(f"s_mul_i32 s42, s3, 12288\ns_add_u32 s42, s42, {MERGE}\nv_add_u32 v9, s42, v8")
    sync()
    for g in range(12): A(f"ds_read_b128 {vr(S+4*g,4)}, v9 offset:{1024*g}")
    for k in range(3):
        A(f"s_waitcnt lgkmcnt({8-4*k})")
        for i in range(16): A(f"v_add_f32 v{O+i}, v{O+i}, v{S+16*k+i}")
    LN, LFB = A.lab("norm"), A.lab("fallback")
    A(f"""v_mov_b32 v10, v{O+12}
v_mov_b32 v11, v{O+12}
v_permlane32_swap_b32 v10, v11
v_cmp_nle_f32 vcc, {f32(2.0**-40)}, v11
s_mov_b64 s[46:47], vcc
v_cmp_nge_f32 vcc, {f32(2.0**40)}, v11
s_or_b64 vcc, vcc, s[46:47]
s_cbranch_vccnz {LFB}
{LN}:
v_rcp_f32 v11, v11
s_lshl_b32 s42, s5, 2
s_add_u32 s42, s42, s3
s_lshl_b32 s42, s42, 15
s_lshl_b32 s43, s4, 11
s_add_u32 s42, s42, s43
s_add_u32 s42, s42, {O_OFF}""")
    for i in range(16): A(f"v_mul_f32 v{O+i}, v{O+i}, v11")
    for i in range(8): A(f"v_cvt_pk_bf16_f32 v{S+i}, v{O+2*i}, v{O+2*i+1}")
    A(f"""v_mov_b32_dpp v{S+6}, v7 {HI}
v_mov_b32_dpp v{S+7}, v7 {HI}
buffer_store_dwordx4 {vr(S,4)}, v8, {W}, s42 offen {SC}
buffer_store_dwordx4 {vr(S+4,4)}, v8, {W}, s42 offen offset:1024 {SC}
s_branch {done}""")
    L1, L2 = A.lab("fb1"), A.lab("fb2")
    A(f"""{LFB}:
v_mov_b32_dpp v{Q+6}, v7 {HI}
v_mov_b32 v12, 0xff800000
s_mov_b32 s43, {QK_OFF+QK_PART}
{L1}:
buffer_load_dwordx4 {vr(kb(0,0),4)}, v1, {W}, s43 offen {SC}
buffer_load_dwordx4 {vr(kb(0,1),4)}, v2, {W}, s43 offen {SC}
s_waitcnt vmcnt(0)
{MFMA} {vr(S,16)}, {vr(kb(0,0),4)}, {q(0,0)}, 0
{MFMA} {vr(S,16)}, {vr(kb(0,1),4)}, {q(0,1)}, {vr(S,16)}""")
    for i in range(0, 16, 2): A(f"v_max3_f32 v12, v12, v{S+i}, v{S+i+1}")
    A(f"""s_add_u32 s43, s43, {QK_TILE}
s_cmp_lt_u32 s43, {QK_OFF+2*QK_PART}
s_cbranch_scc1 {L1}
v_mov_b32 v13, v12
v_mov_b32 v14, v12
v_permlane32_swap_b32 v13, v14
v_max_f32 v12, v13, v14""")
    for i in range(16): A(f"v_mov_b32 v{O+i}, 0")
    A(f"""s_mov_b32 s43, {QK_OFF+QK_PART}
s_mov_b32 s44, {V_OFF}
{L2}:""")
    for x in tile_loads(0): A(x)
    A(f"""s_waitcnt vmcnt(0)
{MFMA} {vr(S,16)}, {vr(kb(0,0),4)}, {q(0,0)}, 0
{MFMA} {vr(S,16)}, {vr(kb(0,1),4)}, {q(0,1)}, {vr(S,16)}""")
    for i in range(16): A(f"v_sub_f32 v{S+i}, v{S+i}, v12")
    for i in range(16): A(f"v_exp_f32 v{S+i}, v{S+i}")
    A(f"""{SMF} {vr(O,16)}, {vr(kb(0,2),4)}, {vr(S,8)}, v5
{SMF} {vr(O,16)}, {vr(kb(0,3),4)}, {vr(S+8,8)}, v5
s_nop 15
s_add_u32 s43, s43, {QK_TILE}
s_add_u32 s44, s44, 2048
s_cmp_lt_u32 s43, {QK_OFF+2*QK_PART}
s_cbranch_scc1 {L2}
v_mov_b32 v10, v{O+12}
v_mov_b32 v11, v{O+12}
v_permlane32_swap_b32 v10, v11
s_nop 1
s_branch {LN}""")

def phaseA2(A, SC, done, EX, sync):
    SA, SB, SWS = 28, 32, 36
    T, C, ACC, WA, WB, Y = 16, 48, 80, 96, 104, 112
    A(f"""s_and_b32 s4, s2, 7            ; uq
s_lshr_b32 s5, s2, 3           ; ko
s_cmp_ge_u32 s5, 29
s_cbranch_scc1 {done}
v_and_b32 v14, 31, v0
v_lshrrev_b32 v15, 5, v0
v_mul_u32_u24 v1, {2*T_ROW}, v15
v_lshl_add_u32 v1, v14, 2, v1   ; T offset
v_lshrrev_b32 v8, 3, v14        ; u1 local
v_and_b32 v9, 7, v14            ; k local
v_lshl_add_u32 v2, v15, 6, v8
v_mul_u32_u24 v2, 450, v2
v_lshl_add_u32 v2, v9, 1, v2    ; W offset
v_mul_u32_u24 v3, {2*T2_ROW}, v15
v_lshl_add_u32 v3, v9, 4, v3
v_lshl_add_u32 v3, v8, 2, v3    ; T2 offset
s_lshl_b32 s41, s5, 10
s_lshl_b32 s42, s4, 7
s_add_u32 s41, s41, s42
s_add_u32 s41, s41, {T_OFF}
s_mul_i32 s42, s4, {4*450}
s_mul_i32 s43, s40, {512*450}
s_add_u32 s42, s42, s43
s_lshl_b32 s43, s5, 4
s_add_u32 s42, s42, s43""")
    for i in range(16): A(f"v_mov_b32 v{WA+i}, 0")
    LNY, LNY2 = A.lab("nyq"), A.lab("nyq")
    A("s_waitcnt lgkmcnt(0)")
    srd(A, SA, P_WR, W_BYTES); srd(A, SB, P_WI, W_BYTES); srd(A, SWS, P_WS, WS_USED)
    A(f"s_cmp_lg_u32 s5, 28\ns_cbranch_scc1 {LNY}")
    srd(A, SA, P_WI, W_BYTES); srd(A, SB, P_WR, W_BYTES)
    A(f"{LNY}:")
    for f in range(8):
        for p in range(4):
            A(f"s_add_u32 s43, s41, {(8*f+4*(p>>1)+(p&1))*T_ROW}\nbuffer_load_dword v{T+4*f+p}, v1, {sr(SWS,4)}, s43 offen {SC}")
    for j in range(8):
        A(f"""s_add_u32 s43, s42, {32*(4*(j>>1)+(j&1))*450}
buffer_load_short_d16_hi v{WA+j}, v2, {sr(SA,4)}, s43 offen
buffer_load_short_d16_hi v{WB+j}, v2, {sr(SB,4)}, s43 offen""")
    A(f"""v_lshrrev_b32 v8, 1, v14
s_lshl_b32 s43, s40, 4
v_add_u32 v8, s43, v8
v_cvt_f32_u32 v8, v8
v_mul_f32 v8, {f32(1/64)}, v8    ; step = u2/64
v_and_b32 v9, 1, v14
v_cvt_f32_u32 v9, v9
v_mul_f32 v9, {f32(0.25)}, v9
v_lshlrev_b32 v10, 1, v15
v_cvt_f32_u32 v10, v10
v_fma_f32 v9, v8, v10, v9        ; base""")
    for f in range(8):
        for p in range(4): A(f"v_fmamk_f32 v{ACC+p}, v8, {f32(float(8*f+4*(p>>1)+(p&1)))}, v9")
        for p in range(4): A(f"v_cos_f32 v{ACC+4+p}, v{ACC+p}")
        for p in range(4): A(f"v_sin_f32 v{ACC+8+p}, v{ACC+p}")
        for p in range(4): A(f"v_cvt_pk_bf16_f32 v{C+4*f+p}, v{ACC+4+p}, v{ACC+8+p}")
    A("s_waitcnt vmcnt(16)")
    for f in range(8):
        A(f"{MFMA} {vr(ACC,16)}, {vr(C+4*f,4)}, {vr(T+4*f,4)}, {vr(ACC,16) if f else 0}")
    A(f"""s_waitcnt vmcnt(0)
v_lshlrev_b32 v8, 4, v0
v_add_u32 v8, {EX}, v8
s_lshl_b32 s43, s40, 11
v_add_u32 v9, s43, v8
s_cmp_lg_u32 s5, 28
s_cbranch_scc1 {LNY2}""")
    for j in range(8): A(f"v_xor_b32 v{WA+j}, 0x80000000, v{WA+j}")
    A(f"{LNY2}:\ns_nop 7")
    for j in range(8):
        xr, xi = ACC+2*j, ACC+2*j+1
        A(f"""v_mul_f32 v10, v{xr}, v{WA+j}
v_mul_f32 v11, v{xr}, v{WB+j}
v_fma_f32 v10, -v{xi}, v{WB+j}, v10
v_fmac_f32 v11, v{xi}, v{WA+j}
v_cvt_pk_bf16_f32 v{Y+j}, v11, v10""")
    A(f"ds_write_b128 v9, {vr(Y,4)}\nds_write_b128 v9, {vr(Y+4,4)} offset:1024")
    sync()
    for f in range(8): A(f"ds_read_b128 {vr(T+4*f,4)}, v8 offset:{1024*f}")
    A(f"""s_mul_i32 s41, s40, {16*T2_ROW}
s_mul_i32 s42, s4, {T2_Q}
s_add_u32 s41, s41, s42
s_lshl_b32 s42, s5, 7
s_add_u32 s41, s41, s42
s_add_u32 s41, s41, {T2_OFF}""")
    for f in range(8):
        A(f"s_waitcnt lgkmcnt({7-f})\n{MFMA} {vr(ACC,16)}, {vr(C+4*f,4)}, {vr(T+4*f,4)}, {vr(ACC,16) if f else 0}")
    for j in range(8):
        A(f"""v_cvt_pk_bf16_f32 v{Y+j}, v{ACC+2*j+1}, v{ACC+2*j}
s_add_u32 s43, s41, {(4*(j>>1)+(j&1))*T2_ROW}
buffer_store_dword v{Y+j}, v3, {sr(SWS,4)}, s43 offen {SC}""")
    A(f"s_branch {done}")

def phaseA3(A, SC, done, ZOFF, YOFF, sync):
    SO, SWS = 32, 36
    TA, NY, ER, EI, G, ACC = 16, 48, 64, 80, 96, 152
    scale = 2.0/(2048*448)
    A(f"""s_and_b32 s4, s2, 7
s_lshr_b32 s5, s2, 5
s_lshl_b32 s5, s5, 3
s_or_b32 s4, s4, s5            ; s2 index
s_bfe_u32 s5, s2, 0x20003      ; dq
v_and_b32 v14, 31, v0
v_lshrrev_b32 v15, 5, v0
v_and_b32 v8, 15, v14
v_lshrrev_b32 v9, 4, v14
v_lshl_or_b32 v8, v8, 1, v9
v_mul_u32_u24 v2, {T2_Q}, v15
v_lshl_add_u32 v1, v8, 4, v2    ; T2 offset
v_add_u32 v2, {224*16}, v2
s_mul_i32 s41, s4, {T2_ROW}
s_add_u32 s41, s41, {T2_OFF}
s_lshl_b32 s42, s40, 9
s_add_u32 s42, s42, s41
s_waitcnt lgkmcnt(0)""")
    srd(A, SO, P_OUT, OUT_BYTES); srd(A, SWS, P_WS, WS_USED)
    W = sr(SWS,4)
    for tt in range(2):
        for f in range(4):
            A(f"s_add_u32 s43, s42, {2*f*T2_Q + 2048*tt}\nbuffer_load_dwordx4 {vr(TA+16*tt+4*f,4)}, v1, {W}, s43 offen {SC}")
    for f in range(4):
        A(f"s_add_u32 s43, s41, {2*f*T2_Q}\nbuffer_load_dwordx4 {vr(NY+4*f,4)}, v2, {W}, s43 offen {SC}")
    A(f"""v_lshlrev_b32 v8, 6, v14
v_add_u32 v8, s4, v8
v_cvt_f32_u32 v8, v8
v_mul_f32 v8, {f32(1/2048)}, v8
v_lshlrev_b32 v9, 2, v15
v_cvt_f32_u32 v9, v9
v_mul_f32 v9, v8, v9""")
    for f in range(4):
        for p in range(4): A(f"v_fmamk_f32 v{ACC+p}, v8, {f32(float(8*f+p))}, v9")
        for p in range(4): A(f"v_cos_f32 v{ACC+4+p}, v{ACC+p}")
        for p in range(4): A(f"v_sin_f32 v{ACC+8+p}, v{ACC+p}")
        for p in range(8): A(f"v_mul_f32 v{ACC+4+p}, {f32(scale)}, v{ACC+4+p}")
        for p in range(4): A(f"v_cvt_pk_bf16_f32 v{ER+4*f+p}, v{ACC+4+p}, -v{ACC+8+p}")
        for p in range(4): A(f"v_cvt_pk_bf16_f32 v{EI+4*f+p}, v{ACC+8+p}, v{ACC+4+p}")
    A(f"""s_lshr_b32 s44, s40, 1
s_lshl_b32 s45, s5, 1
s_add_u32 s44, s44, s45         ; d tile
s_and_b32 s45, s40, 1           ; e
s_lshl_b32 s46, s44, 5
v_add_u32 v8, s46, v14          ; d
v_and_b32 v10, 1, v8
v_lshlrev_b32 v10, 31, v10
v_or_b32 v10, 0.5, v10          ; 0.5*(-1)^d
v_cvt_f32_u32 v8, v8
v_mul_f32 v8, {f32(1/448)}, v8
v_lshlrev_b32 v9, 3, v15
v_add_u32 v9, s45, v9
v_cmp_eq_u32 vcc, 0, v9
v_cvt_f32_u32 v9, v9
v_mul_f32 v9, v8, v9
v_mov_b32 v11, 0.5""")
    for t in range(7):
        for j in range(8): A(f"v_fmamk_f32 v{ACC+j}, v8, {f32(float(32*t+16*(j>>2)+2*(j&3)))}, v9")
        for j in range(8): A(f"v_cos_f32 v{ACC+8+j}, v{ACC+j}")
        for j in range(8): A(f"v_sin_f32 v{ACC+16+j}, v{ACC+j}")
        if t == 0:
            A(f"v_cndmask_b32 v{ACC+8}, v{ACC+8}, v11, vcc\nv_cndmask_b32 v{ACC+16}, v{ACC+16}, -v10, vcc")
        for j in range(4): A(f"v_cvt_pk_bf16_f32 v{G+8*t+j}, v{ACC+8+2*j}, v{ACC+9+2*j}")
        for j in range(4): A(f"v_cvt_pk_bf16_f32 v{G+8*t+4+j}, -v{ACC+16+2*j}, -v{ACC+17+2*j}")
    LN = A.lab("a3ny")
    A("s_waitcnt vmcnt(0)")
    for tt in range(2):
        for f in range(4):
            A(f"{MFMA} {vr(ACC+32*tt,16)}, {vr(TA+16*tt+4*f,4)}, {vr(ER+4*f,4)}, {vr(ACC+32*tt,16) if f else 0}")
    A(f"s_cmp_lg_u32 s40, 0\ns_cbranch_scc1 {LN}\ns_mov_b32 exec_lo, 1\ns_mov_b32 exec_hi, 1")
    for i in range(16): A(f"v_mov_b32 v{TA+i}, v{NY+i}")
    A(f"s_mov_b64 exec, -1\n{LN}:\ns_nop 1")
    for tt in range(2):
        for f in range(4):
            A(f"{MFMA} {vr(ACC+32*tt+16,16)}, {vr(TA+16*tt+4*f,4)}, {vr(EI+4*f,4)}, {vr(ACC+32*tt+16,16) if f else 0}")
    A(f"""v_lshlrev_b32 v12, 4, v0
s_lshl_b32 s43, s40, 11
s_add_u32 s43, s43, {ZOFF}
v_add_u32 v13, s43, v12""")
    for part in range(2):
        for tt in range(2):
            a = ACC+32*tt+16*part
            d = TA+8*(2*part+tt)
            for i in range(8): A(f"v_cvt_pk_bf16_f32 v{d+i}, v{a+2*i}, v{a+2*i+1}")
            for e in range(2): A(f"ds_write_b128 v13, {vr(d+4*e,4)} offset:{16384*e+8192*tt+1024*part}")
    A(f"s_lshl_b32 s43, s45, 14\ns_add_u32 s43, s43, {ZOFF}\nv_add_u32 v13, s43, v12")
    sync(0)
    ZB = 16
    for i in range(14): A(f"ds_read_b128 {vr(ZB+4*i,4)}, v13 offset:{1024*i}")
    for i in range(14):
        A(f"s_waitcnt lgkmcnt({13-i})\n{MFMA} {vr(ACC,16)}, {vr(G+4*i,4)}, {vr(ZB+4*i,4)}, {vr(ACC,16) if i else 0}")
    A(f"""s_lshr_b32 s46, s40, 1
s_lshl_b32 s46, s46, 3
v_add_u32 v8, s46, v15          ; 8p + h
v_and_b32 v9, 7, v14
v_xor_b32 v8, v8, v9
v_lshlrev_b32 v8, 4, v8
v_lshl_or_b32 v8, v14, 8, v8
s_lshl_b32 s46, s45, 13
s_add_u32 s46, s46, {YOFF}
v_add_u32 v8, s46, v8""")
    for g in range(4):
        A(f"v_xor_b32 v9, {32*g}, v8\nds_write_b128 v9, {vr(ACC+4*g,4)}")
    A(f"""v_lshrrev_b32 v8, 3, v0
s_lshl_b32 s46, s40, 3
v_add_u32 v8, s46, v8           ; row (s1)
v_and_b32 v9, 7, v0             ; piece
v_lshlrev_b32 v10, 1, v9
v_and_b32 v11, 7, v8
v_xor_b32 v10, v10, v11
v_lshlrev_b32 v10, 4, v10
v_lshl_or_b32 v10, v8, 8, v10
v_add_u32 v10, {YOFF}, v10
v_xor_b32 v11, 16, v10
v_mul_u32_u24 v8, {64*1792}, v8
v_lshl_add_u32 v8, v9, 4, v8
s_mul_i32 s41, s4, 1792
s_lshl_b32 s42, s5, 7
s_add_u32 s41, s41, s42""")
    sync(1)
    A(f"""ds_read_b128 v[16:19], v10
ds_read_b128 v[20:23], v11
ds_read_b128 v[24:27], v10 offset:8192
ds_read_b128 v[28:31], v11 offset:8192
s_cmp_eq_u32 s5, 3
s_cselect_b32 s42, 4, 8
v_cmp_gt_u32 vcc, s42, v9
s_waitcnt lgkmcnt(0)""")
    for i in range(8): A(f"v_add_f32 v{32+i}, v{16+i}, v{24+i}\nv_sub_f32 v{40+i}, v{16+i}, v{24+i}")
    for i in range(8): A(f"v_cvt_pk_bf16_f32 v{48+i}, v{32+2*i}, v{33+2*i}")
    A(f"""s_mov_b64 exec, vcc
buffer_store_dwordx4 v[48:51], v8, {sr(SO,4)}, s41 offen
buffer_store_dwordx4 v[52:55], v8, {sr(SO,4)}, s41 offen offset:448
s_mov_b64 exec, -1
s_branch {done}""")

def phaseB3(A, SC, done, WOA, WOB, OST, sync):
    SW, SO, SWS = 28, 32, 36
    ACC = 16
    A(f"""s_and_b32 s4, s2, 7
s_lshr_b32 s5, s2, 5
s_lshl_b32 s5, s5, 3
s_or_b32 s4, s4, s5
s_bfe_u32 s5, s2, 0x20003      ; dq
v_lshrrev_b32 v15, 4, v0
v_and_b32 v14, 15, v0
v_lshlrev_b32 v16, 2, v15
v_xor_b32 v14, v14, v16
v_lshlrev_b32 v14, 4, v14
v_mul_u32_u24 v15, 896, v15
v_add_u32 v1, v14, v15
v_lshlrev_b32 v2, 4, v0
s_mul_i32 s41, s40, {56*896}
s_lshl_b32 s42, s5, 8
s_add_u32 s41, s41, s42
s_mul_i32 s42, s40, {56*256}
s_lshl_b32 s43, s4, 15
s_lshl_b32 s44, s40, 13
s_add_u32 s43, s43, s44
s_add_u32 s43, s43, {O_OFF}
s_waitcnt lgkmcnt(0)""")
    srd(A, SW, P_WO, WO_BYTES); srd(A, SO, P_OUT, OUT_BYTES); srd(A, SWS, P_WS, WS_USED)
    for half in range(2):
        A(f"s_add_u32 m0, s44, {OST+4096*half}")
        A(f"s_add_u32 s45, s43, {4096*half}")
        for i in range(4):
            A(f"buffer_load_dwordx4 v2, {sr(SWS,4)}, s45 offen offset:{1024*i} lds {SC}")
    for half, base in enumerate((WOA, WOB)):
        for i in range(14):
            A(f"s_add_u32 m0, s42, {base+1024*i}\ns_add_u32 s45, s41, {(224*half+4*i)*896}\nbuffer_load_dwordx4 v1, {sr(SW,4)}, s45 offen lds")
    A(f"""v_bfe_u32 v8, v0, 2, 2        ; rr
v_and_b32 v9, 3, v0
v_lshrrev_b32 v10, 1, v9
v_and_b32 v9, 1, v9
v_lshl_or_b32 v9, v9, 1, v10    ; sigma(cc)
v_bfe_u32 v10, v0, 4, 1
v_lshlrev_b32 v10, 5, v10
v_lshl_or_b32 v10, v9, 3, v10
s_lshl_b32 s45, s40, 6
v_or_b32 v10, s45, v10
v_lshlrev_b32 v11, 6, v8
v_xor_b32 v10, v10, v11
v_lshl_or_b32 v4, v8, 8, v10
v_lshrrev_b32 v15, 5, v0
v_lshl_add_u32 v3, v15, 10, v4
v_add_u32 v5, {WOB}, v3
v_add_u32 v6, {WOB}, v4
v_add_u32 v3, {WOA}, v3
v_add_u32 v4, {WOA}, v4
v_add_u32 v7, {OST}, v2
v_and_b32 v14, 31, v0
v_mul_u32_u24 v8, 1792, v14
v_lshl_add_u32 v8, v15, 4, v8
s_mul_i32 s41, s4, {32*1792}
s_lshl_b32 s42, s5, 8
s_add_u32 s41, s41, s42
s_add_u32 s41, s41, s45
s_add_u32 s41, s41, 896
s_waitcnt vmcnt(0)""")
    sync()
    NB = 4
    def rd(n):
        hd, i = n >> 1, n & 1
        b = 32 + 8*(n % NB)
        a0, a1 = (3, 4) if hd < 8 else (5, 6)
        row = 28*(hd & 7) + 16*i
        A(f"ds_read_b64_tr_b16 {vr(b,2)}, v{a0} offset:{row*256}")
        A(f"ds_read_b64_tr_b16 {vr(b+2,2)}, v{a1 if i else a0} offset:{(row+8)*256}")
        A(f"ds_read_b128 {vr(b+4,4)}, v7 offset:{1024*n}")
    for n in range(NB-1): rd(n)
    for n in range(32):
        if n + NB - 1 < 32: rd(n + NB - 1)
        left = min(31, n+NB-1) - n
        b = 32 + 8*(n % NB)
        A(f"s_waitcnt lgkmcnt({3*left})\n{MFMA} {vr(ACC,16)}, {vr(b,4)}, {vr(b+4,4)}, {vr(ACC,16) if n else 0}")
    A(f"""s_lshl_b32 s42, s5, 2
s_add_u32 s42, s42, s40
s_cmp_ge_u32 s42, 14
s_cbranch_scc1 {done}""")
    for i in range(8): A(f"v_cvt_pk_bf16_f32 v{32+i}, v{ACC+2*i}, v{ACC+2*i+1}")
    A(f"""buffer_store_dwordx4 v[32:35], v8, {sr(SO,4)}, s41 offen
buffer_store_dwordx4 v[36:39], v8, {sr(SO,4)}, s41 offen offset:32
s_branch {done}""")
```

```python
import sys
from emit import Asm
from phases import *
NAME = "concat_heads__spectral_gfnet__softmax_full_mha__prompt"
HDR = open("cdna_kernels/%s.s.ref" % NAME).read().split("; Override")[0]
def kern(name, body):
    A = Asm()
    A(f".globl {name}\n.p2align 8\n.type {name},@function\n{name}:")
    A.nlab = {"k1":0,"k2":1000,"k3a":2000,"k3b":3000}[name.split("_")[0]]
    end = A.lab("end")
    prologue(A, end)
    body(A, end)
    A(f"{end}:\ns_endpgm")
    return A.finish()
def desc(name, nv):
    return f""".amdhsa_kernel {name}
  .amdhsa_next_free_vgpr {nv}
  .amdhsa_next_free_sgpr 96
  .amdhsa_accum_offset {nv}
  .amdhsa_group_segment_fixed_size 0
  .amdhsa_kernarg_size 72
  .amdhsa_user_sgpr_count 2
  .amdhsa_user_sgpr_kernarg_segment_ptr 1
  .amdhsa_system_sgpr_workgroup_id_x 1
.end_amdhsa_kernel
"""
def k2(A, end):
    LH = A.lab("helper")
    CNT = 49152 + 8192
    A(f"v_mov_b32 v1, {CNT}\nv_mov_b32 v2, 0\nds_write_b32 v1, v2\ns_waitcnt lgkmcnt(0)\ns_barrier")
    A(f"s_cmp_ge_u32 s3, 4\ns_cbranch_scc1 {LH}")
    attention(A, "", end, 0, lambda: A("s_waitcnt lgkmcnt(0)\ns_barrier"))
    A(f"{LH}:\ns_sub_u32 s40, s3, 4")
    phaseA2(A, "", end, 49152, lambda: lds_sync(A, CNT, 4))
def k3a(A, end):
    A("s_mov_b32 s40, s3")
    phaseB3(A, "", end, 0, 57344, 114688, lambda: A("s_barrier"))
def k3b(A, end):
    A("s_mov_b32 s40, s3")
    phaseA3(A, "", end, 0, 32768, lambda i: A("s_waitcnt lgkmcnt(0)\ns_barrier"))
txt = HDR
txt += f"; @launch kernel=k1_kernel grid=(256,1,1) block=(512,1,1) lds={K1_LDS}\n"
txt += f"; @launch kernel=k2_kernel grid=(256,1,1) block=(512,1,1) lds={49152+8192+64}\n"
txt += f"; @launch kernel=k3a_kernel grid=(256,1,1) block=(256,1,1) lds={114688+32768}\n"
txt += f"; @launch kernel=k3b_kernel grid=(256,1,1) block=(256,1,1) lds={32768+16384}\n"
txt += '.amdgcn_target "amdgcn-amd-amdhsa--gfx950"\n.text\n'
txt += kern("k1_kernel", lambda A, e: phase1(A, "", e))
txt += kern("k2_kernel", k2)
txt += kern("k3a_kernel", k3a)
txt += kern("k3b_kernel", k3b)
txt += '.section .rodata,"a"\n'
for n, nv in (("k1_kernel",176),("k2_kernel",240),("k3a_kernel",64),("k3b_kernel",216)):
    txt += ".p2align 6\n" + desc(n, nv)
out = sys.argv[1] if len(sys.argv) > 1 else "cdna_kernels/%s.s" % NAME
open(out, "w").write(txt)
print("wrote", out, len(txt))
```

```python
import math
EPOCH_OFF = 0x0
F1_OFF = 0x1000
F2_OFF = 0x6000
AT_OFF = 0x6800
FO_OFF = 0x8000
QK_OFF = 0x10000
QK_PART = 64*56*512
QK_TILE = 56*512
V_OFF  = 0x390000
T_OFF  = 0x590000
T_ROW = 30*1024
T2_OFF = 0x770000
T2_Q = 232*16
T2_ROW = 8*T2_Q
O_OFF  = 0x950000
WS_USED = 0xB50000
TS_OFF = 0xC00000
X_BYTES = 2048*448*2
W_BYTES = 2048*225*2
WQKV_BYTES = 448*1344*2
WO_BYTES = 448*448*2
OUT_BYTES = 2048*896*2
QSCALE = math.log2(math.e)/math.sqrt(28.0)
```

```python
import sys, struct
from emit import Asm
from layout import *
NAME = "concat_heads__spectral_gfnet__softmax_full_mha__prompt"
OPT = dict(stamps=0, r1=8, ro=8, pf=1, sl1=1, sl2=4, sl3=16, rot=1, go=4, x=0, g2=1, hp=3, a3p=0, tch=1)
args = []
for a in sys.argv[1:]:
    if "=" in a: k, v = a.split("="); assert k in OPT, k; OPT[k] = int(v)
    else: args.append(a)
STAMPS = OPT["stamps"]
def f32(x): return "0x%08x" % struct.unpack("<I", struct.pack("<f", x))[0]
def vr(a, n=1): return f"v{a}" if n == 1 else f"v[{a}:{a+n-1}]"
def sr(a, n=1): return f"s{a}" if n == 1 else f"s[{a}:{a+n-1}]"
P_AX, P_WR, P_WI, P_BX, P_WQKV, P_WO, P_OUT, P_DBG, P_WS = 8,10,12,14,16,18,20,22,24
MFMA = "v_mfma_f32_32x32x16_bf16"
SMF = "v_smfmac_f32_32x32x32_bf16"
SC = "sc1"
HI = "quad_perm:[0,1,2,3] row_mask:0xc bank_mask:0xf"
TAGC = 0x9E3779B9
TAG = 62
SWS = 36; W = sr(SWS,4)
SX, SW = 28, 32
SPIN = 200000
WO, MERGE, OST = 0, 57344, 57344
ZOFF, YOFF, EX = 106496, 106496+32768, 106496+32768
CNT = 162816
LDS_BYTES = 163840
(C_P1, R_KV, C_MERGE, C_O, R_O, C_OST, R_A1, C_EX, C_A2, R_A2, C_Z, C_Y, C_WOA, C_WOF, C_WOB, C_GO, C_G2) = [CNT+4*i for i in range(17)]

A = Asm()
def stamp(i):
    if STAMPS: A(f"{'s_memtime' if STAMPS == 2 else 's_memrealtime'} s[{64+2*i}:{65+2*i}]")
def stampw(i):
    if STAMPS: stamp(i); A("s_waitcnt lgkmcnt(0)")
def srd(d, p, nbytes):
    A(f"s_mov_b32 s{d}, s{p}\ns_mov_b32 s{d+1}, s{p+1}\ns_mov_b32 s{d+2}, {nbytes}\ns_mov_b32 s{d+3}, 0x00020000")
def pi32(d, s, t):
    A(f"""v_and_b32 v{d}, 0x13, v{s}
v_and_b32 v{t}, 4, v{s}
v_lshl_or_b32 v{d}, v{t}, 1, v{d}
v_and_b32 v{t}, 8, v{s}
v_lshrrev_b32 v{t}, 1, v{t}
v_or_b32 v{d}, v{d}, v{t}""")
def mod7(d, t):
    A(f"s_mul_i32 s{t}, s{d}, 37\ns_lshr_b32 s{t}, s{t}, 8\ns_mul_i32 s{t}, s{t}, 7\ns_sub_u32 s{d}, s{d}, s{t}")
def lds_add(addr):
    A(f"v_mov_b32 v12, {addr}\nv_mov_b32 v13, 1\ns_mov_b64 exec, 1\nds_add_u32 v12, v13\ns_mov_b64 exec, -1")
def lds_wait(addr, target, sleep=0, setup=True):
    L, L2 = A.lab("lw"), A.lab("lwd")
    if setup: A(f"v_mov_b32 v12, {addr}")
    A(f"""{L}:
ds_read_b32 v13, v12
s_waitcnt lgkmcnt(0)
v_readfirstlane_b32 s60, v13
s_cmp_ge_u32 s60, {target}""")
    if sleep: A(f"s_cbranch_scc1 {L2}\ns_sleep {sleep}\ns_branch {L}\n{L2}:")
    else: A(f"s_cbranch_scc0 {L}")
def lds_sync(addr, target, sleep=0):
    A("s_waitcnt lgkmcnt(0)"); lds_add(addr); lds_wait(addr, target, sleep, False)
def arrive(cnt, skip):
    A(f"""s_waitcnt vmcnt(0)
v_mov_b32 v12, {cnt}
v_mov_b32 v13, 1
s_mov_b64 exec, 1
ds_add_rtn_u32 v13, v12, v13
s_mov_b64 exec, -1
s_waitcnt lgkmcnt(0)
v_readfirstlane_b32 s60, v13
s_cmp_lg_u32 s60, 3
s_cbranch_scc1 {skip}""")
def flagstore(soff, nrep, repstride):
    A(f"""v_mul_u32_u24 v12, {repstride}, v0
v_mov_b32 v13, s{TAG}
s_mov_b64 exec, {(1<<nrep)-1}
buffer_store_dword v13, v12, {W}, {soff} offen {SC}
s_mov_b64 exec, -1""")
def publish(cnt, soff, nrep, repstride):
    L = A.lab("pub")
    arrive(cnt, L); flagstore(f"s{soff}", nrep, repstride); A(f"{L}:")
def acquire(rel, body, sleep, sleep2=1):
    LP, LD, LO, LE = A.lab("poll"), A.lab("pollok"), A.lab("pollw"), A.lab("polle")
    A(f"s_cmp_lg_u32 s40, 0\ns_cbranch_scc1 {LO}\ns_mov_b32 s61, {SPIN}\n{LP}:")
    body()
    A(f"""s_cbranch_vccz {LD}
s_sub_u32 s61, s61, 1
s_cmp_eq_u32 s61, 0
s_cbranch_scc1 {LD}
s_sleep {sleep}
s_branch {LP}
{LD}:""")
    lds_add(rel)
    A(f"s_branch {LE}\n{LO}:")
    lds_wait(rel, 1, sleep2)
    A(f"{LE}:")
def gettag():
    A(f"s_load_dword s{TAG}, s[24:25], {EPOCH_OFF}")
    srd(SWS, P_WS, WS_USED)
def fixtag():
    A(f"s_waitcnt lgkmcnt(0)\ns_add_u32 s{TAG}, s{TAG}, {TAGC}")

FIN, END, ATT, PUB1, HELP2, GEN = "L_fin", "L_end", "L_att", "L_pub1", "L_help2", "L_gen"
LA1, LB1C, LB1G, LA1C, LV, LN, LFB = "L_a1", "L_b1c", "L_b1g", "L_a1c", "L_b1v", "L_norm", "L_fallback"
K = NAME + "_kernel"

def entry():
    A(f".globl {K}\n.p2align 8\n.type {K},@function\n{K}:")
    A(f"""s_cmp_ge_u32 s2, 256
s_cbranch_scc1 {FIN}
s_load_dwordx16 s[8:23], s[0:1], 0
s_load_dwordx2 s[24:25], s[0:1], 64
v_lshrrev_b32 v1, 6, v0
v_readfirstlane_b32 s3, v1
v_and_b32 v0, 63, v0""")
    if STAMPS:
        for i in range(2, 14): A(f"s_mov_b32 s{64+2*i}, 0")
        A("s_memtime s[64:65]\ns_memrealtime s[66:67]")
    A(f"""s_and_b32 s4, s2, 7
s_lshr_b32 s5, s2, 3
s_lshl_b32 s6, s4, 1
s_and_b32 s7, s5, 1
s_or_b32 s6, s6, s7
s_lshr_b32 s7, s5, 1
s_and_b32 s40, s3, 3
s_cmp_ge_u32 s7, 11
s_cbranch_scc1 {LA1}
s_cmp_lt_u32 s3, 4
s_cbranch_scc1 {LB1C}""")

def xaddr(rs):
    A(f"""v_lshrrev_b32 v1, 3, v0
v_and_b32 v14, 7, v0
v_lshrrev_b32 v15, 4, v0
v_xor_b32 v14, v14, v15
v_lshlrev_b32 v14, 4, v14
v_xor_b32 v16, 64, v14
v_mul_u32_u24 v1, {rs}, v1
v_add_u32 v2, v1, v14
v_add_u32 v3, v1, v16
v_add_u32 v3, {8*rs-1024}, v3
v_add_u32 v4, {2*(8*rs-1024)}, v2
v_add_u32 v5, {2*(8*rs-1024)}, v3""")
def b1_loader():
    A("s_setprio 3\ns_add_u32 s26, s6, s7")
    mod7(26, 27)
    if not OPT["rot"]: A("s_mov_b32 s26, 0")
    xaddr(896)
    A(f"""v_and_b32 v14, 15, v0
v_lshlrev_b32 v16, 2, v15
v_xor_b32 v14, v14, v16
v_lshlrev_b32 v14, 4, v14
v_mul_u32_u24 v15, 2688, v15
v_add_u32 v6, v14, v15
v_add_u32 v7, {4*2688-1024}, v6
v_add_u32 v8, {2*(4*2688-1024)}, v6
v_add_u32 v9, {3*(4*2688-1024)}, v6
s_lshl_b32 s41, s6, 2
s_add_u32 s47, s41, s40
s_mul_i32 s41, s47, {32*896}     ; x base
s_mul_i32 s42, s40, {16*2688}
s_lshl_b32 s43, s7, 8
s_add_u32 s42, s42, s43          ; w base
s_lshl_b32 s44, s40, 12
s_waitcnt lgkmcnt(0)""")
    srd(SX, P_BX, X_BYTES); srd(SW, P_WQKV, WQKV_BYTES)
    def issue():
        A(f"""s_lshl_b32 s45, s26, 7
s_add_u32 s45, s45, s41
s_mul_i32 s46, s26, {64*2688}
s_add_u32 s46, s46, s42
s_mov_b32 m0, s44""")
        for i in range(4): A(f"buffer_load_dwordx4 v{2+i}, {sr(SX,4)}, s45 offen offset:{1024*i} lds")
        A(f"s_add_u32 m0, s44, 16384")
        for i in range(4): A(f"buffer_load_dwordx4 v{6+i}, {sr(SW,4)}, s46 offen offset:{1024*i} lds")
        A("""s_add_u32 s26, s26, 1
s_cmp_eq_u32 s26, 7
s_cselect_b32 s26, 0, s26
s_add_u32 s44, s44, 0x8000
s_and_b32 s44, s44, 0x1ffff""")
    LL = A.lab("b1ld")
    issue(); gettag()
    LNO = A.lab("noones")
    A(f"""s_cmp_lt_u32 s7, 7
s_cbranch_scc1 {LNO}
s_sub_u32 s45, s7, 7
s_lshl_b32 s45, s45, 7
s_add_u32 s45, s45, 27
s_mul_i32 s45, s45, 2341
s_lshr_b32 s45, s45, 16
v_lshrrev_b32 v10, 2, v0
v_add_u32 v10, s45, v10
v_and_b32 v11, 3, v0
v_lshlrev_b32 v11, 9, v11
v_lshl_or_b32 v11, v10, 17, v11
v_cmp_gt_u32 vcc, 16, v10
s_lshl_b32 s45, s47, 11
s_add_u32 s45, s45, {V_OFF + 28*16}
v_mov_b32 v16, 0x3f803f80
v_mov_b32 v17, 0x3f803f80
v_mov_b32 v18, 0x3f803f80
v_mov_b32 v19, 0x3f803f80
s_and_b64 exec, vcc, 0xfffff
buffer_store_dwordx4 v[16:19], v11, {W}, s45 offen {SC}
s_mov_b64 exec, -1
{LNO}:""")
    A(f"s_mov_b32 s48, 6\n{LL}:")
    issue()
    A(f"""s_waitcnt vmcnt(8)
s_barrier
s_sub_u32 s48, s48, 1
s_cmp_lg_u32 s48, 0
s_cbranch_scc1 {LL}""")
    fixtag()
    A("s_waitcnt vmcnt(0)")
    stamp(3)
    A(f"s_barrier\ns_branch {ATT}")

def a1_dispatch_loader():
    A(f"""{LA1}:
s_sub_u32 s5, s7, 11           ; g5
s_mul_i32 s26, s5, 3
s_lshr_b32 s26, s26, 1         ; e0 in 0,1,3,4,6""")
    if not OPT["rot"]: A("s_mov_b32 s26, 0")
    A(f"s_cmp_lt_u32 s3, 4\ns_cbranch_scc1 {LA1C}\ns_setprio 3")
    xaddr(64*896)
    A(f"""s_lshl_b32 s41, s6, 2
s_add_u32 s41, s41, s40
s_mul_i32 s41, s41, 896
s_lshl_b32 s44, s40, 12
s_lshl_b32 s26, s26, 2
s_add_u32 s26, s26, 3""")
    mod7(26, 27)
    A("s_waitcnt lgkmcnt(0)")
    srd(SX, P_AX, X_BYTES)
    gettag()
    LL, LS = A.lab("a1ld"), A.lab("a1lds")
    A(f"""s_mov_b32 s48, 0
{LL}:
s_lshl_b32 s45, s26, 7
s_add_u32 s45, s45, s41
s_lshl_b32 s46, s26, 14
s_add_u32 m0, s44, s46""")
    for i in range(4): A(f"buffer_load_dwordx4 v{2+i}, {sr(SX,4)}, s45 offen offset:{1024*i} lds")
    A(f"""s_add_u32 s26, s26, 4
s_sub_u32 s27, s26, 7
s_cmp_ge_u32 s26, 7
s_cselect_b32 s26, s27, s26
s_add_u32 s48, s48, 1
s_cmp_lt_u32 s48, 4
s_cbranch_scc1 {LL}
s_waitcnt vmcnt(8)
s_barrier
s_cmp_lt_u32 s48, 7
s_cbranch_scc1 {LL}""")
    fixtag()
    A("s_waitcnt vmcnt(4)\ns_barrier\ns_waitcnt vmcnt(0)")
    stamp(3)
    A(f"s_barrier\ns_branch {ATT}")

def main_start():
    A(f"""v_lshlrev_b32 v1, 2, v0
v_add_u32 v1, {CNT}, v1
v_mov_b32 v2, 0
ds_write_b32 v1, v2""")
    if OPT["pf"]:
        L = A.lab("pf"); LP = A.lab("pc")
        A(f"""s_cmp_lg_u32 s3, 3
s_cbranch_scc1 {L}
s_getpc_b64 s[56:57]
{LP}:
s_sub_u32 s56, s56, {LP}-{K}
s_subb_u32 s57, s57, 0
s_bfe_u32 s58, s2, 0x20003
s_lshl_b32 s58, s58, 13
v_lshlrev_b32 v1, 7, v0
v_add_u32 v1, s58, v1
v_min_u32 v1, {FIN}-{K}, v1
global_load_dword v248, v1, s[56:57]
{L}:""")

C, ER, EI, G, GT = 128, 160, 176, 192, 16
def gen_common():
    A(f"""v_and_b32 v14, 31, v0
v_lshrrev_b32 v15, 5, v0
s_lshr_b32 s50, s2, 5
s_lshl_b32 s50, s50, 3
s_or_b32 s50, s50, s4
s_bfe_u32 s51, s2, 0x20003       ; d quarter
s_and_b32 s52, s40, 1            ; parity e""")
def gen_ce():
    A(f"""v_lshrrev_b32 v8, 1, v14
s_lshl_b32 s43, s40, 4
v_add_u32 v8, s43, v8
v_cvt_f32_u32 v8, v8
v_mul_f32 v8, {f32(1/64)}, v8    ; step = u2/64
v_and_b32 v9, 1, v14
v_cvt_f32_u32 v9, v9
v_mul_f32 v9, {f32(0.25)}, v9
v_lshlrev_b32 v10, 1, v15
v_cvt_f32_u32 v10, v10
v_fma_f32 v9, v8, v10, v9        ; base""")
    for f in range(8):
        for p in range(4): A(f"v_fmamk_f32 v{GT+p}, v8, {f32(float(8*f+4*(p>>1)+(p&1)))}, v9")
        for p in range(4): A(f"v_cos_f32 v{GT+4+p}, v{GT+p}")
        for p in range(4): A(f"v_sin_f32 v{GT+8+p}, v{GT+p}")
        for p in range(4): A(f"v_cvt_pk_bf16_f32 v{C+4*f+p}, v{GT+4+p}, v{GT+8+p}")
    scale = 2.0/(2048*448)
    A(f"""v_lshlrev_b32 v8, 6, v14
v_add_u32 v8, s50, v8
v_cvt_f32_u32 v8, v8
v_mul_f32 v8, {f32(1/2048)}, v8
v_lshlrev_b32 v9, 2, v15
v_cvt_f32_u32 v9, v9
v_mul_f32 v9, v8, v9
v_mov_b32 v10, {f32(scale)}""")
    for f in range(4):
        for p in range(4): A(f"v_fmamk_f32 v{GT+p}, v8, {f32(float(8*f+p))}, v9")
        for p in range(4): A(f"v_cos_f32 v{GT+4+p}, v{GT+p}")
        for p in range(4): A(f"v_sin_f32 v{GT+8+p}, v{GT+p}")
        for p in range(8): A(f"v_mul_f32 v{GT+4+p}, v10, v{GT+4+p}")
        for p in range(4): A(f"v_cvt_pk_bf16_f32 v{ER+4*f+p}, v{GT+4+p}, -v{GT+8+p}")
        for p in range(4): A(f"v_cvt_pk_bf16_f32 v{EI+4*f+p}, v{GT+8+p}, v{GT+4+p}")
def gen_g():
    A(f"{GEN}:")
    gen_common()
    A(f"""s_lshr_b32 s44, s40, 1
s_lshl_b32 s45, s51, 1
s_add_u32 s44, s44, s45         ; d tile
s_lshl_b32 s46, s44, 5
v_add_u32 v8, s46, v14          ; d
v_and_b32 v10, 1, v8
v_lshlrev_b32 v10, 31, v10
v_or_b32 v10, 0.5, v10          ; 0.5*(-1)^d
v_cvt_f32_u32 v8, v8
v_mul_f32 v8, {f32(1/448)}, v8
v_lshlrev_b32 v9, 3, v15
v_add_u32 v9, s52, v9
v_cmp_eq_u32 vcc, 0, v9
v_cvt_f32_u32 v9, v9
v_mul_f32 v9, v8, v9
v_mov_b32 v11, 0.5
v_mul_f32 v7, {f32(32.0)}, v8""")
    for t in range(7):
        for j in range(8):
            if t == 0: A(f"v_fmamk_f32 v{GT+j}, v8, {f32(float(16*(j>>2)+2*(j&3)))}, v9")
            else: A(f"v_add_f32 v{GT+j}, v7, v{GT+j}")
        for j in range(8): A(f"v_cos_f32 v{GT+8+j}, v{GT+j}")
        for j in range(8): A(f"v_sin_f32 v{GT+16+j}, v{GT+j}")
        if t == 0:
            A(f"v_cndmask_b32 v{GT+8}, v{GT+8}, v11, vcc\nv_cndmask_b32 v{GT+16}, v{GT+16}, -v10, vcc")
        for j in range(4): A(f"v_cvt_pk_bf16_f32 v{G+8*t+j}, v{GT+8+2*j}, v{GT+9+2*j}")
        for j in range(4): A(f"v_cvt_pk_bf16_f32 v{G+8*t+4+j}, -v{GT+16+2*j}, -v{GT+17+2*j}")
    A(f"s_cmp_ge_u32 s7, 11\ns_cbranch_scc1 {HELP2}")

ACC = 64
def acc(a, b): return ACC + 32*a + 16*b
def b1_body(vtype):
    if vtype: pi32(48, 14, 49)
    else: A("v_mov_b32 v48, v14")
    A(f"""v_lshrrev_b32 v49, 1, v48
v_and_b32 v49, 7, v49
v_xor_b32 v49, v49, v15
v_lshlrev_b32 v49, 4, v49
v_lshl_or_b32 v50, v48, 7, v49
s_lshl_b32 s43, s41, 13
v_add_u32 v52, s43, v50
v_xor_b32 v53, 32, v52
v_xor_b32 v54, 64, v52
v_xor_b32 v55, 96, v52""")
    A(f"""v_bfe_u32 v48, v0, 2, 2        ; rr
v_and_b32 v49, 3, v0           ; cc""")
    if not vtype:
        A("""v_lshrrev_b32 v50, 1, v49
v_and_b32 v49, 1, v49
v_lshl_or_b32 v49, v49, 1, v50 ; sigma(cc)""")
    A(f"""v_bfe_u32 v50, v0, 4, 1        ; colhalf
v_lshlrev_b32 v50, 5, v50
v_lshl_or_b32 v50, v49, 3, v50
s_lshl_b32 s43, s42, 7
v_or_b32 v50, s43, v50
v_lshlrev_b32 v51, 6, v48
v_xor_b32 v50, v50, v51
v_lshl_add_u32 v51, v15, 3, v48 ; 8h+rr
v_lshl_or_b32 v56, v51, 8, v50
v_add_u32 v56, 16384, v56
v_xor_b32 v57, 64, v56""")
    A(f"""s_lshl_b32 s46, s6, 2
s_lshl_b32 s47, s41, 1
s_add_u32 s46, s46, s47
s_lshl_b32 s47, s7, 2
s_lshl_b32 s48, s42, 1
s_add_u32 s47, s47, s48""")
    if not vtype:
        A(f"""s_mul_i32 s46, s46, {QK_TILE}
s_lshl_b32 s48, s47, 11
s_add_u32 s46, s46, s48
v_lshlrev_b32 v2, 4, v0
s_cmp_ge_u32 s47, 14
s_cselect_b32 s48, {QK_PART - 14*2048}, 0
s_cselect_b32 s54, 1.0, {f32(QSCALE)}
s_mov_b32 s55, s54
s_add_u32 s46, s46, s48
s_add_u32 s46, s46, {QK_OFF}
s_add_u32 s49, s46, {QK_TILE}""")
    else:
        A(f"""s_sub_u32 s47, s47, 28
s_lshl_b32 s46, s46, 11
s_add_u32 s46, s46, {V_OFF}
s_lshl_b32 s48, s47, 5""")
        for b in range(2):
            A(f"""v_add_u32 v48, s48, v14
v_add_u32 v48, {32*b}, v48
v_mul_u32_u24 v49, 2341, v48
v_lshrrev_b32 v49, 16, v49     ; head
v_mul_u32_u24 v50, 28, v49
v_sub_u32 v48, v48, v50        ; d
v_lshlrev_b32 v48, 4, v48
v_lshl_or_b32 v48, v15, 9, v48
v_lshl_or_b32 v{2+b}, v49, 17, v48""")
    def reads(kap, p):
        xb, wb = 16+16*p, 24+16*p
        for a in range(2):
            A(f"ds_read_b128 {vr(xb+4*a,4)}, v{6+kap} offset:{4096*a}")
        for b in range(2):
            for u in range(2):
                A(f"ds_read_b64_tr_b16 {vr(wb+4*b+2*u,2)}, v{10+b} offset:{(16*kap+4*u)*256}")
    def setaddr():
        for i in range(6): A(f"v_add_u32 v{6+i}, s44, v{52+i}")
    LL, LS = A.lab("b1loop"), A.lab("b1skip")
    A("s_mov_b32 s44, 0\ns_mov_b32 s45, 0")
    setaddr()
    stampw(9)
    A("s_barrier")
    stampw(2)
    reads(0, 0)
    A(f"{LL}:")
    for kap in range(4):
        p = kap & 1
        if kap < 3:
            reads(kap+1, p^1)
            A("s_waitcnt lgkmcnt(6)")
        else:
            A(f"""s_waitcnt lgkmcnt(0)
s_add_u32 s45, s45, 1
s_cmp_eq_u32 s45, 7
s_cbranch_scc1 {LS}
s_add_u32 s44, s44, 0x8000
s_and_b32 s44, s44, 0x1ffff""")
            setaddr()
            A("s_barrier")
            reads(0, 0)
            A(f"{LS}:")
        xb, wb = 16+16*p, 24+16*p
        for a in range(2):
            for b in range(2):
                x, w = vr(xb+4*a,4), vr(wb+4*b,4)
                o = (x, w) if vtype else (w, x)
                A(f"{MFMA} {vr(acc(a,b),16)}, {o[0]}, {o[1]}, {vr(acc(a,b),16)}")
    A(f"s_cmp_lg_u32 s45, 7\ns_cbranch_scc1 {LL}")
    stamp(3)
    if vtype: A(f"s_cmp_ge_u32 s47, 14\ns_cbranch_scc1 {PUB1}")
    for a in range(2):
        for b in range(2):
            d = 16 + 8*(2*a+b)
            for i in range(8):
                r = acc(a,b)+2*i
                if not vtype: A(f"v_pk_mul_f32 {vr(r,2)}, {vr(r,2)}, s[54:55]")
                A(f"v_cvt_pk_bf16_f32 v{d+i}, v{r}, v{r+1}")
                if i & 3 == 3:
                    if vtype: A(f"buffer_store_dwordx4 {vr(d+i-3,4)}, v{2+b}, {W}, s46 offen offset:{2048*a+1024*(i>>2)} {SC}")
                    else: A(f"buffer_store_dwordx4 {vr(d+i-3,4)}, v2, {W}, s{46 if a==0 else 49} offen offset:{2048*b+1024*(i>>2)} {SC}")
    A(f"s_branch {PUB1}")
def b1_compute():
    A("s_waitcnt lgkmcnt(0)")
    gettag()
    A("s_setprio 2")
    for i in range(64): A(f"v_mov_b32 v{ACC+i}, 0")
    A(f"""s_and_b32 s41, s3, 1           ; wr
s_lshr_b32 s42, s3, 1          ; wc""")
    fixtag()
    A(f"s_cmp_ge_u32 s7, 7\ns_cbranch_scc1 {LV}")
    b1_body(False)
    A(f"{LV}:")
    b1_body(True)

FOFF = 7*16384
def a1_gen():
    A(f"{LA1C}:\ns_setprio 2\nv_and_b32 v14, 31, v0\nv_lshrrev_b32 v15, 5, v0")
    pi32(48, 14, 49)
    A(f"""v_lshrrev_b32 v48, 1, v48       ; k_local
s_mul_i32 s41, s5, 48
v_add_u32 v48, s41, v48
v_cvt_f32_u32 v48, v48
v_mul_f32 v56, {f32(1/448)}, v48
v_add_f32 v48, {f32(16.0)}, v48
v_mul_f32 v57, {f32(1/448)}, v48
v_add_f32 v48, {f32(16.0)}, v48
v_mul_f32 v58, {f32(1/448)}, v48
v_and_b32 v48, 1, v14
v_cvt_f32_u32 v48, v48
v_mul_f32 v59, {f32(0.25)}, v48  ; c/4
v_lshlrev_b32 v60, 3, v15        ; 8h
v_lshlrev_b32 v61, 4, v0
v_add_u32 v61, {FOFF}, v61
s_mov_b32 s42, s3""")
    main_start()
    LF = A.lab("fgen")
    A(f"""{LF}:
s_lshl_b32 s43, s42, 4
v_add_u32 v52, s43, v60
v_cvt_f32_u32 v52, v52
s_lshl_b32 s43, s42, 10
v_add_u32 v53, s43, v61""")
    for kgi in range(3): A(f"v_fma_f32 v{16+12*kgi}, v{56+kgi}, v52, v59")
    for j in range(1, 8):
        for kgi in range(3): A(f"v_add_f32 v{16+12*kgi+j}, v{56+kgi}, v{16+12*kgi+j-1}")
    for kgi in range(3):
        t = 16 + 12*kgi
        for j in range(8): A(f"v_cos_f32 v{t+j}, v{t+j}")
        for j in range(4): A(f"v_cvt_pk_bf16_f32 v{t+8+j}, v{t+2*j}, v{t+2*j+1}")
        A(f"ds_write_b128 v53, {vr(t+8,4)} offset:{14336*kgi}")
    A(f"s_add_u32 s42, s42, 4\ns_cmp_lt_u32 s42, 14\ns_cbranch_scc1 {LF}")
def a1_compute():
    A("s_waitcnt lgkmcnt(0)")
    gettag()
    A(f"""s_lshl_b32 s41, s6, 2
s_add_u32 s41, s41, s3          ; s2 index
v_lshlrev_b32 v5, 8, v15
v_add_u32 v5, s41, v5
v_mul_u32_u24 v5, v14, v5
v_cvt_f32_u32 v5, v5
v_mul_f32 v5, {f32(1/2048)}, v5
v_cvt_f32_u32 v6, v14
v_mul_f32 v6, {f32(1/32)}, v6
v_lshrrev_b32 v49, 1, v14
v_and_b32 v49, 7, v49
v_xor_b32 v49, v49, v15
v_lshlrev_b32 v49, 4, v49
v_lshl_or_b32 v62, v14, 7, v49
s_lshl_b32 s43, s3, 12
v_add_u32 v62, s43, v62""")
    egen = []
    for i in range(2):
        for j in range(8): egen.append(f"v_fmamk_f32 v{176+j}, v6, {f32(float(16*i+8*(j>>2)+(j&3)))}, v5")
        for j in range(8): egen.append(f"v_cos_f32 v{184+j}, v{176+j}")
        for j in range(8): egen.append(f"v_sin_f32 v{192+j}, v{176+j}")
        for j in range(4): egen.append(f"v_cvt_pk_bf16_f32 v{160+4*i+j}, v{184+2*j}, v{185+2*j}")
        for j in range(4): egen.append(f"v_cvt_pk_bf16_f32 v{168+4*i+j}, -v{192+2*j}, -v{193+2*j}")
    def a1addr():
        A(f"""s_lshr_b32 s43, s26, 1
s_lshl_b32 s43, s43, 14
s_and_b32 s44, s26, 1
s_lshl_b32 s44, s44, 6
s_or_b32 s43, s43, s44
v_xor_b32 v8, s43, v62
v_xor_b32 v9, 32, v8
s_add_u32 s43, s26, 7
s_lshr_b32 s43, s43, 1
s_lshl_b32 s43, s43, 14
s_xor_b32 s44, s44, 64
s_or_b32 s43, s43, s44
v_xor_b32 v10, s43, v62
v_xor_b32 v11, 32, v10
s_lshl_b32 s43, s26, 11
v_add_u32 v12, s43, v61""")
    def nextedge():
        A("s_add_u32 s26, s26, 1\ns_cmp_eq_u32 s26, 7\ns_cselect_b32 s26, 0, s26"); a1addr()
    def a1reads(t):
        b = 16 + 20*t
        A(f"ds_read_b128 {vr(b,4)}, v{8+t}")
        for kgi in range(3): A(f"ds_read_b128 {vr(b+8+4*kgi,4)}, v12 offset:{1024*t+14336*kgi}")
        A(f"ds_read_b128 {vr(b+4,4)}, v{10+t}")
    def a1mfma(t, first=False, fill=0):
        b = 16 + 20*t
        for hi in range(2):
            for kgi in range(3):
                d = 64 + 32*kgi + 16*hi
                A(f"{MFMA} {vr(d,16)}, {vr(b+4*hi,4)}, {vr(b+8+4*kgi,4)}, {0 if first else vr(d,16)}")
                for _ in range(fill):
                    if egen: A(egen.pop(0))
    LL, LS, LNB = A.lab("a1loop"), A.lab("a1skip"), A.lab("a1nb")
    a1addr()
    fixtag()
    stampw(9)
    A("s_barrier")
    stampw(2)
    a1reads(0)
    for n in range(2):
        a1reads(1)
        A("s_waitcnt lgkmcnt(5)")
        a1mfma(0, n == 0, 3)
        A("s_waitcnt lgkmcnt(0)")
        nextedge()
        A("s_barrier")
        a1reads(0)
        a1mfma(1, False, 3)
    assert not egen
    A(f"s_mov_b32 s45, 2\n{LL}:")
    a1reads(1)
    A("s_waitcnt lgkmcnt(5)")
    a1mfma(0)
    A(f"""s_waitcnt lgkmcnt(0)
s_add_u32 s45, s45, 1
s_cmp_eq_u32 s45, 7
s_cbranch_scc1 {LS}""")
    nextedge()
    A(f"s_cmp_eq_u32 s45, 6\ns_cbranch_scc1 {LNB}\ns_barrier\n{LNB}:")
    a1reads(0)
    A(f"{LS}:")
    a1mfma(1)
    A(f"s_cmp_lg_u32 s45, 7\ns_cbranch_scc1 {LL}")
    stamp(3)
    LI = A.lab("a1init")
    A(f"""v_and_b32 v3, 2, v14
v_lshlrev_b32 v3, 30, v3
v_or_b32 v3, 1.0, v3            ; (-1)^k
v_lshlrev_b32 v4, 5, v14
v_lshl_or_b32 v4, v15, 4, v4
s_cmp_ge_u32 s41, 4
s_cbranch_scc1 {LI}
s_lshl_b32 s42, s5, 2
s_add_u32 s42, s42, s41
s_lshl_b32 s42, s42, 7
s_add_u32 s42, s42, {AT_OFF}
v_mov_b32 v5, 0
s_mov_b64 exec, 1
buffer_store_dword v5, v5, {W}, s42 offen {SC}
s_mov_b64 exec, -1
{LI}:
s_mul_i32 s41, s41, {T_ROW}
s_mul_i32 s42, s5, 6144
s_add_u32 s41, s41, s42
s_add_u32 s41, s41, {T_OFF}
s_add_u32 s42, s41, 2048
s_add_u32 s43, s41, 4096""")
    for kgi in range(3):
        P, Q = 64+32*kgi, 80+32*kgi
        for i in range(16): A(f"v_fmac_f32 v{P+i}, v3, v{Q+i}")
        for i in range(8): A(f"v_cvt_pk_bf16_f32 v{16+8*kgi+i}, v{P+2*i}, v{P+2*i+1}")
        A(f"""{MFMA} {vr(P,16)}, {vr(16+8*kgi,4)}, v[160:163], 0
{MFMA} {vr(Q,16)}, {vr(16+8*kgi,4)}, v[168:171], 0
{MFMA} {vr(P,16)}, {vr(20+8*kgi,4)}, v[164:167], {vr(P,16)}
{MFMA} {vr(Q,16)}, {vr(20+8*kgi,4)}, v[172:175], {vr(Q,16)}""")
    for kgi in range(3):
        P, Q = 64+32*kgi, 80+32*kgi
        for j in range(8):
            A(f"v_sub_f32 v{P+2*j}, v{P+2*j}, v{Q+2*j+1}\nv_add_f32 v{Q+2*j}, v{Q+2*j}, v{P+2*j+1}")
        for j in range(8): A(f"v_cvt_pk_bf16_f32 v{40+8*kgi+j}, v{P+2*j}, v{Q+2*j}")
        for i in range(2):
            A(f"buffer_store_dwordx4 {vr(40+8*kgi+4*i,4)}, v4, {W}, s{41+kgi} offen offset:{1024*i} {SC}")

def pub1():
    A(f"""{PUB1}:
s_lshl_b32 s41, s7, 7
s_lshl_b32 s42, s6, 2
s_add_u32 s41, s41, s42
s_add_u32 s41, s41, {F1_OFF}""")
    stamp(4)
    publish(C_P1, 41, OPT["r1"], 2048)
    stamp(5)
    A(f"s_setprio 0\ns_cmp_ge_u32 s7, 11\ns_cbranch_scc1 {GEN}")

def b3map():
    A("""s_lshr_b32 s4, s2, 4
s_lshl_b32 s4, s4, 2
s_bfe_u32 s5, s2, 0x20001
s_or_b32 s4, s4, s5
s_and_b32 s5, s2, 1
s_lshl_b32 s5, s5, 1
s_bfe_u32 s6, s2, 0x10003
s_or_b32 s5, s5, s6            ; n quarter""")
def wo_setup(d, SWO):
    srd(SWO, P_WO, WO_BYTES)
    A(f"""s_and_b32 s53, s2, 1
s_lshl_b32 s53, s53, 1
s_bfe_u32 s54, s2, 0x10003
s_or_b32 s53, s53, s54
s_lshl_b32 s53, s53, 8
s_mul_i32 s54, s40, {56*896}
s_add_u32 s53, s53, s54
s_mul_i32 s54, s40, {56*256}
v_lshrrev_b32 v13, 4, v0
v_and_b32 v12, 15, v0
v_lshlrev_b32 v{d}, 2, v13
v_xor_b32 v12, v12, v{d}
v_lshlrev_b32 v12, 4, v12
v_mul_u32_u24 v13, 896, v13
v_add_u32 v{d}, v12, v13""")
def wo_stage(d, SWO, half):
    for i in range(14):
        A(f"s_add_u32 m0, s54, {WO+1024*i}\ns_add_u32 s55, s53, {(224*half+4*i)*896}\nbuffer_load_dwordx4 v{d}, {sr(SWO,4)}, s55 offen lds")

Q, S, O, KV = 16, 48, 112, 176
def q(j,i): return vr(Q+8*j+4*i, 4)
def kb(b,i): return KV+16*b+4*i
def tile_addr():
    return [f"s_and_b32 s42, s41, 15", "s_add_u32 s42, s42, s47", f"s_mul_i32 s43, s42, {QK_TILE}",
            f"s_add_u32 s43, s43, {QK_OFF+QK_PART}", "s_lshl_b32 s44, s42, 11", f"s_add_u32 s44, s44, {V_OFF}",
            "s_add_u32 s41, s41, 1"]
def tile_loads(b):
    return [f"buffer_load_dwordx4 {vr(kb(b,0),4)}, v1, {W}, s43 offen {SC}",
            f"buffer_load_dwordx4 {vr(kb(b,1),4)}, v2, {W}, s43 offen {SC}",
            f"buffer_load_dwordx4 {vr(kb(b,2),4)}, v3, {W}, s44 offen {SC}",
            f"buffer_load_dwordx4 {vr(kb(b,3),4)}, v3, {W}, s44 offen offset:1024 {SC}"]
def touches():
    L1, L2 = A.lab("tch"), A.lab("tch")
    A(f"s_cmp_ge_u32 s40, 2\ns_cbranch_scc1 {L1}")
    srd(SX, P_WR, W_BYTES)
    A(f"s_cmp_eq_u32 s40, 0\ns_cbranch_scc1 {L2}")
    srd(SX, P_WI, W_BYTES)
    A(f"""{L2}:
s_lshr_b32 s55, s2, 3
s_mul_i32 s55, s55, {64*450}
s_and_b32 s56, s2, 7
s_mul_i32 s56, s56, {4*450}
s_add_u32 s55, s55, s56
s_and_b32 s55, s55, 0xffffff80
v_bfe_u32 v12, v0, 4, 1
v_mul_u32_u24 v12, {32*450}, v12
v_and_b32 v13, 15, v0
v_lshl_add_u32 v12, v13, 7, v12
s_mov_b64 exec, 0xffffffff
buffer_load_dword v248, v12, {sr(SX,4)}, s55 offen
s_mov_b64 exec, -1
{L1}:""")
    L3 = A.lab("tch")
    A(f"s_cmp_lg_u32 s40, 2\ns_cbranch_scc1 {L3}")
    srd(SX, P_WO, WO_BYTES)
    A(f"""s_lshr_b32 s55, s2, 3
s_mul_i32 s55, s55, {14*896}
s_and_b32 s56, s2, 1
s_lshl_b32 s56, s56, 9
s_add_u32 s55, s55, s56
v_lshrrev_b32 v12, 2, v0
v_mul_u32_u24 v12, 896, v12
v_and_b32 v13, 3, v0
v_lshl_add_u32 v12, v13, 7, v12
buffer_load_dword v248, v12, {sr(SX,4)}, s55 offen
{L3}:""")
def attention():
    A(f"""{ATT}:
s_setprio 0
s_and_b32 s4, s2, 7
s_lshl_b32 s4, s4, 1
s_bfe_u32 s5, s2, 0x10003
s_or_b32 s4, s4, s5            ; head
s_lshr_b32 s5, s2, 4           ; qb
s_mul_i32 s6, s4, 7
s_lshr_b32 s45, s6, 1
s_add_u32 s6, s6, 1
s_lshr_b32 s6, s6, 1
s_lshl_b32 s6, s6, 9
v_lshlrev_b32 v8, 4, v0
v_add_u32 v1, s6, v8
s_bitcmp1_b32 s4, 0
s_cselect_b32 s7, -2040, 0
v_add_u32 v2, 1024, v1
v_add_u32 v6, s7, v2
v_mov_b32 v4, 0x3f80
v_mov_b32_dpp v2, v6 {HI}
s_lshl_b32 s7, s4, 17
v_add_u32 v3, s7, v8           ; V offset
v_mov_b32 v5, 0xdddd
v_mov_b32 v7, 0
s_lshl_b32 s47, s40, 4         ; 16*w
s_mov_b32 s41, s5
s_lshl_b32 s45, s45, 3
v_bfe_u32 v9, v0, 4, 1
v_mul_u32_u24 v10, 31, v9
v_add_u32 v10, s45, v10        ; Q column
v_add_u32 v11, 448, v10        ; K column
v_mul_u32_u24 v9, 27, v9
s_mul_i32 s46, s4, 28
s_add_u32 s46, s46, 896
v_add_u32 v9, s46, v9          ; V column
v_and_b32 v10, 0xffffff80, v10
v_mov_b32_dpp v11, v9 {HI}
s_lshl_b32 s46, s5, 2
v_add_u32 v10, s46, v10
v_and_b32 v11, 0xffffff80, v11
v_and_b32 v9, 15, v0
v_lshl_add_u32 v11, v9, 2, v11
s_and_b32 s46, s2, {OPT["r1"]-1}
s_lshl_b32 s46, s46, 11
s_add_u32 s46, s46, {F1_OFF}""")
    for j in range(4):
        A(f"""s_add_u32 s42, s40, {j}
s_and_b32 s42, s42, 3
s_lshl_b32 s43, s5, 2
s_add_u32 s42, s42, s43
s_mul_i32 s42, s42, {QK_TILE}
s_add_u32 s{50+j}, s42, {QK_OFF}""")
    A(f"s_mul_i32 s54, s5, {4*QK_TILE}\ns_add_u32 s54, s54, {QK_OFF+QK_PART}")
    for x in tile_addr(): A(x)
    if OPT['tch'] == 1: touches()
    for i in range(64): A(f"v_mov_b32 v{O+i}, 0")
    lds_wait(C_P1, 4, 2)
    if OPT['tch'] == 2: touches()
    A("s_setprio 2")
    stamp(5)
    def kvpoll():
        A(f"""buffer_load_dword v14, v10, {W}, s46 offen {SC}
buffer_load_dword v15, v11, {W}, s46 offen {SC}
s_waitcnt vmcnt(0)
v_cmp_ne_u32 s[48:49], s{TAG}, v14
v_cmp_ne_u32 vcc, s{TAG}, v15
s_or_b64 vcc, vcc, s[48:49]""")
    acquire(R_KV, kvpoll, OPT["sl1"])
    stamp(6)
    A(f"""buffer_load_dwordx4 {vr(kb(3,0),4)}, v1, {W}, s54 offen {SC}
buffer_load_dwordx4 {vr(kb(3,1),4)}, v2, {W}, s54 offen {SC}""")
    for j in range(4):
        A(f"""buffer_load_dwordx4 {q(j,0)}, v1, {W}, s{50+j} offen {SC}
buffer_load_dwordx4 {q(j,1)}, v2, {W}, s{50+j} offen {SC}""")
    for b in range(3):
        for x in (tile_addr() if b else []) + tile_loads(b): A(x)
    for j in range(4):
        A(f"s_waitcnt vmcnt({18-2*j})")
        A(f"v_mov_b32_dpp v{Q+8*j+6}, v7 {HI}\nv_mov_b32_dpp v{Q+8*j+7}, v7 {HI}")
        A(f"{MFMA} {vr(S+16*j,16)}, {vr(kb(3,0),4)}, {q(j,0)}, 0")
        A(f"{MFMA} {vr(S+16*j,16)}, {vr(kb(3,1),4)}, {q(j,1)}, {vr(S+16*j,16)}")
    for j in range(4):
        s = S+16*j
        A(f"v_max3_f32 v{8+j}, v{s}, v{s+1}, v{s+2}")
        for i in range(3, 15, 2): A(f"v_max3_f32 v{8+j}, v{8+j}, v{s+i}, v{s+i+1}")
        A(f"v_max_f32 v{8+j}, v{8+j}, v{s+15}")
        A(f"v_cvt_pk_bf16_f32 v{8+j}, -v{8+j}, v7")
        if j == 0: A(f"s_waitcnt vmcnt(8)\nv_mov_b32_dpp v{kb(0,1)+2}, v4 {HI}")
        A(f"v_mov_b32_dpp v{Q+8*j+6}, v{8+j} {HI}")
        if j == 0:
            A(f"{MFMA} {vr(S,16)}, {vr(kb(0,0),4)}, {q(0,0)}, 0")
            A(f"{MFMA} {vr(S,16)}, {vr(kb(0,1),4)}, {q(0,1)}, {vr(S,16)}")
    stamp(7)
    if OPT["g2"]: lds_add(C_G2)
    for n in range(64):
        i, j = n >> 2, n & 3
        if n == 32: stamp(8)
        if n == 64 - OPT["go"]: lds_add(C_GO)
        extra = []
        if j == 1 and i + 3 < 16: extra = tile_addr() + tile_loads((i+3) & 3)
        m = [None]*4
        pre = []
        if n < 63:
            i2, j2 = (n+1) >> 2, (n+1) & 3
            if j2 == 0:
                left = min(15, i+3) - (i+1)
                pre = [f"s_waitcnt vmcnt({4*left})", f"v_mov_b32_dpp v{kb(i2&3,1)+2}, v4 {HI}"]
            m[0] = f"{MFMA} {vr(S+16*j2,16)}, {vr(kb(i2&3,0),4)}, {q(j2,0)}, 0"
            m[1] = f"{MFMA} {vr(S+16*j2,16)}, {vr(kb(i2&3,1),4)}, {q(j2,1)}, {vr(S+16*j2,16)}"
        if n > 0:
            i0, j0 = (n-1) >> 2, (n-1) & 3
            m[2] = f"{SMF} {vr(O+16*j0,16)}, {vr(kb(i0&3,3),4)}, {vr(S+16*j0+8,8)}, v5"
        m[3] = f"{SMF} {vr(O+16*j,16)}, {vr(kb(i&3,2),4)}, {vr(S+16*j,8)}, v5"
        for x in pre: A(x)
        for g in range(4):
            if m[g]: A(m[g])
            for e in range(4):
                r = S+16*j+4*g+e
                A(f"v_exp_f32 v{r}, v{r}")
                if extra: A(extra.pop(0))
        assert not extra
    A(f"{SMF} {vr(O+48,16)}, {vr(kb(3,3),4)}, {vr(S+48+8,8)}, v5")
    stamp(9)
    A("v_lshlrev_b32 v8, 4, v0")
    for j in range(1, 4):
        A(f"""s_add_u32 s42, s40, {j}
s_and_b32 s42, s42, 3
s_mul_i32 s42, s42, 12288
s_add_u32 s42, s42, {MERGE + 4096*(j-1)}
v_add_u32 v9, s42, v8""")
        for g in range(4): A(f"ds_write_b128 v9, {vr(O+16*j+4*g,4)} offset:{1024*g}")
    A(f"s_mul_i32 s42, s40, 12288\ns_add_u32 s42, s42, {MERGE}\nv_add_u32 v9, s42, v8")
    lds_sync(C_MERGE, 4)
    for g in range(12): A(f"ds_read_b128 {vr(S+4*g,4)}, v9 offset:{1024*g}")
    for k in range(3):
        A(f"s_waitcnt lgkmcnt({8-4*k})")
        for i in range(16): A(f"v_add_f32 v{O+i}, v{O+i}, v{S+16*k+i}")
    A(f"""v_mov_b32 v10, v{O+12}
v_mov_b32 v11, v{O+12}
v_permlane32_swap_b32 v10, v11
v_cmp_nle_f32 vcc, {f32(2.0**-40)}, v11
s_mov_b64 s[48:49], vcc
v_cmp_nge_f32 vcc, {f32(2.0**40)}, v11
s_or_b64 vcc, vcc, s[48:49]
s_cbranch_vccnz {LFB}
{LN}:
v_rcp_f32 v11, v11
s_lshl_b32 s42, s5, 2
s_add_u32 s42, s42, s40
s_lshl_b32 s42, s42, 15
s_lshl_b32 s43, s4, 11
s_add_u32 s42, s42, s43
s_add_u32 s42, s42, {O_OFF}""")
    for i in range(16): A(f"v_mul_f32 v{O+i}, v{O+i}, v11")
    for i in range(8): A(f"v_cvt_pk_bf16_f32 v{S+i}, v{O+2*i}, v{O+2*i+1}")
    A(f"""v_mov_b32_dpp v{S+6}, v7 {HI}
v_mov_b32_dpp v{S+7}, v7 {HI}
buffer_store_dwordx4 {vr(S,4)}, v8, {W}, s42 offen {SC}
buffer_store_dwordx4 {vr(S+4,4)}, v8, {W}, s42 offen offset:1024 {SC}
s_lshl_b32 s46, s5, 10
s_add_u32 s46, s46, {FO_OFF}
s_lshl_b32 s41, s4, 2
s_add_u32 s41, s41, s46""")
    stamp(10)
    SO = 32; WF = 112; BACC = 16; OB = 32; NB = 6
    A(f"""v_bfe_u32 v9, v0, 2, 2        ; rr
v_and_b32 v10, 3, v0
v_lshrrev_b32 v11, 1, v10
v_and_b32 v10, 1, v10
v_lshl_or_b32 v10, v10, 1, v11    ; sigma(cc)
v_bfe_u32 v11, v0, 4, 1
v_lshlrev_b32 v11, 5, v11
v_lshl_or_b32 v10, v10, 3, v11
s_lshl_b32 s45, s40, 6
v_or_b32 v10, s45, v10
v_lshlrev_b32 v11, 6, v9
v_xor_b32 v10, v10, v11
v_lshl_or_b32 v4, v9, 8, v10
v_lshrrev_b32 v15, 5, v0
v_lshl_add_u32 v3, v15, 10, v4""")
    assert WO == 0
    def wo_frags(half):
        for n in range(16):
            hd, i = n >> 1, n & 1
            b = WF + 64*half + 4*n
            row = 28*hd + 16*i
            A(f"ds_read_b64_tr_b16 {vr(b,2)}, v3 offset:{row*256}")
            A(f"ds_read_b64_tr_b16 {vr(b+2,2)}, v{4 if i else 3} offset:{(row+8)*256}")
            if n % 6 == 5: A("s_waitcnt lgkmcnt(2)")
    lds_wait(C_WOA, 4)
    wo_frags(0)
    A("s_waitcnt lgkmcnt(0)")
    lds_add(C_WOF)
    publish(C_O, 41, OPT["ro"], 128)
    b3map(); wo_setup(1, SX); srd(SO, P_OUT, OUT_BYTES)
    lds_wait(C_WOF, 4)
    wo_stage(1, SX, 1)
    A(f"""s_lshl_b32 s43, s4, 15
s_lshl_b32 s44, s40, 13
s_add_u32 s43, s43, s44
s_add_u32 s43, s43, {O_OFF}
s_add_u32 s47, s43, 4096
v_add_u32 v7, {OST}, v8
v_and_b32 v14, 31, v0
v_mul_u32_u24 v2, 1792, v14
v_lshl_add_u32 v2, v15, 4, v2
s_mul_i32 s41, s4, {32*1792}
s_lshl_b32 s42, s5, 8
s_add_u32 s41, s41, s42
s_add_u32 s41, s41, s45
s_add_u32 s41, s41, 896
s_and_b32 s42, s2, {OPT["ro"]-1}
s_lshl_b32 s42, s42, 7
s_add_u32 s46, s46, s42
v_and_b32 v9, 15, v0
v_lshlrev_b32 v9, 2, v9""")
    def opoll():
        A(f"""buffer_load_dword v14, v9, {W}, s46 offen {SC}
s_waitcnt vmcnt(0)
v_cmp_ne_u32 vcc, s{TAG}, v14""")
    acquire(R_O, opoll, OPT["sl1"])
    stamp(11)
    for half in range(2):
        A(f"s_add_u32 m0, s44, {OST+4096*half}")
        for i in range(4):
            A(f"buffer_load_dwordx4 v8, {W}, s{47 if half else 43} offen offset:{1024*i} {SC} lds")
    A("s_waitcnt vmcnt(8)")
    lds_sync(C_WOB, 4)
    wo_frags(1)
    A("s_waitcnt vmcnt(0)")
    lds_sync(C_OST, 4)
    stampw(12)
    def rd(n): A(f"ds_read_b128 {vr(OB+4*(n%NB),4)}, v7 offset:{1024*n}")
    for n in range(NB-1): rd(n)
    for n in range(32):
        if n + NB - 1 < 32: rd(n + NB - 1)
        left = min(31, n+NB-1) - n
        A(f"s_waitcnt lgkmcnt({left})\n{MFMA} {vr(BACC,16)}, {vr(WF+4*n,4)}, {vr(OB+4*(n%NB),4)}, {vr(BACC,16) if n else 0}")
    A(f"""s_lshl_b32 s42, s5, 2
s_add_u32 s42, s42, s40
s_cmp_ge_u32 s42, 14
s_cbranch_scc1 {END}""")
    for i in range(8): A(f"v_cvt_pk_bf16_f32 v{64+i}, v{BACC+2*i}, v{BACC+2*i+1}")
    A(f"""buffer_store_dwordx4 v[64:67], v2, {sr(SO,4)}, s41 offen
buffer_store_dwordx4 v[68:71], v2, {sr(SO,4)}, s41 offen offset:32
s_branch {END}""")

def helper():
    SA, SB, SO, SWO = 28, 32, 32, 56
    T, AC2, WA, WB, Y = 16, 48, 64, 72, 80
    LNOA2, LNY, LNY2, LP2 = "L_noa2", A.lab("nyq"), A.lab("nyq"), A.lab("pub2")
    A(f"{HELP2}:")
    gen_ce()
    A(f"""s_lshr_b32 s5, s2, 3
v_mul_u32_u24 v1, {2*T_ROW}, v15
v_lshl_add_u32 v1, v14, 2, v1   ; T offset
v_lshrrev_b32 v8, 3, v14        ; u1 local
v_and_b32 v9, 7, v14            ; k local
v_lshl_add_u32 v2, v15, 6, v8
v_mul_u32_u24 v2, 450, v2
v_lshl_add_u32 v2, v9, 1, v2    ; W offset
v_mul_u32_u24 v3, {2*T2_ROW}, v15
v_lshl_add_u32 v3, v9, 4, v3
v_lshl_add_u32 v3, v8, 2, v3    ; T2 offset
s_lshl_b32 s41, s5, 10
s_lshl_b32 s42, s4, 7
s_add_u32 s41, s41, s42
s_add_u32 s41, s41, {T_OFF}
s_mul_i32 s42, s4, {4*450}
s_mul_i32 s43, s40, {512*450}
s_add_u32 s42, s42, s43
s_lshl_b32 s43, s5, 4
s_add_u32 s42, s42, s43""")
    for i in range(16): A(f"v_mov_b32 v{WA+i}, 0")
    wo_setup(4, SWO)
    A(f"s_cmp_ge_u32 s5, 29\ns_cbranch_scc1 {LNOA2}")
    srd(SA, P_WR, W_BYTES); srd(SB, P_WI, W_BYTES)
    A(f"s_cmp_lg_u32 s5, 28\ns_cbranch_scc1 {LNY}")
    srd(SA, P_WI, W_BYTES); srd(SB, P_WR, W_BYTES)
    A(f"{LNY}:")
    lds_wait(C_G2 if OPT["g2"] else C_P1, 4, 2)
    A(f"s_setprio {OPT['hp']}")
    for j in range(8):
        A(f"""s_add_u32 s43, s42, {32*(4*(j>>1)+(j&1))*450}
buffer_load_short_d16_hi v{WA+j}, v2, {sr(SA,4)}, s43 offen
buffer_load_short_d16_hi v{WB+j}, v2, {sr(SB,4)}, s43 offen""")
    A(f"""s_mul_i32 s44, s5, 43
s_lshr_b32 s44, s44, 8          ; g5
s_lshl_b32 s46, s44, 7
s_and_b32 s47, s2, {OPT["r1"]-1}
s_lshl_b32 s47, s47, 11
s_add_u32 s46, s46, s47
s_add_u32 s46, s46, {F1_OFF + 11*128}
v_and_b32 v9, 15, v0
v_lshlrev_b32 v9, 2, v9""")
    def a1poll():
        A(f"""buffer_load_dword v10, v9, {W}, s46 offen {SC}
s_waitcnt vmcnt(0)
v_cmp_ne_u32 vcc, s{TAG}, v10""")
    acquire(R_A1, a1poll, OPT["sl2"], 2)
    stamp(6)
    for f in range(8):
        for p in range(4):
            A(f"s_add_u32 s43, s41, {(8*f+4*(p>>1)+(p&1))*T_ROW}\nbuffer_load_dword v{T+4*f+p}, v1, {W}, s43 offen {SC}")
    A(f"""v_lshlrev_b32 v8, 4, v0
v_add_u32 v8, {EX}, v8
s_lshl_b32 s43, s40, 11
v_add_u32 v9, s43, v8
s_waitcnt vmcnt(32)
s_cmp_lg_u32 s5, 28
s_cbranch_scc1 {LNY2}""")
    for j in range(8): A(f"v_xor_b32 v{WA+j}, 0x80000000, v{WA+j}")
    A(f"{LNY2}:")
    for f in range(8):
        A(f"s_waitcnt vmcnt({28-4*f})\n{MFMA} {vr(AC2,16)}, {vr(C+4*f,4)}, {vr(T+4*f,4)}, {vr(AC2,16) if f else 0}")
    for j in range(8):
        xr, xi = AC2+2*j, AC2+2*j+1
        A(f"""v_mul_f32 v10, v{xr}, v{WA+j}
v_mul_f32 v11, v{xr}, v{WB+j}
v_fma_f32 v10, -v{xi}, v{WB+j}, v10
v_fmac_f32 v11, v{xi}, v{WA+j}
v_cvt_pk_bf16_f32 v{Y+j}, v11, v10""")
    A(f"ds_write_b128 v9, {vr(Y,4)}\nds_write_b128 v9, {vr(Y+4,4)} offset:1024")
    lds_sync(C_EX, 4, 1)
    for f in range(8): A(f"ds_read_b128 {vr(T+4*f,4)}, v8 offset:{1024*f}")
    A(f"""s_mul_i32 s41, s40, {16*T2_ROW}
s_mul_i32 s42, s4, {T2_Q}
s_add_u32 s41, s41, s42
s_lshl_b32 s42, s5, 7
s_add_u32 s41, s41, s42
s_add_u32 s41, s41, {T2_OFF}""")
    for f in range(8):
        A(f"s_waitcnt lgkmcnt({7-f})\n{MFMA} {vr(AC2,16)}, {vr(C+4*f,4)}, {vr(T+4*f,4)}, {vr(AC2,16) if f else 0}")
    for j in range(8):
        A(f"""v_cvt_pk_bf16_f32 v{Y+j}, v{AC2+2*j+1}, v{AC2+2*j}
s_add_u32 s43, s41, {(4*(j>>1)+(j&1))*T2_ROW}
buffer_store_dword v{Y+j}, v3, {W}, s43 offen {SC}""")
    stamp(7)
    arrive(C_A2, LP2)
    srd(SA, P_DBG, 256)
    A(f"""s_lshl_b32 s41, s44, 2
s_lshr_b32 s42, s4, 1
s_add_u32 s41, s41, s42
s_lshl_b32 s41, s41, 7
s_add_u32 s41, s41, {AT_OFF}
s_cmp_eq_u32 s44, 4
s_cselect_b32 s42, 9, 11
v_mov_b32 v12, 0
v_mov_b32 v13, 1
s_mov_b64 exec, 1
buffer_atomic_add v13, v12, {W}, s41 offen sc0 sc1
s_mov_b64 exec, -1
s_waitcnt vmcnt(0)
v_readfirstlane_b32 s60, v13
s_cmp_lg_u32 s60, s42
s_cbranch_scc1 {LP2}
v_mov_b32 v13, 1
s_mov_b64 exec, 1
buffer_atomic_add v13, v12, {sr(SA,4)}, 0 offen sc0 sc1
s_mov_b64 exec, -1
s_waitcnt vmcnt(0)
v_readfirstlane_b32 s60, v13
s_cmp_lg_u32 s60, 19
s_cbranch_scc1 {LP2}
s_mov_b32 s41, {F2_OFF}""")
    flagstore("s41", 8, 128)
    assert EPOCH_OFF == 0
    flagstore("0", 1, 0)
    A(f"{LP2}:")
    A(f"{LNOA2}:")
    lds_wait(C_G2 if OPT["g2"] else C_P1, 4, 2)
    A(f"s_setprio {OPT['hp']}")
    wo_stage(4, SWO, 0)
    A("s_waitcnt vmcnt(0)")
    lds_add(C_WOA)
    TA, NY, AC3, ZB, AC4 = 16, 48, 64, 16, 112
    A(f"""v_and_b32 v8, 15, v14
v_lshrrev_b32 v9, 4, v14
v_lshl_or_b32 v8, v8, 1, v9
v_mul_u32_u24 v2, {T2_Q}, v15
v_lshl_add_u32 v1, v8, 4, v2    ; T2 offset
v_add_u32 v2, {224*16}, v2
s_mul_i32 s41, s50, {T2_ROW}
s_add_u32 s41, s41, {T2_OFF}
s_lshl_b32 s42, s40, 9
s_add_u32 s42, s42, s41
s_and_b32 s46, s2, 7
s_lshl_b32 s46, s46, 7
s_add_u32 s46, s46, {F2_OFF}
v_mov_b32 v9, 0""")
    srd(SO, P_OUT, OUT_BYTES)
    def a2poll():
        A(f"""buffer_load_dword v10, v9, {W}, s46 offen {SC}
s_waitcnt vmcnt(0)
v_cmp_ne_u32 vcc, s{TAG}, v10""")
    acquire(R_A2, a2poll, OPT["sl3"], OPT["sl3"])
    stamp(8)
    for tt in range(2):
        for f in range(4):
            A(f"s_add_u32 s43, s42, {2*f*T2_Q + 2048*tt}\nbuffer_load_dwordx4 {vr(TA+16*tt+4*f,4)}, v1, {W}, s43 offen {SC}")
    for f in range(4):
        A(f"s_add_u32 s43, s41, {2*f*T2_Q}\nbuffer_load_dwordx4 {vr(NY+4*f,4)}, v2, {W}, s43 offen {SC}")
    A(f"""v_lshlrev_b32 v5, 4, v0
s_lshl_b32 s43, s40, 11
s_add_u32 s43, s43, {ZOFF}
v_add_u32 v6, s43, v5
s_lshl_b32 s43, s52, 14
s_add_u32 s43, s43, {ZOFF}
v_add_u32 v5, s43, v5
s_lshr_b32 s46, s40, 1
s_lshl_b32 s46, s46, 3
v_add_u32 v7, s46, v15          ; 8p + h
v_and_b32 v9, 7, v14
v_xor_b32 v7, v7, v9
v_lshlrev_b32 v7, 4, v7
v_lshl_or_b32 v7, v14, 8, v7
s_lshl_b32 s46, s52, 13
s_add_u32 s46, s46, {YOFF}
v_add_u32 v7, s46, v7
v_lshrrev_b32 v8, 3, v0
s_lshl_b32 s46, s40, 3
v_add_u32 v8, s46, v8           ; row (s1)
v_and_b32 v9, 7, v0             ; piece
v_lshlrev_b32 v10, 1, v9
v_and_b32 v11, 7, v8
v_xor_b32 v10, v10, v11
v_lshlrev_b32 v10, 4, v10
v_lshl_or_b32 v10, v8, 8, v10
v_add_u32 v10, {YOFF}, v10
v_xor_b32 v11, 16, v10
v_mul_u32_u24 v8, {64*1792}, v8
v_lshl_add_u32 v8, v9, 4, v8
s_mul_i32 s41, s50, 1792
s_lshl_b32 s42, s51, 7
s_add_u32 s41, s41, s42
s_cmp_eq_u32 s51, 3
s_cselect_b32 s42, 4, 8
v_cmp_gt_u32 s[48:49], s42, v9""")
    if OPT["go"] > 0: lds_wait(C_GO, 4, 8)
    A(f"s_setprio {OPT['a3p']}")
    stamp(10)
    LN3 = A.lab("a3ny")
    A("s_waitcnt vmcnt(0)")
    for tt in range(2):
        for f in range(4):
            A(f"{MFMA} {vr(AC3+32*tt,16)}, {vr(TA+16*tt+4*f,4)}, {vr(ER+4*f,4)}, {vr(AC3+32*tt,16) if f else 0}")
    A(f"s_cmp_lg_u32 s40, 0\ns_cbranch_scc1 {LN3}\ns_mov_b32 exec_lo, 1\ns_mov_b32 exec_hi, 1")
    for i in range(16): A(f"v_mov_b32 v{TA+i}, v{NY+i}")
    A(f"s_mov_b64 exec, -1\n{LN3}:\ns_nop 1")
    for tt in range(2):
        for f in range(4):
            A(f"{MFMA} {vr(AC3+32*tt+16,16)}, {vr(TA+16*tt+4*f,4)}, {vr(EI+4*f,4)}, {vr(AC3+32*tt+16,16) if f else 0}")
    for part in range(2):
        for tt in range(2):
            a = AC3+32*tt+16*part
            d = TA+8*(2*part+tt)
            for i in range(8): A(f"v_cvt_pk_bf16_f32 v{d+i}, v{a+2*i}, v{a+2*i+1}")
            for e in range(2): A(f"ds_write_b128 v6, {vr(d+4*e,4)} offset:{16384*e+8192*tt+1024*part}")
    lds_sync(C_Z, 4, 1)
    for i in range(14): A(f"ds_read_b128 {vr(ZB+4*i,4)}, v5 offset:{1024*i}")
    for i in range(14):
        A(f"s_waitcnt lgkmcnt({13-i})\n{MFMA} {vr(AC4,16)}, {vr(G+4*i,4)}, {vr(ZB+4*i,4)}, {vr(AC4,16) if i else 0}")
    for g in range(4):
        A(f"v_xor_b32 v9, {32*g}, v7\nds_write_b128 v9, {vr(AC4+4*g,4)}")
    lds_sync(C_Y, 4, 1)
    A(f"""ds_read_b128 v[16:19], v10
ds_read_b128 v[20:23], v11
ds_read_b128 v[24:27], v10 offset:8192
ds_read_b128 v[28:31], v11 offset:8192
s_waitcnt lgkmcnt(0)""")
    for i in range(8): A(f"v_add_f32 v{32+i}, v{16+i}, v{24+i}\nv_sub_f32 v{40+i}, v{16+i}, v{24+i}")
    for i in range(8): A(f"v_cvt_pk_bf16_f32 v{48+i}, v{32+2*i}, v{33+2*i}")
    A(f"""s_mov_b64 exec, s[48:49]
buffer_store_dwordx4 v[48:51], v8, {sr(SO,4)}, s41 offen
buffer_store_dwordx4 v[52:55], v8, {sr(SO,4)}, s41 offen offset:448
s_mov_b64 exec, -1
s_branch {END}""")

def fallback():
    L1, L2 = A.lab("fb1"), A.lab("fb2")
    A(f"""{LFB}:
v_mov_b32_dpp v{Q+6}, v7 {HI}
v_mov_b32 v12, 0xff800000
s_mov_b32 s43, {QK_OFF+QK_PART}
{L1}:
buffer_load_dwordx4 {vr(kb(0,0),4)}, v1, {W}, s43 offen {SC}
buffer_load_dwordx4 {vr(kb(0,1),4)}, v2, {W}, s43 offen {SC}
s_waitcnt vmcnt(0)
{MFMA} {vr(S,16)}, {vr(kb(0,0),4)}, {q(0,0)}, 0
{MFMA} {vr(S,16)}, {vr(kb(0,1),4)}, {q(0,1)}, {vr(S,16)}""")
    for i in range(0, 16, 2): A(f"v_max3_f32 v12, v12, v{S+i}, v{S+i+1}")
    A(f"""s_add_u32 s43, s43, {QK_TILE}
s_cmp_lt_u32 s43, {QK_OFF+2*QK_PART}
s_cbranch_scc1 {L1}
v_mov_b32 v13, v12
v_mov_b32 v14, v12
v_permlane32_swap_b32 v13, v14
v_max_f32 v12, v13, v14""")
    for i in range(16): A(f"v_mov_b32 v{O+i}, 0")
    A(f"""s_mov_b32 s43, {QK_OFF+QK_PART}
s_mov_b32 s44, {V_OFF}
{L2}:""")
    for x in tile_loads(0): A(x)
    A(f"""s_waitcnt vmcnt(0)
{MFMA} {vr(S,16)}, {vr(kb(0,0),4)}, {q(0,0)}, 0
{MFMA} {vr(S,16)}, {vr(kb(0,1),4)}, {q(0,1)}, {vr(S,16)}""")
    for i in range(16): A(f"v_sub_f32 v{S+i}, v{S+i}, v12")
    for i in range(16): A(f"v_exp_f32 v{S+i}, v{S+i}")
    A(f"""{SMF} {vr(O,16)}, {vr(kb(0,2),4)}, {vr(S,8)}, v5
{SMF} {vr(O,16)}, {vr(kb(0,3),4)}, {vr(S+8,8)}, v5
s_nop 15
s_add_u32 s43, s43, {QK_TILE}
s_add_u32 s44, s44, 2048
s_cmp_lt_u32 s43, {QK_OFF+2*QK_PART}
s_cbranch_scc1 {L2}
v_mov_b32 v10, v{O+12}
v_mov_b32 v11, v{O+12}
v_permlane32_swap_b32 v10, v11
s_nop 1
s_branch {LN}""")

def finish():
    A(f"{END}:")
    if STAMPS:
        stamp(13)
        A(f"""s_waitcnt vmcnt(0)
s_memtime s[92:93]
s_memrealtime s[94:95]
s_waitcnt lgkmcnt(0)
s_mov_b32 s56, s24
s_mov_b32 s57, s25
s_mov_b32 s58, 0x2000000
s_mov_b32 s59, 0x00020000
s_mov_b64 exec, 1
s_lshl_b32 s60, s2, 3
s_add_u32 s60, s60, s3
s_lshl_b32 s60, s60, 6
s_add_u32 s60, s60, {TS_OFF}
v_mov_b32 v1, 0""")
        for i in range(16):
            A(f"v_mov_b32 v2, s{64+2*i}\nbuffer_store_dword v2, v1, s[56:59], s60 offen offset:{4*i}")
    A(f"{FIN}:\ns_endpgm")

entry(); b1_loader(); a1_dispatch_loader(); a1_gen(); a1_compute(); pub1(); helper()
A(f"{LB1C}:"); main_start(); gen_g(); b1_compute()
attention(); fallback(); finish()

HDR = open("cdna_kernels/%s.s.ref" % NAME).read().split("; Override")[0]
txt = HDR + f"; @launch grid=(256,1,1) block=(512,1,1) lds={LDS_BYTES}\n"
txt += '.amdgcn_target "amdgcn-amd-amdhsa--gfx950"\n.text\n' + A.finish()
txt += f""".section .rodata,"a"
.p2align 6
.amdhsa_kernel {K}
  .amdhsa_next_free_vgpr 256
  .amdhsa_next_free_sgpr 96
  .amdhsa_accum_offset 256
  .amdhsa_group_segment_fixed_size 0
  .amdhsa_kernarg_size 72
  .amdhsa_user_sgpr_count 2
  .amdhsa_user_sgpr_kernarg_segment_ptr 1
  .amdhsa_system_sgpr_workgroup_id_x 1
.end_amdhsa_kernel
"""
out = args[0] if args else "cdna_kernels/%s.s" % NAME
open(out, "w").write(txt)
print("wrote", out, len(txt))
```

```python
import sys, struct
from emit import Asm
from layout import *
NAME = "concat_heads__spectral_gfnet__softmax_full_mha__prompt"
OPT = dict(stamps=0, r1=8, ro=8, pf=1, sl1=1, sl2=4, sl3=16, rot=1, go=4, x=0, g2=1, hp=3, a3p=0, tch=2, probe=0, pwave=4, pwg=100, pd=0, vx=0)
args = []
for a in sys.argv[1:]:
    if "=" in a: k, v = a.split("="); assert k in OPT, k; OPT[k] = int(v)
    else: args.append(a)
STAMPS = OPT["stamps"]
def f32(x): return "0x%08x" % struct.unpack("<I", struct.pack("<f", x))[0]
def vr(a, n=1): return f"v{a}" if n == 1 else f"v[{a}:{a+n-1}]"
def sr(a, n=1): return f"s{a}" if n == 1 else f"s[{a}:{a+n-1}]"
P_AX, P_WR, P_WI, P_BX, P_WQKV, P_WO, P_OUT, P_DBG, P_WS = 8,10,12,14,16,18,20,22,24
MFMA = "v_mfma_f32_32x32x16_bf16"
SMF = "v_smfmac_f32_32x32x32_bf16"
SC = "sc1"
HI = "quad_perm:[0,1,2,3] row_mask:0xc bank_mask:0xf"
TAGC = 0x9E3779B9
TAG = 62
SWS = 36; W = sr(SWS,4)
SX, SW = 28, 32
SPIN = 200000
WO, MERGE, OST = 0, 57344, 57344
ZOFF, YOFF, EX = 106496, 106496+32768, 106496+32768
CNT = 162816
LDS_BYTES = 163840
(C_P1, R_KV, C_MERGE, C_O, R_O, C_OST, R_A1, C_EX, C_A2, R_A2, C_Z, C_Y, C_WOA, C_WOF, C_WOB, C_GO, C_G2) = [CNT+4*i for i in range(17)]

A = Asm()
def stamp(i):
    if STAMPS: A(f"{'s_memtime' if STAMPS == 2 else 's_memrealtime'} s[{64+2*i}:{65+2*i}]")
def stampw(i):
    if STAMPS: stamp(i); A("s_waitcnt lgkmcnt(0)")
def srd(d, p, nbytes):
    A(f"s_mov_b32 s{d}, s{p}\ns_mov_b32 s{d+1}, s{p+1}\ns_mov_b32 s{d+2}, {nbytes}\ns_mov_b32 s{d+3}, 0x00020000")
def pi32(d, s, t):
    A(f"""v_and_b32 v{d}, 0x13, v{s}
v_and_b32 v{t}, 4, v{s}
v_lshl_or_b32 v{d}, v{t}, 1, v{d}
v_and_b32 v{t}, 8, v{s}
v_lshrrev_b32 v{t}, 1, v{t}
v_or_b32 v{d}, v{d}, v{t}""")
def mod7(d, t):
    A(f"s_mul_i32 s{t}, s{d}, 37\ns_lshr_b32 s{t}, s{t}, 8\ns_mul_i32 s{t}, s{t}, 7\ns_sub_u32 s{d}, s{d}, s{t}")
def lds_add(addr):
    A(f"v_mov_b32 v12, {addr}\nv_mov_b32 v13, 1\ns_mov_b64 exec, 1\nds_add_u32 v12, v13\ns_mov_b64 exec, -1")
def lds_wait(addr, target, sleep=0, setup=True):
    L, L2 = A.lab("lw"), A.lab("lwd")
    if setup: A(f"v_mov_b32 v12, {addr}")
    A(f"""{L}:
ds_read_b32 v13, v12
s_waitcnt lgkmcnt(0)
v_readfirstlane_b32 s60, v13
s_cmp_ge_u32 s60, {target}""")
    if sleep: A(f"s_cbranch_scc1 {L2}\ns_sleep {sleep}\ns_branch {L}\n{L2}:")
    else: A(f"s_cbranch_scc0 {L}")
def lds_sync(addr, target, sleep=0):
    A("s_waitcnt lgkmcnt(0)"); lds_add(addr); lds_wait(addr, target, sleep, False)
def arrive(cnt, skip):
    A(f"""s_waitcnt vmcnt(0)
v_mov_b32 v12, {cnt}
v_mov_b32 v13, 1
s_mov_b64 exec, 1
ds_add_rtn_u32 v13, v12, v13
s_mov_b64 exec, -1
s_waitcnt lgkmcnt(0)
v_readfirstlane_b32 s60, v13
s_cmp_lg_u32 s60, 3
s_cbranch_scc1 {skip}""")
def flagstore(soff, nrep, repstride):
    A(f"""v_mul_u32_u24 v12, {repstride}, v0
v_mov_b32 v13, s{TAG}
s_mov_b64 exec, {(1<<nrep)-1}
buffer_store_dword v13, v12, {W}, {soff} offen {SC}
s_mov_b64 exec, -1""")
def publish(cnt, soff, nrep, repstride):
    L = A.lab("pub")
    arrive(cnt, L); flagstore(f"s{soff}", nrep, repstride); A(f"{L}:")
def acquire(rel, body, sleep, sleep2=1):
    LP, LD, LO, LE = A.lab("poll"), A.lab("pollok"), A.lab("pollw"), A.lab("polle")
    A(f"s_cmp_lg_u32 s40, 0\ns_cbranch_scc1 {LO}\ns_mov_b32 s61, {SPIN}\n{LP}:")
    body()
    A(f"""s_cbranch_vccz {LD}
s_sub_u32 s61, s61, 1
s_cmp_eq_u32 s61, 0
s_cbranch_scc1 {LD}
s_sleep {sleep}
s_branch {LP}
{LD}:""")
    lds_add(rel)
    A(f"s_branch {LE}\n{LO}:")
    lds_wait(rel, 1, sleep2)
    A(f"{LE}:")
def gettag():
    A(f"s_load_dword s{TAG}, s[24:25], {EPOCH_OFF}")
    srd(SWS, P_WS, WS_USED)
def fixtag():
    A(f"s_waitcnt lgkmcnt(0)\ns_add_u32 s{TAG}, s{TAG}, {TAGC}")

FIN, END, ATT, PUB1, HELP2, GEN = "L_fin", "L_end", "L_att", "L_pub1", "L_help2", "L_gen"
LA1, LB1C, LB1G, LA1C, LV, LN, LFB = "L_a1", "L_b1c", "L_b1g", "L_a1c", "L_b1v", "L_norm", "L_fallback"
K = NAME + "_kernel"

def entry():
    A(f".globl {K}\n.p2align 8\n.type {K},@function\n{K}:")
    A(f"""s_cmp_ge_u32 s2, 256
s_cbranch_scc1 {FIN}
s_load_dwordx16 s[8:23], s[0:1], 0
s_load_dwordx2 s[24:25], s[0:1], 64
v_lshrrev_b32 v1, 6, v0
v_readfirstlane_b32 s3, v1
v_and_b32 v0, 63, v0""")
    if STAMPS:
        for i in range(2, 14): A(f"s_mov_b32 s{64+2*i}, 0")
        A("s_memtime s[64:65]\ns_memrealtime s[66:67]")
    A(f"""s_and_b32 s4, s2, 7
s_lshr_b32 s5, s2, 3
s_lshl_b32 s6, s4, 1
s_and_b32 s7, s5, 1
s_or_b32 s6, s6, s7
s_lshr_b32 s7, s5, 1
s_and_b32 s40, s3, 3
s_cmp_ge_u32 s7, 11
s_cbranch_scc1 {LA1}
s_cmp_lt_u32 s3, 4
s_cbranch_scc1 {LB1C}""")

def xaddr(rs):
    A(f"""v_lshrrev_b32 v1, 3, v0
v_and_b32 v14, 7, v0
v_lshrrev_b32 v15, 4, v0
v_xor_b32 v14, v14, v15
v_lshlrev_b32 v14, 4, v14
v_xor_b32 v16, 64, v14
v_mul_u32_u24 v1, {rs}, v1
v_add_u32 v2, v1, v14
v_add_u32 v3, v1, v16
v_add_u32 v3, {8*rs-1024}, v3
v_add_u32 v4, {2*(8*rs-1024)}, v2
v_add_u32 v5, {2*(8*rs-1024)}, v3""")
def b1_loader():
    A("s_setprio 3\ns_add_u32 s26, s6, s7")
    mod7(26, 27)
    if not OPT["rot"]: A("s_mov_b32 s26, 0")
    xaddr(896)
    A(f"""v_and_b32 v14, 15, v0
v_lshlrev_b32 v16, 2, v15
v_xor_b32 v14, v14, v16
v_lshlrev_b32 v14, 4, v14
v_mul_u32_u24 v15, 2688, v15
v_add_u32 v6, v14, v15
v_add_u32 v7, {4*2688-1024}, v6
v_add_u32 v8, {2*(4*2688-1024)}, v6
v_add_u32 v9, {3*(4*2688-1024)}, v6
s_lshl_b32 s41, s6, 2
s_add_u32 s47, s41, s40
s_mul_i32 s41, s47, {32*896}     ; x base
s_mul_i32 s42, s40, {16*2688}
s_lshl_b32 s43, s7, 8
s_add_u32 s42, s42, s43          ; w base
s_lshl_b32 s44, s40, 12
s_waitcnt lgkmcnt(0)""")
    srd(SX, P_BX, X_BYTES); srd(SW, P_WQKV, WQKV_BYTES)
    def issue():
        A(f"""s_lshl_b32 s45, s26, 7
s_add_u32 s45, s45, s41
s_mul_i32 s46, s26, {64*2688}
s_add_u32 s46, s46, s42
s_mov_b32 m0, s44""")
        for i in range(4): A(f"buffer_load_dwordx4 v{2+i}, {sr(SX,4)}, s45 offen offset:{1024*i} lds")
        A(f"s_add_u32 m0, s44, 16384")
        for i in range(4): A(f"buffer_load_dwordx4 v{6+i}, {sr(SW,4)}, s46 offen offset:{1024*i} lds")
        A("""s_add_u32 s26, s26, 1
s_cmp_eq_u32 s26, 7
s_cselect_b32 s26, 0, s26
s_add_u32 s44, s44, 0x8000
s_and_b32 s44, s44, 0x1ffff""")
    LL = A.lab("b1ld")
    issue(); gettag()
    LNO = A.lab("noones")
    A(f"""s_cmp_lt_u32 s7, 7
s_cbranch_scc1 {LNO}
s_sub_u32 s45, s7, 7
s_lshl_b32 s45, s45, 7
s_add_u32 s45, s45, 27
s_mul_i32 s45, s45, 2341
s_lshr_b32 s45, s45, 16
v_lshrrev_b32 v10, 2, v0
v_add_u32 v10, s45, v10
v_and_b32 v11, 3, v0
v_lshlrev_b32 v11, 9, v11
v_lshl_or_b32 v11, v10, 17, v11
v_cmp_gt_u32 vcc, 16, v10
s_lshl_b32 s45, s47, 11
s_add_u32 s45, s45, {V_OFF + 28*16}
v_mov_b32 v16, 0x3f803f80
v_mov_b32 v17, 0x3f803f80
v_mov_b32 v18, 0x3f803f80
v_mov_b32 v19, 0x3f803f80
s_and_b64 exec, vcc, 0xfffff
buffer_store_dwordx4 v[16:19], v11, {W}, s45 offen {SC}
s_mov_b64 exec, -1
{LNO}:""")
    A(f"s_mov_b32 s48, 6\n{LL}:")
    issue()
    A(f"""s_waitcnt vmcnt(8)
s_barrier
s_sub_u32 s48, s48, 1
s_cmp_lg_u32 s48, 0
s_cbranch_scc1 {LL}""")
    fixtag()
    A("s_waitcnt vmcnt(0)")
    stamp(3)
    A(f"s_barrier\ns_branch {ATT}")

def a1_dispatch_loader():
    A(f"""{LA1}:
s_sub_u32 s5, s7, 11           ; g5
s_mul_i32 s26, s5, 3
s_lshr_b32 s26, s26, 1         ; e0 in 0,1,3,4,6""")
    if not OPT["rot"]: A("s_mov_b32 s26, 0")
    A(f"s_cmp_lt_u32 s3, 4\ns_cbranch_scc1 {LA1C}\ns_setprio 3")
    xaddr(64*896)
    A(f"""s_lshl_b32 s41, s6, 2
s_add_u32 s41, s41, s40
s_mul_i32 s41, s41, 896
s_lshl_b32 s44, s40, 12
s_lshl_b32 s26, s26, 2
s_add_u32 s26, s26, 3""")
    mod7(26, 27)
    A("s_waitcnt lgkmcnt(0)")
    srd(SX, P_AX, X_BYTES)
    gettag()
    LL, LS = A.lab("a1ld"), A.lab("a1lds")
    A(f"""s_mov_b32 s48, 0
{LL}:
s_lshl_b32 s45, s26, 7
s_add_u32 s45, s45, s41
s_lshl_b32 s46, s26, 14
s_add_u32 m0, s44, s46""")
    for i in range(4): A(f"buffer_load_dwordx4 v{2+i}, {sr(SX,4)}, s45 offen offset:{1024*i} lds")
    A(f"""s_add_u32 s26, s26, 4
s_sub_u32 s27, s26, 7
s_cmp_ge_u32 s26, 7
s_cselect_b32 s26, s27, s26
s_add_u32 s48, s48, 1
s_cmp_lt_u32 s48, 4
s_cbranch_scc1 {LL}
s_waitcnt vmcnt(8)
s_barrier
s_cmp_lt_u32 s48, 7
s_cbranch_scc1 {LL}""")
    fixtag()
    A("s_waitcnt vmcnt(4)\ns_barrier\ns_waitcnt vmcnt(0)")
    stamp(3)
    A(f"s_barrier\ns_branch {ATT}")

def main_start():
    A(f"""v_lshlrev_b32 v1, 2, v0
v_add_u32 v1, {CNT}, v1
v_mov_b32 v2, 0
ds_write_b32 v1, v2""")
    if OPT["pf"]:
        L = A.lab("pf"); LP = A.lab("pc")
        A(f"""s_cmp_lg_u32 s3, 3
s_cbranch_scc1 {L}
s_getpc_b64 s[56:57]
{LP}:
s_sub_u32 s56, s56, {LP}-{K}
s_subb_u32 s57, s57, 0
s_bfe_u32 s58, s2, 0x20003
s_lshl_b32 s58, s58, 13
v_lshlrev_b32 v1, 7, v0
v_add_u32 v1, s58, v1
v_min_u32 v1, {FIN}-{K}, v1
global_load_dword v248, v1, s[56:57]
{L}:""")

C, ER, EI, G, GT = 128, 160, 176, 192, 16
def gen_common():
    A(f"""v_and_b32 v14, 31, v0
v_lshrrev_b32 v15, 5, v0
s_lshr_b32 s50, s2, 5
s_lshl_b32 s50, s50, 3
s_or_b32 s50, s50, s4
s_bfe_u32 s51, s2, 0x20003       ; d quarter
s_and_b32 s52, s40, 1            ; parity e""")
def gen_ce():
    A(f"""v_lshrrev_b32 v8, 1, v14
s_lshl_b32 s43, s40, 4
v_add_u32 v8, s43, v8
v_cvt_f32_u32 v8, v8
v_mul_f32 v8, {f32(1/64)}, v8    ; step = u2/64
v_and_b32 v9, 1, v14
v_cvt_f32_u32 v9, v9
v_mul_f32 v9, {f32(0.25)}, v9
v_lshlrev_b32 v10, 1, v15
v_cvt_f32_u32 v10, v10
v_fma_f32 v9, v8, v10, v9        ; base""")
    for f in range(8):
        for p in range(4): A(f"v_fmamk_f32 v{GT+p}, v8, {f32(float(8*f+4*(p>>1)+(p&1)))}, v9")
        for p in range(4): A(f"v_cos_f32 v{GT+4+p}, v{GT+p}")
        for p in range(4): A(f"v_sin_f32 v{GT+8+p}, v{GT+p}")
        for p in range(4): A(f"v_cvt_pk_bf16_f32 v{C+4*f+p}, v{GT+4+p}, v{GT+8+p}")
    scale = 2.0/(2048*448)
    A(f"""v_lshlrev_b32 v8, 6, v14
v_add_u32 v8, s50, v8
v_cvt_f32_u32 v8, v8
v_mul_f32 v8, {f32(1/2048)}, v8
v_lshlrev_b32 v9, 2, v15
v_cvt_f32_u32 v9, v9
v_mul_f32 v9, v8, v9
v_mov_b32 v10, {f32(scale)}""")
    for f in range(4):
        for p in range(4): A(f"v_fmamk_f32 v{GT+p}, v8, {f32(float(8*f+p))}, v9")
        for p in range(4): A(f"v_cos_f32 v{GT+4+p}, v{GT+p}")
        for p in range(4): A(f"v_sin_f32 v{GT+8+p}, v{GT+p}")
        for p in range(8): A(f"v_mul_f32 v{GT+4+p}, v10, v{GT+4+p}")
        for p in range(4): A(f"v_cvt_pk_bf16_f32 v{ER+4*f+p}, v{GT+4+p}, -v{GT+8+p}")
        for p in range(4): A(f"v_cvt_pk_bf16_f32 v{EI+4*f+p}, v{GT+8+p}, v{GT+4+p}")
def gen_g():
    A(f"{GEN}:")
    gen_common()
    A(f"""s_lshr_b32 s44, s40, 1
s_lshl_b32 s45, s51, 1
s_add_u32 s44, s44, s45         ; d tile
s_lshl_b32 s46, s44, 5
v_add_u32 v8, s46, v14          ; d
v_and_b32 v10, 1, v8
v_lshlrev_b32 v10, 31, v10
v_or_b32 v10, 0.5, v10          ; 0.5*(-1)^d
v_cvt_f32_u32 v8, v8
v_mul_f32 v8, {f32(1/448)}, v8
v_lshlrev_b32 v9, 3, v15
v_add_u32 v9, s52, v9
v_cmp_eq_u32 vcc, 0, v9
v_cvt_f32_u32 v9, v9
v_mul_f32 v9, v8, v9
v_mov_b32 v11, 0.5
v_mul_f32 v7, {f32(32.0)}, v8""")
    for t in range(7):
        for j in range(8):
            if t == 0: A(f"v_fmamk_f32 v{GT+j}, v8, {f32(float(16*(j>>2)+2*(j&3)))}, v9")
            else: A(f"v_add_f32 v{GT+j}, v7, v{GT+j}")
        for j in range(8): A(f"v_cos_f32 v{GT+8+j}, v{GT+j}")
        for j in range(8): A(f"v_sin_f32 v{GT+16+j}, v{GT+j}")
        if t == 0:
            A(f"v_cndmask_b32 v{GT+8}, v{GT+8}, v11, vcc\nv_cndmask_b32 v{GT+16}, v{GT+16}, -v10, vcc")
        for j in range(4): A(f"v_cvt_pk_bf16_f32 v{G+8*t+j}, v{GT+8+2*j}, v{GT+9+2*j}")
        for j in range(4): A(f"v_cvt_pk_bf16_f32 v{G+8*t+4+j}, -v{GT+16+2*j}, -v{GT+17+2*j}")
    A(f"s_cmp_ge_u32 s7, 11\ns_cbranch_scc1 {HELP2}")

ACC = 64
def acc(a, b): return ACC + 32*a + 16*b
def b1_body(vtype):
    if vtype: pi32(48, 14, 49)
    else: A("v_mov_b32 v48, v14")
    A(f"""v_lshrrev_b32 v49, 1, v48
v_and_b32 v49, 7, v49
v_xor_b32 v49, v49, v15
v_lshlrev_b32 v49, 4, v49
v_lshl_or_b32 v50, v48, 7, v49
s_lshl_b32 s43, s41, 13
v_add_u32 v52, s43, v50
v_xor_b32 v53, 32, v52
v_xor_b32 v54, 64, v52
v_xor_b32 v55, 96, v52""")
    A(f"""v_bfe_u32 v48, v0, 2, 2        ; rr
v_and_b32 v49, 3, v0           ; cc""")
    if not vtype:
        A("""v_lshrrev_b32 v50, 1, v49
v_and_b32 v49, 1, v49
v_lshl_or_b32 v49, v49, 1, v50 ; sigma(cc)""")
    A(f"""v_bfe_u32 v50, v0, 4, 1        ; colhalf
v_lshlrev_b32 v50, 5, v50
v_lshl_or_b32 v50, v49, 3, v50
s_lshl_b32 s43, s42, 7
v_or_b32 v50, s43, v50
v_lshlrev_b32 v51, 6, v48
v_xor_b32 v50, v50, v51
v_lshl_add_u32 v51, v15, 3, v48 ; 8h+rr
v_lshl_or_b32 v56, v51, 8, v50
v_add_u32 v56, 16384, v56
v_xor_b32 v57, 64, v56""")
    A(f"""s_lshl_b32 s46, s6, 2
s_lshl_b32 s47, s41, 1
s_add_u32 s46, s46, s47
s_lshl_b32 s47, s7, 2
s_lshl_b32 s48, s42, 1
s_add_u32 s47, s47, s48""")
    if not vtype:
        A(f"""s_mul_i32 s46, s46, {QK_TILE}
s_lshl_b32 s48, s47, 11
s_add_u32 s46, s46, s48
v_lshlrev_b32 v2, 4, v0
s_cmp_ge_u32 s47, 14
s_cselect_b32 s48, {QK_PART - 14*2048}, 0
s_cselect_b32 s54, 1.0, {f32(QSCALE)}
s_mov_b32 s55, s54
s_add_u32 s46, s46, s48
s_add_u32 s46, s46, {QK_OFF}
s_add_u32 s49, s46, {QK_TILE}""")
    else:
        A(f"""s_sub_u32 s47, s47, 28
s_lshl_b32 s46, s46, 11
s_add_u32 s46, s46, {V_OFF}
s_lshl_b32 s48, s47, 5""")
        for b in range(2):
            A(f"""v_add_u32 v48, s48, v14
v_add_u32 v48, {32*b}, v48
v_mul_u32_u24 v49, 2341, v48
v_lshrrev_b32 v49, 16, v49     ; head
v_mul_u32_u24 v50, 28, v49
v_sub_u32 v48, v48, v50        ; d
v_lshlrev_b32 v48, 4, v48
v_lshl_or_b32 v48, v15, 9, v48
v_lshl_or_b32 v{2+b}, v49, 17, v48""")
            if OPT["vx"]: A(f"v_lshlrev_b32 v48, 4, v0\ns_add_u32 s49, s47, {b}\ns_lshl_b32 s49, s49, 17\nv_add_u32 v{2+b}, s49, v48")
    def reads(kap, p):
        xb, wb = 16+16*p, 24+16*p
        for a in range(2):
            A(f"ds_read_b128 {vr(xb+4*a,4)}, v{6+kap} offset:{4096*a}")
        for b in range(2):
            for u in range(2):
                A(f"ds_read_b64_tr_b16 {vr(wb+4*b+2*u,2)}, v{10+b} offset:{(16*kap+4*u)*256}")
    def setaddr():
        for i in range(6): A(f"v_add_u32 v{6+i}, s44, v{52+i}")
    LL, LS = A.lab("b1loop"), A.lab("b1skip")
    A("s_mov_b32 s44, 0\ns_mov_b32 s45, 0")
    setaddr()
    stampw(9)
    A("s_barrier")
    stampw(2)
    reads(0, 0)
    A(f"{LL}:")
    for kap in range(4):
        p = kap & 1
        if kap < 3:
            reads(kap+1, p^1)
            A("s_waitcnt lgkmcnt(6)")
        else:
            A(f"""s_waitcnt lgkmcnt(0)
s_add_u32 s45, s45, 1
s_cmp_eq_u32 s45, 7
s_cbranch_scc1 {LS}
s_add_u32 s44, s44, 0x8000
s_and_b32 s44, s44, 0x1ffff""")
            setaddr()
            A("s_barrier")
            reads(0, 0)
            A(f"{LS}:")
        xb, wb = 16+16*p, 24+16*p
        for a in range(2):
            for b in range(2):
                x, w = vr(xb+4*a,4), vr(wb+4*b,4)
                o = (x, w) if vtype else (w, x)
                A(f"{MFMA} {vr(acc(a,b),16)}, {o[0]}, {o[1]}, {vr(acc(a,b),16)}")
    A(f"s_cmp_lg_u32 s45, 7\ns_cbranch_scc1 {LL}")
    stamp(3)
    if vtype: A(f"s_cmp_ge_u32 s47, 14\ns_cbranch_scc1 {PUB1}")
    for a in range(2):
        for b in range(2):
            d = 16 + 8*(2*a+b)
            for i in range(8):
                r = acc(a,b)+2*i
                if not vtype: A(f"v_pk_mul_f32 {vr(r,2)}, {vr(r,2)}, s[54:55]")
                A(f"v_cvt_pk_bf16_f32 v{d+i}, v{r}, v{r+1}")
                if i & 3 == 3:
                    if vtype: A(f"buffer_store_dwordx4 {vr(d+i-3,4)}, v{2+b}, {W}, s46 offen offset:{2048*a+1024*(i>>2)} {SC}")
                    else: A(f"buffer_store_dwordx4 {vr(d+i-3,4)}, v2, {W}, s{46 if a==0 else 49} offen offset:{2048*b+1024*(i>>2)} {SC}")
    A(f"s_branch {PUB1}")
def b1_compute():
    A("s_waitcnt lgkmcnt(0)")
    gettag()
    A("s_setprio 2")
    for i in range(64): A(f"v_mov_b32 v{ACC+i}, 0")
    A(f"""s_and_b32 s41, s3, 1           ; wr
s_lshr_b32 s42, s3, 1          ; wc""")
    fixtag()
    A(f"s_cmp_ge_u32 s7, 7\ns_cbranch_scc1 {LV}")
    b1_body(False)
    A(f"{LV}:")
    b1_body(True)

FOFF = 7*16384
def a1_gen():
    A(f"{LA1C}:\ns_setprio 2\nv_and_b32 v14, 31, v0\nv_lshrrev_b32 v15, 5, v0")
    pi32(48, 14, 49)
    A(f"""v_lshrrev_b32 v48, 1, v48       ; k_local
s_mul_i32 s41, s5, 48
v_add_u32 v48, s41, v48
v_cvt_f32_u32 v48, v48
v_mul_f32 v56, {f32(1/448)}, v48
v_add_f32 v48, {f32(16.0)}, v48
v_mul_f32 v57, {f32(1/448)}, v48
v_add_f32 v48, {f32(16.0)}, v48
v_mul_f32 v58, {f32(1/448)}, v48
v_and_b32 v48, 1, v14
v_cvt_f32_u32 v48, v48
v_mul_f32 v59, {f32(0.25)}, v48  ; c/4
v_lshlrev_b32 v60, 3, v15        ; 8h
v_lshlrev_b32 v61, 4, v0
v_add_u32 v61, {FOFF}, v61
s_mov_b32 s42, s3""")
    main_start()
    LF = A.lab("fgen")
    A(f"""{LF}:
s_lshl_b32 s43, s42, 4
v_add_u32 v52, s43, v60
v_cvt_f32_u32 v52, v52
s_lshl_b32 s43, s42, 10
v_add_u32 v53, s43, v61""")
    for kgi in range(3): A(f"v_fma_f32 v{16+12*kgi}, v{56+kgi}, v52, v59")
    for j in range(1, 8):
        for kgi in range(3): A(f"v_add_f32 v{16+12*kgi+j}, v{56+kgi}, v{16+12*kgi+j-1}")
    for kgi in range(3):
        t = 16 + 12*kgi
        for j in range(8): A(f"v_cos_f32 v{t+j}, v{t+j}")
        for j in range(4): A(f"v_cvt_pk_bf16_f32 v{t+8+j}, v{t+2*j}, v{t+2*j+1}")
        A(f"ds_write_b128 v53, {vr(t+8,4)} offset:{14336*kgi}")
    A(f"s_add_u32 s42, s42, 4\ns_cmp_lt_u32 s42, 14\ns_cbranch_scc1 {LF}")
def a1_compute():
    A("s_waitcnt lgkmcnt(0)")
    gettag()
    A(f"""s_lshl_b32 s41, s6, 2
s_add_u32 s41, s41, s3          ; s2 index
v_lshlrev_b32 v5, 8, v15
v_add_u32 v5, s41, v5
v_mul_u32_u24 v5, v14, v5
v_cvt_f32_u32 v5, v5
v_mul_f32 v5, {f32(1/2048)}, v5
v_cvt_f32_u32 v6, v14
v_mul_f32 v6, {f32(1/32)}, v6
v_lshrrev_b32 v49, 1, v14
v_and_b32 v49, 7, v49
v_xor_b32 v49, v49, v15
v_lshlrev_b32 v49, 4, v49
v_lshl_or_b32 v62, v14, 7, v49
s_lshl_b32 s43, s3, 12
v_add_u32 v62, s43, v62""")
    egen = []
    for i in range(2):
        for j in range(8): egen.append(f"v_fmamk_f32 v{176+j}, v6, {f32(float(16*i+8*(j>>2)+(j&3)))}, v5")
        for j in range(8): egen.append(f"v_cos_f32 v{184+j}, v{176+j}")
        for j in range(8): egen.append(f"v_sin_f32 v{192+j}, v{176+j}")
        for j in range(4): egen.append(f"v_cvt_pk_bf16_f32 v{160+4*i+j}, v{184+2*j}, v{185+2*j}")
        for j in range(4): egen.append(f"v_cvt_pk_bf16_f32 v{168+4*i+j}, -v{192+2*j}, -v{193+2*j}")
    def a1addr():
        A(f"""s_lshr_b32 s43, s26, 1
s_lshl_b32 s43, s43, 14
s_and_b32 s44, s26, 1
s_lshl_b32 s44, s44, 6
s_or_b32 s43, s43, s44
v_xor_b32 v8, s43, v62
v_xor_b32 v9, 32, v8
s_add_u32 s43, s26, 7
s_lshr_b32 s43, s43, 1
s_lshl_b32 s43, s43, 14
s_xor_b32 s44, s44, 64
s_or_b32 s43, s43, s44
v_xor_b32 v10, s43, v62
v_xor_b32 v11, 32, v10
s_lshl_b32 s43, s26, 11
v_add_u32 v12, s43, v61""")
    def nextedge():
        A("s_add_u32 s26, s26, 1\ns_cmp_eq_u32 s26, 7\ns_cselect_b32 s26, 0, s26"); a1addr()
    def a1reads(t):
        b = 16 + 20*t
        A(f"ds_read_b128 {vr(b,4)}, v{8+t}")
        for kgi in range(3): A(f"ds_read_b128 {vr(b+8+4*kgi,4)}, v12 offset:{1024*t+14336*kgi}")
        A(f"ds_read_b128 {vr(b+4,4)}, v{10+t}")
    def a1mfma(t, first=False, fill=0):
        b = 16 + 20*t
        for hi in range(2):
            for kgi in range(3):
                d = 64 + 32*kgi + 16*hi
                A(f"{MFMA} {vr(d,16)}, {vr(b+4*hi,4)}, {vr(b+8+4*kgi,4)}, {0 if first else vr(d,16)}")
                for _ in range(fill):
                    if egen: A(egen.pop(0))
    LL, LS, LNB = A.lab("a1loop"), A.lab("a1skip"), A.lab("a1nb")
    a1addr()
    fixtag()
    stampw(9)
    A("s_barrier")
    stampw(2)
    a1reads(0)
    for n in range(2):
        a1reads(1)
        A("s_waitcnt lgkmcnt(5)")
        a1mfma(0, n == 0, 3)
        A("s_waitcnt lgkmcnt(0)")
        nextedge()
        A("s_barrier")
        a1reads(0)
        a1mfma(1, False, 3)
    assert not egen
    A(f"s_mov_b32 s45, 2\n{LL}:")
    a1reads(1)
    A("s_waitcnt lgkmcnt(5)")
    a1mfma(0)
    A(f"""s_waitcnt lgkmcnt(0)
s_add_u32 s45, s45, 1
s_cmp_eq_u32 s45, 7
s_cbranch_scc1 {LS}""")
    nextedge()
    A(f"s_cmp_eq_u32 s45, 6\ns_cbranch_scc1 {LNB}\ns_barrier\n{LNB}:")
    a1reads(0)
    A(f"{LS}:")
    a1mfma(1)
    A(f"s_cmp_lg_u32 s45, 7\ns_cbranch_scc1 {LL}")
    stamp(3)
    LI = A.lab("a1init")
    A(f"""v_and_b32 v3, 2, v14
v_lshlrev_b32 v3, 30, v3
v_or_b32 v3, 1.0, v3            ; (-1)^k
v_lshlrev_b32 v4, 5, v14
v_lshl_or_b32 v4, v15, 4, v4
s_cmp_ge_u32 s41, 4
s_cbranch_scc1 {LI}
s_lshl_b32 s42, s5, 2
s_add_u32 s42, s42, s41
s_lshl_b32 s42, s42, 7
s_add_u32 s42, s42, {AT_OFF}
v_mov_b32 v5, 0
s_mov_b64 exec, 1
buffer_store_dword v5, v5, {W}, s42 offen {SC}
buffer_store_dword v5, v5, {W}, s42 offen offset:{20*128} {SC}
s_mov_b64 exec, -1
{LI}:
s_mul_i32 s41, s41, {T_ROW}
s_mul_i32 s42, s5, 6144
s_add_u32 s41, s41, s42
s_add_u32 s41, s41, {T_OFF}
s_add_u32 s42, s41, 2048
s_add_u32 s43, s41, 4096""")
    for kgi in range(3):
        P, Q = 64+32*kgi, 80+32*kgi
        for i in range(16): A(f"v_fmac_f32 v{P+i}, v3, v{Q+i}")
        for i in range(8): A(f"v_cvt_pk_bf16_f32 v{16+8*kgi+i}, v{P+2*i}, v{P+2*i+1}")
        A(f"""{MFMA} {vr(P,16)}, {vr(16+8*kgi,4)}, v[160:163], 0
{MFMA} {vr(Q,16)}, {vr(16+8*kgi,4)}, v[168:171], 0
{MFMA} {vr(P,16)}, {vr(20+8*kgi,4)}, v[164:167], {vr(P,16)}
{MFMA} {vr(Q,16)}, {vr(20+8*kgi,4)}, v[172:175], {vr(Q,16)}""")
    for kgi in range(3):
        P, Q = 64+32*kgi, 80+32*kgi
        for j in range(8):
            A(f"v_sub_f32 v{P+2*j}, v{P+2*j}, v{Q+2*j+1}\nv_add_f32 v{Q+2*j}, v{Q+2*j}, v{P+2*j+1}")
        for j in range(8): A(f"v_cvt_pk_bf16_f32 v{40+8*kgi+j}, v{P+2*j}, v{Q+2*j}")
        for i in range(2):
            A(f"buffer_store_dwordx4 {vr(40+8*kgi+4*i,4)}, v4, {W}, s{41+kgi} offen offset:{1024*i} {SC}")

def pub1():
    A(f"""{PUB1}:
s_lshl_b32 s41, s7, 7
s_lshl_b32 s42, s6, 2
s_add_u32 s41, s41, s42
s_add_u32 s41, s41, {F1_OFF}""")
    stamp(4)
    publish(C_P1, 41, OPT["r1"], 2048)
    stamp(5)
    A(f"s_setprio 0\ns_cmp_ge_u32 s7, 11\ns_cbranch_scc1 {GEN}")

def b3map():
    A("""s_lshr_b32 s4, s2, 4
s_lshl_b32 s4, s4, 2
s_bfe_u32 s5, s2, 0x20001
s_or_b32 s4, s4, s5
s_and_b32 s5, s2, 1
s_lshl_b32 s5, s5, 1
s_bfe_u32 s6, s2, 0x10003
s_or_b32 s5, s5, s6            ; n quarter""")
def wo_setup(d, SWO):
    srd(SWO, P_WO, WO_BYTES)
    A(f"""s_and_b32 s53, s2, 1
s_lshl_b32 s53, s53, 1
s_bfe_u32 s54, s2, 0x10003
s_or_b32 s53, s53, s54
s_lshl_b32 s53, s53, 8
s_mul_i32 s54, s40, {56*896}
s_add_u32 s53, s53, s54
s_mul_i32 s54, s40, {56*256}
v_lshrrev_b32 v13, 4, v0
v_and_b32 v12, 15, v0
v_lshlrev_b32 v{d}, 2, v13
v_xor_b32 v12, v12, v{d}
v_lshlrev_b32 v12, 4, v12
v_mul_u32_u24 v13, 896, v13
v_add_u32 v{d}, v12, v13""")
def wo_stage(d, SWO, half):
    for i in range(14):
        A(f"s_add_u32 m0, s54, {WO+1024*i}\ns_add_u32 s55, s53, {(224*half+4*i)*896}\nbuffer_load_dwordx4 v{d}, {sr(SWO,4)}, s55 offen lds")

Q, S, O, KV = 16, 48, 112, 176
def q(j,i): return vr(Q+8*j+4*i, 4)
def kb(b,i): return KV+16*b+4*i
def tile_addr():
    return [f"s_and_b32 s42, s41, 15", "s_add_u32 s42, s42, s47", f"s_mul_i32 s43, s42, {QK_TILE}",
            f"s_add_u32 s43, s43, {QK_OFF+QK_PART}", "s_lshl_b32 s44, s42, 11", f"s_add_u32 s44, s44, {V_OFF}",
            "s_add_u32 s41, s41, 1"]
def tile_loads(b):
    return [f"buffer_load_dwordx4 {vr(kb(b,0),4)}, v1, {W}, s43 offen {SC}",
            f"buffer_load_dwordx4 {vr(kb(b,1),4)}, v2, {W}, s43 offen {SC}",
            f"buffer_load_dwordx4 {vr(kb(b,2),4)}, v3, {W}, s44 offen {SC}",
            f"buffer_load_dwordx4 {vr(kb(b,3),4)}, v3, {W}, s44 offen offset:1024 {SC}"]
def touches():
    L1, L2 = A.lab("tch"), A.lab("tch")
    A(f"s_cmp_ge_u32 s40, 2\ns_cbranch_scc1 {L1}")
    srd(SX, P_WR, W_BYTES)
    A(f"s_cmp_eq_u32 s40, 0\ns_cbranch_scc1 {L2}")
    srd(SX, P_WI, W_BYTES)
    A(f"""{L2}:
s_lshr_b32 s55, s2, 3
s_mul_i32 s55, s55, {64*450}
s_and_b32 s56, s2, 7
s_mul_i32 s56, s56, {4*450}
s_add_u32 s55, s55, s56
s_and_b32 s55, s55, 0xffffff80
v_bfe_u32 v12, v0, 4, 1
v_mul_u32_u24 v12, {32*450}, v12
v_and_b32 v13, 15, v0
v_lshl_add_u32 v12, v13, 7, v12
s_mov_b64 exec, 0xffffffff
buffer_load_dword v248, v12, {sr(SX,4)}, s55 offen
s_mov_b64 exec, -1
{L1}:""")
    L3 = A.lab("tch")
    A(f"s_cmp_lg_u32 s40, 2\ns_cbranch_scc1 {L3}")
    srd(SX, P_WO, WO_BYTES)
    A(f"""s_lshr_b32 s55, s2, 3
s_mul_i32 s55, s55, {14*896}
s_and_b32 s56, s2, 1
s_lshl_b32 s56, s56, 9
s_add_u32 s55, s55, s56
v_lshrrev_b32 v12, 2, v0
v_mul_u32_u24 v12, 896, v12
v_and_b32 v13, 3, v0
v_lshl_add_u32 v12, v13, 7, v12
buffer_load_dword v248, v12, {sr(SX,4)}, s55 offen
{L3}:""")
def attention():
    A(f"""{ATT}:
s_setprio 0
s_and_b32 s4, s2, 7
s_lshl_b32 s4, s4, 1
s_bfe_u32 s5, s2, 0x10003
s_or_b32 s4, s4, s5            ; head
s_lshr_b32 s5, s2, 4           ; qb
s_mul_i32 s6, s4, 7
s_lshr_b32 s45, s6, 1
s_add_u32 s6, s6, 1
s_lshr_b32 s6, s6, 1
s_lshl_b32 s6, s6, 9
v_lshlrev_b32 v8, 4, v0
v_add_u32 v1, s6, v8
s_bitcmp1_b32 s4, 0
s_cselect_b32 s7, -2040, 0
v_add_u32 v2, 1024, v1
v_add_u32 v6, s7, v2
v_mov_b32 v4, 0x3f80
v_mov_b32_dpp v2, v6 {HI}
s_lshl_b32 s7, s4, 17
v_add_u32 v3, s7, v8           ; V offset
v_mov_b32 v5, 0xdddd
v_mov_b32 v7, 0
s_lshl_b32 s47, s40, 4         ; 16*w
s_mov_b32 s41, s5
s_lshl_b32 s45, s45, 3
v_bfe_u32 v9, v0, 4, 1
v_mul_u32_u24 v10, 31, v9
v_add_u32 v10, s45, v10        ; Q column
v_add_u32 v11, 448, v10        ; K column
v_mul_u32_u24 v9, 27, v9
s_mul_i32 s46, s4, 28
s_add_u32 s46, s46, 896
v_add_u32 v9, s46, v9          ; V column
v_and_b32 v10, 0xffffff80, v10
v_mov_b32_dpp v11, v9 {HI}
s_lshl_b32 s46, s5, 2
v_add_u32 v10, s46, v10
v_and_b32 v11, 0xffffff80, v11
v_and_b32 v9, 15, v0
v_lshl_add_u32 v11, v9, 2, v11
s_and_b32 s46, s2, {OPT["r1"]-1}
s_lshl_b32 s46, s46, 11
s_add_u32 s46, s46, {F1_OFF}""")
    for j in range(4):
        A(f"""s_add_u32 s42, s40, {j}
s_and_b32 s42, s42, 3
s_lshl_b32 s43, s5, 2
s_add_u32 s42, s42, s43
s_mul_i32 s42, s42, {QK_TILE}
s_add_u32 s{50+j}, s42, {QK_OFF}""")
    A(f"s_mul_i32 s54, s5, {4*QK_TILE}\ns_add_u32 s54, s54, {QK_OFF+QK_PART}")
    for x in tile_addr(): A(x)
    if OPT['tch'] == 1: touches()
    for i in range(64): A(f"v_mov_b32 v{O+i}, 0")
    lds_wait(C_P1, 4, 2)
    if OPT['tch'] == 2: touches()
    A("s_setprio 2")
    stamp(5)
    if OPT["pd"]: A(f"s_sleep {OPT['pd']}")
    def kvpoll():
        A(f"""buffer_load_dword v14, v10, {W}, s46 offen {SC}
buffer_load_dword v15, v11, {W}, s46 offen {SC}
s_waitcnt vmcnt(0)
v_cmp_ne_u32 s[48:49], s{TAG}, v14
v_cmp_ne_u32 vcc, s{TAG}, v15
s_or_b64 vcc, vcc, s[48:49]""")
    acquire(R_KV, kvpoll, OPT["sl1"])
    stamp(6)
    A(f"""buffer_load_dwordx4 {vr(kb(3,0),4)}, v1, {W}, s54 offen {SC}
buffer_load_dwordx4 {vr(kb(3,1),4)}, v2, {W}, s54 offen {SC}""")
    for j in range(4):
        A(f"""buffer_load_dwordx4 {q(j,0)}, v1, {W}, s{50+j} offen {SC}
buffer_load_dwordx4 {q(j,1)}, v2, {W}, s{50+j} offen {SC}""")
    for b in range(3):
        for x in (tile_addr() if b else []) + tile_loads(b): A(x)
    for j in range(4):
        A(f"s_waitcnt vmcnt({18-2*j})")
        A(f"v_mov_b32_dpp v{Q+8*j+6}, v7 {HI}\nv_mov_b32_dpp v{Q+8*j+7}, v7 {HI}")
        A(f"{MFMA} {vr(S+16*j,16)}, {vr(kb(3,0),4)}, {q(j,0)}, 0")
        A(f"{MFMA} {vr(S+16*j,16)}, {vr(kb(3,1),4)}, {q(j,1)}, {vr(S+16*j,16)}")
    for j in range(4):
        s = S+16*j
        A(f"v_max3_f32 v{8+j}, v{s}, v{s+1}, v{s+2}")
        for i in range(3, 15, 2): A(f"v_max3_f32 v{8+j}, v{8+j}, v{s+i}, v{s+i+1}")
        A(f"v_max_f32 v{8+j}, v{8+j}, v{s+15}")
        A(f"v_cvt_pk_bf16_f32 v{8+j}, -v{8+j}, v7")
        if j == 0: A(f"s_waitcnt vmcnt(8)\nv_mov_b32_dpp v{kb(0,1)+2}, v4 {HI}")
        A(f"v_mov_b32_dpp v{Q+8*j+6}, v{8+j} {HI}")
        if j == 0:
            A(f"{MFMA} {vr(S,16)}, {vr(kb(0,0),4)}, {q(0,0)}, 0")
            A(f"{MFMA} {vr(S,16)}, {vr(kb(0,1),4)}, {q(0,1)}, {vr(S,16)}")
    stamp(7)
    if OPT["g2"]: lds_add(C_G2)
    for n in range(64):
        i, j = n >> 2, n & 3
        if n == 32: stamp(8)
        if n == 64 - OPT["go"]: lds_add(C_GO)
        extra = []
        if j == 1 and i + 3 < 16: extra = tile_addr() + tile_loads((i+3) & 3)
        m = [None]*4
        pre = []
        if n < 63:
            i2, j2 = (n+1) >> 2, (n+1) & 3
            if j2 == 0:
                left = min(15, i+3) - (i+1)
                pre = [f"s_waitcnt vmcnt({4*left})", f"v_mov_b32_dpp v{kb(i2&3,1)+2}, v4 {HI}"]
            m[0] = f"{MFMA} {vr(S+16*j2,16)}, {vr(kb(i2&3,0),4)}, {q(j2,0)}, 0"
            m[1] = f"{MFMA} {vr(S+16*j2,16)}, {vr(kb(i2&3,1),4)}, {q(j2,1)}, {vr(S+16*j2,16)}"
        if n > 0:
            i0, j0 = (n-1) >> 2, (n-1) & 3
            m[2] = f"{SMF} {vr(O+16*j0,16)}, {vr(kb(i0&3,3),4)}, {vr(S+16*j0+8,8)}, v5"
        m[3] = f"{SMF} {vr(O+16*j,16)}, {vr(kb(i&3,2),4)}, {vr(S+16*j,8)}, v5"
        for x in pre: A(x)
        for g in range(4):
            if m[g]: A(m[g])
            for e in range(4):
                r = S+16*j+4*g+e
                A(f"v_exp_f32 v{r}, v{r}")
                if extra: A(extra.pop(0))
        assert not extra
    A(f"{SMF} {vr(O+48,16)}, {vr(kb(3,3),4)}, {vr(S+48+8,8)}, v5")
    stamp(9)
    A("v_lshlrev_b32 v8, 4, v0")
    for j in range(1, 4):
        A(f"""s_add_u32 s42, s40, {j}
s_and_b32 s42, s42, 3
s_mul_i32 s42, s42, 12288
s_add_u32 s42, s42, {MERGE + 4096*(j-1)}
v_add_u32 v9, s42, v8""")
        for g in range(4): A(f"ds_write_b128 v9, {vr(O+16*j+4*g,4)} offset:{1024*g}")
    A(f"s_mul_i32 s42, s40, 12288\ns_add_u32 s42, s42, {MERGE}\nv_add_u32 v9, s42, v8")
    lds_sync(C_MERGE, 4)
    for g in range(12): A(f"ds_read_b128 {vr(S+4*g,4)}, v9 offset:{1024*g}")
    for k in range(3):
        A(f"s_waitcnt lgkmcnt({8-4*k})")
        for i in range(16): A(f"v_add_f32 v{O+i}, v{O+i}, v{S+16*k+i}")
    A(f"""v_mov_b32 v10, v{O+12}
v_mov_b32 v11, v{O+12}
v_permlane32_swap_b32 v10, v11
v_cmp_nle_f32 vcc, {f32(2.0**-40)}, v11
s_mov_b64 s[48:49], vcc
v_cmp_nge_f32 vcc, {f32(2.0**40)}, v11
s_or_b64 vcc, vcc, s[48:49]
s_cbranch_vccnz {LFB}
{LN}:
v_rcp_f32 v11, v11
s_lshl_b32 s42, s5, 2
s_add_u32 s42, s42, s40
s_lshl_b32 s42, s42, 15
s_lshl_b32 s43, s4, 11
s_add_u32 s42, s42, s43
s_add_u32 s42, s42, {O_OFF}""")
    for i in range(16): A(f"v_mul_f32 v{O+i}, v{O+i}, v11")
    for i in range(8): A(f"v_cvt_pk_bf16_f32 v{S+i}, v{O+2*i}, v{O+2*i+1}")
    A(f"""v_mov_b32_dpp v{S+6}, v7 {HI}
v_mov_b32_dpp v{S+7}, v7 {HI}
buffer_store_dwordx4 {vr(S,4)}, v8, {W}, s42 offen {SC}
buffer_store_dwordx4 {vr(S+4,4)}, v8, {W}, s42 offen offset:1024 {SC}
s_lshl_b32 s46, s5, 10
s_add_u32 s46, s46, {FO_OFF}
s_lshl_b32 s41, s4, 2
s_add_u32 s41, s41, s46""")
    stamp(10)
    SO = 32; WF = 112; BACC = 16; OB = 32; NB = 6
    A(f"""v_bfe_u32 v9, v0, 2, 2        ; rr
v_and_b32 v10, 3, v0
v_lshrrev_b32 v11, 1, v10
v_and_b32 v10, 1, v10
v_lshl_or_b32 v10, v10, 1, v11    ; sigma(cc)
v_bfe_u32 v11, v0, 4, 1
v_lshlrev_b32 v11, 5, v11
v_lshl_or_b32 v10, v10, 3, v11
s_lshl_b32 s45, s40, 6
v_or_b32 v10, s45, v10
v_lshlrev_b32 v11, 6, v9
v_xor_b32 v10, v10, v11
v_lshl_or_b32 v4, v9, 8, v10
v_lshrrev_b32 v15, 5, v0
v_lshl_add_u32 v3, v15, 10, v4""")
    assert WO == 0
    def wo_frags(half):
        for n in range(16):
            hd, i = n >> 1, n & 1
            b = WF + 64*half + 4*n
            row = 28*hd + 16*i
            A(f"ds_read_b64_tr_b16 {vr(b,2)}, v3 offset:{row*256}")
            A(f"ds_read_b64_tr_b16 {vr(b+2,2)}, v{4 if i else 3} offset:{(row+8)*256}")
            if n % 6 == 5: A("s_waitcnt lgkmcnt(2)")
    lds_wait(C_WOA, 4)
    wo_frags(0)
    A("s_waitcnt lgkmcnt(0)")
    lds_add(C_WOF)
    publish(C_O, 41, OPT["ro"], 128)
    b3map(); wo_setup(1, SX); srd(SO, P_OUT, OUT_BYTES)
    lds_wait(C_WOF, 4)
    wo_stage(1, SX, 1)
    A(f"""s_lshl_b32 s43, s4, 15
s_lshl_b32 s44, s40, 13
s_add_u32 s43, s43, s44
s_add_u32 s43, s43, {O_OFF}
s_add_u32 s47, s43, 4096
v_add_u32 v7, {OST}, v8
v_and_b32 v14, 31, v0
v_mul_u32_u24 v2, 1792, v14
v_lshl_add_u32 v2, v15, 4, v2
s_mul_i32 s41, s4, {32*1792}
s_lshl_b32 s42, s5, 8
s_add_u32 s41, s41, s42
s_add_u32 s41, s41, s45
s_add_u32 s41, s41, 896
s_and_b32 s42, s2, {OPT["ro"]-1}
s_lshl_b32 s42, s42, 7
s_add_u32 s46, s46, s42
v_and_b32 v9, 15, v0
v_lshlrev_b32 v9, 2, v9""")
    def opoll():
        A(f"""buffer_load_dword v14, v9, {W}, s46 offen {SC}
s_waitcnt vmcnt(0)
v_cmp_ne_u32 vcc, s{TAG}, v14""")
    acquire(R_O, opoll, OPT["sl1"])
    stamp(11)
    for half in range(2):
        A(f"s_add_u32 m0, s44, {OST+4096*half}")
        for i in range(4):
            A(f"buffer_load_dwordx4 v8, {W}, s{47 if half else 43} offen offset:{1024*i} {SC} lds")
    A("s_waitcnt vmcnt(8)")
    lds_sync(C_WOB, 4)
    wo_frags(1)
    A("s_waitcnt vmcnt(0)")
    lds_sync(C_OST, 4)
    stampw(12)
    def rd(n): A(f"ds_read_b128 {vr(OB+4*(n%NB),4)}, v7 offset:{1024*n}")
    for n in range(NB-1): rd(n)
    for n in range(32):
        if n + NB - 1 < 32: rd(n + NB - 1)
        left = min(31, n+NB-1) - n
        A(f"s_waitcnt lgkmcnt({left})\n{MFMA} {vr(BACC,16)}, {vr(WF+4*n,4)}, {vr(OB+4*(n%NB),4)}, {vr(BACC,16) if n else 0}")
    A(f"""s_lshl_b32 s42, s5, 2
s_add_u32 s42, s42, s40
s_cmp_ge_u32 s42, 14
s_cbranch_scc1 {END}""")
    for i in range(8): A(f"v_cvt_pk_bf16_f32 v{64+i}, v{BACC+2*i}, v{BACC+2*i+1}")
    A(f"""buffer_store_dwordx4 v[64:67], v2, {sr(SO,4)}, s41 offen
buffer_store_dwordx4 v[68:71], v2, {sr(SO,4)}, s41 offen offset:32
s_branch {END}""")

def helper():
    SA, SB, SO, SWO = 28, 32, 32, 56
    T, AC2, WA, WB, Y = 16, 48, 64, 72, 80
    LNOA2, LNY, LNY2, LP2 = "L_noa2", A.lab("nyq"), A.lab("nyq"), A.lab("pub2")
    A(f"{HELP2}:")
    gen_ce()
    A(f"""s_lshr_b32 s5, s2, 3
v_mul_u32_u24 v1, {2*T_ROW}, v15
v_lshl_add_u32 v1, v14, 2, v1   ; T offset
v_lshrrev_b32 v8, 3, v14        ; u1 local
v_and_b32 v9, 7, v14            ; k local
v_lshl_add_u32 v2, v15, 6, v8
v_mul_u32_u24 v2, 450, v2
v_lshl_add_u32 v2, v9, 1, v2    ; W offset
v_mul_u32_u24 v3, {2*T2_ROW}, v15
v_lshl_add_u32 v3, v9, 4, v3
v_lshl_add_u32 v3, v8, 2, v3    ; T2 offset
s_lshl_b32 s41, s5, 10
s_lshl_b32 s42, s4, 7
s_add_u32 s41, s41, s42
s_add_u32 s41, s41, {T_OFF}
s_mul_i32 s42, s4, {4*450}
s_mul_i32 s43, s40, {512*450}
s_add_u32 s42, s42, s43
s_lshl_b32 s43, s5, 4
s_add_u32 s42, s42, s43""")
    for i in range(16): A(f"v_mov_b32 v{WA+i}, 0")
    wo_setup(4, SWO)
    A(f"s_cmp_ge_u32 s5, 29\ns_cbranch_scc1 {LNOA2}")
    srd(SA, P_WR, W_BYTES); srd(SB, P_WI, W_BYTES)
    A(f"s_cmp_lg_u32 s5, 28\ns_cbranch_scc1 {LNY}")
    srd(SA, P_WI, W_BYTES); srd(SB, P_WR, W_BYTES)
    A(f"{LNY}:")
    lds_wait(C_G2 if OPT["g2"] else C_P1, 4, 2)
    A(f"s_setprio {OPT['hp']}")
    for j in range(8):
        A(f"""s_add_u32 s43, s42, {32*(4*(j>>1)+(j&1))*450}
buffer_load_short_d16_hi v{WA+j}, v2, {sr(SA,4)}, s43 offen
buffer_load_short_d16_hi v{WB+j}, v2, {sr(SB,4)}, s43 offen""")
    A(f"""s_mul_i32 s44, s5, 43
s_lshr_b32 s44, s44, 8          ; g5
s_lshl_b32 s45, s44, 7
s_and_b32 s46, s2, {OPT["r1"]-1}
s_lshl_b32 s46, s46, 11
s_add_u32 s46, s46, {F1_OFF + 11*128}
v_and_b32 v9, 15, v0
v_lshlrev_b32 v9, 2, v9
v_add_u32 v9, s45, v9
v_mov_b32 v10, 0
v_mov_b32_dpp v9, v10 {HI}""")
    def a1poll():
        A(f"""buffer_load_dword v10, v9, {W}, s46 offen {SC}
s_waitcnt vmcnt(0)
v_cmp_ne_u32 vcc, s{TAG}, v10""")
    acquire(R_A1, a1poll, OPT["sl2"], 2)
    stamp(6)
    for f in range(8):
        for p in range(4):
            A(f"s_add_u32 s43, s41, {(8*f+4*(p>>1)+(p&1))*T_ROW}\nbuffer_load_dword v{T+4*f+p}, v1, {W}, s43 offen {SC}")
    A(f"""v_lshlrev_b32 v8, 4, v0
v_add_u32 v8, {EX}, v8
s_lshl_b32 s43, s40, 11
v_add_u32 v9, s43, v8
s_waitcnt vmcnt(32)
s_cmp_lg_u32 s5, 28
s_cbranch_scc1 {LNY2}""")
    for j in range(8): A(f"v_xor_b32 v{WA+j}, 0x80000000, v{WA+j}")
    A(f"{LNY2}:")
    for f in range(8):
        A(f"s_waitcnt vmcnt({28-4*f})\n{MFMA} {vr(AC2,16)}, {vr(C+4*f,4)}, {vr(T+4*f,4)}, {vr(AC2,16) if f else 0}")
    for j in range(8):
        xr, xi = AC2+2*j, AC2+2*j+1
        A(f"""v_mul_f32 v10, v{xr}, v{WA+j}
v_mul_f32 v11, v{xr}, v{WB+j}
v_fma_f32 v10, -v{xi}, v{WB+j}, v10
v_fmac_f32 v11, v{xi}, v{WA+j}
v_cvt_pk_bf16_f32 v{Y+j}, v11, v10""")
    A(f"ds_write_b128 v9, {vr(Y,4)}\nds_write_b128 v9, {vr(Y+4,4)} offset:1024")
    lds_sync(C_EX, 4, 1)
    for f in range(8): A(f"ds_read_b128 {vr(T+4*f,4)}, v8 offset:{1024*f}")
    A(f"""s_mul_i32 s41, s40, {16*T2_ROW}
s_mul_i32 s42, s4, {T2_Q}
s_add_u32 s41, s41, s42
s_lshl_b32 s42, s5, 7
s_add_u32 s41, s41, s42
s_add_u32 s41, s41, {T2_OFF}""")
    for f in range(8):
        A(f"s_waitcnt lgkmcnt({7-f})\n{MFMA} {vr(AC2,16)}, {vr(C+4*f,4)}, {vr(T+4*f,4)}, {vr(AC2,16) if f else 0}")
    for j in range(8):
        A(f"""v_cvt_pk_bf16_f32 v{Y+j}, v{AC2+2*j+1}, v{AC2+2*j}
s_add_u32 s43, s41, {(4*(j>>1)+(j&1))*T2_ROW}
buffer_store_dword v{Y+j}, v3, {W}, s43 offen {SC}""")
    stamp(7)
    arrive(C_A2, LP2)
    A(f"""s_lshl_b32 s41, s44, 2
s_lshr_b32 s42, s4, 1
s_add_u32 s41, s41, s42
s_lshl_b32 s41, s41, 7
s_add_u32 s41, s41, {AT_OFF}
s_cmp_eq_u32 s44, 4
s_cselect_b32 s42, 9, 11
v_mov_b32 v12, 0
v_mov_b32 v13, 1
s_mov_b64 exec, 1
buffer_atomic_add v13, v12, {W}, s41 offen sc0 sc1
s_mov_b64 exec, -1
s_waitcnt vmcnt(0)
v_readfirstlane_b32 s60, v13
s_cmp_lg_u32 s60, s42
s_cbranch_scc1 {LP2}
v_mov_b32 v13, 1
s_mov_b64 exec, 1
s_mov_b32 s41, {AT_OFF + 20*128}
buffer_atomic_add v13, v12, {W}, s41 offen sc0 sc1
s_mov_b64 exec, -1
s_waitcnt vmcnt(0)
v_readfirstlane_b32 s60, v13
s_cmp_lg_u32 s60, 19
s_cbranch_scc1 {LP2}
s_mov_b32 s41, {F2_OFF}""")
    flagstore("s41", 8, 128)
    assert EPOCH_OFF == 0
    flagstore("0", 1, 0)
    A(f"{LP2}:")
    A(f"{LNOA2}:")
    lds_wait(C_G2 if OPT["g2"] else C_P1, 4, 2)
    A(f"s_setprio {OPT['hp']}")
    wo_stage(4, SWO, 0)
    A("s_waitcnt vmcnt(0)")
    lds_add(C_WOA)
    TA, NY, AC3, ZB, AC4 = 16, 48, 64, 16, 112
    A(f"""v_and_b32 v8, 15, v14
v_lshrrev_b32 v9, 4, v14
v_lshl_or_b32 v8, v8, 1, v9
v_mul_u32_u24 v2, {T2_Q}, v15
v_lshl_add_u32 v1, v8, 4, v2    ; T2 offset
v_add_u32 v2, {224*16}, v2
s_mul_i32 s41, s50, {T2_ROW}
s_add_u32 s41, s41, {T2_OFF}
s_lshl_b32 s42, s40, 9
s_add_u32 s42, s42, s41
s_and_b32 s46, s2, 7
s_lshl_b32 s46, s46, 7
s_add_u32 s46, s46, {F2_OFF}
v_mov_b32 v9, 0""")
    srd(SO, P_OUT, OUT_BYTES)
    def a2poll():
        A(f"""buffer_load_dword v10, v9, {W}, s46 offen {SC}
s_waitcnt vmcnt(0)
v_cmp_ne_u32 vcc, s{TAG}, v10""")
    acquire(R_A2, a2poll, OPT["sl3"], OPT["sl3"])
    stamp(8)
    for tt in range(2):
        for f in range(4):
            A(f"s_add_u32 s43, s42, {2*f*T2_Q + 2048*tt}\nbuffer_load_dwordx4 {vr(TA+16*tt+4*f,4)}, v1, {W}, s43 offen {SC}")
    for f in range(4):
        A(f"s_add_u32 s43, s41, {2*f*T2_Q}\nbuffer_load_dwordx4 {vr(NY+4*f,4)}, v2, {W}, s43 offen {SC}")
    A(f"""v_lshlrev_b32 v5, 4, v0
s_lshl_b32 s43, s40, 11
s_add_u32 s43, s43, {ZOFF}
v_add_u32 v6, s43, v5
s_lshl_b32 s43, s52, 14
s_add_u32 s43, s43, {ZOFF}
v_add_u32 v5, s43, v5
s_lshr_b32 s46, s40, 1
s_lshl_b32 s46, s46, 3
v_add_u32 v7, s46, v15          ; 8p + h
v_and_b32 v9, 7, v14
v_xor_b32 v7, v7, v9
v_lshlrev_b32 v7, 4, v7
v_lshl_or_b32 v7, v14, 8, v7
s_lshl_b32 s46, s52, 13
s_add_u32 s46, s46, {YOFF}
v_add_u32 v7, s46, v7
v_lshrrev_b32 v8, 3, v0
s_lshl_b32 s46, s40, 3
v_add_u32 v8, s46, v8           ; row (s1)
v_and_b32 v9, 7, v0             ; piece
v_lshlrev_b32 v10, 1, v9
v_and_b32 v11, 7, v8
v_xor_b32 v10, v10, v11
v_lshlrev_b32 v10, 4, v10
v_lshl_or_b32 v10, v8, 8, v10
v_add_u32 v10, {YOFF}, v10
v_xor_b32 v11, 16, v10
v_mul_u32_u24 v8, {64*1792}, v8
v_lshl_add_u32 v8, v9, 4, v8
s_mul_i32 s41, s50, 1792
s_lshl_b32 s42, s51, 7
s_add_u32 s41, s41, s42
s_cmp_eq_u32 s51, 3
s_cselect_b32 s42, 4, 8
v_cmp_gt_u32 s[48:49], s42, v9""")
    if OPT["go"] > 0: lds_wait(C_GO, 4, 8)
    A(f"s_setprio {OPT['a3p']}")
    stamp(10)
    LN3 = A.lab("a3ny")
    A("s_waitcnt vmcnt(0)")
    for tt in range(2):
        for f in range(4):
            A(f"{MFMA} {vr(AC3+32*tt,16)}, {vr(TA+16*tt+4*f,4)}, {vr(ER+4*f,4)}, {vr(AC3+32*tt,16) if f else 0}")
    A(f"s_cmp_lg_u32 s40, 0\ns_cbranch_scc1 {LN3}\ns_mov_b32 exec_lo, 1\ns_mov_b32 exec_hi, 1")
    for i in range(16): A(f"v_mov_b32 v{TA+i}, v{NY+i}")
    A(f"s_mov_b64 exec, -1\n{LN3}:\ns_nop 1")
    for tt in range(2):
        for f in range(4):
            A(f"{MFMA} {vr(AC3+32*tt+16,16)}, {vr(TA+16*tt+4*f,4)}, {vr(EI+4*f,4)}, {vr(AC3+32*tt+16,16) if f else 0}")
    for part in range(2):
        for tt in range(2):
            a = AC3+32*tt+16*part
            d = TA+8*(2*part+tt)
            for i in range(8): A(f"v_cvt_pk_bf16_f32 v{d+i}, v{a+2*i}, v{a+2*i+1}")
            for e in range(2): A(f"ds_write_b128 v6, {vr(d+4*e,4)} offset:{16384*e+8192*tt+1024*part}")
    lds_sync(C_Z, 4, 1)
    for i in range(14): A(f"ds_read_b128 {vr(ZB+4*i,4)}, v5 offset:{1024*i}")
    for i in range(14):
        A(f"s_waitcnt lgkmcnt({13-i})\n{MFMA} {vr(AC4,16)}, {vr(G+4*i,4)}, {vr(ZB+4*i,4)}, {vr(AC4,16) if i else 0}")
    for g in range(4):
        A(f"v_xor_b32 v9, {32*g}, v7\nds_write_b128 v9, {vr(AC4+4*g,4)}")
    lds_sync(C_Y, 4, 1)
    A(f"""ds_read_b128 v[16:19], v10
ds_read_b128 v[20:23], v11
ds_read_b128 v[24:27], v10 offset:8192
ds_read_b128 v[28:31], v11 offset:8192
s_waitcnt lgkmcnt(0)""")
    for i in range(8): A(f"v_add_f32 v{32+i}, v{16+i}, v{24+i}\nv_sub_f32 v{40+i}, v{16+i}, v{24+i}")
    for i in range(8): A(f"v_cvt_pk_bf16_f32 v{48+i}, v{32+2*i}, v{33+2*i}")
    A(f"""s_mov_b64 exec, s[48:49]
buffer_store_dwordx4 v[48:51], v8, {sr(SO,4)}, s41 offen
buffer_store_dwordx4 v[52:55], v8, {sr(SO,4)}, s41 offen offset:448
s_mov_b64 exec, -1
s_branch {END}""")

def fallback():
    L1, L2 = A.lab("fb1"), A.lab("fb2")
    A(f"""{LFB}:
v_mov_b32_dpp v{Q+6}, v7 {HI}
v_mov_b32 v12, 0xff800000
s_mov_b32 s43, {QK_OFF+QK_PART}
{L1}:
buffer_load_dwordx4 {vr(kb(0,0),4)}, v1, {W}, s43 offen {SC}
buffer_load_dwordx4 {vr(kb(0,1),4)}, v2, {W}, s43 offen {SC}
s_waitcnt vmcnt(0)
{MFMA} {vr(S,16)}, {vr(kb(0,0),4)}, {q(0,0)}, 0
{MFMA} {vr(S,16)}, {vr(kb(0,1),4)}, {q(0,1)}, {vr(S,16)}""")
    for i in range(0, 16, 2): A(f"v_max3_f32 v12, v12, v{S+i}, v{S+i+1}")
    A(f"""s_add_u32 s43, s43, {QK_TILE}
s_cmp_lt_u32 s43, {QK_OFF+2*QK_PART}
s_cbranch_scc1 {L1}
v_mov_b32 v13, v12
v_mov_b32 v14, v12
v_permlane32_swap_b32 v13, v14
v_max_f32 v12, v13, v14""")
    for i in range(16): A(f"v_mov_b32 v{O+i}, 0")
    A(f"""s_mov_b32 s43, {QK_OFF+QK_PART}
s_mov_b32 s44, {V_OFF}
{L2}:""")
    for x in tile_loads(0): A(x)
    A(f"""s_waitcnt vmcnt(0)
{MFMA} {vr(S,16)}, {vr(kb(0,0),4)}, {q(0,0)}, 0
{MFMA} {vr(S,16)}, {vr(kb(0,1),4)}, {q(0,1)}, {vr(S,16)}""")
    for i in range(16): A(f"v_sub_f32 v{S+i}, v{S+i}, v12")
    for i in range(16): A(f"v_exp_f32 v{S+i}, v{S+i}")
    A(f"""{SMF} {vr(O,16)}, {vr(kb(0,2),4)}, {vr(S,8)}, v5
{SMF} {vr(O,16)}, {vr(kb(0,3),4)}, {vr(S+8,8)}, v5
s_nop 15
s_add_u32 s43, s43, {QK_TILE}
s_add_u32 s44, s44, 2048
s_cmp_lt_u32 s43, {QK_OFF+2*QK_PART}
s_cbranch_scc1 {L2}
v_mov_b32 v10, v{O+12}
v_mov_b32 v11, v{O+12}
v_permlane32_swap_b32 v10, v11
s_nop 1
s_branch {LN}""")

def finish():
    A(f"{END}:")
    if OPT["probe"]:
        LQ = A.lab("probe")
        stamp(13)
        A(f"""s_cmp_lg_u32 s2, {OPT["pwg"]}
s_cbranch_scc1 {FIN}
s_cmp_lg_u32 s3, {OPT["pwave"]}
s_cbranch_scc1 {FIN}
s_waitcnt lgkmcnt(0)
s_sub_u32 s56, s{64+2*OPT["probe"]}, s66
s_mul_i32 s56, s56, 10
s_add_u32 s56, s56, s90
{LQ}:
s_memrealtime s[58:59]
s_waitcnt lgkmcnt(0)
s_sub_u32 s57, s58, s56
s_cmp_lt_i32 s57, 0
s_cbranch_scc1 {LQ}""")
    elif STAMPS:
        stamp(13)
        A(f"""s_waitcnt vmcnt(0)
s_memtime s[92:93]
s_memrealtime s[94:95]
s_waitcnt lgkmcnt(0)
s_mov_b32 s56, s24
s_mov_b32 s57, s25
s_mov_b32 s58, 0x2000000
s_mov_b32 s59, 0x00020000
s_mov_b64 exec, 1
s_lshl_b32 s60, s2, 3
s_add_u32 s60, s60, s3
s_lshl_b32 s60, s60, 6
s_add_u32 s60, s60, {TS_OFF}
v_mov_b32 v1, 0""")
        for i in range(16):
            A(f"v_mov_b32 v2, s{64+2*i}\nbuffer_store_dword v2, v1, s[56:59], s60 offen offset:{4*i}")
    A(f"{FIN}:\ns_endpgm")

entry(); b1_loader(); a1_dispatch_loader(); a1_gen(); a1_compute(); pub1(); helper()
A(f"{LB1C}:"); main_start(); gen_g(); b1_compute()
attention(); fallback(); finish()

HDR = open("cdna_kernels/%s.s.ref" % NAME).read().split("; Override")[0]
txt = HDR + f"; @launch grid=(256,1,1) block=(512,1,1) lds={LDS_BYTES}\n"
txt += '.amdgcn_target "amdgcn-amd-amdhsa--gfx950"\n.text\n' + A.finish()
txt += f""".section .rodata,"a"
.p2align 6
.amdhsa_kernel {K}
  .amdhsa_next_free_vgpr 256
  .amdhsa_next_free_sgpr 96
  .amdhsa_accum_offset 256
  .amdhsa_group_segment_fixed_size 0
  .amdhsa_kernarg_size 72
  .amdhsa_user_sgpr_count 2
  .amdhsa_user_sgpr_kernarg_segment_ptr 1
  .amdhsa_system_sgpr_workgroup_id_x 1
.end_amdhsa_kernel
"""
out = args[0] if args else "cdna_kernels/%s.s" % NAME
open(out, "w").write(txt)
print("wrote", out, len(txt))
```

```python
import sys, struct
from emit import Asm
from layout import *
NAME = "concat_heads__spectral_gfnet__softmax_full_mha__prompt"
OPT = dict(stamps=0, r1=8, ro=8, pf=1, sl1=1, sl2=4, sl3=16, rot=1, go=4, x=0, g2=1, hp=2, a3p=0, tch=0, probe=0, pwave=4, pwg=100, pd=30, vx=0, pre=1, drain=2, lf=1, wos=2, wl=3, sp=1, lp=13, slg=8)
args = []
for a in sys.argv[1:]:
    if "=" in a: k, v = a.split("="); assert k in OPT, k; OPT[k] = int(v)
    else: args.append(a)
STAMPS = OPT["stamps"]
def f32(x): return "0x%08x" % struct.unpack("<I", struct.pack("<f", x))[0]
def vr(a, n=1): return f"v{a}" if n == 1 else f"v[{a}:{a+n-1}]"
def sr(a, n=1): return f"s{a}" if n == 1 else f"s[{a}:{a+n-1}]"
P_AX, P_WR, P_WI, P_BX, P_WQKV, P_WO, P_OUT, P_DBG, P_WS = 8,10,12,14,16,18,20,22,24
MFMA = "v_mfma_f32_32x32x16_bf16"
SMF = "v_smfmac_f32_32x32x32_bf16"
SC = "sc1"
HI = "quad_perm:[0,1,2,3] row_mask:0xc bank_mask:0xf"
TAGC = 0x9E3779B9
TAG = 62
SWS = 36; W = sr(SWS,4)
SX, SW = 28, 32
SPIN = 200000
WO, MERGE, OST = 0, 57344, 57344
ZOFF, YOFF, EX = 106496, 106496+32768, 106496+32768
CNT = 162816
LDS_BYTES = 163840
(C_P1, R_KV, C_MERGE, C_O, R_O, C_OST, R_A1, C_EX, C_A2, R_A2, C_Z, C_Y, C_WOA, C_WOF, C_WOB, C_GO, C_G2, C_Q, C_LF, C_T) = [CNT+4*i for i in range(20)]
QX = ZOFF
TX = YOFF + 8192

A = Asm()
def stamp(i):
    if STAMPS: A(f"{'s_memtime' if STAMPS == 2 else 's_memrealtime'} s[{64+2*i}:{65+2*i}]")
def stampw(i):
    if STAMPS: stamp(i); A("s_waitcnt lgkmcnt(0)")
def srd(d, p, nbytes):
    A(f"s_mov_b32 s{d}, s{p}\ns_mov_b32 s{d+1}, s{p+1}\ns_mov_b32 s{d+2}, {nbytes}\ns_mov_b32 s{d+3}, 0x00020000")
def pi32(d, s, t):
    A(f"""v_and_b32 v{d}, 0x13, v{s}
v_and_b32 v{t}, 4, v{s}
v_lshl_or_b32 v{d}, v{t}, 1, v{d}
v_and_b32 v{t}, 8, v{s}
v_lshrrev_b32 v{t}, 1, v{t}
v_or_b32 v{d}, v{d}, v{t}""")
def mod7(d, t):
    A(f"s_mul_i32 s{t}, s{d}, 37\ns_lshr_b32 s{t}, s{t}, 8\ns_mul_i32 s{t}, s{t}, 7\ns_sub_u32 s{d}, s{d}, s{t}")
def lds_add(addr):
    A(f"v_mov_b32 v12, {addr}\nv_mov_b32 v13, 1\ns_mov_b64 exec, 1\nds_add_u32 v12, v13\ns_mov_b64 exec, -1")
def lds_wait(addr, target, sleep=0, setup=True):
    L, L2 = A.lab("lw"), A.lab("lwd")
    if setup: A(f"v_mov_b32 v12, {addr}")
    A(f"""{L}:
ds_read_b32 v13, v12
s_waitcnt lgkmcnt(0)
v_readfirstlane_b32 s60, v13
s_cmp_ge_u32 s60, {target}""")
    if sleep: A(f"s_cbranch_scc1 {L2}\ns_sleep {sleep}\ns_branch {L}\n{L2}:")
    else: A(f"s_cbranch_scc0 {L}")
def lds_sync(addr, target, sleep=0):
    A("s_waitcnt lgkmcnt(0)"); lds_add(addr); lds_wait(addr, target, sleep, False)
def arrive(cnt, skip):
    A(f"""s_waitcnt vmcnt(0)
v_mov_b32 v12, {cnt}
v_mov_b32 v13, 1
s_mov_b64 exec, 1
ds_add_rtn_u32 v13, v12, v13
s_mov_b64 exec, -1
s_waitcnt lgkmcnt(0)
v_readfirstlane_b32 s60, v13
s_cmp_lg_u32 s60, 3
s_cbranch_scc1 {skip}""")
def flagstore(soff, nrep, repstride):
    A(f"""v_mul_u32_u24 v12, {repstride}, v0
v_mov_b32 v13, s{TAG}
s_mov_b64 exec, {(1<<nrep)-1}
buffer_store_dword v13, v12, {W}, {soff} offen {SC}
s_mov_b64 exec, -1""")
def publish(cnt, soff, nrep, repstride):
    L = A.lab("pub")
    arrive(cnt, L); flagstore(f"s{soff}", nrep, repstride); A(f"{L}:")
def acquire(rel, body, sleep, sleep2=1):
    LP, LD, LO, LE = A.lab("poll"), A.lab("pollok"), A.lab("pollw"), A.lab("polle")
    A(f"s_cmp_lg_u32 s40, 0\ns_cbranch_scc1 {LO}\ns_mov_b32 s61, {SPIN}\n{LP}:")
    body()
    A(f"""s_cbranch_vccz {LD}
s_sub_u32 s61, s61, 1
s_cmp_eq_u32 s61, 0
s_cbranch_scc1 {LD}
s_sleep {sleep}
s_branch {LP}
{LD}:""")
    lds_add(rel)
    A(f"s_branch {LE}\n{LO}:")
    lds_wait(rel, 1, sleep2)
    A(f"{LE}:")
def gettag():
    A(f"s_load_dword s{TAG}, s[24:25], {EPOCH_OFF}")
    srd(SWS, P_WS, WS_USED)
def fixtag():
    A(f"s_waitcnt lgkmcnt(0)\ns_add_u32 s{TAG}, s{TAG}, {TAGC}")

FIN, END, ATT, PUB1, HELP2, GEN = "L_fin", "L_end", "L_att", "L_pub1", "L_help2", "L_gen"
LA1, LB1C, LB1G, LA1C, LV, LN, LFB = "L_a1", "L_b1c", "L_b1g", "L_a1c", "L_b1v", "L_norm", "L_fallback"
K = NAME + "_kernel"

def entry():
    A(f".globl {K}\n.p2align 8\n.type {K},@function\n{K}:")
    A(f"""s_cmp_ge_u32 s2, 256
s_cbranch_scc1 {FIN}
s_load_dwordx16 s[8:23], s[0:1], 0
s_load_dwordx2 s[24:25], s[0:1], 64
v_lshrrev_b32 v1, 6, v0
v_readfirstlane_b32 s3, v1
v_and_b32 v0, 63, v0""")
    if STAMPS:
        for i in range(2, 14): A(f"s_mov_b32 s{64+2*i}, 0")
        A("s_memtime s[64:65]\ns_memrealtime s[66:67]")
    A(f"""s_and_b32 s4, s2, 7
s_lshr_b32 s5, s2, 3
s_lshl_b32 s6, s4, 1
s_and_b32 s7, s5, 1
s_or_b32 s6, s6, s7
s_lshr_b32 s7, s5, 1
s_and_b32 s40, s3, 3
s_cmp_ge_u32 s7, 11
s_cbranch_scc1 {LA1}
s_cmp_lt_u32 s3, 4
s_cbranch_scc1 {LB1C}""")

def xaddr(rs):
    A(f"""v_lshrrev_b32 v1, 3, v0
v_and_b32 v14, 7, v0
v_lshrrev_b32 v15, 4, v0
v_xor_b32 v14, v14, v15
v_lshlrev_b32 v14, 4, v14
v_xor_b32 v16, 64, v14
v_mul_u32_u24 v1, {rs}, v1
v_add_u32 v2, v1, v14
v_add_u32 v3, v1, v16
v_add_u32 v3, {8*rs-1024}, v3
v_add_u32 v4, {2*(8*rs-1024)}, v2
v_add_u32 v5, {2*(8*rs-1024)}, v3""")
def b1_loader():
    A("s_setprio 3\ns_add_u32 s26, s6, s7")
    mod7(26, 27)
    if not OPT["rot"]: A("s_mov_b32 s26, 0")
    xaddr(896)
    A(f"""v_and_b32 v14, 15, v0
v_lshlrev_b32 v16, 2, v15
v_xor_b32 v14, v14, v16
v_lshlrev_b32 v14, 4, v14
v_mul_u32_u24 v15, 2688, v15
v_add_u32 v6, v14, v15
v_add_u32 v7, {4*2688-1024}, v6
v_add_u32 v8, {2*(4*2688-1024)}, v6
v_add_u32 v9, {3*(4*2688-1024)}, v6
s_lshl_b32 s41, s6, 2
s_add_u32 s47, s41, s40
s_mul_i32 s41, s47, {32*896}     ; x base
s_mul_i32 s42, s40, {16*2688}
s_lshl_b32 s43, s7, 8
s_add_u32 s42, s42, s43          ; w base
s_lshl_b32 s44, s40, 12
s_waitcnt lgkmcnt(0)""")
    srd(SX, P_BX, X_BYTES); srd(SW, P_WQKV, WQKV_BYTES)
    def issue():
        A(f"""s_lshl_b32 s45, s26, 7
s_add_u32 s45, s45, s41
s_mul_i32 s46, s26, {64*2688}
s_add_u32 s46, s46, s42
s_mov_b32 m0, s44""")
        for i in range(4): A(f"buffer_load_dwordx4 v{2+i}, {sr(SX,4)}, s45 offen offset:{1024*i} lds")
        A(f"s_add_u32 m0, s44, 16384")
        for i in range(4): A(f"buffer_load_dwordx4 v{6+i}, {sr(SW,4)}, s46 offen offset:{1024*i} lds")
        A("""s_add_u32 s26, s26, 1
s_cmp_eq_u32 s26, 7
s_cselect_b32 s26, 0, s26
s_add_u32 s44, s44, 0x8000
s_and_b32 s44, s44, 0x1ffff""")
    LL = A.lab("b1ld")
    issue(); gettag()
    A(f"s_mov_b32 s48, 6\n{LL}:")
    if OPT["x"] != 2: issue()
    else: A("s_waitcnt vmcnt(0)")
    A("s_waitcnt vmcnt(8)")
    if STAMPS:
        LX = A.lab("st"); A(f"s_cmp_lg_u32 s48, 6\ns_cbranch_scc1 {LX}"); stamp(2); A(f"{LX}:")
    A(f"""s_barrier
s_sub_u32 s48, s48, 1
s_cmp_lg_u32 s48, 0
s_cbranch_scc1 {LL}""")
    fixtag()
    A("s_waitcnt vmcnt(0)")
    stamp(3)
    A(f"s_barrier\ns_branch {ATT}")

def a1_dispatch_loader():
    A(f"""{LA1}:
s_sub_u32 s5, s7, 11           ; g5
s_mul_i32 s26, s5, 3
s_lshr_b32 s26, s26, 1         ; e0 in 0,1,3,4,6""")
    if not OPT["rot"]: A("s_mov_b32 s26, 0")
    A(f"s_cmp_lt_u32 s3, 4\ns_cbranch_scc1 {LA1C}\ns_setprio 3")
    xaddr(64*896)
    A(f"""s_lshl_b32 s41, s6, 2
s_add_u32 s41, s41, s40
s_mul_i32 s41, s41, 896
s_lshl_b32 s44, s40, 12
s_lshl_b32 s26, s26, 2
s_add_u32 s26, s26, 3""")
    mod7(26, 27)
    A("s_waitcnt lgkmcnt(0)")
    srd(SX, P_AX, X_BYTES)
    gettag()
    LL, LS = A.lab("a1ld"), A.lab("a1lds")
    A(f"""s_mov_b32 s48, 0
{LL}:
s_lshl_b32 s45, s26, 7
s_add_u32 s45, s45, s41
s_lshl_b32 s46, s26, 14
s_add_u32 m0, s44, s46""")
    for i in range(4): A(f"buffer_load_dwordx4 v{2+i}, {sr(SX,4)}, s45 offen offset:{1024*i} lds")
    A(f"""s_add_u32 s26, s26, 4
s_sub_u32 s27, s26, 7
s_cmp_ge_u32 s26, 7
s_cselect_b32 s26, s27, s26
s_add_u32 s48, s48, 1
s_cmp_lt_u32 s48, 4
s_cbranch_scc1 {LL}
s_waitcnt vmcnt(8)
s_barrier
s_cmp_lt_u32 s48, 7
s_cbranch_scc1 {LL}""")
    fixtag()
    A("s_waitcnt vmcnt(4)\ns_barrier\ns_waitcnt vmcnt(0)")
    stamp(3)
    A(f"s_barrier\ns_branch {ATT}")

def main_start():
    A(f"""v_lshlrev_b32 v1, 2, v0
v_add_u32 v1, {CNT}, v1
v_mov_b32 v2, 0
ds_write_b32 v1, v2""")
    if OPT["pf"]:
        L = A.lab("pf"); LP = A.lab("pc")
        A(f"""s_cmp_lg_u32 s3, 3
s_cbranch_scc1 {L}
s_getpc_b64 s[56:57]
{LP}:
s_sub_u32 s56, s56, {LP}-{K}
s_subb_u32 s57, s57, 0
s_bfe_u32 s58, s2, 0x20003
s_lshl_b32 s58, s58, 13
v_lshlrev_b32 v1, 7, v0
v_add_u32 v1, s58, v1
v_min_u32 v1, {FIN}-{K}, v1
global_load_dword v248, v1, s[56:57]
{L}:""")

C, ER, EI, G, GT = 128, 160, 176, 192, 16
def gen_common():
    A(f"""v_and_b32 v14, 31, v0
v_lshrrev_b32 v15, 5, v0
s_lshr_b32 s50, s2, 5
s_lshl_b32 s50, s50, 3
s_or_b32 s50, s50, s4
s_bfe_u32 s51, s2, 0x20003       ; d quarter
s_and_b32 s52, s40, 1            ; parity e""")
def gen_c():
    A(f"""v_lshrrev_b32 v8, 1, v14
s_lshl_b32 s43, s40, 4
v_add_u32 v8, s43, v8
v_cvt_f32_u32 v8, v8
v_mul_f32 v8, {f32(1/64)}, v8    ; step = u2/64
v_and_b32 v9, 1, v14
v_cvt_f32_u32 v9, v9
v_mul_f32 v9, {f32(0.25)}, v9
v_lshlrev_b32 v10, 1, v15
v_cvt_f32_u32 v10, v10
v_fma_f32 v9, v8, v10, v9        ; base""")
    for f in range(8):
        for p in range(4): A(f"v_fmamk_f32 v{GT+p}, v8, {f32(float(8*f+4*(p>>1)+(p&1)))}, v9")
        for p in range(4): A(f"v_cos_f32 v{GT+4+p}, v{GT+p}")
        for p in range(4): A(f"v_sin_f32 v{GT+8+p}, v{GT+p}")
        for p in range(4): A(f"v_cvt_pk_bf16_f32 v{C+4*f+p}, v{GT+4+p}, v{GT+8+p}")
def gen_e():
    scale = 2.0/(2048*448)
    A(f"""v_lshlrev_b32 v8, 6, v14
v_add_u32 v8, s50, v8
v_cvt_f32_u32 v8, v8
v_mul_f32 v8, {f32(1/2048)}, v8
v_lshlrev_b32 v9, 2, v15
v_cvt_f32_u32 v9, v9
v_mul_f32 v9, v8, v9
v_mov_b32 v10, {f32(scale)}""")
    for f in range(4):
        for p in range(4): A(f"v_fmamk_f32 v{GT+p}, v8, {f32(float(8*f+p))}, v9")
        for p in range(4): A(f"v_cos_f32 v{GT+4+p}, v{GT+p}")
        for p in range(4): A(f"v_sin_f32 v{GT+8+p}, v{GT+p}")
        for p in range(8): A(f"v_mul_f32 v{GT+4+p}, v10, v{GT+4+p}")
        for p in range(4): A(f"v_cvt_pk_bf16_f32 v{ER+4*f+p}, v{GT+4+p}, -v{GT+8+p}")
        for p in range(4): A(f"v_cvt_pk_bf16_f32 v{EI+4*f+p}, v{GT+8+p}, v{GT+4+p}")
def gen_g():
    A(f"""s_lshr_b32 s44, s40, 1
s_lshl_b32 s45, s51, 1
s_add_u32 s44, s44, s45         ; d tile
s_lshl_b32 s46, s44, 5
v_add_u32 v8, s46, v14          ; d
v_and_b32 v10, 1, v8
v_lshlrev_b32 v10, 31, v10
v_or_b32 v10, 0.5, v10          ; 0.5*(-1)^d
v_cvt_f32_u32 v8, v8
v_mul_f32 v8, {f32(1/448)}, v8
v_lshlrev_b32 v9, 3, v15
v_add_u32 v9, s52, v9
v_cmp_eq_u32 vcc, 0, v9
v_cvt_f32_u32 v9, v9
v_mul_f32 v9, v8, v9
v_mov_b32 v11, 0.5
v_mul_f32 v7, {f32(32.0)}, v8""")
    for t in range(7):
        for j in range(8):
            if t == 0: A(f"v_fmamk_f32 v{GT+j}, v8, {f32(float(16*(j>>2)+2*(j&3)))}, v9")
            else: A(f"v_add_f32 v{GT+j}, v7, v{GT+j}")
        for j in range(8): A(f"v_cos_f32 v{GT+8+j}, v{GT+j}")
        for j in range(8): A(f"v_sin_f32 v{GT+16+j}, v{GT+j}")
        if t == 0:
            A(f"v_cndmask_b32 v{GT+8}, v{GT+8}, v11, vcc\nv_cndmask_b32 v{GT+16}, v{GT+16}, -v10, vcc")
        for j in range(4): A(f"v_cvt_pk_bf16_f32 v{G+8*t+j}, v{GT+8+2*j}, v{GT+9+2*j}")
        for j in range(4): A(f"v_cvt_pk_bf16_f32 v{G+8*t+4+j}, -v{GT+16+2*j}, -v{GT+17+2*j}")
GENS = {1: gen_c, 2: gen_e, 3: gen_g}
def gen_pre():
    gen_common()
    A(f"{GEN}:")
    if OPT["pre"]: GENS[OPT["pre"]]()
    A(f"s_cmp_ge_u32 s7, 11\ns_cbranch_scc1 {HELP2}")

ACC = 64
def acc(a, b): return ACC + 32*a + 16*b
def b1_body(vtype):
    if vtype: pi32(48, 14, 49)
    else: A("v_mov_b32 v48, v14")
    A(f"""v_lshrrev_b32 v49, 1, v48
v_and_b32 v49, 7, v49
v_xor_b32 v49, v49, v15
v_lshlrev_b32 v49, 4, v49
v_lshl_or_b32 v50, v48, 7, v49
s_lshl_b32 s43, s41, 13
v_add_u32 v52, s43, v50
v_xor_b32 v53, 32, v52
v_xor_b32 v54, 64, v52
v_xor_b32 v55, 96, v52""")
    A(f"""v_bfe_u32 v48, v0, 2, 2        ; rr
v_and_b32 v49, 3, v0           ; cc""")
    if not vtype:
        A("""v_lshrrev_b32 v50, 1, v49
v_and_b32 v49, 1, v49
v_lshl_or_b32 v49, v49, 1, v50 ; sigma(cc)""")
    A(f"""v_bfe_u32 v50, v0, 4, 1        ; colhalf
v_lshlrev_b32 v50, 5, v50
v_lshl_or_b32 v50, v49, 3, v50
s_lshl_b32 s43, s42, 7
v_or_b32 v50, s43, v50
v_lshlrev_b32 v51, 6, v48
v_xor_b32 v50, v50, v51
v_lshl_add_u32 v51, v15, 3, v48 ; 8h+rr
v_lshl_or_b32 v56, v51, 8, v50
v_add_u32 v56, 16384, v56
v_xor_b32 v57, 64, v56""")
    A(f"""s_lshl_b32 s46, s6, 2
s_lshl_b32 s47, s41, 1
s_add_u32 s46, s46, s47
s_lshl_b32 s47, s7, 2
s_lshl_b32 s48, s42, 1
s_add_u32 s47, s47, s48""")
    if not vtype:
        A(f"""s_mul_i32 s46, s46, {QK_TILE}
s_lshl_b32 s48, s47, 11
s_add_u32 s46, s46, s48
v_lshlrev_b32 v2, 4, v0
s_cmp_ge_u32 s47, 14
s_cselect_b32 s48, {QK_PART - 14*2048}, 0
s_cselect_b32 s54, 1.0, {f32(QSCALE)}
s_mov_b32 s55, s54
s_add_u32 s46, s46, s48
s_add_u32 s46, s46, {QK_OFF}
s_add_u32 s49, s46, {QK_TILE}""")
    else:
        A(f"""s_sub_u32 s45, s7, 7
s_lshl_b32 s45, s45, 7
s_add_u32 s45, s45, 27
s_mul_i32 s45, s45, 2341
s_lshr_b32 s45, s45, 16
v_lshrrev_b32 v10, 2, v0
v_add_u32 v10, s45, v10
v_and_b32 v11, 3, v0
v_lshlrev_b32 v11, 9, v11
v_lshl_or_b32 v11, v10, 17, v11
v_cmp_gt_u32 vcc, 16, v10
s_lshl_b32 s45, s6, 2
s_add_u32 s45, s45, s40
s_lshl_b32 s45, s45, 11
s_add_u32 s45, s45, {V_OFF + 28*16}
v_mov_b32 v16, 0x3f803f80
v_mov_b32 v17, 0x3f803f80
v_mov_b32 v18, 0x3f803f80
v_mov_b32 v19, 0x3f803f80
s_and_b64 exec, vcc, 0xfffff
buffer_store_dwordx4 v[16:19], v11, {W}, s45 offen {SC}
s_mov_b64 exec, -1""")
        A(f"""s_sub_u32 s47, s47, 28
s_lshl_b32 s46, s46, 11
s_add_u32 s46, s46, {V_OFF}
s_lshl_b32 s48, s47, 5""")
        for b in range(2):
            A(f"""v_add_u32 v48, s48, v14
v_add_u32 v48, {32*b}, v48
v_mul_u32_u24 v49, 2341, v48
v_lshrrev_b32 v49, 16, v49     ; head
v_mul_u32_u24 v50, 28, v49
v_sub_u32 v48, v48, v50        ; d
v_lshlrev_b32 v48, 4, v48
v_lshl_or_b32 v48, v15, 9, v48
v_lshl_or_b32 v{2+b}, v49, 17, v48""")
            if OPT["vx"]: A(f"v_lshlrev_b32 v48, 4, v0\ns_add_u32 s49, s47, {b}\ns_lshl_b32 s49, s49, 17\nv_add_u32 v{2+b}, s49, v48")
    def rdlist(kap, p):
        xb, wb = 16+16*p, 24+16*p
        x = [f"ds_read_b128 {vr(xb+4*a,4)}, v{6+kap} offset:{4096*a}" for a in range(2)]
        w = [f"ds_read_b64_tr_b16 {vr(wb+4*b+2*u,2)}, v{10+b} offset:{(16*kap+4*u)*256}" for b in range(2) for u in range(2)]
        return [x[0], w[0], w[1], w[2], w[3], x[1]]
    def setaddr():
        for i in range(6): A(f"v_add_u32 v{6+i}, s44, v{52+i}")
    def mf(a, b, p):
        x, w = vr(16+16*p+4*a,4), vr(24+16*p+4*b,4)
        o = (x, w) if vtype else (w, x)
        A(f"{MFMA} {vr(acc(a,b),16)}, {o[0]}, {o[1]}, {vr(acc(a,b),16)}")
    def kstep(p, nxt, first_wait=True):
        r = list(nxt)
        n = len(r) > 0
        if first_wait: A("s_waitcnt lgkmcnt(3)")
        mf(0,0,p)
        for x in r[0:3]: A(x)
        if first_wait: A(f"s_waitcnt lgkmcnt({4 if n else 1})")
        mf(0,1,p)
        for x in r[3:5]: A(x)
        if first_wait: A(f"s_waitcnt lgkmcnt({5 if n else 0})")
        mf(1,0,p)
        for x in r[5:6]: A(x)
        mf(1,1,p)
    LL, LS = A.lab("b1loop"), A.lab("b1last")
    A("s_mov_b32 s44, 0\ns_mov_b32 s45, 0")
    setaddr()
    stampw(9)
    A("s_barrier")
    stampw(2)
    for x in rdlist(0, 0): A(x)
    A(f"{LL}:")
    kstep(0, rdlist(1, 1))
    kstep(1, rdlist(2, 0))
    A("s_add_u32 s44, s44, 0x8000\ns_and_b32 s44, s44, 0x1ffff\ns_add_u32 s45, s45, 1")
    kstep(0, rdlist(3, 1))
    A(f"s_cmp_eq_u32 s45, 7\ns_cbranch_scc1 {LS}")
    setaddr()
    A("s_barrier")
    kstep(1, rdlist(0, 0))
    A(f"s_branch {LL}\n{LS}:")
    kstep(1, [])
    stamp(3)
    if vtype: A(f"s_cmp_ge_u32 s47, 14\ns_cbranch_scc1 {PUB1}")
    for a in range(2):
        for b in range(2):
            d = 16 + 8*(2*a+b)
            for i in range(8):
                r = acc(a,b)+2*i
                if not vtype: A(f"v_pk_mul_f32 {vr(r,2)}, {vr(r,2)}, s[54:55]")
                A(f"v_cvt_pk_bf16_f32 v{d+i}, v{r}, v{r+1}")
                if i & 3 == 3:
                    if vtype: A(f"buffer_store_dwordx4 {vr(d+i-3,4)}, v{2+b}, {W}, s46 offen offset:{2048*a+1024*(i>>2)} {SC}")
                    else: A(f"buffer_store_dwordx4 {vr(d+i-3,4)}, v2, {W}, s{46 if a==0 else 49} offen offset:{2048*b+1024*(i>>2)} {SC}")
    A(f"s_branch {PUB1}")
def b1_compute():
    A(f"""s_and_b32 s41, s3, 1           ; wr
s_lshr_b32 s42, s3, 1          ; wc""")
    fixtag()
    A(f"s_cmp_ge_u32 s7, 7\ns_cbranch_scc1 {LV}")
    b1_body(False)
    A(f"{LV}:")
    b1_body(True)

FOFF = 7*16384
def a1_gen():
    A(f"{LA1C}:\ns_setprio 2")
    gen_common()
    pi32(48, 14, 49)
    A(f"""v_lshrrev_b32 v48, 1, v48       ; k_local
s_mul_i32 s41, s5, 48
v_add_u32 v48, s41, v48
v_cvt_f32_u32 v48, v48
v_mul_f32 v56, {f32(1/448)}, v48
v_add_f32 v48, {f32(16.0)}, v48
v_mul_f32 v57, {f32(1/448)}, v48
v_add_f32 v48, {f32(16.0)}, v48
v_mul_f32 v58, {f32(1/448)}, v48
v_and_b32 v48, 1, v14
v_cvt_f32_u32 v48, v48
v_mul_f32 v59, {f32(0.25)}, v48  ; c/4
v_lshlrev_b32 v60, 3, v15        ; 8h
v_lshlrev_b32 v61, 4, v0
v_add_u32 v61, {FOFF}, v61
s_mov_b32 s42, s3""")
    main_start()
    A("s_waitcnt lgkmcnt(0)"); gettag()
    LF = A.lab("fgen")
    A(f"""{LF}:
s_lshl_b32 s43, s42, 4
v_add_u32 v52, s43, v60
v_cvt_f32_u32 v52, v52
s_lshl_b32 s43, s42, 10
v_add_u32 v53, s43, v61""")
    for kgi in range(3): A(f"v_fma_f32 v{16+12*kgi}, v{56+kgi}, v52, v59")
    for j in range(1, 8):
        for kgi in range(3): A(f"v_add_f32 v{16+12*kgi+j}, v{56+kgi}, v{16+12*kgi+j-1}")
    for kgi in range(3):
        t = 16 + 12*kgi
        for j in range(8): A(f"v_cos_f32 v{t+j}, v{t+j}")
        for j in range(4): A(f"v_cvt_pk_bf16_f32 v{t+8+j}, v{t+2*j}, v{t+2*j+1}")
        A(f"ds_write_b128 v53, {vr(t+8,4)} offset:{14336*kgi}")
    A(f"s_add_u32 s42, s42, 4\ns_cmp_lt_u32 s42, 14\ns_cbranch_scc1 {LF}")
def a1_compute():
    A(f"""s_lshl_b32 s41, s6, 2
s_add_u32 s41, s41, s3          ; s2 index
v_lshlrev_b32 v5, 8, v15
v_add_u32 v5, s41, v5
v_mul_u32_u24 v5, v14, v5
v_cvt_f32_u32 v5, v5
v_mul_f32 v5, {f32(1/2048)}, v5
v_cvt_f32_u32 v6, v14
v_mul_f32 v6, {f32(1/32)}, v6
v_lshrrev_b32 v49, 1, v14
v_and_b32 v49, 7, v49
v_xor_b32 v49, v49, v15
v_lshlrev_b32 v49, 4, v49
v_lshl_or_b32 v62, v14, 7, v49
s_lshl_b32 s43, s3, 12
v_add_u32 v62, s43, v62""")
    egen = []
    for i in range(2):
        for j in range(8): egen.append(f"v_fmamk_f32 v{176+j}, v6, {f32(float(16*i+8*(j>>2)+(j&3)))}, v5")
        for j in range(8): egen.append(f"v_cos_f32 v{184+j}, v{176+j}")
        for j in range(8): egen.append(f"v_sin_f32 v{192+j}, v{176+j}")
        for j in range(4): egen.append(f"v_cvt_pk_bf16_f32 v{160+4*i+j}, v{184+2*j}, v{185+2*j}")
        for j in range(4): egen.append(f"v_cvt_pk_bf16_f32 v{168+4*i+j}, -v{192+2*j}, -v{193+2*j}")
    def a1addr():
        A(f"""s_lshr_b32 s43, s26, 1
s_lshl_b32 s43, s43, 14
s_and_b32 s44, s26, 1
s_lshl_b32 s44, s44, 6
s_or_b32 s43, s43, s44
v_xor_b32 v8, s43, v62
v_xor_b32 v9, 32, v8
s_add_u32 s43, s26, 7
s_lshr_b32 s43, s43, 1
s_lshl_b32 s43, s43, 14
s_xor_b32 s44, s44, 64
s_or_b32 s43, s43, s44
v_xor_b32 v10, s43, v62
v_xor_b32 v11, 32, v10
s_lshl_b32 s43, s26, 11
v_add_u32 v12, s43, v61""")
    def nextedge():
        A("s_add_u32 s26, s26, 1\ns_cmp_eq_u32 s26, 7\ns_cselect_b32 s26, 0, s26"); a1addr()
    def a1rd(t):
        b = 16 + 20*t
        return ([f"ds_read_b128 {vr(b,4)}, v{8+t}"] +
                [f"ds_read_b128 {vr(b+8+4*kgi,4)}, v12 offset:{1024*t+14336*kgi}" for kgi in range(3)] +
                [f"ds_read_b128 {vr(b+4,4)}, v{10+t}"])
    def a1step(t, nxt, first=False, fill=0):
        b = 16 + 20*t
        r = list(nxt); issued = 0
        for m in range(6):
            hi, kgi = m // 3, m % 3
            need = (2, 3, 4, 5, 5, 5)[m]
            if m < 4: A(f"s_waitcnt lgkmcnt({5 - need + issued})")
            d = 64 + 32*kgi + 16*hi
            A(f"{MFMA} {vr(d,16)}, {vr(b+4*hi,4)}, {vr(b+8+4*kgi,4)}, {0 if first else vr(d,16)}")
            for _ in range(2 if m == 0 else 1):
                if r: A(r.pop(0)); issued += 1
            for _ in range(fill):
                if egen: A(egen.pop(0))
    LL, LS, LNB = A.lab("a1loop"), A.lab("a1last"), A.lab("a1nb")
    a1addr()
    fixtag()
    stampw(9)
    A("s_barrier")
    stampw(2)
    for x in a1rd(0): A(x)
    for n in range(2):
        a1step(0, a1rd(1), n == 0, 3)
        nextedge()
        A("s_barrier")
        a1step(1, a1rd(0), False, 3)
    assert not egen
    A(f"s_mov_b32 s45, 2\n{LL}:")
    a1step(0, a1rd(1))
    A(f"""s_add_u32 s45, s45, 1
s_cmp_eq_u32 s45, 7
s_cbranch_scc1 {LS}""")
    nextedge()
    A(f"s_cmp_eq_u32 s45, 6\ns_cbranch_scc1 {LNB}\ns_barrier\n{LNB}:")
    a1step(1, a1rd(0))
    A(f"s_branch {LL}\n{LS}:")
    a1step(1, [])
    stamp(3)
    LI = A.lab("a1init")
    A(f"""v_and_b32 v3, 2, v14
v_lshlrev_b32 v3, 30, v3
v_or_b32 v3, 1.0, v3            ; (-1)^k
v_lshlrev_b32 v4, 5, v14
v_lshl_or_b32 v4, v15, 4, v4
s_cmp_ge_u32 s41, 4
s_cbranch_scc1 {LI}
s_lshl_b32 s42, s5, 2
s_add_u32 s42, s42, s41
s_lshl_b32 s42, s42, 7
s_add_u32 s42, s42, {AT_OFF}
v_mov_b32 v5, 0
s_mov_b64 exec, 1
buffer_store_dword v5, v5, {W}, s42 offen {SC}
buffer_store_dword v5, v5, {W}, s42 offen offset:{20*128} {SC}
s_mov_b64 exec, -1
{LI}:
s_mul_i32 s41, s41, {T_ROW}
s_mul_i32 s42, s5, 6144
s_add_u32 s41, s41, s42
s_add_u32 s41, s41, {T_OFF}
s_add_u32 s42, s41, 2048
s_add_u32 s43, s41, 4096""")
    for kgi in range(3):
        P, Q = 64+32*kgi, 80+32*kgi
        for i in range(16): A(f"v_fmac_f32 v{P+i}, v3, v{Q+i}")
        for i in range(8): A(f"v_cvt_pk_bf16_f32 v{16+8*kgi+i}, v{P+2*i}, v{P+2*i+1}")
        A(f"""{MFMA} {vr(P,16)}, {vr(16+8*kgi,4)}, v[160:163], 0
{MFMA} {vr(Q,16)}, {vr(16+8*kgi,4)}, v[168:171], 0
{MFMA} {vr(P,16)}, {vr(20+8*kgi,4)}, v[164:167], {vr(P,16)}
{MFMA} {vr(Q,16)}, {vr(20+8*kgi,4)}, v[172:175], {vr(Q,16)}""")
    for kgi in range(3):
        P, Q = 64+32*kgi, 80+32*kgi
        for j in range(8):
            A(f"v_sub_f32 v{P+2*j}, v{P+2*j}, v{Q+2*j+1}\nv_add_f32 v{Q+2*j}, v{Q+2*j}, v{P+2*j+1}")
        for j in range(8): A(f"v_cvt_pk_bf16_f32 v{40+8*kgi+j}, v{P+2*j}, v{Q+2*j}")
        for i in range(2):
            A(f"buffer_store_dwordx4 {vr(40+8*kgi+4*i,4)}, v4, {W}, s{41+kgi} offen offset:{1024*i} {SC}")

def pub1():
    A(f"""{PUB1}:
s_lshl_b32 s41, s7, 7
s_lshl_b32 s42, s6, 2
s_add_u32 s41, s41, s42
s_add_u32 s41, s41, {F1_OFF}""")
    stamp(4)
    lds_add(C_LF)
    if OPT["drain"]: GENS[OPT["drain"]]()
    publish(C_P1, 41, OPT["r1"], 2048)
    stamp(5)
    A(f"s_cmp_ge_u32 s7, 11\ns_cbranch_scc1 {GEN}")

def b3map():
    A("""s_lshr_b32 s4, s2, 4
s_lshl_b32 s4, s4, 2
s_bfe_u32 s5, s2, 0x20001
s_or_b32 s4, s4, s5
s_and_b32 s5, s2, 1
s_lshl_b32 s5, s5, 1
s_bfe_u32 s6, s2, 0x10003
s_or_b32 s5, s5, s6            ; n quarter""")
def wo_setup(d, SWO):
    srd(SWO, P_WO, WO_BYTES)
    A(f"""s_and_b32 s53, s2, 1
s_lshl_b32 s53, s53, 1
s_bfe_u32 s54, s2, 0x10003
s_or_b32 s53, s53, s54
s_lshl_b32 s53, s53, 8
s_mul_i32 s54, s40, {56*896}
s_add_u32 s53, s53, s54
s_mul_i32 s54, s40, {56*256}
v_lshrrev_b32 v13, 4, v0
v_and_b32 v12, 15, v0
v_lshlrev_b32 v{d}, 2, v13
v_xor_b32 v12, v12, v{d}
v_lshlrev_b32 v12, 4, v12
v_mul_u32_u24 v13, 896, v13
v_add_u32 v{d}, v12, v13""")
def wo_stage(d, SWO, half, pace=0):
    for i in range(14):
        if pace: A(f"s_sleep {pace}")
        A(f"s_add_u32 m0, s54, {WO+1024*i}\ns_add_u32 s55, s53, {(224*half+4*i)*896}\nbuffer_load_dwordx4 v{d}, {sr(SWO,4)}, s55 offen lds")

Q, S, O, KV = 16, 48, 112, 176
OK = O + 48
def q(j,i): return vr(Q+8*j+4*i, 4)
def kb(b,i): return KV+16*b+4*i
def tile_addr():
    return [f"s_and_b32 s42, s41, 15", "s_add_u32 s42, s42, s47", f"s_mul_i32 s43, s42, {QK_TILE}",
            f"s_add_u32 s43, s43, {QK_OFF+QK_PART}", "s_lshl_b32 s44, s42, 11", f"s_add_u32 s44, s44, {V_OFF}",
            "s_add_u32 s41, s41, 1"]
def tile_loads(b):
    return [f"buffer_load_dwordx4 {vr(kb(b,0),4)}, v1, {W}, s43 offen {SC}",
            f"buffer_load_dwordx4 {vr(kb(b,1),4)}, v2, {W}, s43 offen {SC}",
            f"buffer_load_dwordx4 {vr(kb(b,2),4)}, v3, {W}, s44 offen {SC}",
            f"buffer_load_dwordx4 {vr(kb(b,3),4)}, v3, {W}, s44 offen offset:1024 {SC}"]
def touches():
    L1, L2 = A.lab("tch"), A.lab("tch")
    A(f"s_cmp_ge_u32 s40, 2\ns_cbranch_scc1 {L1}")
    srd(SX, P_WR, W_BYTES)
    A(f"s_cmp_eq_u32 s40, 0\ns_cbranch_scc1 {L2}")
    srd(SX, P_WI, W_BYTES)
    A(f"""{L2}:
s_lshr_b32 s55, s2, 3
s_mul_i32 s55, s55, {64*450}
s_and_b32 s56, s2, 7
s_mul_i32 s56, s56, {4*450}
s_add_u32 s55, s55, s56
s_and_b32 s55, s55, 0xffffff80
v_bfe_u32 v12, v0, 4, 1
v_mul_u32_u24 v12, {32*450}, v12
v_and_b32 v13, 15, v0
v_lshl_add_u32 v12, v13, 7, v12
s_mov_b64 exec, 0xffffffff
buffer_load_dword v248, v12, {sr(SX,4)}, s55 offen
s_mov_b64 exec, -1
{L1}:""")
    L3 = A.lab("tch")
    A(f"s_cmp_lg_u32 s40, 2\ns_cbranch_scc1 {L3}")
    srd(SX, P_WO, WO_BYTES)
    A(f"""s_lshr_b32 s55, s2, 3
s_mul_i32 s55, s55, {14*896}
s_and_b32 s56, s2, 1
s_lshl_b32 s56, s56, 9
s_add_u32 s55, s55, s56
v_lshrrev_b32 v12, 2, v0
v_mul_u32_u24 v12, 896, v12
v_and_b32 v13, 3, v0
v_lshl_add_u32 v12, v13, 7, v12
buffer_load_dword v248, v12, {sr(SX,4)}, s55 offen
{L3}:""")
def attention():
    A(f"""{ATT}:
s_setprio 0
s_and_b32 s4, s2, 7
s_lshl_b32 s4, s4, 1
s_bfe_u32 s5, s2, 0x10003
s_or_b32 s4, s4, s5            ; head
s_lshr_b32 s5, s2, 4           ; qb
s_mul_i32 s6, s4, 7
s_lshr_b32 s45, s6, 1
s_add_u32 s6, s6, 1
s_lshr_b32 s6, s6, 1
s_lshl_b32 s6, s6, 9
v_lshlrev_b32 v8, 4, v0
v_add_u32 v1, s6, v8
s_bitcmp1_b32 s4, 0
s_cselect_b32 s7, -2040, 0
v_add_u32 v2, 1024, v1
v_add_u32 v6, s7, v2
v_mov_b32 v4, 0x3f80
v_mov_b32_dpp v2, v6 {HI}
s_lshl_b32 s7, s4, 17
v_add_u32 v3, s7, v8           ; V offset
v_mov_b32 v5, 0xdddd
v_mov_b32 v7, 0
s_lshl_b32 s47, s40, 4         ; 16*w
s_mov_b32 s41, s5
s_lshl_b32 s45, s45, 3
v_bfe_u32 v9, v0, 4, 1
v_mul_u32_u24 v10, 31, v9
v_add_u32 v10, s45, v10        ; Q column
v_add_u32 v11, 448, v10        ; K column
v_mul_u32_u24 v9, 27, v9
s_mul_i32 s46, s4, 28
s_add_u32 s46, s46, 896
v_add_u32 v9, s46, v9          ; V column
v_and_b32 v10, 0xffffff80, v10
v_mov_b32_dpp v11, v9 {HI}
s_lshl_b32 s46, s5, 2
v_add_u32 v10, s46, v10
v_and_b32 v11, 0xffffff80, v11
v_and_b32 v9, 15, v0
v_lshl_add_u32 v11, v9, 2, v11
s_and_b32 s46, s2, {OPT["r1"]-1}
s_lshl_b32 s46, s46, 11
s_add_u32 s46, s46, {F1_OFF}""")
    A(f"""s_lshl_b32 s43, s5, 2
s_add_u32 s42, s40, s43
s_mul_i32 s42, s42, {QK_TILE}
s_add_u32 s50, s42, {QK_OFF}
s_mul_i32 s54, s5, {4*QK_TILE}
s_add_u32 s54, s54, {QK_OFF+QK_PART}""")
    for j in range(4):
        A(f"""s_add_u32 s42, s40, {j}
s_and_b32 s42, s42, 3
s_lshl_b32 s42, s42, 11
s_add_u32 s42, s42, {QX}
v_add_u32 v{240+j}, s42, v8
s_add_u32 s42, s40, {j+1}
s_and_b32 s42, s42, 3
s_mul_i32 s42, s42, 12288
s_add_u32 s42, s42, {MERGE + (4096*j if j < 3 else 0)}
v_add_u32 v{244+j}, s42, v8""")
    for x in tile_addr(): A(x)
    if OPT['tch'] == 1: touches()
    for i in range(64): A(f"v_mov_b32 v{O+i}, 0")
    lds_wait(C_LF if OPT["lf"] else C_P1, 4, 2)
    if OPT['tch'] == 2: touches()
    A("s_setprio 3")
    stamp(5)
    if OPT["pd"]: A(f"s_sleep {OPT['pd']}")
    def kvpoll():
        A(f"""buffer_load_dword v14, v10, {W}, s46 offen {SC}
buffer_load_dword v15, v11, {W}, s46 offen {SC}
s_waitcnt vmcnt(0)
v_cmp_ne_u32 s[48:49], s{TAG}, v14
v_cmp_ne_u32 vcc, s{TAG}, v15
s_or_b64 vcc, vcc, s[48:49]""")
    acquire(R_KV, kvpoll, OPT["sl1"])
    stamp(6)
    t0 = tile_loads(0)
    A(f"""{t0[0]}
buffer_load_dwordx4 {q(0,0)}, v1, {W}, s50 offen {SC}
{t0[1]}
buffer_load_dwordx4 {q(0,1)}, v2, {W}, s50 offen {SC}""")
    A("s_waitcnt vmcnt(0)")
    stamp(4)
    A(f"""v_mov_b32_dpp v{Q+6}, v7 {HI}
v_mov_b32_dpp v{Q+7}, v7 {HI}
v_mov_b32_dpp v{kb(0,1)+2}, v4 {HI}
{MFMA} {vr(S+16,16)}, {vr(kb(0,0),4)}, {q(0,0)}, 0
{t0[2]}
{MFMA} {vr(S+16,16)}, {vr(kb(0,1),4)}, {q(0,1)}, {vr(S+16,16)}
{t0[3]}
{MFMA} {vr(S,16)}, {vr(kb(0,0),4)}, {q(0,0)}, 0
ds_write_b128 v240, {q(0,0)}""")
    for x in tile_addr() + tile_loads(1)[:2]: A(x)
    s_ = S+16
    A(f"v_max3_f32 v8, v{s_}, v{s_+1}, v{s_+2}\nv_max3_f32 v9, v{s_+3}, v{s_+4}, v{s_+5}")
    for i in range(6, 14, 4): A(f"v_max3_f32 v8, v8, v{s_+i}, v{s_+i+1}\nv_max3_f32 v9, v9, v{s_+i+2}, v{s_+i+3}")
    A(f"""v_max3_f32 v8, v8, v{s_+14}, v{s_+15}
v_max_f32 v8, v8, v9
v_cvt_pk_bf16_f32 v8, -v8, v7
v_mov_b32_dpp v{Q+6}, v8 {HI}
ds_write_b128 v240, {q(0,1)} offset:1024
{MFMA} {vr(S,16)}, {vr(kb(0,1),4)}, {q(0,1)}, {vr(S,16)}""")
    stamp(2)
    lds_sync(C_Q, 4)
    stamp(3)
    for j in range(1, 4):
        A(f"ds_read_b128 {q(j,0)}, v{240+j}\nds_read_b128 {q(j,1)}, v{240+j} offset:1024")
    for x in tile_loads(1)[2:] + tile_addr(): A(x)
    A("s_waitcnt lgkmcnt(0)")
    stamp(7)
    lds_add(C_G2)
    A("s_setprio 1")
    def mwrites(j): return [f"ds_write_b128 v{244+j}, {vr(O+16*j+4*g,4)} offset:{1024*g}" for g in range(4)]
    for n in range(64):
        i, j = n >> 2, n & 3
        if n == 32: stamp(8)
        if n == 64 - OPT["go"]: lds_add(C_GO)
        extra = []; late = []; at = {}
        if n == 0: extra = tile_loads(2)
        if OPT["sp"] == 0:
            if j == 1 and i + 3 < 16: extra = tile_addr() + tile_loads((i+3) & 3)
        else:
            ti, k = (i + 3, j - 1) if j >= 1 else (i + 2, 3)
            if 3 <= ti < 16:
                at[OPT["lp"]] = [tile_loads(ti & 3)[k]]
                ta = tile_addr()
                if k == 0:
                    for z in range(4): at.setdefault(OPT["lp"] - 8 + 2*z, []).append(ta[z])
                if k == 1:
                    for z in range(3): at.setdefault(OPT["lp"] - 6 + 2*z, []).append(ta[4+z])
        if OPT["x"] == 5 and i >= 1: extra = []; at = {}
        if OPT["x"] == 6 and i >= 1 and extra: extra = tile_addr()
        if n >= 62: late = mwrites(n - 62)
        m = [None]*4
        pre = []
        if n < 63:
            i2, j2 = (n+1) >> 2, (n+1) & 3
            if j2 == 0:
                left = min(15, i+3) - (i+1)
                cnt = 4*left
                if OPT["sp"] and i + 3 < 16: cnt -= 2
                pre = [f"s_waitcnt vmcnt({cnt})", f"v_mov_b32_dpp v{kb(i2&3,1)+2}, v4 {HI}"]
            m[0] = f"{MFMA} {vr(S+16*j2,16)}, {vr(kb(i2&3,0),4)}, {q(j2,0)}, 0"
            m[1] = f"{MFMA} {vr(S+16*j2,16)}, {vr(kb(i2&3,1),4)}, {q(j2,1)}, {vr(S+16*j2,16)}"
        if n > 0:
            i0, j0 = (n-1) >> 2, (n-1) & 3
            m[2] = f"{SMF} {vr(O+16*j0,16)}, {vr(kb(i0&3,3),4)}, {vr(S+16*j0+8,8)}, v5"
        m[3] = f"{SMF} {vr(O+16*j,16)}, {vr(kb(i&3,2),4)}, {vr(S+16*j,8)}, v5"
        if n == 63: m[0], m[2] = m[2], None
        for x in pre: A(x)
        for g in range(4):
            if n == 0 and g == 3: A("s_waitcnt vmcnt(8)")
            if m[g]: A(m[g])
            for e in range(4):
                r = S+16*j+4*g+e
                A(f"v_exp_f32 v{r}, v{r}")
                for x in at.pop(4*g+e, []): A(x)
                if extra: A(extra.pop(0))
                elif late and g >= 1 and e & 1: A(late.pop(0))
        assert not extra and not late and not at
    for x in mwrites(2)[:2]: A(x)
    A(f"{SMF} {vr(O+48,16)}, {vr(kb(3,3),4)}, {vr(S+48+8,8)}, v5")
    for x in mwrites(2)[2:]: A(x)
    stamp(9)
    lds_sync(C_MERGE, 4)
    for g in range(12): A(f"ds_read_b128 {vr(S+4*g,4)}, v247 offset:{1024*g}")
    A(f"""v_lshlrev_b32 v8, 4, v0
s_add_u32 s42, s40, 3
s_and_b32 s42, s42, 3
s_lshl_b32 s43, s5, 2
s_add_u32 s42, s42, s43
s_lshl_b32 s42, s42, 15
s_lshl_b32 s43, s4, 11
s_add_u32 s42, s42, s43
s_add_u32 s42, s42, {O_OFF}""")
    for k in range(3):
        A(f"s_waitcnt lgkmcnt({8-4*k})")
        for i in range(0, 16, 2): A(f"v_pk_add_f32 {vr(OK+i,2)}, {vr(OK+i,2)}, {vr(S+16*k+i,2)}")
    A(f"""v_mov_b32 v10, v{OK+12}
v_mov_b32 v11, v{OK+12}
v_permlane32_swap_b32 v10, v11
v_cmp_nle_f32 vcc, {f32(2.0**-40)}, v11
s_mov_b64 s[48:49], vcc
v_cmp_nge_f32 vcc, {f32(2.0**40)}, v11
s_or_b64 vcc, vcc, s[48:49]
s_cbranch_vccnz {LFB}
{LN}:
v_rcp_f32 v10, v11""")
    for i in range(0, 16, 2):
        A(f"v_pk_mul_f32 {vr(OK+i,2)}, {vr(OK+i,2)}, v[10:11] op_sel_hi:[1,0]")
        A(f"v_cvt_pk_bf16_f32 v{S+i//2}, v{OK+i}, v{OK+i+1}")
    A(f"""v_mov_b32_dpp v{S+6}, v7 {HI}
v_mov_b32_dpp v{S+7}, v7 {HI}
buffer_store_dwordx4 {vr(S,4)}, v8, {W}, s42 offen {SC}
buffer_store_dwordx4 {vr(S+4,4)}, v8, {W}, s42 offen offset:1024 {SC}
s_lshl_b32 s46, s5, 10
s_add_u32 s46, s46, {FO_OFF}
s_lshl_b32 s41, s4, 2
s_add_u32 s41, s41, s46""")
    stamp(10)
    SO = 32; WF = 112; BACC = 16; OB = 32; NB = 6
    A(f"""v_bfe_u32 v9, v0, 2, 2        ; rr
v_and_b32 v10, 3, v0
v_lshrrev_b32 v11, 1, v10
v_and_b32 v10, 1, v10
v_lshl_or_b32 v10, v10, 1, v11    ; sigma(cc)
v_bfe_u32 v11, v0, 4, 1
v_lshlrev_b32 v11, 5, v11
v_lshl_or_b32 v10, v10, 3, v11
s_lshl_b32 s45, s40, 6
v_or_b32 v10, s45, v10
v_lshlrev_b32 v11, 6, v9
v_xor_b32 v10, v10, v11
v_lshl_or_b32 v4, v9, 8, v10
v_lshrrev_b32 v15, 5, v0
v_lshl_add_u32 v3, v15, 10, v4""")
    assert WO == 0
    def wo_frags(half):
        for n in range(16):
            hd, i = n >> 1, n & 1
            b = WF + 64*half + 4*n
            row = 28*hd + 16*i
            A(f"ds_read_b64_tr_b16 {vr(b,2)}, v3 offset:{row*256}")
            A(f"ds_read_b64_tr_b16 {vr(b+2,2)}, v{4 if i else 3} offset:{(row+8)*256}")
            if n % 6 == 5: A("s_waitcnt lgkmcnt(2)")
    lds_wait(C_WOA, 4)
    wo_frags(0)
    A("s_waitcnt lgkmcnt(0)")
    lds_add(C_WOF)
    publish(C_O, 41, OPT["ro"], 128)
    b3map(); wo_setup(1, SX); srd(SO, P_OUT, OUT_BYTES)
    lds_wait(C_WOF, 4)
    wo_stage(1, SX, 1)
    A(f"""s_lshl_b32 s43, s4, 15
s_lshl_b32 s44, s40, 13
s_add_u32 s43, s43, s44
s_add_u32 s43, s43, {O_OFF}
s_add_u32 s47, s43, 4096
v_add_u32 v7, {OST}, v8
v_and_b32 v14, 31, v0
v_mul_u32_u24 v2, 1792, v14
v_lshl_add_u32 v2, v15, 4, v2
s_mul_i32 s41, s4, {32*1792}
s_lshl_b32 s42, s5, 8
s_add_u32 s41, s41, s42
s_add_u32 s41, s41, s45
s_add_u32 s41, s41, 896
s_and_b32 s42, s2, {OPT["ro"]-1}
s_lshl_b32 s42, s42, 7
s_add_u32 s46, s46, s42
v_and_b32 v9, 15, v0
v_lshlrev_b32 v9, 2, v9""")
    def opoll():
        A(f"""buffer_load_dword v14, v9, {W}, s46 offen {SC}
s_waitcnt vmcnt(0)
v_cmp_ne_u32 vcc, s{TAG}, v14""")
    acquire(R_O, opoll, OPT["sl1"])
    stamp(11)
    for half in range(2):
        A(f"s_add_u32 m0, s44, {OST+4096*half}")
        for i in range(4):
            A(f"buffer_load_dwordx4 v8, {W}, s{47 if half else 43} offen offset:{1024*i} {SC} lds")
    A("s_waitcnt vmcnt(8)")
    lds_sync(C_WOB, 4)
    wo_frags(1)
    A("s_waitcnt vmcnt(0)")
    lds_sync(C_OST, 4)
    stampw(12)
    def rd(n): A(f"ds_read_b128 {vr(OB+4*(n%NB),4)}, v7 offset:{1024*n}")
    for n in range(NB-1): rd(n)
    for n in range(32):
        if n + NB - 1 < 32: rd(n + NB - 1)
        left = min(31, n+NB-1) - n
        A(f"s_waitcnt lgkmcnt({left})\n{MFMA} {vr(BACC,16)}, {vr(WF+4*n,4)}, {vr(OB+4*(n%NB),4)}, {vr(BACC,16) if n else 0}")
    A(f"""s_lshl_b32 s42, s5, 2
s_add_u32 s42, s42, s40
s_cmp_ge_u32 s42, 14
s_cbranch_scc1 {END}""")
    for i in range(8): A(f"v_cvt_pk_bf16_f32 v{64+i}, v{BACC+2*i}, v{BACC+2*i+1}")
    A(f"""buffer_store_dwordx4 v[64:67], v2, {sr(SO,4)}, s41 offen
buffer_store_dwordx4 v[68:71], v2, {sr(SO,4)}, s41 offen offset:32
s_branch {END}""")

def helper():
    SA, SB, SO, SWO = 28, 32, 32, 56
    T, AC2, WA, WB, Y = 16, 48, 64, 72, 80
    LNOA2, LNY, LNY2, LP2 = "L_noa2", A.lab("nyq"), A.lab("nyq"), A.lab("pub2")
    A(f"{HELP2}:")
    if OPT["x"] >= 4:
        lds_add(C_WOA); A(f"s_branch {END}")
    LNW = A.lab("now")
    A(f"""s_lshr_b32 s5, s2, 3
v_lshrrev_b32 v8, 3, v0
v_and_b32 v9, 4, v8
v_bfe_u32 v10, v8, 1, 1
v_or_b32 v9, v9, v10
v_and_b32 v8, 1, v8
v_lshl_or_b32 v9, v8, 1, v9     ; s2 mod 8 = 4*(p>>1) + 2h + (p&1)
v_mul_u32_u24 v1, {T_ROW}, v9
v_and_b32 v8, 7, v0
v_lshl_add_u32 v1, v8, 4, v1    ; T offset
v_lshrrev_b32 v8, 3, v14        ; u1 local
v_and_b32 v9, 7, v14            ; k local
v_lshl_add_u32 v2, v15, 6, v8
v_mul_u32_u24 v2, 450, v2
v_lshl_add_u32 v2, v9, 1, v2    ; W offset
v_mul_u32_u24 v3, {2*T2_ROW}, v15
v_lshl_add_u32 v3, v9, 4, v3
v_lshl_add_u32 v3, v8, 2, v3    ; T2 offset
s_lshl_b32 s41, s5, 10
s_lshl_b32 s42, s4, 7
s_add_u32 s41, s41, s42
s_add_u32 s41, s41, {T_OFF}
s_mul_i32 s42, s40, {16*T_ROW}
s_add_u32 s41, s41, s42
s_mul_i32 s42, s4, {4*450}
s_mul_i32 s43, s40, {512*450}
s_add_u32 s42, s42, s43
s_lshl_b32 s43, s5, 4
s_add_u32 s42, s42, s43""")
    for i in range(16): A(f"v_mov_b32 v{WA+i}, 0")
    wo_setup(4, SWO)
    A(f"s_cmp_ge_u32 s5, 29\ns_cbranch_scc1 {LNW}")
    srd(SA, P_WR, W_BYTES); srd(SB, P_WI, W_BYTES)
    A(f"s_cmp_lg_u32 s5, 28\ns_cbranch_scc1 {LNY}")
    srd(SA, P_WI, W_BYTES); srd(SB, P_WR, W_BYTES)
    A(f"{LNY}:")
    lds_wait(C_P1, 4, 1)
    def wloads(pace=0):
        for j in range(8):
            if pace: A(f"s_sleep {pace}")
            A(f"""s_add_u32 s43, s42, {32*(4*(j>>1)+(j&1))*450}
buffer_load_short_d16_hi v{WA+j}, v2, {sr(SA,4)}, s43 offen
buffer_load_short_d16_hi v{WB+j}, v2, {sr(SB,4)}, s43 offen""")
    if OPT["wl"] == 0: wloads()
    A(f"{LNW}:")
    for g in (1, 2, 3):
        if g not in (OPT['pre'], OPT['drain']): GENS[g]()
    stamp(11)
    if OPT["x"] == -8: A(f"s_branch {LNOA2}")
    A(f"s_cmp_ge_u32 s5, 29\ns_cbranch_scc1 {LNOA2}")
    if OPT["g2"]: lds_wait(C_G2, 4, 2)
    if OPT["wl"]: wloads(OPT["wl"])
    A(f"s_setprio {OPT['hp']}")
    A(f"""s_mul_i32 s44, s5, 43
s_lshr_b32 s44, s44, 8          ; g5
s_lshl_b32 s45, s44, 7
s_and_b32 s46, s2, {OPT["r1"]-1}
s_lshl_b32 s46, s46, 11
s_add_u32 s46, s46, {F1_OFF + 11*128}
v_and_b32 v9, 15, v0
v_lshlrev_b32 v9, 2, v9
v_add_u32 v9, s45, v9
v_mov_b32 v10, 0
v_mov_b32_dpp v9, v10 {HI}""")
    def a1poll():
        A(f"""buffer_load_dword v10, v9, {W}, s46 offen {SC}
s_waitcnt vmcnt(0)
v_cmp_ne_u32 vcc, s{TAG}, v10""")
    acquire(R_A1, a1poll, OPT["sl2"], 2)
    stamp(6)
    A(f"""s_lshl_b32 s43, s40, 11
s_add_u32 m0, s43, {TX}
s_add_u32 s47, s41, {8*T_ROW - 1024}
buffer_load_dwordx4 v1, {W}, s41 offen {SC} lds
buffer_load_dwordx4 v1, {W}, s47 offen offset:1024 {SC} lds
v_lshlrev_b32 v8, 4, v0
v_add_u32 v8, {EX}, v8
v_add_u32 v9, s43, v8
v_lshlrev_b32 v1, 2, v0
v_add_u32 v1, {TX}, v1
s_waitcnt vmcnt(2)
s_cmp_lg_u32 s5, 28
s_cbranch_scc1 {LNY2}""")
    for j in range(8): A(f"v_xor_b32 v{WA+j}, 0x80000000, v{WA+j}")
    A(f"{LNY2}:\ns_waitcnt vmcnt(0)")
    lds_sync(C_T, 4, 1)
    for m in range(0, 28, 2): A(f"ds_read2st64_b32 {vr(T+m,2)}, v1 offset0:{m} offset1:{m+1}")
    for f in range(8):
        if f == 1:
            for m in range(28, 32, 2): A(f"ds_read2st64_b32 {vr(T+m,2)}, v1 offset0:{m} offset1:{m+1}")
        A(f"s_waitcnt lgkmcnt({12 if f == 0 else 14-2*f})\n{MFMA} {vr(AC2,16)}, {vr(C+4*f,4)}, {vr(T+4*f,4)}, {vr(AC2,16) if f else 0}")
    for j in range(8):
        xr, xi = AC2+2*j, AC2+2*j+1
        A(f"""v_mul_f32 v10, v{xr}, v{WA+j}
v_mul_f32 v11, v{xr}, v{WB+j}
v_fma_f32 v10, -v{xi}, v{WB+j}, v10
v_fmac_f32 v11, v{xi}, v{WA+j}
v_cvt_pk_bf16_f32 v{Y+j}, v11, v10""")
    A(f"ds_write_b128 v9, {vr(Y,4)}\nds_write_b128 v9, {vr(Y+4,4)} offset:1024")
    lds_sync(C_EX, 4, 1)
    for f in range(8): A(f"ds_read_b128 {vr(T+4*f,4)}, v8 offset:{1024*f}")
    A(f"""s_mul_i32 s41, s40, {16*T2_ROW}
s_mul_i32 s42, s4, {T2_Q}
s_add_u32 s41, s41, s42
s_lshl_b32 s42, s5, 7
s_add_u32 s41, s41, s42
s_add_u32 s41, s41, {T2_OFF}""")
    for f in range(8):
        A(f"s_waitcnt lgkmcnt({7-f})\n{MFMA} {vr(AC2,16)}, {vr(C+4*f,4)}, {vr(T+4*f,4)}, {vr(AC2,16) if f else 0}")
    for j in range(8):
        A(f"""v_cvt_pk_bf16_f32 v{Y+j}, v{AC2+2*j+1}, v{AC2+2*j}
s_add_u32 s43, s41, {(4*(j>>1)+(j&1))*T2_ROW}
buffer_store_dword v{Y+j}, v3, {W}, s43 offen {SC}""")
    stamp(7)
    arrive(C_A2, LP2)
    A(f"""s_lshl_b32 s41, s44, 2
s_lshr_b32 s42, s4, 1
s_add_u32 s41, s41, s42
s_lshl_b32 s41, s41, 7
s_add_u32 s41, s41, {AT_OFF}
s_cmp_eq_u32 s44, 4
s_cselect_b32 s42, 9, 11
v_mov_b32 v12, 0
v_mov_b32 v13, 1
s_mov_b64 exec, 1
buffer_atomic_add v13, v12, {W}, s41 offen sc0 sc1
s_mov_b64 exec, -1
s_waitcnt vmcnt(0)
v_readfirstlane_b32 s60, v13
s_cmp_lg_u32 s60, s42
s_cbranch_scc1 {LP2}
v_mov_b32 v13, 1
s_mov_b64 exec, 1
s_mov_b32 s41, {AT_OFF + 20*128}
buffer_atomic_add v13, v12, {W}, s41 offen sc0 sc1
s_mov_b64 exec, -1
s_waitcnt vmcnt(0)
v_readfirstlane_b32 s60, v13
s_cmp_lg_u32 s60, 19
s_cbranch_scc1 {LP2}
s_mov_b32 s41, {F2_OFF}""")
    flagstore("s41", 8, 128)
    assert EPOCH_OFF == 0
    flagstore("0", 1, 0)
    A(f"{LP2}:")
    A(f"{LNOA2}:")
    lds_wait(C_G2, 4, 4)
    A(f"s_setprio {OPT['hp']}")
    wo_stage(4, SWO, 0, OPT['wos'])
    A("s_waitcnt vmcnt(0)")
    lds_add(C_WOA)
    TA, NY, AC3, ZB, AC4 = 16, 48, 64, 16, 112
    A(f"""v_and_b32 v8, 15, v14
v_lshrrev_b32 v9, 4, v14
v_lshl_or_b32 v8, v8, 1, v9
v_mul_u32_u24 v2, {T2_Q}, v15
v_lshl_add_u32 v1, v8, 4, v2    ; T2 offset
v_add_u32 v2, {224*16}, v2
s_mul_i32 s41, s50, {T2_ROW}
s_add_u32 s41, s41, {T2_OFF}
s_lshl_b32 s42, s40, 9
s_add_u32 s42, s42, s41
s_and_b32 s46, s2, 7
s_lshl_b32 s46, s46, 7
s_add_u32 s46, s46, {F2_OFF}
v_mov_b32 v9, 0""")
    srd(SO, P_OUT, OUT_BYTES)
    def a2poll():
        A(f"""buffer_load_dword v10, v9, {W}, s46 offen {SC}
s_waitcnt vmcnt(0)
v_cmp_ne_u32 vcc, s{TAG}, v10""")
    if OPT["x"] == -9: A(f"s_branch {END}")
    if OPT["x"] != -8: acquire(R_A2, a2poll, OPT["sl3"], OPT["sl3"])
    stamp(8)
    for tt in range(2):
        for f in range(4):
            A(f"s_add_u32 s43, s42, {2*f*T2_Q + 2048*tt}\nbuffer_load_dwordx4 {vr(TA+16*tt+4*f,4)}, v1, {W}, s43 offen {SC}")
    for f in range(4):
        A(f"s_add_u32 s43, s41, {2*f*T2_Q}\nbuffer_load_dwordx4 {vr(NY+4*f,4)}, v2, {W}, s43 offen {SC}")
    A(f"""v_lshlrev_b32 v5, 4, v0
s_lshl_b32 s43, s40, 11
s_add_u32 s43, s43, {ZOFF}
v_add_u32 v6, s43, v5
s_lshl_b32 s43, s52, 14
s_add_u32 s43, s43, {ZOFF}
v_add_u32 v5, s43, v5
s_lshr_b32 s46, s40, 1
s_lshl_b32 s46, s46, 3
v_add_u32 v7, s46, v15          ; 8p + h
v_and_b32 v9, 7, v14
v_xor_b32 v7, v7, v9
v_lshlrev_b32 v7, 4, v7
v_lshl_or_b32 v7, v14, 8, v7
s_lshl_b32 s46, s52, 13
s_add_u32 s46, s46, {YOFF}
v_add_u32 v7, s46, v7
v_lshrrev_b32 v8, 3, v0
s_lshl_b32 s46, s40, 3
v_add_u32 v8, s46, v8           ; row (s1)
v_and_b32 v9, 7, v0             ; piece
v_lshlrev_b32 v10, 1, v9
v_and_b32 v11, 7, v8
v_xor_b32 v10, v10, v11
v_lshlrev_b32 v10, 4, v10
v_lshl_or_b32 v10, v8, 8, v10
v_add_u32 v10, {YOFF}, v10
v_xor_b32 v11, 16, v10
v_mul_u32_u24 v8, {64*1792}, v8
v_lshl_add_u32 v8, v9, 4, v8
s_mul_i32 s41, s50, 1792
s_lshl_b32 s42, s51, 7
s_add_u32 s41, s41, s42
s_cmp_eq_u32 s51, 3
s_cselect_b32 s42, 4, 8
v_cmp_gt_u32 s[48:49], s42, v9""")
    if OPT["go"] > 0: lds_wait(C_GO, 4, OPT["slg"])
    A(f"s_setprio {OPT['a3p']}")
    stamp(10)
    LN3 = A.lab("a3ny")
    A("s_waitcnt vmcnt(0)")
    for tt in range(2):
        for f in range(4):
            A(f"{MFMA} {vr(AC3+32*tt,16)}, {vr(TA+16*tt+4*f,4)}, {vr(ER+4*f,4)}, {vr(AC3+32*tt,16) if f else 0}")
    A(f"s_cmp_lg_u32 s40, 0\ns_cbranch_scc1 {LN3}\ns_mov_b32 exec_lo, 1\ns_mov_b32 exec_hi, 1")
    for i in range(16): A(f"v_mov_b32 v{TA+i}, v{NY+i}")
    A(f"s_mov_b64 exec, -1\n{LN3}:\ns_nop 1")
    for tt in range(2):
        for f in range(4):
            A(f"{MFMA} {vr(AC3+32*tt+16,16)}, {vr(TA+16*tt+4*f,4)}, {vr(EI+4*f,4)}, {vr(AC3+32*tt+16,16) if f else 0}")
    for part in range(2):
        for tt in range(2):
            a = AC3+32*tt+16*part
            d = TA+8*(2*part+tt)
            for i in range(8): A(f"v_cvt_pk_bf16_f32 v{d+i}, v{a+2*i}, v{a+2*i+1}")
            for e in range(2): A(f"ds_write_b128 v6, {vr(d+4*e,4)} offset:{16384*e+8192*tt+1024*part}")
    lds_sync(C_Z, 4, 1)
    for i in range(14): A(f"ds_read_b128 {vr(ZB+4*i,4)}, v5 offset:{1024*i}")
    for i in range(14):
        A(f"s_waitcnt lgkmcnt({13-i})\n{MFMA} {vr(AC4,16)}, {vr(G+4*i,4)}, {vr(ZB+4*i,4)}, {vr(AC4,16) if i else 0}")
    for g in range(4):
        A(f"v_xor_b32 v9, {32*g}, v7\nds_write_b128 v9, {vr(AC4+4*g,4)}")
    lds_sync(C_Y, 4, 1)
    A(f"""ds_read_b128 v[16:19], v10
ds_read_b128 v[20:23], v11
ds_read_b128 v[24:27], v10 offset:8192
ds_read_b128 v[28:31], v11 offset:8192
s_waitcnt lgkmcnt(0)""")
    for i in range(8): A(f"v_add_f32 v{32+i}, v{16+i}, v{24+i}\nv_sub_f32 v{40+i}, v{16+i}, v{24+i}")
    for i in range(8): A(f"v_cvt_pk_bf16_f32 v{48+i}, v{32+2*i}, v{33+2*i}")
    A(f"""s_mov_b64 exec, s[48:49]
buffer_store_dwordx4 v[48:51], v8, {sr(SO,4)}, s41 offen
buffer_store_dwordx4 v[52:55], v8, {sr(SO,4)}, s41 offen offset:448
s_mov_b64 exec, -1
s_branch {END}""")

def fallback():
    L1, L2 = A.lab("fb1"), A.lab("fb2")
    A(f"""{LFB}:
v_mov_b32_dpp v{Q+24+6}, v7 {HI}
v_mov_b32 v12, 0xff800000
s_mov_b32 s43, {QK_OFF+QK_PART}
{L1}:
buffer_load_dwordx4 {vr(kb(0,0),4)}, v1, {W}, s43 offen {SC}
buffer_load_dwordx4 {vr(kb(0,1),4)}, v2, {W}, s43 offen {SC}
s_waitcnt vmcnt(0)
{MFMA} {vr(S,16)}, {vr(kb(0,0),4)}, {q(3,0)}, 0
{MFMA} {vr(S,16)}, {vr(kb(0,1),4)}, {q(3,1)}, {vr(S,16)}""")
    for i in range(0, 16, 2): A(f"v_max3_f32 v12, v12, v{S+i}, v{S+i+1}")
    A(f"""s_add_u32 s43, s43, {QK_TILE}
s_cmp_lt_u32 s43, {QK_OFF+2*QK_PART}
s_cbranch_scc1 {L1}
v_mov_b32 v13, v12
v_mov_b32 v14, v12
v_permlane32_swap_b32 v13, v14
v_max_f32 v12, v13, v14""")
    for i in range(16): A(f"v_mov_b32 v{OK+i}, 0")
    A(f"""s_mov_b32 s43, {QK_OFF+QK_PART}
s_mov_b32 s44, {V_OFF}
{L2}:""")
    for x in tile_loads(0): A(x)
    A(f"""s_waitcnt vmcnt(0)
{MFMA} {vr(S,16)}, {vr(kb(0,0),4)}, {q(3,0)}, 0
{MFMA} {vr(S,16)}, {vr(kb(0,1),4)}, {q(3,1)}, {vr(S,16)}""")
    for i in range(16): A(f"v_sub_f32 v{S+i}, v{S+i}, v12")
    for i in range(16): A(f"v_exp_f32 v{S+i}, v{S+i}")
    A(f"""{SMF} {vr(OK,16)}, {vr(kb(0,2),4)}, {vr(S,8)}, v5
{SMF} {vr(OK,16)}, {vr(kb(0,3),4)}, {vr(S+8,8)}, v5
s_nop 15
s_add_u32 s43, s43, {QK_TILE}
s_add_u32 s44, s44, 2048
s_cmp_lt_u32 s43, {QK_OFF+2*QK_PART}
s_cbranch_scc1 {L2}
v_mov_b32 v10, v{OK+12}
v_mov_b32 v11, v{OK+12}
v_permlane32_swap_b32 v10, v11
s_nop 1
s_branch {LN}""")

def finish():
    A(f"{END}:")
    if OPT["probe"]:
        LQ = A.lab("probe")
        stamp(13)
        A(f"""s_cmp_lg_u32 s2, {OPT["pwg"]}
s_cbranch_scc1 {FIN}
s_cmp_lg_u32 s3, {OPT["pwave"]}
s_cbranch_scc1 {FIN}
s_waitcnt lgkmcnt(0)
s_sub_u32 s56, s{64+2*OPT["probe"]}, s66
s_mul_i32 s56, s56, 10
s_add_u32 s56, s56, s90
{LQ}:
s_memrealtime s[58:59]
s_waitcnt lgkmcnt(0)
s_sub_u32 s57, s58, s56
s_cmp_lt_i32 s57, 0
s_cbranch_scc1 {LQ}""")
    elif STAMPS:
        stamp(13)
        A(f"""s_waitcnt vmcnt(0)
s_memtime s[92:93]
s_memrealtime s[94:95]
s_waitcnt lgkmcnt(0)
s_mov_b32 s56, s24
s_mov_b32 s57, s25
s_mov_b32 s58, 0x2000000
s_mov_b32 s59, 0x00020000
s_mov_b64 exec, 1
s_lshl_b32 s60, s2, 3
s_add_u32 s60, s60, s3
s_lshl_b32 s60, s60, 6
s_add_u32 s60, s60, {TS_OFF}
v_mov_b32 v1, 0""")
        for i in range(16):
            A(f"v_mov_b32 v2, s{64+2*i}\nbuffer_store_dword v2, v1, s[56:59], s60 offen offset:{4*i}")
    A(f"{FIN}:\ns_endpgm")

entry(); b1_loader(); a1_dispatch_loader(); a1_gen(); a1_compute(); pub1(); helper()
A(f"{LB1C}:\ns_setprio 2"); main_start()
for i in range(64): A(f"v_mov_b32 v{ACC+i}, 0")
A("s_waitcnt lgkmcnt(0)"); gettag()
gen_pre(); b1_compute()
attention(); fallback(); finish()

HDR = open("cdna_kernels/%s.s.ref" % NAME).read().split("; Override")[0]
txt = HDR + f"; @launch grid=(256,1,1) block=(512,1,1) lds={LDS_BYTES}\n"
txt += '.amdgcn_target "amdgcn-amd-amdhsa--gfx950"\n.text\n' + A.finish()
txt += f""".section .rodata,"a"
.p2align 6
.amdhsa_kernel {K}
  .amdhsa_next_free_vgpr 256
  .amdhsa_next_free_sgpr 96
  .amdhsa_accum_offset 256
  .amdhsa_group_segment_fixed_size 0
  .amdhsa_kernarg_size 72
  .amdhsa_user_sgpr_count 2
  .amdhsa_user_sgpr_kernarg_segment_ptr 1
  .amdhsa_system_sgpr_workgroup_id_x 1
.end_amdhsa_kernel
"""
out = args[0] if args else "cdna_kernels/%s.s" % NAME
open(out, "w").write(txt)
print("wrote", out, len(txt))
```

```python
import math
EPOCH_OFF = 0x0
F1_OFF = 0xB50000
GO_OFF = 0x1000
F2_OFF = 0x6000
AT_OFF = 0x6800
FO_OFF = 0xC50000
QK_TILE = 56*512
Q_OFF = 0x10000
KV_OFF = 0x1D0000
KV_REC = QK_TILE + 32768
T_OFF  = 0x590000
T_ROW = 30*1024
T2_OFF = 0x770000
T2_Q = 232*16
T2_ROW = 8*T2_Q
O_OFF  = 0x950000
WS_USED = 0xCD0000
TS_OFF = 0xE00000
assert Q_OFF + 64*QK_TILE <= KV_OFF and KV_OFF + 64*KV_REC <= T_OFF
X_BYTES = 2048*448*2
W_BYTES = 2048*225*2
WQKV_BYTES = 448*1344*2
WO_BYTES = 448*448*2
OUT_BYTES = 2048*896*2
QSCALE = math.log2(math.e)/math.sqrt(28.0)
```

```python
import sys, struct
from emit import Asm
from layout import *
NAME = "concat_heads__spectral_gfnet__softmax_full_mha__prompt"
OPT = dict(stamps=0, r1=8, pf=1, sl1=1, sl2=8, sl3=40, rot=1, x=0, probe=0, pwave=4, pwg=100, pd=0, wos=2, lp=13, slg=8, g2=0, ro=2, wm=0, tch=0, pda=40)
args = []
for a in sys.argv[1:]:
    if "=" in a: k, v = a.split("="); assert k in OPT, k; OPT[k] = int(v)
    else: args.append(a)
STAMPS = OPT["stamps"]
def f32(x): return "0x%08x" % struct.unpack("<I", struct.pack("<f", x))[0]
def vr(a, n=1): return f"v{a}" if n == 1 else f"v[{a}:{a+n-1}]"
def sr(a, n=1): return f"s{a}" if n == 1 else f"s[{a}:{a+n-1}]"
P_AX, P_WR, P_WI, P_BX, P_WQKV, P_WO, P_OUT, P_DBG, P_WS = 8,10,12,14,16,18,20,22,24
MFMA = "v_mfma_f32_32x32x16_bf16"
SMF = "v_smfmac_f32_32x32x32_bf16"
SC = "sc1"
HI = "quad_perm:[0,1,2,3] row_mask:0xc bank_mask:0xf"
TAGC = 0x9E3779B9
TAG = 62
SWS = 36; W = sr(SWS,4)
SX, SW = 28, 32
SPIN = 200000
WO, OST = 0, 0
QX, EX, TX, WX = 0, 8192, 16384, 24576
MERGE = 114688
ZOFF, YOFF = MERGE, MERGE + 28672
CNT = 162816
LDS_BYTES = 163840
(C_P1, R_KV, C_MERGE, C_OST, R_A1, C_EX, C_A2, R_A2, C_Z, C_Y, C_WOA, C_WOF, C_GO, C_G2, C_Q, C_LF, C_T, C_W, C_X) = [CNT+16*i+12 for i in range(19)]

A = Asm()
def stamp(i):
    if STAMPS: A(f"{'s_memtime' if STAMPS == 2 else 's_memrealtime'} s[{64+2*i}:{65+2*i}]")
def stampw(i):
    if STAMPS: stamp(i); A("s_waitcnt lgkmcnt(0)")
def srd(d, p, nbytes):
    A(f"s_mov_b32 s{d}, s{p}\ns_mov_b32 s{d+1}, s{p+1}\ns_mov_b32 s{d+2}, {nbytes}\ns_mov_b32 s{d+3}, 0x00020000")
def pi32(d, s, t):
    A(f"""v_and_b32 v{d}, 0x13, v{s}
v_and_b32 v{t}, 4, v{s}
v_lshl_or_b32 v{d}, v{t}, 1, v{d}
v_and_b32 v{t}, 8, v{s}
v_lshrrev_b32 v{t}, 1, v{t}
v_or_b32 v{d}, v{d}, v{t}""")
def mod7(d, t):
    A(f"s_mul_i32 s{t}, s{d}, 37\ns_lshr_b32 s{t}, s{t}, 8\ns_mul_i32 s{t}, s{t}, 7\ns_sub_u32 s{d}, s{d}, s{t}")
def lds_add(addr):
    A(f"v_mov_b32 v12, {addr}\nv_mov_b32 v13, 1\ns_mov_b64 exec, 1\nds_add_u32 v12, v13\ns_mov_b64 exec, -1")
def lds_wait(addr, target, sleep=0, setup=True):
    L, L2 = A.lab("lw"), A.lab("lwd")
    if setup: A(f"v_mov_b32 v12, {addr}")
    A(f"""{L}:
ds_read_b32 v13, v12
s_waitcnt lgkmcnt(0)
v_readfirstlane_b32 s60, v13
s_cmp_ge_u32 s60, {target}""")
    if sleep: A(f"s_cbranch_scc1 {L2}\ns_sleep {sleep}\ns_branch {L}\n{L2}:")
    else: A(f"s_cbranch_scc0 {L}")
def lds_sync(addr, target, sleep=0):
    A("s_waitcnt lgkmcnt(0)"); lds_add(addr); lds_wait(addr, target, sleep, False)
def arrive(cnt, skip):
    A(f"""s_waitcnt vmcnt(0)
v_mov_b32 v12, {cnt}
v_mov_b32 v13, 1
s_mov_b64 exec, 1
ds_add_rtn_u32 v13, v12, v13
s_mov_b64 exec, -1
s_waitcnt lgkmcnt(0)
v_readfirstlane_b32 s60, v13
s_cmp_lg_u32 s60, 3
s_cbranch_scc1 {skip}""")
def flagstore(soff, nrep, repstride):
    A(f"""v_mul_u32_u24 v12, {repstride}, v0
v_mov_b32 v13, s{TAG}
s_mov_b64 exec, {(1<<nrep)-1}
buffer_store_dword v13, v12, {W}, {soff} offen {SC}
s_mov_b64 exec, -1""")
def publish(cnt, soff, nrep, repstride):
    L = A.lab("pub")
    arrive(cnt, L); flagstore(f"s{soff}", nrep, repstride); lds_add(C_X); A(f"{L}:")
def acquire(rel, body, sleep, sleep2=1):
    LP, LD, LO, LE = A.lab("poll"), A.lab("pollok"), A.lab("pollw"), A.lab("polle")
    A(f"s_cmp_lg_u32 s40, 0\ns_cbranch_scc1 {LO}\ns_mov_b32 s61, {SPIN}\n{LP}:")
    body()
    A(f"""s_cbranch_vccz {LD}
s_sub_u32 s61, s61, 1
s_cmp_eq_u32 s61, 0
s_cbranch_scc1 {LD}
s_sleep {sleep}
s_branch {LP}
{LD}:""")
    lds_add(rel)
    A(f"s_branch {LE}\n{LO}:")
    lds_wait(rel, 1, sleep2)
    A(f"{LE}:")
def gettag():
    A(f"s_load_dword s{TAG}, s[24:25], {EPOCH_OFF}")
    srd(SWS, P_WS, WS_USED)
def fixtag():
    A(f"s_waitcnt lgkmcnt(0)\ns_add_u32 s{TAG}, s{TAG}, {TAGC}")

FIN, END, ATT, PUB1, HELP2, GEN = "L_fin", "L_end", "L_att", "L_pub1", "L_help2", "L_gen"
LA1, LB1C, LB1G, LA1C, LV, LN, LFB = "L_a1", "L_b1c", "L_b1g", "L_a1c", "L_b1v", "L_norm", "L_fallback"
K = NAME + "_kernel"

def entry():
    A(f".globl {K}\n.p2align 8\n.type {K},@function\n{K}:")
    A(f"""s_cmp_ge_u32 s2, 256
s_cbranch_scc1 {FIN}
s_load_dwordx16 s[8:23], s[0:1], 0
s_load_dwordx2 s[24:25], s[0:1], 64
v_lshrrev_b32 v1, 6, v0
v_readfirstlane_b32 s3, v1
v_and_b32 v0, 63, v0""")
    if STAMPS:
        for i in range(2, 14): A(f"s_mov_b32 s{64+2*i}, 0")
        A("s_memtime s[64:65]\ns_memrealtime s[66:67]")
    if OPT["pf"]:
        L = A.lab("pf"); LP = A.lab("pc")
        A(f"""s_cmp_lg_u32 s3, 3
s_cbranch_scc1 {L}
s_getpc_b64 s[56:57]
{LP}:
s_bfe_u32 s58, s2, 0x20003
s_lshl_b32 s58, s58, 13
v_lshlrev_b32 v1, 7, v0
v_add_u32 v1, s58, v1
v_min_u32 v1, {FIN}-{LP}, v1
global_load_dword v255, v1, s[56:57]
{L}:""")
    A(f"""s_and_b32 s4, s2, 7
s_lshr_b32 s5, s2, 3
s_lshl_b32 s6, s4, 1
s_and_b32 s7, s5, 1
s_or_b32 s6, s6, s7
s_lshr_b32 s7, s5, 1
s_and_b32 s40, s3, 3
s_cmp_ge_u32 s7, 11
s_cbranch_scc1 {LA1}
s_cmp_lt_u32 s3, 4
s_cbranch_scc1 {LB1C}""")

def xaddr(rs):
    A(f"""v_lshrrev_b32 v1, 3, v0
v_and_b32 v14, 7, v0
v_lshrrev_b32 v15, 4, v0
v_xor_b32 v14, v14, v15
v_lshlrev_b32 v14, 4, v14
v_xor_b32 v16, 64, v14
v_mul_u32_u24 v1, {rs}, v1
v_add_u32 v2, v1, v14
v_add_u32 v3, v1, v16
v_add_u32 v3, {8*rs-1024}, v3
v_add_u32 v4, {2*(8*rs-1024)}, v2
v_add_u32 v5, {2*(8*rs-1024)}, v3""")
def b1_loader():
    A("s_setprio 3\ns_add_u32 s26, s6, s7")
    mod7(26, 27)
    if not OPT["rot"]: A("s_mov_b32 s26, 0")
    xaddr(896)
    A(f"""v_and_b32 v14, 15, v0
v_lshlrev_b32 v16, 2, v15
v_xor_b32 v14, v14, v16
v_lshlrev_b32 v14, 4, v14
v_mul_u32_u24 v15, 2688, v15
v_add_u32 v6, v14, v15
v_add_u32 v7, {4*2688-1024}, v6
v_add_u32 v8, {2*(4*2688-1024)}, v6
v_add_u32 v9, {3*(4*2688-1024)}, v6
s_lshl_b32 s41, s6, 2
s_add_u32 s47, s41, s40
s_mul_i32 s41, s47, {32*896}     ; x base
s_mul_i32 s42, s40, {16*2688}
s_lshl_b32 s43, s7, 8
s_add_u32 s42, s42, s43          ; w base
s_lshl_b32 s44, s40, 12
s_waitcnt lgkmcnt(0)""")
    srd(SX, P_BX, X_BYTES); srd(SW, P_WQKV, WQKV_BYTES)
    def issue():
        A(f"""s_lshl_b32 s45, s26, 7
s_add_u32 s45, s45, s41
s_mul_i32 s46, s26, {64*2688}
s_add_u32 s46, s46, s42
s_mov_b32 m0, s44""")
        for i in range(4): A(f"buffer_load_dwordx4 v{2+i}, {sr(SX,4)}, s45 offen offset:{1024*i} lds")
        A(f"s_add_u32 m0, s44, 16384")
        for i in range(4): A(f"buffer_load_dwordx4 v{6+i}, {sr(SW,4)}, s46 offen offset:{1024*i} lds")
        A("""s_add_u32 s26, s26, 1
s_cmp_eq_u32 s26, 7
s_cselect_b32 s26, 0, s26
s_add_u32 s44, s44, 0x8000
s_and_b32 s44, s44, 0x1ffff""")
    LL = A.lab("b1ld")
    issue(); gettag()
    A(f"s_mov_b32 s48, 6\n{LL}:")
    issue()
    A("s_waitcnt vmcnt(8)")
    if STAMPS:
        LX = A.lab("st"); A(f"s_cmp_lg_u32 s48, 6\ns_cbranch_scc1 {LX}"); stamp(2); A(f"{LX}:")
    A(f"""s_barrier
s_sub_u32 s48, s48, 1
s_cmp_lg_u32 s48, 0
s_cbranch_scc1 {LL}""")
    fixtag()
    A("s_waitcnt vmcnt(0)")
    stamp(3)
    A(f"s_barrier\ns_branch {ATT}")

def a1_dispatch_loader():
    A(f"""{LA1}:
s_sub_u32 s5, s7, 11           ; g5
s_mul_i32 s26, s5, 3
s_lshr_b32 s26, s26, 1         ; e0 in 0,1,3,4,6""")
    if not OPT["rot"]: A("s_mov_b32 s26, 0")
    A(f"s_cmp_lt_u32 s3, 4\ns_cbranch_scc1 {LA1C}\ns_setprio 3")
    xaddr(64*896)
    A(f"""s_lshl_b32 s41, s6, 2
s_add_u32 s41, s41, s40
s_mul_i32 s41, s41, 896
s_lshl_b32 s44, s40, 12
s_lshl_b32 s26, s26, 2
s_add_u32 s26, s26, 3""")
    mod7(26, 27)
    A("s_waitcnt lgkmcnt(0)")
    srd(SX, P_AX, X_BYTES)
    gettag()
    LL, LS = A.lab("a1ld"), A.lab("a1lds")
    A(f"""s_mov_b32 s48, 0
{LL}:
s_lshl_b32 s45, s26, 7
s_add_u32 s45, s45, s41
s_lshl_b32 s46, s26, 14
s_add_u32 m0, s44, s46""")
    for i in range(4): A(f"buffer_load_dwordx4 v{2+i}, {sr(SX,4)}, s45 offen offset:{1024*i} lds")
    A(f"""s_add_u32 s26, s26, 4
s_sub_u32 s27, s26, 7
s_cmp_ge_u32 s26, 7
s_cselect_b32 s26, s27, s26
s_add_u32 s48, s48, 1
s_cmp_lt_u32 s48, 4
s_cbranch_scc1 {LL}
s_waitcnt vmcnt(8)
s_barrier
s_cmp_lt_u32 s48, 7
s_cbranch_scc1 {LL}""")
    fixtag()
    if OPT["tch"]:
        LT = A.lab("tch")
        srd(SW, P_WR, W_BYTES)
        A(f"""s_lshr_b32 s45, s2, 3
s_sub_u32 s45, s45, 22
s_lshl_b32 s45, s45, 2
s_add_u32 s45, s45, s40         ; 0..39
s_bitcmp0_b32 s45, 0
s_cbranch_scc1 {LT}""")
        srd(SW, P_WI, W_BYTES)
        A(f"""{LT}:
s_lshr_b32 s45, s45, 1
s_mul_i32 s45, s45, {128*450}
s_mul_i32 s46, s4, {4*450}
s_add_u32 s45, s45, s46
s_and_b32 s45, s45, 0xffffff80
v_lshrrev_b32 v12, 4, v0
v_mul_u32_u24 v12, {32*450}, v12
v_and_b32 v13, 15, v0
v_lshl_add_u32 v12, v13, 7, v12
buffer_load_dword v255, v12, {sr(SW,4)}, s45 offen
s_waitcnt vmcnt(5)
s_barrier
s_waitcnt vmcnt(1)""")
    else:
        A("s_waitcnt vmcnt(4)\ns_barrier\ns_waitcnt vmcnt(0)")
    stamp(3)
    A(f"s_barrier\ns_branch {ATT}")

def main_start():
    A(f"""v_lshlrev_b32 v1, 4, v0
v_add_u32 v1, {CNT+12}, v1
v_mov_b32 v2, 0
ds_write_b32 v1, v2""")

C, ER, EI, G, GT = 128, 160, 176, 192, 16
def gen_common():
    A(f"""v_and_b32 v14, 31, v0
v_lshrrev_b32 v15, 5, v0
s_lshr_b32 s50, s2, 5
s_lshl_b32 s50, s50, 3
s_or_b32 s50, s50, s4
s_bfe_u32 s51, s2, 0x20003       ; d quarter
s_and_b32 s52, s40, 1            ; parity e""")
def rot_gen(n, nblk, step, base, mult, dmult, out, scale=None):
    c, sn, t = GT, GT+8, GT+16
    A(f"v_mul_f32 v11, {f32(float(dmult))}, v{step}")
    for j in range(n): A(f"v_fmamk_f32 v{t+j}, v{step}, {f32(float(mult[j]))}, v{base}")
    A("v_cos_f32 v10, v11\nv_sin_f32 v11, v11")
    for j in range(n): A(f"v_cos_f32 v{c+j}, v{t+j}\nv_sin_f32 v{sn+j}, v{t+j}")
    if scale is not None:
        for j in range(n): A(f"v_mul_f32 v{c+j}, {f32(scale)}, v{c+j}\nv_mul_f32 v{sn+j}, {f32(scale)}, v{sn+j}")
    for b in range(nblk):
        out(b)
        if b + 1 < nblk:
            for j in range(0, n, 2): A(f"v_pk_mul_f32 {vr(t+j,2)}, {vr(sn+j,2)}, v[10:11] op_sel:[0,1] op_sel_hi:[1,1]")
            for j in range(0, n, 2): A(f"v_pk_mul_f32 {vr(sn+j,2)}, {vr(sn+j,2)}, v[10:11] op_sel_hi:[1,0]")
            for j in range(0, n, 2): A(f"v_pk_fma_f32 {vr(sn+j,2)}, {vr(c+j,2)}, v[10:11], {vr(sn+j,2)} op_sel:[0,1,0] op_sel_hi:[1,1,1]")
            for j in range(0, n, 2): A(f"v_pk_fma_f32 {vr(c+j,2)}, {vr(c+j,2)}, v[10:11], {vr(t+j,2)} op_sel_hi:[1,0,1] neg_lo:[0,0,1] neg_hi:[0,0,1]")
def gen_c():
    A(f"""v_lshrrev_b32 v8, 1, v14
s_lshl_b32 s43, s40, 4
v_add_u32 v8, s43, v8
v_cvt_f32_u32 v8, v8
v_mul_f32 v8, {f32(1/64)}, v8    ; step = u2/64
v_and_b32 v9, 1, v14
v_cvt_f32_u32 v9, v9
v_mul_f32 v9, {f32(0.25)}, v9
v_lshlrev_b32 v10, 1, v15
v_cvt_f32_u32 v10, v10
v_fma_f32 v9, v8, v10, v9        ; base""")
    def out(f):
        for p in range(4): A(f"v_cvt_pk_bf16_f32 v{C+4*f+p}, v{GT+p}, v{GT+8+p}")
    rot_gen(4, 8, 8, 9, [0,1,4,5], 8, out)
def gen_e():
    A(f"""v_lshlrev_b32 v8, 6, v14
v_add_u32 v8, s50, v8
v_cvt_f32_u32 v8, v8
v_mul_f32 v8, {f32(1/2048)}, v8
v_lshlrev_b32 v9, 2, v15
v_cvt_f32_u32 v9, v9
v_mul_f32 v9, v8, v9""")
    def out(f):
        for p in range(4): A(f"v_cvt_pk_bf16_f32 v{ER+4*f+p}, v{GT+p}, -v{GT+8+p}")
        for p in range(4): A(f"v_cvt_pk_bf16_f32 v{EI+4*f+p}, v{GT+8+p}, v{GT+p}")
    rot_gen(4, 4, 8, 9, [0,1,2,3], 8, out, 2.0/(2048*448))
def gen_g():
    A(f"""s_lshr_b32 s44, s40, 1
s_lshl_b32 s45, s51, 1
s_add_u32 s44, s44, s45         ; d tile
s_lshl_b32 s46, s44, 5
v_add_u32 v8, s46, v14          ; d
v_cvt_f32_u32 v8, v8
v_mul_f32 v8, {f32(1/448)}, v8
v_lshlrev_b32 v9, 3, v15
v_add_u32 v9, s52, v9
v_cmp_eq_u32 vcc, 0, v9
v_cvt_f32_u32 v9, v9
v_mul_f32 v9, v8, v9""")
    def out(t):
        for j in range(4): A(f"v_cvt_pk_bf16_f32 v{G+8*t+j}, v{GT+2*j}, v{GT+2*j+1}")
        for j in range(4): A(f"v_cvt_pk_bf16_f32 v{G+8*t+4+j}, -v{GT+8+2*j}, -v{GT+9+2*j}")
    rot_gen(8, 7, 8, 9, [16*(j>>2)+2*(j&3) for j in range(8)], 32, out)
    A(f"""v_and_b32 v8, 0xffff0000, v{G}
v_or_b32 v8, 0x3f00, v8
v_and_b32 v10, 1, v14
v_lshlrev_b32 v10, 15, v10
v_cndmask_b32 v{G}, v{G}, v8, vcc
v_and_b32 v8, 0xffff, v8
v_and_b32 v9, 0xffff0000, v{G+4}
v_or3_b32 v9, v9, v10, v8
v_cndmask_b32 v{G+4}, v{G+4}, v9, vcc""")
def gen_pre():
    gen_common()
    A(f"{GEN}:")
    gen_c(); gen_e()
    A(f"s_cmp_ge_u32 s7, 11\ns_cbranch_scc1 {HELP2}")

ACC = 64
def acc(a, b): return ACC + 32*a + 16*b
def b1_body(vtype):
    if vtype: pi32(48, 14, 49)
    else: A("v_mov_b32 v48, v14")
    A(f"""v_lshrrev_b32 v49, 1, v48
v_and_b32 v49, 7, v49
v_xor_b32 v49, v49, v15
v_lshlrev_b32 v49, 4, v49
v_lshl_or_b32 v50, v48, 7, v49
s_lshl_b32 s43, s41, 13
v_add_u32 v52, s43, v50
v_xor_b32 v53, 32, v52
v_xor_b32 v54, 64, v52
v_xor_b32 v55, 96, v52""")
    A(f"""v_bfe_u32 v48, v0, 2, 2        ; rr
v_and_b32 v49, 3, v0           ; cc""")
    if not vtype:
        A("""v_lshrrev_b32 v50, 1, v49
v_and_b32 v49, 1, v49
v_lshl_or_b32 v49, v49, 1, v50 ; sigma(cc)""")
    A(f"""v_bfe_u32 v50, v0, 4, 1        ; colhalf
v_lshlrev_b32 v50, 5, v50
v_lshl_or_b32 v50, v49, 3, v50
s_lshl_b32 s43, s42, 7
v_or_b32 v50, s43, v50
v_lshlrev_b32 v51, 6, v48
v_xor_b32 v50, v50, v51
v_lshl_add_u32 v51, v15, 3, v48 ; 8h+rr
v_lshl_or_b32 v56, v51, 8, v50
v_add_u32 v56, 16384, v56
v_xor_b32 v57, 64, v56""")
    A(f"""s_lshl_b32 s46, s6, 2
s_lshl_b32 s47, s41, 1
s_add_u32 s46, s46, s47
s_lshl_b32 s47, s7, 2
s_lshl_b32 s48, s42, 1
s_add_u32 s47, s47, s48""")
    if not vtype:
        A(f"""s_lshl_b32 s48, s47, 11
v_lshlrev_b32 v2, 4, v0
s_cmp_ge_u32 s47, 14
s_cselect_b32 s49, {KV_REC - QK_TILE}, 0
s_cselect_b32 s43, {KV_OFF - Q_OFF - 14*2048}, 0
s_cselect_b32 s54, 1.0, {f32(QSCALE)}
s_mov_b32 s55, s54
s_add_u32 s49, s49, {QK_TILE}
s_mul_i32 s46, s46, s49
s_add_u32 s46, s46, s48
s_add_u32 s46, s46, s43
s_add_u32 s46, s46, {Q_OFF}
s_add_u32 s49, s46, s49""")
    else:
        A(f"""s_sub_u32 s45, s7, 7
s_lshl_b32 s45, s45, 7
s_add_u32 s45, s45, 27
s_mul_i32 s45, s45, 2341
s_lshr_b32 s45, s45, 16
v_lshrrev_b32 v10, 3, v0
v_cmp_gt_u32 s[56:57], 5, v10
v_add_u32 v10, s45, v10
v_bfe_u32 v11, v0, 1, 2
v_lshlrev_b32 v11, 9, v11
v_lshl_or_b32 v11, v10, 11, v11
v_cmp_gt_u32 vcc, 16, v10
v_and_b32 v4, 1, v0
v_lshl_or_b32 v4, v4, 6, v11
s_and_b64 s[56:57], s[56:57], vcc
s_lshl_b32 s54, s6, 2
s_add_u32 s54, s54, s40
s_mul_i32 s54, s54, {KV_REC}
s_add_u32 s54, s54, {KV_OFF + QK_TILE + 26*16}
v_mov_b32 v58, 0x3f803f80
v_mov_b32 v59, 0x3f803f80
v_mov_b32 v60, 0x3f803f80
v_mov_b32 v61, 0x3f803f80
s_sub_u32 s47, s47, 28
s_mul_i32 s46, s46, {KV_REC}
s_add_u32 s46, s46, {KV_OFF + QK_TILE}
s_add_u32 s49, s46, {KV_REC}
s_lshl_b32 s48, s47, 5""")
        for b in range(2):
            A(f"""v_add_u32 v48, s48, v14
v_add_u32 v48, {32*b}, v48
v_mul_u32_u24 v49, 2341, v48
v_lshrrev_b32 v49, 16, v49     ; head
v_mul_u32_u24 v50, 28, v49
v_sub_u32 v48, v48, v50        ; d
v_add_u32 v50, 6, v48
v_lshrrev_b32 v50, 5, v50
v_lshl_add_u32 v48, v50, 1, v48
v_lshlrev_b32 v48, 4, v48
v_lshl_or_b32 v48, v15, 9, v48
v_lshl_or_b32 v{2+b}, v49, 11, v48""")
        A(f"""s_cmp_ge_u32 s47, 14
s_cselect_b32 s46, {WS_USED}, s46
s_cselect_b32 s49, {WS_USED}, s49""")
    SETS = (16, 32, 192, 208)
    def rx(kap, p, a): return f"ds_read_b128 {vr(SETS[p]+4*a,4)}, v{6+kap} offset:{4096*a}"
    def rw(kap, p, b): return [f"ds_read_b64_tr_b16 {vr(SETS[p]+8+4*b+2*u,2)}, v{10+b} offset:{(16*kap+4*u)*256}" for u in range(2)]
    def rdlist(kap, p): return [rx(kap,p,0)] + rw(kap,p,0) + rw(kap,p,1) + [rx(kap,p,1)]
    def setaddr(): return [f"v_add_u32 v{6+i}, s44, v{52+i}" for i in range(6)]
    def mf(a, b, p):
        x, w = vr(SETS[p]+4*a,4), vr(SETS[p]+8+4*b,4)
        o = (x, w) if vtype else (w, x)
        A(f"{MFMA} {vr(acc(a,b),16)}, {o[0]}, {o[1]}, {vr(acc(a,b),16)}")
    gb = []
    def fill(n):
        for _ in range(n):
            if gb:
                for x in gb.pop(0): A(x)
    def kstep(p, r, f):
        A("s_waitcnt lgkmcnt(3)")
        mf(0,0,p)
        for x in r[0:3]: A(x)
        fill(f[0])
        A("s_waitcnt lgkmcnt(4)")
        mf(0,1,p)
        for x in r[3:5]: A(x)
        fill(f[1])
        A("s_waitcnt lgkmcnt(5)")
        mf(1,0,p)
        for x in r[5:6]: A(x)
        fill(f[2])
        mf(1,1,p)
        fill(f[3])
    LL = A.lab("b1loop")
    A("s_mov_b32 s44, 0\ns_mov_b32 s45, 0")
    for x in setaddr(): A(x)
    stampw(9)
    A("s_barrier")
    stampw(2)
    for x in rdlist(0, 0): A(x)
    A(f"{LL}:")
    kstep(0, rdlist(1, 1), (0,1,2,3))
    kstep(1, rdlist(2, 0), (0,1,2,3))
    A("s_add_u32 s44, s44, 0x8000\ns_and_b32 s44, s44, 0x1ffff\ns_add_u32 s45, s45, 1")
    kstep(0, rdlist(3, 1), (1,1,2,0))
    for x in setaddr(): A(x)
    A("s_barrier")
    kstep(1, rdlist(0, 0), (1,1,1,1))
    assert not gb
    A(f"s_cmp_lt_u32 s45, 6\ns_cbranch_scc1 {LL}")
    rd = []
    for kap in (1,2,3): rd += [rx(kap,kap,0)] + rw(kap,kap,0)
    for kap in (1,2,3): rd += rw(kap,kap,1)
    for kap in (1,2,3): rd += [rx(kap,kap,1)]
    order = [rdlist(0,0)[i] for i in range(6)] + rd
    def epi(a, b):
        e = []; t = acc(a,b)
        for i in range(8):
            if not vtype: e.append(f"v_pk_mul_f32 {vr(t+2*i,2)}, {vr(t+2*i,2)}, s[54:55]")
            e.append(f"v_cvt_pk_bf16_f32 v{t+i}, v{t+2*i}, v{t+2*i+1}")
            if i & 3 == 3:
                if vtype: e.append(f"buffer_store_dwordx4 {vr(t+i-3,4)}, v{2+b}, {W}, s{46 if a==0 else 49} offen offset:{1024*(i>>2)} {SC}")
                else: e.append(f"buffer_store_dwordx4 {vr(t+i-3,4)}, v2, {W}, s{46 if a==0 else 49} offen offset:{2048*b+1024*(i>>2)} {SC}")
        return e
    issued = 6; pend = []; lastw = None
    for m, (a, b, kap) in enumerate([(a,b,k) for a in range(2) for b in range(2) for k in range(4)]):
        need = max(order.index(x) for x in [rx(kap,kap,a)] + rw(kap,kap,b)) + 1
        while issued < need: A(order[issued]); issued += 1
        if lastw is None or need > lastw:
            A(f"s_waitcnt lgkmcnt({issued - need})"); lastw = need
        mf(a, b, kap)
        for _ in range(3):
            if issued < len(order) and issued - lastw < 14: A(order[issued]); issued += 1
        if m in (6, 10, 14): pend += epi(*((0,0),(0,1),(1,0))[(m-6)//4])
        if m == 15: stamp(3)
        for _ in range(5 if not vtype else 3):
            if pend: A(pend.pop(0))
    for x in pend + epi(1,1): A(x)
    if vtype:
        A(f"s_mov_b64 exec, s[56:57]\nbuffer_store_dwordx4 v[58:61], v4, {W}, s54 offen {SC}\ns_mov_b64 exec, -1")
    A(f"s_branch {PUB1}")
def b1_compute():
    A(f"""s_and_b32 s41, s3, 1           ; wr
s_lshr_b32 s42, s3, 1          ; wc""")
    fixtag()
    A(f"s_cmp_ge_u32 s7, 7\ns_cbranch_scc1 {LV}")
    b1_body(False)
    A(f"{LV}:")
    b1_body(True)

FOFF = 7*16384
def a1_gen():
    A(f"{LA1C}:\ns_setprio 2")
    gen_common()
    pi32(48, 14, 49)
    A(f"""v_lshrrev_b32 v48, 1, v48       ; k_local
s_mul_i32 s41, s5, 48
v_add_u32 v48, s41, v48
v_cvt_f32_u32 v48, v48
v_mul_f32 v56, {f32(1/448)}, v48
v_add_f32 v48, {f32(16.0)}, v48
v_mul_f32 v57, {f32(1/448)}, v48
v_add_f32 v48, {f32(16.0)}, v48
v_mul_f32 v58, {f32(1/448)}, v48
v_and_b32 v48, 1, v14
v_cvt_f32_u32 v48, v48
v_mul_f32 v59, {f32(0.25)}, v48  ; c/4
v_lshlrev_b32 v60, 3, v15        ; 8h
v_lshlrev_b32 v61, 4, v0
v_add_u32 v61, {FOFF}, v61
s_mov_b32 s42, s3""")
    main_start()
    A("s_waitcnt lgkmcnt(0)"); gettag()
    LF = A.lab("fgen")
    A(f"""{LF}:
s_lshl_b32 s43, s42, 4
v_add_u32 v52, s43, v60
v_cvt_f32_u32 v52, v52
s_lshl_b32 s43, s42, 10
v_add_u32 v53, s43, v61""")
    for kgi in range(3): A(f"v_fma_f32 v{16+12*kgi}, v{56+kgi}, v52, v59")
    for j in range(1, 8):
        for kgi in range(3): A(f"v_add_f32 v{16+12*kgi+j}, v{56+kgi}, v{16+12*kgi+j-1}")
    for kgi in range(3):
        t = 16 + 12*kgi
        for j in range(8): A(f"v_cos_f32 v{t+j}, v{t+j}")
        for j in range(4): A(f"v_cvt_pk_bf16_f32 v{t+8+j}, v{t+2*j}, v{t+2*j+1}")
        A(f"ds_write_b128 v53, {vr(t+8,4)} offset:{14336*kgi}")
    A(f"s_add_u32 s42, s42, 4\ns_cmp_lt_u32 s42, 14\ns_cbranch_scc1 {LF}")
def a1_compute():
    A(f"""s_lshl_b32 s41, s6, 2
s_add_u32 s41, s41, s3          ; s2 index
v_lshlrev_b32 v5, 8, v15
v_add_u32 v5, s41, v5
v_mul_u32_u24 v5, v14, v5
v_cvt_f32_u32 v5, v5
v_mul_f32 v5, {f32(1/2048)}, v5
v_cvt_f32_u32 v6, v14
v_mul_f32 v6, {f32(1/32)}, v6
v_lshrrev_b32 v49, 1, v14
v_and_b32 v49, 7, v49
v_xor_b32 v49, v49, v15
v_lshlrev_b32 v49, 4, v49
v_lshl_or_b32 v62, v14, 7, v49
s_lshl_b32 s43, s3, 12
v_add_u32 v62, s43, v62
v_and_b32 v3, 2, v14
v_lshlrev_b32 v3, 30, v3
v_or_b32 v3, 1.0, v3            ; (-1)^k
v_mov_b32 v2, v3
v_lshlrev_b32 v4, 5, v14
v_lshl_or_b32 v4, v15, 4, v4
s_mul_i32 s47, s41, {T_ROW}
s_mul_i32 s42, s5, 6144
s_add_u32 s47, s47, s42
s_add_u32 s47, s47, {T_OFF}
s_add_u32 s48, s47, 2048
s_add_u32 s49, s47, 4096""")
    egen = []
    for i in range(2):
        for j in range(8): egen.append(f"v_fmamk_f32 v{176+j}, v6, {f32(float(16*i+8*(j>>2)+(j&3)))}, v5")
        for j in range(8): egen.append(f"v_cos_f32 v{184+j}, v{176+j}")
        for j in range(8): egen.append(f"v_sin_f32 v{192+j}, v{176+j}")
        for j in range(4): egen.append(f"v_cvt_pk_bf16_f32 v{160+4*i+j}, v{184+2*j}, v{185+2*j}")
        for j in range(4): egen.append(f"v_cvt_pk_bf16_f32 v{168+4*i+j}, -v{192+2*j}, -v{193+2*j}")
    A(f"s_mul_i32 s27, s26, 8256")
    def a1salu(adv=True):
        r = []
        if adv: r += ["s_add_u32 s27, s27, 8256", f"s_cmp_eq_u32 s27, {7*8256}", "s_cselect_b32 s27, 0, s27"]
        return r + ["s_and_b32 s43, s27, 0x1c040", f"s_add_u32 s44, s27, {7*8256}", "s_and_b32 s44, s44, 0x1c040",
                    "s_lshr_b32 s46, s27, 2", "s_and_b32 s46, s46, 0x7800"]
    a1valu = ["v_xor_b32 v8, s43, v62", "v_xor_b32 v10, s44, v62", "v_xor_b32 v9, 32, v8", "v_xor_b32 v11, 32, v10", "v_add_u32 v12, s46, v61"]
    def a1rd(t):
        b = 16 + 20*t
        return ([f"ds_read_b128 {vr(b,4)}, v{8+t}"] +
                [f"ds_read_b128 {vr(b+8+4*kgi,4)}, v12 offset:{1024*t+14336*kgi}" for kgi in range(3)] +
                [f"ds_read_b128 {vr(b+4,4)}, v{10+t}"])
    def a1step(t, nxt, first=False, fill=0, adv=False):
        b = 16 + 20*t
        r = list(nxt); issued = 0
        sa = a1salu() if adv else []; va = list(a1valu) if adv else []
        for m in range(6):
            hi, kgi = m // 3, m % 3
            need = (2, 3, 4, 5, 5, 5)[m]
            if not nxt: hi, kgi, need = m % 2, m // 2, (2, 5, 5, 5, 5, 5)[m]
            if m < (4 if nxt else 2): A(f"s_waitcnt lgkmcnt({5 - need + issued})")
            d = 64 + 32*kgi + 16*hi
            A(f"{MFMA} {vr(d,16)}, {vr(b+4*hi,4)}, {vr(b+8+4*kgi,4)}, {0 if first else vr(d,16)}")
            for _ in range(2 if m == 0 else 1):
                if r: A(r.pop(0)); issued += 1
            if m in (1, 2, 3):
                for _ in range(3):
                    if sa: A(sa.pop(0))
            if m == 4:
                while va: A(va.pop(0))
            for _ in range(fill if not (adv and m in (1,2,3,4)) else fill // 2):
                if egen: A(egen.pop(0))
    LL, LS, LNB = A.lab("a1loop"), A.lab("a1last"), A.lab("a1nb")
    for x in a1salu(False) + a1valu: A(x)
    fixtag()
    stampw(9)
    A("s_barrier")
    stampw(2)
    for x in a1rd(0): A(x)
    for n in range(3):
        a1step(0, a1rd(1), n == 0, 2, True)
        A("s_barrier")
        a1step(1, a1rd(0), False, 3)
    assert not egen
    A(f"s_mov_b32 s45, 3\n{LL}:")
    a1step(0, a1rd(1), adv=True)
    A(f"""s_add_u32 s45, s45, 1
s_cmp_eq_u32 s45, 7
s_cbranch_scc1 {LS}
s_cmp_eq_u32 s45, 6
s_cbranch_scc1 {LNB}
s_barrier
{LNB}:""")
    a1step(1, a1rd(0))
    A(f"s_branch {LL}\n{LS}:")
    a1step(1, [])
    stamp(3)
    def s1(kgi):
        P, Q = 64+32*kgi, 80+32*kgi
        e = []
        for i in range(8):
            e.append(f"v_pk_fma_f32 {vr(P+2*i,2)}, {vr(Q+2*i,2)}, v[2:3], {vr(P+2*i,2)}")
            e.append(f"v_cvt_pk_bf16_f32 v{16+8*kgi+i}, v{P+2*i}, v{P+2*i+1}")
        return e
    def mm(kgi):
        P, Q = 64+32*kgi, 80+32*kgi
        return [f"{MFMA} {vr(P,16)}, {vr(16+8*kgi,4)}, v[160:163], 0", f"{MFMA} {vr(Q,16)}, {vr(16+8*kgi,4)}, v[168:171], 0",
                f"{MFMA} {vr(P,16)}, {vr(20+8*kgi,4)}, v[164:167], {vr(P,16)}", f"{MFMA} {vr(Q,16)}, {vr(20+8*kgi,4)}, v[172:175], {vr(Q,16)}"]
    def s2(kgi):
        P, Q = 64+32*kgi, 80+32*kgi
        e = []
        for j in range(8):
            e += [f"v_sub_f32 v{P+2*j}, v{P+2*j}, v{Q+2*j+1}", f"v_add_f32 v{Q+2*j}, v{Q+2*j}, v{P+2*j+1}",
                  f"v_cvt_pk_bf16_f32 v{40+8*kgi+j}, v{P+2*j}, v{Q+2*j}"]
            if j & 3 == 3: e.append(f"buffer_store_dwordx4 {vr(40+8*kgi+j-3,4)}, v4, {W}, s{47+kgi} offen offset:{1024*(j>>2)} {SC}")
        return e
    def weave(ms, vs):
        k = (len(vs) + len(ms) - 1) // len(ms)
        for m in ms:
            A(m)
            for _ in range(k):
                if vs: A(vs.pop(0))
    for x in s1(0): A(x)
    weave(mm(0), s1(1)); weave(mm(1), s1(2)); weave(mm(2), s2(0))
    for x in s2(1) + s2(2): A(x)
    LI = A.lab("a1init")
    A(f"""s_cmp_ge_u32 s41, 4
s_cbranch_scc1 {LI}
s_lshl_b32 s42, s5, 2
s_add_u32 s42, s42, s41
s_lshl_b32 s42, s42, 7
s_add_u32 s42, s42, {AT_OFF}
v_mov_b32 v5, 0
s_mov_b64 exec, 1
buffer_store_dword v5, v5, {W}, s42 offen {SC}
buffer_store_dword v5, v5, {W}, s42 offen offset:{20*128} {SC}
s_mov_b64 exec, -1
{LI}:""")

def pub1():
    A(f"""{PUB1}:
s_lshl_b32 s41, s7, 11
s_lshl_b32 s42, s6, 7
s_add_u32 s41, s41, s42
s_add_u32 s41, s41, {F1_OFF}""")
    stamp(4)
    lds_add(C_LF)
    gen_g()
    publish(C_P1, 41, OPT["r1"], 32768)
    stamp(5)
    A(f"s_cmp_ge_u32 s7, 11\ns_cbranch_scc1 {GEN}")

Q, S, O, KV = 16, 48, 112, 176
OK = O + 48
TB = 8
SO = 32
def q(j,i): return vr(Q+8*j+4*i, 4)
def kb(b,i): return KV+16*b+4*i
def tile_loads(b, so):
    return [f"buffer_load_dwordx4 {vr(kb(b,0),4)}, v1, {W}, s{so} offen {SC}",
            f"buffer_load_dwordx4 {vr(kb(b,1),4)}, v2, {W}, s{so} offen {SC}",
            f"buffer_load_dwordx4 {vr(kb(b,2),4)}, v3, {W}, s{so} offen {SC}",
            f"buffer_load_dwordx4 {vr(kb(b,3),4)}, v3, {W}, s{so} offen offset:1024 {SC}"]
def attention():
    LNY, LNW = A.lab("nyq"), A.lab("now")
    A(f"{ATT}:\ns_setprio 0")
    srd(SX, P_WR, W_BYTES); srd(56, P_WI, W_BYTES)
    A(f"""s_lshr_b32 s5, s2, 3           ; ko
s_mul_i32 s55, s4, {4*450}
s_mul_i32 s43, s40, {512*450}
s_add_u32 s55, s55, s43
s_lshl_b32 s43, s5, 4
s_add_u32 s55, s55, s43
s_cmp_lg_u32 s5, 28
s_cbranch_scc1 {LNY}""")
    srd(SX, P_WI, W_BYTES); srd(56, P_WR, W_BYTES)
    A(f"""s_sub_u32 s55, s55, 14
{LNY}:
s_mov_b32 s63, s5
v_lshrrev_b32 v9, 2, v0
v_and_b32 v10, 3, v0
v_lshl_add_u32 v9, v9, 5, v10
v_mul_u32_u24 v248, 450, v9""")
    wl = [f"buffer_load_dwordx4 {vr(S,4)}, v248, {sr(SX,4)}, s55 offen", f"buffer_load_dwordx4 {vr(S+4,4)}, v248, s[56:59], s55 offen"]
    LW1, LW2 = A.lab("w1"), A.lab("w2")
    for x in wl[:OPT["wm"]]: A(x)
    A(f"s_mov_b32 s51, s7\ns_cmp_lt_u32 s7, 11\ns_cbranch_scc1 {LW1}")
    for x in wl[OPT["wm"]:]: A(x)
    A(f"{LW1}:")
    srd(SO, P_OUT, OUT_BYTES)
    A(f"""s_lshl_b32 s4, s4, 1
s_bfe_u32 s5, s2, 0x10003
s_or_b32 s4, s4, s5            ; head
s_lshr_b32 s5, s2, 4           ; qb
s_mul_i32 s6, s4, 7
s_lshr_b32 s45, s6, 1
s_add_u32 s6, s6, 1
s_lshr_b32 s6, s6, 1
s_lshl_b32 s6, s6, 9
v_lshlrev_b32 v8, 4, v0
v_add_u32 v1, s6, v8
s_bitcmp1_b32 s4, 0
s_cselect_b32 s7, -2040, 0
v_add_u32 v2, 1024, v1
v_add_u32 v6, s7, v2
v_mov_b32 v4, 0x3f80
v_mov_b32_dpp v2, v6 {HI}
s_lshl_b32 s7, s4, 11
s_add_u32 s7, s7, {QK_TILE}
v_add_u32 v3, s7, v8           ; V offset
v_mov_b32 v5, 0xdddd
v_mov_b32 v7, 0
s_lshl_b32 s45, s45, 3
v_bfe_u32 v9, v0, 4, 1
v_mul_u32_u24 v10, 31, v9
v_add_u32 v10, s45, v10        ; Q column
v_add_u32 v11, 448, v10        ; K column
v_mul_u32_u24 v9, 27, v9
s_mul_i32 s46, s4, 28
s_add_u32 s46, s46, 896
v_add_u32 v9, s46, v9          ; V column
v_lshrrev_b32 v10, 7, v10
v_lshlrev_b32 v10, 11, v10
v_mov_b32_dpp v11, v9 {HI}
s_lshl_b32 s46, s5, 7
v_add_u32 v10, s46, v10
v_lshrrev_b32 v11, 7, v11
v_lshlrev_b32 v11, 11, v11
v_and_b32 v9, 15, v0
v_lshl_add_u32 v11, v9, 7, v11
s_and_b32 s46, s2, {OPT["r1"]-1}
s_lshl_b32 s46, s46, 15
s_add_u32 s46, s46, {F1_OFF}
s_lshl_b32 s43, s5, 2
s_add_u32 s42, s40, s43
s_mul_i32 s42, s42, {QK_TILE}
s_add_u32 s50, s42, {Q_OFF}
s_mul_i32 s47, s40, {16*KV_REC}
s_add_u32 s47, s47, {KV_OFF}""")
    for i in range(16):
        A(f"s_add_u32 s42, s5, {i}\ns_and_b32 s42, s42, 15\ns_mul_i32 s42, s42, {KV_REC}\ns_add_u32 s{TB+i}, s42, s47")
    for j in range(4):
        A(f"""s_add_u32 s42, s40, {j}
s_and_b32 s42, s42, 3
s_lshl_b32 s42, s42, 11
s_add_u32 s42, s42, {QX}
v_add_u32 v{240+j}, s42, v8
s_add_u32 s42, s40, {j+1}
s_and_b32 s42, s42, 3
s_mul_i32 s42, s42, 12288
s_add_u32 s42, s42, {MERGE + (4096*j if j < 3 else 0)}
v_add_u32 v{244+j}, s42, v8""")
    for i in range(64): A(f"v_mov_b32 v{O+i}, 0")
    lds_wait(C_LF, 4, 1)
    A("s_setprio 3")
    stamp(5)
    A(f"""s_cmp_ge_u32 s63, 29
s_cbranch_scc1 {LNW}
s_lshl_b32 s43, s40, 10
s_add_u32 s43, s43, {WX}
v_add_u32 v9, s43, v8""")
    A(f"s_cmp_ge_u32 s51, 11\ns_cbranch_scc1 {LW2}")
    lds_wait(C_X, 1, 1)
    for x in wl[OPT["wm"]:]: A(x)
    A(f"{LW2}:")
    A(f"""s_waitcnt vmcnt(0)
ds_write_b128 v9, {vr(S,4)}
ds_write_b128 v9, {vr(S+4,4)} offset:4096
s_waitcnt lgkmcnt(0)""")
    lds_add(C_W)
    A(f"{LNW}:")
    stamp(2)
    if OPT["pd"]: A(f"s_sleep {OPT['pd']}")
    if OPT["pda"]:
        LD = A.lab("pda"); A(f"s_cmp_lt_u32 s51, 11\ns_cbranch_scc1 {LD}\ns_sleep {OPT['pda']}\n{LD}:")
    def kvpoll():
        A(f"""buffer_load_dword v14, v10, {W}, s46 offen {SC}
buffer_load_dword v15, v11, {W}, s46 offen {SC}
s_waitcnt vmcnt(0)
v_cmp_ne_u32 s[48:49], s{TAG}, v14
v_cmp_ne_u32 vcc, s{TAG}, v15
s_or_b64 vcc, vcc, s[48:49]""")
    acquire(R_KV, kvpoll, OPT["sl1"])
    stamp(6)
    t0, t1 = tile_loads(0, TB), tile_loads(1, TB+1)
    A(f"""{t0[0]}
buffer_load_dwordx4 {q(0,0)}, v1, {W}, s50 offen {SC}
{t0[1]}
buffer_load_dwordx4 {q(0,1)}, v2, {W}, s50 offen {SC}""")
    A("s_waitcnt vmcnt(0)")
    stamp(4)
    A(f"""v_mov_b32_dpp v{Q+6}, v7 {HI}
v_mov_b32_dpp v{Q+7}, v7 {HI}
v_mov_b32_dpp v{kb(0,1)+2}, v4 {HI}
{MFMA} {vr(S+16,16)}, {vr(kb(0,0),4)}, {q(0,0)}, 0
{t0[2]}
{MFMA} {vr(S+16,16)}, {vr(kb(0,1),4)}, {q(0,1)}, {vr(S+16,16)}
{t0[3]}
{MFMA} {vr(S,16)}, {vr(kb(0,0),4)}, {q(0,0)}, 0
ds_write_b128 v240, {q(0,0)}""")
    for x in t1[:2]: A(x)
    s_ = S+16
    A(f"v_max3_f32 v8, v{s_}, v{s_+1}, v{s_+2}\nv_max3_f32 v9, v{s_+3}, v{s_+4}, v{s_+5}")
    for i in range(6, 14, 4): A(f"v_max3_f32 v8, v8, v{s_+i}, v{s_+i+1}\nv_max3_f32 v9, v9, v{s_+i+2}, v{s_+i+3}")
    A(f"""v_max3_f32 v8, v8, v{s_+14}, v{s_+15}
v_max_f32 v8, v8, v9
v_cvt_pk_bf16_f32 v8, -v8, v7
v_mov_b32_dpp v{Q+6}, v8 {HI}
ds_write_b128 v240, {q(0,1)} offset:1024
{MFMA} {vr(S,16)}, {vr(kb(0,1),4)}, {q(0,1)}, {vr(S,16)}""")
    lds_sync(C_Q, 4)
    stamp(3)
    for j in range(1, 4):
        A(f"ds_read_b128 {q(j,0)}, v{240+j}\nds_read_b128 {q(j,1)}, v{240+j} offset:1024")
    for x in t1[2:]: A(x)
    A("s_waitcnt lgkmcnt(0)")
    stamp(7)
    lds_add(C_G2)
    A("s_setprio 1")
    def mwrites(j):
        return ([f"ds_write_b128 v{244+j}, {vr(O+16*j+4*g,4)} offset:{1024*g}" for g in range(3)] +
                [f"ds_write_b96 v{244+j}, {vr(O+16*j+12,3)} offset:3072"])
    for n in range(64):
        i, j = n >> 2, n & 3
        if n == 32: stamp(8)
        extra = []; late = []; at = {}
        if n == 0: extra = tile_loads(2, TB+2)
        ti, k = (i + 3, j - 1) if j >= 1 else (i + 2, 3)
        if 3 <= ti < 16: at[OPT["lp"]] = [tile_loads(ti & 3, TB+ti)[k]]
        if n >= 62: late = mwrites(n - 62)
        m = [None]*4
        pre = []
        if n < 63:
            i2, j2 = (n+1) >> 2, (n+1) & 3
            if j2 == 0:
                cnt = 4*(min(15, i+3) - (i+1))
                if i + 3 < 16: cnt -= 2
                pre = [f"s_waitcnt vmcnt({cnt})", f"v_mov_b32_dpp v{kb(i2&3,1)+2}, v4 {HI}"]
            m[0] = f"{MFMA} {vr(S+16*j2,16)}, {vr(kb(i2&3,0),4)}, {q(j2,0)}, 0"
            m[1] = f"{MFMA} {vr(S+16*j2,16)}, {vr(kb(i2&3,1),4)}, {q(j2,1)}, {vr(S+16*j2,16)}"
        if n > 0:
            i0, j0 = (n-1) >> 2, (n-1) & 3
            m[2] = f"{SMF} {vr(O+16*j0,16)}, {vr(kb(i0&3,3),4)}, {vr(S+16*j0+8,8)}, v5"
        m[3] = f"{SMF} {vr(O+16*j,16)}, {vr(kb(i&3,2),4)}, {vr(S+16*j,8)}, v5"
        if n == 63: m[0], m[2] = m[2], None
        for x in pre: A(x)
        for g in range(4):
            if n == 0 and g == 3: A("s_waitcnt vmcnt(8)")
            if m[g]: A(m[g])
            for e in range(4):
                r = S+16*j+4*g+e
                A(f"v_exp_f32 v{r}, v{r}")
                for x in at.pop(4*g+e, []): A(x)
                if extra: A(extra.pop(0))
                elif late and g >= 1 and e & 1: A(late.pop(0))
        assert not extra and not late and not at
    for x in mwrites(2)[:2]: A(x)
    A(f"{SMF} {vr(O+48,16)}, {vr(kb(3,3),4)}, {vr(S+48+8,8)}, v5")
    for x in mwrites(2)[2:]: A(x)
    stamp(9)
    A("s_setprio 3")
    lds_sync(C_MERGE, 4)
    for g in range(12): A(f"ds_read_b128 {vr(S+4*g,4)}, v247 offset:{1024*g}")
    A(f"""v_lshlrev_b32 v8, 4, v0
s_add_u32 s41, s40, 3
s_and_b32 s41, s41, 3
s_lshl_b32 s43, s5, 2
s_add_u32 s41, s41, s43
s_lshl_b32 s42, s41, 15
s_lshl_b32 s43, s4, 11
s_add_u32 s42, s42, s43
s_add_u32 s42, s42, {O_OFF}
s_lshl_b32 s41, s41, 11
s_lshl_b32 s43, s4, 7
s_add_u32 s41, s41, s43
s_add_u32 s41, s41, {FO_OFF}""")
    for k in range(3):
        A(f"s_waitcnt lgkmcnt({8-4*k})")
        for i in list(range(14, -2, -2)): A(f"v_pk_add_f32 {vr(OK+i,2)}, {vr(OK+i,2)}, {vr(S+16*k+i,2)}")
    A(f"""v_cmp_nle_f32 vcc, {f32(2.0**-40)}, v{OK+14}
s_mov_b64 s[48:49], vcc
v_cmp_nge_f32 vcc, {f32(2.0**40)}, v{OK+14}
s_or_b64 vcc, vcc, s[48:49]
s_cbranch_vccnz {LFB}
{LN}:
v_rcp_f32 v10, v{OK+14}
v_mov_b32 v{S+7}, 0""")
    for i in range(0, 14, 2):
        A(f"v_pk_mul_f32 {vr(OK+i,2)}, {vr(OK+i,2)}, v[10:11] op_sel_hi:[1,0]")
        A(f"v_cvt_pk_bf16_f32 v{S+i//2}, v{OK+i}, v{OK+i+1}")
        if i == 6: A(f"buffer_store_dwordx4 {vr(S,4)}, v8, {W}, s42 offen {SC}")
    A(f"buffer_store_dwordx4 {vr(S+4,4)}, v8, {W}, s42 offen offset:1024 {SC}")
    stamp(10)
    lds_add(C_GO)
    WF = 112; BACC = 16; OB = 64; NB = 6
    A(f"""v_bfe_u32 v9, v0, 2, 2        ; rr
v_and_b32 v10, 3, v0
v_lshrrev_b32 v11, 1, v10
v_and_b32 v10, 1, v10
v_lshl_or_b32 v10, v10, 1, v11    ; sigma(cc)
v_bfe_u32 v11, v0, 4, 1
v_lshlrev_b32 v11, 5, v11
v_lshl_or_b32 v10, v10, 3, v11
s_lshl_b32 s45, s40, 6
v_or_b32 v10, s45, v10
v_lshrrev_b32 v15, 5, v0
v_mul_u32_u24 v11, 320, v9
v_xor_b32 v3, v10, v11
v_lshl_add_u32 v3, v15, 10, v3
v_lshl_or_b32 v9, v15, 1, v9
v_mul_u32_u24 v11, 320, v9
v_xor_b32 v4, v10, v11
v_add_u32 v5, {224*256}, v3
v_add_u32 v6, {224*256}, v4""")
    assert WO == 0
    def wo_frags(half):
        for n in range(16):
            hd, i = n >> 1, n & 1
            b = WF + 64*half + 4*n
            row = 28*hd + 16*i
            A(f"ds_read_b64_tr_b16 {vr(b,2)}, v{3+2*half} offset:{row*256}")
            A(f"ds_read_b64_tr_b16 {vr(b+2,2)}, v{(4 if i else 3)+2*half} offset:{(row+8)*256}")
            if n % 6 == 5: A("s_waitcnt lgkmcnt(2)")
    lds_wait(C_WOA, 4)
    wo_frags(0)
    A("s_waitcnt vmcnt(0) lgkmcnt(2)")
    flagstore("s41", OPT["ro"], 131072)
    wo_frags(1)
    A(f"""s_lshr_b32 s4, s2, 4
s_lshl_b32 s4, s4, 2
s_bfe_u32 s5, s2, 0x20001
s_or_b32 s4, s4, s5
s_and_b32 s5, s2, 1
s_and_b32 s46, s5, {OPT["ro"]-1}
s_lshl_b32 s46, s46, 17
s_lshl_b32 s5, s5, 1
s_bfe_u32 s6, s2, 0x10003
s_or_b32 s5, s5, s6            ; n quarter
s_lshl_b32 s43, s4, 15
s_lshl_b32 s44, s40, 13
s_add_u32 s43, s43, s44
s_add_u32 s43, s43, {O_OFF}
s_add_u32 s47, s43, 4096
v_and_b32 v14, 31, v0
v_mul_u32_u24 v2, 1792, v14
v_lshl_add_u32 v2, v15, 4, v2
s_mul_i32 s41, s4, {32*1792}
s_lshl_b32 s42, s5, 8
s_add_u32 s41, s41, s42
s_add_u32 s41, s41, s45
s_add_u32 s41, s41, 896
s_lshl_b32 s42, s4, 11
s_add_u32 s46, s46, s42
s_lshl_b32 s42, s40, 9
s_add_u32 s46, s46, s42
s_add_u32 s46, s46, {FO_OFF}
v_and_b32 v9, 3, v0
v_lshlrev_b32 v9, 7, v9""")
    lds_sync(C_WOF, 4)
    LP, LD = A.lab("opoll"), A.lab("opollok")
    A(f"""s_mov_b32 s61, {SPIN}
{LP}:
buffer_load_dword v14, v9, {W}, s46 offen {SC}
s_waitcnt vmcnt(0)
v_cmp_ne_u32 vcc, s{TAG}, v14
s_cbranch_vccz {LD}
s_sub_u32 s61, s61, 1
s_cmp_eq_u32 s61, 0
s_cbranch_scc1 {LD}
s_sleep {OPT["sl1"]}
s_branch {LP}
{LD}:""")
    stamp(11)
    assert OST == 0
    for half in range(2):
        A(f"s_add_u32 m0, s44, {OST+4096*half}")
        for i in range(4):
            A(f"buffer_load_dwordx4 v8, {W}, s{47 if half else 43} offen offset:{1024*i} {SC} lds")
    A("s_waitcnt vmcnt(0)")
    lds_sync(C_OST, 4)
    stampw(12)
    def rd(n): A(f"ds_read_b128 {vr(OB+4*(n%NB),4)}, v8 offset:{1024*n}")
    for n in range(NB-1): rd(n)
    for n in range(32):
        if n + NB - 1 < 32: rd(n + NB - 1)
        left = min(31, n+NB-1) - n
        A(f"s_waitcnt lgkmcnt({left})\n{MFMA} {vr(BACC,16)}, {vr(WF+4*n,4)}, {vr(OB+4*(n%NB),4)}, {vr(BACC,16) if n else 0}")
    A(f"""s_lshl_b32 s42, s5, 2
s_add_u32 s42, s42, s40
s_cmp_ge_u32 s42, 14
s_cbranch_scc1 {END}""")
    for i in range(8): A(f"v_cvt_pk_bf16_f32 v{32+i}, v{BACC+2*i}, v{BACC+2*i+1}")
    A(f"""buffer_store_dwordx4 v[32:35], v2, {sr(SO,4)}, s41 offen
buffer_store_dwordx4 v[36:39], v2, {sr(SO,4)}, s41 offen offset:32
s_branch {END}""")

def helper():
    SWO = 56
    T, AC2, WA, WB, Y = 16, 48, 64, 72, 80
    LNOA2, LNY2, LP2 = "L_noa2", A.lab("nyq"), A.lab("pub2")
    A(f"{HELP2}:")
    if OPT["x"] >= 4:
        lds_add(C_WOA); A(f"s_branch {END}")
    stamp(11)
    A(f"""s_lshr_b32 s5, s2, 3
s_cmp_ge_u32 s5, 29
s_cbranch_scc1 {LNOA2}
v_lshrrev_b32 v8, 3, v0
v_and_b32 v9, 4, v8
v_bfe_u32 v10, v8, 1, 1
v_or_b32 v9, v9, v10
v_and_b32 v8, 1, v8
v_lshl_or_b32 v9, v8, 1, v9     ; s2 mod 8 = 4*(p>>1) + 2h + (p&1)
v_mul_u32_u24 v1, {T_ROW}, v9
v_and_b32 v8, 7, v0
v_lshl_add_u32 v1, v8, 4, v1    ; T offset
s_lshl_b32 s41, s5, 10
s_lshl_b32 s42, s4, 7
s_add_u32 s41, s41, s42
s_add_u32 s41, s41, {T_OFF}
s_mul_i32 s42, s40, {16*T_ROW}
s_add_u32 s41, s41, s42
s_mul_i32 s44, s5, 43
s_lshr_b32 s44, s44, 8          ; g5
s_lshl_b32 s45, s44, 11
s_and_b32 s46, s2, {OPT["r1"]-1}
s_lshl_b32 s46, s46, 15
s_add_u32 s46, s46, {F1_OFF + 11*2048}
v_and_b32 v9, 15, v0
v_lshlrev_b32 v9, 7, v9
v_add_u32 v9, s45, v9
v_mov_b32 v10, 0
v_mov_b32_dpp v9, v10 {HI}
s_lshl_b32 s43, s40, 11
s_add_u32 m0, s43, {TX}
s_add_u32 s47, s41, {8*T_ROW - 1024}""")
    lds_wait(C_G2 if OPT["g2"] else C_LF, 4, 1)
    def a1poll():
        A(f"""buffer_load_dword v10, v9, {W}, s46 offen {SC}
s_waitcnt vmcnt(0)
v_cmp_ne_u32 vcc, s{TAG}, v10""")
    acquire(R_A1, a1poll, OPT["sl2"], 1)
    stamp(6)
    A(f"""buffer_load_dwordx4 v1, {W}, s41 offen {SC} lds
buffer_load_dwordx4 v1, {W}, s47 offen offset:1024 {SC} lds
v_lshrrev_b32 v8, 3, v14        ; u1 local
v_and_b32 v9, 7, v14            ; k local
v_lshl_add_u32 v2, v15, 3, v8
v_lshlrev_b32 v2, 4, v2
v_lshl_add_u32 v2, v9, 1, v2
s_lshl_b32 s42, s40, 10
s_cmp_eq_u32 s5, 28
s_cselect_b32 s45, 14, 0
s_add_u32 s42, s42, s45
s_add_u32 s42, s42, {WX}
v_add_u32 v2, s42, v2
v_mul_u32_u24 v3, {2*T2_ROW}, v15
v_lshl_add_u32 v3, v9, 4, v3
v_lshl_add_u32 v3, v8, 2, v3    ; T2 offset
v_lshlrev_b32 v8, 4, v0
v_add_u32 v8, {EX}, v8
v_add_u32 v9, s43, v8
v_lshlrev_b32 v1, 2, v0
v_add_u32 v1, {TX}, v1""")
    for i in range(16): A(f"v_mov_b32 v{WA+i}, 0")
    lds_wait(C_W, 4, 1)
    for j in range(8):
        A(f"ds_read_u16_d16_hi v{WA+j}, v2 offset:{(4*(j>>1)+(j&1))*64}")
    A("s_waitcnt lgkmcnt(4)")
    for j in range(8):
        A(f"ds_read_u16_d16_hi v{WB+j}, v2 offset:{(4*(j>>1)+(j&1))*64+4096}")
    A(f"s_waitcnt lgkmcnt(0)\ns_cmp_lg_u32 s5, 28\ns_cbranch_scc1 {LNY2}")
    for j in range(8): A(f"v_xor_b32 v{WA+j}, 0x80000000, v{WA+j}")
    A(f"{LNY2}:\ns_waitcnt vmcnt(0)")
    lds_sync(C_T, 4)
    for m in range(0, 28, 2): A(f"ds_read2st64_b32 {vr(T+m,2)}, v1 offset0:{m} offset1:{m+1}")
    for f in range(8):
        if f == 1:
            for m in range(28, 32, 2): A(f"ds_read2st64_b32 {vr(T+m,2)}, v1 offset0:{m} offset1:{m+1}")
        A(f"s_waitcnt lgkmcnt({12 if f == 0 else 14-2*f})\n{MFMA} {vr(AC2,16)}, {vr(C+4*f,4)}, {vr(T+4*f,4)}, {vr(AC2,16) if f else 0}")
    A(f"""s_mul_i32 s41, s40, {16*T2_ROW}
s_mul_i32 s42, s4, {T2_Q}
s_add_u32 s41, s41, s42
s_lshl_b32 s42, s5, 7
s_add_u32 s41, s41, s42
s_add_u32 s41, s41, {T2_OFF}""")
    for j in range(8):
        xr, xi = AC2+2*j, AC2+2*j+1
        A(f"""v_mul_f32 v10, v{xr}, v{WA+j}
v_mul_f32 v11, v{xr}, v{WB+j}
v_fma_f32 v10, -v{xi}, v{WB+j}, v10
v_fmac_f32 v11, v{xi}, v{WA+j}
v_cvt_pk_bf16_f32 v{Y+j}, v11, v10""")
        if j == 3: A(f"ds_write_b128 v9, {vr(Y,4)}")
    A(f"ds_write_b128 v9, {vr(Y+4,4)} offset:1024")
    lds_sync(C_EX, 4)
    for f in range(8): A(f"ds_read_b128 {vr(T+4*f,4)}, v8 offset:{1024*f}")
    for f in range(8):
        A(f"s_waitcnt lgkmcnt({7-f})\n{MFMA} {vr(AC2,16)}, {vr(C+4*f,4)}, {vr(T+4*f,4)}, {vr(AC2,16) if f else 0}")
    for j in range(8):
        A(f"""v_cvt_pk_bf16_f32 v{Y+j}, v{AC2+2*j+1}, v{AC2+2*j}
s_add_u32 s43, s41, {(4*(j>>1)+(j&1))*T2_ROW}
buffer_store_dword v{Y+j}, v3, {W}, s43 offen {SC}""")
    stamp(7)
    arrive(C_A2, LP2)
    A(f"""s_lshl_b32 s41, s44, 2
s_lshr_b32 s42, s4, 1
s_add_u32 s41, s41, s42
s_lshl_b32 s41, s41, 7
s_add_u32 s41, s41, {AT_OFF}
s_cmp_eq_u32 s44, 4
s_cselect_b32 s42, 9, 11
v_mov_b32 v12, 0
v_mov_b32 v13, 1
s_mov_b64 exec, 1
buffer_atomic_add v13, v12, {W}, s41 offen sc0 sc1
s_mov_b64 exec, -1
s_waitcnt vmcnt(0)
v_readfirstlane_b32 s60, v13
s_cmp_lg_u32 s60, s42
s_cbranch_scc1 {LP2}
v_mov_b32 v13, 1
s_mov_b32 s41, {AT_OFF + 20*128}
s_mov_b64 exec, 1
buffer_atomic_add v13, v12, {W}, s41 offen sc0 sc1
s_mov_b64 exec, -1
s_waitcnt vmcnt(0)
v_readfirstlane_b32 s60, v13
s_cmp_lg_u32 s60, 19
s_cbranch_scc1 {LP2}
s_mov_b32 s41, {F2_OFF}""")
    flagstore("s41", 8, 128)
    assert EPOCH_OFF == 0
    flagstore("0", 1, 0)
    A(f"{LP2}:")
    lds_wait(C_A2, 4, 4)
    A(f"{LNOA2}:")
    srd(SWO, P_WO, WO_BYTES)
    LW = A.lab("wo")
    A(f"""s_and_b32 s53, s2, 1
s_lshl_b32 s53, s53, 1
s_bfe_u32 s54, s2, 0x10003
s_or_b32 s53, s53, s54
s_lshl_b32 s53, s53, 8
s_mul_i32 s54, s40, {112*896}
s_add_u32 s53, s53, s54
s_mul_i32 s54, s40, {112*256}
v_lshrrev_b32 v9, 4, v0
v_and_b32 v8, 15, v0
v_lshlrev_b32 v4, 2, v9
v_xor_b32 v8, v8, v4
v_lshlrev_b32 v8, 4, v8
v_mul_u32_u24 v9, 896, v9
v_add_u32 v4, v8, v9""")
    lds_wait(C_G2, 4, 4)
    A(f"""s_mov_b32 m0, s54
s_mov_b32 s55, 28
{LW}:
s_sleep {OPT["wos"]}
buffer_load_dwordx4 v4, {sr(SWO,4)}, s53 offen lds
s_add_u32 m0, m0, 1024
s_add_u32 s53, s53, {4*896}
s_sub_u32 s55, s55, 1
s_cmp_lg_u32 s55, 0
s_cbranch_scc1 {LW}
s_waitcnt vmcnt(0)""")
    lds_add(C_WOA)
    stamp(12)
    TA, NY, AC3, ZB, AC4 = 16, 48, 64, 16, 112
    A(f"""v_and_b32 v8, 15, v14
v_lshrrev_b32 v9, 4, v14
v_lshl_or_b32 v8, v8, 1, v9
v_mul_u32_u24 v2, {T2_Q}, v15
v_lshl_add_u32 v1, v8, 4, v2    ; T2 offset
v_add_u32 v2, {224*16}, v2
s_mul_i32 s41, s50, {T2_ROW}
s_add_u32 s41, s41, {T2_OFF}
s_lshl_b32 s42, s40, 9
s_add_u32 s42, s42, s41
s_and_b32 s46, s2, 7
s_lshl_b32 s46, s46, 7
s_add_u32 s46, s46, {F2_OFF}
v_mov_b32 v9, 0""")
    srd(SO, P_OUT, OUT_BYTES)
    def a2poll():
        A(f"""buffer_load_dword v10, v9, {W}, s46 offen {SC}
s_waitcnt vmcnt(0)
v_cmp_ne_u32 vcc, s{TAG}, v10""")
    acquire(R_A2, a2poll, OPT["sl3"], OPT["sl3"])
    stamp(8)
    LA, LB = A.lab("a3l"), A.lab("a3l")
    for f in range(4):
        A(f"s_add_u32 s43, s42, {2*f*T2_Q}\nbuffer_load_dwordx4 {vr(TA+4*f,4)}, v1, {W}, s43 offen {SC}\ns_sleep 1")
    A(f"s_cmp_eq_u32 s40, 3\ns_cbranch_scc1 {LA}")
    for f in range(4):
        A(f"s_add_u32 s43, s42, {2*f*T2_Q + 2048}\nbuffer_load_dwordx4 {vr(TA+16+4*f,4)}, v1, {W}, s43 offen {SC}\ns_sleep 1")
    A(f"{LA}:\ns_cmp_lg_u32 s40, 0\ns_cbranch_scc1 {LB}")
    for f in range(4):
        A(f"s_add_u32 s43, s41, {2*f*T2_Q}\nbuffer_load_dwordx4 {vr(NY+4*f,4)}, v2, {W}, s43 offen {SC}")
    A(f"{LB}:")
    lds_wait(C_GO, 4, OPT["slg"])
    A("s_setprio 0")
    stamp(10)
    LN3, LZ = A.lab("a3ny"), A.lab("a3z")
    A("s_waitcnt vmcnt(0)")
    setup = f"""v_lshlrev_b32 v5, 4, v0
s_lshl_b32 s43, s40, 11
s_add_u32 s43, s43, {ZOFF}
v_add_u32 v6, s43, v5
s_mul_i32 s43, s52, 14336
s_add_u32 s43, s43, {ZOFF}
v_add_u32 v5, s43, v5
s_lshr_b32 s46, s40, 1
s_lshl_b32 s46, s46, 3
v_add_u32 v7, s46, v15          ; 8p + h
v_and_b32 v9, 7, v14
v_xor_b32 v7, v7, v9
v_lshlrev_b32 v7, 4, v7
v_lshl_or_b32 v7, v14, 8, v7
s_lshl_b32 s46, s52, 13
s_add_u32 s46, s46, {YOFF}
v_add_u32 v7, s46, v7           ; Y write address
v_lshrrev_b32 v8, 3, v0
s_lshl_b32 s46, s40, 3
v_add_u32 v8, s46, v8           ; row (s1)
v_and_b32 v9, 7, v0             ; piece
v_lshlrev_b32 v10, 1, v9
v_and_b32 v11, 7, v8
v_xor_b32 v10, v10, v11
v_lshlrev_b32 v10, 4, v10
v_lshl_or_b32 v10, v8, 8, v10
v_add_u32 v10, {YOFF}, v10
v_xor_b32 v11, 16, v10
v_mul_u32_u24 v8, {64*1792}, v8
v_lshl_add_u32 v8, v9, 4, v8    ; out offset
s_mul_i32 s41, s50, 1792
s_lshl_b32 s42, s51, 7
s_add_u32 s41, s41, s42""".split("\n")
    for tt in range(2):
        for f in range(4):
            A(f"{MFMA} {vr(AC3+32*tt,16)}, {vr(TA+16*tt+4*f,4)}, {vr(ER+4*f,4)}, {vr(AC3+32*tt,16) if f else 0}")
            for _ in range(5):
                if setup: A(setup.pop(0))
    assert not setup
    A(f"s_cmp_eq_u32 s51, 3\ns_cselect_b32 s42, 4, 8\nv_cmp_gt_u32 s[48:49], s42, v9")
    A(f"s_cmp_lg_u32 s40, 0\ns_cbranch_scc1 {LN3}\ns_mov_b32 exec_lo, 1\ns_mov_b32 exec_hi, 1")
    for i in range(16): A(f"v_mov_b32 v{TA+i}, v{NY+i}")
    A(f"s_mov_b64 exec, -1\n{LN3}:\ns_nop 1")
    def zout(tt, part):
        a = AC3+32*tt+16*part
        e = [f"v_cvt_pk_bf16_f32 v{a+i}, v{a+2*i}, v{a+2*i+1}" for i in range(8)]
        return e + [f"ds_write_b128 v6, {vr(a+4*p,4)} offset:{14336*p+8192*tt+1024*part}" for p in range(2)]
    pend = zout(0, 0)
    for tt in range(2):
        for f in range(4):
            A(f"{MFMA} {vr(AC3+32*tt+16,16)}, {vr(TA+16*tt+4*f,4)}, {vr(EI+4*f,4)}, {vr(AC3+32*tt+16,16) if f else 0}")
            for _ in range(3):
                if pend: A(pend.pop(0))
    for x in pend + zout(0, 1): A(x)
    A(f"s_cmp_eq_u32 s40, 3\ns_cbranch_scc1 {LZ}")
    for x in zout(1, 0) + zout(1, 1): A(x)
    A(f"{LZ}:")
    lds_sync(C_Z, 4)
    for i in range(14): A(f"ds_read_b128 {vr(ZB+4*i,4)}, v5 offset:{1024*i}")
    for i in range(14):
        A(f"s_waitcnt lgkmcnt({13-i})\n{MFMA} {vr(AC4,16)}, {vr(G+4*i,4)}, {vr(ZB+4*i,4)}, {vr(AC4,16) if i else 0}")
    for g in range(4):
        A(f"v_xor_b32 v9, {32*g}, v7\nds_write_b128 v9, {vr(AC4+4*g,4)}")
    lds_sync(C_Y, 4)
    A(f"""ds_read_b128 v[16:19], v10
ds_read_b128 v[20:23], v11
ds_read_b128 v[24:27], v10 offset:8192
ds_read_b128 v[28:31], v11 offset:8192
s_waitcnt lgkmcnt(0)""")
    for i in range(8): A(f"v_add_f32 v{32+i}, v{16+i}, v{24+i}\nv_sub_f32 v{40+i}, v{16+i}, v{24+i}")
    for i in range(8): A(f"v_cvt_pk_bf16_f32 v{48+i}, v{32+2*i}, v{33+2*i}")
    A(f"""s_mov_b64 exec, s[48:49]
buffer_store_dwordx4 v[48:51], v8, {sr(SO,4)}, s41 offen
buffer_store_dwordx4 v[52:55], v8, {sr(SO,4)}, s41 offen offset:448
s_mov_b64 exec, -1
s_branch {END}""")

def fallback():
    L1, L2 = A.lab("fb1"), A.lab("fb2")
    tl = tile_loads(0, 43)
    A(f"""{LFB}:
v_mov_b32_dpp v{Q+24+6}, v7 {HI}
v_mov_b32 v12, 0xff800000
s_mov_b32 s43, {KV_OFF}
{L1}:
{tl[0]}
{tl[1]}
s_waitcnt vmcnt(0)
{MFMA} {vr(S,16)}, {vr(kb(0,0),4)}, {q(3,0)}, 0
{MFMA} {vr(S,16)}, {vr(kb(0,1),4)}, {q(3,1)}, {vr(S,16)}""")
    for i in range(0, 16, 2): A(f"v_max3_f32 v12, v12, v{S+i}, v{S+i+1}")
    A(f"""s_add_u32 s43, s43, {KV_REC}
s_cmp_lt_u32 s43, {KV_OFF+64*KV_REC}
s_cbranch_scc1 {L1}
v_mov_b32 v13, v12
v_mov_b32 v14, v12
v_permlane32_swap_b32 v13, v14
v_max_f32 v12, v13, v14""")
    for i in range(16): A(f"v_mov_b32 v{OK+i}, 0")
    A(f"s_mov_b32 s43, {KV_OFF}\n{L2}:")
    for x in tl: A(x)
    A(f"""s_waitcnt vmcnt(0)
{MFMA} {vr(S,16)}, {vr(kb(0,0),4)}, {q(3,0)}, 0
{MFMA} {vr(S,16)}, {vr(kb(0,1),4)}, {q(3,1)}, {vr(S,16)}""")
    for i in range(16): A(f"v_sub_f32 v{S+i}, v{S+i}, v12")
    for i in range(16): A(f"v_exp_f32 v{S+i}, v{S+i}")
    A(f"""{SMF} {vr(OK,16)}, {vr(kb(0,2),4)}, {vr(S,8)}, v5
{SMF} {vr(OK,16)}, {vr(kb(0,3),4)}, {vr(S+8,8)}, v5
s_nop 15
s_add_u32 s43, s43, {KV_REC}
s_cmp_lt_u32 s43, {KV_OFF+64*KV_REC}
s_cbranch_scc1 {L2}
s_branch {LN}""")

def finish():
    A(f"{END}:")
    if OPT["probe"]:
        LQ = A.lab("probe")
        stamp(13)
        A(f"""s_cmp_lg_u32 s2, {OPT["pwg"]}
s_cbranch_scc1 {FIN}
s_cmp_lg_u32 s3, {OPT["pwave"]}
s_cbranch_scc1 {FIN}
s_waitcnt lgkmcnt(0)
s_sub_u32 s56, s{64+2*OPT["probe"]}, s66
s_mul_i32 s56, s56, 10
s_add_u32 s56, s56, s90
{LQ}:
s_memrealtime s[58:59]
s_waitcnt lgkmcnt(0)
s_sub_u32 s57, s58, s56
s_cmp_lt_i32 s57, 0
s_cbranch_scc1 {LQ}""")
    elif STAMPS:
        stamp(13)
        A(f"""s_waitcnt vmcnt(0)
s_memtime s[92:93]
s_memrealtime s[94:95]
s_waitcnt lgkmcnt(0)
s_mov_b32 s56, s24
s_mov_b32 s57, s25
s_mov_b32 s58, 0x2000000
s_mov_b32 s59, 0x00020000
s_mov_b64 exec, 1
s_lshl_b32 s60, s2, 3
s_add_u32 s60, s60, s3
s_lshl_b32 s60, s60, 6
s_add_u32 s60, s60, {TS_OFF}
v_mov_b32 v1, 0""")
        for i in range(16):
            A(f"v_mov_b32 v2, s{64+2*i}\nbuffer_store_dword v2, v1, s[56:59], s60 offen offset:{4*i}")
    A(f"{FIN}:\ns_endpgm")

entry(); b1_loader(); a1_dispatch_loader(); a1_gen(); a1_compute(); pub1(); helper()
A(f"{LB1C}:\ns_setprio 2"); main_start()
for i in range(64): A(f"v_mov_b32 v{ACC+i}, 0")
A("s_waitcnt lgkmcnt(0)"); gettag()
gen_pre(); b1_compute()
attention(); fallback(); finish()

HDR = open("cdna_kernels/%s.s.ref" % NAME).read().split("; Override")[0]
txt = HDR + f"; @launch grid=(256,1,1) block=(512,1,1) lds={LDS_BYTES}\n"
txt += '.amdgcn_target "amdgcn-amd-amdhsa--gfx950"\n.text\n' + A.finish()
txt += f""".section .rodata,"a"
.p2align 6
.amdhsa_kernel {K}
  .amdhsa_next_free_vgpr 256
  .amdhsa_next_free_sgpr 96
  .amdhsa_accum_offset 256
  .amdhsa_group_segment_fixed_size 0
  .amdhsa_kernarg_size 72
  .amdhsa_user_sgpr_count 2
  .amdhsa_user_sgpr_kernarg_segment_ptr 1
  .amdhsa_system_sgpr_workgroup_id_x 1
.end_amdhsa_kernel
"""
out = args[0] if args else "cdna_kernels/%s.s" % NAME
open(out, "w").write(txt)
print("wrote", out, len(txt))
```

```python
import sys, struct
from emit import Asm
from layout import *
NAME = "concat_heads__spectral_gfnet__softmax_full_mha__prompt"
OPT = dict(stamps=0, r1=8, pf=1, sl1=1, sl2=8, sl3=40, rot=1, x=0, probe=0, pwave=4, pwg=100, pd=0, wos=2, lp=13, slg=8, g2=0, ro=2, wm=0, tch=0, pda=40, oa=0, ob=0)
args = []
for a in sys.argv[1:]:
    if "=" in a: k, v = a.split("="); assert k in OPT, k; OPT[k] = int(v)
    else: args.append(a)
STAMPS = OPT["stamps"]
MODS = ['', 'sc1', 'nt', 'sc0 sc1']
OA, OBM = MODS[OPT['oa']], MODS[OPT['ob']]
def f32(x): return "0x%08x" % struct.unpack("<I", struct.pack("<f", x))[0]
def vr(a, n=1): return f"v{a}" if n == 1 else f"v[{a}:{a+n-1}]"
def sr(a, n=1): return f"s{a}" if n == 1 else f"s[{a}:{a+n-1}]"
P_AX, P_WR, P_WI, P_BX, P_WQKV, P_WO, P_OUT, P_DBG, P_WS = 8,10,12,14,16,18,20,22,24
MFMA = "v_mfma_f32_32x32x16_bf16"
SMF = "v_smfmac_f32_32x32x32_bf16"
SC = "sc1"
HI = "quad_perm:[0,1,2,3] row_mask:0xc bank_mask:0xf"
TAGC = 0x9E3779B9
TAG = 62
SWS = 36; W = sr(SWS,4)
SX, SW = 28, 32
SPIN = 200000
WO, OST = 0, 0
QX, EX, TX, WX = 0, 8192, 16384, 24576
MERGE = 114688
ZOFF, YOFF = MERGE, MERGE + 28672
CNT = 162816
LDS_BYTES = 163840
(C_P1, R_KV, C_MERGE, C_OST, R_A1, C_EX, C_A2, R_A2, C_Z, C_Y, C_WOA, C_WOF, C_GO, C_G2, C_Q, C_LF, C_T, C_W, C_X) = [CNT+16*i+12 for i in range(19)]

A = Asm()
def stamp(i):
    if STAMPS: A(f"{'s_memtime' if STAMPS == 2 else 's_memrealtime'} s[{64+2*i}:{65+2*i}]")
def stampw(i):
    if STAMPS: stamp(i); A("s_waitcnt lgkmcnt(0)")
def srd(d, p, nbytes):
    A(f"s_mov_b32 s{d}, s{p}\ns_mov_b32 s{d+1}, s{p+1}\ns_mov_b32 s{d+2}, {nbytes}\ns_mov_b32 s{d+3}, 0x00020000")
def pi32(d, s, t):
    A(f"""v_and_b32 v{d}, 0x13, v{s}
v_and_b32 v{t}, 4, v{s}
v_lshl_or_b32 v{d}, v{t}, 1, v{d}
v_and_b32 v{t}, 8, v{s}
v_lshrrev_b32 v{t}, 1, v{t}
v_or_b32 v{d}, v{d}, v{t}""")
def mod7(d, t):
    A(f"s_mul_i32 s{t}, s{d}, 37\ns_lshr_b32 s{t}, s{t}, 8\ns_mul_i32 s{t}, s{t}, 7\ns_sub_u32 s{d}, s{d}, s{t}")
def lds_add(addr):
    A(f"v_mov_b32 v12, {addr}\nv_mov_b32 v13, 1\ns_mov_b64 exec, 1\nds_add_u32 v12, v13\ns_mov_b64 exec, -1")
def lds_wait(addr, target, sleep=0, setup=True):
    L, L2 = A.lab("lw"), A.lab("lwd")
    if setup: A(f"v_mov_b32 v12, {addr}")
    A(f"""{L}:
ds_read_b32 v13, v12
s_waitcnt lgkmcnt(0)
v_readfirstlane_b32 s60, v13
s_cmp_ge_u32 s60, {target}""")
    if sleep: A(f"s_cbranch_scc1 {L2}\ns_sleep {sleep}\ns_branch {L}\n{L2}:")
    else: A(f"s_cbranch_scc0 {L}")
def lds_sync(addr, target, sleep=0):
    A("s_waitcnt lgkmcnt(0)"); lds_add(addr); lds_wait(addr, target, sleep, False)
def arrive(cnt, skip):
    A(f"""s_waitcnt vmcnt(0)
v_mov_b32 v12, {cnt}
v_mov_b32 v13, 1
s_mov_b64 exec, 1
ds_add_rtn_u32 v13, v12, v13
s_mov_b64 exec, -1
s_waitcnt lgkmcnt(0)
v_readfirstlane_b32 s60, v13
s_cmp_lg_u32 s60, 3
s_cbranch_scc1 {skip}""")
def flagstore(soff, nrep, repstride):
    A(f"""v_mul_u32_u24 v12, {repstride}, v0
v_mov_b32 v13, s{TAG}
s_mov_b64 exec, {(1<<nrep)-1}
buffer_store_dword v13, v12, {W}, {soff} offen {SC}
s_mov_b64 exec, -1""")
def publish(cnt, soff, nrep, repstride):
    L = A.lab("pub")
    arrive(cnt, L); flagstore(f"s{soff}", nrep, repstride); lds_add(C_X); A(f"{L}:")
def acquire(rel, body, sleep, sleep2=1):
    LP, LD, LO, LE = A.lab("poll"), A.lab("pollok"), A.lab("pollw"), A.lab("polle")
    A(f"s_cmp_lg_u32 s40, 0\ns_cbranch_scc1 {LO}\ns_mov_b32 s61, {SPIN}\n{LP}:")
    body()
    A(f"""s_cbranch_vccz {LD}
s_sub_u32 s61, s61, 1
s_cmp_eq_u32 s61, 0
s_cbranch_scc1 {LD}
s_sleep {sleep}
s_branch {LP}
{LD}:""")
    lds_add(rel)
    A(f"s_branch {LE}\n{LO}:")
    lds_wait(rel, 1, sleep2)
    A(f"{LE}:")
def gettag():
    A(f"s_load_dword s{TAG}, s[24:25], {EPOCH_OFF}")
    srd(SWS, P_WS, WS_USED)
def fixtag():
    A(f"s_waitcnt lgkmcnt(0)\ns_add_u32 s{TAG}, s{TAG}, {TAGC}")

FIN, END, ATT, PUB1, HELP2, GEN = "L_fin", "L_end", "L_att", "L_pub1", "L_help2", "L_gen"
LA1, LB1C, LB1G, LA1C, LV, LN, LFB = "L_a1", "L_b1c", "L_b1g", "L_a1c", "L_b1v", "L_norm", "L_fallback"
K = NAME + "_kernel"

def entry():
    A(f".globl {K}\n.p2align 8\n.type {K},@function\n{K}:")
    A(f"""s_cmp_ge_u32 s2, 256
s_cbranch_scc1 {FIN}
s_load_dwordx16 s[8:23], s[0:1], 0
s_load_dwordx2 s[24:25], s[0:1], 64
v_lshrrev_b32 v1, 6, v0
v_readfirstlane_b32 s3, v1
v_and_b32 v0, 63, v0""")
    if STAMPS:
        for i in range(2, 14): A(f"s_mov_b32 s{64+2*i}, 0")
        A("s_memtime s[64:65]\ns_memrealtime s[66:67]")
    if OPT["pf"]:
        L = A.lab("pf"); LP = A.lab("pc")
        A(f"""s_cmp_lg_u32 s3, 3
s_cbranch_scc1 {L}
s_getpc_b64 s[56:57]
{LP}:
s_bfe_u32 s58, s2, 0x20003
s_lshl_b32 s58, s58, 13
v_lshlrev_b32 v1, 7, v0
v_add_u32 v1, s58, v1
v_min_u32 v1, {FIN}-{LP}, v1
global_load_dword v255, v1, s[56:57]
{L}:""")
    A(f"""s_and_b32 s4, s2, 7
s_lshr_b32 s5, s2, 3
s_lshl_b32 s6, s4, 1
s_and_b32 s7, s5, 1
s_or_b32 s6, s6, s7
s_lshr_b32 s7, s5, 1
s_and_b32 s40, s3, 3
s_cmp_ge_u32 s7, 11
s_cbranch_scc1 {LA1}
s_cmp_lt_u32 s3, 4
s_cbranch_scc1 {LB1C}""")

def xaddr(rs):
    A(f"""v_lshrrev_b32 v1, 3, v0
v_and_b32 v14, 7, v0
v_lshrrev_b32 v15, 4, v0
v_xor_b32 v14, v14, v15
v_lshlrev_b32 v14, 4, v14
v_xor_b32 v16, 64, v14
v_mul_u32_u24 v1, {rs}, v1
v_add_u32 v2, v1, v14
v_add_u32 v3, v1, v16
v_add_u32 v3, {8*rs-1024}, v3
v_add_u32 v4, {2*(8*rs-1024)}, v2
v_add_u32 v5, {2*(8*rs-1024)}, v3""")
def b1_loader():
    A("s_setprio 3\ns_add_u32 s26, s6, s7")
    mod7(26, 27)
    if not OPT["rot"]: A("s_mov_b32 s26, 0")
    xaddr(896)
    A(f"""v_and_b32 v14, 15, v0
v_lshlrev_b32 v16, 2, v15
v_xor_b32 v14, v14, v16
v_lshlrev_b32 v14, 4, v14
v_mul_u32_u24 v15, 2688, v15
v_add_u32 v6, v14, v15
v_add_u32 v7, {4*2688-1024}, v6
v_add_u32 v8, {2*(4*2688-1024)}, v6
v_add_u32 v9, {3*(4*2688-1024)}, v6
s_lshl_b32 s41, s6, 2
s_add_u32 s47, s41, s40
s_mul_i32 s41, s47, {32*896}     ; x base
s_mul_i32 s42, s40, {16*2688}
s_lshl_b32 s43, s7, 8
s_add_u32 s42, s42, s43          ; w base
s_lshl_b32 s44, s40, 12
s_waitcnt lgkmcnt(0)""")
    srd(SX, P_BX, X_BYTES); srd(SW, P_WQKV, WQKV_BYTES)
    def issue():
        A(f"""s_lshl_b32 s45, s26, 7
s_add_u32 s45, s45, s41
s_mul_i32 s46, s26, {64*2688}
s_add_u32 s46, s46, s42
s_mov_b32 m0, s44""")
        for i in range(4): A(f"buffer_load_dwordx4 v{2+i}, {sr(SX,4)}, s45 offen offset:{1024*i} lds")
        A(f"s_add_u32 m0, s44, 16384")
        for i in range(4): A(f"buffer_load_dwordx4 v{6+i}, {sr(SW,4)}, s46 offen offset:{1024*i} lds")
        A("""s_add_u32 s26, s26, 1
s_cmp_eq_u32 s26, 7
s_cselect_b32 s26, 0, s26
s_add_u32 s44, s44, 0x8000
s_and_b32 s44, s44, 0x1ffff""")
    LL = A.lab("b1ld")
    issue(); gettag()
    A(f"s_mov_b32 s48, 6\n{LL}:")
    issue()
    A("s_waitcnt vmcnt(8)")
    if STAMPS:
        LX = A.lab("st"); A(f"s_cmp_lg_u32 s48, 6\ns_cbranch_scc1 {LX}"); stamp(2); A(f"{LX}:")
    A(f"""s_barrier
s_sub_u32 s48, s48, 1
s_cmp_lg_u32 s48, 0
s_cbranch_scc1 {LL}""")
    fixtag()
    A("s_waitcnt vmcnt(0)")
    stamp(3)
    A(f"s_barrier\ns_branch {ATT}")

def a1_dispatch_loader():
    A(f"""{LA1}:
s_sub_u32 s5, s7, 11           ; g5
s_mul_i32 s26, s5, 3
s_lshr_b32 s26, s26, 1         ; e0 in 0,1,3,4,6""")
    if not OPT["rot"]: A("s_mov_b32 s26, 0")
    A(f"s_cmp_lt_u32 s3, 4\ns_cbranch_scc1 {LA1C}\ns_setprio 3")
    xaddr(64*896)
    A(f"""s_lshl_b32 s41, s6, 2
s_add_u32 s41, s41, s40
s_mul_i32 s41, s41, 896
s_lshl_b32 s44, s40, 12
s_lshl_b32 s26, s26, 2
s_add_u32 s26, s26, 3""")
    mod7(26, 27)
    A("s_waitcnt lgkmcnt(0)")
    srd(SX, P_AX, X_BYTES)
    gettag()
    LL, LS = A.lab("a1ld"), A.lab("a1lds")
    A(f"""s_mov_b32 s48, 0
{LL}:
s_lshl_b32 s45, s26, 7
s_add_u32 s45, s45, s41
s_lshl_b32 s46, s26, 14
s_add_u32 m0, s44, s46""")
    for i in range(4): A(f"buffer_load_dwordx4 v{2+i}, {sr(SX,4)}, s45 offen offset:{1024*i} lds")
    A(f"""s_add_u32 s26, s26, 4
s_sub_u32 s27, s26, 7
s_cmp_ge_u32 s26, 7
s_cselect_b32 s26, s27, s26
s_add_u32 s48, s48, 1
s_cmp_lt_u32 s48, 4
s_cbranch_scc1 {LL}
s_waitcnt vmcnt(8)
s_barrier
s_cmp_lt_u32 s48, 7
s_cbranch_scc1 {LL}""")
    fixtag()
    if OPT["tch"]:
        LT = A.lab("tch")
        srd(SW, P_WR, W_BYTES)
        A(f"""s_lshr_b32 s45, s2, 3
s_sub_u32 s45, s45, 22
s_lshl_b32 s45, s45, 2
s_add_u32 s45, s45, s40         ; 0..39
s_bitcmp0_b32 s45, 0
s_cbranch_scc1 {LT}""")
        srd(SW, P_WI, W_BYTES)
        A(f"""{LT}:
s_lshr_b32 s45, s45, 1
s_mul_i32 s45, s45, {128*450}
s_mul_i32 s46, s4, {4*450}
s_add_u32 s45, s45, s46
s_and_b32 s45, s45, 0xffffff80
v_lshrrev_b32 v12, 4, v0
v_mul_u32_u24 v12, {32*450}, v12
v_and_b32 v13, 15, v0
v_lshl_add_u32 v12, v13, 7, v12
buffer_load_dword v255, v12, {sr(SW,4)}, s45 offen
s_waitcnt vmcnt(5)
s_barrier
s_waitcnt vmcnt(1)""")
    else:
        A("s_waitcnt vmcnt(4)\ns_barrier\ns_waitcnt vmcnt(0)")
    stamp(3)
    A(f"s_barrier\ns_branch {ATT}")

def main_start():
    A(f"""v_lshlrev_b32 v1, 4, v0
v_add_u32 v1, {CNT+12}, v1
v_mov_b32 v2, 0
ds_write_b32 v1, v2""")

C, ER, EI, G, GT = 128, 160, 176, 192, 16
def gen_common():
    A(f"""v_and_b32 v14, 31, v0
v_lshrrev_b32 v15, 5, v0
s_lshr_b32 s50, s2, 5
s_lshl_b32 s50, s50, 3
s_or_b32 s50, s50, s4
s_bfe_u32 s51, s2, 0x20003       ; d quarter
s_and_b32 s52, s40, 1            ; parity e""")
def rot_gen(n, nblk, step, base, mult, dmult, out, scale=None):
    c, sn, t = GT, GT+8, GT+16
    A(f"v_mul_f32 v11, {f32(float(dmult))}, v{step}")
    for j in range(n): A(f"v_fmamk_f32 v{t+j}, v{step}, {f32(float(mult[j]))}, v{base}")
    A("v_cos_f32 v10, v11\nv_sin_f32 v11, v11")
    for j in range(n): A(f"v_cos_f32 v{c+j}, v{t+j}\nv_sin_f32 v{sn+j}, v{t+j}")
    if scale is not None:
        for j in range(n): A(f"v_mul_f32 v{c+j}, {f32(scale)}, v{c+j}\nv_mul_f32 v{sn+j}, {f32(scale)}, v{sn+j}")
    for b in range(nblk):
        out(b)
        if b + 1 < nblk:
            for j in range(0, n, 2): A(f"v_pk_mul_f32 {vr(t+j,2)}, {vr(sn+j,2)}, v[10:11] op_sel:[0,1] op_sel_hi:[1,1]")
            for j in range(0, n, 2): A(f"v_pk_mul_f32 {vr(sn+j,2)}, {vr(sn+j,2)}, v[10:11] op_sel_hi:[1,0]")
            for j in range(0, n, 2): A(f"v_pk_fma_f32 {vr(sn+j,2)}, {vr(c+j,2)}, v[10:11], {vr(sn+j,2)} op_sel:[0,1,0] op_sel_hi:[1,1,1]")
            for j in range(0, n, 2): A(f"v_pk_fma_f32 {vr(c+j,2)}, {vr(c+j,2)}, v[10:11], {vr(t+j,2)} op_sel_hi:[1,0,1] neg_lo:[0,0,1] neg_hi:[0,0,1]")
def gen_c():
    A(f"""v_lshrrev_b32 v8, 1, v14
s_lshl_b32 s43, s40, 4
v_add_u32 v8, s43, v8
v_cvt_f32_u32 v8, v8
v_mul_f32 v8, {f32(1/64)}, v8    ; step = u2/64
v_and_b32 v9, 1, v14
v_cvt_f32_u32 v9, v9
v_mul_f32 v9, {f32(0.25)}, v9
v_lshlrev_b32 v10, 1, v15
v_cvt_f32_u32 v10, v10
v_fma_f32 v9, v8, v10, v9        ; base""")
    def out(f):
        for p in range(4): A(f"v_cvt_pk_bf16_f32 v{C+4*f+p}, v{GT+p}, v{GT+8+p}")
    rot_gen(4, 8, 8, 9, [0,1,4,5], 8, out)
def gen_e():
    A(f"""v_lshlrev_b32 v8, 6, v14
v_add_u32 v8, s50, v8
v_cvt_f32_u32 v8, v8
v_mul_f32 v8, {f32(1/2048)}, v8
v_lshlrev_b32 v9, 2, v15
v_cvt_f32_u32 v9, v9
v_mul_f32 v9, v8, v9""")
    def out(f):
        for p in range(4): A(f"v_cvt_pk_bf16_f32 v{ER+4*f+p}, v{GT+p}, -v{GT+8+p}")
        for p in range(4): A(f"v_cvt_pk_bf16_f32 v{EI+4*f+p}, v{GT+8+p}, v{GT+p}")
    rot_gen(4, 4, 8, 9, [0,1,2,3], 8, out, 2.0/(2048*448))
def gen_g():
    A(f"""s_lshr_b32 s44, s40, 1
s_lshl_b32 s45, s51, 1
s_add_u32 s44, s44, s45         ; d tile
s_lshl_b32 s46, s44, 5
v_add_u32 v8, s46, v14          ; d
v_cvt_f32_u32 v8, v8
v_mul_f32 v8, {f32(1/448)}, v8
v_lshlrev_b32 v9, 3, v15
v_add_u32 v9, s52, v9
v_cmp_eq_u32 vcc, 0, v9
v_cvt_f32_u32 v9, v9
v_mul_f32 v9, v8, v9""")
    def out(t):
        for j in range(4): A(f"v_cvt_pk_bf16_f32 v{G+8*t+j}, v{GT+2*j}, v{GT+2*j+1}")
        for j in range(4): A(f"v_cvt_pk_bf16_f32 v{G+8*t+4+j}, -v{GT+8+2*j}, -v{GT+9+2*j}")
    rot_gen(8, 7, 8, 9, [16*(j>>2)+2*(j&3) for j in range(8)], 32, out)
    A(f"""v_and_b32 v8, 0xffff0000, v{G}
v_or_b32 v8, 0x3f00, v8
v_and_b32 v10, 1, v14
v_lshlrev_b32 v10, 15, v10
v_cndmask_b32 v{G}, v{G}, v8, vcc
v_and_b32 v8, 0xffff, v8
v_and_b32 v9, 0xffff0000, v{G+4}
v_or3_b32 v9, v9, v10, v8
v_cndmask_b32 v{G+4}, v{G+4}, v9, vcc""")
def gen_pre():
    gen_common()
    A(f"{GEN}:")
    gen_c(); gen_e()
    A(f"s_cmp_ge_u32 s7, 11\ns_cbranch_scc1 {HELP2}")

ACC = 64
def acc(a, b): return ACC + 32*a + 16*b
def b1_body(vtype):
    if vtype: pi32(48, 14, 49)
    else: A("v_mov_b32 v48, v14")
    A(f"""v_lshrrev_b32 v49, 1, v48
v_and_b32 v49, 7, v49
v_xor_b32 v49, v49, v15
v_lshlrev_b32 v49, 4, v49
v_lshl_or_b32 v50, v48, 7, v49
s_lshl_b32 s43, s41, 13
v_add_u32 v52, s43, v50
v_xor_b32 v53, 32, v52
v_xor_b32 v54, 64, v52
v_xor_b32 v55, 96, v52""")
    A(f"""v_bfe_u32 v48, v0, 2, 2        ; rr
v_and_b32 v49, 3, v0           ; cc""")
    if not vtype:
        A("""v_lshrrev_b32 v50, 1, v49
v_and_b32 v49, 1, v49
v_lshl_or_b32 v49, v49, 1, v50 ; sigma(cc)""")
    A(f"""v_bfe_u32 v50, v0, 4, 1        ; colhalf
v_lshlrev_b32 v50, 5, v50
v_lshl_or_b32 v50, v49, 3, v50
s_lshl_b32 s43, s42, 7
v_or_b32 v50, s43, v50
v_lshlrev_b32 v51, 6, v48
v_xor_b32 v50, v50, v51
v_lshl_add_u32 v51, v15, 3, v48 ; 8h+rr
v_lshl_or_b32 v56, v51, 8, v50
v_add_u32 v56, 16384, v56
v_xor_b32 v57, 64, v56""")
    A(f"""s_lshl_b32 s46, s6, 2
s_lshl_b32 s47, s41, 1
s_add_u32 s46, s46, s47
s_lshl_b32 s47, s7, 2
s_lshl_b32 s48, s42, 1
s_add_u32 s47, s47, s48""")
    if not vtype:
        A(f"""s_lshl_b32 s48, s47, 11
v_lshlrev_b32 v2, 4, v0
s_cmp_ge_u32 s47, 14
s_cselect_b32 s49, {KV_REC - QK_TILE}, 0
s_cselect_b32 s43, {KV_OFF - Q_OFF - 14*2048}, 0
s_cselect_b32 s54, 1.0, {f32(QSCALE)}
s_mov_b32 s55, s54
s_add_u32 s49, s49, {QK_TILE}
s_mul_i32 s46, s46, s49
s_add_u32 s46, s46, s48
s_add_u32 s46, s46, s43
s_add_u32 s46, s46, {Q_OFF}
s_add_u32 s49, s46, s49""")
    else:
        A(f"""s_sub_u32 s45, s7, 7
s_lshl_b32 s45, s45, 7
s_add_u32 s45, s45, 27
s_mul_i32 s45, s45, 2341
s_lshr_b32 s45, s45, 16
v_lshrrev_b32 v10, 3, v0
v_cmp_gt_u32 s[56:57], 5, v10
v_add_u32 v10, s45, v10
v_bfe_u32 v11, v0, 1, 2
v_lshlrev_b32 v11, 9, v11
v_lshl_or_b32 v11, v10, 11, v11
v_cmp_gt_u32 vcc, 16, v10
v_and_b32 v4, 1, v0
v_lshl_or_b32 v4, v4, 6, v11
s_and_b64 s[56:57], s[56:57], vcc
s_lshl_b32 s54, s6, 2
s_add_u32 s54, s54, s40
s_mul_i32 s54, s54, {KV_REC}
s_add_u32 s54, s54, {KV_OFF + QK_TILE + 26*16}
v_mov_b32 v58, 0x3f803f80
v_mov_b32 v59, 0x3f803f80
v_mov_b32 v60, 0x3f803f80
v_mov_b32 v61, 0x3f803f80
s_sub_u32 s47, s47, 28
s_mul_i32 s46, s46, {KV_REC}
s_add_u32 s46, s46, {KV_OFF + QK_TILE}
s_add_u32 s49, s46, {KV_REC}
s_lshl_b32 s48, s47, 5""")
        for b in range(2):
            A(f"""v_add_u32 v48, s48, v14
v_add_u32 v48, {32*b}, v48
v_mul_u32_u24 v49, 2341, v48
v_lshrrev_b32 v49, 16, v49     ; head
v_mul_u32_u24 v50, 28, v49
v_sub_u32 v48, v48, v50        ; d
v_add_u32 v50, 6, v48
v_lshrrev_b32 v50, 5, v50
v_lshl_add_u32 v48, v50, 1, v48
v_lshlrev_b32 v48, 4, v48
v_lshl_or_b32 v48, v15, 9, v48
v_lshl_or_b32 v{2+b}, v49, 11, v48""")
        A(f"""s_cmp_ge_u32 s47, 14
s_cselect_b32 s46, {WS_USED}, s46
s_cselect_b32 s49, {WS_USED}, s49""")
    SETS = (16, 32, 192, 208)
    def rx(kap, p, a): return f"ds_read_b128 {vr(SETS[p]+4*a,4)}, v{6+kap} offset:{4096*a}"
    def rw(kap, p, b): return [f"ds_read_b64_tr_b16 {vr(SETS[p]+8+4*b+2*u,2)}, v{10+b} offset:{(16*kap+4*u)*256}" for u in range(2)]
    def rdlist(kap, p): return [rx(kap,p,0)] + rw(kap,p,0) + rw(kap,p,1) + [rx(kap,p,1)]
    def setaddr(): return [f"v_add_u32 v{6+i}, s44, v{52+i}" for i in range(6)]
    def mf(a, b, p):
        x, w = vr(SETS[p]+4*a,4), vr(SETS[p]+8+4*b,4)
        o = (x, w) if vtype else (w, x)
        A(f"{MFMA} {vr(acc(a,b),16)}, {o[0]}, {o[1]}, {vr(acc(a,b),16)}")
    gb = []
    def fill(n):
        for _ in range(n):
            if gb:
                for x in gb.pop(0): A(x)
    def kstep(p, r, f):
        A("s_waitcnt lgkmcnt(3)")
        mf(0,0,p)
        for x in r[0:3]: A(x)
        fill(f[0])
        A("s_waitcnt lgkmcnt(4)")
        mf(0,1,p)
        for x in r[3:5]: A(x)
        fill(f[1])
        A("s_waitcnt lgkmcnt(5)")
        mf(1,0,p)
        for x in r[5:6]: A(x)
        fill(f[2])
        mf(1,1,p)
        fill(f[3])
    LL = A.lab("b1loop")
    A("s_mov_b32 s44, 0\ns_mov_b32 s45, 0")
    for x in setaddr(): A(x)
    stampw(9)
    A("s_barrier")
    stampw(2)
    for x in rdlist(0, 0): A(x)
    A(f"{LL}:")
    kstep(0, rdlist(1, 1), (0,1,2,3))
    kstep(1, rdlist(2, 0), (0,1,2,3))
    A("s_add_u32 s44, s44, 0x8000\ns_and_b32 s44, s44, 0x1ffff\ns_add_u32 s45, s45, 1")
    kstep(0, rdlist(3, 1), (1,1,2,0))
    for x in setaddr(): A(x)
    A("s_barrier")
    kstep(1, rdlist(0, 0), (1,1,1,1))
    assert not gb
    A(f"s_cmp_lt_u32 s45, 6\ns_cbranch_scc1 {LL}")
    rd = []
    for kap in (1,2,3): rd += [rx(kap,kap,0)] + rw(kap,kap,0)
    for kap in (1,2,3): rd += rw(kap,kap,1)
    for kap in (1,2,3): rd += [rx(kap,kap,1)]
    order = [rdlist(0,0)[i] for i in range(6)] + rd
    def epi(a, b):
        e = []; t = acc(a,b)
        for i in range(8):
            if not vtype: e.append(f"v_pk_mul_f32 {vr(t+2*i,2)}, {vr(t+2*i,2)}, s[54:55]")
            e.append(f"v_cvt_pk_bf16_f32 v{t+i}, v{t+2*i}, v{t+2*i+1}")
            if i & 3 == 3:
                if vtype: e.append(f"buffer_store_dwordx4 {vr(t+i-3,4)}, v{2+b}, {W}, s{46 if a==0 else 49} offen offset:{1024*(i>>2)} {SC}")
                else: e.append(f"buffer_store_dwordx4 {vr(t+i-3,4)}, v2, {W}, s{46 if a==0 else 49} offen offset:{2048*b+1024*(i>>2)} {SC}")
        return e
    issued = 6; pend = []; lastw = None
    for m, (a, b, kap) in enumerate([(a,b,k) for a in range(2) for b in range(2) for k in range(4)]):
        need = max(order.index(x) for x in [rx(kap,kap,a)] + rw(kap,kap,b)) + 1
        while issued < need: A(order[issued]); issued += 1
        if lastw is None or need > lastw:
            A(f"s_waitcnt lgkmcnt({issued - need})"); lastw = need
        mf(a, b, kap)
        for _ in range(3):
            if issued < len(order) and issued - lastw < 14: A(order[issued]); issued += 1
        if m in (6, 10, 14): pend += epi(*((0,0),(0,1),(1,0))[(m-6)//4])
        if m == 15: stamp(3)
        for _ in range(5 if not vtype else 3):
            if pend: A(pend.pop(0))
    for x in pend + epi(1,1): A(x)
    if vtype:
        A(f"s_mov_b64 exec, s[56:57]\nbuffer_store_dwordx4 v[58:61], v4, {W}, s54 offen {SC}\ns_mov_b64 exec, -1")
    A(f"s_branch {PUB1}")
def b1_compute():
    A(f"""s_and_b32 s41, s3, 1           ; wr
s_lshr_b32 s42, s3, 1          ; wc""")
    fixtag()
    A(f"s_cmp_ge_u32 s7, 7\ns_cbranch_scc1 {LV}")
    b1_body(False)
    A(f"{LV}:")
    b1_body(True)

FOFF = 7*16384
def a1_gen():
    A(f"{LA1C}:\ns_setprio 2")
    gen_common()
    pi32(48, 14, 49)
    A(f"""v_lshrrev_b32 v48, 1, v48       ; k_local
s_mul_i32 s41, s5, 48
v_add_u32 v48, s41, v48
v_cvt_f32_u32 v48, v48
v_mul_f32 v56, {f32(1/448)}, v48
v_add_f32 v48, {f32(16.0)}, v48
v_mul_f32 v57, {f32(1/448)}, v48
v_add_f32 v48, {f32(16.0)}, v48
v_mul_f32 v58, {f32(1/448)}, v48
v_and_b32 v48, 1, v14
v_cvt_f32_u32 v48, v48
v_mul_f32 v59, {f32(0.25)}, v48  ; c/4
v_lshlrev_b32 v60, 3, v15        ; 8h
v_lshlrev_b32 v61, 4, v0
v_add_u32 v61, {FOFF}, v61
s_mov_b32 s42, s3""")
    main_start()
    A("s_waitcnt lgkmcnt(0)"); gettag()
    LF = A.lab("fgen")
    A(f"""{LF}:
s_lshl_b32 s43, s42, 4
v_add_u32 v52, s43, v60
v_cvt_f32_u32 v52, v52
s_lshl_b32 s43, s42, 10
v_add_u32 v53, s43, v61""")
    for kgi in range(3): A(f"v_fma_f32 v{16+12*kgi}, v{56+kgi}, v52, v59")
    for j in range(1, 8):
        for kgi in range(3): A(f"v_add_f32 v{16+12*kgi+j}, v{56+kgi}, v{16+12*kgi+j-1}")
    for kgi in range(3):
        t = 16 + 12*kgi
        for j in range(8): A(f"v_cos_f32 v{t+j}, v{t+j}")
        for j in range(4): A(f"v_cvt_pk_bf16_f32 v{t+8+j}, v{t+2*j}, v{t+2*j+1}")
        A(f"ds_write_b128 v53, {vr(t+8,4)} offset:{14336*kgi}")
    A(f"s_add_u32 s42, s42, 4\ns_cmp_lt_u32 s42, 14\ns_cbranch_scc1 {LF}")
def a1_compute():
    A(f"""s_lshl_b32 s41, s6, 2
s_add_u32 s41, s41, s3          ; s2 index
v_lshlrev_b32 v5, 8, v15
v_add_u32 v5, s41, v5
v_mul_u32_u24 v5, v14, v5
v_cvt_f32_u32 v5, v5
v_mul_f32 v5, {f32(1/2048)}, v5
v_cvt_f32_u32 v6, v14
v_mul_f32 v6, {f32(1/32)}, v6
v_lshrrev_b32 v49, 1, v14
v_and_b32 v49, 7, v49
v_xor_b32 v49, v49, v15
v_lshlrev_b32 v49, 4, v49
v_lshl_or_b32 v62, v14, 7, v49
s_lshl_b32 s43, s3, 12
v_add_u32 v62, s43, v62
v_and_b32 v3, 2, v14
v_lshlrev_b32 v3, 30, v3
v_or_b32 v3, 1.0, v3            ; (-1)^k
v_mov_b32 v2, v3
v_lshlrev_b32 v4, 5, v14
v_lshl_or_b32 v4, v15, 4, v4
s_mul_i32 s47, s41, {T_ROW}
s_mul_i32 s42, s5, 6144
s_add_u32 s47, s47, s42
s_add_u32 s47, s47, {T_OFF}
s_add_u32 s48, s47, 2048
s_add_u32 s49, s47, 4096""")
    egen = []
    for i in range(2):
        for j in range(8): egen.append(f"v_fmamk_f32 v{176+j}, v6, {f32(float(16*i+8*(j>>2)+(j&3)))}, v5")
        for j in range(8): egen.append(f"v_cos_f32 v{184+j}, v{176+j}")
        for j in range(8): egen.append(f"v_sin_f32 v{192+j}, v{176+j}")
        for j in range(4): egen.append(f"v_cvt_pk_bf16_f32 v{160+4*i+j}, v{184+2*j}, v{185+2*j}")
        for j in range(4): egen.append(f"v_cvt_pk_bf16_f32 v{168+4*i+j}, -v{192+2*j}, -v{193+2*j}")
    A(f"s_mul_i32 s27, s26, 8256")
    def a1salu(adv=True):
        r = []
        if adv: r += ["s_add_u32 s27, s27, 8256", f"s_cmp_eq_u32 s27, {7*8256}", "s_cselect_b32 s27, 0, s27"]
        return r + ["s_and_b32 s43, s27, 0x1c040", f"s_add_u32 s44, s27, {7*8256}", "s_and_b32 s44, s44, 0x1c040",
                    "s_lshr_b32 s46, s27, 2", "s_and_b32 s46, s46, 0x7800"]
    a1valu = ["v_xor_b32 v8, s43, v62", "v_xor_b32 v10, s44, v62", "v_xor_b32 v9, 32, v8", "v_xor_b32 v11, 32, v10", "v_add_u32 v12, s46, v61"]
    def a1rd(t):
        b = 16 + 20*t
        return ([f"ds_read_b128 {vr(b,4)}, v{8+t}"] +
                [f"ds_read_b128 {vr(b+8+4*kgi,4)}, v12 offset:{1024*t+14336*kgi}" for kgi in range(3)] +
                [f"ds_read_b128 {vr(b+4,4)}, v{10+t}"])
    def a1step(t, nxt, first=False, fill=0, adv=False):
        b = 16 + 20*t
        r = list(nxt); issued = 0
        sa = a1salu() if adv else []; va = list(a1valu) if adv else []
        for m in range(6):
            hi, kgi = m // 3, m % 3
            need = (2, 3, 4, 5, 5, 5)[m]
            if not nxt: hi, kgi, need = m % 2, m // 2, (2, 5, 5, 5, 5, 5)[m]
            if m < (4 if nxt else 2): A(f"s_waitcnt lgkmcnt({5 - need + issued})")
            d = 64 + 32*kgi + 16*hi
            A(f"{MFMA} {vr(d,16)}, {vr(b+4*hi,4)}, {vr(b+8+4*kgi,4)}, {0 if first else vr(d,16)}")
            for _ in range(2 if m == 0 else 1):
                if r: A(r.pop(0)); issued += 1
            if m in (1, 2, 3):
                for _ in range(3):
                    if sa: A(sa.pop(0))
            if m == 4:
                while va: A(va.pop(0))
            for _ in range(fill if not (adv and m in (1,2,3,4)) else fill // 2):
                if egen: A(egen.pop(0))
    LL, LS, LNB = A.lab("a1loop"), A.lab("a1last"), A.lab("a1nb")
    for x in a1salu(False) + a1valu: A(x)
    fixtag()
    stampw(9)
    A("s_barrier")
    stampw(2)
    for x in a1rd(0): A(x)
    for n in range(3):
        a1step(0, a1rd(1), n == 0, 2, True)
        A("s_barrier")
        a1step(1, a1rd(0), False, 3)
    assert not egen
    A(f"s_mov_b32 s45, 3\n{LL}:")
    a1step(0, a1rd(1), adv=True)
    A(f"""s_add_u32 s45, s45, 1
s_cmp_eq_u32 s45, 7
s_cbranch_scc1 {LS}
s_cmp_eq_u32 s45, 6
s_cbranch_scc1 {LNB}
s_barrier
{LNB}:""")
    a1step(1, a1rd(0))
    A(f"s_branch {LL}\n{LS}:")
    a1step(1, [])
    stamp(3)
    def s1(kgi):
        P, Q = 64+32*kgi, 80+32*kgi
        e = []
        for i in range(8):
            e.append(f"v_pk_fma_f32 {vr(P+2*i,2)}, {vr(Q+2*i,2)}, v[2:3], {vr(P+2*i,2)}")
            e.append(f"v_cvt_pk_bf16_f32 v{16+8*kgi+i}, v{P+2*i}, v{P+2*i+1}")
        return e
    def mm(kgi):
        P, Q = 64+32*kgi, 80+32*kgi
        return [f"{MFMA} {vr(P,16)}, {vr(16+8*kgi,4)}, v[160:163], 0", f"{MFMA} {vr(Q,16)}, {vr(16+8*kgi,4)}, v[168:171], 0",
                f"{MFMA} {vr(P,16)}, {vr(20+8*kgi,4)}, v[164:167], {vr(P,16)}", f"{MFMA} {vr(Q,16)}, {vr(20+8*kgi,4)}, v[172:175], {vr(Q,16)}"]
    def s2(kgi):
        P, Q = 64+32*kgi, 80+32*kgi
        e = []
        for j in range(8):
            e += [f"v_sub_f32 v{P+2*j}, v{P+2*j}, v{Q+2*j+1}", f"v_add_f32 v{Q+2*j}, v{Q+2*j}, v{P+2*j+1}",
                  f"v_cvt_pk_bf16_f32 v{40+8*kgi+j}, v{P+2*j}, v{Q+2*j}"]
            if j & 3 == 3: e.append(f"buffer_store_dwordx4 {vr(40+8*kgi+j-3,4)}, v4, {W}, s{47+kgi} offen offset:{1024*(j>>2)} {SC}")
        return e
    def weave(ms, vs):
        k = (len(vs) + len(ms) - 1) // len(ms)
        for m in ms:
            A(m)
            for _ in range(k):
                if vs: A(vs.pop(0))
    for x in s1(0): A(x)
    weave(mm(0), s1(1)); weave(mm(1), s1(2)); weave(mm(2), s2(0))
    for x in s2(1) + s2(2): A(x)
    LI = A.lab("a1init")
    A(f"""s_cmp_ge_u32 s41, 4
s_cbranch_scc1 {LI}
s_lshl_b32 s42, s5, 2
s_add_u32 s42, s42, s41
s_lshl_b32 s42, s42, 7
s_add_u32 s42, s42, {AT_OFF}
v_mov_b32 v5, 0
s_mov_b64 exec, 1
buffer_store_dword v5, v5, {W}, s42 offen {SC}
buffer_store_dword v5, v5, {W}, s42 offen offset:{20*128} {SC}
s_mov_b64 exec, -1
{LI}:""")

def pub1():
    A(f"""{PUB1}:
s_lshl_b32 s41, s7, 11
s_lshl_b32 s42, s6, 7
s_add_u32 s41, s41, s42
s_add_u32 s41, s41, {F1_OFF}""")
    stamp(4)
    lds_add(C_LF)
    gen_g()
    publish(C_P1, 41, OPT["r1"], 32768)
    stamp(5)
    A(f"s_cmp_ge_u32 s7, 11\ns_cbranch_scc1 {GEN}")

Q, S, O, KV = 16, 48, 112, 176
OK = O + 48
TB = 8
SO = 32
def q(j,i): return vr(Q+8*j+4*i, 4)
def kb(b,i): return KV+16*b+4*i
def tile_loads(b, so):
    return [f"buffer_load_dwordx4 {vr(kb(b,0),4)}, v1, {W}, s{so} offen {SC}",
            f"buffer_load_dwordx4 {vr(kb(b,1),4)}, v2, {W}, s{so} offen {SC}",
            f"buffer_load_dwordx4 {vr(kb(b,2),4)}, v3, {W}, s{so} offen {SC}",
            f"buffer_load_dwordx4 {vr(kb(b,3),4)}, v3, {W}, s{so} offen offset:1024 {SC}"]
def attention():
    LNY, LNW = A.lab("nyq"), A.lab("now")
    A(f"{ATT}:\ns_setprio 0")
    srd(SX, P_WR, W_BYTES); srd(56, P_WI, W_BYTES)
    A(f"""s_lshr_b32 s5, s2, 3           ; ko
s_mul_i32 s55, s4, {4*450}
s_mul_i32 s43, s40, {512*450}
s_add_u32 s55, s55, s43
s_lshl_b32 s43, s5, 4
s_add_u32 s55, s55, s43
s_cmp_lg_u32 s5, 28
s_cbranch_scc1 {LNY}""")
    srd(SX, P_WI, W_BYTES); srd(56, P_WR, W_BYTES)
    A(f"""s_sub_u32 s55, s55, 14
{LNY}:
s_mov_b32 s63, s5
v_lshrrev_b32 v9, 2, v0
v_and_b32 v10, 3, v0
v_lshl_add_u32 v9, v9, 5, v10
v_mul_u32_u24 v248, 450, v9""")
    wl = [f"buffer_load_dwordx4 {vr(S,4)}, v248, {sr(SX,4)}, s55 offen", f"buffer_load_dwordx4 {vr(S+4,4)}, v248, s[56:59], s55 offen"]
    LW1, LW2 = A.lab("w1"), A.lab("w2")
    for x in wl[:OPT["wm"]]: A(x)
    A(f"s_mov_b32 s51, s7\ns_cmp_lt_u32 s7, 11\ns_cbranch_scc1 {LW1}")
    for x in wl[OPT["wm"]:]: A(x)
    A(f"{LW1}:")
    srd(SO, P_OUT, OUT_BYTES)
    A(f"""s_lshl_b32 s4, s4, 1
s_bfe_u32 s5, s2, 0x10003
s_or_b32 s4, s4, s5            ; head
s_lshr_b32 s5, s2, 4           ; qb
s_mul_i32 s6, s4, 7
s_lshr_b32 s45, s6, 1
s_add_u32 s6, s6, 1
s_lshr_b32 s6, s6, 1
s_lshl_b32 s6, s6, 9
v_lshlrev_b32 v8, 4, v0
v_add_u32 v1, s6, v8
s_bitcmp1_b32 s4, 0
s_cselect_b32 s7, -2040, 0
v_add_u32 v2, 1024, v1
v_add_u32 v6, s7, v2
v_mov_b32 v4, 0x3f80
v_mov_b32_dpp v2, v6 {HI}
s_lshl_b32 s7, s4, 11
s_add_u32 s7, s7, {QK_TILE}
v_add_u32 v3, s7, v8           ; V offset
v_mov_b32 v5, 0xdddd
v_mov_b32 v7, 0
s_lshl_b32 s45, s45, 3
v_bfe_u32 v9, v0, 4, 1
v_mul_u32_u24 v10, 31, v9
v_add_u32 v10, s45, v10        ; Q column
v_add_u32 v11, 448, v10        ; K column
v_mul_u32_u24 v9, 27, v9
s_mul_i32 s46, s4, 28
s_add_u32 s46, s46, 896
v_add_u32 v9, s46, v9          ; V column
v_lshrrev_b32 v10, 7, v10
v_lshlrev_b32 v10, 11, v10
v_mov_b32_dpp v11, v9 {HI}
s_lshl_b32 s46, s5, 7
v_add_u32 v10, s46, v10
v_lshrrev_b32 v11, 7, v11
v_lshlrev_b32 v11, 11, v11
v_and_b32 v9, 15, v0
v_lshl_add_u32 v11, v9, 7, v11
s_and_b32 s46, s2, {OPT["r1"]-1}
s_lshl_b32 s46, s46, 15
s_add_u32 s46, s46, {F1_OFF}
s_lshl_b32 s43, s5, 2
s_add_u32 s42, s40, s43
s_mul_i32 s42, s42, {QK_TILE}
s_add_u32 s50, s42, {Q_OFF}
s_mul_i32 s47, s40, {16*KV_REC}
s_add_u32 s47, s47, {KV_OFF}""")
    for i in range(16):
        A(f"s_add_u32 s42, s5, {i}\ns_and_b32 s42, s42, 15\ns_mul_i32 s42, s42, {KV_REC}\ns_add_u32 s{TB+i}, s42, s47")
    for j in range(4):
        A(f"""s_add_u32 s42, s40, {j}
s_and_b32 s42, s42, 3
s_lshl_b32 s42, s42, 11
s_add_u32 s42, s42, {QX}
v_add_u32 v{240+j}, s42, v8
s_add_u32 s42, s40, {j+1}
s_and_b32 s42, s42, 3
s_mul_i32 s42, s42, 12288
s_add_u32 s42, s42, {MERGE + (4096*j if j < 3 else 0)}
v_add_u32 v{244+j}, s42, v8""")
    for i in range(64): A(f"v_mov_b32 v{O+i}, 0")
    lds_wait(C_LF, 4, 1)
    A("s_setprio 3")
    stamp(5)
    A(f"""s_cmp_ge_u32 s63, 29
s_cbranch_scc1 {LNW}
s_lshl_b32 s43, s40, 10
s_add_u32 s43, s43, {WX}
v_add_u32 v9, s43, v8""")
    A(f"s_cmp_ge_u32 s51, 11\ns_cbranch_scc1 {LW2}")
    lds_wait(C_X, 1, 1)
    for x in wl[OPT["wm"]:]: A(x)
    A(f"{LW2}:")
    A(f"""s_waitcnt vmcnt(0)
ds_write_b128 v9, {vr(S,4)}
ds_write_b128 v9, {vr(S+4,4)} offset:4096
s_waitcnt lgkmcnt(0)""")
    lds_add(C_W)
    A(f"{LNW}:")
    stamp(2)
    if OPT["pd"]: A(f"s_sleep {OPT['pd']}")
    if OPT["pda"]:
        LD = A.lab("pda"); A(f"s_cmp_lt_u32 s51, 11\ns_cbranch_scc1 {LD}\ns_sleep {OPT['pda']}\n{LD}:")
    def kvpoll():
        A(f"""buffer_load_dword v14, v10, {W}, s46 offen {SC}
buffer_load_dword v15, v11, {W}, s46 offen {SC}
s_waitcnt vmcnt(0)
v_cmp_ne_u32 s[48:49], s{TAG}, v14
v_cmp_ne_u32 vcc, s{TAG}, v15
s_or_b64 vcc, vcc, s[48:49]""")
    acquire(R_KV, kvpoll, OPT["sl1"])
    stamp(6)
    t0, t1 = tile_loads(0, TB), tile_loads(1, TB+1)
    A(f"""{t0[0]}
buffer_load_dwordx4 {q(0,0)}, v1, {W}, s50 offen {SC}
{t0[1]}
buffer_load_dwordx4 {q(0,1)}, v2, {W}, s50 offen {SC}""")
    A("s_waitcnt vmcnt(0)")
    stamp(4)
    A(f"""v_mov_b32_dpp v{Q+6}, v7 {HI}
v_mov_b32_dpp v{Q+7}, v7 {HI}
v_mov_b32_dpp v{kb(0,1)+2}, v4 {HI}
{MFMA} {vr(S+16,16)}, {vr(kb(0,0),4)}, {q(0,0)}, 0
{t0[2]}
{MFMA} {vr(S+16,16)}, {vr(kb(0,1),4)}, {q(0,1)}, {vr(S+16,16)}
{t0[3]}
{MFMA} {vr(S,16)}, {vr(kb(0,0),4)}, {q(0,0)}, 0
ds_write_b128 v240, {q(0,0)}""")
    for x in t1[:2]: A(x)
    s_ = S+16
    A(f"v_max3_f32 v8, v{s_}, v{s_+1}, v{s_+2}\nv_max3_f32 v9, v{s_+3}, v{s_+4}, v{s_+5}")
    for i in range(6, 14, 4): A(f"v_max3_f32 v8, v8, v{s_+i}, v{s_+i+1}\nv_max3_f32 v9, v9, v{s_+i+2}, v{s_+i+3}")
    A(f"""v_max3_f32 v8, v8, v{s_+14}, v{s_+15}
v_max_f32 v8, v8, v9
v_cvt_pk_bf16_f32 v8, -v8, v7
v_mov_b32_dpp v{Q+6}, v8 {HI}
ds_write_b128 v240, {q(0,1)} offset:1024
{MFMA} {vr(S,16)}, {vr(kb(0,1),4)}, {q(0,1)}, {vr(S,16)}""")
    lds_sync(C_Q, 4)
    stamp(3)
    for j in range(1, 4):
        A(f"ds_read_b128 {q(j,0)}, v{240+j}\nds_read_b128 {q(j,1)}, v{240+j} offset:1024")
    for x in t1[2:]: A(x)
    A("s_waitcnt lgkmcnt(0)")
    stamp(7)
    lds_add(C_G2)
    A("s_setprio 1")
    def mwrites(j):
        return ([f"ds_write_b128 v{244+j}, {vr(O+16*j+4*g,4)} offset:{1024*g}" for g in range(3)] +
                [f"ds_write_b96 v{244+j}, {vr(O+16*j+12,3)} offset:3072"])
    for n in range(64):
        i, j = n >> 2, n & 3
        if n == 32: stamp(8)
        extra = []; late = []; at = {}
        if n == 0: extra = tile_loads(2, TB+2)
        ti, k = (i + 3, j - 1) if j >= 1 else (i + 2, 3)
        if 3 <= ti < 16: at[OPT["lp"]] = [tile_loads(ti & 3, TB+ti)[k]]
        if n >= 62: late = mwrites(n - 62)
        m = [None]*4
        pre = []
        if n < 63:
            i2, j2 = (n+1) >> 2, (n+1) & 3
            if j2 == 0:
                cnt = 4*(min(15, i+3) - (i+1))
                if i + 3 < 16: cnt -= 2
                pre = [f"s_waitcnt vmcnt({cnt})", f"v_mov_b32_dpp v{kb(i2&3,1)+2}, v4 {HI}"]
            m[0] = f"{MFMA} {vr(S+16*j2,16)}, {vr(kb(i2&3,0),4)}, {q(j2,0)}, 0"
            m[1] = f"{MFMA} {vr(S+16*j2,16)}, {vr(kb(i2&3,1),4)}, {q(j2,1)}, {vr(S+16*j2,16)}"
        if n > 0:
            i0, j0 = (n-1) >> 2, (n-1) & 3
            m[2] = f"{SMF} {vr(O+16*j0,16)}, {vr(kb(i0&3,3),4)}, {vr(S+16*j0+8,8)}, v5"
        m[3] = f"{SMF} {vr(O+16*j,16)}, {vr(kb(i&3,2),4)}, {vr(S+16*j,8)}, v5"
        if n == 63: m[0], m[2] = m[2], None
        for x in pre: A(x)
        for g in range(4):
            if n == 0 and g == 3: A("s_waitcnt vmcnt(8)")
            if m[g]: A(m[g])
            for e in range(4):
                r = S+16*j+4*g+e
                A(f"v_exp_f32 v{r}, v{r}")
                for x in at.pop(4*g+e, []): A(x)
                if extra: A(extra.pop(0))
                elif late and g >= 1 and e & 1: A(late.pop(0))
        assert not extra and not late and not at
    for x in mwrites(2)[:2]: A(x)
    A(f"{SMF} {vr(O+48,16)}, {vr(kb(3,3),4)}, {vr(S+48+8,8)}, v5")
    for x in mwrites(2)[2:]: A(x)
    stamp(9)
    A("s_setprio 3")
    lds_sync(C_MERGE, 4)
    for g in range(12): A(f"ds_read_b128 {vr(S+4*g,4)}, v247 offset:{1024*g}")
    A(f"""v_lshlrev_b32 v8, 4, v0
s_add_u32 s41, s40, 3
s_and_b32 s41, s41, 3
s_lshl_b32 s43, s5, 2
s_add_u32 s41, s41, s43
s_lshl_b32 s42, s41, 15
s_lshl_b32 s43, s4, 11
s_add_u32 s42, s42, s43
s_add_u32 s42, s42, {O_OFF}
s_lshl_b32 s41, s41, 11
s_lshl_b32 s43, s4, 7
s_add_u32 s41, s41, s43
s_add_u32 s41, s41, {FO_OFF}""")
    for k in range(3):
        A(f"s_waitcnt lgkmcnt({8-4*k})")
        for i in list(range(14, -2, -2)): A(f"v_pk_add_f32 {vr(OK+i,2)}, {vr(OK+i,2)}, {vr(S+16*k+i,2)}")
    A(f"""v_cmp_nle_f32 vcc, {f32(2.0**-40)}, v{OK+14}
s_mov_b64 s[48:49], vcc
v_cmp_nge_f32 vcc, {f32(2.0**40)}, v{OK+14}
s_or_b64 vcc, vcc, s[48:49]
s_cbranch_vccnz {LFB}
{LN}:
v_rcp_f32 v10, v{OK+14}
v_mov_b32 v{S+7}, 0""")
    for i in range(0, 14, 2):
        A(f"v_pk_mul_f32 {vr(OK+i,2)}, {vr(OK+i,2)}, v[10:11] op_sel_hi:[1,0]")
        A(f"v_cvt_pk_bf16_f32 v{S+i//2}, v{OK+i}, v{OK+i+1}")
        if i == 6: A(f"buffer_store_dwordx4 {vr(S,4)}, v8, {W}, s42 offen {SC}")
    A(f"buffer_store_dwordx4 {vr(S+4,4)}, v8, {W}, s42 offen offset:1024 {SC}")
    stamp(10)
    lds_add(C_GO)
    WF = 112; BACC = 16; OB = 64; NB = 6
    A(f"""v_bfe_u32 v9, v0, 2, 2        ; rr
v_and_b32 v10, 3, v0
v_lshrrev_b32 v11, 1, v10
v_and_b32 v10, 1, v10
v_lshl_or_b32 v10, v10, 1, v11    ; sigma(cc)
v_bfe_u32 v11, v0, 4, 1
v_lshlrev_b32 v11, 5, v11
v_lshl_or_b32 v10, v10, 3, v11
s_lshl_b32 s45, s40, 6
v_or_b32 v10, s45, v10
v_lshrrev_b32 v15, 5, v0
v_mul_u32_u24 v11, 320, v9
v_xor_b32 v3, v10, v11
v_lshl_add_u32 v3, v15, 10, v3
v_lshl_or_b32 v9, v15, 1, v9
v_mul_u32_u24 v11, 320, v9
v_xor_b32 v4, v10, v11
v_add_u32 v5, {224*256}, v3
v_add_u32 v6, {224*256}, v4""")
    assert WO == 0
    def wo_frags(half):
        for n in range(16):
            hd, i = n >> 1, n & 1
            b = WF + 64*half + 4*n
            row = 28*hd + 16*i
            A(f"ds_read_b64_tr_b16 {vr(b,2)}, v{3+2*half} offset:{row*256}")
            A(f"ds_read_b64_tr_b16 {vr(b+2,2)}, v{(4 if i else 3)+2*half} offset:{(row+8)*256}")
            if n % 6 == 5: A("s_waitcnt lgkmcnt(2)")
    lds_wait(C_WOA, 4)
    wo_frags(0)
    A("s_waitcnt vmcnt(0) lgkmcnt(2)")
    flagstore("s41", OPT["ro"], 131072)
    wo_frags(1)
    A(f"""s_lshr_b32 s4, s2, 4
s_lshl_b32 s4, s4, 2
s_bfe_u32 s5, s2, 0x20001
s_or_b32 s4, s4, s5
s_and_b32 s5, s2, 1
s_and_b32 s46, s5, {OPT["ro"]-1}
s_lshl_b32 s46, s46, 17
s_lshl_b32 s5, s5, 1
s_bfe_u32 s6, s2, 0x10003
s_or_b32 s5, s5, s6            ; n quarter
s_lshl_b32 s43, s4, 15
s_lshl_b32 s44, s40, 13
s_add_u32 s43, s43, s44
s_add_u32 s43, s43, {O_OFF}
s_add_u32 s47, s43, 4096
v_and_b32 v14, 31, v0
v_mul_u32_u24 v2, 1792, v14
v_lshl_add_u32 v2, v15, 4, v2
s_mul_i32 s41, s4, {32*1792}
s_lshl_b32 s42, s5, 8
s_add_u32 s41, s41, s42
s_add_u32 s41, s41, s45
s_add_u32 s41, s41, 896
s_lshl_b32 s42, s4, 11
s_add_u32 s46, s46, s42
s_lshl_b32 s42, s40, 9
s_add_u32 s46, s46, s42
s_add_u32 s46, s46, {FO_OFF}
v_and_b32 v9, 3, v0
v_lshlrev_b32 v9, 7, v9""")
    lds_sync(C_WOF, 4)
    LP, LD = A.lab("opoll"), A.lab("opollok")
    A(f"""s_mov_b32 s61, {SPIN}
{LP}:
buffer_load_dword v14, v9, {W}, s46 offen {SC}
s_waitcnt vmcnt(0)
v_cmp_ne_u32 vcc, s{TAG}, v14
s_cbranch_vccz {LD}
s_sub_u32 s61, s61, 1
s_cmp_eq_u32 s61, 0
s_cbranch_scc1 {LD}
s_sleep {OPT["sl1"]}
s_branch {LP}
{LD}:""")
    stamp(11)
    assert OST == 0
    for half in range(2):
        A(f"s_add_u32 m0, s44, {OST+4096*half}")
        for i in range(4):
            A(f"buffer_load_dwordx4 v8, {W}, s{47 if half else 43} offen offset:{1024*i} {SC} lds")
    A("s_waitcnt vmcnt(0)")
    lds_sync(C_OST, 4)
    stampw(12)
    def rd(n): A(f"ds_read_b128 {vr(OB+4*(n%NB),4)}, v8 offset:{1024*n}")
    for n in range(NB-1): rd(n)
    for n in range(32):
        if n + NB - 1 < 32: rd(n + NB - 1)
        left = min(31, n+NB-1) - n
        A(f"s_waitcnt lgkmcnt({left})\n{MFMA} {vr(BACC,16)}, {vr(WF+4*n,4)}, {vr(OB+4*(n%NB),4)}, {vr(BACC,16) if n else 0}")
    A(f"""s_lshl_b32 s42, s5, 2
s_add_u32 s42, s42, s40
s_cmp_ge_u32 s42, 14
s_cbranch_scc1 {END}""")
    for i in range(8): A(f"v_cvt_pk_bf16_f32 v{32+i}, v{BACC+2*i}, v{BACC+2*i+1}")
    A(f"""buffer_store_dwordx4 v[32:35], v2, {sr(SO,4)}, s41 offen {OBM}
buffer_store_dwordx4 v[36:39], v2, {sr(SO,4)}, s41 offen offset:32 {OBM}
s_branch {END}""")

def helper():
    SWO = 56
    T, AC2, WA, WB, Y = 16, 48, 64, 72, 80
    LNOA2, LNY2, LP2 = "L_noa2", A.lab("nyq"), A.lab("pub2")
    A(f"{HELP2}:")
    if OPT["x"] >= 4:
        lds_add(C_WOA); A(f"s_branch {END}")
    stamp(11)
    A(f"""s_lshr_b32 s5, s2, 3
s_cmp_ge_u32 s5, 29
s_cbranch_scc1 {LNOA2}
v_lshrrev_b32 v8, 3, v0
v_and_b32 v9, 4, v8
v_bfe_u32 v10, v8, 1, 1
v_or_b32 v9, v9, v10
v_and_b32 v8, 1, v8
v_lshl_or_b32 v9, v8, 1, v9     ; s2 mod 8 = 4*(p>>1) + 2h + (p&1)
v_mul_u32_u24 v1, {T_ROW}, v9
v_and_b32 v8, 7, v0
v_lshl_add_u32 v1, v8, 4, v1    ; T offset
s_lshl_b32 s41, s5, 10
s_lshl_b32 s42, s4, 7
s_add_u32 s41, s41, s42
s_add_u32 s41, s41, {T_OFF}
s_mul_i32 s42, s40, {16*T_ROW}
s_add_u32 s41, s41, s42
s_mul_i32 s44, s5, 43
s_lshr_b32 s44, s44, 8          ; g5
s_lshl_b32 s45, s44, 11
s_and_b32 s46, s2, {OPT["r1"]-1}
s_lshl_b32 s46, s46, 15
s_add_u32 s46, s46, {F1_OFF + 11*2048}
v_and_b32 v9, 15, v0
v_lshlrev_b32 v9, 7, v9
v_add_u32 v9, s45, v9
v_mov_b32 v10, 0
v_mov_b32_dpp v9, v10 {HI}
s_lshl_b32 s43, s40, 11
s_add_u32 m0, s43, {TX}
s_add_u32 s47, s41, {8*T_ROW - 1024}""")
    lds_wait(C_G2 if OPT["g2"] else C_LF, 4, 1)
    def a1poll():
        A(f"""buffer_load_dword v10, v9, {W}, s46 offen {SC}
s_waitcnt vmcnt(0)
v_cmp_ne_u32 vcc, s{TAG}, v10""")
    acquire(R_A1, a1poll, OPT["sl2"], 1)
    stamp(6)
    A(f"""buffer_load_dwordx4 v1, {W}, s41 offen {SC} lds
buffer_load_dwordx4 v1, {W}, s47 offen offset:1024 {SC} lds
v_lshrrev_b32 v8, 3, v14        ; u1 local
v_and_b32 v9, 7, v14            ; k local
v_lshl_add_u32 v2, v15, 3, v8
v_lshlrev_b32 v2, 4, v2
v_lshl_add_u32 v2, v9, 1, v2
s_lshl_b32 s42, s40, 10
s_cmp_eq_u32 s5, 28
s_cselect_b32 s45, 14, 0
s_add_u32 s42, s42, s45
s_add_u32 s42, s42, {WX}
v_add_u32 v2, s42, v2
v_mul_u32_u24 v3, {2*T2_ROW}, v15
v_lshl_add_u32 v3, v9, 4, v3
v_lshl_add_u32 v3, v8, 2, v3    ; T2 offset
v_lshlrev_b32 v8, 4, v0
v_add_u32 v8, {EX}, v8
v_add_u32 v9, s43, v8
v_lshlrev_b32 v1, 2, v0
v_add_u32 v1, {TX}, v1""")
    for i in range(16): A(f"v_mov_b32 v{WA+i}, 0")
    lds_wait(C_W, 4, 1)
    for j in range(8):
        A(f"ds_read_u16_d16_hi v{WA+j}, v2 offset:{(4*(j>>1)+(j&1))*64}")
    A("s_waitcnt lgkmcnt(4)")
    for j in range(8):
        A(f"ds_read_u16_d16_hi v{WB+j}, v2 offset:{(4*(j>>1)+(j&1))*64+4096}")
    A(f"s_waitcnt lgkmcnt(0)\ns_cmp_lg_u32 s5, 28\ns_cbranch_scc1 {LNY2}")
    for j in range(8): A(f"v_xor_b32 v{WA+j}, 0x80000000, v{WA+j}")
    A(f"{LNY2}:\ns_waitcnt vmcnt(0)")
    lds_sync(C_T, 4)
    for m in range(0, 28, 2): A(f"ds_read2st64_b32 {vr(T+m,2)}, v1 offset0:{m} offset1:{m+1}")
    for f in range(8):
        if f == 1:
            for m in range(28, 32, 2): A(f"ds_read2st64_b32 {vr(T+m,2)}, v1 offset0:{m} offset1:{m+1}")
        A(f"s_waitcnt lgkmcnt({12 if f == 0 else 14-2*f})\n{MFMA} {vr(AC2,16)}, {vr(C+4*f,4)}, {vr(T+4*f,4)}, {vr(AC2,16) if f else 0}")
    A(f"""s_mul_i32 s41, s40, {16*T2_ROW}
s_mul_i32 s42, s4, {T2_Q}
s_add_u32 s41, s41, s42
s_lshl_b32 s42, s5, 7
s_add_u32 s41, s41, s42
s_add_u32 s41, s41, {T2_OFF}""")
    for j in range(8):
        xr, xi = AC2+2*j, AC2+2*j+1
        A(f"""v_mul_f32 v10, v{xr}, v{WA+j}
v_mul_f32 v11, v{xr}, v{WB+j}
v_fma_f32 v10, -v{xi}, v{WB+j}, v10
v_fmac_f32 v11, v{xi}, v{WA+j}
v_cvt_pk_bf16_f32 v{Y+j}, v11, v10""")
        if j == 3: A(f"ds_write_b128 v9, {vr(Y,4)}")
    A(f"ds_write_b128 v9, {vr(Y+4,4)} offset:1024")
    lds_sync(C_EX, 4)
    for f in range(8): A(f"ds_read_b128 {vr(T+4*f,4)}, v8 offset:{1024*f}")
    for f in range(8):
        A(f"s_waitcnt lgkmcnt({7-f})\n{MFMA} {vr(AC2,16)}, {vr(C+4*f,4)}, {vr(T+4*f,4)}, {vr(AC2,16) if f else 0}")
    for j in range(8):
        A(f"""v_cvt_pk_bf16_f32 v{Y+j}, v{AC2+2*j+1}, v{AC2+2*j}
s_add_u32 s43, s41, {(4*(j>>1)+(j&1))*T2_ROW}
buffer_store_dword v{Y+j}, v3, {W}, s43 offen {SC}""")
    stamp(7)
    arrive(C_A2, LP2)
    A(f"""s_lshl_b32 s41, s44, 2
s_lshr_b32 s42, s4, 1
s_add_u32 s41, s41, s42
s_lshl_b32 s41, s41, 7
s_add_u32 s41, s41, {AT_OFF}
s_cmp_eq_u32 s44, 4
s_cselect_b32 s42, 9, 11
v_mov_b32 v12, 0
v_mov_b32 v13, 1
s_mov_b64 exec, 1
buffer_atomic_add v13, v12, {W}, s41 offen sc0 sc1
s_mov_b64 exec, -1
s_waitcnt vmcnt(0)
v_readfirstlane_b32 s60, v13
s_cmp_lg_u32 s60, s42
s_cbranch_scc1 {LP2}
v_mov_b32 v13, 1
s_mov_b32 s41, {AT_OFF + 20*128}
s_mov_b64 exec, 1
buffer_atomic_add v13, v12, {W}, s41 offen sc0 sc1
s_mov_b64 exec, -1
s_waitcnt vmcnt(0)
v_readfirstlane_b32 s60, v13
s_cmp_lg_u32 s60, 19
s_cbranch_scc1 {LP2}
s_mov_b32 s41, {F2_OFF}""")
    flagstore("s41", 8, 128)
    assert EPOCH_OFF == 0
    flagstore("0", 1, 0)
    A(f"{LP2}:")
    lds_wait(C_A2, 4, 4)
    A(f"{LNOA2}:")
    srd(SWO, P_WO, WO_BYTES)
    LW = A.lab("wo")
    A(f"""s_and_b32 s53, s2, 1
s_lshl_b32 s53, s53, 1
s_bfe_u32 s54, s2, 0x10003
s_or_b32 s53, s53, s54
s_lshl_b32 s53, s53, 8
s_mul_i32 s54, s40, {112*896}
s_add_u32 s53, s53, s54
s_mul_i32 s54, s40, {112*256}
v_lshrrev_b32 v9, 4, v0
v_and_b32 v8, 15, v0
v_lshlrev_b32 v4, 2, v9
v_xor_b32 v8, v8, v4
v_lshlrev_b32 v8, 4, v8
v_mul_u32_u24 v9, 896, v9
v_add_u32 v4, v8, v9""")
    lds_wait(C_G2, 4, 4)
    A(f"""s_mov_b32 m0, s54
s_mov_b32 s55, 28
{LW}:
s_sleep {OPT["wos"]}
buffer_load_dwordx4 v4, {sr(SWO,4)}, s53 offen lds
s_add_u32 m0, m0, 1024
s_add_u32 s53, s53, {4*896}
s_sub_u32 s55, s55, 1
s_cmp_lg_u32 s55, 0
s_cbranch_scc1 {LW}
s_waitcnt vmcnt(0)""")
    lds_add(C_WOA)
    stamp(12)
    TA, NY, AC3, ZB, AC4 = 16, 48, 64, 16, 112
    A(f"""v_and_b32 v8, 15, v14
v_lshrrev_b32 v9, 4, v14
v_lshl_or_b32 v8, v8, 1, v9
v_mul_u32_u24 v2, {T2_Q}, v15
v_lshl_add_u32 v1, v8, 4, v2    ; T2 offset
v_add_u32 v2, {224*16}, v2
s_mul_i32 s41, s50, {T2_ROW}
s_add_u32 s41, s41, {T2_OFF}
s_lshl_b32 s42, s40, 9
s_add_u32 s42, s42, s41
s_and_b32 s46, s2, 7
s_lshl_b32 s46, s46, 7
s_add_u32 s46, s46, {F2_OFF}
v_mov_b32 v9, 0""")
    srd(SO, P_OUT, OUT_BYTES)
    def a2poll():
        A(f"""buffer_load_dword v10, v9, {W}, s46 offen {SC}
s_waitcnt vmcnt(0)
v_cmp_ne_u32 vcc, s{TAG}, v10""")
    acquire(R_A2, a2poll, OPT["sl3"], OPT["sl3"])
    stamp(8)
    LA, LB = A.lab("a3l"), A.lab("a3l")
    for f in range(4):
        A(f"s_add_u32 s43, s42, {2*f*T2_Q}\nbuffer_load_dwordx4 {vr(TA+4*f,4)}, v1, {W}, s43 offen {SC}\ns_sleep 1")
    A(f"s_cmp_eq_u32 s40, 3\ns_cbranch_scc1 {LA}")
    for f in range(4):
        A(f"s_add_u32 s43, s42, {2*f*T2_Q + 2048}\nbuffer_load_dwordx4 {vr(TA+16+4*f,4)}, v1, {W}, s43 offen {SC}\ns_sleep 1")
    A(f"{LA}:\ns_cmp_lg_u32 s40, 0\ns_cbranch_scc1 {LB}")
    for f in range(4):
        A(f"s_add_u32 s43, s41, {2*f*T2_Q}\nbuffer_load_dwordx4 {vr(NY+4*f,4)}, v2, {W}, s43 offen {SC}")
    A(f"{LB}:")
    lds_wait(C_GO, 4, OPT["slg"])
    A("s_setprio 0")
    stamp(10)
    LN3, LZ = A.lab("a3ny"), A.lab("a3z")
    A("s_waitcnt vmcnt(0)")
    setup = f"""v_lshlrev_b32 v5, 4, v0
s_lshl_b32 s43, s40, 11
s_add_u32 s43, s43, {ZOFF}
v_add_u32 v6, s43, v5
s_mul_i32 s43, s52, 14336
s_add_u32 s43, s43, {ZOFF}
v_add_u32 v5, s43, v5
s_lshr_b32 s46, s40, 1
s_lshl_b32 s46, s46, 3
v_add_u32 v7, s46, v15          ; 8p + h
v_and_b32 v9, 7, v14
v_xor_b32 v7, v7, v9
v_lshlrev_b32 v7, 4, v7
v_lshl_or_b32 v7, v14, 8, v7
s_lshl_b32 s46, s52, 13
s_add_u32 s46, s46, {YOFF}
v_add_u32 v7, s46, v7           ; Y write address
v_lshrrev_b32 v8, 3, v0
s_lshl_b32 s46, s40, 3
v_add_u32 v8, s46, v8           ; row (s1)
v_and_b32 v9, 7, v0             ; piece
v_lshlrev_b32 v10, 1, v9
v_and_b32 v11, 7, v8
v_xor_b32 v10, v10, v11
v_lshlrev_b32 v10, 4, v10
v_lshl_or_b32 v10, v8, 8, v10
v_add_u32 v10, {YOFF}, v10
v_xor_b32 v11, 16, v10
v_mul_u32_u24 v8, {64*1792}, v8
v_lshl_add_u32 v8, v9, 4, v8    ; out offset
s_mul_i32 s41, s50, 1792
s_lshl_b32 s42, s51, 7
s_add_u32 s41, s41, s42""".split("\n")
    for tt in range(2):
        for f in range(4):
            A(f"{MFMA} {vr(AC3+32*tt,16)}, {vr(TA+16*tt+4*f,4)}, {vr(ER+4*f,4)}, {vr(AC3+32*tt,16) if f else 0}")
            for _ in range(5):
                if setup: A(setup.pop(0))
    assert not setup
    A(f"s_cmp_eq_u32 s51, 3\ns_cselect_b32 s42, 4, 8\nv_cmp_gt_u32 s[48:49], s42, v9")
    A(f"s_cmp_lg_u32 s40, 0\ns_cbranch_scc1 {LN3}\ns_mov_b32 exec_lo, 1\ns_mov_b32 exec_hi, 1")
    for i in range(16): A(f"v_mov_b32 v{TA+i}, v{NY+i}")
    A(f"s_mov_b64 exec, -1\n{LN3}:\ns_nop 1")
    def zout(tt, part):
        a = AC3+32*tt+16*part
        e = [f"v_cvt_pk_bf16_f32 v{a+i}, v{a+2*i}, v{a+2*i+1}" for i in range(8)]
        return e + [f"ds_write_b128 v6, {vr(a+4*p,4)} offset:{14336*p+8192*tt+1024*part}" for p in range(2)]
    pend = zout(0, 0)
    for tt in range(2):
        for f in range(4):
            A(f"{MFMA} {vr(AC3+32*tt+16,16)}, {vr(TA+16*tt+4*f,4)}, {vr(EI+4*f,4)}, {vr(AC3+32*tt+16,16) if f else 0}")
            for _ in range(3):
                if pend: A(pend.pop(0))
    for x in pend + zout(0, 1): A(x)
    A(f"s_cmp_eq_u32 s40, 3\ns_cbranch_scc1 {LZ}")
    for x in zout(1, 0) + zout(1, 1): A(x)
    A(f"{LZ}:")
    lds_sync(C_Z, 4)
    for i in range(14): A(f"ds_read_b128 {vr(ZB+4*i,4)}, v5 offset:{1024*i}")
    for i in range(14):
        A(f"s_waitcnt lgkmcnt({13-i})\n{MFMA} {vr(AC4,16)}, {vr(G+4*i,4)}, {vr(ZB+4*i,4)}, {vr(AC4,16) if i else 0}")
    for g in range(4):
        A(f"v_xor_b32 v9, {32*g}, v7\nds_write_b128 v9, {vr(AC4+4*g,4)}")
    lds_sync(C_Y, 4)
    A(f"""ds_read_b128 v[16:19], v10
ds_read_b128 v[20:23], v11
ds_read_b128 v[24:27], v10 offset:8192
ds_read_b128 v[28:31], v11 offset:8192
s_waitcnt lgkmcnt(0)""")
    for i in range(8): A(f"v_add_f32 v{32+i}, v{16+i}, v{24+i}\nv_sub_f32 v{40+i}, v{16+i}, v{24+i}")
    for i in range(8): A(f"v_cvt_pk_bf16_f32 v{48+i}, v{32+2*i}, v{33+2*i}")
    A(f"""s_mov_b64 exec, s[48:49]
buffer_store_dwordx4 v[48:51], v8, {sr(SO,4)}, s41 offen {OA}
buffer_store_dwordx4 v[52:55], v8, {sr(SO,4)}, s41 offen offset:448 {OA}
s_mov_b64 exec, -1
s_branch {END}""")

def fallback():
    L1, L2 = A.lab("fb1"), A.lab("fb2")
    tl = tile_loads(0, 43)
    A(f"""{LFB}:
v_mov_b32_dpp v{Q+24+6}, v7 {HI}
v_mov_b32 v12, 0xff800000
s_mov_b32 s43, {KV_OFF}
{L1}:
{tl[0]}
{tl[1]}
s_waitcnt vmcnt(0)
{MFMA} {vr(S,16)}, {vr(kb(0,0),4)}, {q(3,0)}, 0
{MFMA} {vr(S,16)}, {vr(kb(0,1),4)}, {q(3,1)}, {vr(S,16)}""")
    for i in range(0, 16, 2): A(f"v_max3_f32 v12, v12, v{S+i}, v{S+i+1}")
    A(f"""s_add_u32 s43, s43, {KV_REC}
s_cmp_lt_u32 s43, {KV_OFF+64*KV_REC}
s_cbranch_scc1 {L1}
v_mov_b32 v13, v12
v_mov_b32 v14, v12
v_permlane32_swap_b32 v13, v14
v_max_f32 v12, v13, v14""")
    for i in range(16): A(f"v_mov_b32 v{OK+i}, 0")
    A(f"s_mov_b32 s43, {KV_OFF}\n{L2}:")
    for x in tl: A(x)
    A(f"""s_waitcnt vmcnt(0)
{MFMA} {vr(S,16)}, {vr(kb(0,0),4)}, {q(3,0)}, 0
{MFMA} {vr(S,16)}, {vr(kb(0,1),4)}, {q(3,1)}, {vr(S,16)}""")
    for i in range(16): A(f"v_sub_f32 v{S+i}, v{S+i}, v12")
    for i in range(16): A(f"v_exp_f32 v{S+i}, v{S+i}")
    A(f"""{SMF} {vr(OK,16)}, {vr(kb(0,2),4)}, {vr(S,8)}, v5
{SMF} {vr(OK,16)}, {vr(kb(0,3),4)}, {vr(S+8,8)}, v5
s_nop 15
s_add_u32 s43, s43, {KV_REC}
s_cmp_lt_u32 s43, {KV_OFF+64*KV_REC}
s_cbranch_scc1 {L2}
s_branch {LN}""")

def finish():
    A(f"{END}:")
    if OPT["probe"]:
        LQ = A.lab("probe")
        stamp(13)
        A(f"""s_cmp_lg_u32 s2, {OPT["pwg"]}
s_cbranch_scc1 {FIN}
s_cmp_lg_u32 s3, {OPT["pwave"]}
s_cbranch_scc1 {FIN}
s_waitcnt lgkmcnt(0)
s_sub_u32 s56, s{64+2*OPT["probe"]}, s66
s_mul_i32 s56, s56, 10
s_add_u32 s56, s56, s90
{LQ}:
s_memrealtime s[58:59]
s_waitcnt lgkmcnt(0)
s_sub_u32 s57, s58, s56
s_cmp_lt_i32 s57, 0
s_cbranch_scc1 {LQ}""")
    elif STAMPS:
        stamp(13)
        A(f"""s_waitcnt vmcnt(0)
s_memtime s[92:93]
s_memrealtime s[94:95]
s_waitcnt lgkmcnt(0)
s_mov_b32 s56, s24
s_mov_b32 s57, s25
s_mov_b32 s58, 0x2000000
s_mov_b32 s59, 0x00020000
s_mov_b64 exec, 1
s_lshl_b32 s60, s2, 3
s_add_u32 s60, s60, s3
s_lshl_b32 s60, s60, 6
s_add_u32 s60, s60, {TS_OFF}
v_mov_b32 v1, 0""")
        for i in range(16):
            A(f"v_mov_b32 v2, s{64+2*i}\nbuffer_store_dword v2, v1, s[56:59], s60 offen offset:{4*i}")
    A(f"{FIN}:\ns_endpgm")

entry(); b1_loader(); a1_dispatch_loader(); a1_gen(); a1_compute(); pub1(); helper()
A(f"{LB1C}:\ns_setprio 2"); main_start()
for i in range(64): A(f"v_mov_b32 v{ACC+i}, 0")
A("s_waitcnt lgkmcnt(0)"); gettag()
gen_pre(); b1_compute()
attention(); fallback(); finish()

HDR = open("cdna_kernels/%s.s.ref" % NAME).read().split("; Override")[0]
txt = HDR + f"; @launch grid=(256,1,1) block=(512,1,1) lds={LDS_BYTES}\n"
txt += '.amdgcn_target "amdgcn-amd-amdhsa--gfx950"\n.text\n' + A.finish()
txt += f""".section .rodata,"a"
.p2align 6
.amdhsa_kernel {K}
  .amdhsa_next_free_vgpr 256
  .amdhsa_next_free_sgpr 96
  .amdhsa_accum_offset 256
  .amdhsa_group_segment_fixed_size 0
  .amdhsa_kernarg_size 72
  .amdhsa_user_sgpr_count 2
  .amdhsa_user_sgpr_kernarg_segment_ptr 1
  .amdhsa_system_sgpr_workgroup_id_x 1
.end_amdhsa_kernel
"""
out = args[0] if args else "cdna_kernels/%s.s" % NAME
open(out, "w").write(txt)
print("wrote", out, len(txt))
```

```python
import sys, struct
from emit import Asm
from layout import *
NAME = "concat_heads__spectral_gfnet__softmax_full_mha__prompt"
OPT = dict(stamps=0, r1=8, pf=1, sl1=1, sl2=8, sl3=40, rot=1, x=0, probe=0, pwave=4, pwg=100, pd=0, wos=-2, lp=13, slg=8, g2=0, ro=2, wm=0, tch=0, pda=0, oa=0, ob=0, gd=1, dyn=0, wsb=0)
args = []
for a in sys.argv[1:]:
    if "=" in a: k, v = a.split("="); assert k in OPT, k; OPT[k] = int(v)
    else: args.append(a)
STAMPS = OPT["stamps"]
MODS = ['', 'sc1', 'nt', 'sc0 sc1']
OA, OBM = MODS[OPT['oa']], MODS[OPT['ob']]
def f32(x): return "0x%08x" % struct.unpack("<I", struct.pack("<f", x))[0]
def vr(a, n=1): return f"v{a}" if n == 1 else f"v[{a}:{a+n-1}]"
def sr(a, n=1): return f"s{a}" if n == 1 else f"s[{a}:{a+n-1}]"
P_AX, P_WR, P_WI, P_BX, P_WQKV, P_WO, P_OUT, P_DBG, P_WS = 8,10,12,14,16,18,20,22,24
MFMA = "v_mfma_f32_32x32x16_bf16"
SMF = "v_smfmac_f32_32x32x32_bf16"
SC = "sc1"
HI = "quad_perm:[0,1,2,3] row_mask:0xc bank_mask:0xf"
TAGC = 0x9E3779B9
TAG = 62
SWS = 36; W = sr(SWS,4)
SX, SW = 28, 32
SPIN = 200000
FOFF = 7*16384
WO, OST = 0, 0
QX, EX, TX, WX = 0, 8192, 16384, 24576
MERGE = 114688
ZOFF, YOFF = MERGE, MERGE + 28672
CNT = 162816
LDS_BYTES = 163840
(C_P1, R_KV, C_MERGE, C_OST, R_A1, C_EX, C_A2, R_A2, C_Z, C_Y, C_WOA, C_WOF, C_GO, C_G2, C_Q, C_LF, C_T, C_W, C_X, C_H) = [CNT+16*i+12 for i in range(20)]

A = Asm()
def stamp(i):
    if STAMPS: A(f"{'s_memtime' if STAMPS == 2 else 's_memrealtime'} s[{64+2*i}:{65+2*i}]")
def stampw(i):
    if STAMPS: stamp(i); A("s_waitcnt lgkmcnt(0)")
def srd(d, p, nbytes):
    A(f"s_mov_b32 s{d}, s{p}\ns_mov_b32 s{d+1}, s{p+1}\ns_mov_b32 s{d+2}, {nbytes}\ns_mov_b32 s{d+3}, 0x00020000")
def pi32(d, s, t):
    A(f"""v_and_b32 v{d}, 0x13, v{s}
v_and_b32 v{t}, 4, v{s}
v_lshl_or_b32 v{d}, v{t}, 1, v{d}
v_and_b32 v{t}, 8, v{s}
v_lshrrev_b32 v{t}, 1, v{t}
v_or_b32 v{d}, v{d}, v{t}""")
def mod7(d, t):
    A(f"s_mul_i32 s{t}, s{d}, 37\ns_lshr_b32 s{t}, s{t}, 8\ns_mul_i32 s{t}, s{t}, 7\ns_sub_u32 s{d}, s{d}, s{t}")
def lds_add(addr):
    A(f"v_mov_b32 v12, {addr}\nv_mov_b32 v13, 1\ns_mov_b64 exec, 1\nds_add_u32 v12, v13\ns_mov_b64 exec, -1")
def lds_wait(addr, target, sleep=0, setup=True):
    L, L2 = A.lab("lw"), A.lab("lwd")
    if setup: A(f"v_mov_b32 v12, {addr}")
    A(f"""{L}:
ds_read_b32 v13, v12
s_waitcnt lgkmcnt(0)
v_readfirstlane_b32 s60, v13
s_cmp_ge_u32 s60, {target}""")
    if sleep: A(f"s_cbranch_scc1 {L2}\ns_sleep {sleep}\ns_branch {L}\n{L2}:")
    else: A(f"s_cbranch_scc0 {L}")
def lds_sync(addr, target, sleep=0):
    A("s_waitcnt lgkmcnt(0)"); lds_add(addr); lds_wait(addr, target, sleep, False)
def arrive(cnt, skip):
    A(f"""s_waitcnt vmcnt(0)
v_mov_b32 v12, {cnt}
v_mov_b32 v13, 1
s_mov_b64 exec, 1
ds_add_rtn_u32 v13, v12, v13
s_mov_b64 exec, -1
s_waitcnt lgkmcnt(0)
v_readfirstlane_b32 s60, v13
s_cmp_lg_u32 s60, 3
s_cbranch_scc1 {skip}""")
def flagstore(soff, nrep, repstride):
    A(f"""v_mul_u32_u24 v12, {repstride}, v0
v_mov_b32 v13, s{TAG}
s_mov_b64 exec, {(1<<nrep)-1}
buffer_store_dword v13, v12, {W}, {soff} offen {SC}
s_mov_b64 exec, -1""")
def publish(cnt, soff, nrep, repstride):
    L = A.lab("pub")
    arrive(cnt, L); flagstore(f"s{soff}", nrep, repstride); lds_add(C_X); A(f"{L}:")
def acquire(rel, body, sleep, sleep2=1):
    LP, LD, LO, LE = A.lab("poll"), A.lab("pollok"), A.lab("pollw"), A.lab("polle")
    A(f"s_cmp_lg_u32 s40, 0\ns_cbranch_scc1 {LO}\ns_mov_b32 s61, {SPIN}\n{LP}:")
    body()
    A(f"""s_cbranch_vccz {LD}
s_sub_u32 s61, s61, 1
s_cmp_eq_u32 s61, 0
s_cbranch_scc1 {LD}
s_sleep {sleep}
s_branch {LP}
{LD}:""")
    lds_add(rel)
    A(f"s_branch {LE}\n{LO}:")
    lds_wait(rel, 1, sleep2)
    A(f"{LE}:")
def spin(load, reg, sleep):
    LP, LD = A.lab("spin"), A.lab("spinok")
    A(f"""s_mov_b32 s61, {SPIN}
{LP}:
{load}
s_waitcnt vmcnt(0)
v_cmp_ne_u32 vcc, s{TAG}, v{reg}
s_cbranch_vccz {LD}
s_sub_u32 s61, s61, 1
s_cmp_eq_u32 s61, 0
s_cbranch_scc1 {LD}
s_sleep {sleep}
s_branch {LP}
{LD}:""")
def gettag():
    if OPT["wsb"]: A(f"s_add_u32 s24, s24, {OPT['wsb'] << 20}\ns_addc_u32 s25, s25, 0")
    A(f"s_load_dword s{TAG}, s[24:25], {EPOCH_OFF}")
    srd(SWS, P_WS, WS_USED)
def fixtag():
    A(f"s_waitcnt lgkmcnt(0)\ns_add_u32 s{TAG}, s{TAG}, {TAGC}")

FIN, END, ATT, PUB1, HELP2, GEN = "L_fin", "L_end", "L_att", "L_pub1", "L_help2", "L_gen"
LA1, LB1C, LB1G, LA1C, LV, LN, LFB = "L_a1", "L_b1c", "L_b1g", "L_a1c", "L_b1v", "L_norm", "L_fallback"
K = NAME + "_kernel"

def entry():
    A(f".globl {K}\n.p2align 8\n.type {K},@function\n{K}:")
    A(f"""s_cmp_ge_u32 s2, 256
s_cbranch_scc1 {FIN}
s_load_dwordx16 s[8:23], s[0:1], 0
s_load_dwordx2 s[24:25], s[0:1], 64
v_lshrrev_b32 v1, 6, v0
v_readfirstlane_b32 s3, v1
v_and_b32 v0, 63, v0""")
    if STAMPS:
        for i in range(2, 14): A(f"s_mov_b32 s{64+2*i}, 0")
        A("s_memtime s[64:65]\ns_memrealtime s[66:67]")
    if OPT["pf"]:
        L = A.lab("pf"); LP = A.lab("pc")
        A(f"""s_cmp_lg_u32 s3, 3
s_cbranch_scc1 {L}
s_getpc_b64 s[56:57]
{LP}:
s_bfe_u32 s58, s2, 0x20003
s_lshl_b32 s58, s58, 13
v_lshlrev_b32 v1, 7, v0
v_add_u32 v1, s58, v1
v_min_u32 v1, {FIN}-{LP}, v1
global_load_dword v255, v1, s[56:57]
{L}:""")
    A(f"""s_and_b32 s4, s2, 7
s_lshr_b32 s5, s2, 3
s_lshl_b32 s6, s4, 1
s_and_b32 s7, s5, 1
s_or_b32 s6, s6, s7
s_lshr_b32 s7, s5, 1
s_and_b32 s40, s3, 3
s_cmp_ge_u32 s7, 11
s_cbranch_scc1 {LA1}
s_cmp_lt_u32 s3, 4
s_cbranch_scc1 {LB1C}""")

def xaddr(rs):
    A(f"""v_lshrrev_b32 v1, 3, v0
v_and_b32 v14, 7, v0
v_lshrrev_b32 v15, 4, v0
v_xor_b32 v14, v14, v15
v_lshlrev_b32 v14, 4, v14
v_xor_b32 v16, 64, v14
v_mul_u32_u24 v1, {rs}, v1
v_add_u32 v2, v1, v14
v_add_u32 v3, v1, v16
v_add_u32 v3, {8*rs-1024}, v3
v_add_u32 v4, {2*(8*rs-1024)}, v2
v_add_u32 v5, {2*(8*rs-1024)}, v3""")
def b1_loader():
    A("s_setprio 3")
    if OPT["rot"] == 2: A("s_mov_b32 s26, s7")
    elif OPT["rot"] == 3: A("s_and_b32 s26, s6, 1\ns_mul_i32 s26, s26, 3\ns_add_u32 s26, s26, s7")
    elif OPT["rot"] == 4: A("s_and_b32 s26, s6, 1\ns_mul_i32 s26, s26, 3")
    elif OPT["rot"] == 5: A("s_lshr_b32 s26, s6, 1\ns_add_u32 s26, s26, s7")
    else: A("s_add_u32 s26, s6, s7")
    mod7(26, 27)
    if not OPT["rot"]: A("s_mov_b32 s26, 0")
    xaddr(896)
    A(f"""v_and_b32 v14, 15, v0
v_lshlrev_b32 v16, 2, v15
v_xor_b32 v14, v14, v16
v_lshlrev_b32 v14, 4, v14
v_mul_u32_u24 v15, 2688, v15
v_add_u32 v6, v14, v15
v_add_u32 v7, {4*2688-1024}, v6
v_add_u32 v8, {2*(4*2688-1024)}, v6
v_add_u32 v9, {3*(4*2688-1024)}, v6
s_lshl_b32 s41, s6, 2
s_add_u32 s47, s41, s40
s_mul_i32 s41, s47, {32*896}     ; x base
s_mul_i32 s42, s40, {16*2688}
s_lshl_b32 s43, s7, 8
s_add_u32 s42, s42, s43          ; w base
s_lshl_b32 s44, s40, 12
s_waitcnt lgkmcnt(0)""")
    srd(SX, P_BX, X_BYTES); srd(SW, P_WQKV, WQKV_BYTES)
    def issue():
        A(f"""s_lshl_b32 s45, s26, 7
s_add_u32 s45, s45, s41
s_mul_i32 s46, s26, {64*2688}
s_add_u32 s46, s46, s42
s_mov_b32 m0, s44""")
        for i in range(4): A(f"buffer_load_dwordx4 v{2+i}, {sr(SX,4)}, s45 offen offset:{1024*i} lds")
        A(f"s_add_u32 m0, s44, 16384")
        for i in range(4): A(f"buffer_load_dwordx4 v{6+i}, {sr(SW,4)}, s46 offen offset:{1024*i} lds")
        A("""s_add_u32 s26, s26, 1
s_cmp_eq_u32 s26, 7
s_cselect_b32 s26, 0, s26
s_add_u32 s44, s44, 0x8000
s_and_b32 s44, s44, 0x1ffff""")
    LL = A.lab("b1ld")
    issue(); gettag()
    A(f"s_mov_b32 s48, 6\n{LL}:")
    if OPT["x"] != 2: issue()
    else: A("s_waitcnt vmcnt(0)")
    A("s_waitcnt vmcnt(8)")
    if STAMPS:
        LX = A.lab("st"); A(f"s_cmp_lg_u32 s48, 6\ns_cbranch_scc1 {LX}"); stamp(2); A(f"{LX}:")
    A(f"""s_barrier
s_sub_u32 s48, s48, 1
s_cmp_lg_u32 s48, 0
s_cbranch_scc1 {LL}""")
    fixtag()
    A("s_waitcnt vmcnt(0)")
    stamp(3)
    A(f"s_barrier\ns_branch {ATT}")

def a1_dispatch_loader():
    A(f"""{LA1}:
s_sub_u32 s5, s7, 11           ; g5
s_mul_i32 s26, s5, 3
s_lshr_b32 s26, s26, 1         ; e0 in 0,1,3,4,6""")
    if not OPT["rot"]: A("s_mov_b32 s26, 0")
    A(f"s_cmp_lt_u32 s3, 4\ns_cbranch_scc1 {LA1C}\ns_setprio 3")
    xaddr(64*896)
    A(f"""s_lshl_b32 s41, s6, 2
s_add_u32 s41, s41, s40
s_mul_i32 s41, s41, 896
s_lshl_b32 s44, s40, 12
s_lshl_b32 s26, s26, 2
s_add_u32 s26, s26, 3""")
    mod7(26, 27)
    A("s_waitcnt lgkmcnt(0)")
    srd(SX, P_AX, X_BYTES)
    gettag()
    LL, LS = A.lab("a1ld"), A.lab("a1lds")
    A(f"""s_mov_b32 s48, 0
{LL}:
s_lshl_b32 s45, s26, 7
s_add_u32 s45, s45, s41
s_lshl_b32 s46, s26, 14
s_add_u32 m0, s44, s46""")
    for i in range(4): A(f"buffer_load_dwordx4 v{2+i}, {sr(SX,4)}, s45 offen offset:{1024*i} lds")
    A(f"""s_add_u32 s26, s26, 4
s_sub_u32 s27, s26, 7
s_cmp_ge_u32 s26, 7
s_cselect_b32 s26, s27, s26
s_add_u32 s48, s48, 1
s_cmp_lt_u32 s48, 4
s_cbranch_scc1 {LL}
s_waitcnt vmcnt(8)
s_barrier
s_cmp_lt_u32 s48, 7
s_cbranch_scc1 {LL}""")
    fixtag()
    A("s_waitcnt vmcnt(4)\ns_barrier\ns_waitcnt vmcnt(0)")
    stamp(3)
    A(f"s_barrier\ns_branch {ATT}")

def main_start():
    A(f"""v_lshlrev_b32 v1, 4, v0
v_add_u32 v1, {CNT+12}, v1
v_mov_b32 v2, 0
ds_write_b32 v1, v2""")

C, ER, EI, G, GT = 128, 160, 176, 192, 16
def gen_common():
    A(f"""v_and_b32 v14, 31, v0
v_lshrrev_b32 v15, 5, v0
s_lshr_b32 s50, s2, 5
s_lshl_b32 s50, s50, 3
s_or_b32 s50, s50, s4
s_bfe_u32 s51, s2, 0x20003       ; d quarter
s_and_b32 s52, s40, 1            ; parity e""")
def rot_gen(n, nblk, step, base, mult, dmult, out, scale=None):
    c, sn, t = GT, GT+8, GT+16
    A(f"v_mul_f32 v11, {f32(float(dmult))}, v{step}")
    for j in range(n): A(f"v_fmamk_f32 v{t+j}, v{step}, {f32(float(mult[j]))}, v{base}")
    A("v_cos_f32 v10, v11\nv_sin_f32 v12, v11")
    for j in range(n): A(f"v_cos_f32 v{c+j}, v{t+j}\nv_sin_f32 v{sn+j}, v{t+j}")
    A("v_mov_b32 v11, v10\nv_mov_b32 v13, v12")
    if scale is not None:
        for j in range(n): A(f"v_mul_f32 v{c+j}, {f32(scale)}, v{c+j}\nv_mul_f32 v{sn+j}, {f32(scale)}, v{sn+j}")
    for b in range(nblk):
        out(b)
        if b + 1 < nblk:
            for j in range(0, n, 2): A(f"v_pk_mul_f32 {vr(t+j,2)}, {vr(sn+j,2)}, v[12:13]")
            for j in range(0, n, 2): A(f"v_pk_mul_f32 {vr(sn+j,2)}, {vr(sn+j,2)}, v[10:11]")
            for j in range(0, n, 2): A(f"v_pk_fma_f32 {vr(sn+j,2)}, {vr(c+j,2)}, v[12:13], {vr(sn+j,2)}")
            for j in range(0, n, 2): A(f"v_pk_fma_f32 {vr(c+j,2)}, {vr(c+j,2)}, v[10:11], {vr(t+j,2)} neg_lo:[0,0,1] neg_hi:[0,0,1]")
def gen_c():
    A(f"""v_lshrrev_b32 v8, 1, v14
s_lshl_b32 s43, s40, 4
v_add_u32 v8, s43, v8
v_cvt_f32_u32 v8, v8
v_mul_f32 v8, {f32(1/64)}, v8    ; step = u2/64
v_and_b32 v9, 1, v14
v_cvt_f32_u32 v9, v9
v_mul_f32 v9, {f32(0.25)}, v9
v_lshlrev_b32 v10, 1, v15
v_cvt_f32_u32 v10, v10
v_fma_f32 v9, v8, v10, v9        ; base""")
    def out(f):
        for p in range(4): A(f"v_cvt_pk_bf16_f32 v{C+4*f+p}, v{GT+p}, v{GT+8+p}")
    rot_gen(4, 8, 8, 9, [0,1,4,5], 8, out)
def gen_e():
    A(f"""v_lshlrev_b32 v8, 6, v14
v_add_u32 v8, s50, v8
v_cvt_f32_u32 v8, v8
v_mul_f32 v8, {f32(1/2048)}, v8
v_lshlrev_b32 v9, 2, v15
v_cvt_f32_u32 v9, v9
v_mul_f32 v9, v8, v9""")
    def out(f):
        for p in range(4): A(f"v_cvt_pk_bf16_f32 v{ER+4*f+p}, v{GT+p}, -v{GT+8+p}")
        for p in range(4): A(f"v_cvt_pk_bf16_f32 v{EI+4*f+p}, v{GT+8+p}, v{GT+p}")
    rot_gen(4, 4, 8, 9, [0,1,2,3], 8, out, 2.0/(2048*448))
def gen_g():
    A(f"""s_lshr_b32 s44, s40, 1
s_lshl_b32 s45, s51, 1
s_add_u32 s44, s44, s45         ; d tile
s_lshl_b32 s46, s44, 5
v_add_u32 v8, s46, v14          ; d
v_cvt_f32_u32 v8, v8
v_mul_f32 v8, {f32(1/448)}, v8
v_lshlrev_b32 v9, 3, v15
v_add_u32 v9, s52, v9
v_cmp_eq_u32 vcc, 0, v9
v_cvt_f32_u32 v9, v9
v_mul_f32 v9, v8, v9""")
    def out(t):
        for j in range(4): A(f"v_cvt_pk_bf16_f32 v{G+8*t+j}, v{GT+2*j}, v{GT+2*j+1}")
        for j in range(4): A(f"v_cvt_pk_bf16_f32 v{G+8*t+4+j}, -v{GT+8+2*j}, -v{GT+9+2*j}")
    rot_gen(8, 7, 8, 9, [16*(j>>2)+2*(j&3) for j in range(8)], 32, out)
    A(f"""v_and_b32 v8, 0xffff0000, v{G}
v_or_b32 v8, 0x3f00, v8
v_and_b32 v10, 1, v14
v_lshlrev_b32 v10, 15, v10
v_cndmask_b32 v{G}, v{G}, v8, vcc
v_and_b32 v8, 0xffff, v8
v_and_b32 v9, 0xffff0000, v{G+4}
v_or3_b32 v9, v9, v10, v8
v_cndmask_b32 v{G+4}, v{G+4}, v9, vcc""")
def gen_pre():
    gen_common()
    A(f"{GEN}:")
    gen_c(); gen_e()
    A(f"s_cmp_ge_u32 s7, 11\ns_cbranch_scc1 {HELP2}")

ACC = 64
def acc(a, b): return ACC + 32*a + 16*b
def b1_body(vtype):
    if vtype: pi32(48, 14, 49)
    else: A("v_mov_b32 v48, v14")
    A(f"""v_lshrrev_b32 v49, 1, v48
v_and_b32 v49, 7, v49
v_xor_b32 v49, v49, v15
v_lshlrev_b32 v49, 4, v49
v_lshl_or_b32 v50, v48, 7, v49
s_lshl_b32 s43, s41, 13
v_add_u32 v52, s43, v50
v_xor_b32 v53, 32, v52
v_xor_b32 v54, 64, v52
v_xor_b32 v55, 96, v52""")
    A(f"""v_bfe_u32 v48, v0, 2, 2        ; rr
v_and_b32 v49, 3, v0           ; cc""")
    if not vtype:
        A("""v_lshrrev_b32 v50, 1, v49
v_and_b32 v49, 1, v49
v_lshl_or_b32 v49, v49, 1, v50 ; sigma(cc)""")
    A(f"""v_bfe_u32 v50, v0, 4, 1        ; colhalf
v_lshlrev_b32 v50, 5, v50
v_lshl_or_b32 v50, v49, 3, v50
s_lshl_b32 s43, s42, 7
v_or_b32 v50, s43, v50
v_lshlrev_b32 v51, 6, v48
v_xor_b32 v50, v50, v51
v_lshl_add_u32 v51, v15, 3, v48 ; 8h+rr
v_lshl_or_b32 v56, v51, 8, v50
v_add_u32 v56, 16384, v56
v_xor_b32 v57, 64, v56""")
    A(f"""s_lshl_b32 s46, s6, 2
s_lshl_b32 s47, s41, 1
s_add_u32 s46, s46, s47
s_lshl_b32 s47, s7, 2
s_lshl_b32 s48, s42, 1
s_add_u32 s47, s47, s48""")
    if not vtype:
        A(f"""s_lshl_b32 s48, s47, 11
v_lshlrev_b32 v2, 4, v0
s_cmp_ge_u32 s47, 14
s_cselect_b32 s49, {KV_REC - QK_TILE}, 0
s_cselect_b32 s43, {KV_OFF - Q_OFF - 14*2048}, 0
s_cselect_b32 s54, 1.0, {f32(QSCALE)}
s_mov_b32 s55, s54
s_add_u32 s49, s49, {QK_TILE}
s_mul_i32 s46, s46, s49
s_add_u32 s46, s46, s48
s_add_u32 s46, s46, s43
s_add_u32 s46, s46, {Q_OFF}
s_add_u32 s49, s46, s49""")
    else:
        A(f"""s_sub_u32 s45, s7, 7
s_lshl_b32 s45, s45, 7
s_add_u32 s45, s45, 27
s_mul_i32 s45, s45, 2341
s_lshr_b32 s45, s45, 16
v_lshrrev_b32 v10, 3, v0
v_cmp_gt_u32 s[56:57], 5, v10
v_add_u32 v10, s45, v10
v_bfe_u32 v11, v0, 1, 2
v_lshlrev_b32 v11, 9, v11
v_lshl_or_b32 v11, v10, 11, v11
v_cmp_gt_u32 vcc, 16, v10
v_and_b32 v4, 1, v0
v_lshl_or_b32 v4, v4, 6, v11
s_and_b64 s[56:57], s[56:57], vcc
s_lshl_b32 s54, s6, 2
s_add_u32 s54, s54, s40
s_mul_i32 s54, s54, {KV_REC}
s_add_u32 s54, s54, {KV_OFF + QK_TILE + 26*16}
v_mov_b32 v58, 0x3f803f80
v_mov_b32 v59, 0x3f803f80
v_mov_b32 v60, 0x3f803f80
v_mov_b32 v61, 0x3f803f80
s_sub_u32 s47, s47, 28
s_mul_i32 s46, s46, {KV_REC}
s_add_u32 s46, s46, {KV_OFF + QK_TILE}
s_add_u32 s49, s46, {KV_REC}
s_lshl_b32 s48, s47, 5""")
        for b in range(2):
            A(f"""v_add_u32 v48, s48, v14
v_add_u32 v48, {32*b}, v48
v_mul_u32_u24 v49, 2341, v48
v_lshrrev_b32 v49, 16, v49     ; head
v_mul_u32_u24 v50, 28, v49
v_sub_u32 v48, v48, v50        ; d
v_add_u32 v50, 6, v48
v_lshrrev_b32 v50, 5, v50
v_lshl_add_u32 v48, v50, 1, v48
v_lshlrev_b32 v48, 4, v48
v_lshl_or_b32 v48, v15, 9, v48
v_lshl_or_b32 v{2+b}, v49, 11, v48""")
        A(f"""s_cmp_ge_u32 s47, 14
s_cselect_b32 s46, {WS_USED}, s46
s_cselect_b32 s49, {WS_USED}, s49""")
    SETS = (16, 32, 192, 208)
    def rx(kap, p, a): return f"ds_read_b128 {vr(SETS[p]+4*a,4)}, v{6+kap} offset:{4096*a}"
    def rw(kap, p, b): return [f"ds_read_b64_tr_b16 {vr(SETS[p]+8+4*b+2*u,2)}, v{10+b} offset:{(16*kap+4*u)*256}" for u in range(2)]
    def rdlist(kap, p): return [rx(kap,p,0)] + rw(kap,p,0) + rw(kap,p,1) + [rx(kap,p,1)]
    def setaddr(): return [f"v_add_u32 v{6+i}, s44, v{52+i}" for i in range(6)]
    def mf(a, b, p):
        x, w = vr(SETS[p]+4*a,4), vr(SETS[p]+8+4*b,4)
        o = (x, w) if vtype else (w, x)
        A(f"{MFMA} {vr(acc(a,b),16)}, {o[0]}, {o[1]}, {vr(acc(a,b),16)}")
    gb = []
    def fill(n):
        for _ in range(n):
            if gb:
                for x in gb.pop(0): A(x)
    def kstep(p, r, f):
        A("s_waitcnt lgkmcnt(3)")
        mf(0,0,p)
        for x in r[0:3]: A(x)
        fill(f[0])
        A("s_waitcnt lgkmcnt(4)")
        mf(0,1,p)
        for x in r[3:5]: A(x)
        fill(f[1])
        A("s_waitcnt lgkmcnt(5)")
        mf(1,0,p)
        for x in r[5:6]: A(x)
        fill(f[2])
        mf(1,1,p)
        fill(f[3])
    LL = A.lab("b1loop")
    A("s_mov_b32 s44, 0\ns_mov_b32 s45, 0")
    for x in setaddr(): A(x)
    stampw(9)
    A("s_barrier")
    stampw(2)
    for x in rdlist(0, 0): A(x)
    A(f"{LL}:")
    kstep(0, rdlist(1, 1), (0,1,2,3))
    kstep(1, rdlist(2, 0), (0,1,2,3))
    A("s_add_u32 s44, s44, 0x8000\ns_and_b32 s44, s44, 0x1ffff\ns_add_u32 s45, s45, 1")
    kstep(0, rdlist(3, 1), (1,1,2,0))
    for x in setaddr(): A(x)
    A("s_barrier")
    kstep(1, rdlist(0, 0), (1,1,1,1))
    assert not gb
    A(f"s_cmp_lt_u32 s45, 6\ns_cbranch_scc1 {LL}")
    if OPT["x"] in (2, 3): A("s_memtime s[84:85]\ns_waitcnt lgkmcnt(0)")
    rd = []
    for kap in (1,2,3): rd += [rx(kap,kap,0)] + rw(kap,kap,0)
    for kap in (1,2,3): rd += rw(kap,kap,1)
    for kap in (1,2,3): rd += [rx(kap,kap,1)]
    order = [rdlist(0,0)[i] for i in range(6)] + rd
    def epi(a, b):
        e = []; t = acc(a,b)
        for i in range(8):
            if not vtype: e.append(f"v_pk_mul_f32 {vr(t+2*i,2)}, {vr(t+2*i,2)}, s[54:55]")
            e.append(f"v_cvt_pk_bf16_f32 v{t+i}, v{t+2*i}, v{t+2*i+1}")
            if i & 3 == 3:
                if vtype: e.append(f"buffer_store_dwordx4 {vr(t+i-3,4)}, v{2+b}, {W}, s{46 if a==0 else 49} offen offset:{1024*(i>>2)} {SC}")
                else: e.append(f"buffer_store_dwordx4 {vr(t+i-3,4)}, v2, {W}, s{46 if a==0 else 49} offen offset:{2048*b+1024*(i>>2)} {SC}")
        return e
    issued = 6; pend = []; lastw = None
    tiles = [(a,b) for a in range(2) for b in range(2)]
    seq = [(a,b,0) for a,b in tiles] + [(a,b,k) for a,b in tiles for k in (1,2,3)]
    for m, (a, b, kap) in enumerate(seq):
        need = max(order.index(x) for x in [rx(kap,kap,a)] + rw(kap,kap,b)) + 1
        while issued < need: A(order[issued]); issued += 1
        if lastw is None or need > lastw:
            A(f"s_waitcnt lgkmcnt({issued - need})"); lastw = need
        mf(a, b, kap)
        for _ in range(3):
            if issued < len(order) and issued - lastw < 14: A(order[issued]); issued += 1
        if m in (8, 11, 14): pend += epi(*tiles[(m-8)//3])
        if m == 15: stamp(3)
        for _ in range(6 if not vtype else 4):
            if pend: A(pend.pop(0))
    for x in pend + epi(1,1): A(x)
    if vtype:
        A(f"s_mov_b64 exec, s[56:57]\nbuffer_store_dwordx4 v[58:61], v4, {W}, s54 offen {SC}\ns_mov_b64 exec, -1")
    A(f"s_branch {PUB1}")
def b1_compute():
    A(f"""s_and_b32 s41, s3, 1           ; wr
s_lshr_b32 s42, s3, 1          ; wc""")
    fixtag()
    A(f"s_cmp_ge_u32 s7, 7\ns_cbranch_scc1 {LV}")
    b1_body(False)
    A(f"{LV}:")
    b1_body(True)

def a1_gen():
    LF, LE = A.lab("fgen"), A.lab("fend")
    A(f"{LA1C}:\ns_setprio 2")
    gen_common()
    pi32(48, 14, 49)
    A(f"""v_lshlrev_b32 v61, 4, v0
v_add_u32 v61, {FOFF}, v61""")
    main_start()
    A(f"""v_lshrrev_b32 v48, 1, v48       ; k_local
s_mul_i32 s41, s5, 3
s_add_u32 s41, s41, s3
s_lshl_b32 s41, s41, 4
v_add_u32 v48, s41, v48
v_cvt_f32_u32 v48, v48
v_mul_f32 v56, {f32(1/448)}, v48 ; k/448
v_and_b32 v48, 1, v14
v_cvt_f32_u32 v48, v48
v_mul_f32 v59, {f32(0.25)}, v48  ; c/4
v_lshlrev_b32 v60, 3, v15
v_cvt_f32_u32 v60, v60
v_fma_f32 v59, v56, v60, v59
v_mul_f32 v58, {f32(16.0)}, v56
v_cos_f32 v58, v58
s_mul_i32 s41, s3, 14336
v_add_u32 v53, s41, v61""")
    for j in range(16): A(f"v_fmamk_f32 v{16+j}, v56, {f32(float(16*(j>>3)+(j&7)))}, v59")
    A("v_add_f32 v58, v58, v58")
    for j in range(16): A(f"v_cos_f32 v{16+j}, v{16+j}")
    A("s_waitcnt lgkmcnt(0)")
    gettag()
    A(f"s_cmp_eq_u32 s3, 3\ns_cbranch_scc1 {LE}\nv_mov_b32 v59, v58\ns_mov_b32 s42, 7\n{LF}:")
    for u in range(2):
        for j in range(4): A(f"v_cvt_pk_bf16_f32 v{32+4*u+j}, v{16+8*u+2*j}, v{17+8*u+2*j}")
        A(f"ds_write_b128 v53, {vr(32+4*u,4)} offset:{1024*u}")
        for j in range(4):
            a, b = 16+8*u+2*j, 16+8*(u^1)+2*j
            A(f"v_pk_fma_f32 {vr(a,2)}, {vr(b,2)}, v[58:59], {vr(a,2)} neg_lo:[0,0,1] neg_hi:[0,0,1]") if u == 0 else None
    for j in range(4):
        a, b = 24+2*j, 16+2*j
        A(f"v_pk_fma_f32 {vr(a,2)}, {vr(b,2)}, v[58:59], {vr(a,2)} neg_lo:[0,0,1] neg_hi:[0,0,1]")
    A(f"""v_add_u32 v53, 2048, v53
s_sub_u32 s42, s42, 1
s_cmp_lg_u32 s42, 0
s_cbranch_scc1 {LF}
{LE}:""")
def a1_compute():
    A(f"""s_lshl_b32 s41, s6, 2
s_add_u32 s41, s41, s3          ; s2 index
v_lshlrev_b32 v5, 8, v15
v_add_u32 v5, s41, v5
v_mul_u32_u24 v5, v14, v5
v_cvt_f32_u32 v5, v5
v_mul_f32 v5, {f32(1/2048)}, v5
v_cvt_f32_u32 v6, v14
v_mul_f32 v6, {f32(1/32)}, v6
v_lshrrev_b32 v49, 1, v14
v_and_b32 v49, 7, v49
v_xor_b32 v49, v49, v15
v_lshlrev_b32 v49, 4, v49
v_lshl_or_b32 v62, v14, 7, v49
s_lshl_b32 s43, s3, 12
v_add_u32 v62, s43, v62
v_and_b32 v3, 2, v14
v_lshlrev_b32 v3, 30, v3
v_or_b32 v3, 1.0, v3            ; (-1)^k
v_mov_b32 v2, v3
v_lshlrev_b32 v4, 4, v0
s_mul_i32 s47, s41, {T_ROW}
s_mul_i32 s42, s5, 6144
s_add_u32 s47, s47, s42
s_add_u32 s47, s47, {T_OFF}
s_add_u32 s48, s47, 2048
s_add_u32 s49, s47, 4096""")
    egen = []
    for i in range(2):
        for j in range(8): egen.append(f"v_fmamk_f32 v{176+j}, v6, {f32(float(16*i+8*(j>>2)+(j&3)))}, v5")
        for j in range(8): egen.append(f"v_cos_f32 v{184+j}, v{176+j}")
        for j in range(8): egen.append(f"v_sin_f32 v{192+j}, v{176+j}")
        for j in range(4): egen.append(f"v_cvt_pk_bf16_f32 v{160+4*i+j}, v{184+2*j}, v{185+2*j}")
        for j in range(4): egen.append(f"v_cvt_pk_bf16_f32 v{168+4*i+j}, -v{192+2*j}, -v{193+2*j}")
    A(f"s_mul_i32 s27, s26, 8256")
    def a1salu(adv=True):
        r = []
        if adv: r += ["s_add_u32 s27, s27, 8256", f"s_cmp_eq_u32 s27, {7*8256}", "s_cselect_b32 s27, 0, s27"]
        return r + ["s_and_b32 s43, s27, 0x1c040", f"s_add_u32 s44, s27, {7*8256}", "s_and_b32 s44, s44, 0x1c040",
                    "s_lshr_b32 s46, s27, 2", "s_and_b32 s46, s46, 0x7800"]
    a1valu = ["v_xor_b32 v8, s43, v62", "v_xor_b32 v10, s44, v62", "v_xor_b32 v9, 32, v8", "v_xor_b32 v11, 32, v10", "v_add_u32 v12, s46, v61"]
    def a1rd(t):
        b = 16 + 20*t
        return ([f"ds_read_b128 {vr(b,4)}, v{8+t}"] +
                [f"ds_read_b128 {vr(b+8+4*kgi,4)}, v12 offset:{1024*t+14336*kgi}" for kgi in range(3)] +
                [f"ds_read_b128 {vr(b+4,4)}, v{10+t}"])
    def a1step(t, nxt, first=False, fill=0, adv=False):
        b = 16 + 20*t
        r = list(nxt); issued = 0
        sa = a1salu() if adv else []; va = list(a1valu) if adv else []
        for m in range(6):
            hi, kgi = m // 3, m % 3
            need = (2, 3, 4, 5, 5, 5)[m]
            if not nxt: hi, kgi, need = m % 2, m // 2, (2, 5, 5, 5, 5, 5)[m]
            if m < (4 if nxt else 2): A(f"s_waitcnt lgkmcnt({5 - need + issued})")
            d = 64 + 32*kgi + 16*hi
            A(f"{MFMA} {vr(d,16)}, {vr(b+4*hi,4)}, {vr(b+8+4*kgi,4)}, {0 if first else vr(d,16)}")
            for _ in range(2 if m == 0 else 1):
                if r: A(r.pop(0)); issued += 1
            if m in (1, 2, 3):
                for _ in range(3):
                    if sa: A(sa.pop(0))
            if m == 4:
                while va: A(va.pop(0))
            for _ in range(fill if not (adv and m in (1,2,3,4)) else fill // 2):
                if egen: A(egen.pop(0))
    LL, LS, LNB = A.lab("a1loop"), A.lab("a1last"), A.lab("a1nb")
    for x in a1salu(False) + a1valu: A(x)
    fixtag()
    stampw(9)
    A("s_barrier")
    stampw(2)
    for x in a1rd(0): A(x)
    for n in range(3):
        a1step(0, a1rd(1), n == 0, 2, True)
        A("s_barrier")
        a1step(1, a1rd(0), False, 3)
    assert not egen
    A(f"s_mov_b32 s45, 3\n{LL}:")
    a1step(0, a1rd(1), adv=True)
    A(f"""s_add_u32 s45, s45, 1
s_cmp_eq_u32 s45, 7
s_cbranch_scc1 {LS}
s_cmp_eq_u32 s45, 6
s_cbranch_scc1 {LNB}
s_barrier
{LNB}:""")
    a1step(1, a1rd(0))
    A(f"s_branch {LL}\n{LS}:")
    a1step(1, [])
    stamp(3)
    def s1(kgi):
        P, Q = 64+32*kgi, 80+32*kgi
        e = []
        for i in range(8):
            e.append(f"v_pk_fma_f32 {vr(P+2*i,2)}, {vr(Q+2*i,2)}, v[2:3], {vr(P+2*i,2)}")
            e.append(f"v_cvt_pk_bf16_f32 v{16+8*kgi+i}, v{P+2*i}, v{P+2*i+1}")
        return e
    def mm(kgi):
        P, Q = 64+32*kgi, 80+32*kgi
        return [f"{MFMA} {vr(P,16)}, {vr(16+8*kgi,4)}, v[160:163], 0", f"{MFMA} {vr(Q,16)}, {vr(16+8*kgi,4)}, v[168:171], 0",
                f"{MFMA} {vr(P,16)}, {vr(20+8*kgi,4)}, v[164:167], {vr(P,16)}", f"{MFMA} {vr(Q,16)}, {vr(20+8*kgi,4)}, v[172:175], {vr(Q,16)}"]
    def s2(kgi):
        P, Q = 64+32*kgi, 80+32*kgi
        e = []
        for j in range(8):
            e += [f"v_sub_f32 v{P+2*j}, v{P+2*j}, v{Q+2*j+1}", f"v_add_f32 v{Q+2*j}, v{Q+2*j}, v{P+2*j+1}",
                  f"v_cvt_pk_bf16_f32 v{40+8*kgi+j}, v{P+2*j}, v{Q+2*j}"]
            if j & 3 == 3: e.append(f"buffer_store_dwordx4 {vr(40+8*kgi+j-3,4)}, v4, {W}, s{47+kgi} offen offset:{1024*(j>>2)} {SC}")
        return e
    def weave(ms, vs):
        k = (len(vs) + len(ms) - 1) // len(ms)
        for m in ms:
            A(m)
            for _ in range(k):
                if vs: A(vs.pop(0))
    for x in s1(0): A(x)
    weave(mm(0), s1(1)); weave(mm(1), s1(2)); weave(mm(2), s2(0))
    for x in s2(1) + s2(2): A(x)
    LI = A.lab("a1init")
    A(f"""s_cmp_ge_u32 s41, 4
s_cbranch_scc1 {LI}
s_lshl_b32 s42, s5, 2
s_add_u32 s42, s42, s41
s_lshl_b32 s42, s42, 7
s_add_u32 s42, s42, {AT_OFF}
v_mov_b32 v5, 0
s_mov_b64 exec, 1
buffer_store_dword v5, v5, {W}, s42 offen {SC}
buffer_store_dword v5, v5, {W}, s42 offen offset:{20*128} {SC}
s_mov_b64 exec, -1
{LI}:""")

def pub1():
    A(f"""{PUB1}:
s_lshl_b32 s41, s7, 11
s_lshl_b32 s42, s6, 7
s_add_u32 s41, s41, s42
s_add_u32 s41, s41, {F1_OFF}""")
    stamp(4)
    lds_add(C_LF)
    if OPT["gd"]: gen_g()
    publish(C_P1, 41, OPT["r1"], 32768)
    stamp(5)
    if not OPT["gd"]: gen_g()
    A(f"s_cmp_ge_u32 s7, 11\ns_cbranch_scc1 {GEN}")

Q, S, O, KV = 16, 48, 112, 176
OK = O + 48
TB = 8
SO = 32
def q(j,i): return vr(Q+8*j+4*i, 4)
def kb(b,i): return KV+16*b+4*i
def tile_loads(b, so):
    return [f"buffer_load_dwordx4 {vr(kb(b,0),4)}, v1, {W}, s{so} offen {SC}",
            f"buffer_load_dwordx4 {vr(kb(b,1),4)}, v2, {W}, s{so} offen {SC}",
            f"buffer_load_dwordx4 {vr(kb(b,2),4)}, v3, {W}, s{so} offen {SC}",
            f"buffer_load_dwordx4 {vr(kb(b,3),4)}, v3, {W}, s{so} offen offset:1024 {SC}"]
def attention():
    LNY, LNW = A.lab("nyq"), A.lab("now")
    A(f"{ATT}:\ns_setprio 0")
    srd(SX, P_WR, W_BYTES); srd(56, P_WI, W_BYTES)
    A(f"""s_lshr_b32 s5, s2, 3           ; ko
s_mul_i32 s55, s4, {4*450}
s_mul_i32 s43, s40, {512*450}
s_add_u32 s55, s55, s43
s_lshl_b32 s43, s5, 4
s_add_u32 s55, s55, s43
s_cmp_lg_u32 s5, 28
s_cbranch_scc1 {LNY}""")
    srd(SX, P_WI, W_BYTES); srd(56, P_WR, W_BYTES)
    A(f"""s_sub_u32 s55, s55, 14
{LNY}:
s_mov_b32 s63, s5
v_lshrrev_b32 v9, 2, v0
v_and_b32 v10, 3, v0
v_lshl_add_u32 v9, v9, 5, v10
v_mul_u32_u24 v248, 450, v9
s_mov_b32 s51, s7""")
    srd(SO, P_OUT, OUT_BYTES)
    A(f"""s_lshl_b32 s4, s4, 1
s_bfe_u32 s5, s2, 0x10003
s_or_b32 s4, s4, s5            ; head
s_lshr_b32 s5, s2, 4           ; qb
s_mul_i32 s6, s4, 7
s_lshr_b32 s45, s6, 1
s_add_u32 s6, s6, 1
s_lshr_b32 s6, s6, 1
s_lshl_b32 s6, s6, 9
v_lshlrev_b32 v8, 4, v0
v_add_u32 v1, s6, v8
s_bitcmp1_b32 s4, 0
s_cselect_b32 s7, -2040, 0
v_add_u32 v2, 1024, v1
v_add_u32 v6, s7, v2
v_mov_b32 v4, 0x3f80
v_mov_b32_dpp v2, v6 {HI}
s_lshl_b32 s7, s4, 11
s_add_u32 s7, s7, {QK_TILE}
v_add_u32 v3, s7, v8           ; V offset
v_mov_b32 v5, 0xdddd
v_mov_b32 v7, 0
s_lshl_b32 s45, s45, 3
v_bfe_u32 v9, v0, 2, 1
v_mul_u32_u24 v10, 31, v9
v_add_u32 v10, s45, v10        ; Q column
v_add_u32 v11, 448, v10        ; K column
v_mul_u32_u24 v9, 27, v9
s_mul_i32 s46, s4, 28
s_add_u32 s46, s46, 896
v_add_u32 v9, s46, v9          ; V column
v_lshrrev_b32 v10, 7, v10
v_lshlrev_b32 v10, 11, v10
v_mov_b32_dpp v11, v9 quad_perm:[0,1,2,3] row_mask:0xa bank_mask:0xf
s_lshl_b32 s46, s5, 7
v_add_u32 v10, s46, v10
v_lshrrev_b32 v11, 7, v11
v_lshlrev_b32 v11, 11, v11
v_and_b32 v9, 3, v0
v_lshl_add_u32 v11, v9, 7, v11
s_lshl_b32 s46, s40, 9
v_add_u32 v11, s46, v11
v_mov_b32_dpp v11, v10 {HI}
s_and_b32 s46, s2, {OPT["r1"]-1}
s_lshl_b32 s46, s46, 15
s_add_u32 s46, s46, {F1_OFF}
s_lshl_b32 s43, s5, 2
s_add_u32 s42, s40, s43
s_mul_i32 s42, s42, {QK_TILE}
s_add_u32 s50, s42, {Q_OFF}
s_mul_i32 s47, s40, {16*KV_REC}
s_add_u32 s47, s47, {KV_OFF}""")
    for i in range(16):
        A(f"s_add_u32 s42, s5, {i}\ns_and_b32 s42, s42, 15\ns_mul_i32 s42, s42, {KV_REC}\ns_add_u32 s{TB+i}, s42, s47")
    for j in range(4):
        A(f"""s_add_u32 s42, s40, {j}
s_and_b32 s42, s42, 3
s_lshl_b32 s42, s42, 11
s_add_u32 s42, s42, {QX}
v_add_u32 v{240+j}, s42, v8
s_add_u32 s42, s40, {j+1}
s_and_b32 s42, s42, 3
s_mul_i32 s42, s42, 12288
s_add_u32 s42, s42, {MERGE + (4096*j if j < 3 else 0)}
v_add_u32 v{244+j}, s42, v8""")
    for i in range(64): A(f"v_mov_b32 v{O+i}, 0")
    lds_wait(C_X, 1, 1)
    A("s_setprio 3")
    stamp(5)
    A(f"""s_cmp_ge_u32 s63, 29
s_cbranch_scc1 {LNW}
s_lshl_b32 s43, s40, 11
s_add_u32 m0, s43, {WX}
s_nop 0
buffer_load_dwordx4 v248, {sr(SX,4)}, s55 offen lds
s_add_u32 m0, s43, {WX+1024}
s_nop 0
buffer_load_dwordx4 v248, s[56:59], s55 offen lds
s_waitcnt vmcnt(0)""")
    lds_add(C_W)
    A(f"{LNW}:")
    stamp(2)
    if OPT["pd"]: A(f"s_sleep {OPT['pd']}")
    if OPT["pda"] > 0:
        LD = A.lab("pda"); A(f"s_cmp_lt_u32 s51, 11\ns_cbranch_scc1 {LD}\ns_sleep {OPT['pda']}\n{LD}:")
    if OPT["pda"] < 0:
        LD = A.lab("pda"); A(f"s_cmp_lt_u32 s51, 11\ns_cbranch_scc1 {LD}"); lds_wait(C_H, 4, 2); A(f"{LD}:")
    spin(f"buffer_load_dword v14, v11, {W}, s46 offen {SC}", 14, OPT["sl1"])
    stamp(6)
    t0, t1 = tile_loads(0, TB), tile_loads(1, TB+1)
    A(f"""{t0[0]}
buffer_load_dwordx4 {q(0,0)}, v1, {W}, s50 offen {SC}
{t0[1]}
buffer_load_dwordx4 {q(0,1)}, v2, {W}, s50 offen {SC}""")
    A("s_waitcnt vmcnt(0)")
    stamp(4)
    A(f"""v_mov_b32_dpp v{Q+6}, v7 {HI}
v_mov_b32_dpp v{Q+7}, v7 {HI}
v_mov_b32_dpp v{kb(0,1)+2}, v4 {HI}
{MFMA} {vr(S+16,16)}, {vr(kb(0,0),4)}, {q(0,0)}, 0
{t0[2]}
{MFMA} {vr(S+16,16)}, {vr(kb(0,1),4)}, {q(0,1)}, {vr(S+16,16)}
{t0[3]}
{MFMA} {vr(S,16)}, {vr(kb(0,0),4)}, {q(0,0)}, 0
ds_write_b128 v240, {q(0,0)}""")
    for x in t1[:2]: A(x)
    s_ = S+16
    A(f"v_max3_f32 v8, v{s_}, v{s_+1}, v{s_+2}\nv_max3_f32 v9, v{s_+3}, v{s_+4}, v{s_+5}")
    for i in range(6, 14, 4): A(f"v_max3_f32 v8, v8, v{s_+i}, v{s_+i+1}\nv_max3_f32 v9, v9, v{s_+i+2}, v{s_+i+3}")
    A(f"""v_max3_f32 v8, v8, v{s_+14}, v{s_+15}
v_max_f32 v8, v8, v9
v_cvt_pk_bf16_f32 v8, -v8, v7
v_mov_b32_dpp v{Q+6}, v8 {HI}
ds_write_b128 v240, {q(0,1)} offset:1024
{MFMA} {vr(S,16)}, {vr(kb(0,1),4)}, {q(0,1)}, {vr(S,16)}""")
    lds_sync(C_Q, 4)
    for j in range(1, 4):
        A(f"ds_read_b128 {q(j,0)}, v{240+j}\nds_read_b128 {q(j,1)}, v{240+j} offset:1024")
    for x in t1[2:]: A(x)
    A("s_waitcnt lgkmcnt(0)")
    stamp(7)
    lds_add(C_G2)
    A("s_setprio 1")
    def mwrites(j):
        return ([f"ds_write_b128 v{244+j}, {vr(O+16*j+4*g,4)} offset:{1024*g}" for g in range(3)] +
                [f"ds_write_b96 v{244+j}, {vr(O+16*j+12,3)} offset:3072"])
    for n in range(64):
        i, j = n >> 2, n & 3
        if n == 32: stamp(8)
        extra = []; late = []; at = {}
        if n == 0: extra = tile_loads(2, TB+2)
        ti, k = (i + 3, j - 1) if j >= 1 else (i + 2, 3)
        if 3 <= ti < 16: at[OPT["lp"]] = [tile_loads(ti & 3, TB+ti)[k]]
        if n >= 62: late = mwrites(n - 62)
        m = [None]*4
        pre = []
        if n < 63:
            i2, j2 = (n+1) >> 2, (n+1) & 3
            if j2 == 0:
                cnt = 4*(min(15, i+3) - (i+1))
                if i + 3 < 16: cnt -= 2
                pre = [f"s_waitcnt vmcnt({cnt})", f"v_mov_b32_dpp v{kb(i2&3,1)+2}, v4 {HI}"]
            m[0] = f"{MFMA} {vr(S+16*j2,16)}, {vr(kb(i2&3,0),4)}, {q(j2,0)}, 0"
            m[1] = f"{MFMA} {vr(S+16*j2,16)}, {vr(kb(i2&3,1),4)}, {q(j2,1)}, {vr(S+16*j2,16)}"
        if n > 0:
            i0, j0 = (n-1) >> 2, (n-1) & 3
            m[2] = f"{SMF} {vr(O+16*j0,16)}, {vr(kb(i0&3,3),4)}, {vr(S+16*j0+8,8)}, v5"
        m[3] = f"{SMF} {vr(O+16*j,16)}, {vr(kb(i&3,2),4)}, {vr(S+16*j,8)}, v5"
        if n == 63: m[0], m[2] = m[2], None
        for x in pre: A(x)
        for g in range(4):
            if n == 0 and g == 3: A("s_waitcnt vmcnt(8)")
            if m[g]: A(m[g])
            for e in range(4):
                r = S+16*j+4*g+e
                A(f"v_exp_f32 v{r}, v{r}")
                for x in at.pop(4*g+e, []): A(x)
                if extra: A(extra.pop(0))
                elif late and g >= 1 and e & 1: A(late.pop(0))
        assert not extra and not late and not at
    for x in mwrites(2)[:2]: A(x)
    A(f"{SMF} {vr(O+48,16)}, {vr(kb(3,3),4)}, {vr(S+48+8,8)}, v5")
    for x in mwrites(2)[2:]: A(x)
    stamp(9)
    A("s_setprio 3")
    lds_sync(C_MERGE, 4)
    for g in range(12): A(f"ds_read_b128 {vr(S+4*g,4)}, v247 offset:{1024*g}")
    A(f"""v_lshlrev_b32 v8, 4, v0
s_add_u32 s41, s40, 3
s_and_b32 s41, s41, 3
s_lshl_b32 s43, s5, 2
s_add_u32 s41, s41, s43
s_lshl_b32 s42, s41, 15
s_lshl_b32 s43, s4, 11
s_add_u32 s42, s42, s43
s_add_u32 s42, s42, {O_OFF}
s_lshl_b32 s41, s41, 11
s_lshl_b32 s43, s4, 7
s_add_u32 s41, s41, s43
s_add_u32 s41, s41, {FO_OFF}""")
    for k in range(3):
        A(f"s_waitcnt lgkmcnt({8-4*k})")
        for i in list(range(14, -2, -2)): A(f"v_pk_add_f32 {vr(OK+i,2)}, {vr(OK+i,2)}, {vr(S+16*k+i,2)}")
    A(f"""v_cmp_nle_f32 vcc, {f32(2.0**-40)}, v{OK+14}
s_mov_b64 s[48:49], vcc
v_cmp_nge_f32 vcc, {f32(2.0**40)}, v{OK+14}
s_or_b64 vcc, vcc, s[48:49]
s_cbranch_vccnz {LFB}
{LN}:
v_rcp_f32 v10, v{OK+14}
v_mov_b32 v{S+7}, 0
v_mov_b32 v11, v10""")
    for i in range(0, 14, 2):
        A(f"v_pk_mul_f32 {vr(OK+i,2)}, {vr(OK+i,2)}, v[10:11]")
        A(f"v_cvt_pk_bf16_f32 v{S+i//2}, v{OK+i}, v{OK+i+1}")
        if i == 6: A(f"buffer_store_dwordx4 {vr(S,4)}, v8, {W}, s42 offen {SC}")
    A(f"buffer_store_dwordx4 {vr(S+4,4)}, v8, {W}, s42 offen offset:1024 {SC}")
    stamp(10)
    lds_add(C_GO)
    WF = 112; BACC = 16; OB = 64; NB = 6
    A(f"""v_bfe_u32 v9, v0, 2, 2        ; rr
v_and_b32 v10, 3, v0
v_lshrrev_b32 v11, 1, v10
v_and_b32 v10, 1, v10
v_lshl_or_b32 v10, v10, 1, v11    ; sigma(cc)
v_bfe_u32 v11, v0, 4, 1
v_lshlrev_b32 v11, 5, v11
v_lshl_or_b32 v10, v10, 3, v11
s_lshl_b32 s45, s40, 6
v_or_b32 v10, s45, v10
v_lshrrev_b32 v15, 5, v0
v_mul_u32_u24 v11, 320, v9
v_xor_b32 v3, v10, v11
v_lshl_add_u32 v3, v15, 10, v3
v_lshl_or_b32 v9, v15, 1, v9
v_mul_u32_u24 v11, 320, v9
v_xor_b32 v4, v10, v11
v_add_u32 v5, {224*256}, v3
v_add_u32 v6, {224*256}, v4""")
    assert WO == 0
    def wo_frags(half):
        for n in range(16):
            hd, i = n >> 1, n & 1
            b = WF + 64*half + 4*n
            row = 28*hd + 16*i
            A(f"ds_read_b64_tr_b16 {vr(b,2)}, v{3+2*half} offset:{row*256}")
            A(f"ds_read_b64_tr_b16 {vr(b+2,2)}, v{(4 if i else 3)+2*half} offset:{(row+8)*256}")
            if n % 6 == 5: A("s_waitcnt lgkmcnt(2)")
    lds_wait(C_WOA, 4)
    wo_frags(0)
    A("s_waitcnt vmcnt(0) lgkmcnt(2)")
    flagstore("s41", OPT["ro"], 131072)
    wo_frags(1)
    A(f"""s_lshr_b32 s4, s2, 4
s_lshl_b32 s4, s4, 2
s_bfe_u32 s5, s2, 0x20001
s_or_b32 s4, s4, s5
s_and_b32 s5, s2, 1
s_and_b32 s46, s5, {OPT["ro"]-1}
s_lshl_b32 s46, s46, 17
s_lshl_b32 s5, s5, 1
s_bfe_u32 s6, s2, 0x10003
s_or_b32 s5, s5, s6            ; n quarter
s_lshl_b32 s43, s4, 15
s_lshl_b32 s44, s40, 13
s_add_u32 s43, s43, s44
s_add_u32 s43, s43, {O_OFF}
s_add_u32 s47, s43, 4096
v_and_b32 v14, 31, v0
v_mul_u32_u24 v2, 1792, v14
v_lshl_add_u32 v2, v15, 4, v2
s_mul_i32 s41, s4, {32*1792}
s_lshl_b32 s42, s5, 8
s_add_u32 s41, s41, s42
s_add_u32 s41, s41, s45
s_add_u32 s41, s41, 896
s_lshl_b32 s42, s4, 11
s_add_u32 s46, s46, s42
s_lshl_b32 s42, s40, 9
s_add_u32 s46, s46, s42
s_add_u32 s46, s46, {FO_OFF}
v_and_b32 v9, 3, v0
v_lshlrev_b32 v9, 7, v9""")
    lds_sync(C_WOF, 4)
    assert OST == 0
    def odma():
        for half in range(2):
            A(f"s_add_u32 m0, s44, {OST+4096*half}")
            for i in range(4):
                A(f"buffer_load_dwordx4 v8, {W}, s{47 if half else 43} offen offset:{1024*i} {SC} lds")
    if not OPT["dyn"]:
        spin(f"buffer_load_dword v14, v9, {W}, s46 offen {SC}", 14, OPT["sl1"])
        stamp(11)
        odma()
        A("s_waitcnt vmcnt(0)")
        lds_sync(C_OST, 4)
        stampw(12)
        def rd(n): A(f"ds_read_b128 {vr(OB+4*(n%NB),4)}, v8 offset:{1024*n}")
        for n in range(NB-1): rd(n)
        for n in range(32):
            if n + NB - 1 < 32: rd(n + NB - 1)
            left = min(31, n+NB-1) - n
            A(f"s_waitcnt lgkmcnt({left})\n{MFMA} {vr(BACC,16)}, {vr(WF+4*n,4)}, {vr(OB+4*(n%NB),4)}, {vr(BACC,16) if n else 0}")
    else:
        LL, LM, LNONE, LX = A.lab("b3l"), A.lab("b3m"), A.lab("b3n"), A.lab("b3x")
        LG = [A.lab("b3g") for _ in range(4)]
        GA = (16, 32, 48, 96)
        A(f"""v_mov_b32 v12, {C_OST}
s_lshl_b32 s52, 1, s40
v_mov_b32 v10, s52
s_mov_b32 s50, 0
s_mov_b32 s51, 0
s_mov_b32 s61, {SPIN}
{LL}:
s_cmp_lg_u32 s50, 0
s_cbranch_scc1 {LM}
buffer_load_dword v14, v9, {W}, s46 offen {SC}
s_sub_u32 s61, s61, 1
s_waitcnt vmcnt(0)
v_cmp_ne_u32 vcc, s{TAG}, v14
s_cmp_eq_u32 s61, 0
s_cselect_b64 vcc, 0, vcc
s_cbranch_vccnz {LM}""")
        stamp(11)
        odma()
        A(f"""s_mov_b32 s50, 1
{LM}:
ds_read_b32 v13, v12
s_waitcnt lgkmcnt(0)
v_readfirstlane_b32 s60, v13
s_andn2_b32 s60, s60, s51
s_cbranch_scc0 {LNONE}
s_ff1_i32_b32 s53, s60
s_bitset1_b32 s51, s53
s_cmp_eq_u32 s53, 1
s_cbranch_scc1 {LG[1]}
s_cmp_eq_u32 s53, 2
s_cbranch_scc1 {LG[2]}
s_cmp_eq_u32 s53, 3
s_cbranch_scc1 {LG[3]}""")
        for g in range(4):
            A(f"{LG[g]}:")
            for n in range(8): A(f"ds_read_b128 {vr(OB+4*n,4)}, v8 offset:{1024*(8*g+n)}")
            for n in range(8):
                A(f"s_waitcnt lgkmcnt({7-n})\n{MFMA} {vr(GA[g],16)}, {vr(WF+32*g+4*n,4)}, {vr(OB+4*n,4)}, {vr(GA[g],16) if n else 0}")
            A(f"s_cmp_eq_u32 s51, 15\ns_cbranch_scc0 {LL}\ns_branch {LX}")
        A(f"""{LNONE}:
s_cmp_lg_u32 s50, 1
s_cbranch_scc1 {LL}
s_waitcnt vmcnt(0)
s_mov_b64 exec, 1
ds_or_b32 v12, v10
s_mov_b64 exec, -1
s_mov_b32 s50, 2""")
        stamp(12)
        A(f"s_branch {LM}\n{LX}:\ns_nop 8")
        for i in range(0, 16, 2):
            A(f"v_pk_add_f32 {vr(16+i,2)}, {vr(16+i,2)}, {vr(32+i,2)}\nv_pk_add_f32 {vr(48+i,2)}, {vr(48+i,2)}, {vr(96+i,2)}")
        for i in range(0, 16, 2): A(f"v_pk_add_f32 {vr(16+i,2)}, {vr(16+i,2)}, {vr(48+i,2)}")
    A(f"""s_lshl_b32 s42, s5, 2
s_add_u32 s42, s42, s40
s_cmp_ge_u32 s42, 14
s_cbranch_scc1 {END}""")
    for i in range(8): A(f"v_cvt_pk_bf16_f32 v{32+i}, v{BACC+2*i}, v{BACC+2*i+1}")
    A(f"""buffer_store_dwordx4 v[32:35], v2, {sr(SO,4)}, s41 offen {OBM}
buffer_store_dwordx4 v[36:39], v2, {sr(SO,4)}, s41 offen offset:32 {OBM}
s_branch {END}""")

def helper():
    SWO = 56
    T, AC2, WA, WB, Y = 16, 48, 64, 72, 80
    LNOA2, LNY2, LP2 = "L_noa2", A.lab("nyq"), A.lab("pub2")
    A(f"{HELP2}:")
    if OPT["x"] >= 4:
        lds_add(C_WOA); A(f"s_branch {END}")
    stamp(11)
    if OPT["pda"] < 0: lds_add(C_H)
    A(f"""s_lshr_b32 s5, s2, 3
s_cmp_ge_u32 s5, 29
s_cbranch_scc1 {LNOA2}
v_lshrrev_b32 v8, 3, v0
v_and_b32 v9, 4, v8
v_bfe_u32 v10, v8, 1, 1
v_or_b32 v9, v9, v10
v_and_b32 v8, 1, v8
v_lshl_or_b32 v9, v8, 1, v9     ; s2 mod 8 = 4*(p>>1) + 2h + (p&1)
v_mul_u32_u24 v1, {T_ROW}, v9
v_and_b32 v8, 1, v0
v_lshl_add_u32 v1, v8, 9, v1
v_bfe_u32 v8, v0, 1, 2
v_lshl_add_u32 v1, v8, 4, v1    ; T offset
s_lshl_b32 s41, s5, 10
s_lshl_b32 s42, s4, 6
s_add_u32 s41, s41, s42
s_add_u32 s41, s41, {T_OFF}
s_mul_i32 s42, s40, {16*T_ROW}
s_add_u32 s41, s41, s42
s_mul_i32 s44, s5, 43
s_lshr_b32 s44, s44, 8          ; g5
s_lshl_b32 s45, s44, 11
s_and_b32 s46, s2, {OPT["r1"]-1}
s_lshl_b32 s46, s46, 15
s_add_u32 s46, s46, {F1_OFF + 11*2048}
v_and_b32 v9, 15, v0
v_lshlrev_b32 v9, 7, v9
v_add_u32 v9, s45, v9
v_mov_b32 v10, 0
v_mov_b32_dpp v9, v10 {HI}
s_lshl_b32 s43, s40, 11
s_add_u32 m0, s43, {TX}
s_add_u32 s47, s41, {8*T_ROW - 1024}
s_nop 0""")
    lds_wait(C_G2 if OPT["g2"] else C_LF, 4, 1)
    def a1poll():
        A(f"""buffer_load_dword v10, v9, {W}, s46 offen {SC}
s_waitcnt vmcnt(0)
v_cmp_ne_u32 vcc, s{TAG}, v10""")
    acquire(R_A1, a1poll, OPT["sl2"], 1)
    stamp(6)
    A(f"""buffer_load_dwordx4 v1, {W}, s41 offen {SC} lds
buffer_load_dwordx4 v1, {W}, s47 offen offset:1024 {SC} lds
v_lshrrev_b32 v8, 3, v14        ; u1 local
v_and_b32 v9, 7, v14            ; k local
v_lshl_add_u32 v2, v15, 3, v8
v_lshlrev_b32 v2, 4, v2
v_lshl_add_u32 v2, v9, 1, v2
s_cmp_eq_u32 s5, 28
s_cselect_b32 s45, 14, 0
s_add_u32 s42, s43, s45
s_add_u32 s42, s42, {WX}
v_add_u32 v2, s42, v2
v_mul_u32_u24 v3, {2*T2_ROW}, v15
v_lshl_add_u32 v3, v9, 4, v3
v_lshl_add_u32 v3, v8, 2, v3    ; T2 offset
v_lshlrev_b32 v8, 4, v0
v_add_u32 v8, {EX}, v8
v_add_u32 v9, s43, v8
v_lshlrev_b32 v1, 2, v0
v_add_u32 v1, {TX}, v1""")
    for i in range(16): A(f"v_mov_b32 v{WA+i}, 0")
    A("s_waitcnt vmcnt(0)")
    lds_sync(C_T, 4)
    for m in range(0, 28, 2): A(f"ds_read2st64_b32 {vr(T+m,2)}, v1 offset0:{m} offset1:{m+1}")
    for f in range(8):
        if f == 1:
            for m in range(28, 32, 2): A(f"ds_read2st64_b32 {vr(T+m,2)}, v1 offset0:{m} offset1:{m+1}")
        A(f"s_waitcnt lgkmcnt({12 if f == 0 else 14-2*f})\n{MFMA} {vr(AC2,16)}, {vr(C+4*f,4)}, {vr(T+4*f,4)}, {vr(AC2,16) if f else 0}")
    lds_wait(C_W, 4)
    for j in range(8):
        A(f"ds_read_u16_d16_hi v{WA+j}, v2 offset:{(4*(j>>1)+(j&1))*64}")
    A("s_waitcnt lgkmcnt(4)")
    for j in range(8):
        A(f"ds_read_u16_d16_hi v{WB+j}, v2 offset:{(4*(j>>1)+(j&1))*64+1024}")
    A(f"s_waitcnt lgkmcnt(0)\ns_cmp_lg_u32 s5, 28\ns_cbranch_scc1 {LNY2}")
    for j in range(8): A(f"v_xor_b32 v{WA+j}, 0x80000000, v{WA+j}")
    A(f"{LNY2}:")
    A(f"""s_mul_i32 s41, s40, {16*T2_ROW}
s_mul_i32 s42, s4, {T2_Q}
s_add_u32 s41, s41, s42
s_lshl_b32 s42, s5, 7
s_add_u32 s41, s41, s42
s_add_u32 s41, s41, {T2_OFF}""")
    for j in range(8):
        xr, xi = AC2+2*j, AC2+2*j+1
        A(f"""v_mul_f32 v10, v{xr}, v{WA+j}
v_mul_f32 v11, v{xr}, v{WB+j}
v_fma_f32 v10, -v{xi}, v{WB+j}, v10
v_fmac_f32 v11, v{xi}, v{WA+j}
v_cvt_pk_bf16_f32 v{Y+j}, v11, v10""")
        if j == 3: A(f"ds_write_b128 v9, {vr(Y,4)}")
    A(f"ds_write_b128 v9, {vr(Y+4,4)} offset:1024")
    lds_sync(C_EX, 4)
    for f in range(8): A(f"ds_read_b128 {vr(T+4*f,4)}, v8 offset:{1024*f}")
    for f in range(8):
        A(f"s_waitcnt lgkmcnt({7-f})\n{MFMA} {vr(AC2,16)}, {vr(C+4*f,4)}, {vr(T+4*f,4)}, {vr(AC2,16) if f else 0}")
    for j in range(8):
        A(f"""v_cvt_pk_bf16_f32 v{Y+j}, v{AC2+2*j+1}, v{AC2+2*j}
s_add_u32 s43, s41, {(4*(j>>1)+(j&1))*T2_ROW}
buffer_store_dword v{Y+j}, v3, {W}, s43 offen {SC}""")
    stamp(7)
    arrive(C_A2, LP2)
    A(f"""s_lshl_b32 s41, s44, 2
s_lshr_b32 s42, s4, 1
s_add_u32 s41, s41, s42
s_lshl_b32 s41, s41, 7
s_add_u32 s41, s41, {AT_OFF}
s_cmp_eq_u32 s44, 4
s_cselect_b32 s42, 9, 11
v_mov_b32 v12, 0
v_mov_b32 v13, 1
s_mov_b64 exec, 1
buffer_atomic_add v13, v12, {W}, s41 offen sc0 sc1
s_mov_b64 exec, -1
s_waitcnt vmcnt(0)
v_readfirstlane_b32 s60, v13
s_cmp_lg_u32 s60, s42
s_cbranch_scc1 {LP2}
v_mov_b32 v13, 1
s_mov_b32 s41, {AT_OFF + 20*128}
s_mov_b64 exec, 1
buffer_atomic_add v13, v12, {W}, s41 offen sc0 sc1
s_mov_b64 exec, -1
s_waitcnt vmcnt(0)
v_readfirstlane_b32 s60, v13
s_cmp_lg_u32 s60, 19
s_cbranch_scc1 {LP2}
s_mov_b32 s41, {F2_OFF}""")
    flagstore("s41", 8, 128)
    assert EPOCH_OFF == 0
    flagstore("0", 1, 0)
    A(f"{LP2}:")
    lds_wait(C_A2, 4, 4)
    A(f"{LNOA2}:")
    srd(SWO, P_WO, WO_BYTES)
    LW = A.lab("wo")
    A(f"""s_and_b32 s53, s2, 1
s_lshl_b32 s53, s53, 1
s_bfe_u32 s54, s2, 0x10003
s_or_b32 s53, s53, s54
s_lshl_b32 s53, s53, 8
s_mul_i32 s54, s40, {112*896}
s_add_u32 s53, s53, s54
s_mul_i32 s54, s40, {112*256}
v_lshrrev_b32 v9, 4, v0
v_and_b32 v8, 15, v0
v_lshlrev_b32 v4, 2, v9
v_xor_b32 v8, v8, v4
v_lshlrev_b32 v8, 4, v8
v_mul_u32_u24 v9, 896, v9
v_add_u32 v4, v8, v9""")
    lds_wait(C_G2, 4, 4)
    A(f"""s_mov_b32 m0, s54
s_mov_b32 s55, 28
{LW}:
{"s_sleep %d" % OPT["wos"] if OPT["wos"] > 0 else "s_waitcnt vmcnt(%d)" % -OPT["wos"]}
buffer_load_dwordx4 v4, {sr(SWO,4)}, s53 offen lds
s_add_u32 m0, m0, 1024
s_add_u32 s53, s53, {4*896}
s_sub_u32 s55, s55, 1
s_cmp_lg_u32 s55, 0
s_cbranch_scc1 {LW}
s_waitcnt vmcnt(0)""")
    lds_add(C_WOA)
    stamp(12)
    TA, NY, AC3, ZB, AC4 = 16, 48, 64, 16, 112
    A(f"""v_and_b32 v8, 15, v14
v_lshrrev_b32 v9, 4, v14
v_lshl_or_b32 v8, v8, 1, v9
v_mul_u32_u24 v2, {T2_Q}, v15
v_lshl_add_u32 v1, v8, 4, v2    ; T2 offset
v_add_u32 v2, {224*16}, v2
s_mul_i32 s41, s50, {T2_ROW}
s_add_u32 s41, s41, {T2_OFF}
s_lshl_b32 s42, s40, 9
s_add_u32 s42, s42, s41
s_and_b32 s46, s2, 7
s_lshl_b32 s46, s46, 7
s_add_u32 s46, s46, {F2_OFF}
v_mov_b32 v9, 0""")
    srd(SO, P_OUT, OUT_BYTES)
    def a2poll():
        A(f"""buffer_load_dword v10, v9, {W}, s46 offen {SC}
s_waitcnt vmcnt(0)
v_cmp_ne_u32 vcc, s{TAG}, v10""")
    acquire(R_A2, a2poll, OPT["sl3"], OPT["sl3"])
    stamp(8)
    LA, LB = A.lab("a3l"), A.lab("a3l")
    for f in range(4):
        A(f"s_add_u32 s43, s42, {2*f*T2_Q}\nbuffer_load_dwordx4 {vr(TA+4*f,4)}, v1, {W}, s43 offen {SC}\ns_sleep 1")
    A(f"s_cmp_eq_u32 s40, 3\ns_cbranch_scc1 {LA}")
    for f in range(4):
        A(f"s_add_u32 s43, s42, {2*f*T2_Q + 2048}\nbuffer_load_dwordx4 {vr(TA+16+4*f,4)}, v1, {W}, s43 offen {SC}\ns_sleep 1")
    A(f"{LA}:\ns_cmp_lg_u32 s40, 0\ns_cbranch_scc1 {LB}")
    for f in range(4):
        A(f"s_add_u32 s43, s41, {2*f*T2_Q}\nbuffer_load_dwordx4 {vr(NY+4*f,4)}, v2, {W}, s43 offen {SC}")
    A(f"{LB}:")
    lds_wait(C_GO, 4, OPT["slg"])
    A("s_setprio 0")
    if OPT["x"] not in (2, 3): stamp(10)
    LN3, LZ = A.lab("a3ny"), A.lab("a3z")
    A("s_waitcnt vmcnt(0)")
    setup = f"""v_lshlrev_b32 v5, 4, v0
s_lshl_b32 s43, s40, 11
s_add_u32 s43, s43, {ZOFF}
v_add_u32 v6, s43, v5
s_mul_i32 s43, s52, 14336
s_add_u32 s43, s43, {ZOFF}
v_add_u32 v5, s43, v5
s_lshr_b32 s46, s40, 1
s_lshl_b32 s46, s46, 3
v_add_u32 v7, s46, v15          ; 8p + h
v_and_b32 v9, 7, v14
v_xor_b32 v7, v7, v9
v_lshlrev_b32 v7, 4, v7
v_lshl_or_b32 v7, v14, 8, v7
s_lshl_b32 s46, s52, 13
s_add_u32 s46, s46, {YOFF}
v_add_u32 v7, s46, v7           ; Y write address
v_lshrrev_b32 v8, 3, v0
s_lshl_b32 s46, s40, 3
v_add_u32 v8, s46, v8           ; row (s1)
v_and_b32 v9, 7, v0             ; piece
v_lshlrev_b32 v10, 1, v9
v_and_b32 v11, 7, v8
v_xor_b32 v10, v10, v11
v_lshlrev_b32 v10, 4, v10
v_lshl_or_b32 v10, v8, 8, v10
v_add_u32 v10, {YOFF}, v10
v_xor_b32 v11, 16, v10
v_mul_u32_u24 v8, {64*1792}, v8
v_lshl_add_u32 v8, v9, 4, v8    ; out offset
s_mul_i32 s41, s50, 1792
s_lshl_b32 s42, s51, 7
s_add_u32 s41, s41, s42""".split("\n")
    for tt in range(2):
        for f in range(4):
            A(f"{MFMA} {vr(AC3+32*tt,16)}, {vr(TA+16*tt+4*f,4)}, {vr(ER+4*f,4)}, {vr(AC3+32*tt,16) if f else 0}")
            for _ in range(5):
                if setup: A(setup.pop(0))
    assert not setup
    A(f"s_cmp_eq_u32 s51, 3\ns_cselect_b32 s42, 4, 8\nv_cmp_gt_u32 s[48:49], s42, v9")
    A(f"s_cmp_lg_u32 s40, 0\ns_cbranch_scc1 {LN3}\ns_mov_b32 exec_lo, 1\ns_mov_b32 exec_hi, 1")
    for i in range(16): A(f"v_mov_b32 v{TA+i}, v{NY+i}")
    A(f"s_mov_b64 exec, -1\n{LN3}:\ns_nop 1")
    def zout(tt, part):
        a = AC3+32*tt+16*part
        e = [f"v_cvt_pk_bf16_f32 v{a+i}, v{a+2*i}, v{a+2*i+1}" for i in range(8)]
        return e + [f"ds_write_b128 v6, {vr(a+4*p,4)} offset:{14336*p+8192*tt+1024*part}" for p in range(2)]
    pend = zout(0, 0)
    for tt in range(2):
        for f in range(4):
            A(f"{MFMA} {vr(AC3+32*tt+16,16)}, {vr(TA+16*tt+4*f,4)}, {vr(EI+4*f,4)}, {vr(AC3+32*tt+16,16) if f else 0}")
            for _ in range(3):
                if pend: A(pend.pop(0))
    for x in pend + zout(0, 1): A(x)
    A(f"s_cmp_eq_u32 s40, 3\ns_cbranch_scc1 {LZ}")
    for x in zout(1, 0) + zout(1, 1): A(x)
    A(f"{LZ}:")
    lds_sync(C_Z, 4)
    for i in range(14): A(f"ds_read_b128 {vr(ZB+4*i,4)}, v5 offset:{1024*i}")
    for i in range(14):
        A(f"s_waitcnt lgkmcnt({13-i})\n{MFMA} {vr(AC4,16)}, {vr(G+4*i,4)}, {vr(ZB+4*i,4)}, {vr(AC4,16) if i else 0}")
    for g in range(4):
        A(f"v_xor_b32 v9, {32*g}, v7\nds_write_b128 v9, {vr(AC4+4*g,4)}")
    lds_sync(C_Y, 4)
    A(f"""ds_read_b128 v[16:19], v10
ds_read_b128 v[20:23], v11
ds_read_b128 v[24:27], v10 offset:8192
ds_read_b128 v[28:31], v11 offset:8192
s_waitcnt lgkmcnt(0)""")
    for i in range(8): A(f"v_add_f32 v{32+i}, v{16+i}, v{24+i}\nv_sub_f32 v{40+i}, v{16+i}, v{24+i}")
    for i in range(8): A(f"v_cvt_pk_bf16_f32 v{48+i}, v{32+2*i}, v{33+2*i}")
    A(f"""s_mov_b64 exec, s[48:49]
buffer_store_dwordx4 v[48:51], v8, {sr(SO,4)}, s41 offen {OA}
buffer_store_dwordx4 v[52:55], v8, {sr(SO,4)}, s41 offen offset:448 {OA}
s_mov_b64 exec, -1
s_branch {END}""")

def fallback():
    L1, L2 = A.lab("fb1"), A.lab("fb2")
    tl = tile_loads(0, 43)
    A(f"""{LFB}:
v_mov_b32_dpp v{Q+24+6}, v7 {HI}
v_mov_b32 v12, 0xff800000
s_mov_b32 s43, {KV_OFF}
{L1}:
{tl[0]}
{tl[1]}
s_waitcnt vmcnt(0)
{MFMA} {vr(S,16)}, {vr(kb(0,0),4)}, {q(3,0)}, 0
{MFMA} {vr(S,16)}, {vr(kb(0,1),4)}, {q(3,1)}, {vr(S,16)}""")
    for i in range(0, 16, 2): A(f"v_max3_f32 v12, v12, v{S+i}, v{S+i+1}")
    A(f"""s_add_u32 s43, s43, {KV_REC}
s_cmp_lt_u32 s43, {KV_OFF+64*KV_REC}
s_cbranch_scc1 {L1}
v_mov_b32 v13, v12
v_mov_b32 v14, v12
v_permlane32_swap_b32 v13, v14
v_max_f32 v12, v13, v14""")
    for i in range(16): A(f"v_mov_b32 v{OK+i}, 0")
    A(f"s_mov_b32 s43, {KV_OFF}\n{L2}:")
    for x in tl: A(x)
    A(f"""s_waitcnt vmcnt(0)
{MFMA} {vr(S,16)}, {vr(kb(0,0),4)}, {q(3,0)}, 0
{MFMA} {vr(S,16)}, {vr(kb(0,1),4)}, {q(3,1)}, {vr(S,16)}""")
    for i in range(16): A(f"v_sub_f32 v{S+i}, v{S+i}, v12")
    for i in range(16): A(f"v_exp_f32 v{S+i}, v{S+i}")
    A(f"""{SMF} {vr(OK,16)}, {vr(kb(0,2),4)}, {vr(S,8)}, v5
{SMF} {vr(OK,16)}, {vr(kb(0,3),4)}, {vr(S+8,8)}, v5
s_nop 15
s_add_u32 s43, s43, {KV_REC}
s_cmp_lt_u32 s43, {KV_OFF+64*KV_REC}
s_cbranch_scc1 {L2}
s_branch {LN}""")

def finish():
    A(f"{END}:")
    if OPT["probe"]:
        LQ = A.lab("probe")
        stamp(13)
        A(f"""s_cmp_lg_u32 s2, {OPT["pwg"]}
s_cbranch_scc1 {FIN}
s_cmp_lg_u32 s3, {OPT["pwave"]}
s_cbranch_scc1 {FIN}
s_waitcnt lgkmcnt(0)
s_sub_u32 s56, s{64+2*OPT["probe"]}, s66
s_mul_i32 s56, s56, 10
s_add_u32 s56, s56, s90
{LQ}:
s_memrealtime s[58:59]
s_waitcnt lgkmcnt(0)
s_sub_u32 s57, s58, s56
s_cmp_lt_i32 s57, 0
s_cbranch_scc1 {LQ}""")
    elif STAMPS:
        stamp(13)
        A(f"""s_waitcnt vmcnt(0)
s_memtime s[92:93]
s_memrealtime s[94:95]
s_waitcnt lgkmcnt(0)
{"s_getreg_b32 s64, hwreg(HW_REG_XCC_ID)" if STAMPS == 1 else ""}
{"s_getreg_b32 s92, hwreg(HW_REG_HW_ID)" if STAMPS == 1 else ""}
s_mov_b32 s56, s24
s_mov_b32 s57, s25
s_mov_b32 s58, 0x2000000
s_mov_b32 s59, 0x00020000
s_mov_b64 exec, 1
s_lshl_b32 s60, s2, 3
s_add_u32 s60, s60, s3
s_lshl_b32 s60, s60, 6
s_add_u32 s60, s60, {TS_OFF}
v_mov_b32 v1, 0""")
        for i in range(16):
            A(f"v_mov_b32 v2, s{64+2*i}\nbuffer_store_dword v2, v1, s[56:59], s60 offen offset:{4*i}")
    A(f"{FIN}:\ns_endpgm")

entry(); b1_loader(); a1_dispatch_loader(); a1_gen(); a1_compute(); pub1(); helper()
A(f"{LB1C}:\ns_setprio 2"); main_start()
for i in range(64): A(f"v_mov_b32 v{ACC+i}, 0")
A("s_waitcnt lgkmcnt(0)"); gettag()
gen_pre(); b1_compute()
attention(); fallback(); finish()

HDR = open("cdna_kernels/%s.s.ref" % NAME).read().split("; Override")[0]
txt = HDR + f"; @launch grid=(256,1,1) block=(512,1,1) lds={LDS_BYTES}\n"
txt += '.amdgcn_target "amdgcn-amd-amdhsa--gfx950"\n.text\n' + A.finish()
txt += f""".section .rodata,"a"
.p2align 6
.amdhsa_kernel {K}
  .amdhsa_next_free_vgpr 256
  .amdhsa_next_free_sgpr 96
  .amdhsa_accum_offset 256
  .amdhsa_group_segment_fixed_size 0
  .amdhsa_kernarg_size 72
  .amdhsa_user_sgpr_count 2
  .amdhsa_user_sgpr_kernarg_segment_ptr 1
  .amdhsa_system_sgpr_workgroup_id_x 1
.end_amdhsa_kernel
"""
out = args[0] if args else "cdna_kernels/%s.s" % NAME
open(out, "w").write(txt)
print("wrote", out, len(txt))
```

```python
import sys, struct
from emit import Asm
from layout import *
NAME = "concat_heads__spectral_gfnet__softmax_full_mha__prompt"
OPT = dict(stamps=0, r1=8, pf=1, sl1=1, sl2=8, sl3=40, rot=1, x=0, probe=0, pwave=4, pwg=100, pd=0, wos=-2, lp=13, slg=8, g2=0, ro=2, wm=0, tch=0, pda=0, oa=0, ob=0, gd=1, dyn=0, wsb=0, fl=1, pw=2, tw=0)
args = []
for a in sys.argv[1:]:
    if "=" in a: k, v = a.split("="); assert k in OPT, k; OPT[k] = int(v)
    else: args.append(a)
STAMPS = OPT["stamps"]
MODS = ['', 'sc1', 'nt', 'sc0 sc1']
OA, OBM = MODS[OPT['oa']], MODS[OPT['ob']]
def f32(x): return "0x%08x" % struct.unpack("<I", struct.pack("<f", x))[0]
def vr(a, n=1): return f"v{a}" if n == 1 else f"v[{a}:{a+n-1}]"
def sr(a, n=1): return f"s{a}" if n == 1 else f"s[{a}:{a+n-1}]"
P_AX, P_WR, P_WI, P_BX, P_WQKV, P_WO, P_OUT, P_DBG, P_WS = 8,10,12,14,16,18,20,22,24
MFMA = "v_mfma_f32_32x32x16_bf16"
SMF = "v_smfmac_f32_32x32x32_bf16"
SC = "sc1"
HI = "quad_perm:[0,1,2,3] row_mask:0xc bank_mask:0xf"
TAGC = 0x9E3779B9
TAG = 62
SWS = 36; W = sr(SWS,4)
SX, SW = 28, 32
SPIN = 200000
FOFF = 7*16384
WO, OST = 0, 0
QX, EX, TX, WX = 0, 8192, 16384, 24576
MERGE = 114688
ZOFF, YOFF = MERGE, MERGE + 28672
CNT = 162816
LDS_BYTES = 163840
(C_P1, R_KV, C_MERGE, C_OST, R_A1, C_EX, C_A2, R_A2, C_Z, C_Y, C_WOA, C_WOF, C_GO, C_G2, C_Q, C_LF, C_T, C_W, C_X, C_H) = [CNT+16*i+12 for i in range(20)]

A = Asm()
def stamp(i):
    if STAMPS: A(f"{'s_memtime' if STAMPS == 2 else 's_memrealtime'} s[{64+2*i}:{65+2*i}]")
def stampw(i):
    if STAMPS: stamp(i); A("s_waitcnt lgkmcnt(0)")
def srd(d, p, nbytes):
    A(f"s_mov_b32 s{d}, s{p}\ns_mov_b32 s{d+1}, s{p+1}\ns_mov_b32 s{d+2}, {nbytes}\ns_mov_b32 s{d+3}, 0x00020000")
def pi32(d, s, t):
    A(f"""v_and_b32 v{d}, 0x13, v{s}
v_and_b32 v{t}, 4, v{s}
v_lshl_or_b32 v{d}, v{t}, 1, v{d}
v_and_b32 v{t}, 8, v{s}
v_lshrrev_b32 v{t}, 1, v{t}
v_or_b32 v{d}, v{d}, v{t}""")
def mod7(d, t):
    A(f"s_mul_i32 s{t}, s{d}, 37\ns_lshr_b32 s{t}, s{t}, 8\ns_mul_i32 s{t}, s{t}, 7\ns_sub_u32 s{d}, s{d}, s{t}")
def lds_add(addr):
    A(f"v_mov_b32 v12, {addr}\nv_mov_b32 v13, 1\ns_mov_b64 exec, 1\nds_add_u32 v12, v13\ns_mov_b64 exec, -1")
def lds_wait(addr, target, sleep=0, setup=True):
    L, L2 = A.lab("lw"), A.lab("lwd")
    if setup: A(f"v_mov_b32 v12, {addr}")
    A(f"""{L}:
ds_read_b32 v13, v12
s_waitcnt lgkmcnt(0)
v_readfirstlane_b32 s60, v13
s_cmp_ge_u32 s60, {target}""")
    if sleep: A(f"s_cbranch_scc1 {L2}\ns_sleep {sleep}\ns_branch {L}\n{L2}:")
    else: A(f"s_cbranch_scc0 {L}")
def lds_sync(addr, target, sleep=0):
    A("s_waitcnt lgkmcnt(0)"); lds_add(addr); lds_wait(addr, target, sleep, False)
def arrive(cnt, skip):
    A(f"""s_waitcnt vmcnt(0)
v_mov_b32 v12, {cnt}
v_mov_b32 v13, 1
s_mov_b64 exec, 1
ds_add_rtn_u32 v13, v12, v13
s_mov_b64 exec, -1
s_waitcnt lgkmcnt(0)
v_readfirstlane_b32 s60, v13
s_cmp_lg_u32 s60, 3
s_cbranch_scc1 {skip}""")
def flagstore(soff, nrep, repstride, t=40, val=None):
    val = val or f"s{TAG}"
    if not OPT["fl"]:
        A(f"""v_mul_u32_u24 v12, {repstride}, v0
v_mov_b32 v13, {val}
s_mov_b64 exec, {(1<<nrep)-1}
buffer_store_dword v13, v12, {W}, {soff} offen {SC}
s_mov_b64 exec, -1""")
        return
    A(f"""v_lshrrev_b32 v12, 3, v0
v_mul_u32_u24 v12, {repstride}, v12
v_and_b32 v13, 7, v0
v_lshl_add_u32 v12, v13, 4, v12""")
    for i in range(4): A(f"v_mov_b32 v{t+i}, {val}")
    if nrep < 8: A(f"s_mov_b64 exec, {(1<<(8*nrep))-1}")
    A(f"buffer_store_dwordx4 {vr(t,4)}, v12, {W}, {soff} offen {SC}")
    if nrep < 8: A("s_mov_b64 exec, -1")
def publish(cnt, soff, nrep, repstride):
    L = A.lab("pub")
    arrive(cnt, L); flagstore(f"s{soff}", nrep, repstride); lds_add(C_X); A(f"{L}:")
def acquire(rel, body, sleep, sleep2=1):
    LP, LD, LO, LE = A.lab("poll"), A.lab("pollok"), A.lab("pollw"), A.lab("polle")
    A(f"s_cmp_lg_u32 s40, 0\ns_cbranch_scc1 {LO}\ns_mov_b32 s61, {SPIN}\n{LP}:")
    body()
    A(f"""s_cbranch_vccz {LD}
s_sub_u32 s61, s61, 1
s_cmp_eq_u32 s61, 0
s_cbranch_scc1 {LD}
s_sleep {sleep}
s_branch {LP}
{LD}:""")
    lds_add(rel)
    A(f"s_branch {LE}\n{LO}:")
    lds_wait(rel, 1, sleep2)
    A(f"{LE}:")
def spin(load, reg, sleep):
    LP, LD = A.lab("spin"), A.lab("spinok")
    A(f"""s_mov_b32 s61, {SPIN}
{LP}:
{load}
s_waitcnt vmcnt(0)
v_cmp_ne_u32 vcc, s{TAG}, v{reg}
s_cbranch_vccz {LD}
s_sub_u32 s61, s61, 1
s_cmp_eq_u32 s61, 0
s_cbranch_scc1 {LD}
s_sleep {sleep}
s_branch {LP}
{LD}:""")
def gettag():
    if OPT["wsb"]: A(f"s_add_u32 s24, s24, {OPT['wsb'] << 20}\ns_addc_u32 s25, s25, 0")
    A(f"s_load_dword s{TAG}, s[24:25], {EPOCH_OFF}")
    srd(SWS, P_WS, WS_USED)
def fixtag():
    A(f"s_waitcnt lgkmcnt(0)\ns_add_u32 s{TAG}, s{TAG}, {TAGC}")

FIN, END, ATT, PUB1, HELP2, GEN = "L_fin", "L_end", "L_att", "L_pub1", "L_help2", "L_gen"
LA1, LB1C, LB1G, LA1C, LV, LN, LFB = "L_a1", "L_b1c", "L_b1g", "L_a1c", "L_b1v", "L_norm", "L_fallback"
K = NAME + "_kernel"

def entry():
    A(f".globl {K}\n.p2align 8\n.type {K},@function\n{K}:")
    A(f"""s_cmp_ge_u32 s2, 256
s_cbranch_scc1 {FIN}
s_load_dwordx16 s[8:23], s[0:1], 0
s_load_dwordx2 s[24:25], s[0:1], 64
v_lshrrev_b32 v1, 6, v0
v_readfirstlane_b32 s3, v1
v_and_b32 v0, 63, v0""")
    if STAMPS:
        for i in range(2, 14): A(f"s_mov_b32 s{64+2*i}, 0")
        A("s_memtime s[64:65]\ns_memrealtime s[66:67]")
    if OPT["pf"]:
        L = A.lab("pf"); LP = A.lab("pc")
        A(f"""s_cmp_lg_u32 s3, 3
s_cbranch_scc1 {L}
s_getpc_b64 s[56:57]
{LP}:
s_bfe_u32 s58, s2, 0x20003
s_lshl_b32 s58, s58, 13
v_lshlrev_b32 v1, 7, v0
v_add_u32 v1, s58, v1
v_min_u32 v1, {FIN}-{LP}, v1
global_load_dword v255, v1, s[56:57]
{L}:""")
    A(f"""s_and_b32 s4, s2, 7
s_lshr_b32 s5, s2, 3
s_lshl_b32 s6, s4, 1
s_and_b32 s7, s5, 1
s_or_b32 s6, s6, s7
s_lshr_b32 s7, s5, 1
s_and_b32 s40, s3, 3
s_cmp_ge_u32 s7, 11
s_cbranch_scc1 {LA1}
s_cmp_lt_u32 s3, 4
s_cbranch_scc1 {LB1C}""")

def xaddr(rs):
    A(f"""v_lshrrev_b32 v1, 3, v0
v_and_b32 v14, 7, v0
v_lshrrev_b32 v15, 4, v0
v_xor_b32 v14, v14, v15
v_lshlrev_b32 v14, 4, v14
v_xor_b32 v16, 64, v14
v_mul_u32_u24 v1, {rs}, v1
v_add_u32 v2, v1, v14
v_add_u32 v3, v1, v16
v_add_u32 v3, {8*rs-1024}, v3
v_add_u32 v4, {2*(8*rs-1024)}, v2
v_add_u32 v5, {2*(8*rs-1024)}, v3""")
def b1_loader():
    A("s_setprio 3")
    if OPT["rot"] == 2: A("s_mov_b32 s26, s7")
    elif OPT["rot"] == 3: A("s_and_b32 s26, s6, 1\ns_mul_i32 s26, s26, 3\ns_add_u32 s26, s26, s7")
    elif OPT["rot"] == 4: A("s_and_b32 s26, s6, 1\ns_mul_i32 s26, s26, 3")
    elif OPT["rot"] == 5: A("s_lshr_b32 s26, s6, 1\ns_add_u32 s26, s26, s7")
    else: A("s_add_u32 s26, s6, s7")
    mod7(26, 27)
    if not OPT["rot"]: A("s_mov_b32 s26, 0")
    xaddr(896)
    A(f"""v_and_b32 v14, 15, v0
v_lshlrev_b32 v16, 2, v15
v_xor_b32 v14, v14, v16
v_lshlrev_b32 v14, 4, v14
v_mul_u32_u24 v15, 2688, v15
v_add_u32 v6, v14, v15
v_add_u32 v7, {4*2688-1024}, v6
v_add_u32 v8, {2*(4*2688-1024)}, v6
v_add_u32 v9, {3*(4*2688-1024)}, v6
s_lshl_b32 s41, s6, 2
s_add_u32 s47, s41, s40
s_mul_i32 s41, s47, {32*896}     ; x base
s_mul_i32 s42, s40, {16*2688}
s_lshl_b32 s43, s7, 8
s_add_u32 s42, s42, s43          ; w base
s_lshl_b32 s44, s40, 12
s_waitcnt lgkmcnt(0)""")
    srd(SX, P_BX, X_BYTES); srd(SW, P_WQKV, WQKV_BYTES)
    def issue():
        A(f"""s_lshl_b32 s45, s26, 7
s_add_u32 s45, s45, s41
s_mul_i32 s46, s26, {64*2688}
s_add_u32 s46, s46, s42
s_mov_b32 m0, s44""")
        for i in range(4): A(f"buffer_load_dwordx4 v{2+i}, {sr(SX,4)}, s45 offen offset:{1024*i} lds")
        A(f"s_add_u32 m0, s44, 16384")
        for i in range(4): A(f"buffer_load_dwordx4 v{6+i}, {sr(SW,4)}, s46 offen offset:{1024*i} lds")
        A("""s_add_u32 s26, s26, 1
s_cmp_eq_u32 s26, 7
s_cselect_b32 s26, 0, s26
s_add_u32 s44, s44, 0x8000
s_and_b32 s44, s44, 0x1ffff""")
    LL = A.lab("b1ld")
    issue(); gettag()
    A(f"s_mov_b32 s48, 6\n{LL}:")
    if OPT["x"] != 2: issue()
    else: A("s_waitcnt vmcnt(0)")
    A("s_waitcnt vmcnt(8)")
    if STAMPS:
        LX = A.lab("st"); A(f"s_cmp_lg_u32 s48, 6\ns_cbranch_scc1 {LX}"); stamp(2); A(f"{LX}:")
    A(f"""s_barrier
s_sub_u32 s48, s48, 1
s_cmp_lg_u32 s48, 0
s_cbranch_scc1 {LL}""")
    fixtag()
    A("s_waitcnt vmcnt(0)")
    stamp(3)
    A(f"s_barrier\ns_branch {ATT}")

def a1_dispatch_loader():
    A(f"""{LA1}:
s_sub_u32 s5, s7, 11           ; g5
s_mul_i32 s26, s5, 3
s_lshr_b32 s26, s26, 1         ; e0 in 0,1,3,4,6""")
    if not OPT["rot"]: A("s_mov_b32 s26, 0")
    A(f"s_cmp_lt_u32 s3, 4\ns_cbranch_scc1 {LA1C}\ns_setprio 3")
    xaddr(64*896)
    A(f"""s_lshl_b32 s41, s6, 2
s_add_u32 s41, s41, s40
s_mul_i32 s41, s41, 896
s_lshl_b32 s44, s40, 12
s_lshl_b32 s26, s26, 2
s_add_u32 s26, s26, 3""")
    mod7(26, 27)
    A("s_waitcnt lgkmcnt(0)")
    srd(SX, P_AX, X_BYTES)
    gettag()
    LL, LS = A.lab("a1ld"), A.lab("a1lds")
    A(f"""s_mov_b32 s48, 0
{LL}:
s_lshl_b32 s45, s26, 7
s_add_u32 s45, s45, s41
s_lshl_b32 s46, s26, 14
s_add_u32 m0, s44, s46""")
    for i in range(4): A(f"buffer_load_dwordx4 v{2+i}, {sr(SX,4)}, s45 offen offset:{1024*i} lds")
    A(f"""s_add_u32 s26, s26, 4
s_sub_u32 s27, s26, 7
s_cmp_ge_u32 s26, 7
s_cselect_b32 s26, s27, s26
s_add_u32 s48, s48, 1
s_cmp_lt_u32 s48, 4
s_cbranch_scc1 {LL}
s_waitcnt vmcnt(8)
s_barrier
s_cmp_lt_u32 s48, 7
s_cbranch_scc1 {LL}""")
    fixtag()
    A("s_waitcnt vmcnt(4)\ns_barrier\ns_waitcnt vmcnt(0)")
    stamp(3)
    A(f"s_barrier\ns_branch {ATT}")

def main_start():
    A(f"""v_lshlrev_b32 v1, 4, v0
v_add_u32 v1, {CNT+12}, v1
v_mov_b32 v2, 0
ds_write_b32 v1, v2""")

C, ER, EI, G, GT = 128, 160, 176, 192, 16
def tlbwarm():
    g = OPT["tw"]
    if not g: return
    L = A.lab("tw")
    n = (WS_USED >> g) // 32 + 1
    A(f"""s_cmp_lg_u32 s3, 2
s_cbranch_scc1 {L}
s_lshr_b32 s60, s2, 3
s_mul_i32 s60, s60, {n << g}
v_lshlrev_b32 v12, {g}, v0""")
    for i in range(0, n, 64):
        k = min(64, n - i)
        if k < 64: A(f"s_bfm_b64 exec, {k}, 0")
        A(f"buffer_load_dword v255, v12, {W}, s60 offen offset:64")
        if i + 64 < n: A(f"s_add_u32 s60, s60, {64 << g}")
    A("s_mov_b64 exec, -1")
    m = (W_BYTES >> g) // 32 + 1
    srd(28, P_WR, W_BYTES); srd(32, P_WI, W_BYTES)
    A(f"""s_lshr_b32 s60, s2, 3
s_mul_i32 s60, s60, {m << g}
s_bfm_b64 exec, {m}, 0
buffer_load_dword v255, v12, s[28:31], s60 offen
buffer_load_dword v255, v12, s[32:35], s60 offen
s_mov_b64 exec, -1
{L}:""")
def prewrite():
    tlbwarm()
    if OPT["pw"] < 2: return
    L = A.lab("pw")
    A(f"""s_cmp_lg_u32 s3, 3
s_cbranch_scc1 {L}
s_sub_u32 s60, s{TAG}, {TAGC}
s_lshl_b32 s61, s7, 4
s_add_u32 s61, s61, s6
s_lshl_b32 s61, s61, 7
s_add_u32 s61, s61, {F1_OFF}""")
    flagstore("s61", OPT["r1"], 32768, 40, "s60")
    A(f"{L}:")
def gen_common():
    A(f"""v_and_b32 v14, 31, v0
v_lshrrev_b32 v15, 5, v0
s_lshr_b32 s50, s2, 5
s_lshl_b32 s50, s50, 3
s_or_b32 s50, s50, s4
s_bfe_u32 s51, s2, 0x20003       ; d quarter
s_and_b32 s52, s40, 1            ; parity e""")
def rot_gen(n, nblk, step, base, mult, dmult, out, scale=None):
    c, sn, t = GT, GT+8, GT+16
    A(f"v_mul_f32 v11, {f32(float(dmult))}, v{step}")
    for j in range(n): A(f"v_fmamk_f32 v{t+j}, v{step}, {f32(float(mult[j]))}, v{base}")
    A("v_cos_f32 v10, v11\nv_sin_f32 v12, v11")
    for j in range(n): A(f"v_cos_f32 v{c+j}, v{t+j}\nv_sin_f32 v{sn+j}, v{t+j}")
    A("v_mov_b32 v11, v10\nv_mov_b32 v13, v12")
    if scale is not None:
        for j in range(n): A(f"v_mul_f32 v{c+j}, {f32(scale)}, v{c+j}\nv_mul_f32 v{sn+j}, {f32(scale)}, v{sn+j}")
    for b in range(nblk):
        out(b)
        if b + 1 < nblk:
            for j in range(0, n, 2): A(f"v_pk_mul_f32 {vr(t+j,2)}, {vr(sn+j,2)}, v[12:13]")
            for j in range(0, n, 2): A(f"v_pk_mul_f32 {vr(sn+j,2)}, {vr(sn+j,2)}, v[10:11]")
            for j in range(0, n, 2): A(f"v_pk_fma_f32 {vr(sn+j,2)}, {vr(c+j,2)}, v[12:13], {vr(sn+j,2)}")
            for j in range(0, n, 2): A(f"v_pk_fma_f32 {vr(c+j,2)}, {vr(c+j,2)}, v[10:11], {vr(t+j,2)} neg_lo:[0,0,1] neg_hi:[0,0,1]")
def gen_c():
    A(f"""v_lshrrev_b32 v8, 1, v14
s_lshl_b32 s43, s40, 4
v_add_u32 v8, s43, v8
v_cvt_f32_u32 v8, v8
v_mul_f32 v8, {f32(1/64)}, v8    ; step = u2/64
v_and_b32 v9, 1, v14
v_cvt_f32_u32 v9, v9
v_mul_f32 v9, {f32(0.25)}, v9
v_lshlrev_b32 v10, 1, v15
v_cvt_f32_u32 v10, v10
v_fma_f32 v9, v8, v10, v9        ; base""")
    def out(f):
        for p in range(4): A(f"v_cvt_pk_bf16_f32 v{C+4*f+p}, v{GT+p}, v{GT+8+p}")
    rot_gen(4, 8, 8, 9, [0,1,4,5], 8, out)
def gen_e():
    A(f"""v_lshlrev_b32 v8, 6, v14
v_add_u32 v8, s50, v8
v_cvt_f32_u32 v8, v8
v_mul_f32 v8, {f32(1/2048)}, v8
v_lshlrev_b32 v9, 2, v15
v_cvt_f32_u32 v9, v9
v_mul_f32 v9, v8, v9""")
    def out(f):
        for p in range(4): A(f"v_cvt_pk_bf16_f32 v{ER+4*f+p}, v{GT+p}, -v{GT+8+p}")
        for p in range(4): A(f"v_cvt_pk_bf16_f32 v{EI+4*f+p}, v{GT+8+p}, v{GT+p}")
    rot_gen(4, 4, 8, 9, [0,1,2,3], 8, out, 2.0/(2048*448))
def gen_g():
    A(f"""s_lshr_b32 s44, s40, 1
s_lshl_b32 s45, s51, 1
s_add_u32 s44, s44, s45         ; d tile
s_lshl_b32 s46, s44, 5
v_add_u32 v8, s46, v14          ; d
v_cvt_f32_u32 v8, v8
v_mul_f32 v8, {f32(1/448)}, v8
v_lshlrev_b32 v9, 3, v15
v_add_u32 v9, s52, v9
v_cmp_eq_u32 vcc, 0, v9
v_cvt_f32_u32 v9, v9
v_mul_f32 v9, v8, v9""")
    def out(t):
        for j in range(4): A(f"v_cvt_pk_bf16_f32 v{G+8*t+j}, v{GT+2*j}, v{GT+2*j+1}")
        for j in range(4): A(f"v_cvt_pk_bf16_f32 v{G+8*t+4+j}, -v{GT+8+2*j}, -v{GT+9+2*j}")
    rot_gen(8, 7, 8, 9, [16*(j>>2)+2*(j&3) for j in range(8)], 32, out)
    A(f"""v_and_b32 v8, 0xffff0000, v{G}
v_or_b32 v8, 0x3f00, v8
v_and_b32 v10, 1, v14
v_lshlrev_b32 v10, 15, v10
v_cndmask_b32 v{G}, v{G}, v8, vcc
v_and_b32 v8, 0xffff, v8
v_and_b32 v9, 0xffff0000, v{G+4}
v_or3_b32 v9, v9, v10, v8
v_cndmask_b32 v{G+4}, v{G+4}, v9, vcc""")
def gen_pre():
    gen_common()
    A(f"{GEN}:")
    gen_c(); gen_e()
    A(f"s_cmp_ge_u32 s7, 11\ns_cbranch_scc1 {HELP2}")

ACC = 64
def acc(a, b): return ACC + 32*a + 16*b
def b1_body(vtype):
    if vtype: pi32(48, 14, 49)
    else: A("v_mov_b32 v48, v14")
    A(f"""v_lshrrev_b32 v49, 1, v48
v_and_b32 v49, 7, v49
v_xor_b32 v49, v49, v15
v_lshlrev_b32 v49, 4, v49
v_lshl_or_b32 v50, v48, 7, v49
s_lshl_b32 s43, s41, 13
v_add_u32 v52, s43, v50
v_xor_b32 v53, 32, v52
v_xor_b32 v54, 64, v52
v_xor_b32 v55, 96, v52""")
    A(f"""v_bfe_u32 v48, v0, 2, 2        ; rr
v_and_b32 v49, 3, v0           ; cc""")
    if not vtype:
        A("""v_lshrrev_b32 v50, 1, v49
v_and_b32 v49, 1, v49
v_lshl_or_b32 v49, v49, 1, v50 ; sigma(cc)""")
    A(f"""v_bfe_u32 v50, v0, 4, 1        ; colhalf
v_lshlrev_b32 v50, 5, v50
v_lshl_or_b32 v50, v49, 3, v50
s_lshl_b32 s43, s42, 7
v_or_b32 v50, s43, v50
v_lshlrev_b32 v51, 6, v48
v_xor_b32 v50, v50, v51
v_lshl_add_u32 v51, v15, 3, v48 ; 8h+rr
v_lshl_or_b32 v56, v51, 8, v50
v_add_u32 v56, 16384, v56
v_xor_b32 v57, 64, v56""")
    A(f"""s_lshl_b32 s46, s6, 2
s_lshl_b32 s47, s41, 1
s_add_u32 s46, s46, s47
s_lshl_b32 s47, s7, 2
s_lshl_b32 s48, s42, 1
s_add_u32 s47, s47, s48""")
    if not vtype:
        A(f"""s_lshl_b32 s48, s47, 11
v_lshlrev_b32 v2, 4, v0
s_cmp_ge_u32 s47, 14
s_cselect_b32 s49, {KV_REC - QK_TILE}, 0
s_cselect_b32 s43, {KV_OFF - Q_OFF - 14*2048}, 0
s_cselect_b32 s54, 1.0, {f32(QSCALE)}
s_mov_b32 s55, s54
s_add_u32 s49, s49, {QK_TILE}
s_mul_i32 s46, s46, s49
s_add_u32 s46, s46, s48
s_add_u32 s46, s46, s43
s_add_u32 s46, s46, {Q_OFF}
s_add_u32 s49, s46, s49""")
    else:
        A(f"""s_sub_u32 s45, s7, 7
s_lshl_b32 s45, s45, 7
s_add_u32 s45, s45, 27
s_mul_i32 s45, s45, 2341
s_lshr_b32 s45, s45, 16
v_lshrrev_b32 v10, 4, v0
v_add_u32 v10, s45, v10
v_lshrrev_b32 v11, 2, v0
v_lshlrev_b32 v11, 9, v11
s_lshl_b32 s45, s45, 11
v_add_u32 v11, s45, v11
v_cmp_gt_u32 s[56:57], 16, v10
v_and_b32 v4, 3, v0
v_lshl_or_b32 v4, v4, 4, v11
s_cmp_lt_u32 s7, 9
s_cselect_b32 s58, 0xffff, 0
s_mov_b32 s59, 0
s_lshl_b32 s54, s6, 2
s_add_u32 s54, s54, s40
s_mul_i32 s54, s54, {KV_REC}
s_add_u32 s54, s54, {KV_OFF + QK_TILE + 28*16}
s_add_u32 s55, s54, 8192
v_mov_b32 v58, 0x3f803f80
v_mov_b32 v59, 0x3f803f80
v_mov_b32 v60, 0x3f803f80
v_mov_b32 v61, 0x3f803f80
s_sub_u32 s47, s47, 28
s_mul_i32 s46, s46, {KV_REC}
s_add_u32 s46, s46, {KV_OFF + QK_TILE}
s_add_u32 s49, s46, {KV_REC}
s_lshl_b32 s48, s47, 5""")
        for b in range(2):
            A(f"""v_add_u32 v48, s48, v14
v_add_u32 v48, {32*b}, v48
v_mul_u32_u24 v49, 2341, v48
v_lshrrev_b32 v49, 16, v49     ; head
v_mul_u32_u24 v50, 28, v49
v_sub_u32 v48, v48, v50        ; d
v_lshlrev_b32 v48, 4, v48
v_lshl_or_b32 v48, v15, 9, v48
v_lshl_or_b32 v{2+b}, v49, 11, v48""")
        A(f"""s_cmp_ge_u32 s47, 14
s_cselect_b32 s46, {WS_USED}, s46
s_cselect_b32 s49, {WS_USED}, s49""")
    SETS = (16, 32, 192, 208)
    def rx(kap, p, a): return f"ds_read_b128 {vr(SETS[p]+4*a,4)}, v{6+kap} offset:{4096*a}"
    def rw(kap, p, b): return [f"ds_read_b64_tr_b16 {vr(SETS[p]+8+4*b+2*u,2)}, v{10+b} offset:{(16*kap+4*u)*256}" for u in range(2)]
    def rdlist(kap, p): return [rx(kap,p,0)] + rw(kap,p,0) + rw(kap,p,1) + [rx(kap,p,1)]
    def setaddr(): return [f"v_add_u32 v{6+i}, s44, v{52+i}" for i in range(6)]
    def mf(a, b, p):
        x, w = vr(SETS[p]+4*a,4), vr(SETS[p]+8+4*b,4)
        o = (x, w) if vtype else (w, x)
        A(f"{MFMA} {vr(acc(a,b),16)}, {o[0]}, {o[1]}, {vr(acc(a,b),16)}")
    gb = []
    def fill(n):
        for _ in range(n):
            if gb:
                for x in gb.pop(0): A(x)
    def kstep(p, r, f):
        A("s_waitcnt lgkmcnt(3)")
        mf(0,0,p)
        for x in r[0:3]: A(x)
        fill(f[0])
        A("s_waitcnt lgkmcnt(4)")
        mf(0,1,p)
        for x in r[3:5]: A(x)
        fill(f[1])
        A("s_waitcnt lgkmcnt(5)")
        mf(1,0,p)
        for x in r[5:6]: A(x)
        fill(f[2])
        mf(1,1,p)
        fill(f[3])
    LL = A.lab("b1loop")
    A("s_mov_b32 s44, 0\ns_mov_b32 s45, 0")
    for x in setaddr(): A(x)
    prewrite()
    stampw(9)
    A("s_barrier")
    stampw(2)
    for x in rdlist(0, 0): A(x)
    A(f"{LL}:")
    kstep(0, rdlist(1, 1), (0,1,2,3))
    kstep(1, rdlist(2, 0), (0,1,2,3))
    A("s_add_u32 s44, s44, 0x8000\ns_and_b32 s44, s44, 0x1ffff\ns_add_u32 s45, s45, 1")
    kstep(0, rdlist(3, 1), (1,1,2,0))
    for x in setaddr(): A(x)
    A("s_barrier")
    kstep(1, rdlist(0, 0), (1,1,1,1))
    assert not gb
    A(f"s_cmp_lt_u32 s45, 6\ns_cbranch_scc1 {LL}")
    if OPT["x"] in (2, 3): A("s_memtime s[84:85]\ns_waitcnt lgkmcnt(0)")
    rd = []
    for kap in (1,2,3): rd += [rx(kap,kap,0)] + rw(kap,kap,0)
    for kap in (1,2,3): rd += rw(kap,kap,1)
    for kap in (1,2,3): rd += [rx(kap,kap,1)]
    order = [rdlist(0,0)[i] for i in range(6)] + rd
    def epi(a, b):
        e = []; t = acc(a,b)
        for i in range(8):
            if not vtype: e.append(f"v_pk_mul_f32 {vr(t+2*i,2)}, {vr(t+2*i,2)}, s[54:55]")
            e.append(f"v_cvt_pk_bf16_f32 v{t+i}, v{t+2*i}, v{t+2*i+1}")
            if i & 3 == 3:
                if vtype: e.append(f"buffer_store_dwordx4 {vr(t+i-3,4)}, v{2+b}, {W}, s{46 if a==0 else 49} offen offset:{1024*(i>>2)} {SC}")
                else: e.append(f"buffer_store_dwordx4 {vr(t+i-3,4)}, v2, {W}, s{46 if a==0 else 49} offen offset:{2048*b+1024*(i>>2)} {SC}")
        return e
    issued = 6; pend = []; lastw = None
    tiles = [(a,b) for a in range(2) for b in range(2)]
    seq = [(a,b,0) for a,b in tiles] + [(a,b,k) for a,b in tiles for k in (1,2,3)]
    for m, (a, b, kap) in enumerate(seq):
        need = max(order.index(x) for x in [rx(kap,kap,a)] + rw(kap,kap,b)) + 1
        while issued < need: A(order[issued]); issued += 1
        if lastw is None or need > lastw:
            A(f"s_waitcnt lgkmcnt({issued - need})"); lastw = need
        mf(a, b, kap)
        for _ in range(3):
            if issued < len(order) and issued - lastw < 14: A(order[issued]); issued += 1
        if m in (8, 11, 14): pend += epi(*tiles[(m-8)//3])
        if m == 15: stamp(3)
        for _ in range(6 if not vtype else 4):
            if pend: A(pend.pop(0))
    for x in pend + epi(1,1): A(x)
    if vtype:
        LO = A.lab("ones")
        A(f"""s_mov_b64 exec, s[56:57]
buffer_store_dwordx4 v[58:61], v4, {W}, s54 offen {SC}
s_mov_b64 exec, s[58:59]
s_cbranch_execz {LO}
buffer_store_dwordx4 v[58:61], v4, {W}, s55 offen {SC}
{LO}:
s_mov_b64 exec, -1""")
    A(f"s_branch {PUB1}")
def b1_compute():
    A(f"""s_and_b32 s41, s3, 1           ; wr
s_lshr_b32 s42, s3, 1          ; wc""")
    fixtag()
    A(f"s_cmp_ge_u32 s7, 7\ns_cbranch_scc1 {LV}")
    b1_body(False)
    A(f"{LV}:")
    b1_body(True)

def a1_gen():
    LF, LE = A.lab("fgen"), A.lab("fend")
    A(f"{LA1C}:\ns_setprio 2")
    gen_common()
    pi32(48, 14, 49)
    A(f"""v_lshlrev_b32 v61, 4, v0
v_add_u32 v61, {FOFF}, v61""")
    main_start()
    A(f"""v_lshrrev_b32 v48, 1, v48       ; k_local
s_mul_i32 s41, s5, 3
s_add_u32 s41, s41, s3
s_lshl_b32 s41, s41, 4
v_add_u32 v48, s41, v48
v_cvt_f32_u32 v48, v48
v_mul_f32 v56, {f32(1/448)}, v48 ; k/448
v_and_b32 v48, 1, v14
v_cvt_f32_u32 v48, v48
v_mul_f32 v59, {f32(0.25)}, v48  ; c/4
v_lshlrev_b32 v60, 3, v15
v_cvt_f32_u32 v60, v60
v_fma_f32 v59, v56, v60, v59
v_mul_f32 v58, {f32(16.0)}, v56
v_cos_f32 v58, v58
s_mul_i32 s41, s3, 14336
v_add_u32 v53, s41, v61""")
    for j in range(16): A(f"v_fmamk_f32 v{16+j}, v56, {f32(float(16*(j>>3)+(j&7)))}, v59")
    A("v_add_f32 v58, v58, v58")
    for j in range(16): A(f"v_cos_f32 v{16+j}, v{16+j}")
    A("s_waitcnt lgkmcnt(0)")
    gettag()
    A(f"s_cmp_eq_u32 s3, 3\ns_cbranch_scc1 {LE}\nv_mov_b32 v59, v58\ns_mov_b32 s42, 7\n{LF}:")
    for u in range(2):
        for j in range(4): A(f"v_cvt_pk_bf16_f32 v{32+4*u+j}, v{16+8*u+2*j}, v{17+8*u+2*j}")
        A(f"ds_write_b128 v53, {vr(32+4*u,4)} offset:{1024*u}")
        for j in range(4):
            a, b = 16+8*u+2*j, 16+8*(u^1)+2*j
            A(f"v_pk_fma_f32 {vr(a,2)}, {vr(b,2)}, v[58:59], {vr(a,2)} neg_lo:[0,0,1] neg_hi:[0,0,1]") if u == 0 else None
    for j in range(4):
        a, b = 24+2*j, 16+2*j
        A(f"v_pk_fma_f32 {vr(a,2)}, {vr(b,2)}, v[58:59], {vr(a,2)} neg_lo:[0,0,1] neg_hi:[0,0,1]")
    A(f"""v_add_u32 v53, 2048, v53
s_sub_u32 s42, s42, 1
s_cmp_lg_u32 s42, 0
s_cbranch_scc1 {LF}
{LE}:""")
def a1_compute():
    A(f"""s_lshl_b32 s41, s6, 2
s_add_u32 s41, s41, s3          ; s2 index
v_lshlrev_b32 v5, 8, v15
v_add_u32 v5, s41, v5
v_mul_u32_u24 v5, v14, v5
v_cvt_f32_u32 v5, v5
v_mul_f32 v5, {f32(1/2048)}, v5
v_cvt_f32_u32 v6, v14
v_mul_f32 v6, {f32(1/32)}, v6
v_lshrrev_b32 v49, 1, v14
v_and_b32 v49, 7, v49
v_xor_b32 v49, v49, v15
v_lshlrev_b32 v49, 4, v49
v_lshl_or_b32 v62, v14, 7, v49
s_lshl_b32 s43, s3, 12
v_add_u32 v62, s43, v62
v_and_b32 v3, 2, v14
v_lshlrev_b32 v3, 30, v3
v_or_b32 v3, 1.0, v3            ; (-1)^k
v_mov_b32 v2, v3
v_lshlrev_b32 v4, 4, v0
s_mul_i32 s47, s41, {T_ROW}
s_mul_i32 s42, s5, 6144
s_add_u32 s47, s47, s42
s_add_u32 s47, s47, {T_OFF}
s_add_u32 s48, s47, 2048
s_add_u32 s49, s47, 4096""")
    egen = []
    for i in range(2):
        for j in range(8): egen.append(f"v_fmamk_f32 v{176+j}, v6, {f32(float(16*i+8*(j>>2)+(j&3)))}, v5")
        for j in range(8): egen.append(f"v_cos_f32 v{184+j}, v{176+j}")
        for j in range(8): egen.append(f"v_sin_f32 v{192+j}, v{176+j}")
        for j in range(4): egen.append(f"v_cvt_pk_bf16_f32 v{160+4*i+j}, v{184+2*j}, v{185+2*j}")
        for j in range(4): egen.append(f"v_cvt_pk_bf16_f32 v{168+4*i+j}, -v{192+2*j}, -v{193+2*j}")
    A(f"s_mul_i32 s27, s26, 8256")
    def a1salu(adv=True):
        r = []
        if adv: r += ["s_add_u32 s27, s27, 8256", f"s_cmp_eq_u32 s27, {7*8256}", "s_cselect_b32 s27, 0, s27"]
        return r + ["s_and_b32 s43, s27, 0x1c040", f"s_add_u32 s44, s27, {7*8256}", "s_and_b32 s44, s44, 0x1c040",
                    "s_lshr_b32 s46, s27, 2", "s_and_b32 s46, s46, 0x7800"]
    a1valu = ["v_xor_b32 v8, s43, v62", "v_xor_b32 v10, s44, v62", "v_xor_b32 v9, 32, v8", "v_xor_b32 v11, 32, v10", "v_add_u32 v12, s46, v61"]
    def a1rd(t):
        b = 16 + 20*t
        return ([f"ds_read_b128 {vr(b,4)}, v{8+t}"] +
                [f"ds_read_b128 {vr(b+8+4*kgi,4)}, v12 offset:{1024*t+14336*kgi}" for kgi in range(3)] +
                [f"ds_read_b128 {vr(b+4,4)}, v{10+t}"])
    def a1step(t, nxt, first=False, fill=0, adv=False):
        b = 16 + 20*t
        r = list(nxt); issued = 0
        sa = a1salu() if adv else []; va = list(a1valu) if adv else []
        for m in range(6):
            hi, kgi = m // 3, m % 3
            need = (2, 3, 4, 5, 5, 5)[m]
            if not nxt: hi, kgi, need = m % 2, m // 2, (2, 5, 5, 5, 5, 5)[m]
            if m < (4 if nxt else 2): A(f"s_waitcnt lgkmcnt({5 - need + issued})")
            d = 64 + 32*kgi + 16*hi
            A(f"{MFMA} {vr(d,16)}, {vr(b+4*hi,4)}, {vr(b+8+4*kgi,4)}, {0 if first else vr(d,16)}")
            for _ in range(2 if m == 0 else 1):
                if r: A(r.pop(0)); issued += 1
            if m in (1, 2, 3):
                for _ in range(3):
                    if sa: A(sa.pop(0))
            if m == 4:
                while va: A(va.pop(0))
            for _ in range(fill if not (adv and m in (1,2,3,4)) else fill // 2):
                if egen: A(egen.pop(0))
    LL, LS, LNB = A.lab("a1loop"), A.lab("a1last"), A.lab("a1nb")
    for x in a1salu(False) + a1valu: A(x)
    fixtag()
    prewrite()
    for x in a1valu[4:]: A(x)
    stampw(9)
    A("s_barrier")
    stampw(2)
    for x in a1rd(0): A(x)
    for n in range(3):
        a1step(0, a1rd(1), n == 0, 2, True)
        A("s_barrier")
        a1step(1, a1rd(0), False, 3)
    assert not egen
    A(f"s_mov_b32 s45, 3\n{LL}:")
    a1step(0, a1rd(1), adv=True)
    A(f"""s_add_u32 s45, s45, 1
s_cmp_eq_u32 s45, 7
s_cbranch_scc1 {LS}
s_cmp_eq_u32 s45, 6
s_cbranch_scc1 {LNB}
s_barrier
{LNB}:""")
    a1step(1, a1rd(0))
    A(f"s_branch {LL}\n{LS}:")
    a1step(1, [])
    stamp(3)
    def s1(kgi):
        P, Q = 64+32*kgi, 80+32*kgi
        e = []
        for i in range(8):
            e.append(f"v_pk_fma_f32 {vr(P+2*i,2)}, {vr(Q+2*i,2)}, v[2:3], {vr(P+2*i,2)}")
            e.append(f"v_cvt_pk_bf16_f32 v{16+8*kgi+i}, v{P+2*i}, v{P+2*i+1}")
        return e
    def mm(kgi):
        P, Q = 64+32*kgi, 80+32*kgi
        return [f"{MFMA} {vr(P,16)}, {vr(16+8*kgi,4)}, v[160:163], 0", f"{MFMA} {vr(Q,16)}, {vr(16+8*kgi,4)}, v[168:171], 0",
                f"{MFMA} {vr(P,16)}, {vr(20+8*kgi,4)}, v[164:167], {vr(P,16)}", f"{MFMA} {vr(Q,16)}, {vr(20+8*kgi,4)}, v[172:175], {vr(Q,16)}"]
    def s2(kgi):
        P, Q = 64+32*kgi, 80+32*kgi
        e = []
        for j in range(8):
            e += [f"v_sub_f32 v{P+2*j}, v{P+2*j}, v{Q+2*j+1}", f"v_add_f32 v{Q+2*j}, v{Q+2*j}, v{P+2*j+1}",
                  f"v_cvt_pk_bf16_f32 v{40+8*kgi+j}, v{P+2*j}, v{Q+2*j}"]
            if j & 3 == 3: e.append(f"buffer_store_dwordx4 {vr(40+8*kgi+j-3,4)}, v4, {W}, s{47+kgi} offen offset:{1024*(j>>2)} {SC}")
        return e
    def weave(ms, vs):
        k = (len(vs) + len(ms) - 1) // len(ms)
        for m in ms:
            A(m)
            for _ in range(k):
                if vs: A(vs.pop(0))
    for x in s1(0): A(x)
    weave(mm(0), s1(1)); weave(mm(1), s1(2)); weave(mm(2), s2(0))
    for x in s2(1) + s2(2): A(x)
    LI = A.lab("a1init")
    A(f"""s_cmp_ge_u32 s41, 4
s_cbranch_scc1 {LI}
s_lshl_b32 s42, s5, 2
s_add_u32 s42, s42, s41
s_lshl_b32 s42, s42, 7
s_add_u32 s42, s42, {AT_OFF}
""")
    flagstore("s42", 2, 20*128, 16, "0")
    A(f"{LI}:")

def pub1():
    A(f"""{PUB1}:
s_lshl_b32 s41, s7, 11
s_lshl_b32 s42, s6, 7
s_add_u32 s41, s41, s42
s_add_u32 s41, s41, {F1_OFF}""")
    stamp(4)
    lds_add(C_LF)
    if OPT["gd"]: gen_g()
    publish(C_P1, 41, OPT["r1"], 32768)
    stamp(5)
    if not OPT["gd"]: gen_g()
    A(f"s_cmp_ge_u32 s7, 11\ns_cbranch_scc1 {GEN}")

Q, S, O, KV = 16, 48, 112, 176
OK = O + 48
TB = 8
SO = 32
def q(j,i): return vr(Q+8*j+4*i, 4)
def kb(b,i): return KV+16*b+4*i
def tile_loads(b, so):
    return [f"buffer_load_dwordx4 {vr(kb(b,0),4)}, v1, {W}, s{so} offen {SC}",
            f"buffer_load_dwordx4 {vr(kb(b,1),4)}, v2, {W}, s{so} offen {SC}",
            f"buffer_load_dwordx4 {vr(kb(b,2),4)}, v3, {W}, s{so} offen {SC}",
            f"buffer_load_dwordx4 {vr(kb(b,3),4)}, v3, {W}, s{so} offen offset:1024 {SC}"]
def attention():
    LNY, LNW = A.lab("nyq"), A.lab("now")
    A(f"{ATT}:\ns_setprio 0")
    srd(SX, P_WR, W_BYTES); srd(56, P_WI, W_BYTES)
    A(f"""s_lshr_b32 s5, s2, 3           ; ko
s_mul_i32 s55, s4, {4*450}
s_mul_i32 s43, s40, {512*450}
s_add_u32 s55, s55, s43
s_lshl_b32 s43, s5, 4
s_add_u32 s55, s55, s43
s_cmp_lg_u32 s5, 28
s_cbranch_scc1 {LNY}""")
    srd(SX, P_WI, W_BYTES); srd(56, P_WR, W_BYTES)
    A(f"""s_sub_u32 s55, s55, 14
{LNY}:
s_mov_b32 s63, s5
v_lshrrev_b32 v9, 2, v0
v_and_b32 v10, 3, v0
v_lshl_add_u32 v9, v9, 5, v10
v_mul_u32_u24 v248, 450, v9
s_mov_b32 s51, s7""")
    srd(SO, P_OUT, OUT_BYTES)
    A(f"""s_lshl_b32 s4, s4, 1
s_bfe_u32 s5, s2, 0x10003
s_or_b32 s4, s4, s5            ; head
s_lshr_b32 s5, s2, 4           ; qb
s_mul_i32 s6, s4, 7
s_lshr_b32 s45, s6, 1
s_add_u32 s6, s6, 1
s_lshr_b32 s6, s6, 1
s_lshl_b32 s6, s6, 9
v_lshlrev_b32 v8, 4, v0
v_add_u32 v1, s6, v8
s_bitcmp1_b32 s4, 0
s_cselect_b32 s7, -2040, 0
v_add_u32 v2, 1024, v1
v_add_u32 v6, s7, v2
v_mov_b32 v4, 0x3f80
v_mov_b32_dpp v2, v6 {HI}
s_lshl_b32 s7, s4, 11
s_add_u32 s7, s7, {QK_TILE}
v_and_b32 v9, 30, v0
v_cmp_eq_u32 vcc, 26, v9
v_cmp_eq_u32 s[48:49], 28, v9
s_or_b64 vcc, vcc, s[48:49]
v_xor_b32 v9, 96, v8
v_cndmask_b32 v3, v8, v9, vcc
v_add_u32 v3, s7, v3           ; V offset
v_mov_b32 v5, 0xdddd
v_mov_b32 v7, 0
s_lshl_b32 s45, s45, 3
v_bfe_u32 v9, v0, 2, 1
v_mul_u32_u24 v10, 31, v9
v_add_u32 v10, s45, v10        ; Q column
v_add_u32 v11, 448, v10        ; K column
v_mul_u32_u24 v9, 27, v9
s_mul_i32 s46, s4, 28
s_add_u32 s46, s46, 896
v_add_u32 v9, s46, v9          ; V column
v_lshrrev_b32 v10, 7, v10
v_lshlrev_b32 v10, 11, v10
v_mov_b32_dpp v11, v9 quad_perm:[0,1,2,3] row_mask:0xa bank_mask:0xf
s_lshl_b32 s46, s5, 7
v_add_u32 v10, s46, v10
v_lshrrev_b32 v11, 7, v11
v_lshlrev_b32 v11, 11, v11
v_and_b32 v9, 3, v0
v_lshl_add_u32 v11, v9, 7, v11
s_lshl_b32 s46, s40, 9
v_add_u32 v11, s46, v11
v_mov_b32_dpp v11, v10 {HI}
s_and_b32 s46, s2, {OPT["r1"]-1}
s_lshl_b32 s46, s46, 15
s_add_u32 s46, s46, {F1_OFF}
s_lshl_b32 s43, s5, 2
s_add_u32 s42, s40, s43
s_mul_i32 s42, s42, {QK_TILE}
s_add_u32 s50, s42, {Q_OFF}
s_mul_i32 s47, s40, {16*KV_REC}
s_add_u32 s47, s47, {KV_OFF}""")
    for i in range(16):
        A(f"s_add_u32 s42, s5, {i}\ns_and_b32 s42, s42, 15\ns_mul_i32 s42, s42, {KV_REC}\ns_add_u32 s{TB+i}, s42, s47")
    for j in range(4):
        A(f"""s_add_u32 s42, s40, {j}
s_and_b32 s42, s42, 3
s_lshl_b32 s42, s42, 11
s_add_u32 s42, s42, {QX}
v_add_u32 v{240+j}, s42, v8
s_add_u32 s42, s40, {j+1}
s_and_b32 s42, s42, 3
s_mul_i32 s42, s42, 12288
s_add_u32 s42, s42, {MERGE + (4096*j if j < 3 else 0)}
v_add_u32 v{244+j}, s42, v8""")
    if OPT["pw"]:
        A(f"""s_sub_u32 s60, s{TAG}, {TAGC}
s_add_u32 s41, s40, 3
s_and_b32 s41, s41, 3
s_lshl_b32 s43, s5, 2
s_add_u32 s41, s41, s43
s_lshl_b32 s41, s41, 11
s_lshl_b32 s43, s4, 7
s_add_u32 s41, s41, s43
s_add_u32 s41, s41, {FO_OFF}""")
        flagstore("s41", OPT["ro"], 131072, 40, "s60")
    for i in range(64): A(f"v_mov_b32 v{O+i}, 0")
    lds_wait(C_X, 1, 1)
    A("s_setprio 3")
    stamp(5)
    A(f"""s_cmp_ge_u32 s63, 29
s_cbranch_scc1 {LNW}
s_lshl_b32 s43, s40, 11
s_add_u32 m0, s43, {WX}
s_nop 0
buffer_load_dwordx4 v248, {sr(SX,4)}, s55 offen lds
s_add_u32 m0, s43, {WX+1024}
s_nop 0
buffer_load_dwordx4 v248, s[56:59], s55 offen lds
s_waitcnt vmcnt(0)""")
    lds_add(C_W)
    A(f"{LNW}:")
    stamp(2)
    if OPT["pd"]: A(f"s_sleep {OPT['pd']}")
    if OPT["pda"] > 0:
        LD = A.lab("pda"); A(f"s_cmp_lt_u32 s51, 11\ns_cbranch_scc1 {LD}\ns_sleep {OPT['pda']}\n{LD}:")
    if OPT["pda"] < 0:
        LD = A.lab("pda"); A(f"s_cmp_lt_u32 s51, 11\ns_cbranch_scc1 {LD}"); lds_wait(C_H, 4, 2); A(f"{LD}:")
    spin(f"buffer_load_dword v14, v11, {W}, s46 offen {SC}", 14, OPT["sl1"])
    stamp(6)
    t0, t1 = tile_loads(0, TB), tile_loads(1, TB+1)
    A(f"""{t0[0]}
buffer_load_dwordx4 {q(0,0)}, v1, {W}, s50 offen {SC}
{t0[1]}
buffer_load_dwordx4 {q(0,1)}, v2, {W}, s50 offen {SC}""")
    A("s_waitcnt vmcnt(0)")
    stamp(4)
    A(f"""v_mov_b32_dpp v{Q+6}, v7 {HI}
v_mov_b32_dpp v{Q+7}, v7 {HI}
v_mov_b32_dpp v{kb(0,1)+2}, v4 {HI}
{MFMA} {vr(S+16,16)}, {vr(kb(0,0),4)}, {q(0,0)}, 0
{t0[2]}
{MFMA} {vr(S+16,16)}, {vr(kb(0,1),4)}, {q(0,1)}, {vr(S+16,16)}
{t0[3]}
{MFMA} {vr(S,16)}, {vr(kb(0,0),4)}, {q(0,0)}, 0
ds_write_b128 v240, {q(0,0)}""")
    for x in t1[:2]: A(x)
    s_ = S+16
    A(f"v_max3_f32 v8, v{s_}, v{s_+1}, v{s_+2}\nv_max3_f32 v9, v{s_+3}, v{s_+4}, v{s_+5}")
    for i in range(6, 14, 4): A(f"v_max3_f32 v8, v8, v{s_+i}, v{s_+i+1}\nv_max3_f32 v9, v9, v{s_+i+2}, v{s_+i+3}")
    A(f"""v_max3_f32 v8, v8, v{s_+14}, v{s_+15}
v_max_f32 v8, v8, v9
v_cvt_pk_bf16_f32 v8, -v8, v7
v_mov_b32_dpp v{Q+6}, v8 {HI}
ds_write_b128 v240, {q(0,1)} offset:1024
{MFMA} {vr(S,16)}, {vr(kb(0,1),4)}, {q(0,1)}, {vr(S,16)}""")
    lds_sync(C_Q, 4)
    for j in range(1, 4):
        A(f"ds_read_b128 {q(j,0)}, v{240+j}\nds_read_b128 {q(j,1)}, v{240+j} offset:1024")
    for x in t1[2:]: A(x)
    A("s_waitcnt lgkmcnt(0)")
    stamp(7)
    lds_add(C_G2)
    A("s_setprio 1")
    def mwrites(j):
        return ([f"ds_write_b128 v{244+j}, {vr(O+16*j+4*g,4)} offset:{1024*g}" for g in range(3)] +
                [f"ds_write_b96 v{244+j}, {vr(O+16*j+12,3)} offset:3072"])
    for n in range(64):
        i, j = n >> 2, n & 3
        if n == 32: stamp(8)
        extra = []; late = []; at = {}
        if n == 0: extra = tile_loads(2, TB+2)
        ti, k = (i + 3, j - 1) if j >= 1 else (i + 2, 3)
        if 3 <= ti < 16: at[OPT["lp"]] = [tile_loads(ti & 3, TB+ti)[k]]
        if n >= 62: late = mwrites(n - 62)
        m = [None]*4
        pre = []
        if n < 63:
            i2, j2 = (n+1) >> 2, (n+1) & 3
            if j2 == 0:
                cnt = 4*(min(15, i+3) - (i+1))
                if i + 3 < 16: cnt -= 2
                pre = [f"s_waitcnt vmcnt({cnt})", f"v_mov_b32_dpp v{kb(i2&3,1)+2}, v4 {HI}"]
            m[0] = f"{MFMA} {vr(S+16*j2,16)}, {vr(kb(i2&3,0),4)}, {q(j2,0)}, 0"
            m[1] = f"{MFMA} {vr(S+16*j2,16)}, {vr(kb(i2&3,1),4)}, {q(j2,1)}, {vr(S+16*j2,16)}"
        if n > 0:
            i0, j0 = (n-1) >> 2, (n-1) & 3
            m[2] = f"{SMF} {vr(O+16*j0,16)}, {vr(kb(i0&3,3),4)}, {vr(S+16*j0+8,8)}, v5"
        m[3] = f"{SMF} {vr(O+16*j,16)}, {vr(kb(i&3,2),4)}, {vr(S+16*j,8)}, v5"
        if n == 63: m[0], m[2] = m[2], None
        for x in pre: A(x)
        for g in range(4):
            if n == 0 and g == 3: A("s_waitcnt vmcnt(8)")
            if m[g]: A(m[g])
            for e in range(4):
                r = S+16*j+4*g+e
                A(f"v_exp_f32 v{r}, v{r}")
                for x in at.pop(4*g+e, []): A(x)
                if extra: A(extra.pop(0))
                elif late and g >= 1 and e & 1: A(late.pop(0))
        assert not extra and not late and not at
    for x in mwrites(2)[:2]: A(x)
    A(f"{SMF} {vr(O+48,16)}, {vr(kb(3,3),4)}, {vr(S+48+8,8)}, v5")
    for x in mwrites(2)[2:]: A(x)
    stamp(9)
    A("s_setprio 3")
    lds_sync(C_MERGE, 4)
    for g in range(12): A(f"ds_read_b128 {vr(S+4*g,4)}, v247 offset:{1024*g}")
    A(f"""v_lshlrev_b32 v8, 4, v0
s_add_u32 s41, s40, 3
s_and_b32 s41, s41, 3
s_lshl_b32 s43, s5, 2
s_add_u32 s41, s41, s43
s_lshl_b32 s42, s41, 15
s_lshl_b32 s43, s4, 11
s_add_u32 s42, s42, s43
s_add_u32 s42, s42, {O_OFF}
s_lshl_b32 s41, s41, 11
s_lshl_b32 s43, s4, 7
s_add_u32 s41, s41, s43
s_add_u32 s41, s41, {FO_OFF}""")
    for k in range(3):
        A(f"s_waitcnt lgkmcnt({8-4*k})")
        for i in list(range(14, -2, -2)): A(f"v_pk_add_f32 {vr(OK+i,2)}, {vr(OK+i,2)}, {vr(S+16*k+i,2)}")
    A(f"""v_cmp_nle_f32 vcc, {f32(2.0**-40)}, v{OK+14}
s_mov_b64 s[48:49], vcc
v_cmp_nge_f32 vcc, {f32(2.0**40)}, v{OK+14}
s_or_b64 vcc, vcc, s[48:49]
s_cbranch_vccnz {LFB}
{LN}:
v_rcp_f32 v10, v{OK+14}
v_mov_b32 v{S+7}, 0
v_mov_b32 v11, v10""")
    for i in range(0, 14, 2):
        A(f"v_pk_mul_f32 {vr(OK+i,2)}, {vr(OK+i,2)}, v[10:11]")
        A(f"v_cvt_pk_bf16_f32 v{S+i//2}, v{OK+i}, v{OK+i+1}")
        if i == 6: A(f"buffer_store_dwordx4 {vr(S,4)}, v8, {W}, s42 offen {SC}")
    A(f"buffer_store_dwordx4 {vr(S+4,4)}, v8, {W}, s42 offen offset:1024 {SC}")
    stamp(10)
    lds_add(C_GO)
    WF = 112; BACC = 16; OB = 64; NB = 6
    A(f"""v_bfe_u32 v9, v0, 2, 2        ; rr
v_and_b32 v10, 3, v0
v_lshrrev_b32 v11, 1, v10
v_and_b32 v10, 1, v10
v_lshl_or_b32 v10, v10, 1, v11    ; sigma(cc)
v_bfe_u32 v11, v0, 4, 1
v_lshlrev_b32 v11, 5, v11
v_lshl_or_b32 v10, v10, 3, v11
s_lshl_b32 s45, s40, 6
v_or_b32 v10, s45, v10
v_lshrrev_b32 v15, 5, v0
v_mul_u32_u24 v11, 320, v9
v_xor_b32 v3, v10, v11
v_lshl_add_u32 v3, v15, 10, v3
v_lshl_or_b32 v9, v15, 1, v9
v_mul_u32_u24 v11, 320, v9
v_xor_b32 v4, v10, v11
v_add_u32 v5, {224*256}, v3
v_add_u32 v6, {224*256}, v4""")
    assert WO == 0
    def wo_frags(half):
        for n in range(16):
            hd, i = n >> 1, n & 1
            b = WF + 64*half + 4*n
            row = 28*hd + 16*i
            A(f"ds_read_b64_tr_b16 {vr(b,2)}, v{3+2*half} offset:{row*256}")
            A(f"ds_read_b64_tr_b16 {vr(b+2,2)}, v{(4 if i else 3)+2*half} offset:{(row+8)*256}")
            if n % 6 == 5: A("s_waitcnt lgkmcnt(2)")
    lds_wait(C_WOA, 4)
    wo_frags(0)
    A("s_waitcnt vmcnt(0) lgkmcnt(2)")
    flagstore("s41", OPT["ro"], 131072)
    wo_frags(1)
    A(f"""s_lshr_b32 s4, s2, 4
s_lshl_b32 s4, s4, 2
s_bfe_u32 s5, s2, 0x20001
s_or_b32 s4, s4, s5
s_and_b32 s5, s2, 1
s_and_b32 s46, s5, {OPT["ro"]-1}
s_lshl_b32 s46, s46, 17
s_lshl_b32 s5, s5, 1
s_bfe_u32 s6, s2, 0x10003
s_or_b32 s5, s5, s6            ; n quarter
s_lshl_b32 s43, s4, 15
s_lshl_b32 s44, s40, 13
s_add_u32 s43, s43, s44
s_add_u32 s43, s43, {O_OFF}
s_add_u32 s47, s43, 4096
v_and_b32 v14, 31, v0
v_mul_u32_u24 v2, 1792, v14
v_lshl_add_u32 v2, v15, 4, v2
s_mul_i32 s41, s4, {32*1792}
s_lshl_b32 s42, s5, 8
s_add_u32 s41, s41, s42
s_add_u32 s41, s41, s45
s_add_u32 s41, s41, 896
s_lshl_b32 s42, s4, 11
s_add_u32 s46, s46, s42
s_lshl_b32 s42, s40, 9
s_add_u32 s46, s46, s42
s_add_u32 s46, s46, {FO_OFF}
v_and_b32 v9, 3, v0
v_lshlrev_b32 v9, 7, v9""")
    lds_sync(C_WOF, 4)
    assert OST == 0
    def odma():
        for half in range(2):
            A(f"s_add_u32 m0, s44, {OST+4096*half}")
            for i in range(4):
                A(f"buffer_load_dwordx4 v8, {W}, s{47 if half else 43} offen offset:{1024*i} {SC} lds")
    if not OPT["dyn"]:
        spin(f"buffer_load_dword v14, v9, {W}, s46 offen {SC}", 14, OPT["sl1"])
        stamp(11)
        odma()
        A("s_waitcnt vmcnt(0)")
        lds_sync(C_OST, 4)
        stampw(12)
        def rd(n): A(f"ds_read_b128 {vr(OB+4*(n%NB),4)}, v8 offset:{1024*n}")
        for n in range(NB-1): rd(n)
        for n in range(32):
            if n + NB - 1 < 32: rd(n + NB - 1)
            left = min(31, n+NB-1) - n
            A(f"s_waitcnt lgkmcnt({left})\n{MFMA} {vr(BACC,16)}, {vr(WF+4*n,4)}, {vr(OB+4*(n%NB),4)}, {vr(BACC,16) if n else 0}")
    else:
        LL, LM, LNONE, LX = A.lab("b3l"), A.lab("b3m"), A.lab("b3n"), A.lab("b3x")
        LG = [A.lab("b3g") for _ in range(4)]
        GA = (16, 32, 48, 96)
        A(f"""v_mov_b32 v12, {C_OST}
s_lshl_b32 s52, 1, s40
v_mov_b32 v10, s52
s_mov_b32 s50, 0
s_mov_b32 s51, 0
s_mov_b32 s61, {SPIN}
{LL}:
s_cmp_lg_u32 s50, 0
s_cbranch_scc1 {LM}
buffer_load_dword v14, v9, {W}, s46 offen {SC}
s_sub_u32 s61, s61, 1
s_waitcnt vmcnt(0)
v_cmp_ne_u32 vcc, s{TAG}, v14
s_cmp_eq_u32 s61, 0
s_cselect_b64 vcc, 0, vcc
s_cbranch_vccnz {LM}""")
        stamp(11)
        odma()
        A(f"""s_mov_b32 s50, 1
{LM}:
ds_read_b32 v13, v12
s_waitcnt lgkmcnt(0)
v_readfirstlane_b32 s60, v13
s_andn2_b32 s60, s60, s51
s_cbranch_scc0 {LNONE}
s_ff1_i32_b32 s53, s60
s_bitset1_b32 s51, s53
s_cmp_eq_u32 s53, 1
s_cbranch_scc1 {LG[1]}
s_cmp_eq_u32 s53, 2
s_cbranch_scc1 {LG[2]}
s_cmp_eq_u32 s53, 3
s_cbranch_scc1 {LG[3]}""")
        for g in range(4):
            A(f"{LG[g]}:")
            for n in range(8): A(f"ds_read_b128 {vr(OB+4*n,4)}, v8 offset:{1024*(8*g+n)}")
            for n in range(8):
                A(f"s_waitcnt lgkmcnt({7-n})\n{MFMA} {vr(GA[g],16)}, {vr(WF+32*g+4*n,4)}, {vr(OB+4*n,4)}, {vr(GA[g],16) if n else 0}")
            A(f"s_cmp_eq_u32 s51, 15\ns_cbranch_scc0 {LL}\ns_branch {LX}")
        A(f"""{LNONE}:
s_cmp_lg_u32 s50, 1
s_cbranch_scc1 {LL}
s_waitcnt vmcnt(0)
s_mov_b64 exec, 1
ds_or_b32 v12, v10
s_mov_b64 exec, -1
s_mov_b32 s50, 2""")
        stamp(12)
        A(f"s_branch {LM}\n{LX}:\ns_nop 8")
        for i in range(0, 16, 2):
            A(f"v_pk_add_f32 {vr(16+i,2)}, {vr(16+i,2)}, {vr(32+i,2)}\nv_pk_add_f32 {vr(48+i,2)}, {vr(48+i,2)}, {vr(96+i,2)}")
        for i in range(0, 16, 2): A(f"v_pk_add_f32 {vr(16+i,2)}, {vr(16+i,2)}, {vr(48+i,2)}")
    A(f"""s_lshl_b32 s42, s5, 2
s_add_u32 s42, s42, s40
s_cmp_ge_u32 s42, 14
s_cbranch_scc1 {END}""")
    for i in range(8): A(f"v_cvt_pk_bf16_f32 v{32+i}, v{BACC+2*i}, v{BACC+2*i+1}")
    A(f"""buffer_store_dwordx4 v[32:35], v2, {sr(SO,4)}, s41 offen {OBM}
buffer_store_dwordx4 v[36:39], v2, {sr(SO,4)}, s41 offen offset:32 {OBM}
s_branch {END}""")

def helper():
    SWO = 56
    T, AC2, WA, WB, Y = 16, 48, 64, 72, 80
    LNOA2, LNY2, LP2 = "L_noa2", A.lab("nyq"), A.lab("pub2")
    A(f"{HELP2}:")
    if OPT["x"] >= 4:
        lds_add(C_WOA); A(f"s_branch {END}")
    stamp(11)
    if OPT["pda"] < 0: lds_add(C_H)
    A(f"""s_lshr_b32 s5, s2, 3
s_cmp_ge_u32 s5, 29
s_cbranch_scc1 {LNOA2}
v_lshrrev_b32 v8, 3, v0
v_and_b32 v9, 4, v8
v_bfe_u32 v10, v8, 1, 1
v_or_b32 v9, v9, v10
v_and_b32 v8, 1, v8
v_lshl_or_b32 v9, v8, 1, v9     ; s2 mod 8 = 4*(p>>1) + 2h + (p&1)
v_mul_u32_u24 v1, {T_ROW}, v9
v_and_b32 v8, 1, v0
v_lshl_add_u32 v1, v8, 9, v1
v_bfe_u32 v8, v0, 1, 2
v_lshl_add_u32 v1, v8, 4, v1    ; T offset
s_lshl_b32 s41, s5, 10
s_lshl_b32 s42, s4, 6
s_add_u32 s41, s41, s42
s_add_u32 s41, s41, {T_OFF}
s_mul_i32 s42, s40, {16*T_ROW}
s_add_u32 s41, s41, s42
s_mul_i32 s44, s5, 43
s_lshr_b32 s44, s44, 8          ; g5
s_lshl_b32 s45, s44, 11
s_and_b32 s46, s2, {OPT["r1"]-1}
s_lshl_b32 s46, s46, 15
s_add_u32 s46, s46, {F1_OFF + 11*2048}
v_and_b32 v9, 15, v0
v_lshlrev_b32 v9, 7, v9
v_add_u32 v9, s45, v9
v_mov_b32 v10, 0
v_mov_b32_dpp v9, v10 {HI}
s_lshl_b32 s43, s40, 11
s_add_u32 m0, s43, {TX}
s_add_u32 s47, s41, {8*T_ROW - 1024}
s_nop 0""")
    lds_wait(C_G2 if OPT["g2"] else C_LF, 4, 1)
    def a1poll():
        A(f"""buffer_load_dword v10, v9, {W}, s46 offen {SC}
s_waitcnt vmcnt(0)
v_cmp_ne_u32 vcc, s{TAG}, v10""")
    acquire(R_A1, a1poll, OPT["sl2"], 1)
    stamp(6)
    A(f"""buffer_load_dwordx4 v1, {W}, s41 offen {SC} lds
buffer_load_dwordx4 v1, {W}, s47 offen offset:1024 {SC} lds
v_lshrrev_b32 v8, 3, v14        ; u1 local
v_and_b32 v9, 7, v14            ; k local
v_lshl_add_u32 v2, v15, 3, v8
v_lshlrev_b32 v2, 4, v2
v_lshl_add_u32 v2, v9, 1, v2
s_cmp_eq_u32 s5, 28
s_cselect_b32 s45, 14, 0
s_add_u32 s42, s43, s45
s_add_u32 s42, s42, {WX}
v_add_u32 v2, s42, v2
v_mul_u32_u24 v3, {2*T2_ROW}, v15
v_lshl_add_u32 v3, v9, 4, v3
v_lshl_add_u32 v3, v8, 2, v3    ; T2 offset
v_lshlrev_b32 v8, 4, v0
v_add_u32 v8, {EX}, v8
v_add_u32 v9, s43, v8
v_lshlrev_b32 v1, 2, v0
v_add_u32 v1, {TX}, v1""")
    for i in range(16): A(f"v_mov_b32 v{WA+i}, 0")
    A("s_waitcnt vmcnt(0)")
    lds_sync(C_T, 4)
    for m in range(0, 28, 2): A(f"ds_read2st64_b32 {vr(T+m,2)}, v1 offset0:{m} offset1:{m+1}")
    for f in range(8):
        if f == 1:
            for m in range(28, 32, 2): A(f"ds_read2st64_b32 {vr(T+m,2)}, v1 offset0:{m} offset1:{m+1}")
        A(f"s_waitcnt lgkmcnt({12 if f == 0 else 14-2*f})\n{MFMA} {vr(AC2,16)}, {vr(C+4*f,4)}, {vr(T+4*f,4)}, {vr(AC2,16) if f else 0}")
    lds_wait(C_W, 4)
    for j in range(8):
        A(f"ds_read_u16_d16_hi v{WA+j}, v2 offset:{(4*(j>>1)+(j&1))*64}")
    A("s_waitcnt lgkmcnt(4)")
    for j in range(8):
        A(f"ds_read_u16_d16_hi v{WB+j}, v2 offset:{(4*(j>>1)+(j&1))*64+1024}")
    A(f"s_waitcnt lgkmcnt(0)\ns_cmp_lg_u32 s5, 28\ns_cbranch_scc1 {LNY2}")
    for j in range(8): A(f"v_xor_b32 v{WA+j}, 0x80000000, v{WA+j}")
    A(f"{LNY2}:")
    A(f"""s_mul_i32 s41, s40, {16*T2_ROW}
s_mul_i32 s42, s4, {T2_Q}
s_add_u32 s41, s41, s42
s_lshl_b32 s42, s5, 7
s_add_u32 s41, s41, s42
s_add_u32 s41, s41, {T2_OFF}""")
    for j in range(8):
        xr, xi = AC2+2*j, AC2+2*j+1
        A(f"""v_mul_f32 v10, v{xr}, v{WA+j}
v_mul_f32 v11, v{xr}, v{WB+j}
v_fma_f32 v10, -v{xi}, v{WB+j}, v10
v_fmac_f32 v11, v{xi}, v{WA+j}
v_cvt_pk_bf16_f32 v{Y+j}, v11, v10""")
        if j == 3: A(f"ds_write_b128 v9, {vr(Y,4)}")
    A(f"ds_write_b128 v9, {vr(Y+4,4)} offset:1024")
    lds_sync(C_EX, 4)
    for f in range(8): A(f"ds_read_b128 {vr(T+4*f,4)}, v8 offset:{1024*f}")
    for f in range(8):
        A(f"s_waitcnt lgkmcnt({7-f})\n{MFMA} {vr(AC2,16)}, {vr(C+4*f,4)}, {vr(T+4*f,4)}, {vr(AC2,16) if f else 0}")
    for j in range(8):
        A(f"""v_cvt_pk_bf16_f32 v{Y+j}, v{AC2+2*j+1}, v{AC2+2*j}
s_add_u32 s43, s41, {(4*(j>>1)+(j&1))*T2_ROW}
buffer_store_dword v{Y+j}, v3, {W}, s43 offen {SC}""")
    stamp(7)
    arrive(C_A2, LP2)
    A(f"""s_lshl_b32 s41, s44, 2
s_lshr_b32 s42, s4, 1
s_add_u32 s41, s41, s42
s_lshl_b32 s41, s41, 7
s_add_u32 s41, s41, {AT_OFF}
s_cmp_eq_u32 s44, 4
s_cselect_b32 s42, 9, 11
v_mov_b32 v12, 0
v_mov_b32 v13, 1
s_mov_b64 exec, 1
buffer_atomic_add v13, v12, {W}, s41 offen sc0 sc1
s_mov_b64 exec, -1
s_waitcnt vmcnt(0)
v_readfirstlane_b32 s60, v13
s_cmp_lg_u32 s60, s42
s_cbranch_scc1 {LP2}
v_mov_b32 v13, 1
s_mov_b32 s41, {AT_OFF + 20*128}
s_mov_b64 exec, 1
buffer_atomic_add v13, v12, {W}, s41 offen sc0 sc1
s_mov_b64 exec, -1
s_waitcnt vmcnt(0)
v_readfirstlane_b32 s60, v13
s_cmp_lg_u32 s60, 19
s_cbranch_scc1 {LP2}
s_mov_b32 s41, {F2_OFF}""")
    flagstore("s41", 8, 128)
    assert EPOCH_OFF == 0
    flagstore("0", 1, 0)
    A(f"{LP2}:")
    lds_wait(C_A2, 4, 4)
    A(f"{LNOA2}:")
    srd(SWO, P_WO, WO_BYTES)
    LW = A.lab("wo")
    A(f"""s_and_b32 s53, s2, 1
s_lshl_b32 s53, s53, 1
s_bfe_u32 s54, s2, 0x10003
s_or_b32 s53, s53, s54
s_lshl_b32 s53, s53, 8
s_mul_i32 s54, s40, {112*896}
s_add_u32 s53, s53, s54
s_mul_i32 s54, s40, {112*256}
v_lshrrev_b32 v9, 4, v0
v_and_b32 v8, 15, v0
v_lshlrev_b32 v4, 2, v9
v_xor_b32 v8, v8, v4
v_lshlrev_b32 v8, 4, v8
v_mul_u32_u24 v9, 896, v9
v_add_u32 v4, v8, v9""")
    lds_wait(C_G2, 4, 4)
    A(f"""s_mov_b32 m0, s54
s_mov_b32 s55, 28
{LW}:
{"s_sleep %d" % OPT["wos"] if OPT["wos"] > 0 else "s_waitcnt vmcnt(%d)" % -OPT["wos"]}
buffer_load_dwordx4 v4, {sr(SWO,4)}, s53 offen lds
s_add_u32 m0, m0, 1024
s_add_u32 s53, s53, {4*896}
s_sub_u32 s55, s55, 1
s_cmp_lg_u32 s55, 0
s_cbranch_scc1 {LW}
s_waitcnt vmcnt(0)""")
    lds_add(C_WOA)
    stamp(12)
    TA, NY, AC3, ZB, AC4 = 16, 48, 64, 16, 112
    A(f"""v_and_b32 v8, 15, v14
v_lshrrev_b32 v9, 4, v14
v_lshl_or_b32 v8, v8, 1, v9
v_mul_u32_u24 v2, {T2_Q}, v15
v_lshl_add_u32 v1, v8, 4, v2    ; T2 offset
v_add_u32 v2, {224*16}, v2
s_mul_i32 s41, s50, {T2_ROW}
s_add_u32 s41, s41, {T2_OFF}
s_lshl_b32 s42, s40, 9
s_add_u32 s42, s42, s41
s_and_b32 s46, s2, 7
s_lshl_b32 s46, s46, 7
s_add_u32 s46, s46, {F2_OFF}
v_mov_b32 v9, 0""")
    srd(SO, P_OUT, OUT_BYTES)
    def a2poll():
        A(f"""buffer_load_dword v10, v9, {W}, s46 offen {SC}
s_waitcnt vmcnt(0)
v_cmp_ne_u32 vcc, s{TAG}, v10""")
    acquire(R_A2, a2poll, OPT["sl3"], OPT["sl3"])
    stamp(8)
    LA, LB = A.lab("a3l"), A.lab("a3l")
    for f in range(4):
        A(f"s_add_u32 s43, s42, {2*f*T2_Q}\nbuffer_load_dwordx4 {vr(TA+4*f,4)}, v1, {W}, s43 offen {SC}\ns_sleep 1")
    A(f"s_cmp_eq_u32 s40, 3\ns_cbranch_scc1 {LA}")
    for f in range(4):
        A(f"s_add_u32 s43, s42, {2*f*T2_Q + 2048}\nbuffer_load_dwordx4 {vr(TA+16+4*f,4)}, v1, {W}, s43 offen {SC}\ns_sleep 1")
    A(f"{LA}:\ns_cmp_lg_u32 s40, 0\ns_cbranch_scc1 {LB}")
    for f in range(4):
        A(f"s_add_u32 s43, s41, {2*f*T2_Q}\nbuffer_load_dwordx4 {vr(NY+4*f,4)}, v2, {W}, s43 offen {SC}")
    A(f"{LB}:")
    lds_wait(C_GO, 4, OPT["slg"])
    A("s_setprio 0")
    if OPT["x"] not in (2, 3): stamp(10)
    LN3, LZ = A.lab("a3ny"), A.lab("a3z")
    A("s_waitcnt vmcnt(0)")
    setup = f"""v_lshlrev_b32 v5, 4, v0
s_lshl_b32 s43, s40, 11
s_add_u32 s43, s43, {ZOFF}
v_add_u32 v6, s43, v5
s_mul_i32 s43, s52, 14336
s_add_u32 s43, s43, {ZOFF}
v_add_u32 v5, s43, v5
s_lshr_b32 s46, s40, 1
s_lshl_b32 s46, s46, 3
v_add_u32 v7, s46, v15          ; 8p + h
v_and_b32 v9, 7, v14
v_xor_b32 v7, v7, v9
v_lshlrev_b32 v7, 4, v7
v_lshl_or_b32 v7, v14, 8, v7
s_lshl_b32 s46, s52, 13
s_add_u32 s46, s46, {YOFF}
v_add_u32 v7, s46, v7           ; Y write address
v_lshrrev_b32 v8, 3, v0
s_lshl_b32 s46, s40, 3
v_add_u32 v8, s46, v8           ; row (s1)
v_and_b32 v9, 7, v0             ; piece
v_lshlrev_b32 v10, 1, v9
v_and_b32 v11, 7, v8
v_xor_b32 v10, v10, v11
v_lshlrev_b32 v10, 4, v10
v_lshl_or_b32 v10, v8, 8, v10
v_add_u32 v10, {YOFF}, v10
v_xor_b32 v11, 16, v10
v_mul_u32_u24 v8, {64*1792}, v8
v_lshl_add_u32 v8, v9, 4, v8    ; out offset
s_mul_i32 s41, s50, 1792
s_lshl_b32 s42, s51, 7
s_add_u32 s41, s41, s42""".split("\n")
    for tt in range(2):
        for f in range(4):
            A(f"{MFMA} {vr(AC3+32*tt,16)}, {vr(TA+16*tt+4*f,4)}, {vr(ER+4*f,4)}, {vr(AC3+32*tt,16) if f else 0}")
            for _ in range(5):
                if setup: A(setup.pop(0))
    assert not setup
    A(f"s_cmp_eq_u32 s51, 3\ns_cselect_b32 s42, 4, 8\nv_cmp_gt_u32 s[48:49], s42, v9")
    A(f"s_cmp_lg_u32 s40, 0\ns_cbranch_scc1 {LN3}\ns_mov_b32 exec_lo, 1\ns_mov_b32 exec_hi, 1")
    for i in range(16): A(f"v_mov_b32 v{TA+i}, v{NY+i}")
    A(f"s_mov_b64 exec, -1\n{LN3}:\ns_nop 1")
    def zout(tt, part):
        a = AC3+32*tt+16*part
        e = [f"v_cvt_pk_bf16_f32 v{a+i}, v{a+2*i}, v{a+2*i+1}" for i in range(8)]
        return e + [f"ds_write_b128 v6, {vr(a+4*p,4)} offset:{14336*p+8192*tt+1024*part}" for p in range(2)]
    pend = zout(0, 0)
    for tt in range(2):
        for f in range(4):
            A(f"{MFMA} {vr(AC3+32*tt+16,16)}, {vr(TA+16*tt+4*f,4)}, {vr(EI+4*f,4)}, {vr(AC3+32*tt+16,16) if f else 0}")
            for _ in range(3):
                if pend: A(pend.pop(0))
    for x in pend + zout(0, 1): A(x)
    A(f"s_cmp_eq_u32 s40, 3\ns_cbranch_scc1 {LZ}")
    for x in zout(1, 0) + zout(1, 1): A(x)
    A(f"{LZ}:")
    lds_sync(C_Z, 4)
    for i in range(14): A(f"ds_read_b128 {vr(ZB+4*i,4)}, v5 offset:{1024*i}")
    for i in range(14):
        A(f"s_waitcnt lgkmcnt({13-i})\n{MFMA} {vr(AC4,16)}, {vr(G+4*i,4)}, {vr(ZB+4*i,4)}, {vr(AC4,16) if i else 0}")
    for g in range(4):
        A(f"v_xor_b32 v9, {32*g}, v7\nds_write_b128 v9, {vr(AC4+4*g,4)}")
    lds_sync(C_Y, 4)
    A(f"""ds_read_b128 v[16:19], v10
ds_read_b128 v[20:23], v11
ds_read_b128 v[24:27], v10 offset:8192
ds_read_b128 v[28:31], v11 offset:8192
s_waitcnt lgkmcnt(0)""")
    for i in range(8): A(f"v_add_f32 v{32+i}, v{16+i}, v{24+i}\nv_sub_f32 v{40+i}, v{16+i}, v{24+i}")
    for i in range(8): A(f"v_cvt_pk_bf16_f32 v{48+i}, v{32+2*i}, v{33+2*i}")
    A(f"""s_mov_b64 exec, s[48:49]
buffer_store_dwordx4 v[48:51], v8, {sr(SO,4)}, s41 offen {OA}
buffer_store_dwordx4 v[52:55], v8, {sr(SO,4)}, s41 offen offset:448 {OA}
s_mov_b64 exec, -1
s_branch {END}""")

def fallback():
    L1, L2 = A.lab("fb1"), A.lab("fb2")
    tl = tile_loads(0, 43)
    A(f"""{LFB}:
v_mov_b32_dpp v{Q+24+6}, v7 {HI}
v_mov_b32 v12, 0xff800000
s_mov_b32 s43, {KV_OFF}
{L1}:
{tl[0]}
{tl[1]}
s_waitcnt vmcnt(0)
{MFMA} {vr(S,16)}, {vr(kb(0,0),4)}, {q(3,0)}, 0
{MFMA} {vr(S,16)}, {vr(kb(0,1),4)}, {q(3,1)}, {vr(S,16)}""")
    for i in range(0, 16, 2): A(f"v_max3_f32 v12, v12, v{S+i}, v{S+i+1}")
    A(f"""s_add_u32 s43, s43, {KV_REC}
s_cmp_lt_u32 s43, {KV_OFF+64*KV_REC}
s_cbranch_scc1 {L1}
v_mov_b32 v13, v12
v_mov_b32 v14, v12
v_permlane32_swap_b32 v13, v14
v_max_f32 v12, v13, v14""")
    for i in range(16): A(f"v_mov_b32 v{OK+i}, 0")
    A(f"s_mov_b32 s43, {KV_OFF}\n{L2}:")
    for x in tl: A(x)
    A(f"""s_waitcnt vmcnt(0)
{MFMA} {vr(S,16)}, {vr(kb(0,0),4)}, {q(3,0)}, 0
{MFMA} {vr(S,16)}, {vr(kb(0,1),4)}, {q(3,1)}, {vr(S,16)}""")
    for i in range(16): A(f"v_sub_f32 v{S+i}, v{S+i}, v12")
    for i in range(16): A(f"v_exp_f32 v{S+i}, v{S+i}")
    A(f"""{SMF} {vr(OK,16)}, {vr(kb(0,2),4)}, {vr(S,8)}, v5
{SMF} {vr(OK,16)}, {vr(kb(0,3),4)}, {vr(S+8,8)}, v5
s_nop 15
s_add_u32 s43, s43, {KV_REC}
s_cmp_lt_u32 s43, {KV_OFF+64*KV_REC}
s_cbranch_scc1 {L2}
s_branch {LN}""")

def finish():
    A(f"{END}:")
    if OPT["probe"]:
        LQ = A.lab("probe")
        stamp(13)
        A(f"""s_cmp_lg_u32 s2, {OPT["pwg"]}
s_cbranch_scc1 {FIN}
s_cmp_lg_u32 s3, {OPT["pwave"]}
s_cbranch_scc1 {FIN}
s_waitcnt lgkmcnt(0)
s_sub_u32 s56, s{64+2*OPT["probe"]}, s66
s_mul_i32 s56, s56, 10
s_add_u32 s56, s56, s90
{LQ}:
s_memrealtime s[58:59]
s_waitcnt lgkmcnt(0)
s_sub_u32 s57, s58, s56
s_cmp_lt_i32 s57, 0
s_cbranch_scc1 {LQ}""")
    elif STAMPS:
        stamp(13)
        A(f"""s_waitcnt vmcnt(0)
s_memtime s[92:93]
s_memrealtime s[94:95]
s_waitcnt lgkmcnt(0)
{"s_getreg_b32 s64, hwreg(HW_REG_XCC_ID)" if STAMPS == 1 else ""}
{"s_getreg_b32 s92, hwreg(HW_REG_HW_ID)" if STAMPS == 1 else ""}
s_mov_b32 s56, s24
s_mov_b32 s57, s25
s_mov_b32 s58, 0x2000000
s_mov_b32 s59, 0x00020000
s_mov_b64 exec, 1
s_lshl_b32 s60, s2, 3
s_add_u32 s60, s60, s3
s_lshl_b32 s60, s60, 6
s_add_u32 s60, s60, {TS_OFF}
v_mov_b32 v1, 0""")
        for i in range(16):
            A(f"v_mov_b32 v2, s{64+2*i}\nbuffer_store_dword v2, v1, s[56:59], s60 offen offset:{4*i}")
    A(f"{FIN}:\ns_endpgm")

entry(); b1_loader(); a1_dispatch_loader(); a1_gen(); a1_compute(); pub1(); helper()
A(f"{LB1C}:\ns_setprio 2"); main_start()
for i in range(64): A(f"v_mov_b32 v{ACC+i}, 0")
A("s_waitcnt lgkmcnt(0)"); gettag()
gen_pre(); b1_compute()
attention(); fallback(); finish()

HDR = open("cdna_kernels/%s.s.ref" % NAME).read().split("; Override")[0]
txt = HDR + f"; @launch grid=(256,1,1) block=(512,1,1) lds={LDS_BYTES}\n"
txt += '.amdgcn_target "amdgcn-amd-amdhsa--gfx950"\n.text\n' + A.finish()
txt += f""".section .rodata,"a"
.p2align 6
.amdhsa_kernel {K}
  .amdhsa_next_free_vgpr 256
  .amdhsa_next_free_sgpr 96
  .amdhsa_accum_offset 256
  .amdhsa_group_segment_fixed_size 0
  .amdhsa_kernarg_size 72
  .amdhsa_user_sgpr_count 2
  .amdhsa_user_sgpr_kernarg_segment_ptr 1
  .amdhsa_system_sgpr_workgroup_id_x 1
.end_amdhsa_kernel
"""
out = args[0] if args else "cdna_kernels/%s.s" % NAME
open(out, "w").write(txt)
print("wrote", out, len(txt))
```

```python
import sys, struct
from emit import Asm
from layout import *
NAME = "concat_heads__spectral_gfnet__softmax_full_mha__prompt"
OPT = dict(stamps=0, r1=8, pf=1, sl1=1, sl2=8, sl3=40, rot=1, x=0, probe=0, pwave=4, pwg=100, pd=0, wos=-2, lp=13, slg=8, g2=0, ro=2, wm=0, tch=0, pda=0, oa=0, ob=0, gd=1, dyn=0, wsb=0, fl=1, pw=2, tw=0, sd=0, sp=0, td=0, ad=0, bn=0)
args = []
for a in sys.argv[1:]:
    if "=" in a: k, v = a.split("="); assert k in OPT, k; OPT[k] = int(v)
    else: args.append(a)
STAMPS = OPT["stamps"]
MODS = ['', 'sc1', 'nt', 'sc0 sc1']
OA, OBM = MODS[OPT['oa']], MODS[OPT['ob']]
def f32(x): return "0x%08x" % struct.unpack("<I", struct.pack("<f", x))[0]
def vr(a, n=1): return f"v{a}" if n == 1 else f"v[{a}:{a+n-1}]"
def sr(a, n=1): return f"s{a}" if n == 1 else f"s[{a}:{a+n-1}]"
P_AX, P_WR, P_WI, P_BX, P_WQKV, P_WO, P_OUT, P_DBG, P_WS = 8,10,12,14,16,18,20,22,24
MFMA = "v_mfma_f32_32x32x16_bf16"
SMF = "v_smfmac_f32_32x32x32_bf16"
SC = "sc1"
HI = "quad_perm:[0,1,2,3] row_mask:0xc bank_mask:0xf"
TAGC = 0x9E3779B9
TAG = 62
SWS = 36; W = sr(SWS,4)
SX, SW = 28, 32
SPIN = 200000
FOFF = 7*16384
WO, OST = 0, 0
QX, EX, TX, WX = 0, 8192, 16384, 24576
MERGE = 114688
ZOFF, YOFF = MERGE, MERGE + 28672
CNT = 162816
LDS_BYTES = 163840
(C_P1, R_KV, C_MERGE, C_OST, R_A1, C_EX, C_A2, R_A2, C_Z, C_Y, C_WOA, C_WOF, C_GO, C_G2, C_Q, C_LF, C_T, C_W, C_X, C_H) = [CNT+16*i+12 for i in range(20)]

A = Asm()
def stamp(i):
    if STAMPS: A(f"{'s_memtime' if STAMPS == 2 else 's_memrealtime'} s[{64+2*i}:{65+2*i}]")
def stampw(i):
    if STAMPS: stamp(i); A("s_waitcnt lgkmcnt(0)")
def srd(d, p, nbytes):
    A(f"s_mov_b32 s{d}, s{p}\ns_mov_b32 s{d+1}, s{p+1}\ns_mov_b32 s{d+2}, {nbytes}\ns_mov_b32 s{d+3}, 0x00020000")
def pi32(d, s, t):
    A(f"""v_and_b32 v{d}, 0x13, v{s}
v_and_b32 v{t}, 4, v{s}
v_lshl_or_b32 v{d}, v{t}, 1, v{d}
v_and_b32 v{t}, 8, v{s}
v_lshrrev_b32 v{t}, 1, v{t}
v_or_b32 v{d}, v{d}, v{t}""")
def mod7(d, t):
    A(f"s_mul_i32 s{t}, s{d}, 37\ns_lshr_b32 s{t}, s{t}, 8\ns_mul_i32 s{t}, s{t}, 7\ns_sub_u32 s{d}, s{d}, s{t}")
def lds_add(addr):
    A(f"v_mov_b32 v12, {addr}\nv_mov_b32 v13, 1\ns_mov_b64 exec, 1\nds_add_u32 v12, v13\ns_mov_b64 exec, -1")
def lds_wait(addr, target, sleep=0, setup=True):
    L, L2 = A.lab("lw"), A.lab("lwd")
    if setup: A(f"v_mov_b32 v12, {addr}")
    A(f"""{L}:
ds_read_b32 v13, v12
s_waitcnt lgkmcnt(0)
v_readfirstlane_b32 s60, v13
s_cmp_ge_u32 s60, {target}""")
    if sleep: A(f"s_cbranch_scc1 {L2}\ns_sleep {sleep}\ns_branch {L}\n{L2}:")
    else: A(f"s_cbranch_scc0 {L}")
def lds_sync(addr, target, sleep=0):
    A("s_waitcnt lgkmcnt(0)"); lds_add(addr); lds_wait(addr, target, sleep, False)
def arrive(cnt, skip):
    A(f"""s_waitcnt vmcnt(0)
v_mov_b32 v12, {cnt}
v_mov_b32 v13, 1
s_mov_b64 exec, 1
ds_add_rtn_u32 v13, v12, v13
s_mov_b64 exec, -1
s_waitcnt lgkmcnt(0)
v_readfirstlane_b32 s60, v13
s_cmp_lg_u32 s60, 3
s_cbranch_scc1 {skip}""")
def flagstore(soff, nrep, repstride, t=40, val=None):
    val = val or f"s{TAG}"
    if not OPT["fl"]:
        A(f"""v_mul_u32_u24 v12, {repstride}, v0
v_mov_b32 v13, {val}
s_mov_b64 exec, {(1<<nrep)-1}
buffer_store_dword v13, v12, {W}, {soff} offen {SC}
s_mov_b64 exec, -1""")
        return
    A(f"""v_lshrrev_b32 v12, 3, v0
v_mul_u32_u24 v12, {repstride}, v12
v_and_b32 v13, 7, v0
v_lshl_add_u32 v12, v13, 4, v12""")
    for i in range(4): A(f"v_mov_b32 v{t+i}, {val}")
    if nrep < 8: A(f"s_mov_b64 exec, {(1<<(8*nrep))-1}")
    A(f"buffer_store_dwordx4 {vr(t,4)}, v12, {W}, {soff} offen {SC}")
    if nrep < 8: A("s_mov_b64 exec, -1")
def publish(cnt, soff, nrep, repstride):
    L = A.lab("pub")
    arrive(cnt, L); flagstore(f"s{soff}", nrep, repstride); lds_add(C_X); A(f"{L}:")
def acquire(rel, body, sleep, sleep2=1):
    LP, LD, LO, LE = A.lab("poll"), A.lab("pollok"), A.lab("pollw"), A.lab("polle")
    A(f"s_cmp_lg_u32 s40, 0\ns_cbranch_scc1 {LO}\ns_mov_b32 s61, {SPIN}\n{LP}:")
    body()
    A(f"""s_cbranch_vccz {LD}
s_sub_u32 s61, s61, 1
s_cmp_eq_u32 s61, 0
s_cbranch_scc1 {LD}
s_sleep {sleep}
s_branch {LP}
{LD}:""")
    lds_add(rel)
    A(f"s_branch {LE}\n{LO}:")
    lds_wait(rel, 1, sleep2)
    A(f"{LE}:")
def spin(load, reg, sleep):
    LP, LD = A.lab("spin"), A.lab("spinok")
    A(f"""s_mov_b32 s61, {SPIN}
{LP}:
{load}
s_waitcnt vmcnt(0)
v_cmp_ne_u32 vcc, s{TAG}, v{reg}
s_cbranch_vccz {LD}
s_sub_u32 s61, s61, 1
s_cmp_eq_u32 s61, 0
s_cbranch_scc1 {LD}
s_sleep {sleep}
s_branch {LP}
{LD}:""")
def gettag():
    if OPT["wsb"]: A(f"s_add_u32 s24, s24, {OPT['wsb'] << 20}\ns_addc_u32 s25, s25, 0")
    A(f"s_load_dword s{TAG}, s[24:25], {EPOCH_OFF}")
    srd(SWS, P_WS, WS_USED)
def fixtag():
    A(f"s_waitcnt lgkmcnt(0)\ns_add_u32 s{TAG}, s{TAG}, {TAGC}")

FIN, END, ATT, PUB1, HELP2, GEN = "L_fin", "L_end", "L_att", "L_pub1", "L_help2", "L_gen"
LA1, LB1C, LB1G, LA1C, LV, LN, LFB = "L_a1", "L_b1c", "L_b1g", "L_a1c", "L_b1v", "L_norm", "L_fallback"
K = NAME + "_kernel"

def entry():
    A(f".globl {K}\n.p2align 8\n.type {K},@function\n{K}:")
    A(f"""s_cmp_ge_u32 s2, 256
s_cbranch_scc1 {FIN}
s_load_dwordx16 s[8:23], s[0:1], 0
s_load_dwordx2 s[24:25], s[0:1], 64
v_lshrrev_b32 v1, 6, v0
v_readfirstlane_b32 s3, v1
v_and_b32 v0, 63, v0""")
    if STAMPS:
        for i in range(2, 14): A(f"s_mov_b32 s{64+2*i}, 0")
        A("s_memtime s[64:65]\ns_memrealtime s[66:67]")
    if OPT["pf"]:
        L = A.lab("pf"); LP = A.lab("pc")
        A(f"""s_cmp_lg_u32 s3, 3
s_cbranch_scc1 {L}
s_getpc_b64 s[56:57]
{LP}:
s_bfe_u32 s58, s2, 0x20003
s_lshl_b32 s58, s58, 13
v_lshlrev_b32 v1, 7, v0
v_add_u32 v1, s58, v1
v_min_u32 v1, {FIN}-{LP}, v1
global_load_dword v255, v1, s[56:57]
{L}:""")
    A(f"""s_and_b32 s4, s2, 7
s_lshr_b32 s5, s2, 3
s_lshl_b32 s6, s4, 1
s_and_b32 s7, s5, 1
s_or_b32 s6, s6, s7
s_lshr_b32 s7, s5, 1
s_and_b32 s40, s3, 3
s_cmp_ge_u32 s7, 11
s_cbranch_scc1 {LA1}
s_cmp_lt_u32 s3, 4
s_cbranch_scc1 {LB1C}""")

def xaddr(rs):
    A(f"""v_lshrrev_b32 v1, 3, v0
v_and_b32 v14, 7, v0
v_lshrrev_b32 v15, 4, v0
v_xor_b32 v14, v14, v15
v_lshlrev_b32 v14, 4, v14
v_xor_b32 v16, 64, v14
v_mul_u32_u24 v1, {rs}, v1
v_add_u32 v2, v1, v14
v_add_u32 v3, v1, v16
v_add_u32 v3, {8*rs-1024}, v3
v_add_u32 v4, {2*(8*rs-1024)}, v2
v_add_u32 v5, {2*(8*rs-1024)}, v3""")
def b1_loader():
    A("s_setprio 3")
    if OPT["rot"] == 2: A("s_mov_b32 s26, s7")
    elif OPT["rot"] == 3: A("s_and_b32 s26, s6, 1\ns_mul_i32 s26, s26, 3\ns_add_u32 s26, s26, s7")
    elif OPT["rot"] == 4: A("s_and_b32 s26, s6, 1\ns_mul_i32 s26, s26, 3")
    elif OPT["rot"] == 5: A("s_lshr_b32 s26, s6, 1\ns_add_u32 s26, s26, s7")
    else: A("s_add_u32 s26, s6, s7")
    mod7(26, 27)
    if not OPT["rot"]: A("s_mov_b32 s26, 0")
    xaddr(896)
    A(f"""v_and_b32 v14, 15, v0
v_lshlrev_b32 v16, 2, v15
v_xor_b32 v14, v14, v16
v_lshlrev_b32 v14, 4, v14
v_mul_u32_u24 v15, 2688, v15
v_add_u32 v6, v14, v15
v_add_u32 v7, {4*2688-1024}, v6
v_add_u32 v8, {2*(4*2688-1024)}, v6
v_add_u32 v9, {3*(4*2688-1024)}, v6
s_lshl_b32 s41, s6, 2
s_add_u32 s47, s41, s40
s_mul_i32 s41, s47, {32*896}     ; x base
s_mul_i32 s42, s40, {16*2688}
s_lshl_b32 s43, s7, 8
s_add_u32 s42, s42, s43          ; w base
s_lshl_b32 s44, s40, 12
s_waitcnt lgkmcnt(0)""")
    srd(SX, P_BX, X_BYTES); srd(SW, P_WQKV, WQKV_BYTES)
    def issue():
        A(f"""s_lshl_b32 s45, s26, 7
s_add_u32 s45, s45, s41
s_mul_i32 s46, s26, {64*2688}
s_add_u32 s46, s46, s42
s_mov_b32 m0, s44""")
        for i in range(4): A(f"buffer_load_dwordx4 v{2+i}, {sr(SX,4)}, s45 offen offset:{1024*i} lds")
        A(f"s_add_u32 m0, s44, 16384")
        for i in range(4): A(f"buffer_load_dwordx4 v{6+i}, {sr(SW,4)}, s46 offen offset:{1024*i} lds")
        A("""s_add_u32 s26, s26, 1
s_cmp_eq_u32 s26, 7
s_cselect_b32 s26, 0, s26
s_add_u32 s44, s44, 0x8000
s_and_b32 s44, s44, 0x1ffff""")
    LL = A.lab("b1ld")
    issue(); gettag()
    A(f"s_mov_b32 s48, 6\n{LL}:")
    if OPT["x"] != 2: issue()
    else: A("s_waitcnt vmcnt(0)")
    A("s_waitcnt vmcnt(8)")
    if STAMPS:
        LX = A.lab("st"); A(f"s_cmp_lg_u32 s48, 6\ns_cbranch_scc1 {LX}"); stamp(2); A(f"{LX}:")
    A(f"""s_barrier
s_sub_u32 s48, s48, 1
s_cmp_lg_u32 s48, 0
s_cbranch_scc1 {LL}""")
    fixtag()
    A("s_waitcnt vmcnt(0)")
    stamp(3)
    A(f"s_barrier\ns_branch {ATT}")

def a1_dispatch_loader():
    A(f"""{LA1}:
s_sub_u32 s5, s7, 11           ; g5
s_mul_i32 s26, s5, 3
s_lshr_b32 s26, s26, 1         ; e0 in 0,1,3,4,6""")
    if not OPT["rot"]: A("s_mov_b32 s26, 0")
    A(f"s_cmp_lt_u32 s3, 4\ns_cbranch_scc1 {LA1C}\ns_setprio 3")
    xaddr(64*896)
    A(f"""s_lshl_b32 s41, s6, 2
s_add_u32 s41, s41, s40
s_mul_i32 s41, s41, 896
s_lshl_b32 s44, s40, 12
s_lshl_b32 s26, s26, 2
s_add_u32 s26, s26, 3""")
    mod7(26, 27)
    A("s_waitcnt lgkmcnt(0)")
    srd(SX, P_AX, X_BYTES)
    gettag()
    LL, LS = A.lab("a1ld"), A.lab("a1lds")
    A(f"""s_mov_b32 s48, 0
{LL}:
s_lshl_b32 s45, s26, 7
s_add_u32 s45, s45, s41
s_lshl_b32 s46, s26, 14
s_add_u32 m0, s44, s46""")
    for i in range(4): A(f"buffer_load_dwordx4 v{2+i}, {sr(SX,4)}, s45 offen offset:{1024*i} lds")
    A(f"""s_add_u32 s26, s26, 4
s_sub_u32 s27, s26, 7
s_cmp_ge_u32 s26, 7
s_cselect_b32 s26, s27, s26
s_add_u32 s48, s48, 1
s_cmp_lt_u32 s48, 4
s_cbranch_scc1 {LL}
s_waitcnt vmcnt(8)
s_barrier
s_cmp_lt_u32 s48, 7
s_cbranch_scc1 {LL}""")
    fixtag()
    A("s_waitcnt vmcnt(4)\ns_barrier\ns_waitcnt vmcnt(0)")
    stamp(3)
    A(f"s_barrier\ns_branch {ATT}")

def main_start():
    A(f"""v_lshlrev_b32 v1, 4, v0
v_add_u32 v1, {CNT+12}, v1
v_mov_b32 v2, 0
ds_write_b32 v1, v2""")

C, ER, EI, G, GT = 128, 160, 176, 192, 16
def tlbwarm():
    g = OPT["tw"]
    if not g: return
    L = A.lab("tw")
    n = (WS_USED >> g) // 32 + 1
    A(f"""s_cmp_lg_u32 s3, 2
s_cbranch_scc1 {L}
s_lshr_b32 s60, s2, 3
s_mul_i32 s60, s60, {n << g}
v_lshlrev_b32 v12, {g}, v0""")
    for i in range(0, n, 64):
        k = min(64, n - i)
        if k < 64: A(f"s_bfm_b64 exec, {k}, 0")
        A(f"buffer_load_dword v255, v12, {W}, s60 offen offset:64")
        if i + 64 < n: A(f"s_add_u32 s60, s60, {64 << g}")
    A("s_mov_b64 exec, -1")
    m = (W_BYTES >> g) // 32 + 1
    srd(28, P_WR, W_BYTES); srd(32, P_WI, W_BYTES)
    A(f"""s_lshr_b32 s60, s2, 3
s_mul_i32 s60, s60, {m << g}
s_bfm_b64 exec, {m}, 0
buffer_load_dword v255, v12, s[28:31], s60 offen
buffer_load_dword v255, v12, s[32:35], s60 offen
s_mov_b64 exec, -1
{L}:""")
def prewrite():
    tlbwarm()
    if OPT["pw"] < 2: return
    L = A.lab("pw")
    A(f"""s_cmp_lg_u32 s3, 3
s_cbranch_scc1 {L}
s_sub_u32 s60, s{TAG}, {TAGC}
s_lshl_b32 s61, s7, 4
s_add_u32 s61, s61, s6
s_lshl_b32 s61, s61, 7
s_add_u32 s61, s61, {F1_OFF}""")
    flagstore("s61", OPT["r1"], 32768, 40, "s60")
    A(f"{L}:")
def gen_common():
    A(f"""v_and_b32 v14, 31, v0
v_lshrrev_b32 v15, 5, v0
s_lshr_b32 s50, s2, 5
s_lshl_b32 s50, s50, 3
s_or_b32 s50, s50, s4
s_bfe_u32 s51, s2, 0x20003       ; d quarter
s_and_b32 s52, s40, 1            ; parity e""")
def rot_gen(n, nblk, step, base, mult, dmult, out, scale=None):
    c, sn, t = GT, GT+8, GT+16
    A(f"v_mul_f32 v11, {f32(float(dmult))}, v{step}")
    for j in range(n): A(f"v_fmamk_f32 v{t+j}, v{step}, {f32(float(mult[j]))}, v{base}")
    A("v_cos_f32 v10, v11\nv_sin_f32 v12, v11")
    for j in range(n): A(f"v_cos_f32 v{c+j}, v{t+j}\nv_sin_f32 v{sn+j}, v{t+j}")
    A("v_mov_b32 v11, v10\nv_mov_b32 v13, v12")
    if scale is not None:
        for j in range(n): A(f"v_mul_f32 v{c+j}, {f32(scale)}, v{c+j}\nv_mul_f32 v{sn+j}, {f32(scale)}, v{sn+j}")
    for b in range(nblk):
        out(b)
        if b + 1 < nblk:
            for j in range(0, n, 2): A(f"v_pk_mul_f32 {vr(t+j,2)}, {vr(sn+j,2)}, v[12:13]")
            for j in range(0, n, 2): A(f"v_pk_mul_f32 {vr(sn+j,2)}, {vr(sn+j,2)}, v[10:11]")
            for j in range(0, n, 2): A(f"v_pk_fma_f32 {vr(sn+j,2)}, {vr(c+j,2)}, v[12:13], {vr(sn+j,2)}")
            for j in range(0, n, 2): A(f"v_pk_fma_f32 {vr(c+j,2)}, {vr(c+j,2)}, v[10:11], {vr(t+j,2)} neg_lo:[0,0,1] neg_hi:[0,0,1]")
def gen_c():
    A(f"""v_lshrrev_b32 v8, 1, v14
s_lshl_b32 s43, s40, 4
v_add_u32 v8, s43, v8
v_cvt_f32_u32 v8, v8
v_mul_f32 v8, {f32(1/64)}, v8    ; step = u2/64
v_and_b32 v9, 1, v14
v_cvt_f32_u32 v9, v9
v_mul_f32 v9, {f32(0.25)}, v9
v_lshlrev_b32 v10, 1, v15
v_cvt_f32_u32 v10, v10
v_fma_f32 v9, v8, v10, v9        ; base""")
    def out(f):
        for p in range(4): A(f"v_cvt_pk_bf16_f32 v{C+4*f+p}, v{GT+p}, v{GT+8+p}")
    rot_gen(4, 8, 8, 9, [0,1,4,5], 8, out)
def gen_e():
    A(f"""v_lshlrev_b32 v8, 6, v14
v_add_u32 v8, s50, v8
v_cvt_f32_u32 v8, v8
v_mul_f32 v8, {f32(1/2048)}, v8
v_lshlrev_b32 v9, 2, v15
v_cvt_f32_u32 v9, v9
v_mul_f32 v9, v8, v9""")
    def out(f):
        for p in range(4): A(f"v_cvt_pk_bf16_f32 v{ER+4*f+p}, v{GT+p}, -v{GT+8+p}")
        for p in range(4): A(f"v_cvt_pk_bf16_f32 v{EI+4*f+p}, v{GT+8+p}, v{GT+p}")
    rot_gen(4, 4, 8, 9, [0,1,2,3], 8, out, 2.0/(2048*448))
def gen_g():
    A(f"""s_lshr_b32 s44, s40, 1
s_lshl_b32 s45, s51, 1
s_add_u32 s44, s44, s45         ; d tile
s_lshl_b32 s46, s44, 5
v_add_u32 v8, s46, v14          ; d
v_cvt_f32_u32 v8, v8
v_mul_f32 v8, {f32(1/448)}, v8
v_lshlrev_b32 v9, 3, v15
v_add_u32 v9, s52, v9
v_cmp_eq_u32 vcc, 0, v9
v_cvt_f32_u32 v9, v9
v_mul_f32 v9, v8, v9""")
    def out(t):
        for j in range(4): A(f"v_cvt_pk_bf16_f32 v{G+8*t+j}, v{GT+2*j}, v{GT+2*j+1}")
        for j in range(4): A(f"v_cvt_pk_bf16_f32 v{G+8*t+4+j}, -v{GT+8+2*j}, -v{GT+9+2*j}")
    rot_gen(8, 7, 8, 9, [16*(j>>2)+2*(j&3) for j in range(8)], 32, out)
    A(f"""v_and_b32 v8, 0xffff0000, v{G}
v_or_b32 v8, 0x3f00, v8
v_and_b32 v10, 1, v14
v_lshlrev_b32 v10, 15, v10
v_cndmask_b32 v{G}, v{G}, v8, vcc
v_and_b32 v8, 0xffff, v8
v_and_b32 v9, 0xffff0000, v{G+4}
v_or3_b32 v9, v9, v10, v8
v_cndmask_b32 v{G+4}, v{G+4}, v9, vcc""")
def gen_pre():
    gen_common()
    A(f"{GEN}:")
    gen_c(); gen_e()
    A(f"s_cmp_ge_u32 s7, 11\ns_cbranch_scc1 {HELP2}")

ACC = 64
def acc(a, b): return ACC + 32*a + 16*b
def b1_body(vtype):
    if vtype: pi32(48, 14, 49)
    else: A("v_mov_b32 v48, v14")
    A(f"""v_lshrrev_b32 v49, 1, v48
v_and_b32 v49, 7, v49
v_xor_b32 v49, v49, v15
v_lshlrev_b32 v49, 4, v49
v_lshl_or_b32 v50, v48, 7, v49
s_lshl_b32 s43, s41, 13
v_add_u32 v52, s43, v50
v_xor_b32 v53, 32, v52
v_xor_b32 v54, 64, v52
v_xor_b32 v55, 96, v52""")
    A(f"""v_bfe_u32 v48, v0, 2, 2        ; rr
v_and_b32 v49, 3, v0           ; cc""")
    if not vtype:
        A("""v_lshrrev_b32 v50, 1, v49
v_and_b32 v49, 1, v49
v_lshl_or_b32 v49, v49, 1, v50 ; sigma(cc)""")
    A(f"""v_bfe_u32 v50, v0, 4, 1        ; colhalf
v_lshlrev_b32 v50, 5, v50
v_lshl_or_b32 v50, v49, 3, v50
s_lshl_b32 s43, s42, 7
v_or_b32 v50, s43, v50
v_lshlrev_b32 v51, 6, v48
v_xor_b32 v50, v50, v51
v_lshl_add_u32 v51, v15, 3, v48 ; 8h+rr
v_lshl_or_b32 v56, v51, 8, v50
v_add_u32 v56, 16384, v56
v_xor_b32 v57, 64, v56""")
    A(f"""s_lshl_b32 s46, s6, 2
s_lshl_b32 s47, s41, 1
s_add_u32 s46, s46, s47
s_lshl_b32 s47, s7, 2
s_lshl_b32 s48, s42, 1
s_add_u32 s47, s47, s48""")
    if not vtype:
        A(f"""s_lshl_b32 s48, s47, 11
v_lshlrev_b32 v2, 4, v0
s_cmp_ge_u32 s47, 14
s_cselect_b32 s49, {KV_REC - QK_TILE}, 0
s_cselect_b32 s43, {KV_OFF - Q_OFF - 14*2048}, 0
s_cselect_b32 s54, 1.0, {f32(QSCALE)}
s_mov_b32 s55, s54
s_add_u32 s49, s49, {QK_TILE}
s_mul_i32 s46, s46, s49
s_add_u32 s46, s46, s48
s_add_u32 s46, s46, s43
s_add_u32 s46, s46, {Q_OFF}
s_add_u32 s49, s46, s49""")
    else:
        A(f"""s_sub_u32 s45, s7, 7
s_lshl_b32 s45, s45, 7
s_add_u32 s45, s45, 27
s_mul_i32 s45, s45, 2341
s_lshr_b32 s45, s45, 16
v_lshrrev_b32 v10, 4, v0
v_add_u32 v10, s45, v10
v_lshrrev_b32 v11, 2, v0
v_lshlrev_b32 v11, 9, v11
s_lshl_b32 s45, s45, 11
v_add_u32 v11, s45, v11
v_cmp_gt_u32 s[56:57], 16, v10
v_and_b32 v4, 3, v0
v_lshl_or_b32 v4, v4, 4, v11
s_cmp_lt_u32 s7, 9
s_cselect_b32 s58, 0xffff, 0
s_mov_b32 s59, 0
s_lshl_b32 s54, s6, 2
s_add_u32 s54, s54, s40
s_mul_i32 s54, s54, {KV_REC}
s_add_u32 s54, s54, {KV_OFF + QK_TILE + 28*16}
s_add_u32 s55, s54, 8192
v_mov_b32 v58, 0x3f803f80
v_mov_b32 v59, 0x3f803f80
v_mov_b32 v60, 0x3f803f80
v_mov_b32 v61, 0x3f803f80
s_sub_u32 s47, s47, 28
s_mul_i32 s46, s46, {KV_REC}
s_add_u32 s46, s46, {KV_OFF + QK_TILE}
s_add_u32 s49, s46, {KV_REC}
s_lshl_b32 s48, s47, 5""")
        for b in range(2):
            A(f"""v_add_u32 v48, s48, v14
v_add_u32 v48, {32*b}, v48
v_mul_u32_u24 v49, 2341, v48
v_lshrrev_b32 v49, 16, v49     ; head
v_mul_u32_u24 v50, 28, v49
v_sub_u32 v48, v48, v50        ; d
v_lshlrev_b32 v48, 4, v48
v_lshl_or_b32 v48, v15, 9, v48
v_lshl_or_b32 v{2+b}, v49, 11, v48""")
        A(f"""s_cmp_ge_u32 s47, 14
s_cselect_b32 s46, {WS_USED}, s46
s_cselect_b32 s49, {WS_USED}, s49""")
    SETS = (16, 32, 192, 208)
    def rx(kap, p, a): return f"ds_read_b128 {vr(SETS[p]+4*a,4)}, v{6+kap} offset:{4096*a}"
    def rw(kap, p, b): return [f"ds_read_b64_tr_b16 {vr(SETS[p]+8+4*b+2*u,2)}, v{10+b} offset:{(16*kap+4*u)*256}" for u in range(2)]
    def rdlist(kap, p): return [rx(kap,p,0)] + rw(kap,p,0) + rw(kap,p,1) + [rx(kap,p,1)]
    def setaddr(): return [f"v_add_u32 v{6+i}, s44, v{52+i}" for i in range(6)]
    def mf(a, b, p):
        x, w = vr(SETS[p]+4*a,4), vr(SETS[p]+8+4*b,4)
        o = (x, w) if vtype else (w, x)
        A(f"{MFMA} {vr(acc(a,b),16)}, {o[0]}, {o[1]}, {vr(acc(a,b),16)}")
    gb = []
    def fill(n):
        for _ in range(n):
            if gb:
                for x in gb.pop(0): A(x)
    def kstep(p, r, f):
        A("s_waitcnt lgkmcnt(3)")
        mf(0,0,p)
        for x in r[0:3]: A(x)
        fill(f[0])
        A("s_waitcnt lgkmcnt(4)")
        mf(0,1,p)
        for x in r[3:5]: A(x)
        fill(f[1])
        A("s_waitcnt lgkmcnt(5)")
        mf(1,0,p)
        for x in r[5:6]: A(x)
        fill(f[2])
        mf(1,1,p)
        if OPT["bn"]: A(f"s_nop {OPT['bn']}")
        fill(f[3])
    LL = A.lab("b1loop")
    A("s_mov_b32 s44, 0\ns_mov_b32 s45, 0")
    for x in setaddr(): A(x)
    prewrite()
    stampw(9)
    A("s_barrier")
    stampw(2)
    for x in rdlist(0, 0): A(x)
    A(f"{LL}:")
    kstep(0, rdlist(1, 1), (0,1,2,3))
    kstep(1, rdlist(2, 0), (0,1,2,3))
    A("s_add_u32 s44, s44, 0x8000\ns_and_b32 s44, s44, 0x1ffff\ns_add_u32 s45, s45, 1")
    kstep(0, rdlist(3, 1), (1,1,2,0))
    for x in setaddr(): A(x)
    A("s_barrier")
    kstep(1, rdlist(0, 0), (1,1,1,1))
    assert not gb
    A(f"s_cmp_lt_u32 s45, 6\ns_cbranch_scc1 {LL}")
    if OPT["x"] in (2, 3): A("s_memtime s[84:85]\ns_waitcnt lgkmcnt(0)")
    rd = []
    for kap in (1,2,3): rd += [rx(kap,kap,0)] + rw(kap,kap,0)
    for kap in (1,2,3): rd += rw(kap,kap,1)
    for kap in (1,2,3): rd += [rx(kap,kap,1)]
    order = [rdlist(0,0)[i] for i in range(6)] + rd
    def epi(a, b):
        e = []; t = acc(a,b)
        for i in range(8):
            if not vtype: e.append(f"v_pk_mul_f32 {vr(t+2*i,2)}, {vr(t+2*i,2)}, s[54:55]")
            e.append(f"v_cvt_pk_bf16_f32 v{t+i}, v{t+2*i}, v{t+2*i+1}" if OPT["x"] != -10 else f"v_mov_b32 v{t+i}, 0")
            if i & 3 == 3:
                if OPT["sd"] and (a, b, i) == (0, 0, 3): e.append(f"s_sleep {OPT['sd']}")
                if OPT["sp"]: e.append(f"s_sleep {OPT['sp']}")
                if vtype: e.append(f"buffer_store_dwordx4 {vr(t+i-3,4)}, v{2+b}, {W}, s{46 if a==0 else 49} offen offset:{1024*(i>>2)} {SC}")
                else: e.append(f"buffer_store_dwordx4 {vr(t+i-3,4)}, v2, {W}, s{46 if a==0 else 49} offen offset:{2048*b+1024*(i>>2)} {SC}")
        return e
    issued = 6; pend = []; lastw = None
    tiles = [(a,b) for a in range(2) for b in range(2)]
    seq = [(a,b,0) for a,b in tiles] + [(a,b,k) for a,b in tiles for k in (1,2,3)]
    for m, (a, b, kap) in enumerate(seq):
        need = max(order.index(x) for x in [rx(kap,kap,a)] + rw(kap,kap,b)) + 1
        while issued < need: A(order[issued]); issued += 1
        if lastw is None or need > lastw:
            A(f"s_waitcnt lgkmcnt({issued - need})"); lastw = need
        mf(a, b, kap)
        for _ in range(3):
            if issued < len(order) and issued - lastw < 14: A(order[issued]); issued += 1
        if m in (8, 11, 14): pend += epi(*tiles[(m-8)//3])
        if m == 15: stamp(3)
        for _ in range(6 if not vtype else 4):
            if pend: A(pend.pop(0))
    for x in pend + epi(1,1): A(x)
    if vtype:
        LO = A.lab("ones")
        A(f"""s_mov_b64 exec, s[56:57]
buffer_store_dwordx4 v[58:61], v4, {W}, s54 offen {SC}
s_mov_b64 exec, s[58:59]
s_cbranch_execz {LO}
buffer_store_dwordx4 v[58:61], v4, {W}, s55 offen {SC}
{LO}:
s_mov_b64 exec, -1""")
    A(f"s_branch {PUB1}")
def b1_compute():
    A(f"""s_and_b32 s41, s3, 1           ; wr
s_lshr_b32 s42, s3, 1          ; wc""")
    fixtag()
    A(f"s_cmp_ge_u32 s7, 7\ns_cbranch_scc1 {LV}")
    b1_body(False)
    A(f"{LV}:")
    b1_body(True)

def a1_gen():
    LF, LE = A.lab("fgen"), A.lab("fend")
    A(f"{LA1C}:\ns_setprio 2")
    gen_common()
    pi32(48, 14, 49)
    A(f"""v_lshlrev_b32 v61, 4, v0
v_add_u32 v61, {FOFF}, v61""")
    main_start()
    A(f"""v_lshrrev_b32 v48, 1, v48       ; k_local
s_mul_i32 s41, s5, 3
s_add_u32 s41, s41, s3
s_lshl_b32 s41, s41, 4
v_add_u32 v48, s41, v48
v_cvt_f32_u32 v48, v48
v_mul_f32 v56, {f32(1/448)}, v48 ; k/448
v_and_b32 v48, 1, v14
v_cvt_f32_u32 v48, v48
v_mul_f32 v59, {f32(0.25)}, v48  ; c/4
v_lshlrev_b32 v60, 3, v15
v_cvt_f32_u32 v60, v60
v_fma_f32 v59, v56, v60, v59
v_mul_f32 v58, {f32(16.0)}, v56
v_cos_f32 v58, v58
s_mul_i32 s41, s3, 14336
v_add_u32 v53, s41, v61""")
    for j in range(16): A(f"v_fmamk_f32 v{16+j}, v56, {f32(float(16*(j>>3)+(j&7)))}, v59")
    A("v_add_f32 v58, v58, v58")
    for j in range(16): A(f"v_cos_f32 v{16+j}, v{16+j}")
    A("s_waitcnt lgkmcnt(0)")
    gettag()
    A(f"s_cmp_eq_u32 s3, 3\ns_cbranch_scc1 {LE}\nv_mov_b32 v59, v58\ns_mov_b32 s42, 7\n{LF}:")
    for u in range(2):
        for j in range(4): A(f"v_cvt_pk_bf16_f32 v{32+4*u+j}, v{16+8*u+2*j}, v{17+8*u+2*j}")
        A(f"ds_write_b128 v53, {vr(32+4*u,4)} offset:{1024*u}")
        for j in range(4):
            a, b = 16+8*u+2*j, 16+8*(u^1)+2*j
            A(f"v_pk_fma_f32 {vr(a,2)}, {vr(b,2)}, v[58:59], {vr(a,2)} neg_lo:[0,0,1] neg_hi:[0,0,1]") if u == 0 else None
    for j in range(4):
        a, b = 24+2*j, 16+2*j
        A(f"v_pk_fma_f32 {vr(a,2)}, {vr(b,2)}, v[58:59], {vr(a,2)} neg_lo:[0,0,1] neg_hi:[0,0,1]")
    A(f"""v_add_u32 v53, 2048, v53
s_sub_u32 s42, s42, 1
s_cmp_lg_u32 s42, 0
s_cbranch_scc1 {LF}
{LE}:""")
def a1_compute():
    A(f"""s_lshl_b32 s41, s6, 2
s_add_u32 s41, s41, s3          ; s2 index
v_lshlrev_b32 v5, 8, v15
v_add_u32 v5, s41, v5
v_mul_u32_u24 v5, v14, v5
v_cvt_f32_u32 v5, v5
v_mul_f32 v5, {f32(1/2048)}, v5
v_cvt_f32_u32 v6, v14
v_mul_f32 v6, {f32(1/32)}, v6
v_lshrrev_b32 v49, 1, v14
v_and_b32 v49, 7, v49
v_xor_b32 v49, v49, v15
v_lshlrev_b32 v49, 4, v49
v_lshl_or_b32 v62, v14, 7, v49
s_lshl_b32 s43, s3, 12
v_add_u32 v62, s43, v62
v_and_b32 v3, 2, v14
v_lshlrev_b32 v3, 30, v3
v_or_b32 v3, 1.0, v3            ; (-1)^k
v_mov_b32 v2, v3
v_lshlrev_b32 v4, 4, v0
s_mul_i32 s47, s41, {T_ROW}
s_mul_i32 s42, s5, 6144
s_add_u32 s47, s47, s42
s_add_u32 s47, s47, {T_OFF}
s_add_u32 s48, s47, 2048
s_add_u32 s49, s47, 4096""")
    egen = []
    for i in range(2):
        for j in range(8): egen.append(f"v_fmamk_f32 v{176+j}, v6, {f32(float(16*i+8*(j>>2)+(j&3)))}, v5")
        for j in range(8): egen.append(f"v_cos_f32 v{184+j}, v{176+j}")
        for j in range(8): egen.append(f"v_sin_f32 v{192+j}, v{176+j}")
        for j in range(4): egen.append(f"v_cvt_pk_bf16_f32 v{160+4*i+j}, v{184+2*j}, v{185+2*j}")
        for j in range(4): egen.append(f"v_cvt_pk_bf16_f32 v{168+4*i+j}, -v{192+2*j}, -v{193+2*j}")
    A(f"s_mul_i32 s27, s26, 8256")
    def a1salu(adv=True):
        r = []
        if adv: r += ["s_add_u32 s27, s27, 8256", f"s_cmp_eq_u32 s27, {7*8256}", "s_cselect_b32 s27, 0, s27"]
        return r + ["s_and_b32 s43, s27, 0x1c040", f"s_add_u32 s44, s27, {7*8256}", "s_and_b32 s44, s44, 0x1c040",
                    "s_lshr_b32 s46, s27, 2", "s_and_b32 s46, s46, 0x7800"]
    a1valu = ["v_xor_b32 v8, s43, v62", "v_xor_b32 v10, s44, v62", "v_xor_b32 v9, 32, v8", "v_xor_b32 v11, 32, v10", "v_add_u32 v12, s46, v61"]
    def a1rd(t):
        b = 16 + 20*t
        return ([f"ds_read_b128 {vr(b,4)}, v{8+t}"] +
                [f"ds_read_b128 {vr(b+8+4*kgi,4)}, v12 offset:{1024*t+14336*kgi}" for kgi in range(3)] +
                [f"ds_read_b128 {vr(b+4,4)}, v{10+t}"])
    def a1step(t, nxt, first=False, fill=0, adv=False):
        b = 16 + 20*t
        r = list(nxt); issued = 0
        sa = a1salu() if adv else []; va = list(a1valu) if adv else []
        for m in range(6):
            hi, kgi = m // 3, m % 3
            need = (2, 3, 4, 5, 5, 5)[m]
            if not nxt: hi, kgi, need = m % 2, m // 2, (2, 5, 5, 5, 5, 5)[m]
            if m < (4 if nxt else 2): A(f"s_waitcnt lgkmcnt({5 - need + issued})")
            d = 64 + 32*kgi + 16*hi
            A(f"{MFMA} {vr(d,16)}, {vr(b+4*hi,4)}, {vr(b+8+4*kgi,4)}, {0 if first else vr(d,16)}")
            for _ in range(2 if m == 0 else 1):
                if r: A(r.pop(0)); issued += 1
            if m in (1, 2, 3):
                for _ in range(3):
                    if sa: A(sa.pop(0))
            if m == 4:
                while va: A(va.pop(0))
            for _ in range(fill if not (adv and m in (1,2,3,4)) else fill // 2):
                if egen: A(egen.pop(0))
    LL, LS, LNB = A.lab("a1loop"), A.lab("a1last"), A.lab("a1nb")
    for x in a1salu(False) + a1valu: A(x)
    fixtag()
    prewrite()
    for x in a1valu[4:]: A(x)
    stampw(9)
    A("s_barrier")
    stampw(2)
    if OPT["ad"]: A(f"s_sleep {OPT['ad']}")
    for x in a1rd(0): A(x)
    for n in range(3):
        a1step(0, a1rd(1), n == 0, 2, True)
        A("s_barrier")
        a1step(1, a1rd(0), False, 3)
    assert not egen
    A(f"s_mov_b32 s45, 3\n{LL}:")
    a1step(0, a1rd(1), adv=True)
    A(f"""s_add_u32 s45, s45, 1
s_cmp_eq_u32 s45, 7
s_cbranch_scc1 {LS}
s_cmp_eq_u32 s45, 6
s_cbranch_scc1 {LNB}
s_barrier
{LNB}:""")
    a1step(1, a1rd(0))
    A(f"s_branch {LL}\n{LS}:")
    a1step(1, [])
    stamp(3)
    def s1(kgi):
        P, Q = 64+32*kgi, 80+32*kgi
        e = []
        for i in range(8):
            e.append(f"v_pk_fma_f32 {vr(P+2*i,2)}, {vr(Q+2*i,2)}, v[2:3], {vr(P+2*i,2)}")
            e.append(f"v_cvt_pk_bf16_f32 v{16+8*kgi+i}, v{P+2*i}, v{P+2*i+1}")
        return e
    def mm(kgi):
        P, Q = 64+32*kgi, 80+32*kgi
        return [f"{MFMA} {vr(P,16)}, {vr(16+8*kgi,4)}, v[160:163], 0", f"{MFMA} {vr(Q,16)}, {vr(16+8*kgi,4)}, v[168:171], 0",
                f"{MFMA} {vr(P,16)}, {vr(20+8*kgi,4)}, v[164:167], {vr(P,16)}", f"{MFMA} {vr(Q,16)}, {vr(20+8*kgi,4)}, v[172:175], {vr(Q,16)}"]
    def s2(kgi):
        P, Q = 64+32*kgi, 80+32*kgi
        e = []
        for j in range(8):
            e += [f"v_sub_f32 v{P+2*j}, v{P+2*j}, v{Q+2*j+1}", f"v_add_f32 v{Q+2*j}, v{Q+2*j}, v{P+2*j+1}",
                  f"v_cvt_pk_bf16_f32 v{40+8*kgi+j}, v{P+2*j}, v{Q+2*j}"]
            if j & 3 == 3: e.append(f"buffer_store_dwordx4 {vr(40+8*kgi+j-3,4)}, v4, {W}, s{47+kgi} offen offset:{1024*(j>>2)} {SC}")
        return e
    def weave(ms, vs):
        k = (len(vs) + len(ms) - 1) // len(ms)
        for m in ms:
            A(m)
            for _ in range(k):
                if vs: A(vs.pop(0))
    if OPT["td"]: A(f"s_sleep {OPT['td']}")
    for x in s1(0): A(x)
    weave(mm(0), s1(1)); weave(mm(1), s1(2)); weave(mm(2), s2(0))
    for x in s2(1) + s2(2): A(x)
    LI = A.lab("a1init")
    A(f"""s_cmp_ge_u32 s41, 4
s_cbranch_scc1 {LI}
s_lshl_b32 s42, s5, 2
s_add_u32 s42, s42, s41
s_lshl_b32 s42, s42, 7
s_add_u32 s42, s42, {AT_OFF}
""")
    flagstore("s42", 2, 20*128, 16, "0")
    A(f"{LI}:")

def pub1():
    A(f"""{PUB1}:
s_lshl_b32 s41, s7, 11
s_lshl_b32 s42, s6, 7
s_add_u32 s41, s41, s42
s_add_u32 s41, s41, {F1_OFF}""")
    stamp(4)
    lds_add(C_LF)
    if OPT["gd"]: gen_g()
    publish(C_P1, 41, OPT["r1"], 32768)
    stamp(5)
    if not OPT["gd"]: gen_g()
    A(f"s_cmp_ge_u32 s7, 11\ns_cbranch_scc1 {GEN}")

Q, S, O, KV = 16, 48, 112, 176
OK = O + 48
TB = 8
SO = 32
def q(j,i): return vr(Q+8*j+4*i, 4)
def kb(b,i): return KV+16*b+4*i
def tile_loads(b, so):
    return [f"buffer_load_dwordx4 {vr(kb(b,0),4)}, v1, {W}, s{so} offen {SC}",
            f"buffer_load_dwordx4 {vr(kb(b,1),4)}, v2, {W}, s{so} offen {SC}",
            f"buffer_load_dwordx4 {vr(kb(b,2),4)}, v3, {W}, s{so} offen {SC}",
            f"buffer_load_dwordx4 {vr(kb(b,3),4)}, v3, {W}, s{so} offen offset:1024 {SC}"]
def attention():
    LNY, LNW = A.lab("nyq"), A.lab("now")
    A(f"{ATT}:\ns_setprio 0")
    srd(SX, P_WR, W_BYTES); srd(56, P_WI, W_BYTES)
    A(f"""s_lshr_b32 s5, s2, 3           ; ko
s_mul_i32 s55, s4, {4*450}
s_mul_i32 s43, s40, {512*450}
s_add_u32 s55, s55, s43
s_lshl_b32 s43, s5, 4
s_add_u32 s55, s55, s43
s_cmp_lg_u32 s5, 28
s_cbranch_scc1 {LNY}""")
    srd(SX, P_WI, W_BYTES); srd(56, P_WR, W_BYTES)
    A(f"""s_sub_u32 s55, s55, 14
{LNY}:
s_mov_b32 s63, s5
v_lshrrev_b32 v9, 2, v0
v_and_b32 v10, 3, v0
v_lshl_add_u32 v9, v9, 5, v10
v_mul_u32_u24 v248, 450, v9
s_mov_b32 s51, s7""")
    srd(SO, P_OUT, OUT_BYTES)
    A(f"""s_lshl_b32 s4, s4, 1
s_bfe_u32 s5, s2, 0x10003
s_or_b32 s4, s4, s5            ; head
s_lshr_b32 s5, s2, 4           ; qb
s_mul_i32 s6, s4, 7
s_lshr_b32 s45, s6, 1
s_add_u32 s6, s6, 1
s_lshr_b32 s6, s6, 1
s_lshl_b32 s6, s6, 9
v_lshlrev_b32 v8, 4, v0
v_add_u32 v1, s6, v8
s_bitcmp1_b32 s4, 0
s_cselect_b32 s7, -2040, 0
v_add_u32 v2, 1024, v1
v_add_u32 v6, s7, v2
v_mov_b32 v4, 0x3f80
v_mov_b32_dpp v2, v6 {HI}
s_lshl_b32 s7, s4, 11
s_add_u32 s7, s7, {QK_TILE}
v_and_b32 v9, 30, v0
v_cmp_eq_u32 vcc, 26, v9
v_cmp_eq_u32 s[48:49], 28, v9
s_or_b64 vcc, vcc, s[48:49]
v_xor_b32 v9, 96, v8
v_cndmask_b32 v3, v8, v9, vcc
v_add_u32 v3, s7, v3           ; V offset
v_mov_b32 v5, 0xdddd
v_mov_b32 v7, 0
s_lshl_b32 s45, s45, 3
v_bfe_u32 v9, v0, 2, 1
v_mul_u32_u24 v10, 31, v9
v_add_u32 v10, s45, v10        ; Q column
v_add_u32 v11, 448, v10        ; K column
v_mul_u32_u24 v9, 27, v9
s_mul_i32 s46, s4, 28
s_add_u32 s46, s46, 896
v_add_u32 v9, s46, v9          ; V column
v_lshrrev_b32 v10, 7, v10
v_lshlrev_b32 v10, 11, v10
v_mov_b32_dpp v11, v9 quad_perm:[0,1,2,3] row_mask:0xa bank_mask:0xf
s_lshl_b32 s46, s5, 7
v_add_u32 v10, s46, v10
v_lshrrev_b32 v11, 7, v11
v_lshlrev_b32 v11, 11, v11
v_and_b32 v9, 3, v0
v_lshl_add_u32 v11, v9, 7, v11
s_lshl_b32 s46, s40, 9
v_add_u32 v11, s46, v11
v_mov_b32_dpp v11, v10 {HI}
s_and_b32 s46, s2, {OPT["r1"]-1}
s_lshl_b32 s46, s46, 15
s_add_u32 s46, s46, {F1_OFF}
s_lshl_b32 s43, s5, 2
s_add_u32 s42, s40, s43
s_mul_i32 s42, s42, {QK_TILE}
s_add_u32 s50, s42, {Q_OFF}
s_mul_i32 s47, s40, {16*KV_REC}
s_add_u32 s47, s47, {KV_OFF}""")
    for i in range(16):
        A(f"s_add_u32 s42, s5, {i}\ns_and_b32 s42, s42, 15\ns_mul_i32 s42, s42, {KV_REC}\ns_add_u32 s{TB+i}, s42, s47")
    for j in range(4):
        A(f"""s_add_u32 s42, s40, {j}
s_and_b32 s42, s42, 3
s_lshl_b32 s42, s42, 11
s_add_u32 s42, s42, {QX}
v_add_u32 v{240+j}, s42, v8
s_add_u32 s42, s40, {j+1}
s_and_b32 s42, s42, 3
s_mul_i32 s42, s42, 12288
s_add_u32 s42, s42, {MERGE + (4096*j if j < 3 else 0)}
v_add_u32 v{244+j}, s42, v8""")
    if OPT["pw"]:
        A(f"""s_sub_u32 s60, s{TAG}, {TAGC}
s_add_u32 s41, s40, 3
s_and_b32 s41, s41, 3
s_lshl_b32 s43, s5, 2
s_add_u32 s41, s41, s43
s_lshl_b32 s41, s41, 11
s_lshl_b32 s43, s4, 7
s_add_u32 s41, s41, s43
s_add_u32 s41, s41, {FO_OFF}""")
        flagstore("s41", OPT["ro"], 131072, 40, "s60")
    for i in range(64): A(f"v_mov_b32 v{O+i}, 0")
    lds_wait(C_X, 1, 1)
    A("s_setprio 3")
    stamp(5)
    A(f"""s_cmp_ge_u32 s63, 29
s_cbranch_scc1 {LNW}
s_lshl_b32 s43, s40, 11
s_add_u32 m0, s43, {WX}
s_nop 0
buffer_load_dwordx4 v248, {sr(SX,4)}, s55 offen lds
s_add_u32 m0, s43, {WX+1024}
s_nop 0
buffer_load_dwordx4 v248, s[56:59], s55 offen lds
s_waitcnt vmcnt(0)""")
    lds_add(C_W)
    A(f"{LNW}:")
    stamp(2)
    if OPT["pd"]: A(f"s_sleep {OPT['pd']}")
    if OPT["pda"] > 0:
        LD = A.lab("pda"); A(f"s_cmp_lt_u32 s51, 11\ns_cbranch_scc1 {LD}\ns_sleep {OPT['pda']}\n{LD}:")
    if OPT["pda"] < 0:
        LD = A.lab("pda"); A(f"s_cmp_lt_u32 s51, 11\ns_cbranch_scc1 {LD}"); lds_wait(C_H, 4, 2); A(f"{LD}:")
    spin(f"buffer_load_dword v14, v11, {W}, s46 offen {SC}", 14, OPT["sl1"])
    stamp(6)
    t0, t1 = tile_loads(0, TB), tile_loads(1, TB+1)
    A(f"""{t0[0]}
buffer_load_dwordx4 {q(0,0)}, v1, {W}, s50 offen {SC}
{t0[1]}
buffer_load_dwordx4 {q(0,1)}, v2, {W}, s50 offen {SC}""")
    A("s_waitcnt vmcnt(0)")
    stamp(4)
    A(f"""v_mov_b32_dpp v{Q+6}, v7 {HI}
v_mov_b32_dpp v{Q+7}, v7 {HI}
v_mov_b32_dpp v{kb(0,1)+2}, v4 {HI}
{MFMA} {vr(S+16,16)}, {vr(kb(0,0),4)}, {q(0,0)}, 0
{t0[2]}
{MFMA} {vr(S+16,16)}, {vr(kb(0,1),4)}, {q(0,1)}, {vr(S+16,16)}
{t0[3]}
{MFMA} {vr(S,16)}, {vr(kb(0,0),4)}, {q(0,0)}, 0
ds_write_b128 v240, {q(0,0)}""")
    for x in t1[:2]: A(x)
    s_ = S+16
    A(f"v_max3_f32 v8, v{s_}, v{s_+1}, v{s_+2}\nv_max3_f32 v9, v{s_+3}, v{s_+4}, v{s_+5}")
    for i in range(6, 14, 4): A(f"v_max3_f32 v8, v8, v{s_+i}, v{s_+i+1}\nv_max3_f32 v9, v9, v{s_+i+2}, v{s_+i+3}")
    A(f"""v_max3_f32 v8, v8, v{s_+14}, v{s_+15}
v_max_f32 v8, v8, v9
v_cvt_pk_bf16_f32 v8, -v8, v7
v_mov_b32_dpp v{Q+6}, v8 {HI}
ds_write_b128 v240, {q(0,1)} offset:1024
{MFMA} {vr(S,16)}, {vr(kb(0,1),4)}, {q(0,1)}, {vr(S,16)}""")
    lds_sync(C_Q, 4)
    for j in range(1, 4):
        A(f"ds_read_b128 {q(j,0)}, v{240+j}\nds_read_b128 {q(j,1)}, v{240+j} offset:1024")
    for x in t1[2:]: A(x)
    A("s_waitcnt lgkmcnt(0)")
    stamp(7)
    lds_add(C_G2)
    A("s_setprio 1")
    def mwrites(j):
        return ([f"ds_write_b128 v{244+j}, {vr(O+16*j+4*g,4)} offset:{1024*g}" for g in range(3)] +
                [f"ds_write_b96 v{244+j}, {vr(O+16*j+12,3)} offset:3072"])
    for n in range(64):
        i, j = n >> 2, n & 3
        if n == 32: stamp(8)
        extra = []; late = []; at = {}
        if n == 0: extra = tile_loads(2, TB+2)
        ti, k = (i + 3, j - 1) if j >= 1 else (i + 2, 3)
        if 3 <= ti < 16: at[OPT["lp"]] = [tile_loads(ti & 3, TB+ti)[k]]
        if n >= 62: late = mwrites(n - 62)
        m = [None]*4
        pre = []
        if n < 63:
            i2, j2 = (n+1) >> 2, (n+1) & 3
            if j2 == 0:
                cnt = 4*(min(15, i+3) - (i+1))
                if i + 3 < 16: cnt -= 2
                pre = [f"s_waitcnt vmcnt({cnt})", f"v_mov_b32_dpp v{kb(i2&3,1)+2}, v4 {HI}"]
            m[0] = f"{MFMA} {vr(S+16*j2,16)}, {vr(kb(i2&3,0),4)}, {q(j2,0)}, 0"
            m[1] = f"{MFMA} {vr(S+16*j2,16)}, {vr(kb(i2&3,1),4)}, {q(j2,1)}, {vr(S+16*j2,16)}"
        if n > 0:
            i0, j0 = (n-1) >> 2, (n-1) & 3
            m[2] = f"{SMF} {vr(O+16*j0,16)}, {vr(kb(i0&3,3),4)}, {vr(S+16*j0+8,8)}, v5"
        m[3] = f"{SMF} {vr(O+16*j,16)}, {vr(kb(i&3,2),4)}, {vr(S+16*j,8)}, v5"
        if n == 63: m[0], m[2] = m[2], None
        for x in pre: A(x)
        for g in range(4):
            if n == 0 and g == 3: A("s_waitcnt vmcnt(8)")
            if m[g]: A(m[g])
            for e in range(4):
                r = S+16*j+4*g+e
                A(f"v_exp_f32 v{r}, v{r}")
                for x in at.pop(4*g+e, []): A(x)
                if extra: A(extra.pop(0))
                elif late and g >= 1 and e & 1: A(late.pop(0))
        assert not extra and not late and not at
    for x in mwrites(2)[:2]: A(x)
    A(f"{SMF} {vr(O+48,16)}, {vr(kb(3,3),4)}, {vr(S+48+8,8)}, v5")
    for x in mwrites(2)[2:]: A(x)
    stamp(9)
    A("s_setprio 3")
    lds_sync(C_MERGE, 4)
    for g in range(12): A(f"ds_read_b128 {vr(S+4*g,4)}, v247 offset:{1024*g}")
    A(f"""v_lshlrev_b32 v8, 4, v0
s_add_u32 s41, s40, 3
s_and_b32 s41, s41, 3
s_lshl_b32 s43, s5, 2
s_add_u32 s41, s41, s43
s_lshl_b32 s42, s41, 15
s_lshl_b32 s43, s4, 11
s_add_u32 s42, s42, s43
s_add_u32 s42, s42, {O_OFF}
s_lshl_b32 s41, s41, 11
s_lshl_b32 s43, s4, 7
s_add_u32 s41, s41, s43
s_add_u32 s41, s41, {FO_OFF}""")
    for k in range(3):
        A(f"s_waitcnt lgkmcnt({8-4*k})")
        for i in list(range(14, -2, -2)): A(f"v_pk_add_f32 {vr(OK+i,2)}, {vr(OK+i,2)}, {vr(S+16*k+i,2)}")
    A(f"""v_cmp_nle_f32 vcc, {f32(2.0**-40)}, v{OK+14}
s_mov_b64 s[48:49], vcc
v_cmp_nge_f32 vcc, {f32(2.0**40)}, v{OK+14}
s_or_b64 vcc, vcc, s[48:49]
s_cbranch_vccnz {LFB}
{LN}:
v_rcp_f32 v10, v{OK+14}
v_mov_b32 v{S+7}, 0
v_mov_b32 v11, v10""")
    for i in range(0, 14, 2):
        A(f"v_pk_mul_f32 {vr(OK+i,2)}, {vr(OK+i,2)}, v[10:11]")
        A(f"v_cvt_pk_bf16_f32 v{S+i//2}, v{OK+i}, v{OK+i+1}")
        if i == 6: A(f"buffer_store_dwordx4 {vr(S,4)}, v8, {W}, s42 offen {SC}")
    A(f"buffer_store_dwordx4 {vr(S+4,4)}, v8, {W}, s42 offen offset:1024 {SC}")
    stamp(10)
    lds_add(C_GO)
    WF = 112; BACC = 16; OB = 64; NB = 6
    A(f"""v_bfe_u32 v9, v0, 2, 2        ; rr
v_and_b32 v10, 3, v0
v_lshrrev_b32 v11, 1, v10
v_and_b32 v10, 1, v10
v_lshl_or_b32 v10, v10, 1, v11    ; sigma(cc)
v_bfe_u32 v11, v0, 4, 1
v_lshlrev_b32 v11, 5, v11
v_lshl_or_b32 v10, v10, 3, v11
s_lshl_b32 s45, s40, 6
v_or_b32 v10, s45, v10
v_lshrrev_b32 v15, 5, v0
v_mul_u32_u24 v11, 320, v9
v_xor_b32 v3, v10, v11
v_lshl_add_u32 v3, v15, 10, v3
v_lshl_or_b32 v9, v15, 1, v9
v_mul_u32_u24 v11, 320, v9
v_xor_b32 v4, v10, v11
v_add_u32 v5, {224*256}, v3
v_add_u32 v6, {224*256}, v4""")
    assert WO == 0
    def wo_frags(half):
        for n in range(16):
            hd, i = n >> 1, n & 1
            b = WF + 64*half + 4*n
            row = 28*hd + 16*i
            A(f"ds_read_b64_tr_b16 {vr(b,2)}, v{3+2*half} offset:{row*256}")
            A(f"ds_read_b64_tr_b16 {vr(b+2,2)}, v{(4 if i else 3)+2*half} offset:{(row+8)*256}")
            if n % 6 == 5: A("s_waitcnt lgkmcnt(2)")
    lds_wait(C_WOA, 4)
    wo_frags(0)
    A("s_waitcnt vmcnt(0) lgkmcnt(2)")
    flagstore("s41", OPT["ro"], 131072)
    wo_frags(1)
    A(f"""s_lshr_b32 s4, s2, 4
s_lshl_b32 s4, s4, 2
s_bfe_u32 s5, s2, 0x20001
s_or_b32 s4, s4, s5
s_and_b32 s5, s2, 1
s_and_b32 s46, s5, {OPT["ro"]-1}
s_lshl_b32 s46, s46, 17
s_lshl_b32 s5, s5, 1
s_bfe_u32 s6, s2, 0x10003
s_or_b32 s5, s5, s6            ; n quarter
s_lshl_b32 s43, s4, 15
s_lshl_b32 s44, s40, 13
s_add_u32 s43, s43, s44
s_add_u32 s43, s43, {O_OFF}
s_add_u32 s47, s43, 4096
v_and_b32 v14, 31, v0
v_mul_u32_u24 v2, 1792, v14
v_lshl_add_u32 v2, v15, 4, v2
s_mul_i32 s41, s4, {32*1792}
s_lshl_b32 s42, s5, 8
s_add_u32 s41, s41, s42
s_add_u32 s41, s41, s45
s_add_u32 s41, s41, 896
s_lshl_b32 s42, s4, 11
s_add_u32 s46, s46, s42
s_lshl_b32 s42, s40, 9
s_add_u32 s46, s46, s42
s_add_u32 s46, s46, {FO_OFF}
v_and_b32 v9, 3, v0
v_lshlrev_b32 v9, 7, v9""")
    lds_sync(C_WOF, 4)
    assert OST == 0
    def odma():
        for half in range(2):
            A(f"s_add_u32 m0, s44, {OST+4096*half}")
            for i in range(4):
                A(f"buffer_load_dwordx4 v8, {W}, s{47 if half else 43} offen offset:{1024*i} {SC} lds")
    if not OPT["dyn"]:
        spin(f"buffer_load_dword v14, v9, {W}, s46 offen {SC}", 14, OPT["sl1"])
        stamp(11)
        odma()
        A("s_waitcnt vmcnt(0)")
        lds_sync(C_OST, 4)
        stampw(12)
        def rd(n): A(f"ds_read_b128 {vr(OB+4*(n%NB),4)}, v8 offset:{1024*n}")
        for n in range(NB-1): rd(n)
        for n in range(32):
            if n + NB - 1 < 32: rd(n + NB - 1)
            left = min(31, n+NB-1) - n
            A(f"s_waitcnt lgkmcnt({left})\n{MFMA} {vr(BACC,16)}, {vr(WF+4*n,4)}, {vr(OB+4*(n%NB),4)}, {vr(BACC,16) if n else 0}")
    else:
        LL, LM, LNONE, LX = A.lab("b3l"), A.lab("b3m"), A.lab("b3n"), A.lab("b3x")
        LG = [A.lab("b3g") for _ in range(4)]
        GA = (16, 32, 48, 96)
        A(f"""v_mov_b32 v12, {C_OST}
s_lshl_b32 s52, 1, s40
v_mov_b32 v10, s52
s_mov_b32 s50, 0
s_mov_b32 s51, 0
s_mov_b32 s61, {SPIN}
{LL}:
s_cmp_lg_u32 s50, 0
s_cbranch_scc1 {LM}
buffer_load_dword v14, v9, {W}, s46 offen {SC}
s_sub_u32 s61, s61, 1
s_waitcnt vmcnt(0)
v_cmp_ne_u32 vcc, s{TAG}, v14
s_cmp_eq_u32 s61, 0
s_cselect_b64 vcc, 0, vcc
s_cbranch_vccnz {LM}""")
        stamp(11)
        odma()
        A(f"""s_mov_b32 s50, 1
{LM}:
ds_read_b32 v13, v12
s_waitcnt lgkmcnt(0)
v_readfirstlane_b32 s60, v13
s_andn2_b32 s60, s60, s51
s_cbranch_scc0 {LNONE}
s_ff1_i32_b32 s53, s60
s_bitset1_b32 s51, s53
s_cmp_eq_u32 s53, 1
s_cbranch_scc1 {LG[1]}
s_cmp_eq_u32 s53, 2
s_cbranch_scc1 {LG[2]}
s_cmp_eq_u32 s53, 3
s_cbranch_scc1 {LG[3]}""")
        for g in range(4):
            A(f"{LG[g]}:")
            for n in range(8): A(f"ds_read_b128 {vr(OB+4*n,4)}, v8 offset:{1024*(8*g+n)}")
            for n in range(8):
                A(f"s_waitcnt lgkmcnt({7-n})\n{MFMA} {vr(GA[g],16)}, {vr(WF+32*g+4*n,4)}, {vr(OB+4*n,4)}, {vr(GA[g],16) if n else 0}")
            A(f"s_cmp_eq_u32 s51, 15\ns_cbranch_scc0 {LL}\ns_branch {LX}")
        A(f"""{LNONE}:
s_cmp_lg_u32 s50, 1
s_cbranch_scc1 {LL}
s_waitcnt vmcnt(0)
s_mov_b64 exec, 1
ds_or_b32 v12, v10
s_mov_b64 exec, -1
s_mov_b32 s50, 2""")
        stamp(12)
        A(f"s_branch {LM}\n{LX}:\ns_nop 8")
        for i in range(0, 16, 2):
            A(f"v_pk_add_f32 {vr(16+i,2)}, {vr(16+i,2)}, {vr(32+i,2)}\nv_pk_add_f32 {vr(48+i,2)}, {vr(48+i,2)}, {vr(96+i,2)}")
        for i in range(0, 16, 2): A(f"v_pk_add_f32 {vr(16+i,2)}, {vr(16+i,2)}, {vr(48+i,2)}")
    A(f"""s_lshl_b32 s42, s5, 2
s_add_u32 s42, s42, s40
s_cmp_ge_u32 s42, 14
s_cbranch_scc1 {END}""")
    for i in range(8): A(f"v_cvt_pk_bf16_f32 v{32+i}, v{BACC+2*i}, v{BACC+2*i+1}")
    A(f"""buffer_store_dwordx4 v[32:35], v2, {sr(SO,4)}, s41 offen {OBM}
buffer_store_dwordx4 v[36:39], v2, {sr(SO,4)}, s41 offen offset:32 {OBM}
s_branch {END}""")

def helper():
    SWO = 56
    T, AC2, WA, WB, Y = 16, 48, 64, 72, 80
    LNOA2, LNY2, LP2 = "L_noa2", A.lab("nyq"), A.lab("pub2")
    A(f"{HELP2}:")
    if OPT["x"] >= 4:
        lds_add(C_WOA); A(f"s_branch {END}")
    stamp(11)
    if OPT["pda"] < 0: lds_add(C_H)
    A(f"""s_lshr_b32 s5, s2, 3
s_cmp_ge_u32 s5, 29
s_cbranch_scc1 {LNOA2}
v_lshrrev_b32 v8, 3, v0
v_and_b32 v9, 4, v8
v_bfe_u32 v10, v8, 1, 1
v_or_b32 v9, v9, v10
v_and_b32 v8, 1, v8
v_lshl_or_b32 v9, v8, 1, v9     ; s2 mod 8 = 4*(p>>1) + 2h + (p&1)
v_mul_u32_u24 v1, {T_ROW}, v9
v_and_b32 v8, 1, v0
v_lshl_add_u32 v1, v8, 9, v1
v_bfe_u32 v8, v0, 1, 2
v_lshl_add_u32 v1, v8, 4, v1    ; T offset
s_lshl_b32 s41, s5, 10
s_lshl_b32 s42, s4, 6
s_add_u32 s41, s41, s42
s_add_u32 s41, s41, {T_OFF}
s_mul_i32 s42, s40, {16*T_ROW}
s_add_u32 s41, s41, s42
s_mul_i32 s44, s5, 43
s_lshr_b32 s44, s44, 8          ; g5
s_lshl_b32 s45, s44, 11
s_and_b32 s46, s2, {OPT["r1"]-1}
s_lshl_b32 s46, s46, 15
s_add_u32 s46, s46, {F1_OFF + 11*2048}
v_and_b32 v9, 15, v0
v_lshlrev_b32 v9, 7, v9
v_add_u32 v9, s45, v9
v_mov_b32 v10, 0
v_mov_b32_dpp v9, v10 {HI}
s_lshl_b32 s43, s40, 11
s_add_u32 m0, s43, {TX}
s_add_u32 s47, s41, {8*T_ROW - 1024}
s_nop 0""")
    lds_wait(C_G2 if OPT["g2"] else C_LF, 4, 1)
    def a1poll():
        A(f"""buffer_load_dword v10, v9, {W}, s46 offen {SC}
s_waitcnt vmcnt(0)
v_cmp_ne_u32 vcc, s{TAG}, v10""")
    acquire(R_A1, a1poll, OPT["sl2"], 1)
    stamp(6)
    A(f"""buffer_load_dwordx4 v1, {W}, s41 offen {SC} lds
buffer_load_dwordx4 v1, {W}, s47 offen offset:1024 {SC} lds
v_lshrrev_b32 v8, 3, v14        ; u1 local
v_and_b32 v9, 7, v14            ; k local
v_lshl_add_u32 v2, v15, 3, v8
v_lshlrev_b32 v2, 4, v2
v_lshl_add_u32 v2, v9, 1, v2
s_cmp_eq_u32 s5, 28
s_cselect_b32 s45, 14, 0
s_add_u32 s42, s43, s45
s_add_u32 s42, s42, {WX}
v_add_u32 v2, s42, v2
v_mul_u32_u24 v3, {2*T2_ROW}, v15
v_lshl_add_u32 v3, v9, 4, v3
v_lshl_add_u32 v3, v8, 2, v3    ; T2 offset
v_lshlrev_b32 v8, 4, v0
v_add_u32 v8, {EX}, v8
v_add_u32 v9, s43, v8
v_lshlrev_b32 v1, 2, v0
v_add_u32 v1, {TX}, v1""")
    for i in range(16): A(f"v_mov_b32 v{WA+i}, 0")
    A("s_waitcnt vmcnt(0)")
    lds_sync(C_T, 4)
    for m in range(0, 28, 2): A(f"ds_read2st64_b32 {vr(T+m,2)}, v1 offset0:{m} offset1:{m+1}")
    for f in range(8):
        if f == 1:
            for m in range(28, 32, 2): A(f"ds_read2st64_b32 {vr(T+m,2)}, v1 offset0:{m} offset1:{m+1}")
        A(f"s_waitcnt lgkmcnt({12 if f == 0 else 14-2*f})\n{MFMA} {vr(AC2,16)}, {vr(C+4*f,4)}, {vr(T+4*f,4)}, {vr(AC2,16) if f else 0}")
    lds_wait(C_W, 4)
    for j in range(8):
        A(f"ds_read_u16_d16_hi v{WA+j}, v2 offset:{(4*(j>>1)+(j&1))*64}")
    A("s_waitcnt lgkmcnt(4)")
    for j in range(8):
        A(f"ds_read_u16_d16_hi v{WB+j}, v2 offset:{(4*(j>>1)+(j&1))*64+1024}")
    A(f"s_waitcnt lgkmcnt(0)\ns_cmp_lg_u32 s5, 28\ns_cbranch_scc1 {LNY2}")
    for j in range(8): A(f"v_xor_b32 v{WA+j}, 0x80000000, v{WA+j}")
    A(f"{LNY2}:")
    A(f"""s_mul_i32 s41, s40, {16*T2_ROW}
s_mul_i32 s42, s4, {T2_Q}
s_add_u32 s41, s41, s42
s_lshl_b32 s42, s5, 7
s_add_u32 s41, s41, s42
s_add_u32 s41, s41, {T2_OFF}""")
    for j in range(8):
        xr, xi = AC2+2*j, AC2+2*j+1
        A(f"""v_mul_f32 v10, v{xr}, v{WA+j}
v_mul_f32 v11, v{xr}, v{WB+j}
v_fma_f32 v10, -v{xi}, v{WB+j}, v10
v_fmac_f32 v11, v{xi}, v{WA+j}
v_cvt_pk_bf16_f32 v{Y+j}, v11, v10""")
        if j == 3: A(f"ds_write_b128 v9, {vr(Y,4)}")
    A(f"ds_write_b128 v9, {vr(Y+4,4)} offset:1024")
    lds_sync(C_EX, 4)
    for f in range(8): A(f"ds_read_b128 {vr(T+4*f,4)}, v8 offset:{1024*f}")
    for f in range(8):
        A(f"s_waitcnt lgkmcnt({7-f})\n{MFMA} {vr(AC2,16)}, {vr(C+4*f,4)}, {vr(T+4*f,4)}, {vr(AC2,16) if f else 0}")
    for j in range(8):
        A(f"""v_cvt_pk_bf16_f32 v{Y+j}, v{AC2+2*j+1}, v{AC2+2*j}
s_add_u32 s43, s41, {(4*(j>>1)+(j&1))*T2_ROW}
buffer_store_dword v{Y+j}, v3, {W}, s43 offen {SC}""")
    stamp(7)
    arrive(C_A2, LP2)
    A(f"""s_lshl_b32 s41, s44, 2
s_lshr_b32 s42, s4, 1
s_add_u32 s41, s41, s42
s_lshl_b32 s41, s41, 7
s_add_u32 s41, s41, {AT_OFF}
s_cmp_eq_u32 s44, 4
s_cselect_b32 s42, 9, 11
v_mov_b32 v12, 0
v_mov_b32 v13, 1
s_mov_b64 exec, 1
buffer_atomic_add v13, v12, {W}, s41 offen sc0 sc1
s_mov_b64 exec, -1
s_waitcnt vmcnt(0)
v_readfirstlane_b32 s60, v13
s_cmp_lg_u32 s60, s42
s_cbranch_scc1 {LP2}
v_mov_b32 v13, 1
s_mov_b32 s41, {AT_OFF + 20*128}
s_mov_b64 exec, 1
buffer_atomic_add v13, v12, {W}, s41 offen sc0 sc1
s_mov_b64 exec, -1
s_waitcnt vmcnt(0)
v_readfirstlane_b32 s60, v13
s_cmp_lg_u32 s60, 19
s_cbranch_scc1 {LP2}
s_mov_b32 s41, {F2_OFF}""")
    flagstore("s41", 8, 128)
    assert EPOCH_OFF == 0
    flagstore("0", 1, 0)
    A(f"{LP2}:")
    lds_wait(C_A2, 4, 4)
    A(f"{LNOA2}:")
    srd(SWO, P_WO, WO_BYTES)
    LW = A.lab("wo")
    A(f"""s_and_b32 s53, s2, 1
s_lshl_b32 s53, s53, 1
s_bfe_u32 s54, s2, 0x10003
s_or_b32 s53, s53, s54
s_lshl_b32 s53, s53, 8
s_mul_i32 s54, s40, {112*896}
s_add_u32 s53, s53, s54
s_mul_i32 s54, s40, {112*256}
v_lshrrev_b32 v9, 4, v0
v_and_b32 v8, 15, v0
v_lshlrev_b32 v4, 2, v9
v_xor_b32 v8, v8, v4
v_lshlrev_b32 v8, 4, v8
v_mul_u32_u24 v9, 896, v9
v_add_u32 v4, v8, v9""")
    lds_wait(C_G2, 4, 4)
    A(f"""s_mov_b32 m0, s54
s_mov_b32 s55, 28
{LW}:
{"s_sleep %d" % OPT["wos"] if OPT["wos"] > 0 else "s_waitcnt vmcnt(%d)" % -OPT["wos"]}
buffer_load_dwordx4 v4, {sr(SWO,4)}, s53 offen lds
s_add_u32 m0, m0, 1024
s_add_u32 s53, s53, {4*896}
s_sub_u32 s55, s55, 1
s_cmp_lg_u32 s55, 0
s_cbranch_scc1 {LW}
s_waitcnt vmcnt(0)""")
    lds_add(C_WOA)
    stamp(12)
    TA, NY, AC3, ZB, AC4 = 16, 48, 64, 16, 112
    A(f"""v_and_b32 v8, 15, v14
v_lshrrev_b32 v9, 4, v14
v_lshl_or_b32 v8, v8, 1, v9
v_mul_u32_u24 v2, {T2_Q}, v15
v_lshl_add_u32 v1, v8, 4, v2    ; T2 offset
v_add_u32 v2, {224*16}, v2
s_mul_i32 s41, s50, {T2_ROW}
s_add_u32 s41, s41, {T2_OFF}
s_lshl_b32 s42, s40, 9
s_add_u32 s42, s42, s41
s_and_b32 s46, s2, 7
s_lshl_b32 s46, s46, 7
s_add_u32 s46, s46, {F2_OFF}
v_mov_b32 v9, 0""")
    srd(SO, P_OUT, OUT_BYTES)
    def a2poll():
        A(f"""buffer_load_dword v10, v9, {W}, s46 offen {SC}
s_waitcnt vmcnt(0)
v_cmp_ne_u32 vcc, s{TAG}, v10""")
    acquire(R_A2, a2poll, OPT["sl3"], OPT["sl3"])
    stamp(8)
    LA, LB = A.lab("a3l"), A.lab("a3l")
    for f in range(4):
        A(f"s_add_u32 s43, s42, {2*f*T2_Q}\nbuffer_load_dwordx4 {vr(TA+4*f,4)}, v1, {W}, s43 offen {SC}\ns_sleep 1")
    A(f"s_cmp_eq_u32 s40, 3\ns_cbranch_scc1 {LA}")
    for f in range(4):
        A(f"s_add_u32 s43, s42, {2*f*T2_Q + 2048}\nbuffer_load_dwordx4 {vr(TA+16+4*f,4)}, v1, {W}, s43 offen {SC}\ns_sleep 1")
    A(f"{LA}:\ns_cmp_lg_u32 s40, 0\ns_cbranch_scc1 {LB}")
    for f in range(4):
        A(f"s_add_u32 s43, s41, {2*f*T2_Q}\nbuffer_load_dwordx4 {vr(NY+4*f,4)}, v2, {W}, s43 offen {SC}")
    A(f"{LB}:")
    lds_wait(C_GO, 4, OPT["slg"])
    A("s_setprio 0")
    if OPT["x"] not in (2, 3): stamp(10)
    LN3, LZ = A.lab("a3ny"), A.lab("a3z")
    A("s_waitcnt vmcnt(0)")
    setup = f"""v_lshlrev_b32 v5, 4, v0
s_lshl_b32 s43, s40, 11
s_add_u32 s43, s43, {ZOFF}
v_add_u32 v6, s43, v5
s_mul_i32 s43, s52, 14336
s_add_u32 s43, s43, {ZOFF}
v_add_u32 v5, s43, v5
s_lshr_b32 s46, s40, 1
s_lshl_b32 s46, s46, 3
v_add_u32 v7, s46, v15          ; 8p + h
v_and_b32 v9, 7, v14
v_xor_b32 v7, v7, v9
v_lshlrev_b32 v7, 4, v7
v_lshl_or_b32 v7, v14, 8, v7
s_lshl_b32 s46, s52, 13
s_add_u32 s46, s46, {YOFF}
v_add_u32 v7, s46, v7           ; Y write address
v_lshrrev_b32 v8, 3, v0
s_lshl_b32 s46, s40, 3
v_add_u32 v8, s46, v8           ; row (s1)
v_and_b32 v9, 7, v0             ; piece
v_lshlrev_b32 v10, 1, v9
v_and_b32 v11, 7, v8
v_xor_b32 v10, v10, v11
v_lshlrev_b32 v10, 4, v10
v_lshl_or_b32 v10, v8, 8, v10
v_add_u32 v10, {YOFF}, v10
v_xor_b32 v11, 16, v10
v_mul_u32_u24 v8, {64*1792}, v8
v_lshl_add_u32 v8, v9, 4, v8    ; out offset
s_mul_i32 s41, s50, 1792
s_lshl_b32 s42, s51, 7
s_add_u32 s41, s41, s42""".split("\n")
    for tt in range(2):
        for f in range(4):
            A(f"{MFMA} {vr(AC3+32*tt,16)}, {vr(TA+16*tt+4*f,4)}, {vr(ER+4*f,4)}, {vr(AC3+32*tt,16) if f else 0}")
            for _ in range(5):
                if setup: A(setup.pop(0))
    assert not setup
    A(f"s_cmp_eq_u32 s51, 3\ns_cselect_b32 s42, 4, 8\nv_cmp_gt_u32 s[48:49], s42, v9")
    A(f"s_cmp_lg_u32 s40, 0\ns_cbranch_scc1 {LN3}\ns_mov_b32 exec_lo, 1\ns_mov_b32 exec_hi, 1")
    for i in range(16): A(f"v_mov_b32 v{TA+i}, v{NY+i}")
    A(f"s_mov_b64 exec, -1\n{LN3}:\ns_nop 1")
    def zout(tt, part):
        a = AC3+32*tt+16*part
        e = [f"v_cvt_pk_bf16_f32 v{a+i}, v{a+2*i}, v{a+2*i+1}" for i in range(8)]
        return e + [f"ds_write_b128 v6, {vr(a+4*p,4)} offset:{14336*p+8192*tt+1024*part}" for p in range(2)]
    pend = zout(0, 0)
    for tt in range(2):
        for f in range(4):
            A(f"{MFMA} {vr(AC3+32*tt+16,16)}, {vr(TA+16*tt+4*f,4)}, {vr(EI+4*f,4)}, {vr(AC3+32*tt+16,16) if f else 0}")
            for _ in range(3):
                if pend: A(pend.pop(0))
    for x in pend + zout(0, 1): A(x)
    A(f"s_cmp_eq_u32 s40, 3\ns_cbranch_scc1 {LZ}")
    for x in zout(1, 0) + zout(1, 1): A(x)
    A(f"{LZ}:")
    lds_sync(C_Z, 4)
    for i in range(14): A(f"ds_read_b128 {vr(ZB+4*i,4)}, v5 offset:{1024*i}")
    for i in range(14):
        A(f"s_waitcnt lgkmcnt({13-i})\n{MFMA} {vr(AC4,16)}, {vr(G+4*i,4)}, {vr(ZB+4*i,4)}, {vr(AC4,16) if i else 0}")
    for g in range(4):
        A(f"v_xor_b32 v9, {32*g}, v7\nds_write_b128 v9, {vr(AC4+4*g,4)}")
    lds_sync(C_Y, 4)
    A(f"""ds_read_b128 v[16:19], v10
ds_read_b128 v[20:23], v11
ds_read_b128 v[24:27], v10 offset:8192
ds_read_b128 v[28:31], v11 offset:8192
s_waitcnt lgkmcnt(0)""")
    for i in range(8): A(f"v_add_f32 v{32+i}, v{16+i}, v{24+i}\nv_sub_f32 v{40+i}, v{16+i}, v{24+i}")
    for i in range(8): A(f"v_cvt_pk_bf16_f32 v{48+i}, v{32+2*i}, v{33+2*i}")
    A(f"""s_mov_b64 exec, s[48:49]
buffer_store_dwordx4 v[48:51], v8, {sr(SO,4)}, s41 offen {OA}
buffer_store_dwordx4 v[52:55], v8, {sr(SO,4)}, s41 offen offset:448 {OA}
s_mov_b64 exec, -1
s_branch {END}""")

def fallback():
    L1, L2 = A.lab("fb1"), A.lab("fb2")
    tl = tile_loads(0, 43)
    A(f"""{LFB}:
v_mov_b32_dpp v{Q+24+6}, v7 {HI}
v_mov_b32 v12, 0xff800000
s_mov_b32 s43, {KV_OFF}
{L1}:
{tl[0]}
{tl[1]}
s_waitcnt vmcnt(0)
{MFMA} {vr(S,16)}, {vr(kb(0,0),4)}, {q(3,0)}, 0
{MFMA} {vr(S,16)}, {vr(kb(0,1),4)}, {q(3,1)}, {vr(S,16)}""")
    for i in range(0, 16, 2): A(f"v_max3_f32 v12, v12, v{S+i}, v{S+i+1}")
    A(f"""s_add_u32 s43, s43, {KV_REC}
s_cmp_lt_u32 s43, {KV_OFF+64*KV_REC}
s_cbranch_scc1 {L1}
v_mov_b32 v13, v12
v_mov_b32 v14, v12
v_permlane32_swap_b32 v13, v14
v_max_f32 v12, v13, v14""")
    for i in range(16): A(f"v_mov_b32 v{OK+i}, 0")
    A(f"s_mov_b32 s43, {KV_OFF}\n{L2}:")
    for x in tl: A(x)
    A(f"""s_waitcnt vmcnt(0)
{MFMA} {vr(S,16)}, {vr(kb(0,0),4)}, {q(3,0)}, 0
{MFMA} {vr(S,16)}, {vr(kb(0,1),4)}, {q(3,1)}, {vr(S,16)}""")
    for i in range(16): A(f"v_sub_f32 v{S+i}, v{S+i}, v12")
    for i in range(16): A(f"v_exp_f32 v{S+i}, v{S+i}")
    A(f"""{SMF} {vr(OK,16)}, {vr(kb(0,2),4)}, {vr(S,8)}, v5
{SMF} {vr(OK,16)}, {vr(kb(0,3),4)}, {vr(S+8,8)}, v5
s_nop 15
s_add_u32 s43, s43, {KV_REC}
s_cmp_lt_u32 s43, {KV_OFF+64*KV_REC}
s_cbranch_scc1 {L2}
s_branch {LN}""")

def finish():
    A(f"{END}:")
    if OPT["probe"]:
        LQ = A.lab("probe")
        stamp(13)
        A(f"""s_cmp_lg_u32 s2, {OPT["pwg"]}
s_cbranch_scc1 {FIN}
s_cmp_lg_u32 s3, {OPT["pwave"]}
s_cbranch_scc1 {FIN}
s_waitcnt lgkmcnt(0)
s_sub_u32 s56, s{64+2*OPT["probe"]}, s66
s_mul_i32 s56, s56, 10
s_add_u32 s56, s56, s90
{LQ}:
s_memrealtime s[58:59]
s_waitcnt lgkmcnt(0)
s_sub_u32 s57, s58, s56
s_cmp_lt_i32 s57, 0
s_cbranch_scc1 {LQ}""")
    elif STAMPS:
        stamp(13)
        A(f"""s_waitcnt vmcnt(0)
s_memtime s[92:93]
s_memrealtime s[94:95]
s_waitcnt lgkmcnt(0)
{"s_getreg_b32 s64, hwreg(HW_REG_XCC_ID)" if STAMPS == 1 else ""}
{"s_getreg_b32 s92, hwreg(HW_REG_HW_ID)" if STAMPS == 1 else ""}
s_mov_b32 s56, s24
s_mov_b32 s57, s25
s_mov_b32 s58, 0x2000000
s_mov_b32 s59, 0x00020000
s_mov_b64 exec, 1
s_lshl_b32 s60, s2, 3
s_add_u32 s60, s60, s3
s_lshl_b32 s60, s60, 6
s_add_u32 s60, s60, {TS_OFF}
v_mov_b32 v1, 0""")
        for i in range(16):
            A(f"v_mov_b32 v2, s{64+2*i}\nbuffer_store_dword v2, v1, s[56:59], s60 offen offset:{4*i}")
    A(f"{FIN}:\ns_endpgm")

entry(); b1_loader(); a1_dispatch_loader(); a1_gen(); a1_compute(); pub1(); helper()
A(f"{LB1C}:\ns_setprio 2"); main_start()
for i in range(64): A(f"v_mov_b32 v{ACC+i}, 0")
A("s_waitcnt lgkmcnt(0)"); gettag()
gen_pre(); b1_compute()
attention(); fallback(); finish()

HDR = open("cdna_kernels/%s.s.ref" % NAME).read().split("; Override")[0]
txt = HDR + f"; @launch grid=(256,1,1) block=(512,1,1) lds={LDS_BYTES}\n"
txt += '.amdgcn_target "amdgcn-amd-amdhsa--gfx950"\n.text\n' + A.finish()
txt += f""".section .rodata,"a"
.p2align 6
.amdhsa_kernel {K}
  .amdhsa_next_free_vgpr 256
  .amdhsa_next_free_sgpr 96
  .amdhsa_accum_offset 256
  .amdhsa_group_segment_fixed_size 0
  .amdhsa_kernarg_size 72
  .amdhsa_user_sgpr_count 2
  .amdhsa_user_sgpr_kernarg_segment_ptr 1
  .amdhsa_system_sgpr_workgroup_id_x 1
.end_amdhsa_kernel
"""
out = args[0] if args else "cdna_kernels/%s.s" % NAME
open(out, "w").write(txt)
print("wrote", out, len(txt))
```

```python
import sys, struct
from emit import Asm
from layout import *
NAME = "concat_heads__spectral_gfnet__softmax_full_mha__prompt"
OPT = dict(stamps=0, r1=8, pf=1, sl1=1, sl2=8, sl3=40, rot=1, x=0, probe=0, pwave=4, pwg=100, pd=0, wos=-2, lp=13, slg=8, g2=0, ro=2, wm=0, tch=0, pda=0, oa=0, ob=0, gd=1, dyn=0, wsb=0, fl=1, pw=2, tw=0, sd=0, sp=0, td=0, ad=0, bn=0, wg=0, gk=4)
args = []
for a in sys.argv[1:]:
    if "=" in a: k, v = a.split("="); assert k in OPT, k; OPT[k] = int(v)
    else: args.append(a)
STAMPS = OPT["stamps"]
MODS = ['', 'sc1', 'nt', 'sc0 sc1']
OA, OBM = MODS[OPT['oa']], MODS[OPT['ob']]
def f32(x): return "0x%08x" % struct.unpack("<I", struct.pack("<f", x))[0]
def vr(a, n=1): return f"v{a}" if n == 1 else f"v[{a}:{a+n-1}]"
def sr(a, n=1): return f"s{a}" if n == 1 else f"s[{a}:{a+n-1}]"
P_AX, P_WR, P_WI, P_BX, P_WQKV, P_WO, P_OUT, P_DBG, P_WS = 8,10,12,14,16,18,20,22,24
MFMA = "v_mfma_f32_32x32x16_bf16"
SMF = "v_smfmac_f32_32x32x32_bf16"
SC = "sc1"
HI = "quad_perm:[0,1,2,3] row_mask:0xc bank_mask:0xf"
TAGC = 0x9E3779B9
TAG = 62
SWS = 36; W = sr(SWS,4)
SX, SW = 28, 32
SPIN = 200000
FOFF = 7*16384
WO, OST = 0, 0
QX, EX, TX, WX = 0, 8192, 16384, 24576
MERGE = 114688
ZOFF, YOFF = MERGE, MERGE + 28672
CNT = 162816
LDS_BYTES = 163840
(C_P1, R_KV, C_MERGE, C_OST, R_A1, C_EX, C_A2, R_A2, C_Z, C_Y, C_WOA, C_WOF, C_GO, C_G2, C_Q, C_LF, C_T, C_W, C_X, C_H) = [CNT+16*i+12 for i in range(20)]

A = Asm()
def stamp(i):
    if STAMPS: A(f"{'s_memtime' if STAMPS == 2 else 's_memrealtime'} s[{64+2*i}:{65+2*i}]")
def stampw(i):
    if STAMPS: stamp(i); A("s_waitcnt lgkmcnt(0)")
def srd(d, p, nbytes):
    A(f"s_mov_b32 s{d}, s{p}\ns_mov_b32 s{d+1}, s{p+1}\ns_mov_b32 s{d+2}, {nbytes}\ns_mov_b32 s{d+3}, 0x00020000")
def pi32(d, s, t):
    A(f"""v_and_b32 v{d}, 0x13, v{s}
v_and_b32 v{t}, 4, v{s}
v_lshl_or_b32 v{d}, v{t}, 1, v{d}
v_and_b32 v{t}, 8, v{s}
v_lshrrev_b32 v{t}, 1, v{t}
v_or_b32 v{d}, v{d}, v{t}""")
def mod7(d, t):
    A(f"s_mul_i32 s{t}, s{d}, 37\ns_lshr_b32 s{t}, s{t}, 8\ns_mul_i32 s{t}, s{t}, 7\ns_sub_u32 s{d}, s{d}, s{t}")
def lds_add(addr):
    A(f"v_mov_b32 v12, {addr}\nv_mov_b32 v13, 1\ns_mov_b64 exec, 1\nds_add_u32 v12, v13\ns_mov_b64 exec, -1")
def lds_wait(addr, target, sleep=0, setup=True):
    L, L2 = A.lab("lw"), A.lab("lwd")
    if setup: A(f"v_mov_b32 v12, {addr}")
    A(f"""{L}:
ds_read_b32 v13, v12
s_waitcnt lgkmcnt(0)
v_readfirstlane_b32 s60, v13
s_cmp_ge_u32 s60, {target}""")
    if sleep: A(f"s_cbranch_scc1 {L2}\ns_sleep {sleep}\ns_branch {L}\n{L2}:")
    else: A(f"s_cbranch_scc0 {L}")
def lds_sync(addr, target, sleep=0):
    A("s_waitcnt lgkmcnt(0)"); lds_add(addr); lds_wait(addr, target, sleep, False)
def arrive(cnt, skip):
    A(f"""s_waitcnt vmcnt(0)
v_mov_b32 v12, {cnt}
v_mov_b32 v13, 1
s_mov_b64 exec, 1
ds_add_rtn_u32 v13, v12, v13
s_mov_b64 exec, -1
s_waitcnt lgkmcnt(0)
v_readfirstlane_b32 s60, v13
s_cmp_lg_u32 s60, 3
s_cbranch_scc1 {skip}""")
def flagstore(soff, nrep, repstride, t=40, val=None):
    val = val or f"s{TAG}"
    if not OPT["fl"]:
        A(f"""v_mul_u32_u24 v12, {repstride}, v0
v_mov_b32 v13, {val}
s_mov_b64 exec, {(1<<nrep)-1}
buffer_store_dword v13, v12, {W}, {soff} offen {SC}
s_mov_b64 exec, -1""")
        return
    A(f"""v_lshrrev_b32 v12, 3, v0
v_mul_u32_u24 v12, {repstride}, v12
v_and_b32 v13, 7, v0
v_lshl_add_u32 v12, v13, 4, v12""")
    for i in range(4): A(f"v_mov_b32 v{t+i}, {val}")
    if nrep < 8: A(f"s_mov_b64 exec, {(1<<(8*nrep))-1}")
    A(f"buffer_store_dwordx4 {vr(t,4)}, v12, {W}, {soff} offen {SC}")
    if nrep < 8: A("s_mov_b64 exec, -1")
def publish(cnt, soff, nrep, repstride):
    L = A.lab("pub")
    arrive(cnt, L); flagstore(f"s{soff}", nrep, repstride); lds_add(C_X); A(f"{L}:")
def acquire(rel, body, sleep, sleep2=1):
    LP, LD, LO, LE = A.lab("poll"), A.lab("pollok"), A.lab("pollw"), A.lab("polle")
    A(f"s_cmp_lg_u32 s40, 0\ns_cbranch_scc1 {LO}\ns_mov_b32 s61, {SPIN}\n{LP}:")
    body()
    A(f"""s_cbranch_vccz {LD}
s_sub_u32 s61, s61, 1
s_cmp_eq_u32 s61, 0
s_cbranch_scc1 {LD}
s_sleep {sleep}
s_branch {LP}
{LD}:""")
    lds_add(rel)
    A(f"s_branch {LE}\n{LO}:")
    lds_wait(rel, 1, sleep2)
    A(f"{LE}:")
def spin(load, reg, sleep):
    LP, LD = A.lab("spin"), A.lab("spinok")
    A(f"""s_mov_b32 s61, {SPIN}
{LP}:
{load}
s_waitcnt vmcnt(0)
v_cmp_ne_u32 vcc, s{TAG}, v{reg}
s_cbranch_vccz {LD}
s_sub_u32 s61, s61, 1
s_cmp_eq_u32 s61, 0
s_cbranch_scc1 {LD}
s_sleep {sleep}
s_branch {LP}
{LD}:""")
def gettag():
    if OPT["wsb"]: A(f"s_add_u32 s24, s24, {OPT['wsb'] << 20}\ns_addc_u32 s25, s25, 0")
    A(f"s_load_dword s{TAG}, s[24:25], {EPOCH_OFF}")
    srd(SWS, P_WS, WS_USED)
def fixtag():
    A(f"s_waitcnt lgkmcnt(0)\ns_add_u32 s{TAG}, s{TAG}, {TAGC}")

FIN, END, ATT, PUB1, HELP2, GEN = "L_fin", "L_end", "L_att", "L_pub1", "L_help2", "L_gen"
LA1, LB1C, LB1G, LA1C, LV, LN, LFB = "L_a1", "L_b1c", "L_b1g", "L_a1c", "L_b1v", "L_norm", "L_fallback"
K = NAME + "_kernel"

def entry():
    A(f".globl {K}\n.p2align 8\n.type {K},@function\n{K}:")
    A(f"""s_cmp_ge_u32 s2, 256
s_cbranch_scc1 {FIN}
s_load_dwordx16 s[8:23], s[0:1], 0
s_load_dwordx2 s[24:25], s[0:1], 64
v_lshrrev_b32 v1, 6, v0
v_readfirstlane_b32 s3, v1
v_and_b32 v0, 63, v0""")
    if STAMPS:
        for i in range(2, 14): A(f"s_mov_b32 s{64+2*i}, 0")
        A("s_memtime s[64:65]\ns_memrealtime s[66:67]")
    if OPT["pf"]:
        L = A.lab("pf"); LP = A.lab("pc")
        A(f"""s_cmp_lg_u32 s3, 3
s_cbranch_scc1 {L}
s_getpc_b64 s[56:57]
{LP}:
s_bfe_u32 s58, s2, 0x20003
s_lshl_b32 s58, s58, 13
v_lshlrev_b32 v1, 7, v0
v_add_u32 v1, s58, v1
v_min_u32 v1, {FIN}-{LP}, v1
global_load_dword v255, v1, s[56:57]
{L}:""")
    A(f"""s_and_b32 s4, s2, 7
s_lshr_b32 s5, s2, 3
s_lshl_b32 s6, s4, 1
s_and_b32 s7, s5, 1
s_or_b32 s6, s6, s7
s_lshr_b32 s7, s5, 1
s_and_b32 s40, s3, 3
s_cmp_ge_u32 s7, 11
s_cbranch_scc1 {LA1}
s_cmp_lt_u32 s3, 4
s_cbranch_scc1 {LB1C}""")

def xaddr(rs):
    A(f"""v_lshrrev_b32 v1, 3, v0
v_and_b32 v14, 7, v0
v_lshrrev_b32 v15, 4, v0
v_xor_b32 v14, v14, v15
v_lshlrev_b32 v14, 4, v14
v_xor_b32 v16, 64, v14
v_mul_u32_u24 v1, {rs}, v1
v_add_u32 v2, v1, v14
v_add_u32 v3, v1, v16
v_add_u32 v3, {8*rs-1024}, v3
v_add_u32 v4, {2*(8*rs-1024)}, v2
v_add_u32 v5, {2*(8*rs-1024)}, v3""")
def b1_loader():
    A("s_setprio 3")
    if OPT["rot"] == 2: A("s_mov_b32 s26, s7")
    elif OPT["rot"] == 3: A("s_and_b32 s26, s6, 1\ns_mul_i32 s26, s26, 3\ns_add_u32 s26, s26, s7")
    elif OPT["rot"] == 4: A("s_and_b32 s26, s6, 1\ns_mul_i32 s26, s26, 3")
    elif OPT["rot"] == 5: A("s_lshr_b32 s26, s6, 1\ns_add_u32 s26, s26, s7")
    else: A("s_add_u32 s26, s6, s7")
    mod7(26, 27)
    if not OPT["rot"]: A("s_mov_b32 s26, 0")
    xaddr(896)
    A(f"""v_and_b32 v14, 15, v0
v_lshlrev_b32 v16, 2, v15
v_xor_b32 v14, v14, v16
v_lshlrev_b32 v14, 4, v14
v_mul_u32_u24 v15, 2688, v15
v_add_u32 v6, v14, v15
v_add_u32 v7, {4*2688-1024}, v6
v_add_u32 v8, {2*(4*2688-1024)}, v6
v_add_u32 v9, {3*(4*2688-1024)}, v6
s_lshl_b32 s41, s6, 2
s_add_u32 s47, s41, s40
s_mul_i32 s41, s47, {32*896}     ; x base
s_mul_i32 s42, s40, {16*2688}
s_lshl_b32 s43, s7, 8
s_add_u32 s42, s42, s43          ; w base
s_lshl_b32 s44, s40, 12
s_waitcnt lgkmcnt(0)""")
    srd(SX, P_BX, X_BYTES); srd(SW, P_WQKV, WQKV_BYTES)
    def issue():
        A(f"""s_lshl_b32 s45, s26, 7
s_add_u32 s45, s45, s41
s_mul_i32 s46, s26, {64*2688}
s_add_u32 s46, s46, s42
s_mov_b32 m0, s44""")
        for i in range(4): A(f"buffer_load_dwordx4 v{2+i}, {sr(SX,4)}, s45 offen offset:{1024*i} lds")
        A(f"s_add_u32 m0, s44, 16384")
        for i in range(4): A(f"buffer_load_dwordx4 v{6+i}, {sr(SW,4)}, s46 offen offset:{1024*i} lds")
        A("""s_add_u32 s26, s26, 1
s_cmp_eq_u32 s26, 7
s_cselect_b32 s26, 0, s26
s_add_u32 s44, s44, 0x8000
s_and_b32 s44, s44, 0x1ffff""")
    LL = A.lab("b1ld")
    issue(); gettag()
    A(f"s_mov_b32 s48, 6\n{LL}:")
    if OPT["x"] != 2: issue()
    else: A("s_waitcnt vmcnt(0)")
    A("s_waitcnt vmcnt(8)")
    if STAMPS:
        LX = A.lab("st"); A(f"s_cmp_lg_u32 s48, 6\ns_cbranch_scc1 {LX}"); stamp(2); A(f"{LX}:")
    A(f"""s_barrier
s_sub_u32 s48, s48, 1
s_cmp_lg_u32 s48, 0
s_cbranch_scc1 {LL}""")
    fixtag()
    A("s_waitcnt vmcnt(0)")
    stamp(3)
    A(f"s_barrier\ns_branch {ATT}")

def a1_dispatch_loader():
    A(f"""{LA1}:
s_sub_u32 s5, s7, 11           ; g5
s_mul_i32 s26, s5, 3
s_lshr_b32 s26, s26, 1         ; e0 in 0,1,3,4,6""")
    if not OPT["rot"]: A("s_mov_b32 s26, 0")
    A(f"s_cmp_lt_u32 s3, 4\ns_cbranch_scc1 {LA1C}\ns_setprio 3")
    xaddr(64*896)
    A(f"""s_lshl_b32 s41, s6, 2
s_add_u32 s41, s41, s40
s_mul_i32 s41, s41, 896
s_lshl_b32 s44, s40, 12
s_lshl_b32 s26, s26, 2
s_add_u32 s26, s26, 3""")
    mod7(26, 27)
    A("s_waitcnt lgkmcnt(0)")
    srd(SX, P_AX, X_BYTES)
    gettag()
    LL, LS = A.lab("a1ld"), A.lab("a1lds")
    A(f"""s_mov_b32 s48, 0
{LL}:
s_lshl_b32 s45, s26, 7
s_add_u32 s45, s45, s41
s_lshl_b32 s46, s26, 14
s_add_u32 m0, s44, s46""")
    for i in range(4): A(f"buffer_load_dwordx4 v{2+i}, {sr(SX,4)}, s45 offen offset:{1024*i} lds")
    A(f"""s_add_u32 s26, s26, 4
s_sub_u32 s27, s26, 7
s_cmp_ge_u32 s26, 7
s_cselect_b32 s26, s27, s26
s_add_u32 s48, s48, 1
s_cmp_lt_u32 s48, 7
s_cbranch_scc1 {LL}""")
    fixtag()
    A("s_waitcnt vmcnt(0)")
    stamp(3)
    if OPT["gk"] >= 0:
        LG = A.lab("gate")
        A(f"s_cmp_lg_u32 s40, 0\ns_cbranch_scc1 {LG}\ns_lshl_b32 s46, s6, 7\ns_add_u32 s46, s46, {GO_OFF}\nv_mov_b32 v9, 0")
        spin(f"buffer_load_dword v14, v9, {W}, s46 offen {SC}", 14, 2)
        A(f"{LG}:")
    A(f"s_barrier\ns_branch {ATT}")

def main_start():
    A(f"""v_lshlrev_b32 v1, 4, v0
v_add_u32 v1, {CNT+12}, v1
v_mov_b32 v2, 0
ds_write_b32 v1, v2""")

C, ER, EI, G, GT = 128, 160, 176, 192, 16
def tlbwarm():
    g = OPT["tw"]
    if not g: return
    L = A.lab("tw")
    n = (WS_USED >> g) // 32 + 1
    A(f"""s_cmp_lg_u32 s3, 2
s_cbranch_scc1 {L}
s_lshr_b32 s60, s2, 3
s_mul_i32 s60, s60, {n << g}
v_lshlrev_b32 v12, {g}, v0""")
    for i in range(0, n, 64):
        k = min(64, n - i)
        if k < 64: A(f"s_bfm_b64 exec, {k}, 0")
        A(f"buffer_load_dword v255, v12, {W}, s60 offen offset:64")
        if i + 64 < n: A(f"s_add_u32 s60, s60, {64 << g}")
    A("s_mov_b64 exec, -1")
    m = (W_BYTES >> g) // 32 + 1
    srd(28, P_WR, W_BYTES); srd(32, P_WI, W_BYTES)
    A(f"""s_lshr_b32 s60, s2, 3
s_mul_i32 s60, s60, {m << g}
s_bfm_b64 exec, {m}, 0
buffer_load_dword v255, v12, s[28:31], s60 offen
buffer_load_dword v255, v12, s[32:35], s60 offen
s_mov_b64 exec, -1
{L}:""")
def prewrite():
    tlbwarm()
    if OPT["pw"] < 2: return
    L = A.lab("pw")
    A(f"""s_cmp_lg_u32 s3, 3
s_cbranch_scc1 {L}
s_sub_u32 s60, s{TAG}, {TAGC}
s_lshl_b32 s61, s7, 4
s_add_u32 s61, s61, s6
s_lshl_b32 s61, s61, 7
s_add_u32 s61, s61, {F1_OFF}""")
    flagstore("s61", OPT["r1"], 32768, 40, "s60")
    A(f"{L}:")
def gen_common():
    A(f"""v_and_b32 v14, 31, v0
v_lshrrev_b32 v15, 5, v0
s_lshr_b32 s50, s2, 5
s_lshl_b32 s50, s50, 3
s_or_b32 s50, s50, s4
s_bfe_u32 s51, s2, 0x20003       ; d quarter
s_and_b32 s52, s40, 1            ; parity e""")
def rot_gen(n, nblk, step, base, mult, dmult, out, scale=None):
    c, sn, t = GT, GT+8, GT+16
    A(f"v_mul_f32 v11, {f32(float(dmult))}, v{step}")
    for j in range(n): A(f"v_fmamk_f32 v{t+j}, v{step}, {f32(float(mult[j]))}, v{base}")
    A("v_cos_f32 v10, v11\nv_sin_f32 v12, v11")
    for j in range(n): A(f"v_cos_f32 v{c+j}, v{t+j}\nv_sin_f32 v{sn+j}, v{t+j}")
    A("v_mov_b32 v11, v10\nv_mov_b32 v13, v12")
    if scale is not None:
        for j in range(n): A(f"v_mul_f32 v{c+j}, {f32(scale)}, v{c+j}\nv_mul_f32 v{sn+j}, {f32(scale)}, v{sn+j}")
    for b in range(nblk):
        out(b)
        if b + 1 < nblk:
            for j in range(0, n, 2): A(f"v_pk_mul_f32 {vr(t+j,2)}, {vr(sn+j,2)}, v[12:13]")
            for j in range(0, n, 2): A(f"v_pk_mul_f32 {vr(sn+j,2)}, {vr(sn+j,2)}, v[10:11]")
            for j in range(0, n, 2): A(f"v_pk_fma_f32 {vr(sn+j,2)}, {vr(c+j,2)}, v[12:13], {vr(sn+j,2)}")
            for j in range(0, n, 2): A(f"v_pk_fma_f32 {vr(c+j,2)}, {vr(c+j,2)}, v[10:11], {vr(t+j,2)} neg_lo:[0,0,1] neg_hi:[0,0,1]")
def gen_c():
    A(f"""v_lshrrev_b32 v8, 1, v14
s_lshl_b32 s43, s40, 4
v_add_u32 v8, s43, v8
v_cvt_f32_u32 v8, v8
v_mul_f32 v8, {f32(1/64)}, v8    ; step = u2/64
v_and_b32 v9, 1, v14
v_cvt_f32_u32 v9, v9
v_mul_f32 v9, {f32(0.25)}, v9
v_lshlrev_b32 v10, 1, v15
v_cvt_f32_u32 v10, v10
v_fma_f32 v9, v8, v10, v9        ; base""")
    def out(f):
        for p in range(4): A(f"v_cvt_pk_bf16_f32 v{C+4*f+p}, v{GT+p}, v{GT+8+p}")
    rot_gen(4, 8, 8, 9, [0,1,4,5], 8, out)
def gen_e():
    A(f"""v_lshlrev_b32 v8, 6, v14
v_add_u32 v8, s50, v8
v_cvt_f32_u32 v8, v8
v_mul_f32 v8, {f32(1/2048)}, v8
v_lshlrev_b32 v9, 2, v15
v_cvt_f32_u32 v9, v9
v_mul_f32 v9, v8, v9""")
    def out(f):
        for p in range(4): A(f"v_cvt_pk_bf16_f32 v{ER+4*f+p}, v{GT+p}, -v{GT+8+p}")
        for p in range(4): A(f"v_cvt_pk_bf16_f32 v{EI+4*f+p}, v{GT+8+p}, v{GT+p}")
    rot_gen(4, 4, 8, 9, [0,1,2,3], 8, out, 2.0/(2048*448))
def gen_g():
    A(f"""s_lshr_b32 s44, s40, 1
s_lshl_b32 s45, s51, 1
s_add_u32 s44, s44, s45         ; d tile
s_lshl_b32 s46, s44, 5
v_add_u32 v8, s46, v14          ; d
v_cvt_f32_u32 v8, v8
v_mul_f32 v8, {f32(1/448)}, v8
v_lshlrev_b32 v9, 3, v15
v_add_u32 v9, s52, v9
v_cmp_eq_u32 vcc, 0, v9
v_cvt_f32_u32 v9, v9
v_mul_f32 v9, v8, v9""")
    def out(t):
        for j in range(4): A(f"v_cvt_pk_bf16_f32 v{G+8*t+j}, v{GT+2*j}, v{GT+2*j+1}")
        for j in range(4): A(f"v_cvt_pk_bf16_f32 v{G+8*t+4+j}, -v{GT+8+2*j}, -v{GT+9+2*j}")
    rot_gen(8, 7, 8, 9, [16*(j>>2)+2*(j&3) for j in range(8)], 32, out)
    A(f"""v_and_b32 v8, 0xffff0000, v{G}
v_or_b32 v8, 0x3f00, v8
v_and_b32 v10, 1, v14
v_lshlrev_b32 v10, 15, v10
v_cndmask_b32 v{G}, v{G}, v8, vcc
v_and_b32 v8, 0xffff, v8
v_and_b32 v9, 0xffff0000, v{G+4}
v_or3_b32 v9, v9, v10, v8
v_cndmask_b32 v{G+4}, v{G+4}, v9, vcc""")
def gen_pre():
    gen_common()
    A(f"{GEN}:")
    gen_c(); gen_e()
    A(f"s_cmp_ge_u32 s7, 11\ns_cbranch_scc1 {HELP2}")

ACC = 64
def acc(a, b): return ACC + 32*a + 16*b
LONES = "L_ones"
def b1_body(vtype):
    if vtype: pi32(48, 14, 49)
    else: A("v_mov_b32 v48, v14")
    A(f"""v_lshrrev_b32 v49, 1, v48
v_and_b32 v49, 7, v49
v_xor_b32 v49, v49, v15
v_lshlrev_b32 v49, 4, v49
v_lshl_or_b32 v50, v48, 7, v49
s_lshl_b32 s43, s41, 13
v_add_u32 v52, s43, v50
v_xor_b32 v53, 32, v52
v_xor_b32 v54, 64, v52
v_xor_b32 v55, 96, v52""")
    A(f"""v_bfe_u32 v48, v0, 2, 2        ; rr
v_and_b32 v49, 3, v0           ; cc""")
    if not vtype:
        A("""v_lshrrev_b32 v50, 1, v49
v_and_b32 v49, 1, v49
v_lshl_or_b32 v49, v49, 1, v50 ; sigma(cc)""")
    A(f"""v_bfe_u32 v50, v0, 4, 1        ; colhalf
v_lshlrev_b32 v50, 5, v50
v_lshl_or_b32 v50, v49, 3, v50
s_lshl_b32 s43, s42, 7
v_or_b32 v50, s43, v50
v_lshlrev_b32 v51, 6, v48
v_xor_b32 v50, v50, v51
v_lshl_add_u32 v51, v15, 3, v48 ; 8h+rr
v_lshl_or_b32 v56, v51, 8, v50
v_add_u32 v56, 16384, v56
v_xor_b32 v57, 64, v56""")
    A(f"""s_lshl_b32 s46, s6, 2
s_lshl_b32 s47, s41, 1
s_add_u32 s46, s46, s47
s_lshl_b32 s47, s7, 2
s_lshl_b32 s48, s42, 1
s_add_u32 s47, s47, s48""")
    if not vtype:
        A(f"""s_lshl_b32 s48, s47, 11
v_lshlrev_b32 v2, 4, v0
s_cmp_ge_u32 s47, 14
s_cselect_b32 s49, {KV_REC - QK_TILE}, 0
s_cselect_b32 s43, {KV_OFF - Q_OFF - 14*2048}, 0
s_cselect_b32 s54, 1.0, {f32(QSCALE)}
s_mov_b32 s55, s54
s_add_u32 s49, s49, {QK_TILE}
s_mul_i32 s46, s46, s49
s_add_u32 s46, s46, s48
s_add_u32 s46, s46, s43
s_add_u32 s46, s46, {Q_OFF}
s_add_u32 s49, s46, s49""")
    else:
        A(f"""s_sub_u32 s45, s7, 7
s_lshl_b32 s45, s45, 7
s_add_u32 s45, s45, 27
s_mul_i32 s45, s45, 2341
s_lshr_b32 s45, s45, 16
v_lshrrev_b32 v10, 4, v0
v_add_u32 v10, s45, v10
v_lshrrev_b32 v11, 2, v0
v_lshlrev_b32 v11, 9, v11
s_lshl_b32 s45, s45, 11
v_add_u32 v11, s45, v11
v_cmp_gt_u32 s[56:57], 16, v10
v_and_b32 v4, 3, v0
v_lshl_or_b32 v4, v4, 4, v11
s_cmp_lt_u32 s7, 9
s_cselect_b32 s58, 0xffff, 0
s_mov_b32 s59, 0
s_lshl_b32 s54, s6, 2
s_add_u32 s54, s54, s40
s_mul_i32 s54, s54, {KV_REC}
s_add_u32 s54, s54, {KV_OFF + QK_TILE + 28*16}
s_add_u32 s55, s54, 8192
v_mov_b32 v58, 0x3f803f80
v_mov_b32 v59, 0x3f803f80
v_mov_b32 v60, 0x3f803f80
v_mov_b32 v61, 0x3f803f80
s_sub_u32 s47, s47, 28
s_mul_i32 s46, s46, {KV_REC}
s_add_u32 s46, s46, {KV_OFF + QK_TILE}
s_add_u32 s49, s46, {KV_REC}
s_lshl_b32 s48, s47, 5""")
        for b in range(2):
            A(f"""v_add_u32 v48, s48, v14
v_add_u32 v48, {32*b}, v48
v_mul_u32_u24 v49, 2341, v48
v_lshrrev_b32 v49, 16, v49     ; head
v_mul_u32_u24 v50, 28, v49
v_sub_u32 v48, v48, v50        ; d
v_lshlrev_b32 v48, 4, v48
v_lshl_or_b32 v48, v15, 9, v48
v_lshl_or_b32 v{2+b}, v49, 11, v48""")
    SETS = (16, 32, 192, 208)
    def rx(kap, p, a): return f"ds_read_b128 {vr(SETS[p]+4*a,4)}, v{6+kap} offset:{4096*a}"
    def rw(kap, p, b): return [f"ds_read_b64_tr_b16 {vr(SETS[p]+8+4*b+2*u,2)}, v{10+b} offset:{(16*kap+4*u)*256}" for u in range(2)]
    def rdlist(kap, p): return [rx(kap,p,0)] + rw(kap,p,0) + rw(kap,p,1) + [rx(kap,p,1)]
    def setaddr(): return [f"v_add_u32 v{6+i}, s44, v{52+i}" for i in range(6)]
    def mf(a, b, p):
        x, w = vr(SETS[p]+4*a,4), vr(SETS[p]+8+4*b,4)
        o = (x, w) if vtype else (w, x)
        A(f"{MFMA} {vr(acc(a,b),16)}, {o[0]}, {o[1]}, {vr(acc(a,b),16)}")
    gb = []
    def fill(n):
        for _ in range(n):
            if gb:
                for x in gb.pop(0): A(x)
    def kstep(p, r, f):
        A("s_waitcnt lgkmcnt(3)")
        mf(0,0,p)
        for x in r[0:3]: A(x)
        fill(f[0])
        A("s_waitcnt lgkmcnt(4)")
        mf(0,1,p)
        for x in r[3:5]: A(x)
        fill(f[1])
        A("s_waitcnt lgkmcnt(5)")
        mf(1,0,p)
        for x in r[5:6]: A(x)
        fill(f[2])
        mf(1,1,p)
        if OPT["bn"]: A(f"s_nop {OPT['bn']}")
        fill(f[3])
    LL = A.lab("b1loop")
    if vtype:
        LI, LI2 = A.lab("idle"), A.lab("idle")
        A(f"s_cmp_lt_u32 s47, 14\ns_cbranch_scc1 {LI}")
        prewrite()
        for n in range(7):
            A("s_barrier")
            if n == OPT["gk"]:
                A(f"s_cmp_lg_u32 s3, 2\ns_cbranch_scc1 {LI2}\ns_lshl_b32 s61, s6, 7\ns_add_u32 s61, s61, {GO_OFF}")
                flagstore("s61", 1, 0)
                A(f"{LI2}:")
        A(f"s_branch {LONES}\n{LI}:")
    A("s_mov_b32 s44, 0\ns_mov_b32 s45, 0")
    for x in setaddr(): A(x)
    prewrite()
    stampw(9)
    A("s_barrier")
    stampw(2)
    for x in rdlist(0, 0): A(x)
    A(f"{LL}:")
    kstep(0, rdlist(1, 1), (0,1,2,3))
    kstep(1, rdlist(2, 0), (0,1,2,3))
    A("s_add_u32 s44, s44, 0x8000\ns_and_b32 s44, s44, 0x1ffff\ns_add_u32 s45, s45, 1")
    kstep(0, rdlist(3, 1), (1,1,2,0))
    for x in setaddr(): A(x)
    A("s_barrier")
    kstep(1, rdlist(0, 0), (1,1,1,1))
    assert not gb
    A(f"s_cmp_lt_u32 s45, 6\ns_cbranch_scc1 {LL}")
    if OPT["x"] in (2, 3): A("s_memtime s[84:85]\ns_waitcnt lgkmcnt(0)")
    rd = []
    for kap in (1,2,3): rd += [rx(kap,kap,0)] + rw(kap,kap,0)
    for kap in (1,2,3): rd += rw(kap,kap,1)
    for kap in (1,2,3): rd += [rx(kap,kap,1)]
    order = [rdlist(0,0)[i] for i in range(6)] + rd
    def epi(a, b):
        e = []; t = acc(a,b)
        for i in range(8):
            if not vtype: e.append(f"v_pk_mul_f32 {vr(t+2*i,2)}, {vr(t+2*i,2)}, s[54:55]")
            e.append(f"v_cvt_pk_bf16_f32 v{t+i}, v{t+2*i}, v{t+2*i+1}" if OPT["x"] != -10 else f"v_mov_b32 v{t+i}, 0")
            if i & 3 == 3:
                if OPT["sd"] and (a, b, i) == (0, 0, 3): e.append(f"s_sleep {OPT['sd']}")
                if OPT["sp"]: e.append(f"s_sleep {OPT['sp']}")
                if vtype: e.append(f"buffer_store_dwordx4 {vr(t+i-3,4)}, v{2+b}, {W}, s{46 if a==0 else 49} offen offset:{1024*(i>>2)} {SC}")
                else: e.append(f"buffer_store_dwordx4 {vr(t+i-3,4)}, v2, {W}, s{46 if a==0 else 49} offen offset:{2048*b+1024*(i>>2)} {SC}")
        return e
    issued = 6; pend = []; lastw = None
    tiles = [(a,b) for a in range(2) for b in range(2)]
    seq = [(a,b,0) for a,b in tiles] + [(a,b,k) for a,b in tiles for k in (1,2,3)]
    for m, (a, b, kap) in enumerate(seq):
        need = max(order.index(x) for x in [rx(kap,kap,a)] + rw(kap,kap,b)) + 1
        while issued < need: A(order[issued]); issued += 1
        if lastw is None or need > lastw:
            A(f"s_waitcnt lgkmcnt({issued - need})"); lastw = need
        mf(a, b, kap)
        for _ in range(3):
            if issued < len(order) and issued - lastw < 14: A(order[issued]); issued += 1
        if m in (8, 11, 14): pend += epi(*tiles[(m-8)//3])
        if m == 15: stamp(3)
        for _ in range(6 if not vtype else 4):
            if pend: A(pend.pop(0))
    for x in pend + epi(1,1): A(x)
    if vtype:
        LO = A.lab("ones")
        A(f"""{LONES}:
s_mov_b64 exec, s[56:57]
buffer_store_dwordx4 v[58:61], v4, {W}, s54 offen {SC}
s_mov_b64 exec, s[58:59]
s_cbranch_execz {LO}
buffer_store_dwordx4 v[58:61], v4, {W}, s55 offen {SC}
{LO}:
s_mov_b64 exec, -1""")
    lds_add(C_LF)
    A(f"s_branch {PUB1}")
def b1_compute():
    A(f"""s_and_b32 s41, s3, 1           ; wr
s_lshr_b32 s42, s3, 1          ; wc""")
    fixtag()
    A(f"s_cmp_ge_u32 s7, 7\ns_cbranch_scc1 {LV}")
    b1_body(False)
    A(f"{LV}:")
    b1_body(True)

def a1_gen():
    LF, LE = A.lab("fgen"), A.lab("fend")
    A(f"{LA1C}:\ns_setprio 2")
    gen_common()
    pi32(48, 14, 49)
    A(f"""v_lshlrev_b32 v61, 4, v0
v_add_u32 v61, {FOFF}, v61""")
    main_start()
    A(f"""v_lshrrev_b32 v48, 1, v48       ; k_local
s_mul_i32 s41, s5, 3
s_add_u32 s41, s41, s3
s_lshl_b32 s41, s41, 4
v_add_u32 v48, s41, v48
v_cvt_f32_u32 v48, v48
v_mul_f32 v56, {f32(1/448)}, v48 ; k/448
v_and_b32 v48, 1, v14
v_cvt_f32_u32 v48, v48
v_mul_f32 v59, {f32(0.25)}, v48  ; c/4
v_lshlrev_b32 v60, 3, v15
v_cvt_f32_u32 v60, v60
v_fma_f32 v59, v56, v60, v59
v_mul_f32 v58, {f32(16.0)}, v56
v_cos_f32 v58, v58
s_mul_i32 s41, s3, 14336
v_add_u32 v53, s41, v61""")
    for j in range(16): A(f"v_fmamk_f32 v{16+j}, v56, {f32(float(16*(j>>3)+(j&7)))}, v59")
    A("v_add_f32 v58, v58, v58")
    for j in range(16): A(f"v_cos_f32 v{16+j}, v{16+j}")
    A("s_waitcnt lgkmcnt(0)")
    gettag()
    A(f"s_cmp_eq_u32 s3, 3\ns_cbranch_scc1 {LE}\nv_mov_b32 v59, v58\ns_mov_b32 s42, 7\n{LF}:")
    for u in range(2):
        for j in range(4): A(f"v_cvt_pk_bf16_f32 v{32+4*u+j}, v{16+8*u+2*j}, v{17+8*u+2*j}")
        A(f"ds_write_b128 v53, {vr(32+4*u,4)} offset:{1024*u}")
        for j in range(4):
            a, b = 16+8*u+2*j, 16+8*(u^1)+2*j
            A(f"v_pk_fma_f32 {vr(a,2)}, {vr(b,2)}, v[58:59], {vr(a,2)} neg_lo:[0,0,1] neg_hi:[0,0,1]") if u == 0 else None
    for j in range(4):
        a, b = 24+2*j, 16+2*j
        A(f"v_pk_fma_f32 {vr(a,2)}, {vr(b,2)}, v[58:59], {vr(a,2)} neg_lo:[0,0,1] neg_hi:[0,0,1]")
    A(f"""v_add_u32 v53, 2048, v53
s_sub_u32 s42, s42, 1
s_cmp_lg_u32 s42, 0
s_cbranch_scc1 {LF}
{LE}:""")
def a1_compute():
    A(f"""s_lshl_b32 s41, s6, 2
s_add_u32 s41, s41, s3          ; s2 index
v_lshlrev_b32 v5, 8, v15
v_add_u32 v5, s41, v5
v_mul_u32_u24 v5, v14, v5
v_cvt_f32_u32 v5, v5
v_mul_f32 v5, {f32(1/2048)}, v5
v_cvt_f32_u32 v6, v14
v_mul_f32 v6, {f32(1/32)}, v6
v_lshrrev_b32 v49, 1, v14
v_and_b32 v49, 7, v49
v_xor_b32 v49, v49, v15
v_lshlrev_b32 v49, 4, v49
v_lshl_or_b32 v62, v14, 7, v49
s_lshl_b32 s43, s3, 12
v_add_u32 v62, s43, v62
v_and_b32 v3, 2, v14
v_lshlrev_b32 v3, 30, v3
v_or_b32 v3, 1.0, v3            ; (-1)^k
v_mov_b32 v2, v3
v_lshlrev_b32 v4, 4, v0
s_mul_i32 s47, s41, {T_ROW}
s_mul_i32 s42, s5, 6144
s_add_u32 s47, s47, s42
s_add_u32 s47, s47, {T_OFF}
s_add_u32 s48, s47, 2048
s_add_u32 s49, s47, 4096""")
    egen = []
    for i in range(2):
        for j in range(8): egen.append(f"v_fmamk_f32 v{176+j}, v6, {f32(float(16*i+8*(j>>2)+(j&3)))}, v5")
        for j in range(8): egen.append(f"v_cos_f32 v{184+j}, v{176+j}")
        for j in range(8): egen.append(f"v_sin_f32 v{192+j}, v{176+j}")
        for j in range(4): egen.append(f"v_cvt_pk_bf16_f32 v{160+4*i+j}, v{184+2*j}, v{185+2*j}")
        for j in range(4): egen.append(f"v_cvt_pk_bf16_f32 v{168+4*i+j}, -v{192+2*j}, -v{193+2*j}")
    A(f"s_mul_i32 s27, s26, 8256")
    def a1salu(adv=True):
        r = []
        if adv: r += ["s_add_u32 s27, s27, 8256", f"s_cmp_eq_u32 s27, {7*8256}", "s_cselect_b32 s27, 0, s27"]
        return r + ["s_and_b32 s43, s27, 0x1c040", f"s_add_u32 s44, s27, {7*8256}", "s_and_b32 s44, s44, 0x1c040",
                    "s_lshr_b32 s46, s27, 2", "s_and_b32 s46, s46, 0x7800"]
    a1valu = ["v_xor_b32 v8, s43, v62", "v_xor_b32 v10, s44, v62", "v_xor_b32 v9, 32, v8", "v_xor_b32 v11, 32, v10", "v_add_u32 v12, s46, v61"]
    def a1rd(t):
        b = 16 + 20*t
        return ([f"ds_read_b128 {vr(b,4)}, v{8+t}"] +
                [f"ds_read_b128 {vr(b+8+4*kgi,4)}, v12 offset:{1024*t+14336*kgi}" for kgi in range(3)] +
                [f"ds_read_b128 {vr(b+4,4)}, v{10+t}"])
    def a1step(t, nxt, first=False, fill=0, adv=False):
        b = 16 + 20*t
        r = list(nxt); issued = 0
        sa = a1salu() if adv else []; va = list(a1valu) if adv else []
        for m in range(6):
            hi, kgi = m // 3, m % 3
            need = (2, 3, 4, 5, 5, 5)[m]
            if not nxt: hi, kgi, need = m % 2, m // 2, (2, 5, 5, 5, 5, 5)[m]
            if m < (4 if nxt else 2): A(f"s_waitcnt lgkmcnt({5 - need + issued})")
            d = 64 + 32*kgi + 16*hi
            A(f"{MFMA} {vr(d,16)}, {vr(b+4*hi,4)}, {vr(b+8+4*kgi,4)}, {0 if first else vr(d,16)}")
            for _ in range(2 if m == 0 else 1):
                if r: A(r.pop(0)); issued += 1
            if m in (1, 2, 3):
                for _ in range(3):
                    if sa: A(sa.pop(0))
            if m == 4:
                while va: A(va.pop(0))
            for _ in range(fill if not (adv and m in (1,2,3,4)) else fill // 2):
                if egen: A(egen.pop(0))
    LL, LS, LNB = A.lab("a1loop"), A.lab("a1last"), A.lab("a1nb")
    for x in a1salu(False) + a1valu: A(x)
    fixtag()
    prewrite()
    for x in a1valu[4:]: A(x)
    stampw(9)
    A("s_barrier")
    stampw(2)
    if OPT["ad"]: A(f"s_sleep {OPT['ad']}")
    for x in a1rd(0): A(x)
    for n in range(3):
        a1step(0, a1rd(1), n == 0, 2, True)
        a1step(1, a1rd(0), False, 3)
    assert not egen
    A(f"s_mov_b32 s45, 3\n{LL}:")
    a1step(0, a1rd(1), adv=True)
    A(f"""s_add_u32 s45, s45, 1
s_cmp_eq_u32 s45, 7
s_cbranch_scc1 {LS}""")
    a1step(1, a1rd(0))
    A(f"s_branch {LL}\n{LS}:")
    a1step(1, [])
    stamp(3)
    def s1(kgi):
        P, Q = 64+32*kgi, 80+32*kgi
        e = []
        for i in range(8):
            e.append(f"v_pk_fma_f32 {vr(P+2*i,2)}, {vr(Q+2*i,2)}, v[2:3], {vr(P+2*i,2)}")
            e.append(f"v_cvt_pk_bf16_f32 v{16+8*kgi+i}, v{P+2*i}, v{P+2*i+1}")
        return e
    def mm(kgi):
        P, Q = 64+32*kgi, 80+32*kgi
        return [f"{MFMA} {vr(P,16)}, {vr(16+8*kgi,4)}, v[160:163], 0", f"{MFMA} {vr(Q,16)}, {vr(16+8*kgi,4)}, v[168:171], 0",
                f"{MFMA} {vr(P,16)}, {vr(20+8*kgi,4)}, v[164:167], {vr(P,16)}", f"{MFMA} {vr(Q,16)}, {vr(20+8*kgi,4)}, v[172:175], {vr(Q,16)}"]
    def s2(kgi):
        P, Q = 64+32*kgi, 80+32*kgi
        e = []
        for j in range(8):
            e += [f"v_sub_f32 v{P+2*j}, v{P+2*j}, v{Q+2*j+1}", f"v_add_f32 v{Q+2*j}, v{Q+2*j}, v{P+2*j+1}",
                  f"v_cvt_pk_bf16_f32 v{40+8*kgi+j}, v{P+2*j}, v{Q+2*j}"]
            if j & 3 == 3: e.append(f"buffer_store_dwordx4 {vr(40+8*kgi+j-3,4)}, v4, {W}, s{47+kgi} offen offset:{1024*(j>>2)} {SC}")
        return e
    def weave(ms, vs):
        k = (len(vs) + len(ms) - 1) // len(ms)
        for m in ms:
            A(m)
            for _ in range(k):
                if vs: A(vs.pop(0))
    lds_add(C_LF)
    for x in s1(0): A(x)
    weave(mm(0), s1(1)); weave(mm(1), s1(2)); weave(mm(2), s2(0))
    for x in s2(1) + s2(2): A(x)
    LI = A.lab("a1init")
    A(f"""s_cmp_ge_u32 s41, 4
s_cbranch_scc1 {LI}
s_lshl_b32 s42, s5, 2
s_add_u32 s42, s42, s41
s_lshl_b32 s42, s42, 7
s_add_u32 s42, s42, {AT_OFF}
""")
    flagstore("s42", 2, 20*128, 16, "0")
    A(f"{LI}:")

def pub1():
    A(f"""{PUB1}:
s_lshl_b32 s41, s7, 11
s_lshl_b32 s42, s6, 7
s_add_u32 s41, s41, s42
s_add_u32 s41, s41, {F1_OFF}""")
    stamp(4)
    if OPT["gd"]: gen_g()
    publish(C_P1, 41, OPT["r1"], 32768)
    stamp(5)
    if not OPT["gd"]: gen_g()
    A(f"s_cmp_ge_u32 s7, 11\ns_cbranch_scc1 {GEN}")

Q, S, O, KV = 16, 48, 112, 176
OK = O + 48
TB = 8
SO = 32
def q(j,i): return vr(Q+8*j+4*i, 4)
def kb(b,i): return KV+16*b+4*i
def tile_loads(b, so):
    return [f"buffer_load_dwordx4 {vr(kb(b,0),4)}, v1, {W}, s{so} offen {SC}",
            f"buffer_load_dwordx4 {vr(kb(b,1),4)}, v2, {W}, s{so} offen {SC}",
            f"buffer_load_dwordx4 {vr(kb(b,2),4)}, v3, {W}, s{so} offen {SC}",
            f"buffer_load_dwordx4 {vr(kb(b,3),4)}, v3, {W}, s{so} offen offset:1024 {SC}"]
def attention():
    LNY, LNW = A.lab("nyq"), A.lab("now")
    A(f"{ATT}:\ns_setprio 0")
    srd(SX, P_WR, W_BYTES); srd(56, P_WI, W_BYTES)
    A(f"""s_lshr_b32 s5, s2, 3           ; ko
s_mul_i32 s55, s4, {4*450}
s_mul_i32 s43, s40, {512*450}
s_add_u32 s55, s55, s43
s_lshl_b32 s43, s5, 4
s_add_u32 s55, s55, s43
s_cmp_lg_u32 s5, 28
s_cbranch_scc1 {LNY}""")
    srd(SX, P_WI, W_BYTES); srd(56, P_WR, W_BYTES)
    A(f"""s_sub_u32 s55, s55, 14
{LNY}:
s_mov_b32 s63, s5
v_lshrrev_b32 v9, 2, v0
v_and_b32 v10, 3, v0
v_lshl_add_u32 v9, v9, 5, v10
v_mul_u32_u24 v248, 450, v9
s_mov_b32 s51, s7""")
    srd(SO, P_OUT, OUT_BYTES)
    A(f"""s_lshl_b32 s4, s4, 1
s_bfe_u32 s5, s2, 0x10003
s_or_b32 s4, s4, s5            ; head
s_lshr_b32 s5, s2, 4           ; qb
s_mul_i32 s6, s4, 7
s_lshr_b32 s45, s6, 1
s_add_u32 s6, s6, 1
s_lshr_b32 s6, s6, 1
s_lshl_b32 s6, s6, 9
v_lshlrev_b32 v8, 4, v0
v_add_u32 v1, s6, v8
s_bitcmp1_b32 s4, 0
s_cselect_b32 s7, -2040, 0
v_add_u32 v2, 1024, v1
v_add_u32 v6, s7, v2
v_mov_b32 v4, 0x3f80
v_mov_b32_dpp v2, v6 {HI}
s_lshl_b32 s7, s4, 11
s_add_u32 s7, s7, {QK_TILE}
v_and_b32 v9, 30, v0
v_cmp_eq_u32 vcc, 26, v9
v_cmp_eq_u32 s[48:49], 28, v9
s_or_b64 vcc, vcc, s[48:49]
v_xor_b32 v9, 96, v8
v_cndmask_b32 v3, v8, v9, vcc
v_add_u32 v3, s7, v3           ; V offset
v_mov_b32 v5, 0xdddd
v_mov_b32 v7, 0
s_lshl_b32 s45, s45, 3
v_bfe_u32 v9, v0, 2, 1
v_mul_u32_u24 v10, 31, v9
v_add_u32 v10, s45, v10        ; Q column
v_add_u32 v11, 448, v10        ; K column
v_mul_u32_u24 v9, 27, v9
s_mul_i32 s46, s4, 28
s_add_u32 s46, s46, 896
v_add_u32 v9, s46, v9          ; V column
v_lshrrev_b32 v10, 7, v10
v_lshlrev_b32 v10, 11, v10
v_mov_b32_dpp v11, v9 quad_perm:[0,1,2,3] row_mask:0xa bank_mask:0xf
s_lshl_b32 s46, s5, 7
v_add_u32 v10, s46, v10
v_lshrrev_b32 v11, 7, v11
v_lshlrev_b32 v11, 11, v11
v_and_b32 v9, 3, v0
v_lshl_add_u32 v11, v9, 7, v11
s_lshl_b32 s46, s40, 9
v_add_u32 v11, s46, v11
v_mov_b32_dpp v11, v10 {HI}
s_and_b32 s46, s2, {OPT["r1"]-1}
s_lshl_b32 s46, s46, 15
s_add_u32 s46, s46, {F1_OFF}
s_lshl_b32 s43, s5, 2
s_add_u32 s42, s40, s43
s_mul_i32 s42, s42, {QK_TILE}
s_add_u32 s50, s42, {Q_OFF}
s_mul_i32 s47, s40, {16*KV_REC}
s_add_u32 s47, s47, {KV_OFF}""")
    for i in range(16):
        A(f"s_add_u32 s42, s5, {i}\ns_and_b32 s42, s42, 15\ns_mul_i32 s42, s42, {KV_REC}\ns_add_u32 s{TB+i}, s42, s47")
    for j in range(4):
        A(f"""s_add_u32 s42, s40, {j}
s_and_b32 s42, s42, 3
s_lshl_b32 s42, s42, 11
s_add_u32 s42, s42, {QX}
v_add_u32 v{240+j}, s42, v8
s_add_u32 s42, s40, {j+1}
s_and_b32 s42, s42, 3
s_mul_i32 s42, s42, 12288
s_add_u32 s42, s42, {MERGE + (4096*j if j < 3 else 0)}
v_add_u32 v{244+j}, s42, v8""")
    if OPT["pw"]:
        A(f"""s_sub_u32 s60, s{TAG}, {TAGC}
s_add_u32 s41, s40, 3
s_and_b32 s41, s41, 3
s_lshl_b32 s43, s5, 2
s_add_u32 s41, s41, s43
s_lshl_b32 s41, s41, 11
s_lshl_b32 s43, s4, 7
s_add_u32 s41, s41, s43
s_add_u32 s41, s41, {FO_OFF}""")
        flagstore("s41", OPT["ro"], 131072, 40, "s60")
    for i in range(64): A(f"v_mov_b32 v{O+i}, 0")
    LWA, LWB = A.lab("wa"), A.lab("wb")
    wl = [f"buffer_load_dwordx4 {vr(S,4)}, v248, {sr(SX,4)}, s55 offen", f"buffer_load_dwordx4 {vr(S+4,4)}, v248, s[56:59], s55 offen"]
    A(f"s_cmp_lt_u32 s51, 11\ns_cbranch_scc1 {LWA}")
    for x in wl: A(x)
    lds_wait(C_LF, 4, 2)
    A(f"s_branch {LWB}\n{LWA}:")
    lds_wait(C_X, 1, 1)
    if not OPT["wg"]:
        for x in wl: A(x)
    A(f"{LWB}:\ns_setprio 3")
    stamp(5)
    if OPT["wg"]: A(f"s_cmp_lt_u32 s51, 11\ns_cbranch_scc1 {LNW}")
    A(f"""s_lshl_b32 s43, s40, 11
s_add_u32 s43, s43, {WX}
v_add_u32 v9, s43, v8
s_waitcnt vmcnt(0)
ds_write_b128 v9, {vr(S,4)}
ds_write_b128 v9, {vr(S+4,4)} offset:1024
s_waitcnt lgkmcnt(0)""")
    lds_add(C_W)
    A(f"{LNW}:")
    stamp(2)
    if OPT["pd"]: A(f"s_sleep {OPT['pd']}")
    if OPT["pda"] > 0:
        LD = A.lab("pda"); A(f"s_cmp_lt_u32 s51, 11\ns_cbranch_scc1 {LD}\ns_sleep {OPT['pda']}\n{LD}:")
    if OPT["pda"] < 0:
        LD = A.lab("pda"); A(f"s_cmp_lt_u32 s51, 11\ns_cbranch_scc1 {LD}"); lds_wait(C_H, 4, 2); A(f"{LD}:")
    spin(f"buffer_load_dword v14, v11, {W}, s46 offen {SC}", 14, OPT["sl1"])
    stamp(6)
    t0, t1 = tile_loads(0, TB), tile_loads(1, TB+1)
    A(f"""{t0[0]}
buffer_load_dwordx4 {q(0,0)}, v1, {W}, s50 offen {SC}
{t0[1]}
buffer_load_dwordx4 {q(0,1)}, v2, {W}, s50 offen {SC}""")
    A("s_waitcnt vmcnt(0)")
    stamp(4)
    A(f"""v_mov_b32_dpp v{Q+6}, v7 {HI}
v_mov_b32_dpp v{Q+7}, v7 {HI}
v_mov_b32_dpp v{kb(0,1)+2}, v4 {HI}
{MFMA} {vr(S+16,16)}, {vr(kb(0,0),4)}, {q(0,0)}, 0
{t0[2]}
{MFMA} {vr(S+16,16)}, {vr(kb(0,1),4)}, {q(0,1)}, {vr(S+16,16)}
{t0[3]}
{MFMA} {vr(S,16)}, {vr(kb(0,0),4)}, {q(0,0)}, 0
ds_write_b128 v240, {q(0,0)}""")
    for x in t1[:2]: A(x)
    s_ = S+16
    A(f"v_max3_f32 v8, v{s_}, v{s_+1}, v{s_+2}\nv_max3_f32 v9, v{s_+3}, v{s_+4}, v{s_+5}")
    for i in range(6, 14, 4): A(f"v_max3_f32 v8, v8, v{s_+i}, v{s_+i+1}\nv_max3_f32 v9, v9, v{s_+i+2}, v{s_+i+3}")
    A(f"""v_max3_f32 v8, v8, v{s_+14}, v{s_+15}
v_max_f32 v8, v8, v9
v_cvt_pk_bf16_f32 v8, -v8, v7
v_mov_b32_dpp v{Q+6}, v8 {HI}
ds_write_b128 v240, {q(0,1)} offset:1024
{MFMA} {vr(S,16)}, {vr(kb(0,1),4)}, {q(0,1)}, {vr(S,16)}""")
    lds_sync(C_Q, 4)
    for j in range(1, 4):
        A(f"ds_read_b128 {q(j,0)}, v{240+j}\nds_read_b128 {q(j,1)}, v{240+j} offset:1024")
    for x in t1[2:]: A(x)
    A("s_waitcnt lgkmcnt(0)")
    stamp(7)
    lds_add(C_G2)
    A("s_setprio 1")
    def mwrites(j):
        return ([f"ds_write_b128 v{244+j}, {vr(O+16*j+4*g,4)} offset:{1024*g}" for g in range(3)] +
                [f"ds_write_b96 v{244+j}, {vr(O+16*j+12,3)} offset:3072"])
    for n in range(64):
        i, j = n >> 2, n & 3
        if n == 32: stamp(8)
        extra = []; late = []; at = {}
        if n == 0: extra = tile_loads(2, TB+2)
        ti, k = (i + 3, j - 1) if j >= 1 else (i + 2, 3)
        if 3 <= ti < 16: at[OPT["lp"]] = [tile_loads(ti & 3, TB+ti)[k]]
        if n >= 62: late = mwrites(n - 62)
        m = [None]*4
        pre = []
        if n < 63:
            i2, j2 = (n+1) >> 2, (n+1) & 3
            if j2 == 0:
                cnt = 4*(min(15, i+3) - (i+1))
                if i + 3 < 16: cnt -= 2
                pre = [f"s_waitcnt vmcnt({cnt})", f"v_mov_b32_dpp v{kb(i2&3,1)+2}, v4 {HI}"]
            m[0] = f"{MFMA} {vr(S+16*j2,16)}, {vr(kb(i2&3,0),4)}, {q(j2,0)}, 0"
            m[1] = f"{MFMA} {vr(S+16*j2,16)}, {vr(kb(i2&3,1),4)}, {q(j2,1)}, {vr(S+16*j2,16)}"
        if n > 0:
            i0, j0 = (n-1) >> 2, (n-1) & 3
            m[2] = f"{SMF} {vr(O+16*j0,16)}, {vr(kb(i0&3,3),4)}, {vr(S+16*j0+8,8)}, v5"
        m[3] = f"{SMF} {vr(O+16*j,16)}, {vr(kb(i&3,2),4)}, {vr(S+16*j,8)}, v5"
        if n == 63: m[0], m[2] = m[2], None
        for x in pre: A(x)
        for g in range(4):
            if n == 0 and g == 3: A("s_waitcnt vmcnt(8)")
            if m[g]: A(m[g])
            for e in range(4):
                r = S+16*j+4*g+e
                A(f"v_exp_f32 v{r}, v{r}")
                for x in at.pop(4*g+e, []): A(x)
                if extra: A(extra.pop(0))
                elif late and g >= 1 and e & 1: A(late.pop(0))
        assert not extra and not late and not at
    for x in mwrites(2)[:2]: A(x)
    A(f"{SMF} {vr(O+48,16)}, {vr(kb(3,3),4)}, {vr(S+48+8,8)}, v5")
    for x in mwrites(2)[2:]: A(x)
    stamp(9)
    A("s_setprio 3")
    lds_sync(C_MERGE, 4)
    for g in range(12): A(f"ds_read_b128 {vr(S+4*g,4)}, v247 offset:{1024*g}")
    A(f"""v_lshlrev_b32 v8, 4, v0
s_add_u32 s41, s40, 3
s_and_b32 s41, s41, 3
s_lshl_b32 s43, s5, 2
s_add_u32 s41, s41, s43
s_lshl_b32 s42, s41, 15
s_lshl_b32 s43, s4, 11
s_add_u32 s42, s42, s43
s_add_u32 s42, s42, {O_OFF}
s_lshl_b32 s41, s41, 11
s_lshl_b32 s43, s4, 7
s_add_u32 s41, s41, s43
s_add_u32 s41, s41, {FO_OFF}""")
    for k in range(3):
        A(f"s_waitcnt lgkmcnt({8-4*k})")
        for i in list(range(14, -2, -2)): A(f"v_pk_add_f32 {vr(OK+i,2)}, {vr(OK+i,2)}, {vr(S+16*k+i,2)}")
    A(f"""v_cmp_nle_f32 vcc, {f32(2.0**-40)}, v{OK+14}
s_mov_b64 s[48:49], vcc
v_cmp_nge_f32 vcc, {f32(2.0**40)}, v{OK+14}
s_or_b64 vcc, vcc, s[48:49]
s_cbranch_vccnz {LFB}
{LN}:
v_rcp_f32 v10, v{OK+14}
v_mov_b32 v{S+7}, 0
v_mov_b32 v11, v10""")
    for i in range(0, 14, 2):
        A(f"v_pk_mul_f32 {vr(OK+i,2)}, {vr(OK+i,2)}, v[10:11]")
        A(f"v_cvt_pk_bf16_f32 v{S+i//2}, v{OK+i}, v{OK+i+1}")
        if i == 6: A(f"buffer_store_dwordx4 {vr(S,4)}, v8, {W}, s42 offen {SC}")
    A(f"buffer_store_dwordx4 {vr(S+4,4)}, v8, {W}, s42 offen offset:1024 {SC}")
    stamp(10)
    lds_add(C_GO)
    WF = 112; BACC = 16; OB = 64; NB = 6
    A(f"""v_bfe_u32 v9, v0, 2, 2        ; rr
v_and_b32 v10, 3, v0
v_lshrrev_b32 v11, 1, v10
v_and_b32 v10, 1, v10
v_lshl_or_b32 v10, v10, 1, v11    ; sigma(cc)
v_bfe_u32 v11, v0, 4, 1
v_lshlrev_b32 v11, 5, v11
v_lshl_or_b32 v10, v10, 3, v11
s_lshl_b32 s45, s40, 6
v_or_b32 v10, s45, v10
v_lshrrev_b32 v15, 5, v0
v_mul_u32_u24 v11, 320, v9
v_xor_b32 v3, v10, v11
v_lshl_add_u32 v3, v15, 10, v3
v_lshl_or_b32 v9, v15, 1, v9
v_mul_u32_u24 v11, 320, v9
v_xor_b32 v4, v10, v11
v_add_u32 v5, {224*256}, v3
v_add_u32 v6, {224*256}, v4""")
    assert WO == 0
    def wo_frags(half):
        for n in range(16):
            hd, i = n >> 1, n & 1
            b = WF + 64*half + 4*n
            row = 28*hd + 16*i
            A(f"ds_read_b64_tr_b16 {vr(b,2)}, v{3+2*half} offset:{row*256}")
            A(f"ds_read_b64_tr_b16 {vr(b+2,2)}, v{(4 if i else 3)+2*half} offset:{(row+8)*256}")
            if n % 6 == 5: A("s_waitcnt lgkmcnt(2)")
    lds_wait(C_WOA, 4)
    wo_frags(0)
    A("s_waitcnt vmcnt(0) lgkmcnt(2)")
    flagstore("s41", OPT["ro"], 131072)
    wo_frags(1)
    A(f"""s_lshr_b32 s4, s2, 4
s_lshl_b32 s4, s4, 2
s_bfe_u32 s5, s2, 0x20001
s_or_b32 s4, s4, s5
s_and_b32 s5, s2, 1
s_and_b32 s46, s5, {OPT["ro"]-1}
s_lshl_b32 s46, s46, 17
s_lshl_b32 s5, s5, 1
s_bfe_u32 s6, s2, 0x10003
s_or_b32 s5, s5, s6            ; n quarter
s_lshl_b32 s43, s4, 15
s_lshl_b32 s44, s40, 13
s_add_u32 s43, s43, s44
s_add_u32 s43, s43, {O_OFF}
s_add_u32 s47, s43, 4096
v_and_b32 v14, 31, v0
v_mul_u32_u24 v2, 1792, v14
v_lshl_add_u32 v2, v15, 4, v2
s_mul_i32 s41, s4, {32*1792}
s_lshl_b32 s42, s5, 8
s_add_u32 s41, s41, s42
s_add_u32 s41, s41, s45
s_add_u32 s41, s41, 896
s_lshl_b32 s42, s4, 11
s_add_u32 s46, s46, s42
s_lshl_b32 s42, s40, 9
s_add_u32 s46, s46, s42
s_add_u32 s46, s46, {FO_OFF}
v_and_b32 v9, 3, v0
v_lshlrev_b32 v9, 7, v9""")
    lds_sync(C_WOF, 4)
    assert OST == 0
    def odma():
        for half in range(2):
            A(f"s_add_u32 m0, s44, {OST+4096*half}")
            for i in range(4):
                A(f"buffer_load_dwordx4 v8, {W}, s{47 if half else 43} offen offset:{1024*i} {SC} lds")
    if not OPT["dyn"]:
        spin(f"buffer_load_dword v14, v9, {W}, s46 offen {SC}", 14, OPT["sl1"])
        stamp(11)
        odma()
        A("s_waitcnt vmcnt(0)")
        lds_sync(C_OST, 4)
        stampw(12)
        def rd(n): A(f"ds_read_b128 {vr(OB+4*(n%NB),4)}, v8 offset:{1024*n}")
        for n in range(NB-1): rd(n)
        for n in range(32):
            if n + NB - 1 < 32: rd(n + NB - 1)
            left = min(31, n+NB-1) - n
            A(f"s_waitcnt lgkmcnt({left})\n{MFMA} {vr(BACC,16)}, {vr(WF+4*n,4)}, {vr(OB+4*(n%NB),4)}, {vr(BACC,16) if n else 0}")
    else:
        LL, LM, LNONE, LX = A.lab("b3l"), A.lab("b3m"), A.lab("b3n"), A.lab("b3x")
        LG = [A.lab("b3g") for _ in range(4)]
        GA = (16, 32, 48, 96)
        A(f"""v_mov_b32 v12, {C_OST}
s_lshl_b32 s52, 1, s40
v_mov_b32 v10, s52
s_mov_b32 s50, 0
s_mov_b32 s51, 0
s_mov_b32 s61, {SPIN}
{LL}:
s_cmp_lg_u32 s50, 0
s_cbranch_scc1 {LM}
buffer_load_dword v14, v9, {W}, s46 offen {SC}
s_sub_u32 s61, s61, 1
s_waitcnt vmcnt(0)
v_cmp_ne_u32 vcc, s{TAG}, v14
s_cmp_eq_u32 s61, 0
s_cselect_b64 vcc, 0, vcc
s_cbranch_vccnz {LM}""")
        stamp(11)
        odma()
        A(f"""s_mov_b32 s50, 1
{LM}:
ds_read_b32 v13, v12
s_waitcnt lgkmcnt(0)
v_readfirstlane_b32 s60, v13
s_andn2_b32 s60, s60, s51
s_cbranch_scc0 {LNONE}
s_ff1_i32_b32 s53, s60
s_bitset1_b32 s51, s53
s_cmp_eq_u32 s53, 1
s_cbranch_scc1 {LG[1]}
s_cmp_eq_u32 s53, 2
s_cbranch_scc1 {LG[2]}
s_cmp_eq_u32 s53, 3
s_cbranch_scc1 {LG[3]}""")
        for g in range(4):
            A(f"{LG[g]}:")
            for n in range(8): A(f"ds_read_b128 {vr(OB+4*n,4)}, v8 offset:{1024*(8*g+n)}")
            for n in range(8):
                A(f"s_waitcnt lgkmcnt({7-n})\n{MFMA} {vr(GA[g],16)}, {vr(WF+32*g+4*n,4)}, {vr(OB+4*n,4)}, {vr(GA[g],16) if n else 0}")
            A(f"s_cmp_eq_u32 s51, 15\ns_cbranch_scc0 {LL}\ns_branch {LX}")
        A(f"""{LNONE}:
s_cmp_lg_u32 s50, 1
s_cbranch_scc1 {LL}
s_waitcnt vmcnt(0)
s_mov_b64 exec, 1
ds_or_b32 v12, v10
s_mov_b64 exec, -1
s_mov_b32 s50, 2""")
        stamp(12)
        A(f"s_branch {LM}\n{LX}:\ns_nop 8")
        for i in range(0, 16, 2):
            A(f"v_pk_add_f32 {vr(16+i,2)}, {vr(16+i,2)}, {vr(32+i,2)}\nv_pk_add_f32 {vr(48+i,2)}, {vr(48+i,2)}, {vr(96+i,2)}")
        for i in range(0, 16, 2): A(f"v_pk_add_f32 {vr(16+i,2)}, {vr(16+i,2)}, {vr(48+i,2)}")
    A(f"""s_lshl_b32 s42, s5, 2
s_add_u32 s42, s42, s40
s_cmp_ge_u32 s42, 14
s_cbranch_scc1 {END}""")
    for i in range(8): A(f"v_cvt_pk_bf16_f32 v{32+i}, v{BACC+2*i}, v{BACC+2*i+1}")
    A(f"""buffer_store_dwordx4 v[32:35], v2, {sr(SO,4)}, s41 offen {OBM}
buffer_store_dwordx4 v[36:39], v2, {sr(SO,4)}, s41 offen offset:32 {OBM}
s_branch {END}""")

def helper():
    SWO = 56
    T, AC2, WA, WB, Y = 16, 48, 64, 72, 80
    LNOA2, LNY2, LP2 = "L_noa2", A.lab("nyq"), A.lab("pub2")
    A(f"{HELP2}:")
    if OPT["x"] >= 4:
        lds_add(C_WOA); A(f"s_branch {END}")
    stamp(11)
    if OPT["pda"] < 0: lds_add(C_H)
    A(f"""s_lshr_b32 s5, s2, 3
s_cmp_ge_u32 s5, 29
s_cbranch_scc1 {LNOA2}
v_lshrrev_b32 v8, 3, v0
v_and_b32 v9, 4, v8
v_bfe_u32 v10, v8, 1, 1
v_or_b32 v9, v9, v10
v_and_b32 v8, 1, v8
v_lshl_or_b32 v9, v8, 1, v9     ; s2 mod 8 = 4*(p>>1) + 2h + (p&1)
v_mul_u32_u24 v1, {T_ROW}, v9
v_and_b32 v8, 1, v0
v_lshl_add_u32 v1, v8, 9, v1
v_bfe_u32 v8, v0, 1, 2
v_lshl_add_u32 v1, v8, 4, v1    ; T offset
s_lshl_b32 s41, s5, 10
s_lshl_b32 s42, s4, 6
s_add_u32 s41, s41, s42
s_add_u32 s41, s41, {T_OFF}
s_mul_i32 s42, s40, {16*T_ROW}
s_add_u32 s41, s41, s42
s_mul_i32 s44, s5, 43
s_lshr_b32 s44, s44, 8          ; g5
s_lshl_b32 s45, s44, 11
s_and_b32 s46, s2, {OPT["r1"]-1}
s_lshl_b32 s46, s46, 15
s_add_u32 s46, s46, {F1_OFF + 11*2048}
v_and_b32 v9, 15, v0
v_lshlrev_b32 v9, 7, v9
v_add_u32 v9, s45, v9
v_mov_b32 v10, 0
v_mov_b32_dpp v9, v10 {HI}
s_lshl_b32 s43, s40, 11
s_add_u32 m0, s43, {TX}
s_add_u32 s47, s41, {8*T_ROW - 1024}
s_nop 0""")
    if OPT["wg"]:
        LQ, LQ2 = A.lab("wg"), A.lab("wg")
        A(f"s_cmp_ge_u32 s7, 11\ns_cbranch_scc1 {LQ}")
        srd(28, P_WR, W_BYTES); srd(32, P_WI, W_BYTES)
        A(f"""s_mul_i32 s55, s4, {4*450}
s_mul_i32 s54, s40, {512*450}
s_add_u32 s55, s55, s54
s_lshl_b32 s54, s5, 4
s_add_u32 s55, s55, s54
v_lshrrev_b32 v10, 2, v0
v_and_b32 v11, 3, v0
v_lshl_add_u32 v10, v10, 5, v11
v_mul_u32_u24 v10, 450, v10""")
        lds_wait(C_G2, 4, 2)
        A(f"""v_mov_b32 v12, {C_W}
{LQ2}:
ds_read_b32 v13, v12
s_waitcnt lgkmcnt(0)
v_readfirstlane_b32 s60, v13
s_sleep 1
s_cmp_lt_u32 s60, s40
s_cbranch_scc1 {LQ2}
s_add_u32 m0, s43, {WX}
s_nop 0
buffer_load_dwordx4 v10, s[28:31], s55 offen lds
s_add_u32 m0, s43, {WX+1024}
s_waitcnt vmcnt(0)
buffer_load_dwordx4 v10, s[32:35], s55 offen lds
s_waitcnt vmcnt(0)""")
        lds_add(C_W)
        A(f"s_add_u32 m0, s43, {TX}\n{LQ}:")
    lds_wait(C_G2 if OPT["g2"] else C_LF, 4, 1)
    def a1poll():
        A(f"""buffer_load_dword v10, v9, {W}, s46 offen {SC}
s_waitcnt vmcnt(0)
v_cmp_ne_u32 vcc, s{TAG}, v10""")
    acquire(R_A1, a1poll, OPT["sl2"], 1)
    stamp(6)
    A(f"""buffer_load_dwordx4 v1, {W}, s41 offen {SC} lds
buffer_load_dwordx4 v1, {W}, s47 offen offset:1024 {SC} lds
v_lshrrev_b32 v8, 3, v14        ; u1 local
v_and_b32 v9, 7, v14            ; k local
v_lshl_add_u32 v2, v15, 3, v8
v_lshlrev_b32 v2, 4, v2
v_lshl_add_u32 v2, v9, 1, v2
s_cmp_eq_u32 s5, 28
s_cselect_b32 s45, 14, 0
s_add_u32 s42, s43, s45
s_add_u32 s42, s42, {WX}
v_add_u32 v2, s42, v2
v_mul_u32_u24 v3, {2*T2_ROW}, v15
v_lshl_add_u32 v3, v9, 4, v3
v_lshl_add_u32 v3, v8, 2, v3    ; T2 offset
v_lshlrev_b32 v8, 4, v0
v_add_u32 v8, {EX}, v8
v_add_u32 v9, s43, v8
v_lshlrev_b32 v1, 2, v0
v_add_u32 v1, {TX}, v1""")
    for i in range(16): A(f"v_mov_b32 v{WA+i}, 0")
    A("s_waitcnt vmcnt(0)")
    lds_sync(C_T, 4)
    for m in range(0, 28, 2): A(f"ds_read2st64_b32 {vr(T+m,2)}, v1 offset0:{m} offset1:{m+1}")
    for f in range(8):
        if f == 1:
            for m in range(28, 32, 2): A(f"ds_read2st64_b32 {vr(T+m,2)}, v1 offset0:{m} offset1:{m+1}")
        A(f"s_waitcnt lgkmcnt({12 if f == 0 else 14-2*f})\n{MFMA} {vr(AC2,16)}, {vr(C+4*f,4)}, {vr(T+4*f,4)}, {vr(AC2,16) if f else 0}")
    lds_wait(C_W, 4)
    for j in range(8):
        A(f"ds_read_u16_d16_hi v{WA+j}, v2 offset:{(4*(j>>1)+(j&1))*64}")
    A("s_waitcnt lgkmcnt(4)")
    for j in range(8):
        A(f"ds_read_u16_d16_hi v{WB+j}, v2 offset:{(4*(j>>1)+(j&1))*64+1024}")
    A(f"s_waitcnt lgkmcnt(0)\ns_cmp_lg_u32 s5, 28\ns_cbranch_scc1 {LNY2}")
    for j in range(8): A(f"v_xor_b32 v{WA+j}, 0x80000000, v{WA+j}")
    A(f"{LNY2}:")
    A(f"""s_mul_i32 s41, s40, {16*T2_ROW}
s_mul_i32 s42, s4, {T2_Q}
s_add_u32 s41, s41, s42
s_lshl_b32 s42, s5, 7
s_add_u32 s41, s41, s42
s_add_u32 s41, s41, {T2_OFF}""")
    for j in range(8):
        xr, xi = AC2+2*j, AC2+2*j+1
        A(f"""v_mul_f32 v10, v{xr}, v{WA+j}
v_mul_f32 v11, v{xr}, v{WB+j}
v_fma_f32 v10, -v{xi}, v{WB+j}, v10
v_fmac_f32 v11, v{xi}, v{WA+j}
v_cvt_pk_bf16_f32 v{Y+j}, v11, v10""")
        if j == 3: A(f"ds_write_b128 v9, {vr(Y,4)}")
    A(f"ds_write_b128 v9, {vr(Y+4,4)} offset:1024")
    lds_sync(C_EX, 4)
    for f in range(8): A(f"ds_read_b128 {vr(T+4*f,4)}, v8 offset:{1024*f}")
    for f in range(8):
        A(f"s_waitcnt lgkmcnt({7-f})\n{MFMA} {vr(AC2,16)}, {vr(C+4*f,4)}, {vr(T+4*f,4)}, {vr(AC2,16) if f else 0}")
    for j in range(8):
        A(f"""v_cvt_pk_bf16_f32 v{Y+j}, v{AC2+2*j+1}, v{AC2+2*j}
s_add_u32 s43, s41, {(4*(j>>1)+(j&1))*T2_ROW}
buffer_store_dword v{Y+j}, v3, {W}, s43 offen {SC}""")
    stamp(7)
    arrive(C_A2, LP2)
    A(f"""s_lshl_b32 s41, s44, 2
s_lshr_b32 s42, s4, 1
s_add_u32 s41, s41, s42
s_lshl_b32 s41, s41, 7
s_add_u32 s41, s41, {AT_OFF}
s_cmp_eq_u32 s44, 4
s_cselect_b32 s42, 9, 11
v_mov_b32 v12, 0
v_mov_b32 v13, 1
s_mov_b64 exec, 1
buffer_atomic_add v13, v12, {W}, s41 offen sc0 sc1
s_mov_b64 exec, -1
s_waitcnt vmcnt(0)
v_readfirstlane_b32 s60, v13
s_cmp_lg_u32 s60, s42
s_cbranch_scc1 {LP2}
v_mov_b32 v13, 1
s_mov_b32 s41, {AT_OFF + 20*128}
s_mov_b64 exec, 1
buffer_atomic_add v13, v12, {W}, s41 offen sc0 sc1
s_mov_b64 exec, -1
s_waitcnt vmcnt(0)
v_readfirstlane_b32 s60, v13
s_cmp_lg_u32 s60, 19
s_cbranch_scc1 {LP2}
s_mov_b32 s41, {F2_OFF}""")
    flagstore("s41", 8, 128)
    assert EPOCH_OFF == 0
    flagstore("0", 1, 0)
    A(f"{LP2}:")
    lds_wait(C_A2, 4, 4)
    A(f"{LNOA2}:")
    srd(SWO, P_WO, WO_BYTES)
    LW = A.lab("wo")
    A(f"""s_and_b32 s53, s2, 1
s_lshl_b32 s53, s53, 1
s_bfe_u32 s54, s2, 0x10003
s_or_b32 s53, s53, s54
s_lshl_b32 s53, s53, 8
s_mul_i32 s54, s40, {112*896}
s_add_u32 s53, s53, s54
s_mul_i32 s54, s40, {112*256}
v_lshrrev_b32 v9, 4, v0
v_and_b32 v8, 15, v0
v_lshlrev_b32 v4, 2, v9
v_xor_b32 v8, v8, v4
v_lshlrev_b32 v8, 4, v8
v_mul_u32_u24 v9, 896, v9
v_add_u32 v4, v8, v9""")
    lds_wait(C_G2, 4, 4)
    A(f"""s_mov_b32 m0, s54
s_mov_b32 s55, 28
{LW}:
{"s_sleep %d" % OPT["wos"] if OPT["wos"] > 0 else "s_waitcnt vmcnt(%d)" % -OPT["wos"]}
buffer_load_dwordx4 v4, {sr(SWO,4)}, s53 offen lds
s_add_u32 m0, m0, 1024
s_add_u32 s53, s53, {4*896}
s_sub_u32 s55, s55, 1
s_cmp_lg_u32 s55, 0
s_cbranch_scc1 {LW}
s_waitcnt vmcnt(0)""")
    lds_add(C_WOA)
    stamp(12)
    TA, NY, AC3, ZB, AC4 = 16, 48, 64, 16, 112
    A(f"""v_and_b32 v8, 15, v14
v_lshrrev_b32 v9, 4, v14
v_lshl_or_b32 v8, v8, 1, v9
v_mul_u32_u24 v2, {T2_Q}, v15
v_lshl_add_u32 v1, v8, 4, v2    ; T2 offset
v_add_u32 v2, {224*16}, v2
s_mul_i32 s41, s50, {T2_ROW}
s_add_u32 s41, s41, {T2_OFF}
s_lshl_b32 s42, s40, 9
s_add_u32 s42, s42, s41
s_and_b32 s46, s2, 7
s_lshl_b32 s46, s46, 7
s_add_u32 s46, s46, {F2_OFF}
v_mov_b32 v9, 0""")
    srd(SO, P_OUT, OUT_BYTES)
    def a2poll():
        A(f"""buffer_load_dword v10, v9, {W}, s46 offen {SC}
s_waitcnt vmcnt(0)
v_cmp_ne_u32 vcc, s{TAG}, v10""")
    acquire(R_A2, a2poll, OPT["sl3"], OPT["sl3"])
    stamp(8)
    LA, LB = A.lab("a3l"), A.lab("a3l")
    for f in range(4):
        A(f"s_add_u32 s43, s42, {2*f*T2_Q}\nbuffer_load_dwordx4 {vr(TA+4*f,4)}, v1, {W}, s43 offen {SC}\ns_sleep 1")
    A(f"s_cmp_eq_u32 s40, 3\ns_cbranch_scc1 {LA}")
    for f in range(4):
        A(f"s_add_u32 s43, s42, {2*f*T2_Q + 2048}\nbuffer_load_dwordx4 {vr(TA+16+4*f,4)}, v1, {W}, s43 offen {SC}\ns_sleep 1")
    A(f"{LA}:\ns_cmp_lg_u32 s40, 0\ns_cbranch_scc1 {LB}")
    for f in range(4):
        A(f"s_add_u32 s43, s41, {2*f*T2_Q}\nbuffer_load_dwordx4 {vr(NY+4*f,4)}, v2, {W}, s43 offen {SC}")
    A(f"{LB}:")
    lds_wait(C_GO, 4, OPT["slg"])
    A("s_setprio 0")
    if OPT["x"] not in (2, 3): stamp(10)
    LN3, LZ = A.lab("a3ny"), A.lab("a3z")
    A("s_waitcnt vmcnt(0)")
    setup = f"""v_lshlrev_b32 v5, 4, v0
s_lshl_b32 s43, s40, 11
s_add_u32 s43, s43, {ZOFF}
v_add_u32 v6, s43, v5
s_mul_i32 s43, s52, 14336
s_add_u32 s43, s43, {ZOFF}
v_add_u32 v5, s43, v5
s_lshr_b32 s46, s40, 1
s_lshl_b32 s46, s46, 3
v_add_u32 v7, s46, v15          ; 8p + h
v_and_b32 v9, 7, v14
v_xor_b32 v7, v7, v9
v_lshlrev_b32 v7, 4, v7
v_lshl_or_b32 v7, v14, 8, v7
s_lshl_b32 s46, s52, 13
s_add_u32 s46, s46, {YOFF}
v_add_u32 v7, s46, v7           ; Y write address
v_lshrrev_b32 v8, 3, v0
s_lshl_b32 s46, s40, 3
v_add_u32 v8, s46, v8           ; row (s1)
v_and_b32 v9, 7, v0             ; piece
v_lshlrev_b32 v10, 1, v9
v_and_b32 v11, 7, v8
v_xor_b32 v10, v10, v11
v_lshlrev_b32 v10, 4, v10
v_lshl_or_b32 v10, v8, 8, v10
v_add_u32 v10, {YOFF}, v10
v_xor_b32 v11, 16, v10
v_mul_u32_u24 v8, {64*1792}, v8
v_lshl_add_u32 v8, v9, 4, v8    ; out offset
s_mul_i32 s41, s50, 1792
s_lshl_b32 s42, s51, 7
s_add_u32 s41, s41, s42""".split("\n")
    for tt in range(2):
        for f in range(4):
            A(f"{MFMA} {vr(AC3+32*tt,16)}, {vr(TA+16*tt+4*f,4)}, {vr(ER+4*f,4)}, {vr(AC3+32*tt,16) if f else 0}")
            for _ in range(5):
                if setup: A(setup.pop(0))
    assert not setup
    A(f"s_cmp_eq_u32 s51, 3\ns_cselect_b32 s42, 4, 8\nv_cmp_gt_u32 s[48:49], s42, v9")
    A(f"s_cmp_lg_u32 s40, 0\ns_cbranch_scc1 {LN3}\ns_mov_b32 exec_lo, 1\ns_mov_b32 exec_hi, 1")
    for i in range(16): A(f"v_mov_b32 v{TA+i}, v{NY+i}")
    A(f"s_mov_b64 exec, -1\n{LN3}:\ns_nop 1")
    def zout(tt, part):
        a = AC3+32*tt+16*part
        e = [f"v_cvt_pk_bf16_f32 v{a+i}, v{a+2*i}, v{a+2*i+1}" for i in range(8)]
        return e + [f"ds_write_b128 v6, {vr(a+4*p,4)} offset:{14336*p+8192*tt+1024*part}" for p in range(2)]
    pend = zout(0, 0)
    for tt in range(2):
        for f in range(4):
            A(f"{MFMA} {vr(AC3+32*tt+16,16)}, {vr(TA+16*tt+4*f,4)}, {vr(EI+4*f,4)}, {vr(AC3+32*tt+16,16) if f else 0}")
            for _ in range(3):
                if pend: A(pend.pop(0))
    for x in pend + zout(0, 1): A(x)
    A(f"s_cmp_eq_u32 s40, 3\ns_cbranch_scc1 {LZ}")
    for x in zout(1, 0) + zout(1, 1): A(x)
    A(f"{LZ}:")
    lds_sync(C_Z, 4)
    for i in range(14): A(f"ds_read_b128 {vr(ZB+4*i,4)}, v5 offset:{1024*i}")
    for i in range(14):
        A(f"s_waitcnt lgkmcnt({13-i})\n{MFMA} {vr(AC4,16)}, {vr(G+4*i,4)}, {vr(ZB+4*i,4)}, {vr(AC4,16) if i else 0}")
    for g in range(4):
        A(f"v_xor_b32 v9, {32*g}, v7\nds_write_b128 v9, {vr(AC4+4*g,4)}")
    lds_sync(C_Y, 4)
    A(f"""ds_read_b128 v[16:19], v10
ds_read_b128 v[20:23], v11
ds_read_b128 v[24:27], v10 offset:8192
ds_read_b128 v[28:31], v11 offset:8192
s_waitcnt lgkmcnt(0)""")
    for i in range(8): A(f"v_add_f32 v{32+i}, v{16+i}, v{24+i}\nv_sub_f32 v{40+i}, v{16+i}, v{24+i}")
    for i in range(8): A(f"v_cvt_pk_bf16_f32 v{48+i}, v{32+2*i}, v{33+2*i}")
    A(f"""s_mov_b64 exec, s[48:49]
buffer_store_dwordx4 v[48:51], v8, {sr(SO,4)}, s41 offen {OA}
buffer_store_dwordx4 v[52:55], v8, {sr(SO,4)}, s41 offen offset:448 {OA}
s_mov_b64 exec, -1
s_branch {END}""")

def fallback():
    L1, L2 = A.lab("fb1"), A.lab("fb2")
    tl = tile_loads(0, 43)
    A(f"""{LFB}:
v_mov_b32_dpp v{Q+24+6}, v7 {HI}
v_mov_b32 v12, 0xff800000
s_mov_b32 s43, {KV_OFF}
{L1}:
{tl[0]}
{tl[1]}
s_waitcnt vmcnt(0)
{MFMA} {vr(S,16)}, {vr(kb(0,0),4)}, {q(3,0)}, 0
{MFMA} {vr(S,16)}, {vr(kb(0,1),4)}, {q(3,1)}, {vr(S,16)}""")
    for i in range(0, 16, 2): A(f"v_max3_f32 v12, v12, v{S+i}, v{S+i+1}")
    A(f"""s_add_u32 s43, s43, {KV_REC}
s_cmp_lt_u32 s43, {KV_OFF+64*KV_REC}
s_cbranch_scc1 {L1}
v_mov_b32 v13, v12
v_mov_b32 v14, v12
v_permlane32_swap_b32 v13, v14
v_max_f32 v12, v13, v14""")
    for i in range(16): A(f"v_mov_b32 v{OK+i}, 0")
    A(f"s_mov_b32 s43, {KV_OFF}\n{L2}:")
    for x in tl: A(x)
    A(f"""s_waitcnt vmcnt(0)
{MFMA} {vr(S,16)}, {vr(kb(0,0),4)}, {q(3,0)}, 0
{MFMA} {vr(S,16)}, {vr(kb(0,1),4)}, {q(3,1)}, {vr(S,16)}""")
    for i in range(16): A(f"v_sub_f32 v{S+i}, v{S+i}, v12")
    for i in range(16): A(f"v_exp_f32 v{S+i}, v{S+i}")
    A(f"""{SMF} {vr(OK,16)}, {vr(kb(0,2),4)}, {vr(S,8)}, v5
{SMF} {vr(OK,16)}, {vr(kb(0,3),4)}, {vr(S+8,8)}, v5
s_nop 15
s_add_u32 s43, s43, {KV_REC}
s_cmp_lt_u32 s43, {KV_OFF+64*KV_REC}
s_cbranch_scc1 {L2}
s_branch {LN}""")

def finish():
    A(f"{END}:")
    if OPT["probe"]:
        LQ = A.lab("probe")
        stamp(13)
        A(f"""s_cmp_lg_u32 s2, {OPT["pwg"]}
s_cbranch_scc1 {FIN}
s_cmp_lg_u32 s3, {OPT["pwave"]}
s_cbranch_scc1 {FIN}
s_waitcnt lgkmcnt(0)
s_sub_u32 s56, s{64+2*OPT["probe"]}, s66
s_mul_i32 s56, s56, 10
s_add_u32 s56, s56, s90
{LQ}:
s_memrealtime s[58:59]
s_waitcnt lgkmcnt(0)
s_sub_u32 s57, s58, s56
s_cmp_lt_i32 s57, 0
s_cbranch_scc1 {LQ}""")
    elif STAMPS:
        stamp(13)
        A(f"""s_waitcnt vmcnt(0)
s_memtime s[92:93]
s_memrealtime s[94:95]
s_waitcnt lgkmcnt(0)
{"s_getreg_b32 s64, hwreg(HW_REG_XCC_ID)" if STAMPS == 1 else ""}
{"s_getreg_b32 s92, hwreg(HW_REG_HW_ID)" if STAMPS == 1 else ""}
s_mov_b32 s56, s24
s_mov_b32 s57, s25
s_mov_b32 s58, 0x2000000
s_mov_b32 s59, 0x00020000
s_mov_b64 exec, 1
s_lshl_b32 s60, s2, 3
s_add_u32 s60, s60, s3
s_lshl_b32 s60, s60, 6
s_add_u32 s60, s60, {TS_OFF}
v_mov_b32 v1, 0""")
        for i in range(16):
            A(f"v_mov_b32 v2, s{64+2*i}\nbuffer_store_dword v2, v1, s[56:59], s60 offen offset:{4*i}")
    A(f"{FIN}:\ns_endpgm")

entry(); b1_loader(); a1_dispatch_loader(); a1_gen(); a1_compute(); pub1(); helper()
A(f"{LB1C}:\ns_setprio 2"); main_start()
for i in range(64): A(f"v_mov_b32 v{ACC+i}, 0")
A("s_waitcnt lgkmcnt(0)"); gettag()
gen_pre(); b1_compute()
attention(); fallback(); finish()

HDR = open("cdna_kernels/%s.s.ref" % NAME).read().split("; Override")[0]
txt = HDR + f"; @launch grid=(256,1,1) block=(512,1,1) lds={LDS_BYTES}\n"
txt += '.amdgcn_target "amdgcn-amd-amdhsa--gfx950"\n.text\n' + A.finish()
txt += f""".section .rodata,"a"
.p2align 6
.amdhsa_kernel {K}
  .amdhsa_next_free_vgpr 256
  .amdhsa_next_free_sgpr 96
  .amdhsa_accum_offset 256
  .amdhsa_group_segment_fixed_size 0
  .amdhsa_kernarg_size 72
  .amdhsa_user_sgpr_count 2
  .amdhsa_user_sgpr_kernarg_segment_ptr 1
  .amdhsa_system_sgpr_workgroup_id_x 1
.end_amdhsa_kernel
"""
out = args[0] if args else "cdna_kernels/%s.s" % NAME
open(out, "w").write(txt)
print("wrote", out, len(txt))
```

```python
import sys, struct
from emit import Asm
from layout import *
NAME = "concat_heads__spectral_gfnet__softmax_full_mha__prompt"
OPT = dict(stamps=0, r1=8, pf=1, sl1=1, sl2=8, sl3=16, rot=1, x=0, probe=0, pwave=4, pwg=100, pd=0, wos=-2, lp=13, slg=8, g2=1, ro=2, wm=1, tch=0, pda=0, oa=0, ob=0, gd=0, dyn=0, wsb=0, fl=1, pw=2, tw=0, sd=0, sp=0, td=0, ad=0, bn=0, gk=6, hp=2, hs=2, fo=1, ts=0, ap=0, pm=0, fm=0, al=0, pk=0, lg=2, hk=6, bp=0)
args = []
for a in sys.argv[1:]:
    if "=" in a: k, v = a.split("="); assert k in OPT, k; OPT[k] = int(v)
    else: args.append(a)
STAMPS = OPT["stamps"]
MODS = ['', 'sc1', 'nt', 'sc0 sc1']
OA, OBM = MODS[OPT['oa']], MODS[OPT['ob']]
def f32(x): return "0x%08x" % struct.unpack("<I", struct.pack("<f", x))[0]
def vr(a, n=1): return f"v{a}" if n == 1 else f"v[{a}:{a+n-1}]"
def sr(a, n=1): return f"s{a}" if n == 1 else f"s[{a}:{a+n-1}]"
P_AX, P_WR, P_WI, P_BX, P_WQKV, P_WO, P_OUT, P_DBG, P_WS = 8,10,12,14,16,18,20,22,24
MFMA = "v_mfma_f32_32x32x16_bf16"
SMF = "v_smfmac_f32_32x32x32_bf16"
SC = "sc1"
PM = ['sc1', 'sc0 sc1', 'sc1 nt', 'sc0 sc1 nt'][OPT['pm']]
FM = ['sc1', 'sc0 sc1', 'sc1 nt', 'sc0 sc1 nt'][OPT['fm']]
HI = "quad_perm:[0,1,2,3] row_mask:0xc bank_mask:0xf"
TAGC = 0x9E3779B9
TAG = 62
SWS = 36; W = sr(SWS,4)
SX, SW = 28, 32
SPIN = 200000
FOFF = 7*16384
WO, OST = 0, 0
QX, EX, TX, WX = 0, 8192, 16384, 24576
MERGE = 114688
ZOFF, YOFF = MERGE, MERGE + 28672
CNT = 162816
LDS_BYTES = 163840
(C_P1, R_KV, C_MERGE, C_OST, R_A1, C_EX, C_A2, R_A2, C_Z, C_Y, C_WOA, C_WOF, C_GO, C_G2, C_Q, C_LF, C_T, C_W, C_X, C_H) = [CNT+16*i+12 for i in range(20)]

A = Asm()
def stamp(i):
    if STAMPS: A(f"{'s_memtime' if STAMPS == 2 else 's_memrealtime'} s[{64+2*i}:{65+2*i}]")
def stampw(i):
    if STAMPS: stamp(i); A("s_waitcnt lgkmcnt(0)")
def srd(d, p, nbytes):
    A(f"s_mov_b32 s{d}, s{p}\ns_mov_b32 s{d+1}, s{p+1}\ns_mov_b32 s{d+2}, {nbytes}\ns_mov_b32 s{d+3}, 0x00020000")
def pi32(d, s, t):
    A(f"""v_and_b32 v{d}, 0x13, v{s}
v_and_b32 v{t}, 4, v{s}
v_lshl_or_b32 v{d}, v{t}, 1, v{d}
v_and_b32 v{t}, 8, v{s}
v_lshrrev_b32 v{t}, 1, v{t}
v_or_b32 v{d}, v{d}, v{t}""")
def mod7(d, t):
    A(f"s_mul_i32 s{t}, s{d}, 37\ns_lshr_b32 s{t}, s{t}, 8\ns_mul_i32 s{t}, s{t}, 7\ns_sub_u32 s{d}, s{d}, s{t}")
def lds_add(addr):
    A(f"v_mov_b32 v12, {addr}\nv_mov_b32 v13, 1\ns_mov_b64 exec, 1\nds_add_u32 v12, v13\ns_mov_b64 exec, -1")
def lds_wait(addr, target, sleep=0, setup=True):
    L, L2 = A.lab("lw"), A.lab("lwd")
    if setup: A(f"v_mov_b32 v12, {addr}")
    A(f"""{L}:
ds_read_b32 v13, v12
s_waitcnt lgkmcnt(0)
v_readfirstlane_b32 s60, v13
s_cmp_ge_u32 s60, {target}""")
    if sleep: A(f"s_cbranch_scc1 {L2}\ns_sleep {sleep}\ns_branch {L}\n{L2}:")
    else: A(f"s_cbranch_scc0 {L}")
def lds_sync(addr, target, sleep=0):
    A("s_waitcnt lgkmcnt(0)"); lds_add(addr); lds_wait(addr, target, sleep, False)
def arrive(cnt, skip):
    A(f"""v_mov_b32 v12, {cnt}
v_mov_b32 v13, 1
s_mov_b64 exec, 1
s_waitcnt vmcnt(0)
ds_add_rtn_u32 v13, v12, v13
s_mov_b64 exec, -1
s_waitcnt lgkmcnt(0)
v_readfirstlane_b32 s60, v13
s_cmp_lg_u32 s60, 3
s_cbranch_scc1 {skip}""")
def flagstore(soff, nrep, repstride, t=40, val=None):
    val = val or f"s{TAG}"
    if not OPT["fl"]:
        A(f"""v_mul_u32_u24 v12, {repstride}, v0
v_mov_b32 v13, {val}
s_mov_b64 exec, {(1<<nrep)-1}
buffer_store_dword v13, v12, {W}, {soff} offen {SC}
s_mov_b64 exec, -1""")
        return
    A(f"""v_lshrrev_b32 v12, 3, v0
v_mul_u32_u24 v12, {repstride}, v12
v_and_b32 v13, 7, v0
v_lshl_add_u32 v12, v13, 4, v12""")
    for i in range(4): A(f"v_mov_b32 v{t+i}, {val}")
    if nrep < 8: A(f"s_mov_b64 exec, {(1<<(8*nrep))-1}")
    A(f"buffer_store_dwordx4 {vr(t,4)}, v12, {W}, {soff} offen {FM}")
    if nrep < 8: A("s_mov_b64 exec, -1")
def publish(cnt, soff, nrep, repstride):
    L = A.lab("pub")
    if OPT["fl"]:
        A(f"v_lshrrev_b32 v10, 3, v0\nv_mul_u32_u24 v10, {repstride}, v10\nv_and_b32 v13, 7, v0\nv_lshl_add_u32 v10, v13, 4, v10")
        for i in range(4): A(f"v_mov_b32 v{36+i}, s{TAG}")
        arrive(cnt, L)
        if nrep < 8: A(f"s_mov_b64 exec, {(1<<(8*nrep))-1}")
        A(f"buffer_store_dwordx4 v[36:39], v10, {W}, s{soff} offen {FM}")
        if nrep < 8: A("s_mov_b64 exec, -1")
    else:
        arrive(cnt, L); flagstore(f"s{soff}", nrep, repstride)
    lds_add(C_X); A(f"{L}:")
def acquire(rel, body, sleep, sleep2=1):
    LP, LD, LO, LE = A.lab("poll"), A.lab("pollok"), A.lab("pollw"), A.lab("polle")
    A(f"s_cmp_lg_u32 s40, 0\ns_cbranch_scc1 {LO}\ns_mov_b32 s61, {SPIN}\n{LP}:")
    body()
    A(f"""s_cbranch_vccz {LD}
s_sub_u32 s61, s61, 1
s_cmp_eq_u32 s61, 0
s_cbranch_scc1 {LD}
s_sleep {sleep}
s_branch {LP}
{LD}:""")
    lds_add(rel)
    A(f"s_branch {LE}\n{LO}:")
    lds_wait(rel, 1, sleep2)
    A(f"{LE}:")
def spin(load, reg, sleep):
    LP, LD = A.lab("spin"), A.lab("spinok")
    A(f"""s_mov_b32 s61, {SPIN}
{LP}:
{load}
s_waitcnt vmcnt(0)
v_cmp_ne_u32 vcc, s{TAG}, v{reg}
s_cbranch_vccz {LD}
s_sub_u32 s61, s61, 1
s_cmp_eq_u32 s61, 0
s_cbranch_scc1 {LD}
s_sleep {sleep}
s_branch {LP}
{LD}:""")
def gettag():
    if OPT["wsb"]: A(f"s_add_u32 s24, s24, {OPT['wsb'] << 20}\ns_addc_u32 s25, s25, 0")
    A(f"s_load_dword s{TAG}, s[24:25], {EPOCH_OFF}")
    srd(SWS, P_WS, WS_USED)
def fixtag():
    A(f"s_waitcnt lgkmcnt(0)\ns_add_u32 s{TAG}, s{TAG}, {TAGC}")

FIN, END, ATT, PUB1, HELP2, GEN = "L_fin", "L_end", "L_att", "L_pub1", "L_help2", "L_gen"
LA1, LB1C, LB1G, LA1C, LV, LN, LFB = "L_a1", "L_b1c", "L_b1g", "L_a1c", "L_b1v", "L_norm", "L_fallback"
K = NAME + "_kernel"

def entry():
    A(f".globl {K}\n.p2align 8\n.type {K},@function\n{K}:")
    A(f"""s_cmp_ge_u32 s2, 256
s_cbranch_scc1 {FIN}
s_load_dwordx16 s[8:23], s[0:1], 0
s_load_dwordx2 s[24:25], s[0:1], 64
v_lshrrev_b32 v1, 6, v0
v_readfirstlane_b32 s3, v1
v_and_b32 v0, 63, v0""")
    if STAMPS:
        for i in range(2, 14): A(f"s_mov_b32 s{64+2*i}, 0")
        A("s_memtime s[64:65]\ns_memrealtime s[66:67]")
    if OPT["pf"]:
        L = A.lab("pf"); LP = A.lab("pc")
        A(f"""s_cmp_lg_u32 s3, 3
s_cbranch_scc1 {L}
s_getpc_b64 s[56:57]
{LP}:
s_lshr_b32 s58, s2, 3
s_mul_i32 s59, s58, 52
s_lshr_b32 s59, s59, 8
s_mul_i32 s59, s59, 5
s_sub_u32 s58, s58, s59
s_lshl_b32 s58, s58, 13
v_lshlrev_b32 v1, 7, v0
v_add_u32 v1, s58, v1
v_min_u32 v1, {FIN}-{LP}, v1
global_load_dword v63, v1, s[56:57]
{L}:""")
    A(f"""s_and_b32 s4, s2, 7
s_lshr_b32 s5, s2, 3
s_lshl_b32 s6, s4, 1
s_and_b32 s7, s5, 1
s_or_b32 s6, s6, s7
s_lshr_b32 s7, s5, 1
s_and_b32 s40, s3, 3
s_cmp_ge_u32 s7, 11
s_cbranch_scc1 {LA1}
s_cmp_lt_u32 s3, 4
s_cbranch_scc1 {LB1C}""")

def xaddr(rs):
    A(f"""v_lshrrev_b32 v1, 3, v0
v_and_b32 v14, 7, v0
v_lshrrev_b32 v15, 4, v0
v_xor_b32 v14, v14, v15
v_lshlrev_b32 v14, 4, v14
v_xor_b32 v16, 64, v14
v_mul_u32_u24 v1, {rs}, v1
v_add_u32 v2, v1, v14
v_add_u32 v3, v1, v16
v_add_u32 v3, {8*rs-1024}, v3
v_add_u32 v4, {2*(8*rs-1024)}, v2
v_add_u32 v5, {2*(8*rs-1024)}, v3""")
def b1_loader():
    A("s_setprio 3")
    if OPT["rot"] == 2: A("s_mov_b32 s26, s7")
    elif OPT["rot"] == 3: A("s_and_b32 s26, s6, 1\ns_mul_i32 s26, s26, 3\ns_add_u32 s26, s26, s7")
    elif OPT["rot"] == 4: A("s_and_b32 s26, s6, 1\ns_mul_i32 s26, s26, 3")
    elif OPT["rot"] == 5: A("s_lshr_b32 s26, s6, 1\ns_add_u32 s26, s26, s7")
    else: A("s_add_u32 s26, s6, s7")
    mod7(26, 27)
    if not OPT["rot"]: A("s_mov_b32 s26, 0")
    xaddr(896)
    A(f"""v_and_b32 v14, 15, v0
v_lshlrev_b32 v16, 2, v15
v_xor_b32 v14, v14, v16
v_lshlrev_b32 v14, 4, v14
v_mul_u32_u24 v15, 2688, v15
v_add_u32 v6, v14, v15
v_add_u32 v7, {4*2688-1024}, v6
v_add_u32 v8, {2*(4*2688-1024)}, v6
v_add_u32 v9, {3*(4*2688-1024)}, v6
s_lshl_b32 s41, s6, 2
s_add_u32 s47, s41, s40
s_mul_i32 s41, s47, {32*896}     ; x base
s_mul_i32 s42, s40, {16*2688}
s_lshl_b32 s43, s7, 8
s_add_u32 s42, s42, s43          ; w base
s_lshl_b32 s44, s40, 12
s_waitcnt lgkmcnt(0)""")
    srd(SX, P_BX, X_BYTES); srd(SW, P_WQKV, WQKV_BYTES)
    def issue():
        A(f"""s_lshl_b32 s45, s26, 7
s_add_u32 s45, s45, s41
s_mul_i32 s46, s26, {64*2688}
s_add_u32 s46, s46, s42
s_mov_b32 m0, s44""")
        for i in range(4): A(f"buffer_load_dwordx4 v{2+i}, {sr(SX,4)}, s45 offen offset:{1024*i} lds")
        A(f"s_add_u32 m0, s44, 16384")
        for i in range(4): A(f"buffer_load_dwordx4 v{6+i}, {sr(SW,4)}, s46 offen offset:{1024*i} lds")
        A("""s_add_u32 s26, s26, 1
s_cmp_eq_u32 s26, 7
s_cselect_b32 s26, 0, s26
s_add_u32 s44, s44, 0x8000
s_and_b32 s44, s44, 0x1ffff""")
    LL = A.lab("b1ld")
    issue(); gettag()
    A(f"s_mov_b32 s48, 6\n{LL}:")
    if OPT["x"] != 2: issue()
    else: A("s_waitcnt vmcnt(0)")
    A("s_waitcnt vmcnt(8)")
    if STAMPS:
        LX = A.lab("st"); A(f"s_cmp_lg_u32 s48, 6\ns_cbranch_scc1 {LX}"); stamp(2); A(f"{LX}:")
    A(f"""s_barrier
s_sub_u32 s48, s48, 1
s_cmp_lg_u32 s48, 0
s_cbranch_scc1 {LL}""")
    fixtag()
    wsetup()
    A("s_waitcnt vmcnt(0)")
    stamp(3)
    A(f"s_barrier\ns_cmp_eq_u32 s7, 10\ns_cbranch_scc1 {ATT}")
    for x in WL[:OPT["wm"]]: A(x)
    A(f"s_branch {ATT}")

WL = [f"buffer_load_dwordx4 v[96:99], v248, {sr(SX,4)}, s55 offen", f"buffer_load_dwordx4 v[100:103], v248, s[56:59], s55 offen"]
def wsetup():
    LNY = A.lab("nyq")
    srd(SX, P_WR, W_BYTES); srd(56, P_WI, W_BYTES)
    A(f"""s_lshr_b32 s54, s2, 3          ; ko
s_mul_i32 s55, s4, {4*450}
s_mul_i32 s43, s40, {512*450}
s_add_u32 s55, s55, s43
s_lshl_b32 s43, s54, 4
s_add_u32 s55, s55, s43
s_cmp_lg_u32 s54, 28
s_cbranch_scc1 {LNY}""")
    srd(SX, P_WI, W_BYTES); srd(56, P_WR, W_BYTES)
    A(f"""s_sub_u32 s55, s55, 14
{LNY}:
v_lshrrev_b32 v9, 2, v0
v_and_b32 v10, 3, v0
v_lshl_add_u32 v9, v9, 5, v10
v_mul_u32_u24 v248, 450, v9""")
def a1_dispatch_loader():
    A(f"""{LA1}:
s_sub_u32 s5, s7, 11           ; g5
s_mul_i32 s26, s5, 3
s_lshr_b32 s26, s26, 1         ; e0 in 0,1,3,4,6""")
    if not OPT["rot"]: A("s_mov_b32 s26, 0")
    A(f"s_cmp_lt_u32 s3, 4\ns_cbranch_scc1 {LA1C}\ns_setprio 3")
    xaddr(64*896)
    A(f"""s_lshl_b32 s41, s6, 2
s_add_u32 s41, s41, s40
s_mul_i32 s41, s41, 896
s_lshl_b32 s44, s40, 12
s_lshl_b32 s26, s26, 2
s_add_u32 s26, s26, 3""")
    mod7(26, 27)
    A("s_waitcnt lgkmcnt(0)")
    gettag()
    if OPT["al"]: A("s_barrier")
    srd(SX, P_AX, X_BYTES)
    LL, LS = A.lab("a1ld"), A.lab("a1lds")
    A(f"""s_mov_b32 s48, 0
{LL}:
s_lshl_b32 s45, s26, 7
s_add_u32 s45, s45, s41
s_lshl_b32 s46, s26, 14
s_add_u32 m0, s44, s46""")
    for i in range(4): A(f"buffer_load_dwordx4 v{2+i}, {sr(SX,4)}, s45 offen offset:{1024*i} lds")
    A(f"""s_add_u32 s26, s26, 4
s_sub_u32 s27, s26, 7
s_cmp_ge_u32 s26, 7
s_cselect_b32 s26, s27, s26
s_add_u32 s48, s48, 1
s_cmp_lt_u32 s48, 7
s_cbranch_scc1 {LL}""")
    fixtag()
    wsetup()
    for x in WL: A(x)
    A("s_waitcnt vmcnt(0)")
    stamp(3)
    if OPT["gk"] >= 0:
        LG = A.lab("gate")
        A(f"s_cmp_lg_u32 s40, 0\ns_cbranch_scc1 {LG}\ns_lshl_b32 s46, s6, 7\ns_add_u32 s46, s46, {GO_OFF}\nv_mov_b32 v9, 0")
        spin(f"buffer_load_dword v14, v9, {W}, s46 offen {PM}", 14, 2)
        A(f"{LG}:")
    A(f"s_barrier\ns_branch {ATT}")

def main_start():
    A(f"""v_lshlrev_b32 v1, 4, v0
v_add_u32 v1, {CNT+12}, v1
v_mov_b32 v2, 0
ds_write_b32 v1, v2""")

C, ER, EI, G, GT = 128, 160, 176, 192, 16
def tlbwarm():
    g = OPT["tw"]
    if not g: return
    L = A.lab("tw")
    n = (WS_USED >> g) // 32 + 1
    A(f"""s_cmp_lg_u32 s3, 2
s_cbranch_scc1 {L}
s_lshr_b32 s60, s2, 3
s_mul_i32 s60, s60, {n << g}
v_lshlrev_b32 v12, {g}, v0""")
    for i in range(0, n, 64):
        k = min(64, n - i)
        if k < 64: A(f"s_bfm_b64 exec, {k}, 0")
        A(f"buffer_load_dword v255, v12, {W}, s60 offen offset:64")
        if i + 64 < n: A(f"s_add_u32 s60, s60, {64 << g}")
    A("s_mov_b64 exec, -1")
    m = (W_BYTES >> g) // 32 + 1
    srd(28, P_WR, W_BYTES); srd(32, P_WI, W_BYTES)
    A(f"""s_lshr_b32 s60, s2, 3
s_mul_i32 s60, s60, {m << g}
s_bfm_b64 exec, {m}, 0
buffer_load_dword v255, v12, s[28:31], s60 offen
buffer_load_dword v255, v12, s[32:35], s60 offen
s_mov_b64 exec, -1
{L}:""")
def prewrite():
    tlbwarm()
    if OPT["pw"] < 2: return
    L = A.lab("pw")
    A(f"""s_cmp_lg_u32 s3, 3
s_cbranch_scc1 {L}
s_sub_u32 s60, s{TAG}, {TAGC}
s_lshl_b32 s61, s7, 4
s_add_u32 s61, s61, s6
s_lshl_b32 s61, s61, 7
s_add_u32 s61, s61, {F1_OFF}""")
    flagstore("s61", OPT["r1"], 32768, 40, "s60")
    A(f"{L}:")
def gen_common():
    A(f"""v_and_b32 v14, 31, v0
v_lshrrev_b32 v15, 5, v0
s_lshr_b32 s50, s2, 5
s_lshl_b32 s50, s50, 3
s_or_b32 s50, s50, s4
s_bfe_u32 s51, s2, 0x20003       ; d quarter
s_and_b32 s52, s40, 1            ; parity e""")
def rot_gen(n, nblk, step, base, mult, dmult, out, scale=None):
    c, sn, t = GT, GT+8, GT+16
    A(f"v_mul_f32 v11, {f32(float(dmult))}, v{step}")
    for j in range(n): A(f"v_fmamk_f32 v{t+j}, v{step}, {f32(float(mult[j]))}, v{base}")
    A("v_cos_f32 v10, v11\nv_sin_f32 v12, v11")
    for j in range(n): A(f"v_cos_f32 v{c+j}, v{t+j}\nv_sin_f32 v{sn+j}, v{t+j}")
    A("v_mov_b32 v11, v10\nv_mov_b32 v13, v12")
    if scale is not None:
        for j in range(n): A(f"v_mul_f32 v{c+j}, {f32(scale)}, v{c+j}\nv_mul_f32 v{sn+j}, {f32(scale)}, v{sn+j}")
    for b in range(nblk):
        out(b)
        if b + 1 < nblk:
            for j in range(0, n, 2): A(f"v_pk_mul_f32 {vr(t+j,2)}, {vr(sn+j,2)}, v[12:13]")
            for j in range(0, n, 2): A(f"v_pk_mul_f32 {vr(sn+j,2)}, {vr(sn+j,2)}, v[10:11]")
            for j in range(0, n, 2): A(f"v_pk_fma_f32 {vr(sn+j,2)}, {vr(c+j,2)}, v[12:13], {vr(sn+j,2)}")
            for j in range(0, n, 2): A(f"v_pk_fma_f32 {vr(c+j,2)}, {vr(c+j,2)}, v[10:11], {vr(t+j,2)} neg_lo:[0,0,1] neg_hi:[0,0,1]")
def gen_c():
    A(f"""v_lshrrev_b32 v8, 1, v14
s_lshl_b32 s43, s40, 4
v_add_u32 v8, s43, v8
v_cvt_f32_u32 v8, v8
v_mul_f32 v8, {f32(1/64)}, v8    ; step = u2/64
v_and_b32 v9, 1, v14
v_cvt_f32_u32 v9, v9
v_mul_f32 v9, {f32(0.25)}, v9
v_lshlrev_b32 v10, 1, v15
v_cvt_f32_u32 v10, v10
v_fma_f32 v9, v8, v10, v9        ; base""")
    def out(f):
        for p in range(4): A(f"v_cvt_pk_bf16_f32 v{C+4*f+p}, v{GT+p}, v{GT+8+p}")
    rot_gen(4, 8, 8, 9, [0,1,4,5], 8, out)
def gen_e():
    A(f"""v_lshlrev_b32 v8, 6, v14
v_add_u32 v8, s50, v8
v_cvt_f32_u32 v8, v8
v_mul_f32 v8, {f32(1/2048)}, v8
v_lshlrev_b32 v9, 2, v15
v_cvt_f32_u32 v9, v9
v_mul_f32 v9, v8, v9""")
    def out(f):
        for p in range(4): A(f"v_cvt_pk_bf16_f32 v{ER+4*f+p}, v{GT+p}, -v{GT+8+p}")
        for p in range(4): A(f"v_cvt_pk_bf16_f32 v{EI+4*f+p}, v{GT+8+p}, v{GT+p}")
    rot_gen(4, 4, 8, 9, [0,1,2,3], 8, out, 2.0/(2048*448))
def gen_g():
    A(f"""s_lshr_b32 s44, s40, 1
s_lshl_b32 s45, s51, 1
s_add_u32 s44, s44, s45         ; d tile
s_lshl_b32 s46, s44, 5
v_add_u32 v8, s46, v14          ; d
v_cvt_f32_u32 v8, v8
v_mul_f32 v8, {f32(1/448)}, v8
v_lshlrev_b32 v9, 3, v15
v_add_u32 v9, s52, v9
v_cmp_eq_u32 vcc, 0, v9
v_cvt_f32_u32 v9, v9
v_mul_f32 v9, v8, v9""")
    def out(t):
        for j in range(4): A(f"v_cvt_pk_bf16_f32 v{G+8*t+j}, v{GT+2*j}, v{GT+2*j+1}")
        for j in range(4): A(f"v_cvt_pk_bf16_f32 v{G+8*t+4+j}, -v{GT+8+2*j}, -v{GT+9+2*j}")
    rot_gen(8, 7, 8, 9, [16*(j>>2)+2*(j&3) for j in range(8)], 32, out)
    A(f"""v_and_b32 v8, 0xffff0000, v{G}
v_or_b32 v8, 0x3f00, v8
v_and_b32 v10, 1, v14
v_lshlrev_b32 v10, 15, v10
v_cndmask_b32 v{G}, v{G}, v8, vcc
v_and_b32 v8, 0xffff, v8
v_and_b32 v9, 0xffff0000, v{G+4}
v_or3_b32 v9, v9, v10, v8
v_cndmask_b32 v{G+4}, v{G+4}, v9, vcc""")
def gen_pre():
    gen_common()
    gen_c(); gen_e()

ACC = 64
def acc(a, b): return ACC + 32*a + 16*b
LONES = "L_ones"
def b1_body(vtype):
    if vtype: pi32(48, 14, 49)
    else: A("v_mov_b32 v48, v14")
    A(f"""v_lshrrev_b32 v49, 1, v48
v_and_b32 v49, 7, v49
v_xor_b32 v49, v49, v15
v_lshlrev_b32 v49, 4, v49
v_lshl_or_b32 v50, v48, 7, v49
s_lshl_b32 s43, s41, 13
v_add_u32 v52, s43, v50
v_xor_b32 v53, 32, v52
v_xor_b32 v54, 64, v52
v_xor_b32 v55, 96, v52""")
    A(f"""v_bfe_u32 v48, v0, 2, 2        ; rr
v_and_b32 v49, 3, v0           ; cc""")
    if not vtype:
        A("""v_lshrrev_b32 v50, 1, v49
v_and_b32 v49, 1, v49
v_lshl_or_b32 v49, v49, 1, v50 ; sigma(cc)""")
    A(f"""v_bfe_u32 v50, v0, 4, 1        ; colhalf
v_lshlrev_b32 v50, 5, v50
v_lshl_or_b32 v50, v49, 3, v50
s_lshl_b32 s43, s42, 7
v_or_b32 v50, s43, v50
v_lshlrev_b32 v51, 6, v48
v_xor_b32 v50, v50, v51
v_lshl_add_u32 v51, v15, 3, v48 ; 8h+rr
v_lshl_or_b32 v56, v51, 8, v50
v_add_u32 v56, 16384, v56
v_xor_b32 v57, 64, v56""")
    A(f"""s_lshl_b32 s46, s6, 2
s_lshl_b32 s47, s41, 1
s_add_u32 s46, s46, s47
s_lshl_b32 s47, s7, 2
s_lshl_b32 s48, s42, 1
s_add_u32 s47, s47, s48""")
    if not vtype:
        A(f"""s_lshl_b32 s48, s47, 11
v_lshlrev_b32 v2, 4, v0
s_cmp_ge_u32 s47, 14
s_cselect_b32 s49, {KV_REC - QK_TILE}, 0
s_cselect_b32 s43, {KV_OFF - Q_OFF - 14*2048}, 0
s_cselect_b32 s54, 1.0, {f32(QSCALE)}
s_mov_b32 s55, s54
s_add_u32 s49, s49, {QK_TILE}
s_mul_i32 s46, s46, s49
s_add_u32 s46, s46, s48
s_add_u32 s46, s46, s43
s_add_u32 s46, s46, {Q_OFF}
s_add_u32 s49, s46, s49""")
    else:
        A(f"""s_sub_u32 s45, s7, 7
s_lshl_b32 s45, s45, 7
s_add_u32 s45, s45, 27
s_mul_i32 s45, s45, 2341
s_lshr_b32 s45, s45, 16
v_lshrrev_b32 v10, 4, v0
v_add_u32 v10, s45, v10
v_lshrrev_b32 v11, 2, v0
v_lshlrev_b32 v11, 9, v11
s_lshl_b32 s45, s45, 11
v_add_u32 v11, s45, v11
v_cmp_gt_u32 s[56:57], 16, v10
v_and_b32 v4, 3, v0
v_lshl_or_b32 v4, v4, 4, v11
s_cmp_lt_u32 s7, 9
s_cselect_b32 s58, 0xffff, 0
s_mov_b32 s59, 0
s_lshl_b32 s54, s6, 2
s_add_u32 s54, s54, s40
s_mul_i32 s54, s54, {KV_REC}
s_add_u32 s54, s54, {KV_OFF + QK_TILE + 28*16}
s_add_u32 s55, s54, 8192
v_mov_b32 v58, 0x3f803f80
v_mov_b32 v59, 0x3f803f80
v_mov_b32 v60, 0x3f803f80
v_mov_b32 v61, 0x3f803f80
s_sub_u32 s47, s47, 28
s_mul_i32 s46, s46, {KV_REC}
s_add_u32 s46, s46, {KV_OFF + QK_TILE}
s_add_u32 s49, s46, {KV_REC}
s_lshl_b32 s48, s47, 5""")
        for b in range(2):
            A(f"""v_add_u32 v48, s48, v14
v_add_u32 v48, {32*b}, v48
v_mul_u32_u24 v49, 2341, v48
v_lshrrev_b32 v49, 16, v49     ; head
v_mul_u32_u24 v50, 28, v49
v_sub_u32 v48, v48, v50        ; d
v_lshlrev_b32 v48, 4, v48
v_lshl_or_b32 v48, v15, 9, v48
v_lshl_or_b32 v{2+b}, v49, 11, v48""")
    SETS = (16, 32, 192, 208)
    def rx(kap, p, a): return f"ds_read_b128 {vr(SETS[p]+4*a,4)}, v{6+kap} offset:{4096*a}"
    def rw(kap, p, b): return [f"ds_read_b64_tr_b16 {vr(SETS[p]+8+4*b+2*u,2)}, v{10+b} offset:{(16*kap+4*u)*256}" for u in range(2)]
    def rdlist(kap, p): return [rx(kap,p,0)] + rw(kap,p,0) + rw(kap,p,1) + [rx(kap,p,1)]
    def setaddr(): return [f"v_add_u32 v{6+i}, s44, v{52+i}" for i in range(6)]
    def mf(a, b, p):
        x, w = vr(SETS[p]+4*a,4), vr(SETS[p]+8+4*b,4)
        o = (x, w) if vtype else (w, x)
        A(f"{MFMA} {vr(acc(a,b),16)}, {o[0]}, {o[1]}, {vr(acc(a,b),16)}")
    gb = []
    def fill(n):
        for _ in range(n):
            if gb:
                for x in gb.pop(0): A(x)
    def kstep(p, r, f):
        A("s_waitcnt lgkmcnt(3)")
        mf(0,0,p)
        for x in r[0:3]: A(x)
        fill(f[0])
        A("s_waitcnt lgkmcnt(4)")
        mf(0,1,p)
        for x in r[3:5]: A(x)
        fill(f[1])
        A("s_waitcnt lgkmcnt(5)")
        mf(1,0,p)
        for x in r[5:6]: A(x)
        fill(f[2])
        mf(1,1,p)
        if OPT["bn"]: A(f"s_nop {OPT['bn']}")
        fill(f[3])
    LL = A.lab("b1loop")
    if vtype:
        LI, LI2 = A.lab("idle"), A.lab("idle")
        A(f"s_cmp_lt_u32 s47, 14\ns_cbranch_scc1 {LI}")
        prewrite()
        for n in range(7):
            A("s_barrier")
            if n == OPT["gk"]:
                A(f"s_cmp_lg_u32 s3, 2\ns_cbranch_scc1 {LI2}\ns_lshl_b32 s61, s6, 7\ns_add_u32 s61, s61, {GO_OFF}")
                flagstore("s61", 1, 0)
                A(f"{LI2}:")
        A(f"s_branch {LONES}\n{LI}:")
    A("s_mov_b32 s44, 0\ns_mov_b32 s45, 0")
    for x in setaddr(): A(x)
    prewrite()
    stampw(9)
    A("s_barrier")
    stampw(2)
    for x in rdlist(0, 0): A(x)
    A(f"{LL}:")
    kstep(0, rdlist(1, 1), (0,1,2,3))
    kstep(1, rdlist(2, 0), (0,1,2,3))
    A("s_add_u32 s44, s44, 0x8000\ns_and_b32 s44, s44, 0x1ffff\ns_add_u32 s45, s45, 1")
    kstep(0, rdlist(3, 1), (1,1,2,0))
    for x in setaddr(): A(x)
    A("s_barrier")
    kstep(1, rdlist(0, 0), (1,1,1,1))
    assert not gb
    A(f"s_cmp_lt_u32 s45, 6\ns_cbranch_scc1 {LL}")
    if OPT["x"] in (2, 3): A("s_memtime s[84:85]\ns_waitcnt lgkmcnt(0)")
    rd = []
    for kap in (1,2,3): rd += [rx(kap,kap,0)] + rw(kap,kap,0)
    for kap in (1,2,3): rd += rw(kap,kap,1)
    for kap in (1,2,3): rd += [rx(kap,kap,1)]
    order = [rdlist(0,0)[i] for i in range(6)] + rd
    def epi(a, b):
        e = []; t = acc(a,b)
        for i in range(8):
            if not vtype:
                if OPT["pk"] or (a, b) == (1, 1): e.append(f"v_pk_mul_f32 {vr(t+2*i,2)}, {vr(t+2*i,2)}, s[54:55]")
                else: e += [f"v_mul_f32 v{t+2*i}, s54, v{t+2*i}", f"v_mul_f32 v{t+2*i+1}, s54, v{t+2*i+1}"]
            e.append(f"v_cvt_pk_bf16_f32 v{t+i}, v{t+2*i}, v{t+2*i+1}" if OPT["x"] != -10 else f"v_mov_b32 v{t+i}, 0")
            if i & 3 == 3:
                if OPT["sd"] and (a, b, i) == (0, 0, 3): e.append(f"s_sleep {OPT['sd']}")
                if OPT["sp"]: e.append(f"s_sleep {OPT['sp']}")
                if vtype: e.append(f"buffer_store_dwordx4 {vr(t+i-3,4)}, v{2+b}, {W}, s{46 if a==0 else 49} offen offset:{1024*(i>>2)} {SC}")
                else: e.append(f"buffer_store_dwordx4 {vr(t+i-3,4)}, v2, {W}, s{46 if a==0 else 49} offen offset:{2048*b+1024*(i>>2)} {SC}")
        return e
    issued = 6; pend = []; lastw = None
    tiles = [(a,b) for a in range(2) for b in range(2)]
    seq = [(a,b,0) for a,b in tiles] + [(a,b,k) for a,b in tiles for k in (1,2,3)]
    for m, (a, b, kap) in enumerate(seq):
        need = max(order.index(x) for x in [rx(kap,kap,a)] + rw(kap,kap,b)) + 1
        while issued < need: A(order[issued]); issued += 1
        if lastw is None or need > lastw:
            A(f"s_waitcnt lgkmcnt({issued - need})"); lastw = need
        mf(a, b, kap)
        for _ in range(3):
            if issued < len(order) and issued - lastw < 14: A(order[issued]); issued += 1
        if m in (8, 11, 14): pend += epi(*tiles[(m-8)//3])
        if m == 15: stamp(3)
        for _ in range((6 if OPT["pk"] else 8) if not vtype else 4):
            if pend: A(pend.pop(0))
    for x in pend + epi(1,1): A(x)
    if vtype:
        LO = A.lab("ones")
        A(f"""{LONES}:
s_mov_b64 exec, s[56:57]
buffer_store_dwordx4 v[58:61], v4, {W}, s54 offen {SC}
s_mov_b64 exec, s[58:59]
s_cbranch_execz {LO}
buffer_store_dwordx4 v[58:61], v4, {W}, s55 offen {SC}
{LO}:
s_mov_b64 exec, -1""")
    lds_add(C_LF)
    A(f"s_branch {PUB1}")
def b1_compute():
    A(f"""s_and_b32 s41, s3, 1           ; wr
s_lshr_b32 s42, s3, 1          ; wc""")
    fixtag()
    A(f"s_cmp_ge_u32 s7, 7\ns_cbranch_scc1 {LV}")
    b1_body(False)
    A(f"{LV}:")
    b1_body(True)

def a1_gen():
    LF, LE = A.lab("fgen"), A.lab("fend")
    A(f"{LA1C}:\ns_setprio 2")
    gen_common()
    pi32(48, 14, 49)
    A(f"""v_lshlrev_b32 v61, 4, v0
v_add_u32 v61, {FOFF}, v61""")
    main_start()
    A(f"""v_lshrrev_b32 v48, 1, v48       ; k_local
s_mul_i32 s41, s5, 3
s_add_u32 s41, s41, s3
s_lshl_b32 s41, s41, 4
v_add_u32 v48, s41, v48
v_cvt_f32_u32 v48, v48
v_mul_f32 v56, {f32(1/448)}, v48 ; k/448
v_and_b32 v48, 1, v14
v_cvt_f32_u32 v48, v48
v_mul_f32 v59, {f32(0.25)}, v48  ; c/4
v_lshlrev_b32 v60, 3, v15
v_cvt_f32_u32 v60, v60
v_fma_f32 v59, v56, v60, v59
v_mul_f32 v58, {f32(16.0)}, v56
v_cos_f32 v58, v58
s_mul_i32 s41, s3, 14336
v_add_u32 v53, s41, v61""")
    for j in range(16): A(f"v_fmamk_f32 v{16+j}, v56, {f32(float(16*(j>>3)+(j&7)))}, v59")
    A("v_add_f32 v58, v58, v58")
    for j in range(16): A(f"v_cos_f32 v{16+j}, v{16+j}")
    A("s_waitcnt lgkmcnt(0)")
    gettag()
    A(f"s_cmp_eq_u32 s3, 3\ns_cbranch_scc1 {LE}\nv_mov_b32 v59, v58\ns_mov_b32 s42, 7\n{LF}:")
    for u in range(2):
        for j in range(4): A(f"v_cvt_pk_bf16_f32 v{32+4*u+j}, v{16+8*u+2*j}, v{17+8*u+2*j}")
        A(f"ds_write_b128 v53, {vr(32+4*u,4)} offset:{1024*u}")
        for j in range(4):
            a, b = 16+8*u+2*j, 16+8*(u^1)+2*j
            A(f"v_pk_fma_f32 {vr(a,2)}, {vr(b,2)}, v[58:59], {vr(a,2)} neg_lo:[0,0,1] neg_hi:[0,0,1]") if u == 0 else None
    for j in range(4):
        a, b = 24+2*j, 16+2*j
        A(f"v_pk_fma_f32 {vr(a,2)}, {vr(b,2)}, v[58:59], {vr(a,2)} neg_lo:[0,0,1] neg_hi:[0,0,1]")
    A(f"""v_add_u32 v53, 2048, v53
s_sub_u32 s42, s42, 1
s_cmp_lg_u32 s42, 0
s_cbranch_scc1 {LF}
{LE}:""")
E1R, E1I = 56, 248
def a1_compute():
    if OPT["al"] == 1: A("s_barrier")
    gen_e()
    if OPT["al"] == 2: A("s_barrier")
    gen_g()
    if OPT["al"] == 3: A("s_barrier")
    A(f"""s_lshl_b32 s41, s6, 2
s_add_u32 s41, s41, s3          ; s2 index
v_lshlrev_b32 v9, 8, v15
v_add_u32 v9, s41, v9
v_mul_u32_u24 v9, v14, v9
v_cvt_f32_u32 v9, v9
v_mul_f32 v9, {f32(1/2048)}, v9
v_cvt_f32_u32 v8, v14
v_mul_f32 v8, {f32(1/32)}, v8
v_mov_b32 v5, v61
s_waitcnt vmcnt(0)""")
    def out(b):
        for j in range(4): A(f"v_cvt_pk_bf16_f32 v{E1R+4*b+j}, v{GT+2*j}, v{GT+2*j+1}")
        for j in range(4): A(f"v_cvt_pk_bf16_f32 v{E1I+4*b+j}, -v{GT+8+2*j}, -v{GT+9+2*j}")
    rot_gen(8, 2, 8, 9, [8*(j>>2)+(j&3) for j in range(8)], 16, out)
    A(f"""v_lshrrev_b32 v49, 1, v14
v_and_b32 v49, 7, v49
v_xor_b32 v49, v49, v15
v_lshlrev_b32 v49, 4, v49
v_lshl_or_b32 v6, v14, 7, v49
s_lshl_b32 s43, s3, 12
v_add_u32 v6, s43, v6
v_and_b32 v3, 2, v14
v_lshlrev_b32 v3, 30, v3
v_or_b32 v3, 1.0, v3            ; (-1)^k
v_mov_b32 v2, v3
v_lshlrev_b32 v4, 4, v0
s_mul_i32 s47, s41, {T_ROW}
s_mul_i32 s42, s5, 6144
s_add_u32 s47, s47, s42
s_add_u32 s47, s47, {T_OFF}
s_add_u32 s48, s47, 2048
s_add_u32 s49, s47, 4096""")
    egen = []
    A(f"s_mul_i32 s27, s26, 8256")
    def a1salu(adv=True):
        r = []
        if adv: r += ["s_add_u32 s27, s27, 8256", f"s_cmp_eq_u32 s27, {7*8256}", "s_cselect_b32 s27, 0, s27"]
        return r + ["s_and_b32 s43, s27, 0x1c040", f"s_add_u32 s44, s27, {7*8256}", "s_and_b32 s44, s44, 0x1c040",
                    "s_lshr_b32 s46, s27, 2", "s_and_b32 s46, s46, 0x7800"]
    a1valu = ["v_xor_b32 v8, s43, v6", "v_xor_b32 v10, s44, v6", "v_xor_b32 v9, 32, v8", "v_xor_b32 v11, 32, v10", "v_add_u32 v12, s46, v5"]
    def a1rd(t):
        b = 16 + 20*t
        return ([f"ds_read_b128 {vr(b,4)}, v{8+t}"] +
                [f"ds_read_b128 {vr(b+8+4*kgi,4)}, v12 offset:{1024*t+14336*kgi}" for kgi in range(3)] +
                [f"ds_read_b128 {vr(b+4,4)}, v{10+t}"])
    def a1step(t, nxt, first=False, fill=0, adv=False):
        b = 16 + 20*t
        r = list(nxt); issued = 0
        sa = a1salu() if adv else []; va = list(a1valu) if adv else []
        for m in range(6):
            hi, kgi = m // 3, m % 3
            need = (2, 3, 4, 5, 5, 5)[m]
            if not nxt: hi, kgi, need = m % 2, m // 2, (2, 5, 5, 5, 5, 5)[m]
            if m < (4 if nxt else 2): A(f"s_waitcnt lgkmcnt({5 - need + issued})")
            d = 64 + 32*kgi + 16*hi
            A(f"{MFMA} {vr(d,16)}, {vr(b+4*hi,4)}, {vr(b+8+4*kgi,4)}, {0 if first else vr(d,16)}")
            for _ in range(2 if m == 0 else 1):
                if r: A(r.pop(0)); issued += 1
            if m in (1, 2, 3):
                for _ in range(3):
                    if sa: A(sa.pop(0))
            if m == 4:
                while va: A(va.pop(0))
            for _ in range(fill if not (adv and m in (1,2,3,4)) else fill // 2):
                if egen: A(egen.pop(0))
    LL, LS, LNB = A.lab("a1loop"), A.lab("a1last"), A.lab("a1nb")
    for x in a1salu(False) + a1valu: A(x)
    fixtag()
    prewrite()
    for x in a1valu[4:]: A(x)
    stampw(9)
    A("s_barrier")
    stampw(2)
    if OPT["ad"]: A(f"s_sleep {OPT['ad']}")
    for x in a1rd(0): A(x)
    for n in range(1):
        a1step(0, a1rd(1), n == 0, 2, True)
        a1step(1, a1rd(0), False, 3)
    assert not egen
    A(f"s_mov_b32 s45, 1\n{LL}:")
    a1step(0, a1rd(1), adv=True)
    LH = A.lab("a1h")
    A(f"""s_add_u32 s45, s45, 1
s_cmp_eq_u32 s45, 7
s_cbranch_scc1 {LS}
s_cmp_lg_u32 s45, {OPT["hk"]}
s_cbranch_scc1 {LH}
s_waitcnt lgkmcnt(0)
v_mov_b32 v7, {C_H}
v_mov_b32 v13, 1
ds_write_b32 v7, v13
s_waitcnt lgkmcnt(0)
{LH}:""")
    a1step(1, a1rd(0))
    A(f"s_branch {LL}\n{LS}:")
    a1step(1, [])
    stamp(3)
    def s1(kgi):
        P, Q = 64+32*kgi, 80+32*kgi
        e = []
        for i in range(8):
            if OPT["pk"]: e.append(f"v_pk_fma_f32 {vr(P+2*i,2)}, {vr(Q+2*i,2)}, v[2:3], {vr(P+2*i,2)}")
            else: e += [f"v_fmac_f32 v{P+2*i}, v3, v{Q+2*i}", f"v_fmac_f32 v{P+2*i+1}, v3, v{Q+2*i+1}"]
            e.append(f"v_cvt_pk_bf16_f32 v{16+8*kgi+i}, v{P+2*i}, v{P+2*i+1}")
        return e
    def mm(kgi):
        P, Q = 64+32*kgi, 80+32*kgi
        return [f"{MFMA} {vr(P,16)}, {vr(16+8*kgi,4)}, {vr(E1R,4)}, 0", f"{MFMA} {vr(Q,16)}, {vr(16+8*kgi,4)}, {vr(E1I,4)}, 0",
                f"{MFMA} {vr(P,16)}, {vr(20+8*kgi,4)}, {vr(E1R+4,4)}, {vr(P,16)}", f"{MFMA} {vr(Q,16)}, {vr(20+8*kgi,4)}, {vr(E1I+4,4)}, {vr(Q,16)}"]
    def s2(kgi):
        P, Q = 64+32*kgi, 80+32*kgi
        e = []
        for j in range(8):
            e += [f"v_sub_f32 v{P+2*j}, v{P+2*j}, v{Q+2*j+1}", f"v_add_f32 v{Q+2*j}, v{Q+2*j}, v{P+2*j+1}",
                  f"v_cvt_pk_bf16_f32 v{40+8*kgi+j}, v{P+2*j}, v{Q+2*j}"]
            if j & 3 == 3: e.append(f"buffer_store_dwordx4 {vr(40+8*kgi+j-3,4)}, v4, {W}, s{47+kgi} offen offset:{1024*(j>>2)} {SC}")
        return e
    def weave(ms, vs):
        k = (len(vs) + len(ms) - 1) // len(ms)
        for m in ms:
            A(m)
            for _ in range(k):
                if vs: A(vs.pop(0))
    lds_add(C_LF)
    for x in s1(0): A(x)
    weave(mm(0), s1(1)); weave(mm(1), s1(2)); weave(mm(2), s2(0))
    for x in s2(1) + s2(2): A(x)
    LI = A.lab("a1init")
    A(f"""s_cmp_ge_u32 s41, 4             ; s2 index < 4: zero arrival counters of the A2 fan-in
s_cbranch_scc1 {LI}
s_lshl_b32 s42, s5, 2
s_add_u32 s42, s42, s41
s_lshl_b32 s42, s42, 7
s_add_u32 s42, s42, {AT_OFF}
""")
    flagstore("s42", 2, 20*128, 16, "0")
    A(f"{LI}:")

def pub1():
    A(f"""{PUB1}:
s_lshl_b32 s41, s7, 11
s_lshl_b32 s42, s6, 7
s_add_u32 s41, s41, s42
s_add_u32 s41, s41, {F1_OFF}""")
    stamp(4)
    LA, LB = A.lab("puba"), A.lab("pubb")
    if not OPT["gd"]:
        publish(C_P1, 41, OPT["r1"], 32768)
        stamp(5)
    A(f"s_cmp_ge_u32 s7, 11\ns_cbranch_scc1 {LA}")
    gen_g()
    A(f"s_branch {LB}\n{LA}:")
    gen_c()
    A(f"{LB}:")
    if OPT["gd"]:
        publish(C_P1, 41, OPT["r1"], 32768)
        stamp(5)

Q, S, O, KV = 16, 48, 112, 176
OK = O + 48
TB = 8
SO = 32
def q(j,i): return vr(Q+8*j+4*i, 4)
def kb(b,i): return KV+16*b+4*i
def tile_loads(b, so):
    return [f"buffer_load_dwordx4 {vr(kb(b,0),4)}, v1, {W}, s{so} offen {SC}",
            f"buffer_load_dwordx4 {vr(kb(b,1),4)}, v2, {W}, s{so} offen {SC}",
            f"buffer_load_dwordx4 {vr(kb(b,2),4)}, v3, {W}, s{so} offen {SC}",
            f"buffer_load_dwordx4 {vr(kb(b,3),4)}, v3, {W}, s{so} offen offset:1024 {SC}"]
def attention():
    LNY, LNW = A.lab("nyq"), A.lab("now")
    A(f"{ATT}:\ns_setprio 0")
    A("s_mov_b32 s51, s7")
    srd(SO, P_OUT, OUT_BYTES)
    A(f"""s_lshl_b32 s4, s4, 1
s_bfe_u32 s5, s2, 0x10003
s_or_b32 s4, s4, s5            ; head
s_lshr_b32 s5, s2, 4           ; qb
s_mul_i32 s6, s4, 7
s_lshr_b32 s45, s6, 1
s_add_u32 s6, s6, 1
s_lshr_b32 s6, s6, 1
s_lshl_b32 s6, s6, 9
v_lshlrev_b32 v8, 4, v0
v_add_u32 v1, s6, v8
s_bitcmp1_b32 s4, 0
s_cselect_b32 s7, -2040, 0
v_add_u32 v2, 1024, v1
v_add_u32 v6, s7, v2
v_mov_b32 v4, 0x3f80
v_mov_b32_dpp v2, v6 {HI}
s_lshl_b32 s7, s4, 11
s_add_u32 s7, s7, {QK_TILE}
v_and_b32 v9, 30, v0
v_cmp_eq_u32 vcc, 26, v9
v_cmp_eq_u32 s[48:49], 28, v9
s_or_b64 vcc, vcc, s[48:49]
v_xor_b32 v9, 96, v8
v_cndmask_b32 v3, v8, v9, vcc
v_add_u32 v3, s7, v3           ; V offset
v_mov_b32 v5, 0xdddd
v_mov_b32 v7, 0
s_lshl_b32 s45, s45, 3
v_bfe_u32 v9, v0, 2, 1
v_mul_u32_u24 v10, 31, v9
v_add_u32 v10, s45, v10        ; Q column
v_add_u32 v11, 448, v10        ; K column
v_mul_u32_u24 v9, 27, v9
s_mul_i32 s46, s4, 28
s_add_u32 s46, s46, 896
v_add_u32 v9, s46, v9          ; V column
v_lshrrev_b32 v10, 7, v10
v_lshlrev_b32 v10, 11, v10
v_mov_b32_dpp v11, v9 quad_perm:[0,1,2,3] row_mask:0xa bank_mask:0xf
s_lshl_b32 s46, s5, 7
v_add_u32 v10, s46, v10
v_lshrrev_b32 v11, 7, v11
v_lshlrev_b32 v11, 11, v11
v_and_b32 v9, 3, v0
v_lshl_add_u32 v11, v9, 7, v11
s_lshl_b32 s46, s40, 9
v_add_u32 v11, s46, v11
v_mov_b32_dpp v11, v10 {HI}
s_and_b32 s46, s2, {OPT["r1"]-1}
s_lshl_b32 s46, s46, 15
s_add_u32 s46, s46, {F1_OFF}
s_lshl_b32 s43, s5, 2
s_add_u32 s42, s40, s43
s_mul_i32 s42, s42, {QK_TILE}
s_add_u32 s50, s42, {Q_OFF}
s_mul_i32 s47, s40, {16*KV_REC}
s_add_u32 s47, s47, {KV_OFF}""")
    for i in range(16):
        A(f"s_add_u32 s42, s5, {i}\ns_and_b32 s42, s42, 15\ns_mul_i32 s42, s42, {KV_REC}\ns_add_u32 s{TB+i}, s42, s47")
    for j in range(4):
        A(f"""s_add_u32 s42, s40, {j}
s_and_b32 s42, s42, 3
s_lshl_b32 s42, s42, 11
s_add_u32 s42, s42, {QX}
v_add_u32 v{240+j}, s42, v8
s_add_u32 s42, s40, {j+1}
s_and_b32 s42, s42, 3
s_mul_i32 s42, s42, 12288
s_add_u32 s42, s42, {MERGE + (4096*j if j < 3 else 0)}
v_add_u32 v{244+j}, s42, v8""")
    A(f"""s_add_u32 s41, s40, 3
s_and_b32 s41, s41, 3
s_lshl_b32 s43, s5, 2
s_add_u32 s41, s41, s43
s_lshl_b32 s26, s41, 15
s_lshl_b32 s42, s4, 11
s_add_u32 s26, s26, s42
s_add_u32 s26, s26, {O_OFF}
s_lshl_b32 s27, s41, 11
s_lshl_b32 s42, s4, 7
s_add_u32 s27, s27, s42
s_add_u32 s27, s27, {FO_OFF}
s_bfe_u32 s42, s2, 0x20001
s_or_b32 s43, s43, s42
s_and_b32 s53, s2, 1
s_and_b32 s52, s53, {OPT["ro"]-1}
s_lshl_b32 s52, s52, 17
s_lshl_b32 s53, s53, 1
s_bfe_u32 s42, s2, 0x10003
s_or_b32 s53, s53, s42
s_lshl_b32 s53, s53, 2
s_add_u32 s53, s53, s40        ; n tile
s_lshl_b32 s45, s43, 15
s_lshl_b32 s44, s40, 13
s_add_u32 s45, s45, s44
s_add_u32 s45, s45, {O_OFF}
s_add_u32 s47, s45, 4096
s_mul_i32 s41, s43, {32*1792}
s_lshl_b32 s42, s53, 6
s_add_u32 s41, s41, s42
s_add_u32 s41, s41, 896
s_lshl_b32 s42, s43, 11
s_add_u32 s52, s52, s42
s_lshl_b32 s42, s40, 9
s_add_u32 s52, s52, s42
s_add_u32 s52, s52, {FO_OFF}
v_and_b32 v249, 3, v0
v_lshlrev_b32 v249, 7, v249
v_lshrrev_b32 v15, 5, v0
v_and_b32 v14, 31, v0
v_mul_u32_u24 v250, 1792, v14
v_lshl_add_u32 v250, v15, 4, v250
v_lshrrev_b32 v251, 3, v0
v_lshlrev_b32 v251, 17, v251
v_and_b32 v13, 7, v0
v_lshl_add_u32 v251, v13, 4, v251
v_bfe_u32 v9, v0, 2, 2        ; rr
v_and_b32 v10, 3, v0
v_lshrrev_b32 v12, 1, v10
v_and_b32 v10, 1, v10
v_lshl_or_b32 v10, v10, 1, v12    ; sigma(cc)
v_bfe_u32 v12, v0, 4, 1
v_lshlrev_b32 v12, 5, v12
v_lshl_or_b32 v10, v10, 3, v12
s_lshl_b32 s42, s40, 6
v_or_b32 v10, s42, v10
v_mul_u32_u24 v12, 320, v9
v_xor_b32 v252, v10, v12
v_lshl_add_u32 v252, v15, 10, v252
v_lshl_or_b32 v9, v15, 1, v9
v_mul_u32_u24 v12, 320, v9
v_xor_b32 v253, v10, v12
v_add_u32 v254, {224*256}, v252
v_add_u32 v255, {224*256}, v253
v_mov_b32 v6, v8""")
    if OPT["pw"]:
        A(f"s_sub_u32 s60, s{TAG}, {TAGC}")
        flagstore("s27", OPT["ro"], 131072, 40, "s60")
    for i in range(64): A(f"v_mov_b32 v{O+i}, 0")
    LWA, LWB = A.lab("wa"), A.lab("wb")
    if OPT["bp"]: A("s_setprio 3")
    A(f"s_cmp_lt_u32 s51, 11\ns_cbranch_scc1 {LWA}\ns_setprio 3")
    lds_wait(C_H, 1, 2)
    A(f"s_branch {LWB}\n{LWA}:")
    lds_wait(C_X, 1, 1)
    for x in WL[OPT["wm"]:]: A(x)
    A(f"s_cmp_lg_u32 s51, 10\ns_cbranch_scc1 {LWB}")
    for x in WL[:OPT["wm"]]: A(x)
    A(f"{LWB}:\ns_setprio 3")
    stamp(5)
    A(f"s_lshl_b32 s43, s40, 11\ns_add_u32 s43, s43, {WX}\nv_add_u32 v15, s43, v8")
    spin(f"buffer_load_dword v14, v11, {W}, s46 offen {PM}", 14, OPT["sl1"])
    stamp(6)
    t0, t1 = tile_loads(0, TB), tile_loads(1, TB+1)
    A(f"""{t0[0]}
buffer_load_dwordx4 {q(0,0)}, v1, {W}, s50 offen {SC}
{t0[1]}
buffer_load_dwordx4 {q(0,1)}, v2, {W}, s50 offen {SC}""")
    lds_wait(C_LF, 4)
    A("ds_write_b128 v15, v[96:99]\nds_write_b128 v15, v[100:103] offset:1024")
    A("s_waitcnt vmcnt(0)")
    stamp(4)
    A(f"""v_mov_b32_dpp v{Q+6}, v7 {HI}
v_mov_b32_dpp v{Q+7}, v7 {HI}
v_mov_b32_dpp v{kb(0,1)+2}, v4 {HI}
{MFMA} {vr(S+16,16)}, {vr(kb(0,0),4)}, {q(0,0)}, 0
{t0[2]}
{MFMA} {vr(S+16,16)}, {vr(kb(0,1),4)}, {q(0,1)}, {vr(S+16,16)}
{t0[3]}
{MFMA} {vr(S,16)}, {vr(kb(0,0),4)}, {q(0,0)}, 0
ds_write_b128 v240, {q(0,0)}""")
    for x in t1[:2]: A(x)
    s_ = S+16
    A(f"v_max3_f32 v8, v{s_}, v{s_+1}, v{s_+2}\nv_max3_f32 v9, v{s_+3}, v{s_+4}, v{s_+5}")
    for i in range(6, 14, 4): A(f"v_max3_f32 v8, v8, v{s_+i}, v{s_+i+1}\nv_max3_f32 v9, v9, v{s_+i+2}, v{s_+i+3}")
    A(f"""v_max3_f32 v8, v8, v{s_+14}, v{s_+15}
v_max_f32 v8, v8, v9
v_cvt_pk_bf16_f32 v8, -v8, v7
v_mov_b32_dpp v{Q+6}, v8 {HI}
ds_write_b128 v240, {q(0,1)} offset:1024
{MFMA} {vr(S,16)}, {vr(kb(0,1),4)}, {q(0,1)}, {vr(S,16)}""")
    lds_sync(C_Q, 4)
    for j in range(1, 4):
        A(f"ds_read_b128 {q(j,0)}, v{240+j}\nds_read_b128 {q(j,1)}, v{240+j} offset:1024")
    for x in t1[2:]: A(x)
    A("s_waitcnt lgkmcnt(0)")
    stamp(7)
    lds_add(C_G2)
    A("s_setprio 1")
    def mwrites(j):
        return ([f"ds_write_b128 v{244+j}, {vr(O+16*j+4*g,4)} offset:{1024*g}" for g in range(3)] +
                [f"ds_write_b96 v{244+j}, {vr(O+16*j+12,3)} offset:3072"])
    for n in range(64):
        i, j = n >> 2, n & 3
        if n == 32: stamp(8)
        after = [[], [], [], []]
        if n == 0:
            t2 = tile_loads(2, TB+2); after = [[t2[0], t2[1]], [t2[2], t2[3]], [], []]
        ti, k = (i + 3, j - 1) if j >= 1 else (i + 2, 3)
        if 3 <= ti < 16: after[OPT["lg"]].append(tile_loads(ti & 3, TB+ti)[k])
        m = [None]*4
        if n < 63:
            i2, j2 = (n+1) >> 2, (n+1) & 3
            if j2 == 0: after[0].append(f"v_mov_b32_dpp v{kb(i2&3,1)+2}, v4 {HI}")
            m[0] = f"{MFMA} {vr(S+16*j2,16)}, {vr(kb(i2&3,0),4)}, {q(j2,0)}, 0"
            m[1] = f"{MFMA} {vr(S+16*j2,16)}, {vr(kb(i2&3,1),4)}, {q(j2,1)}, {vr(S+16*j2,16)}"
        if j == 2 and i < 15:
            cnt = 4*(min(15, i+3) - (i+1))
            if i + 3 < 16: cnt -= 2
            after[3].append(f"s_waitcnt vmcnt({cnt})")
        if n > 0:
            i0, j0 = (n-1) >> 2, (n-1) & 3
            m[2] = f"{SMF} {vr(O+16*j0,16)}, {vr(kb(i0&3,3),4)}, {vr(S+16*j0+8,8)}, v5"
        m[3] = f"{SMF} {vr(O+16*j,16)}, {vr(kb(i&3,2),4)}, {vr(S+16*j,8)}, v5"
        if n == 62:
            w = mwrites(0); after[1] += w[0:1]; after[2] += w[1:2]; after[3] += w[2:3]; carry = w[3:]
        if n == 63:
            m[0], m[2] = m[2], None
            w = mwrites(1); after[0] += carry; after[1] += w[0:1]; after[2] += w[1:2]; after[3] += w[2:4]
        for g in range(4):
            if n == 0 and g == 3: A("s_waitcnt vmcnt(8)")
            if m[g]: A(m[g])
            for x in after[g]: A(x)
            for e in range(4):
                r = S+16*j+4*g+e
                A(f"v_exp_f32 v{r}, v{r}")
    for x in mwrites(2)[:2]: A(x)
    A(f"{SMF} {vr(O+48,16)}, {vr(kb(3,3),4)}, {vr(S+48+8,8)}, v5")
    for x in mwrites(2)[2:]: A(x)
    stamp(9)
    A("s_setprio 3")
    lds_sync(C_MERGE, 4)
    for g in range(12): A(f"ds_read_b128 {vr(S+4*g,4)}, v247 offset:{1024*g}")
    for k in range(3):
        A(f"s_waitcnt lgkmcnt({8-4*k})")
        for i in list(range(14, -2, -2)): A(f"v_pk_add_f32 {vr(OK+i,2)}, {vr(OK+i,2)}, {vr(S+16*k+i,2)}")
    A(f"""v_cmp_nle_f32 vcc, {f32(2.0**-40)}, v{OK+14}
s_mov_b64 s[48:49], vcc
v_cmp_nge_f32 vcc, {f32(2.0**40)}, v{OK+14}
s_or_b64 vcc, vcc, s[48:49]
s_cbranch_vccnz {LFB}
{LN}:
v_rcp_f32 v10, v{OK+14}
v_mov_b32 v{S+7}, 0
v_mov_b32 v11, v10""")
    for i in range(0, 14, 2):
        A(f"v_pk_mul_f32 {vr(OK+i,2)}, {vr(OK+i,2)}, v[10:11]")
        A(f"v_cvt_pk_bf16_f32 v{S+i//2}, v{OK+i}, v{OK+i+1}")
        if i == 6: A(f"buffer_store_dwordx4 {vr(S,4)}, v6, {W}, s26 offen {SC}")
    A(f"buffer_store_dwordx4 {vr(S+4,4)}, v6, {W}, s26 offen offset:1024 {SC}")
    stamp(10)
    lds_add(C_GO)
    WF = 112; BACC = 16; OB = 64; NB = 6
    assert WO == 0 and OST == 0
    def wo_frags(half):
        for n in range(16):
            hd, i = n >> 1, n & 1
            b = WF + 64*half + 4*n
            row = 28*hd + 16*i
            A(f"ds_read_b64_tr_b16 {vr(b,2)}, v{252+2*half} offset:{row*256}")
            A(f"ds_read_b64_tr_b16 {vr(b+2,2)}, v{(253 if i else 252)+2*half} offset:{(row+8)*256}")
            if n % 6 == 5: A("s_waitcnt lgkmcnt(2)")
    for i in range(4): A(f"v_mov_b32 v{40+i}, s{TAG}")
    lds_wait(C_WOA, 4)
    wo_frags(0)
    A("s_waitcnt lgkmcnt(2)")
    if OPT["fo"] == 2: wo_frags(1)
    poll = f"buffer_load_dword v14, v249, {W}, s52 offen {PM}"
    A(f"""s_mov_b64 exec, {(1<<(8*OPT["ro"]))-1}
s_waitcnt vmcnt(0)
buffer_store_dwordx4 v[40:43], v251, {W}, s27 offen {FM}
s_mov_b64 exec, -1""")
    if OPT["ts"]: stamp(2)
    if OPT["ap"]: A(poll)
    if OPT["fo"] != 2: wo_frags(1)
    lds_sync(C_WOF, 4)
    if OPT["ts"]: stamp(3)
    LR = A.lab("oready")
    if OPT["ap"]: A(f"s_waitcnt vmcnt(0)\nv_cmp_ne_u32 vcc, s{TAG}, v14\ns_cbranch_vccz {LR}")
    spin(poll, 14, OPT["sl1"])
    A(f"{LR}:")
    stamp(11)
    for half in range(2):
        A(f"s_add_u32 m0, s44, {OST+4096*half}")
        for i in range(4):
            A(f"buffer_load_dwordx4 v6, {W}, s{47 if half else 45} offen offset:{1024*i} {SC} lds")
    A("s_waitcnt vmcnt(0)")
    lds_sync(C_OST, 4)
    stampw(12)
    A(f"s_cmp_ge_u32 s53, 14\ns_cbranch_scc1 {END}")
    def rd(n): A(f"ds_read_b128 {vr(OB+4*(n%NB),4)}, v6 offset:{1024*n}")
    for n in range(NB-1): rd(n)
    for n in range(32):
        left = min(31, n+NB-2) - n
        A(f"s_waitcnt lgkmcnt({left})\n{MFMA} {vr(BACC,16)}, {vr(WF+4*n,4)}, {vr(OB+4*(n%NB),4)}, {vr(BACC,16) if n else 0}")
        if n + NB - 1 < 32: rd(n + NB - 1)
    for i in range(8):
        A(f"v_cvt_pk_bf16_f32 v{32+i}, v{BACC+2*i}, v{BACC+2*i+1}")
        if i == 3: A(f"buffer_store_dwordx4 v[32:35], v250, {sr(SO,4)}, s41 offen {OBM}")
    A(f"""buffer_store_dwordx4 v[36:39], v250, {sr(SO,4)}, s41 offen offset:32 {OBM}
s_branch {END}""")

def helper():
    SWO = 56
    T, AC2, WA, WB, Y = 16, 48, 64, 72, 80
    LNOA2, LNY2, LP2 = "L_noa2", A.lab("nyq"), A.lab("pub2")
    A(f"{HELP2}:")
    if OPT["x"] >= 4:
        lds_add(C_WOA); A(f"s_branch {END}")
    stamp(11)
    A(f"""s_lshr_b32 s5, s2, 3
s_cmp_ge_u32 s5, 29
s_cbranch_scc1 {LNOA2}
v_lshrrev_b32 v8, 3, v0
v_and_b32 v9, 4, v8
v_bfe_u32 v10, v8, 1, 1
v_or_b32 v9, v9, v10
v_and_b32 v8, 1, v8
v_lshl_or_b32 v9, v8, 1, v9     ; s2 mod 8 = 4*(p>>1) + 2h + (p&1)
v_mul_u32_u24 v1, {T_ROW}, v9
v_and_b32 v8, 1, v0
v_lshl_add_u32 v1, v8, 9, v1
v_bfe_u32 v8, v0, 1, 2
v_lshl_add_u32 v1, v8, 4, v1    ; T offset
s_lshl_b32 s41, s5, 10
s_lshl_b32 s42, s4, 6
s_add_u32 s41, s41, s42
s_add_u32 s41, s41, {T_OFF}
s_mul_i32 s42, s40, {16*T_ROW}
s_add_u32 s41, s41, s42
s_mul_i32 s44, s5, 43
s_lshr_b32 s44, s44, 8          ; g5
s_lshl_b32 s45, s44, 11
s_and_b32 s46, s2, {OPT["r1"]-1}
s_lshl_b32 s46, s46, 15
s_add_u32 s46, s46, {F1_OFF + 11*2048}
v_and_b32 v9, 15, v0
v_lshlrev_b32 v9, 7, v9
v_add_u32 v9, s45, v9
v_mov_b32 v10, 0
v_mov_b32_dpp v9, v10 {HI}
s_lshl_b32 s43, s40, 11
s_add_u32 m0, s43, {TX}
s_add_u32 s47, s41, {8*T_ROW - 1024}
s_nop 0""")
    A(f"""v_lshlrev_b32 v4, 4, v0
s_cmp_eq_u32 s5, 28
s_cselect_b32 s45, 14, 0
v_lshrrev_b32 v8, 3, v14        ; u1 local
v_and_b32 v7, 7, v14            ; k local
v_lshl_add_u32 v2, v15, 3, v8
v_lshlrev_b32 v2, 4, v2
v_lshl_add_u32 v2, v7, 1, v2
s_add_u32 s42, s43, s45
s_add_u32 s42, s42, {WX}
v_add_u32 v2, s42, v2
v_mul_u32_u24 v3, {2*T2_ROW}, v15
v_lshl_add_u32 v3, v7, 4, v3
v_lshl_add_u32 v3, v8, 2, v3    ; T2 offset
v_add_u32 v8, {EX}, v4
v_add_u32 v7, s43, v8
v_lshlrev_b32 v5, 2, v0
v_add_u32 v5, {TX}, v5
s_mul_i32 s53, s40, {16*T2_ROW}
s_mul_i32 s42, s4, {T2_Q}
s_add_u32 s53, s53, s42
s_lshl_b32 s42, s5, 7
s_add_u32 s53, s53, s42
s_add_u32 s53, s53, {T2_OFF}""")
    for i in range(16): A(f"v_mov_b32 v{WA+i}, 0")
    lds_wait(C_G2, 4, 2)
    def a1poll():
        A(f"""buffer_load_dword v10, v9, {W}, s46 offen {PM}
s_waitcnt vmcnt(0)
v_cmp_ne_u32 vcc, s{TAG}, v10""")
    acquire(R_A1, a1poll, OPT["sl2"], OPT["hs"])
    stamp(6)
    A(f"""s_setprio {OPT["hp"]}
buffer_load_dwordx4 v1, {W}, s41 offen {SC} lds
buffer_load_dwordx4 v1, {W}, s47 offen offset:1024 {SC} lds
s_nop 0""")
    for j in range(8):
        A(f"ds_read_u16_d16_hi v{WA+j}, v2 offset:{(4*(j>>1)+(j&1))*64}")
    A("s_waitcnt lgkmcnt(4)")
    for j in range(8):
        A(f"ds_read_u16_d16_hi v{WB+j}, v2 offset:{(4*(j>>1)+(j&1))*64+1024}")
    A(f"s_waitcnt lgkmcnt(0)\ns_cmp_lg_u32 s5, 28\ns_cbranch_scc1 {LNY2}")
    for j in range(8): A(f"v_xor_b32 v{WA+j}, 0x80000000, v{WA+j}")
    A(f"{LNY2}:")
    A("s_waitcnt vmcnt(0)")
    lds_sync(C_T, 4, OPT["hs"])
    for m in range(0, 28, 2): A(f"ds_read2st64_b32 {vr(T+m,2)}, v5 offset0:{m} offset1:{m+1}")
    for f in range(8):
        if f == 1:
            for m in range(28, 32, 2): A(f"ds_read2st64_b32 {vr(T+m,2)}, v5 offset0:{m} offset1:{m+1}")
        A(f"s_waitcnt lgkmcnt({12 if f == 0 else 14-2*f})\n{MFMA} {vr(AC2,16)}, {vr(C+4*f,4)}, {vr(T+4*f,4)}, {vr(AC2,16) if f else 0}")
    for j in range(8):
        xr, xi = AC2+2*j, AC2+2*j+1
        A(f"""v_mul_f32 v10, v{xr}, v{WA+j}
v_mul_f32 v11, v{xr}, v{WB+j}
v_fma_f32 v10, -v{xi}, v{WB+j}, v10
v_fmac_f32 v11, v{xi}, v{WA+j}
v_cvt_pk_bf16_f32 v{Y+j}, v11, v10""")
        if j == 3: A(f"ds_write_b128 v7, {vr(Y,4)}")
    A(f"ds_write_b128 v7, {vr(Y+4,4)} offset:1024")
    lds_sync(C_EX, 4, OPT["hs"])
    for f in range(8): A(f"ds_read_b128 {vr(T+4*f,4)}, v8 offset:{1024*f}")
    for f in range(8):
        A(f"s_waitcnt lgkmcnt({7-f})\n{MFMA} {vr(AC2,16)}, {vr(C+4*f,4)}, {vr(T+4*f,4)}, {vr(AC2,16) if f else 0}")
    for j in range(8):
        A(f"""v_cvt_pk_bf16_f32 v{Y+j}, v{AC2+2*j+1}, v{AC2+2*j}
s_add_u32 s43, s53, {(4*(j>>1)+(j&1))*T2_ROW}
buffer_store_dword v{Y+j}, v3, {W}, s43 offen {SC}""")
    stamp(7)
    A("s_setprio 2")
    arrive(C_A2, LP2)
    A(f"""s_lshl_b32 s41, s44, 2
s_lshr_b32 s42, s4, 1
s_add_u32 s41, s41, s42
s_lshl_b32 s41, s41, 7
s_add_u32 s41, s41, {AT_OFF}
s_cmp_eq_u32 s44, 4
s_cselect_b32 s42, 9, 11
v_mov_b32 v12, 0
v_mov_b32 v13, 1
s_mov_b64 exec, 1
buffer_atomic_add v13, v12, {W}, s41 offen sc0 sc1
s_mov_b64 exec, -1
s_waitcnt vmcnt(0)
v_readfirstlane_b32 s60, v13
s_cmp_lg_u32 s60, s42
s_cbranch_scc1 {LP2}
v_mov_b32 v13, 1
s_mov_b32 s41, {AT_OFF + 20*128}
s_mov_b64 exec, 1
buffer_atomic_add v13, v12, {W}, s41 offen sc0 sc1
s_mov_b64 exec, -1
s_waitcnt vmcnt(0)
v_readfirstlane_b32 s60, v13
s_cmp_lg_u32 s60, 19
s_cbranch_scc1 {LP2}
s_mov_b32 s41, {F2_OFF}""")
    flagstore("s41", 8, 128)
    assert EPOCH_OFF == 0
    flagstore("0", 1, 0)
    A(f"{LP2}:")
    lds_wait(C_A2, 4, 4)
    A(f"{LNOA2}:")
    srd(SWO, P_WO, WO_BYTES)
    LW = A.lab("wo")
    A(f"""s_and_b32 s53, s2, 1
s_lshl_b32 s53, s53, 1
s_bfe_u32 s54, s2, 0x10003
s_or_b32 s53, s53, s54
s_lshl_b32 s53, s53, 8
s_mul_i32 s54, s40, {112*896}
s_add_u32 s53, s53, s54
s_mul_i32 s54, s40, {112*256}
v_lshrrev_b32 v9, 4, v0
v_and_b32 v8, 15, v0
v_lshlrev_b32 v4, 2, v9
v_xor_b32 v8, v8, v4
v_lshlrev_b32 v8, 4, v8
v_mul_u32_u24 v9, 896, v9
v_add_u32 v4, v8, v9""")
    lds_wait(C_G2, 4, 4)
    A(f"""s_mov_b32 m0, s54
s_mov_b32 s55, 28
{LW}:
{"s_sleep %d" % OPT["wos"] if OPT["wos"] > 0 else "s_waitcnt vmcnt(%d)" % -OPT["wos"]}
buffer_load_dwordx4 v4, {sr(SWO,4)}, s53 offen lds
s_add_u32 m0, m0, 1024
s_add_u32 s53, s53, {4*896}
s_sub_u32 s55, s55, 1
s_cmp_lg_u32 s55, 0
s_cbranch_scc1 {LW}
s_waitcnt vmcnt(0)""")
    lds_add(C_WOA)
    stamp(12)
    TA, NY, AC3, ZB, AC4 = 16, 48, 64, 16, 112
    A(f"""v_and_b32 v8, 15, v14
v_lshrrev_b32 v9, 4, v14
v_lshl_or_b32 v8, v8, 1, v9
v_mul_u32_u24 v2, {T2_Q}, v15
v_lshl_add_u32 v1, v8, 4, v2    ; T2 offset
v_add_u32 v2, {224*16}, v2
s_mul_i32 s41, s50, {T2_ROW}
s_add_u32 s41, s41, {T2_OFF}
s_lshl_b32 s42, s40, 9
s_add_u32 s42, s42, s41
s_and_b32 s46, s2, 7
s_lshl_b32 s46, s46, 7
s_add_u32 s46, s46, {F2_OFF}
v_mov_b32 v9, 0""")
    srd(SO, P_OUT, OUT_BYTES)
    spin(f"buffer_load_dword v10, v9, {W}, s46 offen {PM}", 10, OPT["sl3"])
    stamp(8)
    LA, LB = A.lab("a3l"), A.lab("a3l")
    for f in range(4):
        A(f"s_add_u32 s43, s42, {2*f*T2_Q}\nbuffer_load_dwordx4 {vr(TA+4*f,4)}, v1, {W}, s43 offen {SC}\ns_sleep 1")
    A(f"s_cmp_eq_u32 s40, 3\ns_cbranch_scc1 {LA}")
    for f in range(4):
        A(f"s_add_u32 s43, s42, {2*f*T2_Q + 2048}\nbuffer_load_dwordx4 {vr(TA+16+4*f,4)}, v1, {W}, s43 offen {SC}\ns_sleep 1")
    A(f"{LA}:\ns_cmp_lg_u32 s40, 0\ns_cbranch_scc1 {LB}")
    for f in range(4):
        A(f"s_add_u32 s43, s41, {2*f*T2_Q}\nbuffer_load_dwordx4 {vr(NY+4*f,4)}, v2, {W}, s43 offen {SC}")
    A(f"{LB}:")
    lds_wait(C_GO, 4, OPT["slg"])
    A("s_setprio 0")
    if OPT["x"] not in (2, 3): stamp(10)
    LN3, LZ = A.lab("a3ny"), A.lab("a3z")
    A("s_waitcnt vmcnt(0)")
    setup = f"""v_lshlrev_b32 v5, 4, v0
s_lshl_b32 s43, s40, 11
s_add_u32 s43, s43, {ZOFF}
v_add_u32 v6, s43, v5
s_mul_i32 s43, s52, 14336
s_add_u32 s43, s43, {ZOFF}
v_add_u32 v5, s43, v5
s_lshr_b32 s46, s40, 1
s_lshl_b32 s46, s46, 3
v_add_u32 v7, s46, v15          ; 8p + h
v_and_b32 v9, 7, v14
v_xor_b32 v7, v7, v9
v_lshlrev_b32 v7, 4, v7
v_lshl_or_b32 v7, v14, 8, v7
s_lshl_b32 s46, s52, 13
s_add_u32 s46, s46, {YOFF}
v_add_u32 v7, s46, v7           ; Y write address
v_lshrrev_b32 v8, 3, v0
s_lshl_b32 s46, s40, 3
v_add_u32 v8, s46, v8           ; row (s1)
v_and_b32 v9, 7, v0             ; piece
v_lshlrev_b32 v10, 1, v9
v_and_b32 v11, 7, v8
v_xor_b32 v10, v10, v11
v_lshlrev_b32 v10, 4, v10
v_lshl_or_b32 v10, v8, 8, v10
v_add_u32 v10, {YOFF}, v10
v_xor_b32 v11, 16, v10
v_mul_u32_u24 v8, {64*1792}, v8
v_lshl_add_u32 v8, v9, 4, v8    ; out offset
s_mul_i32 s41, s50, 1792
s_lshl_b32 s42, s51, 7
s_add_u32 s41, s41, s42""".split("\n")
    for tt in range(2):
        for f in range(4):
            A(f"{MFMA} {vr(AC3+32*tt,16)}, {vr(TA+16*tt+4*f,4)}, {vr(ER+4*f,4)}, {vr(AC3+32*tt,16) if f else 0}")
            for _ in range(5):
                if setup: A(setup.pop(0))
    assert not setup
    A(f"s_cmp_eq_u32 s51, 3\ns_cselect_b32 s42, 4, 8\nv_cmp_gt_u32 s[48:49], s42, v9")
    A(f"s_cmp_lg_u32 s40, 0\ns_cbranch_scc1 {LN3}\ns_mov_b32 exec_lo, 1\ns_mov_b32 exec_hi, 1")
    for i in range(16): A(f"v_mov_b32 v{TA+i}, v{NY+i}")
    A(f"s_mov_b64 exec, -1\n{LN3}:\ns_nop 1")
    def zout(tt, part):
        a = AC3+32*tt+16*part
        e = [f"v_cvt_pk_bf16_f32 v{a+i}, v{a+2*i}, v{a+2*i+1}" for i in range(8)]
        return e + [f"ds_write_b128 v6, {vr(a+4*p,4)} offset:{14336*p+8192*tt+1024*part}" for p in range(2)]
    pend = zout(0, 0)
    for tt in range(2):
        for f in range(4):
            A(f"{MFMA} {vr(AC3+32*tt+16,16)}, {vr(TA+16*tt+4*f,4)}, {vr(EI+4*f,4)}, {vr(AC3+32*tt+16,16) if f else 0}")
            for _ in range(3):
                if pend: A(pend.pop(0))
    for x in pend + zout(0, 1): A(x)
    A(f"s_cmp_eq_u32 s40, 3\ns_cbranch_scc1 {LZ}")
    for x in zout(1, 0) + zout(1, 1): A(x)
    A(f"{LZ}:")
    lds_sync(C_Z, 4)
    for i in range(14): A(f"ds_read_b128 {vr(ZB+4*i,4)}, v5 offset:{1024*i}")
    for i in range(14):
        A(f"s_waitcnt lgkmcnt({13-i})\n{MFMA} {vr(AC4,16)}, {vr(G+4*i,4)}, {vr(ZB+4*i,4)}, {vr(AC4,16) if i else 0}")
    for g in range(4):
        A(f"v_xor_b32 v9, {32*g}, v7\nds_write_b128 v9, {vr(AC4+4*g,4)}")
    lds_sync(C_Y, 4)
    A(f"""ds_read_b128 v[16:19], v10
ds_read_b128 v[20:23], v11
ds_read_b128 v[24:27], v10 offset:8192
ds_read_b128 v[28:31], v11 offset:8192
s_waitcnt lgkmcnt(0)""")
    for i in range(8): A(f"v_add_f32 v{32+i}, v{16+i}, v{24+i}\nv_sub_f32 v{40+i}, v{16+i}, v{24+i}")
    for i in range(8): A(f"v_cvt_pk_bf16_f32 v{48+i}, v{32+2*i}, v{33+2*i}")
    A(f"""s_mov_b64 exec, s[48:49]
buffer_store_dwordx4 v[48:51], v8, {sr(SO,4)}, s41 offen {OA}
buffer_store_dwordx4 v[52:55], v8, {sr(SO,4)}, s41 offen offset:448 {OA}
s_mov_b64 exec, -1
s_branch {END}""")

def fallback():
    L1, L2 = A.lab("fb1"), A.lab("fb2")
    tl = tile_loads(0, 43)
    A(f"""{LFB}:
v_mov_b32_dpp v{Q+24+6}, v7 {HI}
v_mov_b32 v12, 0xff800000
s_mov_b32 s43, {KV_OFF}
{L1}:
{tl[0]}
{tl[1]}
s_waitcnt vmcnt(0)
{MFMA} {vr(S,16)}, {vr(kb(0,0),4)}, {q(3,0)}, 0
{MFMA} {vr(S,16)}, {vr(kb(0,1),4)}, {q(3,1)}, {vr(S,16)}""")
    for i in range(0, 16, 2): A(f"v_max3_f32 v12, v12, v{S+i}, v{S+i+1}")
    A(f"""s_add_u32 s43, s43, {KV_REC}
s_cmp_lt_u32 s43, {KV_OFF+64*KV_REC}
s_cbranch_scc1 {L1}
v_mov_b32 v13, v12
v_mov_b32 v14, v12
v_permlane32_swap_b32 v13, v14
v_max_f32 v12, v13, v14""")
    for i in range(16): A(f"v_mov_b32 v{OK+i}, 0")
    A(f"s_mov_b32 s43, {KV_OFF}\n{L2}:")
    for x in tl: A(x)
    A(f"""s_waitcnt vmcnt(0)
{MFMA} {vr(S,16)}, {vr(kb(0,0),4)}, {q(3,0)}, 0
{MFMA} {vr(S,16)}, {vr(kb(0,1),4)}, {q(3,1)}, {vr(S,16)}""")
    for i in range(16): A(f"v_sub_f32 v{S+i}, v{S+i}, v12")
    for i in range(16): A(f"v_exp_f32 v{S+i}, v{S+i}")
    A(f"""{SMF} {vr(OK,16)}, {vr(kb(0,2),4)}, {vr(S,8)}, v5
{SMF} {vr(OK,16)}, {vr(kb(0,3),4)}, {vr(S+8,8)}, v5
s_nop 15
s_add_u32 s43, s43, {KV_REC}
s_cmp_lt_u32 s43, {KV_OFF+64*KV_REC}
s_cbranch_scc1 {L2}
s_branch {LN}""")

def finish():
    A(f"{END}:")
    if OPT["probe"]:
        LQ = A.lab("probe")
        stamp(13)
        A(f"""s_cmp_lg_u32 s2, {OPT["pwg"]}
s_cbranch_scc1 {FIN}
s_cmp_lg_u32 s3, {OPT["pwave"]}
s_cbranch_scc1 {FIN}
s_waitcnt lgkmcnt(0)
s_sub_u32 s56, s{64+2*OPT["probe"]}, s66
s_mul_i32 s56, s56, 10
s_add_u32 s56, s56, s90
{LQ}:
s_memrealtime s[58:59]
s_waitcnt lgkmcnt(0)
s_sub_u32 s57, s58, s56
s_cmp_lt_i32 s57, 0
s_cbranch_scc1 {LQ}""")
    elif STAMPS:
        stamp(13)
        A(f"""s_waitcnt vmcnt(0)
s_memtime s[92:93]
s_memrealtime s[94:95]
s_waitcnt lgkmcnt(0)
{"s_getreg_b32 s64, hwreg(HW_REG_XCC_ID)" if STAMPS == 1 else ""}
{"s_getreg_b32 s92, hwreg(HW_REG_HW_ID)" if STAMPS == 1 else ""}
s_mov_b32 s56, s24
s_mov_b32 s57, s25
s_mov_b32 s58, 0x2000000
s_mov_b32 s59, 0x00020000
s_mov_b64 exec, 1
s_lshl_b32 s60, s2, 3
s_add_u32 s60, s60, s3
s_lshl_b32 s60, s60, 6
s_add_u32 s60, s60, {TS_OFF}
v_mov_b32 v1, 0""")
        for i in range(16):
            A(f"v_mov_b32 v2, s{64+2*i}\nbuffer_store_dword v2, v1, s[56:59], s60 offen offset:{4*i}")
    A(f"{FIN}:\ns_endpgm")

entry(); b1_loader(); a1_dispatch_loader(); a1_gen(); a1_compute(); pub1(); helper()
A(f"{LB1C}:\ns_setprio 2"); main_start()
for i in range(64): A(f"v_mov_b32 v{ACC+i}, 0")
A("s_waitcnt lgkmcnt(0)"); gettag()
gen_pre(); b1_compute()
attention(); fallback(); finish()

HDR = open("cdna_kernels/%s.s.ref" % NAME).read().split("; Override")[0]
txt = HDR + f"; @launch grid=(256,1,1) block=(512,1,1) lds={LDS_BYTES}\n"
txt += '.amdgcn_target "amdgcn-amd-amdhsa--gfx950"\n.text\n' + A.finish()
txt += f""".section .rodata,"a"
.p2align 6
.amdhsa_kernel {K}
  .amdhsa_next_free_vgpr 256
  .amdhsa_next_free_sgpr 96
  .amdhsa_accum_offset 256
  .amdhsa_group_segment_fixed_size 0
  .amdhsa_kernarg_size 72
  .amdhsa_user_sgpr_count 2
  .amdhsa_user_sgpr_kernarg_segment_ptr 1
  .amdhsa_system_sgpr_workgroup_id_x 1
.end_amdhsa_kernel
"""
out = args[0] if args else "cdna_kernels/%s.s" % NAME
open(out, "w").write(txt)
print("wrote", out, len(txt))
```

```python
import sys, struct
from emit import Asm
from layout import *
NAME = "concat_heads__spectral_gfnet__softmax_full_mha__prompt"
OPT = dict(stamps=0, r1=8, pf=1, sl1=1, sl2=8, sl3=16, rot=0, x=0, probe=0, pwave=4, pwg=100, pd=0, wos=-1, lp=13, slg=8, g2=1, ro=2, wm=1, tch=0, pda=0, oa=0, ob=0, gd=0, dyn=0, wsb=0, fl=1, pw=2, tw=0, sd=0, sp=0, td=0, ad=0, bn=0, gk=4, hp=2, hs=2, fo=1, ts=0, ap=0, pm=0, fm=0, al=0, pk=0, lg=2, hk=6, bp=0, ord=1, pfw=3, av=-1, rota=1, wa=0, ag=0, gdl=0, gl=1)
args = []
for a in sys.argv[1:]:
    if "=" in a: k, v = a.split("="); assert k in OPT, k; OPT[k] = int(v)
    else: args.append(a)
STAMPS = OPT["stamps"]
MODS = ['', 'sc1', 'nt', 'sc0 sc1']
OA, OBM = MODS[OPT['oa']], MODS[OPT['ob']]
def f32(x): return "0x%08x" % struct.unpack("<I", struct.pack("<f", x))[0]
def vr(a, n=1): return f"v{a}" if n == 1 else f"v[{a}:{a+n-1}]"
def sr(a, n=1): return f"s{a}" if n == 1 else f"s[{a}:{a+n-1}]"
P_AX, P_WR, P_WI, P_BX, P_WQKV, P_WO, P_OUT, P_DBG, P_WS = 8,10,12,14,16,18,20,22,24
MFMA = "v_mfma_f32_32x32x16_bf16"
SMF = "v_smfmac_f32_32x32x32_bf16"
SC = "sc1"
PM = ['sc1', 'sc0 sc1', 'sc1 nt', 'sc0 sc1 nt'][OPT['pm']]
FM = ['sc1', 'sc0 sc1', 'sc1 nt', 'sc0 sc1 nt'][OPT['fm']]
HI = "quad_perm:[0,1,2,3] row_mask:0xc bank_mask:0xf"
TAGC = 0x9E3779B9
TAG = 62
SWS = 36; W = sr(SWS,4)
SX, SW = 28, 32
SPIN = 200000
FOFF = 7*16384
WO, OST = 0, 0
QX, EX, TX, WX = 0, 8192, 16384, 24576
MERGE = 114688
ZOFF, YOFF = MERGE, MERGE + 28672
CNT = 162816
LDS_BYTES = 163840
(C_P1, R_KV, C_MERGE, C_OST, R_A1, C_EX, C_A2, R_A2, C_Z, C_Y, C_WOA, C_WOF, C_GO, C_G2, C_Q, C_LF, C_T, C_W, C_X, C_H) = [CNT+16*i+12 for i in range(20)]

A = Asm()
def stamp(i):
    if STAMPS: A(f"{'s_memtime' if STAMPS == 2 else 's_memrealtime'} s[{64+2*i}:{65+2*i}]")
def stampw(i):
    if STAMPS: stamp(i); A("s_waitcnt lgkmcnt(0)")
def srd(d, p, nbytes):
    A(f"s_mov_b32 s{d}, s{p}\ns_mov_b32 s{d+1}, s{p+1}\ns_mov_b32 s{d+2}, {nbytes}\ns_mov_b32 s{d+3}, 0x00020000")
def pi32(d, s, t):
    A(f"""v_and_b32 v{d}, 0x13, v{s}
v_and_b32 v{t}, 4, v{s}
v_lshl_or_b32 v{d}, v{t}, 1, v{d}
v_and_b32 v{t}, 8, v{s}
v_lshrrev_b32 v{t}, 1, v{t}
v_or_b32 v{d}, v{d}, v{t}""")
def mod7(d, t):
    A(f"s_mul_i32 s{t}, s{d}, 37\ns_lshr_b32 s{t}, s{t}, 8\ns_mul_i32 s{t}, s{t}, 7\ns_sub_u32 s{d}, s{d}, s{t}")
def lds_add(addr):
    A(f"v_mov_b32 v12, {addr}\nv_mov_b32 v13, 1\ns_mov_b64 exec, 1\nds_add_u32 v12, v13\ns_mov_b64 exec, -1")
def lds_wait(addr, target, sleep=0, setup=True):
    L, L2 = A.lab("lw"), A.lab("lwd")
    if setup: A(f"v_mov_b32 v12, {addr}")
    A(f"""{L}:
ds_read_b32 v13, v12
s_waitcnt lgkmcnt(0)
v_readfirstlane_b32 s60, v13
s_cmp_ge_u32 s60, {target}""")
    if sleep: A(f"s_cbranch_scc1 {L2}\ns_sleep {sleep}\ns_branch {L}\n{L2}:")
    else: A(f"s_cbranch_scc0 {L}")
def lds_sync(addr, target, sleep=0):
    A("s_waitcnt lgkmcnt(0)"); lds_add(addr); lds_wait(addr, target, sleep, False)
def arrive(cnt, skip):
    A(f"""v_mov_b32 v12, {cnt}
v_mov_b32 v13, 1
s_mov_b64 exec, 1
s_waitcnt vmcnt(0)
ds_add_rtn_u32 v13, v12, v13
s_mov_b64 exec, -1
s_waitcnt lgkmcnt(0)
v_readfirstlane_b32 s60, v13
s_cmp_lg_u32 s60, 3
s_cbranch_scc1 {skip}""")
def flagstore(soff, nrep, repstride, t=40, val=None):
    val = val or f"s{TAG}"
    if not OPT["fl"]:
        A(f"""v_mul_u32_u24 v12, {repstride}, v0
v_mov_b32 v13, {val}
s_mov_b64 exec, {(1<<nrep)-1}
buffer_store_dword v13, v12, {W}, {soff} offen {SC}
s_mov_b64 exec, -1""")
        return
    A(f"""v_lshrrev_b32 v12, 3, v0
v_mul_u32_u24 v12, {repstride}, v12
v_and_b32 v13, 7, v0
v_lshl_add_u32 v12, v13, 4, v12""")
    for i in range(4): A(f"v_mov_b32 v{t+i}, {val}")
    if nrep < 8: A(f"s_mov_b64 exec, {(1<<(8*nrep))-1}")
    A(f"buffer_store_dwordx4 {vr(t,4)}, v12, {W}, {soff} offen {FM}")
    if nrep < 8: A("s_mov_b64 exec, -1")
def publish(cnt, soff, nrep, repstride):
    L = A.lab("pub")
    if OPT["fl"]:
        A(f"v_lshrrev_b32 v10, 3, v0\nv_mul_u32_u24 v10, {repstride}, v10\nv_and_b32 v13, 7, v0\nv_lshl_add_u32 v10, v13, 4, v10")
        for i in range(4): A(f"v_mov_b32 v{36+i}, s{TAG}")
        arrive(cnt, L)
        if nrep < 8: A(f"s_mov_b64 exec, {(1<<(8*nrep))-1}")
        A(f"buffer_store_dwordx4 v[36:39], v10, {W}, s{soff} offen {FM}")
        if nrep < 8: A("s_mov_b64 exec, -1")
    else:
        arrive(cnt, L); flagstore(f"s{soff}", nrep, repstride)
    lds_add(C_X); A(f"{L}:")
def acquire(rel, body, sleep, sleep2=1):
    LP, LD, LO, LE = A.lab("poll"), A.lab("pollok"), A.lab("pollw"), A.lab("polle")
    A(f"s_cmp_lg_u32 s40, 0\ns_cbranch_scc1 {LO}\ns_mov_b32 s61, {SPIN}\n{LP}:")
    body()
    A(f"""s_cbranch_vccz {LD}
s_sub_u32 s61, s61, 1
s_cmp_eq_u32 s61, 0
s_cbranch_scc1 {LD}
s_sleep {sleep}
s_branch {LP}
{LD}:""")
    lds_add(rel)
    A(f"s_branch {LE}\n{LO}:")
    lds_wait(rel, 1, sleep2)
    A(f"{LE}:")
def spin(load, reg, sleep):
    LP, LD = A.lab("spin"), A.lab("spinok")
    A(f"""s_mov_b32 s61, {SPIN}
{LP}:
{load}
s_waitcnt vmcnt(0)
v_cmp_ne_u32 vcc, s{TAG}, v{reg}
s_cbranch_vccz {LD}
s_sub_u32 s61, s61, 1
s_cmp_eq_u32 s61, 0
s_cbranch_scc1 {LD}
s_sleep {sleep}
s_branch {LP}
{LD}:""")
def gettag():
    if OPT["wsb"]: A(f"s_add_u32 s24, s24, {OPT['wsb'] << 20}\ns_addc_u32 s25, s25, 0")
    A(f"s_load_dword s{TAG}, s[24:25], {EPOCH_OFF}")
    srd(SWS, P_WS, WS_USED)
def fixtag():
    A(f"s_waitcnt lgkmcnt(0)\ns_add_u32 s{TAG}, s{TAG}, {TAGC}")

FIN, END, ATT, PUB1, HELP2, GEN = "L_fin", "L_end", "L_att", "L_pub1", "L_help2", "L_gen"
LA1, LB1C, LB1G, LA1C, LV, LN, LFB = "L_a1", "L_b1c", "L_b1g", "L_a1c", "L_b1v", "L_norm", "L_fallback"
K = NAME + "_kernel"

def entry():
    A(f".globl {K}\n.p2align 8\n.type {K},@function\n{K}:")
    A(f"""s_cmp_ge_u32 s2, 256
s_cbranch_scc1 {FIN}
s_load_dwordx16 s[8:23], s[0:1], 0
s_load_dwordx2 s[24:25], s[0:1], 64
v_lshrrev_b32 v1, 6, v0
v_readfirstlane_b32 s3, v1
v_and_b32 v0, 63, v0""")
    if STAMPS:
        for i in range(2, 14): A(f"s_mov_b32 s{64+2*i}, 0")
        A("s_memtime s[64:65]\ns_memrealtime s[66:67]")
    if OPT["pf"]:
        L = A.lab("pf"); LP = A.lab("pc")
        A(f"""{"s_cmp_lg_u32 s3, 3" if OPT["pfw"] == 3 else "s_cmp_ge_u32 s3, %d" % OPT["pfw"]}
s_cbranch_scc1 {L}
s_getpc_b64 s[56:57]
{LP}:
s_lshr_b32 s58, s2, 3
s_add_u32 s58, s58, s3
s_and_b32 s58, s58, 3
s_lshl_b32 s58, s58, 13
v_lshlrev_b32 v1, 7, v0
v_add_u32 v1, s58, v1
v_min_u32 v1, {FIN}-{LP}, v1
global_load_dword v63, v1, s[56:57]
{L}:""")
    A(f"""s_and_b32 s4, s2, 7
s_lshr_b32 s5, s2, 3
s_lshl_b32 s6, s4, 1
s_and_b32 s7, s5, 1
s_or_b32 s6, s6, s7
s_lshr_b32 s7, s5, 1
s_and_b32 s40, s3, 3
s_cmp_ge_u32 s7, 11
s_cbranch_scc1 {LA1}
s_cmp_lt_u32 s3, 4
s_cbranch_scc1 {LB1C}""")

def xaddr(rs, d=2):
    A(f"""v_lshrrev_b32 v17, 3, v0
v_and_b32 v14, 7, v0
v_lshrrev_b32 v15, 4, v0
v_xor_b32 v14, v14, v15
v_lshlrev_b32 v14, 4, v14
v_xor_b32 v16, 64, v14
v_mul_u32_u24 v17, {rs}, v17
v_add_u32 v{d}, v17, v14
v_add_u32 v{d+1}, v17, v16
v_add_u32 v{d+1}, {8*rs-1024}, v{d+1}
v_add_u32 v{d+2}, {2*(8*rs-1024)}, v{d}
v_add_u32 v{d+3}, {2*(8*rs-1024)}, v{d+1}""")
def b1_loader():
    A("s_setprio 3")
    if OPT["rot"] == 2: A("s_mov_b32 s26, s7")
    elif OPT["rot"] == 3: A("s_and_b32 s26, s6, 1\ns_mul_i32 s26, s26, 3\ns_add_u32 s26, s26, s7")
    elif OPT["rot"] == 4: A("s_and_b32 s26, s6, 1\ns_mul_i32 s26, s26, 3")
    elif OPT["rot"] == 5: A("s_lshr_b32 s26, s6, 1\ns_add_u32 s26, s26, s7")
    else: A("s_add_u32 s26, s6, s7")
    mod7(26, 27)
    if not OPT["rot"]: A("s_mov_b32 s26, 0")
    xaddr(896)
    A(f"""v_and_b32 v14, 15, v0
v_lshlrev_b32 v16, 2, v15
v_xor_b32 v14, v14, v16
v_lshlrev_b32 v14, 4, v14
v_mul_u32_u24 v15, 2688, v15
v_add_u32 v6, v14, v15
v_add_u32 v7, {4*2688-1024}, v6
v_add_u32 v8, {2*(4*2688-1024)}, v6
v_add_u32 v9, {3*(4*2688-1024)}, v6
s_lshl_b32 s41, s6, 2
s_add_u32 s47, s41, s40
s_mul_i32 s41, s47, {32*896}     ; x base
s_mul_i32 s42, s40, {16*2688}
s_lshl_b32 s43, s7, 8
s_add_u32 s42, s42, s43          ; w base
s_lshl_b32 s44, s40, 12
s_waitcnt lgkmcnt(0)""")
    srd(SX, P_BX, X_BYTES); srd(SW, P_WQKV, WQKV_BYTES)
    def issue():
        A(f"""s_lshl_b32 s45, s26, 7
s_add_u32 s45, s45, s41
s_mul_i32 s46, s26, {64*2688}
s_add_u32 s46, s46, s42
s_mov_b32 m0, s44""")
        for i in range(4): A(f"buffer_load_dwordx4 v{2+i}, {sr(SX,4)}, s45 offen offset:{1024*i} lds")
        A(f"s_add_u32 m0, s44, 16384")
        for i in range(4): A(f"buffer_load_dwordx4 v{6+i}, {sr(SW,4)}, s46 offen offset:{1024*i} lds")
        A("""s_add_u32 s26, s26, 1
s_cmp_eq_u32 s26, 7
s_cselect_b32 s26, 0, s26
s_add_u32 s44, s44, 0x8000
s_and_b32 s44, s44, 0x1ffff""")
    LL = A.lab("b1ld")
    issue(); gettag()
    A(f"s_mov_b32 s48, 6\n{LL}:")
    if OPT["x"] != 2: issue()
    else: A("s_waitcnt vmcnt(0)")
    A("s_waitcnt vmcnt(8)")
    if STAMPS:
        LX = A.lab("st"); A(f"s_cmp_lg_u32 s48, 6\ns_cbranch_scc1 {LX}"); stamp(2); A(f"{LX}:")
    A(f"""s_barrier
s_sub_u32 s48, s48, 1
s_cmp_lg_u32 s48, 0
s_cbranch_scc1 {LL}""")
    fixtag()
    wsetup()
    if OPT["wa"]: srd(64, P_AX, X_BYTES)
    A("s_waitcnt vmcnt(0)")
    stamp(3)
    A(f"s_barrier\ns_cmp_eq_u32 s7, 10\ns_cbranch_scc1 {ATT}")
    for x in WL[:OPT["wm"]]: A(x)
    A(f"s_branch {ATT}")

WL = [f"buffer_load_dwordx4 v[96:99], v248, {sr(SX,4)}, s55 offen", f"buffer_load_dwordx4 v[100:103], v248, s[56:59], s55 offen"]
def wsetup():
    LNY = A.lab("nyq")
    srd(SX, P_WR, W_BYTES); srd(56, P_WI, W_BYTES)
    A(f"""s_lshr_b32 s54, s2, 3          ; ko
s_mul_i32 s55, s4, {4*450}
s_mul_i32 s43, s40, {512*450}
s_add_u32 s55, s55, s43
s_lshl_b32 s43, s54, 4
s_add_u32 s55, s55, s43
s_cmp_lg_u32 s54, 28
s_cbranch_scc1 {LNY}""")
    srd(SX, P_WI, W_BYTES); srd(56, P_WR, W_BYTES)
    A(f"""s_sub_u32 s55, s55, 14
{LNY}:
v_lshrrev_b32 v9, 2, v0
v_and_b32 v10, 3, v0
v_lshl_add_u32 v9, v9, 5, v10
v_mul_u32_u24 v248, 450, v9""")
A1LD, ATT2 = "L_a1ld", "L_att2"
SXA = 64 if OPT["wa"] else SX
assert not (OPT["wa"] and STAMPS)
def a1_dispatch_loader():
    A(f"""{LA1}:
s_sub_u32 s5, s7, 11           ; g5
s_mul_i32 s26, s5, 3
s_lshr_b32 s26, s26, 1         ; e0 in 0,1,3,4,6""")
    if not OPT["rota"]: A("s_mov_b32 s26, 0")
    A(f"s_cmp_lt_u32 s3, 4\ns_cbranch_scc1 {LA1C}")
    A(f"""s_lshl_b32 s96, s6, 2
s_add_u32 s96, s96, s40
s_mul_i32 s96, s96, 896
s_lshl_b32 s97, s40, 12
s_lshl_b32 s98, s26, 2
s_add_u32 s98, s98, 3
s_lshl_b32 s99, s6, 7
s_add_u32 s99, s99, {GO_OFF}""")
    mod7(98, 27)
    A("s_waitcnt lgkmcnt(0)")
    gettag()
    wsetup()
    if not OPT["wa"]:
        for x in WL: A(x)
    srd(SXA, P_AX, X_BYTES)
    fixtag()
    A(f"s_branch {ATT}")
    A(f"{A1LD}:\ns_setprio 3\nv_mov_b32 v9, 0")
    xaddr(64*896, 48)
    spin(f"buffer_load_dword v14, v9, {W}, s99 offen {PM}", 14, 2)
    stamp(2)
    LL = A.lab("a1ld")
    A(f"""s_mov_b32 s100, 0
{LL}:
s_lshl_b32 s42, s98, 7
s_add_u32 s42, s42, s96
s_lshl_b32 s43, s98, 14
s_add_u32 m0, s97, s43""")
    for i in range(4): A(f"buffer_load_dwordx4 v{48+i}, {sr(SXA,4)}, s42 offen offset:{1024*i} lds")
    A(f"""s_add_u32 s98, s98, 4
s_sub_u32 s43, s98, 7
s_cmp_ge_u32 s98, 7
s_cselect_b32 s98, s43, s98
s_add_u32 s100, s100, 1
s_cmp_lt_u32 s100, 3
s_cbranch_scc1 {LL}
s_waitcnt vmcnt(4)
s_barrier
s_cmp_lt_u32 s100, 7
s_cbranch_scc1 {LL}
s_waitcnt vmcnt(0)""")
    stamp(3)
    A("s_barrier")
    if OPT["wa"]:
        for x in WL: A(x)
    A(f"s_branch {ATT2}")

def main_start():
    A(f"""v_lshlrev_b32 v1, 4, v0
v_add_u32 v1, {CNT+12}, v1
v_mov_b32 v2, 0
ds_write_b32 v1, v2""")

C, ER, EI, G, GT = 128, 160, 176, 192, 16
def tlbwarm():
    g = OPT["tw"]
    if not g: return
    L = A.lab("tw")
    n = (WS_USED >> g) // 32 + 1
    A(f"""s_cmp_lg_u32 s3, 2
s_cbranch_scc1 {L}
s_lshr_b32 s60, s2, 3
s_mul_i32 s60, s60, {n << g}
v_lshlrev_b32 v12, {g}, v0""")
    for i in range(0, n, 64):
        k = min(64, n - i)
        if k < 64: A(f"s_bfm_b64 exec, {k}, 0")
        A(f"buffer_load_dword v255, v12, {W}, s60 offen offset:64")
        if i + 64 < n: A(f"s_add_u32 s60, s60, {64 << g}")
    A("s_mov_b64 exec, -1")
    m = (W_BYTES >> g) // 32 + 1
    srd(28, P_WR, W_BYTES); srd(32, P_WI, W_BYTES)
    A(f"""s_lshr_b32 s60, s2, 3
s_mul_i32 s60, s60, {m << g}
s_bfm_b64 exec, {m}, 0
buffer_load_dword v255, v12, s[28:31], s60 offen
buffer_load_dword v255, v12, s[32:35], s60 offen
s_mov_b64 exec, -1
{L}:""")
def prewrite():
    tlbwarm()
    if OPT["pw"] < 2: return
    L = A.lab("pw")
    A(f"""s_cmp_lg_u32 s3, 3
s_cbranch_scc1 {L}
s_sub_u32 s60, s{TAG}, {TAGC}
s_lshl_b32 s61, s7, 4
s_add_u32 s61, s61, s6
s_lshl_b32 s61, s61, 7
s_add_u32 s61, s61, {F1_OFF}""")
    flagstore("s61", OPT["r1"], 32768, 40, "s60")
    A(f"{L}:")
def gen_common():
    A(f"""v_and_b32 v14, 31, v0
v_lshrrev_b32 v15, 5, v0
s_lshr_b32 s50, s2, 5
s_lshl_b32 s50, s50, 3
s_or_b32 s50, s50, s4
s_bfe_u32 s51, s2, 0x20003       ; d quarter
s_and_b32 s52, s40, 1            ; parity e""")
def rot_gen(n, nblk, step, base, mult, dmult, out, scale=None):
    c, sn, t = GT, GT+8, GT+16
    A(f"v_mul_f32 v11, {f32(float(dmult))}, v{step}")
    for j in range(n): A(f"v_fmamk_f32 v{t+j}, v{step}, {f32(float(mult[j]))}, v{base}")
    A("v_cos_f32 v10, v11\nv_sin_f32 v12, v11")
    for j in range(n): A(f"v_cos_f32 v{c+j}, v{t+j}\nv_sin_f32 v{sn+j}, v{t+j}")
    A("v_mov_b32 v11, v10\nv_mov_b32 v13, v12")
    if scale is not None:
        for j in range(n): A(f"v_mul_f32 v{c+j}, {f32(scale)}, v{c+j}\nv_mul_f32 v{sn+j}, {f32(scale)}, v{sn+j}")
    for b in range(nblk):
        out(b)
        if b + 1 < nblk:
            for j in range(0, n, 2): A(f"v_pk_mul_f32 {vr(t+j,2)}, {vr(sn+j,2)}, v[12:13]")
            for j in range(0, n, 2): A(f"v_pk_mul_f32 {vr(sn+j,2)}, {vr(sn+j,2)}, v[10:11]")
            for j in range(0, n, 2): A(f"v_pk_fma_f32 {vr(sn+j,2)}, {vr(c+j,2)}, v[12:13], {vr(sn+j,2)}")
            for j in range(0, n, 2): A(f"v_pk_fma_f32 {vr(c+j,2)}, {vr(c+j,2)}, v[10:11], {vr(t+j,2)} neg_lo:[0,0,1] neg_hi:[0,0,1]")
def gen_c():
    A(f"""v_lshrrev_b32 v8, 1, v14
s_lshl_b32 s43, s40, 4
v_add_u32 v8, s43, v8
v_cvt_f32_u32 v8, v8
v_mul_f32 v8, {f32(1/64)}, v8    ; step = u2/64
v_and_b32 v9, 1, v14
v_cvt_f32_u32 v9, v9
v_mul_f32 v9, {f32(0.25)}, v9
v_lshlrev_b32 v10, 1, v15
v_cvt_f32_u32 v10, v10
v_fma_f32 v9, v8, v10, v9        ; base""")
    def out(f):
        for p in range(4): A(f"v_cvt_pk_bf16_f32 v{C+4*f+p}, v{GT+p}, v{GT+8+p}")
    rot_gen(4, 8, 8, 9, [0,1,4,5], 8, out)
def gen_e():
    A(f"""v_lshlrev_b32 v8, 6, v14
v_add_u32 v8, s50, v8
v_cvt_f32_u32 v8, v8
v_mul_f32 v8, {f32(1/2048)}, v8
v_lshlrev_b32 v9, 2, v15
v_cvt_f32_u32 v9, v9
v_mul_f32 v9, v8, v9""")
    def out(f):
        for p in range(4): A(f"v_cvt_pk_bf16_f32 v{ER+4*f+p}, v{GT+p}, -v{GT+8+p}")
        for p in range(4): A(f"v_cvt_pk_bf16_f32 v{EI+4*f+p}, v{GT+8+p}, v{GT+p}")
    rot_gen(4, 4, 8, 9, [0,1,2,3], 8, out, 2.0/(2048*448))
def gen_g():
    A(f"""s_lshr_b32 s44, s40, 1
s_lshl_b32 s45, s51, 1
s_add_u32 s44, s44, s45         ; d tile
s_lshl_b32 s46, s44, 5
v_add_u32 v8, s46, v14          ; d
v_cvt_f32_u32 v8, v8
v_mul_f32 v8, {f32(1/448)}, v8
v_lshlrev_b32 v9, 3, v15
v_add_u32 v9, s52, v9
v_cmp_eq_u32 vcc, 0, v9
v_cvt_f32_u32 v9, v9
v_mul_f32 v9, v8, v9""")
    def out(t):
        for j in range(4): A(f"v_cvt_pk_bf16_f32 v{G+8*t+j}, v{GT+2*j}, v{GT+2*j+1}")
        for j in range(4): A(f"v_cvt_pk_bf16_f32 v{G+8*t+4+j}, -v{GT+8+2*j}, -v{GT+9+2*j}")
    rot_gen(8, 7, 8, 9, [16*(j>>2)+2*(j&3) for j in range(8)], 32, out)
    A(f"""v_and_b32 v8, 0xffff0000, v{G}
v_or_b32 v8, 0x3f00, v8
v_and_b32 v10, 1, v14
v_lshlrev_b32 v10, 15, v10
v_cndmask_b32 v{G}, v{G}, v8, vcc
v_and_b32 v8, 0xffff, v8
v_and_b32 v9, 0xffff0000, v{G+4}
v_or3_b32 v9, v9, v10, v8
v_cndmask_b32 v{G+4}, v{G+4}, v9, vcc""")
def gen_pre():
    gen_common()

ACC = 64
def acc(a, b): return ACC + 32*a + 16*b
LONES = "L_ones"
def b1_body(vtype):
    if vtype: pi32(48, 14, 49)
    else: A("v_mov_b32 v48, v14")
    A(f"""v_lshrrev_b32 v49, 1, v48
v_and_b32 v49, 7, v49
v_xor_b32 v49, v49, v15
v_lshlrev_b32 v49, 4, v49
v_lshl_or_b32 v50, v48, 7, v49
s_lshl_b32 s43, s41, 13
v_add_u32 v52, s43, v50
v_xor_b32 v53, 32, v52
v_xor_b32 v54, 64, v52
v_xor_b32 v55, 96, v52""")
    A(f"""v_bfe_u32 v48, v0, 2, 2        ; rr
v_and_b32 v49, 3, v0           ; cc""")
    if not vtype:
        A("""v_lshrrev_b32 v50, 1, v49
v_and_b32 v49, 1, v49
v_lshl_or_b32 v49, v49, 1, v50 ; sigma(cc)""")
    A(f"""v_bfe_u32 v50, v0, 4, 1        ; colhalf
v_lshlrev_b32 v50, 5, v50
v_lshl_or_b32 v50, v49, 3, v50
s_lshl_b32 s43, s42, 7
v_or_b32 v50, s43, v50
v_lshlrev_b32 v51, 6, v48
v_xor_b32 v50, v50, v51
v_lshl_add_u32 v51, v15, 3, v48 ; 8h+rr
v_lshl_or_b32 v56, v51, 8, v50
v_add_u32 v56, 16384, v56
v_xor_b32 v57, 64, v56""")
    A(f"""s_lshl_b32 s46, s6, 2
s_lshl_b32 s47, s41, 1
s_add_u32 s46, s46, s47
s_lshl_b32 s47, s7, 2
s_lshl_b32 s48, s42, 1
s_add_u32 s47, s47, s48""")
    if not vtype:
        A(f"""s_lshl_b32 s48, s47, 11
v_lshlrev_b32 v2, 4, v0
s_cmp_ge_u32 s47, 14
s_cselect_b32 s49, {KV_REC - QK_TILE}, 0
s_cselect_b32 s43, {KV_OFF - Q_OFF - 14*2048}, 0
s_cselect_b32 s54, 1.0, {f32(QSCALE)}
s_mov_b32 s55, s54
s_add_u32 s49, s49, {QK_TILE}
s_mul_i32 s46, s46, s49
s_add_u32 s46, s46, s48
s_add_u32 s46, s46, s43
s_add_u32 s46, s46, {Q_OFF}
s_add_u32 s49, s46, s49""")
    else:
        A(f"""s_sub_u32 s45, s7, 7
s_lshl_b32 s45, s45, 7
s_add_u32 s45, s45, 27
s_mul_i32 s45, s45, 2341
s_lshr_b32 s45, s45, 16
v_lshrrev_b32 v10, 4, v0
v_add_u32 v10, s45, v10
v_lshrrev_b32 v11, 2, v0
v_lshlrev_b32 v11, 9, v11
s_lshl_b32 s45, s45, 11
v_add_u32 v11, s45, v11
v_cmp_gt_u32 s[56:57], 16, v10
v_and_b32 v4, 3, v0
v_lshl_or_b32 v4, v4, 4, v11
s_cmp_lt_u32 s7, 9
s_cselect_b32 s58, 0xffff, 0
s_mov_b32 s59, 0
s_lshl_b32 s54, s6, 2
s_add_u32 s54, s54, s40
s_mul_i32 s54, s54, {KV_REC}
s_add_u32 s54, s54, {KV_OFF + QK_TILE + 28*16}
s_add_u32 s55, s54, 8192
v_mov_b32 v58, 0x3f803f80
v_mov_b32 v59, 0x3f803f80
v_mov_b32 v60, 0x3f803f80
v_mov_b32 v61, 0x3f803f80
s_sub_u32 s47, s47, 28
s_mul_i32 s46, s46, {KV_REC}
s_add_u32 s46, s46, {KV_OFF + QK_TILE}
s_add_u32 s49, s46, {KV_REC}
s_lshl_b32 s48, s47, 5""")
        for b in range(2):
            A(f"""v_add_u32 v48, s48, v14
v_add_u32 v48, {32*b}, v48
v_mul_u32_u24 v49, 2341, v48
v_lshrrev_b32 v49, 16, v49     ; head
v_mul_u32_u24 v50, 28, v49
v_sub_u32 v48, v48, v50        ; d
v_lshlrev_b32 v48, 4, v48
v_lshl_or_b32 v48, v15, 9, v48
v_lshl_or_b32 v{2+b}, v49, 11, v48""")
    SETS = (16, 32, 192, 208)
    def rx(kap, p, a): return f"ds_read_b128 {vr(SETS[p]+4*a,4)}, v{6+kap} offset:{4096*a}"
    def rw(kap, p, b): return [f"ds_read_b64_tr_b16 {vr(SETS[p]+8+4*b+2*u,2)}, v{10+b} offset:{(16*kap+4*u)*256}" for u in range(2)]
    def rdlist(kap, p): return [rx(kap,p,0)] + rw(kap,p,0) + rw(kap,p,1) + [rx(kap,p,1)]
    def setaddr(): return [f"v_add_u32 v{6+i}, s44, v{52+i}" for i in range(6)]
    def mf(a, b, p):
        x, w = vr(SETS[p]+4*a,4), vr(SETS[p]+8+4*b,4)
        o = (x, w) if vtype else (w, x)
        A(f"{MFMA} {vr(acc(a,b),16)}, {o[0]}, {o[1]}, {vr(acc(a,b),16)}")
    gb = []
    def fill(n):
        for _ in range(n):
            if gb:
                for x in gb.pop(0): A(x)
    def kstep(p, r, f):
        A("s_waitcnt lgkmcnt(3)")
        mf(0,0,p)
        for x in r[0:3]: A(x)
        fill(f[0])
        A("s_waitcnt lgkmcnt(4)")
        mf(0,1,p)
        for x in r[3:5]: A(x)
        fill(f[1])
        A("s_waitcnt lgkmcnt(5)")
        mf(1,0,p)
        for x in r[5:6]: A(x)
        fill(f[2])
        mf(1,1,p)
        if OPT["bn"]: A(f"s_nop {OPT['bn']}")
        fill(f[3])
    LL = A.lab("b1loop")
    if vtype:
        LI, LI2 = A.lab("idle"), A.lab("idle")
        A(f"s_cmp_lt_u32 s47, 14\ns_cbranch_scc1 {LI}")
        prewrite()
        for n in range(7):
            A("s_barrier")
            if n == OPT["gk"]:
                A(f"s_cmp_lg_u32 s3, 2\ns_cbranch_scc1 {LI2}\ns_lshl_b32 s61, s6, 7\ns_add_u32 s61, s61, {GO_OFF}")
                flagstore("s61", 1, 0)
                A(f"{LI2}:")
        A(f"s_branch {LONES}\n{LI}:")
    A("s_mov_b32 s44, 0\ns_mov_b32 s45, 0")
    for x in setaddr(): A(x)
    prewrite()
    stampw(9)
    A("s_barrier")
    stampw(2)
    for x in rdlist(0, 0): A(x)
    A(f"{LL}:")
    kstep(0, rdlist(1, 1), (0,1,2,3))
    kstep(1, rdlist(2, 0), (0,1,2,3))
    A("s_add_u32 s44, s44, 0x8000\ns_and_b32 s44, s44, 0x1ffff\ns_add_u32 s45, s45, 1")
    kstep(0, rdlist(3, 1), (1,1,2,0))
    for x in setaddr(): A(x)
    A("s_barrier")
    kstep(1, rdlist(0, 0), (1,1,1,1))
    assert not gb
    A(f"s_cmp_lt_u32 s45, 6\ns_cbranch_scc1 {LL}")
    if OPT["x"] in (2, 3): A("s_memtime s[84:85]\ns_waitcnt lgkmcnt(0)")
    rd = []
    for kap in (1,2,3): rd += [rx(kap,kap,0)] + rw(kap,kap,0)
    for kap in (1,2,3): rd += rw(kap,kap,1)
    for kap in (1,2,3): rd += [rx(kap,kap,1)]
    order = [rdlist(0,0)[i] for i in range(6)] + rd
    def epi(a, b):
        e = []; t = acc(a,b)
        for i in range(8):
            if not vtype:
                if OPT["pk"] or (a, b) == (1, 1): e.append(f"v_pk_mul_f32 {vr(t+2*i,2)}, {vr(t+2*i,2)}, s[54:55]")
                else: e += [f"v_mul_f32 v{t+2*i}, s54, v{t+2*i}", f"v_mul_f32 v{t+2*i+1}, s54, v{t+2*i+1}"]
            e.append(f"v_cvt_pk_bf16_f32 v{t+i}, v{t+2*i}, v{t+2*i+1}" if OPT["x"] != -10 else f"v_mov_b32 v{t+i}, 0")
            if i & 3 == 3:
                if OPT["sd"] and (a, b, i) == (0, 0, 3): e.append(f"s_sleep {OPT['sd']}")
                if OPT["sp"]: e.append(f"s_sleep {OPT['sp']}")
                if vtype: e.append(f"buffer_store_dwordx4 {vr(t+i-3,4)}, v{2+b}, {W}, s{46 if a==0 else 49} offen offset:{1024*(i>>2)} {SC}")
                else: e.append(f"buffer_store_dwordx4 {vr(t+i-3,4)}, v2, {W}, s{46 if a==0 else 49} offen offset:{2048*b+1024*(i>>2)} {SC}")
        return e
    issued = 6; pend = []; lastw = None
    tiles = [(a,b) for a in range(2) for b in range(2)]
    seq = [(a,b,0) for a,b in tiles] + [(a,b,k) for a,b in tiles for k in (1,2,3)]
    for m, (a, b, kap) in enumerate(seq):
        need = max(order.index(x) for x in [rx(kap,kap,a)] + rw(kap,kap,b)) + 1
        while issued < need: A(order[issued]); issued += 1
        if lastw is None or need > lastw:
            A(f"s_waitcnt lgkmcnt({issued - need})"); lastw = need
        mf(a, b, kap)
        for _ in range(3):
            if issued < len(order) and issued - lastw < 14: A(order[issued]); issued += 1
        if m in (8, 11, 14): pend += epi(*tiles[(m-8)//3])
        if m == 15: stamp(3)
        for _ in range((6 if OPT["pk"] else 8) if not vtype else 4):
            if pend: A(pend.pop(0))
    for x in pend + epi(1,1): A(x)
    if vtype:
        LO = A.lab("ones")
        A(f"""{LONES}:
s_mov_b64 exec, s[56:57]
buffer_store_dwordx4 v[58:61], v4, {W}, s54 offen {SC}
s_mov_b64 exec, s[58:59]
s_cbranch_execz {LO}
buffer_store_dwordx4 v[58:61], v4, {W}, s55 offen {SC}
{LO}:
s_mov_b64 exec, -1""")
    lds_add(C_LF)
    A(f"s_branch {PUB1}")
def b1_compute():
    A(f"""s_and_b32 s41, s3, 1           ; wr
s_lshr_b32 s42, s3, 1          ; wc""")
    fixtag()
    A(f"s_cmp_ge_u32 s7, 7\ns_cbranch_scc1 {LV}")
    b1_body(False)
    A(f"{LV}:")
    b1_body(True)

def a1_gen():
    LF, LE = A.lab("fgen"), A.lab("fend")
    A(f"{LA1C}:\ns_setprio 2")
    if OPT["gdl"]: A(f"s_sleep {OPT['gdl']}")
    gen_common()
    pi32(48, 14, 49)
    A(f"""v_lshlrev_b32 v61, 4, v0
v_add_u32 v61, {FOFF}, v61""")
    main_start()
    A(f"""v_lshrrev_b32 v48, 1, v48       ; k_local
s_mul_i32 s41, s5, 3
s_add_u32 s41, s41, s3
s_lshl_b32 s41, s41, 4
v_add_u32 v48, s41, v48
v_cvt_f32_u32 v48, v48
v_mul_f32 v56, {f32(1/448)}, v48 ; k/448
v_and_b32 v48, 1, v14
v_cvt_f32_u32 v48, v48
v_mul_f32 v59, {f32(0.25)}, v48  ; c/4
v_lshlrev_b32 v60, 3, v15
v_cvt_f32_u32 v60, v60
v_fma_f32 v59, v56, v60, v59
v_mul_f32 v58, {f32(16.0)}, v56
v_cos_f32 v58, v58
s_mul_i32 s41, s3, 14336
v_add_u32 v53, s41, v61""")
    for j in range(16): A(f"v_fmamk_f32 v{16+j}, v56, {f32(float(16*(j>>3)+(j&7)))}, v59")
    A("v_add_f32 v58, v58, v58")
    for j in range(16): A(f"v_cos_f32 v{16+j}, v{16+j}")
    A("s_waitcnt lgkmcnt(0)")
    gettag()
    A(f"s_cmp_eq_u32 s3, 3\ns_cbranch_scc1 {LE}\nv_mov_b32 v59, v58\ns_mov_b32 s42, 7\n{LF}:")
    for u in range(2):
        for j in range(4): A(f"v_cvt_pk_bf16_f32 v{32+4*u+j}, v{16+8*u+2*j}, v{17+8*u+2*j}")
        A(f"ds_write_b128 v53, {vr(32+4*u,4)} offset:{1024*u}")
        for j in range(4):
            a, b = 16+8*u+2*j, 16+8*(u^1)+2*j
            A(f"v_pk_fma_f32 {vr(a,2)}, {vr(b,2)}, v[58:59], {vr(a,2)} neg_lo:[0,0,1] neg_hi:[0,0,1]") if u == 0 else None
    for j in range(4):
        a, b = 24+2*j, 16+2*j
        A(f"v_pk_fma_f32 {vr(a,2)}, {vr(b,2)}, v[58:59], {vr(a,2)} neg_lo:[0,0,1] neg_hi:[0,0,1]")
    A(f"""v_add_u32 v53, 2048, v53
s_sub_u32 s42, s42, 1
s_cmp_lg_u32 s42, 0
s_cbranch_scc1 {LF}
{LE}:""")
E1R, E1I = 56, 248
def a1_compute():
    if not OPT["ag"]:
        A(f"{GEN}:")
        gen_e(); gen_g()
        A(f"s_cmp_lt_u32 s7, 11\ns_cbranch_scc1 {HELP2}")
    A(f"""s_lshl_b32 s41, s6, 2
s_add_u32 s41, s41, s3          ; s2 index
v_lshlrev_b32 v9, 8, v15
v_add_u32 v9, s41, v9
v_mul_u32_u24 v9, v14, v9
v_cvt_f32_u32 v9, v9
v_mul_f32 v9, {f32(1/2048)}, v9
v_cvt_f32_u32 v8, v14
v_mul_f32 v8, {f32(1/32)}, v8
v_mov_b32 v5, v61
s_waitcnt vmcnt(0)""")
    def out(b):
        for j in range(4): A(f"v_cvt_pk_bf16_f32 v{E1R+4*b+j}, v{GT+2*j}, v{GT+2*j+1}")
        for j in range(4): A(f"v_cvt_pk_bf16_f32 v{E1I+4*b+j}, -v{GT+8+2*j}, -v{GT+9+2*j}")
    rot_gen(8, 2, 8, 9, [8*(j>>2)+(j&3) for j in range(8)], 16, out)
    A(f"""v_lshrrev_b32 v49, 1, v14
v_and_b32 v49, 7, v49
v_xor_b32 v49, v49, v15
v_lshlrev_b32 v49, 4, v49
v_lshl_or_b32 v6, v14, 7, v49
s_lshl_b32 s43, s3, 12
v_add_u32 v6, s43, v6
v_and_b32 v3, 2, v14
v_lshlrev_b32 v3, 30, v3
v_or_b32 v3, 1.0, v3            ; (-1)^k
v_mov_b32 v2, v3
v_lshlrev_b32 v4, 4, v0
s_mul_i32 s47, s41, {T_ROW}
s_mul_i32 s42, s5, 6144
s_add_u32 s47, s47, s42
s_add_u32 s47, s47, {T_OFF}
s_add_u32 s48, s47, 2048
s_add_u32 s49, s47, 4096""")
    egen = []
    A(f"s_mul_i32 s27, s26, 8256")
    def a1salu(adv=True):
        r = []
        if adv: r += ["s_add_u32 s27, s27, 8256", f"s_cmp_eq_u32 s27, {7*8256}", "s_cselect_b32 s27, 0, s27"]
        return r + ["s_and_b32 s43, s27, 0x1c040", f"s_add_u32 s44, s27, {7*8256}", "s_and_b32 s44, s44, 0x1c040",
                    "s_lshr_b32 s46, s27, 2", "s_and_b32 s46, s46, 0x7800"]
    a1valu = ["v_xor_b32 v8, s43, v6", "v_xor_b32 v10, s44, v6", "v_xor_b32 v9, 32, v8", "v_xor_b32 v11, 32, v10", "v_add_u32 v12, s46, v5"]
    def a1rd(t):
        b = 16 + 20*t
        return ([f"ds_read_b128 {vr(b,4)}, v{8+t}"] +
                [f"ds_read_b128 {vr(b+8+4*kgi,4)}, v12 offset:{1024*t+14336*kgi}" for kgi in range(3)] +
                [f"ds_read_b128 {vr(b+4,4)}, v{10+t}"])
    def a1step(t, nxt, first=False, fill=0, adv=False):
        b = 16 + 20*t
        r = list(nxt); issued = 0
        sa = a1salu() if adv else []; va = list(a1valu) if adv else []
        for m in range(6):
            hi, kgi = m // 3, m % 3
            need = (2, 3, 4, 5, 5, 5)[m]
            if not nxt: hi, kgi, need = m % 2, m // 2, (2, 5, 5, 5, 5, 5)[m]
            if m < (4 if nxt else 2): A(f"s_waitcnt lgkmcnt({5 - need + issued})")
            d = 64 + 32*kgi + 16*hi
            A(f"{MFMA} {vr(d,16)}, {vr(b+4*hi,4)}, {vr(b+8+4*kgi,4)}, {0 if first else vr(d,16)}")
            for _ in range(2 if m == 0 else 1):
                if r: A(r.pop(0)); issued += 1
            if m in (1, 2, 3):
                for _ in range(3):
                    if sa: A(sa.pop(0))
            if m == 4:
                while va: A(va.pop(0))
            for _ in range(fill if not (adv and m in (1,2,3,4)) else fill // 2):
                if egen: A(egen.pop(0))
    LL, LS, LNB = A.lab("a1loop"), A.lab("a1last"), A.lab("a1nb")
    for x in a1salu(False) + a1valu: A(x)
    fixtag()
    prewrite()
    for x in a1valu[4:]: A(x)
    stampw(9)
    A("s_barrier")
    stampw(2)
    if OPT["ad"]: A(f"s_sleep {OPT['ad']}")
    for x in a1rd(0): A(x)
    for n in range(1):
        a1step(0, a1rd(1), n == 0, 2, True)
        if OPT["gl"]: A("s_barrier")
        a1step(1, a1rd(0), False, 3)
    assert not egen
    A(f"s_mov_b32 s45, 1\n{LL}:")
    a1step(0, a1rd(1), adv=True)
    LH = A.lab("a1h")
    A(f"""s_add_u32 s45, s45, 1
s_cmp_eq_u32 s45, 7
s_cbranch_scc1 {LS}
s_nop 0""")
    if OPT["gl"]: A(f"s_cmp_eq_u32 s45, 6\ns_cbranch_scc1 {LNB}\ns_barrier\n{LNB}:")
    a1step(1, a1rd(0))
    A(f"s_branch {LL}\n{LS}:")
    a1step(1, [])
    stamp(3)
    def s1(kgi):
        P, Q = 64+32*kgi, 80+32*kgi
        e = []
        for i in range(8):
            if OPT["pk"]: e.append(f"v_pk_fma_f32 {vr(P+2*i,2)}, {vr(Q+2*i,2)}, v[2:3], {vr(P+2*i,2)}")
            else: e += [f"v_fmac_f32 v{P+2*i}, v3, v{Q+2*i}", f"v_fmac_f32 v{P+2*i+1}, v3, v{Q+2*i+1}"]
            e.append(f"v_cvt_pk_bf16_f32 v{16+8*kgi+i}, v{P+2*i}, v{P+2*i+1}")
        return e
    def mm(kgi):
        P, Q = 64+32*kgi, 80+32*kgi
        return [f"{MFMA} {vr(P,16)}, {vr(16+8*kgi,4)}, {vr(E1R,4)}, 0", f"{MFMA} {vr(Q,16)}, {vr(16+8*kgi,4)}, {vr(E1I,4)}, 0",
                f"{MFMA} {vr(P,16)}, {vr(20+8*kgi,4)}, {vr(E1R+4,4)}, {vr(P,16)}", f"{MFMA} {vr(Q,16)}, {vr(20+8*kgi,4)}, {vr(E1I+4,4)}, {vr(Q,16)}"]
    def s2(kgi):
        P, Q = 64+32*kgi, 80+32*kgi
        e = []
        for j in range(8):
            e += [f"v_sub_f32 v{P+2*j}, v{P+2*j}, v{Q+2*j+1}", f"v_add_f32 v{Q+2*j}, v{Q+2*j}, v{P+2*j+1}",
                  f"v_cvt_pk_bf16_f32 v{40+8*kgi+j}, v{P+2*j}, v{Q+2*j}"]
            if j & 3 == 3: e.append(f"buffer_store_dwordx4 {vr(40+8*kgi+j-3,4)}, v4, {W}, s{47+kgi} offen offset:{1024*(j>>2)} {SC}")
        return e
    def weave(ms, vs):
        k = (len(vs) + len(ms) - 1) // len(ms)
        for m in ms:
            A(m)
            for _ in range(k):
                if vs: A(vs.pop(0))
    lds_add(C_LF)
    for x in s1(0): A(x)
    weave(mm(0), s1(1)); weave(mm(1), s1(2)); weave(mm(2), s2(0))
    for x in s2(1) + s2(2): A(x)
    LI = A.lab("a1init")
    A(f"""s_cmp_ge_u32 s41, 4
s_cbranch_scc1 {LI}
s_lshl_b32 s42, s5, 2
s_add_u32 s42, s42, s41
s_lshl_b32 s42, s42, 7
s_add_u32 s42, s42, {AT_OFF}
""")
    flagstore("s42", 2, 20*128, 16, "0")
    A(f"{LI}:")

def pub1():
    A(f"""{PUB1}:
s_lshl_b32 s41, s7, 11
s_lshl_b32 s42, s6, 7
s_add_u32 s41, s41, s42
s_add_u32 s41, s41, {F1_OFF}""")
    stamp(4)
    publish(C_P1, 41, OPT["r1"], 32768)
    stamp(5)
    gen_c()
    if OPT["ag"]: gen_e(); gen_g()
    else: A(f"s_cmp_lt_u32 s7, 11\ns_cbranch_scc1 {GEN}")

Q, S, O, KV = 16, 48, 112, 176
OK = O + 48
TB = 8
SO = 32
def q(j,i): return vr(Q+8*j+4*i, 4)
def kb(b,i): return KV+16*b+4*i
def tile_loads(b, so):
    return [f"buffer_load_dwordx4 {vr(kb(b,0),4)}, v1, {W}, s{so} offen {SC}",
            f"buffer_load_dwordx4 {vr(kb(b,1),4)}, v2, {W}, s{so} offen {SC}",
            f"buffer_load_dwordx4 {vr(kb(b,2),4)}, v3, {W}, s{so} offen {SC}",
            f"buffer_load_dwordx4 {vr(kb(b,3),4)}, v3, {W}, s{so} offen offset:1024 {SC}"]
def attention():
    LNY, LNW = A.lab("nyq"), A.lab("now")
    A(f"{ATT}:\ns_setprio 0")
    A("s_mov_b32 s51, s7")
    srd(SO, P_OUT, OUT_BYTES)
    A(f"""s_lshl_b32 s4, s4, 1
s_bfe_u32 s5, s2, 0x10003
s_or_b32 s4, s4, s5            ; head
s_lshr_b32 s5, s2, 4           ; qb
s_mul_i32 s6, s4, 7
s_lshr_b32 s45, s6, 1
s_add_u32 s6, s6, 1
s_lshr_b32 s6, s6, 1
s_lshl_b32 s6, s6, 9
v_lshlrev_b32 v8, 4, v0
v_add_u32 v1, s6, v8
s_bitcmp1_b32 s4, 0
s_cselect_b32 s7, -2040, 0
v_add_u32 v2, 1024, v1
v_add_u32 v6, s7, v2
v_mov_b32 v4, 0x3f80
v_mov_b32_dpp v2, v6 {HI}
s_lshl_b32 s7, s4, 11
s_add_u32 s7, s7, {QK_TILE}
v_and_b32 v9, 30, v0
v_cmp_eq_u32 vcc, 26, v9
v_cmp_eq_u32 s[48:49], 28, v9
s_or_b64 vcc, vcc, s[48:49]
v_xor_b32 v9, 96, v8
v_cndmask_b32 v3, v8, v9, vcc
v_add_u32 v3, s7, v3           ; V offset
v_mov_b32 v5, 0xdddd
v_mov_b32 v7, 0
s_lshl_b32 s45, s45, 3
v_bfe_u32 v9, v0, 2, 1
v_mul_u32_u24 v10, 31, v9
v_add_u32 v10, s45, v10        ; Q column
v_add_u32 v11, 448, v10        ; K column
v_mul_u32_u24 v9, 27, v9
s_mul_i32 s46, s4, 28
s_add_u32 s46, s46, 896
v_add_u32 v9, s46, v9          ; V column
v_lshrrev_b32 v10, 7, v10
v_lshlrev_b32 v10, 11, v10
v_mov_b32_dpp v11, v9 quad_perm:[0,1,2,3] row_mask:0xa bank_mask:0xf
s_lshl_b32 s46, s5, 7
v_add_u32 v10, s46, v10
v_lshrrev_b32 v11, 7, v11
v_lshlrev_b32 v11, 11, v11
v_and_b32 v9, 3, v0
v_lshl_add_u32 v11, v9, 7, v11
s_lshl_b32 s46, s40, 9
v_add_u32 v11, s46, v11
v_mov_b32_dpp v11, v10 {HI}
s_and_b32 s46, s2, {OPT["r1"]-1}
s_lshl_b32 s46, s46, 15
s_add_u32 s46, s46, {F1_OFF}
s_lshl_b32 s43, s5, 2
s_add_u32 s42, s40, s43
s_mul_i32 s42, s42, {QK_TILE}
s_add_u32 s50, s42, {Q_OFF}
s_mul_i32 s47, s40, {16*KV_REC}
s_add_u32 s47, s47, {KV_OFF}""")
    for i in range(16):
        A(f"s_add_u32 s42, s5, {i}\ns_and_b32 s42, s42, 15\ns_mul_i32 s42, s42, {KV_REC}\ns_add_u32 s{TB+i}, s42, s47")
    for j in range(4):
        A(f"""s_add_u32 s42, s40, {j}
s_and_b32 s42, s42, 3
s_lshl_b32 s42, s42, 11
s_add_u32 s42, s42, {QX}
v_add_u32 v{240+j}, s42, v8
s_add_u32 s42, s40, {j+1}
s_and_b32 s42, s42, 3
s_mul_i32 s42, s42, 12288
s_add_u32 s42, s42, {MERGE + (4096*j if j < 3 else 0)}
v_add_u32 v{244+j}, s42, v8""")
    A(f"""s_add_u32 s41, s40, 3
s_and_b32 s41, s41, 3
s_lshl_b32 s43, s5, 2
s_add_u32 s41, s41, s43
s_lshl_b32 s26, s41, 15
s_lshl_b32 s42, s4, 11
s_add_u32 s26, s26, s42
s_add_u32 s26, s26, {O_OFF}
s_lshl_b32 s27, s41, 11
s_lshl_b32 s42, s4, 7
s_add_u32 s27, s27, s42
s_add_u32 s27, s27, {FO_OFF}
s_bfe_u32 s42, s2, 0x20001
s_or_b32 s43, s43, s42
s_and_b32 s53, s2, 1
s_and_b32 s52, s53, {OPT["ro"]-1}
s_lshl_b32 s52, s52, 17
s_lshl_b32 s53, s53, 1
s_bfe_u32 s42, s2, 0x10003
s_or_b32 s53, s53, s42
s_lshl_b32 s53, s53, 2
s_add_u32 s53, s53, s40        ; n tile
s_lshl_b32 s45, s43, 15
s_lshl_b32 s44, s40, 13
s_add_u32 s45, s45, s44
s_add_u32 s45, s45, {O_OFF}
s_add_u32 s47, s45, 4096
s_mul_i32 s41, s43, {32*1792}
s_lshl_b32 s42, s53, 6
s_add_u32 s41, s41, s42
s_add_u32 s41, s41, 896
s_lshl_b32 s42, s43, 11
s_add_u32 s52, s52, s42
s_lshl_b32 s42, s40, 9
s_add_u32 s52, s52, s42
s_add_u32 s52, s52, {FO_OFF}
v_and_b32 v249, 3, v0
v_lshlrev_b32 v249, 7, v249
v_lshrrev_b32 v15, 5, v0
v_and_b32 v14, 31, v0
v_mul_u32_u24 v250, 1792, v14
v_lshl_add_u32 v250, v15, 4, v250
v_lshrrev_b32 v251, 3, v0
v_lshlrev_b32 v251, 17, v251
v_and_b32 v13, 7, v0
v_lshl_add_u32 v251, v13, 4, v251
v_bfe_u32 v9, v0, 2, 2        ; rr
v_and_b32 v10, 3, v0
v_lshrrev_b32 v12, 1, v10
v_and_b32 v10, 1, v10
v_lshl_or_b32 v10, v10, 1, v12    ; sigma(cc)
v_bfe_u32 v12, v0, 4, 1
v_lshlrev_b32 v12, 5, v12
v_lshl_or_b32 v10, v10, 3, v12
s_lshl_b32 s42, s40, 6
v_or_b32 v10, s42, v10
v_mul_u32_u24 v12, 320, v9
v_xor_b32 v252, v10, v12
v_lshl_add_u32 v252, v15, 10, v252
v_lshl_or_b32 v9, v15, 1, v9
v_mul_u32_u24 v12, 320, v9
v_xor_b32 v253, v10, v12
v_add_u32 v254, {224*256}, v252
v_add_u32 v255, {224*256}, v253
v_mov_b32 v6, v8""")
    if OPT["pw"]:
        A(f"s_sub_u32 s60, s{TAG}, {TAGC}")
        flagstore("s27", OPT["ro"], 131072, 40, "s60")
    for i in range(64): A(f"v_mov_b32 v{O+i}, 0")
    A(f"s_cmp_ge_u32 s51, 11\ns_cbranch_scc1 {A1LD}")
    if OPT["bp"]: A("s_setprio 3")
    lds_wait(C_X, 1, 1)
    for x in WL[OPT["wm"]:]: A(x)
    A(f"s_cmp_lg_u32 s51, 10\ns_cbranch_scc1 {ATT2}")
    for x in WL[:OPT["wm"]]: A(x)
    A(f"{ATT2}:\ns_setprio 3")
    stamp(5)
    A(f"s_lshl_b32 s43, s40, 11\ns_add_u32 s43, s43, {WX}\nv_add_u32 v15, s43, v8")
    spin(f"buffer_load_dword v14, v11, {W}, s46 offen {PM}", 14, OPT["sl1"])
    stamp(6)
    t0, t1 = tile_loads(0, TB), tile_loads(1, TB+1)
    A(f"""{t0[0]}
buffer_load_dwordx4 {q(0,0)}, v1, {W}, s50 offen {SC}
{t0[1]}
buffer_load_dwordx4 {q(0,1)}, v2, {W}, s50 offen {SC}""")
    lds_wait(C_LF, 4)
    A("ds_write_b128 v15, v[96:99]\nds_write_b128 v15, v[100:103] offset:1024")
    A("s_waitcnt vmcnt(0)")
    stamp(4)
    A(f"""v_mov_b32_dpp v{Q+6}, v7 {HI}
v_mov_b32_dpp v{Q+7}, v7 {HI}
v_mov_b32_dpp v{kb(0,1)+2}, v4 {HI}
{MFMA} {vr(S+16,16)}, {vr(kb(0,0),4)}, {q(0,0)}, 0
{t0[2]}
{MFMA} {vr(S+16,16)}, {vr(kb(0,1),4)}, {q(0,1)}, {vr(S+16,16)}
{t0[3]}
{MFMA} {vr(S,16)}, {vr(kb(0,0),4)}, {q(0,0)}, 0
ds_write_b128 v240, {q(0,0)}""")
    for x in t1[:2]: A(x)
    s_ = S+16
    A(f"v_max3_f32 v8, v{s_}, v{s_+1}, v{s_+2}\nv_max3_f32 v9, v{s_+3}, v{s_+4}, v{s_+5}")
    for i in range(6, 14, 4): A(f"v_max3_f32 v8, v8, v{s_+i}, v{s_+i+1}\nv_max3_f32 v9, v9, v{s_+i+2}, v{s_+i+3}")
    A(f"""v_max3_f32 v8, v8, v{s_+14}, v{s_+15}
v_max_f32 v8, v8, v9
v_cvt_pk_bf16_f32 v8, -v8, v7
v_mov_b32_dpp v{Q+6}, v8 {HI}
ds_write_b128 v240, {q(0,1)} offset:1024
{MFMA} {vr(S,16)}, {vr(kb(0,1),4)}, {q(0,1)}, {vr(S,16)}""")
    lds_sync(C_Q, 4)
    for j in range(1, 4):
        A(f"ds_read_b128 {q(j,0)}, v{240+j}\nds_read_b128 {q(j,1)}, v{240+j} offset:1024")
    for x in t1[2:]: A(x)
    A("s_waitcnt lgkmcnt(0)")
    stamp(7)
    lds_add(C_G2)
    A("s_setprio 1")
    def mwrites(j):
        return ([f"ds_write_b128 v{244+j}, {vr(O+16*j+4*g,4)} offset:{1024*g}" for g in range(3)] +
                [f"ds_write_b96 v{244+j}, {vr(O+16*j+12,3)} offset:3072"])
    for n in range(64):
        i, j = n >> 2, n & 3
        if n == 32: stamp(8)
        after = [[], [], [], []]
        if n == 0:
            t2 = tile_loads(2, TB+2); after = [[t2[0], t2[1]], [t2[2], t2[3]], [], []]
        ti, k = (i + 3, j - 1) if j >= 1 else (i + 2, 3)
        if 3 <= ti < 16: after[OPT["lg"]].append(tile_loads(ti & 3, TB+ti)[k])
        m = [None]*4
        if n < 63:
            i2, j2 = (n+1) >> 2, (n+1) & 3
            if j2 == 0: after[0].append(f"v_mov_b32_dpp v{kb(i2&3,1)+2}, v4 {HI}")
            m[0] = f"{MFMA} {vr(S+16*j2,16)}, {vr(kb(i2&3,0),4)}, {q(j2,0)}, 0"
            m[1] = f"{MFMA} {vr(S+16*j2,16)}, {vr(kb(i2&3,1),4)}, {q(j2,1)}, {vr(S+16*j2,16)}"
        if j == 2 and i < 15:
            cnt = 4*(min(15, i+3) - (i+1))
            if i + 3 < 16: cnt -= 2
            after[3].append(f"s_waitcnt vmcnt({cnt})")
        if n > 0:
            i0, j0 = (n-1) >> 2, (n-1) & 3
            m[2] = f"{SMF} {vr(O+16*j0,16)}, {vr(kb(i0&3,3),4)}, {vr(S+16*j0+8,8)}, v5"
        m[3] = f"{SMF} {vr(O+16*j,16)}, {vr(kb(i&3,2),4)}, {vr(S+16*j,8)}, v5"
        if n == 62:
            w = mwrites(0); after[1] += w[0:1]; after[2] += w[1:2]; after[3] += w[2:3]; carry = w[3:]
        if n == 63:
            m[0], m[2] = m[2], None
            w = mwrites(1); after[0] += carry; after[1] += w[0:1]; after[2] += w[1:2]; after[3] += w[2:4]
        for g in range(4):
            if n == 0 and g == 3: A("s_waitcnt vmcnt(8)")
            if m[g]: A(m[g])
            for x in after[g]: A(x)
            for e in range(4):
                r = S+16*j+4*g+e
                A(f"v_exp_f32 v{r}, v{r}")
    for x in mwrites(2)[:2]: A(x)
    A(f"{SMF} {vr(O+48,16)}, {vr(kb(3,3),4)}, {vr(S+48+8,8)}, v5")
    for x in mwrites(2)[2:]: A(x)
    stamp(9)
    A("s_setprio 3")
    lds_sync(C_MERGE, 4)
    for g in range(12): A(f"ds_read_b128 {vr(S+4*g,4)}, v247 offset:{1024*g}")
    for k in range(3):
        A(f"s_waitcnt lgkmcnt({8-4*k})")
        for i in list(range(14, -2, -2)): A(f"v_pk_add_f32 {vr(OK+i,2)}, {vr(OK+i,2)}, {vr(S+16*k+i,2)}")
    A(f"""v_cmp_nle_f32 vcc, {f32(2.0**-40)}, v{OK+14}
s_mov_b64 s[48:49], vcc
v_cmp_nge_f32 vcc, {f32(2.0**40)}, v{OK+14}
s_or_b64 vcc, vcc, s[48:49]
s_cbranch_vccnz {LFB}
{LN}:
v_rcp_f32 v10, v{OK+14}
v_mov_b32 v{S+7}, 0
v_mov_b32 v11, v10""")
    for i in range(0, 14, 2):
        A(f"v_pk_mul_f32 {vr(OK+i,2)}, {vr(OK+i,2)}, v[10:11]")
        A(f"v_cvt_pk_bf16_f32 v{S+i//2}, v{OK+i}, v{OK+i+1}")
        if i == 6: A(f"buffer_store_dwordx4 {vr(S,4)}, v6, {W}, s26 offen {SC}")
    A(f"buffer_store_dwordx4 {vr(S+4,4)}, v6, {W}, s26 offen offset:1024 {SC}")
    stamp(10)
    lds_add(C_GO)
    WF = 112; BACC = 16; OB = 64; NB = 6
    assert WO == 0 and OST == 0
    def wo_frags(half):
        for n in range(16):
            hd, i = n >> 1, n & 1
            b = WF + 64*half + 4*n
            row = 28*hd + 16*i
            A(f"ds_read_b64_tr_b16 {vr(b,2)}, v{252+2*half} offset:{row*256}")
            A(f"ds_read_b64_tr_b16 {vr(b+2,2)}, v{(253 if i else 252)+2*half} offset:{(row+8)*256}")
            if n % 6 == 5: A("s_waitcnt lgkmcnt(2)")
    for i in range(4): A(f"v_mov_b32 v{40+i}, s{TAG}")
    lds_wait(C_WOA, 4)
    wo_frags(0)
    A("s_waitcnt lgkmcnt(2)")
    if OPT["fo"] == 2: wo_frags(1)
    poll = f"buffer_load_dword v14, v249, {W}, s52 offen {PM}"
    A(f"""s_mov_b64 exec, {(1<<(8*OPT["ro"]))-1}
s_waitcnt vmcnt(0)
buffer_store_dwordx4 v[40:43], v251, {W}, s27 offen {FM}
s_mov_b64 exec, -1""")
    if OPT["ts"]: stamp(2)
    if OPT["ap"]: A(poll)
    if OPT["fo"] != 2: wo_frags(1)
    lds_sync(C_WOF, 4)
    if OPT["ts"]: stamp(3)
    LR = A.lab("oready")
    if OPT["ap"]: A(f"s_waitcnt vmcnt(0)\nv_cmp_ne_u32 vcc, s{TAG}, v14\ns_cbranch_vccz {LR}")
    spin(poll, 14, OPT["sl1"])
    A(f"{LR}:")
    stamp(11)
    for half in range(2):
        A(f"s_add_u32 m0, s44, {OST+4096*half}")
        for i in range(4):
            A(f"buffer_load_dwordx4 v6, {W}, s{47 if half else 45} offen offset:{1024*i} {SC} lds")
    A("s_waitcnt vmcnt(0)")
    lds_sync(C_OST, 4)
    stampw(12)
    A(f"s_cmp_ge_u32 s53, 14\ns_cbranch_scc1 {END}")
    def rd(n): A(f"ds_read_b128 {vr(OB+4*(n%NB),4)}, v6 offset:{1024*n}")
    for n in range(NB-1): rd(n)
    for n in range(32):
        left = min(31, n+NB-2) - n
        A(f"s_waitcnt lgkmcnt({left})\n{MFMA} {vr(BACC,16)}, {vr(WF+4*n,4)}, {vr(OB+4*(n%NB),4)}, {vr(BACC,16) if n else 0}")
        if n + NB - 1 < 32: rd(n + NB - 1)
    for i in range(8):
        A(f"v_cvt_pk_bf16_f32 v{32+i}, v{BACC+2*i}, v{BACC+2*i+1}")
        if i == 3: A(f"buffer_store_dwordx4 v[32:35], v250, {sr(SO,4)}, s41 offen {OBM}")
    A(f"""buffer_store_dwordx4 v[36:39], v250, {sr(SO,4)}, s41 offen offset:32 {OBM}
s_branch {END}""")

def helper():
    SWO = 56
    T, AC2, WA, WB, Y = 16, 48, 64, 72, 80
    LNOA2, LNY2, LP2 = "L_noa2", A.lab("nyq"), A.lab("pub2")
    A(f"{HELP2}:")
    if OPT["x"] >= 4:
        lds_add(C_WOA); A(f"s_branch {END}")
    stamp(11)
    A(f"""s_lshr_b32 s5, s2, 3
s_cmp_ge_u32 s5, 29
s_cbranch_scc1 {LNOA2}
v_lshrrev_b32 v8, 3, v0
v_and_b32 v9, 4, v8
v_bfe_u32 v10, v8, 1, 1
v_or_b32 v9, v9, v10
v_and_b32 v8, 1, v8
v_lshl_or_b32 v9, v8, 1, v9     ; s2 mod 8 = 4*(p>>1) + 2h + (p&1)
v_mul_u32_u24 v1, {T_ROW}, v9
v_and_b32 v8, 1, v0
v_lshl_add_u32 v1, v8, 9, v1
v_bfe_u32 v8, v0, 1, 2
v_lshl_add_u32 v1, v8, 4, v1    ; T offset
s_lshl_b32 s41, s5, 10
s_lshl_b32 s42, s4, 6
s_add_u32 s41, s41, s42
s_add_u32 s41, s41, {T_OFF}
s_mul_i32 s42, s40, {16*T_ROW}
s_add_u32 s41, s41, s42
s_mul_i32 s44, s5, 43
s_lshr_b32 s44, s44, 8          ; g5
s_lshl_b32 s45, s44, 11
s_and_b32 s46, s2, {OPT["r1"]-1}
s_lshl_b32 s46, s46, 15
s_add_u32 s46, s46, {F1_OFF + 11*2048}
v_and_b32 v9, 15, v0
v_lshlrev_b32 v9, 7, v9
v_add_u32 v9, s45, v9
v_mov_b32 v10, 0
v_mov_b32_dpp v9, v10 {HI}
s_lshl_b32 s43, s40, 11
s_add_u32 m0, s43, {TX}
s_add_u32 s47, s41, {8*T_ROW - 1024}
s_nop 0""")
    A(f"""v_lshlrev_b32 v4, 4, v0
s_cmp_eq_u32 s5, 28
s_cselect_b32 s45, 14, 0
v_lshrrev_b32 v8, 3, v14        ; u1 local
v_and_b32 v7, 7, v14            ; k local
v_lshl_add_u32 v2, v15, 3, v8
v_lshlrev_b32 v2, 4, v2
v_lshl_add_u32 v2, v7, 1, v2
s_add_u32 s42, s43, s45
s_add_u32 s42, s42, {WX}
v_add_u32 v2, s42, v2
v_mul_u32_u24 v3, {2*T2_ROW}, v15
v_lshl_add_u32 v3, v7, 4, v3
v_lshl_add_u32 v3, v8, 2, v3    ; T2 offset
v_add_u32 v8, {EX}, v4
v_add_u32 v7, s43, v8
v_lshlrev_b32 v5, 2, v0
v_add_u32 v5, {TX}, v5
s_mul_i32 s53, s40, {16*T2_ROW}
s_mul_i32 s42, s4, {T2_Q}
s_add_u32 s53, s53, s42
s_lshl_b32 s42, s5, 7
s_add_u32 s53, s53, s42
s_add_u32 s53, s53, {T2_OFF}""")
    for i in range(16): A(f"v_mov_b32 v{WA+i}, 0")
    lds_wait(C_G2, 4, 2)
    def a1poll():
        A(f"""buffer_load_dword v10, v9, {W}, s46 offen {PM}
s_waitcnt vmcnt(0)
v_cmp_ne_u32 vcc, s{TAG}, v10""")
    acquire(R_A1, a1poll, OPT["sl2"], OPT["hs"])
    stamp(6)
    A(f"""s_setprio {OPT["hp"]}
buffer_load_dwordx4 v1, {W}, s41 offen {SC} lds
buffer_load_dwordx4 v1, {W}, s47 offen offset:1024 {SC} lds
s_nop 0""")
    for j in range(8):
        A(f"ds_read_u16_d16_hi v{WA+j}, v2 offset:{(4*(j>>1)+(j&1))*64}")
    A("s_waitcnt lgkmcnt(4)")
    for j in range(8):
        A(f"ds_read_u16_d16_hi v{WB+j}, v2 offset:{(4*(j>>1)+(j&1))*64+1024}")
    A(f"s_waitcnt lgkmcnt(0)\ns_cmp_lg_u32 s5, 28\ns_cbranch_scc1 {LNY2}")
    for j in range(8): A(f"v_xor_b32 v{WA+j}, 0x80000000, v{WA+j}")
    A(f"{LNY2}:")
    A("s_waitcnt vmcnt(0)")
    lds_sync(C_T, 4, OPT["hs"])
    for m in range(0, 28, 2): A(f"ds_read2st64_b32 {vr(T+m,2)}, v5 offset0:{m} offset1:{m+1}")
    for f in range(8):
        if f == 1:
            for m in range(28, 32, 2): A(f"ds_read2st64_b32 {vr(T+m,2)}, v5 offset0:{m} offset1:{m+1}")
        A(f"s_waitcnt lgkmcnt({12 if f == 0 else 14-2*f})\n{MFMA} {vr(AC2,16)}, {vr(C+4*f,4)}, {vr(T+4*f,4)}, {vr(AC2,16) if f else 0}")
    for j in range(8):
        xr, xi = AC2+2*j, AC2+2*j+1
        A(f"""v_mul_f32 v10, v{xr}, v{WA+j}
v_mul_f32 v11, v{xr}, v{WB+j}
v_fma_f32 v10, -v{xi}, v{WB+j}, v10
v_fmac_f32 v11, v{xi}, v{WA+j}
v_cvt_pk_bf16_f32 v{Y+j}, v11, v10""")
        if j == 3: A(f"ds_write_b128 v7, {vr(Y,4)}")
    A(f"ds_write_b128 v7, {vr(Y+4,4)} offset:1024")
    lds_sync(C_EX, 4, OPT["hs"])
    for f in range(8): A(f"ds_read_b128 {vr(T+4*f,4)}, v8 offset:{1024*f}")
    for f in range(8):
        A(f"s_waitcnt lgkmcnt({7-f})\n{MFMA} {vr(AC2,16)}, {vr(C+4*f,4)}, {vr(T+4*f,4)}, {vr(AC2,16) if f else 0}")
    for j in range(8):
        A(f"""v_cvt_pk_bf16_f32 v{Y+j}, v{AC2+2*j+1}, v{AC2+2*j}
s_add_u32 s43, s53, {(4*(j>>1)+(j&1))*T2_ROW}
buffer_store_dword v{Y+j}, v3, {W}, s43 offen {SC}""")
    stamp(7)
    A("s_setprio 2")
    arrive(C_A2, LP2)
    A(f"""s_lshl_b32 s41, s44, 2
s_lshr_b32 s42, s4, 1
s_add_u32 s41, s41, s42
s_lshl_b32 s41, s41, 7
s_add_u32 s41, s41, {AT_OFF}
s_cmp_eq_u32 s44, 4
s_cselect_b32 s42, 9, 11
v_mov_b32 v12, 0
v_mov_b32 v13, 1
s_mov_b64 exec, 1
buffer_atomic_add v13, v12, {W}, s41 offen sc0 sc1
s_mov_b64 exec, -1
s_waitcnt vmcnt(0)
v_readfirstlane_b32 s60, v13
s_cmp_lg_u32 s60, s42
s_cbranch_scc1 {LP2}
v_mov_b32 v13, 1
s_mov_b32 s41, {AT_OFF + 20*128}
s_mov_b64 exec, 1
buffer_atomic_add v13, v12, {W}, s41 offen sc0 sc1
s_mov_b64 exec, -1
s_waitcnt vmcnt(0)
v_readfirstlane_b32 s60, v13
s_cmp_lg_u32 s60, 19
s_cbranch_scc1 {LP2}
s_mov_b32 s41, {F2_OFF}""")
    flagstore("s41", 8, 128)
    assert EPOCH_OFF == 0
    flagstore("0", 1, 0)
    A(f"{LP2}:")
    lds_wait(C_A2, 4, 4)
    A(f"{LNOA2}:")
    srd(SWO, P_WO, WO_BYTES)
    LW = A.lab("wo")
    A(f"""s_and_b32 s53, s2, 1
s_lshl_b32 s53, s53, 1
s_bfe_u32 s54, s2, 0x10003
s_or_b32 s53, s53, s54
s_lshl_b32 s53, s53, 8
s_mul_i32 s54, s40, {112*896}
s_add_u32 s53, s53, s54
s_mul_i32 s54, s40, {112*256}
v_lshrrev_b32 v9, 4, v0
v_and_b32 v8, 15, v0
v_lshlrev_b32 v4, 2, v9
v_xor_b32 v8, v8, v4
v_lshlrev_b32 v8, 4, v8
v_mul_u32_u24 v9, 896, v9
v_add_u32 v4, v8, v9""")
    lds_wait(C_G2, 4, 4)
    A(f"""s_mov_b32 m0, s54
s_mov_b32 s55, 28
{LW}:
{"s_sleep %d" % OPT["wos"] if OPT["wos"] > 0 else "s_waitcnt vmcnt(%d)" % -OPT["wos"]}
buffer_load_dwordx4 v4, {sr(SWO,4)}, s53 offen lds
s_add_u32 m0, m0, 1024
s_add_u32 s53, s53, {4*896}
s_sub_u32 s55, s55, 1
s_cmp_lg_u32 s55, 0
s_cbranch_scc1 {LW}
s_waitcnt vmcnt(0)""")
    lds_add(C_WOA)
    stamp(12)
    TA, NY, AC3, ZB, AC4 = 16, 48, 64, 16, 112
    A(f"""v_and_b32 v8, 15, v14
v_lshrrev_b32 v9, 4, v14
v_lshl_or_b32 v8, v8, 1, v9
v_mul_u32_u24 v2, {T2_Q}, v15
v_lshl_add_u32 v1, v8, 4, v2    ; T2 offset
v_add_u32 v2, {224*16}, v2
s_mul_i32 s41, s50, {T2_ROW}
s_add_u32 s41, s41, {T2_OFF}
s_lshl_b32 s42, s40, 9
s_add_u32 s42, s42, s41
s_and_b32 s46, s2, 7
s_lshl_b32 s46, s46, 7
s_add_u32 s46, s46, {F2_OFF}
v_mov_b32 v9, 0""")
    srd(SO, P_OUT, OUT_BYTES)
    spin(f"buffer_load_dword v10, v9, {W}, s46 offen {PM}", 10, OPT["sl3"])
    stamp(8)
    LA, LB = A.lab("a3l"), A.lab("a3l")
    for f in range(4):
        A(f"s_add_u32 s43, s42, {2*f*T2_Q}\nbuffer_load_dwordx4 {vr(TA+4*f,4)}, v1, {W}, s43 offen {SC}\ns_sleep 1")
    A(f"s_cmp_eq_u32 s40, 3\ns_cbranch_scc1 {LA}")
    for f in range(4):
        A(f"s_add_u32 s43, s42, {2*f*T2_Q + 2048}\nbuffer_load_dwordx4 {vr(TA+16+4*f,4)}, v1, {W}, s43 offen {SC}\ns_sleep 1")
    A(f"{LA}:\ns_cmp_lg_u32 s40, 0\ns_cbranch_scc1 {LB}")
    for f in range(4):
        A(f"s_add_u32 s43, s41, {2*f*T2_Q}\nbuffer_load_dwordx4 {vr(NY+4*f,4)}, v2, {W}, s43 offen {SC}")
    A(f"{LB}:")
    lds_wait(C_GO, 4, OPT["slg"])
    A("s_setprio 0")
    if OPT["x"] not in (2, 3): stamp(10)
    LN3, LZ = A.lab("a3ny"), A.lab("a3z")
    A("s_waitcnt vmcnt(0)")
    setup = f"""v_lshlrev_b32 v5, 4, v0
s_lshl_b32 s43, s40, 11
s_add_u32 s43, s43, {ZOFF}
v_add_u32 v6, s43, v5
s_mul_i32 s43, s52, 14336
s_add_u32 s43, s43, {ZOFF}
v_add_u32 v5, s43, v5
s_lshr_b32 s46, s40, 1
s_lshl_b32 s46, s46, 3
v_add_u32 v7, s46, v15          ; 8p + h
v_and_b32 v9, 7, v14
v_xor_b32 v7, v7, v9
v_lshlrev_b32 v7, 4, v7
v_lshl_or_b32 v7, v14, 8, v7
s_lshl_b32 s46, s52, 13
s_add_u32 s46, s46, {YOFF}
v_add_u32 v7, s46, v7           ; Y write address
v_lshrrev_b32 v8, 3, v0
s_lshl_b32 s46, s40, 3
v_add_u32 v8, s46, v8           ; row (s1)
v_and_b32 v9, 7, v0             ; piece
v_lshlrev_b32 v10, 1, v9
v_and_b32 v11, 7, v8
v_xor_b32 v10, v10, v11
v_lshlrev_b32 v10, 4, v10
v_lshl_or_b32 v10, v8, 8, v10
v_add_u32 v10, {YOFF}, v10
v_xor_b32 v11, 16, v10
v_mul_u32_u24 v8, {64*1792}, v8
v_lshl_add_u32 v8, v9, 4, v8    ; out offset
s_mul_i32 s41, s50, 1792
s_lshl_b32 s42, s51, 7
s_add_u32 s41, s41, s42""".split("\n")
    for tt in range(2):
        for f in range(4):
            A(f"{MFMA} {vr(AC3+32*tt,16)}, {vr(TA+16*tt+4*f,4)}, {vr(ER+4*f,4)}, {vr(AC3+32*tt,16) if f else 0}")
            for _ in range(5):
                if setup: A(setup.pop(0))
    assert not setup
    A(f"s_cmp_eq_u32 s51, 3\ns_cselect_b32 s42, 4, 8\nv_cmp_gt_u32 s[48:49], s42, v9")
    A(f"s_cmp_lg_u32 s40, 0\ns_cbranch_scc1 {LN3}\ns_mov_b32 exec_lo, 1\ns_mov_b32 exec_hi, 1")
    for i in range(16): A(f"v_mov_b32 v{TA+i}, v{NY+i}")
    A(f"s_mov_b64 exec, -1\n{LN3}:\ns_nop 1")
    def zout(tt, part):
        a = AC3+32*tt+16*part
        e = [f"v_cvt_pk_bf16_f32 v{a+i}, v{a+2*i}, v{a+2*i+1}" for i in range(8)]
        return e + [f"ds_write_b128 v6, {vr(a+4*p,4)} offset:{14336*p+8192*tt+1024*part}" for p in range(2)]
    pend = zout(0, 0)
    for tt in range(2):
        for f in range(4):
            A(f"{MFMA} {vr(AC3+32*tt+16,16)}, {vr(TA+16*tt+4*f,4)}, {vr(EI+4*f,4)}, {vr(AC3+32*tt+16,16) if f else 0}")
            for _ in range(3):
                if pend: A(pend.pop(0))
    for x in pend + zout(0, 1): A(x)
    A(f"s_cmp_eq_u32 s40, 3\ns_cbranch_scc1 {LZ}")
    for x in zout(1, 0) + zout(1, 1): A(x)
    A(f"{LZ}:")
    lds_sync(C_Z, 4)
    for i in range(14): A(f"ds_read_b128 {vr(ZB+4*i,4)}, v5 offset:{1024*i}")
    for i in range(14):
        A(f"s_waitcnt lgkmcnt({13-i})\n{MFMA} {vr(AC4,16)}, {vr(G+4*i,4)}, {vr(ZB+4*i,4)}, {vr(AC4,16) if i else 0}")
    for g in range(4):
        A(f"v_xor_b32 v9, {32*g}, v7\nds_write_b128 v9, {vr(AC4+4*g,4)}")
    lds_sync(C_Y, 4)
    A(f"""ds_read_b128 v[16:19], v10
ds_read_b128 v[20:23], v11
ds_read_b128 v[24:27], v10 offset:8192
ds_read_b128 v[28:31], v11 offset:8192
s_waitcnt lgkmcnt(0)""")
    for i in range(8): A(f"v_add_f32 v{32+i}, v{16+i}, v{24+i}\nv_sub_f32 v{40+i}, v{16+i}, v{24+i}")
    for i in range(8): A(f"v_cvt_pk_bf16_f32 v{48+i}, v{32+2*i}, v{33+2*i}")
    A(f"""s_mov_b64 exec, s[48:49]
buffer_store_dwordx4 v[48:51], v8, {sr(SO,4)}, s41 offen {OA}
buffer_store_dwordx4 v[52:55], v8, {sr(SO,4)}, s41 offen offset:448 {OA}
s_mov_b64 exec, -1
s_branch {END}""")

def fallback():
    L1, L2 = A.lab("fb1"), A.lab("fb2")
    tl = tile_loads(0, 43)
    A(f"""{LFB}:
v_mov_b32_dpp v{Q+24+6}, v7 {HI}
v_mov_b32 v12, 0xff800000
s_mov_b32 s43, {KV_OFF}
{L1}:
{tl[0]}
{tl[1]}
s_waitcnt vmcnt(0)
{MFMA} {vr(S,16)}, {vr(kb(0,0),4)}, {q(3,0)}, 0
{MFMA} {vr(S,16)}, {vr(kb(0,1),4)}, {q(3,1)}, {vr(S,16)}""")
    for i in range(0, 16, 2): A(f"v_max3_f32 v12, v12, v{S+i}, v{S+i+1}")
    A(f"""s_add_u32 s43, s43, {KV_REC}
s_cmp_lt_u32 s43, {KV_OFF+64*KV_REC}
s_cbranch_scc1 {L1}
v_mov_b32 v13, v12
v_mov_b32 v14, v12
v_permlane32_swap_b32 v13, v14
v_max_f32 v12, v13, v14""")
    for i in range(16): A(f"v_mov_b32 v{OK+i}, 0")
    A(f"s_mov_b32 s43, {KV_OFF}\n{L2}:")
    for x in tl: A(x)
    A(f"""s_waitcnt vmcnt(0)
{MFMA} {vr(S,16)}, {vr(kb(0,0),4)}, {q(3,0)}, 0
{MFMA} {vr(S,16)}, {vr(kb(0,1),4)}, {q(3,1)}, {vr(S,16)}""")
    for i in range(16): A(f"v_sub_f32 v{S+i}, v{S+i}, v12")
    for i in range(16): A(f"v_exp_f32 v{S+i}, v{S+i}")
    A(f"""{SMF} {vr(OK,16)}, {vr(kb(0,2),4)}, {vr(S,8)}, v5
{SMF} {vr(OK,16)}, {vr(kb(0,3),4)}, {vr(S+8,8)}, v5
s_nop 15
s_add_u32 s43, s43, {KV_REC}
s_cmp_lt_u32 s43, {KV_OFF+64*KV_REC}
s_cbranch_scc1 {L2}
s_branch {LN}""")

def finish():
    A(f"{END}:")
    if OPT["probe"]:
        LQ = A.lab("probe")
        stamp(13)
        A(f"""s_cmp_lg_u32 s2, {OPT["pwg"]}
s_cbranch_scc1 {FIN}
s_cmp_lg_u32 s3, {OPT["pwave"]}
s_cbranch_scc1 {FIN}
s_waitcnt lgkmcnt(0)
s_sub_u32 s56, s{64+2*OPT["probe"]}, s66
s_mul_i32 s56, s56, 10
s_add_u32 s56, s56, s90
{LQ}:
s_memrealtime s[58:59]
s_waitcnt lgkmcnt(0)
s_sub_u32 s57, s58, s56
s_cmp_lt_i32 s57, 0
s_cbranch_scc1 {LQ}""")
    elif STAMPS:
        stamp(13)
        A(f"""s_waitcnt vmcnt(0)
s_memtime s[92:93]
s_memrealtime s[94:95]
s_waitcnt lgkmcnt(0)
{"s_getreg_b32 s64, hwreg(HW_REG_XCC_ID)" if STAMPS == 1 else ""}
{"s_getreg_b32 s92, hwreg(HW_REG_HW_ID)" if STAMPS == 1 else ""}
s_mov_b32 s56, s24
s_mov_b32 s57, s25
s_mov_b32 s58, 0x2000000
s_mov_b32 s59, 0x00020000
s_mov_b64 exec, 1
s_lshl_b32 s60, s2, 3
s_add_u32 s60, s60, s3
s_lshl_b32 s60, s60, 6
s_add_u32 s60, s60, {TS_OFF}
v_mov_b32 v1, 0""")
        for i in range(16):
            A(f"v_mov_b32 v2, s{64+2*i}\nbuffer_store_dword v2, v1, s[56:59], s60 offen offset:{4*i}")
    A(f"{FIN}:\ns_endpgm")

def b1c():
    A(f"{LB1C}:\ns_setprio 2"); main_start()
    for i in range(64): A(f"v_mov_b32 v{ACC+i}, 0")
    A("s_waitcnt lgkmcnt(0)"); gettag()
    gen_pre(); b1_compute()
entry(); b1_loader()
if OPT["ord"]: b1c()
a1_dispatch_loader(); a1_gen(); a1_compute(); pub1(); helper()
if not OPT["ord"]: b1c()
attention(); fallback(); finish()

HDR = open("cdna_kernels/%s.s.ref" % NAME).read().split("; Override")[0]
txt = HDR + f"; @launch grid=(256,1,1) block=(512,1,1) lds={LDS_BYTES}\n"
txt += '.amdgcn_target "amdgcn-amd-amdhsa--gfx950"\n.text\n' + A.finish()
txt += f""".section .rodata,"a"
.p2align 6
.amdhsa_kernel {K}
  .amdhsa_next_free_vgpr 256
  .amdhsa_next_free_sgpr 102
  .amdhsa_accum_offset 256
  .amdhsa_group_segment_fixed_size 0
  .amdhsa_kernarg_size 72
  .amdhsa_user_sgpr_count 2
  .amdhsa_user_sgpr_kernarg_segment_ptr 1
  .amdhsa_system_sgpr_workgroup_id_x 1
.end_amdhsa_kernel
"""
out = args[0] if args else "cdna_kernels/%s.s" % NAME
open(out, "w").write(txt)
print("wrote", out, len(txt))
```

```python
import sys, struct
from emit import Asm
from layout import *
NAME = "concat_heads__spectral_gfnet__softmax_full_mha__prompt"
OPT = dict(stamps=0, r1=8, pf=1, sl1=1, sl2=8, sl3=16, rot=1, x=0, probe=0, pwave=4, pwg=100, pd=0, wos=-3, lp=13, slg=8, g2=1, ro=2, wm=1, tch=0, pda=0, oa=0, ob=0, gd=0, dyn=0, wsb=0, fl=1, pw=2, tw=0, sd=0, sp=0, td=0, ad=0, bn=0, gk=3, hp=2, hs=2, fo=1, ts=0, ap=0, pm=0, fm=0, al=0, pk=0, lg=2, hk=6, bp=0, ord=1, pfw=3, av=-1, rota=1, wa=0, ag=0, gdl=0, gl=1, wg=1, xt=1)
args = []
for a in sys.argv[1:]:
    if "=" in a: k, v = a.split("="); assert k in OPT, k; OPT[k] = int(v)
    else: args.append(a)
STAMPS = OPT["stamps"]
MODS = ['', 'sc1', 'nt', 'sc0 sc1']
OA, OBM = MODS[OPT['oa']], MODS[OPT['ob']]
def f32(x): return "0x%08x" % struct.unpack("<I", struct.pack("<f", x))[0]
def vr(a, n=1): return f"v{a}" if n == 1 else f"v[{a}:{a+n-1}]"
def sr(a, n=1): return f"s{a}" if n == 1 else f"s[{a}:{a+n-1}]"
P_AX, P_WR, P_WI, P_BX, P_WQKV, P_WO, P_OUT, P_DBG, P_WS = 8,10,12,14,16,18,20,22,24
MFMA = "v_mfma_f32_32x32x16_bf16"
SMF = "v_smfmac_f32_32x32x32_bf16"
SC = "sc1"
PM = ['sc1', 'sc0 sc1', 'sc1 nt', 'sc0 sc1 nt'][OPT['pm']]
FM = ['sc1', 'sc0 sc1', 'sc1 nt', 'sc0 sc1 nt'][OPT['fm']]
HI = "quad_perm:[0,1,2,3] row_mask:0xc bank_mask:0xf"
TAGC = 0x9E3779B9
TAG = 62
SWS = 36; W = sr(SWS,4)
SX, SW = 28, 32
SPIN = 200000
FOFF = 7*16384
WO, OST = 0, 0
QX, EX, TX, WX = 0, 8192, 16384, 24576
MERGE = 114688
ZOFF, YOFF = MERGE, MERGE + 28672
CNT = 162816
LDS_BYTES = 163840
(C_P1, R_KV, C_MERGE, C_OST, R_A1, C_EX, C_A2, R_A2, C_Z, C_Y, C_WOA, C_WOF, C_GO, C_G2, C_Q, C_LF, C_T, C_W, C_X, C_H) = [CNT+16*i+12 for i in range(20)]

A = Asm()
def stamp(i):
    if STAMPS: A(f"{'s_memtime' if STAMPS == 2 else 's_memrealtime'} s[{64+2*i}:{65+2*i}]")
def stampw(i):
    if STAMPS: stamp(i); A("s_waitcnt lgkmcnt(0)")
def srd(d, p, nbytes):
    A(f"s_mov_b32 s{d}, s{p}\ns_mov_b32 s{d+1}, s{p+1}\ns_mov_b32 s{d+2}, {nbytes}\ns_mov_b32 s{d+3}, 0x00020000")
def pi32(d, s, t):
    A(f"""v_and_b32 v{d}, 0x13, v{s}
v_and_b32 v{t}, 4, v{s}
v_lshl_or_b32 v{d}, v{t}, 1, v{d}
v_and_b32 v{t}, 8, v{s}
v_lshrrev_b32 v{t}, 1, v{t}
v_or_b32 v{d}, v{d}, v{t}""")
def mod7(d, t):
    A(f"s_mul_i32 s{t}, s{d}, 37\ns_lshr_b32 s{t}, s{t}, 8\ns_mul_i32 s{t}, s{t}, 7\ns_sub_u32 s{d}, s{d}, s{t}")
def lds_add(addr):
    A(f"v_mov_b32 v12, {addr}\nv_mov_b32 v13, 1\ns_mov_b64 exec, 1\nds_add_u32 v12, v13\ns_mov_b64 exec, -1")
def lds_wait(addr, target, sleep=0, setup=True):
    L, L2 = A.lab("lw"), A.lab("lwd")
    if setup: A(f"v_mov_b32 v12, {addr}")
    A(f"""{L}:
ds_read_b32 v13, v12
s_waitcnt lgkmcnt(0)
v_readfirstlane_b32 s60, v13
s_cmp_ge_u32 s60, {target}""")
    if sleep: A(f"s_cbranch_scc1 {L2}\ns_sleep {sleep}\ns_branch {L}\n{L2}:")
    else: A(f"s_cbranch_scc0 {L}")
def lds_sync(addr, target, sleep=0):
    A("s_waitcnt lgkmcnt(0)"); lds_add(addr); lds_wait(addr, target, sleep, False)
def arrive(cnt, skip):
    A(f"""v_mov_b32 v12, {cnt}
v_mov_b32 v13, 1
s_mov_b64 exec, 1
s_waitcnt vmcnt(0)
ds_add_rtn_u32 v13, v12, v13
s_mov_b64 exec, -1
s_waitcnt lgkmcnt(0)
v_readfirstlane_b32 s60, v13
s_cmp_lg_u32 s60, 3
s_cbranch_scc1 {skip}""")
def flagstore(soff, nrep, repstride, t=40, val=None):
    val = val or f"s{TAG}"
    if not OPT["fl"]:
        A(f"""v_mul_u32_u24 v12, {repstride}, v0
v_mov_b32 v13, {val}
s_mov_b64 exec, {(1<<nrep)-1}
buffer_store_dword v13, v12, {W}, {soff} offen {SC}
s_mov_b64 exec, -1""")
        return
    A(f"""v_lshrrev_b32 v12, 3, v0
v_mul_u32_u24 v12, {repstride}, v12
v_and_b32 v13, 7, v0
v_lshl_add_u32 v12, v13, 4, v12""")
    for i in range(4): A(f"v_mov_b32 v{t+i}, {val}")
    if nrep < 8: A(f"s_mov_b64 exec, {(1<<(8*nrep))-1}")
    A(f"buffer_store_dwordx4 {vr(t,4)}, v12, {W}, {soff} offen {FM}")
    if nrep < 8: A("s_mov_b64 exec, -1")
def publish(cnt, soff, nrep, repstride):
    L = A.lab("pub")
    if OPT["fl"]:
        A(f"v_lshrrev_b32 v10, 3, v0\nv_mul_u32_u24 v10, {repstride}, v10\nv_and_b32 v13, 7, v0\nv_lshl_add_u32 v10, v13, 4, v10")
        for i in range(4): A(f"v_mov_b32 v{36+i}, s{TAG}")
        arrive(cnt, L)
        if nrep < 8: A(f"s_mov_b64 exec, {(1<<(8*nrep))-1}")
        A(f"buffer_store_dwordx4 v[36:39], v10, {W}, s{soff} offen {FM}")
        if nrep < 8: A("s_mov_b64 exec, -1")
    else:
        arrive(cnt, L); flagstore(f"s{soff}", nrep, repstride)
    lds_add(C_X); A(f"{L}:")
def acquire(rel, body, sleep, sleep2=1):
    LP, LD, LO, LE = A.lab("poll"), A.lab("pollok"), A.lab("pollw"), A.lab("polle")
    A(f"s_cmp_lg_u32 s40, 0\ns_cbranch_scc1 {LO}\ns_mov_b32 s61, {SPIN}\n{LP}:")
    body()
    A(f"""s_cbranch_vccz {LD}
s_sub_u32 s61, s61, 1
s_cmp_eq_u32 s61, 0
s_cbranch_scc1 {LD}
s_sleep {sleep}
s_branch {LP}
{LD}:""")
    lds_add(rel)
    A(f"s_branch {LE}\n{LO}:")
    lds_wait(rel, 1, sleep2)
    A(f"{LE}:")
def spin(load, reg, sleep):
    LP, LD = A.lab("spin"), A.lab("spinok")
    A(f"""s_mov_b32 s61, {SPIN}
{LP}:
{load}
s_waitcnt vmcnt(0)
v_cmp_ne_u32 vcc, s{TAG}, v{reg}
s_cbranch_vccz {LD}
s_sub_u32 s61, s61, 1
s_cmp_eq_u32 s61, 0
s_cbranch_scc1 {LD}
s_sleep {sleep}
s_branch {LP}
{LD}:""")
def gettag():
    if OPT["wsb"]: A(f"s_add_u32 s24, s24, {OPT['wsb'] << 20}\ns_addc_u32 s25, s25, 0")
    A(f"s_load_dword s{TAG}, s[24:25], {EPOCH_OFF}")
    srd(SWS, P_WS, WS_USED)
def fixtag():
    A(f"s_waitcnt lgkmcnt(0)\ns_add_u32 s{TAG}, s{TAG}, {TAGC}")

FIN, END, ATT, PUB1, HELP2, GEN = "L_fin", "L_end", "L_att", "L_pub1", "L_help2", "L_gen"
LA1, LB1C, LB1G, LA1C, LV, LN, LFB = "L_a1", "L_b1c", "L_b1g", "L_a1c", "L_b1v", "L_norm", "L_fallback"
K = NAME + "_kernel"

def entry():
    A(f".globl {K}\n.p2align 8\n.type {K},@function\n{K}:")
    A(f"""s_cmp_ge_u32 s2, 256
s_cbranch_scc1 {FIN}
s_load_dwordx16 s[8:23], s[0:1], 0
s_load_dwordx2 s[24:25], s[0:1], 64
v_lshrrev_b32 v1, 6, v0
v_readfirstlane_b32 s3, v1
v_and_b32 v0, 63, v0""")
    if STAMPS:
        for i in range(2, 14): A(f"s_mov_b32 s{64+2*i}, 0")
        A("s_memtime s[64:65]\ns_memrealtime s[66:67]")
    if OPT["pf"]:
        L = A.lab("pf"); LP = A.lab("pc")
        A(f"""{"s_cmp_lg_u32 s3, 3" if OPT["pfw"] == 3 else "s_cmp_ge_u32 s3, %d" % OPT["pfw"]}
s_cbranch_scc1 {L}
s_getpc_b64 s[56:57]
{LP}:
s_lshr_b32 s58, s2, 3
s_add_u32 s58, s58, s3
s_and_b32 s58, s58, 3
s_lshl_b32 s58, s58, 13
v_lshlrev_b32 v1, 7, v0
v_add_u32 v1, s58, v1
v_min_u32 v1, {FIN}-{LP}, v1
global_load_dword v63, v1, s[56:57]
{L}:""")
    A(f"""s_and_b32 s4, s2, 7
s_lshr_b32 s5, s2, 3
s_lshl_b32 s6, s4, 1
s_and_b32 s7, s5, 1
s_or_b32 s6, s6, s7
s_lshr_b32 s7, s5, 1
s_and_b32 s40, s3, 3
s_cmp_ge_u32 s7, 11
s_cbranch_scc1 {LA1}
s_cmp_lt_u32 s3, 4
s_cbranch_scc1 {LB1C}""")

def xaddr(rs, d=2):
    A(f"""v_lshrrev_b32 v17, 3, v0
v_and_b32 v14, 7, v0
v_lshrrev_b32 v15, 4, v0
v_xor_b32 v14, v14, v15
v_lshlrev_b32 v14, 4, v14
v_xor_b32 v16, 64, v14
v_mul_u32_u24 v17, {rs}, v17
v_add_u32 v{d}, v17, v14
v_add_u32 v{d+1}, v17, v16
v_add_u32 v{d+1}, {8*rs-1024}, v{d+1}
v_add_u32 v{d+2}, {2*(8*rs-1024)}, v{d}
v_add_u32 v{d+3}, {2*(8*rs-1024)}, v{d+1}""")
def b1_loader():
    A("s_setprio 3")
    if OPT["rot"] == 2: A("s_mov_b32 s26, s7")
    elif OPT["rot"] == 3: A("s_and_b32 s26, s6, 1\ns_mul_i32 s26, s26, 3\ns_add_u32 s26, s26, s7")
    elif OPT["rot"] == 4: A("s_and_b32 s26, s6, 1\ns_mul_i32 s26, s26, 3")
    elif OPT["rot"] == 5: A("s_lshr_b32 s26, s6, 1\ns_add_u32 s26, s26, s7")
    else: A("s_add_u32 s26, s6, s7")
    mod7(26, 27)
    if not OPT["rot"]: A("s_mov_b32 s26, 0")
    xaddr(896)
    A(f"""v_and_b32 v14, 15, v0
v_lshlrev_b32 v16, 2, v15
v_xor_b32 v14, v14, v16
v_lshlrev_b32 v14, 4, v14
v_mul_u32_u24 v15, 2688, v15
v_add_u32 v6, v14, v15
v_add_u32 v7, {4*2688-1024}, v6
v_add_u32 v8, {2*(4*2688-1024)}, v6
v_add_u32 v9, {3*(4*2688-1024)}, v6
s_lshl_b32 s41, s6, 2
s_add_u32 s47, s41, s40          ; token tile of this wave
s_mul_i32 s41, s47, {32*896}     ; x base
s_mul_i32 s42, s40, {16*2688}
s_lshl_b32 s43, s7, 8
s_add_u32 s42, s42, s43          ; w base
s_lshl_b32 s44, s40, 12          ; lds base of this wave
s_waitcnt lgkmcnt(0)""")
    srd(SX, P_BX, X_BYTES); srd(SW, P_WQKV, WQKV_BYTES)
    def issue():
        A(f"""s_lshl_b32 s45, s26, 7
s_add_u32 s45, s45, s41
s_mul_i32 s46, s26, {64*2688}
s_add_u32 s46, s46, s42
s_mov_b32 m0, s44""")
        for i in range(4): A(f"buffer_load_dwordx4 v{2+i}, {sr(SX,4)}, s45 offen offset:{1024*i} lds")
        A(f"s_add_u32 m0, s44, 16384")
        for i in range(4): A(f"buffer_load_dwordx4 v{6+i}, {sr(SW,4)}, s46 offen offset:{1024*i} lds")
        A("""s_add_u32 s26, s26, 1
s_cmp_eq_u32 s26, 7
s_cselect_b32 s26, 0, s26
s_add_u32 s44, s44, 0x8000
s_and_b32 s44, s44, 0x1ffff""")
    LL = A.lab("b1ld")
    issue(); gettag()
    A(f"s_mov_b32 s48, 6\n{LL}:")
    if OPT["x"] != 2: issue()
    else: A("s_waitcnt vmcnt(0)")
    A("s_waitcnt vmcnt(8)")
    if STAMPS:
        LX = A.lab("st"); A(f"s_cmp_lg_u32 s48, 6\ns_cbranch_scc1 {LX}"); stamp(2); A(f"{LX}:")
    A(f"""s_barrier
s_sub_u32 s48, s48, 1
s_cmp_lg_u32 s48, 0
s_cbranch_scc1 {LL}""")
    fixtag()
    wsetup()
    pass
    A("s_waitcnt vmcnt(0)")
    stamp(3)
    A(f"s_barrier\ns_cmp_eq_u32 s7, 10\ns_cbranch_scc1 {ATT}")
    for x in WL[:OPT["wm"]]: A(x)
    A(f"s_branch {ATT}")

WL = [] if OPT["wg"] else [f"buffer_load_dwordx4 v[96:99], v248, {sr(SX,4)}, s55 offen", f"buffer_load_dwordx4 v[100:103], v248, s[56:59], s55 offen"]
def wsetup(force=False):
    if OPT["wg"] and not force: return
    LNY = A.lab("nyq")
    srd(SX, P_WR, W_BYTES); srd(56, P_WI, W_BYTES)
    A(f"""s_lshr_b32 s54, s2, 3          ; ko
s_mul_i32 s55, s4, {4*450}
s_mul_i32 s43, s40, {512*450}
s_add_u32 s55, s55, s43
s_lshl_b32 s43, s54, 4
s_add_u32 s55, s55, s43
s_cmp_lg_u32 s54, 28
s_cbranch_scc1 {LNY}""")
    srd(SX, P_WI, W_BYTES); srd(56, P_WR, W_BYTES)
    A(f"""s_sub_u32 s55, s55, 14
{LNY}:
v_lshrrev_b32 v9, 2, v0
v_and_b32 v10, 3, v0
v_lshl_add_u32 v9, v9, 5, v10
v_mul_u32_u24 v248, 450, v9""")
A1LD, ATT2 = "L_a1ld", "L_att2"
SXA = SX
def a1_dispatch_loader():
    A(f"""{LA1}:
s_sub_u32 s5, s7, 11           ; g5
s_mul_i32 s26, s5, 3
s_lshr_b32 s26, s26, 1         ; e0 in 0,1,3,4,6""")
    if not OPT["rota"]: A("s_mov_b32 s26, 0")
    A(f"s_cmp_lt_u32 s3, 4\ns_cbranch_scc1 {LA1C}")
    A(f"""s_lshl_b32 s96, s6, 2
s_add_u32 s96, s96, s40
s_mul_i32 s96, s96, 896
s_lshl_b32 s97, s40, 12
s_lshl_b32 s98, s26, 2
s_add_u32 s98, s98, 3
s_lshl_b32 s99, s6, 7
s_add_u32 s99, s99, {GO_OFF}""")
    mod7(98, 27)
    A("s_waitcnt lgkmcnt(0)")
    if OPT["xt"]:
        srd(SX, P_AX, X_BYTES)
        A(f"""s_lshl_b32 s44, s5, 7
s_add_u32 s43, s96, s44
s_cmp_lt_u32 s5, 2
s_cselect_b32 s44, 640, 0
v_lshrrev_b32 v1, 5, v0
v_mul_u32_u24 v1, s44, v1
v_and_b32 v2, 31, v0
v_mul_u32_u24 v2, {64*896}, v2
v_add_u32 v1, v1, v2
buffer_load_dword v104, v1, {sr(SX,4)}, s43 offen""")
    gettag()
    wsetup()
    if not OPT["wa"]:
        for x in WL: A(x)
    A(f"s_mov_b32 s0, s{P_AX}\ns_mov_b32 s1, s{P_AX+1}")
    fixtag()
    A(f"s_branch {ATT}")
    A(f"{A1LD}:\ns_setprio 3\nv_mov_b32 v9, 0")
    xaddr(64*896, 48)
    if OPT["wa"] == 2:
        for x in WL: A(x)
    srd(SX, 0, X_BYTES)
    spin(f"buffer_load_dword v14, v9, {W}, s99 offen {PM}", 14, 2)
    stamp(2)
    LL = A.lab("a1ld")
    A(f"""s_mov_b32 s100, 0
{LL}:
s_lshl_b32 s42, s98, 7
s_add_u32 s42, s42, s96
s_lshl_b32 s43, s98, 14
s_add_u32 m0, s97, s43""")
    for i in range(4): A(f"buffer_load_dwordx4 v{48+i}, {sr(SXA,4)}, s42 offen offset:{1024*i} lds")
    A(f"""s_add_u32 s98, s98, 4
s_sub_u32 s43, s98, 7
s_cmp_ge_u32 s98, 7
s_cselect_b32 s98, s43, s98
s_add_u32 s100, s100, 1
s_cmp_lt_u32 s100, 3
s_cbranch_scc1 {LL}
s_waitcnt vmcnt(4)
s_barrier
s_cmp_lt_u32 s100, 7
s_cbranch_scc1 {LL}
s_waitcnt vmcnt(0)""")
    stamp(3)
    A("s_barrier")
    A(f"s_branch {ATT2}")

def main_start():
    A(f"""v_lshlrev_b32 v1, 4, v0
v_add_u32 v1, {CNT+12}, v1
v_mov_b32 v2, 0
ds_write_b32 v1, v2""")

C, ER, EI, G, GT = 128, 160, 176, 192, 16
def tlbwarm():
    g = OPT["tw"]
    if not g: return
    L = A.lab("tw")
    n = (WS_USED >> g) // 32 + 1
    A(f"""s_cmp_lg_u32 s3, 2
s_cbranch_scc1 {L}
s_lshr_b32 s60, s2, 3
s_mul_i32 s60, s60, {n << g}
v_lshlrev_b32 v12, {g}, v0""")
    for i in range(0, n, 64):
        k = min(64, n - i)
        if k < 64: A(f"s_bfm_b64 exec, {k}, 0")
        A(f"buffer_load_dword v255, v12, {W}, s60 offen offset:64")
        if i + 64 < n: A(f"s_add_u32 s60, s60, {64 << g}")
    A("s_mov_b64 exec, -1")
    m = (W_BYTES >> g) // 32 + 1
    srd(28, P_WR, W_BYTES); srd(32, P_WI, W_BYTES)
    A(f"""s_lshr_b32 s60, s2, 3
s_mul_i32 s60, s60, {m << g}
s_bfm_b64 exec, {m}, 0
buffer_load_dword v255, v12, s[28:31], s60 offen
buffer_load_dword v255, v12, s[32:35], s60 offen
s_mov_b64 exec, -1
{L}:""")
def prewrite():
    tlbwarm()
    if OPT["pw"] < 2: return
    L = A.lab("pw")
    A(f"""s_cmp_lg_u32 s3, 3
s_cbranch_scc1 {L}
s_sub_u32 s60, s{TAG}, {TAGC}
s_lshl_b32 s61, s7, 4
s_add_u32 s61, s61, s6
s_lshl_b32 s61, s61, 7
s_add_u32 s61, s61, {F1_OFF}""")
    flagstore("s61", OPT["r1"], 32768, 40, "s60")
    A(f"{L}:")
def touches(which):
    if "x" in which:
        srd(28, P_AX, X_BYTES)
        A(f"""s_lshl_b32 s43, s6, 2
s_add_u32 s43, s43, s3
s_mul_i32 s43, s43, 896
s_lshl_b32 s44, s5, 7
s_add_u32 s43, s43, s44
s_cmp_lt_u32 s5, 2
s_cselect_b32 s44, 640, 0
v_mul_u32_u24 v1, s44, v15
v_mul_u32_u24 v7, {64*896}, v14
v_add_u32 v1, v1, v7
buffer_load_dword v63, v1, s[28:31], s43 offen""")
    A(f"""s_lshr_b32 s45, s2, 3
s_sub_u32 s45, s45, 22
s_lshl_b32 s45, s45, 2
s_add_u32 s45, s45, s3""")
    if "w" in which:
        LT = A.lab("tch")
        srd(28, P_WR, W_BYTES)
        A(f"s_bitcmp0_b32 s45, 0\ns_cbranch_scc1 {LT}")
        srd(28, P_WI, W_BYTES)
        A(f"""{LT}:
s_lshr_b32 s43, s45, 1
s_mul_i32 s43, s43, {128*450}
s_mul_i32 s44, s4, {4*450}
s_add_u32 s43, s43, s44
s_and_b32 s43, s43, 0xffffff80
v_lshrrev_b32 v1, 4, v0
v_mul_u32_u24 v1, {32*450}, v1
v_and_b32 v7, 15, v0
v_lshl_add_u32 v1, v7, 7, v1
buffer_load_dword v63, v1, s[28:31], s43 offen""")
    if "o" in which:
        srd(28, P_WO, WO_BYTES)
        A(f"""s_mul_i32 s43, s45, {12*896}
s_and_b32 s44, s2, 1
s_lshl_b32 s44, s44, 9
s_add_u32 s43, s43, s44
v_lshrrev_b32 v1, 2, v0
v_mul_u32_u24 v1, 896, v1
v_and_b32 v7, 3, v0
v_lshl_add_u32 v1, v7, 7, v1
s_mov_b32 exec_hi, 0xffff
buffer_load_dword v63, v1, s[28:31], s43 offen
s_mov_b64 exec, -1""")
TCH = {0: ("", ""), 1: ("x", "wo"), 2: ("", "xwo"), 3: ("xwo", ""), 4: ("", "x"), 5: ("x", ""), 6: ("xw", "o"), 7: ("w", "xo")}[OPT["tch"]]
def gen_common():
    A(f"""v_and_b32 v14, 31, v0
v_lshrrev_b32 v15, 5, v0
s_lshr_b32 s50, s2, 5
s_lshl_b32 s50, s50, 3
s_or_b32 s50, s50, s4
s_bfe_u32 s51, s2, 0x20003       ; d quarter
s_and_b32 s52, s40, 1            ; parity e""")
def rot_gen(n, nblk, step, base, mult, dmult, out, scale=None):
    c, sn, t = GT, GT+8, GT+16
    A(f"v_mul_f32 v11, {f32(float(dmult))}, v{step}")
    for j in range(n): A(f"v_fmamk_f32 v{t+j}, v{step}, {f32(float(mult[j]))}, v{base}")
    A("v_cos_f32 v10, v11\nv_sin_f32 v12, v11")
    for j in range(n): A(f"v_cos_f32 v{c+j}, v{t+j}\nv_sin_f32 v{sn+j}, v{t+j}")
    A("v_mov_b32 v11, v10\nv_mov_b32 v13, v12")
    if scale is not None:
        for j in range(n): A(f"v_mul_f32 v{c+j}, {f32(scale)}, v{c+j}\nv_mul_f32 v{sn+j}, {f32(scale)}, v{sn+j}")
    for b in range(nblk):
        out(b)
        if b + 1 < nblk:
            for j in range(0, n, 2): A(f"v_pk_mul_f32 {vr(t+j,2)}, {vr(sn+j,2)}, v[12:13]")
            for j in range(0, n, 2): A(f"v_pk_mul_f32 {vr(sn+j,2)}, {vr(sn+j,2)}, v[10:11]")
            for j in range(0, n, 2): A(f"v_pk_fma_f32 {vr(sn+j,2)}, {vr(c+j,2)}, v[12:13], {vr(sn+j,2)}")
            for j in range(0, n, 2): A(f"v_pk_fma_f32 {vr(c+j,2)}, {vr(c+j,2)}, v[10:11], {vr(t+j,2)} neg_lo:[0,0,1] neg_hi:[0,0,1]")
def gen_c():
    A(f"""v_lshrrev_b32 v8, 1, v14
s_lshl_b32 s43, s40, 4
v_add_u32 v8, s43, v8
v_cvt_f32_u32 v8, v8
v_mul_f32 v8, {f32(1/64)}, v8    ; step = u2/64
v_and_b32 v9, 1, v14
v_cvt_f32_u32 v9, v9
v_mul_f32 v9, {f32(0.25)}, v9
v_lshlrev_b32 v10, 1, v15
v_cvt_f32_u32 v10, v10
v_fma_f32 v9, v8, v10, v9        ; base""")
    def out(f):
        for p in range(4): A(f"v_cvt_pk_bf16_f32 v{C+4*f+p}, v{GT+p}, v{GT+8+p}")
    rot_gen(4, 8, 8, 9, [0,1,4,5], 8, out)
def gen_e():
    A(f"""v_lshlrev_b32 v8, 6, v14
v_add_u32 v8, s50, v8
v_cvt_f32_u32 v8, v8
v_mul_f32 v8, {f32(1/2048)}, v8
v_lshlrev_b32 v9, 2, v15
v_cvt_f32_u32 v9, v9
v_mul_f32 v9, v8, v9""")
    def out(f):
        for p in range(4): A(f"v_cvt_pk_bf16_f32 v{ER+4*f+p}, v{GT+p}, -v{GT+8+p}")
        for p in range(4): A(f"v_cvt_pk_bf16_f32 v{EI+4*f+p}, v{GT+8+p}, v{GT+p}")
    rot_gen(4, 4, 8, 9, [0,1,2,3], 8, out, 2.0/(2048*448))
def gen_g():
    A(f"""s_lshr_b32 s44, s40, 1
s_lshl_b32 s45, s51, 1
s_add_u32 s44, s44, s45         ; d tile
s_lshl_b32 s46, s44, 5
v_add_u32 v8, s46, v14          ; d
v_cvt_f32_u32 v8, v8
v_mul_f32 v8, {f32(1/448)}, v8
v_lshlrev_b32 v9, 3, v15
v_add_u32 v9, s52, v9
v_cmp_eq_u32 vcc, 0, v9
v_cvt_f32_u32 v9, v9
v_mul_f32 v9, v8, v9""")
    def out(t):
        for j in range(4): A(f"v_cvt_pk_bf16_f32 v{G+8*t+j}, v{GT+2*j}, v{GT+2*j+1}")
        for j in range(4): A(f"v_cvt_pk_bf16_f32 v{G+8*t+4+j}, -v{GT+8+2*j}, -v{GT+9+2*j}")
    rot_gen(8, 7, 8, 9, [16*(j>>2)+2*(j&3) for j in range(8)], 32, out)
    A(f"""v_and_b32 v8, 0xffff0000, v{G}
v_or_b32 v8, 0x3f00, v8
v_and_b32 v10, 1, v14
v_lshlrev_b32 v10, 15, v10
v_cndmask_b32 v{G}, v{G}, v8, vcc
v_and_b32 v8, 0xffff, v8
v_and_b32 v9, 0xffff0000, v{G+4}
v_or3_b32 v9, v9, v10, v8
v_cndmask_b32 v{G+4}, v{G+4}, v9, vcc""")
def gen_pre():
    gen_common()

ACC = 64
def acc(a, b): return ACC + 32*a + 16*b
LONES = "L_ones"
def b1_body(vtype):
    if vtype: pi32(48, 14, 49)
    else: A("v_mov_b32 v48, v14")
    A(f"""v_lshrrev_b32 v49, 1, v48
v_and_b32 v49, 7, v49
v_xor_b32 v49, v49, v15
v_lshlrev_b32 v49, 4, v49
v_lshl_or_b32 v50, v48, 7, v49
s_lshl_b32 s43, s41, 13
v_add_u32 v52, s43, v50
v_xor_b32 v53, 32, v52
v_xor_b32 v54, 64, v52
v_xor_b32 v55, 96, v52""")
    A(f"""v_bfe_u32 v48, v0, 2, 2        ; rr
v_and_b32 v49, 3, v0           ; cc""")
    if not vtype:
        A("""v_lshrrev_b32 v50, 1, v49
v_and_b32 v49, 1, v49
v_lshl_or_b32 v49, v49, 1, v50 ; sigma(cc)""")
    A(f"""v_bfe_u32 v50, v0, 4, 1        ; colhalf
v_lshlrev_b32 v50, 5, v50
v_lshl_or_b32 v50, v49, 3, v50
s_lshl_b32 s43, s42, 7
v_or_b32 v50, s43, v50
v_lshlrev_b32 v51, 6, v48
v_xor_b32 v50, v50, v51
v_lshl_add_u32 v51, v15, 3, v48 ; 8h+rr
v_lshl_or_b32 v56, v51, 8, v50
v_add_u32 v56, 16384, v56
v_xor_b32 v57, 64, v56""")
    A(f"""s_lshl_b32 s46, s6, 2
s_lshl_b32 s47, s41, 1
s_add_u32 s46, s46, s47
s_lshl_b32 s47, s7, 2
s_lshl_b32 s48, s42, 1
s_add_u32 s47, s47, s48""")
    if not vtype:
        A(f"""s_lshl_b32 s48, s47, 11
v_lshlrev_b32 v2, 4, v0
s_cmp_ge_u32 s47, 14
s_cselect_b32 s49, {KV_REC - QK_TILE}, 0
s_cselect_b32 s43, {KV_OFF - Q_OFF - 14*2048}, 0
s_cselect_b32 s54, 1.0, {f32(QSCALE)}
s_mov_b32 s55, s54
s_add_u32 s49, s49, {QK_TILE}
s_mul_i32 s46, s46, s49
s_add_u32 s46, s46, s48
s_add_u32 s46, s46, s43
s_add_u32 s46, s46, {Q_OFF}
s_add_u32 s49, s46, s49""")
    else:
        A(f"""s_sub_u32 s45, s7, 7
s_lshl_b32 s45, s45, 7
s_add_u32 s45, s45, 27
s_mul_i32 s45, s45, 2341
s_lshr_b32 s45, s45, 16
v_lshrrev_b32 v10, 4, v0
v_add_u32 v10, s45, v10
v_lshrrev_b32 v11, 2, v0
v_lshlrev_b32 v11, 9, v11
s_lshl_b32 s45, s45, 11
v_add_u32 v11, s45, v11
v_cmp_gt_u32 s[56:57], 16, v10
v_and_b32 v4, 3, v0
v_lshl_or_b32 v4, v4, 4, v11
s_cmp_lt_u32 s7, 9
s_cselect_b32 s58, 0xffff, 0
s_mov_b32 s59, 0
s_lshl_b32 s54, s6, 2
s_add_u32 s54, s54, s40
s_mul_i32 s54, s54, {KV_REC}
s_add_u32 s54, s54, {KV_OFF + QK_TILE + 28*16}
s_add_u32 s55, s54, 8192
v_mov_b32 v58, 0x3f803f80
v_mov_b32 v59, 0x3f803f80
v_mov_b32 v60, 0x3f803f80
v_mov_b32 v61, 0x3f803f80
s_sub_u32 s47, s47, 28
s_mul_i32 s46, s46, {KV_REC}
s_add_u32 s46, s46, {KV_OFF + QK_TILE}
s_add_u32 s49, s46, {KV_REC}
s_lshl_b32 s48, s47, 5""")
        for b in range(2):
            A(f"""v_add_u32 v48, s48, v14
v_add_u32 v48, {32*b}, v48
v_mul_u32_u24 v49, 2341, v48
v_lshrrev_b32 v49, 16, v49     ; head
v_mul_u32_u24 v50, 28, v49
v_sub_u32 v48, v48, v50        ; d
v_lshlrev_b32 v48, 4, v48
v_lshl_or_b32 v48, v15, 9, v48
v_lshl_or_b32 v{2+b}, v49, 11, v48""")
    SETS = (16, 32, 192, 208)
    def rx(kap, p, a): return f"ds_read_b128 {vr(SETS[p]+4*a,4)}, v{6+kap} offset:{4096*a}"
    def rw(kap, p, b): return [f"ds_read_b64_tr_b16 {vr(SETS[p]+8+4*b+2*u,2)}, v{10+b} offset:{(16*kap+4*u)*256}" for u in range(2)]
    def rdlist(kap, p): return [rx(kap,p,0)] + rw(kap,p,0) + rw(kap,p,1) + [rx(kap,p,1)]
    def setaddr(): return [f"v_add_u32 v{6+i}, s44, v{52+i}" for i in range(6)]
    def mf(a, b, p):
        x, w = vr(SETS[p]+4*a,4), vr(SETS[p]+8+4*b,4)
        o = (x, w) if vtype else (w, x)
        A(f"{MFMA} {vr(acc(a,b),16)}, {o[0]}, {o[1]}, {vr(acc(a,b),16)}")
    gb = []
    def fill(n):
        for _ in range(n):
            if gb:
                for x in gb.pop(0): A(x)
    def kstep(p, r, f):
        A("s_waitcnt lgkmcnt(3)")
        mf(0,0,p)
        for x in r[0:3]: A(x)
        fill(f[0])
        A("s_waitcnt lgkmcnt(4)")
        mf(0,1,p)
        for x in r[3:5]: A(x)
        fill(f[1])
        A("s_waitcnt lgkmcnt(5)")
        mf(1,0,p)
        for x in r[5:6]: A(x)
        fill(f[2])
        mf(1,1,p)
        if OPT["bn"]: A(f"s_nop {OPT['bn']}")
        fill(f[3])
    LL = A.lab("b1loop")
    if vtype:
        LI, LI2 = A.lab("idle"), A.lab("idle")
        A(f"s_cmp_lt_u32 s47, 14\ns_cbranch_scc1 {LI}")
        prewrite()
        for n in range(7):
            A("s_barrier")
            if n == OPT["gk"]:
                A(f"s_cmp_lg_u32 s3, 2\ns_cbranch_scc1 {LI2}\ns_lshl_b32 s61, s6, 7\ns_add_u32 s61, s61, {GO_OFF}")
                flagstore("s61", 1, 0)
                A(f"{LI2}:")
        A(f"s_branch {LONES}\n{LI}:")
    A("s_mov_b32 s44, 0\ns_mov_b32 s45, 0")
    for x in setaddr(): A(x)
    prewrite()
    stampw(9)
    A("s_barrier")
    stampw(2)
    for x in rdlist(0, 0): A(x)
    A(f"{LL}:")
    kstep(0, rdlist(1, 1), (0,1,2,3))
    kstep(1, rdlist(2, 0), (0,1,2,3))
    A("s_add_u32 s44, s44, 0x8000\ns_and_b32 s44, s44, 0x1ffff\ns_add_u32 s45, s45, 1")
    kstep(0, rdlist(3, 1), (1,1,2,0))
    for x in setaddr(): A(x)
    A("s_barrier")
    kstep(1, rdlist(0, 0), (1,1,1,1))
    assert not gb
    A(f"s_cmp_lt_u32 s45, 6\ns_cbranch_scc1 {LL}")
    if OPT["x"] in (2, 3): A("s_memtime s[84:85]\ns_waitcnt lgkmcnt(0)")
    rd = []
    for kap in (1,2,3): rd += [rx(kap,kap,0)] + rw(kap,kap,0)
    for kap in (1,2,3): rd += rw(kap,kap,1)
    for kap in (1,2,3): rd += [rx(kap,kap,1)]
    order = [rdlist(0,0)[i] for i in range(6)] + rd
    def epi(a, b):
        e = []; t = acc(a,b)
        for i in range(8):
            if not vtype:
                if OPT["pk"] or (a, b) == (1, 1): e.append(f"v_pk_mul_f32 {vr(t+2*i,2)}, {vr(t+2*i,2)}, s[54:55]")
                else: e += [f"v_mul_f32 v{t+2*i}, s54, v{t+2*i}", f"v_mul_f32 v{t+2*i+1}, s54, v{t+2*i+1}"]
            e.append(f"v_cvt_pk_bf16_f32 v{t+i}, v{t+2*i}, v{t+2*i+1}" if OPT["x"] != -10 else f"v_mov_b32 v{t+i}, 0")
            if i & 3 == 3:
                if OPT["sd"] and (a, b, i) == (0, 0, 3): e.append(f"s_sleep {OPT['sd']}")
                if OPT["sp"]: e.append(f"s_sleep {OPT['sp']}")
                if vtype: e.append(f"buffer_store_dwordx4 {vr(t+i-3,4)}, v{2+b}, {W}, s{46 if a==0 else 49} offen offset:{1024*(i>>2)} {SC}")
                else: e.append(f"buffer_store_dwordx4 {vr(t+i-3,4)}, v2, {W}, s{46 if a==0 else 49} offen offset:{2048*b+1024*(i>>2)} {SC}")
        return e
    issued = 6; pend = []; lastw = None
    tiles = [(a,b) for a in range(2) for b in range(2)]
    seq = [(a,b,0) for a,b in tiles] + [(a,b,k) for a,b in tiles for k in (1,2,3)]
    for m, (a, b, kap) in enumerate(seq):
        need = max(order.index(x) for x in [rx(kap,kap,a)] + rw(kap,kap,b)) + 1
        while issued < need: A(order[issued]); issued += 1
        if lastw is None or need > lastw:
            A(f"s_waitcnt lgkmcnt({issued - need})"); lastw = need
        mf(a, b, kap)
        for _ in range(3):
            if issued < len(order) and issued - lastw < 14: A(order[issued]); issued += 1
        if m in (8, 11, 14): pend += epi(*tiles[(m-8)//3])
        if m == 15: stamp(3)
        for _ in range((6 if OPT["pk"] else 8) if not vtype else 4):
            if pend: A(pend.pop(0))
    for x in pend + epi(1,1): A(x)
    if vtype:
        LO = A.lab("ones")
        A(f"""{LONES}:
s_mov_b64 exec, s[56:57]
buffer_store_dwordx4 v[58:61], v4, {W}, s54 offen {SC}
s_mov_b64 exec, s[58:59]
s_cbranch_execz {LO}
buffer_store_dwordx4 v[58:61], v4, {W}, s55 offen {SC}
{LO}:
s_mov_b64 exec, -1""")
    lds_add(C_LF)
    A(f"s_branch {PUB1}")
def b1_compute():
    A(f"""s_and_b32 s41, s3, 1           ; wr
s_lshr_b32 s42, s3, 1          ; wc""")
    fixtag()
    A(f"s_cmp_ge_u32 s7, 7\ns_cbranch_scc1 {LV}")
    b1_body(False)
    A(f"{LV}:")
    b1_body(True)

def a1_gen():
    LF, LE = A.lab("fgen"), A.lab("fend")
    A(f"{LA1C}:\ns_setprio 2")
    if OPT["gdl"]: A(f"s_sleep {OPT['gdl']}")
    gen_common()
    pi32(48, 14, 49)
    A(f"""v_lshlrev_b32 v61, 4, v0
v_add_u32 v61, {FOFF}, v61""")
    main_start()
    A(f"""v_lshrrev_b32 v48, 1, v48       ; k_local
s_mul_i32 s41, s5, 3
s_add_u32 s41, s41, s3
s_lshl_b32 s41, s41, 4
v_add_u32 v48, s41, v48
v_cvt_f32_u32 v48, v48
v_mul_f32 v56, {f32(1/448)}, v48 ; k/448
v_and_b32 v48, 1, v14
v_cvt_f32_u32 v48, v48
v_mul_f32 v59, {f32(0.25)}, v48  ; c/4
v_lshlrev_b32 v60, 3, v15
v_cvt_f32_u32 v60, v60
v_fma_f32 v59, v56, v60, v59
v_mul_f32 v58, {f32(16.0)}, v56
v_cos_f32 v58, v58
s_mul_i32 s41, s3, 14336
v_add_u32 v53, s41, v61""")
    for j in range(16): A(f"v_fmamk_f32 v{16+j}, v56, {f32(float(16*(j>>3)+(j&7)))}, v59")
    A("v_add_f32 v58, v58, v58")
    for j in range(16): A(f"v_cos_f32 v{16+j}, v{16+j}")
    A("s_waitcnt lgkmcnt(0)")
    gettag()
    A(f"s_cmp_eq_u32 s3, 3\ns_cbranch_scc1 {LE}\nv_mov_b32 v59, v58\ns_mov_b32 s42, 7\n{LF}:")
    for u in range(2):
        for j in range(4): A(f"v_cvt_pk_bf16_f32 v{32+4*u+j}, v{16+8*u+2*j}, v{17+8*u+2*j}")
        A(f"ds_write_b128 v53, {vr(32+4*u,4)} offset:{1024*u}")
        for j in range(4):
            a, b = 16+8*u+2*j, 16+8*(u^1)+2*j
            A(f"v_pk_fma_f32 {vr(a,2)}, {vr(b,2)}, v[58:59], {vr(a,2)} neg_lo:[0,0,1] neg_hi:[0,0,1]") if u == 0 else None
    for j in range(4):
        a, b = 24+2*j, 16+2*j
        A(f"v_pk_fma_f32 {vr(a,2)}, {vr(b,2)}, v[58:59], {vr(a,2)} neg_lo:[0,0,1] neg_hi:[0,0,1]")
    A(f"""v_add_u32 v53, 2048, v53
s_sub_u32 s42, s42, 1
s_cmp_lg_u32 s42, 0
s_cbranch_scc1 {LF}
{LE}:""")
E1R, E1I = 56, 248
def a1_compute():
    if TCH[0]: touches(TCH[0])
    if not OPT["ag"]:
        A(f"{GEN}:")
        gen_e(); gen_g()
        A(f"s_cmp_lt_u32 s7, 11\ns_cbranch_scc1 {HELP2}")
    if TCH[1]: touches(TCH[1])
    A(f"""s_lshl_b32 s41, s6, 2
s_add_u32 s41, s41, s3          ; s2 index
v_lshlrev_b32 v9, 8, v15
v_add_u32 v9, s41, v9
v_mul_u32_u24 v9, v14, v9
v_cvt_f32_u32 v9, v9
v_mul_f32 v9, {f32(1/2048)}, v9
v_cvt_f32_u32 v8, v14
v_mul_f32 v8, {f32(1/32)}, v8
v_mov_b32 v5, v61
s_waitcnt vmcnt(0)""")
    def out(b):
        for j in range(4): A(f"v_cvt_pk_bf16_f32 v{E1R+4*b+j}, v{GT+2*j}, v{GT+2*j+1}")
        for j in range(4): A(f"v_cvt_pk_bf16_f32 v{E1I+4*b+j}, -v{GT+8+2*j}, -v{GT+9+2*j}")
    rot_gen(8, 2, 8, 9, [8*(j>>2)+(j&3) for j in range(8)], 16, out)
    A(f"""v_lshrrev_b32 v49, 1, v14
v_and_b32 v49, 7, v49
v_xor_b32 v49, v49, v15
v_lshlrev_b32 v49, 4, v49
v_lshl_or_b32 v6, v14, 7, v49
s_lshl_b32 s43, s3, 12
v_add_u32 v6, s43, v6
v_and_b32 v3, 2, v14
v_lshlrev_b32 v3, 30, v3
v_or_b32 v3, 1.0, v3            ; (-1)^k
v_mov_b32 v2, v3
v_lshlrev_b32 v4, 4, v0
s_mul_i32 s47, s41, {T_ROW}
s_mul_i32 s42, s5, 6144
s_add_u32 s47, s47, s42
s_add_u32 s47, s47, {T_OFF}
s_add_u32 s48, s47, 2048
s_add_u32 s49, s47, 4096""")
    egen = []
    A(f"s_mul_i32 s27, s26, 8256")
    def a1salu(adv=True):
        r = []
        if adv: r += ["s_add_u32 s27, s27, 8256", f"s_cmp_eq_u32 s27, {7*8256}", "s_cselect_b32 s27, 0, s27"]
        return r + ["s_and_b32 s43, s27, 0x1c040", f"s_add_u32 s44, s27, {7*8256}", "s_and_b32 s44, s44, 0x1c040",
                    "s_lshr_b32 s46, s27, 2", "s_and_b32 s46, s46, 0x7800"]
    a1valu = ["v_xor_b32 v8, s43, v6", "v_xor_b32 v10, s44, v6", "v_xor_b32 v9, 32, v8", "v_xor_b32 v11, 32, v10", "v_add_u32 v12, s46, v5"]
    def a1rd(t):
        b = 16 + 20*t
        return ([f"ds_read_b128 {vr(b,4)}, v{8+t}"] +
                [f"ds_read_b128 {vr(b+8+4*kgi,4)}, v12 offset:{1024*t+14336*kgi}" for kgi in range(3)] +
                [f"ds_read_b128 {vr(b+4,4)}, v{10+t}"])
    def a1step(t, nxt, first=False, fill=0, adv=False):
        b = 16 + 20*t
        r = list(nxt); issued = 0
        sa = a1salu() if adv else []; va = list(a1valu) if adv else []
        for m in range(6):
            hi, kgi = m // 3, m % 3
            need = (2, 3, 4, 5, 5, 5)[m]
            if not nxt: hi, kgi, need = m % 2, m // 2, (2, 5, 5, 5, 5, 5)[m]
            if m < (4 if nxt else 2): A(f"s_waitcnt lgkmcnt({5 - need + issued})")
            d = 64 + 32*kgi + 16*hi
            A(f"{MFMA} {vr(d,16)}, {vr(b+4*hi,4)}, {vr(b+8+4*kgi,4)}, {0 if first else vr(d,16)}")
            for _ in range(2 if m == 0 else 1):
                if r: A(r.pop(0)); issued += 1
            if m in (1, 2, 3):
                for _ in range(3):
                    if sa: A(sa.pop(0))
            if m == 4:
                while va: A(va.pop(0))
            for _ in range(fill if not (adv and m in (1,2,3,4)) else fill // 2):
                if egen: A(egen.pop(0))
    LL, LS, LNB = A.lab("a1loop"), A.lab("a1last"), A.lab("a1nb")
    for x in a1salu(False) + a1valu: A(x)
    fixtag()
    prewrite()
    for x in a1valu[4:]: A(x)
    stampw(9)
    A("s_barrier")
    stampw(2)
    if OPT["ad"]: A(f"s_sleep {OPT['ad']}")
    for x in a1rd(0): A(x)
    for n in range(1):
        a1step(0, a1rd(1), n == 0, 2, True)
        if OPT["gl"]: A("s_barrier")
        a1step(1, a1rd(0), False, 3)
    assert not egen
    A(f"s_mov_b32 s45, 1\n{LL}:")
    a1step(0, a1rd(1), adv=True)
    LH = A.lab("a1h")
    A(f"""s_add_u32 s45, s45, 1
s_cmp_eq_u32 s45, 7
s_cbranch_scc1 {LS}
s_nop 0""")
    if OPT["gl"]: A(f"s_cmp_eq_u32 s45, 6\ns_cbranch_scc1 {LNB}\ns_barrier\n{LNB}:")
    a1step(1, a1rd(0))
    A(f"s_branch {LL}\n{LS}:")
    a1step(1, [])
    stamp(3)
    def s1(kgi):
        P, Q = 64+32*kgi, 80+32*kgi
        e = []
        for i in range(8):
            if OPT["pk"]: e.append(f"v_pk_fma_f32 {vr(P+2*i,2)}, {vr(Q+2*i,2)}, v[2:3], {vr(P+2*i,2)}")
            else: e += [f"v_fmac_f32 v{P+2*i}, v3, v{Q+2*i}", f"v_fmac_f32 v{P+2*i+1}, v3, v{Q+2*i+1}"]
            e.append(f"v_cvt_pk_bf16_f32 v{16+8*kgi+i}, v{P+2*i}, v{P+2*i+1}")
        return e
    def mm(kgi):
        P, Q = 64+32*kgi, 80+32*kgi
        return [f"{MFMA} {vr(P,16)}, {vr(16+8*kgi,4)}, {vr(E1R,4)}, 0", f"{MFMA} {vr(Q,16)}, {vr(16+8*kgi,4)}, {vr(E1I,4)}, 0",
                f"{MFMA} {vr(P,16)}, {vr(20+8*kgi,4)}, {vr(E1R+4,4)}, {vr(P,16)}", f"{MFMA} {vr(Q,16)}, {vr(20+8*kgi,4)}, {vr(E1I+4,4)}, {vr(Q,16)}"]
    def s2(kgi):
        P, Q = 64+32*kgi, 80+32*kgi
        e = []
        for j in range(8):
            e += [f"v_sub_f32 v{P+2*j}, v{P+2*j}, v{Q+2*j+1}", f"v_add_f32 v{Q+2*j}, v{Q+2*j}, v{P+2*j+1}",
                  f"v_cvt_pk_bf16_f32 v{40+8*kgi+j}, v{P+2*j}, v{Q+2*j}"]
            if j & 3 == 3: e.append(f"buffer_store_dwordx4 {vr(40+8*kgi+j-3,4)}, v4, {W}, s{47+kgi} offen offset:{1024*(j>>2)} {SC}")
        return e
    def weave(ms, vs):
        k = (len(vs) + len(ms) - 1) // len(ms)
        for m in ms:
            A(m)
            for _ in range(k):
                if vs: A(vs.pop(0))
    lds_add(C_LF)
    for x in s1(0): A(x)
    weave(mm(0), s1(1)); weave(mm(1), s1(2)); weave(mm(2), s2(0))
    for x in s2(1) + s2(2): A(x)
    LI = A.lab("a1init")
    A(f"""s_cmp_ge_u32 s41, 4
s_cbranch_scc1 {LI}
s_lshl_b32 s42, s5, 2
s_add_u32 s42, s42, s41
s_lshl_b32 s42, s42, 7
s_add_u32 s42, s42, {AT_OFF}
""")
    flagstore("s42", 2, 20*128, 16, "0")
    A(f"{LI}:")

def pub1():
    A(f"""{PUB1}:
s_lshl_b32 s41, s7, 11
s_lshl_b32 s42, s6, 7
s_add_u32 s41, s41, s42
s_add_u32 s41, s41, {F1_OFF}""")
    stamp(4)
    publish(C_P1, 41, OPT["r1"], 32768)
    stamp(5)
    gen_c()
    if OPT["ag"]: gen_e(); gen_g()
    else: A(f"s_cmp_lt_u32 s7, 11\ns_cbranch_scc1 {GEN}")

Q, S, O, KV = 16, 48, 112, 176
OK = O + 48
TB = 8
SO = 32
def q(j,i): return vr(Q+8*j+4*i, 4)
def kb(b,i): return KV+16*b+4*i
def tile_loads(b, so):
    return [f"buffer_load_dwordx4 {vr(kb(b,0),4)}, v1, {W}, s{so} offen {SC}",
            f"buffer_load_dwordx4 {vr(kb(b,1),4)}, v2, {W}, s{so} offen {SC}",
            f"buffer_load_dwordx4 {vr(kb(b,2),4)}, v3, {W}, s{so} offen {SC}",
            f"buffer_load_dwordx4 {vr(kb(b,3),4)}, v3, {W}, s{so} offen offset:1024 {SC}"]
def attention():
    LNY, LNW = A.lab("nyq"), A.lab("now")
    A(f"{ATT}:\ns_setprio 0")
    A("s_mov_b32 s51, s7")
    srd(SO, P_OUT, OUT_BYTES)
    A(f"""s_lshl_b32 s4, s4, 1
s_bfe_u32 s5, s2, 0x10003
s_or_b32 s4, s4, s5            ; head
s_lshr_b32 s5, s2, 4           ; qb
s_mul_i32 s6, s4, 7
s_lshr_b32 s45, s6, 1
s_add_u32 s6, s6, 1
s_lshr_b32 s6, s6, 1
s_lshl_b32 s6, s6, 9
v_lshlrev_b32 v8, 4, v0
v_add_u32 v1, s6, v8
s_bitcmp1_b32 s4, 0
s_cselect_b32 s7, -2040, 0
v_add_u32 v2, 1024, v1
v_add_u32 v6, s7, v2
v_mov_b32 v4, 0x3f80
v_mov_b32_dpp v2, v6 {HI}
s_lshl_b32 s7, s4, 11
s_add_u32 s7, s7, {QK_TILE}
v_and_b32 v9, 30, v0
v_cmp_eq_u32 vcc, 26, v9
v_cmp_eq_u32 s[48:49], 28, v9
s_or_b64 vcc, vcc, s[48:49]
v_xor_b32 v9, 96, v8
v_cndmask_b32 v3, v8, v9, vcc
v_add_u32 v3, s7, v3           ; V offset
v_mov_b32 v5, 0xdddd
v_mov_b32 v7, 0
s_lshl_b32 s45, s45, 3
v_bfe_u32 v9, v0, 2, 1
v_mul_u32_u24 v10, 31, v9
v_add_u32 v10, s45, v10        ; Q column
v_add_u32 v11, 448, v10        ; K column
v_mul_u32_u24 v9, 27, v9
s_mul_i32 s46, s4, 28
s_add_u32 s46, s46, 896
v_add_u32 v9, s46, v9          ; V column
v_lshrrev_b32 v10, 7, v10
v_lshlrev_b32 v10, 11, v10
v_mov_b32_dpp v11, v9 quad_perm:[0,1,2,3] row_mask:0xa bank_mask:0xf
s_lshl_b32 s46, s5, 7
v_add_u32 v10, s46, v10
v_lshrrev_b32 v11, 7, v11
v_lshlrev_b32 v11, 11, v11
v_and_b32 v9, 3, v0
v_lshl_add_u32 v11, v9, 7, v11
s_lshl_b32 s46, s40, 9
v_add_u32 v11, s46, v11        ; K/V flag offsets of this wave's 4 token blocks
v_mov_b32_dpp v11, v10 {HI}
s_and_b32 s46, s2, {OPT["r1"]-1}
s_lshl_b32 s46, s46, 15
s_add_u32 s46, s46, {F1_OFF}
s_lshl_b32 s43, s5, 2
s_add_u32 s42, s40, s43
s_mul_i32 s42, s42, {QK_TILE}
s_add_u32 s50, s42, {Q_OFF}
s_mul_i32 s47, s40, {16*KV_REC}
s_add_u32 s47, s47, {KV_OFF}""")
    for i in range(16):
        A(f"s_add_u32 s42, s5, {i}\ns_and_b32 s42, s42, 15\ns_mul_i32 s42, s42, {KV_REC}\ns_add_u32 s{TB+i}, s42, s47")
    for j in range(4):
        A(f"""s_add_u32 s42, s40, {j}
s_and_b32 s42, s42, 3
s_lshl_b32 s42, s42, 11
s_add_u32 s42, s42, {QX}
v_add_u32 v{240+j}, s42, v8
s_add_u32 s42, s40, {j+1}
s_and_b32 s42, s42, 3
s_mul_i32 s42, s42, 12288
s_add_u32 s42, s42, {MERGE + (4096*j if j < 3 else 0)}
v_add_u32 v{244+j}, s42, v8""")
    A(f"""s_add_u32 s41, s40, 3
s_and_b32 s41, s41, 3
s_lshl_b32 s43, s5, 2
s_add_u32 s41, s41, s43        ; token tile kept by this wave
s_lshl_b32 s26, s41, 15
s_lshl_b32 s42, s4, 11
s_add_u32 s26, s26, s42
s_add_u32 s26, s26, {O_OFF}
s_lshl_b32 s27, s41, 11
s_lshl_b32 s42, s4, 7
s_add_u32 s27, s27, s42
s_add_u32 s27, s27, {FO_OFF}
s_bfe_u32 s42, s2, 0x20001
s_or_b32 s43, s43, s42
s_and_b32 s53, s2, 1
s_and_b32 s52, s53, {OPT["ro"]-1}
s_lshl_b32 s52, s52, 17
s_lshl_b32 s53, s53, 1
s_bfe_u32 s42, s2, 0x10003
s_or_b32 s53, s53, s42
s_lshl_b32 s53, s53, 2
s_add_u32 s53, s53, s40        ; n tile
s_lshl_b32 s45, s43, 15
s_lshl_b32 s44, s40, 13
s_add_u32 s45, s45, s44
s_add_u32 s45, s45, {O_OFF}
s_add_u32 s47, s45, 4096
s_mul_i32 s41, s43, {32*1792}
s_lshl_b32 s42, s53, 6
s_add_u32 s41, s41, s42
s_add_u32 s41, s41, 896
s_lshl_b32 s42, s43, 11
s_add_u32 s52, s52, s42
s_lshl_b32 s42, s40, 9
s_add_u32 s52, s52, s42
s_add_u32 s52, s52, {FO_OFF}
v_and_b32 v249, 3, v0
v_lshlrev_b32 v249, 7, v249
v_lshrrev_b32 v15, 5, v0
v_and_b32 v14, 31, v0
v_mul_u32_u24 v250, 1792, v14
v_lshl_add_u32 v250, v15, 4, v250
v_lshrrev_b32 v251, 3, v0
v_lshlrev_b32 v251, 17, v251
v_and_b32 v13, 7, v0
v_lshl_add_u32 v251, v13, 4, v251
v_bfe_u32 v9, v0, 2, 2        ; rr
v_and_b32 v10, 3, v0
v_lshrrev_b32 v12, 1, v10
v_and_b32 v10, 1, v10
v_lshl_or_b32 v10, v10, 1, v12    ; sigma(cc)
v_bfe_u32 v12, v0, 4, 1
v_lshlrev_b32 v12, 5, v12
v_lshl_or_b32 v10, v10, 3, v12
s_lshl_b32 s42, s40, 6
v_or_b32 v10, s42, v10
v_mul_u32_u24 v12, 320, v9
v_xor_b32 v252, v10, v12
v_lshl_add_u32 v252, v15, 10, v252
v_lshl_or_b32 v9, v15, 1, v9
v_mul_u32_u24 v12, 320, v9
v_xor_b32 v253, v10, v12
v_add_u32 v254, {224*256}, v252
v_add_u32 v255, {224*256}, v253
v_mov_b32 v6, v8""")
    if OPT["pw"]:
        A(f"s_sub_u32 s60, s{TAG}, {TAGC}")
        flagstore("s27", OPT["ro"], 131072, 40, "s60")
    for i in range(64): A(f"v_mov_b32 v{O+i}, 0")
    A(f"s_cmp_ge_u32 s51, 11\ns_cbranch_scc1 {A1LD}")
    if OPT["bp"]: A("s_setprio 3")
    lds_wait(C_X, 1, 1)
    for x in WL[OPT["wm"]:]: A(x)
    A(f"s_cmp_lg_u32 s51, 10\ns_cbranch_scc1 {ATT2}")
    for x in WL[:OPT["wm"]]: A(x)
    A(f"{ATT2}:\ns_setprio 3")
    stamp(5)
    A(f"s_lshl_b32 s43, s40, 11\ns_add_u32 s43, s43, {WX}\nv_add_u32 v15, s43, v8")
    spin(f"buffer_load_dword v14, v11, {W}, s46 offen {PM}", 14, OPT["sl1"])
    stamp(6)
    t0, t1 = tile_loads(0, TB), tile_loads(1, TB+1)
    A(f"""{t0[0]}
buffer_load_dwordx4 {q(0,0)}, v1, {W}, s50 offen {SC}
{t0[1]}
buffer_load_dwordx4 {q(0,1)}, v2, {W}, s50 offen {SC}""")
    lds_wait(C_LF, 4)
    if not OPT["wg"]: A("ds_write_b128 v15, v[96:99]\nds_write_b128 v15, v[100:103] offset:1024")
    A("s_waitcnt vmcnt(0)")
    stamp(4)
    A(f"""v_mov_b32_dpp v{Q+6}, v7 {HI}
v_mov_b32_dpp v{Q+7}, v7 {HI}
v_mov_b32_dpp v{kb(0,1)+2}, v4 {HI}
{MFMA} {vr(S+16,16)}, {vr(kb(0,0),4)}, {q(0,0)}, 0
{t0[2]}
{MFMA} {vr(S+16,16)}, {vr(kb(0,1),4)}, {q(0,1)}, {vr(S+16,16)}
{t0[3]}
{MFMA} {vr(S,16)}, {vr(kb(0,0),4)}, {q(0,0)}, 0
ds_write_b128 v240, {q(0,0)}""")
    for x in t1[:2]: A(x)
    s_ = S+16
    A(f"v_max3_f32 v8, v{s_}, v{s_+1}, v{s_+2}\nv_max3_f32 v9, v{s_+3}, v{s_+4}, v{s_+5}")
    for i in range(6, 14, 4): A(f"v_max3_f32 v8, v8, v{s_+i}, v{s_+i+1}\nv_max3_f32 v9, v9, v{s_+i+2}, v{s_+i+3}")
    A(f"""v_max3_f32 v8, v8, v{s_+14}, v{s_+15}
v_max_f32 v8, v8, v9
v_cvt_pk_bf16_f32 v8, -v8, v7
v_mov_b32_dpp v{Q+6}, v8 {HI}
ds_write_b128 v240, {q(0,1)} offset:1024
{MFMA} {vr(S,16)}, {vr(kb(0,1),4)}, {q(0,1)}, {vr(S,16)}""")
    lds_sync(C_Q, 4)
    for j in range(1, 4):
        A(f"ds_read_b128 {q(j,0)}, v{240+j}\nds_read_b128 {q(j,1)}, v{240+j} offset:1024")
    for x in t1[2:]: A(x)
    A("s_waitcnt lgkmcnt(0)")
    stamp(7)
    lds_add(C_G2)
    A("s_setprio 1")
    def mwrites(j):
        return ([f"ds_write_b128 v{244+j}, {vr(O+16*j+4*g,4)} offset:{1024*g}" for g in range(3)] +
                [f"ds_write_b96 v{244+j}, {vr(O+16*j+12,3)} offset:3072"])
    for n in range(64):
        i, j = n >> 2, n & 3
        if n == 32: stamp(8)
        after = [[], [], [], []]
        if n == 0:
            t2 = tile_loads(2, TB+2); after = [[t2[0], t2[1]], [t2[2], t2[3]], [], []]
        ti, k = (i + 3, j - 1) if j >= 1 else (i + 2, 3)
        if 3 <= ti < 16: after[OPT["lg"]].append(tile_loads(ti & 3, TB+ti)[k])
        m = [None]*4
        if n < 63:
            i2, j2 = (n+1) >> 2, (n+1) & 3
            if j2 == 0: after[0].append(f"v_mov_b32_dpp v{kb(i2&3,1)+2}, v4 {HI}")
            m[0] = f"{MFMA} {vr(S+16*j2,16)}, {vr(kb(i2&3,0),4)}, {q(j2,0)}, 0"
            m[1] = f"{MFMA} {vr(S+16*j2,16)}, {vr(kb(i2&3,1),4)}, {q(j2,1)}, {vr(S+16*j2,16)}"
        if j == 2 and i < 15:
            cnt = 4*(min(15, i+3) - (i+1))
            if i + 3 < 16: cnt -= 2
            after[3].append(f"s_waitcnt vmcnt({cnt})")
        if n > 0:
            i0, j0 = (n-1) >> 2, (n-1) & 3
            m[2] = f"{SMF} {vr(O+16*j0,16)}, {vr(kb(i0&3,3),4)}, {vr(S+16*j0+8,8)}, v5"
        m[3] = f"{SMF} {vr(O+16*j,16)}, {vr(kb(i&3,2),4)}, {vr(S+16*j,8)}, v5"
        if n == 62:
            w = mwrites(0); after[1] += w[0:1]; after[2] += w[1:2]; after[3] += w[2:3]; carry = w[3:]
        if n == 63:
            m[0], m[2] = m[2], None
            w = mwrites(1); after[0] += carry; after[1] += w[0:1]; after[2] += w[1:2]; after[3] += w[2:4]
        for g in range(4):
            if n == 0 and g == 3: A("s_waitcnt vmcnt(8)")
            if m[g]: A(m[g])
            for x in after[g]: A(x)
            for e in range(4):
                r = S+16*j+4*g+e
                A(f"v_exp_f32 v{r}, v{r}")
    for x in mwrites(2)[:2]: A(x)
    A(f"{SMF} {vr(O+48,16)}, {vr(kb(3,3),4)}, {vr(S+48+8,8)}, v5")
    for x in mwrites(2)[2:]: A(x)
    stamp(9)
    A("s_setprio 3")
    lds_sync(C_MERGE, 4)
    for g in range(12): A(f"ds_read_b128 {vr(S+4*g,4)}, v247 offset:{1024*g}")
    for k in range(3):
        A(f"s_waitcnt lgkmcnt({8-4*k})")
        for i in list(range(14, -2, -2)): A(f"v_pk_add_f32 {vr(OK+i,2)}, {vr(OK+i,2)}, {vr(S+16*k+i,2)}")
    A(f"""v_cmp_nle_f32 vcc, {f32(2.0**-40)}, v{OK+14}
s_mov_b64 s[48:49], vcc
v_cmp_nge_f32 vcc, {f32(2.0**40)}, v{OK+14}
s_or_b64 vcc, vcc, s[48:49]
s_cbranch_vccnz {LFB}
{LN}:
v_rcp_f32 v10, v{OK+14}
v_mov_b32 v{S+7}, 0
v_mov_b32 v11, v10""")
    for i in range(0, 14, 2):
        A(f"v_pk_mul_f32 {vr(OK+i,2)}, {vr(OK+i,2)}, v[10:11]")
        A(f"v_cvt_pk_bf16_f32 v{S+i//2}, v{OK+i}, v{OK+i+1}")
        if i == 6: A(f"buffer_store_dwordx4 {vr(S,4)}, v6, {W}, s26 offen {SC}")
    A(f"buffer_store_dwordx4 {vr(S+4,4)}, v6, {W}, s26 offen offset:1024 {SC}")
    stamp(10)
    lds_add(C_GO)
    WF = 112; BACC = 16; OB = 64; NB = 6
    assert WO == 0 and OST == 0
    def wo_frags(half):
        for n in range(16):
            hd, i = n >> 1, n & 1
            b = WF + 64*half + 4*n
            row = 28*hd + 16*i
            A(f"ds_read_b64_tr_b16 {vr(b,2)}, v{252+2*half} offset:{row*256}")
            A(f"ds_read_b64_tr_b16 {vr(b+2,2)}, v{(253 if i else 252)+2*half} offset:{(row+8)*256}")
            if n % 6 == 5: A("s_waitcnt lgkmcnt(2)")
    for i in range(4): A(f"v_mov_b32 v{40+i}, s{TAG}")
    lds_wait(C_WOA, 4)
    wo_frags(0)
    A("s_waitcnt lgkmcnt(2)")
    if OPT["fo"] == 2: wo_frags(1)
    poll = f"buffer_load_dword v14, v249, {W}, s52 offen {PM}"
    A(f"""s_mov_b64 exec, {(1<<(8*OPT["ro"]))-1}
s_waitcnt vmcnt(0)
buffer_store_dwordx4 v[40:43], v251, {W}, s27 offen {FM}
s_mov_b64 exec, -1""")
    if OPT["ts"]: stamp(2)
    if OPT["ap"]: A(poll)
    if OPT["fo"] != 2: wo_frags(1)
    lds_sync(C_WOF, 4)
    if OPT["ts"]: stamp(3)
    LR = A.lab("oready")
    if OPT["ap"]: A(f"s_waitcnt vmcnt(0)\nv_cmp_ne_u32 vcc, s{TAG}, v14\ns_cbranch_vccz {LR}")
    spin(poll, 14, OPT["sl1"])
    A(f"{LR}:")
    stamp(11)
    for half in range(2):
        A(f"s_add_u32 m0, s44, {OST+4096*half}")
        for i in range(4):
            A(f"buffer_load_dwordx4 v6, {W}, s{47 if half else 45} offen offset:{1024*i} {SC} lds")
    A("s_waitcnt vmcnt(0)")
    lds_sync(C_OST, 4)
    stampw(12)
    A(f"s_cmp_ge_u32 s53, 14\ns_cbranch_scc1 {END}")
    def rd(n): A(f"ds_read_b128 {vr(OB+4*(n%NB),4)}, v6 offset:{1024*n}")
    for n in range(NB-1): rd(n)
    for n in range(32):
        left = min(31, n+NB-2) - n
        A(f"s_waitcnt lgkmcnt({left})\n{MFMA} {vr(BACC,16)}, {vr(WF+4*n,4)}, {vr(OB+4*(n%NB),4)}, {vr(BACC,16) if n else 0}")
        if n + NB - 1 < 32: rd(n + NB - 1)
    for i in range(8):
        A(f"v_cvt_pk_bf16_f32 v{32+i}, v{BACC+2*i}, v{BACC+2*i+1}")
        if i == 3: A(f"buffer_store_dwordx4 v[32:35], v250, {sr(SO,4)}, s41 offen {OBM}")
    A(f"""buffer_store_dwordx4 v[36:39], v250, {sr(SO,4)}, s41 offen offset:32 {OBM}
s_branch {END}""")

def helper():
    SWO = 56
    T, AC2, WA, WB, Y = 16, 48, 64, 72, 80
    LNOA2, LNY2, LP2 = "L_noa2", A.lab("nyq"), A.lab("pub2")
    A(f"{HELP2}:")
    if OPT["x"] >= 4:
        lds_add(C_WOA); A(f"s_branch {END}")
    stamp(11)
    if OPT["wg"]:
        L1, L2, L3 = A.lab("tw"), A.lab("tw"), A.lab("tw")
        srd(28, P_WR, W_BYTES)
        A(f"""s_lshr_b32 s43, s2, 3
s_mul_i32 s55, s43, {64*450}
s_mul_i32 s54, s4, {4*450}
s_add_u32 s55, s55, s54
s_and_b32 s55, s55, 0xffffff80
v_bfe_u32 v1, v0, 4, 1
v_mul_u32_u24 v1, {32*450}, v1
v_and_b32 v2, 15, v0
v_lshl_add_u32 v1, v2, 7, v1
s_cmp_eq_u32 s40, 0
s_cbranch_scc1 {L1}""")
        srd(28, P_WI, W_BYTES)
        A(f"s_cmp_eq_u32 s40, 1\ns_cbranch_scc1 {L1}")
        srd(28, P_WO, WO_BYTES)
        A(f"""s_lshl_b32 s55, s43, 1
s_add_u32 s55, s55, s40
s_sub_u32 s55, s55, 2
s_mul_i32 s55, s55, {7*896}
s_and_b32 s54, s2, 1
s_lshl_b32 s54, s54, 9
s_add_u32 s55, s55, s54
v_bfe_u32 v1, v0, 2, 3
v_mul_u32_u24 v1, 896, v1
v_and_b32 v2, 3, v0
v_lshl_add_u32 v1, v2, 7, v1
{L1}:""")
        lds_wait(C_G2 if OPT["wg"] == 1 else C_X, 4 if OPT["wg"] == 1 else 1, 2)
        A("s_mov_b32 exec_hi, 0\nbuffer_load_dword v63, v1, s[28:31], s55 offen\ns_mov_b64 exec, -1")
        wsetup(True)
    A(f"""s_lshr_b32 s5, s2, 3
s_cmp_ge_u32 s5, 29
s_cbranch_scc1 {LNOA2}
v_lshrrev_b32 v8, 3, v0
v_and_b32 v9, 4, v8
v_bfe_u32 v10, v8, 1, 1
v_or_b32 v9, v9, v10
v_and_b32 v8, 1, v8
v_lshl_or_b32 v9, v8, 1, v9     ; s2 mod 8 = 4*(p>>1) + 2h + (p&1)
v_mul_u32_u24 v1, {T_ROW}, v9
v_and_b32 v8, 1, v0
v_lshl_add_u32 v1, v8, 9, v1
v_bfe_u32 v8, v0, 1, 2
v_lshl_add_u32 v1, v8, 4, v1    ; T offset
s_lshl_b32 s41, s5, 10
s_lshl_b32 s42, s4, 6
s_add_u32 s41, s41, s42
s_add_u32 s41, s41, {T_OFF}
s_mul_i32 s42, s40, {16*T_ROW}
s_add_u32 s41, s41, s42
s_mul_i32 s44, s5, 43
s_lshr_b32 s44, s44, 8          ; g5
s_lshl_b32 s45, s44, 11
s_and_b32 s46, s2, {OPT["r1"]-1}
s_lshl_b32 s46, s46, 15
s_add_u32 s46, s46, {F1_OFF + 11*2048}
v_and_b32 v9, 15, v0
v_lshlrev_b32 v9, 7, v9
v_add_u32 v9, s45, v9
v_mov_b32 v10, 0
v_mov_b32_dpp v9, v10 {HI}
s_lshl_b32 s43, s40, 11
s_add_u32 m0, s43, {TX}
s_add_u32 s47, s41, {8*T_ROW - 1024}
s_nop 0""")
    A(f"""v_lshlrev_b32 v4, 4, v0
s_cmp_eq_u32 s5, 28
s_cselect_b32 s45, 14, 0
v_lshrrev_b32 v8, 3, v14        ; u1 local
v_and_b32 v7, 7, v14            ; k local
v_lshl_add_u32 v2, v15, 3, v8
v_lshlrev_b32 v2, 4, v2
v_lshl_add_u32 v2, v7, 1, v2
s_add_u32 s42, s43, s45
s_add_u32 s42, s42, {WX}
v_add_u32 v2, s42, v2
v_mul_u32_u24 v3, {2*T2_ROW}, v15
v_lshl_add_u32 v3, v7, 4, v3
v_lshl_add_u32 v3, v8, 2, v3    ; T2 offset
v_add_u32 v8, {EX}, v4
v_add_u32 v7, s43, v8
v_lshlrev_b32 v5, 2, v0
v_add_u32 v5, {TX}, v5
s_mul_i32 s53, s40, {16*T2_ROW}
s_mul_i32 s42, s4, {T2_Q}
s_add_u32 s53, s53, s42
s_lshl_b32 s42, s5, 7
s_add_u32 s53, s53, s42
s_add_u32 s53, s53, {T2_OFF}""")
    for i in range(16): A(f"v_mov_b32 v{WA+i}, 0")
    lds_wait(C_G2, 4, 2)
    if OPT["wg"]:
        A(f"""s_add_u32 m0, s43, {WX}
s_waitcnt vmcnt(0)
buffer_load_dwordx4 v248, {sr(SX,4)}, s55 offen lds
s_add_u32 m0, s43, {WX+1024}
s_waitcnt vmcnt(0)
buffer_load_dwordx4 v248, s[56:59], s55 offen lds
s_add_u32 m0, s43, {TX}
s_waitcnt vmcnt(0)""")
    def a1poll():
        A(f"""buffer_load_dword v10, v9, {W}, s46 offen {PM}
s_waitcnt vmcnt(0)
v_cmp_ne_u32 vcc, s{TAG}, v10""")
    acquire(R_A1, a1poll, OPT["sl2"], OPT["hs"])
    stamp(6)
    A(f"""s_setprio {OPT["hp"]}
buffer_load_dwordx4 v1, {W}, s41 offen {SC} lds
buffer_load_dwordx4 v1, {W}, s47 offen offset:1024 {SC} lds
s_nop 0""")

    for j in range(8):
        A(f"ds_read_u16_d16_hi v{WA+j}, v2 offset:{(4*(j>>1)+(j&1))*64}")
    A("s_waitcnt lgkmcnt(4)")
    for j in range(8):
        A(f"ds_read_u16_d16_hi v{WB+j}, v2 offset:{(4*(j>>1)+(j&1))*64+1024}")
    A(f"s_waitcnt lgkmcnt(0)\ns_cmp_lg_u32 s5, 28\ns_cbranch_scc1 {LNY2}")
    for j in range(8): A(f"v_xor_b32 v{WA+j}, 0x80000000, v{WA+j}")
    A(f"{LNY2}:")
    A("s_waitcnt vmcnt(0)")
    lds_sync(C_T, 4, OPT["hs"])
    for m in range(0, 28, 2): A(f"ds_read2st64_b32 {vr(T+m,2)}, v5 offset0:{m} offset1:{m+1}")
    for f in range(8):
        if f == 1:
            for m in range(28, 32, 2): A(f"ds_read2st64_b32 {vr(T+m,2)}, v5 offset0:{m} offset1:{m+1}")
        A(f"s_waitcnt lgkmcnt({12 if f == 0 else 14-2*f})\n{MFMA} {vr(AC2,16)}, {vr(C+4*f,4)}, {vr(T+4*f,4)}, {vr(AC2,16) if f else 0}")
    for j in range(8):
        xr, xi = AC2+2*j, AC2+2*j+1
        A(f"""v_mul_f32 v10, v{xr}, v{WA+j}
v_mul_f32 v11, v{xr}, v{WB+j}
v_fma_f32 v10, -v{xi}, v{WB+j}, v10
v_fmac_f32 v11, v{xi}, v{WA+j}
v_cvt_pk_bf16_f32 v{Y+j}, v11, v10""")
        if j == 3: A(f"ds_write_b128 v7, {vr(Y,4)}")
    A(f"ds_write_b128 v7, {vr(Y+4,4)} offset:1024")
    lds_sync(C_EX, 4, OPT["hs"])
    for f in range(8): A(f"ds_read_b128 {vr(T+4*f,4)}, v8 offset:{1024*f}")
    for f in range(8):
        A(f"s_waitcnt lgkmcnt({7-f})\n{MFMA} {vr(AC2,16)}, {vr(C+4*f,4)}, {vr(T+4*f,4)}, {vr(AC2,16) if f else 0}")
    for j in range(8):
        A(f"""v_cvt_pk_bf16_f32 v{Y+j}, v{AC2+2*j+1}, v{AC2+2*j}
s_add_u32 s43, s53, {(4*(j>>1)+(j&1))*T2_ROW}
buffer_store_dword v{Y+j}, v3, {W}, s43 offen {SC}""")
    stamp(7)
    A("s_setprio 2")
    arrive(C_A2, LP2)
    A(f"""s_lshl_b32 s41, s44, 2
s_lshr_b32 s42, s4, 1
s_add_u32 s41, s41, s42
s_lshl_b32 s41, s41, 7
s_add_u32 s41, s41, {AT_OFF}
s_cmp_eq_u32 s44, 4
s_cselect_b32 s42, 9, 11
v_mov_b32 v12, 0
v_mov_b32 v13, 1
s_mov_b64 exec, 1
buffer_atomic_add v13, v12, {W}, s41 offen sc0 sc1
s_mov_b64 exec, -1
s_waitcnt vmcnt(0)
v_readfirstlane_b32 s60, v13
s_cmp_lg_u32 s60, s42
s_cbranch_scc1 {LP2}
v_mov_b32 v13, 1
s_mov_b32 s41, {AT_OFF + 20*128}
s_mov_b64 exec, 1
buffer_atomic_add v13, v12, {W}, s41 offen sc0 sc1
s_mov_b64 exec, -1
s_waitcnt vmcnt(0)
v_readfirstlane_b32 s60, v13
s_cmp_lg_u32 s60, 19
s_cbranch_scc1 {LP2}
s_mov_b32 s41, {F2_OFF}""")
    flagstore("s41", 8, 128)
    assert EPOCH_OFF == 0
    flagstore("0", 1, 0)
    A(f"{LP2}:")
    lds_wait(C_A2, 4, 4)
    A(f"{LNOA2}:")
    srd(SWO, P_WO, WO_BYTES)
    LW = A.lab("wo")
    A(f"""s_and_b32 s53, s2, 1
s_lshl_b32 s53, s53, 1
s_bfe_u32 s54, s2, 0x10003
s_or_b32 s53, s53, s54
s_lshl_b32 s53, s53, 8
s_mul_i32 s54, s40, {112*896}
s_add_u32 s53, s53, s54
s_mul_i32 s54, s40, {112*256}
v_lshrrev_b32 v9, 4, v0
v_and_b32 v8, 15, v0
v_lshlrev_b32 v4, 2, v9
v_xor_b32 v8, v8, v4
v_lshlrev_b32 v8, 4, v8
v_mul_u32_u24 v9, 896, v9
v_add_u32 v4, v8, v9""")
    lds_wait(C_G2, 4, 4)
    A(f"""s_mov_b32 m0, s54
s_mov_b32 s55, 28
{LW}:
{"s_sleep %d" % OPT["wos"] if OPT["wos"] > 0 else "s_waitcnt vmcnt(%d)" % -OPT["wos"]}
buffer_load_dwordx4 v4, {sr(SWO,4)}, s53 offen lds
s_add_u32 m0, m0, 1024
s_add_u32 s53, s53, {4*896}
s_sub_u32 s55, s55, 1
s_cmp_lg_u32 s55, 0
s_cbranch_scc1 {LW}
s_waitcnt vmcnt(0)""")
    lds_add(C_WOA)
    stamp(12)
    TA, NY, AC3, ZB, AC4 = 16, 48, 64, 16, 112
    A(f"""v_and_b32 v8, 15, v14
v_lshrrev_b32 v9, 4, v14
v_lshl_or_b32 v8, v8, 1, v9
v_mul_u32_u24 v2, {T2_Q}, v15
v_lshl_add_u32 v1, v8, 4, v2    ; T2 offset
v_add_u32 v2, {224*16}, v2
s_mul_i32 s41, s50, {T2_ROW}
s_add_u32 s41, s41, {T2_OFF}
s_lshl_b32 s42, s40, 9
s_add_u32 s42, s42, s41
s_and_b32 s46, s2, 7
s_lshl_b32 s46, s46, 7
s_add_u32 s46, s46, {F2_OFF}
v_mov_b32 v9, 0""")
    srd(SO, P_OUT, OUT_BYTES)
    spin(f"buffer_load_dword v10, v9, {W}, s46 offen {PM}", 10, OPT["sl3"])
    stamp(8)
    LA, LB = A.lab("a3l"), A.lab("a3l")
    for f in range(4):
        A(f"s_add_u32 s43, s42, {2*f*T2_Q}\nbuffer_load_dwordx4 {vr(TA+4*f,4)}, v1, {W}, s43 offen {SC}\ns_sleep 1")
    A(f"s_cmp_eq_u32 s40, 3\ns_cbranch_scc1 {LA}")
    for f in range(4):
        A(f"s_add_u32 s43, s42, {2*f*T2_Q + 2048}\nbuffer_load_dwordx4 {vr(TA+16+4*f,4)}, v1, {W}, s43 offen {SC}\ns_sleep 1")
    A(f"{LA}:\ns_cmp_lg_u32 s40, 0\ns_cbranch_scc1 {LB}")
    for f in range(4):
        A(f"s_add_u32 s43, s41, {2*f*T2_Q}\nbuffer_load_dwordx4 {vr(NY+4*f,4)}, v2, {W}, s43 offen {SC}")
    A(f"{LB}:")
    lds_wait(C_GO, 4, OPT["slg"])
    A("s_setprio 0")
    if OPT["x"] not in (2, 3): stamp(10)
    LN3, LZ = A.lab("a3ny"), A.lab("a3z")
    A("s_waitcnt vmcnt(0)")
    setup = f"""v_lshlrev_b32 v5, 4, v0
s_lshl_b32 s43, s40, 11
s_add_u32 s43, s43, {ZOFF}
v_add_u32 v6, s43, v5
s_mul_i32 s43, s52, 14336
s_add_u32 s43, s43, {ZOFF}
v_add_u32 v5, s43, v5
s_lshr_b32 s46, s40, 1
s_lshl_b32 s46, s46, 3
v_add_u32 v7, s46, v15          ; 8p + h
v_and_b32 v9, 7, v14
v_xor_b32 v7, v7, v9
v_lshlrev_b32 v7, 4, v7
v_lshl_or_b32 v7, v14, 8, v7
s_lshl_b32 s46, s52, 13
s_add_u32 s46, s46, {YOFF}
v_add_u32 v7, s46, v7           ; Y write address
v_lshrrev_b32 v8, 3, v0
s_lshl_b32 s46, s40, 3
v_add_u32 v8, s46, v8           ; row (s1)
v_and_b32 v9, 7, v0             ; piece
v_lshlrev_b32 v10, 1, v9
v_and_b32 v11, 7, v8
v_xor_b32 v10, v10, v11
v_lshlrev_b32 v10, 4, v10
v_lshl_or_b32 v10, v8, 8, v10
v_add_u32 v10, {YOFF}, v10
v_xor_b32 v11, 16, v10
v_mul_u32_u24 v8, {64*1792}, v8
v_lshl_add_u32 v8, v9, 4, v8    ; out offset
s_mul_i32 s41, s50, 1792
s_lshl_b32 s42, s51, 7
s_add_u32 s41, s41, s42""".split("\n")
    for tt in range(2):
        for f in range(4):
            A(f"{MFMA} {vr(AC3+32*tt,16)}, {vr(TA+16*tt+4*f,4)}, {vr(ER+4*f,4)}, {vr(AC3+32*tt,16) if f else 0}")
            for _ in range(5):
                if setup: A(setup.pop(0))
    assert not setup
    A(f"s_cmp_eq_u32 s51, 3\ns_cselect_b32 s42, 4, 8\nv_cmp_gt_u32 s[48:49], s42, v9")
    A(f"s_cmp_lg_u32 s40, 0\ns_cbranch_scc1 {LN3}\ns_mov_b32 exec_lo, 1\ns_mov_b32 exec_hi, 1")
    for i in range(16): A(f"v_mov_b32 v{TA+i}, v{NY+i}")
    A(f"s_mov_b64 exec, -1\n{LN3}:\ns_nop 1")
    def zout(tt, part):
        a = AC3+32*tt+16*part
        e = [f"v_cvt_pk_bf16_f32 v{a+i}, v{a+2*i}, v{a+2*i+1}" for i in range(8)]
        return e + [f"ds_write_b128 v6, {vr(a+4*p,4)} offset:{14336*p+8192*tt+1024*part}" for p in range(2)]
    pend = zout(0, 0)
    for tt in range(2):
        for f in range(4):
            A(f"{MFMA} {vr(AC3+32*tt+16,16)}, {vr(TA+16*tt+4*f,4)}, {vr(EI+4*f,4)}, {vr(AC3+32*tt+16,16) if f else 0}")
            for _ in range(3):
                if pend: A(pend.pop(0))
    for x in pend + zout(0, 1): A(x)
    A(f"s_cmp_eq_u32 s40, 3\ns_cbranch_scc1 {LZ}")
    for x in zout(1, 0) + zout(1, 1): A(x)
    A(f"{LZ}:")
    lds_sync(C_Z, 4)
    for i in range(14): A(f"ds_read_b128 {vr(ZB+4*i,4)}, v5 offset:{1024*i}")
    for i in range(14):
        A(f"s_waitcnt lgkmcnt({13-i})\n{MFMA} {vr(AC4,16)}, {vr(G+4*i,4)}, {vr(ZB+4*i,4)}, {vr(AC4,16) if i else 0}")
    for g in range(4):
        A(f"v_xor_b32 v9, {32*g}, v7\nds_write_b128 v9, {vr(AC4+4*g,4)}")
    lds_sync(C_Y, 4)
    A(f"""ds_read_b128 v[16:19], v10
ds_read_b128 v[20:23], v11
ds_read_b128 v[24:27], v10 offset:8192
ds_read_b128 v[28:31], v11 offset:8192
s_waitcnt lgkmcnt(0)""")
    for i in range(8): A(f"v_add_f32 v{32+i}, v{16+i}, v{24+i}\nv_sub_f32 v{40+i}, v{16+i}, v{24+i}")
    for i in range(8): A(f"v_cvt_pk_bf16_f32 v{48+i}, v{32+2*i}, v{33+2*i}")
    A(f"""s_mov_b64 exec, s[48:49]
buffer_store_dwordx4 v[48:51], v8, {sr(SO,4)}, s41 offen {OA}
buffer_store_dwordx4 v[52:55], v8, {sr(SO,4)}, s41 offen offset:448 {OA}
s_mov_b64 exec, -1
s_branch {END}""")

def fallback():
    L1, L2 = A.lab("fb1"), A.lab("fb2")
    tl = tile_loads(0, 43)
    A(f"""{LFB}:
v_mov_b32_dpp v{Q+24+6}, v7 {HI}
v_mov_b32 v12, 0xff800000
s_mov_b32 s43, {KV_OFF}
{L1}:
{tl[0]}
{tl[1]}
s_waitcnt vmcnt(0)
{MFMA} {vr(S,16)}, {vr(kb(0,0),4)}, {q(3,0)}, 0
{MFMA} {vr(S,16)}, {vr(kb(0,1),4)}, {q(3,1)}, {vr(S,16)}""")
    for i in range(0, 16, 2): A(f"v_max3_f32 v12, v12, v{S+i}, v{S+i+1}")
    A(f"""s_add_u32 s43, s43, {KV_REC}
s_cmp_lt_u32 s43, {KV_OFF+64*KV_REC}
s_cbranch_scc1 {L1}
v_mov_b32 v13, v12
v_mov_b32 v14, v12
v_permlane32_swap_b32 v13, v14
v_max_f32 v12, v13, v14""")
    for i in range(16): A(f"v_mov_b32 v{OK+i}, 0")
    A(f"s_mov_b32 s43, {KV_OFF}\n{L2}:")
    for x in tl: A(x)
    A(f"""s_waitcnt vmcnt(0)
{MFMA} {vr(S,16)}, {vr(kb(0,0),4)}, {q(3,0)}, 0
{MFMA} {vr(S,16)}, {vr(kb(0,1),4)}, {q(3,1)}, {vr(S,16)}""")
    for i in range(16): A(f"v_sub_f32 v{S+i}, v{S+i}, v12")
    for i in range(16): A(f"v_exp_f32 v{S+i}, v{S+i}")
    A(f"""{SMF} {vr(OK,16)}, {vr(kb(0,2),4)}, {vr(S,8)}, v5
{SMF} {vr(OK,16)}, {vr(kb(0,3),4)}, {vr(S+8,8)}, v5
s_nop 15
s_add_u32 s43, s43, {KV_REC}
s_cmp_lt_u32 s43, {KV_OFF+64*KV_REC}
s_cbranch_scc1 {L2}
s_branch {LN}""")

def finish():
    A(f"{END}:")
    if OPT["probe"]:
        LQ = A.lab("probe")
        stamp(13)
        A(f"""s_cmp_lg_u32 s2, {OPT["pwg"]}
s_cbranch_scc1 {FIN}
s_cmp_lg_u32 s3, {OPT["pwave"]}
s_cbranch_scc1 {FIN}
s_waitcnt lgkmcnt(0)
s_sub_u32 s56, s{64+2*OPT["probe"]}, s66
s_mul_i32 s56, s56, 10
s_add_u32 s56, s56, s90
{LQ}:
s_memrealtime s[58:59]
s_waitcnt lgkmcnt(0)
s_sub_u32 s57, s58, s56
s_cmp_lt_i32 s57, 0
s_cbranch_scc1 {LQ}""")
    elif STAMPS:
        stamp(13)
        A(f"""s_waitcnt vmcnt(0)
s_memtime s[92:93]
s_memrealtime s[94:95]
s_waitcnt lgkmcnt(0)
{"s_getreg_b32 s64, hwreg(HW_REG_XCC_ID)" if STAMPS == 1 else ""}
{"s_getreg_b32 s92, hwreg(HW_REG_HW_ID)" if STAMPS == 1 else ""}
s_mov_b32 s56, s24
s_mov_b32 s57, s25
s_mov_b32 s58, 0x2000000
s_mov_b32 s59, 0x00020000
s_mov_b64 exec, 1
s_lshl_b32 s60, s2, 3
s_add_u32 s60, s60, s3
s_lshl_b32 s60, s60, 6
s_add_u32 s60, s60, {TS_OFF}
v_mov_b32 v1, 0""")
        for i in range(16):
            A(f"v_mov_b32 v2, s{64+2*i}\nbuffer_store_dword v2, v1, s[56:59], s60 offen offset:{4*i}")
    A(f"{FIN}:\ns_endpgm")

def b1c():
    A(f"{LB1C}:\ns_setprio 2"); main_start()
    for i in range(64): A(f"v_mov_b32 v{ACC+i}, 0")
    A("s_waitcnt lgkmcnt(0)"); gettag()
    gen_pre(); b1_compute()
entry(); b1_loader()
if OPT["ord"]: b1c()
a1_dispatch_loader(); a1_gen(); a1_compute(); pub1(); helper()
if not OPT["ord"]: b1c()
attention(); fallback(); finish()

HDR = open("cdna_kernels/%s.s.ref" % NAME).read().split("; Override")[0]
txt = HDR + f"; @launch grid=(256,1,1) block=(512,1,1) lds={LDS_BYTES}\n"
txt += '.amdgcn_target "amdgcn-amd-amdhsa--gfx950"\n.text\n' + A.finish()
txt += f""".section .rodata,"a"
.p2align 6
.amdhsa_kernel {K}
  .amdhsa_next_free_vgpr 256
  .amdhsa_next_free_sgpr 102
  .amdhsa_accum_offset 256
  .amdhsa_group_segment_fixed_size 0
  .amdhsa_kernarg_size 72
  .amdhsa_user_sgpr_count 2
  .amdhsa_user_sgpr_kernarg_segment_ptr 1
  .amdhsa_system_sgpr_workgroup_id_x 1
.end_amdhsa_kernel
"""
out = args[0] if args else "cdna_kernels/%s.s" % NAME
open(out, "w").write(txt)
print("wrote", out, len(txt))
```

```python
import sys, struct
from emit import Asm
from layout import *
NAME = "concat_heads__spectral_gfnet__softmax_full_mha__prompt"
OPT = dict(stamps=0, r1=8, pf=1, sl1=1, sl2=8, sl3=16, rot=1, x=0, probe=0, pwave=4, pwg=100, pd=0, wos=-3, lp=13, slg=8, g2=1, ro=2, wm=1, tch=0, pda=0, oa=1, ob=1, gd=0, dyn=0, wsb=0, fl=1, pw=2, tw=0, sd=0, sp=0, td=0, ad=0, bn=0, gk=2, hp=2, hs=2, fo=1, ts=0, ap=0, pm=0, fm=0, al=0, pk=0, lg=2, hk=6, bp=0, ord=1, pfw=3, av=-1, rota=1, wa=0, ag=0, gdl=0, gl=1, wg=1, xt=1, map=0, y=0, ze=0, zs=0, pe=12, gp=0, bt=1, ln=1, kn=1, fs=1, pg=0, pa=0, pn=4, oe=1, vs=1, pvd=1, ad1=0, rt=3, le=1, sm=1, r4=1, w1=0, w2=4, wo2=0)
args = []
for a in sys.argv[1:]:
    if "=" in a: k, v = a.split("="); assert k in OPT, k; OPT[k] = int(v)
    else: args.append(a)
STAMPS = OPT["stamps"]
MODS = ['', 'sc1', 'nt', 'sc0 sc1']
OA, OBM = MODS[OPT['oa']], MODS[OPT['ob']]
def f32(x): return "0x%08x" % struct.unpack("<I", struct.pack("<f", x))[0]
def vr(a, n=1): return f"v{a}" if n == 1 else f"v[{a}:{a+n-1}]"
def sr(a, n=1): return f"s{a}" if n == 1 else f"s[{a}:{a+n-1}]"
P_AX, P_WR, P_WI, P_BX, P_WQKV, P_WO, P_OUT, P_DBG, P_WS = 8,10,12,14,16,18,20,22,24
MFMA = "v_mfma_f32_32x32x16_bf16"
SMF = "v_smfmac_f32_32x32x32_bf16"
SC = "sc1"
PM = ['sc1', 'sc0 sc1', 'sc1 nt', 'sc0 sc1 nt'][OPT['pm']]
FM = ['sc1', 'sc0 sc1', 'sc1 nt', 'sc0 sc1 nt'][OPT['fm']]
HI = "quad_perm:[0,1,2,3] row_mask:0xc bank_mask:0xf"
TAGC = 0x9E3779B9
TAG = 62
SWS = 36; W = sr(SWS,4)
SX, SW = 28, 32
SPIN = 200000
FOFF = 7*16384
WO, OST = 0, 0
QX, EX, TX, WX = 0, 8192, 16384, 24576
MERGE = 114688
ZOFF, YOFF = MERGE, MERGE + 28672
CNT = 162816
LDS_BYTES = 163840
(C_P1, R_KV, C_MERGE, C_OST, R_A1, C_EX, C_A2, R_A2, C_Z, C_Y, C_WOA, C_WOF, C_GO, C_G2, C_Q, C_LF, C_T, C_W, C_X, C_H) = [CNT+16*i+12 for i in range(20)]

A = Asm()
def stamp(i):
    if STAMPS: A(f"{'s_memtime' if STAMPS == 2 else 's_memrealtime'} s[{64+2*i}:{65+2*i}]")
def stampw(i):
    if STAMPS: stamp(i); A("s_waitcnt lgkmcnt(0)")
def srd(d, p, nbytes):
    A(f"s_mov_b32 s{d}, s{p}\ns_mov_b32 s{d+1}, s{p+1}\ns_mov_b32 s{d+2}, {nbytes}\ns_mov_b32 s{d+3}, 0x00020000")
def pi32(d, s, t):
    A(f"""v_and_b32 v{d}, 0x13, v{s}
v_and_b32 v{t}, 4, v{s}
v_lshl_or_b32 v{d}, v{t}, 1, v{d}
v_and_b32 v{t}, 8, v{s}
v_lshrrev_b32 v{t}, 1, v{t}
v_or_b32 v{d}, v{d}, v{t}""")
def mod7(d, t):
    A(f"s_mul_i32 s{t}, s{d}, 37\ns_lshr_b32 s{t}, s{t}, 8\ns_mul_i32 s{t}, s{t}, 7\ns_sub_u32 s{d}, s{d}, s{t}")
RB = [None]
def resident(b, o):
    RB[0] = (b, o) if b is not None else None
    if b is not None: A(f"v_mov_b32 v{b}, {CNT}\nv_mov_b32 v{o}, 1")
def cref(addr, setup=True, one=False):
    if RB[0]: return f"v{RB[0][0]}", f"v{RB[0][1]}", f" offset:{addr-CNT}"
    if setup: A(f"v_mov_b32 v12, {addr}")
    if one: A("v_mov_b32 v13, 1")
    return "v12", "v13", ""
def lds_add(addr):
    b, o, off = cref(addr, True, True)
    A(f"s_mov_b64 exec, 1\nds_add_u32 {b}, {o}{off}\ns_mov_b64 exec, -1")
def lds_wait(addr, target, sleep=0, setup=True):
    L, L2 = A.lab("lw"), A.lab("lwd")
    b, o, off = cref(addr, setup)
    A(f"""{L}:
ds_read_b32 v13, {b}{off}
s_waitcnt lgkmcnt(0)
v_readfirstlane_b32 s60, v13
s_cmp_ge_u32 s60, {target}""")
    if sleep: A(f"s_cbranch_scc1 {L2}\ns_sleep {sleep}\ns_branch {L}\n{L2}:")
    else: A(f"s_cbranch_scc0 {L}")
def lds_sync(addr, target, sleep=0, pre=None):
    L = A.lab("sy")
    b, o, off = cref(addr, True, True)
    A("s_mov_b64 exec, 1")
    if pre: A(pre)
    A(f"""ds_add_rtn_u32 v13, {b}, {o}{off}
s_mov_b64 exec, -1
s_waitcnt lgkmcnt(0)
v_readfirstlane_b32 s60, v13
s_cmp_eq_u32 s60, {target-1}
s_cbranch_scc1 {L}""")
    lds_wait(addr, target, sleep, False)
    A(f"{L}:")
def arrive(cnt, skip):
    b, o, off = cref(cnt, True, True)
    A(f"""s_mov_b64 exec, 1
s_waitcnt vmcnt(0)
ds_add_rtn_u32 v13, {b}, {o}{off}
s_mov_b64 exec, -1
s_waitcnt lgkmcnt(0)
v_readfirstlane_b32 s60, v13
s_cmp_lg_u32 s60, 3
s_cbranch_scc1 {skip}""")
def execmask(n): return f"s_bfm_b64 exec, {n}, 0"
def flagstore(soff, nrep, repstride, t=40, val=None):
    val = val or f"s{TAG}"
    if not OPT["fl"]:
        A(f"""v_mul_u32_u24 v12, {repstride}, v0
v_mov_b32 v13, {val}
s_mov_b64 exec, {(1<<nrep)-1}
buffer_store_dword v13, v12, {W}, {soff} offen {SC}
s_mov_b64 exec, -1""")
        return
    A(f"""v_lshrrev_b32 v12, 3, v0
v_mul_u32_u24 v12, {repstride}, v12
v_and_b32 v13, 7, v0
v_lshl_add_u32 v12, v13, 4, v12""")
    for i in range(4): A(f"v_mov_b32 v{t+i}, {val}")
    if nrep < 8: A(execmask(8*nrep))
    A(f"buffer_store_dwordx4 {vr(t,4)}, v12, {W}, {soff} offen {FM}")
    for _ in range(nrep//8 - 1): A(f"v_add_u32 v12, {8*repstride}, v12\nbuffer_store_dwordx4 {vr(t,4)}, v12, {W}, {soff} offen {FM}")
    if nrep < 8: A("s_mov_b64 exec, -1")
def publish(cnt, soff, nrep, repstride):
    L = A.lab("pub")
    if OPT["fl"]:
        A(f"v_lshrrev_b32 v10, 3, v0\nv_mul_u32_u24 v10, {repstride}, v10\nv_and_b32 v13, 7, v0\nv_lshl_add_u32 v10, v13, 4, v10")
        for i in range(4): A(f"v_mov_b32 v{36+i}, s{TAG}")
        arrive(cnt, L)
        if nrep < 8: A(execmask(8*nrep))
        A(f"buffer_store_dwordx4 v[36:39], v10, {W}, s{soff} offen {FM}")
        for _ in range(nrep//8 - 1): A(f"v_add_u32 v10, {8*repstride}, v10\nbuffer_store_dwordx4 v[36:39], v10, {W}, s{soff} offen {FM}")
        if nrep < 8: A("s_mov_b64 exec, -1")
    else:
        arrive(cnt, L); flagstore(f"s{soff}", nrep, repstride)
    lds_add(C_X); A(f"{L}:")
def acquire(rel, body, sleep, sleep2=1):
    LP, LD, LO, LE = A.lab("poll"), A.lab("pollok"), A.lab("pollw"), A.lab("polle")
    A(f"s_cmp_lg_u32 s40, 0\ns_cbranch_scc1 {LO}\ns_mov_b32 s61, {SPIN}\n{LP}:")
    body()
    A(f"""s_cbranch_vccz {LD}
s_sub_u32 s61, s61, 1
s_cmp_eq_u32 s61, 0
s_cbranch_scc1 {LD}
s_sleep {sleep}
s_branch {LP}
{LD}:""")
    lds_add(rel)
    A(f"s_branch {LE}\n{LO}:")
    lds_wait(rel, 1, sleep2)
    A(f"{LE}:")
def spin(load, reg, sleep, mask=None):
    if mask: load = f"{mask}\n{load}"
    LP, LD = A.lab("spin"), A.lab("spinok")
    A(f"""s_mov_b32 s61, {SPIN}
{LP}:
{load}
s_waitcnt vmcnt(0)
v_cmp_ne_u32 vcc, s{TAG}, v{reg}
s_cbranch_vccz {LD}
s_sub_u32 s61, s61, 1
s_cmp_eq_u32 s61, 0
s_cbranch_scc1 {LD}
s_sleep {sleep}
s_branch {LP}
{LD}:""")
    if mask: A("s_mov_b64 exec, -1")
def gettag():
    if OPT["wsb"]: A(f"s_add_u32 s24, s24, {OPT['wsb'] << 20}\ns_addc_u32 s25, s25, 0")
    A(f"s_load_dword s{TAG}, s[24:25], {EPOCH_OFF}")
    srd(SWS, P_WS, WS_USED)
def fixtag():
    A(f"s_waitcnt lgkmcnt(0)\ns_add_u32 s{TAG}, s{TAG}, {TAGC}")

FIN, END, ATT, PUB1, HELP2, GEN = "L_fin", "L_end", "L_att", "L_pub1", "L_help2", "L_gen"
LA1, LB1C, LB1G, LA1C, LV, LN, LFB = "L_a1", "L_b1c", "L_b1g", "L_a1c", "L_b1v", "L_norm", "L_fallback"
K = NAME + "_kernel"

def entry():
    A(f".globl {K}\n.p2align 8\n.type {K},@function\n{K}:")
    A(f"""s_cmp_ge_u32 s2, 256
s_cbranch_scc1 {FIN}
s_load_dwordx16 s[8:23], s[0:1], 0
s_load_dwordx2 s[24:25], s[0:1], 64
v_lshrrev_b32 v1, 6, v0
v_readfirstlane_b32 s3, v1
v_and_b32 v0, 63, v0""")
    if STAMPS:
        for i in range(2, 14): A(f"s_mov_b32 s{64+2*i}, 0")
        A("s_memtime s[64:65]\ns_memrealtime s[66:67]")
    if OPT["pf"]:
        L = A.lab("pf"); LP = A.lab("pc")
        A(f"""{"s_cmp_lg_u32 s3, 3" if OPT["pfw"] == 3 else "s_cmp_ge_u32 s3, %d" % OPT["pfw"]}
s_cbranch_scc1 {L}
s_getpc_b64 s[56:57]
{LP}:
s_lshr_b32 s58, s2, 3
s_add_u32 s58, s58, s3
s_and_b32 s58, s58, 3
s_lshl_b32 s58, s58, 13
v_lshlrev_b32 v1, 7, v0
v_add_u32 v1, s58, v1
v_min_u32 v1, {FIN}-{LP}, v1
global_load_dword v63, v1, s[56:57]
{L}:""")
    A(f"""s_and_b32 s4, s2, 7
s_lshr_b32 s5, s2, 3
s_lshl_b32 s6, s4, 1
s_and_b32 s7, s5, 1
s_or_b32 s6, s6, s7
s_lshr_b32 s7, s5, 1           ; column group 0..10 (B1), 11..15 (A1)
s_and_b32 s40, s3, 3
s_cmp_ge_u32 s7, 11
s_cbranch_scc1 {LA1}""")
    if OPT["map"] == 1:
        A("""s_and_b32 s26, s4, 1
s_mul_i32 s26, s26, 6
s_lshr_b32 s7, s5, 2
s_add_u32 s7, s7, s26
s_and_b32 s26, s6, 12
s_and_b32 s27, s5, 3
s_or_b32 s26, s26, s27
s_cmp_lt_u32 s5, 20
s_cselect_b32 s6, s26, s6
s_cselect_b32 s7, s7, 5""")
    if OPT["map"] == 2:
        A("""s_and_b32 s26, s4, 3
s_mul_i32 s26, s26, 22
s_add_u32 s26, s26, s5
s_lshr_b32 s7, s26, 3
s_and_b32 s26, s26, 7
s_and_b32 s6, s6, 8
s_or_b32 s6, s6, s26""")
    A(f"s_cmp_lt_u32 s3, 4\ns_cbranch_scc1 {LB1C}")

def xaddr(rs, d=2):
    A(f"""v_lshrrev_b32 v17, 3, v0
v_and_b32 v14, 7, v0
v_lshrrev_b32 v15, 4, v0
v_xor_b32 v14, v14, v15
v_lshlrev_b32 v14, 4, v14
v_xor_b32 v16, 64, v14
v_mul_u32_u24 v17, {rs}, v17
v_add_u32 v{d}, v17, v14
v_add_u32 v{d+1}, v17, v16
v_add_u32 v{d+1}, {8*rs-1024}, v{d+1}
v_add_u32 v{d+2}, {2*(8*rs-1024)}, v{d}
v_add_u32 v{d+3}, {2*(8*rs-1024)}, v{d+1}""")
def b1_loader():
    A("s_setprio 3")
    if OPT["rot"] == 2: A("s_mov_b32 s26, s7")
    elif OPT["rot"] == 3: A("s_and_b32 s26, s6, 1\ns_mul_i32 s26, s26, 3\ns_add_u32 s26, s26, s7")
    elif OPT["rot"] == 4: A("s_and_b32 s26, s6, 1\ns_mul_i32 s26, s26, 3")
    elif OPT["rot"] == 6: A("s_lshl_b32 s26, s6, 1\ns_add_u32 s26, s26, s7")
    elif OPT["rot"] == 7: A("s_mul_i32 s26, s7, 3\ns_add_u32 s26, s26, s6")
    elif OPT["rot"] == 5: A("s_lshr_b32 s26, s6, 1\ns_add_u32 s26, s26, s7")
    else: A("s_add_u32 s26, s6, s7")
    mod7(26, 27)
    if not OPT["rot"]: A("s_mov_b32 s26, 0")
    xaddr(896)
    A(f"""v_and_b32 v14, 15, v0
v_lshlrev_b32 v16, 2, v15
v_xor_b32 v14, v14, v16
v_lshlrev_b32 v14, 4, v14
v_mul_u32_u24 v15, 2688, v15
v_add_u32 v6, v14, v15
v_add_u32 v7, {4*2688-1024}, v6
v_add_u32 v8, {2*(4*2688-1024)}, v6
v_add_u32 v9, {3*(4*2688-1024)}, v6
s_lshl_b32 s41, s6, 2
s_add_u32 s47, s41, s40          ; token tile of this wave
s_mul_i32 s41, s47, {32*896}     ; x base
s_mul_i32 s42, s40, {16*2688}
s_lshl_b32 s43, s7, 8
s_add_u32 s42, s42, s43          ; w base
s_lshl_b32 s44, s40, 12          ; lds base of this wave
s_waitcnt lgkmcnt(0)""")
    srd(SX, P_BX, X_BYTES); srd(SW, P_WQKV, WQKV_BYTES)
    def issue():
        A(f"""s_lshl_b32 s45, s26, 7
s_add_u32 s45, s45, s41
s_mul_i32 s46, s26, {64*2688}
s_add_u32 s46, s46, s42
s_mov_b32 m0, s44""")
        for i in range(4): A(f"buffer_load_dwordx4 v{2+i}, {sr(SX,4)}, s45 offen offset:{1024*i} lds")
        A(f"s_add_u32 m0, s44, 16384")
        for i in range(4): A(f"buffer_load_dwordx4 v{6+i}, {sr(SW,4)}, s46 offen offset:{1024*i} lds")
        A("""s_add_u32 s26, s26, 1
s_cmp_eq_u32 s26, 7
s_cselect_b32 s26, 0, s26
s_add_u32 s44, s44, 0x8000
s_and_b32 s44, s44, 0x1ffff""")
    LL = A.lab("b1ld")
    issue(); gettag()
    A(f"s_mov_b32 s48, 6\n{LL}:")
    if OPT["x"] != 2: issue()
    else: A("s_waitcnt vmcnt(0)")
    A("s_waitcnt vmcnt(8)")
    if STAMPS:
        LX = A.lab("st"); A(f"s_cmp_lg_u32 s48, 6\ns_cbranch_scc1 {LX}"); stamp(2); A(f"{LX}:")
    A(f"""s_barrier
s_sub_u32 s48, s48, 1
s_cmp_lg_u32 s48, 0
s_cbranch_scc1 {LL}""")
    fixtag()
    wsetup()
    pass
    A("s_waitcnt vmcnt(0)")
    stamp(3)
    A(f"s_barrier\ns_cmp_eq_u32 s7, 10\ns_cbranch_scc1 {ATT}")
    for x in WL[:OPT["wm"]]: A(x)
    A(f"s_branch {ATT}")

WL = [] if OPT["wg"] else [f"buffer_load_dwordx4 v[96:99], v248, {sr(SX,4)}, s55 offen", f"buffer_load_dwordx4 v[100:103], v248, s[56:59], s55 offen"]
def wsetup(force=False):
    if OPT["wg"] and not force: return
    LNY = A.lab("nyq")
    srd(SX, P_WR, W_BYTES); srd(56, P_WI, W_BYTES)
    A(f"""s_lshr_b32 s54, s2, 3          ; ko
s_mul_i32 s55, s4, {4*450}
s_mul_i32 s43, s40, {512*450}
s_add_u32 s55, s55, s43
s_lshl_b32 s43, s54, 4
s_add_u32 s55, s55, s43
s_cmp_lg_u32 s54, 28
s_cbranch_scc1 {LNY}""")
    srd(SX, P_WI, W_BYTES); srd(56, P_WR, W_BYTES)
    A(f"""s_sub_u32 s55, s55, 14
{LNY}:
v_lshrrev_b32 v9, 2, v0
v_and_b32 v10, 3, v0
v_lshl_add_u32 v9, v9, 5, v10
v_mul_u32_u24 v248, 450, v9""")
A1LD, ATT2 = "L_a1ld", "L_att2"
SXA = SX
def a1_dispatch_loader():
    A(f"""{LA1}:
s_sub_u32 s5, s7, 11           ; g5
s_mul_i32 s26, s5, 3
s_lshr_b32 s26, s26, 1         ; e0 in 0,1,3,4,6""")
    if not OPT["rota"]: A("s_mov_b32 s26, 0")
    A(f"s_cmp_lt_u32 s3, 4\ns_cbranch_scc1 {LA1C}")
    A(f"""s_lshl_b32 s96, s6, 2
s_add_u32 s96, s96, s40
s_mul_i32 s96, s96, 896
s_lshl_b32 s97, s40, 12
s_lshl_b32 s98, s26, 2
s_add_u32 s98, s98, 3
s_lshl_b32 s99, s6, 7
s_add_u32 s99, s99, {GO_OFF}""")
    mod7(98, 27)
    A("s_waitcnt lgkmcnt(0)")
    if OPT["xt"]:
        srd(SX, P_AX, X_BYTES)
        A(f"""s_lshl_b32 s44, s5, 7
s_add_u32 s43, s96, s44
s_cmp_lt_u32 s5, 2
s_cselect_b32 s44, 640, 0
v_lshrrev_b32 v1, 5, v0
v_mul_u32_u24 v1, s44, v1
v_and_b32 v2, 31, v0
v_mul_u32_u24 v2, {64*896}, v2
v_add_u32 v1, v1, v2
buffer_load_dword v104, v1, {sr(SX,4)}, s43 offen""")
    gettag()
    wsetup()
    if not OPT["wa"]:
        for x in WL: A(x)
    A(f"s_mov_b32 s0, s{P_AX}\ns_mov_b32 s1, s{P_AX+1}")
    fixtag()
    A(f"s_branch {ATT}")
    A(f"{A1LD}:\ns_setprio 3\nv_mov_b32 v9, 0")
    xaddr(64*896, 48)
    if OPT["wa"] == 2:
        for x in WL: A(x)
    srd(SX, 0, X_BYTES)
    spin(f"buffer_load_dword v14, v9, {W}, s99 offen {PM}", 14, 2)
    stamp(2)
    LL = A.lab("a1ld")
    A(f"""s_mov_b32 s100, 0
{LL}:
s_lshl_b32 s42, s98, 7
s_add_u32 s42, s42, s96
s_lshl_b32 s43, s98, 14
s_add_u32 m0, s97, s43""")
    for i in range(4): A(f"buffer_load_dwordx4 v{48+i}, {sr(SXA,4)}, s42 offen offset:{1024*i} lds")
    A(f"""s_add_u32 s98, s98, 4
s_sub_u32 s43, s98, 7
s_cmp_ge_u32 s98, 7
s_cselect_b32 s98, s43, s98
s_add_u32 s100, s100, 1
s_cmp_lt_u32 s100, 3
s_cbranch_scc1 {LL}
s_waitcnt vmcnt(4)
s_barrier
s_cmp_lt_u32 s100, 7
s_cbranch_scc1 {LL}
s_waitcnt vmcnt(0)""")
    stamp(3)
    A("s_barrier")
    if OPT["pa"] == 1: lds_wait(C_W, 4, 1)
    if OPT["pa"] == 2: lds_wait(C_LF, 4, 1)
    if OPT["pa"] == 3: lds_wait(C_P1, 1, 1)
    A(f"s_branch {ATT2}")

def main_start():
    A(f"""v_lshlrev_b32 v1, 4, v0
v_add_u32 v1, {CNT+12}, v1
v_mov_b32 v2, 0
ds_write_b32 v1, v2""")

C, ER, EI, G, GT = 128, 160, 176, 192, 16
def tlbwarm():
    g = OPT["tw"]
    if not g: return
    L = A.lab("tw")
    n = (WS_USED >> g) // 32 + 1
    A(f"""s_cmp_lg_u32 s3, 2
s_cbranch_scc1 {L}
s_lshr_b32 s60, s2, 3
s_mul_i32 s60, s60, {n << g}
v_lshlrev_b32 v12, {g}, v0""")
    for i in range(0, n, 64):
        k = min(64, n - i)
        if k < 64: A(f"s_bfm_b64 exec, {k}, 0")
        A(f"buffer_load_dword v255, v12, {W}, s60 offen offset:64")
        if i + 64 < n: A(f"s_add_u32 s60, s60, {64 << g}")
    A("s_mov_b64 exec, -1")
    m = (W_BYTES >> g) // 32 + 1
    srd(28, P_WR, W_BYTES); srd(32, P_WI, W_BYTES)
    A(f"""s_lshr_b32 s60, s2, 3
s_mul_i32 s60, s60, {m << g}
s_bfm_b64 exec, {m}, 0
buffer_load_dword v255, v12, s[28:31], s60 offen
buffer_load_dword v255, v12, s[32:35], s60 offen
s_mov_b64 exec, -1
{L}:""")
def prewrite():
    tlbwarm()
    if OPT["pw"] < 2: return
    L = A.lab("pw")
    A(f"""s_cmp_lg_u32 s3, 3
s_cbranch_scc1 {L}
s_sub_u32 s60, s{TAG}, {TAGC}
s_lshl_b32 s61, s7, 4
s_add_u32 s61, s61, s6
s_lshl_b32 s61, s61, 7
s_add_u32 s61, s61, {F1_OFF}""")
    flagstore("s61", OPT["r1"], 32768, 40, "s60")
    A(f"{L}:")
def touches(which):
    if "x" in which:
        srd(28, P_AX, X_BYTES)
        A(f"""s_lshl_b32 s43, s6, 2
s_add_u32 s43, s43, s3
s_mul_i32 s43, s43, 896
s_lshl_b32 s44, s5, 7
s_add_u32 s43, s43, s44
s_cmp_lt_u32 s5, 2
s_cselect_b32 s44, 640, 0
v_mul_u32_u24 v1, s44, v15
v_mul_u32_u24 v7, {64*896}, v14
v_add_u32 v1, v1, v7
buffer_load_dword v63, v1, s[28:31], s43 offen""")
    A(f"""s_lshr_b32 s45, s2, 3
s_sub_u32 s45, s45, 22
s_lshl_b32 s45, s45, 2
s_add_u32 s45, s45, s3""")
    if "w" in which:
        LT = A.lab("tch")
        srd(28, P_WR, W_BYTES)
        A(f"s_bitcmp0_b32 s45, 0\ns_cbranch_scc1 {LT}")
        srd(28, P_WI, W_BYTES)
        A(f"""{LT}:
s_lshr_b32 s43, s45, 1
s_mul_i32 s43, s43, {128*450}
s_mul_i32 s44, s4, {4*450}
s_add_u32 s43, s43, s44
s_and_b32 s43, s43, 0xffffff80
v_lshrrev_b32 v1, 4, v0
v_mul_u32_u24 v1, {32*450}, v1
v_and_b32 v7, 15, v0
v_lshl_add_u32 v1, v7, 7, v1
buffer_load_dword v63, v1, s[28:31], s43 offen""")
    if "o" in which:
        srd(28, P_WO, WO_BYTES)
        A(f"""s_mul_i32 s43, s45, {12*896}
s_and_b32 s44, s2, 1
s_lshl_b32 s44, s44, 9
s_add_u32 s43, s43, s44
v_lshrrev_b32 v1, 2, v0
v_mul_u32_u24 v1, 896, v1
v_and_b32 v7, 3, v0
v_lshl_add_u32 v1, v7, 7, v1
s_mov_b32 exec_hi, 0xffff
buffer_load_dword v63, v1, s[28:31], s43 offen
s_mov_b64 exec, -1""")
TCH = {0: ("", ""), 1: ("x", "wo"), 2: ("", "xwo"), 3: ("xwo", ""), 4: ("", "x"), 5: ("x", ""), 6: ("xw", "o"), 7: ("w", "xo")}[OPT["tch"]]
def gen_common():
    A(f"""v_and_b32 v14, 31, v0
v_lshrrev_b32 v15, 5, v0
s_lshr_b32 s50, s2, 5
s_lshl_b32 s50, s50, 3
s_or_b32 s50, s50, s4
s_bfe_u32 s51, s2, 0x20003       ; d quarter
s_and_b32 s52, s40, 1            ; parity e""")
def rot_gen(n, nblk, step, base, mult, dmult, out, scale=None):
    c, sn, t = GT, GT+8, GT+16
    A(f"v_mul_f32 v11, {f32(float(dmult))}, v{step}")
    for j in range(n): A(f"v_fmamk_f32 v{t+j}, v{step}, {f32(float(mult[j]))}, v{base}")
    A("v_cos_f32 v10, v11\nv_sin_f32 v12, v11")
    for j in range(n): A(f"v_cos_f32 v{c+j}, v{t+j}\nv_sin_f32 v{sn+j}, v{t+j}")
    A("v_mov_b32 v11, v10\nv_mov_b32 v13, v12")
    if scale is not None:
        for j in range(n): A(f"v_mul_f32 v{c+j}, {f32(scale)}, v{c+j}\nv_mul_f32 v{sn+j}, {f32(scale)}, v{sn+j}")
    for b in range(nblk):
        out(b)
        if b + 1 < nblk:
            for j in range(0, n, 2): A(f"v_pk_mul_f32 {vr(t+j,2)}, {vr(sn+j,2)}, v[12:13]")
            for j in range(0, n, 2): A(f"v_pk_mul_f32 {vr(sn+j,2)}, {vr(sn+j,2)}, v[10:11]")
            for j in range(0, n, 2): A(f"v_pk_fma_f32 {vr(sn+j,2)}, {vr(c+j,2)}, v[12:13], {vr(sn+j,2)}")
            for j in range(0, n, 2): A(f"v_pk_fma_f32 {vr(c+j,2)}, {vr(c+j,2)}, v[10:11], {vr(t+j,2)} neg_lo:[0,0,1] neg_hi:[0,0,1]")
def gen_c():
    A(f"""v_lshrrev_b32 v8, 1, v14
s_lshl_b32 s43, s40, 4
v_add_u32 v8, s43, v8
v_cvt_f32_u32 v8, v8
v_mul_f32 v8, {f32(1/64)}, v8    ; step = u2/64
v_and_b32 v9, 1, v14
v_cvt_f32_u32 v9, v9
v_mul_f32 v9, {f32(0.25)}, v9
v_lshlrev_b32 v10, 1, v15
v_cvt_f32_u32 v10, v10
v_fma_f32 v9, v8, v10, v9        ; base""")
    def out(f):
        for p in range(4): A(f"v_cvt_pk_bf16_f32 v{C+4*f+p}, v{GT+p}, v{GT+8+p}")
    rot_gen(4, 8, 8, 9, [0,1,4,5], 8, out)
def gen_e():
    A(f"""v_lshlrev_b32 v8, 6, v14
v_add_u32 v8, s50, v8
v_cvt_f32_u32 v8, v8
v_mul_f32 v8, {f32(1/2048)}, v8
v_lshlrev_b32 v9, 2, v15
v_cvt_f32_u32 v9, v9
v_mul_f32 v9, v8, v9""")
    def out(f):
        for p in range(4): A(f"v_cvt_pk_bf16_f32 v{ER+4*f+p}, v{GT+p}, -v{GT+8+p}")
        for p in range(4): A(f"v_cvt_pk_bf16_f32 v{EI+4*f+p}, v{GT+8+p}, v{GT+p}")
    rot_gen(4, 4, 8, 9, [0,1,2,3], 8, out, 2.0/(2048*448))
def gen_g():
    A(f"""s_lshr_b32 s44, s40, 1
s_lshl_b32 s45, s51, 1
s_add_u32 s44, s44, s45         ; d tile
s_lshl_b32 s46, s44, 5
v_add_u32 v8, s46, v14          ; d
v_cvt_f32_u32 v8, v8
v_mul_f32 v8, {f32(1/448)}, v8
v_lshlrev_b32 v9, {2 if OPT["kn"] else 3}, v15
v_add_u32 v9, s52, v9
v_cmp_eq_u32 vcc, 0, v9
v_cvt_f32_u32 v9, v9
v_mul_f32 v9, v8, v9""")
    def out(t):
        for j in range(4): A(f"v_cvt_pk_bf16_f32 v{G+8*t+j}, v{GT+2*j}, v{GT+2*j+1}")
        for j in range(4): A(f"v_cvt_pk_bf16_f32 v{G+8*t+4+j}, -v{GT+8+2*j}, -v{GT+9+2*j}")
    rot_gen(8, 7, 8, 9, [(8*(j>>1)+2*(j&1) if OPT["kn"] else 16*(j>>2)+2*(j&3)) for j in range(8)], 32, out)
    A(f"""v_and_b32 v8, 0xffff0000, v{G}
v_or_b32 v8, 0x3f00, v8
v_and_b32 v10, 1, v14
v_lshlrev_b32 v10, 15, v10
v_cndmask_b32 v{G}, v{G}, v8, vcc
v_and_b32 v8, 0xffff, v8
v_and_b32 v9, 0xffff0000, v{G+4}
v_or3_b32 v9, v9, v10, v8
v_cndmask_b32 v{G+4}, v{G+4}, v9, vcc""")
def gen_pre():
    gen_common()

ACC = 64
def acc(a, b): return ACC + 32*a + 16*b
LONES = "L_ones"
def b1_body(vtype):
    if vtype: pi32(48, 14, 49)
    else: A("v_mov_b32 v48, v14")
    A(f"""v_lshrrev_b32 v49, 1, v48
v_and_b32 v49, 7, v49
v_xor_b32 v49, v49, v15
v_lshlrev_b32 v49, 4, v49
v_lshl_or_b32 v50, v48, 7, v49
s_lshl_b32 s43, s41, 13
v_add_u32 v52, s43, v50
v_xor_b32 v53, 32, v52
v_xor_b32 v54, 64, v52
v_xor_b32 v55, 96, v52""")
    A(f"""v_bfe_u32 v48, v0, 2, 2        ; rr
v_and_b32 v49, 3, v0           ; cc""")
    if not vtype:
        A("""v_lshrrev_b32 v50, 1, v49
v_and_b32 v49, 1, v49
v_lshl_or_b32 v49, v49, 1, v50 ; sigma(cc)""")
    A(f"""v_bfe_u32 v50, v0, 4, 1        ; colhalf
v_lshlrev_b32 v50, 5, v50
v_lshl_or_b32 v50, v49, 3, v50
s_lshl_b32 s43, s42, 7
v_or_b32 v50, s43, v50
v_lshlrev_b32 v51, 6, v48
v_xor_b32 v50, v50, v51
v_lshl_add_u32 v51, v15, 3, v48 ; 8h+rr
v_lshl_or_b32 v56, v51, 8, v50
v_add_u32 v56, 16384, v56
v_xor_b32 v57, 64, v56""")
    A(f"""s_lshl_b32 s46, s6, 2
s_lshl_b32 s47, s41, 1
s_add_u32 s46, s46, s47
s_lshl_b32 s47, s7, 2
s_lshl_b32 s48, s42, 1
s_add_u32 s47, s47, s48""")
    if not vtype:
        A(f"""s_lshl_b32 s48, s47, 11
v_lshlrev_b32 v2, 4, v0
s_cmp_ge_u32 s47, 14
s_cselect_b32 s49, {KV_REC - QK_TILE}, 0
s_cselect_b32 s43, {KV_OFF - Q_OFF - 14*2048}, 0
s_cselect_b32 s54, 1.0, {f32(QSCALE)}
s_mov_b32 s55, s54
s_add_u32 s49, s49, {QK_TILE}
s_mul_i32 s46, s46, s49
s_add_u32 s46, s46, s48
s_add_u32 s46, s46, s43
s_add_u32 s46, s46, {Q_OFF}
s_add_u32 s49, s46, s49""")
    else:
        A(f"""s_sub_u32 s45, s7, 7
s_lshl_b32 s45, s45, 7
s_add_u32 s45, s45, 27
s_mul_i32 s45, s45, 2341
s_lshr_b32 s45, s45, 16
v_lshrrev_b32 v10, 4, v0
v_add_u32 v10, s45, v10
v_lshrrev_b32 v11, 2, v0
v_lshlrev_b32 v11, 9, v11
s_lshl_b32 s45, s45, 11
v_add_u32 v11, s45, v11
v_cmp_gt_u32 s[56:57], 16, v10
v_and_b32 v4, 3, v0
v_lshl_or_b32 v4, v4, 4, v11
s_cmp_lt_u32 s7, 9
s_cselect_b32 s58, 0xffff, 0
s_mov_b32 s59, 0
s_lshl_b32 s54, s6, 2
s_add_u32 s54, s54, s40
s_mul_i32 s54, s54, {KV_REC}
s_add_u32 s54, s54, {KV_OFF + QK_TILE + 28*16}
s_add_u32 s55, s54, 8192
v_and_b32 v58, 1, v0
v_add_u32 v58, -1, v58
v_and_b32 v58, 0x3f803f80, v58
v_mov_b32 v59, v58
v_mov_b32 v60, v58
v_mov_b32 v61, v58
s_sub_u32 s47, s47, 28
s_mul_i32 s46, s46, {KV_REC}
s_add_u32 s46, s46, {KV_OFF + QK_TILE}
s_add_u32 s49, s46, {KV_REC}
s_lshl_b32 s48, s47, 5""")
        for b in range(2):
            A(f"""v_add_u32 v48, s48, v14
v_add_u32 v48, {32*b}, v48
v_mul_u32_u24 v49, 2341, v48
v_lshrrev_b32 v49, 16, v49     ; head
v_mul_u32_u24 v50, 28, v49
v_sub_u32 v48, v48, v50        ; d
v_lshlrev_b32 v48, 4, v48
v_lshl_or_b32 v48, v15, 9, v48
v_lshl_or_b32 v{2+b}, v49, 11, v48""")
    def ones(label):
        LO = A.lab("ones")
        if label: A(f"{LONES}:")
        A(f"""s_mov_b64 exec, s[56:57]
buffer_store_dwordx4 v[58:61], v4, {W}, s54 offen {SC}
s_mov_b64 exec, s[58:59]
s_cbranch_execz {LO}
buffer_store_dwordx4 v[58:61], v4, {W}, s55 offen {SC}
{LO}:
s_mov_b64 exec, -1""")
    SETS = (16, 32, 192, 208)
    def rx(kap, p, a): return f"ds_read_b128 {vr(SETS[p]+4*a,4)}, v{6+kap} offset:{4096*a}"
    def rw(kap, p, b): return [f"ds_read_b64_tr_b16 {vr(SETS[p]+8+4*b+2*u,2)}, v{10+b} offset:{(16*kap+4*u)*256}" for u in range(2)]
    def rdlist(kap, p): return [rx(kap,p,0)] + rw(kap,p,0) + rw(kap,p,1) + [rx(kap,p,1)]
    def setaddr(): return [f"v_add_u32 v{6+i}, s44, v{52+i}" for i in range(6)]
    def mf(a, b, p):
        x, w = vr(SETS[p]+4*a,4), vr(SETS[p]+8+4*b,4)
        o = (x, w) if vtype else (w, x)
        A(f"{MFMA} {vr(acc(a,b),16)}, {o[0]}, {o[1]}, {vr(acc(a,b),16)}")
    gb = []
    def fill(n):
        for _ in range(n):
            if gb:
                for x in gb.pop(0): A(x)
    def kstep(p, r, f):
        A("s_waitcnt lgkmcnt(3)")
        mf(0,0,p)
        for x in r[0:3]: A(x)
        fill(f[0])
        A("s_waitcnt lgkmcnt(4)")
        mf(0,1,p)
        for x in r[3:5]: A(x)
        fill(f[1])
        A("s_waitcnt lgkmcnt(5)")
        mf(1,0,p)
        for x in r[5:6]: A(x)
        fill(f[2])
        mf(1,1,p)
        if OPT["bn"]: A(f"s_nop {OPT['bn']}")
        fill(f[3])
    LL = A.lab("b1loop")
    if vtype:
        LI, LI2 = A.lab("idle"), A.lab("idle")
        A(f"s_cmp_lt_u32 s47, 14\ns_cbranch_scc1 {LI}")
        prewrite()
        for n in range(7):
            A("s_barrier")
            if n == OPT["gk"]:
                A(f"s_cmp_lg_u32 s3, 2\ns_cbranch_scc1 {LI2}\ns_lshl_b32 s61, s6, 7\ns_add_u32 s61, s61, {GO_OFF}")
                flagstore("s61", 1, 0)
                A(f"{LI2}:")
        if OPT["oe"]: ones(False)
        A(f"s_branch {LONES}\n{LI}:")
    A("s_mov_b32 s44, 0\ns_mov_b32 s45, 0")
    for x in setaddr(): A(x)
    prewrite()
    stampw(9)
    A("s_barrier")
    stampw(2)
    for x in rdlist(0, 0): A(x)
    A(f"{LL}:")
    kstep(0, rdlist(1, 1), (0,1,2,3))
    kstep(1, rdlist(2, 0), (0,1,2,3))
    A("s_add_u32 s44, s44, 0x8000\ns_and_b32 s44, s44, 0x1ffff\ns_add_u32 s45, s45, 1")
    kstep(0, rdlist(3, 1), (1,1,2,0))
    for x in setaddr(): A(x)
    A("s_barrier")
    kstep(1, rdlist(0, 0), (1,1,1,1))
    assert not gb
    A(f"s_cmp_lt_u32 s45, 6\ns_cbranch_scc1 {LL}")
    if OPT["x"] in (2, 3): A("s_memtime s[84:85]\ns_waitcnt lgkmcnt(0)")
    rd = []
    for kap in (1,2,3): rd += [rx(kap,kap,0)] + rw(kap,kap,0)
    for kap in (1,2,3): rd += rw(kap,kap,1)
    for kap in (1,2,3): rd += [rx(kap,kap,1)]
    order = [rdlist(0,0)[i] for i in range(6)] + rd
    def epi(a, b):
        e = []; t = acc(a,b)
        for i in range(8):
            if not vtype:
                if OPT["pk"] or (a, b) == (1, 1): e.append(f"v_pk_mul_f32 {vr(t+2*i,2)}, {vr(t+2*i,2)}, s[54:55]")
                else: e += [f"v_mul_f32 v{t+2*i}, s54, v{t+2*i}", f"v_mul_f32 v{t+2*i+1}, s54, v{t+2*i+1}"]
            e.append(f"v_cvt_pk_bf16_f32 v{t+i}, v{t+2*i}, v{t+2*i+1}" if OPT["x"] != -10 else f"v_mov_b32 v{t+i}, 0")
            if i & 3 == 3:
                if OPT["sd"] and (a, b, i) == (0, 0, 3): e.append(f"s_sleep {OPT['sd']}")
                if OPT["sp"]: e.append(f"s_sleep {OPT['sp']}")
                if vtype: e.append(f"buffer_store_dwordx4 {vr(t+i-3,4)}, v{2+b}, {W}, s{46 if a==0 else 49} offen offset:{1024*(i>>2)} {SC}")
                else: e.append(f"buffer_store_dwordx4 {vr(t+i-3,4)}, v2, {W}, s{46 if a==0 else 49} offen offset:{2048*b+1024*(i>>2)} {SC}")
        return e
    issued = 6; pend = []; lastw = None
    tiles = [(a,b) for a in range(2) for b in range(2)]
    seq = [(a,b,0) for a,b in tiles] + [(a,b,k) for a,b in tiles for k in (1,2,3)]
    for m, (a, b, kap) in enumerate(seq):
        need = max(order.index(x) for x in [rx(kap,kap,a)] + rw(kap,kap,b)) + 1
        while issued < need: A(order[issued]); issued += 1
        if lastw is None or need > lastw:
            A(f"s_waitcnt lgkmcnt({issued - need})"); lastw = need
        mf(a, b, kap)
        for _ in range(3):
            if issued < len(order) and issued - lastw < 14: A(order[issued]); issued += 1
        if m in (8, 11, 14): pend += epi(*tiles[(m-8)//3])
        if m == 5 and vtype and OPT["oe"]: ones(False)
        if m == 15: stamp(3)
        for _ in range((6 if OPT["pk"] else 8) if not vtype else 4):
            if pend: A(pend.pop(0))
    for x in pend + epi(1,1): A(x)
    if vtype:
        if OPT["oe"]: A(f"{LONES}:")
        else: ones(True)
    lds_add(C_LF)
    A(f"s_branch {PUB1}")
def b1_compute():
    A(f"""s_and_b32 s41, s3, 1           ; wr
s_lshr_b32 s42, s3, 1          ; wc""")
    fixtag()
    A(f"s_cmp_ge_u32 s7, 7\ns_cbranch_scc1 {LV}")
    b1_body(False)
    A(f"{LV}:")
    b1_body(True)

def a1_gen():
    LF, LE = A.lab("fgen"), A.lab("fend")
    A(f"{LA1C}:\ns_setprio 2")
    if OPT["gdl"]: A(f"s_sleep {OPT['gdl']}")
    gen_common()
    pi32(48, 14, 49)
    A(f"""v_lshlrev_b32 v61, 4, v0
v_add_u32 v61, {FOFF}, v61""")
    main_start()
    A(f"""v_lshrrev_b32 v48, 1, v48       ; k_local
s_mul_i32 s41, s5, 3
s_add_u32 s41, s41, s3
s_lshl_b32 s41, s41, 4
v_add_u32 v48, s41, v48
v_cvt_f32_u32 v48, v48
v_mul_f32 v56, {f32(1/448)}, v48 ; k/448
v_and_b32 v48, 1, v14
v_cvt_f32_u32 v48, v48
v_mul_f32 v59, {f32(0.25)}, v48  ; c/4
v_lshlrev_b32 v60, 3, v15
v_cvt_f32_u32 v60, v60
v_fma_f32 v59, v56, v60, v59
v_mul_f32 v58, {f32(16.0)}, v56
v_cos_f32 v58, v58
s_mul_i32 s41, s3, 14336
v_add_u32 v53, s41, v61""")
    for j in range(16): A(f"v_fmamk_f32 v{16+j}, v56, {f32(float(16*(j>>3)+(j&7)))}, v59")
    A("v_add_f32 v58, v58, v58")
    for j in range(16): A(f"v_cos_f32 v{16+j}, v{16+j}")
    A("s_waitcnt lgkmcnt(0)")
    gettag()
    A(f"s_cmp_eq_u32 s3, 3\ns_cbranch_scc1 {LE}\nv_mov_b32 v59, v58\ns_mov_b32 s42, 7\n{LF}:")
    for u in range(2):
        for j in range(4): A(f"v_cvt_pk_bf16_f32 v{32+4*u+j}, v{16+8*u+2*j}, v{17+8*u+2*j}")
        A(f"ds_write_b128 v53, {vr(32+4*u,4)} offset:{1024*u}")
        for j in range(4):
            a, b = 16+8*u+2*j, 16+8*(u^1)+2*j
            A(f"v_pk_fma_f32 {vr(a,2)}, {vr(b,2)}, v[58:59], {vr(a,2)} neg_lo:[0,0,1] neg_hi:[0,0,1]") if u == 0 else None
    for j in range(4):
        a, b = 24+2*j, 16+2*j
        A(f"v_pk_fma_f32 {vr(a,2)}, {vr(b,2)}, v[58:59], {vr(a,2)} neg_lo:[0,0,1] neg_hi:[0,0,1]")
    A(f"""v_add_u32 v53, 2048, v53
s_sub_u32 s42, s42, 1
s_cmp_lg_u32 s42, 0
s_cbranch_scc1 {LF}
{LE}:""")
E1R, E1I = 56, 248
def a1_compute():
    if TCH[0]: touches(TCH[0])
    if not OPT["ag"]:
        A(f"{GEN}:")
        gen_e()
        if OPT["pg"] == 4: lds_add(C_H)
        gen_g()
        A(f"s_cmp_lt_u32 s7, 11\ns_cbranch_scc1 {HELP2}")
    if TCH[1]: touches(TCH[1])
    A(f"""s_lshl_b32 s41, s6, 2
s_add_u32 s41, s41, s3          ; s2 index
v_lshlrev_b32 v9, 8, v15
v_add_u32 v9, s41, v9
v_mul_u32_u24 v9, v14, v9
v_cvt_f32_u32 v9, v9
v_mul_f32 v9, {f32(1/2048)}, v9
v_cvt_f32_u32 v8, v14
v_mul_f32 v8, {f32(1/32)}, v8
v_mov_b32 v5, v61
s_waitcnt vmcnt(0)""")
    def out(b):
        for j in range(4): A(f"v_cvt_pk_bf16_f32 v{E1R+4*b+j}, v{GT+2*j}, v{GT+2*j+1}")
        for j in range(4): A(f"v_cvt_pk_bf16_f32 v{E1I+4*b+j}, -v{GT+8+2*j}, -v{GT+9+2*j}")
    rot_gen(8, 2, 8, 9, [8*(j>>2)+(j&3) for j in range(8)], 16, out)
    A(f"""v_lshrrev_b32 v49, 1, v14
v_and_b32 v49, 7, v49
v_xor_b32 v49, v49, v15
v_lshlrev_b32 v49, 4, v49
v_lshl_or_b32 v6, v14, 7, v49
s_lshl_b32 s43, s3, 12
v_add_u32 v6, s43, v6
v_and_b32 v3, 2, v14
v_lshlrev_b32 v3, 30, v3
v_or_b32 v3, 1.0, v3            ; (-1)^k
v_mov_b32 v2, v3
v_lshlrev_b32 v4, 4, v0
s_mul_i32 s47, s41, {T_ROW}
s_mul_i32 s42, s5, 6144
s_add_u32 s47, s47, s42
s_add_u32 s47, s47, {T_OFF}
s_add_u32 s48, s47, 2048
s_add_u32 s49, s47, 4096""")
    egen = []
    A(f"s_mul_i32 s27, s26, 8256")
    def a1salu(adv=True):
        r = []
        if adv: r += ["s_add_u32 s27, s27, 8256", f"s_cmp_eq_u32 s27, {7*8256}", "s_cselect_b32 s27, 0, s27"]
        return r + ["s_and_b32 s43, s27, 0x1c040", f"s_add_u32 s44, s27, {7*8256}", "s_and_b32 s44, s44, 0x1c040",
                    "s_lshr_b32 s46, s27, 2", "s_and_b32 s46, s46, 0x7800"]
    a1valu = ["v_xor_b32 v8, s43, v6", "v_xor_b32 v10, s44, v6", "v_xor_b32 v9, 32, v8", "v_xor_b32 v11, 32, v10", "v_add_u32 v12, s46, v5"]
    def a1rd(t):
        b = 16 + 20*t
        return ([f"ds_read_b128 {vr(b,4)}, v{8+t}"] +
                [f"ds_read_b128 {vr(b+8+4*kgi,4)}, v12 offset:{1024*t+14336*kgi}" for kgi in range(3)] +
                [f"ds_read_b128 {vr(b+4,4)}, v{10+t}"])
    def a1step(t, nxt, first=False, fill=0, adv=False):
        b = 16 + 20*t
        r = list(nxt); issued = 0
        sa = a1salu() if adv else []; va = list(a1valu) if adv else []
        for m in range(6):
            hi, kgi = m // 3, m % 3
            need = (2, 3, 4, 5, 5, 5)[m]
            if not nxt: hi, kgi, need = m % 2, m // 2, (2, 5, 5, 5, 5, 5)[m]
            if m < (4 if nxt else 2): A(f"s_waitcnt lgkmcnt({5 - need + issued})")
            d = 64 + 32*kgi + 16*hi
            A(f"{MFMA} {vr(d,16)}, {vr(b+4*hi,4)}, {vr(b+8+4*kgi,4)}, {0 if first else vr(d,16)}")
            for _ in range(2 if m == 0 else 1):
                if r: A(r.pop(0)); issued += 1
            if m in (1, 2, 3):
                for _ in range(3):
                    if sa: A(sa.pop(0))
            if m == 4:
                while va: A(va.pop(0))
            for _ in range(fill if not (adv and m in (1,2,3,4)) else fill // 2):
                if egen: A(egen.pop(0))
    LL, LS, LNB = A.lab("a1loop"), A.lab("a1last"), A.lab("a1nb")
    for x in a1salu(False) + a1valu: A(x)
    fixtag()
    prewrite()
    for x in a1valu[4:]: A(x)
    stampw(9)
    A("s_barrier")
    stampw(2)
    if OPT["ad"]: A(f"s_sleep {OPT['ad']}")
    for x in a1rd(0): A(x)
    for n in range(1):
        a1step(0, a1rd(1), n == 0, 2, True)
        if OPT["gl"]: A("s_barrier")
        a1step(1, a1rd(0), False, 3)
    assert not egen
    A(f"s_mov_b32 s45, 1\n{LL}:")
    a1step(0, a1rd(1), adv=True)
    LH = A.lab("a1h")
    A(f"""s_add_u32 s45, s45, 1
s_cmp_eq_u32 s45, 7
s_cbranch_scc1 {LS}
s_nop 0""")
    if OPT["gl"]: A(f"s_cmp_eq_u32 s45, 6\ns_cbranch_scc1 {LNB}\ns_barrier\n{LNB}:")
    a1step(1, a1rd(0))
    A(f"s_branch {LL}\n{LS}:")
    a1step(1, [])
    stamp(3)
    def s1(kgi):
        P, Q = 64+32*kgi, 80+32*kgi
        e = []
        for i in range(8):
            if OPT["pk"]: e.append(f"v_pk_fma_f32 {vr(P+2*i,2)}, {vr(Q+2*i,2)}, v[2:3], {vr(P+2*i,2)}")
            else: e += [f"v_fmac_f32 v{P+2*i}, v3, v{Q+2*i}", f"v_fmac_f32 v{P+2*i+1}, v3, v{Q+2*i+1}"]
            e.append(f"v_cvt_pk_bf16_f32 v{16+8*kgi+i}, v{P+2*i}, v{P+2*i+1}")
        return e
    def mm(kgi):
        P, Q = 64+32*kgi, 80+32*kgi
        return [f"{MFMA} {vr(P,16)}, {vr(16+8*kgi,4)}, {vr(E1R,4)}, 0", f"{MFMA} {vr(Q,16)}, {vr(16+8*kgi,4)}, {vr(E1I,4)}, 0",
                f"{MFMA} {vr(P,16)}, {vr(20+8*kgi,4)}, {vr(E1R+4,4)}, {vr(P,16)}", f"{MFMA} {vr(Q,16)}, {vr(20+8*kgi,4)}, {vr(E1I+4,4)}, {vr(Q,16)}"]
    def s2(kgi):
        P, Q = 64+32*kgi, 80+32*kgi
        e = []
        for j in range(8):
            e += [f"v_sub_f32 v{P+2*j}, v{P+2*j}, v{Q+2*j+1}", f"v_add_f32 v{Q+2*j}, v{Q+2*j}, v{P+2*j+1}",
                  f"v_cvt_pk_bf16_f32 v{40+8*kgi+j}, v{P+2*j}, v{Q+2*j}"]
            if j & 3 == 3: e.append(f"buffer_store_dwordx4 {vr(40+8*kgi+j-3,4)}, v4, {W}, s{47+kgi} offen offset:{1024*(j>>2)} {SC}")
        return e
    def weave(ms, vs):
        k = (len(vs) + len(ms) - 1) // len(ms)
        for m in ms:
            A(m)
            for _ in range(k):
                if vs: A(vs.pop(0))
    lds_add(C_LF)
    for x in s1(0): A(x)
    weave(mm(0), s1(1)); weave(mm(1), s1(2)); weave(mm(2), s2(0))
    for x in s2(1) + s2(2): A(x)
    LI = A.lab("a1init")
    A(f"""s_cmp_ge_u32 s41, 4             ; s2 index < 4: zero arrival counters of the A2 fan-in
s_cbranch_scc1 {LI}
s_lshl_b32 s42, s5, 2
s_add_u32 s42, s42, s41
s_lshl_b32 s42, s42, 7
s_add_u32 s42, s42, {AT_OFF}
""")
    flagstore("s42", 2, 20*128, 16, "0")
    A(f"{LI}:")

def pub1():
    A(f"""{PUB1}:
s_lshl_b32 s41, s7, 11
s_lshl_b32 s42, s6, 7
s_add_u32 s41, s41, s42
s_add_u32 s41, s41, {F1_OFF}""")
    stamp(4)
    if OPT["pa"] == 1: lds_add(C_W)
    publish(C_P1, 41, OPT["r1"], 32768)
    stamp(5)
    gen_c()
    if OPT["pg"] == 3: lds_add(C_H)
    if OPT["ag"]: gen_e(); gen_g()
    else: A(f"s_cmp_lt_u32 s7, 11\ns_cbranch_scc1 {GEN}")

Q, S, O, KV = 16, 48, 112, 176
OK = O + 48
TB = 8
SO = 32
def q(j,i): return vr(Q+8*j+4*i, 4)
def kb(b,i): return KV+16*b+4*i
def tile_loads(b, so):
    return [f"buffer_load_dwordx4 {vr(kb(b,0),4)}, v1, {W}, s{so} offen {SC}",
            f"buffer_load_dwordx4 {vr(kb(b,1),4)}, v2, {W}, s{so} offen {SC}",
            f"buffer_load_dwordx4 {vr(kb(b,2),4)}, v3, {W}, s{so} offen {SC}",
            f"buffer_load_dwordx4 {vr(kb(b,3),4)}, v3, {W}, s{so} offen offset:1024 {SC}"]
def attention():
    resident(None, None)
    LNY, LNW = A.lab("nyq"), A.lab("now")
    A(f"{ATT}:\ns_setprio 0")
    A("s_mov_b32 s51, s7")
    srd(SO, P_OUT, OUT_BYTES)
    A(f"""s_lshl_b32 s4, s4, 1
s_bfe_u32 s5, s2, 0x10003
s_or_b32 s4, s4, s5            ; head
s_lshr_b32 s5, s2, 4           ; qb
s_mul_i32 s6, s4, 7
s_lshr_b32 s45, s6, 1
s_add_u32 s6, s6, 1
s_lshr_b32 s6, s6, 1
s_lshl_b32 s6, s6, 9
v_lshlrev_b32 v8, 4, v0
v_add_u32 v1, s6, v8
s_bitcmp1_b32 s4, 0
s_cselect_b32 s7, -2040, 0
v_add_u32 v2, 1024, v1
v_add_u32 v6, s7, v2
v_mov_b32 v4, 0x3f80
v_mov_b32_dpp v2, v6 {HI}
s_lshl_b32 s7, s4, 11
s_add_u32 s7, s7, {QK_TILE}
v_and_b32 v9, 30, v0           ; lanes 26,27 <-> rows 28,29
v_cmp_eq_u32 vcc, 26, v9
v_cmp_eq_u32 s[48:49], 28, v9
s_or_b64 vcc, vcc, s[48:49]
v_xor_b32 v9, 96, v8
v_cndmask_b32 v3, v8, v9, vcc
v_add_u32 v3, s7, v3           ; V offset
v_mov_b32 v5, 0xdddd
v_mov_b32 v7, 0
s_lshl_b32 s45, s45, 3         ; first column touched (Q part)
v_bfe_u32 v9, v0, 2, 1
v_mul_u32_u24 v10, 31, v9
v_add_u32 v10, s45, v10        ; Q column
v_add_u32 v11, 448, v10        ; K column
v_mul_u32_u24 v9, 27, v9
s_mul_i32 s46, s4, 28
s_add_u32 s46, s46, 896
v_add_u32 v9, s46, v9          ; V column
v_lshrrev_b32 v10, 7, v10
v_lshlrev_b32 v10, 11, v10
v_mov_b32_dpp v11, v9 quad_perm:[0,1,2,3] row_mask:0xa bank_mask:0xf
s_lshl_b32 s46, s5, 7
v_add_u32 v10, s46, v10
v_lshrrev_b32 v11, 7, v11
v_lshlrev_b32 v11, 11, v11
v_and_b32 v9, 3, v0
v_lshl_add_u32 v11, v9, 7, v11
s_lshl_b32 s46, s40, 9
v_add_u32 v11, s46, v11        ; K/V flag offsets of this wave's 4 token blocks
v_mov_b32_dpp v11, v10 {HI}
s_and_b32 s46, s2, {OPT["r1"]-1}
s_lshl_b32 s46, s46, 15
s_add_u32 s46, s46, {F1_OFF}
s_lshl_b32 s43, s5, 2
s_add_u32 s42, s40, s43
s_mul_i32 s42, s42, {QK_TILE}
s_add_u32 s50, s42, {Q_OFF}
s_mul_i32 s47, s40, {16*KV_REC}
s_add_u32 s47, s47, {KV_OFF}""")
    for i in range(16):
        A(f"s_add_u32 s42, s5, {i}\ns_and_b32 s42, s42, 15\ns_mul_i32 s42, s42, {KV_REC}\ns_add_u32 s{TB+i}, s42, s47")
    for j in range(4):
        A(f"""s_add_u32 s42, s40, {j}
s_and_b32 s42, s42, 3
s_lshl_b32 s42, s42, 11
s_add_u32 s42, s42, {QX}
v_add_u32 v{240+j}, s42, v8
s_add_u32 s42, s40, {j+1}
s_and_b32 s42, s42, 3
s_mul_i32 s42, s42, 12288
s_add_u32 s42, s42, {MERGE + (4096*j if j < 3 else 0)}
v_add_u32 v{244+j}, s42, v8""")
    A(f"""s_add_u32 s41, s40, 3
s_and_b32 s41, s41, 3
s_lshl_b32 s43, s5, 2
s_add_u32 s41, s41, s43        ; token tile kept by this wave
s_lshl_b32 s26, s41, 15
s_lshl_b32 s42, s4, 11
s_add_u32 s26, s26, s42
s_add_u32 s26, s26, {O_OFF}
s_lshl_b32 s27, s41, 11
s_lshl_b32 s42, s4, 7
s_add_u32 s27, s27, s42
s_add_u32 s27, s27, {FO_OFF}
s_bfe_u32 s42, s2, 0x20001
s_or_b32 s43, s43, s42         ; token tile of the projection
s_and_b32 s53, s2, 1
s_and_b32 s52, s53, {OPT["ro"]-1}
s_lshl_b32 s53, s53, 1
s_bfe_u32 s42, s2, 0x10003
s_or_b32 s53, s53, s42
{"s_mov_b32 s52, s53" if OPT["ro"] == 4 else ""}
s_lshl_b32 s52, s52, 17
s_lshl_b32 s53, s53, 2
s_add_u32 s53, s53, s40        ; n tile
s_lshl_b32 s45, s43, 15
s_lshl_b32 s44, s40, 13
s_add_u32 s45, s45, s44
s_add_u32 s45, s45, {O_OFF}
s_add_u32 s47, s45, 4096
s_mul_i32 s41, s43, {32*1792}
s_lshl_b32 s42, s53, 6
s_add_u32 s41, s41, s42
s_add_u32 s41, s41, 896
s_lshl_b32 s42, s43, 11
s_add_u32 s52, s52, s42
s_lshl_b32 s42, s40, 9
s_add_u32 s52, s52, s42
s_add_u32 s52, s52, {FO_OFF}
v_and_b32 v249, 3, v0
v_lshlrev_b32 v249, 7, v249
v_lshrrev_b32 v15, 5, v0
v_and_b32 v14, 31, v0
v_mul_u32_u24 v250, 1792, v14
v_lshl_add_u32 v250, v15, 4, v250
v_lshrrev_b32 v251, 3, v0
v_lshlrev_b32 v251, 17, v251
v_and_b32 v13, 7, v0
v_lshl_add_u32 v251, v13, 4, v251
v_bfe_u32 v9, v0, 2, 2        ; rr
v_and_b32 v10, 3, v0
v_lshrrev_b32 v12, 1, v10
v_and_b32 v10, 1, v10
v_lshl_or_b32 v10, v10, 1, v12    ; sigma(cc)
v_bfe_u32 v12, v0, 4, 1
v_lshlrev_b32 v12, 5, v12
v_lshl_or_b32 v10, v10, 3, v12
s_lshl_b32 s42, s40, 6
v_or_b32 v10, s42, v10
v_mul_u32_u24 v12, 320, v9
v_xor_b32 v252, v10, v12
v_lshl_add_u32 v252, v15, 10, v252  ; rows 4h+rr
v_lshl_or_b32 v9, v15, 1, v9
v_mul_u32_u24 v12, 320, v9
v_xor_b32 v253, v10, v12        ; rows rr (h=0) / 2,3,2,3 (h=1)
v_add_u32 v254, {224*256}, v252
v_add_u32 v255, {224*256}, v253
v_mov_b32 v6, v8""")
    if OPT["pw"]:
        A(f"s_sub_u32 s60, s{TAG}, {TAGC}")
        flagstore("s27", OPT["ro"], 131072, 40, "s60")
    for i in range(64): A(f"v_mov_b32 v{O+i}, 0")
    assert OPT["wg"]
    A(f"s_cmp_ge_u32 s51, 11\ns_cbranch_scc1 {A1LD}")
    if OPT["bp"]: A("s_setprio 3")
    if OPT["pg"] == 0: lds_wait(C_X, 1, 1)
    elif OPT["pg"] == 1: lds_wait(C_P1, 1, 1)
    elif OPT["pg"] == 2: lds_wait(C_LF, 4, 1)
    else: lds_wait(C_H, OPT["pn"], 1)
    for x in WL[OPT["wm"]:]: A(x)
    A(f"s_cmp_lg_u32 s51, 10\ns_cbranch_scc1 {ATT2}")
    for x in WL[:OPT["wm"]]: A(x)
    A(f"{ATT2}:\ns_setprio 3")
    stamp(5)
    resident(248, 15)
    kvp = f"buffer_load_dword v14, v11, {W}, s46 offen {PM}"
    MQK, MV = "s_mov_b32 exec_lo, 0xffff", "s_bfm_b64 exec, 16, 16"
    spin(kvp, 14, OPT["sl1"], MQK if OPT["vs"] else None)
    stamp(6)
    t0, t1 = tile_loads(0, TB), tile_loads(1, TB+1)
    A(f"""{t0[0]}
buffer_load_dwordx4 {q(0,0)}, v1, {W}, s50 offen {SC}
{t0[1]}
buffer_load_dwordx4 {q(0,1)}, v2, {W}, s50 offen {SC}""")
    if OPT["vs"] == 1: A(f"{MV}\n{kvp}\ns_mov_b64 exec, -1")
    lds_wait(C_LF, 4)
    if not OPT["wg"]: A("ds_write_b128 v15, v[96:99]\nds_write_b128 v15, v[100:103] offset:1024")
    A("s_waitcnt vmcnt(0)")
    stamp(4)
    def vcheck():
        LV_ = A.lab("vok")
        A(f"{MV}\nv_cmp_ne_u32 vcc, s{TAG}, v14\ns_mov_b64 exec, -1\ns_cbranch_vccz {LV_}")
        spin(kvp, 14, OPT["sl1"], MV)
        A(f"{LV_}:")
    A(f"""v_mov_b32_dpp v{Q+6}, v7 {HI}
v_mov_b32_dpp v{Q+7}, v7 {HI}
v_mov_b32_dpp v{kb(0,1)+2}, v4 {HI}
{MFMA} {vr(S+16,16)}, {vr(kb(0,0),4)}, {q(0,0)}, 0""")
    if not OPT["vs"]: A(t0[2])
    A(f"{MFMA} {vr(S+16,16)}, {vr(kb(0,1),4)}, {q(0,1)}, {vr(S+16,16)}")
    if not OPT["vs"]: A(t0[3])
    A(f"""{MFMA} {vr(S,16)}, {vr(kb(0,0),4)}, {q(0,0)}, 0
ds_write_b128 v240, {q(0,0)}""")
    if not OPT["vs"]:
        for x in t1[:2]: A(x)
    s_ = S+16
    A(f"v_max3_f32 v8, v{s_}, v{s_+1}, v{s_+2}\nv_max3_f32 v9, v{s_+3}, v{s_+4}, v{s_+5}")
    for i in range(6, 14, 4): A(f"v_max3_f32 v8, v8, v{s_+i}, v{s_+i+1}\nv_max3_f32 v9, v9, v{s_+i+2}, v{s_+i+3}")
    A(f"""v_max3_f32 v8, v8, v{s_+14}, v{s_+15}
v_max_f32 v8, v8, v9
v_cvt_pk_bf16_f32 v8, -v8, v7
v_mov_b32_dpp v{Q+6}, v8 {HI}
ds_write_b128 v240, {q(0,1)} offset:1024
{MFMA} {vr(S,16)}, {vr(kb(0,1),4)}, {q(0,1)}, {vr(S,16)}""")
    if OPT["pe"]:
        lds_add(C_Q)
        if OPT["vs"]:
            vcheck()
            for x in t0[2:] + t1[:2]: A(x)
        for x in t1[2:]: A(x)
        for e in range(OPT["pe"]): A(f"v_exp_f32 v{S+e}, v{S+e}")
        lds_wait(C_Q, 4, 0, False)
    else: lds_sync(C_Q, 4)
    for j in range(1, 4):
        A(f"ds_read_b128 {q(j,0)}, v{240+j}\nds_read_b128 {q(j,1)}, v{240+j} offset:1024")
    if not OPT["pe"]:
        for x in t1[2:]: A(x)
    A("s_waitcnt lgkmcnt(0)")
    stamp(7)
    lds_add(C_G2)
    A("s_setprio 1")
    def mwrites(j):
        return ([f"ds_write_b128 v{244+j}, {vr(O+16*j+4*g,4)} offset:{1024*g}" for g in range(3)] +
                [f"ds_write_b96 v{244+j}, {vr(O+16*j+12,3)} offset:3072"])
    assert OPT["vs"] and OPT["pe"] and OPT["pvd"]
    R = OPT["rt"]
    steps = [(i, j) for i in range(16 - R) for j in range(4)] + [(i, j) for j in range(4) for i in range(16 - R, 16)]
    if OPT["r4"]:
        steps.remove((15 - R, 3)); steps.insert(64 - R - 1, (15 - R, 3))
    def qk(n, h):
        i, j = steps[n]; d = vr(S+16*(n&3),16)
        return f"{MFMA} {d}, {vr(kb(i&3,h),4)}, {q(j,h)}, {d if h else 0}"
    def pv(n, h):
        i, j = steps[n]
        return f"{SMF} {vr(O+16*j,16)}, {vr(kb(i&3,2+h),4)}, {vr(S+16*(n&3)+8*h,8)}, v5"
    slots = []
    seenk, seenv = {0}, set()
    pos = {}
    for n in range(64):
        ms = []
        if n < 63:
            t = steps[n+1][0]; first = t not in seenk; seenk.add(t)
            whole = t <= 16 - max(R, 1)
            ms.append(dict(m=qk(n+1,0), need=((t,3) if whole else (t,1)) if first else None,
                           after=[f"v_mov_b32_dpp v{kb(t&3,1)+2}, v4 {HI}"] if first else []))
            ms.append(dict(m=qk(n+1,1), need=None, after=[]))
        ops = {0: [], 1: [], 2: [(0,0),(0,1)], 3: [(1,0),(1,1),(2,0)], 4: [(2,1),(3,0),(3,1)], 5: [(4,0),(4,1),(5,0)]}.get(n, [(n-1,1),(n,0)])
        if n == 63: ms += [dict(m=None, need=None, after=[])]
        for o in ops:
            t = steps[o[0]][0]
            ms.append(dict(m=pv(*o), need=(t,3) if t not in seenv else None, after=[], op=o)); seenv.add(t)
            if n == 63 and o[1] == 1: ms.append(dict(m=None, need=None, after=[]))
        while len(ms) < 4: ms.append(dict(m=None, need=None, after=[]))
        e0 = OPT["pe"] if n == 0 else 0
        cnt = [(16-e0)//4]*4 if len(ms) == 4 else [3,3,3,3,4]
        for g, x in enumerate(ms):
            x["exps"] = [S+16*(n&3)+e for e in range(e0, e0+cnt[g])]; e0 += cnt[g]; x["step"] = n; x["g"] = g
            if "op" in x: pos[x["op"]] = len(slots)
            pos[("s", n, g)] = len(slots)
            slots.append(x)
    def addload(n, g, t, k): slots[pos[("s", n, g)]]["after"].append((t, k))
    for k in range(4): addload(0, k >> 1, 2, k)
    for t in range(3, 16):
        for k in range(4):
            n = 4*(t-3) - 1 + k + (0 if OPT["le"] else 2)
            if n < 1: addload(1, n + 1, t, k)
            else: addload(n, OPT["lg"], t, k)
    p = 0; tailw = []
    for j in range(3):
        last = max(n for n in range(64) if steps[n][1] == j)
        p = max(p, pos[(last, 1)] + 3)
        for w in mwrites(j):
            if p < len(slots): slots[p]["after"].append(w); p += 1
            else: tailw.append(w)
    b_, o_, off_ = cref(C_MERGE)
    spec = OPT["sm"] and not tailw and p <= len(slots) - 4
    madd = ["s_mov_b64 exec, 1", f"ds_add_u32 {b_}, {o_}{off_}", "s_mov_b64 exec, -1"]
    mreads = [f"ds_read_b128 {vr(O+4*g,4)}, v247 offset:{1024*g}" for g in range(12)]
    if not tailw: slots[p-1]["after"] += madd
    if spec:
        rd_ = [f"ds_read_b32 v13, {b_}{off_}"] + mreads
        for z, k in (zip((-3, -2, -1), (5, 4, 4)) if OPT["sm"] == 1 else zip((-2, -1), (7, 6)) if OPT["sm"] == 2 else ((-1, 13),)):
            slots[z]["after"] += rd_[:k]; rd_ = rd_[k:]
    issued = [(0,2),(0,3),(1,0),(1,1),(1,2),(1,3)]; landed = -1
    for p_, x in enumerate(slots):
        if x["g"] == 0:
            n = x["step"]
            if n == 32: stamp(8)
            if OPT["ts"] == 2 and n in (16, 48): stamp(2 if n == 16 else 3)
        if x["m"]: A(x["m"])
        for y in x["after"]:
            if isinstance(y, tuple): A(tile_loads(y[0] & 3, TB+y[0])[y[1]]); issued.append(y)
            else: A(y)
        nx = slots[p_+1]["need"] if p_ + 1 < len(slots) else None
        late = nx == (0,3)
        def wait():
            nonlocal landed
            if nx and issued.index(nx) > landed:
                landed = issued.index(nx); A(f"s_waitcnt vmcnt({len(issued)-1-landed})")
        if not late: wait()
        for r in x["exps"]: A(f"v_exp_f32 v{r}, v{r}")
        if late: wait()
    for x in tailw[:2]: A(x)
    A(pv(63, 1))
    for x in tailw[2:]: A(x)
    stamp(9)
    A("s_setprio 3")
    LMD = A.lab("merged")
    if spec: A(f"s_waitcnt lgkmcnt({0 if STAMPS else 12})\nv_readfirstlane_b32 s60, v13\ns_cmp_ge_u32 s60, 4\ns_cbranch_scc1 {LMD}")
    if tailw: lds_sync(C_MERGE, 4)
    else: lds_wait(C_MERGE, 4)
    for x in mreads: A(x)
    A(f"{LMD}:\ns_waitcnt lgkmcnt(4)")
    for i in list(range(14, -2, -2)): A(f"v_pk_add_f32 {vr(O+i,2)}, {vr(O+i,2)}, {vr(O+16+i,2)}")
    A("s_waitcnt lgkmcnt(0)")
    for i in list(range(14, -2, -2)): A(f"v_pk_add_f32 {vr(O+i,2)}, {vr(O+i,2)}, {vr(O+32+i,2)}")
    for i in list(range(14, -2, -2)): A(f"v_pk_add_f32 {vr(OK+i,2)}, {vr(OK+i,2)}, {vr(O+i,2)}")
    A(f"""v_cmp_nle_f32 vcc, {f32(2.0**-40)}, v{OK+14}
s_mov_b64 s[48:49], vcc
v_cmp_nge_f32 vcc, {f32(2.0**40)}, v{OK+14}
s_or_b64 vcc, vcc, s[48:49]
s_cbranch_vccnz {LFB}
{LN}:
v_rcp_f32 v10, v{OK+14}
v_mov_b32 v{S+7}, 0
v_mov_b32 v11, v10""")
    for i in range(0, 14, 2):
        A(f"v_pk_mul_f32 {vr(OK+i,2)}, {vr(OK+i,2)}, v[10:11]")
        A(f"v_cvt_pk_bf16_f32 v{S+i//2}, v{OK+i}, v{OK+i+1}")
        if i == 6: A(f"buffer_store_dwordx4 {vr(S,4)}, v6, {W}, s26 offen {SC}")
    A(f"buffer_store_dwordx4 {vr(S+4,4)}, v6, {W}, s26 offen offset:1024 {SC}")
    stamp(10)
    if OPT["gp"] == 0: lds_add(C_GO)
    WF = 112; BACC = 16; OB = 64; NB = 6
    assert WO == 0 and OST == 0
    def wo_frags(half, n0=0, n1=16):
        for n in range(n0, n1):
            hd, i = n >> 1, n & 1
            b = WF + 64*half + 4*n
            row = 28*hd + 16*i
            A(f"ds_read_b64_tr_b16 {vr(b,2)}, v{252+2*half} offset:{row*256}")
            A(f"ds_read_b64_tr_b16 {vr(b+2,2)}, v{(253 if i else 252)+2*half} offset:{(row+8)*256}")
            if n % 6 == 5: A("s_waitcnt lgkmcnt(2)")
    for i in range(4): A(f"v_mov_b32 v{40+i}, s{TAG}")
    lds_wait(C_WOA, 4)
    wo_frags(0)
    if OPT["fo"] >= 3: lds_add(C_WOF)
    A("s_waitcnt lgkmcnt(2)")
    if OPT["fo"] == 2: wo_frags(1)
    poll = f"buffer_load_dword v14, v249, {W}, s52 offen {PM}"
    A(f"""{execmask(8*OPT["ro"])}
s_waitcnt vmcnt(0)
buffer_store_dwordx4 v[40:43], v251, {W}, s27 offen {FM}
s_mov_b64 exec, -1""")
    if OPT["ts"] == 1: stamp(2)
    if OPT["gp"] == 1: lds_add(C_GO)
    if OPT["ap"]: A(poll)
    if OPT["fo"] == 4: wo_frags(1, 0, 8)
    if OPT["fo"] >= 3: lds_wait(C_WOF, 4)
    else:
        if OPT["fo"] != 2: wo_frags(1)
        lds_sync(C_WOF, 4)
    if OPT["ts"] == 1: stamp(3)
    def odma():
        for half in range(2):
            A(f"s_add_u32 m0, s44, {OST+4096*half}")
            for i in range(4):
                A(f"buffer_load_dwordx4 v6, {W}, s{47 if half else 45} offen offset:{1024*i} {SC} lds")
    def btsetup():
        if OPT["bt"]:
            A(f"""s_lshl_b32 s42, s40, 11
s_add_u32 s42, s42, 32768
v_and_b32 v9, 31, v0
v_lshrrev_b32 v10, 5, v0
v_bfe_u32 v11, v0, 1, 2
v_xor_b32 v10, v10, v11
v_lshlrev_b32 v10, 4, v10
v_lshl_or_b32 v1, v9, 6, v10
v_add_u32 v1, s42, v1
v_xor_b32 v2, 32, v1
v_bfe_u32 v9, v0, 3, 2
v_lshlrev_b32 v9, 4, v9
v_xor_b32 v3, v6, v9
v_add_u32 v3, s42, v3
v_lshrrev_b32 v9, 2, v0
v_mul_u32_u24 v9, 1792, v9
v_and_b32 v10, 3, v0
v_lshl_add_u32 v4, v10, 4, v9
s_add_u32 s42, s41, {16*1792}""")
    if not OPT["dyn"]:
        LR = A.lab("oready")
        if OPT["ap"]: A(f"s_waitcnt vmcnt(0)\nv_cmp_ne_u32 vcc, s{TAG}, v14\ns_cbranch_vccz {LR}")
        spin(poll, 14, OPT["sl1"])
        A(f"{LR}:")
        stamp(11)
        odma(); btsetup()
        if OPT["fo"] == 3: wo_frags(1)
        if OPT["fo"] == 4: wo_frags(1, 8, 16)
        lds_sync(C_OST, 4, 0, "s_waitcnt vmcnt(0)")
        stampw(12)
        A(f"s_cmp_ge_u32 s53, 14\ns_cbranch_scc1 {END}")
        def rd(n): A(f"ds_read_b128 {vr(OB+4*(n%NB),4)}, v6 offset:{1024*n}")
        for n in range(NB-1): rd(n)
        for n in range(32):
            left = min(31, n+NB-2) - n
            A(f"s_waitcnt lgkmcnt({left})\n{MFMA} {vr(BACC,16)}, {vr(WF+4*n,4)}, {vr(OB+4*(n%NB),4)}, {vr(BACC,16) if n else 0}")
            if n + NB - 1 < 32: rd(n + NB - 1)
    else:
        LL, LM, LNONE, LC, LX = A.lab("b3l"), A.lab("b3m"), A.lab("b3n"), A.lab("b3c"), A.lab("b3x")
        LG = [A.lab("b3g") for _ in range(4)]
        GA = (16, 32, 48, 96) if OPT["dyn"] == 1 else (16, 16, 16, 16)
        btsetup()
        if OPT["dyn"] == 2:
            for i in range(16): A(f"v_mov_b32 v{16+i}, 0")
        A(f"""v_mov_b32 v12, {C_OST}
s_lshl_b32 s54, 1, s40
v_mov_b32 v10, s54
s_mov_b32 s50, 0
s_cmp_ge_u32 s53, 14
s_cselect_b32 s51, 15, 0
s_mov_b32 s61, {SPIN}
{LL}:
s_cmp_lg_u32 s50, 0
s_cbranch_scc1 {LM}
{poll}
{LM}:
ds_read_b32 v13, v12
s_waitcnt lgkmcnt(0)
v_readfirstlane_b32 s60, v13
s_andn2_b32 s60, s60, s51
s_cbranch_scc0 {LNONE}
s_ff1_i32_b32 s54, s60
s_bitset1_b32 s51, s54
s_cmp_eq_u32 s54, 1
s_cbranch_scc1 {LG[1]}
s_cmp_eq_u32 s54, 2
s_cbranch_scc1 {LG[2]}
s_cmp_eq_u32 s54, 3
s_cbranch_scc1 {LG[3]}""")
        for g in range(4):
            A(f"{LG[g]}:")
            for n in range(4): A(f"ds_read_b128 {vr(OB+4*n,4)}, v6 offset:{1024*(8*g+n)}")
            for n in range(8):
                left = min(7, n+3) - n
                c = vr(GA[g],16) if (n or OPT["dyn"] == 2) else 0
                A(f"s_waitcnt lgkmcnt({left})\n{MFMA} {vr(GA[g],16)}, {vr(WF+32*g+4*n,4)}, {vr(OB+4*n,4)}, {c}")
                if n + 4 < 8: A(f"ds_read_b128 {vr(OB+4*(n+4),4)}, v6 offset:{1024*(8*g+n+4)}")
            A(f"s_cmp_eq_u32 s51, 15\ns_cbranch_scc0 {LC}\ns_branch {LX}")
        A(f"""{LNONE}:
s_cmp_lg_u32 s50, 1
s_cbranch_scc1 {LC}
s_mov_b64 exec, 1
s_waitcnt vmcnt(0)
ds_or_b32 v12, v10
s_mov_b64 exec, -1
s_mov_b32 s50, 2
s_cmp_eq_u32 s51, 15
s_cbranch_scc1 {END}
s_branch {LM}
{LC}:
s_cmp_lg_u32 s50, 0
s_cbranch_scc1 {LM}
s_sub_u32 s61, s61, 1
s_waitcnt vmcnt(0)
v_cmp_ne_u32 vcc, s{TAG}, v14
s_cmp_eq_u32 s61, 0
s_cselect_b64 vcc, 0, vcc
s_cbranch_vccnz {LL}""")
        stamp(11)
        odma()
        A(f"s_mov_b32 s50, 1\ns_branch {LM}\n{LX}:\ns_nop 8")
        if OPT["dyn"] == 1:
            for i in range(0, 16, 2):
                A(f"v_pk_add_f32 {vr(16+i,2)}, {vr(16+i,2)}, {vr(32+i,2)}\nv_pk_add_f32 {vr(48+i,2)}, {vr(48+i,2)}, {vr(96+i,2)}")
            for i in range(0, 16, 2): A(f"v_pk_add_f32 {vr(16+i,2)}, {vr(16+i,2)}, {vr(48+i,2)}")
    if OPT["bt"]:
        for i in range(8):
            A(f"v_cvt_pk_bf16_f32 v{32+i}, v{BACC+2*i}, v{BACC+2*i+1}")
            if i == 3: A("ds_write_b128 v1, v[32:35]")
        A(f"""ds_write_b128 v2, v[36:39]
ds_read_b128 v[40:43], v3
ds_read_b128 v[44:47], v3 offset:1024
s_waitcnt lgkmcnt(1)
buffer_store_dwordx4 v[40:43], v4, {sr(SO,4)}, s41 offen {OBM}
s_waitcnt lgkmcnt(0)
buffer_store_dwordx4 v[44:47], v4, {sr(SO,4)}, s42 offen {OBM}
s_branch {END}""")
        return
    for i in range(8):
        A(f"v_cvt_pk_bf16_f32 v{32+i}, v{BACC+2*i}, v{BACC+2*i+1}")
        if i == 3: A(f"buffer_store_dwordx4 v[32:35], v250, {sr(SO,4)}, s41 offen {OBM}")
    A(f"""buffer_store_dwordx4 v[36:39], v250, {sr(SO,4)}, s41 offen offset:32 {OBM}
s_branch {END}""")

def helper():
    resident(None, None)
    SWO = 32
    def wo_run(upto):
        LW, LD = A.lab("wo"), A.lab("wod")
        A(f"""{LW}:
s_cmp_le_i32 s96, {upto}
s_cbranch_scc1 {LD}
s_mov_b32 m0, s98
s_waitcnt vmcnt({-OPT["wos"]})
buffer_load_dwordx4 v250, {sr(SWO,4)}, s97 offen lds
s_sub_u32 s98, s98, 4096
s_sub_u32 s97, s97, {16*896}
s_sub_u32 s96, s96, 1
s_branch {LW}
{LD}:""")
    T, AC2, WA, WB, Y = 16, 48, 64, 72, 80
    LNOA2, LNY2, LP2 = "L_noa2", A.lab("nyq"), A.lab("pub2")
    A(f"{HELP2}:")
    if OPT["x"] >= 4:
        lds_add(C_WOA); A(f"s_branch {END}")
    stamp(11)
    resident(253, 254)
    wsetup(True)
    A(f"""v_lshrrev_b32 v9, 4, v0
v_and_b32 v8, 15, v0
v_lshlrev_b32 v10, 2, v9
v_xor_b32 v8, v8, v10
v_lshlrev_b32 v8, 4, v8
v_mul_u32_u24 v9, 896, v9
v_add_u32 v250, v8, v9
v_mul_u32_u24 v252, {T2_Q}, v15
v_lshl_add_u32 v251, v14, 4, v252 ; T2 offset (A3)
v_add_u32 v252, {224*16}, v252
v_mov_b32 v255, 0""")
    A(f"""s_lshr_b32 s5, s2, 3
v_lshrrev_b32 v8, 3, v0         ; LDS row (mod 8) = 2*p + h
v_and_b32 v9, 4, v8
v_bfe_u32 v10, v8, 1, 1
v_or_b32 v9, v9, v10
v_and_b32 v8, 1, v8
v_lshl_or_b32 v9, v8, 1, v9     ; s2 mod 8 = 4*(p>>1) + 2h + (p&1)
v_mul_u32_u24 v1, {T_ROW}, v9
v_bfe_u32 v8, v0, 2, 1
v_lshl_add_u32 v1, v8, 9, v1
v_and_b32 v8, 3, v0
v_lshl_add_u32 v1, v8, 4, v1    ; T offset
s_lshl_b32 s41, s5, 10
s_lshl_b32 s42, s4, 6
s_add_u32 s41, s41, s42
s_add_u32 s41, s41, {T_OFF}
s_mul_i32 s42, s40, {16*T_ROW}
s_add_u32 s41, s41, s42
s_mul_i32 s44, s5, 43
s_lshr_b32 s44, s44, 8          ; g5
s_lshl_b32 s45, s44, 11
s_and_b32 s46, s2, {OPT["r1"]-1}
s_lshl_b32 s46, s46, 15
s_add_u32 s46, s46, {F1_OFF + 11*2048}
v_and_b32 v9, 15, v0
v_lshlrev_b32 v9, 7, v9
v_add_u32 v9, s45, v9
v_mov_b32 v10, 0
v_mov_b32_dpp v9, v10 {HI}
s_lshl_b32 s43, s40, 11
s_add_u32 m0, s43, {TX}
s_add_u32 s47, s41, {8*T_ROW - 1024}
s_nop 0""")
    A(f"""v_lshlrev_b32 v4, 4, v0
s_cmp_eq_u32 s5, 28
s_cselect_b32 s45, 14, 0
{"v_and_b32 v8, 3, v14" if OPT["ln"] else "v_lshrrev_b32 v8, 3, v14"}        ; u1 local
{"v_lshrrev_b32 v7, 2, v14" if OPT["ln"] else "v_and_b32 v7, 7, v14"}            ; k local
v_lshl_add_u32 v2, v15, 3, v8
v_lshlrev_b32 v2, 4, v2
v_lshl_add_u32 v2, v7, 1, v2
s_add_u32 s42, s43, s45
s_add_u32 s42, s42, {WX}
v_add_u32 v2, s42, v2
v_mul_u32_u24 v3, {2*T2_ROW}, v15
v_lshl_add_u32 v3, v7, 4, v3
v_lshl_add_u32 v3, v8, 2, v3    ; T2 offset
v_lshrrev_b32 v5, 2, v7
v_lshl_add_u32 v5, v15, 1, v5
v_lshl_add_u32 v5, v5, 2, v8
v_and_b32 v10, 3, v7
v_lshl_add_u32 v5, v5, 2, v10
v_lshlrev_b32 v5, 2, v5
v_add_u32 v5, {TX}, v5
v_add_u32 v8, {EX}, v4
v_add_u32 v7, s43, v8
s_mul_i32 s53, s40, {16*T2_ROW}
s_mul_i32 s42, s4, {T2_Q}
s_add_u32 s53, s53, s42
s_lshl_b32 s42, s5, 7
s_add_u32 s53, s53, s42
s_add_u32 s53, s53, {T2_OFF}""")
    for i in range(16): A(f"v_mov_b32 v{WA+i}, 0")
    if OPT["wg"]:
        L1, L2, L3 = A.lab("tw"), A.lab("tw"), A.lab("tw")
        srd(32, P_WR, W_BYTES)
        A(f"""s_lshr_b32 s42, s2, 3
s_mul_i32 s48, s42, {64*450}
s_mul_i32 s49, s4, {4*450}
s_add_u32 s48, s48, s49
s_and_b32 s48, s48, 0xffffff80
v_bfe_u32 v249, v0, 4, 1
v_mul_u32_u24 v249, {32*450}, v249
v_and_b32 v10, 15, v0
v_lshl_add_u32 v249, v10, 7, v249
s_cmp_eq_u32 s40, 0
s_cbranch_scc1 {L1}""")
        srd(32, P_WI, W_BYTES)
        A(f"s_cmp_eq_u32 s40, 1\ns_cbranch_scc1 {L1}")
        srd(32, P_WO, WO_BYTES)
        A(f"""s_lshl_b32 s48, s42, 1
s_add_u32 s48, s48, s40
s_sub_u32 s48, s48, 2
s_mul_i32 s48, s48, {7*896}
s_and_b32 s49, s2, 1
s_lshl_b32 s49, s49, 9
s_add_u32 s48, s48, s49
v_bfe_u32 v249, v0, 2, 3
v_mul_u32_u24 v249, 896, v249
v_and_b32 v10, 3, v0
v_lshl_add_u32 v249, v10, 7, v249
{L1}:""")
        lds_wait(C_G2 if OPT["wg"] == 1 else C_X, 4 if OPT["wg"] == 1 else 1, 2)
        if not OPT["y"] & 2: A("s_mov_b32 exec_hi, 0\nbuffer_load_dword v63, v249, s[32:35], s48 offen\ns_mov_b64 exec, -1")
    srd(SWO, P_WO, WO_BYTES)
    A(f"""s_and_b32 s97, s2, 1
s_lshl_b32 s97, s97, 1
s_bfe_u32 s98, s2, 0x10003
s_or_b32 s97, s97, s98
s_lshl_b32 s97, s97, 8
s_mul_i32 s98, s40, {4*896}
s_add_u32 s97, s97, s98
s_add_u32 s97, s97, {27*16*896}
s_lshl_b32 s98, s40, 10
s_add_u32 s98, s98, {27*4096}
s_mov_b32 s96, {0 if OPT["y"] & 1 else 28}
s_waitcnt vmcnt(0)""")
    A(f"s_cmp_ge_u32 s5, 29\ns_cbranch_scc1 {LNOA2}")
    if OPT["y"] & 4: A(f"s_branch {LNOA2}")
    if OPT["wg"] and not OPT["y"] & 2 and not OPT["wo2"]:
        A(f"s_add_u32 m0, s43, {WX}\ns_nop 0\nbuffer_load_dwordx4 v248, {sr(SX,4)}, s55 offen lds")
        if OPT["w1"]: wo_run(28 - OPT["w1"])
        else: A("s_waitcnt vmcnt(0)")
        A(f"s_add_u32 m0, s43, {WX+1024}\ns_nop 0\nbuffer_load_dwordx4 v248, s[56:59], s55 offen lds")
        if OPT["w1"]: wo_run(28 - 2*OPT["w1"])
        A("s_waitcnt vmcnt(0)")
    def a1poll():
        A(f"""buffer_load_dword v10, v9, {W}, s46 offen {PM}
s_waitcnt vmcnt(0)
v_cmp_ne_u32 vcc, s{TAG}, v10""")
    if OPT["ad1"]: spin(f"buffer_load_dword v10, v9, {W}, s46 offen {PM}", 10, OPT["sl2"])
    else: acquire(R_A1, a1poll, OPT["sl2"], OPT["hs"])
    stamp(6)
    A(f"""s_add_u32 m0, s43, {TX}
s_setprio {OPT["hp"]}
buffer_load_dwordx4 v1, {W}, s41 offen {SC} lds
buffer_load_dwordx4 v1, {W}, s47 offen offset:1024 {SC} lds
s_nop 0""")

    def wreads():
        for j in range(8):
            A(f"ds_read_u16_d16_hi v{WA+j}, v2 offset:{(4*(j>>1)+(j&1))*64}")
        A("s_waitcnt lgkmcnt(4)")
        for j in range(8):
            A(f"ds_read_u16_d16_hi v{WB+j}, v2 offset:{(4*(j>>1)+(j&1))*64+1024}")
        A(f"s_waitcnt lgkmcnt(0)\ns_cmp_lg_u32 s5, 28\ns_cbranch_scc1 {LNY2}")
        for j in range(8): A(f"v_xor_b32 v{WA+j}, 0x80000000, v{WA+j}")
        A(f"{LNY2}:")
    if OPT["wo2"]:
        A(f"s_add_u32 m0, s43, {WX}\ns_nop 0\nbuffer_load_dwordx4 v248, {sr(SX,4)}, s55 offen lds")
    else: wreads()
    A("s_waitcnt vmcnt(0)")
    if OPT["wo2"]: A(f"s_add_u32 m0, s43, {WX+1024}\ns_nop 0\nbuffer_load_dwordx4 v248, s[56:59], s55 offen lds")
    lds_sync(C_T, 4, OPT["hs"])
    if OPT["w2"] and not OPT["wo2"]: wo_run(max(8, 28 - 2*OPT["w1"] - OPT["w2"]))
    for m in range(0, 28, 2): A(f"ds_read2st64_b32 {vr(T+m,2)}, v5 offset0:{m} offset1:{m+1}")
    for f in range(8):
        if f == 1:
            for m in range(28, 32, 2): A(f"ds_read2st64_b32 {vr(T+m,2)}, v5 offset0:{m} offset1:{m+1}")
        A(f"s_waitcnt lgkmcnt({12 if f == 0 else 14-2*f})\n{MFMA} {vr(AC2,16)}, {vr(C+4*f,4)}, {vr(T+4*f,4)}, {vr(AC2,16) if f else 0}")
    if OPT["wo2"]:
        A("s_waitcnt vmcnt(0)")
        if OPT["w2"]: wo_run(28 - OPT["w2"])
        wreads()
    for j in range(8):
        xr, xi = AC2+2*j, AC2+2*j+1
        A(f"""v_mul_f32 v10, v{xr}, v{WA+j}
v_mul_f32 v11, v{xr}, v{WB+j}
v_fma_f32 v10, -v{xi}, v{WB+j}, v10
v_fmac_f32 v11, v{xi}, v{WA+j}
v_cvt_pk_bf16_f32 v{Y+j}, v11, v10""")
        if j == 3: A(f"ds_write_b128 v7, {vr(Y,4)}")
    A(f"ds_write_b128 v7, {vr(Y+4,4)} offset:1024")
    lds_sync(C_EX, 4, OPT["hs"])
    if OPT["w2"]: wo_run(max(8, 28 - 2*OPT["w1"] - 2*OPT["w2"]))
    for f in range(8): A(f"ds_read_b128 {vr(T+4*f,4)}, v8 offset:{1024*f}")
    for f in range(8):
        A(f"s_waitcnt lgkmcnt({7-f})\n{MFMA} {vr(AC2,16)}, {vr(C+4*f,4)}, {vr(T+4*f,4)}, {vr(AC2,16) if f else 0}")
    for j in range(8):
        A(f"""v_cvt_pk_bf16_f32 v{Y+j}, v{AC2+2*j+1}, v{AC2+2*j}
s_add_u32 s43, s53, {(4*(j>>1)+(j&1))*T2_ROW}
buffer_store_dword v{Y+j}, v3, {W}, s43 offen {SC}""")
    stamp(7)
    A("s_setprio 2")
    arrive(C_A2, LP2)
    A(f"""s_lshl_b32 s41, s44, 2
s_lshr_b32 s42, s4, 1
s_add_u32 s41, s41, s42
s_lshl_b32 s41, s41, 7
s_add_u32 s41, s41, {AT_OFF}
s_cmp_eq_u32 s44, 4
s_cselect_b32 s42, 9, 11
v_mov_b32 v12, 0
v_mov_b32 v13, 1
s_mov_b64 exec, 1
buffer_atomic_add v13, v12, {W}, s41 offen sc0 sc1
s_mov_b64 exec, -1
s_waitcnt vmcnt(0)
v_readfirstlane_b32 s60, v13
s_cmp_lg_u32 s60, s42
s_cbranch_scc1 {LP2}
v_mov_b32 v13, 1
s_mov_b32 s41, {AT_OFF + 20*128}
s_mov_b64 exec, 1
buffer_atomic_add v13, v12, {W}, s41 offen sc0 sc1
s_mov_b64 exec, -1
s_waitcnt vmcnt(0)
v_readfirstlane_b32 s60, v13
s_cmp_lg_u32 s60, 19
s_cbranch_scc1 {LP2}
s_mov_b32 s41, {F2_OFF}""")
    flagstore("s41", 8, 128)
    assert EPOCH_OFF == 0
    flagstore("0", 1, 0)
    A(f"{LP2}:")
    lds_wait(C_A2, 4, 4)
    A(f"{LNOA2}:")
    wo_run(0)
    A("s_waitcnt vmcnt(0)")
    lds_add(C_WOA)
    stamp(12)
    TA, NY, AC3, ZB, AC4 = 16, 48, 64, 16, 112
    assert OPT["kn"]
    A(f"""s_mul_i32 s41, s50, {T2_ROW}
s_add_u32 s41, s41, {T2_OFF}
s_lshl_b32 s42, s40, 9
s_add_u32 s42, s42, s41
s_and_b32 s46, s2, 7
s_lshl_b32 s46, s46, 7
s_add_u32 s46, s46, {F2_OFF}""")
    srd(SO, P_OUT, OUT_BYTES)
    if OPT["y"] & 8: A(f"s_branch {END}")
    if not OPT["y"] & 4: spin(f"buffer_load_dword v10, v255, {W}, s46 offen {PM}", 10, OPT["sl3"])
    stamp(8)
    LA, LB = A.lab("a3l"), A.lab("a3l")
    for f in range(4):
        A(f"s_add_u32 s43, s42, {2*f*T2_Q}\nbuffer_load_dwordx4 {vr(TA+4*f,4)}, v251, {W}, s43 offen {SC}\ns_sleep 1")
    A(f"s_cmp_eq_u32 s40, 3\ns_cbranch_scc1 {LA}")
    for f in range(4):
        A(f"s_add_u32 s43, s42, {2*f*T2_Q + 2048}\nbuffer_load_dwordx4 {vr(TA+16+4*f,4)}, v251, {W}, s43 offen {SC}\ns_sleep 1")
    A(f"{LA}:\ns_cmp_lg_u32 s40, 0\ns_cbranch_scc1 {LB}")
    for f in range(4):
        A(f"s_add_u32 s43, s41, {2*f*T2_Q}\nbuffer_load_dwordx4 {vr(NY+4*f,4)}, v252, {W}, s43 offen {SC}")
    A(f"{LB}:")
    if OPT["ze"]: lds_wait(C_MERGE, OPT["ze"], OPT["slg"])
    else: lds_wait(C_GO if OPT["gp"] < 2 else C_WOF, 4, OPT["slg"])
    A("s_setprio 0")
    if OPT["x"] not in (2, 3): stamp(10)
    LN3, LZ = A.lab("a3ny"), A.lab("a3z")
    A("s_waitcnt vmcnt(0)")
    setup = f"""v_lshlrev_b32 v5, 4, v0
s_lshl_b32 s43, s40, 11
s_add_u32 s43, s43, {ZOFF}
v_add_u32 v6, s43, v5
s_mul_i32 s43, s52, 14336
s_add_u32 s43, s43, {ZOFF}
v_add_u32 v5, s43, v5
s_lshr_b32 s46, s40, 1
s_lshl_b32 s46, s46, 3
v_add_u32 v7, s46, v15          ; 8p + h
v_and_b32 v9, 7, v14
v_xor_b32 v7, v7, v9
v_lshlrev_b32 v7, 4, v7
v_lshl_or_b32 v7, v14, 8, v7
s_lshl_b32 s46, s52, 13
s_add_u32 s46, s46, {YOFF}
v_add_u32 v7, s46, v7           ; Y write address
v_lshrrev_b32 v8, 3, v0
s_lshl_b32 s46, s40, 3
v_add_u32 v8, s46, v8           ; row (s1)
v_and_b32 v9, 7, v0             ; piece
v_lshlrev_b32 v10, 1, v9
v_and_b32 v11, 7, v8
v_xor_b32 v10, v10, v11
v_lshlrev_b32 v10, 4, v10
v_lshl_or_b32 v10, v8, 8, v10
v_add_u32 v10, {YOFF}, v10
v_xor_b32 v11, 16, v10
v_mul_u32_u24 v8, {64*1792}, v8
v_lshl_add_u32 v8, v9, 4, v8    ; out offset
s_mul_i32 s41, s50, 1792
s_lshl_b32 s42, s51, 7
s_add_u32 s41, s41, s42""".split("\n")
    for tt in range(2):
        for f in range(4):
            A(f"{MFMA} {vr(AC3+32*tt,16)}, {vr(TA+16*tt+4*f,4)}, {vr(ER+4*f,4)}, {vr(AC3+32*tt,16) if f else 0}")
            for _ in range(5):
                if setup: A(setup.pop(0))
    assert not setup
    A(f"s_cmp_eq_u32 s51, 3\ns_cselect_b32 s42, 4, 8\nv_cmp_gt_u32 s[48:49], s42, v9")
    A(f"s_cmp_lg_u32 s40, 0\ns_cbranch_scc1 {LN3}\ns_mov_b32 exec_lo, 1\ns_mov_b32 exec_hi, 1")
    for i in range(16): A(f"v_mov_b32 v{TA+i}, v{NY+i}")
    A(f"s_mov_b64 exec, -1\n{LN3}:\ns_nop 1")
    ZD = (NY, TA, NY+8, TA+8)
    def zcvt(tt, part):
        a = AC3+32*tt+16*part
        if OPT["kn"]:
            d = ZD[2*tt+part]
            return [f"v_cvt_pk_bf16_f32 v{d+4*e+i}, v{a+4*i+e}, v{a+4*i+e+2}" for e in range(2) for i in range(4)]
        return [f"v_cvt_pk_bf16_f32 v{a+i}, v{a+2*i}, v{a+2*i+1}" for i in range(8)]
    def zwr(tt, part):
        a = AC3+32*tt+16*part
        if OPT["kn"]: a = ZD[2*tt+part]
        return [f"ds_write_b128 v6, {vr(a+4*p,4)} offset:{14336*p+8192*tt+1024*part}" for p in range(2)]
    if OPT["ze"]:
        pend = zcvt(0, 0) + zcvt(1, 0)
        for tt in range(2):
            for f in range(4):
                A(f"{MFMA} {vr(AC3+32*tt+16,16)}, {vr(TA+16*tt+4*f,4)}, {vr(EI+4*f,4)}, {vr(AC3+32*tt+16,16) if f else 0}")
                for _ in range(3):
                    if pend: A(pend.pop(0))
        for x in pend + zcvt(0, 1) + zcvt(1, 1): A(x)
        lds_wait(C_GO, 4, 1)
        for x in zwr(0, 0) + zwr(0, 1): A(x)
        A(f"s_cmp_eq_u32 s40, 3\ns_cbranch_scc1 {LZ}")
        for x in zwr(1, 0) + zwr(1, 1): A(x)
    else:
        pend = zcvt(0, 0) + zwr(0, 0)
        for tt in range(2):
            for f in range(4):
                A(f"{MFMA} {vr(AC3+32*tt+16,16)}, {vr(TA+16*tt+4*f,4)}, {vr(EI+4*f,4)}, {vr(AC3+32*tt+16,16) if f else 0}")
                for _ in range(3):
                    if pend: A(pend.pop(0))
        for x in pend + zcvt(0, 1) + zwr(0, 1): A(x)
        A(f"s_cmp_eq_u32 s40, 3\ns_cbranch_scc1 {LZ}")
        for x in zcvt(1, 0) + zwr(1, 0) + zcvt(1, 1) + zwr(1, 1): A(x)
    A(f"{LZ}:")
    lds_sync(C_Z, 4, OPT["zs"])
    for i in range(14): A(f"ds_read_b128 {vr(ZB+4*i,4)}, v5 offset:{1024*i}")
    for i in range(14):
        A(f"s_waitcnt lgkmcnt({13-i})\n{MFMA} {vr(AC4,16)}, {vr(G+4*i,4)}, {vr(ZB+4*i,4)}, {vr(AC4,16) if i else 0}")
    for g in range(4):
        A(f"v_xor_b32 v9, {32*g}, v7\nds_write_b128 v9, {vr(AC4+4*g,4)}")
    lds_sync(C_Y, 4, OPT["zs"])
    A(f"""ds_read_b128 v[16:19], v10
ds_read_b128 v[20:23], v11
ds_read_b128 v[24:27], v10 offset:8192
ds_read_b128 v[28:31], v11 offset:8192
s_waitcnt lgkmcnt(0)""")
    for i in range(8): A(f"v_add_f32 v{32+i}, v{16+i}, v{24+i}\nv_sub_f32 v{40+i}, v{16+i}, v{24+i}")
    for i in range(8): A(f"v_cvt_pk_bf16_f32 v{48+i}, v{32+2*i}, v{33+2*i}")
    A(f"""s_mov_b64 exec, s[48:49]
buffer_store_dwordx4 v[48:51], v8, {sr(SO,4)}, s41 offen {OA}
buffer_store_dwordx4 v[52:55], v8, {sr(SO,4)}, s41 offen offset:448 {OA}
s_mov_b64 exec, -1
s_branch {END}""")

def fallback():
    resident(None, None)
    L1, L2 = A.lab("fb1"), A.lab("fb2")
    tl = tile_loads(0, 43)
    A(f"""{LFB}:
v_mov_b32_dpp v{Q+24+6}, v7 {HI}
v_mov_b32 v12, 0xff800000
s_mov_b32 s43, {KV_OFF}
{L1}:
{tl[0]}
{tl[1]}
s_waitcnt vmcnt(0)
{MFMA} {vr(S,16)}, {vr(kb(0,0),4)}, {q(3,0)}, 0
{MFMA} {vr(S,16)}, {vr(kb(0,1),4)}, {q(3,1)}, {vr(S,16)}""")
    for i in range(0, 16, 2): A(f"v_max3_f32 v12, v12, v{S+i}, v{S+i+1}")
    A(f"""s_add_u32 s43, s43, {KV_REC}
s_cmp_lt_u32 s43, {KV_OFF+64*KV_REC}
s_cbranch_scc1 {L1}
v_mov_b32 v13, v12
v_mov_b32 v14, v12
v_permlane32_swap_b32 v13, v14
v_max_f32 v12, v13, v14""")
    for i in range(16): A(f"v_mov_b32 v{OK+i}, 0")
    A(f"s_mov_b32 s43, {KV_OFF}\n{L2}:")
    for x in tl: A(x)
    A(f"""s_waitcnt vmcnt(0)
{MFMA} {vr(S,16)}, {vr(kb(0,0),4)}, {q(3,0)}, 0
{MFMA} {vr(S,16)}, {vr(kb(0,1),4)}, {q(3,1)}, {vr(S,16)}""")
    for i in range(16): A(f"v_sub_f32 v{S+i}, v{S+i}, v12")
    for i in range(16): A(f"v_exp_f32 v{S+i}, v{S+i}")
    A(f"""{SMF} {vr(OK,16)}, {vr(kb(0,2),4)}, {vr(S,8)}, v5
{SMF} {vr(OK,16)}, {vr(kb(0,3),4)}, {vr(S+8,8)}, v5
s_nop 15
s_add_u32 s43, s43, {KV_REC}
s_cmp_lt_u32 s43, {KV_OFF+64*KV_REC}
s_cbranch_scc1 {L2}
s_branch {LN}""")

def finish():
    A(f"{END}:")
    if OPT["probe"]:
        LQ = A.lab("probe")
        stamp(13)
        A(f"""s_cmp_lg_u32 s2, {OPT["pwg"]}
s_cbranch_scc1 {FIN}
s_cmp_lg_u32 s3, {OPT["pwave"]}
s_cbranch_scc1 {FIN}
s_waitcnt lgkmcnt(0)
s_sub_u32 s56, s{64+2*OPT["probe"]}, s66
s_mul_i32 s56, s56, 10
s_add_u32 s56, s56, s90
{LQ}:
s_memrealtime s[58:59]
s_waitcnt lgkmcnt(0)
s_sub_u32 s57, s58, s56
s_cmp_lt_i32 s57, 0
s_cbranch_scc1 {LQ}""")
    elif STAMPS:
        stamp(13)
        A(f"""s_waitcnt vmcnt(0)
s_memtime s[92:93]
s_memrealtime s[94:95]
s_waitcnt lgkmcnt(0)
{"s_getreg_b32 s64, hwreg(HW_REG_XCC_ID)" if STAMPS == 1 else ""}
{"s_getreg_b32 s92, hwreg(HW_REG_HW_ID)" if STAMPS == 1 else ""}
s_mov_b32 s56, s24
s_mov_b32 s57, s25
s_mov_b32 s58, 0x2000000
s_mov_b32 s59, 0x00020000
s_mov_b64 exec, 1
s_lshl_b32 s60, s2, 3
s_add_u32 s60, s60, s3
s_lshl_b32 s60, s60, 6
s_add_u32 s60, s60, {TS_OFF}
v_mov_b32 v1, 0""")
        for i in range(16):
            A(f"v_mov_b32 v2, s{64+2*i}\nbuffer_store_dword v2, v1, s[56:59], s60 offen offset:{4*i}")
    A(f"{FIN}:\ns_endpgm")

def b1c():
    resident(None, None)
    A(f"{LB1C}:\ns_setprio 2"); main_start()
    for i in range(64): A(f"v_mov_b32 v{ACC+i}, 0")
    A("s_waitcnt lgkmcnt(0)"); gettag()
    gen_pre(); b1_compute()
entry(); b1_loader()
if OPT["ord"]: b1c()
a1_dispatch_loader(); a1_gen(); a1_compute(); pub1(); helper()
if not OPT["ord"]: b1c()
attention(); fallback(); finish()

HDR = open("cdna_kernels/%s.s.ref" % NAME).read().split("; Override")[0]
txt = HDR + f"; @launch grid=(256,1,1) block=(512,1,1) lds={LDS_BYTES}\n"
txt += '.amdgcn_target "amdgcn-amd-amdhsa--gfx950"\n.text\n' + A.finish()
txt += f""".section .rodata,"a"
.p2align 6
.amdhsa_kernel {K}
  .amdhsa_next_free_vgpr 256
  .amdhsa_next_free_sgpr 102
  .amdhsa_accum_offset 256
  .amdhsa_group_segment_fixed_size 0
  .amdhsa_kernarg_size 72
  .amdhsa_user_sgpr_count 2
  .amdhsa_user_sgpr_kernarg_segment_ptr 1
  .amdhsa_system_sgpr_workgroup_id_x 1
.end_amdhsa_kernel
"""
out = args[0] if args else "cdna_kernels/%s.s" % NAME
open(out, "w").write(txt)
print("wrote", out, len(txt))
```

```python
import math
EPOCH_OFF = 0x0
F1_OFF = 0xB50000
GO_OFF = 0x1000
F2_OFF = 0xB90000
FO_OFF = 0xBD0000
QK_TILE = 56*512
Q_OFF = 0x10000
KV_OFF = 0x1D0000
KV_REC = QK_TILE + 32768
T_OFF  = 0x590000
T_ROW = 30*1024
T2_OFF = 0x770000
T2_Q = 232*16
T2_ROW = 8*T2_Q
O_OFF  = 0x950000
WS_USED = 0xC50000
TS_OFF = 0xE00000
assert Q_OFF + 64*QK_TILE <= KV_OFF and KV_OFF + 64*KV_REC <= T_OFF
X_BYTES = 2048*448*2
W_BYTES = 2048*225*2
WQKV_BYTES = 448*1344*2
WO_BYTES = 448*448*2
OUT_BYTES = 2048*896*2
QSCALE = math.log2(math.e)/math.sqrt(28.0)
```

```python
import sys, struct
from emit import Asm
from layout import *
NAME = "concat_heads__spectral_gfnet__softmax_full_mha__prompt"
OPT = dict(stamps=0, r1=8, pf=1, sl1=1, sl2=8, sl3=16, rot=0, x=0, probe=0, pwave=4, pwg=100, pd=0, wos=-3, lp=13, slg=8, g2=1, ro=2, wm=1, tch=0, pda=0, oa=1, ob=1, gd=0, dyn=0, wsb=0, fl=1, pw=2, tw=0, sd=0, sp=0, td=0, ad=0, bn=0, gk=2, hp=2, hs=2, fo=1, ts=0, ap=0, pm=0, fm=0, al=0, pk=0, lg=2, hk=6, bp=0, ord=2, pfw=3, av=-1, rota=1, wa=0, ag=0, gdl=0, gl=1, wg=1, xt=1, map=0, y=0, ze=0, zs=0, pe=12, gp=0, bt=1, ln=1, kn=1, fs=1, pg=0, pa=0, pn=4, oe=1, vs=1, pvd=1, ad1=0, rt=3, le=1, sm=1, r4=1, w1=0, w2=4, wo2=0, ab=0, ft=1, g3=0, cl=0, km=0, xm=0, kr=0, bt2=1, bw=2, pb=1)
args = []
for a in sys.argv[1:]:
    if "=" in a: k, v = a.split("="); assert k in OPT, k; OPT[k] = int(v)
    else: args.append(a)
STAMPS = OPT["stamps"]
MODS = ['', 'sc1', 'nt', 'sc0 sc1']
OA, OBM = MODS[OPT['oa']], MODS[OPT['ob']]
def f32(x): return "0x%08x" % struct.unpack("<I", struct.pack("<f", x))[0]
def vr(a, n=1): return f"v{a}" if n == 1 else f"v[{a}:{a+n-1}]"
def sr(a, n=1): return f"s{a}" if n == 1 else f"s[{a}:{a+n-1}]"
P_AX, P_WR, P_WI, P_BX, P_WQKV, P_WO, P_OUT, P_DBG, P_WS = 8,10,12,14,16,18,20,22,24
MFMA = "v_mfma_f32_32x32x16_bf16"
SMF = "v_smfmac_f32_32x32x32_bf16"
SC = "sc1"
KM = ['sc1', '', 'nt', 'sc1 nt', 'sc0 sc1'][OPT['km']]
XM = ['', 'sc1', 'nt', 'sc1 nt'][OPT['xm']]
PM = ['sc1', 'sc0 sc1', 'sc1 nt', 'sc0 sc1 nt'][OPT['pm']]
FM = ['sc1', 'sc0 sc1', 'sc1 nt', 'sc0 sc1 nt'][OPT['fm']]
HI = "quad_perm:[0,1,2,3] row_mask:0xc bank_mask:0xf"
TAGC = 0x9E3779B9
TAG = 62
SWS = 36; W = sr(SWS,4)
SX, SW = 28, 32
SPIN = 200000
FOFF = 7*16384
WO, OST = 0, 0
QX, EX, TX, WX, CX = 0, 8192, 16384, 24576, 32768
MERGE = 114688
ZOFF, YOFF = MERGE, MERGE + 28672
CNT = 162816
LDS_BYTES = 163840
(C_P1, R_KV, C_MERGE, C_OST, R_A1, C_EX, C_A2, R_A2, C_Z, C_Y, C_WOA, C_WOF, C_GO, C_G2, C_Q, C_LF, C_T, C_W, C_X, C_H) = [CNT+16*i+12 for i in range(20)]

A = Asm()
LOCK = [False]
def stamp(i):
    if OPT["ts"] == 3 and LOCK[0] and i in (10, 11, 12): return
    if STAMPS: A(f"{'s_memtime' if STAMPS == 2 else 's_memrealtime'} s[{64+2*i}:{65+2*i}]")
def stampw(i):
    if STAMPS: stamp(i); A("s_waitcnt lgkmcnt(0)")
def srd(d, p, nbytes):
    A(f"s_mov_b32 s{d}, s{p}\ns_mov_b32 s{d+1}, s{p+1}\ns_mov_b32 s{d+2}, {nbytes}\ns_mov_b32 s{d+3}, 0x00020000")
def pi32(d, s, t):
    A(f"""v_and_b32 v{d}, 0x13, v{s}
v_and_b32 v{t}, 4, v{s}
v_lshl_or_b32 v{d}, v{t}, 1, v{d}
v_and_b32 v{t}, 8, v{s}
v_lshrrev_b32 v{t}, 1, v{t}
v_or_b32 v{d}, v{d}, v{t}""")
def mod7(d, t):
    A(f"s_mul_i32 s{t}, s{d}, 37\ns_lshr_b32 s{t}, s{t}, 8\ns_mul_i32 s{t}, s{t}, 7\ns_sub_u32 s{d}, s{d}, s{t}")
RB = [None]
def resident(b, o):
    RB[0] = (b, o) if b is not None else None
    if b is not None: A(f"v_mov_b32 v{b}, {CNT}\nv_mov_b32 v{o}, 1")
def cref(addr, setup=True, one=False):
    if RB[0]: return f"v{RB[0][0]}", f"v{RB[0][1]}", f" offset:{addr-CNT}"
    if setup: A(f"v_mov_b32 v12, {addr}")
    if one: A("v_mov_b32 v13, 1")
    return "v12", "v13", ""
def lds_add(addr):
    b, o, off = cref(addr, True, True)
    A(f"s_mov_b64 exec, 1\nds_add_u32 {b}, {o}{off}\ns_mov_b64 exec, -1")
def lds_wait(addr, target, sleep=0, setup=True):
    L, L2 = A.lab("lw"), A.lab("lwd")
    b, o, off = cref(addr, setup)
    A(f"""{L}:
ds_read_b32 v13, {b}{off}
s_waitcnt lgkmcnt(0)
v_readfirstlane_b32 s60, v13
s_cmp_ge_u32 s60, {target}""")
    if sleep: A(f"s_cbranch_scc1 {L2}\ns_sleep {sleep}\ns_branch {L}\n{L2}:")
    else: A(f"s_cbranch_scc0 {L}")
def lds_sync(addr, target, sleep=0, pre=None):
    L = A.lab("sy")
    b, o, off = cref(addr, True, True)
    A("s_mov_b64 exec, 1")
    if pre: A(pre)
    A(f"""ds_add_rtn_u32 v13, {b}, {o}{off}
s_mov_b64 exec, -1
s_waitcnt lgkmcnt(0)
v_readfirstlane_b32 s60, v13
s_cmp_eq_u32 s60, {target-1}
s_cbranch_scc1 {L}""")
    lds_wait(addr, target, sleep, False)
    A(f"{L}:")
def arrive(cnt, skip):
    b, o, off = cref(cnt, True, True)
    A(f"""s_mov_b64 exec, 1
s_waitcnt vmcnt(0)
ds_add_rtn_u32 v13, {b}, {o}{off}
s_mov_b64 exec, -1
s_waitcnt lgkmcnt(0)
v_readfirstlane_b32 s60, v13
s_cmp_lg_u32 s60, 3
s_cbranch_scc1 {skip}""")
def execmask(n): return f"s_bfm_b64 exec, {n}, 0"
def flagstore(soff, nrep, repstride, t=40, val=None):
    val = val or f"s{TAG}"
    if not OPT["fl"]:
        A(f"""v_mul_u32_u24 v12, {repstride}, v0
v_mov_b32 v13, {val}
s_mov_b64 exec, {(1<<nrep)-1}
buffer_store_dword v13, v12, {W}, {soff} offen {SC}
s_mov_b64 exec, -1""")
        return
    A(f"""v_lshrrev_b32 v12, 3, v0
v_mul_u32_u24 v12, {repstride}, v12
v_and_b32 v13, 7, v0
v_lshl_add_u32 v12, v13, 4, v12""")
    for i in range(4): A(f"v_mov_b32 v{t+i}, {val}")
    if nrep < 8: A(execmask(8*nrep))
    A(f"buffer_store_dwordx4 {vr(t,4)}, v12, {W}, {soff} offen {FM}")
    for _ in range(nrep//8 - 1): A(f"v_add_u32 v12, {8*repstride}, v12\nbuffer_store_dwordx4 {vr(t,4)}, v12, {W}, {soff} offen {FM}")
    if nrep < 8: A("s_mov_b64 exec, -1")
def publish(cnt, soff, nrep, repstride):
    L = A.lab("pub")
    if OPT["fl"]:
        A(f"v_lshrrev_b32 v10, 3, v0\nv_mul_u32_u24 v10, {repstride}, v10\nv_and_b32 v13, 7, v0\nv_lshl_add_u32 v10, v13, 4, v10")
        for i in range(4): A(f"v_mov_b32 v{36+i}, s{TAG}")
        arrive(cnt, L)
        if nrep < 8: A(execmask(8*nrep))
        A(f"buffer_store_dwordx4 v[36:39], v10, {W}, s{soff} offen {FM}")
        for _ in range(nrep//8 - 1): A(f"v_add_u32 v10, {8*repstride}, v10\nbuffer_store_dwordx4 v[36:39], v10, {W}, s{soff} offen {FM}")
        if nrep < 8: A("s_mov_b64 exec, -1")
    else:
        arrive(cnt, L); flagstore(f"s{soff}", nrep, repstride)
    lds_add(C_X); A(f"{L}:")
def acquire(rel, body, sleep, sleep2=1):
    LP, LD, LO, LE = A.lab("poll"), A.lab("pollok"), A.lab("pollw"), A.lab("polle")
    A(f"s_cmp_lg_u32 s40, 0\ns_cbranch_scc1 {LO}\ns_mov_b32 s61, {SPIN}\n{LP}:")
    body()
    A(f"""s_cbranch_vccz {LD}
s_sub_u32 s61, s61, 1
s_cmp_eq_u32 s61, 0
s_cbranch_scc1 {LD}
s_sleep {sleep}
s_branch {LP}
{LD}:""")
    lds_add(rel)
    A(f"s_branch {LE}\n{LO}:")
    lds_wait(rel, 1, sleep2)
    A(f"{LE}:")
def spin(load, reg, sleep, mask=None):
    if mask: load = f"{mask}\n{load}"
    LP, LD = A.lab("spin"), A.lab("spinok")
    A(f"""s_mov_b32 s61, {SPIN}
{LP}:
{load}
s_waitcnt vmcnt(0)
v_cmp_ne_u32 vcc, s{TAG}, v{reg}
s_cbranch_vccz {LD}
s_sub_u32 s61, s61, 1
s_cmp_eq_u32 s61, 0
s_cbranch_scc1 {LD}
s_sleep {sleep}
s_branch {LP}
{LD}:""")
    if mask: A("s_mov_b64 exec, -1")
def gettag():
    if OPT["wsb"]: A(f"s_add_u32 s24, s24, {OPT['wsb'] << 20}\ns_addc_u32 s25, s25, 0")
    A(f"s_load_dword s{TAG}, s[24:25], {EPOCH_OFF}")
    srd(SWS, P_WS, WS_USED)
def fixtag():
    A(f"s_waitcnt lgkmcnt(0)\ns_add_u32 s{TAG}, s{TAG}, {TAGC}")

FIN, END, ATT, PUB1, HELP2, GEN = "L_fin", "L_end", "L_att", "L_pub1", "L_help2", "L_gen"
LA1, LB1C, LB1G, LA1C, LV, LN, LFB = "L_a1", "L_b1c", "L_b1g", "L_a1c", "L_b1v", "L_norm", "L_fallback"
K = NAME + "_kernel"

def entry():
    A(f".globl {K}\n.p2align 8\n.type {K},@function\n{K}:")
    A(f"""s_cmp_ge_u32 s2, 256
s_cbranch_scc1 {FIN}
s_load_dwordx16 s[8:23], s[0:1], 0
s_load_dwordx2 s[24:25], s[0:1], 64
v_lshrrev_b32 v1, 6, v0
v_readfirstlane_b32 s3, v1
v_and_b32 v0, 63, v0""")
    if STAMPS:
        for i in range(2, 14): A(f"s_mov_b32 s{64+2*i}, 0")
        A("s_memtime s[64:65]\ns_memrealtime s[66:67]")
    if OPT["pf"]:
        L = A.lab("pf"); LP = A.lab("pc")
        A(f"""{"s_cmp_lg_u32 s3, 3" if OPT["pfw"] == 3 else "s_cmp_ge_u32 s3, %d" % OPT["pfw"]}
s_cbranch_scc1 {L}
s_getpc_b64 s[56:57]
{LP}:
s_lshr_b32 s58, s2, 3
s_add_u32 s58, s58, s3
s_and_b32 s58, s58, 3
s_lshl_b32 s58, s58, 13
v_lshlrev_b32 v1, 7, v0
v_add_u32 v1, s58, v1
v_min_u32 v1, {FIN}-{LP}, v1
global_load_dword v63, v1, s[56:57]
{L}:""")
    A(f"""s_and_b32 s4, s2, 7
s_lshr_b32 s5, s2, 3
s_lshl_b32 s6, s4, 1
s_and_b32 s7, s5, 1
s_or_b32 s6, s6, s7
s_lshr_b32 s7, s5, 1           ; column group 0..10 (B1), 11..15 (A1)
s_and_b32 s40, s3, 3
s_cmp_ge_u32 s7, 11
s_cbranch_scc1 {LA1}""")
    if OPT["map"] == 1:
        A("""s_and_b32 s26, s4, 1
s_mul_i32 s26, s26, 6
s_lshr_b32 s7, s5, 2
s_add_u32 s7, s7, s26
s_and_b32 s26, s6, 12
s_and_b32 s27, s5, 3
s_or_b32 s26, s26, s27
s_cmp_lt_u32 s5, 20
s_cselect_b32 s6, s26, s6
s_cselect_b32 s7, s7, 5""")
    if OPT["map"] == 2:
        A("""s_and_b32 s26, s4, 3
s_mul_i32 s26, s26, 22
s_add_u32 s26, s26, s5
s_lshr_b32 s7, s26, 3
s_and_b32 s26, s26, 7
s_and_b32 s6, s6, 8
s_or_b32 s6, s6, s26""")
    A(f"s_cmp_lt_u32 s3, 4\ns_cbranch_scc1 {LB1C}")

def xaddr(rs, d=2):
    A(f"""v_lshrrev_b32 v17, 3, v0
v_and_b32 v14, 7, v0
v_lshrrev_b32 v15, 4, v0
v_xor_b32 v14, v14, v15
v_lshlrev_b32 v14, 4, v14
v_xor_b32 v16, 64, v14
v_mul_u32_u24 v17, {rs}, v17
v_add_u32 v{d}, v17, v14
v_add_u32 v{d+1}, v17, v16
v_add_u32 v{d+1}, {8*rs-1024}, v{d+1}
v_add_u32 v{d+2}, {2*(8*rs-1024)}, v{d}
v_add_u32 v{d+3}, {2*(8*rs-1024)}, v{d+1}""")
def b1_loader():
    A("s_setprio 3")
    if OPT["rot"] == 2: A("s_mov_b32 s26, s7")
    elif OPT["rot"] == 3: A("s_and_b32 s26, s6, 1\ns_mul_i32 s26, s26, 3\ns_add_u32 s26, s26, s7")
    elif OPT["rot"] == 4: A("s_and_b32 s26, s6, 1\ns_mul_i32 s26, s26, 3")
    elif OPT["rot"] == 6: A("s_lshl_b32 s26, s6, 1\ns_add_u32 s26, s26, s7")
    elif OPT["rot"] == 7: A("s_mul_i32 s26, s7, 3\ns_add_u32 s26, s26, s6")
    elif OPT["rot"] == 5: A("s_lshr_b32 s26, s6, 1\ns_add_u32 s26, s26, s7")
    else: A("s_add_u32 s26, s6, s7")
    mod7(26, 27)
    if not OPT["rot"]: A("s_mov_b32 s26, 0")
    xaddr(896)
    A(f"""v_and_b32 v14, 15, v0
v_lshlrev_b32 v16, 2, v15
v_xor_b32 v14, v14, v16
v_lshlrev_b32 v14, 4, v14
v_mul_u32_u24 v15, 2688, v15
v_add_u32 v6, v14, v15
v_add_u32 v7, {4*2688-1024}, v6
v_add_u32 v8, {2*(4*2688-1024)}, v6
v_add_u32 v9, {3*(4*2688-1024)}, v6
s_lshl_b32 s41, s6, 2
s_add_u32 s47, s41, s40          ; token tile of this wave
s_mul_i32 s41, s47, {32*896}     ; x base
s_mul_i32 s42, s40, {16*2688}
s_lshl_b32 s43, s7, 8
s_add_u32 s42, s42, s43          ; w base
s_lshl_b32 s44, s40, 12          ; lds base of this wave""")
    if OPT["ts"] == 3: stamp(10)
    A("s_waitcnt lgkmcnt(0)")
    srd(SX, P_BX, X_BYTES); srd(SW, P_WQKV, WQKV_BYTES)
    def issue():
        A(f"""s_lshl_b32 s45, s26, 7
s_add_u32 s45, s45, s41
s_mul_i32 s46, s26, {64*2688}
s_add_u32 s46, s46, s42
s_mov_b32 m0, s44""")
        for i in range(4): A(f"buffer_load_dwordx4 v{2+i}, {sr(SX,4)}, s45 offen offset:{1024*i} {XM} lds")
        A(f"s_add_u32 m0, s44, 16384")
        for i in range(4): A(f"buffer_load_dwordx4 v{6+i}, {sr(SW,4)}, s46 offen offset:{1024*i} {XM} lds")
        A("""s_add_u32 s26, s26, 1
s_cmp_eq_u32 s26, 7
s_cselect_b32 s26, 0, s26
s_add_u32 s44, s44, 0x8000
s_and_b32 s44, s44, 0x1ffff""")
    LL = A.lab("b1ld")
    if OPT["ts"] == 3: stamp(12)
    issue()
    if OPT["ts"] == 3: stamp(11)
    gettag()
    A(f"s_mov_b32 s48, 6\n{LL}:")
    if OPT["x"] != 2: issue()
    else: A("s_waitcnt vmcnt(0)")
    A("s_waitcnt vmcnt(8)")
    if STAMPS:
        LX = A.lab("st"); A(f"s_cmp_lg_u32 s48, 6\ns_cbranch_scc1 {LX}"); stamp(2); A(f"{LX}:")
    A(f"""s_barrier
s_sub_u32 s48, s48, 1
s_cmp_lg_u32 s48, 0
s_cbranch_scc1 {LL}""")
    fixtag()
    wsetup()
    pass
    A("s_waitcnt vmcnt(0)")
    stamp(3)
    A(f"s_barrier\ns_cmp_eq_u32 s7, 10\ns_cbranch_scc1 {ATT}")
    for x in WL[:OPT["wm"]]: A(x)
    A(f"s_branch {ATT}")

WL = [] if OPT["wg"] else [f"buffer_load_dwordx4 v[96:99], v248, {sr(SX,4)}, s55 offen", f"buffer_load_dwordx4 v[100:103], v248, s[56:59], s55 offen"]
def wsetup(force=False):
    if OPT["wg"] and not force: return
    LNY = A.lab("nyq")
    srd(SX, P_WR, W_BYTES); srd(56, P_WI, W_BYTES)
    A(f"""s_lshr_b32 s54, s2, 3          ; ko
s_mul_i32 s55, s4, {4*450}
s_mul_i32 s43, s40, {512*450}
s_add_u32 s55, s55, s43
s_lshl_b32 s43, s54, 4
s_add_u32 s55, s55, s43
s_cmp_lg_u32 s54, 28
s_cbranch_scc1 {LNY}""")
    srd(SX, P_WI, W_BYTES); srd(56, P_WR, W_BYTES)
    A(f"""s_sub_u32 s55, s55, 14
{LNY}:
v_lshrrev_b32 v9, 2, v0
v_and_b32 v10, 3, v0
v_lshl_add_u32 v9, v9, 5, v10
v_mul_u32_u24 v248, 450, v9""")
A1LD, ATT2 = "L_a1ld", "L_att2"
SXA = SX
def a1_dispatch_loader():
    A(f"""{LA1}:
s_sub_u32 s5, s7, 11           ; g5
s_mul_i32 s26, s5, 3
s_lshr_b32 s26, s26, 1         ; e0 in 0,1,3,4,6""")
    if not OPT["rota"]: A("s_mov_b32 s26, 0")
    A(f"s_cmp_lt_u32 s3, 4\ns_cbranch_scc1 {LA1C}\ns_setprio 3")
    A(f"""s_lshl_b32 s96, s6, 2
s_add_u32 s96, s96, s40
s_mul_i32 s96, s96, 896
s_lshl_b32 s97, s40, 12
s_lshl_b32 s98, s26, 2
s_add_u32 s98, s98, 3
s_lshl_b32 s99, s6, 7
s_add_u32 s99, s99, {GO_OFF}""")
    mod7(98, 27)
    A("s_waitcnt lgkmcnt(0)")
    if OPT["bt2"]:
        LP1, LP2 = A.lab("pre"), A.lab("pre")
        srd(SX, P_BX, X_BYTES)
        A(f"""s_lshr_b32 s42, s2, 3
s_sub_u32 s42, s42, 22
v_lshlrev_b32 v1, 7, v0
s_cmp_eq_u32 s40, 3
s_cbranch_scc1 {LP1}
s_mul_i32 s43, s42, 3
s_add_u32 s43, s43, s40
s_min_u32 s43, s43, 27
s_lshl_b32 s43, s43, 13
s_mul_i32 s44, s4, {256*896}
s_add_u32 s43, s43, s44
buffer_load_dword v45, v1, {sr(SX,4)}, s43 offen
s_branch {LP2}
{LP1}:""")
        srd(SX, P_WQKV, WQKV_BYTES)
        A(f"""s_lshl_b32 s43, s42, 3
s_add_u32 s43, s43, s4
s_lshl_b32 s43, s43, 13
s_add_u32 s43, s43, {64*2688}
buffer_load_dword v45, v1, {sr(SX,4)}, s43 offen
s_add_u32 s43, s43, {80*8192}
buffer_load_dword v44, v1, {sr(SX,4)}, s43 offen
{LP2}:""")
        if OPT["bt2"] == 2: A("s_waitcnt vmcnt(0)")
    if OPT["xt"]:
        srd(SX, P_AX, X_BYTES)
        A(f"""s_lshl_b32 s44, s5, 7
s_add_u32 s43, s96, s44
s_cmp_lt_u32 s5, 2
s_cselect_b32 s44, 640, 0
v_lshrrev_b32 v1, 5, v0
v_mul_u32_u24 v1, s44, v1
v_and_b32 v2, 31, v0
v_mul_u32_u24 v2, {64*896}, v2
v_add_u32 v1, v1, v2
buffer_load_dword v46, v1, {sr(SX,4)}, s43 offen""")
    if OPT["bt2"] >= 3:
        c0 = OPT["bt2"] - 1
        srd(SX, P_WQKV, WQKV_BYTES)
        A(f"""v_lshlrev_b32 v1, 7, v0
s_lshl_b32 s43, s42, 2
s_add_u32 s43, s43, s40
s_lshl_b32 s43, s43, 13
s_add_u32 s43, s43, {c0*64*2688}""")
        if OPT["bw"]: A(f"s_waitcnt vmcnt({OPT['bw']-1})")
        for z in range(-(-(7-c0)*21 // 40)):
            A(f"buffer_load_dword v44, v1, {sr(SX,4)}, s43 offen\ns_add_u32 s43, s43, {40*8192}")
    gettag()
    wsetup()
    if not OPT["wa"]:
        for x in WL: A(x)
    A(f"s_mov_b32 s0, s{P_AX}\ns_mov_b32 s1, s{P_AX+1}")
    fixtag()
    if OPT["cl"]:
        A("v_and_b32 v14, 31, v0\nv_lshrrev_b32 v15, 5, v0")
        gen_c(80)
    A(f"s_branch {ATT}")
    A(f"{A1LD}:\ns_setprio 3\nv_mov_b32 v9, 0")
    xaddr(64*896, 48)
    if OPT["wa"] == 2:
        for x in WL: A(x)
    srd(SX, 0, X_BYTES)
    spin(f"buffer_load_dword v14, v9, {W}, s99 offen {PM}", 14, 2)
    stamp(2)
    LL = A.lab("a1ld")
    A(f"""s_mov_b32 s100, 0
{LL}:
s_lshl_b32 s42, s98, 7
s_add_u32 s42, s42, s96
s_lshl_b32 s43, s98, 14
s_add_u32 m0, s97, s43""")
    for i in range(4): A(f"buffer_load_dwordx4 v{48+i}, {sr(SXA,4)}, s42 offen offset:{1024*i} lds")
    A(f"""s_add_u32 s98, s98, 4
s_sub_u32 s43, s98, 7
s_cmp_ge_u32 s98, 7
s_cselect_b32 s98, s43, s98
s_add_u32 s100, s100, 1
s_cmp_lt_u32 s100, 3
s_cbranch_scc1 {LL}
s_waitcnt vmcnt(4)
s_barrier
s_cmp_lt_u32 s100, 7
s_cbranch_scc1 {LL}
s_waitcnt vmcnt(0)""")
    stamp(3)
    A("s_barrier")
    if OPT["pa"] == 1: lds_wait(C_W, 4, 1)
    if OPT["pa"] == 2: lds_wait(C_LF, 4, 1)
    if OPT["pa"] == 3: lds_wait(C_P1, 1, 1)
    A(f"s_branch {ATT2}")

def main_start():
    A(f"""v_lshlrev_b32 v1, 4, v0
v_add_u32 v1, {CNT+12}, v1
v_mov_b32 v2, 0
ds_write_b32 v1, v2""")

C, ER, EI, G, GT = 128, 160, 176, 192, 16
def tlbwarm():
    g = OPT["tw"]
    if not g: return
    L = A.lab("tw")
    n = (WS_USED >> g) // 32 + 1
    A(f"""s_cmp_lg_u32 s3, 2
s_cbranch_scc1 {L}
s_lshr_b32 s60, s2, 3
s_mul_i32 s60, s60, {n << g}
v_lshlrev_b32 v12, {g}, v0""")
    for i in range(0, n, 64):
        k = min(64, n - i)
        if k < 64: A(f"s_bfm_b64 exec, {k}, 0")
        A(f"buffer_load_dword v255, v12, {W}, s60 offen offset:64")
        if i + 64 < n: A(f"s_add_u32 s60, s60, {64 << g}")
    A("s_mov_b64 exec, -1")
    m = (W_BYTES >> g) // 32 + 1
    srd(28, P_WR, W_BYTES); srd(32, P_WI, W_BYTES)
    A(f"""s_lshr_b32 s60, s2, 3
s_mul_i32 s60, s60, {m << g}
s_bfm_b64 exec, {m}, 0
buffer_load_dword v255, v12, s[28:31], s60 offen
buffer_load_dword v255, v12, s[32:35], s60 offen
s_mov_b64 exec, -1
{L}:""")
def prewrite():
    tlbwarm()
    if OPT["pw"] < 2: return
    L = A.lab("pw")
    A(f"""s_cmp_lg_u32 s3, 3
s_cbranch_scc1 {L}
s_sub_u32 s60, s{TAG}, {TAGC}
s_lshl_b32 s61, s7, 4
s_add_u32 s61, s61, s6
s_lshl_b32 s61, s61, 7
s_add_u32 s61, s61, {F1_OFF}""")
    flagstore("s61", OPT["r1"], 32768, 40, "s60")
    A(f"{L}:")
def touches(which):
    if "x" in which:
        srd(28, P_AX, X_BYTES)
        A(f"""s_lshl_b32 s43, s6, 2
s_add_u32 s43, s43, s3
s_mul_i32 s43, s43, 896
s_lshl_b32 s44, s5, 7
s_add_u32 s43, s43, s44
s_cmp_lt_u32 s5, 2
s_cselect_b32 s44, 640, 0
v_mul_u32_u24 v1, s44, v15
v_mul_u32_u24 v7, {64*896}, v14
v_add_u32 v1, v1, v7
buffer_load_dword v63, v1, s[28:31], s43 offen""")
    A(f"""s_lshr_b32 s45, s2, 3
s_sub_u32 s45, s45, 22
s_lshl_b32 s45, s45, 2
s_add_u32 s45, s45, s3""")
    if "w" in which:
        LT = A.lab("tch")
        srd(28, P_WR, W_BYTES)
        A(f"s_bitcmp0_b32 s45, 0\ns_cbranch_scc1 {LT}")
        srd(28, P_WI, W_BYTES)
        A(f"""{LT}:
s_lshr_b32 s43, s45, 1
s_mul_i32 s43, s43, {128*450}
s_mul_i32 s44, s4, {4*450}
s_add_u32 s43, s43, s44
s_and_b32 s43, s43, 0xffffff80
v_lshrrev_b32 v1, 4, v0
v_mul_u32_u24 v1, {32*450}, v1
v_and_b32 v7, 15, v0
v_lshl_add_u32 v1, v7, 7, v1
buffer_load_dword v63, v1, s[28:31], s43 offen""")
    if "o" in which:
        srd(28, P_WO, WO_BYTES)
        A(f"""s_mul_i32 s43, s45, {12*896}
s_and_b32 s44, s2, 1
s_lshl_b32 s44, s44, 9
s_add_u32 s43, s43, s44
v_lshrrev_b32 v1, 2, v0
v_mul_u32_u24 v1, 896, v1
v_and_b32 v7, 3, v0
v_lshl_add_u32 v1, v7, 7, v1
s_mov_b32 exec_hi, 0xffff
buffer_load_dword v63, v1, s[28:31], s43 offen
s_mov_b64 exec, -1""")
TCH = {0: ("", ""), 1: ("x", "wo"), 2: ("", "xwo"), 3: ("xwo", ""), 4: ("", "x"), 5: ("x", ""), 6: ("xw", "o"), 7: ("w", "xo")}[OPT["tch"]]
def gen_common():
    A(f"""v_and_b32 v14, 31, v0
v_lshrrev_b32 v15, 5, v0
s_lshr_b32 s50, s2, 5
s_lshl_b32 s50, s50, 3
s_or_b32 s50, s50, s4
s_bfe_u32 s51, s2, 0x20003       ; d quarter
s_and_b32 s52, s40, 1            ; parity e""")
def rot_gen(n, nblk, step, base, mult, dmult, out, scale=None):
    c, sn, t = GT, GT+8, GT+16
    A(f"v_mul_f32 v11, {f32(float(dmult))}, v{step}")
    for j in range(n): A(f"v_fmamk_f32 v{t+j}, v{step}, {f32(float(mult[j]))}, v{base}")
    A("v_cos_f32 v10, v11\nv_sin_f32 v12, v11")
    for j in range(n): A(f"v_cos_f32 v{c+j}, v{t+j}\nv_sin_f32 v{sn+j}, v{t+j}")
    A("v_mov_b32 v11, v10\nv_mov_b32 v13, v12")
    if scale is not None:
        for j in range(n): A(f"v_mul_f32 v{c+j}, {f32(scale)}, v{c+j}\nv_mul_f32 v{sn+j}, {f32(scale)}, v{sn+j}")
    for b in range(nblk):
        out(b)
        if b + 1 < nblk:
            for j in range(0, n, 2): A(f"v_pk_mul_f32 {vr(t+j,2)}, {vr(sn+j,2)}, v[12:13]")
            for j in range(0, n, 2): A(f"v_pk_mul_f32 {vr(sn+j,2)}, {vr(sn+j,2)}, v[10:11]")
            for j in range(0, n, 2): A(f"v_pk_fma_f32 {vr(sn+j,2)}, {vr(c+j,2)}, v[12:13], {vr(sn+j,2)}")
            for j in range(0, n, 2): A(f"v_pk_fma_f32 {vr(c+j,2)}, {vr(c+j,2)}, v[10:11], {vr(t+j,2)} neg_lo:[0,0,1] neg_hi:[0,0,1]")
def gen_c(C=C):
    A(f"""v_lshrrev_b32 v8, 1, v14
s_lshl_b32 s43, s40, 4
v_add_u32 v8, s43, v8
v_cvt_f32_u32 v8, v8
v_mul_f32 v8, {f32(1/64)}, v8    ; step = u2/64
v_and_b32 v9, 1, v14
v_cvt_f32_u32 v9, v9
v_mul_f32 v9, {f32(0.25)}, v9
v_lshlrev_b32 v10, 1, v15
v_cvt_f32_u32 v10, v10
v_fma_f32 v9, v8, v10, v9        ; base""")
    def out(f):
        for p in range(4): A(f"v_cvt_pk_bf16_f32 v{C+4*f+p}, v{GT+p}, v{GT+8+p}")
    rot_gen(4, 8, 8, 9, [0,1,4,5], 8, out)
def gen_e():
    A(f"""v_lshlrev_b32 v8, 6, v14
v_add_u32 v8, s50, v8
v_cvt_f32_u32 v8, v8
v_mul_f32 v8, {f32(1/2048)}, v8
v_lshlrev_b32 v9, 2, v15
v_cvt_f32_u32 v9, v9
v_mul_f32 v9, v8, v9""")
    def out(f):
        for p in range(4): A(f"v_cvt_pk_bf16_f32 v{ER+4*f+p}, v{GT+p}, -v{GT+8+p}")
        for p in range(4): A(f"v_cvt_pk_bf16_f32 v{EI+4*f+p}, v{GT+8+p}, v{GT+p}")
    rot_gen(4, 4, 8, 9, [0,1,2,3], 8, out, 2.0/(2048*448))
def gen_g():
    A(f"""s_lshr_b32 s44, s40, 1
s_lshl_b32 s45, s51, 1
s_add_u32 s44, s44, s45         ; d tile
s_lshl_b32 s46, s44, 5
v_add_u32 v8, s46, v14          ; d
v_cvt_f32_u32 v8, v8
v_mul_f32 v8, {f32(1/448)}, v8
v_lshlrev_b32 v9, {2 if OPT["kn"] else 3}, v15
v_add_u32 v9, s52, v9
v_cmp_eq_u32 vcc, 0, v9
v_cvt_f32_u32 v9, v9
v_mul_f32 v9, v8, v9""")
    def out(t):
        for j in range(4): A(f"v_cvt_pk_bf16_f32 v{G+8*t+j}, v{GT+2*j}, v{GT+2*j+1}")
        for j in range(4): A(f"v_cvt_pk_bf16_f32 v{G+8*t+4+j}, -v{GT+8+2*j}, -v{GT+9+2*j}")
    rot_gen(8, 7, 8, 9, [(8*(j>>1)+2*(j&1) if OPT["kn"] else 16*(j>>2)+2*(j&3)) for j in range(8)], 32, out)
    A(f"""v_and_b32 v8, 0xffff0000, v{G}
v_or_b32 v8, 0x3f00, v8
v_and_b32 v10, 1, v14
v_lshlrev_b32 v10, 15, v10
v_cndmask_b32 v{G}, v{G}, v8, vcc
v_and_b32 v8, 0xffff, v8
v_and_b32 v9, 0xffff0000, v{G+4}
v_or3_b32 v9, v9, v10, v8
v_cndmask_b32 v{G+4}, v{G+4}, v9, vcc""")
def gen_pre():
    gen_common()

ACC = 64
def acc(a, b): return ACC + 32*a + 16*b
LONES = "L_ones"
def b1_body(vtype):
    if vtype: pi32(48, 14, 49)
    else: A("v_mov_b32 v48, v14")
    A(f"""v_lshrrev_b32 v49, 1, v48
v_and_b32 v49, 7, v49
v_xor_b32 v49, v49, v15
v_lshlrev_b32 v49, 4, v49
v_lshl_or_b32 v50, v48, 7, v49
s_lshl_b32 s43, s41, 13
v_add_u32 v52, s43, v50
v_xor_b32 v53, 32, v52
v_xor_b32 v54, 64, v52
v_xor_b32 v55, 96, v52""")
    A(f"""v_bfe_u32 v48, v0, 2, 2        ; rr
v_and_b32 v49, 3, v0           ; cc""")
    if not vtype:
        A("""v_lshrrev_b32 v50, 1, v49
v_and_b32 v49, 1, v49
v_lshl_or_b32 v49, v49, 1, v50 ; sigma(cc)""")
    A(f"""v_bfe_u32 v50, v0, 4, 1        ; colhalf
v_lshlrev_b32 v50, 5, v50
v_lshl_or_b32 v50, v49, 3, v50
s_lshl_b32 s43, s42, 7
v_or_b32 v50, s43, v50
v_lshlrev_b32 v51, 6, v48
v_xor_b32 v50, v50, v51
v_lshl_add_u32 v51, v15, 3, v48 ; 8h+rr
v_lshl_or_b32 v56, v51, 8, v50
v_add_u32 v56, 16384, v56
v_xor_b32 v57, 64, v56""")
    A(f"""s_lshl_b32 s46, s6, 2
s_lshl_b32 s47, s41, 1
s_add_u32 s46, s46, s47
s_lshl_b32 s47, s7, 2
s_lshl_b32 s48, s42, 1
s_add_u32 s47, s47, s48""")
    if not vtype:
        A(f"""s_lshl_b32 s48, s47, 11
v_lshlrev_b32 v2, 4, v0
s_cmp_ge_u32 s47, 14
s_cselect_b32 s49, {KV_REC - QK_TILE}, 0
s_cselect_b32 s43, {KV_OFF - Q_OFF - 14*2048}, 0
s_cselect_b32 s54, 1.0, {f32(QSCALE)}
s_mov_b32 s55, s54
s_add_u32 s49, s49, {QK_TILE}
s_mul_i32 s46, s46, s49
s_add_u32 s46, s46, s48
s_add_u32 s46, s46, s43
s_add_u32 s46, s46, {Q_OFF}
s_add_u32 s49, s46, s49""")
    else:
        A(f"""s_sub_u32 s45, s7, 7
s_lshl_b32 s45, s45, 7
s_add_u32 s45, s45, 27
s_mul_i32 s45, s45, 2341
s_lshr_b32 s45, s45, 16
v_lshrrev_b32 v10, 4, v0
v_add_u32 v10, s45, v10
v_lshrrev_b32 v11, 2, v0
v_lshlrev_b32 v11, 9, v11
s_lshl_b32 s45, s45, 11
v_add_u32 v11, s45, v11
v_cmp_gt_u32 s[56:57], 16, v10
v_and_b32 v4, 3, v0
v_lshl_or_b32 v4, v4, 4, v11
s_cmp_lt_u32 s7, 9
s_cselect_b32 s58, 0xffff, 0
s_mov_b32 s59, 0
s_lshl_b32 s54, s6, 2
s_add_u32 s54, s54, s40
s_mul_i32 s54, s54, {KV_REC}
s_add_u32 s54, s54, {KV_OFF + QK_TILE + 28*16}
s_add_u32 s55, s54, 8192
v_and_b32 v58, 1, v0
v_add_u32 v58, -1, v58
v_and_b32 v58, 0x3f803f80, v58
v_mov_b32 v59, v58
v_mov_b32 v60, v58
v_mov_b32 v61, v58
s_sub_u32 s47, s47, 28
s_mul_i32 s46, s46, {KV_REC}
s_add_u32 s46, s46, {KV_OFF + QK_TILE}
s_add_u32 s49, s46, {KV_REC}
s_lshl_b32 s48, s47, 5""")
        for b in range(2):
            A(f"""v_add_u32 v48, s48, v14
v_add_u32 v48, {32*b}, v48
v_mul_u32_u24 v49, 2341, v48
v_lshrrev_b32 v49, 16, v49     ; head
v_mul_u32_u24 v50, 28, v49
v_sub_u32 v48, v48, v50        ; d
v_lshlrev_b32 v48, 4, v48
v_lshl_or_b32 v48, v15, 9, v48
v_lshl_or_b32 v{2+b}, v49, 11, v48""")
    def ones(label):
        LO = A.lab("ones")
        if label: A(f"{LONES}:")
        A(f"""s_mov_b64 exec, s[56:57]
buffer_store_dwordx4 v[58:61], v4, {W}, s54 offen {SC}
s_mov_b64 exec, s[58:59]
s_cbranch_execz {LO}
buffer_store_dwordx4 v[58:61], v4, {W}, s55 offen {SC}
{LO}:
s_mov_b64 exec, -1""")
    SETS = (16, 32, 192, 208)
    def rx(kap, p, a): return f"ds_read_b128 {vr(SETS[p]+4*a,4)}, v{6+kap} offset:{4096*a}"
    def rw(kap, p, b): return [f"ds_read_b64_tr_b16 {vr(SETS[p]+8+4*b+2*u,2)}, v{10+b} offset:{(16*kap+4*u)*256}" for u in range(2)]
    def rdlist(kap, p): return [rx(kap,p,0)] + rw(kap,p,0) + rw(kap,p,1) + [rx(kap,p,1)]
    def setaddr(): return [f"v_add_u32 v{6+i}, s44, v{52+i}" for i in range(6)]
    def mf(a, b, p):
        x, w = vr(SETS[p]+4*a,4), vr(SETS[p]+8+4*b,4)
        o = (x, w) if vtype else (w, x)
        A(f"{MFMA} {vr(acc(a,b),16)}, {o[0]}, {o[1]}, {vr(acc(a,b),16)}")
    gb = []
    def fill(n):
        for _ in range(n):
            if gb:
                for x in gb.pop(0): A(x)
    def kstep(p, r, f):
        A("s_waitcnt lgkmcnt(3)")
        mf(0,0,p)
        for x in r[0:3]: A(x)
        fill(f[0])
        A("s_waitcnt lgkmcnt(4)")
        mf(0,1,p)
        for x in r[3:5]: A(x)
        fill(f[1])
        A("s_waitcnt lgkmcnt(5)")
        mf(1,0,p)
        for x in r[5:6]: A(x)
        fill(f[2])
        mf(1,1,p)
        if OPT["bn"]: A(f"s_nop {OPT['bn']}")
        fill(f[3])
    LL = A.lab("b1loop")
    if vtype:
        LI, LI2 = A.lab("idle"), A.lab("idle")
        A(f"s_cmp_lt_u32 s47, 14\ns_cbranch_scc1 {LI}")
        prewrite()
        for n in range(7):
            A("s_barrier")
            if n == OPT["gk"]:
                A(f"s_cmp_lg_u32 s3, 2\ns_cbranch_scc1 {LI2}\ns_lshl_b32 s61, s6, 7\ns_add_u32 s61, s61, {GO_OFF}")
                flagstore("s61", 1, 0)
                A(f"{LI2}:")
        if OPT["oe"]: ones(False)
        A(f"s_branch {LONES}\n{LI}:")
    A("s_mov_b32 s44, 0\ns_mov_b32 s45, 0")
    for x in setaddr(): A(x)
    prewrite()
    stampw(9)
    A("s_barrier")
    stampw(2)
    for x in rdlist(0, 0): A(x)
    A(f"{LL}:")
    kstep(0, rdlist(1, 1), (0,1,2,3))
    kstep(1, rdlist(2, 0), (0,1,2,3))
    A("s_add_u32 s44, s44, 0x8000\ns_and_b32 s44, s44, 0x1ffff\ns_add_u32 s45, s45, 1")
    kstep(0, rdlist(3, 1), (1,1,2,0))
    for x in setaddr(): A(x)
    A("s_barrier")
    kstep(1, rdlist(0, 0), (1,1,1,1))
    assert not gb
    A(f"s_cmp_lt_u32 s45, 6\ns_cbranch_scc1 {LL}")
    if OPT["x"] in (2, 3): A("s_memtime s[84:85]\ns_waitcnt lgkmcnt(0)")
    rd = []
    for kap in (1,2,3): rd += [rx(kap,kap,0)] + rw(kap,kap,0)
    for kap in (1,2,3): rd += rw(kap,kap,1)
    for kap in (1,2,3): rd += [rx(kap,kap,1)]
    order = [rdlist(0,0)[i] for i in range(6)] + rd
    def epi(a, b):
        e = []; t = acc(a,b)
        for i in range(8):
            if not vtype:
                if OPT["pk"] or (a, b) == (1, 1): e.append(f"v_pk_mul_f32 {vr(t+2*i,2)}, {vr(t+2*i,2)}, s[54:55]")
                else: e += [f"v_mul_f32 v{t+2*i}, s54, v{t+2*i}", f"v_mul_f32 v{t+2*i+1}, s54, v{t+2*i+1}"]
            e.append(f"v_cvt_pk_bf16_f32 v{t+i}, v{t+2*i}, v{t+2*i+1}" if OPT["x"] != -10 else f"v_mov_b32 v{t+i}, 0")
            if i & 3 == 3:
                if OPT["sd"] and (a, b, i) == (0, 0, 3): e.append(f"s_sleep {OPT['sd']}")
                if OPT["sp"]: e.append(f"s_sleep {OPT['sp']}")
                if vtype: e.append(f"buffer_store_dwordx4 {vr(t+i-3,4)}, v{2+b}, {W}, s{46 if a==0 else 49} offen offset:{1024*(i>>2)} {SC}")
                else: e.append(f"buffer_store_dwordx4 {vr(t+i-3,4)}, v2, {W}, s{46 if a==0 else 49} offen offset:{2048*b+1024*(i>>2)} {SC}")
        return e
    issued = 6; pend = []; lastw = None
    tiles = [(a,b) for a in range(2) for b in range(2)]
    seq = [(a,b,0) for a,b in tiles] + [(a,b,k) for a,b in tiles for k in (1,2,3)]
    for m, (a, b, kap) in enumerate(seq):
        need = max(order.index(x) for x in [rx(kap,kap,a)] + rw(kap,kap,b)) + 1
        while issued < need: A(order[issued]); issued += 1
        if lastw is None or need > lastw:
            A(f"s_waitcnt lgkmcnt({issued - need})"); lastw = need
        mf(a, b, kap)
        for _ in range(3):
            if issued < len(order) and issued - lastw < 14: A(order[issued]); issued += 1
        if m in (8, 11, 14): pend += epi(*tiles[(m-8)//3])
        if m == 5 and vtype and OPT["oe"]: ones(False)
        if m == 15: stamp(3)
        for _ in range((6 if OPT["pk"] else 8) if not vtype else 4):
            if pend: A(pend.pop(0))
    for x in pend + epi(1,1): A(x)
    if vtype:
        if OPT["oe"]: A(f"{LONES}:")
        else: ones(True)
    lds_add(C_LF)
    A(f"s_branch {PUB1}")
def b1_compute():
    A(f"""s_and_b32 s41, s3, 1           ; wr
s_lshr_b32 s42, s3, 1          ; wc""")
    fixtag()
    A(f"s_cmp_ge_u32 s7, 7\ns_cbranch_scc1 {LV}")
    b1_body(False)
    A(f"{LV}:")
    b1_body(True)

def a1_gen():
    LF, LE = A.lab("fgen"), A.lab("fend")
    A(f"{LA1C}:\ns_setprio 2")
    if OPT["gdl"]: A(f"s_sleep {OPT['gdl']}")
    gen_common()
    pi32(48, 14, 49)
    A(f"""v_lshlrev_b32 v61, 4, v0
v_add_u32 v61, {FOFF}, v61""")
    main_start()
    A(f"""v_lshrrev_b32 v48, 1, v48       ; k_local
s_mul_i32 s41, s5, 3
s_add_u32 s41, s41, s3
s_lshl_b32 s41, s41, 4
v_add_u32 v48, s41, v48
v_cvt_f32_u32 v48, v48
v_mul_f32 v56, {f32(1/448)}, v48 ; k/448
v_and_b32 v48, 1, v14
v_cvt_f32_u32 v48, v48
v_mul_f32 v59, {f32(0.25)}, v48  ; c/4
v_lshlrev_b32 v60, 3, v15
v_cvt_f32_u32 v60, v60
v_fma_f32 v59, v56, v60, v59
v_mul_f32 v58, {f32(16.0)}, v56
v_cos_f32 v58, v58
s_mul_i32 s41, s3, 14336
v_add_u32 v53, s41, v61""")
    for j in range(16): A(f"v_fmamk_f32 v{16+j}, v56, {f32(float(16*(j>>3)+(j&7)))}, v59")
    A("v_add_f32 v58, v58, v58")
    for j in range(16): A(f"v_cos_f32 v{16+j}, v{16+j}")
    A("s_waitcnt lgkmcnt(0)")
    gettag()
    A(f"s_cmp_eq_u32 s3, 3\ns_cbranch_scc1 {LE}\nv_mov_b32 v59, v58\ns_mov_b32 s42, 7\n{LF}:")
    for u in range(2):
        for j in range(4): A(f"v_cvt_pk_bf16_f32 v{32+4*u+j}, v{16+8*u+2*j}, v{17+8*u+2*j}")
        A(f"ds_write_b128 v53, {vr(32+4*u,4)} offset:{1024*u}")
        for j in range(4):
            a, b = 16+8*u+2*j, 16+8*(u^1)+2*j
            A(f"v_pk_fma_f32 {vr(a,2)}, {vr(b,2)}, v[58:59], {vr(a,2)} neg_lo:[0,0,1] neg_hi:[0,0,1]") if u == 0 else None
    for j in range(4):
        a, b = 24+2*j, 16+2*j
        A(f"v_pk_fma_f32 {vr(a,2)}, {vr(b,2)}, v[58:59], {vr(a,2)} neg_lo:[0,0,1] neg_hi:[0,0,1]")
    A(f"""v_add_u32 v53, 2048, v53
s_sub_u32 s42, s42, 1
s_cmp_lg_u32 s42, 0
s_cbranch_scc1 {LF}
{LE}:""")
E1R, E1I = 56, 248
def a1_compute():
    if TCH[0]: touches(TCH[0])
    if not OPT["ag"]:
        A(f"{GEN}:")
        gen_e()
        if OPT["pg"] == 4: lds_add(C_H)
        gen_g()
        A(f"s_cmp_lt_u32 s7, 11\ns_cbranch_scc1 {HELP2}")
    if TCH[1]: touches(TCH[1])
    A(f"""s_lshl_b32 s41, s6, 2
s_add_u32 s41, s41, s3          ; s2 index
v_lshlrev_b32 v9, 8, v15
v_add_u32 v9, s41, v9
v_mul_u32_u24 v9, v14, v9
v_cvt_f32_u32 v9, v9
v_mul_f32 v9, {f32(1/2048)}, v9
v_cvt_f32_u32 v8, v14
v_mul_f32 v8, {f32(1/32)}, v8
v_mov_b32 v5, v61
s_waitcnt vmcnt(0)""")
    def out(b):
        for j in range(4): A(f"v_cvt_pk_bf16_f32 v{E1R+4*b+j}, v{GT+2*j}, v{GT+2*j+1}")
        for j in range(4): A(f"v_cvt_pk_bf16_f32 v{E1I+4*b+j}, -v{GT+8+2*j}, -v{GT+9+2*j}")
    rot_gen(8, 2, 8, 9, [8*(j>>2)+(j&3) for j in range(8)], 16, out)
    A(f"""v_lshrrev_b32 v49, 1, v14
v_and_b32 v49, 7, v49
v_xor_b32 v49, v49, v15
v_lshlrev_b32 v49, 4, v49
v_lshl_or_b32 v6, v14, 7, v49
s_lshl_b32 s43, s3, 12
v_add_u32 v6, s43, v6
v_and_b32 v3, 2, v14
v_lshlrev_b32 v3, 30, v3
v_or_b32 v3, 1.0, v3            ; (-1)^k
v_mov_b32 v2, v3
v_lshlrev_b32 v4, 4, v0
s_mul_i32 s47, s41, {T_ROW}
s_mul_i32 s42, s5, 6144
s_add_u32 s47, s47, s42
s_add_u32 s47, s47, {T_OFF}
s_add_u32 s48, s47, 2048
s_add_u32 s49, s47, 4096""")
    egen = []
    A(f"s_mul_i32 s27, s26, 8256")
    def a1salu(adv=True):
        r = []
        if adv: r += ["s_add_u32 s27, s27, 8256", f"s_cmp_eq_u32 s27, {7*8256}", "s_cselect_b32 s27, 0, s27"]
        return r + ["s_and_b32 s43, s27, 0x1c040", f"s_add_u32 s44, s27, {7*8256}", "s_and_b32 s44, s44, 0x1c040",
                    "s_lshr_b32 s46, s27, 2", "s_and_b32 s46, s46, 0x7800"]
    a1valu = ["v_xor_b32 v8, s43, v6", "v_xor_b32 v10, s44, v6", "v_xor_b32 v9, 32, v8", "v_xor_b32 v11, 32, v10", "v_add_u32 v12, s46, v5"]
    def a1rd(t):
        b = 16 + 20*t
        return ([f"ds_read_b128 {vr(b,4)}, v{8+t}"] +
                [f"ds_read_b128 {vr(b+8+4*kgi,4)}, v12 offset:{1024*t+14336*kgi}" for kgi in range(3)] +
                [f"ds_read_b128 {vr(b+4,4)}, v{10+t}"])
    def a1step(t, nxt, first=False, fill=0, adv=False):
        b = 16 + 20*t
        r = list(nxt); issued = 0
        sa = a1salu() if adv else []; va = list(a1valu) if adv else []
        for m in range(6):
            hi, kgi = m // 3, m % 3
            need = (2, 3, 4, 5, 5, 5)[m]
            if not nxt: hi, kgi, need = m % 2, m // 2, (2, 5, 5, 5, 5, 5)[m]
            if m < (4 if nxt else 2): A(f"s_waitcnt lgkmcnt({5 - need + issued})")
            d = 64 + 32*kgi + 16*hi
            A(f"{MFMA} {vr(d,16)}, {vr(b+4*hi,4)}, {vr(b+8+4*kgi,4)}, {0 if first else vr(d,16)}")
            for _ in range(2 if m == 0 else 1):
                if r: A(r.pop(0)); issued += 1
            if m in (1, 2, 3):
                for _ in range(3):
                    if sa: A(sa.pop(0))
            if m == 4:
                while va: A(va.pop(0))
            for _ in range(fill if not (adv and m in (1,2,3,4)) else fill // 2):
                if egen: A(egen.pop(0))
    LL, LS, LNB = A.lab("a1loop"), A.lab("a1last"), A.lab("a1nb")
    for x in a1salu(False) + a1valu: A(x)
    fixtag()
    prewrite()
    for x in a1valu[4:]: A(x)
    stampw(9)
    A("s_barrier")
    stampw(2)
    if OPT["ad"]: A(f"s_sleep {OPT['ad']}")
    for x in a1rd(0): A(x)
    for n in range(1):
        a1step(0, a1rd(1), n == 0, 2, True)
        if OPT["gl"]: A("s_barrier")
        a1step(1, a1rd(0), False, 3)
    assert not egen
    A(f"s_mov_b32 s45, 1\n{LL}:")
    a1step(0, a1rd(1), adv=True)
    LH = A.lab("a1h")
    A(f"""s_add_u32 s45, s45, 1
s_cmp_eq_u32 s45, 7
s_cbranch_scc1 {LS}
s_nop 0""")
    if OPT["gl"]: A(f"s_cmp_eq_u32 s45, 6\ns_cbranch_scc1 {LNB}\ns_barrier\n{LNB}:")
    a1step(1, a1rd(0))
    A(f"s_branch {LL}\n{LS}:")
    a1step(1, [])
    stamp(3)
    def s1(kgi):
        P, Q = 64+32*kgi, 80+32*kgi
        e = []
        for i in range(8):
            if OPT["pk"]: e.append(f"v_pk_fma_f32 {vr(P+2*i,2)}, {vr(Q+2*i,2)}, v[2:3], {vr(P+2*i,2)}")
            else: e += [f"v_fmac_f32 v{P+2*i}, v3, v{Q+2*i}", f"v_fmac_f32 v{P+2*i+1}, v3, v{Q+2*i+1}"]
            e.append(f"v_cvt_pk_bf16_f32 v{16+8*kgi+i}, v{P+2*i}, v{P+2*i+1}")
        return e
    def mm(kgi):
        P, Q = 64+32*kgi, 80+32*kgi
        return [f"{MFMA} {vr(P,16)}, {vr(16+8*kgi,4)}, {vr(E1R,4)}, 0", f"{MFMA} {vr(Q,16)}, {vr(16+8*kgi,4)}, {vr(E1I,4)}, 0",
                f"{MFMA} {vr(P,16)}, {vr(20+8*kgi,4)}, {vr(E1R+4,4)}, {vr(P,16)}", f"{MFMA} {vr(Q,16)}, {vr(20+8*kgi,4)}, {vr(E1I+4,4)}, {vr(Q,16)}"]
    def s2(kgi):
        P, Q = 64+32*kgi, 80+32*kgi
        e = []
        for j in range(8):
            e += [f"v_sub_f32 v{P+2*j}, v{P+2*j}, v{Q+2*j+1}", f"v_add_f32 v{Q+2*j}, v{Q+2*j}, v{P+2*j+1}",
                  f"v_cvt_pk_bf16_f32 v{40+8*kgi+j}, v{P+2*j}, v{Q+2*j}"]
            if j & 3 == 3: e.append(f"buffer_store_dwordx4 {vr(40+8*kgi+j-3,4)}, v4, {W}, s{47+kgi} offen offset:{1024*(j>>2)} {SC}")
        return e
    def weave(ms, vs):
        k = (len(vs) + len(ms) - 1) // len(ms)
        for m in ms:
            A(m)
            for _ in range(k):
                if vs: A(vs.pop(0))
    lds_add(C_LF)
    for x in s1(0): A(x)
    weave(mm(0), s1(1)); weave(mm(1), s1(2)); weave(mm(2), s2(0))
    for x in s2(1) + s2(2): A(x)

def pub1():
    A(f"""{PUB1}:
s_lshl_b32 s41, s7, 11
s_lshl_b32 s42, s6, 7
s_add_u32 s41, s41, s42
s_add_u32 s41, s41, {F1_OFF}""")
    stamp(4)
    if OPT["pa"] == 1: lds_add(C_W)
    publish(C_P1, 41, OPT["r1"], 32768)
    stamp(5)
    if OPT["cl"]: A(f"s_cmp_ge_u32 s7, 11\ns_cbranch_scc1 {HELP2}")
    gen_c()
    if OPT["pg"] == 3: lds_add(C_H)
    if OPT["ag"]: gen_e(); gen_g()
    else: A(f"s_cmp_lt_u32 s7, 11\ns_cbranch_scc1 {GEN}")

Q, S, O, KV = 16, 48, 112, 176
OK = O + 48
TB = 8
SO = 32
def q(j,i): return vr(Q+8*j+4*i, 4)
def kb(b,i): return KV+16*b+4*i
def tile_loads(b, so):
    return [f"buffer_load_dwordx4 {vr(kb(b,0),4)}, v1, {W}, s{so} offen {KM}",
            f"buffer_load_dwordx4 {vr(kb(b,1),4)}, v2, {W}, s{so} offen {KM}",
            f"buffer_load_dwordx4 {vr(kb(b,2),4)}, v3, {W}, s{so} offen {KM}",
            f"buffer_load_dwordx4 {vr(kb(b,3),4)}, v3, {W}, s{so} offen offset:1024 {KM}"]
def attention():
    LOCK[0] = True
    resident(None, None)
    LNY, LNW = A.lab("nyq"), A.lab("now")
    A(f"{ATT}:\ns_setprio 0")
    A("s_mov_b32 s51, s7")

    srd(SO, P_OUT, OUT_BYTES)
    A(f"""s_lshl_b32 s4, s4, 1
s_bfe_u32 s5, s2, 0x10003
s_or_b32 s4, s4, s5            ; head
s_lshr_b32 s5, s2, 4           ; qb
s_mul_i32 s6, s4, 7
s_lshr_b32 s45, s6, 1
s_add_u32 s6, s6, 1
s_lshr_b32 s6, s6, 1
s_lshl_b32 s6, s6, 9
v_lshlrev_b32 v8, 4, v0
v_add_u32 v1, s6, v8
s_bitcmp1_b32 s4, 0
s_cselect_b32 s7, -2040, 0
v_add_u32 v2, 1024, v1
v_add_u32 v6, s7, v2
v_mov_b32 v4, 0x3f80
v_mov_b32_dpp v2, v6 {HI}
s_lshl_b32 s7, s4, 11
s_add_u32 s7, s7, {QK_TILE}
v_and_b32 v9, 30, v0           ; lanes 26,27 <-> rows 28,29
v_cmp_eq_u32 vcc, 26, v9
v_cmp_eq_u32 s[48:49], 28, v9
s_or_b64 vcc, vcc, s[48:49]
v_xor_b32 v9, 96, v8
v_cndmask_b32 v3, v8, v9, vcc
v_add_u32 v3, s7, v3           ; V offset
v_mov_b32 v5, 0xdddd
v_mov_b32 v7, 0
s_lshl_b32 s45, s45, 3         ; first column touched (Q part)
v_bfe_u32 v9, v0, 2, 1
v_mul_u32_u24 v10, 31, v9
v_add_u32 v10, s45, v10        ; Q column
v_add_u32 v11, 448, v10        ; K column
v_mul_u32_u24 v9, 27, v9
s_mul_i32 s46, s4, 28
s_add_u32 s46, s46, 896
v_add_u32 v9, s46, v9          ; V column
v_lshrrev_b32 v10, 7, v10
v_lshlrev_b32 v10, 11, v10
v_mov_b32_dpp v11, v9 quad_perm:[0,1,2,3] row_mask:0xa bank_mask:0xf
s_lshl_b32 s46, s5, 7
v_add_u32 v10, s46, v10
v_lshrrev_b32 v11, 7, v11
v_lshlrev_b32 v11, 11, v11
v_and_b32 v9, 3, v0
v_lshl_add_u32 v11, v9, 7, v11
s_lshl_b32 s46, s40, 9
v_add_u32 v11, s46, v11        ; K/V flag offsets of this wave's 4 token blocks
v_mov_b32_dpp v11, v10 {HI}
s_and_b32 s46, s2, {OPT["r1"]-1}
s_lshl_b32 s46, s46, 15
s_add_u32 s46, s46, {F1_OFF}
s_lshl_b32 s43, s5, 2
s_add_u32 s42, s40, s43
s_mul_i32 s42, s42, {QK_TILE}
s_add_u32 s50, s42, {Q_OFF}
s_mul_i32 s47, s40, {16*KV_REC}
s_add_u32 s47, s47, {KV_OFF}""")
    A(f"s_and_b32 s43, s5, {OPT['kr']}")
    for i in range(16):
        A(f"s_add_u32 s42, s43, {i}\ns_and_b32 s42, s42, 15\ns_mul_i32 s42, s42, {KV_REC}\ns_add_u32 s{TB+i}, s42, s47")
    for j in range(4):
        A(f"""s_add_u32 s42, s40, {j}
s_and_b32 s42, s42, 3
s_lshl_b32 s42, s42, 11
s_add_u32 s42, s42, {QX}
v_add_u32 v{240+j}, s42, v8
s_add_u32 s42, s40, {j+1}
s_and_b32 s42, s42, 3
s_mul_i32 s42, s42, 12288
s_add_u32 s42, s42, {MERGE + (4096*j if j < 3 else 0)}
v_add_u32 v{244+j}, s42, v8""")
    A(f"""s_add_u32 s41, s40, 3
s_and_b32 s41, s41, 3
s_lshl_b32 s43, s5, 2
s_add_u32 s41, s41, s43        ; token tile kept by this wave
s_lshl_b32 s26, s41, 15
s_lshl_b32 s42, s4, 11
s_add_u32 s26, s26, s42
s_add_u32 s26, s26, {O_OFF}
s_lshl_b32 s27, s41, 11
s_lshl_b32 s42, s4, 7
s_add_u32 s27, s27, s42
s_add_u32 s27, s27, {FO_OFF}
s_bfe_u32 s42, s2, 0x20001
s_or_b32 s43, s43, s42         ; token tile of the projection
s_and_b32 s53, s2, 1
s_and_b32 s52, s53, {OPT["ro"]-1}
s_lshl_b32 s53, s53, 1
s_bfe_u32 s42, s2, 0x10003
s_or_b32 s53, s53, s42
{"s_mov_b32 s52, s53" if OPT["ro"] == 4 else ""}
s_lshl_b32 s52, s52, 17
s_lshl_b32 s53, s53, 2
s_add_u32 s53, s53, s40        ; n tile
s_lshl_b32 s45, s43, 15
s_lshl_b32 s44, s40, 13
s_add_u32 s45, s45, s44
s_add_u32 s45, s45, {O_OFF}
s_add_u32 s47, s45, 4096
s_mul_i32 s41, s43, {32*1792}
s_lshl_b32 s42, s53, 6
s_add_u32 s41, s41, s42
s_add_u32 s41, s41, 896
s_lshl_b32 s42, s43, 11
s_add_u32 s52, s52, s42
s_lshl_b32 s42, s40, 9
s_add_u32 s52, s52, s42
s_add_u32 s52, s52, {FO_OFF}
v_and_b32 v249, 3, v0
v_lshlrev_b32 v249, 7, v249
v_lshrrev_b32 v15, 5, v0
v_and_b32 v14, 31, v0
v_mul_u32_u24 v250, 1792, v14
v_lshl_add_u32 v250, v15, 4, v250
v_lshrrev_b32 v251, 3, v0
v_lshlrev_b32 v251, 17, v251
v_and_b32 v13, 7, v0
v_lshl_add_u32 v251, v13, 4, v251
v_bfe_u32 v9, v0, 2, 2        ; rr
v_and_b32 v10, 3, v0
v_lshrrev_b32 v12, 1, v10
v_and_b32 v10, 1, v10
v_lshl_or_b32 v10, v10, 1, v12    ; sigma(cc)
v_bfe_u32 v12, v0, 4, 1
v_lshlrev_b32 v12, 5, v12
v_lshl_or_b32 v10, v10, 3, v12
s_lshl_b32 s42, s40, 6
v_or_b32 v10, s42, v10
v_mul_u32_u24 v12, 320, v9
v_xor_b32 v252, v10, v12
v_lshl_add_u32 v252, v15, 10, v252  ; rows 4h+rr
v_lshl_or_b32 v9, v15, 1, v9
v_mul_u32_u24 v12, 320, v9
v_xor_b32 v253, v10, v12        ; rows rr (h=0) / 2,3,2,3 (h=1)
v_add_u32 v254, {224*256}, v252
v_add_u32 v255, {224*256}, v253
v_mov_b32 v6, v8""")
    if OPT["pw"]:
        A(f"s_sub_u32 s60, s{TAG}, {TAGC}")
        flagstore("s27", OPT["ro"], 131072, 40, "s60")
    for i in range(64): A(f"v_mov_b32 v{O+i}, 0")
    assert OPT["wg"]
    A(f"s_cmp_ge_u32 s51, 11\ns_cbranch_scc1 {A1LD}")
    if OPT["bp"]: A("s_setprio 3")
    if OPT["pg"] == 0: lds_wait(C_X, 1, 1)
    elif OPT["pg"] == 1: lds_wait(C_P1, 1, 1)
    elif OPT["pg"] == 2: lds_wait(C_LF, 4, 1)
    else: lds_wait(C_H, OPT["pn"], 1)
    for x in WL[OPT["wm"]:]: A(x)
    A(f"s_cmp_lg_u32 s51, 10\ns_cbranch_scc1 {ATT2}")
    for x in WL[:OPT["wm"]]: A(x)
    A(f"{ATT2}:\ns_setprio 3")
    stamp(5)
    resident(248, 15)
    kvp = f"buffer_load_dword v14, v11, {W}, s46 offen {PM}"
    MQK, MV = "s_mov_b32 exec_lo, 0xffff", "s_bfm_b64 exec, 16, 16"
    spin(kvp, 14, OPT["sl1"], MQK if OPT["vs"] else None)
    stamp(6)
    t0, t1 = tile_loads(0, TB), tile_loads(1, TB+1)
    A(f"""{t0[0]}
buffer_load_dwordx4 {q(0,0)}, v1, {W}, s50 offen {SC}
{t0[1]}
buffer_load_dwordx4 {q(0,1)}, v2, {W}, s50 offen {SC}""")
    if OPT["vs"] == 1: A(f"{MV}\n{kvp}\ns_mov_b64 exec, -1")
    F = OPT["ft"]
    issued = [(t, k) for t in range(1, F) for k in range(2)]
    for t, k in issued: A(tile_loads(t, TB+t)[k])
    lds_wait(C_LF, 4)
    if OPT["cl"]:
        LC_ = A.lab("noc")
        A(f"s_cmp_lt_u32 s51, 11\ns_cbranch_scc1 {LC_}\nv_add_u32 v9, s44, v6")
        for f in range(8): A(f"ds_write_b128 v9, {vr(S+32+4*f,4)} offset:{CX+1024*f}")
        A(f"{LC_}:")
    A(f"s_waitcnt vmcnt({len(issued)})")
    stamp(4)
    def vcheck():
        LV_ = A.lab("vok")
        A(f"{MV}\nv_cmp_ne_u32 vcc, s{TAG}, v14\ns_mov_b64 exec, -1\ns_cbranch_vccz {LV_}")
        spin(kvp, 14, OPT["sl1"], MV)
        A(f"{LV_}:")
    A(f"""v_mov_b32_dpp v{Q+6}, v7 {HI}
v_mov_b32_dpp v{Q+7}, v7 {HI}
v_mov_b32_dpp v{kb(0,1)+2}, v4 {HI}
{MFMA} {vr(S+16,16)}, {vr(kb(0,0),4)}, {q(0,0)}, 0""")
    if not OPT["vs"]: A(t0[2])
    A(f"{MFMA} {vr(S+16,16)}, {vr(kb(0,1),4)}, {q(0,1)}, {vr(S+16,16)}")
    if not OPT["vs"]: A(t0[3])
    A(f"""{MFMA} {vr(S,16)}, {vr(kb(0,0),4)}, {q(0,0)}, 0
ds_write_b128 v240, {q(0,0)}""")
    if not OPT["vs"]:
        for x in t1[:2]: A(x)
    s_ = S+16
    A(f"v_max3_f32 v8, v{s_}, v{s_+1}, v{s_+2}\nv_max3_f32 v9, v{s_+3}, v{s_+4}, v{s_+5}")
    for i in range(6, 14, 4): A(f"v_max3_f32 v8, v8, v{s_+i}, v{s_+i+1}\nv_max3_f32 v9, v9, v{s_+i+2}, v{s_+i+3}")
    A(f"""v_max3_f32 v8, v8, v{s_+14}, v{s_+15}
v_max_f32 v8, v8, v9
v_cvt_pk_bf16_f32 v8, -v8, v7
v_mov_b32_dpp v{Q+6}, v8 {HI}
ds_write_b128 v240, {q(0,1)} offset:1024
{MFMA} {vr(S,16)}, {vr(kb(0,1),4)}, {q(0,1)}, {vr(S,16)}""")
    lds_add(C_Q)
    vcheck()
    more = [(0,2),(0,3),(1,0),(1,1),(1,2),(1,3)] if F == 1 else [(t, k) for t in range(F) for k in (2, 3)]
    for t, k in more: A(tile_loads(t, TB+t)[k])
    issued += more
    qreads = [f"ds_read_b128 {q(j,h)}, v{240+j} offset:{1024*h}" for j in range(1, 4) for h in range(2)]
    PE = OPT["pe"] if F == 1 else 0
    if F == 1:
        for e in range(PE): A(f"v_exp_f32 v{S+e}, v{S+e}")
        lds_wait(C_Q, 4, 0, False)
        for x in qreads: A(x)
        A("s_waitcnt lgkmcnt(0)")
        stamp(7)
        lds_add(C_G2)
        A("s_setprio 1")
    else:
        stampw(7)
        A("s_setprio 1")
        if OPT["g3"]: lds_add(C_H)
    def mwrites(j):
        return ([f"ds_write_b128 v{244+j}, {vr(O+16*j+4*g,4)} offset:{1024*g}" for g in range(3)] +
                [f"ds_write_b96 v{244+j}, {vr(O+16*j+12,3)} offset:3072"])
    assert OPT["vs"] and OPT["pvd"]
    R = OPT["rt"]
    steps = [(i, j) for i in range(16 - R) for j in range(4)] + [(i, j) for j in range(4) for i in range(16 - R, 16)]
    steps = [(i, 0) for i in range(F)] + [x for x in steps if not (x[1] == 0 and x[0] < F)]
    if OPT["r4"]:
        steps.remove((15 - R, 3)); steps.insert(64 - R - 1, (15 - R, 3))
    def qk(n, h):
        i, j = steps[n]; d = vr(S+16*(n&3),16)
        return f"{MFMA} {d}, {vr(kb(i&3,h),4)}, {q(j,h)}, {d if h else 0}"
    def pv(n, h):
        i, j = steps[n]
        return f"{SMF} {vr(O+16*j,16)}, {vr(kb(i&3,2+h),4)}, {vr(S+16*(n&3)+8*h,8)}, v5"
    slots = []
    seenk, seenv = {0}, set()
    pos = {}
    for n in range(64):
        ms = []
        if n < 63:
            t = steps[n+1][0]; first = t not in seenk; seenk.add(t)
            whole = F <= t <= 16 - max(R, 1)
            ms.append(dict(m=qk(n+1,0), need=[(t,k) for k in range(4 if whole else 2)] if first else None, use=(t,0),
                           after=[f"v_mov_b32_dpp v{kb(t&3,1)+2}, v4 {HI}"] if first else []))
            ms.append(dict(m=qk(n+1,1), need=None, after=[], use=(t,1)))
        ops = {0: [], 1: [], 2: [(0,0),(0,1)], 3: [(1,0),(1,1),(2,0)], 4: [(2,1),(3,0),(3,1)], 5: [(4,0),(4,1),(5,0)]}.get(n, [(n-1,1),(n,0)])
        if n == 63: ms += [dict(m=None, need=None, after=[])]
        for o in ops:
            t = steps[o[0]][0]
            ms.append(dict(m=pv(*o), need=[(t,2),(t,3)] if t not in seenv else None, after=[], op=o, use=(t,2+o[1]))); seenv.add(t)
            if n == 63 and o[1] == 1: ms.append(dict(m=None, need=None, after=[]))
        while len(ms) < 4: ms.append(dict(m=None, need=None, after=[]))
        e0 = PE if n == 0 else 0
        cnt = [(16-e0)//4]*4 if len(ms) == 4 else [3,3,3,3,4]
        for g, x in enumerate(ms):
            x["exps"] = [S+16*(n&3)+e for e in range(e0, e0+cnt[g])]; e0 += cnt[g]; x["step"] = n; x["g"] = g
            if "op" in x: pos[x["op"]] = len(slots)
            pos[("s", n, g)] = len(slots)
            slots.append(x)
    def addload(n, g, t, k): slots[pos[("s", n, g)]]["after"].append((t, k))
    early = [(t, k) for t in range(1, 4) for k in range(4) if (t, k) not in issued]
    p = 0
    while early:
        if slots[p]["m"]:
            for _ in range(2 if p < 2 and len(early) > 4 else 1):
                if early: slots[p]["after"].append(early.pop(0))
        p += 1
    for t in range(4, 16):
        for k in range(4):
            lastuse = max(z for z, x in enumerate(slots) if x.get("use") == (t-4, k))
            z = max(pos[("s", 4*(t-3) - 1 + k, OPT["lg"])], lastuse + 1, p)
            slots[z]["after"].append((t, k)); p = z + 1
    if F > 1:
        bq, oq, offq = cref(C_Q)
        z = pos[("s", F-1, 0)]
        rq = [f"ds_read_b32 v13, {bq}{offq}"] + qreads
        slots[z-2]["after"] += rq[:4]; slots[z-1]["after"] += rq[4:]
        slots[z]["qcheck"] = True
    p = 0; tailw = []
    for j in range(3):
        last = max(n for n in range(64) if steps[n][1] == j)
        p = max(p, pos[(last, 1)] + 3)
        for w in mwrites(j):
            if p < len(slots): slots[p]["after"].append(w); p += 1
            else: tailw.append(w)
    b_, o_, off_ = cref(C_MERGE)
    spec = OPT["sm"] and not tailw and p <= len(slots) - 4
    madd = ["s_mov_b64 exec, 1", f"ds_add_u32 {b_}, {o_}{off_}", "s_mov_b64 exec, -1"]
    mreads = [f"ds_read_b128 {vr(O+4*g,4)}, v247 offset:{1024*g}" for g in range(12)]
    if not tailw: slots[p-1]["after"] += madd
    if spec:
        rd_ = [f"ds_read_b32 v13, {b_}{off_}"] + mreads
        for z, k in (zip((-3, -2, -1), (5, 4, 4)) if OPT["sm"] == 1 else zip((-2, -1), (7, 6)) if OPT["sm"] == 2 else ((-1, 13),)):
            slots[z]["after"] += rd_[:k]; rd_ = rd_[k:]
    landed = -1
    if slots[0]["need"]:
        landed = max(issued.index(z) for z in slots[0]["need"]); A(f"s_waitcnt vmcnt({len(issued)-1-landed})")
    for p_, x in enumerate(slots):
        if x["g"] == 0:
            n = x["step"]
            if n == 32: stamp(8)
            if OPT["ts"] == 2 and n in (16, 48): stamp(2 if n == 16 else 3)
        if x.get("qcheck"):
            LQ = A.lab("qok")
            A(f"s_waitcnt lgkmcnt(0)\nv_readfirstlane_b32 s60, v13\ns_cmp_ge_u32 s60, 4\ns_cbranch_scc1 {LQ}")
            lds_wait(C_Q, 4)
            for y in qreads: A(y)
            A(f"s_waitcnt lgkmcnt(0)\n{LQ}:")
            x["after"] = x["after"] + ["s_mov_b64 exec, 1", f"ds_add_u32 {bq}, {oq} offset:{C_G2-CNT}", "s_mov_b64 exec, -1"]
        if x["m"]: A(x["m"])
        for y in x["after"]:
            if isinstance(y, tuple): A(tile_loads(y[0] & 3, TB+y[0])[y[1]]); issued.append(y)
            else: A(y)
        nx = slots[p_+1]["need"] if p_ + 1 < len(slots) else None
        late = bool(nx) and x["step"] < 6
        def wait():
            nonlocal landed
            if nx and max(issued.index(z) for z in nx) > landed:
                landed = max(issued.index(z) for z in nx); A(f"s_waitcnt vmcnt({len(issued)-1-landed})")
        if not late: wait()
        for r in x["exps"]: A(f"v_exp_f32 v{r}, v{r}")
        if late: wait()
    for x in tailw[:2]: A(x)
    A(pv(63, 1))
    for x in tailw[2:]: A(x)
    stamp(9)
    A("s_setprio 3")
    LMD = A.lab("merged")
    if spec: A(f"s_waitcnt lgkmcnt({0 if STAMPS else 12})\nv_readfirstlane_b32 s60, v13\ns_cmp_ge_u32 s60, 4\ns_cbranch_scc1 {LMD}")
    if tailw: lds_sync(C_MERGE, 4)
    else: lds_wait(C_MERGE, 4)
    for x in mreads: A(x)
    A(f"{LMD}:\ns_waitcnt lgkmcnt(4)")
    for i in list(range(14, -2, -2)): A(f"v_pk_add_f32 {vr(O+i,2)}, {vr(O+i,2)}, {vr(O+16+i,2)}")
    A("s_waitcnt lgkmcnt(0)")
    for i in list(range(14, -2, -2)): A(f"v_pk_add_f32 {vr(O+i,2)}, {vr(O+i,2)}, {vr(O+32+i,2)}")
    for i in list(range(14, -2, -2)): A(f"v_pk_add_f32 {vr(OK+i,2)}, {vr(OK+i,2)}, {vr(O+i,2)}")
    A(f"""v_cmp_nle_f32 vcc, {f32(2.0**-40)}, v{OK+14}
s_mov_b64 s[48:49], vcc
v_cmp_nge_f32 vcc, {f32(2.0**40)}, v{OK+14}
s_or_b64 vcc, vcc, s[48:49]
s_cbranch_vccnz {LFB}
{LN}:
v_rcp_f32 v10, v{OK+14}
v_mov_b32 v{S+7}, 0
v_mov_b32 v11, v10""")
    for i in range(0, 14, 2):
        A(f"v_pk_mul_f32 {vr(OK+i,2)}, {vr(OK+i,2)}, v[10:11]")
        A(f"v_cvt_pk_bf16_f32 v{S+i//2}, v{OK+i}, v{OK+i+1}")
        if i == 6: A(f"buffer_store_dwordx4 {vr(S,4)}, v6, {W}, s26 offen {SC}")
    A(f"buffer_store_dwordx4 {vr(S+4,4)}, v6, {W}, s26 offen offset:1024 {SC}")
    stamp(10)
    if OPT["gp"] == 0: lds_add(C_GO)
    WF = 112; BACC = 16; OB = 64; NB = 6
    assert WO == 0 and OST == 0
    def wo_frags(half, n0=0, n1=16):
        for n in range(n0, n1):
            hd, i = n >> 1, n & 1
            b = WF + 64*half + 4*n
            row = 28*hd + 16*i
            A(f"ds_read_b64_tr_b16 {vr(b,2)}, v{252+2*half} offset:{row*256}")
            A(f"ds_read_b64_tr_b16 {vr(b+2,2)}, v{(253 if i else 252)+2*half} offset:{(row+8)*256}")
            if n % 6 == 5: A("s_waitcnt lgkmcnt(2)")
    for i in range(4): A(f"v_mov_b32 v{40+i}, s{TAG}")
    lds_wait(C_WOA, 4)
    wo_frags(0)
    if OPT["fo"] >= 3: lds_add(C_WOF)
    A("s_waitcnt lgkmcnt(2)")
    if OPT["fo"] == 2: wo_frags(1)
    poll = f"buffer_load_dword v14, v249, {W}, s52 offen {PM}"
    A(f"""{execmask(8*OPT["ro"])}
s_waitcnt vmcnt(0)
buffer_store_dwordx4 v[40:43], v251, {W}, s27 offen {FM}
s_mov_b64 exec, -1""")
    if OPT["ts"] == 1: stamp(2)
    if OPT["gp"] == 1: lds_add(C_GO)
    if OPT["ap"]: A(poll)
    if OPT["fo"] == 4: wo_frags(1, 0, 8)
    if OPT["fo"] >= 3: lds_wait(C_WOF, 4)
    else:
        if OPT["fo"] != 2: wo_frags(1)
        lds_sync(C_WOF, 4)
    if OPT["ts"] == 1: stamp(3)
    def odma():
        for half in range(2):
            A(f"s_add_u32 m0, s44, {OST+4096*half}")
            for i in range(4):
                A(f"buffer_load_dwordx4 v6, {W}, s{47 if half else 45} offen offset:{1024*i} {SC} lds")
    def btsetup():
        if OPT["bt"]:
            A(f"""s_lshl_b32 s42, s40, 11
s_add_u32 s42, s42, 32768
v_and_b32 v9, 31, v0
v_lshrrev_b32 v10, 5, v0
v_bfe_u32 v11, v0, 1, 2
v_xor_b32 v10, v10, v11
v_lshlrev_b32 v10, 4, v10
v_lshl_or_b32 v1, v9, 6, v10
v_add_u32 v1, s42, v1
v_xor_b32 v2, 32, v1
v_bfe_u32 v9, v0, 3, 2
v_lshlrev_b32 v9, 4, v9
v_xor_b32 v3, v6, v9
v_add_u32 v3, s42, v3
v_lshrrev_b32 v9, 2, v0
v_mul_u32_u24 v9, 1792, v9
v_and_b32 v10, 3, v0
v_lshl_add_u32 v4, v10, 4, v9
s_add_u32 s42, s41, {16*1792}""")
    if not OPT["dyn"]:
        LR = A.lab("oready")
        if OPT["ap"]: A(f"s_waitcnt vmcnt(0)\nv_cmp_ne_u32 vcc, s{TAG}, v14\ns_cbranch_vccz {LR}")
        spin(poll, 14, OPT["sl1"])
        A(f"{LR}:")
        stamp(11)
        odma(); btsetup()
        if OPT["fo"] == 3: wo_frags(1)
        if OPT["fo"] == 4: wo_frags(1, 8, 16)
        lds_sync(C_OST, 4, 0, "s_waitcnt vmcnt(0)")
        stampw(12)
        A(f"s_cmp_ge_u32 s53, 14\ns_cbranch_scc1 {END}")
        def rd(n): A(f"ds_read_b128 {vr(OB+4*(n%NB),4)}, v6 offset:{1024*n}")
        for n in range(NB-1): rd(n)
        for n in range(32):
            left = min(31, n+NB-2) - n
            A(f"s_waitcnt lgkmcnt({left})\n{MFMA} {vr(BACC,16)}, {vr(WF+4*n,4)}, {vr(OB+4*(n%NB),4)}, {vr(BACC,16) if n else 0}")
            if n + NB - 1 < 32: rd(n + NB - 1)
    else:
        LL, LM, LNONE, LC, LX = A.lab("b3l"), A.lab("b3m"), A.lab("b3n"), A.lab("b3c"), A.lab("b3x")
        LG = [A.lab("b3g") for _ in range(4)]
        GA = (16, 32, 48, 96) if OPT["dyn"] == 1 else (16, 16, 16, 16)
        btsetup()
        if OPT["dyn"] == 2:
            for i in range(16): A(f"v_mov_b32 v{16+i}, 0")
        A(f"""v_mov_b32 v12, {C_OST}
s_lshl_b32 s54, 1, s40
v_mov_b32 v10, s54
s_mov_b32 s50, 0
s_cmp_ge_u32 s53, 14
s_cselect_b32 s51, 15, 0
s_mov_b32 s61, {SPIN}
{LL}:
s_cmp_lg_u32 s50, 0
s_cbranch_scc1 {LM}
{poll}
{LM}:
ds_read_b32 v13, v12
s_waitcnt lgkmcnt(0)
v_readfirstlane_b32 s60, v13
s_andn2_b32 s60, s60, s51
s_cbranch_scc0 {LNONE}
s_ff1_i32_b32 s54, s60
s_bitset1_b32 s51, s54
s_cmp_eq_u32 s54, 1
s_cbranch_scc1 {LG[1]}
s_cmp_eq_u32 s54, 2
s_cbranch_scc1 {LG[2]}
s_cmp_eq_u32 s54, 3
s_cbranch_scc1 {LG[3]}""")
        for g in range(4):
            A(f"{LG[g]}:")
            for n in range(4): A(f"ds_read_b128 {vr(OB+4*n,4)}, v6 offset:{1024*(8*g+n)}")
            for n in range(8):
                left = min(7, n+3) - n
                c = vr(GA[g],16) if (n or OPT["dyn"] == 2) else 0
                A(f"s_waitcnt lgkmcnt({left})\n{MFMA} {vr(GA[g],16)}, {vr(WF+32*g+4*n,4)}, {vr(OB+4*n,4)}, {c}")
                if n + 4 < 8: A(f"ds_read_b128 {vr(OB+4*(n+4),4)}, v6 offset:{1024*(8*g+n+4)}")
            A(f"s_cmp_eq_u32 s51, 15\ns_cbranch_scc0 {LC}\ns_branch {LX}")
        A(f"""{LNONE}:
s_cmp_lg_u32 s50, 1
s_cbranch_scc1 {LC}
s_mov_b64 exec, 1
s_waitcnt vmcnt(0)
ds_or_b32 v12, v10
s_mov_b64 exec, -1
s_mov_b32 s50, 2
s_cmp_eq_u32 s51, 15
s_cbranch_scc1 {END}
s_branch {LM}
{LC}:
s_cmp_lg_u32 s50, 0
s_cbranch_scc1 {LM}
s_sub_u32 s61, s61, 1
s_waitcnt vmcnt(0)
v_cmp_ne_u32 vcc, s{TAG}, v14
s_cmp_eq_u32 s61, 0
s_cselect_b64 vcc, 0, vcc
s_cbranch_vccnz {LL}""")
        stamp(11)
        odma()
        A(f"s_mov_b32 s50, 1\ns_branch {LM}\n{LX}:\ns_nop 8")
        if OPT["dyn"] == 1:
            for i in range(0, 16, 2):
                A(f"v_pk_add_f32 {vr(16+i,2)}, {vr(16+i,2)}, {vr(32+i,2)}\nv_pk_add_f32 {vr(48+i,2)}, {vr(48+i,2)}, {vr(96+i,2)}")
            for i in range(0, 16, 2): A(f"v_pk_add_f32 {vr(16+i,2)}, {vr(16+i,2)}, {vr(48+i,2)}")
    if OPT["bt"]:
        for i in range(8):
            A(f"v_cvt_pk_bf16_f32 v{32+i}, v{BACC+2*i}, v{BACC+2*i+1}")
            if i == 3: A("ds_write_b128 v1, v[32:35]")
        A(f"""ds_write_b128 v2, v[36:39]
ds_read_b128 v[40:43], v3
ds_read_b128 v[44:47], v3 offset:1024
s_waitcnt lgkmcnt(1)
buffer_store_dwordx4 v[40:43], v4, {sr(SO,4)}, s41 offen {OBM}
s_waitcnt lgkmcnt(0)
buffer_store_dwordx4 v[44:47], v4, {sr(SO,4)}, s42 offen {OBM}
s_branch {END}""")
        return
    for i in range(8):
        A(f"v_cvt_pk_bf16_f32 v{32+i}, v{BACC+2*i}, v{BACC+2*i+1}")
        if i == 3: A(f"buffer_store_dwordx4 v[32:35], v250, {sr(SO,4)}, s41 offen {OBM}")
    A(f"""buffer_store_dwordx4 v[36:39], v250, {sr(SO,4)}, s41 offen offset:32 {OBM}
s_branch {END}""")

def helper():
    resident(None, None)
    SWO = 32
    def wo_run(upto):
        LW, LD = A.lab("wo"), A.lab("wod")
        A(f"""{LW}:
s_cmp_le_i32 s96, {upto}
s_cbranch_scc1 {LD}
s_mov_b32 m0, s98
s_waitcnt vmcnt({-OPT["wos"]})
buffer_load_dwordx4 v250, {sr(SWO,4)}, s97 offen lds
s_sub_u32 s98, s98, 4096
s_sub_u32 s97, s97, {16*896}
s_sub_u32 s96, s96, 1
s_branch {LW}
{LD}:""")
    T, AC2, WA, WB, Y = 16, 48, 64, 72, 80
    LNOA2, LNY2, LP2 = "L_noa2", A.lab("nyq"), A.lab("pub2")
    A(f"{HELP2}:")
    if OPT["x"] >= 4:
        lds_add(C_WOA); A(f"s_branch {END}")
    stamp(11)
    resident(253, 254)
    wsetup(True)
    A(f"""v_lshrrev_b32 v9, 4, v0
v_and_b32 v8, 15, v0
v_lshlrev_b32 v10, 2, v9
v_xor_b32 v8, v8, v10
v_lshlrev_b32 v8, 4, v8
v_mul_u32_u24 v9, 896, v9
v_add_u32 v250, v8, v9
v_mul_u32_u24 v252, {T2_Q}, v15
v_lshl_add_u32 v251, v14, 4, v252 ; T2 offset (A3)
v_add_u32 v252, {224*16}, v252
s_cmp_eq_u32 s40, 3
s_cselect_b32 s42, 0, {16*1024}
v_mul_u32_u24 v255, s42, v15
v_lshl_add_u32 v255, v14, 7, v255
s_lshl_b32 s42, s40, 12
v_add_u32 v255, s42, v255       ; flags of the A2 units behind this wave's k tiles""")
    A(f"""s_lshr_b32 s5, s2, 3
v_lshrrev_b32 v8, 3, v0         ; LDS row (mod 8) = 2*p + h
v_and_b32 v9, 4, v8
v_bfe_u32 v10, v8, 1, 1
v_or_b32 v9, v9, v10
v_and_b32 v8, 1, v8
v_lshl_or_b32 v9, v8, 1, v9     ; s2 mod 8 = 4*(p>>1) + 2h + (p&1)
v_mul_u32_u24 v1, {T_ROW}, v9
v_bfe_u32 v8, v0, 2, 1
v_lshl_add_u32 v1, v8, 9, v1
v_and_b32 v8, 3, v0
v_lshl_add_u32 v1, v8, 4, v1    ; T offset
s_lshl_b32 s41, s5, 10
s_lshl_b32 s42, s4, 6
s_add_u32 s41, s41, s42
s_add_u32 s41, s41, {T_OFF}
s_mul_i32 s42, s40, {16*T_ROW}
s_add_u32 s41, s41, s42
s_mul_i32 s44, s5, 43
s_lshr_b32 s44, s44, 8          ; g5
s_lshl_b32 s45, s44, 11
s_and_b32 s46, s2, {OPT["r1"]-1}
s_lshl_b32 s46, s46, 15
s_add_u32 s46, s46, {F1_OFF + 11*2048}
v_and_b32 v9, 15, v0
v_lshlrev_b32 v9, 7, v9
v_add_u32 v9, s45, v9
s_lshl_b32 s43, s40, 11
s_add_u32 m0, s43, {TX}
s_add_u32 s47, s41, {8*T_ROW - 1024}
s_nop 0""")
    A(f"""v_lshlrev_b32 v4, 4, v0
s_cmp_eq_u32 s5, 28
s_cselect_b32 s45, 14, 0
{"v_and_b32 v8, 3, v14" if OPT["ln"] else "v_lshrrev_b32 v8, 3, v14"}        ; u1 local
{"v_lshrrev_b32 v7, 2, v14" if OPT["ln"] else "v_and_b32 v7, 7, v14"}            ; k local
v_lshl_add_u32 v2, v15, 3, v8
v_lshlrev_b32 v2, 4, v2
v_lshl_add_u32 v2, v7, 1, v2
s_add_u32 s42, s43, s45
s_add_u32 s42, s42, {WX}
v_add_u32 v2, s42, v2
v_mul_u32_u24 v3, {2*T2_ROW}, v15
v_lshl_add_u32 v3, v7, 4, v3
v_lshl_add_u32 v3, v8, 2, v3    ; T2 offset
v_lshrrev_b32 v5, 2, v7
v_lshl_add_u32 v5, v15, 1, v5
v_lshl_add_u32 v5, v5, 2, v8
v_and_b32 v10, 3, v7
v_lshl_add_u32 v5, v5, 2, v10
v_lshlrev_b32 v5, 2, v5
v_add_u32 v5, {TX}, v5
v_add_u32 v8, {EX}, v4
v_add_u32 v7, s43, v8
s_mul_i32 s53, s40, {16*T2_ROW}
s_mul_i32 s42, s4, {T2_Q}
s_add_u32 s53, s53, s42
s_lshl_b32 s42, s5, 7
s_add_u32 s53, s53, s42
s_add_u32 s53, s53, {T2_OFF}""")
    for i in range(16): A(f"v_mov_b32 v{WA+i}, 0")
    if OPT["wg"]:
        L1, L2, L3 = A.lab("tw"), A.lab("tw"), A.lab("tw")
        srd(32, P_WR, W_BYTES)
        A(f"""s_lshr_b32 s42, s2, 3
s_mul_i32 s48, s42, {64*450}
s_mul_i32 s49, s4, {4*450}
s_add_u32 s48, s48, s49
s_and_b32 s48, s48, 0xffffff80
v_bfe_u32 v249, v0, 4, 1
v_mul_u32_u24 v249, {32*450}, v249
v_and_b32 v10, 15, v0
v_lshl_add_u32 v249, v10, 7, v249
s_cmp_eq_u32 s40, 0
s_cbranch_scc1 {L1}""")
        srd(32, P_WI, W_BYTES)
        A(f"s_cmp_eq_u32 s40, 1\ns_cbranch_scc1 {L1}")
        srd(32, P_WO, WO_BYTES)
        A(f"""s_lshl_b32 s48, s42, 1
s_add_u32 s48, s48, s40
s_sub_u32 s48, s48, 2
s_mul_i32 s48, s48, {7*896}
s_and_b32 s49, s2, 1
s_lshl_b32 s49, s49, 9
s_add_u32 s48, s48, s49
v_bfe_u32 v249, v0, 2, 3
v_mul_u32_u24 v249, 896, v249
v_and_b32 v10, 3, v0
v_lshl_add_u32 v249, v10, 7, v249
{L1}:""")
        lds_wait(C_H if OPT["g3"] else C_G2, 4, 2)
        if not OPT["y"] & 2: A("s_mov_b32 exec_hi, 0\nbuffer_load_dword v63, v249, s[32:35], s48 offen\ns_mov_b64 exec, -1")
        if OPT["cl"]: A("s_lshl_b32 s42, s40, 13\nv_add_u32 v249, s42, v4")
    if OPT["cl"]:
        LC_ = A.lab("noc")
        A(f"s_cmp_lt_u32 s7, 11\ns_cbranch_scc1 {LC_}")
        for f in range(8): A(f"ds_read_b128 {vr(C+4*f,4)}, v249 offset:{CX+1024*f}")
        A(f"{LC_}:")
    srd(SWO, P_WO, WO_BYTES)
    A(f"""s_and_b32 s97, s2, 1
s_lshl_b32 s97, s97, 1
s_bfe_u32 s98, s2, 0x10003
s_or_b32 s97, s97, s98
s_lshl_b32 s97, s97, 8
s_mul_i32 s98, s40, {4*896}
s_add_u32 s97, s97, s98
s_add_u32 s97, s97, {27*16*896}
s_lshl_b32 s98, s40, 10
s_add_u32 s98, s98, {27*4096}
s_mov_b32 s96, {0 if OPT["y"] & 1 else 28}
s_waitcnt vmcnt(0) lgkmcnt(0)""")
    A(f"s_cmp_ge_u32 s5, 29\ns_cbranch_scc1 {LNOA2}")
    if OPT["y"] & 4: A(f"s_branch {LNOA2}")
    if OPT["wg"] and not OPT["y"] & 2 and not OPT["wo2"]:
        A(f"s_add_u32 m0, s43, {WX}\ns_nop 0\nbuffer_load_dwordx4 v248, {sr(SX,4)}, s55 offen lds")
        if OPT["w1"]: wo_run(28 - OPT["w1"])
        else: A("s_waitcnt vmcnt(0)")
        A(f"s_add_u32 m0, s43, {WX+1024}\ns_nop 0\nbuffer_load_dwordx4 v248, s[56:59], s55 offen lds")
        if OPT["w1"]: wo_run(28 - 2*OPT["w1"])
        if not OPT["pb"]: A("s_waitcnt vmcnt(0)")
    def a1poll():
        A(f"""buffer_load_dword v10, v9, {W}, s46 offen {PM}
s_waitcnt vmcnt(0)
v_cmp_ne_u32 vcc, s{TAG}, v10""")
    if OPT["ad1"]: spin(f"buffer_load_dword v10, v9, {W}, s46 offen {PM}", 10, OPT["sl2"])
    else: acquire(R_A1, a1poll, OPT["sl2"], OPT["hs"])
    if OPT["pb"]: A("s_waitcnt vmcnt(0)")
    stamp(6)
    abl0 = len(A.ins)
    A(f"""s_add_u32 m0, s43, {TX}
s_setprio {OPT["hp"]}
buffer_load_dwordx4 v1, {W}, s41 offen {SC} lds
buffer_load_dwordx4 v1, {W}, s47 offen offset:1024 {SC} lds
s_nop 0""")

    def wreads():
        for j in range(8):
            A(f"ds_read_u16_d16_hi v{WA+j}, v2 offset:{(4*(j>>1)+(j&1))*64}")
        A("s_waitcnt lgkmcnt(4)")
        for j in range(8):
            A(f"ds_read_u16_d16_hi v{WB+j}, v2 offset:{(4*(j>>1)+(j&1))*64+1024}")
        A(f"s_waitcnt lgkmcnt(0)\ns_cmp_lg_u32 s5, 28\ns_cbranch_scc1 {LNY2}")
        for j in range(8): A(f"v_xor_b32 v{WA+j}, 0x80000000, v{WA+j}")
        A(f"{LNY2}:")
    if OPT["wo2"]:
        A(f"s_add_u32 m0, s43, {WX}\ns_nop 0\nbuffer_load_dwordx4 v248, {sr(SX,4)}, s55 offen lds")
    else: wreads()
    A("s_waitcnt vmcnt(0)")
    if OPT["wo2"]: A(f"s_add_u32 m0, s43, {WX+1024}\ns_nop 0\nbuffer_load_dwordx4 v248, s[56:59], s55 offen lds")
    lds_sync(C_T, 4, OPT["hs"])
    if OPT["w2"] and not OPT["wo2"]: wo_run(max(16, 28 - 2*OPT["w1"] - OPT["w2"]))
    for m in range(0, 28, 2): A(f"ds_read2st64_b32 {vr(T+m,2)}, v5 offset0:{m} offset1:{m+1}")
    for f in range(8):
        if f == 1:
            for m in range(28, 32, 2): A(f"ds_read2st64_b32 {vr(T+m,2)}, v5 offset0:{m} offset1:{m+1}")
        A(f"s_waitcnt lgkmcnt({12 if f == 0 else 14-2*f})\n{MFMA} {vr(AC2,16)}, {vr(C+4*f,4)}, {vr(T+4*f,4)}, {vr(AC2,16) if f else 0}")
    if OPT["wo2"]:
        A("s_waitcnt vmcnt(0)")
        if OPT["w2"]: wo_run(28 - OPT["w2"])
        wreads()
    for j in range(8):
        xr, xi = AC2+2*j, AC2+2*j+1
        A(f"""v_mul_f32 v10, v{xr}, v{WA+j}
v_mul_f32 v11, v{xr}, v{WB+j}
v_fma_f32 v10, -v{xi}, v{WB+j}, v10
v_fmac_f32 v11, v{xi}, v{WA+j}
v_cvt_pk_bf16_f32 v{Y+j}, v11, v10""")
        if j == 3: A(f"ds_write_b128 v7, {vr(Y,4)}")
    A(f"ds_write_b128 v7, {vr(Y+4,4)} offset:1024")
    lds_sync(C_EX, 4, OPT["hs"])
    if OPT["w2"]: wo_run(max(16, 28 - 2*OPT["w1"] - 2*OPT["w2"]))
    for f in range(8): A(f"ds_read_b128 {vr(T+4*f,4)}, v8 offset:{1024*f}")
    for f in range(8):
        A(f"s_waitcnt lgkmcnt({7-f})\n{MFMA} {vr(AC2,16)}, {vr(C+4*f,4)}, {vr(T+4*f,4)}, {vr(AC2,16) if f else 0}")
    for j in range(8):
        A(f"""v_cvt_pk_bf16_f32 v{Y+j}, v{AC2+2*j+1}, v{AC2+2*j}
s_add_u32 s43, s53, {(4*(j>>1)+(j&1))*T2_ROW}
buffer_store_dword v{Y+j}, v3, {W}, s43 offen {SC}""")
    if OPT["ab"]:
        def drop(i):
            b = OPT["ab"]
            return ((b & 1 and i.mfma) or (b & 2 and i.valu and i.mn != "v_readfirstlane_b32") or
                    (b & 4 and i.mn in ("ds_read2st64_b32", "ds_read_b128", "ds_read_u16_d16_hi", "ds_write_b128")) or
                    (b & 8 and i.mn == "buffer_store_dword"))
        A.ins[abl0:] = [i for i in A.ins[abl0:] if not drop(i)]
    stamp(7)
    A("s_setprio 2")
    arrive(C_A2, LP2)
    A(f"s_lshl_b32 s41, s2, 7\ns_add_u32 s41, s41, {F2_OFF}")
    flagstore("s41", 8, 32768)
    A(f"{LP2}:")
    lds_wait(C_A2, 4, 4)
    A(f"{LNOA2}:")
    if OPT["g3"]: lds_wait(C_G2, 4, 2)
    wo_run(0)
    A("s_waitcnt vmcnt(0)")
    lds_add(C_WOA)
    stamp(12)
    TA, NY, AC3, ZB, AC4 = 16, 48, 64, 16, 112
    assert OPT["kn"]
    A(f"""s_mul_i32 s41, s50, {T2_ROW}
s_add_u32 s41, s41, {T2_OFF}
s_lshl_b32 s42, s40, 9
s_add_u32 s42, s42, s41
s_and_b32 s46, s2, 7
s_lshl_b32 s46, s46, 15
s_add_u32 s46, s46, {F2_OFF}
s_add_u32 s47, s46, {28*1024}""")
    srd(SO, P_OUT, OUT_BYTES)
    if OPT["y"] & 8: A(f"s_branch {END}")
    if not OPT["y"] & 4: spin(f"buffer_load_dword v10, v255, {W}, s46 offen {PM}", 10, OPT["sl3"])
    stamp(8)
    LA, LB = A.lab("a3l"), A.lab("a3l")
    for f in range(4):
        A(f"s_add_u32 s43, s42, {2*f*T2_Q}\nbuffer_load_dwordx4 {vr(TA+4*f,4)}, v251, {W}, s43 offen {SC}\ns_sleep 1")
    A(f"s_cmp_eq_u32 s40, 3\ns_cbranch_scc1 {LA}")
    for f in range(4):
        A(f"s_add_u32 s43, s42, {2*f*T2_Q + 2048}\nbuffer_load_dwordx4 {vr(TA+16+4*f,4)}, v251, {W}, s43 offen {SC}\ns_sleep 1")
    A(f"{LA}:\ns_cmp_lg_u32 s40, 0\ns_cbranch_scc1 {LB}")
    if not OPT["y"] & 4: spin(f"buffer_load_dword v10, v255, {W}, s47 offen {PM}", 10, OPT["sl3"], "s_mov_b64 exec, 0xff")
    for f in range(4):
        A(f"s_add_u32 s43, s41, {2*f*T2_Q}\nbuffer_load_dwordx4 {vr(NY+4*f,4)}, v252, {W}, s43 offen {SC}")
    A(f"{LB}:")
    if OPT["ze"]: lds_wait(C_MERGE, OPT["ze"], OPT["slg"])
    else: lds_wait(C_GO if OPT["gp"] < 2 else C_WOF, 4, OPT["slg"])
    A("s_setprio 0")
    if OPT["x"] not in (2, 3): stamp(10)
    LN3, LZ = A.lab("a3ny"), A.lab("a3z")
    A("s_waitcnt vmcnt(0)")
    setup = f"""v_lshlrev_b32 v5, 4, v0
s_lshl_b32 s43, s40, 11
s_add_u32 s43, s43, {ZOFF}
v_add_u32 v6, s43, v5
s_mul_i32 s43, s52, 14336
s_add_u32 s43, s43, {ZOFF}
v_add_u32 v5, s43, v5
s_lshr_b32 s46, s40, 1
s_lshl_b32 s46, s46, 3
v_add_u32 v7, s46, v15          ; 8p + h
v_and_b32 v9, 7, v14
v_xor_b32 v7, v7, v9
v_lshlrev_b32 v7, 4, v7
v_lshl_or_b32 v7, v14, 8, v7
s_lshl_b32 s46, s52, 13
s_add_u32 s46, s46, {YOFF}
v_add_u32 v7, s46, v7           ; Y write address
v_lshrrev_b32 v8, 3, v0
s_lshl_b32 s46, s40, 3
v_add_u32 v8, s46, v8           ; row (s1)
v_and_b32 v9, 7, v0             ; piece
v_lshlrev_b32 v10, 1, v9
v_and_b32 v11, 7, v8
v_xor_b32 v10, v10, v11
v_lshlrev_b32 v10, 4, v10
v_lshl_or_b32 v10, v8, 8, v10
v_add_u32 v10, {YOFF}, v10
v_xor_b32 v11, 16, v10
v_mul_u32_u24 v8, {64*1792}, v8
v_lshl_add_u32 v8, v9, 4, v8    ; out offset
s_mul_i32 s41, s50, 1792
s_lshl_b32 s42, s51, 7
s_add_u32 s41, s41, s42""".split("\n")
    for tt in range(2):
        for f in range(4):
            A(f"{MFMA} {vr(AC3+32*tt,16)}, {vr(TA+16*tt+4*f,4)}, {vr(ER+4*f,4)}, {vr(AC3+32*tt,16) if f else 0}")
            for _ in range(5):
                if setup: A(setup.pop(0))
    assert not setup
    A(f"s_cmp_eq_u32 s51, 3\ns_cselect_b32 s42, 4, 8\nv_cmp_gt_u32 s[48:49], s42, v9")
    A(f"s_cmp_lg_u32 s40, 0\ns_cbranch_scc1 {LN3}\ns_mov_b32 exec_lo, 1\ns_mov_b32 exec_hi, 1")
    for i in range(16): A(f"v_mov_b32 v{TA+i}, v{NY+i}")
    A(f"s_mov_b64 exec, -1\n{LN3}:\ns_nop 1")
    ZD = (NY, TA, NY+8, TA+8)
    def zcvt(tt, part):
        a = AC3+32*tt+16*part
        if OPT["kn"]:
            d = ZD[2*tt+part]
            return [f"v_cvt_pk_bf16_f32 v{d+4*e+i}, v{a+4*i+e}, v{a+4*i+e+2}" for e in range(2) for i in range(4)]
        return [f"v_cvt_pk_bf16_f32 v{a+i}, v{a+2*i}, v{a+2*i+1}" for i in range(8)]
    def zwr(tt, part):
        a = AC3+32*tt+16*part
        if OPT["kn"]: a = ZD[2*tt+part]
        return [f"ds_write_b128 v6, {vr(a+4*p,4)} offset:{14336*p+8192*tt+1024*part}" for p in range(2)]
    if OPT["ze"]:
        pend = zcvt(0, 0) + zcvt(1, 0)
        for tt in range(2):
            for f in range(4):
                A(f"{MFMA} {vr(AC3+32*tt+16,16)}, {vr(TA+16*tt+4*f,4)}, {vr(EI+4*f,4)}, {vr(AC3+32*tt+16,16) if f else 0}")
                for _ in range(3):
                    if pend: A(pend.pop(0))
        for x in pend + zcvt(0, 1) + zcvt(1, 1): A(x)
        lds_wait(C_GO, 4, 1)
        for x in zwr(0, 0) + zwr(0, 1): A(x)
        A(f"s_cmp_eq_u32 s40, 3\ns_cbranch_scc1 {LZ}")
        for x in zwr(1, 0) + zwr(1, 1): A(x)
    else:
        pend = zcvt(0, 0) + zwr(0, 0)
        for tt in range(2):
            for f in range(4):
                A(f"{MFMA} {vr(AC3+32*tt+16,16)}, {vr(TA+16*tt+4*f,4)}, {vr(EI+4*f,4)}, {vr(AC3+32*tt+16,16) if f else 0}")
                for _ in range(3):
                    if pend: A(pend.pop(0))
        for x in pend + zcvt(0, 1) + zwr(0, 1): A(x)
        A(f"s_cmp_eq_u32 s40, 3\ns_cbranch_scc1 {LZ}")
        for x in zcvt(1, 0) + zwr(1, 0) + zcvt(1, 1) + zwr(1, 1): A(x)
    A(f"{LZ}:")
    lds_sync(C_Z, 4, OPT["zs"])
    LEP = A.lab("ep")
    assert EPOCH_OFF == 0
    A(f"s_add_u32 s42, s2, s3\ns_cmp_lg_u32 s42, 0\ns_cbranch_scc1 {LEP}")
    flagstore("0", 1, 0, 72)
    A(f"{LEP}:")
    for i in range(14): A(f"ds_read_b128 {vr(ZB+4*i,4)}, v5 offset:{1024*i}")
    for i in range(14):
        A(f"s_waitcnt lgkmcnt({13-i})\n{MFMA} {vr(AC4,16)}, {vr(G+4*i,4)}, {vr(ZB+4*i,4)}, {vr(AC4,16) if i else 0}")
    for g in range(4):
        A(f"v_xor_b32 v9, {32*g}, v7\nds_write_b128 v9, {vr(AC4+4*g,4)}")
    lds_sync(C_Y, 4, OPT["zs"])
    A(f"""ds_read_b128 v[16:19], v10
ds_read_b128 v[20:23], v11
ds_read_b128 v[24:27], v10 offset:8192
ds_read_b128 v[28:31], v11 offset:8192
s_waitcnt lgkmcnt(0)""")
    for i in range(8): A(f"v_add_f32 v{32+i}, v{16+i}, v{24+i}\nv_sub_f32 v{40+i}, v{16+i}, v{24+i}")
    for i in range(8): A(f"v_cvt_pk_bf16_f32 v{48+i}, v{32+2*i}, v{33+2*i}")
    A(f"""s_mov_b64 exec, s[48:49]
buffer_store_dwordx4 v[48:51], v8, {sr(SO,4)}, s41 offen {OA}
buffer_store_dwordx4 v[52:55], v8, {sr(SO,4)}, s41 offen offset:448 {OA}
s_mov_b64 exec, -1
s_branch {END}""")

def fallback():
    resident(None, None)
    L1, L2 = A.lab("fb1"), A.lab("fb2")
    tl = tile_loads(0, 43)
    A(f"""{LFB}:
v_mov_b32_dpp v{Q+24+6}, v7 {HI}
v_mov_b32 v12, 0xff800000
s_mov_b32 s43, {KV_OFF}
{L1}:
{tl[0]}
{tl[1]}
s_waitcnt vmcnt(0)
{MFMA} {vr(S,16)}, {vr(kb(0,0),4)}, {q(3,0)}, 0
{MFMA} {vr(S,16)}, {vr(kb(0,1),4)}, {q(3,1)}, {vr(S,16)}""")
    for i in range(0, 16, 2): A(f"v_max3_f32 v12, v12, v{S+i}, v{S+i+1}")
    A(f"""s_add_u32 s43, s43, {KV_REC}
s_cmp_lt_u32 s43, {KV_OFF+64*KV_REC}
s_cbranch_scc1 {L1}
v_mov_b32 v13, v12
v_mov_b32 v14, v12
v_permlane32_swap_b32 v13, v14
v_max_f32 v12, v13, v14""")
    for i in range(16): A(f"v_mov_b32 v{OK+i}, 0")
    A(f"s_mov_b32 s43, {KV_OFF}\n{L2}:")
    for x in tl: A(x)
    A(f"""s_waitcnt vmcnt(0)
{MFMA} {vr(S,16)}, {vr(kb(0,0),4)}, {q(3,0)}, 0
{MFMA} {vr(S,16)}, {vr(kb(0,1),4)}, {q(3,1)}, {vr(S,16)}""")
    for i in range(16): A(f"v_sub_f32 v{S+i}, v{S+i}, v12")
    for i in range(16): A(f"v_exp_f32 v{S+i}, v{S+i}")
    A(f"""{SMF} {vr(OK,16)}, {vr(kb(0,2),4)}, {vr(S,8)}, v5
{SMF} {vr(OK,16)}, {vr(kb(0,3),4)}, {vr(S+8,8)}, v5
s_nop 15
s_add_u32 s43, s43, {KV_REC}
s_cmp_lt_u32 s43, {KV_OFF+64*KV_REC}
s_cbranch_scc1 {L2}
s_branch {LN}""")

def finish():
    A(f"{END}:")
    if OPT["probe"]:
        LQ = A.lab("probe")
        stamp(13)
        A(f"""s_cmp_lg_u32 s2, {OPT["pwg"]}
s_cbranch_scc1 {FIN}
s_cmp_lg_u32 s3, {OPT["pwave"]}
s_cbranch_scc1 {FIN}
s_waitcnt lgkmcnt(0)
s_sub_u32 s56, s{64+2*OPT["probe"]}, s66
s_mul_i32 s56, s56, 10
s_add_u32 s56, s56, s90
{LQ}:
s_memrealtime s[58:59]
s_waitcnt lgkmcnt(0)
s_sub_u32 s57, s58, s56
s_cmp_lt_i32 s57, 0
s_cbranch_scc1 {LQ}""")
    elif STAMPS:
        stamp(13)
        A(f"""s_waitcnt vmcnt(0)
s_memtime s[92:93]
s_memrealtime s[94:95]
s_waitcnt lgkmcnt(0)
{"s_getreg_b32 s64, hwreg(HW_REG_XCC_ID)" if STAMPS == 1 else ""}
{"s_getreg_b32 s92, hwreg(HW_REG_HW_ID)" if STAMPS == 1 else ""}
s_mov_b32 s56, s24
s_mov_b32 s57, s25
s_mov_b32 s58, 0x2000000
s_mov_b32 s59, 0x00020000
s_mov_b64 exec, 1
s_lshl_b32 s60, s2, 3
s_add_u32 s60, s60, s3
s_lshl_b32 s60, s60, 6
s_add_u32 s60, s60, {TS_OFF}
v_mov_b32 v1, 0""")
        for i in range(16):
            A(f"v_mov_b32 v2, s{64+2*i}\nbuffer_store_dword v2, v1, s[56:59], s60 offen offset:{4*i}")
    A(f"{FIN}:\ns_endpgm")

def b1c():
    resident(None, None)
    A(f"{LB1C}:\ns_setprio 2"); main_start()
    for i in range(64): A(f"v_mov_b32 v{ACC+i}, 0")
    A("s_waitcnt lgkmcnt(0)"); gettag()
    gen_pre(); b1_compute()
entry(); b1_loader()
if OPT["ord"] == 2: a1_dispatch_loader()
if OPT["ord"]: b1c()
if OPT["ord"] != 2: a1_dispatch_loader()
a1_gen(); a1_compute(); pub1(); helper()
if not OPT["ord"]: b1c()
attention(); fallback(); finish()

HDR = open("cdna_kernels/%s.s.ref" % NAME).read().split("; Override")[0]
txt = HDR + f"; @launch grid=(256,1,1) block=(512,1,1) lds={LDS_BYTES}\n"
txt += '.amdgcn_target "amdgcn-amd-amdhsa--gfx950"\n.text\n' + A.finish()
txt += f""".section .rodata,"a"
.p2align 6
.amdhsa_kernel {K}
  .amdhsa_next_free_vgpr 256
  .amdhsa_next_free_sgpr 102
  .amdhsa_accum_offset 256
  .amdhsa_group_segment_fixed_size 0
  .amdhsa_kernarg_size 72
  .amdhsa_user_sgpr_count 2
  .amdhsa_user_sgpr_kernarg_segment_ptr 1
  .amdhsa_system_sgpr_workgroup_id_x 1
.end_amdhsa_kernel
"""
out = args[0] if args else "cdna_kernels/%s.s" % NAME
open(out, "w").write(txt)
print("wrote", out, len(txt))
```

```python
import math
EPOCH_OFF = 0x0
GO_OFF = 0x1000
F1_OFF = 0x10000
F2_OFF = 0x50000
FO_OFF = 0x90000
QK_TILE = 56*512
Q_OFF = 0xD0000
KV_OFF = 0x290000
KV_REC = QK_TILE + 32768
T_OFF  = 0x650000
T_ROW = 30*1024
T2_OFF = 0x830000
T2_Q = 232*16
T2_ROW = 8*T2_Q
O_OFF  = 0xA10000
WS_USED = 0xC10000
TS_OFF = 0xE00000
assert Q_OFF + 64*QK_TILE <= KV_OFF and KV_OFF + 64*KV_REC <= T_OFF and T_OFF + 64*T_ROW <= T2_OFF and T2_OFF + 64*T2_ROW <= O_OFF
X_BYTES = 2048*448*2
W_BYTES = 2048*225*2
WQKV_BYTES = 448*1344*2
WO_BYTES = 448*448*2
OUT_BYTES = 2048*896*2
QSCALE = math.log2(math.e)/math.sqrt(28.0)
```

```python
import sys, struct
from emit import Asm
from layout import *
NAME = "concat_heads__spectral_gfnet__softmax_full_mha__prompt"
OPT = dict(stamps=0, r1=8, pf=1, sl1=1, sl2=8, sl3=16, rot=0, x=0, probe=0, pwave=4, pwg=100, pd=0, wos=-3, lp=13, slg=8, g2=1, ro=2, wm=1, tch=0, pda=0, oa=1, ob=1, gd=0, dyn=0, wsb=0, fl=1, pw=2, tw=0, sd=0, sp=0, td=0, ad=0, bn=0, gk=2, hp=2, hs=2, fo=1, ts=0, ap=0, pm=0, fm=0, al=0, pk=0, lg=2, hk=6, bp=0, ord=2, pfw=3, av=-1, rota=1, wa=0, ag=0, gdl=0, gl=1, wg=1, xt=1, map=0, y=0, ze=0, zs=0, pe=12, gp=0, bt=1, ln=1, kn=1, fs=1, pg=0, pa=0, pn=4, oe=1, vs=1, pvd=1, ad1=0, rt=3, le=1, sm=1, r4=1, w1=0, w2=4, wo2=0, ab=0, ft=1, g3=0, cl=0, km=0, xm=0, kr=0, bt2=1, bw=2, pb=1, k28=1, t2p=-1, tw2=1, so=4, tl=0, lt=0)
args = []
for a in sys.argv[1:]:
    if "=" in a: k, v = a.split("="); assert k in OPT, k; OPT[k] = int(v)
    else: args.append(a)
STAMPS = OPT["stamps"]
MODS = ['', 'sc1', 'nt', 'sc0 sc1']
OA, OBM = MODS[OPT['oa']], MODS[OPT['ob']]
def f32(x): return "0x%08x" % struct.unpack("<I", struct.pack("<f", x))[0]
def vr(a, n=1): return f"v{a}" if n == 1 else f"v[{a}:{a+n-1}]"
def sr(a, n=1): return f"s{a}" if n == 1 else f"s[{a}:{a+n-1}]"
P_AX, P_WR, P_WI, P_BX, P_WQKV, P_WO, P_OUT, P_DBG, P_WS = 8,10,12,14,16,18,20,22,24
MFMA = "v_mfma_f32_32x32x16_bf16"
SMF = "v_smfmac_f32_32x32x32_bf16"
SC = "sc1"
KM = ['sc1', '', 'nt', 'sc1 nt', 'sc0 sc1'][OPT['km']]
XM = ['', 'sc1', 'nt', 'sc1 nt'][OPT['xm']]
PM = ['sc1', 'sc0 sc1', 'sc1 nt', 'sc0 sc1 nt'][OPT['pm']]
FM = ['sc1', 'sc0 sc1', 'sc1 nt', 'sc0 sc1 nt'][OPT['fm']]
HI = "quad_perm:[0,1,2,3] row_mask:0xc bank_mask:0xf"
TAGC = 0x9E3779B9
TAG = 62
SWS = 36; W = sr(SWS,4)
SX, SW = 28, 32
SPIN = 200000
FOFF = 7*16384
WO, OST = 0, 0
QX, EX, TX, WX, CX = 0, 8192, 16384, 24576, 32768
MERGE = 114688
ZOFF, YOFF = MERGE, MERGE + 28672
CNT = 162816
LDS_BYTES = 163840
(C_P1, R_KV, C_MERGE, C_OST, R_A1, C_EX, C_A2, R_A2, C_Z, C_Y, C_WOA, C_WOF, C_GO, C_G2, C_Q, C_LF, C_T, C_W, C_X, C_H) = [CNT+16*i+12 for i in range(20)]

A = Asm()
LOCK = [False]
def stamp(i):
    if OPT["ts"] == 3 and LOCK[0] and i in (10, 11, 12): return
    if STAMPS: A(f"{'s_memtime' if STAMPS == 2 else 's_memrealtime'} s[{64+2*i}:{65+2*i}]")
def stampw(i):
    if STAMPS: stamp(i); A("s_waitcnt lgkmcnt(0)")
def srd(d, p, nbytes):
    A(f"s_mov_b32 s{d}, s{p}\ns_mov_b32 s{d+1}, s{p+1}\ns_mov_b32 s{d+2}, {nbytes}\ns_mov_b32 s{d+3}, 0x00020000")
def pi32(d, s, t):
    A(f"""v_and_b32 v{d}, 0x13, v{s}
v_and_b32 v{t}, 4, v{s}
v_lshl_or_b32 v{d}, v{t}, 1, v{d}
v_and_b32 v{t}, 8, v{s}
v_lshrrev_b32 v{t}, 1, v{t}
v_or_b32 v{d}, v{d}, v{t}""")
def mod7(d, t):
    A(f"s_mul_i32 s{t}, s{d}, 37\ns_lshr_b32 s{t}, s{t}, 8\ns_mul_i32 s{t}, s{t}, 7\ns_sub_u32 s{d}, s{d}, s{t}")
RB = [None]
def resident(b, o):
    RB[0] = (b, o) if b is not None else None
    if b is not None: A(f"v_mov_b32 v{b}, {CNT}\nv_mov_b32 v{o}, 1")
def cref(addr, setup=True, one=False):
    if RB[0]: return f"v{RB[0][0]}", f"v{RB[0][1]}", f" offset:{addr-CNT}"
    if setup: A(f"v_mov_b32 v12, {addr}")
    if one: A("v_mov_b32 v13, 1")
    return "v12", "v13", ""
def lds_add(addr):
    b, o, off = cref(addr, True, True)
    A(f"s_mov_b64 exec, 1\nds_add_u32 {b}, {o}{off}\ns_mov_b64 exec, -1")
def lds_wait(addr, target, sleep=0, setup=True):
    L, L2 = A.lab("lw"), A.lab("lwd")
    b, o, off = cref(addr, setup)
    A(f"""{L}:
ds_read_b32 v13, {b}{off}
s_waitcnt lgkmcnt(0)
v_readfirstlane_b32 s60, v13
s_cmp_ge_u32 s60, {target}""")
    if sleep: A(f"s_cbranch_scc1 {L2}\ns_sleep {sleep}\ns_branch {L}\n{L2}:")
    else: A(f"s_cbranch_scc0 {L}")
def lds_sync(addr, target, sleep=0, pre=None):
    L = A.lab("sy")
    b, o, off = cref(addr, True, True)
    A("s_mov_b64 exec, 1")
    if pre: A(pre)
    A(f"""ds_add_rtn_u32 v13, {b}, {o}{off}
s_mov_b64 exec, -1
s_waitcnt lgkmcnt(0)
v_readfirstlane_b32 s60, v13
s_cmp_eq_u32 s60, {target-1}
s_cbranch_scc1 {L}""")
    lds_wait(addr, target, sleep, False)
    A(f"{L}:")
def arrive(cnt, skip):
    b, o, off = cref(cnt, True, True)
    A(f"""s_mov_b64 exec, 1
s_waitcnt vmcnt(0)
ds_add_rtn_u32 v13, {b}, {o}{off}
s_mov_b64 exec, -1
s_waitcnt lgkmcnt(0)
v_readfirstlane_b32 s60, v13
s_cmp_lg_u32 s60, 3
s_cbranch_scc1 {skip}""")
def execmask(n): return f"s_bfm_b64 exec, {n}, 0"
def flagstore(soff, nrep, repstride, t=40, val=None):
    val = val or f"s{TAG}"
    if not OPT["fl"]:
        A(f"""v_mul_u32_u24 v12, {repstride}, v0
v_mov_b32 v13, {val}
s_mov_b64 exec, {(1<<nrep)-1}
buffer_store_dword v13, v12, {W}, {soff} offen {SC}
s_mov_b64 exec, -1""")
        return
    A(f"""v_lshrrev_b32 v12, 3, v0
v_mul_u32_u24 v12, {repstride}, v12
v_and_b32 v13, 7, v0
v_lshl_add_u32 v12, v13, 4, v12""")
    for i in range(4): A(f"v_mov_b32 v{t+i}, {val}")
    if nrep < 8: A(execmask(8*nrep))
    A(f"buffer_store_dwordx4 {vr(t,4)}, v12, {W}, {soff} offen {FM}")
    for _ in range(nrep//8 - 1): A(f"v_add_u32 v12, {8*repstride}, v12\nbuffer_store_dwordx4 {vr(t,4)}, v12, {W}, {soff} offen {FM}")
    if nrep < 8: A("s_mov_b64 exec, -1")
def publish(cnt, soff, nrep, repstride):
    L = A.lab("pub")
    if OPT["fl"]:
        A(f"v_lshrrev_b32 v10, 3, v0\nv_mul_u32_u24 v10, {repstride}, v10\nv_and_b32 v13, 7, v0\nv_lshl_add_u32 v10, v13, 4, v10")
        for i in range(4): A(f"v_mov_b32 v{36+i}, s{TAG}")
        arrive(cnt, L)
        if nrep < 8: A(execmask(8*nrep))
        A(f"buffer_store_dwordx4 v[36:39], v10, {W}, s{soff} offen {FM}")
        for _ in range(nrep//8 - 1): A(f"v_add_u32 v10, {8*repstride}, v10\nbuffer_store_dwordx4 v[36:39], v10, {W}, s{soff} offen {FM}")
        if nrep < 8: A("s_mov_b64 exec, -1")
    else:
        arrive(cnt, L); flagstore(f"s{soff}", nrep, repstride)
    lds_add(C_X); A(f"{L}:")
def acquire(rel, body, sleep, sleep2=1):
    LP, LD, LO, LE = A.lab("poll"), A.lab("pollok"), A.lab("pollw"), A.lab("polle")
    A(f"s_cmp_lg_u32 s40, 0\ns_cbranch_scc1 {LO}\ns_mov_b32 s61, {SPIN}\n{LP}:")
    body()
    A(f"""s_cbranch_vccz {LD}
s_sub_u32 s61, s61, 1
s_cmp_eq_u32 s61, 0
s_cbranch_scc1 {LD}
s_sleep {sleep}
s_branch {LP}
{LD}:""")
    lds_add(rel)
    A(f"s_branch {LE}\n{LO}:")
    lds_wait(rel, 1, sleep2)
    A(f"{LE}:")
def spin(load, reg, sleep, mask=None):
    if mask: load = f"{mask}\n{load}"
    LP, LD = A.lab("spin"), A.lab("spinok")
    A(f"""s_mov_b32 s61, {SPIN}
{LP}:
{load}
s_waitcnt vmcnt(0)
v_cmp_ne_u32 vcc, s{TAG}, v{reg}
s_cbranch_vccz {LD}
s_sub_u32 s61, s61, 1
s_cmp_eq_u32 s61, 0
s_cbranch_scc1 {LD}
s_sleep {sleep}
s_branch {LP}
{LD}:""")
    if mask: A("s_mov_b64 exec, -1")
def gettag():
    if OPT["wsb"]: A(f"s_add_u32 s24, s24, {OPT['wsb'] << 20}\ns_addc_u32 s25, s25, 0")
    A(f"s_load_dword s{TAG}, s[24:25], {EPOCH_OFF}")
    srd(SWS, P_WS, WS_USED)
def fixtag():
    A(f"s_waitcnt lgkmcnt(0)\ns_add_u32 s{TAG}, s{TAG}, {TAGC}")

FIN, END, ATT, PUB1, HELP2, GEN = "L_fin", "L_end", "L_att", "L_pub1", "L_help2", "L_gen"
LA1, LB1C, LB1G, LA1C, LV, LN, LFB = "L_a1", "L_b1c", "L_b1g", "L_a1c", "L_b1v", "L_norm", "L_fallback"
K = NAME + "_kernel"

def entry():
    A(f".globl {K}\n.p2align 8\n.type {K},@function\n{K}:")
    A(f"""s_cmp_ge_u32 s2, 256
s_cbranch_scc1 {FIN}
s_load_dwordx16 s[8:23], s[0:1], 0
s_load_dwordx2 s[24:25], s[0:1], 64
v_lshrrev_b32 v1, 6, v0
v_readfirstlane_b32 s3, v1
v_and_b32 v0, 63, v0""")
    if STAMPS:
        for i in range(2, 14): A(f"s_mov_b32 s{64+2*i}, 0")
        A("s_memtime s[64:65]\ns_memrealtime s[66:67]")
    if OPT["pf"]:
        L = A.lab("pf"); LP = A.lab("pc")
        A(f"""{"s_cmp_lg_u32 s3, 3" if OPT["pfw"] == 3 else "s_cmp_ge_u32 s3, %d" % OPT["pfw"]}
s_cbranch_scc1 {L}
s_getpc_b64 s[56:57]
{LP}:
s_lshr_b32 s58, s2, 3
s_add_u32 s58, s58, s3
s_and_b32 s58, s58, 3
s_lshl_b32 s58, s58, 13
v_lshlrev_b32 v1, 7, v0
v_add_u32 v1, s58, v1
v_min_u32 v1, {FIN}-{LP}, v1
global_load_dword v63, v1, s[56:57]
{L}:""")
    A(f"""s_and_b32 s4, s2, 7
s_lshr_b32 s5, s2, 3
s_lshl_b32 s6, s4, 1
s_and_b32 s7, s5, 1
s_or_b32 s6, s6, s7
s_lshr_b32 s7, s5, 1           ; column group 0..10 (B1), 11..15 (A1)
s_and_b32 s40, s3, 3
s_cmp_ge_u32 s7, 11
s_cbranch_scc1 {LA1}""")
    if OPT["map"] == 1:
        A("""s_and_b32 s26, s4, 1
s_mul_i32 s26, s26, 6
s_lshr_b32 s7, s5, 2
s_add_u32 s7, s7, s26
s_and_b32 s26, s6, 12
s_and_b32 s27, s5, 3
s_or_b32 s26, s26, s27
s_cmp_lt_u32 s5, 20
s_cselect_b32 s6, s26, s6
s_cselect_b32 s7, s7, 5""")
    if OPT["map"] == 2:
        A("""s_and_b32 s26, s4, 3
s_mul_i32 s26, s26, 22
s_add_u32 s26, s26, s5
s_lshr_b32 s7, s26, 3
s_and_b32 s26, s26, 7
s_and_b32 s6, s6, 8
s_or_b32 s6, s6, s26""")
    A(f"s_cmp_lt_u32 s3, 4\ns_cbranch_scc1 {LB1C}")

def xaddr(rs, d=2):
    A(f"""v_lshrrev_b32 v17, 3, v0
v_and_b32 v14, 7, v0
v_lshrrev_b32 v15, 4, v0
v_xor_b32 v14, v14, v15
v_lshlrev_b32 v14, 4, v14
v_xor_b32 v16, 64, v14
v_mul_u32_u24 v17, {rs}, v17
v_add_u32 v{d}, v17, v14
v_add_u32 v{d+1}, v17, v16
v_add_u32 v{d+1}, {8*rs-1024}, v{d+1}
v_add_u32 v{d+2}, {2*(8*rs-1024)}, v{d}
v_add_u32 v{d+3}, {2*(8*rs-1024)}, v{d+1}""")
def b1_loader():
    A("s_setprio 3")
    if OPT["rot"] == 2: A("s_mov_b32 s26, s7")
    elif OPT["rot"] == 3: A("s_and_b32 s26, s6, 1\ns_mul_i32 s26, s26, 3\ns_add_u32 s26, s26, s7")
    elif OPT["rot"] == 4: A("s_and_b32 s26, s6, 1\ns_mul_i32 s26, s26, 3")
    elif OPT["rot"] == 6: A("s_lshl_b32 s26, s6, 1\ns_add_u32 s26, s26, s7")
    elif OPT["rot"] == 7: A("s_mul_i32 s26, s7, 3\ns_add_u32 s26, s26, s6")
    elif OPT["rot"] == 5: A("s_lshr_b32 s26, s6, 1\ns_add_u32 s26, s26, s7")
    else: A("s_add_u32 s26, s6, s7")
    mod7(26, 27)
    if not OPT["rot"]: A("s_mov_b32 s26, 0")
    xaddr(896)
    A(f"""v_and_b32 v14, 15, v0
v_lshlrev_b32 v16, 2, v15
v_xor_b32 v14, v14, v16
v_lshlrev_b32 v14, 4, v14
v_mul_u32_u24 v15, 2688, v15
v_add_u32 v6, v14, v15
v_add_u32 v7, {4*2688-1024}, v6
v_add_u32 v8, {2*(4*2688-1024)}, v6
v_add_u32 v9, {3*(4*2688-1024)}, v6
s_lshl_b32 s41, s6, 2
s_add_u32 s47, s41, s40          ; token tile of this wave
s_mul_i32 s41, s47, {32*896}     ; x base
s_mul_i32 s42, s40, {16*2688}
s_lshl_b32 s43, s7, 8
s_add_u32 s42, s42, s43          ; w base
s_lshl_b32 s44, s40, 12          ; lds base of this wave""")
    if OPT["ts"] == 3: stamp(10)
    A("s_waitcnt lgkmcnt(0)")
    srd(SX, P_BX, X_BYTES); srd(SW, P_WQKV, WQKV_BYTES)
    def issue():
        A(f"""s_lshl_b32 s45, s26, 7
s_add_u32 s45, s45, s41
s_mul_i32 s46, s26, {64*2688}
s_add_u32 s46, s46, s42
s_mov_b32 m0, s44""")
        for i in range(4): A(f"buffer_load_dwordx4 v{2+i}, {sr(SX,4)}, s45 offen offset:{1024*i} {XM} lds")
        A(f"s_add_u32 m0, s44, 16384")
        for i in range(4): A(f"buffer_load_dwordx4 v{6+i}, {sr(SW,4)}, s46 offen offset:{1024*i} {XM} lds")
        A("""s_add_u32 s26, s26, 1
s_cmp_eq_u32 s26, 7
s_cselect_b32 s26, 0, s26
s_add_u32 s44, s44, 0x8000
s_and_b32 s44, s44, 0x1ffff""")
    LL = A.lab("b1ld")
    if OPT["ts"] == 3: stamp(12)
    issue()
    if OPT["ts"] == 3: stamp(11)
    gettag()
    A(f"s_mov_b32 s48, 6\n{LL}:")
    if OPT["x"] != 2: issue()
    else: A("s_waitcnt vmcnt(0)")
    A("s_waitcnt vmcnt(8)")
    if STAMPS:
        LX = A.lab("st"); A(f"s_cmp_lg_u32 s48, 6\ns_cbranch_scc1 {LX}"); stamp(2); A(f"{LX}:")
    A(f"""s_barrier
s_sub_u32 s48, s48, 1
s_cmp_lg_u32 s48, 0
s_cbranch_scc1 {LL}""")
    fixtag()
    if OPT["lt"]:
        srd(56, P_WR, W_BYTES); A(f"s_mov_b32 s54, s{P_WO}\ns_mov_b32 s55, s{P_WO+1}")
    A("s_waitcnt vmcnt(0)")
    stamp(3)
    A(f"s_barrier\ns_cmp_eq_u32 s7, 10\ns_cbranch_scc1 {ATT}")
    for x in WL[:OPT["wm"]]: A(x)
    A(f"s_branch {ATT}")

WL = [] if OPT["wg"] else [f"buffer_load_dwordx4 v[96:99], v248, {sr(SX,4)}, s55 offen", f"buffer_load_dwordx4 v[100:103], v248, s[56:59], s55 offen"]
def wsetup(force=False):
    if OPT["wg"] and not force: return
    LNY = A.lab("nyq")
    srd(SX, P_WR, W_BYTES); srd(56, P_WI, W_BYTES)
    A(f"""s_lshr_b32 s54, s2, 3          ; ko
s_mul_i32 s55, s4, {4*450}
s_mul_i32 s43, s40, {512*450}
s_add_u32 s55, s55, s43
s_lshl_b32 s43, s54, 4
s_add_u32 s55, s55, s43
s_cmp_lg_u32 s54, 28
s_cbranch_scc1 {LNY}""")
    srd(SX, P_WI, W_BYTES); srd(56, P_WR, W_BYTES)
    A(f"""s_sub_u32 s55, s55, 14
{LNY}:
v_lshrrev_b32 v9, 2, v0
v_and_b32 v10, 3, v0
v_lshl_add_u32 v9, v9, 5, v10
v_mul_u32_u24 v248, 450, v9""")
A1LD, ATT2 = "L_a1ld", "L_att2"
SXA = SX
def a1_dispatch_loader():
    A(f"""{LA1}:
s_sub_u32 s5, s7, 11           ; g5
s_mul_i32 s26, s5, 3
s_lshr_b32 s26, s26, 1         ; e0 in 0,1,3,4,6""")
    if not OPT["rota"]: A("s_mov_b32 s26, 0")
    A(f"s_cmp_lt_u32 s3, 4\ns_cbranch_scc1 {LA1C}\ns_setprio 3")
    A(f"""s_lshl_b32 s96, s6, 2
s_add_u32 s96, s96, s40
s_mul_i32 s96, s96, 896
s_lshl_b32 s97, s40, 12
s_lshl_b32 s98, s26, 2
s_add_u32 s98, s98, 3
s_lshl_b32 s99, s6, 7
s_add_u32 s99, s99, {GO_OFF}""")
    mod7(98, 27)
    A("s_waitcnt lgkmcnt(0)")
    if OPT["bt2"]:
        LP1, LP2 = A.lab("pre"), A.lab("pre")
        srd(SX, P_BX, X_BYTES)
        A(f"""s_lshr_b32 s42, s2, 3
s_sub_u32 s42, s42, 22
v_lshlrev_b32 v1, 7, v0
s_cmp_eq_u32 s40, 3
s_cbranch_scc1 {LP1}
s_mul_i32 s43, s42, 3
s_add_u32 s43, s43, s40
s_min_u32 s43, s43, 27
s_lshl_b32 s43, s43, 13
s_mul_i32 s44, s4, {256*896}
s_add_u32 s43, s43, s44
buffer_load_dword v45, v1, {sr(SX,4)}, s43 offen
s_branch {LP2}
{LP1}:""")
        srd(SX, P_WQKV, WQKV_BYTES)
        A(f"""s_lshl_b32 s43, s42, 3
s_add_u32 s43, s43, s4
s_lshl_b32 s43, s43, 13
s_add_u32 s43, s43, {64*2688}
buffer_load_dword v45, v1, {sr(SX,4)}, s43 offen
s_add_u32 s43, s43, {80*8192}
buffer_load_dword v44, v1, {sr(SX,4)}, s43 offen
{LP2}:""")
        if OPT["bt2"] == 2: A("s_waitcnt vmcnt(0)")
    if OPT["xt"]:
        srd(SX, P_AX, X_BYTES)
        A(f"""s_lshl_b32 s44, s5, 7
s_add_u32 s43, s96, s44
s_cmp_lt_u32 s5, 2
s_cselect_b32 s44, 640, 0
v_lshrrev_b32 v1, 5, v0
v_mul_u32_u24 v1, s44, v1
v_and_b32 v2, 31, v0
v_mul_u32_u24 v2, {64*896}, v2
v_add_u32 v1, v1, v2
buffer_load_dword v46, v1, {sr(SX,4)}, s43 offen""")
    if OPT["bt2"] >= 3:
        c0 = OPT["bt2"] - 1
        srd(SX, P_WQKV, WQKV_BYTES)
        A(f"""v_lshlrev_b32 v1, 7, v0
s_lshl_b32 s43, s42, 2
s_add_u32 s43, s43, s40
s_lshl_b32 s43, s43, 13
s_add_u32 s43, s43, {c0*64*2688}""")
        if OPT["bw"]: A(f"s_waitcnt vmcnt({OPT['bw']-1})")
        for z in range(-(-(7-c0)*21 // 40)):
            A(f"buffer_load_dword v44, v1, {sr(SX,4)}, s43 offen\ns_add_u32 s43, s43, {40*8192}")
    gettag()
    wsetup()
    if not OPT["wa"]:
        for x in WL: A(x)
    A(f"s_mov_b32 s0, s{P_AX}\ns_mov_b32 s1, s{P_AX+1}")
    if OPT["lt"]:
        LT = A.lab("lt")
        srd(56, P_WR, W_BYTES)
        A(f"s_bitcmp0_b32 s40, 0\ns_cbranch_scc1 {LT}")
        srd(56, P_WI, W_BYTES)
        A(f"{LT}:\ns_mov_b32 s54, s{P_WO}\ns_mov_b32 s55, s{P_WO+1}")
    fixtag()
    if OPT["cl"]:
        A("v_and_b32 v14, 31, v0\nv_lshrrev_b32 v15, 5, v0")
        gen_c(80)
    A(f"s_branch {ATT}")
    A(f"{A1LD}:\ns_setprio 3\nv_mov_b32 v9, 0")
    xaddr(64*896, 48)
    if OPT["wa"] == 2:
        for x in WL: A(x)
    srd(SX, 0, X_BYTES)
    spin(f"buffer_load_dword v14, v9, {W}, s99 offen {PM}", 14, 2)
    stamp(2)
    LL = A.lab("a1ld")
    A(f"""s_mov_b32 s100, 0
{LL}:
s_lshl_b32 s42, s98, 7
s_add_u32 s42, s42, s96
s_lshl_b32 s43, s98, 14
s_add_u32 m0, s97, s43""")
    for i in range(4): A(f"buffer_load_dwordx4 v{48+i}, {sr(SXA,4)}, s42 offen offset:{1024*i} lds")
    A(f"""s_add_u32 s98, s98, 4
s_sub_u32 s43, s98, 7
s_cmp_ge_u32 s98, 7
s_cselect_b32 s98, s43, s98
s_add_u32 s100, s100, 1
s_cmp_lt_u32 s100, 3
s_cbranch_scc1 {LL}
s_waitcnt vmcnt(4)
s_barrier
s_cmp_lt_u32 s100, 7
s_cbranch_scc1 {LL}""")
    if OPT["lt"]:
        srd(SX, 54, WO_BYTES)
        A(f"""s_lshr_b32 s100, s2, 3
s_sub_u32 s100, s100, 22
s_lshl_b32 s100, s100, 2
s_add_u32 s100, s100, s40
s_lshr_b32 s42, s100, 1
s_mul_i32 s42, s42, {128*450}
s_and_b32 s43, s2, 7
s_mul_i32 s43, s43, {4*450}
s_add_u32 s42, s42, s43
s_and_b32 s42, s42, 0xffffff80
v_lshrrev_b32 v48, 4, v0
v_mul_u32_u24 v48, {32*450}, v48
v_and_b32 v49, 15, v0
v_lshl_add_u32 v48, v49, 7, v48
s_mul_i32 s43, s100, {12*896}
s_and_b32 s100, s2, 1
s_lshl_b32 s100, s100, 9
s_add_u32 s43, s43, s100
v_lshrrev_b32 v49, 2, v0
v_mul_u32_u24 v49, 896, v49
v_and_b32 v50, 3, v0
v_lshl_add_u32 v49, v50, 7, v49""")
    A("s_waitcnt vmcnt(0)")
    stamp(3)
    def ltouch():
        A(f"""buffer_load_dword v46, v48, s[56:59], s42 offen
s_mov_b32 exec_hi, 0xffff
buffer_load_dword v45, v49, {sr(SX,4)}, s43 offen
s_mov_b64 exec, -1""")
    if OPT["lt"] == 1: ltouch()
    A("s_barrier")
    if OPT["lt"] == 2: ltouch()
    if OPT["pa"] == 1: lds_wait(C_W, 4, 1)
    if OPT["pa"] == 2: lds_wait(C_LF, 4, 1)
    if OPT["pa"] == 3: lds_wait(C_P1, 1, 1)
    A(f"s_branch {ATT2}")

def main_start():
    A(f"""v_lshlrev_b32 v1, 4, v0
v_add_u32 v1, {CNT+12}, v1
v_mov_b32 v2, 0
ds_write_b32 v1, v2""")

C, ER, EI, G, GT = 128, 160, 176, 192, 16
def tlbwarm():
    g = OPT["tw"]
    if not g: return
    L = A.lab("tw")
    n = (WS_USED >> g) // 32 + 1
    A(f"""s_cmp_lg_u32 s3, 2
s_cbranch_scc1 {L}
s_lshr_b32 s60, s2, 3
s_mul_i32 s60, s60, {n << g}
v_lshlrev_b32 v12, {g}, v0""")
    for i in range(0, n, 64):
        k = min(64, n - i)
        if k < 64: A(f"s_bfm_b64 exec, {k}, 0")
        A(f"buffer_load_dword v255, v12, {W}, s60 offen offset:64")
        if i + 64 < n: A(f"s_add_u32 s60, s60, {64 << g}")
    A("s_mov_b64 exec, -1")
    m = (W_BYTES >> g) // 32 + 1
    srd(28, P_WR, W_BYTES); srd(32, P_WI, W_BYTES)
    A(f"""s_lshr_b32 s60, s2, 3
s_mul_i32 s60, s60, {m << g}
s_bfm_b64 exec, {m}, 0
buffer_load_dword v255, v12, s[28:31], s60 offen
buffer_load_dword v255, v12, s[32:35], s60 offen
s_mov_b64 exec, -1
{L}:""")
def prewrite():
    tlbwarm()
    if OPT["pw"] < 2: return
    L = A.lab("pw")
    A(f"""s_cmp_lg_u32 s3, 3
s_cbranch_scc1 {L}
s_sub_u32 s60, s{TAG}, {TAGC}
s_lshl_b32 s61, s7, 4
s_add_u32 s61, s61, s6
s_lshl_b32 s61, s61, 7
s_add_u32 s61, s61, {F1_OFF}""")
    flagstore("s61", OPT["r1"], 32768, 40, "s60")
    A(f"{L}:")
def touches(which):
    if "x" in which:
        srd(28, P_AX, X_BYTES)
        A(f"""s_lshl_b32 s43, s6, 2
s_add_u32 s43, s43, s3
s_mul_i32 s43, s43, 896
s_lshl_b32 s44, s5, 7
s_add_u32 s43, s43, s44
s_cmp_lt_u32 s5, 2
s_cselect_b32 s44, 640, 0
v_mul_u32_u24 v1, s44, v15
v_mul_u32_u24 v7, {64*896}, v14
v_add_u32 v1, v1, v7
buffer_load_dword v63, v1, s[28:31], s43 offen""")
    A(f"""s_lshr_b32 s45, s2, 3
s_sub_u32 s45, s45, 22
s_lshl_b32 s45, s45, 2
s_add_u32 s45, s45, s3""")
    if "w" in which:
        LT = A.lab("tch")
        srd(28, P_WR, W_BYTES)
        A(f"s_bitcmp0_b32 s45, 0\ns_cbranch_scc1 {LT}")
        srd(28, P_WI, W_BYTES)
        A(f"""{LT}:
s_lshr_b32 s43, s45, 1
s_mul_i32 s43, s43, {128*450}
s_mul_i32 s44, s4, {4*450}
s_add_u32 s43, s43, s44
s_and_b32 s43, s43, 0xffffff80
v_lshrrev_b32 v1, 4, v0
v_mul_u32_u24 v1, {32*450}, v1
v_and_b32 v7, 15, v0
v_lshl_add_u32 v1, v7, 7, v1
buffer_load_dword v63, v1, s[28:31], s43 offen""")
    if "o" in which:
        srd(28, P_WO, WO_BYTES)
        A(f"""s_mul_i32 s43, s45, {12*896}
s_and_b32 s44, s2, 1
s_lshl_b32 s44, s44, 9
s_add_u32 s43, s43, s44
v_lshrrev_b32 v1, 2, v0
v_mul_u32_u24 v1, 896, v1
v_and_b32 v7, 3, v0
v_lshl_add_u32 v1, v7, 7, v1
s_mov_b32 exec_hi, 0xffff
buffer_load_dword v63, v1, s[28:31], s43 offen
s_mov_b64 exec, -1""")
TCH = {0: ("", ""), 1: ("x", "wo"), 2: ("", "xwo"), 3: ("xwo", ""), 4: ("", "x"), 5: ("x", ""), 6: ("xw", "o"), 7: ("w", "xo")}[OPT["tch"]]
def gen_common():
    A(f"""v_and_b32 v14, 31, v0
v_lshrrev_b32 v15, 5, v0
s_lshr_b32 s50, s2, 5
s_lshl_b32 s50, s50, 3
s_or_b32 s50, s50, s4
s_bfe_u32 s51, s2, 0x20003       ; d quarter
s_and_b32 s52, s40, 1            ; parity e""")
def rot_gen(n, nblk, step, base, mult, dmult, out, scale=None):
    c, sn, t = GT, GT+8, GT+16
    A(f"v_mul_f32 v11, {f32(float(dmult))}, v{step}")
    for j in range(n): A(f"v_fmamk_f32 v{t+j}, v{step}, {f32(float(mult[j]))}, v{base}")
    A("v_cos_f32 v10, v11\nv_sin_f32 v12, v11")
    for j in range(n): A(f"v_cos_f32 v{c+j}, v{t+j}\nv_sin_f32 v{sn+j}, v{t+j}")
    A("v_mov_b32 v11, v10\nv_mov_b32 v13, v12")
    if scale is not None:
        for j in range(n): A(f"v_mul_f32 v{c+j}, {f32(scale)}, v{c+j}\nv_mul_f32 v{sn+j}, {f32(scale)}, v{sn+j}")
    for b in range(nblk):
        out(b)
        if b + 1 < nblk:
            for j in range(0, n, 2): A(f"v_pk_mul_f32 {vr(t+j,2)}, {vr(sn+j,2)}, v[12:13]")
            for j in range(0, n, 2): A(f"v_pk_mul_f32 {vr(sn+j,2)}, {vr(sn+j,2)}, v[10:11]")
            for j in range(0, n, 2): A(f"v_pk_fma_f32 {vr(sn+j,2)}, {vr(c+j,2)}, v[12:13], {vr(sn+j,2)}")
            for j in range(0, n, 2): A(f"v_pk_fma_f32 {vr(c+j,2)}, {vr(c+j,2)}, v[10:11], {vr(t+j,2)} neg_lo:[0,0,1] neg_hi:[0,0,1]")
def gen_c(C=C):
    A(f"""v_lshrrev_b32 v8, 1, v14
s_lshl_b32 s43, s40, 4
v_add_u32 v8, s43, v8
v_cvt_f32_u32 v8, v8
v_mul_f32 v8, {f32(1/64)}, v8    ; step = u2/64
v_and_b32 v9, 1, v14
v_cvt_f32_u32 v9, v9
v_mul_f32 v9, {f32(0.25)}, v9
v_lshlrev_b32 v10, 1, v15
v_cvt_f32_u32 v10, v10
v_fma_f32 v9, v8, v10, v9        ; base""")
    def out(f):
        for p in range(4): A(f"v_cvt_pk_bf16_f32 v{C+4*f+p}, v{GT+p}, v{GT+8+p}")
    rot_gen(4, 8, 8, 9, [0,1,4,5], 8, out)
def gen_e():
    A(f"""v_lshlrev_b32 v8, 6, v14
v_add_u32 v8, s50, v8
v_cvt_f32_u32 v8, v8
v_mul_f32 v8, {f32(1/2048)}, v8
v_lshlrev_b32 v9, 2, v15
v_cvt_f32_u32 v9, v9
v_mul_f32 v9, v8, v9""")
    def out(f):
        for p in range(4): A(f"v_cvt_pk_bf16_f32 v{ER+4*f+p}, v{GT+p}, -v{GT+8+p}")
        for p in range(4): A(f"v_cvt_pk_bf16_f32 v{EI+4*f+p}, v{GT+8+p}, v{GT+p}")
    rot_gen(4, 4, 8, 9, [0,1,2,3], 8, out, 2.0/(2048*448))
def gen_g():
    A(f"""s_lshr_b32 s44, s40, 1
s_lshl_b32 s45, s51, 1
s_add_u32 s44, s44, s45         ; d tile
s_lshl_b32 s46, s44, 5
v_add_u32 v8, s46, v14          ; d
v_cvt_f32_u32 v8, v8
v_mul_f32 v8, {f32(1/448)}, v8
v_lshlrev_b32 v9, {2 if OPT["kn"] else 3}, v15
v_add_u32 v9, s52, v9
v_cmp_eq_u32 vcc, 0, v9
v_cvt_f32_u32 v9, v9
v_mul_f32 v9, v8, v9""")
    def out(t):
        for j in range(4): A(f"v_cvt_pk_bf16_f32 v{G+8*t+j}, v{GT+2*j}, v{GT+2*j+1}")
        for j in range(4): A(f"v_cvt_pk_bf16_f32 v{G+8*t+4+j}, -v{GT+8+2*j}, -v{GT+9+2*j}")
    rot_gen(8, 7, 8, 9, [(8*(j>>1)+2*(j&1) if OPT["kn"] else 16*(j>>2)+2*(j&3)) for j in range(8)], 32, out)
    A(f"""v_and_b32 v8, 0xffff0000, v{G}
v_or_b32 v8, 0x3f00, v8
v_and_b32 v10, 1, v14
v_lshlrev_b32 v10, 15, v10
v_cndmask_b32 v{G}, v{G}, v8, vcc
v_and_b32 v8, 0xffff, v8
v_and_b32 v9, 0xffff0000, v{G+4}
v_or3_b32 v9, v9, v10, v8
v_cndmask_b32 v{G+4}, v{G+4}, v9, vcc""")
def gen_pre():
    gen_common()

ACC = 64
def acc(a, b): return ACC + 32*a + 16*b
LONES = "L_ones"
def b1_body(vtype):
    if vtype: pi32(48, 14, 49)
    else: A("v_mov_b32 v48, v14")
    A(f"""v_lshrrev_b32 v49, 1, v48
v_and_b32 v49, 7, v49
v_xor_b32 v49, v49, v15
v_lshlrev_b32 v49, 4, v49
v_lshl_or_b32 v50, v48, 7, v49
s_lshl_b32 s43, s41, 13
v_add_u32 v52, s43, v50
v_xor_b32 v53, 32, v52
v_xor_b32 v54, 64, v52
v_xor_b32 v55, 96, v52""")
    A(f"""v_bfe_u32 v48, v0, 2, 2        ; rr
v_and_b32 v49, 3, v0           ; cc""")
    if not vtype:
        A("""v_lshrrev_b32 v50, 1, v49
v_and_b32 v49, 1, v49
v_lshl_or_b32 v49, v49, 1, v50 ; sigma(cc)""")
    A(f"""v_bfe_u32 v50, v0, 4, 1        ; colhalf
v_lshlrev_b32 v50, 5, v50
v_lshl_or_b32 v50, v49, 3, v50
s_lshl_b32 s43, s42, 7
v_or_b32 v50, s43, v50
v_lshlrev_b32 v51, 6, v48
v_xor_b32 v50, v50, v51
v_lshl_add_u32 v51, v15, 3, v48 ; 8h+rr
v_lshl_or_b32 v56, v51, 8, v50
v_add_u32 v56, 16384, v56
v_xor_b32 v57, 64, v56""")
    A(f"""s_lshl_b32 s46, s6, 2
s_lshl_b32 s47, s41, 1
s_add_u32 s46, s46, s47
s_lshl_b32 s47, s7, 2
s_lshl_b32 s48, s42, 1
s_add_u32 s47, s47, s48""")
    if not vtype:
        A(f"""s_lshl_b32 s48, s47, 11
v_lshlrev_b32 v2, 4, v0
s_cmp_ge_u32 s47, 14
s_cselect_b32 s49, {KV_REC - QK_TILE}, 0
s_cselect_b32 s43, {KV_OFF - Q_OFF - 14*2048}, 0
s_cselect_b32 s54, 1.0, {f32(QSCALE)}
s_mov_b32 s55, s54
s_add_u32 s49, s49, {QK_TILE}
s_mul_i32 s46, s46, s49
s_add_u32 s46, s46, s48
s_add_u32 s46, s46, s43
s_add_u32 s46, s46, {Q_OFF}
s_add_u32 s49, s46, s49""")
    else:
        A(f"""s_sub_u32 s45, s7, 7
s_lshl_b32 s45, s45, 7
s_add_u32 s45, s45, 27
s_mul_i32 s45, s45, 2341
s_lshr_b32 s45, s45, 16
v_lshrrev_b32 v10, 4, v0
v_add_u32 v10, s45, v10
v_lshrrev_b32 v11, 2, v0
v_lshlrev_b32 v11, 9, v11
s_lshl_b32 s45, s45, 11
v_add_u32 v11, s45, v11
v_cmp_gt_u32 s[56:57], 16, v10
v_and_b32 v4, 3, v0
v_lshl_or_b32 v4, v4, 4, v11
s_cmp_lt_u32 s7, 9
s_cselect_b32 s58, 0xffff, 0
s_mov_b32 s59, 0
s_lshl_b32 s54, s6, 2
s_add_u32 s54, s54, s40
s_mul_i32 s54, s54, {KV_REC}
s_add_u32 s54, s54, {KV_OFF + QK_TILE + 28*16}
s_add_u32 s55, s54, 8192
v_and_b32 v58, 1, v0
v_add_u32 v58, -1, v58
v_and_b32 v58, 0x3f803f80, v58
v_mov_b32 v59, v58
v_mov_b32 v60, v58
v_mov_b32 v61, v58
s_sub_u32 s47, s47, 28
s_mul_i32 s46, s46, {KV_REC}
s_add_u32 s46, s46, {KV_OFF + QK_TILE}
s_add_u32 s49, s46, {KV_REC}
s_lshl_b32 s48, s47, 5""")
        for b in range(2):
            A(f"""v_add_u32 v48, s48, v14
v_add_u32 v48, {32*b}, v48
v_mul_u32_u24 v49, 2341, v48
v_lshrrev_b32 v49, 16, v49     ; head
v_mul_u32_u24 v50, 28, v49
v_sub_u32 v48, v48, v50        ; d
v_lshlrev_b32 v48, 4, v48
v_lshl_or_b32 v48, v15, 9, v48
v_lshl_or_b32 v{2+b}, v49, 11, v48""")
    def ones(label):
        LO = A.lab("ones")
        if label: A(f"{LONES}:")
        A(f"""s_mov_b64 exec, s[56:57]
buffer_store_dwordx4 v[58:61], v4, {W}, s54 offen {SC}
s_mov_b64 exec, s[58:59]
s_cbranch_execz {LO}
buffer_store_dwordx4 v[58:61], v4, {W}, s55 offen {SC}
{LO}:
s_mov_b64 exec, -1""")
    SETS = (16, 32, 192, 208)
    def rx(kap, p, a): return f"ds_read_b128 {vr(SETS[p]+4*a,4)}, v{6+kap} offset:{4096*a}"
    def rw(kap, p, b): return [f"ds_read_b64_tr_b16 {vr(SETS[p]+8+4*b+2*u,2)}, v{10+b} offset:{(16*kap+4*u)*256}" for u in range(2)]
    def rdlist(kap, p): return [rx(kap,p,0)] + rw(kap,p,0) + rw(kap,p,1) + [rx(kap,p,1)]
    def setaddr(): return [f"v_add_u32 v{6+i}, s44, v{52+i}" for i in range(6)]
    def mf(a, b, p):
        x, w = vr(SETS[p]+4*a,4), vr(SETS[p]+8+4*b,4)
        o = (x, w) if vtype else (w, x)
        A(f"{MFMA} {vr(acc(a,b),16)}, {o[0]}, {o[1]}, {vr(acc(a,b),16)}")
    gb = []
    def fill(n):
        for _ in range(n):
            if gb:
                for x in gb.pop(0): A(x)
    def kstep(p, r, f):
        A("s_waitcnt lgkmcnt(3)")
        mf(0,0,p)
        for x in r[0:3]: A(x)
        fill(f[0])
        A("s_waitcnt lgkmcnt(4)")
        mf(0,1,p)
        for x in r[3:5]: A(x)
        fill(f[1])
        A("s_waitcnt lgkmcnt(5)")
        mf(1,0,p)
        for x in r[5:6]: A(x)
        fill(f[2])
        mf(1,1,p)
        if OPT["bn"]: A(f"s_nop {OPT['bn']}")
        fill(f[3])
    LL = A.lab("b1loop")
    if vtype:
        LI, LI2 = A.lab("idle"), A.lab("idle")
        A(f"s_cmp_lt_u32 s47, 14\ns_cbranch_scc1 {LI}")
        prewrite()
        for n in range(7):
            A("s_barrier")
            if n == OPT["gk"]:
                A(f"s_cmp_lg_u32 s3, 2\ns_cbranch_scc1 {LI2}\ns_lshl_b32 s61, s6, 7\ns_add_u32 s61, s61, {GO_OFF}")
                flagstore("s61", 1, 0)
                A(f"{LI2}:")
        if OPT["oe"]: ones(False)
        A(f"s_branch {LONES}\n{LI}:")
    A("s_mov_b32 s44, 0\ns_mov_b32 s45, 0")
    for x in setaddr(): A(x)
    prewrite()
    stampw(9)
    A("s_barrier")
    stampw(2)
    for x in rdlist(0, 0): A(x)
    A(f"{LL}:")
    kstep(0, rdlist(1, 1), (0,1,2,3))
    kstep(1, rdlist(2, 0), (0,1,2,3))
    A("s_add_u32 s44, s44, 0x8000\ns_and_b32 s44, s44, 0x1ffff\ns_add_u32 s45, s45, 1")
    kstep(0, rdlist(3, 1), (1,1,2,0))
    for x in setaddr(): A(x)
    A("s_barrier")
    kstep(1, rdlist(0, 0), (1,1,1,1))
    assert not gb
    A(f"s_cmp_lt_u32 s45, 6\ns_cbranch_scc1 {LL}")
    if OPT["x"] in (2, 3): A("s_memtime s[84:85]\ns_waitcnt lgkmcnt(0)")
    rd = []
    for kap in (1,2,3): rd += [rx(kap,kap,0)] + rw(kap,kap,0)
    for kap in (1,2,3): rd += rw(kap,kap,1)
    for kap in (1,2,3): rd += [rx(kap,kap,1)]
    order = [rdlist(0,0)[i] for i in range(6)] + rd
    def epi(a, b):
        e = []; t = acc(a,b)
        for i in range(8):
            if not vtype:
                if OPT["pk"] or (a, b) == (1, 1): e.append(f"v_pk_mul_f32 {vr(t+2*i,2)}, {vr(t+2*i,2)}, s[54:55]")
                else: e += [f"v_mul_f32 v{t+2*i}, s54, v{t+2*i}", f"v_mul_f32 v{t+2*i+1}, s54, v{t+2*i+1}"]
            e.append(f"v_cvt_pk_bf16_f32 v{t+i}, v{t+2*i}, v{t+2*i+1}" if OPT["x"] != -10 else f"v_mov_b32 v{t+i}, 0")
            if i & 3 == 3:
                if OPT["sd"] and (a, b, i) == (0, 0, 3): e.append(f"s_sleep {OPT['sd']}")
                if OPT["sp"]: e.append(f"s_sleep {OPT['sp']}")
                if vtype: e.append(f"buffer_store_dwordx4 {vr(t+i-3,4)}, v{2+b}, {W}, s{46 if a==0 else 49} offen offset:{1024*(i>>2)} {SC}")
                else: e.append(f"buffer_store_dwordx4 {vr(t+i-3,4)}, v2, {W}, s{46 if a==0 else 49} offen offset:{2048*b+1024*(i>>2)} {SC}")
        return e
    issued = 6; pend = []; lastw = None
    tiles = [(a,b) for a in range(2) for b in range(2)]
    seq = [(a,b,0) for a,b in tiles] + [(a,b,k) for a,b in tiles for k in (1,2,3)]
    for m, (a, b, kap) in enumerate(seq):
        need = max(order.index(x) for x in [rx(kap,kap,a)] + rw(kap,kap,b)) + 1
        while issued < need: A(order[issued]); issued += 1
        if lastw is None or need > lastw:
            A(f"s_waitcnt lgkmcnt({issued - need})"); lastw = need
        mf(a, b, kap)
        for _ in range(3):
            if issued < len(order) and issued - lastw < 14: A(order[issued]); issued += 1
        if m in (8, 11, 14): pend += epi(*tiles[(m-8)//3])
        if m == 5 and vtype and OPT["oe"]: ones(False)
        if m == 15: stamp(3)
        for _ in range((6 if OPT["pk"] else 8) if not vtype else 4):
            if pend: A(pend.pop(0))
    for x in pend + epi(1,1): A(x)
    if vtype:
        if OPT["oe"]: A(f"{LONES}:")
        else: ones(True)
    lds_add(C_LF)
    A(f"s_branch {PUB1}")
def b1_compute():
    A(f"""s_and_b32 s41, s3, 1           ; wr
s_lshr_b32 s42, s3, 1          ; wc""")
    fixtag()
    A(f"s_cmp_ge_u32 s7, 7\ns_cbranch_scc1 {LV}")
    b1_body(False)
    A(f"{LV}:")
    b1_body(True)

def a1_gen():
    LF, LE = A.lab("fgen"), A.lab("fend")
    A(f"{LA1C}:\ns_setprio 2")
    if OPT["gdl"]: A(f"s_sleep {OPT['gdl']}")
    gen_common()
    pi32(48, 14, 49)
    A(f"""v_lshlrev_b32 v61, 4, v0
v_add_u32 v61, {FOFF}, v61""")
    main_start()
    A(f"""v_lshrrev_b32 v48, 1, v48       ; k_local
s_mul_i32 s41, s5, 3
s_add_u32 s41, s41, s3
s_lshl_b32 s41, s41, 4
v_add_u32 v48, s41, v48
v_cvt_f32_u32 v48, v48
v_mul_f32 v56, {f32(1/448)}, v48 ; k/448
v_and_b32 v48, 1, v14
v_cvt_f32_u32 v48, v48
v_mul_f32 v59, {f32(0.25)}, v48  ; c/4
v_lshlrev_b32 v60, 3, v15
v_cvt_f32_u32 v60, v60
v_fma_f32 v59, v56, v60, v59
v_mul_f32 v58, {f32(16.0)}, v56
v_cos_f32 v58, v58
s_mul_i32 s41, s3, 14336
v_add_u32 v53, s41, v61""")
    for j in range(16): A(f"v_fmamk_f32 v{16+j}, v56, {f32(float(16*(j>>3)+(j&7)))}, v59")
    A("v_add_f32 v58, v58, v58")
    for j in range(16): A(f"v_cos_f32 v{16+j}, v{16+j}")
    A("s_waitcnt lgkmcnt(0)")
    gettag()
    A(f"s_cmp_eq_u32 s3, 3\ns_cbranch_scc1 {LE}\nv_mov_b32 v59, v58\ns_mov_b32 s42, 7\n{LF}:")
    for u in range(2):
        for j in range(4): A(f"v_cvt_pk_bf16_f32 v{32+4*u+j}, v{16+8*u+2*j}, v{17+8*u+2*j}")
        A(f"ds_write_b128 v53, {vr(32+4*u,4)} offset:{1024*u}")
        for j in range(4):
            a, b = 16+8*u+2*j, 16+8*(u^1)+2*j
            A(f"v_pk_fma_f32 {vr(a,2)}, {vr(b,2)}, v[58:59], {vr(a,2)} neg_lo:[0,0,1] neg_hi:[0,0,1]") if u == 0 else None
    for j in range(4):
        a, b = 24+2*j, 16+2*j
        A(f"v_pk_fma_f32 {vr(a,2)}, {vr(b,2)}, v[58:59], {vr(a,2)} neg_lo:[0,0,1] neg_hi:[0,0,1]")
    A(f"""v_add_u32 v53, 2048, v53
s_sub_u32 s42, s42, 1
s_cmp_lg_u32 s42, 0
s_cbranch_scc1 {LF}
{LE}:""")
E1R, E1I = 56, 248
TST = [f"buffer_store_dwordx4 {vr(40+4*z,4)}, v4, {W}, s{99+(z>>1)} offen offset:{1024*(z&1)} {SC}" for z in range(6)]
def a1_compute():
    if TCH[0]: touches(TCH[0])
    if not OPT["ag"]:
        A(f"{GEN}:")
        gen_e()
        if OPT["pg"] == 4: lds_add(C_H)
        gen_g()
        A(f"s_cmp_lt_u32 s7, 11\ns_cbranch_scc1 {HELP2}")
    if TCH[1]: touches(TCH[1])
    A(f"""s_lshl_b32 s41, s6, 2
s_add_u32 s41, s41, s3          ; s2 index
v_lshlrev_b32 v9, 8, v15
v_add_u32 v9, s41, v9
v_mul_u32_u24 v9, v14, v9
v_cvt_f32_u32 v9, v9
v_mul_f32 v9, {f32(1/2048)}, v9
v_cvt_f32_u32 v8, v14
v_mul_f32 v8, {f32(1/32)}, v8
v_mov_b32 v5, v61
s_waitcnt vmcnt(0)""")
    def out(b):
        for j in range(4): A(f"v_cvt_pk_bf16_f32 v{E1R+4*b+j}, v{GT+2*j}, v{GT+2*j+1}")
        for j in range(4): A(f"v_cvt_pk_bf16_f32 v{E1I+4*b+j}, -v{GT+8+2*j}, -v{GT+9+2*j}")
    rot_gen(8, 2, 8, 9, [8*(j>>2)+(j&3) for j in range(8)], 16, out)
    A(f"""v_lshrrev_b32 v49, 1, v14
v_and_b32 v49, 7, v49
v_xor_b32 v49, v49, v15
v_lshlrev_b32 v49, 4, v49
v_lshl_or_b32 v6, v14, 7, v49
s_lshl_b32 s43, s3, 12
v_add_u32 v6, s43, v6
v_and_b32 v3, 2, v14
v_lshlrev_b32 v3, 30, v3
v_or_b32 v3, 1.0, v3            ; (-1)^k
v_mov_b32 v2, v3
v_lshlrev_b32 v4, 4, v0
s_mul_i32 s99, s41, {T_ROW}
s_mul_i32 s42, s5, 6144
s_add_u32 s99, s99, s42
s_add_u32 s99, s99, {T_OFF}
s_add_u32 s100, s99, 2048
s_add_u32 s101, s99, 4096""")
    egen = []
    A(f"s_mul_i32 s27, s26, 8256")
    def a1salu(adv=True):
        r = []
        if adv: r += ["s_add_u32 s27, s27, 8256", f"s_cmp_eq_u32 s27, {7*8256}", "s_cselect_b32 s27, 0, s27"]
        return r + ["s_and_b32 s43, s27, 0x1c040", f"s_add_u32 s44, s27, {7*8256}", "s_and_b32 s44, s44, 0x1c040",
                    "s_lshr_b32 s46, s27, 2", "s_and_b32 s46, s46, 0x7800"]
    a1valu = ["v_xor_b32 v8, s43, v6", "v_xor_b32 v10, s44, v6", "v_xor_b32 v9, 32, v8", "v_xor_b32 v11, 32, v10", "v_add_u32 v12, s46, v5"]
    def a1rd(t):
        b = 16 + 20*t
        return ([f"ds_read_b128 {vr(b,4)}, v{8+t}"] +
                [f"ds_read_b128 {vr(b+8+4*kgi,4)}, v12 offset:{1024*t+14336*kgi}" for kgi in range(3)] +
                [f"ds_read_b128 {vr(b+4,4)}, v{10+t}"])
    def a1step(t, nxt, first=False, fill=0, adv=False):
        b = 16 + 20*t
        r = list(nxt); issued = 0
        sa = a1salu() if adv else []; va = list(a1valu) if adv else []
        for m in range(6):
            hi, kgi = m // 3, m % 3
            need = (2, 3, 4, 5, 5, 5)[m]
            if not nxt: hi, kgi, need = m % 2, m // 2, (2, 5, 5, 5, 5, 5)[m]
            if m < (4 if nxt else 2): A(f"s_waitcnt lgkmcnt({5 - need + issued})")
            d = 64 + 32*kgi + 16*hi
            A(f"{MFMA} {vr(d,16)}, {vr(b+4*hi,4)}, {vr(b+8+4*kgi,4)}, {0 if first else vr(d,16)}")
            for _ in range(2 if m == 0 else 1):
                if r: A(r.pop(0)); issued += 1
            if m in (1, 2, 3):
                for _ in range(3):
                    if sa: A(sa.pop(0))
            if m == 4:
                while va: A(va.pop(0))
            for _ in range(fill if not (adv and m in (1,2,3,4)) else fill // 2):
                if egen: A(egen.pop(0))
    LL, LS, LNB = A.lab("a1loop"), A.lab("a1last"), A.lab("a1nb")
    for x in a1salu(False) + a1valu: A(x)
    fixtag()
    prewrite()
    for x in a1valu[4:]: A(x)
    stampw(9)
    A("s_barrier")
    stampw(2)
    if OPT["ad"]: A(f"s_sleep {OPT['ad']}")
    for x in a1rd(0): A(x)
    for n in range(1):
        a1step(0, a1rd(1), n == 0, 2, True)
        if OPT["gl"]: A("s_barrier")
        a1step(1, a1rd(0), False, 3)
    assert not egen
    A(f"s_mov_b32 s45, 1\n{LL}:")
    a1step(0, a1rd(1), adv=True)
    LH = A.lab("a1h")
    A(f"""s_add_u32 s45, s45, 1
s_cmp_eq_u32 s45, 7
s_cbranch_scc1 {LS}
s_nop 0""")
    if OPT["gl"]: A(f"s_cmp_eq_u32 s45, 6\ns_cbranch_scc1 {LNB}\ns_barrier\n{LNB}:")
    a1step(1, a1rd(0))
    A(f"s_branch {LL}\n{LS}:")
    a1step(1, [])
    stamp(3)
    def s1(kgi):
        P, Q = 64+32*kgi, 80+32*kgi
        e = []
        for i in range(8):
            if OPT["pk"]: e.append(f"v_pk_fma_f32 {vr(P+2*i,2)}, {vr(Q+2*i,2)}, v[2:3], {vr(P+2*i,2)}")
            else: e += [f"v_fmac_f32 v{P+2*i}, v3, v{Q+2*i}", f"v_fmac_f32 v{P+2*i+1}, v3, v{Q+2*i+1}"]
            e.append(f"v_cvt_pk_bf16_f32 v{16+8*kgi+i}, v{P+2*i}, v{P+2*i+1}")
        return e
    def mm(kgi):
        P, Q = 64+32*kgi, 80+32*kgi
        return [f"{MFMA} {vr(P,16)}, {vr(16+8*kgi,4)}, {vr(E1R,4)}, 0", f"{MFMA} {vr(Q,16)}, {vr(16+8*kgi,4)}, {vr(E1I,4)}, 0",
                f"{MFMA} {vr(P,16)}, {vr(20+8*kgi,4)}, {vr(E1R+4,4)}, {vr(P,16)}", f"{MFMA} {vr(Q,16)}, {vr(20+8*kgi,4)}, {vr(E1I+4,4)}, {vr(Q,16)}"]
    def s2(kgi):
        P, Q = 64+32*kgi, 80+32*kgi
        e = []
        for j in range(8):
            e += [f"v_sub_f32 v{P+2*j}, v{P+2*j}, v{Q+2*j+1}", f"v_add_f32 v{Q+2*j}, v{Q+2*j}, v{P+2*j+1}",
                  f"v_cvt_pk_bf16_f32 v{40+8*kgi+j}, v{P+2*j}, v{Q+2*j}"]
            if j & 3 == 3 and not OPT["tl"]: e.append(TST[2*kgi+(j>>2)])
        return e
    def weave(ms, vs):
        k = (len(vs) + len(ms) - 1) // len(ms)
        for m in ms:
            A(m)
            for _ in range(k):
                if vs: A(vs.pop(0))
    lds_add(C_LF)
    for x in s1(0): A(x)
    weave(mm(0), s1(1)); weave(mm(1), s1(2)); weave(mm(2), s2(0))
    for x in s2(1) + s2(2): A(x)

def pub1():
    A(f"""{PUB1}:
s_lshl_b32 s26, s7, 11
s_lshl_b32 s42, s6, 7
s_add_u32 s26, s26, s42
s_add_u32 s26, s26, {F1_OFF}""")
    stamp(4)
    if OPT["pa"] == 1: lds_add(C_W)
    LNP = A.lab("nopub")
    if OPT["tl"]: A(f"s_cmp_ge_u32 s7, 11\ns_cbranch_scc1 {LNP}")
    publish(C_P1, 26, OPT["r1"], 32768)
    stamp(5)
    A(f"{LNP}:")
    if OPT["cl"]: A(f"s_cmp_ge_u32 s7, 11\ns_cbranch_scc1 {HELP2}")
    gen_c()
    if OPT["pg"] == 3: lds_add(C_H)
    if OPT["ag"]: gen_e(); gen_g()
    else: A(f"s_cmp_lt_u32 s7, 11\ns_cbranch_scc1 {GEN}")

Q, S, O, KV = 16, 48, 112, 176
OK = O + 48
TB = 8
SO = 32
def q(j,i): return vr(Q+8*j+4*i, 4)
def kb(b,i): return KV+16*b+4*i
def tile_loads(b, so):
    return [f"buffer_load_dwordx4 {vr(kb(b,0),4)}, v1, {W}, s{so} offen {KM}",
            f"buffer_load_dwordx4 {vr(kb(b,1),4)}, v2, {W}, s{so} offen {KM}",
            f"buffer_load_dwordx4 {vr(kb(b,2),4)}, v3, {W}, s{so} offen {KM}",
            f"buffer_load_dwordx4 {vr(kb(b,3),4)}, v3, {W}, s{so} offen offset:1024 {KM}"]
def attention():
    LOCK[0] = True
    resident(None, None)
    LNY, LNW = A.lab("nyq"), A.lab("now")
    A(f"{ATT}:\ns_setprio 0")
    A("s_mov_b32 s51, s7")

    srd(SO, P_OUT, OUT_BYTES)
    A(f"""s_lshl_b32 s4, s4, 1
s_bfe_u32 s5, s2, 0x10003
s_or_b32 s4, s4, s5            ; head
s_lshr_b32 s5, s2, 4           ; qb
s_mul_i32 s6, s4, 7
s_lshr_b32 s45, s6, 1
s_add_u32 s6, s6, 1
s_lshr_b32 s6, s6, 1
s_lshl_b32 s6, s6, 9
v_lshlrev_b32 v8, 4, v0
v_add_u32 v1, s6, v8
s_bitcmp1_b32 s4, 0
s_cselect_b32 s7, -2040, 0
v_add_u32 v2, 1024, v1
v_add_u32 v6, s7, v2
v_mov_b32 v4, 0x3f80
v_mov_b32_dpp v2, v6 {HI}
s_lshl_b32 s7, s4, 11
s_add_u32 s7, s7, {QK_TILE}
v_and_b32 v9, 30, v0           ; lanes 26,27 <-> rows 28,29
v_cmp_eq_u32 vcc, 26, v9
v_cmp_eq_u32 s[48:49], 28, v9
s_or_b64 vcc, vcc, s[48:49]
v_xor_b32 v9, 96, v8
v_cndmask_b32 v3, v8, v9, vcc
v_add_u32 v3, s7, v3           ; V offset
v_mov_b32 v5, 0xdddd
v_mov_b32 v7, 0
s_lshl_b32 s45, s45, 3         ; first column touched (Q part)
v_bfe_u32 v9, v0, 2, 1
v_mul_u32_u24 v10, 31, v9
v_add_u32 v10, s45, v10        ; Q column
v_add_u32 v11, 448, v10        ; K column
v_mul_u32_u24 v9, 27, v9
s_mul_i32 s46, s4, 28
s_add_u32 s46, s46, 896
v_add_u32 v9, s46, v9          ; V column
v_lshrrev_b32 v10, 7, v10
v_lshlrev_b32 v10, 11, v10
v_mov_b32_dpp v11, v9 quad_perm:[0,1,2,3] row_mask:0xa bank_mask:0xf
s_lshl_b32 s46, s5, 7
v_add_u32 v10, s46, v10
v_lshrrev_b32 v11, 7, v11
v_lshlrev_b32 v11, 11, v11
v_and_b32 v9, 3, v0
v_lshl_add_u32 v11, v9, 7, v11
s_lshl_b32 s46, s40, 9
v_add_u32 v11, s46, v11        ; K/V flag offsets of this wave's 4 token blocks
v_mov_b32_dpp v11, v10 {HI}
s_and_b32 s46, s2, {OPT["r1"]-1}
s_lshl_b32 s46, s46, 15
s_add_u32 s46, s46, {F1_OFF}
s_lshl_b32 s43, s5, 2
s_add_u32 s42, s40, s43
s_mul_i32 s42, s42, {QK_TILE}
s_add_u32 s50, s42, {Q_OFF}
s_mul_i32 s47, s40, {16*KV_REC}
s_add_u32 s47, s47, {KV_OFF}""")
    A(f"s_and_b32 s43, s5, {OPT['kr']}")
    for i in range(16):
        A(f"s_add_u32 s42, s43, {i}\ns_and_b32 s42, s42, 15\ns_mul_i32 s42, s42, {KV_REC}\ns_add_u32 s{TB+i}, s42, s47")
    for j in range(4):
        A(f"""s_add_u32 s42, s40, {j}
s_and_b32 s42, s42, 3
s_lshl_b32 s42, s42, 11
s_add_u32 s42, s42, {QX}
v_add_u32 v{240+j}, s42, v8
s_add_u32 s42, s40, {j+1}
s_and_b32 s42, s42, 3
s_mul_i32 s42, s42, 12288
s_add_u32 s42, s42, {MERGE + (4096*j if j < 3 else 0)}
v_add_u32 v{244+j}, s42, v8""")
    A(f"""s_add_u32 s41, s40, 3
s_and_b32 s41, s41, 3
s_lshl_b32 s43, s5, 2
s_add_u32 s41, s41, s43        ; token tile kept by this wave
s_lshl_b32 s26, s41, 15
s_lshl_b32 s42, s4, 11
s_add_u32 s26, s26, s42
s_add_u32 s26, s26, {O_OFF}
s_lshl_b32 s27, s41, 11
s_lshl_b32 s42, s4, 7
s_add_u32 s27, s27, s42
s_add_u32 s27, s27, {FO_OFF}
s_bfe_u32 s42, s2, 0x20001
s_or_b32 s43, s43, s42         ; token tile of the projection
s_and_b32 s53, s2, 1
s_and_b32 s52, s53, {OPT["ro"]-1}
s_lshl_b32 s53, s53, 1
s_bfe_u32 s42, s2, 0x10003
s_or_b32 s53, s53, s42
{"s_mov_b32 s52, s53" if OPT["ro"] == 4 else ""}
s_lshl_b32 s52, s52, 17
s_lshl_b32 s53, s53, 2
s_add_u32 s53, s53, s40        ; n tile
s_lshl_b32 s45, s43, 15
s_lshl_b32 s44, s40, 13
s_add_u32 s45, s45, s44
s_add_u32 s45, s45, {O_OFF}
s_add_u32 s47, s45, 4096
s_mul_i32 s41, s43, {32*1792}
s_lshl_b32 s42, s53, 6
s_add_u32 s41, s41, s42
s_add_u32 s41, s41, 896
s_lshl_b32 s42, s43, 11
s_add_u32 s52, s52, s42
s_lshl_b32 s42, s40, 9
s_add_u32 s52, s52, s42
s_add_u32 s52, s52, {FO_OFF}
v_and_b32 v249, 3, v0
v_lshlrev_b32 v249, 7, v249
v_lshrrev_b32 v15, 5, v0
v_and_b32 v14, 31, v0
v_mul_u32_u24 v250, 1792, v14
v_lshl_add_u32 v250, v15, 4, v250
v_lshrrev_b32 v251, 3, v0
v_lshlrev_b32 v251, 17, v251
v_and_b32 v13, 7, v0
v_lshl_add_u32 v251, v13, 4, v251
v_bfe_u32 v9, v0, 2, 2        ; rr
v_and_b32 v10, 3, v0
v_lshrrev_b32 v12, 1, v10
v_and_b32 v10, 1, v10
v_lshl_or_b32 v10, v10, 1, v12    ; sigma(cc)
v_bfe_u32 v12, v0, 4, 1
v_lshlrev_b32 v12, 5, v12
v_lshl_or_b32 v10, v10, 3, v12
s_lshl_b32 s42, s40, 6
v_or_b32 v10, s42, v10
v_mul_u32_u24 v12, 320, v9
v_xor_b32 v252, v10, v12
v_lshl_add_u32 v252, v15, 10, v252  ; rows 4h+rr
v_lshl_or_b32 v9, v15, 1, v9
v_mul_u32_u24 v12, 320, v9
v_xor_b32 v253, v10, v12        ; rows rr (h=0) / 2,3,2,3 (h=1)
v_add_u32 v254, {224*256}, v252
v_add_u32 v255, {224*256}, v253
v_mov_b32 v6, v8""")
    if OPT["pw"]:
        A(f"s_sub_u32 s60, s{TAG}, {TAGC}")
        flagstore("s27", OPT["ro"], 131072, 40, "s60")
    for i in range(64): A(f"v_mov_b32 v{O+i}, 0")
    assert OPT["wg"]
    A(f"s_cmp_ge_u32 s51, 11\ns_cbranch_scc1 {A1LD}")
    if OPT["bp"]: A("s_setprio 3")
    if OPT["pg"] == 0: lds_wait(C_X, 1, 1)
    elif OPT["pg"] == 1: lds_wait(C_P1, 1, 1)
    elif OPT["pg"] == 2: lds_wait(C_LF, 4, 1)
    else: lds_wait(C_H, OPT["pn"], 1)
    for x in WL[OPT["wm"]:]: A(x)
    A(f"s_cmp_lg_u32 s51, 10\ns_cbranch_scc1 {ATT2}")
    for x in WL[:OPT["wm"]]: A(x)
    A(f"{ATT2}:\ns_setprio 3")
    stamp(5)
    resident(248, 15)
    kvp = f"buffer_load_dword v14, v11, {W}, s46 offen {PM}"
    MQK, MV = "s_mov_b32 exec_lo, 0xffff", "s_bfm_b64 exec, 16, 16"
    spin(kvp, 14, OPT["sl1"], MQK if OPT["vs"] else None)
    stamp(6)
    t0, t1 = tile_loads(0, TB), tile_loads(1, TB+1)
    A(f"""{t0[0]}
buffer_load_dwordx4 {q(0,0)}, v1, {W}, s50 offen {SC}
{t0[1]}
buffer_load_dwordx4 {q(0,1)}, v2, {W}, s50 offen {SC}""")
    if OPT["vs"] == 1: A(f"{MV}\n{kvp}\ns_mov_b64 exec, -1")
    F = OPT["ft"]
    issued = [(t, k) for t in range(1, F) for k in range(2)]
    for t, k in issued: A(tile_loads(t, TB+t)[k])
    lds_wait(C_LF, 4)
    if OPT["cl"]:
        LC_ = A.lab("noc")
        A(f"s_cmp_lt_u32 s51, 11\ns_cbranch_scc1 {LC_}\nv_add_u32 v9, s44, v6")
        for f in range(8): A(f"ds_write_b128 v9, {vr(S+32+4*f,4)} offset:{CX+1024*f}")
        A(f"{LC_}:")
    A(f"s_waitcnt vmcnt({len(issued)})")
    stamp(4)
    def vcheck():
        LV_ = A.lab("vok")
        A(f"{MV}\nv_cmp_ne_u32 vcc, s{TAG}, v14\ns_mov_b64 exec, -1\ns_cbranch_vccz {LV_}")
        spin(kvp, 14, OPT["sl1"], MV)
        A(f"{LV_}:")
    A(f"""v_mov_b32_dpp v{Q+6}, v7 {HI}
v_mov_b32_dpp v{Q+7}, v7 {HI}
v_mov_b32_dpp v{kb(0,1)+2}, v4 {HI}
{MFMA} {vr(S+16,16)}, {vr(kb(0,0),4)}, {q(0,0)}, 0""")
    if not OPT["vs"]: A(t0[2])
    A(f"{MFMA} {vr(S+16,16)}, {vr(kb(0,1),4)}, {q(0,1)}, {vr(S+16,16)}")
    if not OPT["vs"]: A(t0[3])
    A(f"""{MFMA} {vr(S,16)}, {vr(kb(0,0),4)}, {q(0,0)}, 0
ds_write_b128 v240, {q(0,0)}""")
    if not OPT["vs"]:
        for x in t1[:2]: A(x)
    s_ = S+16
    A(f"v_max3_f32 v8, v{s_}, v{s_+1}, v{s_+2}\nv_max3_f32 v9, v{s_+3}, v{s_+4}, v{s_+5}")
    for i in range(6, 14, 4): A(f"v_max3_f32 v8, v8, v{s_+i}, v{s_+i+1}\nv_max3_f32 v9, v9, v{s_+i+2}, v{s_+i+3}")
    A(f"""v_max3_f32 v8, v8, v{s_+14}, v{s_+15}
v_max_f32 v8, v8, v9
v_cvt_pk_bf16_f32 v8, -v8, v7
v_mov_b32_dpp v{Q+6}, v8 {HI}
ds_write_b128 v240, {q(0,1)} offset:1024
{MFMA} {vr(S,16)}, {vr(kb(0,1),4)}, {q(0,1)}, {vr(S,16)}""")
    lds_add(C_Q)
    vcheck()
    more = [(0,2),(0,3),(1,0),(1,1),(1,2),(1,3)] if F == 1 else [(t, k) for t in range(F) for k in (2, 3)]
    for t, k in more: A(tile_loads(t, TB+t)[k])
    issued += more
    qreads = [f"ds_read_b128 {q(j,h)}, v{240+j} offset:{1024*h}" for j in range(1, 4) for h in range(2)]
    PE = OPT["pe"] if F == 1 else 0
    if F == 1:
        for e in range(PE): A(f"v_exp_f32 v{S+e}, v{S+e}")
        lds_wait(C_Q, 4, 0, False)
        for x in qreads: A(x)
        A("s_waitcnt lgkmcnt(0)")
        stamp(7)
        lds_add(C_G2)
        A("s_setprio 1")
    else:
        stampw(7)
        A("s_setprio 1")
        if OPT["g3"]: lds_add(C_H)
    def mwrites(j):
        return ([f"ds_write_b128 v{244+j}, {vr(O+16*j+4*g,4)} offset:{1024*g}" for g in range(3)] +
                [f"ds_write_b96 v{244+j}, {vr(O+16*j+12,3)} offset:3072"])
    assert OPT["vs"] and OPT["pvd"]
    R = OPT["rt"]
    steps = [(i, j) for i in range(16 - R) for j in range(4)] + [(i, j) for j in range(4) for i in range(16 - R, 16)]
    steps = [(i, 0) for i in range(F)] + [x for x in steps if not (x[1] == 0 and x[0] < F)]
    if OPT["r4"]:
        steps.remove((15 - R, 3)); steps.insert(64 - R - 1, (15 - R, 3))
    def qk(n, h):
        i, j = steps[n]; d = vr(S+16*(n&3),16)
        return f"{MFMA} {d}, {vr(kb(i&3,h),4)}, {q(j,h)}, {d if h else 0}"
    def pv(n, h):
        i, j = steps[n]
        return f"{SMF} {vr(O+16*j,16)}, {vr(kb(i&3,2+h),4)}, {vr(S+16*(n&3)+8*h,8)}, v5"
    slots = []
    seenk, seenv = {0}, set()
    pos = {}
    for n in range(64):
        ms = []
        if n < 63:
            t = steps[n+1][0]; first = t not in seenk; seenk.add(t)
            whole = F <= t <= 16 - max(R, 1)
            ms.append(dict(m=qk(n+1,0), need=[(t,k) for k in range(4 if whole else 2)] if first else None, use=(t,0),
                           after=[f"v_mov_b32_dpp v{kb(t&3,1)+2}, v4 {HI}"] if first else []))
            ms.append(dict(m=qk(n+1,1), need=None, after=[], use=(t,1)))
        ops = {0: [], 1: [], 2: [(0,0),(0,1)], 3: [(1,0),(1,1),(2,0)], 4: [(2,1),(3,0),(3,1)], 5: [(4,0),(4,1),(5,0)]}.get(n, [(n-1,1),(n,0)])
        if n == 63: ms += [dict(m=None, need=None, after=[])]
        for o in ops:
            t = steps[o[0]][0]
            ms.append(dict(m=pv(*o), need=[(t,2),(t,3)] if t not in seenv else None, after=[], op=o, use=(t,2+o[1]))); seenv.add(t)
            if n == 63 and o[1] == 1: ms.append(dict(m=None, need=None, after=[]))
        while len(ms) < 4: ms.append(dict(m=None, need=None, after=[]))
        e0 = PE if n == 0 else 0
        cnt = [(16-e0)//4]*4 if len(ms) == 4 else [3,3,3,3,4]
        for g, x in enumerate(ms):
            x["exps"] = [S+16*(n&3)+e for e in range(e0, e0+cnt[g])]; e0 += cnt[g]; x["step"] = n; x["g"] = g
            if "op" in x: pos[x["op"]] = len(slots)
            pos[("s", n, g)] = len(slots)
            slots.append(x)
    def addload(n, g, t, k): slots[pos[("s", n, g)]]["after"].append((t, k))
    early = [(t, k) for t in range(1, 4) for k in range(4) if (t, k) not in issued]
    p = 0
    while early:
        if slots[p]["m"]:
            for _ in range(2 if p < 2 and len(early) > 4 else 1):
                if early: slots[p]["after"].append(early.pop(0))
        p += 1
    for t in range(4, 16):
        for k in range(4):
            lastuse = max(z for z, x in enumerate(slots) if x.get("use") == (t-4, k))
            z = max(pos[("s", 4*(t-3) - 1 + k, OPT["lg"])], lastuse + 1, p)
            slots[z]["after"].append((t, k)); p = z + 1
    if F > 1:
        bq, oq, offq = cref(C_Q)
        z = pos[("s", F-1, 0)]
        rq = [f"ds_read_b32 v13, {bq}{offq}"] + qreads
        slots[z-2]["after"] += rq[:4]; slots[z-1]["after"] += rq[4:]
        slots[z]["qcheck"] = True
    p = 0; tailw = []
    for j in range(3):
        last = max(n for n in range(64) if steps[n][1] == j)
        p = max(p, pos[(last, 1)] + 3)
        for w in mwrites(j):
            if p < len(slots): slots[p]["after"].append(w); p += 1
            else: tailw.append(w)
    b_, o_, off_ = cref(C_MERGE)
    spec = OPT["sm"] and not tailw and p <= len(slots) - 4
    madd = ["s_mov_b64 exec, 1", f"ds_add_u32 {b_}, {o_}{off_}", "s_mov_b64 exec, -1"]
    mreads = [f"ds_read_b128 {vr(O+4*g,4)}, v247 offset:{1024*g}" for g in range(12)]
    if not tailw: slots[p-1]["after"] += madd
    if spec:
        rd_ = [f"ds_read_b32 v13, {b_}{off_}"] + mreads
        for z, k in (zip((-3, -2, -1), (5, 4, 4)) if OPT["sm"] == 1 else zip((-2, -1), (7, 6)) if OPT["sm"] == 2 else ((-1, 13),)):
            slots[z]["after"] += rd_[:k]; rd_ = rd_[k:]
    landed = -1
    if slots[0]["need"]:
        landed = max(issued.index(z) for z in slots[0]["need"]); A(f"s_waitcnt vmcnt({len(issued)-1-landed})")
    for p_, x in enumerate(slots):
        if x["g"] == 0:
            n = x["step"]
            if n == 32: stamp(8)
            if OPT["ts"] == 2 and n in (16, 48): stamp(2 if n == 16 else 3)
        if x.get("qcheck"):
            LQ = A.lab("qok")
            A(f"s_waitcnt lgkmcnt(0)\nv_readfirstlane_b32 s60, v13\ns_cmp_ge_u32 s60, 4\ns_cbranch_scc1 {LQ}")
            lds_wait(C_Q, 4)
            for y in qreads: A(y)
            A(f"s_waitcnt lgkmcnt(0)\n{LQ}:")
            x["after"] = x["after"] + ["s_mov_b64 exec, 1", f"ds_add_u32 {bq}, {oq} offset:{C_G2-CNT}", "s_mov_b64 exec, -1"]
        if x["m"]: A(x["m"])
        for y in x["after"]:
            if isinstance(y, tuple): A(tile_loads(y[0] & 3, TB+y[0])[y[1]]); issued.append(y)
            else: A(y)
        nx = slots[p_+1]["need"] if p_ + 1 < len(slots) else None
        late = bool(nx) and x["step"] < 6
        def wait():
            nonlocal landed
            if nx and max(issued.index(z) for z in nx) > landed:
                landed = max(issued.index(z) for z in nx); A(f"s_waitcnt vmcnt({len(issued)-1-landed})")
        if not late: wait()
        for r in x["exps"]: A(f"v_exp_f32 v{r}, v{r}")
        if late: wait()
    for x in tailw[:2]: A(x)
    A(pv(63, 1))
    for x in tailw[2:]: A(x)
    stamp(9)
    A("s_setprio 3")
    LMD = A.lab("merged")
    if spec: A(f"s_waitcnt lgkmcnt({0 if STAMPS else 12})\nv_readfirstlane_b32 s60, v13\ns_cmp_ge_u32 s60, 4\ns_cbranch_scc1 {LMD}")
    if tailw: lds_sync(C_MERGE, 4)
    else: lds_wait(C_MERGE, 4)
    for x in mreads: A(x)
    A(f"{LMD}:\ns_waitcnt lgkmcnt(4)")
    for i in list(range(14, -2, -2)): A(f"v_pk_add_f32 {vr(O+i,2)}, {vr(O+i,2)}, {vr(O+16+i,2)}")
    A("s_waitcnt lgkmcnt(0)")
    for i in list(range(14, -2, -2)): A(f"v_pk_add_f32 {vr(O+i,2)}, {vr(O+i,2)}, {vr(O+32+i,2)}")
    for i in list(range(14, -2, -2)): A(f"v_pk_add_f32 {vr(OK+i,2)}, {vr(OK+i,2)}, {vr(O+i,2)}")
    A(f"""v_cmp_nle_f32 vcc, {f32(2.0**-40)}, v{OK+14}
s_mov_b64 s[48:49], vcc
v_cmp_nge_f32 vcc, {f32(2.0**40)}, v{OK+14}
s_or_b64 vcc, vcc, s[48:49]
s_cbranch_vccnz {LFB}
{LN}:
v_rcp_f32 v10, v{OK+14}
v_mov_b32 v{S+7}, 0
v_mov_b32 v11, v10""")
    for i in range(0, 14, 2):
        A(f"v_pk_mul_f32 {vr(OK+i,2)}, {vr(OK+i,2)}, v[10:11]")
        A(f"v_cvt_pk_bf16_f32 v{S+i//2}, v{OK+i}, v{OK+i+1}")
        if i == 6: A(f"buffer_store_dwordx4 {vr(S,4)}, v6, {W}, s26 offen {SC}")
    A(f"buffer_store_dwordx4 {vr(S+4,4)}, v6, {W}, s26 offen offset:1024 {SC}")
    stamp(10)
    if OPT["gp"] == 0: lds_add(C_GO)
    WF = 112; BACC = 16; OB = 64; NB = 6
    assert WO == 0 and OST == 0
    K28 = OPT["k28"]
    def wo_frags(half, n0=0, n1=16):
        cnt = 0
        for n in range(n0, n1):
            hd, i = n >> 1, n & 1
            if K28 and i and hd & 3 == 3: continue
            b = WF + 64*half + 4*n
            row = 28*hd + 16*i
            A(f"ds_read_b64_tr_b16 {vr(b,2)}, v{252+2*half} offset:{row*256}")
            if K28 and i: A(f"ds_read_b64_tr_b16 {vr(b+2,2)}, v{16+3*half+(hd&3)} offset:{28*hd*256}")
            else: A(f"ds_read_b64_tr_b16 {vr(b+2,2)}, v{(253 if i else 252)+2*half} offset:{(row+8)*256}")
            cnt += 1
            if cnt % 6 == 0: A("s_waitcnt lgkmcnt(2)")
    if K28:
        A("""v_bfe_u32 v9, v0, 2, 2
v_mul_u32_u24 v10, 320, v9
v_lshrrev_b32 v11, 5, v0
v_lshl_add_u32 v10, v11, 10, v10
v_xor_b32 v10, v252, v10
v_cmp_gt_u32 vcc, 2, v9
v_lshl_add_u32 v7, v11, 1, v9   ; 2h + rr
v_lshl_add_u32 v8, v11, 2, v9   ; 4h + rr
v_add_u32 v9, 24, v7""")
        for z, (src, c) in enumerate(((8, 84+16-2), (8, 56+18-2), (7, 28+24-2))):
            A(f"""v_add_u32 v11, {c}, v{src}
v_cndmask_b32 v11, v11, v9, vcc
v_and_b32 v14, 3, v11
v_lshlrev_b32 v14, 6, v14
v_lshl_or_b32 v11, v11, 8, v14
v_xor_b32 v{16+z}, v10, v11
v_add_u32 v{19+z}, {224*256}, v{16+z}""")
    for i in range(4): A(f"v_mov_b32 v{40+i}, s{TAG}")
    lds_wait(C_WOA, 4)
    wo_frags(0)
    if OPT["fo"] >= 3: lds_add(C_WOF)
    A("s_waitcnt lgkmcnt(2)")
    if OPT["fo"] == 2: wo_frags(1)
    poll = f"buffer_load_dword v14, v249, {W}, s52 offen {PM}"
    A(f"""{execmask(8*OPT["ro"])}
s_waitcnt vmcnt(0)
buffer_store_dwordx4 v[40:43], v251, {W}, s27 offen {FM}
s_mov_b64 exec, -1""")
    if OPT["ts"] == 1: stamp(2)
    if OPT["gp"] == 1: lds_add(C_GO)
    if OPT["ap"]: A(poll)
    if OPT["fo"] == 4: wo_frags(1, 0, 8)
    if OPT["fo"] >= 3: lds_wait(C_WOF, 4)
    else:
        if OPT["fo"] != 2: wo_frags(1)
        lds_sync(C_WOF, 4)
    if OPT["ts"] == 1: stamp(3)
    def odma():
        for half in range(2):
            A(f"s_add_u32 m0, s44, {OST+4096*half}")
            for i in range(4):
                A(f"buffer_load_dwordx4 v6, {W}, s{47 if half else 45} offen offset:{1024*i} {SC} lds")
    def btsetup():
        if OPT["bt"]:
            A(f"""s_lshl_b32 s42, s40, 11
s_add_u32 s42, s42, 32768
v_and_b32 v9, 31, v0
v_lshrrev_b32 v10, 5, v0
v_bfe_u32 v11, v0, 1, 2
v_xor_b32 v10, v10, v11
v_lshlrev_b32 v10, 4, v10
v_lshl_or_b32 v1, v9, 6, v10
v_add_u32 v1, s42, v1
v_xor_b32 v2, 32, v1
v_bfe_u32 v9, v0, 3, 2
v_lshlrev_b32 v9, 4, v9
v_xor_b32 v3, v6, v9
v_add_u32 v3, s42, v3
v_lshrrev_b32 v9, 2, v0
v_mul_u32_u24 v9, 1792, v9
v_and_b32 v10, 3, v0
v_lshl_add_u32 v4, v10, 4, v9
s_add_u32 s42, s41, {16*1792}""")
    if not OPT["dyn"]:
        LR = A.lab("oready")
        if OPT["ap"]: A(f"s_waitcnt vmcnt(0)\nv_cmp_ne_u32 vcc, s{TAG}, v14\ns_cbranch_vccz {LR}")
        spin(poll, 14, OPT["sl1"])
        A(f"{LR}:")
        stamp(11)
        odma(); btsetup()
        if OPT["fo"] == 3: wo_frags(1)
        if OPT["fo"] == 4: wo_frags(1, 8, 16)
        lds_sync(C_OST, 4, 0, "s_waitcnt vmcnt(0)")
        stampw(12)
        A(f"s_cmp_ge_u32 s53, 14\ns_cbranch_scc1 {END}")
        if K28:
            items = []
            for g4 in range(4):
                items.append((8*g4+7, -1))
                for n in range(8*g4, 8*g4+7): items.append((n, (n >> 1) & 3 if n & 1 else None))
            NBK = 8
            def buf(z): return (96 + 4*((items[z][0] >> 3) & 1)) if items[z][1] == -1 else OB + 4*(z % NBK)
            def rdk(z): A(f"ds_read_b128 {vr(buf(z),4)}, v6 offset:{1024*items[z][0]}")
            nrd = 6
            for z in range(nrd): rdk(z)
            first = True; waited = -1
            def ready(z):
                nonlocal waited
                if z > waited: A(f"s_waitcnt lgkmcnt({nrd-1-z})"); waited = z
                if items[z][1] is not None: A(f"v_mov_b32 v{buf(z)+3}, v{96 + 4*((items[z][0] >> 3) & 1) + items[z][1]}")
            ms = [z for z in range(32) if items[z][1] != -1]
            ready(ms[0])
            for k, z in enumerate(ms):
                A(f"{MFMA} {vr(BACC,16)}, {vr(WF+4*items[z][0],4)}, {vr(buf(z),4)}, {vr(BACC,16) if k else 0}")
                if k + 1 < len(ms): ready(ms[k+1])
                while nrd < 32 and nrd < z + 7: rdk(nrd); nrd += 1
        else:
            def rd(n): A(f"ds_read_b128 {vr(OB+4*(n%NB),4)}, v6 offset:{1024*n}")
            for n in range(NB-1): rd(n)
            for n in range(32):
                left = min(31, n+NB-2) - n
                A(f"s_waitcnt lgkmcnt({left})\n{MFMA} {vr(BACC,16)}, {vr(WF+4*n,4)}, {vr(OB+4*(n%NB),4)}, {vr(BACC,16) if n else 0}")
                if n + NB - 1 < 32: rd(n + NB - 1)
    else:
        LL, LM, LNONE, LC, LX = A.lab("b3l"), A.lab("b3m"), A.lab("b3n"), A.lab("b3c"), A.lab("b3x")
        LG = [A.lab("b3g") for _ in range(4)]
        GA = (16, 32, 48, 96) if OPT["dyn"] == 1 else (16, 16, 16, 16)
        btsetup()
        if OPT["dyn"] == 2:
            for i in range(16): A(f"v_mov_b32 v{16+i}, 0")
        A(f"""v_mov_b32 v12, {C_OST}
s_lshl_b32 s54, 1, s40
v_mov_b32 v10, s54
s_mov_b32 s50, 0
s_cmp_ge_u32 s53, 14
s_cselect_b32 s51, 15, 0
s_mov_b32 s61, {SPIN}
{LL}:
s_cmp_lg_u32 s50, 0
s_cbranch_scc1 {LM}
{poll}
{LM}:
ds_read_b32 v13, v12
s_waitcnt lgkmcnt(0)
v_readfirstlane_b32 s60, v13
s_andn2_b32 s60, s60, s51
s_cbranch_scc0 {LNONE}
s_ff1_i32_b32 s54, s60
s_bitset1_b32 s51, s54
s_cmp_eq_u32 s54, 1
s_cbranch_scc1 {LG[1]}
s_cmp_eq_u32 s54, 2
s_cbranch_scc1 {LG[2]}
s_cmp_eq_u32 s54, 3
s_cbranch_scc1 {LG[3]}""")
        for g in range(4):
            A(f"{LG[g]}:")
            for n in range(4): A(f"ds_read_b128 {vr(OB+4*n,4)}, v6 offset:{1024*(8*g+n)}")
            for n in range(8):
                left = min(7, n+3) - n
                c = vr(GA[g],16) if (n or OPT["dyn"] == 2) else 0
                A(f"s_waitcnt lgkmcnt({left})\n{MFMA} {vr(GA[g],16)}, {vr(WF+32*g+4*n,4)}, {vr(OB+4*n,4)}, {c}")
                if n + 4 < 8: A(f"ds_read_b128 {vr(OB+4*(n+4),4)}, v6 offset:{1024*(8*g+n+4)}")
            A(f"s_cmp_eq_u32 s51, 15\ns_cbranch_scc0 {LC}\ns_branch {LX}")
        A(f"""{LNONE}:
s_cmp_lg_u32 s50, 1
s_cbranch_scc1 {LC}
s_mov_b64 exec, 1
s_waitcnt vmcnt(0)
ds_or_b32 v12, v10
s_mov_b64 exec, -1
s_mov_b32 s50, 2
s_cmp_eq_u32 s51, 15
s_cbranch_scc1 {END}
s_branch {LM}
{LC}:
s_cmp_lg_u32 s50, 0
s_cbranch_scc1 {LM}
s_sub_u32 s61, s61, 1
s_waitcnt vmcnt(0)
v_cmp_ne_u32 vcc, s{TAG}, v14
s_cmp_eq_u32 s61, 0
s_cselect_b64 vcc, 0, vcc
s_cbranch_vccnz {LL}""")
        stamp(11)
        odma()
        A(f"s_mov_b32 s50, 1\ns_branch {LM}\n{LX}:\ns_nop 8")
        if OPT["dyn"] == 1:
            for i in range(0, 16, 2):
                A(f"v_pk_add_f32 {vr(16+i,2)}, {vr(16+i,2)}, {vr(32+i,2)}\nv_pk_add_f32 {vr(48+i,2)}, {vr(48+i,2)}, {vr(96+i,2)}")
            for i in range(0, 16, 2): A(f"v_pk_add_f32 {vr(16+i,2)}, {vr(16+i,2)}, {vr(48+i,2)}")
    if OPT["bt"]:
        for i in range(8):
            A(f"v_cvt_pk_bf16_f32 v{32+i}, v{BACC+2*i}, v{BACC+2*i+1}")
            if i == 3: A("ds_write_b128 v1, v[32:35]")
        A(f"""ds_write_b128 v2, v[36:39]
ds_read_b128 v[40:43], v3
ds_read_b128 v[44:47], v3 offset:1024
s_waitcnt lgkmcnt(1)
buffer_store_dwordx4 v[40:43], v4, {sr(SO,4)}, s41 offen {OBM}
s_waitcnt lgkmcnt(0)
buffer_store_dwordx4 v[44:47], v4, {sr(SO,4)}, s42 offen {OBM}
s_branch {END}""")
        return
    for i in range(8):
        A(f"v_cvt_pk_bf16_f32 v{32+i}, v{BACC+2*i}, v{BACC+2*i+1}")
        if i == 3: A(f"buffer_store_dwordx4 v[32:35], v250, {sr(SO,4)}, s41 offen {OBM}")
    A(f"""buffer_store_dwordx4 v[36:39], v250, {sr(SO,4)}, s41 offen offset:32 {OBM}
s_branch {END}""")

def helper():
    resident(None, None)
    SWO = 32
    def wo_run(upto):
        LW, LD = A.lab("wo"), A.lab("wod")
        A(f"""{LW}:
s_cmp_le_i32 s96, {upto}
s_cbranch_scc1 {LD}
s_mov_b32 m0, s98
s_waitcnt vmcnt({-OPT["wos"]})
buffer_load_dwordx4 v250, {sr(SWO,4)}, s97 offen lds
s_sub_u32 s98, s98, 4096
s_sub_u32 s97, s97, {16*896}
s_sub_u32 s96, s96, 1
s_branch {LW}
{LD}:""")
    T, AC2, WA, WB, Y = 16, 48, 64, 72, 80
    LNOA2, LNY2, LP2 = "L_noa2", A.lab("nyq"), A.lab("pub2")
    A(f"{HELP2}:")
    if OPT["x"] >= 4:
        lds_add(C_WOA); A(f"s_branch {END}")
    stamp(11)
    resident(253, 254)
    wsetup(True)
    A(f"""v_lshrrev_b32 v9, 4, v0
v_and_b32 v8, 15, v0
v_lshlrev_b32 v10, 2, v9
v_xor_b32 v8, v8, v10
v_lshlrev_b32 v8, 4, v8
v_mul_u32_u24 v9, 896, v9
v_add_u32 v250, v8, v9
v_mul_u32_u24 v252, {T2_Q}, v15
v_lshl_add_u32 v251, v14, 4, v252 ; T2 offset (A3)
v_add_u32 v252, {224*16}, v252
s_cmp_eq_u32 s40, 3
s_cselect_b32 s42, 0, {16*1024}
v_mul_u32_u24 v255, s42, v15
v_lshl_add_u32 v255, v14, 7, v255
s_lshl_b32 s42, s40, 12
v_add_u32 v255, s42, v255       ; flags of the A2 units behind this wave's k tiles""")
    A(f"""s_lshr_b32 s5, s2, 3
v_lshrrev_b32 v8, 3, v0         ; LDS row (mod 8) = 2*p + h
v_and_b32 v9, 4, v8
v_bfe_u32 v10, v8, 1, 1
v_or_b32 v9, v9, v10
v_and_b32 v8, 1, v8
v_lshl_or_b32 v9, v8, 1, v9     ; s2 mod 8 = 4*(p>>1) + 2h + (p&1)
v_mul_u32_u24 v1, {T_ROW}, v9
v_bfe_u32 v8, v0, 2, 1
v_lshl_add_u32 v1, v8, 9, v1
v_and_b32 v8, 3, v0
v_lshl_add_u32 v1, v8, 4, v1    ; T offset
s_lshl_b32 s41, s5, 10
s_lshl_b32 s42, s4, 6
s_add_u32 s41, s41, s42
s_add_u32 s41, s41, {T_OFF}
s_mul_i32 s42, s40, {16*T_ROW}
s_add_u32 s41, s41, s42
s_mul_i32 s44, s5, 43
s_lshr_b32 s44, s44, 8          ; g5
s_lshl_b32 s45, s44, 11
s_and_b32 s46, s2, {OPT["r1"]-1}
s_lshl_b32 s46, s46, 15
s_add_u32 s46, s46, {F1_OFF + 11*2048}
v_and_b32 v9, 15, v0
v_lshlrev_b32 v9, 7, v9
v_add_u32 v9, s45, v9
s_lshl_b32 s43, s40, 11
s_add_u32 m0, s43, {TX}
s_add_u32 s47, s41, {8*T_ROW - 1024}
s_nop 0""")
    A(f"""v_lshlrev_b32 v4, 4, v0
s_cmp_eq_u32 s5, 28             ; Nyquist unit: filter times i, i.e. (re,im) = (-w_i, w_r)
s_cselect_b32 s45, 14, 0
{"v_and_b32 v8, 3, v14" if OPT["ln"] else "v_lshrrev_b32 v8, 3, v14"}        ; u1 local
{"v_lshrrev_b32 v7, 2, v14" if OPT["ln"] else "v_and_b32 v7, 7, v14"}            ; k local
v_lshl_add_u32 v2, v15, 3, v8
v_lshlrev_b32 v2, 4, v2
v_lshl_add_u32 v2, v7, 1, v2
s_add_u32 s42, s43, s45
s_add_u32 s42, s42, {WX}
v_add_u32 v2, s42, v2
v_mul_u32_u24 v3, {2*T2_ROW}, v15
v_lshl_add_u32 v3, v7, 4, v3
v_lshl_add_u32 v3, v8, 2, v3    ; T2 offset
v_lshrrev_b32 v5, 2, v7
v_lshl_add_u32 v5, v15, 1, v5
v_lshl_add_u32 v5, v5, 2, v8
v_and_b32 v10, 3, v7
v_lshl_add_u32 v5, v5, 2, v10
v_lshlrev_b32 v5, 2, v5
v_add_u32 v5, {TX}, v5
v_add_u32 v8, {EX}, v4
v_add_u32 v7, s43, v8
s_mul_i32 s53, s40, {16*T2_ROW}
s_mul_i32 s42, s4, {T2_Q}
s_add_u32 s53, s53, s42
s_lshl_b32 s42, s5, 7
s_add_u32 s53, s53, s42
s_add_u32 s53, s53, {T2_OFF}""")
    if OPT["tw2"]:
        A(f"""v_lshlrev_b32 v3, 2, v14
v_lshl_add_u32 v3, v15, 8, v3
s_add_u32 s42, s43, {WX}
v_add_u32 v3, s42, v3
v_add_u32 v6, 1024, v3
v_lshrrev_b32 v88, 3, v0
v_mul_u32_u24 v88, {T2_ROW}, v88
v_and_b32 v10, 7, v0
v_lshl_add_u32 v88, v10, 4, v88""")
    for i in range(16): A(f"v_mov_b32 v{WA+i}, 0")
    if OPT["wg"]:
        L1, L2, L3 = A.lab("tw"), A.lab("tw"), A.lab("tw")
        srd(32, P_WR, W_BYTES)
        A(f"""s_lshr_b32 s42, s2, 3
s_mul_i32 s48, s42, {64*450}
s_mul_i32 s49, s4, {4*450}
s_add_u32 s48, s48, s49
s_and_b32 s48, s48, 0xffffff80
v_bfe_u32 v249, v0, 4, 1
v_mul_u32_u24 v249, {32*450}, v249
v_and_b32 v10, 15, v0
v_lshl_add_u32 v249, v10, 7, v249
s_cmp_eq_u32 s40, 0
s_cbranch_scc1 {L1}""")
        srd(32, P_WI, W_BYTES)
        A(f"s_cmp_eq_u32 s40, 1\ns_cbranch_scc1 {L1}")
        srd(32, P_WO, WO_BYTES)
        A(f"""s_lshl_b32 s48, s42, 1
s_add_u32 s48, s48, s40
s_sub_u32 s48, s48, 2
s_mul_i32 s48, s48, {7*896}
s_and_b32 s49, s2, 1
s_lshl_b32 s49, s49, 9
s_add_u32 s48, s48, s49
v_bfe_u32 v249, v0, 2, 3
v_mul_u32_u24 v249, 896, v249
v_and_b32 v10, 3, v0
v_lshl_add_u32 v249, v10, 7, v249
{L1}:""")
        lds_wait(C_H if OPT["g3"] else C_G2, 4, 2)
        def tlate():
            LT_ = A.lab("tl")
            A(f"s_cmp_lt_u32 s7, 11\ns_cbranch_scc1 {LT_}")
            for x in TST: A(x)
            publish(C_P1, 26, OPT["r1"], 32768)
            stamp(5)
            A(f"{LT_}:")
        if OPT["tl"] == 1: tlate()
        if not OPT["y"] & 2 and not OPT["lt"]: A("s_mov_b32 exec_hi, 0\nbuffer_load_dword v89, v249, s[32:35], s48 offen\ns_mov_b64 exec, -1")
        if OPT["tl"] == 2: tlate()
        if OPT["cl"]: A("s_lshl_b32 s42, s40, 13\nv_add_u32 v249, s42, v4")
    if OPT["cl"]:
        LC_ = A.lab("noc")
        A(f"s_cmp_lt_u32 s7, 11\ns_cbranch_scc1 {LC_}")
        for f in range(8): A(f"ds_read_b128 {vr(C+4*f,4)}, v249 offset:{CX+1024*f}")
        A(f"{LC_}:")
    srd(SWO, P_WO, WO_BYTES)
    A(f"""s_and_b32 s97, s2, 1
s_lshl_b32 s97, s97, 1
s_bfe_u32 s98, s2, 0x10003
s_or_b32 s97, s97, s98
s_lshl_b32 s97, s97, 8
s_mul_i32 s98, s40, {4*896}
s_add_u32 s97, s97, s98
s_add_u32 s97, s97, {27*16*896}
s_lshl_b32 s98, s40, 10
s_add_u32 s98, s98, {27*4096}
s_mov_b32 s96, {0 if OPT["y"] & 1 else 28}
s_waitcnt vmcnt(0) lgkmcnt(0)""")
    A(f"s_cmp_ge_u32 s5, 29\ns_cbranch_scc1 {LNOA2}")
    if OPT["y"] & 4: A(f"s_branch {LNOA2}")
    if OPT["wg"] and not OPT["y"] & 2 and not OPT["wo2"]:
        A(f"s_add_u32 m0, s43, {WX}\ns_nop 0\nbuffer_load_dwordx4 v248, {sr(SX,4)}, s55 offen lds")
        if OPT["w1"]: wo_run(28 - OPT["w1"])
        else: A("s_waitcnt vmcnt(0)")
        A(f"s_add_u32 m0, s43, {WX+1024}\ns_nop 0\nbuffer_load_dwordx4 v248, s[56:59], s55 offen lds")
        if OPT["w1"]: wo_run(28 - 2*OPT["w1"])
        if not OPT["pb"]: A("s_waitcnt vmcnt(0)")
    def a1poll():
        A(f"""buffer_load_dword v10, v9, {W}, s46 offen {PM}
s_waitcnt vmcnt(0)
v_cmp_ne_u32 vcc, s{TAG}, v10""")
    if OPT["ad1"]: spin(f"buffer_load_dword v10, v9, {W}, s46 offen {PM}", 10, OPT["sl2"])
    else: acquire(R_A1, a1poll, OPT["sl2"], OPT["hs"])
    if OPT["pb"]: A("s_waitcnt vmcnt(0)")
    stamp(6)
    abl0 = len(A.ins)
    A(f"""s_add_u32 m0, s43, {TX}
s_setprio {OPT["hp"]}
buffer_load_dwordx4 v1, {W}, s41 offen {SC} lds
buffer_load_dwordx4 v1, {W}, s47 offen offset:1024 {SC} lds
s_nop 0""")

    def wreads():
        for j in range(8):
            A(f"ds_read_u16_d16_hi v{WA+j}, v2 offset:{(4*(j>>1)+(j&1))*64}")
        A("s_waitcnt lgkmcnt(4)")
        for j in range(8):
            A(f"ds_read_u16_d16_hi v{WB+j}, v2 offset:{(4*(j>>1)+(j&1))*64+1024}")
        A(f"s_waitcnt lgkmcnt(0)\ns_cmp_lg_u32 s5, 28\ns_cbranch_scc1 {LNY2}")
        for j in range(8): A(f"v_xor_b32 v{WA+j}, 0x80000000, v{WA+j}")
        A(f"{LNY2}:")
    if OPT["wo2"]:
        A(f"s_add_u32 m0, s43, {WX}\ns_nop 0\nbuffer_load_dwordx4 v248, {sr(SX,4)}, s55 offen lds")
    else: wreads()
    A("s_waitcnt vmcnt(0)")
    if OPT["wo2"]: A(f"s_add_u32 m0, s43, {WX+1024}\ns_nop 0\nbuffer_load_dwordx4 v248, s[56:59], s55 offen lds")
    lds_sync(C_T, 4, OPT["hs"])
    if OPT["w2"] and not OPT["wo2"]: wo_run(max(16, 28 - 2*OPT["w1"] - OPT["w2"]))
    for m in range(0, 28, 2): A(f"ds_read2st64_b32 {vr(T+m,2)}, v5 offset0:{m} offset1:{m+1}")
    for f in range(8):
        if f == 1:
            for m in range(28, 32, 2): A(f"ds_read2st64_b32 {vr(T+m,2)}, v5 offset0:{m} offset1:{m+1}")
        A(f"s_waitcnt lgkmcnt({12 if f == 0 else 14-2*f})\n{MFMA} {vr(AC2,16)}, {vr(C+4*f,4)}, {vr(T+4*f,4)}, {vr(AC2,16) if f else 0}")
    if OPT["wo2"]:
        A("s_waitcnt vmcnt(0)")
        if OPT["w2"]: wo_run(28 - OPT["w2"])
        wreads()
    for j in range(8):
        xr, xi = AC2+2*j, AC2+2*j+1
        A(f"""v_mul_f32 v10, v{xr}, v{WA+j}
v_mul_f32 v11, v{xr}, v{WB+j}
v_fma_f32 v10, -v{xi}, v{WB+j}, v10
v_fmac_f32 v11, v{xi}, v{WA+j}
v_cvt_pk_bf16_f32 v{Y+j}, v11, v10""")
        if j == 3: A(f"ds_write_b128 v7, {vr(Y,4)}")
    A(f"ds_write_b128 v7, {vr(Y+4,4)} offset:1024")
    lds_sync(C_EX, 4, OPT["hs"])
    if OPT["w2"]: wo_run(max(16, 28 - 2*OPT["w1"] - 2*OPT["w2"]))
    for f in range(8): A(f"ds_read_b128 {vr(T+4*f,4)}, v8 offset:{1024*f}")
    for f in range(8):
        A(f"s_waitcnt lgkmcnt({7-f})\n{MFMA} {vr(AC2,16)}, {vr(C+4*f,4)}, {vr(T+4*f,4)}, {vr(AC2,16) if f else 0}")
    if OPT["tw2"]:
        for j in range(8):
            A(f"v_cvt_pk_bf16_f32 v{Y+j}, v{AC2+2*j+1}, v{AC2+2*j}")
            if j & 1: A(f"ds_write2_b32 v3, v{Y+j-1}, v{Y+j} offset0:{128*((j>>1)&1)} offset1:{128*((j>>1)&1)+32}" if j < 4 else
                        f"ds_write2_b32 v6, v{Y+j-1}, v{Y+j} offset0:{128*((j>>1)&1)} offset1:{128*((j>>1)&1)+32}")
        A(f"""ds_read_b128 {vr(T,4)}, v7 offset:{WX-EX}
ds_read_b128 {vr(T+4,4)}, v7 offset:{WX-EX+1024}
s_add_u32 s43, s53, {8*T2_ROW}
s_waitcnt lgkmcnt(1)
buffer_store_dwordx4 {vr(T,4)}, v88, {W}, s53 offen {SC}
s_waitcnt lgkmcnt(0)
buffer_store_dwordx4 {vr(T+4,4)}, v88, {W}, s43 offen {SC}""")
    else:
        for j in range(8):
            A(f"""v_cvt_pk_bf16_f32 v{Y+j}, v{AC2+2*j+1}, v{AC2+2*j}
s_add_u32 s43, s53, {(4*(j>>1)+(j&1))*T2_ROW}
buffer_store_dword v{Y+j}, v3, {W}, s43 offen {SC}""")
    if OPT["ab"]:
        def drop(i):
            b = OPT["ab"]
            return ((b & 1 and i.mfma) or (b & 2 and i.valu and i.mn != "v_readfirstlane_b32") or
                    (b & 4 and i.mn in ("ds_read2st64_b32", "ds_read_b128", "ds_read_u16_d16_hi", "ds_write_b128")) or
                    (b & 8 and i.mn == "buffer_store_dword"))
        A.ins[abl0:] = [i for i in A.ins[abl0:] if not drop(i)]
    stamp(7)
    A("s_setprio 2")
    arrive(C_A2, LP2)
    A(f"s_lshl_b32 s41, s2, 7\ns_add_u32 s41, s41, {F2_OFF}")
    flagstore("s41", 8, 32768)
    A(f"{LP2}:")
    lds_wait(C_A2, 4, 4)
    A(f"{LNOA2}:")
    if OPT["g3"]: lds_wait(C_G2, 4, 2)
    wo_run(0)
    A("s_waitcnt vmcnt(0)")
    lds_add(C_WOA)
    stamp(12)
    TA, NY, AC3, ZB, AC4 = 16, 48, 64, 16, 112
    assert OPT["kn"]
    A(f"""s_mul_i32 s41, s50, {T2_ROW}
s_add_u32 s41, s41, {T2_OFF}
s_lshl_b32 s42, s40, 9
s_add_u32 s42, s42, s41
s_and_b32 s46, s2, 7
s_lshl_b32 s46, s46, 15
s_add_u32 s46, s46, {F2_OFF}
s_add_u32 s47, s46, {28*1024}""")
    srd(SO, P_OUT, OUT_BYTES)
    if OPT["y"] & 8: A(f"s_branch {END}")
    if not OPT["y"] & 4: spin(f"buffer_load_dword v10, v255, {W}, s46 offen {PM}", 10, OPT["sl3"])
    stamp(8)
    LA, LB = A.lab("a3l"), A.lab("a3l")
    for f in range(4):
        A(f"s_add_u32 s43, s42, {2*f*T2_Q}\nbuffer_load_dwordx4 {vr(TA+4*f,4)}, v251, {W}, s43 offen {SC}\n{'s_waitcnt vmcnt(%d)' % OPT['t2p'] if OPT['t2p'] >= 0 else ''}")
    A(f"s_cmp_eq_u32 s40, 3\ns_cbranch_scc1 {LA}")
    for f in range(4):
        A(f"s_add_u32 s43, s42, {2*f*T2_Q + 2048}\nbuffer_load_dwordx4 {vr(TA+16+4*f,4)}, v251, {W}, s43 offen {SC}\n{'s_waitcnt vmcnt(%d)' % OPT['t2p'] if OPT['t2p'] >= 0 else ''}")
    A(f"{LA}:\ns_cmp_lg_u32 s40, 0\ns_cbranch_scc1 {LB}")
    if not OPT["y"] & 4: spin(f"buffer_load_dword v10, v255, {W}, s47 offen {PM}", 10, OPT["sl3"], "s_mov_b64 exec, 0xff")
    for f in range(4):
        A(f"s_add_u32 s43, s41, {2*f*T2_Q}\nbuffer_load_dwordx4 {vr(NY+4*f,4)}, v252, {W}, s43 offen {SC}")
    A(f"{LB}:")
    if OPT["ze"]: lds_wait(C_MERGE, OPT["ze"], OPT["slg"])
    else: lds_wait(C_GO if OPT["gp"] < 2 else C_WOF, 4, OPT["slg"])
    A("s_setprio 0")
    if OPT["x"] not in (2, 3): stamp(10)
    LN3, LZ = A.lab("a3ny"), A.lab("a3z")
    A("s_waitcnt vmcnt(0)")
    setup = f"""v_lshlrev_b32 v5, 4, v0
s_lshl_b32 s43, s40, 11
s_add_u32 s43, s43, {ZOFF}
v_add_u32 v6, s43, v5
s_mul_i32 s43, s52, 14336
s_add_u32 s43, s43, {ZOFF}
v_add_u32 v5, s43, v5
s_lshr_b32 s46, s40, 1
s_lshl_b32 s46, s46, 3
v_add_u32 v7, s46, v15          ; 8p + h
v_and_b32 v9, 7, v14
v_xor_b32 v7, v7, v9
v_lshlrev_b32 v7, 4, v7
v_lshl_or_b32 v7, v14, 8, v7
s_lshl_b32 s46, s52, 13
s_add_u32 s46, s46, {YOFF}
v_add_u32 v7, s46, v7           ; Y write address
v_lshrrev_b32 v8, 3, v0
s_lshl_b32 s46, s40, 3
v_add_u32 v8, s46, v8           ; row (s1)
v_and_b32 v9, 7, v0             ; piece
v_lshlrev_b32 v10, 1, v9
v_and_b32 v11, 7, v8
v_xor_b32 v10, v10, v11
v_lshlrev_b32 v10, 4, v10
v_lshl_or_b32 v10, v8, 8, v10
v_add_u32 v10, {YOFF}, v10
v_xor_b32 v11, 16, v10
v_mul_u32_u24 v8, {64*1792}, v8
v_lshl_add_u32 v8, v9, 4, v8    ; out offset
s_mul_i32 s41, s50, 1792
s_lshl_b32 s42, s51, 7
s_add_u32 s41, s41, s42""".split("\n")
    for tt in range(2):
        for f in range(4):
            A(f"{MFMA} {vr(AC3+32*tt,16)}, {vr(TA+16*tt+4*f,4)}, {vr(ER+4*f,4)}, {vr(AC3+32*tt,16) if f else 0}")
            for _ in range(5):
                if setup: A(setup.pop(0))
    assert not setup
    A(f"s_cmp_eq_u32 s51, 3\ns_cselect_b32 s42, 4, 8\nv_cmp_gt_u32 s[48:49], s42, v9")
    A(f"s_cmp_lg_u32 s40, 0\ns_cbranch_scc1 {LN3}\ns_mov_b32 exec_lo, 1\ns_mov_b32 exec_hi, 1")
    for i in range(16): A(f"v_mov_b32 v{TA+i}, v{NY+i}")
    A(f"s_mov_b64 exec, -1\n{LN3}:\ns_nop 1")
    ZD = (NY, TA, NY+8, TA+8)
    def zcvt(tt, part):
        a = AC3+32*tt+16*part
        if OPT["kn"]:
            d = ZD[2*tt+part]
            return [f"v_cvt_pk_bf16_f32 v{d+4*e+i}, v{a+4*i+e}, v{a+4*i+e+2}" for e in range(2) for i in range(4)]
        return [f"v_cvt_pk_bf16_f32 v{a+i}, v{a+2*i}, v{a+2*i+1}" for i in range(8)]
    def zwr(tt, part):
        a = AC3+32*tt+16*part
        if OPT["kn"]: a = ZD[2*tt+part]
        return [f"ds_write_b128 v6, {vr(a+4*p,4)} offset:{14336*p+8192*tt+1024*part}" for p in range(2)]
    if OPT["ze"]:
        pend = zcvt(0, 0) + zcvt(1, 0)
        for tt in range(2):
            for f in range(4):
                A(f"{MFMA} {vr(AC3+32*tt+16,16)}, {vr(TA+16*tt+4*f,4)}, {vr(EI+4*f,4)}, {vr(AC3+32*tt+16,16) if f else 0}")
                for _ in range(3):
                    if pend: A(pend.pop(0))
        for x in pend + zcvt(0, 1) + zcvt(1, 1): A(x)
        lds_wait(C_GO, 4, 1)
        for x in zwr(0, 0) + zwr(0, 1): A(x)
        A(f"s_cmp_eq_u32 s40, 3\ns_cbranch_scc1 {LZ}")
        for x in zwr(1, 0) + zwr(1, 1): A(x)
    else:
        pend = zcvt(0, 0) + zwr(0, 0)
        for tt in range(2):
            for f in range(4):
                A(f"{MFMA} {vr(AC3+32*tt+16,16)}, {vr(TA+16*tt+4*f,4)}, {vr(EI+4*f,4)}, {vr(AC3+32*tt+16,16) if f else 0}")
                for _ in range(3):
                    if pend: A(pend.pop(0))
        for x in pend + zcvt(0, 1) + zwr(0, 1): A(x)
        A(f"s_cmp_eq_u32 s40, 3\ns_cbranch_scc1 {LZ}")
        for x in zcvt(1, 0) + zwr(1, 0) + zcvt(1, 1) + zwr(1, 1): A(x)
    A(f"{LZ}:")
    lds_sync(C_Z, 4, OPT["zs"])
    LEP = A.lab("ep")
    assert EPOCH_OFF == 0
    A(f"s_add_u32 s42, s2, s3\ns_cmp_lg_u32 s42, 0\ns_cbranch_scc1 {LEP}")
    flagstore("0", 1, 0, 72)
    A(f"{LEP}:")
    for i in range(14): A(f"ds_read_b128 {vr(ZB+4*i,4)}, v5 offset:{1024*i}")
    for i in range(14):
        A(f"s_waitcnt lgkmcnt({13-i})\n{MFMA} {vr(AC4,16)}, {vr(G+4*i,4)}, {vr(ZB+4*i,4)}, {vr(AC4,16) if i else 0}")
    for g in range(4):
        A(f"v_xor_b32 v9, {32*g}, v7\nds_write_b128 v9, {vr(AC4+4*g,4)}")
    lds_sync(C_Y, 4, OPT["zs"])
    A(f"""ds_read_b128 v[16:19], v10
ds_read_b128 v[20:23], v11
ds_read_b128 v[24:27], v10 offset:8192
ds_read_b128 v[28:31], v11 offset:8192
s_waitcnt lgkmcnt(0)""")
    for i in range(8): A(f"v_add_f32 v{32+i}, v{16+i}, v{24+i}\nv_sub_f32 v{40+i}, v{16+i}, v{24+i}")
    for i in range(8): A(f"v_cvt_pk_bf16_f32 v{48+i}, v{32+2*i}, v{33+2*i}")
    if OPT["so"]: lds_wait(C_OST, OPT["so"], 1)
    A(f"""s_mov_b64 exec, s[48:49]
buffer_store_dwordx4 v[48:51], v8, {sr(SO,4)}, s41 offen {OA}
buffer_store_dwordx4 v[52:55], v8, {sr(SO,4)}, s41 offen offset:448 {OA}
s_mov_b64 exec, -1
s_branch {END}""")

def fallback():
    resident(None, None)
    L1, L2 = A.lab("fb1"), A.lab("fb2")
    tl = tile_loads(0, 43)
    A(f"""{LFB}:
v_mov_b32_dpp v{Q+24+6}, v7 {HI}
v_mov_b32 v12, 0xff800000
s_mov_b32 s43, {KV_OFF}
{L1}:
{tl[0]}
{tl[1]}
s_waitcnt vmcnt(0)
{MFMA} {vr(S,16)}, {vr(kb(0,0),4)}, {q(3,0)}, 0
{MFMA} {vr(S,16)}, {vr(kb(0,1),4)}, {q(3,1)}, {vr(S,16)}""")
    for i in range(0, 16, 2): A(f"v_max3_f32 v12, v12, v{S+i}, v{S+i+1}")
    A(f"""s_add_u32 s43, s43, {KV_REC}
s_cmp_lt_u32 s43, {KV_OFF+64*KV_REC}
s_cbranch_scc1 {L1}
v_mov_b32 v13, v12
v_mov_b32 v14, v12
v_permlane32_swap_b32 v13, v14
v_max_f32 v12, v13, v14""")
    for i in range(16): A(f"v_mov_b32 v{OK+i}, 0")
    A(f"s_mov_b32 s43, {KV_OFF}\n{L2}:")
    for x in tl: A(x)
    A(f"""s_waitcnt vmcnt(0)
{MFMA} {vr(S,16)}, {vr(kb(0,0),4)}, {q(3,0)}, 0
{MFMA} {vr(S,16)}, {vr(kb(0,1),4)}, {q(3,1)}, {vr(S,16)}""")
    for i in range(16): A(f"v_sub_f32 v{S+i}, v{S+i}, v12")
    for i in range(16): A(f"v_exp_f32 v{S+i}, v{S+i}")
    A(f"""{SMF} {vr(OK,16)}, {vr(kb(0,2),4)}, {vr(S,8)}, v5
{SMF} {vr(OK,16)}, {vr(kb(0,3),4)}, {vr(S+8,8)}, v5
s_nop 15
s_add_u32 s43, s43, {KV_REC}
s_cmp_lt_u32 s43, {KV_OFF+64*KV_REC}
s_cbranch_scc1 {L2}
s_branch {LN}""")

def finish():
    A(f"{END}:")
    if OPT["probe"]:
        LQ = A.lab("probe")
        stamp(13)
        A(f"""s_cmp_lg_u32 s2, {OPT["pwg"]}
s_cbranch_scc1 {FIN}
s_cmp_lg_u32 s3, {OPT["pwave"]}
s_cbranch_scc1 {FIN}
s_waitcnt lgkmcnt(0)
s_sub_u32 s56, s{64+2*OPT["probe"]}, s66
s_mul_i32 s56, s56, 10
s_add_u32 s56, s56, s90
{LQ}:
s_memrealtime s[58:59]
s_waitcnt lgkmcnt(0)
s_sub_u32 s57, s58, s56
s_cmp_lt_i32 s57, 0
s_cbranch_scc1 {LQ}""")
    elif STAMPS:
        stamp(13)
        A(f"""s_waitcnt vmcnt(0)
s_memtime s[92:93]
s_memrealtime s[94:95]
s_waitcnt lgkmcnt(0)
{"s_getreg_b32 s64, hwreg(HW_REG_XCC_ID)" if STAMPS == 1 else ""}
{"s_getreg_b32 s92, hwreg(HW_REG_HW_ID)" if STAMPS == 1 else ""}
s_mov_b32 s56, s24
s_mov_b32 s57, s25
s_mov_b32 s58, 0x2000000
s_mov_b32 s59, 0x00020000
s_mov_b64 exec, 1
s_lshl_b32 s60, s2, 3
s_add_u32 s60, s60, s3
s_lshl_b32 s60, s60, 6
s_add_u32 s60, s60, {TS_OFF}
v_mov_b32 v1, 0""")
        for i in range(16):
            A(f"v_mov_b32 v2, s{64+2*i}\nbuffer_store_dword v2, v1, s[56:59], s60 offen offset:{4*i}")
    A(f"{FIN}:\ns_endpgm")

def b1c():
    resident(None, None)
    A(f"{LB1C}:\ns_setprio 2"); main_start()
    for i in range(64): A(f"v_mov_b32 v{ACC+i}, 0")
    A("s_waitcnt lgkmcnt(0)"); gettag()
    gen_pre(); b1_compute()
entry(); b1_loader()
if OPT["ord"] == 2: a1_dispatch_loader()
if OPT["ord"]: b1c()
if OPT["ord"] != 2: a1_dispatch_loader()
a1_gen(); a1_compute(); pub1(); helper()
if not OPT["ord"]: b1c()
attention(); fallback(); finish()

HDR = open("cdna_kernels/%s.s.ref" % NAME).read().split("; Override")[0]
txt = HDR + f"; @launch grid=(256,1,1) block=(512,1,1) lds={LDS_BYTES}\n"
txt += '.amdgcn_target "amdgcn-amd-amdhsa--gfx950"\n.text\n' + A.finish()
txt += f""".section .rodata,"a"
.p2align 6
.amdhsa_kernel {K}
  .amdhsa_next_free_vgpr 256
  .amdhsa_next_free_sgpr 102
  .amdhsa_accum_offset 256
  .amdhsa_group_segment_fixed_size 0
  .amdhsa_kernarg_size 72
  .amdhsa_user_sgpr_count 2
  .amdhsa_user_sgpr_kernarg_segment_ptr 1
  .amdhsa_system_sgpr_workgroup_id_x 1
.end_amdhsa_kernel
"""
out = args[0] if args else "cdna_kernels/%s.s" % NAME
open(out, "w").write(txt)
print("wrote", out, len(txt))
```

```python
import sys, struct
from emit import Asm
from layout import *
NAME = "concat_heads__spectral_gfnet__softmax_full_mha__prompt"
OPT = dict(stamps=0, r1=8, pf=1, sl1=1, sl2=8, sl3=16, rot=0, x=0, probe=0, pwave=4, pwg=100, pd=0, wos=-3, lp=13, slg=8, g2=1, ro=2, wm=1, tch=0, pda=0, oa=1, ob=1, gd=0, dyn=0, wsb=0, fl=1, pw=2, tw=0, sd=0, sp=0, td=0, ad=0, bn=0, gk=2, hp=2, hs=2, fo=1, ts=0, ap=0, pm=0, fm=0, al=0, pk=0, lg=2, hk=6, bp=0, ord=2, pfw=3, av=-1, rota=1, wa=0, ag=0, gdl=0, gl=1, wg=1, xt=1, map=1, y=0, ze=0, zs=0, pe=12, gp=0, bt=1, ln=1, kn=1, fs=1, pg=0, pa=0, pn=4, oe=1, vs=1, pvd=1, ad1=0, rt=3, le=1, sm=1, r4=1, w1=0, w2=4, wo2=0, ab=0, ft=1, g3=0, cl=0, km=0, xm=0, kr=0, bt2=1, bw=2, pb=1, k28=1, t2p=-1, tw2=1, so=4, tl=0, lt=0, la=0, wf=0, ol=0, b1x=0)
args = []
for a in sys.argv[1:]:
    if "=" in a: k, v = a.split("="); assert k in OPT, k; OPT[k] = int(v)
    else: args.append(a)
STAMPS = OPT["stamps"]
MODS = ['', 'sc1', 'nt', 'sc0 sc1']
OA, OBM = MODS[OPT['oa']], MODS[OPT['ob']]
def f32(x): return "0x%08x" % struct.unpack("<I", struct.pack("<f", x))[0]
def vr(a, n=1): return f"v{a}" if n == 1 else f"v[{a}:{a+n-1}]"
def sr(a, n=1): return f"s{a}" if n == 1 else f"s[{a}:{a+n-1}]"
P_AX, P_WR, P_WI, P_BX, P_WQKV, P_WO, P_OUT, P_DBG, P_WS = 8,10,12,14,16,18,20,22,24
MFMA = "v_mfma_f32_32x32x16_bf16"
SMF = "v_smfmac_f32_32x32x32_bf16"
SC = "sc1"
KM = ['sc1', '', 'nt', 'sc1 nt', 'sc0 sc1'][OPT['km']]
XM = ['', 'sc1', 'nt', 'sc1 nt'][OPT['xm']]
PM = ['sc1', 'sc0 sc1', 'sc1 nt', 'sc0 sc1 nt'][OPT['pm']]
FM = ['sc1', 'sc0 sc1', 'sc1 nt', 'sc0 sc1 nt'][OPT['fm']]
HI = "quad_perm:[0,1,2,3] row_mask:0xc bank_mask:0xf"
TAGC = 0x9E3779B9
TAG = 62
SWS = 36; W = sr(SWS,4)
SX, SW = 28, 32
SPIN = 200000
FOFF = 7*16384
WO, OST = 0, 0
QX, EX, TX, WX, CX = 0, 8192, 16384, 24576, 32768
MERGE = 114688
ZOFF, YOFF = MERGE, MERGE + 28672
CNT = 162816
LDS_BYTES = 163840
(C_P1, R_KV, C_MERGE, C_OST, R_A1, C_EX, C_A2, R_A2, C_Z, C_Y, C_WOA, C_WOF, C_GO, C_G2, C_Q, C_LF, C_T, C_W, C_X, C_H) = [CNT+16*i+12 for i in range(20)]

A = Asm()
LOCK = [False]
def stamp(i):
    if OPT["ts"] == 3 and LOCK[0] and i in (10, 11, 12): return
    if OPT["ts"] == 4 and LOCK[0] and i in (4, 5, 6, 7, 8, 9): return
    if STAMPS: A(f"{'s_memtime' if STAMPS == 2 else 's_memrealtime'} s[{64+2*i}:{65+2*i}]")
def stampw(i):
    if STAMPS: stamp(i); A("s_waitcnt lgkmcnt(0)")
def srd(d, p, nbytes):
    A(f"s_mov_b32 s{d}, s{p}\ns_mov_b32 s{d+1}, s{p+1}\ns_mov_b32 s{d+2}, {nbytes}\ns_mov_b32 s{d+3}, 0x00020000")
def pi32(d, s, t):
    A(f"""v_and_b32 v{d}, 0x13, v{s}
v_and_b32 v{t}, 4, v{s}
v_lshl_or_b32 v{d}, v{t}, 1, v{d}
v_and_b32 v{t}, 8, v{s}
v_lshrrev_b32 v{t}, 1, v{t}
v_or_b32 v{d}, v{d}, v{t}""")
def mod7(d, t):
    A(f"s_mul_i32 s{t}, s{d}, 37\ns_lshr_b32 s{t}, s{t}, 8\ns_mul_i32 s{t}, s{t}, 7\ns_sub_u32 s{d}, s{d}, s{t}")
RB = [None]
def resident(b, o):
    RB[0] = (b, o) if b is not None else None
    if b is not None: A(f"v_mov_b32 v{b}, {CNT}\nv_mov_b32 v{o}, 1")
def cref(addr, setup=True, one=False):
    if RB[0]: return f"v{RB[0][0]}", f"v{RB[0][1]}", f" offset:{addr-CNT}"
    if setup: A(f"v_mov_b32 v12, {addr}")
    if one: A("v_mov_b32 v13, 1")
    return "v12", "v13", ""
def lds_add(addr):
    b, o, off = cref(addr, True, True)
    A(f"s_mov_b64 exec, 1\nds_add_u32 {b}, {o}{off}\ns_mov_b64 exec, -1")
def lds_wait(addr, target, sleep=0, setup=True):
    L, L2 = A.lab("lw"), A.lab("lwd")
    b, o, off = cref(addr, setup)
    A(f"""{L}:
ds_read_b32 v13, {b}{off}
s_waitcnt lgkmcnt(0)
v_readfirstlane_b32 s60, v13
s_cmp_ge_u32 s60, {target}""")
    if sleep: A(f"s_cbranch_scc1 {L2}\ns_sleep {sleep}\ns_branch {L}\n{L2}:")
    else: A(f"s_cbranch_scc0 {L}")
def lds_sync(addr, target, sleep=0, pre=None):
    L = A.lab("sy")
    b, o, off = cref(addr, True, True)
    A("s_mov_b64 exec, 1")
    if pre: A(pre)
    A(f"""ds_add_rtn_u32 v13, {b}, {o}{off}
s_mov_b64 exec, -1
s_waitcnt lgkmcnt(0)
v_readfirstlane_b32 s60, v13
s_cmp_eq_u32 s60, {target-1}
s_cbranch_scc1 {L}""")
    lds_wait(addr, target, sleep, False)
    A(f"{L}:")
def arrive(cnt, skip):
    b, o, off = cref(cnt, True, True)
    A(f"""s_mov_b64 exec, 1
s_waitcnt vmcnt(0)
ds_add_rtn_u32 v13, {b}, {o}{off}
s_mov_b64 exec, -1
s_waitcnt lgkmcnt(0)
v_readfirstlane_b32 s60, v13
s_cmp_lg_u32 s60, 3
s_cbranch_scc1 {skip}""")
def execmask(n): return f"s_bfm_b64 exec, {n}, 0"
def flagstore(soff, nrep, repstride, t=40, val=None):
    val = val or f"s{TAG}"
    if not OPT["fl"]:
        A(f"""v_mul_u32_u24 v12, {repstride}, v0
v_mov_b32 v13, {val}
s_mov_b64 exec, {(1<<nrep)-1}
buffer_store_dword v13, v12, {W}, {soff} offen {SC}
s_mov_b64 exec, -1""")
        return
    A(f"""v_lshrrev_b32 v12, 3, v0
v_mul_u32_u24 v12, {repstride}, v12
v_and_b32 v13, 7, v0
v_lshl_add_u32 v12, v13, 4, v12""")
    for i in range(4): A(f"v_mov_b32 v{t+i}, {val}")
    if nrep < 8: A(execmask(8*nrep))
    A(f"buffer_store_dwordx4 {vr(t,4)}, v12, {W}, {soff} offen {FM}")
    for _ in range(nrep//8 - 1): A(f"v_add_u32 v12, {8*repstride}, v12\nbuffer_store_dwordx4 {vr(t,4)}, v12, {W}, {soff} offen {FM}")
    if nrep < 8: A("s_mov_b64 exec, -1")
def publish(cnt, soff, nrep, repstride):
    L = A.lab("pub")
    if OPT["fl"]:
        A(f"v_lshrrev_b32 v10, 3, v0\nv_mul_u32_u24 v10, {repstride}, v10\nv_and_b32 v13, 7, v0\nv_lshl_add_u32 v10, v13, 4, v10")
        for i in range(4): A(f"v_mov_b32 v{36+i}, s{TAG}")
        arrive(cnt, L)
        if nrep < 8: A(execmask(8*nrep))
        A(f"buffer_store_dwordx4 v[36:39], v10, {W}, s{soff} offen {FM}")
        for _ in range(nrep//8 - 1): A(f"v_add_u32 v10, {8*repstride}, v10\nbuffer_store_dwordx4 v[36:39], v10, {W}, s{soff} offen {FM}")
        if nrep < 8: A("s_mov_b64 exec, -1")
    else:
        arrive(cnt, L); flagstore(f"s{soff}", nrep, repstride)
    lds_add(C_X); A(f"{L}:")
def acquire(rel, body, sleep, sleep2=1):
    LP, LD, LO, LE = A.lab("poll"), A.lab("pollok"), A.lab("pollw"), A.lab("polle")
    A(f"s_cmp_lg_u32 s40, 0\ns_cbranch_scc1 {LO}\ns_mov_b32 s61, {SPIN}\n{LP}:")
    body()
    A(f"""s_cbranch_vccz {LD}
s_sub_u32 s61, s61, 1
s_cmp_eq_u32 s61, 0
s_cbranch_scc1 {LD}
s_sleep {sleep}
s_branch {LP}
{LD}:""")
    lds_add(rel)
    A(f"s_branch {LE}\n{LO}:")
    lds_wait(rel, 1, sleep2)
    A(f"{LE}:")
def spin(load, reg, sleep, mask=None):
    if mask: load = f"{mask}\n{load}"
    LP, LD = A.lab("spin"), A.lab("spinok")
    A(f"""s_mov_b32 s61, {SPIN}
{LP}:
{load}
s_waitcnt vmcnt(0)
v_cmp_ne_u32 vcc, s{TAG}, v{reg}
s_cbranch_vccz {LD}
s_sub_u32 s61, s61, 1
s_cmp_eq_u32 s61, 0
s_cbranch_scc1 {LD}
s_sleep {sleep}
s_branch {LP}
{LD}:""")
    if mask: A("s_mov_b64 exec, -1")
def gettag():
    if OPT["wsb"]: A(f"s_add_u32 s24, s24, {OPT['wsb'] << 20}\ns_addc_u32 s25, s25, 0")
    A(f"s_load_dword s{TAG}, s[24:25], {EPOCH_OFF}")
    srd(SWS, P_WS, WS_USED)
def fixtag():
    A(f"s_waitcnt lgkmcnt(0)\ns_add_u32 s{TAG}, s{TAG}, {TAGC}")

FIN, END, ATT, PUB1, HELP2, GEN = "L_fin", "L_end", "L_att", "L_pub1", "L_help2", "L_gen"
LA1, LB1C, LB1G, LA1C, LV, LN, LFB = "L_a1", "L_b1c", "L_b1g", "L_a1c", "L_b1v", "L_norm", "L_fallback"
K = NAME + "_kernel"

def entry():
    A(f".globl {K}\n.p2align 8\n.type {K},@function\n{K}:")
    A(f"""s_cmp_ge_u32 s2, 256
s_cbranch_scc1 {FIN}
s_load_dwordx16 s[8:23], s[0:1], 0
s_load_dwordx2 s[24:25], s[0:1], 64
v_lshrrev_b32 v1, 6, v0
v_readfirstlane_b32 s3, v1
v_and_b32 v0, 63, v0""")
    if STAMPS:
        for i in range(2, 14): A(f"s_mov_b32 s{64+2*i}, 0")
        A("s_memtime s[64:65]\ns_memrealtime s[66:67]")
    if OPT["pf"]:
        L = A.lab("pf"); LP = A.lab("pc")
        A(f"""{"s_cmp_lg_u32 s3, 3" if OPT["pfw"] == 3 else "s_cmp_ge_u32 s3, %d" % OPT["pfw"]}
s_cbranch_scc1 {L}
s_getpc_b64 s[56:57]
{LP}:
s_lshr_b32 s58, s2, 3
s_add_u32 s58, s58, s3
s_and_b32 s58, s58, 3
s_lshl_b32 s58, s58, 13
v_lshlrev_b32 v1, 7, v0
v_add_u32 v1, s58, v1
v_min_u32 v1, {FIN}-{LP}, v1
global_load_dword v63, v1, s[56:57]
{L}:""")
    A(f"""s_and_b32 s4, s2, 7
s_lshr_b32 s5, s2, 3
s_lshl_b32 s6, s4, 1
s_and_b32 s7, s5, 1
s_or_b32 s6, s6, s7
s_lshr_b32 s7, s5, 1           ; column group 0..10 (B1), 11..15 (A1)
s_and_b32 s40, s3, 3
s_cmp_ge_u32 s7, 11
s_cbranch_scc1 {LA1}""")
    if OPT["map"] == 1:
        A("""s_and_b32 s26, s4, 1
s_mul_i32 s26, s26, 6
s_lshr_b32 s7, s5, 2
s_add_u32 s7, s7, s26
s_and_b32 s26, s6, 12
s_and_b32 s27, s5, 3
s_or_b32 s26, s26, s27
s_cmp_lt_u32 s5, 20
s_cselect_b32 s6, s26, s6
s_cselect_b32 s7, s7, 5""")
    if OPT["map"] == 2:
        A("""s_and_b32 s26, s4, 3
s_mul_i32 s26, s26, 22
s_add_u32 s26, s26, s5
s_lshr_b32 s7, s26, 3
s_and_b32 s26, s26, 7
s_and_b32 s6, s6, 8
s_or_b32 s6, s6, s26""")
    A(f"s_cmp_lt_u32 s3, 4\ns_cbranch_scc1 {LB1C}")

def xaddr(rs, d=2):
    A(f"""v_lshrrev_b32 v17, 3, v0
v_and_b32 v14, 7, v0
v_lshrrev_b32 v15, 4, v0
v_xor_b32 v14, v14, v15
v_lshlrev_b32 v14, 4, v14
v_xor_b32 v16, 64, v14
v_mul_u32_u24 v17, {rs}, v17
v_add_u32 v{d}, v17, v14
v_add_u32 v{d+1}, v17, v16
v_add_u32 v{d+1}, {8*rs-1024}, v{d+1}
v_add_u32 v{d+2}, {2*(8*rs-1024)}, v{d}
v_add_u32 v{d+3}, {2*(8*rs-1024)}, v{d+1}""")
def b1_loader():
    A("; ==== B1 loaders (waves 4-7): x and wqkv K-chunks into a 4-slot LDS ring ====")
    A("s_setprio 3")
    if OPT["rot"] == 2: A("s_mov_b32 s26, s7")
    elif OPT["rot"] == 3: A("s_and_b32 s26, s6, 1\ns_mul_i32 s26, s26, 3\ns_add_u32 s26, s26, s7")
    elif OPT["rot"] == 4: A("s_and_b32 s26, s6, 1\ns_mul_i32 s26, s26, 3")
    elif OPT["rot"] == 6: A("s_lshl_b32 s26, s6, 1\ns_add_u32 s26, s26, s7")
    elif OPT["rot"] == 7: A("s_mul_i32 s26, s7, 3\ns_add_u32 s26, s26, s6")
    elif OPT["rot"] == 5: A("s_lshr_b32 s26, s6, 1\ns_add_u32 s26, s26, s7")
    else: A("s_add_u32 s26, s6, s7")
    mod7(26, 27)
    if not OPT["rot"]: A("s_mov_b32 s26, 0")
    xaddr(896)
    A(f"""v_and_b32 v14, 15, v0
v_lshlrev_b32 v16, 2, v15
v_xor_b32 v14, v14, v16
v_lshlrev_b32 v14, 4, v14
v_mul_u32_u24 v15, 2688, v15
v_add_u32 v6, v14, v15
v_add_u32 v7, {4*2688-1024}, v6
v_add_u32 v8, {2*(4*2688-1024)}, v6
v_add_u32 v9, {3*(4*2688-1024)}, v6
s_lshl_b32 s41, s6, 2
s_add_u32 s47, s41, s40          ; token tile of this wave
s_mul_i32 s41, s47, {32*896}     ; x base
s_mul_i32 s42, s40, {16*2688}
s_lshl_b32 s43, s7, 8
s_add_u32 s42, s42, s43          ; w base
s_lshl_b32 s44, s40, 12          ; lds base of this wave""")
    if OPT["ts"] == 3: stamp(10)
    A("s_waitcnt lgkmcnt(0)")
    srd(SX, P_BX, X_BYTES); srd(SW, P_WQKV, WQKV_BYTES)
    def issue(a=0, b=8):
        if a == b: return
        if a == 0:
            A(f"""s_lshl_b32 s45, s26, 7
s_add_u32 s45, s45, s41
s_mul_i32 s46, s26, {64*2688}
s_add_u32 s46, s46, s42""")
        for z in range(a, b):
            isw = (z < 4) == bool(OPT["wf"]); i = z & 3
            if z == a or z == 4: A("s_add_u32 m0, s44, 16384" if isw else "s_mov_b32 m0, s44")
            if isw: A(f"buffer_load_dwordx4 v{6+i}, {sr(SW,4)}, s46 offen offset:{1024*i} {XM} lds")
            else: A(f"buffer_load_dwordx4 v{2+i}, {sr(SX,4)}, s45 offen offset:{1024*i} {XM} lds")
        if b == 8:
            A("""s_add_u32 s26, s26, 1
s_cmp_eq_u32 s26, 7
s_cselect_b32 s26, 0, s26
s_add_u32 s44, s44, 0x8000
s_and_b32 s44, s44, 0x1ffff""")
    LL = A.lab("b1ld")
    la = OPT["la"]
    if OPT["ts"] == 3: stamp(12)
    issue()
    if OPT["ts"] == 3: stamp(11)
    gettag()
    issue(0, la)
    def st4(n):
        if OPT["ts"] == 4: A(f"{'s_memtime' if STAMPS == 2 else 's_memrealtime'} s[{64+2*(4+n)}:{65+2*(4+n)}]")
    if OPT["ts"] == 4:
        for n in range(5):
            issue(la, 8); issue(0, la); A(f"s_waitcnt vmcnt({8+la})"); st4(n); A("s_barrier")
    else:
        A(f"s_mov_b32 s48, 5\n{LL}:")
        issue(la, 8); issue(0, la)
        A(f"s_waitcnt vmcnt({8+la})")
        if STAMPS:
            LX = A.lab("st"); A(f"s_cmp_lg_u32 s48, 5\ns_cbranch_scc1 {LX}"); stamp(2); A(f"{LX}:")
        A(f"""s_barrier
s_sub_u32 s48, s48, 1
s_cmp_lg_u32 s48, 0
s_cbranch_scc1 {LL}""")
    issue(la, 8)
    A("s_waitcnt vmcnt(8)"); st4(5); A("s_barrier")
    fixtag()
    if OPT["lt"]:
        srd(56, P_WR, W_BYTES); A(f"s_mov_b32 s54, s{P_WO}\ns_mov_b32 s55, s{P_WO+1}")
    A("s_waitcnt vmcnt(0)")
    stamp(3)
    A(f"s_barrier\ns_cmp_eq_u32 s7, 10\ns_cbranch_scc1 {ATT}")
    for x in WL[:OPT["wm"]]: A(x)
    A(f"s_branch {ATT}")

WL = [] if OPT["wg"] else [f"buffer_load_dwordx4 v[96:99], v248, {sr(SX,4)}, s55 offen", f"buffer_load_dwordx4 v[100:103], v248, s[56:59], s55 offen"]
def wsetup(force=False):
    if OPT["wg"] and not force: return
    LNY = A.lab("nyq")
    srd(SX, P_WR, W_BYTES); srd(56, P_WI, W_BYTES)
    A(f"""s_lshr_b32 s54, s2, 3          ; ko
s_mul_i32 s55, s4, {4*450}
s_mul_i32 s43, s40, {512*450}
s_add_u32 s55, s55, s43
s_lshl_b32 s43, s54, 4
s_add_u32 s55, s55, s43
s_cmp_lg_u32 s54, 28
s_cbranch_scc1 {LNY}""")
    srd(SX, P_WI, W_BYTES); srd(56, P_WR, W_BYTES)
    A(f"""s_sub_u32 s55, s55, 14
{LNY}:
v_lshrrev_b32 v9, 2, v0
v_and_b32 v10, 3, v0
v_lshl_add_u32 v9, v9, 5, v10
v_mul_u32_u24 v248, 450, v9""")
A1LD, ATT2 = "L_a1ld", "L_att2"
SXA = SX
def a1_dispatch_loader():
    A("; ==== A1 role: loaders prefetch, set up attention, then load x_A once the projection is nearly through ====")
    A(f"""{LA1}:
s_sub_u32 s5, s7, 11           ; g5
s_mul_i32 s26, s5, 3
s_lshr_b32 s26, s26, 1         ; e0 in 0,1,3,4,6""")
    if not OPT["rota"]: A("s_mov_b32 s26, 0")
    A(f"s_cmp_lt_u32 s3, 4\ns_cbranch_scc1 {LA1C}\ns_setprio 3")
    A(f"""s_lshl_b32 s96, s6, 2
s_add_u32 s96, s96, s40
s_mul_i32 s96, s96, 896
s_lshl_b32 s97, s40, 12
s_lshl_b32 s98, s26, 2
s_add_u32 s98, s98, 3
s_lshl_b32 s99, s6, 7
s_add_u32 s99, s99, {GO_OFF}""")
    mod7(98, 27)
    A("s_waitcnt lgkmcnt(0)")
    if OPT["bt2"]:
        LP1, LP2 = A.lab("pre"), A.lab("pre")
        srd(SX, P_BX, X_BYTES)
        A(f"""s_lshr_b32 s42, s2, 3
s_sub_u32 s42, s42, 22
v_lshlrev_b32 v1, 7, v0
s_cmp_eq_u32 s40, 3
s_cbranch_scc1 {LP1}
s_mul_i32 s43, s42, 3
s_add_u32 s43, s43, s40
s_min_u32 s43, s43, 27
s_lshl_b32 s43, s43, 13
s_mul_i32 s44, s4, {256*896}
s_add_u32 s43, s43, s44
buffer_load_dword v45, v1, {sr(SX,4)}, s43 offen
s_branch {LP2}
{LP1}:""")
        srd(SX, P_WQKV, WQKV_BYTES)
        A(f"""s_lshl_b32 s43, s42, 3
s_add_u32 s43, s43, s4
s_lshl_b32 s43, s43, 13
s_add_u32 s43, s43, {64*2688}
buffer_load_dword v45, v1, {sr(SX,4)}, s43 offen
s_add_u32 s43, s43, {80*8192}
buffer_load_dword v44, v1, {sr(SX,4)}, s43 offen
{LP2}:""")
        if OPT["bt2"] == 2: A("s_waitcnt vmcnt(0)")
    if OPT["xt"]:
        srd(SX, P_AX, X_BYTES)
        A(f"""s_lshl_b32 s44, s5, 7
s_add_u32 s43, s96, s44
s_cmp_lt_u32 s5, 2
s_cselect_b32 s44, 640, 0
v_lshrrev_b32 v1, 5, v0
v_mul_u32_u24 v1, s44, v1
v_and_b32 v2, 31, v0
v_mul_u32_u24 v2, {64*896}, v2
v_add_u32 v1, v1, v2
buffer_load_dword v46, v1, {sr(SX,4)}, s43 offen""")
    if OPT["bt2"] >= 3:
        c0 = OPT["bt2"] - 1
        srd(SX, P_WQKV, WQKV_BYTES)
        A(f"""v_lshlrev_b32 v1, 7, v0
s_lshl_b32 s43, s42, 2
s_add_u32 s43, s43, s40
s_lshl_b32 s43, s43, 13
s_add_u32 s43, s43, {c0*64*2688}""")
        if OPT["bw"]: A(f"s_waitcnt vmcnt({OPT['bw']-1})")
        for z in range(-(-(7-c0)*21 // 40)):
            A(f"buffer_load_dword v44, v1, {sr(SX,4)}, s43 offen\ns_add_u32 s43, s43, {40*8192}")
    gettag()
    wsetup()
    if not OPT["wa"]:
        for x in WL: A(x)
    A(f"s_mov_b32 s0, s{P_AX}\ns_mov_b32 s1, s{P_AX+1}")
    if OPT["lt"]:
        LT = A.lab("lt")
        srd(56, P_WR, W_BYTES)
        A(f"s_bitcmp0_b32 s40, 0\ns_cbranch_scc1 {LT}")
        srd(56, P_WI, W_BYTES)
        A(f"{LT}:\ns_mov_b32 s54, s{P_WO}\ns_mov_b32 s55, s{P_WO+1}")
    fixtag()
    if OPT["cl"]:
        A("v_and_b32 v14, 31, v0\nv_lshrrev_b32 v15, 5, v0")
        gen_c(80)
    A(f"s_branch {ATT}")
    A(f"{A1LD}:\ns_setprio 3\nv_mov_b32 v9, 0")
    xaddr(64*896, 48)
    if OPT["wa"] == 2:
        for x in WL: A(x)
    srd(SX, 0, X_BYTES)
    spin(f"buffer_load_dword v14, v9, {W}, s99 offen {PM}", 14, 2)
    stamp(2)
    LL = A.lab("a1ld")
    A(f"""s_mov_b32 s100, 0
{LL}:
s_lshl_b32 s42, s98, 7
s_add_u32 s42, s42, s96
s_lshl_b32 s43, s98, 14
s_add_u32 m0, s97, s43""")
    for i in range(4): A(f"buffer_load_dwordx4 v{48+i}, {sr(SXA,4)}, s42 offen offset:{1024*i} lds")
    A(f"""s_add_u32 s98, s98, 4
s_sub_u32 s43, s98, 7
s_cmp_ge_u32 s98, 7
s_cselect_b32 s98, s43, s98
s_add_u32 s100, s100, 1
s_cmp_lt_u32 s100, 3
s_cbranch_scc1 {LL}
s_waitcnt vmcnt(4)
s_barrier
s_cmp_lt_u32 s100, 7
s_cbranch_scc1 {LL}""")
    if OPT["lt"]:
        srd(SX, 54, WO_BYTES)
        A(f"""s_lshr_b32 s100, s2, 3
s_sub_u32 s100, s100, 22
s_lshl_b32 s100, s100, 2
s_add_u32 s100, s100, s40
s_lshr_b32 s42, s100, 1
s_mul_i32 s42, s42, {128*450}
s_and_b32 s43, s2, 7
s_mul_i32 s43, s43, {4*450}
s_add_u32 s42, s42, s43
s_and_b32 s42, s42, 0xffffff80
v_lshrrev_b32 v48, 4, v0
v_mul_u32_u24 v48, {32*450}, v48
v_and_b32 v49, 15, v0
v_lshl_add_u32 v48, v49, 7, v48
s_mul_i32 s43, s100, {12*896}
s_and_b32 s100, s2, 1
s_lshl_b32 s100, s100, 9
s_add_u32 s43, s43, s100
v_lshrrev_b32 v49, 2, v0
v_mul_u32_u24 v49, 896, v49
v_and_b32 v50, 3, v0
v_lshl_add_u32 v49, v50, 7, v49""")
    A("s_waitcnt vmcnt(0)")
    stamp(3)
    def ltouch():
        A(f"""buffer_load_dword v46, v48, s[56:59], s42 offen
s_mov_b32 exec_hi, 0xffff
buffer_load_dword v45, v49, {sr(SX,4)}, s43 offen
s_mov_b64 exec, -1""")
    if OPT["lt"] == 1: ltouch()
    A("s_barrier")
    if OPT["lt"] == 2: ltouch()
    if OPT["pa"] == 1: lds_wait(C_W, 4, 1)
    if OPT["pa"] == 2: lds_wait(C_LF, 4, 1)
    if OPT["pa"] == 3: lds_wait(C_P1, 1, 1)
    A(f"s_branch {ATT2}")

def main_start():
    A(f"""v_lshlrev_b32 v1, 4, v0
v_add_u32 v1, {CNT+12}, v1
v_mov_b32 v2, 0
ds_write_b32 v1, v2""")

C, ER, EI, G, GT = 128, 160, 176, 192, 16
def tlbwarm():
    g = OPT["tw"]
    if not g: return
    L = A.lab("tw")
    n = (WS_USED >> g) // 32 + 1
    A(f"""s_cmp_lg_u32 s3, 2
s_cbranch_scc1 {L}
s_lshr_b32 s60, s2, 3
s_mul_i32 s60, s60, {n << g}
v_lshlrev_b32 v12, {g}, v0""")
    for i in range(0, n, 64):
        k = min(64, n - i)
        if k < 64: A(f"s_bfm_b64 exec, {k}, 0")
        A(f"buffer_load_dword v255, v12, {W}, s60 offen offset:64")
        if i + 64 < n: A(f"s_add_u32 s60, s60, {64 << g}")
    A("s_mov_b64 exec, -1")
    m = (W_BYTES >> g) // 32 + 1
    srd(28, P_WR, W_BYTES); srd(32, P_WI, W_BYTES)
    A(f"""s_lshr_b32 s60, s2, 3
s_mul_i32 s60, s60, {m << g}
s_bfm_b64 exec, {m}, 0
buffer_load_dword v255, v12, s[28:31], s60 offen
buffer_load_dword v255, v12, s[32:35], s60 offen
s_mov_b64 exec, -1
{L}:""")
def prewrite():
    tlbwarm()
    if OPT["pw"] < 2: return
    L = A.lab("pw")
    A(f"""s_cmp_lg_u32 s3, 3
s_cbranch_scc1 {L}
s_sub_u32 s60, s{TAG}, {TAGC}
s_lshl_b32 s61, s7, 4
s_add_u32 s61, s61, s6
s_lshl_b32 s61, s61, 7
s_add_u32 s61, s61, {F1_OFF}""")
    flagstore("s61", OPT["r1"], 32768, 40, "s60")
    A(f"{L}:")
def touches(which):
    if "x" in which:
        srd(28, P_AX, X_BYTES)
        A(f"""s_lshl_b32 s43, s6, 2
s_add_u32 s43, s43, s3
s_mul_i32 s43, s43, 896
s_lshl_b32 s44, s5, 7
s_add_u32 s43, s43, s44
s_cmp_lt_u32 s5, 2
s_cselect_b32 s44, 640, 0
v_mul_u32_u24 v1, s44, v15
v_mul_u32_u24 v7, {64*896}, v14
v_add_u32 v1, v1, v7
buffer_load_dword v63, v1, s[28:31], s43 offen""")
    A(f"""s_lshr_b32 s45, s2, 3
s_sub_u32 s45, s45, 22
s_lshl_b32 s45, s45, 2
s_add_u32 s45, s45, s3""")
    if "w" in which:
        LT = A.lab("tch")
        srd(28, P_WR, W_BYTES)
        A(f"s_bitcmp0_b32 s45, 0\ns_cbranch_scc1 {LT}")
        srd(28, P_WI, W_BYTES)
        A(f"""{LT}:
s_lshr_b32 s43, s45, 1
s_mul_i32 s43, s43, {128*450}
s_mul_i32 s44, s4, {4*450}
s_add_u32 s43, s43, s44
s_and_b32 s43, s43, 0xffffff80
v_lshrrev_b32 v1, 4, v0
v_mul_u32_u24 v1, {32*450}, v1
v_and_b32 v7, 15, v0
v_lshl_add_u32 v1, v7, 7, v1
buffer_load_dword v63, v1, s[28:31], s43 offen""")
    if "o" in which:
        srd(28, P_WO, WO_BYTES)
        A(f"""s_mul_i32 s43, s45, {12*896}
s_and_b32 s44, s2, 1
s_lshl_b32 s44, s44, 9
s_add_u32 s43, s43, s44
v_lshrrev_b32 v1, 2, v0
v_mul_u32_u24 v1, 896, v1
v_and_b32 v7, 3, v0
v_lshl_add_u32 v1, v7, 7, v1
s_mov_b32 exec_hi, 0xffff
buffer_load_dword v63, v1, s[28:31], s43 offen
s_mov_b64 exec, -1""")
TCH = {0: ("", ""), 1: ("x", "wo"), 2: ("", "xwo"), 3: ("xwo", ""), 4: ("", "x"), 5: ("x", ""), 6: ("xw", "o"), 7: ("w", "xo")}[OPT["tch"]]
def gen_common():
    A(f"""v_and_b32 v14, 31, v0
v_lshrrev_b32 v15, 5, v0
s_lshr_b32 s50, s2, 5
s_lshl_b32 s50, s50, 3
s_or_b32 s50, s50, s4
s_bfe_u32 s51, s2, 0x20003       ; d quarter
s_and_b32 s52, s40, 1            ; parity e""")
def rot_gen(n, nblk, step, base, mult, dmult, out, scale=None):
    c, sn, t = GT, GT+8, GT+16
    A(f"v_mul_f32 v11, {f32(float(dmult))}, v{step}")
    for j in range(n): A(f"v_fmamk_f32 v{t+j}, v{step}, {f32(float(mult[j]))}, v{base}")
    A("v_cos_f32 v10, v11\nv_sin_f32 v12, v11")
    for j in range(n): A(f"v_cos_f32 v{c+j}, v{t+j}\nv_sin_f32 v{sn+j}, v{t+j}")
    A("v_mov_b32 v11, v10\nv_mov_b32 v13, v12")
    if scale is not None:
        for j in range(n): A(f"v_mul_f32 v{c+j}, {f32(scale)}, v{c+j}\nv_mul_f32 v{sn+j}, {f32(scale)}, v{sn+j}")
    for b in range(nblk):
        out(b)
        if b + 1 < nblk:
            for j in range(0, n, 2): A(f"v_pk_mul_f32 {vr(t+j,2)}, {vr(sn+j,2)}, v[12:13]")
            for j in range(0, n, 2): A(f"v_pk_mul_f32 {vr(sn+j,2)}, {vr(sn+j,2)}, v[10:11]")
            for j in range(0, n, 2): A(f"v_pk_fma_f32 {vr(sn+j,2)}, {vr(c+j,2)}, v[12:13], {vr(sn+j,2)}")
            for j in range(0, n, 2): A(f"v_pk_fma_f32 {vr(c+j,2)}, {vr(c+j,2)}, v[10:11], {vr(t+j,2)} neg_lo:[0,0,1] neg_hi:[0,0,1]")
def gen_c(C=C):
    A(f"""v_lshrrev_b32 v8, 1, v14
s_lshl_b32 s43, s40, 4
v_add_u32 v8, s43, v8
v_cvt_f32_u32 v8, v8
v_mul_f32 v8, {f32(1/64)}, v8    ; step = u2/64
v_and_b32 v9, 1, v14
v_cvt_f32_u32 v9, v9
v_mul_f32 v9, {f32(0.25)}, v9
v_lshlrev_b32 v10, 1, v15
v_cvt_f32_u32 v10, v10
v_fma_f32 v9, v8, v10, v9        ; base""")
    def out(f):
        for p in range(4): A(f"v_cvt_pk_bf16_f32 v{C+4*f+p}, v{GT+p}, v{GT+8+p}")
    rot_gen(4, 8, 8, 9, [0,1,4,5], 8, out)
def gen_e():
    A(f"""v_lshlrev_b32 v8, 6, v14
v_add_u32 v8, s50, v8
v_cvt_f32_u32 v8, v8
v_mul_f32 v8, {f32(1/2048)}, v8
v_lshlrev_b32 v9, 2, v15
v_cvt_f32_u32 v9, v9
v_mul_f32 v9, v8, v9""")
    def out(f):
        for p in range(4): A(f"v_cvt_pk_bf16_f32 v{ER+4*f+p}, v{GT+p}, -v{GT+8+p}")
        for p in range(4): A(f"v_cvt_pk_bf16_f32 v{EI+4*f+p}, v{GT+8+p}, v{GT+p}")
    rot_gen(4, 4, 8, 9, [0,1,2,3], 8, out, 2.0/(2048*448))
def gen_g():
    A(f"""s_lshr_b32 s44, s40, 1
s_lshl_b32 s45, s51, 1
s_add_u32 s44, s44, s45         ; d tile
s_lshl_b32 s46, s44, 5
v_add_u32 v8, s46, v14          ; d
v_cvt_f32_u32 v8, v8
v_mul_f32 v8, {f32(1/448)}, v8
v_lshlrev_b32 v9, {2 if OPT["kn"] else 3}, v15
v_add_u32 v9, s52, v9
v_cmp_eq_u32 vcc, 0, v9         ; lanes holding k = 0
v_cvt_f32_u32 v9, v9
v_mul_f32 v9, v8, v9""")
    def out(t):
        for j in range(4): A(f"v_cvt_pk_bf16_f32 v{G+8*t+j}, v{GT+2*j}, v{GT+2*j+1}")
        for j in range(4): A(f"v_cvt_pk_bf16_f32 v{G+8*t+4+j}, -v{GT+8+2*j}, -v{GT+9+2*j}")
    rot_gen(8, 7, 8, 9, [(8*(j>>1)+2*(j&1) if OPT["kn"] else 16*(j>>2)+2*(j&3)) for j in range(8)], 32, out)
    A(f"""v_and_b32 v8, 0xffff0000, v{G}
v_or_b32 v8, 0x3f00, v8
v_and_b32 v10, 1, v14
v_lshlrev_b32 v10, 15, v10
v_cndmask_b32 v{G}, v{G}, v8, vcc
v_and_b32 v8, 0xffff, v8
v_and_b32 v9, 0xffff0000, v{G+4}
v_or3_b32 v9, v9, v10, v8
v_cndmask_b32 v{G+4}, v{G+4}, v9, vcc""")
def gen_pre():
    gen_common()

ACC = 64
def acc(a, b): return ACC + 32*a + 16*b
LONES = "L_ones"
def b1_body(vtype):
    if vtype: pi32(48, 14, 49)
    else: A("v_mov_b32 v48, v14")
    A(f"""v_lshrrev_b32 v49, 1, v48
v_and_b32 v49, 7, v49
v_xor_b32 v49, v49, v15
v_lshlrev_b32 v49, 4, v49
v_lshl_or_b32 v50, v48, 7, v49
s_lshl_b32 s43, s41, 13
v_add_u32 v52, s43, v50
v_xor_b32 v53, 32, v52
v_xor_b32 v54, 64, v52
v_xor_b32 v55, 96, v52""")
    A(f"""v_bfe_u32 v48, v0, 2, 2        ; rr
v_and_b32 v49, 3, v0           ; cc""")
    if not vtype:
        A("""v_lshrrev_b32 v50, 1, v49
v_and_b32 v49, 1, v49
v_lshl_or_b32 v49, v49, 1, v50 ; sigma(cc)""")
    A(f"""v_bfe_u32 v50, v0, 4, 1        ; colhalf
v_lshlrev_b32 v50, 5, v50
v_lshl_or_b32 v50, v49, 3, v50
s_lshl_b32 s43, s42, 7
v_or_b32 v50, s43, v50          ; col byte
v_lshlrev_b32 v51, 6, v48
v_xor_b32 v50, v50, v51
v_lshl_add_u32 v51, v15, 3, v48 ; 8h+rr
v_lshl_or_b32 v56, v51, 8, v50
v_add_u32 v56, 16384, v56
v_xor_b32 v57, 64, v56""")
    A(f"""s_lshl_b32 s46, s6, 2
s_lshl_b32 s47, s41, 1
s_add_u32 s46, s46, s47
s_lshl_b32 s47, s7, 2
s_lshl_b32 s48, s42, 1
s_add_u32 s47, s47, s48        ; first col tile""")
    if not vtype:
        A(f"""s_lshl_b32 s48, s47, 11
v_lshlrev_b32 v2, 4, v0
s_cmp_ge_u32 s47, 14
s_cselect_b32 s49, {KV_REC - QK_TILE}, 0
s_cselect_b32 s43, {KV_OFF - Q_OFF - 14*2048}, 0
s_cselect_b32 s54, 1.0, {f32(QSCALE)}
s_mov_b32 s55, s54
s_add_u32 s49, s49, {QK_TILE}
s_mul_i32 s46, s46, s49
s_add_u32 s46, s46, s48
s_add_u32 s46, s46, s43
s_add_u32 s46, s46, {Q_OFF}
s_add_u32 s49, s46, s49""")
    else:
        A(f"""s_sub_u32 s45, s7, 7
s_lshl_b32 s45, s45, 7
s_add_u32 s45, s45, 27
s_mul_i32 s45, s45, 2341
s_lshr_b32 s45, s45, 16
v_lshrrev_b32 v10, 4, v0
v_add_u32 v10, s45, v10
v_lshrrev_b32 v11, 2, v0
v_lshlrev_b32 v11, 9, v11
s_lshl_b32 s45, s45, 11
v_add_u32 v11, s45, v11
v_cmp_gt_u32 s[56:57], 16, v10
v_and_b32 v4, 3, v0
v_lshl_or_b32 v4, v4, 4, v11
s_cmp_lt_u32 s7, 9
s_cselect_b32 s58, 0xffff, 0
s_mov_b32 s59, 0
s_lshl_b32 s54, s6, 2
s_add_u32 s54, s54, s40
s_mul_i32 s54, s54, {KV_REC}
s_add_u32 s54, s54, {KV_OFF + QK_TILE + 28*16}
s_add_u32 s55, s54, 8192
v_and_b32 v58, 1, v0
v_add_u32 v58, -1, v58
v_and_b32 v58, 0x3f803f80, v58
v_mov_b32 v59, v58
v_mov_b32 v60, v58
v_mov_b32 v61, v58
s_sub_u32 s47, s47, 28
s_mul_i32 s46, s46, {KV_REC}
s_add_u32 s46, s46, {KV_OFF + QK_TILE}
s_add_u32 s49, s46, {KV_REC}
s_lshl_b32 s48, s47, 5""")
        for b in range(2):
            A(f"""v_add_u32 v48, s48, v14
v_add_u32 v48, {32*b}, v48
v_mul_u32_u24 v49, 2341, v48
v_lshrrev_b32 v49, 16, v49     ; head
v_mul_u32_u24 v50, 28, v49
v_sub_u32 v48, v48, v50        ; d
v_lshlrev_b32 v48, 4, v48
v_lshl_or_b32 v48, v15, 9, v48
v_lshl_or_b32 v{2+b}, v49, 11, v48""")
    def ones(label):
        LO = A.lab("ones")
        if label: A(f"{LONES}:")
        A(f"""s_mov_b64 exec, s[56:57]
buffer_store_dwordx4 v[58:61], v4, {W}, s54 offen {SC}
s_mov_b64 exec, s[58:59]
s_cbranch_execz {LO}
buffer_store_dwordx4 v[58:61], v4, {W}, s55 offen {SC}
{LO}:
s_mov_b64 exec, -1""")
    SETS = (16, 32, 192, 208)
    def rx(kap, p, a): return f"ds_read_b128 {vr(SETS[p]+4*a,4)}, v{6+kap} offset:{4096*a}"
    def rw(kap, p, b): return [f"ds_read_b64_tr_b16 {vr(SETS[p]+8+4*b+2*u,2)}, v{10+b} offset:{(16*kap+4*u)*256}" for u in range(2)]
    def rdlist(kap, p): return [rx(kap,p,0)] + rw(kap,p,0) + rw(kap,p,1) + [rx(kap,p,1)]
    def setaddr(): return [f"v_add_u32 v{6+i}, s44, v{52+i}" for i in range(6)]
    def mf(a, b, p):
        x, w = vr(SETS[p]+4*a,4), vr(SETS[p]+8+4*b,4)
        o = (x, w) if vtype else (w, x)
        A(f"{MFMA} {vr(acc(a,b),16)}, {o[0]}, {o[1]}, {vr(acc(a,b),16)}")
    gb = []
    def fill(n):
        for _ in range(n):
            if gb:
                for x in gb.pop(0): A(x)
    def kstep(p, r, f):
        A("s_waitcnt lgkmcnt(3)")
        mf(0,0,p)
        for x in r[0:3]: A(x)
        fill(f[0])
        A("s_waitcnt lgkmcnt(4)")
        mf(0,1,p)
        for x in r[3:5]: A(x)
        fill(f[1])
        A("s_waitcnt lgkmcnt(5)")
        mf(1,0,p)
        for x in r[5:6]: A(x)
        fill(f[2])
        mf(1,1,p)
        if OPT["bn"]: A(f"s_nop {OPT['bn']}")
        fill(f[3])
    LL = A.lab("b1loop")
    if vtype:
        LI, LI2 = A.lab("idle"), A.lab("idle")
        A(f"s_cmp_lt_u32 s47, 14\ns_cbranch_scc1 {LI}")
        prewrite()
        for n in range(7):
            A("s_barrier")
            if n == OPT["gk"]:
                A(f"s_cmp_lg_u32 s3, 2\ns_cbranch_scc1 {LI2}\ns_lshl_b32 s61, s6, 7\ns_add_u32 s61, s61, {GO_OFF}")
                flagstore("s61", 1, 0)
                A(f"{LI2}:")
        if OPT["oe"]: ones(False)
        A(f"s_branch {LONES}\n{LI}:")
    A("s_mov_b32 s44, 0\ns_mov_b32 s45, 0")
    for x in setaddr(): A(x)
    prewrite()
    stampw(9)
    A("s_barrier")
    stampw(2)
    for x in rdlist(0, 0): A(x)
    A(f"{LL}:")
    ab0 = len(A.ins)
    kstep(0, rdlist(1, 1), (0,1,2,3))
    kstep(1, rdlist(2, 0), (0,1,2,3))
    A("s_add_u32 s44, s44, 0x8000\ns_and_b32 s44, s44, 0x1ffff\ns_add_u32 s45, s45, 1")
    kstep(0, rdlist(3, 1), (1,1,2,0))
    for x in setaddr(): A(x)
    if OPT["la"]: A("s_waitcnt lgkmcnt(0)")
    A("s_barrier")
    kstep(1, rdlist(0, 0), (1,1,1,1))
    assert not gb
    if OPT["b1x"]: A.ins[ab0:] = [i for i in A.ins[ab0:] if not ((OPT["b1x"] & 1 and i.mfma) or (OPT["b1x"] & 2 and i.ds) or (OPT["b1x"] & 4 and i.mn == "ds_read_b128") or (OPT["b1x"] & 8 and "tr" in i.mn))]
    A(f"s_cmp_lt_u32 s45, 6\ns_cbranch_scc1 {LL}")
    if OPT["x"] in (2, 3): A("s_memtime s[84:85]\ns_waitcnt lgkmcnt(0)")
    rd = []
    for kap in (1,2,3): rd += [rx(kap,kap,0)] + rw(kap,kap,0)
    for kap in (1,2,3): rd += rw(kap,kap,1)
    for kap in (1,2,3): rd += [rx(kap,kap,1)]
    order = [rdlist(0,0)[i] for i in range(6)] + rd
    def epi(a, b):
        e = []; t = acc(a,b)
        for i in range(8):
            if not vtype:
                if OPT["pk"] or (a, b) == (1, 1): e.append(f"v_pk_mul_f32 {vr(t+2*i,2)}, {vr(t+2*i,2)}, s[54:55]")
                else: e += [f"v_mul_f32 v{t+2*i}, s54, v{t+2*i}", f"v_mul_f32 v{t+2*i+1}, s54, v{t+2*i+1}"]
            e.append(f"v_cvt_pk_bf16_f32 v{t+i}, v{t+2*i}, v{t+2*i+1}" if OPT["x"] != -10 else f"v_mov_b32 v{t+i}, 0")
            if i & 3 == 3:
                if OPT["sd"] and (a, b, i) == (0, 0, 3): e.append(f"s_sleep {OPT['sd']}")
                if OPT["sp"]: e.append(f"s_sleep {OPT['sp']}")
                if vtype: e.append(f"buffer_store_dwordx4 {vr(t+i-3,4)}, v{2+b}, {W}, s{46 if a==0 else 49} offen offset:{1024*(i>>2)} {SC}")
                else: e.append(f"buffer_store_dwordx4 {vr(t+i-3,4)}, v2, {W}, s{46 if a==0 else 49} offen offset:{2048*b+1024*(i>>2)} {SC}")
        return e
    issued = 6; pend = []; lastw = None
    tiles = [(a,b) for a in range(2) for b in range(2)]
    seq = [(a,b,0) for a,b in tiles] + [(a,b,k) for a,b in tiles for k in (1,2,3)]
    for m, (a, b, kap) in enumerate(seq):
        need = max(order.index(x) for x in [rx(kap,kap,a)] + rw(kap,kap,b)) + 1
        while issued < need: A(order[issued]); issued += 1
        if lastw is None or need > lastw:
            A(f"s_waitcnt lgkmcnt({issued - need})"); lastw = need
        mf(a, b, kap)
        for _ in range(3):
            if issued < len(order) and issued - lastw < 14: A(order[issued]); issued += 1
        if m in (8, 11, 14): pend += epi(*tiles[(m-8)//3])
        if m == 5 and vtype and OPT["oe"]: ones(False)
        if m == 15: stamp(3)
        for _ in range((6 if OPT["pk"] else 8) if not vtype else 4):
            if pend: A(pend.pop(0))
    for x in pend + epi(1,1): A(x)
    if vtype:
        if OPT["oe"]: A(f"{LONES}:")
        else: ones(True)
    lds_add(C_LF)
    A(f"s_branch {PUB1}")
def b1_compute():
    A(f"""s_and_b32 s41, s3, 1           ; wr
s_lshr_b32 s42, s3, 1          ; wc""")
    fixtag()
    A(f"s_cmp_ge_u32 s7, 7\ns_cbranch_scc1 {LV}")
    b1_body(False)
    A(f"{LV}:")
    b1_body(True)

def a1_gen():
    A("; ==== A1 compute waves: DFT-448 fragments into LDS ====")
    LF, LE = A.lab("fgen"), A.lab("fend")
    A(f"{LA1C}:\ns_setprio 2")
    if OPT["gdl"]: A(f"s_sleep {OPT['gdl']}")
    gen_common()
    pi32(48, 14, 49)
    A(f"""v_lshlrev_b32 v61, 4, v0
v_add_u32 v61, {FOFF}, v61""")
    main_start()
    A(f"""v_lshrrev_b32 v48, 1, v48       ; k_local
s_mul_i32 s41, s5, 3
s_add_u32 s41, s41, s3
s_lshl_b32 s41, s41, 4
v_add_u32 v48, s41, v48
v_cvt_f32_u32 v48, v48
v_mul_f32 v56, {f32(1/448)}, v48 ; k/448
v_and_b32 v48, 1, v14
v_cvt_f32_u32 v48, v48
v_mul_f32 v59, {f32(0.25)}, v48  ; c/4
v_lshlrev_b32 v60, 3, v15
v_cvt_f32_u32 v60, v60
v_fma_f32 v59, v56, v60, v59
v_mul_f32 v58, {f32(16.0)}, v56
v_cos_f32 v58, v58
s_mul_i32 s41, s3, 14336
v_add_u32 v53, s41, v61""")
    for j in range(16): A(f"v_fmamk_f32 v{16+j}, v56, {f32(float(16*(j>>3)+(j&7)))}, v59")
    A("v_add_f32 v58, v58, v58")
    for j in range(16): A(f"v_cos_f32 v{16+j}, v{16+j}")
    A("s_waitcnt lgkmcnt(0)")
    gettag()
    A(f"s_cmp_eq_u32 s3, 3\ns_cbranch_scc1 {LE}\nv_mov_b32 v59, v58\ns_mov_b32 s42, 7\n{LF}:")
    for u in range(2):
        for j in range(4): A(f"v_cvt_pk_bf16_f32 v{32+4*u+j}, v{16+8*u+2*j}, v{17+8*u+2*j}")
        A(f"ds_write_b128 v53, {vr(32+4*u,4)} offset:{1024*u}")
        for j in range(4):
            a, b = 16+8*u+2*j, 16+8*(u^1)+2*j
            A(f"v_pk_fma_f32 {vr(a,2)}, {vr(b,2)}, v[58:59], {vr(a,2)} neg_lo:[0,0,1] neg_hi:[0,0,1]") if u == 0 else None
    for j in range(4):
        a, b = 24+2*j, 16+2*j
        A(f"v_pk_fma_f32 {vr(a,2)}, {vr(b,2)}, v[58:59], {vr(a,2)} neg_lo:[0,0,1] neg_hi:[0,0,1]")
    A(f"""v_add_u32 v53, 2048, v53
s_sub_u32 s42, s42, 1
s_cmp_lg_u32 s42, 0
s_cbranch_scc1 {LF}
{LE}:""")
E1R, E1I = 56, 248
TST = [f"buffer_store_dwordx4 {vr(40+4*z,4)}, v4, {W}, s{99+(z>>1)} offen offset:{1024*(z&1)} {SC}" for z in range(6)]
def a1_compute():
    A("; ==== constants of A3 (shared with the B1 role), then the A1 main loop ====")
    if TCH[0]: touches(TCH[0])
    if not OPT["ag"]:
        A(f"{GEN}:")
        gen_e()
        if OPT["pg"] == 4: lds_add(C_H)
        gen_g()
        A(f"s_cmp_lt_u32 s7, 11\ns_cbranch_scc1 {HELP2}")
    if TCH[1]: touches(TCH[1])
    A(f"""s_lshl_b32 s41, s6, 2
s_add_u32 s41, s41, s3          ; s2 index
v_lshlrev_b32 v9, 8, v15
v_add_u32 v9, s41, v9
v_mul_u32_u24 v9, v14, v9
v_cvt_f32_u32 v9, v9
v_mul_f32 v9, {f32(1/2048)}, v9
v_cvt_f32_u32 v8, v14
v_mul_f32 v8, {f32(1/32)}, v8
v_mov_b32 v5, v61
s_waitcnt vmcnt(0)""")
    def out(b):
        for j in range(4): A(f"v_cvt_pk_bf16_f32 v{E1R+4*b+j}, v{GT+2*j}, v{GT+2*j+1}")
        for j in range(4): A(f"v_cvt_pk_bf16_f32 v{E1I+4*b+j}, -v{GT+8+2*j}, -v{GT+9+2*j}")
    rot_gen(8, 2, 8, 9, [8*(j>>2)+(j&3) for j in range(8)], 16, out)
    A(f"""v_lshrrev_b32 v49, 1, v14
v_and_b32 v49, 7, v49
v_xor_b32 v49, v49, v15
v_lshlrev_b32 v49, 4, v49
v_lshl_or_b32 v6, v14, 7, v49
s_lshl_b32 s43, s3, 12
v_add_u32 v6, s43, v6
v_and_b32 v3, 2, v14
v_lshlrev_b32 v3, 30, v3
v_or_b32 v3, 1.0, v3            ; (-1)^k
v_mov_b32 v2, v3
v_lshlrev_b32 v4, 4, v0
s_mul_i32 s99, s41, {T_ROW}
s_mul_i32 s42, s5, 6144
s_add_u32 s99, s99, s42
s_add_u32 s99, s99, {T_OFF}
s_add_u32 s100, s99, 2048
s_add_u32 s101, s99, 4096""")
    egen = []
    A(f"s_mul_i32 s27, s26, 8256")
    def a1salu(adv=True):
        r = []
        if adv: r += ["s_add_u32 s27, s27, 8256", f"s_cmp_eq_u32 s27, {7*8256}", "s_cselect_b32 s27, 0, s27"]
        return r + ["s_and_b32 s43, s27, 0x1c040", f"s_add_u32 s44, s27, {7*8256}", "s_and_b32 s44, s44, 0x1c040",
                    "s_lshr_b32 s46, s27, 2", "s_and_b32 s46, s46, 0x7800"]
    a1valu = ["v_xor_b32 v8, s43, v6", "v_xor_b32 v10, s44, v6", "v_xor_b32 v9, 32, v8", "v_xor_b32 v11, 32, v10", "v_add_u32 v12, s46, v5"]
    def a1rd(t):
        b = 16 + 20*t
        return ([f"ds_read_b128 {vr(b,4)}, v{8+t}"] +
                [f"ds_read_b128 {vr(b+8+4*kgi,4)}, v12 offset:{1024*t+14336*kgi}" for kgi in range(3)] +
                [f"ds_read_b128 {vr(b+4,4)}, v{10+t}"])
    def a1step(t, nxt, first=False, fill=0, adv=False):
        b = 16 + 20*t
        r = list(nxt); issued = 0
        sa = a1salu() if adv else []; va = list(a1valu) if adv else []
        for m in range(6):
            hi, kgi = m // 3, m % 3
            need = (2, 3, 4, 5, 5, 5)[m]
            if not nxt: hi, kgi, need = m % 2, m // 2, (2, 5, 5, 5, 5, 5)[m]
            if m < (4 if nxt else 2): A(f"s_waitcnt lgkmcnt({5 - need + issued})")
            d = 64 + 32*kgi + 16*hi
            A(f"{MFMA} {vr(d,16)}, {vr(b+4*hi,4)}, {vr(b+8+4*kgi,4)}, {0 if first else vr(d,16)}")
            for _ in range(2 if m == 0 else 1):
                if r: A(r.pop(0)); issued += 1
            if m in (1, 2, 3):
                for _ in range(3):
                    if sa: A(sa.pop(0))
            if m == 4:
                while va: A(va.pop(0))
            for _ in range(fill if not (adv and m in (1,2,3,4)) else fill // 2):
                if egen: A(egen.pop(0))
    LL, LS, LNB = A.lab("a1loop"), A.lab("a1last"), A.lab("a1nb")
    for x in a1salu(False) + a1valu: A(x)
    fixtag()
    prewrite()
    for x in a1valu[4:]: A(x)
    stampw(9)
    A("s_barrier")
    stampw(2)
    if OPT["ad"]: A(f"s_sleep {OPT['ad']}")
    for x in a1rd(0): A(x)
    for n in range(1):
        a1step(0, a1rd(1), n == 0, 2, True)
        if OPT["gl"]: A("s_barrier")
        a1step(1, a1rd(0), False, 3)
    assert not egen
    A(f"s_mov_b32 s45, 1\n{LL}:")
    a1step(0, a1rd(1), adv=True)
    LH = A.lab("a1h")
    A(f"""s_add_u32 s45, s45, 1
s_cmp_eq_u32 s45, 7
s_cbranch_scc1 {LS}
s_nop 0""")
    if OPT["gl"]: A(f"s_cmp_eq_u32 s45, 6\ns_cbranch_scc1 {LNB}\ns_barrier\n{LNB}:")
    a1step(1, a1rd(0))
    A(f"s_branch {LL}\n{LS}:")
    a1step(1, [])
    stamp(3)
    def s1(kgi):
        P, Q = 64+32*kgi, 80+32*kgi
        e = []
        for i in range(8):
            if OPT["pk"]: e.append(f"v_pk_fma_f32 {vr(P+2*i,2)}, {vr(Q+2*i,2)}, v[2:3], {vr(P+2*i,2)}")
            else: e += [f"v_fmac_f32 v{P+2*i}, v3, v{Q+2*i}", f"v_fmac_f32 v{P+2*i+1}, v3, v{Q+2*i+1}"]
            e.append(f"v_cvt_pk_bf16_f32 v{16+8*kgi+i}, v{P+2*i}, v{P+2*i+1}")
        return e
    def mm(kgi):
        P, Q = 64+32*kgi, 80+32*kgi
        return [f"{MFMA} {vr(P,16)}, {vr(16+8*kgi,4)}, {vr(E1R,4)}, 0", f"{MFMA} {vr(Q,16)}, {vr(16+8*kgi,4)}, {vr(E1I,4)}, 0",
                f"{MFMA} {vr(P,16)}, {vr(20+8*kgi,4)}, {vr(E1R+4,4)}, {vr(P,16)}", f"{MFMA} {vr(Q,16)}, {vr(20+8*kgi,4)}, {vr(E1I+4,4)}, {vr(Q,16)}"]
    def s2(kgi):
        P, Q = 64+32*kgi, 80+32*kgi
        e = []
        for j in range(8):
            e += [f"v_sub_f32 v{P+2*j}, v{P+2*j}, v{Q+2*j+1}", f"v_add_f32 v{Q+2*j}, v{Q+2*j}, v{P+2*j+1}",
                  f"v_cvt_pk_bf16_f32 v{40+8*kgi+j}, v{P+2*j}, v{Q+2*j}"]
            if j & 3 == 3 and not OPT["tl"]: e.append(TST[2*kgi+(j>>2)])
        return e
    def weave(ms, vs):
        k = (len(vs) + len(ms) - 1) // len(ms)
        for m in ms:
            A(m)
            for _ in range(k):
                if vs: A(vs.pop(0))
    lds_add(C_LF)
    for x in s1(0): A(x)
    weave(mm(0), s1(1)); weave(mm(1), s1(2)); weave(mm(2), s2(0))
    for x in s2(1) + s2(2): A(x)

def pub1():
    A("; ==== publish phase 1, 64-point DFT fragments ====")
    A(f"""{PUB1}:
s_lshl_b32 s26, s7, 11
s_lshl_b32 s42, s6, 7
s_add_u32 s26, s26, s42
s_add_u32 s26, s26, {F1_OFF}""")
    stamp(4)
    if OPT["pa"] == 1: lds_add(C_W)
    LNP = A.lab("nopub")
    if OPT["tl"]: A(f"s_cmp_ge_u32 s7, 11\ns_cbranch_scc1 {LNP}")
    publish(C_P1, 26, OPT["r1"], 32768)
    stamp(5)
    A(f"{LNP}:")
    if OPT["cl"]: A(f"s_cmp_ge_u32 s7, 11\ns_cbranch_scc1 {HELP2}")
    gen_c()
    if OPT["pg"] == 3: lds_add(C_H)
    if OPT["ag"]: gen_e(); gen_g()
    else: A(f"s_cmp_lt_u32 s7, 11\ns_cbranch_scc1 {GEN}")

Q, S, O, KV = 16, 48, 112, 176
OK = O + 48
TB = 8
SO = 32
def q(j,i): return vr(Q+8*j+4*i, 4)
def kb(b,i): return KV+16*b+4*i
def tile_loads(b, so):
    return [f"buffer_load_dwordx4 {vr(kb(b,0),4)}, v1, {W}, s{so} offen {KM}",
            f"buffer_load_dwordx4 {vr(kb(b,1),4)}, v2, {W}, s{so} offen {KM}",
            f"buffer_load_dwordx4 {vr(kb(b,2),4)}, v3, {W}, s{so} offen {KM}",
            f"buffer_load_dwordx4 {vr(kb(b,3),4)}, v3, {W}, s{so} offen offset:1024 {KM}"]
def attention():
    LOCK[0] = True
    A("; ==== attention and output projection (waves 4-7) ====")
    resident(None, None)
    LNY, LNW = A.lab("nyq"), A.lab("now")
    A(f"{ATT}:\ns_setprio 0")
    A("s_mov_b32 s51, s7")

    srd(SO, P_OUT, OUT_BYTES)
    A(f"""s_lshl_b32 s4, s4, 1
s_bfe_u32 s5, s2, 0x10003
s_or_b32 s4, s4, s5            ; head
s_lshr_b32 s5, s2, 4           ; qb
s_mul_i32 s6, s4, 7
s_lshr_b32 s45, s6, 1
s_add_u32 s6, s6, 1
s_lshr_b32 s6, s6, 1
s_lshl_b32 s6, s6, 9
v_lshlrev_b32 v8, 4, v0
v_add_u32 v1, s6, v8
s_bitcmp1_b32 s4, 0
s_cselect_b32 s7, -2040, 0
v_add_u32 v2, 1024, v1
v_add_u32 v6, s7, v2
v_mov_b32 v4, 0x3f80
v_mov_b32_dpp v2, v6 {HI}
s_lshl_b32 s7, s4, 11
s_add_u32 s7, s7, {QK_TILE}
v_and_b32 v9, 30, v0           ; lanes 26,27 <-> rows 28,29
v_cmp_eq_u32 vcc, 26, v9
v_cmp_eq_u32 s[48:49], 28, v9
s_or_b64 vcc, vcc, s[48:49]
v_xor_b32 v9, 96, v8
v_cndmask_b32 v3, v8, v9, vcc
v_add_u32 v3, s7, v3           ; V offset
v_mov_b32 v5, 0xdddd
v_mov_b32 v7, 0
s_lshl_b32 s45, s45, 3         ; first column touched (Q part)
v_bfe_u32 v9, v0, 2, 1
v_mul_u32_u24 v10, 31, v9
v_add_u32 v10, s45, v10        ; Q column
v_add_u32 v11, 448, v10        ; K column
v_mul_u32_u24 v9, 27, v9
s_mul_i32 s46, s4, 28
s_add_u32 s46, s46, 896
v_add_u32 v9, s46, v9          ; V column
v_lshrrev_b32 v10, 7, v10
v_lshlrev_b32 v10, 11, v10
v_mov_b32_dpp v11, v9 quad_perm:[0,1,2,3] row_mask:0xa bank_mask:0xf
s_lshl_b32 s46, s5, 7
v_add_u32 v10, s46, v10
v_lshrrev_b32 v11, 7, v11
v_lshlrev_b32 v11, 11, v11
v_and_b32 v9, 3, v0
v_lshl_add_u32 v11, v9, 7, v11
s_lshl_b32 s46, s40, 9
v_add_u32 v11, s46, v11        ; K/V flag offsets of this wave's 4 token blocks
v_mov_b32_dpp v11, v10 {HI}
s_and_b32 s46, s2, {OPT["r1"]-1}
s_lshl_b32 s46, s46, 15
s_add_u32 s46, s46, {F1_OFF}
s_lshl_b32 s43, s5, 2
s_add_u32 s42, s40, s43
s_mul_i32 s42, s42, {QK_TILE}
s_add_u32 s50, s42, {Q_OFF}
s_mul_i32 s47, s40, {16*KV_REC}
s_add_u32 s47, s47, {KV_OFF}""")
    A(f"s_and_b32 s43, s5, {OPT['kr']}")
    for i in range(16):
        A(f"s_add_u32 s42, s43, {i}\ns_and_b32 s42, s42, 15\ns_mul_i32 s42, s42, {KV_REC}\ns_add_u32 s{TB+i}, s42, s47")
    for j in range(4):
        A(f"""s_add_u32 s42, s40, {j}
s_and_b32 s42, s42, 3
s_lshl_b32 s42, s42, 11
s_add_u32 s42, s42, {QX}
v_add_u32 v{240+j}, s42, v8
s_add_u32 s42, s40, {j+1}
s_and_b32 s42, s42, 3
s_mul_i32 s42, s42, 12288
s_add_u32 s42, s42, {MERGE + (4096*j if j < 3 else 0)}
v_add_u32 v{244+j}, s42, v8""")
    A(f"""s_add_u32 s41, s40, 3
s_and_b32 s41, s41, 3
s_lshl_b32 s43, s5, 2
s_add_u32 s41, s41, s43        ; token tile kept by this wave
s_lshl_b32 s26, s41, 15
s_lshl_b32 s42, s4, 11
s_add_u32 s26, s26, s42
s_add_u32 s26, s26, {O_OFF}
s_lshl_b32 s27, s41, 11
s_lshl_b32 s42, s4, 7
s_add_u32 s27, s27, s42
s_add_u32 s27, s27, {FO_OFF}
s_bfe_u32 s42, s2, 0x20001
s_or_b32 s43, s43, s42         ; token tile of the projection
s_and_b32 s53, s2, 1
s_and_b32 s52, s53, {OPT["ro"]-1}
s_lshl_b32 s53, s53, 1
s_bfe_u32 s42, s2, 0x10003
s_or_b32 s53, s53, s42
{"s_mov_b32 s52, s53" if OPT["ro"] == 4 else ""}
s_lshl_b32 s52, s52, 17
s_lshl_b32 s53, s53, 2
s_add_u32 s53, s53, s40        ; n tile
s_lshl_b32 s45, s43, 15
s_lshl_b32 s44, s40, 13
s_add_u32 s45, s45, s44
s_add_u32 s45, s45, {O_OFF}
s_add_u32 s47, s45, 4096
s_mul_i32 s41, s43, {32*1792}
s_lshl_b32 s42, s53, 6
s_add_u32 s41, s41, s42
s_add_u32 s41, s41, 896
s_lshl_b32 s42, s43, 11
s_add_u32 s52, s52, s42
s_lshl_b32 s42, s40, 9
{"s_add_u32 s52, s52, s42" if OPT["ol"] in (0, 3, 4) else ""}
s_add_u32 s52, s52, {FO_OFF}
v_and_b32 v249, {3 if OPT["ol"] in (0, 3, 4) else 15}, v0
v_lshlrev_b32 v249, 7, v249     ; flags polled
v_lshrrev_b32 v15, 5, v0
v_and_b32 v14, 31, v0
v_mul_u32_u24 v250, 1792, v14
v_lshl_add_u32 v250, v15, 4, v250
v_lshrrev_b32 v251, 3, v0
v_lshlrev_b32 v251, 17, v251
v_and_b32 v13, 7, v0
v_lshl_add_u32 v251, v13, 4, v251
v_bfe_u32 v9, v0, 2, 2        ; rr
v_and_b32 v10, 3, v0
v_lshrrev_b32 v12, 1, v10
v_and_b32 v10, 1, v10
v_lshl_or_b32 v10, v10, 1, v12    ; sigma(cc)
v_bfe_u32 v12, v0, 4, 1
v_lshlrev_b32 v12, 5, v12
v_lshl_or_b32 v10, v10, 3, v12
s_lshl_b32 s42, s40, 6
v_or_b32 v10, s42, v10          ; column byte
v_mul_u32_u24 v12, 320, v9
v_xor_b32 v252, v10, v12
v_lshl_add_u32 v252, v15, 10, v252  ; rows 4h+rr
v_lshl_or_b32 v9, v15, 1, v9
v_mul_u32_u24 v12, 320, v9
v_xor_b32 v253, v10, v12        ; rows rr (h=0) / 2,3,2,3 (h=1)
v_add_u32 v254, {224*256}, v252
v_add_u32 v255, {224*256}, v253
v_mov_b32 v6, v8""")
    if OPT["pw"]:
        A(f"s_sub_u32 s60, s{TAG}, {TAGC}")
        flagstore("s27", OPT["ro"], 131072, 40, "s60")
    for i in range(64): A(f"v_mov_b32 v{O+i}, 0")
    assert OPT["wg"]
    A(f"s_cmp_ge_u32 s51, 11\ns_cbranch_scc1 {A1LD}")
    if OPT["bp"]: A("s_setprio 3")
    if OPT["pg"] == 0: lds_wait(C_X, 1, 1)
    elif OPT["pg"] == 1: lds_wait(C_P1, 1, 1)
    elif OPT["pg"] == 2: lds_wait(C_LF, 4, 1)
    else: lds_wait(C_H, OPT["pn"], 1)
    for x in WL[OPT["wm"]:]: A(x)
    A(f"s_cmp_lg_u32 s51, 10\ns_cbranch_scc1 {ATT2}")
    for x in WL[:OPT["wm"]]: A(x)
    A(f"{ATT2}:\ns_setprio 3")
    stamp(5)
    resident(248, 15)
    kvp = f"buffer_load_dword v14, v11, {W}, s46 offen {PM}"
    MQK, MV = "s_mov_b32 exec_lo, 0xffff", "s_bfm_b64 exec, 16, 16"
    spin(kvp, 14, OPT["sl1"], MQK if OPT["vs"] else None)
    stamp(6)
    t0, t1 = tile_loads(0, TB), tile_loads(1, TB+1)
    A(f"""{t0[0]}
buffer_load_dwordx4 {q(0,0)}, v1, {W}, s50 offen {SC}
{t0[1]}
buffer_load_dwordx4 {q(0,1)}, v2, {W}, s50 offen {SC}""")
    if OPT["vs"] == 1: A(f"{MV}\n{kvp}\ns_mov_b64 exec, -1")
    F = OPT["ft"]
    issued = [(t, k) for t in range(1, F) for k in range(2)]
    for t, k in issued: A(tile_loads(t, TB+t)[k])
    lds_wait(C_LF, 4)
    if OPT["cl"]:
        LC_ = A.lab("noc")
        A(f"s_cmp_lt_u32 s51, 11\ns_cbranch_scc1 {LC_}\nv_add_u32 v9, s44, v6")
        for f in range(8): A(f"ds_write_b128 v9, {vr(S+32+4*f,4)} offset:{CX+1024*f}")
        A(f"{LC_}:")
    A(f"s_waitcnt vmcnt({len(issued)})")
    stamp(4)
    def vcheck():
        LV_ = A.lab("vok")
        A(f"{MV}\nv_cmp_ne_u32 vcc, s{TAG}, v14\ns_mov_b64 exec, -1\ns_cbranch_vccz {LV_}")
        spin(kvp, 14, OPT["sl1"], MV)
        A(f"{LV_}:")
    A(f"""v_mov_b32_dpp v{Q+6}, v7 {HI}
v_mov_b32_dpp v{Q+7}, v7 {HI}
v_mov_b32_dpp v{kb(0,1)+2}, v4 {HI}
{MFMA} {vr(S+16,16)}, {vr(kb(0,0),4)}, {q(0,0)}, 0""")
    if not OPT["vs"]: A(t0[2])
    A(f"{MFMA} {vr(S+16,16)}, {vr(kb(0,1),4)}, {q(0,1)}, {vr(S+16,16)}")
    if not OPT["vs"]: A(t0[3])
    A(f"""{MFMA} {vr(S,16)}, {vr(kb(0,0),4)}, {q(0,0)}, 0
ds_write_b128 v240, {q(0,0)}""")
    if not OPT["vs"]:
        for x in t1[:2]: A(x)
    s_ = S+16
    A("; softmax shift = row maximum over 16 keys of the first tile, negated into Q's spare slot (K holds 1.0 there)")
    A(f"v_max3_f32 v8, v{s_}, v{s_+1}, v{s_+2}\nv_max3_f32 v9, v{s_+3}, v{s_+4}, v{s_+5}")
    for i in range(6, 14, 4): A(f"v_max3_f32 v8, v8, v{s_+i}, v{s_+i+1}\nv_max3_f32 v9, v9, v{s_+i+2}, v{s_+i+3}")
    A(f"""v_max3_f32 v8, v8, v{s_+14}, v{s_+15}
v_max_f32 v8, v8, v9
v_cvt_pk_bf16_f32 v8, -v8, v7
v_mov_b32_dpp v{Q+6}, v8 {HI}
ds_write_b128 v240, {q(0,1)} offset:1024
{MFMA} {vr(S,16)}, {vr(kb(0,1),4)}, {q(0,1)}, {vr(S,16)}""")
    lds_add(C_Q)
    vcheck()
    more = [(0,2),(0,3),(1,0),(1,1),(1,2),(1,3)] if F == 1 else [(t, k) for t in range(F) for k in (2, 3)]
    for t, k in more: A(tile_loads(t, TB+t)[k])
    issued += more
    qreads = [f"ds_read_b128 {q(j,h)}, v{240+j} offset:{1024*h}" for j in range(1, 4) for h in range(2)]
    PE = OPT["pe"] if F == 1 else 0
    if F == 1:
        for e in range(PE): A(f"v_exp_f32 v{S+e}, v{S+e}")
        lds_wait(C_Q, 4, 0, False)
        for x in qreads: A(x)
        A("s_waitcnt lgkmcnt(0)")
        stamp(7)
        lds_add(C_G2)
        A("s_setprio 1")
    else:
        stampw(7)
        A("s_setprio 1")
        if OPT["g3"]: lds_add(C_H)
    def mwrites(j):
        return ([f"ds_write_b128 v{244+j}, {vr(O+16*j+4*g,4)} offset:{1024*g}" for g in range(3)] +
                [f"ds_write_b96 v{244+j}, {vr(O+16*j+12,3)} offset:3072"])
    assert OPT["vs"] and OPT["pvd"]
    R = OPT["rt"]
    steps = [(i, j) for i in range(16 - R) for j in range(4)] + [(i, j) for j in range(4) for i in range(16 - R, 16)]
    steps = [(i, 0) for i in range(F)] + [x for x in steps if not (x[1] == 0 and x[0] < F)]
    if OPT["r4"]:
        steps.remove((15 - R, 3)); steps.insert(64 - R - 1, (15 - R, 3))
    def qk(n, h):
        i, j = steps[n]; d = vr(S+16*(n&3),16)
        return f"{MFMA} {d}, {vr(kb(i&3,h),4)}, {q(j,h)}, {d if h else 0}"
    def pv(n, h):
        i, j = steps[n]
        return f"{SMF} {vr(O+16*j,16)}, {vr(kb(i&3,2+h),4)}, {vr(S+16*(n&3)+8*h,8)}, v5"
    slots = []
    seenk, seenv = {0}, set()
    pos = {}
    for n in range(64):
        ms = []
        if n < 63:
            t = steps[n+1][0]; first = t not in seenk; seenk.add(t)
            whole = F <= t <= 16 - max(R, 1)
            ms.append(dict(m=qk(n+1,0), need=[(t,k) for k in range(4 if whole else 2)] if first else None, use=(t,0),
                           after=[f"v_mov_b32_dpp v{kb(t&3,1)+2}, v4 {HI}"] if first else []))
            ms.append(dict(m=qk(n+1,1), need=None, after=[], use=(t,1)))
        ops = {0: [], 1: [], 2: [(0,0),(0,1)], 3: [(1,0),(1,1),(2,0)], 4: [(2,1),(3,0),(3,1)], 5: [(4,0),(4,1),(5,0)]}.get(n, [(n-1,1),(n,0)])
        if n == 63: ms += [dict(m=None, need=None, after=[])]
        for o in ops:
            t = steps[o[0]][0]
            ms.append(dict(m=pv(*o), need=[(t,2),(t,3)] if t not in seenv else None, after=[], op=o, use=(t,2+o[1]))); seenv.add(t)
            if n == 63 and o[1] == 1: ms.append(dict(m=None, need=None, after=[]))
        while len(ms) < 4: ms.append(dict(m=None, need=None, after=[]))
        e0 = PE if n == 0 else 0
        cnt = [(16-e0)//4]*4 if len(ms) == 4 else [3,3,3,3,4]
        for g, x in enumerate(ms):
            x["exps"] = [S+16*(n&3)+e for e in range(e0, e0+cnt[g])]; e0 += cnt[g]; x["step"] = n; x["g"] = g
            if "op" in x: pos[x["op"]] = len(slots)
            pos[("s", n, g)] = len(slots)
            slots.append(x)
    def addload(n, g, t, k): slots[pos[("s", n, g)]]["after"].append((t, k))
    early = [(t, k) for t in range(1, 4) for k in range(4) if (t, k) not in issued]
    p = 0
    while early:
        if slots[p]["m"]:
            for _ in range(2 if p < 2 and len(early) > 4 else 1):
                if early: slots[p]["after"].append(early.pop(0))
        p += 1
    for t in range(4, 16):
        for k in range(4):
            lastuse = max(z for z, x in enumerate(slots) if x.get("use") == (t-4, k))
            z = max(pos[("s", 4*(t-3) - 1 + k, OPT["lg"])], lastuse + 1, p)
            slots[z]["after"].append((t, k)); p = z + 1
    if F > 1:
        bq, oq, offq = cref(C_Q)
        z = pos[("s", F-1, 0)]
        rq = [f"ds_read_b32 v13, {bq}{offq}"] + qreads
        slots[z-2]["after"] += rq[:4]; slots[z-1]["after"] += rq[4:]
        slots[z]["qcheck"] = True
    p = 0; tailw = []
    for j in range(3):
        last = max(n for n in range(64) if steps[n][1] == j)
        p = max(p, pos[(last, 1)] + 3)
        for w in mwrites(j):
            if p < len(slots): slots[p]["after"].append(w); p += 1
            else: tailw.append(w)
    b_, o_, off_ = cref(C_MERGE)
    spec = OPT["sm"] and not tailw and p <= len(slots) - 4
    madd = ["s_mov_b64 exec, 1", f"ds_add_u32 {b_}, {o_}{off_}", "s_mov_b64 exec, -1"]
    mreads = [f"ds_read_b128 {vr(O+4*g,4)}, v247 offset:{1024*g}" for g in range(12)]
    if not tailw: slots[p-1]["after"] += madd
    if spec:
        rd_ = [f"ds_read_b32 v13, {b_}{off_}"] + mreads
        for z, k in (zip((-3, -2, -1), (5, 4, 4)) if OPT["sm"] == 1 else zip((-2, -1), (7, 6)) if OPT["sm"] == 2 else ((-1, 13),)):
            slots[z]["after"] += rd_[:k]; rd_ = rd_[k:]
    landed = -1
    if slots[0]["need"]:
        landed = max(issued.index(z) for z in slots[0]["need"]); A(f"s_waitcnt vmcnt({len(issued)-1-landed})")
    for p_, x in enumerate(slots):
        if x["g"] == 0:
            n = x["step"]
            if n == 32: stamp(8)
            if OPT["ts"] == 2 and n in (16, 48): stamp(2 if n == 16 else 3)
        if x.get("qcheck"):
            LQ = A.lab("qok")
            A(f"s_waitcnt lgkmcnt(0)\nv_readfirstlane_b32 s60, v13\ns_cmp_ge_u32 s60, 4\ns_cbranch_scc1 {LQ}")
            lds_wait(C_Q, 4)
            for y in qreads: A(y)
            A(f"s_waitcnt lgkmcnt(0)\n{LQ}:")
            x["after"] = x["after"] + ["s_mov_b64 exec, 1", f"ds_add_u32 {bq}, {oq} offset:{C_G2-CNT}", "s_mov_b64 exec, -1"]
        if x["m"]: A(x["m"])
        for y in x["after"]:
            if isinstance(y, tuple): A(tile_loads(y[0] & 3, TB+y[0])[y[1]]); issued.append(y)
            else: A(y)
        nx = slots[p_+1]["need"] if p_ + 1 < len(slots) else None
        late = bool(nx) and x["step"] < 6
        def wait():
            nonlocal landed
            if nx and max(issued.index(z) for z in nx) > landed:
                landed = max(issued.index(z) for z in nx); A(f"s_waitcnt vmcnt({len(issued)-1-landed})")
        if not late: wait()
        for r in x["exps"]: A(f"v_exp_f32 v{r}, v{r}")
        if late: wait()
    for x in tailw[:2]: A(x)
    A(pv(63, 1))
    for x in tailw[2:]: A(x)
    stamp(9)
    A("s_setprio 3")
    LMD = A.lab("merged")
    if spec: A(f"s_waitcnt lgkmcnt({0 if STAMPS else 12})\nv_readfirstlane_b32 s60, v13\ns_cmp_ge_u32 s60, 4\ns_cbranch_scc1 {LMD}")
    if tailw: lds_sync(C_MERGE, 4)
    else: lds_wait(C_MERGE, 4)
    for x in mreads: A(x)
    A(f"{LMD}:\ns_waitcnt lgkmcnt(4)")
    for i in list(range(14, -2, -2)): A(f"v_pk_add_f32 {vr(O+i,2)}, {vr(O+i,2)}, {vr(O+16+i,2)}")
    A("s_waitcnt lgkmcnt(0)")
    for i in list(range(14, -2, -2)): A(f"v_pk_add_f32 {vr(O+i,2)}, {vr(O+i,2)}, {vr(O+32+i,2)}")
    for i in list(range(14, -2, -2)): A(f"v_pk_add_f32 {vr(OK+i,2)}, {vr(OK+i,2)}, {vr(O+i,2)}")
    A("; run-time check of the softmax shift: row sums outside [2^-40, 2^40] (or NaN) take the true-max path")
    A(f"""v_cmp_nle_f32 vcc, {f32(2.0**-40)}, v{OK+14}
s_mov_b64 s[48:49], vcc
v_cmp_nge_f32 vcc, {f32(2.0**40)}, v{OK+14}
s_or_b64 vcc, vcc, s[48:49]
s_cbranch_vccnz {LFB}
{LN}:
v_rcp_f32 v10, v{OK+14}
v_mov_b32 v{S+7}, 0
v_mov_b32 v11, v10""")
    for i in range(0, 14, 2):
        A(f"v_pk_mul_f32 {vr(OK+i,2)}, {vr(OK+i,2)}, v[10:11]")
        A(f"v_cvt_pk_bf16_f32 v{S+i//2}, v{OK+i}, v{OK+i+1}")
        if i == 6: A(f"buffer_store_dwordx4 {vr(S,4)}, v6, {W}, s26 offen {SC}")
    A(f"buffer_store_dwordx4 {vr(S+4,4)}, v6, {W}, s26 offen offset:1024 {SC}")
    stamp(10)
    if OPT["gp"] == 0: lds_add(C_GO)
    A("; ---- B3: wo fragments go to registers while the O stores drain ----")
    WF = 112; BACC = 16; OB = 64; NB = 6
    assert WO == 0 and OST == 0
    K28 = OPT["k28"]
    def wo_frags(half, n0=0, n1=16):
        cnt = 0
        for n in range(n0, n1):
            hd, i = n >> 1, n & 1
            if K28 and i and hd & 3 == 3: continue
            b = WF + 64*half + 4*n
            row = 28*hd + 16*i
            A(f"ds_read_b64_tr_b16 {vr(b,2)}, v{252+2*half} offset:{row*256}")
            if K28 and i: A(f"ds_read_b64_tr_b16 {vr(b+2,2)}, v{16+3*half+(hd&3)} offset:{28*hd*256}")
            else: A(f"ds_read_b64_tr_b16 {vr(b+2,2)}, v{(253 if i else 252)+2*half} offset:{(row+8)*256}")
            cnt += 1
            if cnt % 6 == 0: A("s_waitcnt lgkmcnt(2)")
    if K28:
        A("""v_bfe_u32 v9, v0, 2, 2
v_mul_u32_u24 v10, 320, v9
v_lshrrev_b32 v11, 5, v0
v_lshl_add_u32 v10, v11, 10, v10
v_xor_b32 v10, v252, v10        ; column byte
v_cmp_gt_u32 vcc, 2, v9
v_lshl_add_u32 v7, v11, 1, v9   ; 2h + rr
v_lshl_add_u32 v8, v11, 2, v9   ; 4h + rr
v_add_u32 v9, 24, v7""")
        for z, (src, c) in enumerate(((8, 84+16-2), (8, 56+18-2), (7, 28+24-2))):
            A(f"""v_add_u32 v11, {c}, v{src}
v_cndmask_b32 v11, v11, v9, vcc
v_and_b32 v14, 3, v11
v_lshlrev_b32 v14, 6, v14
v_lshl_or_b32 v11, v11, 8, v14
v_xor_b32 v{16+z}, v10, v11
v_add_u32 v{19+z}, {224*256}, v{16+z}""")
    for i in range(4): A(f"v_mov_b32 v{40+i}, s{TAG}")
    lds_wait(C_WOA, 4)
    wo_frags(0)
    if OPT["fo"] >= 3: lds_add(C_WOF)
    A("s_waitcnt lgkmcnt(2)")
    if OPT["fo"] == 2: wo_frags(1)
    poll = f"buffer_load_dword v14, v249, {W}, s52 offen {PM}"
    A(f"""{execmask(8*OPT["ro"])}
s_waitcnt vmcnt(0)
buffer_store_dwordx4 v[40:43], v251, {W}, s27 offen {FM}
s_mov_b64 exec, -1""")
    if OPT["ts"] == 1: stamp(2)
    if OPT["gp"] == 1: lds_add(C_GO)
    if OPT["ap"]: A(poll)
    if OPT["fo"] == 4: wo_frags(1, 0, 8)
    if OPT["fo"] >= 3: lds_wait(C_WOF, 4)
    else:
        if OPT["fo"] != 2: wo_frags(1)
        lds_sync(C_WOF, 4)
    if OPT["ts"] == 1: stamp(3)
    def odma():
        for half in range(2):
            A(f"s_add_u32 m0, s44, {OST+4096*half}")
            for i in range(4):
                A(f"buffer_load_dwordx4 v6, {W}, s{47 if half else 45} offen offset:{1024*i} {SC} lds")
    def btsetup():
        if OPT["bt"]:
            A(f"""s_lshl_b32 s42, s40, 11
s_add_u32 s42, s42, 32768
v_and_b32 v9, 31, v0
v_lshrrev_b32 v10, 5, v0
v_bfe_u32 v11, v0, 1, 2
v_xor_b32 v10, v10, v11
v_lshlrev_b32 v10, 4, v10
v_lshl_or_b32 v1, v9, 6, v10
v_add_u32 v1, s42, v1
v_xor_b32 v2, 32, v1
v_bfe_u32 v9, v0, 3, 2
v_lshlrev_b32 v9, 4, v9
v_xor_b32 v3, v6, v9
v_add_u32 v3, s42, v3
v_lshrrev_b32 v9, 2, v0
v_mul_u32_u24 v9, 1792, v9
v_and_b32 v10, 3, v0
v_lshl_add_u32 v4, v10, 4, v9
s_add_u32 s42, s41, {16*1792}""")
    if not OPT["dyn"]:
        LR = A.lab("oready")
        if OPT["ap"]: A(f"s_waitcnt vmcnt(0)\nv_cmp_ne_u32 vcc, s{TAG}, v14\ns_cbranch_vccz {LR}")
        if OPT["ol"] == 1:
            acquire(R_KV, lambda: A(f"{poll}\ns_waitcnt vmcnt(0)\nv_cmp_ne_u32 vcc, s{TAG}, v14"), OPT["sl1"], 0)
        elif OPT["ol"] == 4:
            btsetup()
            LP_, LD_ = A.lab("op"), A.lab("opd")
            A(f"""s_mov_b32 s61, {SPIN}
s_mov_b32 s50, 15
{LP_}:
{poll}
s_sub_u32 s61, s61, 1
s_waitcnt vmcnt(0)
v_cmp_eq_u32 vcc, s{TAG}, v14
s_cmp_eq_u32 s61, 0
s_cselect_b32 s51, 15, vcc_lo
s_and_b32 s51, s51, s50
s_andn2_b32 s50, s50, s51""")
            for z in range(4):
                LN_ = A.lab("opn")
                A(f"""s_add_u32 m0, s44, {OST+4096*(z>>1)}
s_bitcmp0_b32 s51, {z}
s_cbranch_scc1 {LN_}
buffer_load_dwordx4 v6, {W}, s{47 if z>>1 else 45} offen offset:{2048*(z&1)} {SC} lds
buffer_load_dwordx4 v6, {W}, s{47 if z>>1 else 45} offen offset:{2048*(z&1)+1024} {SC} lds
{LN_}:""")
            A(f"s_cmp_lg_u32 s50, 0\ns_cbranch_scc1 {LP_}")
        else: spin(poll, 14, OPT["sl1"])
        if OPT["ol"] == 3: lds_sync(R_KV, 4)
        A(f"{LR}:")
        stamp(11)
        if OPT["ol"] != 4: odma(); btsetup()
        if OPT["fo"] == 3: wo_frags(1)
        if OPT["fo"] == 4: wo_frags(1, 8, 16)
        lds_sync(C_OST, 4, 0, "s_waitcnt vmcnt(0)")
        stampw(12)
        A(f"s_cmp_ge_u32 s53, 14\ns_cbranch_scc1 {END}")
        if K28:
            items = []
            for g4 in range(4):
                items.append((8*g4+7, -1))
                for n in range(8*g4, 8*g4+7): items.append((n, (n >> 1) & 3 if n & 1 else None))
            NBK = 8
            def buf(z): return (96 + 4*((items[z][0] >> 3) & 1)) if items[z][1] == -1 else OB + 4*(z % NBK)
            def rdk(z): A(f"ds_read_b128 {vr(buf(z),4)}, v6 offset:{1024*items[z][0]}")
            nrd = 6
            for z in range(nrd): rdk(z)
            first = True; waited = -1
            def ready(z):
                nonlocal waited
                if z > waited: A(f"s_waitcnt lgkmcnt({nrd-1-z})"); waited = z
                if items[z][1] is not None: A(f"v_mov_b32 v{buf(z)+3}, v{96 + 4*((items[z][0] >> 3) & 1) + items[z][1]}")
            ms = [z for z in range(32) if items[z][1] != -1]
            ready(ms[0])
            for k, z in enumerate(ms):
                A(f"{MFMA} {vr(BACC,16)}, {vr(WF+4*items[z][0],4)}, {vr(buf(z),4)}, {vr(BACC,16) if k else 0}")
                if k + 1 < len(ms): ready(ms[k+1])
                while nrd < 32 and nrd < z + 7: rdk(nrd); nrd += 1
        else:
            def rd(n): A(f"ds_read_b128 {vr(OB+4*(n%NB),4)}, v6 offset:{1024*n}")
            for n in range(NB-1): rd(n)
            for n in range(32):
                left = min(31, n+NB-2) - n
                A(f"s_waitcnt lgkmcnt({left})\n{MFMA} {vr(BACC,16)}, {vr(WF+4*n,4)}, {vr(OB+4*(n%NB),4)}, {vr(BACC,16) if n else 0}")
                if n + NB - 1 < 32: rd(n + NB - 1)
    else:
        LL, LM, LNONE, LC, LX = A.lab("b3l"), A.lab("b3m"), A.lab("b3n"), A.lab("b3c"), A.lab("b3x")
        LG = [A.lab("b3g") for _ in range(4)]
        GA = (16, 32, 48, 96) if OPT["dyn"] == 1 else (16, 16, 16, 16)
        btsetup()
        if OPT["dyn"] == 2:
            for i in range(16): A(f"v_mov_b32 v{16+i}, 0")
        A(f"""v_mov_b32 v12, {C_OST}
s_lshl_b32 s54, 1, s40
v_mov_b32 v10, s54
s_mov_b32 s50, 0
s_cmp_ge_u32 s53, 14
s_cselect_b32 s51, 15, 0
s_mov_b32 s61, {SPIN}
{LL}:
s_cmp_lg_u32 s50, 0
s_cbranch_scc1 {LM}
{poll}
{LM}:
ds_read_b32 v13, v12
s_waitcnt lgkmcnt(0)
v_readfirstlane_b32 s60, v13
s_andn2_b32 s60, s60, s51
s_cbranch_scc0 {LNONE}
s_ff1_i32_b32 s54, s60
s_bitset1_b32 s51, s54
s_cmp_eq_u32 s54, 1
s_cbranch_scc1 {LG[1]}
s_cmp_eq_u32 s54, 2
s_cbranch_scc1 {LG[2]}
s_cmp_eq_u32 s54, 3
s_cbranch_scc1 {LG[3]}""")
        for g in range(4):
            A(f"{LG[g]}:")
            for n in range(4): A(f"ds_read_b128 {vr(OB+4*n,4)}, v6 offset:{1024*(8*g+n)}")
            for n in range(8):
                left = min(7, n+3) - n
                c = vr(GA[g],16) if (n or OPT["dyn"] == 2) else 0
                A(f"s_waitcnt lgkmcnt({left})\n{MFMA} {vr(GA[g],16)}, {vr(WF+32*g+4*n,4)}, {vr(OB+4*n,4)}, {c}")
                if n + 4 < 8: A(f"ds_read_b128 {vr(OB+4*(n+4),4)}, v6 offset:{1024*(8*g+n+4)}")
            A(f"s_cmp_eq_u32 s51, 15\ns_cbranch_scc0 {LC}\ns_branch {LX}")
        A(f"""{LNONE}:
s_cmp_lg_u32 s50, 1
s_cbranch_scc1 {LC}
s_mov_b64 exec, 1
s_waitcnt vmcnt(0)
ds_or_b32 v12, v10
s_mov_b64 exec, -1
s_mov_b32 s50, 2
s_cmp_eq_u32 s51, 15
s_cbranch_scc1 {END}
s_branch {LM}
{LC}:
s_cmp_lg_u32 s50, 0
s_cbranch_scc1 {LM}
s_sub_u32 s61, s61, 1
s_waitcnt vmcnt(0)
v_cmp_ne_u32 vcc, s{TAG}, v14
s_cmp_eq_u32 s61, 0
s_cselect_b64 vcc, 0, vcc
s_cbranch_vccnz {LL}""")
        stamp(11)
        odma()
        A(f"s_mov_b32 s50, 1\ns_branch {LM}\n{LX}:\ns_nop 8")
        if OPT["dyn"] == 1:
            for i in range(0, 16, 2):
                A(f"v_pk_add_f32 {vr(16+i,2)}, {vr(16+i,2)}, {vr(32+i,2)}\nv_pk_add_f32 {vr(48+i,2)}, {vr(48+i,2)}, {vr(96+i,2)}")
            for i in range(0, 16, 2): A(f"v_pk_add_f32 {vr(16+i,2)}, {vr(16+i,2)}, {vr(48+i,2)}")
    if OPT["bt"]:
        for i in range(8):
            A(f"v_cvt_pk_bf16_f32 v{32+i}, v{BACC+2*i}, v{BACC+2*i+1}")
            if i == 3: A("ds_write_b128 v1, v[32:35]")
        A(f"""ds_write_b128 v2, v[36:39]
ds_read_b128 v[40:43], v3
ds_read_b128 v[44:47], v3 offset:1024
s_waitcnt lgkmcnt(1)
buffer_store_dwordx4 v[40:43], v4, {sr(SO,4)}, s41 offen {OBM}
s_waitcnt lgkmcnt(0)
buffer_store_dwordx4 v[44:47], v4, {sr(SO,4)}, s42 offen {OBM}
s_branch {END}""")
        return
    for i in range(8):
        A(f"v_cvt_pk_bf16_f32 v{32+i}, v{BACC+2*i}, v{BACC+2*i+1}")
        if i == 3: A(f"buffer_store_dwordx4 v[32:35], v250, {sr(SO,4)}, s41 offen {OBM}")
    A(f"""buffer_store_dwordx4 v[36:39], v250, {sr(SO,4)}, s41 offen offset:32 {OBM}
s_branch {END}""")

def helper():
    resident(None, None)
    A("; ==== helper waves: A2, staging of wo, A3 ====")
    SWO = 32
    def wo_run(upto):
        LW, LD = A.lab("wo"), A.lab("wod")
        A(f"""{LW}:
s_cmp_le_i32 s96, {upto}
s_cbranch_scc1 {LD}
s_mov_b32 m0, s98
s_waitcnt vmcnt({-OPT["wos"]})
buffer_load_dwordx4 v250, {sr(SWO,4)}, s97 offen lds
s_sub_u32 s98, s98, 4096
s_sub_u32 s97, s97, {16*896}
s_sub_u32 s96, s96, 1
s_branch {LW}
{LD}:""")
    T, AC2, WA, WB, Y = 16, 48, 64, 72, 80
    LNOA2, LNY2, LP2 = "L_noa2", A.lab("nyq"), A.lab("pub2")
    A(f"{HELP2}:")
    if OPT["x"] >= 4:
        lds_add(C_WOA); A(f"s_branch {END}")
    stamp(11)
    resident(253, 254)
    wsetup(True)
    A(f"""v_lshrrev_b32 v9, 4, v0
v_and_b32 v8, 15, v0
v_lshlrev_b32 v10, 2, v9
v_xor_b32 v8, v8, v10
v_lshlrev_b32 v8, 4, v8
v_mul_u32_u24 v9, 896, v9
v_add_u32 v250, v8, v9
v_mul_u32_u24 v252, {T2_Q}, v15
v_lshl_add_u32 v251, v14, 4, v252 ; T2 offset (A3)
v_add_u32 v252, {224*16}, v252  ; Nyquist column
s_cmp_eq_u32 s40, 3
s_cselect_b32 s42, 0, {16*1024}
v_mul_u32_u24 v255, s42, v15
v_lshl_add_u32 v255, v14, 7, v255
s_lshl_b32 s42, s40, 12
v_add_u32 v255, s42, v255       ; flags of the A2 units behind this wave's k tiles""")
    A(f"""s_lshr_b32 s5, s2, 3
v_lshrrev_b32 v8, 3, v0         ; LDS row (mod 8) = 2*p + h
v_and_b32 v9, 4, v8
v_bfe_u32 v10, v8, 1, 1
v_or_b32 v9, v9, v10
v_and_b32 v8, 1, v8
v_lshl_or_b32 v9, v8, 1, v9     ; s2 mod 8 = 4*(p>>1) + 2h + (p&1)
v_mul_u32_u24 v1, {T_ROW}, v9
v_bfe_u32 v8, v0, 2, 1
v_lshl_add_u32 v1, v8, 9, v1
v_and_b32 v8, 3, v0
v_lshl_add_u32 v1, v8, 4, v1    ; T offset
s_lshl_b32 s41, s5, 10
s_lshl_b32 s42, s4, 6
s_add_u32 s41, s41, s42
s_add_u32 s41, s41, {T_OFF}
s_mul_i32 s42, s40, {16*T_ROW}
s_add_u32 s41, s41, s42
s_mul_i32 s44, s5, 43
s_lshr_b32 s44, s44, 8          ; g5
s_lshl_b32 s45, s44, 11
s_and_b32 s46, s2, {OPT["r1"]-1}
s_lshl_b32 s46, s46, 15
s_add_u32 s46, s46, {F1_OFF + 11*2048}
v_and_b32 v9, 15, v0
v_lshlrev_b32 v9, 7, v9
v_add_u32 v9, s45, v9
s_lshl_b32 s43, s40, 11
s_add_u32 m0, s43, {TX}
s_add_u32 s47, s41, {8*T_ROW - 1024}
s_nop 0""")
    A(f"""v_lshlrev_b32 v4, 4, v0
s_cmp_eq_u32 s5, 28             ; Nyquist unit: filter times i, i.e. (re,im) = (-w_i, w_r)
s_cselect_b32 s45, 14, 0
{"v_and_b32 v8, 3, v14" if OPT["ln"] else "v_lshrrev_b32 v8, 3, v14"}        ; u1 local
{"v_lshrrev_b32 v7, 2, v14" if OPT["ln"] else "v_and_b32 v7, 7, v14"}            ; k local
v_lshl_add_u32 v2, v15, 3, v8
v_lshlrev_b32 v2, 4, v2
v_lshl_add_u32 v2, v7, 1, v2
s_add_u32 s42, s43, s45
s_add_u32 s42, s42, {WX}
v_add_u32 v2, s42, v2
v_mul_u32_u24 v3, {2*T2_ROW}, v15
v_lshl_add_u32 v3, v7, 4, v3
v_lshl_add_u32 v3, v8, 2, v3    ; T2 offset
v_lshrrev_b32 v5, 2, v7
v_lshl_add_u32 v5, v15, 1, v5
v_lshl_add_u32 v5, v5, 2, v8
v_and_b32 v10, 3, v7
v_lshl_add_u32 v5, v5, 2, v10
v_lshlrev_b32 v5, 2, v5
v_add_u32 v5, {TX}, v5
v_add_u32 v8, {EX}, v4
v_add_u32 v7, s43, v8
s_mul_i32 s53, s40, {16*T2_ROW}
s_mul_i32 s42, s4, {T2_Q}
s_add_u32 s53, s53, s42
s_lshl_b32 s42, s5, 7
s_add_u32 s53, s53, s42
s_add_u32 s53, s53, {T2_OFF}""")
    if OPT["tw2"]:
        A(f"""v_lshlrev_b32 v3, 2, v14
v_lshl_add_u32 v3, v15, 8, v3
s_add_u32 s42, s43, {WX}
v_add_u32 v3, s42, v3
v_add_u32 v6, 1024, v3
v_lshrrev_b32 v88, 3, v0
v_mul_u32_u24 v88, {T2_ROW}, v88
v_and_b32 v10, 7, v0
v_lshl_add_u32 v88, v10, 4, v88""")
    for i in range(16): A(f"v_mov_b32 v{WA+i}, 0")
    if OPT["wg"]:
        L1, L2, L3 = A.lab("tw"), A.lab("tw"), A.lab("tw")
        srd(32, P_WR, W_BYTES)
        A(f"""s_lshr_b32 s42, s2, 3
s_mul_i32 s48, s42, {64*450}
s_mul_i32 s49, s4, {4*450}
s_add_u32 s48, s48, s49
s_and_b32 s48, s48, 0xffffff80
v_bfe_u32 v249, v0, 4, 1
v_mul_u32_u24 v249, {32*450}, v249
v_and_b32 v10, 15, v0
v_lshl_add_u32 v249, v10, 7, v249
s_cmp_eq_u32 s40, 0
s_cbranch_scc1 {L1}""")
        srd(32, P_WI, W_BYTES)
        A(f"s_cmp_eq_u32 s40, 1\ns_cbranch_scc1 {L1}")
        srd(32, P_WO, WO_BYTES)
        A(f"""s_lshl_b32 s48, s42, 1
s_add_u32 s48, s48, s40
s_sub_u32 s48, s48, 2
s_mul_i32 s48, s48, {7*896}
s_and_b32 s49, s2, 1
s_lshl_b32 s49, s49, 9
s_add_u32 s48, s48, s49
v_bfe_u32 v249, v0, 2, 3
v_mul_u32_u24 v249, 896, v249
v_and_b32 v10, 3, v0
v_lshl_add_u32 v249, v10, 7, v249
{L1}:""")
        lds_wait(C_H if OPT["g3"] else C_G2, 4, 2)
        def tlate():
            LT_ = A.lab("tl")
            A(f"s_cmp_lt_u32 s7, 11\ns_cbranch_scc1 {LT_}")
            for x in TST: A(x)
            publish(C_P1, 26, OPT["r1"], 32768)
            stamp(5)
            A(f"{LT_}:")
        if OPT["tl"] == 1: tlate()
        if not OPT["y"] & 2 and not OPT["lt"]: A("s_mov_b32 exec_hi, 0\nbuffer_load_dword v89, v249, s[32:35], s48 offen\ns_mov_b64 exec, -1")
        if OPT["tl"] == 2: tlate()
        if OPT["cl"]: A("s_lshl_b32 s42, s40, 13\nv_add_u32 v249, s42, v4")
    if OPT["cl"]:
        LC_ = A.lab("noc")
        A(f"s_cmp_lt_u32 s7, 11\ns_cbranch_scc1 {LC_}")
        for f in range(8): A(f"ds_read_b128 {vr(C+4*f,4)}, v249 offset:{CX+1024*f}")
        A(f"{LC_}:")
    srd(SWO, P_WO, WO_BYTES)
    A(f"""s_and_b32 s97, s2, 1
s_lshl_b32 s97, s97, 1
s_bfe_u32 s98, s2, 0x10003
s_or_b32 s97, s97, s98
s_lshl_b32 s97, s97, 8
s_mul_i32 s98, s40, {4*896}
s_add_u32 s97, s97, s98
s_add_u32 s97, s97, {27*16*896}
s_lshl_b32 s98, s40, 10
s_add_u32 s98, s98, {27*4096}
s_mov_b32 s96, {0 if OPT["y"] & 1 else 28}
s_waitcnt vmcnt(0) lgkmcnt(0)""")
    A(f"s_cmp_ge_u32 s5, 29\ns_cbranch_scc1 {LNOA2}")
    if OPT["y"] & 4: A(f"s_branch {LNOA2}")
    if OPT["wg"] and not OPT["y"] & 2 and not OPT["wo2"]:
        A(f"s_add_u32 m0, s43, {WX}\ns_nop 0\nbuffer_load_dwordx4 v248, {sr(SX,4)}, s55 offen lds")
        if OPT["w1"]: wo_run(28 - OPT["w1"])
        else: A("s_waitcnt vmcnt(0)")
        A(f"s_add_u32 m0, s43, {WX+1024}\ns_nop 0\nbuffer_load_dwordx4 v248, s[56:59], s55 offen lds")
        if OPT["w1"]: wo_run(28 - 2*OPT["w1"])
        if not OPT["pb"]: A("s_waitcnt vmcnt(0)")
    def a1poll():
        A(f"""buffer_load_dword v10, v9, {W}, s46 offen {PM}
s_waitcnt vmcnt(0)
v_cmp_ne_u32 vcc, s{TAG}, v10""")
    if OPT["ad1"]: spin(f"buffer_load_dword v10, v9, {W}, s46 offen {PM}", 10, OPT["sl2"])
    else: acquire(R_A1, a1poll, OPT["sl2"], OPT["hs"])
    if OPT["pb"]: A("s_waitcnt vmcnt(0)")
    stamp(6)
    abl0 = len(A.ins)
    A(f"""s_add_u32 m0, s43, {TX}
s_setprio {OPT["hp"]}
buffer_load_dwordx4 v1, {W}, s41 offen {SC} lds
buffer_load_dwordx4 v1, {W}, s47 offen offset:1024 {SC} lds
s_nop 0""")

    def wreads():
        for j in range(8):
            A(f"ds_read_u16_d16_hi v{WA+j}, v2 offset:{(4*(j>>1)+(j&1))*64}")
        A("s_waitcnt lgkmcnt(4)")
        for j in range(8):
            A(f"ds_read_u16_d16_hi v{WB+j}, v2 offset:{(4*(j>>1)+(j&1))*64+1024}")
        A(f"s_waitcnt lgkmcnt(0)\ns_cmp_lg_u32 s5, 28\ns_cbranch_scc1 {LNY2}")
        for j in range(8): A(f"v_xor_b32 v{WA+j}, 0x80000000, v{WA+j}")
        A(f"{LNY2}:")
    if OPT["wo2"]:
        A(f"s_add_u32 m0, s43, {WX}\ns_nop 0\nbuffer_load_dwordx4 v248, {sr(SX,4)}, s55 offen lds")
    else: wreads()
    A("s_waitcnt vmcnt(0)")
    if OPT["wo2"]: A(f"s_add_u32 m0, s43, {WX+1024}\ns_nop 0\nbuffer_load_dwordx4 v248, s[56:59], s55 offen lds")
    lds_sync(C_T, 4, OPT["hs"])
    if OPT["w2"] and not OPT["wo2"]: wo_run(max(16, 28 - 2*OPT["w1"] - OPT["w2"]))
    for m in range(0, 28, 2): A(f"ds_read2st64_b32 {vr(T+m,2)}, v5 offset0:{m} offset1:{m+1}")
    for f in range(8):
        if f == 1:
            for m in range(28, 32, 2): A(f"ds_read2st64_b32 {vr(T+m,2)}, v5 offset0:{m} offset1:{m+1}")
        A(f"s_waitcnt lgkmcnt({12 if f == 0 else 14-2*f})\n{MFMA} {vr(AC2,16)}, {vr(C+4*f,4)}, {vr(T+4*f,4)}, {vr(AC2,16) if f else 0}")
    if OPT["wo2"]:
        A("s_waitcnt vmcnt(0)")
        if OPT["w2"]: wo_run(28 - OPT["w2"])
        wreads()
    for j in range(8):
        xr, xi = AC2+2*j, AC2+2*j+1
        A(f"""v_mul_f32 v10, v{xr}, v{WA+j}
v_mul_f32 v11, v{xr}, v{WB+j}
v_fma_f32 v10, -v{xi}, v{WB+j}, v10
v_fmac_f32 v11, v{xi}, v{WA+j}
v_cvt_pk_bf16_f32 v{Y+j}, v11, v10""")
        if j == 3: A(f"ds_write_b128 v7, {vr(Y,4)}")
    A(f"ds_write_b128 v7, {vr(Y+4,4)} offset:1024")
    lds_sync(C_EX, 4, OPT["hs"])
    if OPT["w2"]: wo_run(max(16, 28 - 2*OPT["w1"] - 2*OPT["w2"]))
    for f in range(8): A(f"ds_read_b128 {vr(T+4*f,4)}, v8 offset:{1024*f}")
    for f in range(8):
        A(f"s_waitcnt lgkmcnt({7-f})\n{MFMA} {vr(AC2,16)}, {vr(C+4*f,4)}, {vr(T+4*f,4)}, {vr(AC2,16) if f else 0}")
    if OPT["tw2"]:
        for j in range(8):
            A(f"v_cvt_pk_bf16_f32 v{Y+j}, v{AC2+2*j+1}, v{AC2+2*j}")
            if j & 1: A(f"ds_write2_b32 v3, v{Y+j-1}, v{Y+j} offset0:{128*((j>>1)&1)} offset1:{128*((j>>1)&1)+32}" if j < 4 else
                        f"ds_write2_b32 v6, v{Y+j-1}, v{Y+j} offset0:{128*((j>>1)&1)} offset1:{128*((j>>1)&1)+32}")
        A(f"""ds_read_b128 {vr(T,4)}, v7 offset:{WX-EX}
ds_read_b128 {vr(T+4,4)}, v7 offset:{WX-EX+1024}
s_add_u32 s43, s53, {8*T2_ROW}
s_waitcnt lgkmcnt(1)
buffer_store_dwordx4 {vr(T,4)}, v88, {W}, s53 offen {SC}
s_waitcnt lgkmcnt(0)
buffer_store_dwordx4 {vr(T+4,4)}, v88, {W}, s43 offen {SC}""")
    else:
        for j in range(8):
            A(f"""v_cvt_pk_bf16_f32 v{Y+j}, v{AC2+2*j+1}, v{AC2+2*j}
s_add_u32 s43, s53, {(4*(j>>1)+(j&1))*T2_ROW}
buffer_store_dword v{Y+j}, v3, {W}, s43 offen {SC}""")
    if OPT["ab"]:
        def drop(i):
            b = OPT["ab"]
            return ((b & 1 and i.mfma) or (b & 2 and i.valu and i.mn != "v_readfirstlane_b32") or
                    (b & 4 and i.mn in ("ds_read2st64_b32", "ds_read_b128", "ds_read_u16_d16_hi", "ds_write_b128")) or
                    (b & 8 and i.mn == "buffer_store_dword"))
        A.ins[abl0:] = [i for i in A.ins[abl0:] if not drop(i)]
    stamp(7)
    A("s_setprio 2")
    arrive(C_A2, LP2)
    A(f"s_lshl_b32 s41, s2, 7\ns_add_u32 s41, s41, {F2_OFF}")
    flagstore("s41", 8, 32768)
    A(f"{LP2}:")
    lds_wait(C_A2, 4, 4)
    A(f"{LNOA2}:")
    if OPT["g3"]: lds_wait(C_G2, 4, 2)
    wo_run(0)
    A("s_waitcnt vmcnt(0)")
    lds_add(C_WOA)
    stamp(12)
    A("; ---- A3 ----")
    TA, NY, AC3, ZB, AC4 = 16, 48, 64, 16, 112
    assert OPT["kn"]
    A(f"""s_mul_i32 s41, s50, {T2_ROW}
s_add_u32 s41, s41, {T2_OFF}
s_lshl_b32 s42, s40, 9
s_add_u32 s42, s42, s41
s_and_b32 s46, s2, 7
s_lshl_b32 s46, s46, 15
s_add_u32 s46, s46, {F2_OFF}
s_add_u32 s47, s46, {28*1024}""")
    srd(SO, P_OUT, OUT_BYTES)
    if OPT["y"] & 8: A(f"s_branch {END}")
    if not OPT["y"] & 4: spin(f"buffer_load_dword v10, v255, {W}, s46 offen {PM}", 10, OPT["sl3"])
    stamp(8)
    LA, LB = A.lab("a3l"), A.lab("a3l")
    for f in range(4):
        A(f"s_add_u32 s43, s42, {2*f*T2_Q}\nbuffer_load_dwordx4 {vr(TA+4*f,4)}, v251, {W}, s43 offen {SC}\n{'s_waitcnt vmcnt(%d)' % OPT['t2p'] if OPT['t2p'] >= 0 else ''}")
    A(f"s_cmp_eq_u32 s40, 3\ns_cbranch_scc1 {LA}")
    for f in range(4):
        A(f"s_add_u32 s43, s42, {2*f*T2_Q + 2048}\nbuffer_load_dwordx4 {vr(TA+16+4*f,4)}, v251, {W}, s43 offen {SC}\n{'s_waitcnt vmcnt(%d)' % OPT['t2p'] if OPT['t2p'] >= 0 else ''}")
    A(f"{LA}:\ns_cmp_lg_u32 s40, 0\ns_cbranch_scc1 {LB}")
    if not OPT["y"] & 4: spin(f"buffer_load_dword v10, v255, {W}, s47 offen {PM}", 10, OPT["sl3"], "s_mov_b64 exec, 0xff")
    for f in range(4):
        A(f"s_add_u32 s43, s41, {2*f*T2_Q}\nbuffer_load_dwordx4 {vr(NY+4*f,4)}, v252, {W}, s43 offen {SC}")
    A(f"{LB}:")
    if OPT["ze"]: lds_wait(C_MERGE, OPT["ze"], OPT["slg"])
    else: lds_wait(C_GO if OPT["gp"] < 2 else C_WOF, 4, OPT["slg"])
    A("s_setprio 0")
    if OPT["x"] not in (2, 3): stamp(10)
    LN3, LZ = A.lab("a3ny"), A.lab("a3z")
    A("s_waitcnt vmcnt(0)")
    setup = f"""v_lshlrev_b32 v5, 4, v0
s_lshl_b32 s43, s40, 11
s_add_u32 s43, s43, {ZOFF}
v_add_u32 v6, s43, v5
s_mul_i32 s43, s52, 14336
s_add_u32 s43, s43, {ZOFF}
v_add_u32 v5, s43, v5
s_lshr_b32 s46, s40, 1
s_lshl_b32 s46, s46, 3
v_add_u32 v7, s46, v15          ; 8p + h
v_and_b32 v9, 7, v14
v_xor_b32 v7, v7, v9
v_lshlrev_b32 v7, 4, v7
v_lshl_or_b32 v7, v14, 8, v7
s_lshl_b32 s46, s52, 13
s_add_u32 s46, s46, {YOFF}
v_add_u32 v7, s46, v7           ; Y write address
v_lshrrev_b32 v8, 3, v0
s_lshl_b32 s46, s40, 3
v_add_u32 v8, s46, v8           ; row (s1)
v_and_b32 v9, 7, v0             ; piece
v_lshlrev_b32 v10, 1, v9
v_and_b32 v11, 7, v8
v_xor_b32 v10, v10, v11
v_lshlrev_b32 v10, 4, v10
v_lshl_or_b32 v10, v8, 8, v10
v_add_u32 v10, {YOFF}, v10
v_xor_b32 v11, 16, v10
v_mul_u32_u24 v8, {64*1792}, v8
v_lshl_add_u32 v8, v9, 4, v8    ; out offset
s_mul_i32 s41, s50, 1792
s_lshl_b32 s42, s51, 7
s_add_u32 s41, s41, s42""".split("\n")
    for tt in range(2):
        for f in range(4):
            A(f"{MFMA} {vr(AC3+32*tt,16)}, {vr(TA+16*tt+4*f,4)}, {vr(ER+4*f,4)}, {vr(AC3+32*tt,16) if f else 0}")
            for _ in range(5):
                if setup: A(setup.pop(0))
    assert not setup
    A(f"s_cmp_eq_u32 s51, 3\ns_cselect_b32 s42, 4, 8\nv_cmp_gt_u32 s[48:49], s42, v9")
    A(f"s_cmp_lg_u32 s40, 0\ns_cbranch_scc1 {LN3}\ns_mov_b32 exec_lo, 1\ns_mov_b32 exec_hi, 1")
    for i in range(16): A(f"v_mov_b32 v{TA+i}, v{NY+i}")
    A(f"s_mov_b64 exec, -1\n{LN3}:\ns_nop 1")
    ZD = (NY, TA, NY+8, TA+8)
    def zcvt(tt, part):
        a = AC3+32*tt+16*part
        if OPT["kn"]:
            d = ZD[2*tt+part]
            return [f"v_cvt_pk_bf16_f32 v{d+4*e+i}, v{a+4*i+e}, v{a+4*i+e+2}" for e in range(2) for i in range(4)]
        return [f"v_cvt_pk_bf16_f32 v{a+i}, v{a+2*i}, v{a+2*i+1}" for i in range(8)]
    def zwr(tt, part):
        a = AC3+32*tt+16*part
        if OPT["kn"]: a = ZD[2*tt+part]
        return [f"ds_write_b128 v6, {vr(a+4*p,4)} offset:{14336*p+8192*tt+1024*part}" for p in range(2)]
    if OPT["ze"]:
        pend = zcvt(0, 0) + zcvt(1, 0)
        for tt in range(2):
            for f in range(4):
                A(f"{MFMA} {vr(AC3+32*tt+16,16)}, {vr(TA+16*tt+4*f,4)}, {vr(EI+4*f,4)}, {vr(AC3+32*tt+16,16) if f else 0}")
                for _ in range(3):
                    if pend: A(pend.pop(0))
        for x in pend + zcvt(0, 1) + zcvt(1, 1): A(x)
        lds_wait(C_GO, 4, 1)
        for x in zwr(0, 0) + zwr(0, 1): A(x)
        A(f"s_cmp_eq_u32 s40, 3\ns_cbranch_scc1 {LZ}")
        for x in zwr(1, 0) + zwr(1, 1): A(x)
    else:
        pend = zcvt(0, 0) + zwr(0, 0)
        for tt in range(2):
            for f in range(4):
                A(f"{MFMA} {vr(AC3+32*tt+16,16)}, {vr(TA+16*tt+4*f,4)}, {vr(EI+4*f,4)}, {vr(AC3+32*tt+16,16) if f else 0}")
                for _ in range(3):
                    if pend: A(pend.pop(0))
        for x in pend + zcvt(0, 1) + zwr(0, 1): A(x)
        A(f"s_cmp_eq_u32 s40, 3\ns_cbranch_scc1 {LZ}")
        for x in zcvt(1, 0) + zwr(1, 0) + zcvt(1, 1) + zwr(1, 1): A(x)
    A(f"{LZ}:")
    lds_sync(C_Z, 4, OPT["zs"])
    LEP = A.lab("ep")
    assert EPOCH_OFF == 0
    A(f"s_add_u32 s42, s2, s3\ns_cmp_lg_u32 s42, 0\ns_cbranch_scc1 {LEP}")
    flagstore("0", 1, 0, 72)
    A(f"{LEP}:")
    for i in range(14): A(f"ds_read_b128 {vr(ZB+4*i,4)}, v5 offset:{1024*i}")
    for i in range(14):
        A(f"s_waitcnt lgkmcnt({13-i})\n{MFMA} {vr(AC4,16)}, {vr(G+4*i,4)}, {vr(ZB+4*i,4)}, {vr(AC4,16) if i else 0}")
    for g in range(4):
        A(f"v_xor_b32 v9, {32*g}, v7\nds_write_b128 v9, {vr(AC4+4*g,4)}")
    lds_sync(C_Y, 4, OPT["zs"])
    A(f"""ds_read_b128 v[16:19], v10
ds_read_b128 v[20:23], v11
ds_read_b128 v[24:27], v10 offset:8192
ds_read_b128 v[28:31], v11 offset:8192
s_waitcnt lgkmcnt(0)""")
    for i in range(8): A(f"v_add_f32 v{32+i}, v{16+i}, v{24+i}\nv_sub_f32 v{40+i}, v{16+i}, v{24+i}")
    for i in range(8): A(f"v_cvt_pk_bf16_f32 v{48+i}, v{32+2*i}, v{33+2*i}")
    if OPT["so"]: lds_wait(C_OST, OPT["so"], 1)
    A(f"""s_mov_b64 exec, s[48:49]
buffer_store_dwordx4 v[48:51], v8, {sr(SO,4)}, s41 offen {OA}
buffer_store_dwordx4 v[52:55], v8, {sr(SO,4)}, s41 offen offset:448 {OA}
s_mov_b64 exec, -1
s_branch {END}""")

def fallback():
    A("; ==== softmax fallback: true row maximum, then the exact recomputation ====")
    resident(None, None)
    L1, L2 = A.lab("fb1"), A.lab("fb2")
    tl = tile_loads(0, 43)
    A(f"""{LFB}:
v_mov_b32_dpp v{Q+24+6}, v7 {HI}
v_mov_b32 v12, 0xff800000
s_mov_b32 s43, {KV_OFF}
{L1}:
{tl[0]}
{tl[1]}
s_waitcnt vmcnt(0)
{MFMA} {vr(S,16)}, {vr(kb(0,0),4)}, {q(3,0)}, 0
{MFMA} {vr(S,16)}, {vr(kb(0,1),4)}, {q(3,1)}, {vr(S,16)}""")
    for i in range(0, 16, 2): A(f"v_max3_f32 v12, v12, v{S+i}, v{S+i+1}")
    A(f"""s_add_u32 s43, s43, {KV_REC}
s_cmp_lt_u32 s43, {KV_OFF+64*KV_REC}
s_cbranch_scc1 {L1}
v_mov_b32 v13, v12
v_mov_b32 v14, v12
v_permlane32_swap_b32 v13, v14
v_max_f32 v12, v13, v14""")
    for i in range(16): A(f"v_mov_b32 v{OK+i}, 0")
    A(f"s_mov_b32 s43, {KV_OFF}\n{L2}:")
    for x in tl: A(x)
    A(f"""s_waitcnt vmcnt(0)
{MFMA} {vr(S,16)}, {vr(kb(0,0),4)}, {q(3,0)}, 0
{MFMA} {vr(S,16)}, {vr(kb(0,1),4)}, {q(3,1)}, {vr(S,16)}""")
    for i in range(16): A(f"v_sub_f32 v{S+i}, v{S+i}, v12")
    for i in range(16): A(f"v_exp_f32 v{S+i}, v{S+i}")
    A(f"""{SMF} {vr(OK,16)}, {vr(kb(0,2),4)}, {vr(S,8)}, v5
{SMF} {vr(OK,16)}, {vr(kb(0,3),4)}, {vr(S+8,8)}, v5
s_nop 15
s_add_u32 s43, s43, {KV_REC}
s_cmp_lt_u32 s43, {KV_OFF+64*KV_REC}
s_cbranch_scc1 {L2}
s_branch {LN}""")

def finish():
    A(f"{END}:")
    if OPT["probe"]:
        LQ = A.lab("probe")
        stamp(13)
        A(f"""s_cmp_lg_u32 s2, {OPT["pwg"]}
s_cbranch_scc1 {FIN}
s_cmp_lg_u32 s3, {OPT["pwave"]}
s_cbranch_scc1 {FIN}
s_waitcnt lgkmcnt(0)
s_sub_u32 s56, s{64+2*OPT["probe"]}, s66
s_mul_i32 s56, s56, 10
s_add_u32 s56, s56, s90
{LQ}:
s_memrealtime s[58:59]
s_waitcnt lgkmcnt(0)
s_sub_u32 s57, s58, s56
s_cmp_lt_i32 s57, 0
s_cbranch_scc1 {LQ}""")
    elif STAMPS:
        stamp(13)
        A(f"""s_waitcnt vmcnt(0)
s_memtime s[92:93]
s_memrealtime s[94:95]
s_waitcnt lgkmcnt(0)
{"s_getreg_b32 s64, hwreg(HW_REG_XCC_ID)" if STAMPS == 1 else ""}
{"s_getreg_b32 s92, hwreg(HW_REG_HW_ID)" if STAMPS == 1 else ""}
s_mov_b32 s56, s24
s_mov_b32 s57, s25
s_mov_b32 s58, 0x2000000
s_mov_b32 s59, 0x00020000
s_mov_b64 exec, 1
s_lshl_b32 s60, s2, 3
s_add_u32 s60, s60, s3
s_lshl_b32 s60, s60, 6
s_add_u32 s60, s60, {TS_OFF}
v_mov_b32 v1, 0""")
        for i in range(16):
            A(f"v_mov_b32 v2, s{64+2*i}\nbuffer_store_dword v2, v1, s[56:59], s60 offen offset:{4*i}")
    A(f"{FIN}:\ns_endpgm")

def b1c():
    resident(None, None)
    A("; ==== B1 compute waves ====")
    A(f"{LB1C}:\ns_setprio 2"); main_start()
    for i in range(64): A(f"v_mov_b32 v{ACC+i}, 0")
    A("s_waitcnt lgkmcnt(0)"); gettag()
    gen_pre(); b1_compute()
entry(); b1_loader()
if OPT["ord"] == 2: a1_dispatch_loader()
if OPT["ord"]: b1c()
if OPT["ord"] != 2: a1_dispatch_loader()
a1_gen(); a1_compute(); pub1(); helper()
if not OPT["ord"]: b1c()
attention(); fallback(); finish()


DOC = """; ---------------------------------------------------------------------------------------------------------
; One launch, 256 workgroups x 8 waves, one workgroup per CU (all co-resident; every global wait is bounded).
;
; Part B (attention):  B1 qkv = x @ wqkv (176 workgroups, 128x128 tiles, LDS-DMA ring)  ->  attention per
;   (head, 128 queries): each of 4 waves owns 512 keys, S^T = K Q^T by MFMA, P = exp2(S), O^T += V^T P by sparse
;   MFMA that reads the upper (bf16) half of the fp32 P registers; a row of ones behind V yields the row sums
;   ->  B3 out = O @ wo per (32 tokens, 128 columns).
;   Softmax guard: every row is shifted by its maximum over a sample of 16 real keys (subtracted inside the QK
;   MFMA through a spare contraction slot).  After the merge the row sum is range-checked (2^-40 .. 2^40, NaN
;   fails); a wave that finds an unsafe row recomputes its 32 rows with the true row maximum (L_fallback).
; Part A (GFNet): exact DFTs as MFMA products with generated twiddles, S = 2048 split as 32 x 64:
;   A1 rfft over D + 32-point stage over S (80 workgroups)  ->  A2 64-point stage, filter, inverse 64-point stage
; Hand-offs between workgroups: write-through (sc1) stores, s_waitcnt vmcnt(0), then a flag line holding this
;   launch's tag (= epoch word found in d_ws + constant; the epoch is advanced once every workgroup has read it),
;   consumers poll with sc1 loads and read the data with sc1 loads.  Workgroup ids are mapped for L2 locality
;   only; nothing depends on the placement.  Waves of one workgroup meet through counters in LDS.
; ---------------------------------------------------------------------------------------------------------
"""
HDR = open("cdna_kernels/%s.s.ref" % NAME).read().split("; Override")[0]
txt = HDR + f"; @launch grid=(256,1,1) block=(512,1,1) lds={LDS_BYTES}\n"
txt += DOC
txt += '.amdgcn_target "amdgcn-amd-amdhsa--gfx950"\n.text\n' + A.finish()
txt += f""".section .rodata,"a"
.p2align 6
.amdhsa_kernel {K}
  .amdhsa_next_free_vgpr 256
  .amdhsa_next_free_sgpr 102
  .amdhsa_accum_offset 256
  .amdhsa_group_segment_fixed_size 0
  .amdhsa_kernarg_size 72
  .amdhsa_user_sgpr_count 2
  .amdhsa_user_sgpr_kernarg_segment_ptr 1
  .amdhsa_system_sgpr_workgroup_id_x 1
.end_amdhsa_kernel
"""
out = args[0] if args else "cdna_kernels/%s.s" % NAME
open(out, "w").write(txt)
print("wrote", out, len(txt))
```

```python
import sys, struct
from emit import Asm
from layout import *
NAME = "concat_heads__spectral_gfnet__softmax_full_mha__prompt"
OPT = dict(stamps=0, r1=8, pf=1, sl1=1, sl2=8, sl3=16, rot=0, x=0, probe=0, pwave=4, pwg=100, pd=0, wos=-3, lp=13, slg=8, g2=1, ro=2, wm=1, tch=0, pda=0, oa=1, ob=1, gd=0, dyn=0, wsb=0, fl=1, pw=2, tw=0, sd=0, sp=0, td=0, ad=0, bn=0, gk=2, hp=2, hs=2, fo=1, ts=0, ap=0, pm=0, fm=0, al=0, pk=0, lg=2, hk=6, bp=0, ord=2, pfw=3, av=-1, rota=1, wa=0, ag=0, gdl=0, gl=1, wg=1, xt=1, map=1, y=0, ze=0, zs=0, pe=12, gp=0, bt=1, ln=1, kn=1, fs=1, pg=0, pa=0, pn=4, oe=1, vs=1, pvd=1, ad1=0, rt=3, le=1, sm=1, r4=1, w1=0, w2=4, wo2=0, ab=0, ft=1, g3=0, cl=0, km=0, xm=0, kr=0, bt2=1, bw=2, pb=1, k28=1, t2p=-1, tw2=1, so=4, tl=0, lt=0, la=0, wf=0, ol=0, b1x=0, tw3=0)
args = []
for a in sys.argv[1:]:
    if "=" in a: k, v = a.split("="); assert k in OPT, k; OPT[k] = int(v)
    else: args.append(a)
STAMPS = OPT["stamps"]
MODS = ['', 'sc1', 'nt', 'sc0 sc1']
OA, OBM = MODS[OPT['oa']], MODS[OPT['ob']]
def f32(x): return "0x%08x" % struct.unpack("<I", struct.pack("<f", x))[0]
def vr(a, n=1): return f"v{a}" if n == 1 else f"v[{a}:{a+n-1}]"
def sr(a, n=1): return f"s{a}" if n == 1 else f"s[{a}:{a+n-1}]"
P_AX, P_WR, P_WI, P_BX, P_WQKV, P_WO, P_OUT, P_DBG, P_WS = 8,10,12,14,16,18,20,22,24
MFMA = "v_mfma_f32_32x32x16_bf16"
SMF = "v_smfmac_f32_32x32x32_bf16"
SC = "sc1"
KM = ['sc1', '', 'nt', 'sc1 nt', 'sc0 sc1'][OPT['km']]
XM = ['', 'sc1', 'nt', 'sc1 nt'][OPT['xm']]
PM = ['sc1', 'sc0 sc1', 'sc1 nt', 'sc0 sc1 nt'][OPT['pm']]
FM = ['sc1', 'sc0 sc1', 'sc1 nt', 'sc0 sc1 nt'][OPT['fm']]
HI = "quad_perm:[0,1,2,3] row_mask:0xc bank_mask:0xf"
TAGC = 0x9E3779B9
TAG = 62
SWS = 36; W = sr(SWS,4)
SX, SW = 28, 32
SPIN = 200000
FOFF = 7*16384
WO, OST = 0, 0
QX, EX, TX, WX, CX = 0, 8192, 16384, 24576, 32768
MERGE = 114688
ZOFF, YOFF = MERGE, MERGE + 28672
CNT = 162816
LDS_BYTES = 163840
(C_P1, R_KV, C_MERGE, C_OST, R_A1, C_EX, C_A2, R_A2, C_Z, C_Y, C_WOA, C_WOF, C_GO, C_G2, C_Q, C_LF, C_T, C_W, C_X, C_H) = [CNT+16*i+12 for i in range(20)]

A = Asm()
LOCK = [False]
def stamp(i):
    if OPT["ts"] == 3 and LOCK[0] and i in (10, 11, 12): return
    if OPT["ts"] == 4 and LOCK[0] and i in (4, 5, 6, 7, 8, 9): return
    if STAMPS: A(f"{'s_memtime' if STAMPS == 2 else 's_memrealtime'} s[{64+2*i}:{65+2*i}]")
def stampw(i):
    if STAMPS: stamp(i); A("s_waitcnt lgkmcnt(0)")
def srd(d, p, nbytes):
    A(f"s_mov_b32 s{d}, s{p}\ns_mov_b32 s{d+1}, s{p+1}\ns_mov_b32 s{d+2}, {nbytes}\ns_mov_b32 s{d+3}, 0x00020000")
def pi32(d, s, t):
    A(f"""v_and_b32 v{d}, 0x13, v{s}
v_and_b32 v{t}, 4, v{s}
v_lshl_or_b32 v{d}, v{t}, 1, v{d}
v_and_b32 v{t}, 8, v{s}
v_lshrrev_b32 v{t}, 1, v{t}
v_or_b32 v{d}, v{d}, v{t}""")
def mod7(d, t):
    A(f"s_mul_i32 s{t}, s{d}, 37\ns_lshr_b32 s{t}, s{t}, 8\ns_mul_i32 s{t}, s{t}, 7\ns_sub_u32 s{d}, s{d}, s{t}")
RB = [None]
def resident(b, o):
    RB[0] = (b, o) if b is not None else None
    if b is not None: A(f"v_mov_b32 v{b}, {CNT}\nv_mov_b32 v{o}, 1")
def cref(addr, setup=True, one=False):
    if RB[0]: return f"v{RB[0][0]}", f"v{RB[0][1]}", f" offset:{addr-CNT}"
    if setup: A(f"v_mov_b32 v12, {addr}")
    if one: A("v_mov_b32 v13, 1")
    return "v12", "v13", ""
def lds_add(addr):
    b, o, off = cref(addr, True, True)
    A(f"s_mov_b64 exec, 1\nds_add_u32 {b}, {o}{off}\ns_mov_b64 exec, -1")
def lds_wait(addr, target, sleep=0, setup=True):
    L, L2 = A.lab("lw"), A.lab("lwd")
    b, o, off = cref(addr, setup)
    A(f"""{L}:
ds_read_b32 v13, {b}{off}
s_waitcnt lgkmcnt(0)
v_readfirstlane_b32 s60, v13
s_cmp_ge_u32 s60, {target}""")
    if sleep: A(f"s_cbranch_scc1 {L2}\ns_sleep {sleep}\ns_branch {L}\n{L2}:")
    else: A(f"s_cbranch_scc0 {L}")
def lds_sync(addr, target, sleep=0, pre=None):
    L = A.lab("sy")
    b, o, off = cref(addr, True, True)
    A("s_mov_b64 exec, 1")
    if pre: A(pre)
    A(f"""ds_add_rtn_u32 v13, {b}, {o}{off}
s_mov_b64 exec, -1
s_waitcnt lgkmcnt(0)
v_readfirstlane_b32 s60, v13
s_cmp_eq_u32 s60, {target-1}
s_cbranch_scc1 {L}""")
    lds_wait(addr, target, sleep, False)
    A(f"{L}:")
def arrive(cnt, skip):
    b, o, off = cref(cnt, True, True)
    A(f"""s_mov_b64 exec, 1
s_waitcnt vmcnt(0)
ds_add_rtn_u32 v13, {b}, {o}{off}
s_mov_b64 exec, -1
s_waitcnt lgkmcnt(0)
v_readfirstlane_b32 s60, v13
s_cmp_lg_u32 s60, 3
s_cbranch_scc1 {skip}""")
def execmask(n): return f"s_bfm_b64 exec, {n}, 0"
def flagstore(soff, nrep, repstride, t=40, val=None):
    val = val or f"s{TAG}"
    if not OPT["fl"]:
        A(f"""v_mul_u32_u24 v12, {repstride}, v0
v_mov_b32 v13, {val}
s_mov_b64 exec, {(1<<nrep)-1}
buffer_store_dword v13, v12, {W}, {soff} offen {SC}
s_mov_b64 exec, -1""")
        return
    A(f"""v_lshrrev_b32 v12, 3, v0
v_mul_u32_u24 v12, {repstride}, v12
v_and_b32 v13, 7, v0
v_lshl_add_u32 v12, v13, 4, v12""")
    for i in range(4): A(f"v_mov_b32 v{t+i}, {val}")
    if nrep < 8: A(execmask(8*nrep))
    A(f"buffer_store_dwordx4 {vr(t,4)}, v12, {W}, {soff} offen {FM}")
    for _ in range(nrep//8 - 1): A(f"v_add_u32 v12, {8*repstride}, v12\nbuffer_store_dwordx4 {vr(t,4)}, v12, {W}, {soff} offen {FM}")
    if nrep < 8: A("s_mov_b64 exec, -1")
def publish(cnt, soff, nrep, repstride):
    L = A.lab("pub")
    if OPT["fl"]:
        A(f"v_lshrrev_b32 v10, 3, v0\nv_mul_u32_u24 v10, {repstride}, v10\nv_and_b32 v13, 7, v0\nv_lshl_add_u32 v10, v13, 4, v10")
        for i in range(4): A(f"v_mov_b32 v{36+i}, s{TAG}")
        arrive(cnt, L)
        if nrep < 8: A(execmask(8*nrep))
        A(f"buffer_store_dwordx4 v[36:39], v10, {W}, s{soff} offen {FM}")
        for _ in range(nrep//8 - 1): A(f"v_add_u32 v10, {8*repstride}, v10\nbuffer_store_dwordx4 v[36:39], v10, {W}, s{soff} offen {FM}")
        if nrep < 8: A("s_mov_b64 exec, -1")
    else:
        arrive(cnt, L); flagstore(f"s{soff}", nrep, repstride)
    lds_add(C_X); A(f"{L}:")
def acquire(rel, body, sleep, sleep2=1):
    LP, LD, LO, LE = A.lab("poll"), A.lab("pollok"), A.lab("pollw"), A.lab("polle")
    A(f"s_cmp_lg_u32 s40, 0\ns_cbranch_scc1 {LO}\ns_mov_b32 s61, {SPIN}\n{LP}:")
    body()
    A(f"""s_cbranch_vccz {LD}
s_sub_u32 s61, s61, 1
s_cmp_eq_u32 s61, 0
s_cbranch_scc1 {LD}
s_sleep {sleep}
s_branch {LP}
{LD}:""")
    lds_add(rel)
    A(f"s_branch {LE}\n{LO}:")
    lds_wait(rel, 1, sleep2)
    A(f"{LE}:")
def spin(load, reg, sleep, mask=None):
    if mask: load = f"{mask}\n{load}"
    LP, LD = A.lab("spin"), A.lab("spinok")
    A(f"""s_mov_b32 s61, {SPIN}
{LP}:
{load}
s_waitcnt vmcnt(0)
v_cmp_ne_u32 vcc, s{TAG}, v{reg}
s_cbranch_vccz {LD}
s_sub_u32 s61, s61, 1
s_cmp_eq_u32 s61, 0
s_cbranch_scc1 {LD}
s_sleep {sleep}
s_branch {LP}
{LD}:""")
    if mask: A("s_mov_b64 exec, -1")
def gettag():
    if OPT["wsb"]: A(f"s_add_u32 s24, s24, {OPT['wsb'] << 20}\ns_addc_u32 s25, s25, 0")
    A(f"s_load_dword s{TAG}, s[24:25], {EPOCH_OFF}")
    srd(SWS, P_WS, WS_USED)
def fixtag():
    A(f"s_waitcnt lgkmcnt(0)\ns_add_u32 s{TAG}, s{TAG}, {TAGC}")

FIN, END, ATT, PUB1, HELP2, GEN = "L_fin", "L_end", "L_att", "L_pub1", "L_help2", "L_gen"
LA1, LB1C, LB1G, LA1C, LV, LN, LFB = "L_a1", "L_b1c", "L_b1g", "L_a1c", "L_b1v", "L_norm", "L_fallback"
K = NAME + "_kernel"

def entry():
    A(f".globl {K}\n.p2align 8\n.type {K},@function\n{K}:")
    A(f"""s_cmp_ge_u32 s2, 256
s_cbranch_scc1 {FIN}
s_load_dwordx16 s[8:23], s[0:1], 0
s_load_dwordx2 s[24:25], s[0:1], 64
v_lshrrev_b32 v1, 6, v0
v_readfirstlane_b32 s3, v1
v_and_b32 v0, 63, v0""")
    if STAMPS:
        for i in range(2, 14): A(f"s_mov_b32 s{64+2*i}, 0")
        A("s_memtime s[64:65]\ns_memrealtime s[66:67]")
    if OPT["pf"]:
        L = A.lab("pf"); LP = A.lab("pc")
        A(f"""{"s_cmp_lg_u32 s3, 3" if OPT["pfw"] == 3 else "s_cmp_ge_u32 s3, %d" % OPT["pfw"]}
s_cbranch_scc1 {L}
s_getpc_b64 s[56:57]
{LP}:
s_lshr_b32 s58, s2, 3
s_add_u32 s58, s58, s3
s_and_b32 s58, s58, 3
s_lshl_b32 s58, s58, 13
v_lshlrev_b32 v1, 7, v0
v_add_u32 v1, s58, v1
v_min_u32 v1, {FIN}-{LP}, v1
global_load_dword v63, v1, s[56:57]
{L}:""")
    A(f"""s_and_b32 s4, s2, 7
s_lshr_b32 s5, s2, 3
s_lshl_b32 s6, s4, 1
s_and_b32 s7, s5, 1
s_or_b32 s6, s6, s7
s_lshr_b32 s7, s5, 1           ; column group 0..10 (B1), 11..15 (A1)
s_and_b32 s40, s3, 3
s_cmp_ge_u32 s7, 11
s_cbranch_scc1 {LA1}""")
    if OPT["map"] == 1:
        A("""s_and_b32 s26, s4, 1
s_mul_i32 s26, s26, 6
s_lshr_b32 s7, s5, 2
s_add_u32 s7, s7, s26
s_and_b32 s26, s6, 12
s_and_b32 s27, s5, 3
s_or_b32 s26, s26, s27
s_cmp_lt_u32 s5, 20
s_cselect_b32 s6, s26, s6
s_cselect_b32 s7, s7, 5""")
    if OPT["map"] == 2:
        A("""s_and_b32 s26, s4, 3
s_mul_i32 s26, s26, 22
s_add_u32 s26, s26, s5
s_lshr_b32 s7, s26, 3
s_and_b32 s26, s26, 7
s_and_b32 s6, s6, 8
s_or_b32 s6, s6, s26""")
    A(f"s_cmp_lt_u32 s3, 4\ns_cbranch_scc1 {LB1C}")

def xaddr(rs, d=2):
    A(f"""v_lshrrev_b32 v17, 3, v0
v_and_b32 v14, 7, v0
v_lshrrev_b32 v15, 4, v0
v_xor_b32 v14, v14, v15
v_lshlrev_b32 v14, 4, v14
v_xor_b32 v16, 64, v14
v_mul_u32_u24 v17, {rs}, v17
v_add_u32 v{d}, v17, v14
v_add_u32 v{d+1}, v17, v16
v_add_u32 v{d+1}, {8*rs-1024}, v{d+1}
v_add_u32 v{d+2}, {2*(8*rs-1024)}, v{d}
v_add_u32 v{d+3}, {2*(8*rs-1024)}, v{d+1}""")
def b1_loader():
    A("; ==== B1 loaders (waves 4-7): x and wqkv K-chunks into a 4-slot LDS ring ====")
    A("s_setprio 3")
    if OPT["rot"] == 2: A("s_mov_b32 s26, s7")
    elif OPT["rot"] == 3: A("s_and_b32 s26, s6, 1\ns_mul_i32 s26, s26, 3\ns_add_u32 s26, s26, s7")
    elif OPT["rot"] == 4: A("s_and_b32 s26, s6, 1\ns_mul_i32 s26, s26, 3")
    elif OPT["rot"] == 6: A("s_lshl_b32 s26, s6, 1\ns_add_u32 s26, s26, s7")
    elif OPT["rot"] == 7: A("s_mul_i32 s26, s7, 3\ns_add_u32 s26, s26, s6")
    elif OPT["rot"] == 5: A("s_lshr_b32 s26, s6, 1\ns_add_u32 s26, s26, s7")
    else: A("s_add_u32 s26, s6, s7")
    mod7(26, 27)
    if not OPT["rot"]: A("s_mov_b32 s26, 0")
    xaddr(896)
    A(f"""v_and_b32 v14, 15, v0
v_lshlrev_b32 v16, 2, v15
v_xor_b32 v14, v14, v16
v_lshlrev_b32 v14, 4, v14
v_mul_u32_u24 v15, 2688, v15
v_add_u32 v6, v14, v15
v_add_u32 v7, {4*2688-1024}, v6
v_add_u32 v8, {2*(4*2688-1024)}, v6
v_add_u32 v9, {3*(4*2688-1024)}, v6
s_lshl_b32 s41, s6, 2
s_add_u32 s47, s41, s40          ; token tile of this wave
s_mul_i32 s41, s47, {32*896}     ; x base
s_mul_i32 s42, s40, {16*2688}
s_lshl_b32 s43, s7, 8
s_add_u32 s42, s42, s43          ; w base
s_lshl_b32 s44, s40, 12          ; lds base of this wave""")
    if OPT["ts"] == 3: stamp(10)
    A("s_waitcnt lgkmcnt(0)")
    srd(SX, P_BX, X_BYTES); srd(SW, P_WQKV, WQKV_BYTES)
    def issue(a=0, b=8):
        if a == b: return
        if a == 0:
            A(f"""s_lshl_b32 s45, s26, 7
s_add_u32 s45, s45, s41
s_mul_i32 s46, s26, {64*2688}
s_add_u32 s46, s46, s42""")
        for z in range(a, b):
            isw = (z < 4) == bool(OPT["wf"]); i = z & 3
            if z == a or z == 4: A("s_add_u32 m0, s44, 16384" if isw else "s_mov_b32 m0, s44")
            if isw: A(f"buffer_load_dwordx4 v{6+i}, {sr(SW,4)}, s46 offen offset:{1024*i} {XM} lds")
            else: A(f"buffer_load_dwordx4 v{2+i}, {sr(SX,4)}, s45 offen offset:{1024*i} {XM} lds")
        if b == 8:
            A("""s_add_u32 s26, s26, 1
s_cmp_eq_u32 s26, 7
s_cselect_b32 s26, 0, s26
s_add_u32 s44, s44, 0x8000
s_and_b32 s44, s44, 0x1ffff""")
    LL = A.lab("b1ld")
    la = OPT["la"]
    if OPT["ts"] == 3: stamp(12)
    issue()
    if OPT["ts"] == 3: stamp(11)
    gettag()
    issue(0, la)
    def st4(n):
        if OPT["ts"] == 4: A(f"{'s_memtime' if STAMPS == 2 else 's_memrealtime'} s[{64+2*(4+n)}:{65+2*(4+n)}]")
    if OPT["ts"] == 4:
        for n in range(5):
            issue(la, 8); issue(0, la); A(f"s_waitcnt vmcnt({8+la})"); st4(n); A("s_barrier")
    else:
        A(f"s_mov_b32 s48, 5\n{LL}:")
        issue(la, 8); issue(0, la)
        A(f"s_waitcnt vmcnt({8+la})")
        if STAMPS:
            LX = A.lab("st"); A(f"s_cmp_lg_u32 s48, 5\ns_cbranch_scc1 {LX}"); stamp(2); A(f"{LX}:")
        A(f"""s_barrier
s_sub_u32 s48, s48, 1
s_cmp_lg_u32 s48, 0
s_cbranch_scc1 {LL}""")
    issue(la, 8)
    A("s_waitcnt vmcnt(8)"); st4(5); A("s_barrier")
    fixtag()
    if OPT["lt"]:
        srd(56, P_WR, W_BYTES); A(f"s_mov_b32 s54, s{P_WO}\ns_mov_b32 s55, s{P_WO+1}")
    A("s_waitcnt vmcnt(0)")
    stamp(3)
    A(f"s_barrier\ns_cmp_eq_u32 s7, 10\ns_cbranch_scc1 {ATT}")
    for x in WL[:OPT["wm"]]: A(x)
    A(f"s_branch {ATT}")

WL = [] if OPT["wg"] else [f"buffer_load_dwordx4 v[96:99], v248, {sr(SX,4)}, s55 offen", f"buffer_load_dwordx4 v[100:103], v248, s[56:59], s55 offen"]
def wsetup(force=False):
    if OPT["wg"] and not force: return
    LNY = A.lab("nyq")
    srd(SX, P_WR, W_BYTES); srd(56, P_WI, W_BYTES)
    A(f"""s_lshr_b32 s54, s2, 3          ; ko
s_mul_i32 s55, s4, {4*450}
s_mul_i32 s43, s40, {512*450}
s_add_u32 s55, s55, s43
s_lshl_b32 s43, s54, 4
s_add_u32 s55, s55, s43
s_cmp_lg_u32 s54, 28
s_cbranch_scc1 {LNY}""")
    srd(SX, P_WI, W_BYTES); srd(56, P_WR, W_BYTES)
    A(f"""s_sub_u32 s55, s55, 14
{LNY}:
v_lshrrev_b32 v9, 2, v0
v_and_b32 v10, 3, v0
v_lshl_add_u32 v9, v9, 5, v10
v_mul_u32_u24 v248, 450, v9""")
A1LD, ATT2 = "L_a1ld", "L_att2"
SXA = SX
def a1_dispatch_loader():
    A("; ==== A1 role: loaders prefetch, set up attention, then load x_A once the projection is nearly through ====")
    A(f"""{LA1}:
s_sub_u32 s5, s7, 11           ; g5
s_mul_i32 s26, s5, 3
s_lshr_b32 s26, s26, 1         ; e0 in 0,1,3,4,6""")
    if not OPT["rota"]: A("s_mov_b32 s26, 0")
    A(f"s_cmp_lt_u32 s3, 4\ns_cbranch_scc1 {LA1C}\ns_setprio 3")
    A(f"""s_lshl_b32 s96, s6, 2
s_add_u32 s96, s96, s40
s_mul_i32 s96, s96, 896
s_lshl_b32 s97, s40, 12
s_lshl_b32 s98, s26, 2
s_add_u32 s98, s98, 3
s_lshl_b32 s99, s6, 7
s_add_u32 s99, s99, {GO_OFF}""")
    mod7(98, 27)
    A("s_waitcnt lgkmcnt(0)")
    if OPT["bt2"]:
        LP1, LP2 = A.lab("pre"), A.lab("pre")
        srd(SX, P_BX, X_BYTES)
        A(f"""s_lshr_b32 s42, s2, 3
s_sub_u32 s42, s42, 22
v_lshlrev_b32 v1, 7, v0
s_cmp_eq_u32 s40, 3
s_cbranch_scc1 {LP1}
s_mul_i32 s43, s42, 3
s_add_u32 s43, s43, s40
s_min_u32 s43, s43, 27
s_lshl_b32 s43, s43, 13
s_mul_i32 s44, s4, {256*896}
s_add_u32 s43, s43, s44
buffer_load_dword v45, v1, {sr(SX,4)}, s43 offen
s_branch {LP2}
{LP1}:""")
        srd(SX, P_WQKV, WQKV_BYTES)
        A(f"""s_lshl_b32 s43, s42, 3
s_add_u32 s43, s43, s4
s_lshl_b32 s43, s43, 13
s_add_u32 s43, s43, {64*2688}
buffer_load_dword v45, v1, {sr(SX,4)}, s43 offen
s_add_u32 s43, s43, {80*8192}
buffer_load_dword v44, v1, {sr(SX,4)}, s43 offen
{LP2}:""")
        if OPT["bt2"] == 2: A("s_waitcnt vmcnt(0)")
    if OPT["xt"]:
        srd(SX, P_AX, X_BYTES)
        A(f"""s_lshl_b32 s44, s5, 7
s_add_u32 s43, s96, s44
s_cmp_lt_u32 s5, 2
s_cselect_b32 s44, 640, 0
v_lshrrev_b32 v1, 5, v0
v_mul_u32_u24 v1, s44, v1
v_and_b32 v2, 31, v0
v_mul_u32_u24 v2, {64*896}, v2
v_add_u32 v1, v1, v2
buffer_load_dword v46, v1, {sr(SX,4)}, s43 offen""")
    if OPT["bt2"] >= 3:
        c0 = OPT["bt2"] - 1
        srd(SX, P_WQKV, WQKV_BYTES)
        A(f"""v_lshlrev_b32 v1, 7, v0
s_lshl_b32 s43, s42, 2
s_add_u32 s43, s43, s40
s_lshl_b32 s43, s43, 13
s_add_u32 s43, s43, {c0*64*2688}""")
        if OPT["bw"]: A(f"s_waitcnt vmcnt({OPT['bw']-1})")
        for z in range(-(-(7-c0)*21 // 40)):
            A(f"buffer_load_dword v44, v1, {sr(SX,4)}, s43 offen\ns_add_u32 s43, s43, {40*8192}")
    gettag()
    if OPT["tw3"]:
        g = OPT["tw3"]
        LT = A.lab("tw")
        srd(SX, P_WS, WS_USED)
        for wv, (p, nb) in enumerate(((P_OUT, OUT_BYTES), (P_WR, W_BYTES), (P_WI, W_BYTES))):
            A(f"s_cmp_eq_u32 s40, {wv}\ns_cbranch_scc1 {LT}")
            srd(SX, p, nb)
        A(f"""{LT}:
s_lshr_b32 s42, s2, 3
s_sub_u32 s42, s42, 22
s_lshl_b32 s42, s42, {g}
v_mul_u32_u24 v1, {10 << g}, v0
buffer_load_dword v47, v1, {sr(SX,4)}, s42 offen offset:64""")
    wsetup()
    if not OPT["wa"]:
        for x in WL: A(x)
    A(f"s_mov_b32 s0, s{P_AX}\ns_mov_b32 s1, s{P_AX+1}")
    if OPT["lt"]:
        LT = A.lab("lt")
        srd(56, P_WR, W_BYTES)
        A(f"s_bitcmp0_b32 s40, 0\ns_cbranch_scc1 {LT}")
        srd(56, P_WI, W_BYTES)
        A(f"{LT}:\ns_mov_b32 s54, s{P_WO}\ns_mov_b32 s55, s{P_WO+1}")
    fixtag()
    if OPT["cl"]:
        A("v_and_b32 v14, 31, v0\nv_lshrrev_b32 v15, 5, v0")
        gen_c(80)
    A(f"s_branch {ATT}")
    A(f"{A1LD}:\ns_setprio 3\nv_mov_b32 v9, 0")
    xaddr(64*896, 48)
    if OPT["wa"] == 2:
        for x in WL: A(x)
    srd(SX, 0, X_BYTES)
    spin(f"buffer_load_dword v14, v9, {W}, s99 offen {PM}", 14, 2)
    stamp(2)
    LL = A.lab("a1ld")
    A(f"""s_mov_b32 s100, 0
{LL}:
s_lshl_b32 s42, s98, 7
s_add_u32 s42, s42, s96
s_lshl_b32 s43, s98, 14
s_add_u32 m0, s97, s43""")
    for i in range(4): A(f"buffer_load_dwordx4 v{48+i}, {sr(SXA,4)}, s42 offen offset:{1024*i} lds")
    A(f"""s_add_u32 s98, s98, 4
s_sub_u32 s43, s98, 7
s_cmp_ge_u32 s98, 7
s_cselect_b32 s98, s43, s98
s_add_u32 s100, s100, 1
s_cmp_lt_u32 s100, 3
s_cbranch_scc1 {LL}
s_waitcnt vmcnt(4)
s_barrier
s_cmp_lt_u32 s100, 7
s_cbranch_scc1 {LL}""")
    if OPT["lt"]:
        srd(SX, 54, WO_BYTES)
        A(f"""s_lshr_b32 s100, s2, 3
s_sub_u32 s100, s100, 22
s_lshl_b32 s100, s100, 2
s_add_u32 s100, s100, s40
s_lshr_b32 s42, s100, 1
s_mul_i32 s42, s42, {128*450}
s_and_b32 s43, s2, 7
s_mul_i32 s43, s43, {4*450}
s_add_u32 s42, s42, s43
s_and_b32 s42, s42, 0xffffff80
v_lshrrev_b32 v48, 4, v0
v_mul_u32_u24 v48, {32*450}, v48
v_and_b32 v49, 15, v0
v_lshl_add_u32 v48, v49, 7, v48
s_mul_i32 s43, s100, {12*896}
s_and_b32 s100, s2, 1
s_lshl_b32 s100, s100, 9
s_add_u32 s43, s43, s100
v_lshrrev_b32 v49, 2, v0
v_mul_u32_u24 v49, 896, v49
v_and_b32 v50, 3, v0
v_lshl_add_u32 v49, v50, 7, v49""")
    A("s_waitcnt vmcnt(0)")
    stamp(3)
    def ltouch():
        A(f"""buffer_load_dword v46, v48, s[56:59], s42 offen
s_mov_b32 exec_hi, 0xffff
buffer_load_dword v45, v49, {sr(SX,4)}, s43 offen
s_mov_b64 exec, -1""")
    if OPT["lt"] == 1: ltouch()
    A("s_barrier")
    if OPT["lt"] == 2: ltouch()
    if OPT["pa"] == 1: lds_wait(C_W, 4, 1)
    if OPT["pa"] == 2: lds_wait(C_LF, 4, 1)
    if OPT["pa"] == 3: lds_wait(C_P1, 1, 1)
    A(f"s_branch {ATT2}")

def main_start():
    A(f"""v_lshlrev_b32 v1, 4, v0
v_add_u32 v1, {CNT+12}, v1
v_mov_b32 v2, 0
ds_write_b32 v1, v2""")

C, ER, EI, G, GT = 128, 160, 176, 192, 16
def tlbwarm():
    g = OPT["tw"]
    if not g: return
    L = A.lab("tw")
    n = (WS_USED >> g) // 32 + 1
    A(f"""s_cmp_lg_u32 s3, 2
s_cbranch_scc1 {L}
s_lshr_b32 s60, s2, 3
s_mul_i32 s60, s60, {n << g}
v_lshlrev_b32 v12, {g}, v0""")
    for i in range(0, n, 64):
        k = min(64, n - i)
        if k < 64: A(f"s_bfm_b64 exec, {k}, 0")
        A(f"buffer_load_dword v255, v12, {W}, s60 offen offset:64")
        if i + 64 < n: A(f"s_add_u32 s60, s60, {64 << g}")
    A("s_mov_b64 exec, -1")
    m = (W_BYTES >> g) // 32 + 1
    srd(28, P_WR, W_BYTES); srd(32, P_WI, W_BYTES)
    A(f"""s_lshr_b32 s60, s2, 3
s_mul_i32 s60, s60, {m << g}
s_bfm_b64 exec, {m}, 0
buffer_load_dword v255, v12, s[28:31], s60 offen
buffer_load_dword v255, v12, s[32:35], s60 offen
s_mov_b64 exec, -1
{L}:""")
def prewrite():
    tlbwarm()
    if OPT["pw"] < 2: return
    L = A.lab("pw")
    A(f"""s_cmp_lg_u32 s3, 3
s_cbranch_scc1 {L}
s_sub_u32 s60, s{TAG}, {TAGC}
s_lshl_b32 s61, s7, 4
s_add_u32 s61, s61, s6
s_lshl_b32 s61, s61, 7
s_add_u32 s61, s61, {F1_OFF}""")
    flagstore("s61", OPT["r1"], 32768, 40, "s60")
    A(f"{L}:")
def touches(which):
    if "x" in which:
        srd(28, P_AX, X_BYTES)
        A(f"""s_lshl_b32 s43, s6, 2
s_add_u32 s43, s43, s3
s_mul_i32 s43, s43, 896
s_lshl_b32 s44, s5, 7
s_add_u32 s43, s43, s44
s_cmp_lt_u32 s5, 2
s_cselect_b32 s44, 640, 0
v_mul_u32_u24 v1, s44, v15
v_mul_u32_u24 v7, {64*896}, v14
v_add_u32 v1, v1, v7
buffer_load_dword v63, v1, s[28:31], s43 offen""")
    A(f"""s_lshr_b32 s45, s2, 3
s_sub_u32 s45, s45, 22
s_lshl_b32 s45, s45, 2
s_add_u32 s45, s45, s3""")
    if "w" in which:
        LT = A.lab("tch")
        srd(28, P_WR, W_BYTES)
        A(f"s_bitcmp0_b32 s45, 0\ns_cbranch_scc1 {LT}")
        srd(28, P_WI, W_BYTES)
        A(f"""{LT}:
s_lshr_b32 s43, s45, 1
s_mul_i32 s43, s43, {128*450}
s_mul_i32 s44, s4, {4*450}
s_add_u32 s43, s43, s44
s_and_b32 s43, s43, 0xffffff80
v_lshrrev_b32 v1, 4, v0
v_mul_u32_u24 v1, {32*450}, v1
v_and_b32 v7, 15, v0
v_lshl_add_u32 v1, v7, 7, v1
buffer_load_dword v63, v1, s[28:31], s43 offen""")
    if "o" in which:
        srd(28, P_WO, WO_BYTES)
        A(f"""s_mul_i32 s43, s45, {12*896}
s_and_b32 s44, s2, 1
s_lshl_b32 s44, s44, 9
s_add_u32 s43, s43, s44
v_lshrrev_b32 v1, 2, v0
v_mul_u32_u24 v1, 896, v1
v_and_b32 v7, 3, v0
v_lshl_add_u32 v1, v7, 7, v1
s_mov_b32 exec_hi, 0xffff
buffer_load_dword v63, v1, s[28:31], s43 offen
s_mov_b64 exec, -1""")
TCH = {0: ("", ""), 1: ("x", "wo"), 2: ("", "xwo"), 3: ("xwo", ""), 4: ("", "x"), 5: ("x", ""), 6: ("xw", "o"), 7: ("w", "xo")}[OPT["tch"]]
def gen_common():
    A(f"""v_and_b32 v14, 31, v0
v_lshrrev_b32 v15, 5, v0
s_lshr_b32 s50, s2, 5
s_lshl_b32 s50, s50, 3
s_or_b32 s50, s50, s4
s_bfe_u32 s51, s2, 0x20003       ; d quarter
s_and_b32 s52, s40, 1            ; parity e""")
def rot_gen(n, nblk, step, base, mult, dmult, out, scale=None):
    c, sn, t = GT, GT+8, GT+16
    A(f"v_mul_f32 v11, {f32(float(dmult))}, v{step}")
    for j in range(n): A(f"v_fmamk_f32 v{t+j}, v{step}, {f32(float(mult[j]))}, v{base}")
    A("v_cos_f32 v10, v11\nv_sin_f32 v12, v11")
    for j in range(n): A(f"v_cos_f32 v{c+j}, v{t+j}\nv_sin_f32 v{sn+j}, v{t+j}")
    A("v_mov_b32 v11, v10\nv_mov_b32 v13, v12")
    if scale is not None:
        for j in range(n): A(f"v_mul_f32 v{c+j}, {f32(scale)}, v{c+j}\nv_mul_f32 v{sn+j}, {f32(scale)}, v{sn+j}")
    for b in range(nblk):
        out(b)
        if b + 1 < nblk:
            for j in range(0, n, 2): A(f"v_pk_mul_f32 {vr(t+j,2)}, {vr(sn+j,2)}, v[12:13]")
            for j in range(0, n, 2): A(f"v_pk_mul_f32 {vr(sn+j,2)}, {vr(sn+j,2)}, v[10:11]")
            for j in range(0, n, 2): A(f"v_pk_fma_f32 {vr(sn+j,2)}, {vr(c+j,2)}, v[12:13], {vr(sn+j,2)}")
            for j in range(0, n, 2): A(f"v_pk_fma_f32 {vr(c+j,2)}, {vr(c+j,2)}, v[10:11], {vr(t+j,2)} neg_lo:[0,0,1] neg_hi:[0,0,1]")
def gen_c(C=C):
    A(f"""v_lshrrev_b32 v8, 1, v14
s_lshl_b32 s43, s40, 4
v_add_u32 v8, s43, v8
v_cvt_f32_u32 v8, v8
v_mul_f32 v8, {f32(1/64)}, v8    ; step = u2/64
v_and_b32 v9, 1, v14
v_cvt_f32_u32 v9, v9
v_mul_f32 v9, {f32(0.25)}, v9
v_lshlrev_b32 v10, 1, v15
v_cvt_f32_u32 v10, v10
v_fma_f32 v9, v8, v10, v9        ; base""")
    def out(f):
        for p in range(4): A(f"v_cvt_pk_bf16_f32 v{C+4*f+p}, v{GT+p}, v{GT+8+p}")
    rot_gen(4, 8, 8, 9, [0,1,4,5], 8, out)
def gen_e():
    A(f"""v_lshlrev_b32 v8, 6, v14
v_add_u32 v8, s50, v8
v_cvt_f32_u32 v8, v8
v_mul_f32 v8, {f32(1/2048)}, v8
v_lshlrev_b32 v9, 2, v15
v_cvt_f32_u32 v9, v9
v_mul_f32 v9, v8, v9""")
    def out(f):
        for p in range(4): A(f"v_cvt_pk_bf16_f32 v{ER+4*f+p}, v{GT+p}, -v{GT+8+p}")
        for p in range(4): A(f"v_cvt_pk_bf16_f32 v{EI+4*f+p}, v{GT+8+p}, v{GT+p}")
    rot_gen(4, 4, 8, 9, [0,1,2,3], 8, out, 2.0/(2048*448))
def gen_g():
    A(f"""s_lshr_b32 s44, s40, 1
s_lshl_b32 s45, s51, 1
s_add_u32 s44, s44, s45         ; d tile
s_lshl_b32 s46, s44, 5
v_add_u32 v8, s46, v14          ; d
v_cvt_f32_u32 v8, v8
v_mul_f32 v8, {f32(1/448)}, v8
v_lshlrev_b32 v9, {2 if OPT["kn"] else 3}, v15
v_add_u32 v9, s52, v9
v_cmp_eq_u32 vcc, 0, v9         ; lanes holding k = 0
v_cvt_f32_u32 v9, v9
v_mul_f32 v9, v8, v9""")
    def out(t):
        for j in range(4): A(f"v_cvt_pk_bf16_f32 v{G+8*t+j}, v{GT+2*j}, v{GT+2*j+1}")
        for j in range(4): A(f"v_cvt_pk_bf16_f32 v{G+8*t+4+j}, -v{GT+8+2*j}, -v{GT+9+2*j}")
    rot_gen(8, 7, 8, 9, [(8*(j>>1)+2*(j&1) if OPT["kn"] else 16*(j>>2)+2*(j&3)) for j in range(8)], 32, out)
    A(f"""v_and_b32 v8, 0xffff0000, v{G}
v_or_b32 v8, 0x3f00, v8
v_and_b32 v10, 1, v14
v_lshlrev_b32 v10, 15, v10
v_cndmask_b32 v{G}, v{G}, v8, vcc
v_and_b32 v8, 0xffff, v8
v_and_b32 v9, 0xffff0000, v{G+4}
v_or3_b32 v9, v9, v10, v8
v_cndmask_b32 v{G+4}, v{G+4}, v9, vcc""")
def gen_pre():
    gen_common()

ACC = 64
def acc(a, b): return ACC + 32*a + 16*b
LONES = "L_ones"
def b1_body(vtype):
    if vtype: pi32(48, 14, 49)
    else: A("v_mov_b32 v48, v14")
    A(f"""v_lshrrev_b32 v49, 1, v48
v_and_b32 v49, 7, v49
v_xor_b32 v49, v49, v15
v_lshlrev_b32 v49, 4, v49
v_lshl_or_b32 v50, v48, 7, v49
s_lshl_b32 s43, s41, 13
v_add_u32 v52, s43, v50
v_xor_b32 v53, 32, v52
v_xor_b32 v54, 64, v52
v_xor_b32 v55, 96, v52""")
    A(f"""v_bfe_u32 v48, v0, 2, 2        ; rr
v_and_b32 v49, 3, v0           ; cc""")
    if not vtype:
        A("""v_lshrrev_b32 v50, 1, v49
v_and_b32 v49, 1, v49
v_lshl_or_b32 v49, v49, 1, v50 ; sigma(cc)""")
    A(f"""v_bfe_u32 v50, v0, 4, 1        ; colhalf
v_lshlrev_b32 v50, 5, v50
v_lshl_or_b32 v50, v49, 3, v50
s_lshl_b32 s43, s42, 7
v_or_b32 v50, s43, v50          ; col byte
v_lshlrev_b32 v51, 6, v48
v_xor_b32 v50, v50, v51
v_lshl_add_u32 v51, v15, 3, v48 ; 8h+rr
v_lshl_or_b32 v56, v51, 8, v50
v_add_u32 v56, 16384, v56
v_xor_b32 v57, 64, v56""")
    A(f"""s_lshl_b32 s46, s6, 2
s_lshl_b32 s47, s41, 1
s_add_u32 s46, s46, s47
s_lshl_b32 s47, s7, 2
s_lshl_b32 s48, s42, 1
s_add_u32 s47, s47, s48        ; first col tile""")
    if not vtype:
        A(f"""s_lshl_b32 s48, s47, 11
v_lshlrev_b32 v2, 4, v0
s_cmp_ge_u32 s47, 14
s_cselect_b32 s49, {KV_REC - QK_TILE}, 0
s_cselect_b32 s43, {KV_OFF - Q_OFF - 14*2048}, 0
s_cselect_b32 s54, 1.0, {f32(QSCALE)}
s_mov_b32 s55, s54
s_add_u32 s49, s49, {QK_TILE}
s_mul_i32 s46, s46, s49
s_add_u32 s46, s46, s48
s_add_u32 s46, s46, s43
s_add_u32 s46, s46, {Q_OFF}
s_add_u32 s49, s46, s49""")
    else:
        A(f"""s_sub_u32 s45, s7, 7
s_lshl_b32 s45, s45, 7
s_add_u32 s45, s45, 27
s_mul_i32 s45, s45, 2341
s_lshr_b32 s45, s45, 16
v_lshrrev_b32 v10, 4, v0
v_add_u32 v10, s45, v10
v_lshrrev_b32 v11, 2, v0
v_lshlrev_b32 v11, 9, v11
s_lshl_b32 s45, s45, 11
v_add_u32 v11, s45, v11
v_cmp_gt_u32 s[56:57], 16, v10
v_and_b32 v4, 3, v0
v_lshl_or_b32 v4, v4, 4, v11
s_cmp_lt_u32 s7, 9
s_cselect_b32 s58, 0xffff, 0
s_mov_b32 s59, 0
s_lshl_b32 s54, s6, 2
s_add_u32 s54, s54, s40
s_mul_i32 s54, s54, {KV_REC}
s_add_u32 s54, s54, {KV_OFF + QK_TILE + 28*16}
s_add_u32 s55, s54, 8192
v_and_b32 v58, 1, v0
v_add_u32 v58, -1, v58
v_and_b32 v58, 0x3f803f80, v58
v_mov_b32 v59, v58
v_mov_b32 v60, v58
v_mov_b32 v61, v58
s_sub_u32 s47, s47, 28
s_mul_i32 s46, s46, {KV_REC}
s_add_u32 s46, s46, {KV_OFF + QK_TILE}
s_add_u32 s49, s46, {KV_REC}
s_lshl_b32 s48, s47, 5""")
        for b in range(2):
            A(f"""v_add_u32 v48, s48, v14
v_add_u32 v48, {32*b}, v48
v_mul_u32_u24 v49, 2341, v48
v_lshrrev_b32 v49, 16, v49     ; head
v_mul_u32_u24 v50, 28, v49
v_sub_u32 v48, v48, v50        ; d
v_lshlrev_b32 v48, 4, v48
v_lshl_or_b32 v48, v15, 9, v48
v_lshl_or_b32 v{2+b}, v49, 11, v48""")
    def ones(label):
        LO = A.lab("ones")
        if label: A(f"{LONES}:")
        A(f"""s_mov_b64 exec, s[56:57]
buffer_store_dwordx4 v[58:61], v4, {W}, s54 offen {SC}
s_mov_b64 exec, s[58:59]
s_cbranch_execz {LO}
buffer_store_dwordx4 v[58:61], v4, {W}, s55 offen {SC}
{LO}:
s_mov_b64 exec, -1""")
    SETS = (16, 32, 192, 208)
    def rx(kap, p, a): return f"ds_read_b128 {vr(SETS[p]+4*a,4)}, v{6+kap} offset:{4096*a}"
    def rw(kap, p, b): return [f"ds_read_b64_tr_b16 {vr(SETS[p]+8+4*b+2*u,2)}, v{10+b} offset:{(16*kap+4*u)*256}" for u in range(2)]
    def rdlist(kap, p): return [rx(kap,p,0)] + rw(kap,p,0) + rw(kap,p,1) + [rx(kap,p,1)]
    def setaddr(): return [f"v_add_u32 v{6+i}, s44, v{52+i}" for i in range(6)]
    def mf(a, b, p):
        x, w = vr(SETS[p]+4*a,4), vr(SETS[p]+8+4*b,4)
        o = (x, w) if vtype else (w, x)
        A(f"{MFMA} {vr(acc(a,b),16)}, {o[0]}, {o[1]}, {vr(acc(a,b),16)}")
    gb = []
    def fill(n):
        for _ in range(n):
            if gb:
                for x in gb.pop(0): A(x)
    def kstep(p, r, f):
        A("s_waitcnt lgkmcnt(3)")
        mf(0,0,p)
        for x in r[0:3]: A(x)
        fill(f[0])
        A("s_waitcnt lgkmcnt(4)")
        mf(0,1,p)
        for x in r[3:5]: A(x)
        fill(f[1])
        A("s_waitcnt lgkmcnt(5)")
        mf(1,0,p)
        for x in r[5:6]: A(x)
        fill(f[2])
        mf(1,1,p)
        if OPT["bn"]: A(f"s_nop {OPT['bn']}")
        fill(f[3])
    LL = A.lab("b1loop")
    if vtype:
        LI, LI2 = A.lab("idle"), A.lab("idle")
        A(f"s_cmp_lt_u32 s47, 14\ns_cbranch_scc1 {LI}")
        prewrite()
        for n in range(7):
            A("s_barrier")
            if n == OPT["gk"]:
                A(f"s_cmp_lg_u32 s3, 2\ns_cbranch_scc1 {LI2}\ns_lshl_b32 s61, s6, 7\ns_add_u32 s61, s61, {GO_OFF}")
                flagstore("s61", 1, 0)
                A(f"{LI2}:")
        if OPT["oe"]: ones(False)
        A(f"s_branch {LONES}\n{LI}:")
    A("s_mov_b32 s44, 0\ns_mov_b32 s45, 0")
    for x in setaddr(): A(x)
    prewrite()
    stampw(9)
    A("s_barrier")
    stampw(2)
    for x in rdlist(0, 0): A(x)
    A(f"{LL}:")
    ab0 = len(A.ins)
    kstep(0, rdlist(1, 1), (0,1,2,3))
    kstep(1, rdlist(2, 0), (0,1,2,3))
    A("s_add_u32 s44, s44, 0x8000\ns_and_b32 s44, s44, 0x1ffff\ns_add_u32 s45, s45, 1")
    kstep(0, rdlist(3, 1), (1,1,2,0))
    for x in setaddr(): A(x)
    if OPT["la"]: A("s_waitcnt lgkmcnt(0)")
    A("s_barrier")
    kstep(1, rdlist(0, 0), (1,1,1,1))
    assert not gb
    if OPT["b1x"]: A.ins[ab0:] = [i for i in A.ins[ab0:] if not ((OPT["b1x"] & 1 and i.mfma) or (OPT["b1x"] & 2 and i.ds) or (OPT["b1x"] & 4 and i.mn == "ds_read_b128") or (OPT["b1x"] & 8 and "tr" in i.mn))]
    A(f"s_cmp_lt_u32 s45, 6\ns_cbranch_scc1 {LL}")
    if OPT["x"] in (2, 3): A("s_memtime s[84:85]\ns_waitcnt lgkmcnt(0)")
    rd = []
    for kap in (1,2,3): rd += [rx(kap,kap,0)] + rw(kap,kap,0)
    for kap in (1,2,3): rd += rw(kap,kap,1)
    for kap in (1,2,3): rd += [rx(kap,kap,1)]
    order = [rdlist(0,0)[i] for i in range(6)] + rd
    def epi(a, b):
        e = []; t = acc(a,b)
        for i in range(8):
            if not vtype:
                if OPT["pk"] or (a, b) == (1, 1): e.append(f"v_pk_mul_f32 {vr(t+2*i,2)}, {vr(t+2*i,2)}, s[54:55]")
                else: e += [f"v_mul_f32 v{t+2*i}, s54, v{t+2*i}", f"v_mul_f32 v{t+2*i+1}, s54, v{t+2*i+1}"]
            e.append(f"v_cvt_pk_bf16_f32 v{t+i}, v{t+2*i}, v{t+2*i+1}" if OPT["x"] != -10 else f"v_mov_b32 v{t+i}, 0")
            if i & 3 == 3:
                if OPT["sd"] and (a, b, i) == (0, 0, 3): e.append(f"s_sleep {OPT['sd']}")
                if OPT["sp"]: e.append(f"s_sleep {OPT['sp']}")
                if vtype: e.append(f"buffer_store_dwordx4 {vr(t+i-3,4)}, v{2+b}, {W}, s{46 if a==0 else 49} offen offset:{1024*(i>>2)} {SC}")
                else: e.append(f"buffer_store_dwordx4 {vr(t+i-3,4)}, v2, {W}, s{46 if a==0 else 49} offen offset:{2048*b+1024*(i>>2)} {SC}")
        return e
    issued = 6; pend = []; lastw = None
    tiles = [(a,b) for a in range(2) for b in range(2)]
    seq = [(a,b,0) for a,b in tiles] + [(a,b,k) for a,b in tiles for k in (1,2,3)]
    for m, (a, b, kap) in enumerate(seq):
        need = max(order.index(x) for x in [rx(kap,kap,a)] + rw(kap,kap,b)) + 1
        while issued < need: A(order[issued]); issued += 1
        if lastw is None or need > lastw:
            A(f"s_waitcnt lgkmcnt({issued - need})"); lastw = need
        mf(a, b, kap)
        for _ in range(3):
            if issued < len(order) and issued - lastw < 14: A(order[issued]); issued += 1
        if m in (8, 11, 14): pend += epi(*tiles[(m-8)//3])
        if m == 5 and vtype and OPT["oe"]: ones(False)
        if m == 15: stamp(3)
        for _ in range((6 if OPT["pk"] else 8) if not vtype else 4):
            if pend: A(pend.pop(0))
    for x in pend + epi(1,1): A(x)
    if vtype:
        if OPT["oe"]: A(f"{LONES}:")
        else: ones(True)
    lds_add(C_LF)
    A(f"s_branch {PUB1}")
def b1_compute():
    A(f"""s_and_b32 s41, s3, 1           ; wr
s_lshr_b32 s42, s3, 1          ; wc""")
    fixtag()
    A(f"s_cmp_ge_u32 s7, 7\ns_cbranch_scc1 {LV}")
    b1_body(False)
    A(f"{LV}:")
    b1_body(True)

def a1_gen():
    A("; ==== A1 compute waves: DFT-448 fragments into LDS ====")
    LF, LE = A.lab("fgen"), A.lab("fend")
    A(f"{LA1C}:\ns_setprio 2")
    if OPT["gdl"]: A(f"s_sleep {OPT['gdl']}")
    gen_common()
    pi32(48, 14, 49)
    A(f"""v_lshlrev_b32 v61, 4, v0
v_add_u32 v61, {FOFF}, v61""")
    main_start()
    A(f"""v_lshrrev_b32 v48, 1, v48       ; k_local
s_mul_i32 s41, s5, 3
s_add_u32 s41, s41, s3
s_lshl_b32 s41, s41, 4
v_add_u32 v48, s41, v48
v_cvt_f32_u32 v48, v48
v_mul_f32 v56, {f32(1/448)}, v48 ; k/448
v_and_b32 v48, 1, v14
v_cvt_f32_u32 v48, v48
v_mul_f32 v59, {f32(0.25)}, v48  ; c/4
v_lshlrev_b32 v60, 3, v15
v_cvt_f32_u32 v60, v60
v_fma_f32 v59, v56, v60, v59
v_mul_f32 v58, {f32(16.0)}, v56
v_cos_f32 v58, v58
s_mul_i32 s41, s3, 14336
v_add_u32 v53, s41, v61""")
    for j in range(16): A(f"v_fmamk_f32 v{16+j}, v56, {f32(float(16*(j>>3)+(j&7)))}, v59")
    A("v_add_f32 v58, v58, v58")
    for j in range(16): A(f"v_cos_f32 v{16+j}, v{16+j}")
    A("s_waitcnt lgkmcnt(0)")
    gettag()
    A(f"s_cmp_eq_u32 s3, 3\ns_cbranch_scc1 {LE}\nv_mov_b32 v59, v58\ns_mov_b32 s42, 7\n{LF}:")
    for u in range(2):
        for j in range(4): A(f"v_cvt_pk_bf16_f32 v{32+4*u+j}, v{16+8*u+2*j}, v{17+8*u+2*j}")
        A(f"ds_write_b128 v53, {vr(32+4*u,4)} offset:{1024*u}")
        for j in range(4):
            a, b = 16+8*u+2*j, 16+8*(u^1)+2*j
            A(f"v_pk_fma_f32 {vr(a,2)}, {vr(b,2)}, v[58:59], {vr(a,2)} neg_lo:[0,0,1] neg_hi:[0,0,1]") if u == 0 else None
    for j in range(4):
        a, b = 24+2*j, 16+2*j
        A(f"v_pk_fma_f32 {vr(a,2)}, {vr(b,2)}, v[58:59], {vr(a,2)} neg_lo:[0,0,1] neg_hi:[0,0,1]")
    A(f"""v_add_u32 v53, 2048, v53
s_sub_u32 s42, s42, 1
s_cmp_lg_u32 s42, 0
s_cbranch_scc1 {LF}
{LE}:""")
E1R, E1I = 56, 248
TST = [f"buffer_store_dwordx4 {vr(40+4*z,4)}, v4, {W}, s{99+(z>>1)} offen offset:{1024*(z&1)} {SC}" for z in range(6)]
def a1_compute():
    A("; ==== constants of A3 (shared with the B1 role), then the A1 main loop ====")
    if TCH[0]: touches(TCH[0])
    if not OPT["ag"]:
        A(f"{GEN}:")
        gen_e()
        if OPT["pg"] == 4: lds_add(C_H)
        gen_g()
        A(f"s_cmp_lt_u32 s7, 11\ns_cbranch_scc1 {HELP2}")
    if TCH[1]: touches(TCH[1])
    A(f"""s_lshl_b32 s41, s6, 2
s_add_u32 s41, s41, s3          ; s2 index
v_lshlrev_b32 v9, 8, v15
v_add_u32 v9, s41, v9
v_mul_u32_u24 v9, v14, v9
v_cvt_f32_u32 v9, v9
v_mul_f32 v9, {f32(1/2048)}, v9
v_cvt_f32_u32 v8, v14
v_mul_f32 v8, {f32(1/32)}, v8
v_mov_b32 v5, v61
s_waitcnt vmcnt(0)""")
    def out(b):
        for j in range(4): A(f"v_cvt_pk_bf16_f32 v{E1R+4*b+j}, v{GT+2*j}, v{GT+2*j+1}")
        for j in range(4): A(f"v_cvt_pk_bf16_f32 v{E1I+4*b+j}, -v{GT+8+2*j}, -v{GT+9+2*j}")
    rot_gen(8, 2, 8, 9, [8*(j>>2)+(j&3) for j in range(8)], 16, out)
    A(f"""v_lshrrev_b32 v49, 1, v14
v_and_b32 v49, 7, v49
v_xor_b32 v49, v49, v15
v_lshlrev_b32 v49, 4, v49
v_lshl_or_b32 v6, v14, 7, v49
s_lshl_b32 s43, s3, 12
v_add_u32 v6, s43, v6
v_and_b32 v3, 2, v14
v_lshlrev_b32 v3, 30, v3
v_or_b32 v3, 1.0, v3            ; (-1)^k
v_mov_b32 v2, v3
v_lshlrev_b32 v4, 4, v0
s_mul_i32 s99, s41, {T_ROW}
s_mul_i32 s42, s5, 6144
s_add_u32 s99, s99, s42
s_add_u32 s99, s99, {T_OFF}
s_add_u32 s100, s99, 2048
s_add_u32 s101, s99, 4096""")
    egen = []
    A(f"s_mul_i32 s27, s26, 8256")
    def a1salu(adv=True):
        r = []
        if adv: r += ["s_add_u32 s27, s27, 8256", f"s_cmp_eq_u32 s27, {7*8256}", "s_cselect_b32 s27, 0, s27"]
        return r + ["s_and_b32 s43, s27, 0x1c040", f"s_add_u32 s44, s27, {7*8256}", "s_and_b32 s44, s44, 0x1c040",
                    "s_lshr_b32 s46, s27, 2", "s_and_b32 s46, s46, 0x7800"]
    a1valu = ["v_xor_b32 v8, s43, v6", "v_xor_b32 v10, s44, v6", "v_xor_b32 v9, 32, v8", "v_xor_b32 v11, 32, v10", "v_add_u32 v12, s46, v5"]
    def a1rd(t):
        b = 16 + 20*t
        return ([f"ds_read_b128 {vr(b,4)}, v{8+t}"] +
                [f"ds_read_b128 {vr(b+8+4*kgi,4)}, v12 offset:{1024*t+14336*kgi}" for kgi in range(3)] +
                [f"ds_read_b128 {vr(b+4,4)}, v{10+t}"])
    def a1step(t, nxt, first=False, fill=0, adv=False):
        b = 16 + 20*t
        r = list(nxt); issued = 0
        sa = a1salu() if adv else []; va = list(a1valu) if adv else []
        for m in range(6):
            hi, kgi = m // 3, m % 3
            need = (2, 3, 4, 5, 5, 5)[m]
            if not nxt: hi, kgi, need = m % 2, m // 2, (2, 5, 5, 5, 5, 5)[m]
            if m < (4 if nxt else 2): A(f"s_waitcnt lgkmcnt({5 - need + issued})")
            d = 64 + 32*kgi + 16*hi
            A(f"{MFMA} {vr(d,16)}, {vr(b+4*hi,4)}, {vr(b+8+4*kgi,4)}, {0 if first else vr(d,16)}")
            for _ in range(2 if m == 0 else 1):
                if r: A(r.pop(0)); issued += 1
            if m in (1, 2, 3):
                for _ in range(3):
                    if sa: A(sa.pop(0))
            if m == 4:
                while va: A(va.pop(0))
            for _ in range(fill if not (adv and m in (1,2,3,4)) else fill // 2):
                if egen: A(egen.pop(0))
    LL, LS, LNB = A.lab("a1loop"), A.lab("a1last"), A.lab("a1nb")
    for x in a1salu(False) + a1valu: A(x)
    fixtag()
    prewrite()
    for x in a1valu[4:]: A(x)
    stampw(9)
    A("s_barrier")
    stampw(2)
    if OPT["ad"]: A(f"s_sleep {OPT['ad']}")
    for x in a1rd(0): A(x)
    for n in range(1):
        a1step(0, a1rd(1), n == 0, 2, True)
        if OPT["gl"]: A("s_barrier")
        a1step(1, a1rd(0), False, 3)
    assert not egen
    A(f"s_mov_b32 s45, 1\n{LL}:")
    a1step(0, a1rd(1), adv=True)
    LH = A.lab("a1h")
    A(f"""s_add_u32 s45, s45, 1
s_cmp_eq_u32 s45, 7
s_cbranch_scc1 {LS}
s_nop 0""")
    if OPT["gl"]: A(f"s_cmp_eq_u32 s45, 6\ns_cbranch_scc1 {LNB}\ns_barrier\n{LNB}:")
    a1step(1, a1rd(0))
    A(f"s_branch {LL}\n{LS}:")
    a1step(1, [])
    stamp(3)
    def s1(kgi):
        P, Q = 64+32*kgi, 80+32*kgi
        e = []
        for i in range(8):
            if OPT["pk"]: e.append(f"v_pk_fma_f32 {vr(P+2*i,2)}, {vr(Q+2*i,2)}, v[2:3], {vr(P+2*i,2)}")
            else: e += [f"v_fmac_f32 v{P+2*i}, v3, v{Q+2*i}", f"v_fmac_f32 v{P+2*i+1}, v3, v{Q+2*i+1}"]
            e.append(f"v_cvt_pk_bf16_f32 v{16+8*kgi+i}, v{P+2*i}, v{P+2*i+1}")
        return e
    def mm(kgi):
        P, Q = 64+32*kgi, 80+32*kgi
        return [f"{MFMA} {vr(P,16)}, {vr(16+8*kgi,4)}, {vr(E1R,4)}, 0", f"{MFMA} {vr(Q,16)}, {vr(16+8*kgi,4)}, {vr(E1I,4)}, 0",
                f"{MFMA} {vr(P,16)}, {vr(20+8*kgi,4)}, {vr(E1R+4,4)}, {vr(P,16)}", f"{MFMA} {vr(Q,16)}, {vr(20+8*kgi,4)}, {vr(E1I+4,4)}, {vr(Q,16)}"]
    def s2(kgi):
        P, Q = 64+32*kgi, 80+32*kgi
        e = []
        for j in range(8):
            e += [f"v_sub_f32 v{P+2*j}, v{P+2*j}, v{Q+2*j+1}", f"v_add_f32 v{Q+2*j}, v{Q+2*j}, v{P+2*j+1}",
                  f"v_cvt_pk_bf16_f32 v{40+8*kgi+j}, v{P+2*j}, v{Q+2*j}"]
            if j & 3 == 3 and not OPT["tl"]: e.append(TST[2*kgi+(j>>2)])
        return e
    def weave(ms, vs):
        k = (len(vs) + len(ms) - 1) // len(ms)
        for m in ms:
            A(m)
            for _ in range(k):
                if vs: A(vs.pop(0))
    lds_add(C_LF)
    for x in s1(0): A(x)
    weave(mm(0), s1(1)); weave(mm(1), s1(2)); weave(mm(2), s2(0))
    for x in s2(1) + s2(2): A(x)

def pub1():
    A("; ==== publish phase 1, 64-point DFT fragments ====")
    A(f"""{PUB1}:
s_lshl_b32 s26, s7, 11
s_lshl_b32 s42, s6, 7
s_add_u32 s26, s26, s42
s_add_u32 s26, s26, {F1_OFF}""")
    stamp(4)
    if OPT["pa"] == 1: lds_add(C_W)
    LNP = A.lab("nopub")
    if OPT["tl"]: A(f"s_cmp_ge_u32 s7, 11\ns_cbranch_scc1 {LNP}")
    publish(C_P1, 26, OPT["r1"], 32768)
    stamp(5)
    A(f"{LNP}:")
    if OPT["cl"]: A(f"s_cmp_ge_u32 s7, 11\ns_cbranch_scc1 {HELP2}")
    gen_c()
    if OPT["pg"] == 3: lds_add(C_H)
    if OPT["ag"]: gen_e(); gen_g()
    else: A(f"s_cmp_lt_u32 s7, 11\ns_cbranch_scc1 {GEN}")

Q, S, O, KV = 16, 48, 112, 176
OK = O + 48
TB = 8
SO = 32
def q(j,i): return vr(Q+8*j+4*i, 4)
def kb(b,i): return KV+16*b+4*i
def tile_loads(b, so):
    return [f"buffer_load_dwordx4 {vr(kb(b,0),4)}, v1, {W}, s{so} offen {KM}",
            f"buffer_load_dwordx4 {vr(kb(b,1),4)}, v2, {W}, s{so} offen {KM}",
            f"buffer_load_dwordx4 {vr(kb(b,2),4)}, v3, {W}, s{so} offen {KM}",
            f"buffer_load_dwordx4 {vr(kb(b,3),4)}, v3, {W}, s{so} offen offset:1024 {KM}"]
def attention():
    LOCK[0] = True
    A("; ==== attention and output projection (waves 4-7) ====")
    resident(None, None)
    LNY, LNW = A.lab("nyq"), A.lab("now")
    A(f"{ATT}:\ns_setprio 0")
    A("s_mov_b32 s51, s7")

    srd(SO, P_OUT, OUT_BYTES)
    A(f"""s_lshl_b32 s4, s4, 1
s_bfe_u32 s5, s2, 0x10003
s_or_b32 s4, s4, s5            ; head
s_lshr_b32 s5, s2, 4           ; qb
s_mul_i32 s6, s4, 7
s_lshr_b32 s45, s6, 1
s_add_u32 s6, s6, 1
s_lshr_b32 s6, s6, 1
s_lshl_b32 s6, s6, 9
v_lshlrev_b32 v8, 4, v0
v_add_u32 v1, s6, v8
s_bitcmp1_b32 s4, 0
s_cselect_b32 s7, -2040, 0
v_add_u32 v2, 1024, v1
v_add_u32 v6, s7, v2
v_mov_b32 v4, 0x3f80
v_mov_b32_dpp v2, v6 {HI}
s_lshl_b32 s7, s4, 11
s_add_u32 s7, s7, {QK_TILE}
v_and_b32 v9, 30, v0           ; lanes 26,27 <-> rows 28,29
v_cmp_eq_u32 vcc, 26, v9
v_cmp_eq_u32 s[48:49], 28, v9
s_or_b64 vcc, vcc, s[48:49]
v_xor_b32 v9, 96, v8
v_cndmask_b32 v3, v8, v9, vcc
v_add_u32 v3, s7, v3           ; V offset
v_mov_b32 v5, 0xdddd
v_mov_b32 v7, 0
s_lshl_b32 s45, s45, 3         ; first column touched (Q part)
v_bfe_u32 v9, v0, 2, 1
v_mul_u32_u24 v10, 31, v9
v_add_u32 v10, s45, v10        ; Q column
v_add_u32 v11, 448, v10        ; K column
v_mul_u32_u24 v9, 27, v9
s_mul_i32 s46, s4, 28
s_add_u32 s46, s46, 896
v_add_u32 v9, s46, v9          ; V column
v_lshrrev_b32 v10, 7, v10
v_lshlrev_b32 v10, 11, v10
v_mov_b32_dpp v11, v9 quad_perm:[0,1,2,3] row_mask:0xa bank_mask:0xf
s_lshl_b32 s46, s5, 7
v_add_u32 v10, s46, v10
v_lshrrev_b32 v11, 7, v11
v_lshlrev_b32 v11, 11, v11
v_and_b32 v9, 3, v0
v_lshl_add_u32 v11, v9, 7, v11
s_lshl_b32 s46, s40, 9
v_add_u32 v11, s46, v11        ; K/V flag offsets of this wave's 4 token blocks
v_mov_b32_dpp v11, v10 {HI}
s_and_b32 s46, s2, {OPT["r1"]-1}
s_lshl_b32 s46, s46, 15
s_add_u32 s46, s46, {F1_OFF}
s_lshl_b32 s43, s5, 2
s_add_u32 s42, s40, s43
s_mul_i32 s42, s42, {QK_TILE}
s_add_u32 s50, s42, {Q_OFF}
s_mul_i32 s47, s40, {16*KV_REC}
s_add_u32 s47, s47, {KV_OFF}""")
    A(f"s_and_b32 s43, s5, {OPT['kr']}")
    for i in range(16):
        A(f"s_add_u32 s42, s43, {i}\ns_and_b32 s42, s42, 15\ns_mul_i32 s42, s42, {KV_REC}\ns_add_u32 s{TB+i}, s42, s47")
    for j in range(4):
        A(f"""s_add_u32 s42, s40, {j}
s_and_b32 s42, s42, 3
s_lshl_b32 s42, s42, 11
s_add_u32 s42, s42, {QX}
v_add_u32 v{240+j}, s42, v8
s_add_u32 s42, s40, {j+1}
s_and_b32 s42, s42, 3
s_mul_i32 s42, s42, 12288
s_add_u32 s42, s42, {MERGE + (4096*j if j < 3 else 0)}
v_add_u32 v{244+j}, s42, v8""")
    A(f"""s_add_u32 s41, s40, 3
s_and_b32 s41, s41, 3
s_lshl_b32 s43, s5, 2
s_add_u32 s41, s41, s43        ; token tile kept by this wave
s_lshl_b32 s26, s41, 15
s_lshl_b32 s42, s4, 11
s_add_u32 s26, s26, s42
s_add_u32 s26, s26, {O_OFF}
s_lshl_b32 s27, s41, 11
s_lshl_b32 s42, s4, 7
s_add_u32 s27, s27, s42
s_add_u32 s27, s27, {FO_OFF}
s_bfe_u32 s42, s2, 0x20001
s_or_b32 s43, s43, s42         ; token tile of the projection
s_and_b32 s53, s2, 1
s_and_b32 s52, s53, {OPT["ro"]-1}
s_lshl_b32 s53, s53, 1
s_bfe_u32 s42, s2, 0x10003
s_or_b32 s53, s53, s42
{"s_mov_b32 s52, s53" if OPT["ro"] == 4 else ""}
s_lshl_b32 s52, s52, 17
s_lshl_b32 s53, s53, 2
s_add_u32 s53, s53, s40        ; n tile
s_lshl_b32 s45, s43, 15
s_lshl_b32 s44, s40, 13
s_add_u32 s45, s45, s44
s_add_u32 s45, s45, {O_OFF}
s_add_u32 s47, s45, 4096
s_mul_i32 s41, s43, {32*1792}
s_lshl_b32 s42, s53, 6
s_add_u32 s41, s41, s42
s_add_u32 s41, s41, 896
s_lshl_b32 s42, s43, 11
s_add_u32 s52, s52, s42
s_lshl_b32 s42, s40, 9
{"s_add_u32 s52, s52, s42" if OPT["ol"] in (0, 3, 4) else ""}
s_add_u32 s52, s52, {FO_OFF}
v_and_b32 v249, {3 if OPT["ol"] in (0, 3, 4) else 15}, v0
v_lshlrev_b32 v249, 7, v249     ; flags polled
v_lshrrev_b32 v15, 5, v0
v_and_b32 v14, 31, v0
v_mul_u32_u24 v250, 1792, v14
v_lshl_add_u32 v250, v15, 4, v250
v_lshrrev_b32 v251, 3, v0
v_lshlrev_b32 v251, 17, v251
v_and_b32 v13, 7, v0
v_lshl_add_u32 v251, v13, 4, v251
v_bfe_u32 v9, v0, 2, 2        ; rr
v_and_b32 v10, 3, v0
v_lshrrev_b32 v12, 1, v10
v_and_b32 v10, 1, v10
v_lshl_or_b32 v10, v10, 1, v12    ; sigma(cc)
v_bfe_u32 v12, v0, 4, 1
v_lshlrev_b32 v12, 5, v12
v_lshl_or_b32 v10, v10, 3, v12
s_lshl_b32 s42, s40, 6
v_or_b32 v10, s42, v10          ; column byte
v_mul_u32_u24 v12, 320, v9
v_xor_b32 v252, v10, v12
v_lshl_add_u32 v252, v15, 10, v252  ; rows 4h+rr
v_lshl_or_b32 v9, v15, 1, v9
v_mul_u32_u24 v12, 320, v9
v_xor_b32 v253, v10, v12        ; rows rr (h=0) / 2,3,2,3 (h=1)
v_add_u32 v254, {224*256}, v252
v_add_u32 v255, {224*256}, v253
v_mov_b32 v6, v8""")
    if OPT["pw"]:
        A(f"s_sub_u32 s60, s{TAG}, {TAGC}")
        flagstore("s27", OPT["ro"], 131072, 40, "s60")
    for i in range(64): A(f"v_mov_b32 v{O+i}, 0")
    assert OPT["wg"]
    A(f"s_cmp_ge_u32 s51, 11\ns_cbranch_scc1 {A1LD}")
    if OPT["bp"]: A("s_setprio 3")
    if OPT["pg"] == 0: lds_wait(C_X, 1, 1)
    elif OPT["pg"] == 1: lds_wait(C_P1, 1, 1)
    elif OPT["pg"] == 2: lds_wait(C_LF, 4, 1)
    else: lds_wait(C_H, OPT["pn"], 1)
    for x in WL[OPT["wm"]:]: A(x)
    A(f"s_cmp_lg_u32 s51, 10\ns_cbranch_scc1 {ATT2}")
    for x in WL[:OPT["wm"]]: A(x)
    A(f"{ATT2}:\ns_setprio 3")
    stamp(5)
    resident(248, 15)
    kvp = f"buffer_load_dword v14, v11, {W}, s46 offen {PM}"
    MQK, MV = "s_mov_b32 exec_lo, 0xffff", "s_bfm_b64 exec, 16, 16"
    spin(kvp, 14, OPT["sl1"], MQK if OPT["vs"] else None)
    stamp(6)
    t0, t1 = tile_loads(0, TB), tile_loads(1, TB+1)
    A(f"""{t0[0]}
buffer_load_dwordx4 {q(0,0)}, v1, {W}, s50 offen {SC}
{t0[1]}
buffer_load_dwordx4 {q(0,1)}, v2, {W}, s50 offen {SC}""")
    if OPT["vs"] == 1: A(f"{MV}\n{kvp}\ns_mov_b64 exec, -1")
    F = OPT["ft"]
    issued = [(t, k) for t in range(1, F) for k in range(2)]
    for t, k in issued: A(tile_loads(t, TB+t)[k])
    lds_wait(C_LF, 4)
    if OPT["cl"]:
        LC_ = A.lab("noc")
        A(f"s_cmp_lt_u32 s51, 11\ns_cbranch_scc1 {LC_}\nv_add_u32 v9, s44, v6")
        for f in range(8): A(f"ds_write_b128 v9, {vr(S+32+4*f,4)} offset:{CX+1024*f}")
        A(f"{LC_}:")
    A(f"s_waitcnt vmcnt({len(issued)})")
    stamp(4)
    def vcheck():
        LV_ = A.lab("vok")
        A(f"{MV}\nv_cmp_ne_u32 vcc, s{TAG}, v14\ns_mov_b64 exec, -1\ns_cbranch_vccz {LV_}")
        spin(kvp, 14, OPT["sl1"], MV)
        A(f"{LV_}:")
    A(f"""v_mov_b32_dpp v{Q+6}, v7 {HI}
v_mov_b32_dpp v{Q+7}, v7 {HI}
v_mov_b32_dpp v{kb(0,1)+2}, v4 {HI}
{MFMA} {vr(S+16,16)}, {vr(kb(0,0),4)}, {q(0,0)}, 0""")
    if not OPT["vs"]: A(t0[2])
    A(f"{MFMA} {vr(S+16,16)}, {vr(kb(0,1),4)}, {q(0,1)}, {vr(S+16,16)}")
    if not OPT["vs"]: A(t0[3])
    A(f"""{MFMA} {vr(S,16)}, {vr(kb(0,0),4)}, {q(0,0)}, 0
ds_write_b128 v240, {q(0,0)}""")
    if not OPT["vs"]:
        for x in t1[:2]: A(x)
    s_ = S+16
    A("; softmax shift = row maximum over 16 keys of the first tile, negated into Q's spare slot (K holds 1.0 there)")
    A(f"v_max3_f32 v8, v{s_}, v{s_+1}, v{s_+2}\nv_max3_f32 v9, v{s_+3}, v{s_+4}, v{s_+5}")
    for i in range(6, 14, 4): A(f"v_max3_f32 v8, v8, v{s_+i}, v{s_+i+1}\nv_max3_f32 v9, v9, v{s_+i+2}, v{s_+i+3}")
    A(f"""v_max3_f32 v8, v8, v{s_+14}, v{s_+15}
v_max_f32 v8, v8, v9
v_cvt_pk_bf16_f32 v8, -v8, v7
v_mov_b32_dpp v{Q+6}, v8 {HI}
ds_write_b128 v240, {q(0,1)} offset:1024
{MFMA} {vr(S,16)}, {vr(kb(0,1),4)}, {q(0,1)}, {vr(S,16)}""")
    lds_add(C_Q)
    vcheck()
    more = [(0,2),(0,3),(1,0),(1,1),(1,2),(1,3)] if F == 1 else [(t, k) for t in range(F) for k in (2, 3)]
    for t, k in more: A(tile_loads(t, TB+t)[k])
    issued += more
    qreads = [f"ds_read_b128 {q(j,h)}, v{240+j} offset:{1024*h}" for j in range(1, 4) for h in range(2)]
    PE = OPT["pe"] if F == 1 else 0
    if F == 1:
        for e in range(PE): A(f"v_exp_f32 v{S+e}, v{S+e}")
        lds_wait(C_Q, 4, 0, False)
        for x in qreads: A(x)
        A("s_waitcnt lgkmcnt(0)")
        stamp(7)
        lds_add(C_G2)
        A("s_setprio 1")
    else:
        stampw(7)
        A("s_setprio 1")
        if OPT["g3"]: lds_add(C_H)
    def mwrites(j):
        return ([f"ds_write_b128 v{244+j}, {vr(O+16*j+4*g,4)} offset:{1024*g}" for g in range(3)] +
                [f"ds_write_b96 v{244+j}, {vr(O+16*j+12,3)} offset:3072"])
    assert OPT["vs"] and OPT["pvd"]
    R = OPT["rt"]
    steps = [(i, j) for i in range(16 - R) for j in range(4)] + [(i, j) for j in range(4) for i in range(16 - R, 16)]
    steps = [(i, 0) for i in range(F)] + [x for x in steps if not (x[1] == 0 and x[0] < F)]
    if OPT["r4"]:
        steps.remove((15 - R, 3)); steps.insert(64 - R - 1, (15 - R, 3))
    def qk(n, h):
        i, j = steps[n]; d = vr(S+16*(n&3),16)
        return f"{MFMA} {d}, {vr(kb(i&3,h),4)}, {q(j,h)}, {d if h else 0}"
    def pv(n, h):
        i, j = steps[n]
        return f"{SMF} {vr(O+16*j,16)}, {vr(kb(i&3,2+h),4)}, {vr(S+16*(n&3)+8*h,8)}, v5"
    slots = []
    seenk, seenv = {0}, set()
    pos = {}
    for n in range(64):
        ms = []
        if n < 63:
            t = steps[n+1][0]; first = t not in seenk; seenk.add(t)
            whole = F <= t <= 16 - max(R, 1)
            ms.append(dict(m=qk(n+1,0), need=[(t,k) for k in range(4 if whole else 2)] if first else None, use=(t,0),
                           after=[f"v_mov_b32_dpp v{kb(t&3,1)+2}, v4 {HI}"] if first else []))
            ms.append(dict(m=qk(n+1,1), need=None, after=[], use=(t,1)))
        ops = {0: [], 1: [], 2: [(0,0),(0,1)], 3: [(1,0),(1,1),(2,0)], 4: [(2,1),(3,0),(3,1)], 5: [(4,0),(4,1),(5,0)]}.get(n, [(n-1,1),(n,0)])
        if n == 63: ms += [dict(m=None, need=None, after=[])]
        for o in ops:
            t = steps[o[0]][0]
            ms.append(dict(m=pv(*o), need=[(t,2),(t,3)] if t not in seenv else None, after=[], op=o, use=(t,2+o[1]))); seenv.add(t)
            if n == 63 and o[1] == 1: ms.append(dict(m=None, need=None, after=[]))
        while len(ms) < 4: ms.append(dict(m=None, need=None, after=[]))
        e0 = PE if n == 0 else 0
        cnt = [(16-e0)//4]*4 if len(ms) == 4 else [3,3,3,3,4]
        for g, x in enumerate(ms):
            x["exps"] = [S+16*(n&3)+e for e in range(e0, e0+cnt[g])]; e0 += cnt[g]; x["step"] = n; x["g"] = g
            if "op" in x: pos[x["op"]] = len(slots)
            pos[("s", n, g)] = len(slots)
            slots.append(x)
    def addload(n, g, t, k): slots[pos[("s", n, g)]]["after"].append((t, k))
    early = [(t, k) for t in range(1, 4) for k in range(4) if (t, k) not in issued]
    p = 0
    while early:
        if slots[p]["m"]:
            for _ in range(2 if p < 2 and len(early) > 4 else 1):
                if early: slots[p]["after"].append(early.pop(0))
        p += 1
    for t in range(4, 16):
        for k in range(4):
            lastuse = max(z for z, x in enumerate(slots) if x.get("use") == (t-4, k))
            z = max(pos[("s", 4*(t-3) - 1 + k, OPT["lg"])], lastuse + 1, p)
            slots[z]["after"].append((t, k)); p = z + 1
    if F > 1:
        bq, oq, offq = cref(C_Q)
        z = pos[("s", F-1, 0)]
        rq = [f"ds_read_b32 v13, {bq}{offq}"] + qreads
        slots[z-2]["after"] += rq[:4]; slots[z-1]["after"] += rq[4:]
        slots[z]["qcheck"] = True
    p = 0; tailw = []
    for j in range(3):
        last = max(n for n in range(64) if steps[n][1] == j)
        p = max(p, pos[(last, 1)] + 3)
        for w in mwrites(j):
            if p < len(slots): slots[p]["after"].append(w); p += 1
            else: tailw.append(w)
    b_, o_, off_ = cref(C_MERGE)
    spec = OPT["sm"] and not tailw and p <= len(slots) - 4
    madd = ["s_mov_b64 exec, 1", f"ds_add_u32 {b_}, {o_}{off_}", "s_mov_b64 exec, -1"]
    mreads = [f"ds_read_b128 {vr(O+4*g,4)}, v247 offset:{1024*g}" for g in range(12)]
    if not tailw: slots[p-1]["after"] += madd
    if spec:
        rd_ = [f"ds_read_b32 v13, {b_}{off_}"] + mreads
        for z, k in (zip((-3, -2, -1), (5, 4, 4)) if OPT["sm"] == 1 else zip((-2, -1), (7, 6)) if OPT["sm"] == 2 else ((-1, 13),)):
            slots[z]["after"] += rd_[:k]; rd_ = rd_[k:]
    landed = -1
    if slots[0]["need"]:
        landed = max(issued.index(z) for z in slots[0]["need"]); A(f"s_waitcnt vmcnt({len(issued)-1-landed})")
    for p_, x in enumerate(slots):
        if x["g"] == 0:
            n = x["step"]
            if n == 32: stamp(8)
            if OPT["ts"] == 2 and n in (16, 48): stamp(2 if n == 16 else 3)
        if x.get("qcheck"):
            LQ = A.lab("qok")
            A(f"s_waitcnt lgkmcnt(0)\nv_readfirstlane_b32 s60, v13\ns_cmp_ge_u32 s60, 4\ns_cbranch_scc1 {LQ}")
            lds_wait(C_Q, 4)
            for y in qreads: A(y)
            A(f"s_waitcnt lgkmcnt(0)\n{LQ}:")
            x["after"] = x["after"] + ["s_mov_b64 exec, 1", f"ds_add_u32 {bq}, {oq} offset:{C_G2-CNT}", "s_mov_b64 exec, -1"]
        if x["m"]: A(x["m"])
        for y in x["after"]:
            if isinstance(y, tuple): A(tile_loads(y[0] & 3, TB+y[0])[y[1]]); issued.append(y)
            else: A(y)
        nx = slots[p_+1]["need"] if p_ + 1 < len(slots) else None
        late = bool(nx) and x["step"] < 6
        def wait():
            nonlocal landed
            if nx and max(issued.index(z) for z in nx) > landed:
                landed = max(issued.index(z) for z in nx); A(f"s_waitcnt vmcnt({len(issued)-1-landed})")
        if not late: wait()
        for r in x["exps"]: A(f"v_exp_f32 v{r}, v{r}")
        if late: wait()
    for x in tailw[:2]: A(x)
    A(pv(63, 1))
    for x in tailw[2:]: A(x)
    stamp(9)
    A("s_setprio 3")
    LMD = A.lab("merged")
    if spec: A(f"s_waitcnt lgkmcnt({0 if STAMPS else 12})\nv_readfirstlane_b32 s60, v13\ns_cmp_ge_u32 s60, 4\ns_cbranch_scc1 {LMD}")
    if tailw: lds_sync(C_MERGE, 4)
    else: lds_wait(C_MERGE, 4)
    for x in mreads: A(x)
    A(f"{LMD}:\ns_waitcnt lgkmcnt(4)")
    for i in list(range(14, -2, -2)): A(f"v_pk_add_f32 {vr(O+i,2)}, {vr(O+i,2)}, {vr(O+16+i,2)}")
    A("s_waitcnt lgkmcnt(0)")
    for i in list(range(14, -2, -2)): A(f"v_pk_add_f32 {vr(O+i,2)}, {vr(O+i,2)}, {vr(O+32+i,2)}")
    for i in list(range(14, -2, -2)): A(f"v_pk_add_f32 {vr(OK+i,2)}, {vr(OK+i,2)}, {vr(O+i,2)}")
    A("; run-time check of the softmax shift: row sums outside [2^-40, 2^40] (or NaN) take the true-max path")
    A(f"""v_cmp_nle_f32 vcc, {f32(2.0**-40)}, v{OK+14}
s_mov_b64 s[48:49], vcc
v_cmp_nge_f32 vcc, {f32(2.0**40)}, v{OK+14}
s_or_b64 vcc, vcc, s[48:49]
s_cbranch_vccnz {LFB}
{LN}:
v_rcp_f32 v10, v{OK+14}
v_mov_b32 v{S+7}, 0
v_mov_b32 v11, v10""")
    for i in range(0, 14, 2):
        A(f"v_pk_mul_f32 {vr(OK+i,2)}, {vr(OK+i,2)}, v[10:11]")
        A(f"v_cvt_pk_bf16_f32 v{S+i//2}, v{OK+i}, v{OK+i+1}")
        if i == 6: A(f"buffer_store_dwordx4 {vr(S,4)}, v6, {W}, s26 offen {SC}")
    A(f"buffer_store_dwordx4 {vr(S+4,4)}, v6, {W}, s26 offen offset:1024 {SC}")
    stamp(10)
    if OPT["gp"] == 0: lds_add(C_GO)
    A("; ---- B3: wo fragments go to registers while the O stores drain ----")
    WF = 112; BACC = 16; OB = 64; NB = 6
    assert WO == 0 and OST == 0
    K28 = OPT["k28"]
    def wo_frags(half, n0=0, n1=16):
        cnt = 0
        for n in range(n0, n1):
            hd, i = n >> 1, n & 1
            if K28 and i and hd & 3 == 3: continue
            b = WF + 64*half + 4*n
            row = 28*hd + 16*i
            A(f"ds_read_b64_tr_b16 {vr(b,2)}, v{252+2*half} offset:{row*256}")
            if K28 and i: A(f"ds_read_b64_tr_b16 {vr(b+2,2)}, v{16+3*half+(hd&3)} offset:{28*hd*256}")
            else: A(f"ds_read_b64_tr_b16 {vr(b+2,2)}, v{(253 if i else 252)+2*half} offset:{(row+8)*256}")
            cnt += 1
            if cnt % 6 == 0: A("s_waitcnt lgkmcnt(2)")
    if K28:
        A("""v_bfe_u32 v9, v0, 2, 2
v_mul_u32_u24 v10, 320, v9
v_lshrrev_b32 v11, 5, v0
v_lshl_add_u32 v10, v11, 10, v10
v_xor_b32 v10, v252, v10        ; column byte
v_cmp_gt_u32 vcc, 2, v9
v_lshl_add_u32 v7, v11, 1, v9   ; 2h + rr
v_lshl_add_u32 v8, v11, 2, v9   ; 4h + rr
v_add_u32 v9, 24, v7""")
        for z, (src, c) in enumerate(((8, 84+16-2), (8, 56+18-2), (7, 28+24-2))):
            A(f"""v_add_u32 v11, {c}, v{src}
v_cndmask_b32 v11, v11, v9, vcc
v_and_b32 v14, 3, v11
v_lshlrev_b32 v14, 6, v14
v_lshl_or_b32 v11, v11, 8, v14
v_xor_b32 v{16+z}, v10, v11
v_add_u32 v{19+z}, {224*256}, v{16+z}""")
    for i in range(4): A(f"v_mov_b32 v{40+i}, s{TAG}")
    lds_wait(C_WOA, 4)
    wo_frags(0)
    if OPT["fo"] >= 3: lds_add(C_WOF)
    A("s_waitcnt lgkmcnt(2)")
    if OPT["fo"] == 2: wo_frags(1)
    poll = f"buffer_load_dword v14, v249, {W}, s52 offen {PM}"
    A(f"""{execmask(8*OPT["ro"])}
s_waitcnt vmcnt(0)
buffer_store_dwordx4 v[40:43], v251, {W}, s27 offen {FM}
s_mov_b64 exec, -1""")
    if OPT["ts"] == 1: stamp(2)
    if OPT["gp"] == 1: lds_add(C_GO)
    if OPT["ap"]: A(poll)
    if OPT["fo"] == 4: wo_frags(1, 0, 8)
    if OPT["fo"] >= 3: lds_wait(C_WOF, 4)
    else:
        if OPT["fo"] != 2: wo_frags(1)
        lds_sync(C_WOF, 4)
    if OPT["ts"] == 1: stamp(3)
    def odma():
        for half in range(2):
            A(f"s_add_u32 m0, s44, {OST+4096*half}")
            for i in range(4):
                A(f"buffer_load_dwordx4 v6, {W}, s{47 if half else 45} offen offset:{1024*i} {SC} lds")
    def btsetup():
        if OPT["bt"]:
            A(f"""s_lshl_b32 s42, s40, 11
s_add_u32 s42, s42, 32768
v_and_b32 v9, 31, v0
v_lshrrev_b32 v10, 5, v0
v_bfe_u32 v11, v0, 1, 2
v_xor_b32 v10, v10, v11
v_lshlrev_b32 v10, 4, v10
v_lshl_or_b32 v1, v9, 6, v10
v_add_u32 v1, s42, v1
v_xor_b32 v2, 32, v1
v_bfe_u32 v9, v0, 3, 2
v_lshlrev_b32 v9, 4, v9
v_xor_b32 v3, v6, v9
v_add_u32 v3, s42, v3
v_lshrrev_b32 v9, 2, v0
v_mul_u32_u24 v9, 1792, v9
v_and_b32 v10, 3, v0
v_lshl_add_u32 v4, v10, 4, v9
s_add_u32 s42, s41, {16*1792}""")
    if not OPT["dyn"]:
        LR = A.lab("oready")
        if OPT["ap"]: A(f"s_waitcnt vmcnt(0)\nv_cmp_ne_u32 vcc, s{TAG}, v14\ns_cbranch_vccz {LR}")
        if OPT["ol"] == 1:
            acquire(R_KV, lambda: A(f"{poll}\ns_waitcnt vmcnt(0)\nv_cmp_ne_u32 vcc, s{TAG}, v14"), OPT["sl1"], 0)
        elif OPT["ol"] == 4:
            btsetup()
            LP_, LD_ = A.lab("op"), A.lab("opd")
            A(f"""s_mov_b32 s61, {SPIN}
s_mov_b32 s50, 15
{LP_}:
{poll}
s_sub_u32 s61, s61, 1
s_waitcnt vmcnt(0)
v_cmp_eq_u32 vcc, s{TAG}, v14
s_cmp_eq_u32 s61, 0
s_cselect_b32 s51, 15, vcc_lo
s_and_b32 s51, s51, s50
s_andn2_b32 s50, s50, s51""")
            for z in range(4):
                LN_ = A.lab("opn")
                A(f"""s_add_u32 m0, s44, {OST+4096*(z>>1)}
s_bitcmp0_b32 s51, {z}
s_cbranch_scc1 {LN_}
buffer_load_dwordx4 v6, {W}, s{47 if z>>1 else 45} offen offset:{2048*(z&1)} {SC} lds
buffer_load_dwordx4 v6, {W}, s{47 if z>>1 else 45} offen offset:{2048*(z&1)+1024} {SC} lds
{LN_}:""")
            A(f"s_cmp_lg_u32 s50, 0\ns_cbranch_scc1 {LP_}")
        else: spin(poll, 14, OPT["sl1"])
        if OPT["ol"] == 3: lds_sync(R_KV, 4)
        A(f"{LR}:")
        stamp(11)
        if OPT["ol"] != 4: odma(); btsetup()
        if OPT["fo"] == 3: wo_frags(1)
        if OPT["fo"] == 4: wo_frags(1, 8, 16)
        lds_sync(C_OST, 4, 0, "s_waitcnt vmcnt(0)")
        stampw(12)
        A(f"s_cmp_ge_u32 s53, 14\ns_cbranch_scc1 {END}")
        if K28:
            items = []
            for g4 in range(4):
                items.append((8*g4+7, -1))
                for n in range(8*g4, 8*g4+7): items.append((n, (n >> 1) & 3 if n & 1 else None))
            NBK = 8
            def buf(z): return (96 + 4*((items[z][0] >> 3) & 1)) if items[z][1] == -1 else OB + 4*(z % NBK)
            def rdk(z): A(f"ds_read_b128 {vr(buf(z),4)}, v6 offset:{1024*items[z][0]}")
            nrd = 6
            for z in range(nrd): rdk(z)
            first = True; waited = -1
            def ready(z):
                nonlocal waited
                if z > waited: A(f"s_waitcnt lgkmcnt({nrd-1-z})"); waited = z
                if items[z][1] is not None: A(f"v_mov_b32 v{buf(z)+3}, v{96 + 4*((items[z][0] >> 3) & 1) + items[z][1]}")
            ms = [z for z in range(32) if items[z][1] != -1]
            ready(ms[0])
            for k, z in enumerate(ms):
                A(f"{MFMA} {vr(BACC,16)}, {vr(WF+4*items[z][0],4)}, {vr(buf(z),4)}, {vr(BACC,16) if k else 0}")
                if k + 1 < len(ms): ready(ms[k+1])
                while nrd < 32 and nrd < z + 7: rdk(nrd); nrd += 1
        else:
            def rd(n): A(f"ds_read_b128 {vr(OB+4*(n%NB),4)}, v6 offset:{1024*n}")
            for n in range(NB-1): rd(n)
            for n in range(32):
                left = min(31, n+NB-2) - n
                A(f"s_waitcnt lgkmcnt({left})\n{MFMA} {vr(BACC,16)}, {vr(WF+4*n,4)}, {vr(OB+4*(n%NB),4)}, {vr(BACC,16) if n else 0}")
                if n + NB - 1 < 32: rd(n + NB - 1)
    else:
        LL, LM, LNONE, LC, LX = A.lab("b3l"), A.lab("b3m"), A.lab("b3n"), A.lab("b3c"), A.lab("b3x")
        LG = [A.lab("b3g") for _ in range(4)]
        GA = (16, 32, 48, 96) if OPT["dyn"] == 1 else (16, 16, 16, 16)
        btsetup()
        if OPT["dyn"] == 2:
            for i in range(16): A(f"v_mov_b32 v{16+i}, 0")
        A(f"""v_mov_b32 v12, {C_OST}
s_lshl_b32 s54, 1, s40
v_mov_b32 v10, s54
s_mov_b32 s50, 0
s_cmp_ge_u32 s53, 14
s_cselect_b32 s51, 15, 0
s_mov_b32 s61, {SPIN}
{LL}:
s_cmp_lg_u32 s50, 0
s_cbranch_scc1 {LM}
{poll}
{LM}:
ds_read_b32 v13, v12
s_waitcnt lgkmcnt(0)
v_readfirstlane_b32 s60, v13
s_andn2_b32 s60, s60, s51
s_cbranch_scc0 {LNONE}
s_ff1_i32_b32 s54, s60
s_bitset1_b32 s51, s54
s_cmp_eq_u32 s54, 1
s_cbranch_scc1 {LG[1]}
s_cmp_eq_u32 s54, 2
s_cbranch_scc1 {LG[2]}
s_cmp_eq_u32 s54, 3
s_cbranch_scc1 {LG[3]}""")
        for g in range(4):
            A(f"{LG[g]}:")
            for n in range(4): A(f"ds_read_b128 {vr(OB+4*n,4)}, v6 offset:{1024*(8*g+n)}")
            for n in range(8):
                left = min(7, n+3) - n
                c = vr(GA[g],16) if (n or OPT["dyn"] == 2) else 0
                A(f"s_waitcnt lgkmcnt({left})\n{MFMA} {vr(GA[g],16)}, {vr(WF+32*g+4*n,4)}, {vr(OB+4*n,4)}, {c}")
                if n + 4 < 8: A(f"ds_read_b128 {vr(OB+4*(n+4),4)}, v6 offset:{1024*(8*g+n+4)}")
            A(f"s_cmp_eq_u32 s51, 15\ns_cbranch_scc0 {LC}\ns_branch {LX}")
        A(f"""{LNONE}:
s_cmp_lg_u32 s50, 1
s_cbranch_scc1 {LC}
s_mov_b64 exec, 1
s_waitcnt vmcnt(0)
ds_or_b32 v12, v10
s_mov_b64 exec, -1
s_mov_b32 s50, 2
s_cmp_eq_u32 s51, 15
s_cbranch_scc1 {END}
s_branch {LM}
{LC}:
s_cmp_lg_u32 s50, 0
s_cbranch_scc1 {LM}
s_sub_u32 s61, s61, 1
s_waitcnt vmcnt(0)
v_cmp_ne_u32 vcc, s{TAG}, v14
s_cmp_eq_u32 s61, 0
s_cselect_b64 vcc, 0, vcc
s_cbranch_vccnz {LL}""")
        stamp(11)
        odma()
        A(f"s_mov_b32 s50, 1\ns_branch {LM}\n{LX}:\ns_nop 8")
        if OPT["dyn"] == 1:
            for i in range(0, 16, 2):
                A(f"v_pk_add_f32 {vr(16+i,2)}, {vr(16+i,2)}, {vr(32+i,2)}\nv_pk_add_f32 {vr(48+i,2)}, {vr(48+i,2)}, {vr(96+i,2)}")
            for i in range(0, 16, 2): A(f"v_pk_add_f32 {vr(16+i,2)}, {vr(16+i,2)}, {vr(48+i,2)}")
    if OPT["bt"]:
        for i in range(8):
            A(f"v_cvt_pk_bf16_f32 v{32+i}, v{BACC+2*i}, v{BACC+2*i+1}")
            if i == 3: A("ds_write_b128 v1, v[32:35]")
        A(f"""ds_write_b128 v2, v[36:39]
ds_read_b128 v[40:43], v3
ds_read_b128 v[44:47], v3 offset:1024
s_waitcnt lgkmcnt(1)
buffer_store_dwordx4 v[40:43], v4, {sr(SO,4)}, s41 offen {OBM}
s_waitcnt lgkmcnt(0)
buffer_store_dwordx4 v[44:47], v4, {sr(SO,4)}, s42 offen {OBM}
s_branch {END}""")
        return
    for i in range(8):
        A(f"v_cvt_pk_bf16_f32 v{32+i}, v{BACC+2*i}, v{BACC+2*i+1}")
        if i == 3: A(f"buffer_store_dwordx4 v[32:35], v250, {sr(SO,4)}, s41 offen {OBM}")
    A(f"""buffer_store_dwordx4 v[36:39], v250, {sr(SO,4)}, s41 offen offset:32 {OBM}
s_branch {END}""")

def helper():
    resident(None, None)
    A("; ==== helper waves: A2, staging of wo, A3 ====")
    SWO = 32
    def wo_run(upto):
        LW, LD = A.lab("wo"), A.lab("wod")
        A(f"""{LW}:
s_cmp_le_i32 s96, {upto}
s_cbranch_scc1 {LD}
s_mov_b32 m0, s98
s_waitcnt vmcnt({-OPT["wos"]})
buffer_load_dwordx4 v250, {sr(SWO,4)}, s97 offen lds
s_sub_u32 s98, s98, 4096
s_sub_u32 s97, s97, {16*896}
s_sub_u32 s96, s96, 1
s_branch {LW}
{LD}:""")
    T, AC2, WA, WB, Y = 16, 48, 64, 72, 80
    LNOA2, LNY2, LP2 = "L_noa2", A.lab("nyq"), A.lab("pub2")
    A(f"{HELP2}:")
    if OPT["x"] >= 4:
        lds_add(C_WOA); A(f"s_branch {END}")
    stamp(11)
    resident(253, 254)
    wsetup(True)
    A(f"""v_lshrrev_b32 v9, 4, v0
v_and_b32 v8, 15, v0
v_lshlrev_b32 v10, 2, v9
v_xor_b32 v8, v8, v10
v_lshlrev_b32 v8, 4, v8
v_mul_u32_u24 v9, 896, v9
v_add_u32 v250, v8, v9
v_mul_u32_u24 v252, {T2_Q}, v15
v_lshl_add_u32 v251, v14, 4, v252 ; T2 offset (A3)
v_add_u32 v252, {224*16}, v252  ; Nyquist column
s_cmp_eq_u32 s40, 3
s_cselect_b32 s42, 0, {16*1024}
v_mul_u32_u24 v255, s42, v15
v_lshl_add_u32 v255, v14, 7, v255
s_lshl_b32 s42, s40, 12
v_add_u32 v255, s42, v255       ; flags of the A2 units behind this wave's k tiles""")
    A(f"""s_lshr_b32 s5, s2, 3
v_lshrrev_b32 v8, 3, v0         ; LDS row (mod 8) = 2*p + h
v_and_b32 v9, 4, v8
v_bfe_u32 v10, v8, 1, 1
v_or_b32 v9, v9, v10
v_and_b32 v8, 1, v8
v_lshl_or_b32 v9, v8, 1, v9     ; s2 mod 8 = 4*(p>>1) + 2h + (p&1)
v_mul_u32_u24 v1, {T_ROW}, v9
v_bfe_u32 v8, v0, 2, 1
v_lshl_add_u32 v1, v8, 9, v1
v_and_b32 v8, 3, v0
v_lshl_add_u32 v1, v8, 4, v1    ; T offset
s_lshl_b32 s41, s5, 10
s_lshl_b32 s42, s4, 6
s_add_u32 s41, s41, s42
s_add_u32 s41, s41, {T_OFF}
s_mul_i32 s42, s40, {16*T_ROW}
s_add_u32 s41, s41, s42
s_mul_i32 s44, s5, 43
s_lshr_b32 s44, s44, 8          ; g5
s_lshl_b32 s45, s44, 11
s_and_b32 s46, s2, {OPT["r1"]-1}
s_lshl_b32 s46, s46, 15
s_add_u32 s46, s46, {F1_OFF + 11*2048}
v_and_b32 v9, 15, v0
v_lshlrev_b32 v9, 7, v9
v_add_u32 v9, s45, v9
s_lshl_b32 s43, s40, 11
s_add_u32 m0, s43, {TX}
s_add_u32 s47, s41, {8*T_ROW - 1024}
s_nop 0""")
    A(f"""v_lshlrev_b32 v4, 4, v0
s_cmp_eq_u32 s5, 28             ; Nyquist unit: filter times i, i.e. (re,im) = (-w_i, w_r)
s_cselect_b32 s45, 14, 0
{"v_and_b32 v8, 3, v14" if OPT["ln"] else "v_lshrrev_b32 v8, 3, v14"}        ; u1 local
{"v_lshrrev_b32 v7, 2, v14" if OPT["ln"] else "v_and_b32 v7, 7, v14"}            ; k local
v_lshl_add_u32 v2, v15, 3, v8
v_lshlrev_b32 v2, 4, v2
v_lshl_add_u32 v2, v7, 1, v2
s_add_u32 s42, s43, s45
s_add_u32 s42, s42, {WX}
v_add_u32 v2, s42, v2
v_mul_u32_u24 v3, {2*T2_ROW}, v15
v_lshl_add_u32 v3, v7, 4, v3
v_lshl_add_u32 v3, v8, 2, v3    ; T2 offset
v_lshrrev_b32 v5, 2, v7
v_lshl_add_u32 v5, v15, 1, v5
v_lshl_add_u32 v5, v5, 2, v8
v_and_b32 v10, 3, v7
v_lshl_add_u32 v5, v5, 2, v10
v_lshlrev_b32 v5, 2, v5
v_add_u32 v5, {TX}, v5
v_add_u32 v8, {EX}, v4
v_add_u32 v7, s43, v8
s_mul_i32 s53, s40, {16*T2_ROW}
s_mul_i32 s42, s4, {T2_Q}
s_add_u32 s53, s53, s42
s_lshl_b32 s42, s5, 7
s_add_u32 s53, s53, s42
s_add_u32 s53, s53, {T2_OFF}""")
    if OPT["tw2"]:
        A(f"""v_lshlrev_b32 v3, 2, v14
v_lshl_add_u32 v3, v15, 8, v3
s_add_u32 s42, s43, {WX}
v_add_u32 v3, s42, v3
v_add_u32 v6, 1024, v3
v_lshrrev_b32 v88, 3, v0
v_mul_u32_u24 v88, {T2_ROW}, v88
v_and_b32 v10, 7, v0
v_lshl_add_u32 v88, v10, 4, v88""")
    for i in range(16): A(f"v_mov_b32 v{WA+i}, 0")
    if OPT["wg"]:
        L1, L2, L3 = A.lab("tw"), A.lab("tw"), A.lab("tw")
        srd(32, P_WR, W_BYTES)
        A(f"""s_lshr_b32 s42, s2, 3
s_mul_i32 s48, s42, {64*450}
s_mul_i32 s49, s4, {4*450}
s_add_u32 s48, s48, s49
s_and_b32 s48, s48, 0xffffff80
v_bfe_u32 v249, v0, 4, 1
v_mul_u32_u24 v249, {32*450}, v249
v_and_b32 v10, 15, v0
v_lshl_add_u32 v249, v10, 7, v249
s_cmp_eq_u32 s40, 0
s_cbranch_scc1 {L1}""")
        srd(32, P_WI, W_BYTES)
        A(f"s_cmp_eq_u32 s40, 1\ns_cbranch_scc1 {L1}")
        srd(32, P_WO, WO_BYTES)
        A(f"""s_lshl_b32 s48, s42, 1
s_add_u32 s48, s48, s40
s_sub_u32 s48, s48, 2
s_mul_i32 s48, s48, {7*896}
s_and_b32 s49, s2, 1
s_lshl_b32 s49, s49, 9
s_add_u32 s48, s48, s49
v_bfe_u32 v249, v0, 2, 3
v_mul_u32_u24 v249, 896, v249
v_and_b32 v10, 3, v0
v_lshl_add_u32 v249, v10, 7, v249
{L1}:""")
        lds_wait(C_H if OPT["g3"] else C_G2, 4, 2)
        def tlate():
            LT_ = A.lab("tl")
            A(f"s_cmp_lt_u32 s7, 11\ns_cbranch_scc1 {LT_}")
            for x in TST: A(x)
            publish(C_P1, 26, OPT["r1"], 32768)
            stamp(5)
            A(f"{LT_}:")
        if OPT["tl"] == 1: tlate()
        if not OPT["y"] & 2 and not OPT["lt"]: A("s_mov_b32 exec_hi, 0\nbuffer_load_dword v89, v249, s[32:35], s48 offen\ns_mov_b64 exec, -1")
        if OPT["tl"] == 2: tlate()
        if OPT["cl"]: A("s_lshl_b32 s42, s40, 13\nv_add_u32 v249, s42, v4")
    if OPT["cl"]:
        LC_ = A.lab("noc")
        A(f"s_cmp_lt_u32 s7, 11\ns_cbranch_scc1 {LC_}")
        for f in range(8): A(f"ds_read_b128 {vr(C+4*f,4)}, v249 offset:{CX+1024*f}")
        A(f"{LC_}:")
    srd(SWO, P_WO, WO_BYTES)
    A(f"""s_and_b32 s97, s2, 1
s_lshl_b32 s97, s97, 1
s_bfe_u32 s98, s2, 0x10003
s_or_b32 s97, s97, s98
s_lshl_b32 s97, s97, 8
s_mul_i32 s98, s40, {4*896}
s_add_u32 s97, s97, s98
s_add_u32 s97, s97, {27*16*896}
s_lshl_b32 s98, s40, 10
s_add_u32 s98, s98, {27*4096}
s_mov_b32 s96, {0 if OPT["y"] & 1 else 28}
s_waitcnt vmcnt(0) lgkmcnt(0)""")
    A(f"s_cmp_ge_u32 s5, 29\ns_cbranch_scc1 {LNOA2}")
    if OPT["y"] & 4: A(f"s_branch {LNOA2}")
    if OPT["wg"] and not OPT["y"] & 2 and not OPT["wo2"]:
        A(f"s_add_u32 m0, s43, {WX}\ns_nop 0\nbuffer_load_dwordx4 v248, {sr(SX,4)}, s55 offen lds")
        if OPT["w1"]: wo_run(28 - OPT["w1"])
        else: A("s_waitcnt vmcnt(0)")
        A(f"s_add_u32 m0, s43, {WX+1024}\ns_nop 0\nbuffer_load_dwordx4 v248, s[56:59], s55 offen lds")
        if OPT["w1"]: wo_run(28 - 2*OPT["w1"])
        if not OPT["pb"]: A("s_waitcnt vmcnt(0)")
    def a1poll():
        A(f"""buffer_load_dword v10, v9, {W}, s46 offen {PM}
s_waitcnt vmcnt(0)
v_cmp_ne_u32 vcc, s{TAG}, v10""")
    if OPT["ad1"]: spin(f"buffer_load_dword v10, v9, {W}, s46 offen {PM}", 10, OPT["sl2"])
    else: acquire(R_A1, a1poll, OPT["sl2"], OPT["hs"])
    if OPT["pb"]: A("s_waitcnt vmcnt(0)")
    stamp(6)
    abl0 = len(A.ins)
    A(f"""s_add_u32 m0, s43, {TX}
s_setprio {OPT["hp"]}
buffer_load_dwordx4 v1, {W}, s41 offen {SC} lds
buffer_load_dwordx4 v1, {W}, s47 offen offset:1024 {SC} lds
s_nop 0""")

    def wreads():
        for j in range(8):
            A(f"ds_read_u16_d16_hi v{WA+j}, v2 offset:{(4*(j>>1)+(j&1))*64}")
        A("s_waitcnt lgkmcnt(4)")
        for j in range(8):
            A(f"ds_read_u16_d16_hi v{WB+j}, v2 offset:{(4*(j>>1)+(j&1))*64+1024}")
        A(f"s_waitcnt lgkmcnt(0)\ns_cmp_lg_u32 s5, 28\ns_cbranch_scc1 {LNY2}")
        for j in range(8): A(f"v_xor_b32 v{WA+j}, 0x80000000, v{WA+j}")
        A(f"{LNY2}:")
    if OPT["wo2"]:
        A(f"s_add_u32 m0, s43, {WX}\ns_nop 0\nbuffer_load_dwordx4 v248, {sr(SX,4)}, s55 offen lds")
    else: wreads()
    A("s_waitcnt vmcnt(0)")
    if OPT["wo2"]: A(f"s_add_u32 m0, s43, {WX+1024}\ns_nop 0\nbuffer_load_dwordx4 v248, s[56:59], s55 offen lds")
    lds_sync(C_T, 4, OPT["hs"])
    if OPT["w2"] and not OPT["wo2"]: wo_run(max(16, 28 - 2*OPT["w1"] - OPT["w2"]))
    for m in range(0, 28, 2): A(f"ds_read2st64_b32 {vr(T+m,2)}, v5 offset0:{m} offset1:{m+1}")
    for f in range(8):
        if f == 1:
            for m in range(28, 32, 2): A(f"ds_read2st64_b32 {vr(T+m,2)}, v5 offset0:{m} offset1:{m+1}")
        A(f"s_waitcnt lgkmcnt({12 if f == 0 else 14-2*f})\n{MFMA} {vr(AC2,16)}, {vr(C+4*f,4)}, {vr(T+4*f,4)}, {vr(AC2,16) if f else 0}")
    if OPT["wo2"]:
        A("s_waitcnt vmcnt(0)")
        if OPT["w2"]: wo_run(28 - OPT["w2"])
        wreads()
    for j in range(8):
        xr, xi = AC2+2*j, AC2+2*j+1
        A(f"""v_mul_f32 v10, v{xr}, v{WA+j}
v_mul_f32 v11, v{xr}, v{WB+j}
v_fma_f32 v10, -v{xi}, v{WB+j}, v10
v_fmac_f32 v11, v{xi}, v{WA+j}
v_cvt_pk_bf16_f32 v{Y+j}, v11, v10""")
        if j == 3: A(f"ds_write_b128 v7, {vr(Y,4)}")
    A(f"ds_write_b128 v7, {vr(Y+4,4)} offset:1024")
    lds_sync(C_EX, 4, OPT["hs"])
    if OPT["w2"]: wo_run(max(16, 28 - 2*OPT["w1"] - 2*OPT["w2"]))
    for f in range(8): A(f"ds_read_b128 {vr(T+4*f,4)}, v8 offset:{1024*f}")
    for f in range(8):
        A(f"s_waitcnt lgkmcnt({7-f})\n{MFMA} {vr(AC2,16)}, {vr(C+4*f,4)}, {vr(T+4*f,4)}, {vr(AC2,16) if f else 0}")
    if OPT["tw2"]:
        for j in range(8):
            A(f"v_cvt_pk_bf16_f32 v{Y+j}, v{AC2+2*j+1}, v{AC2+2*j}")
            if j & 1: A(f"ds_write2_b32 v3, v{Y+j-1}, v{Y+j} offset0:{128*((j>>1)&1)} offset1:{128*((j>>1)&1)+32}" if j < 4 else
                        f"ds_write2_b32 v6, v{Y+j-1}, v{Y+j} offset0:{128*((j>>1)&1)} offset1:{128*((j>>1)&1)+32}")
        A(f"""ds_read_b128 {vr(T,4)}, v7 offset:{WX-EX}
ds_read_b128 {vr(T+4,4)}, v7 offset:{WX-EX+1024}
s_add_u32 s43, s53, {8*T2_ROW}
s_waitcnt lgkmcnt(1)
buffer_store_dwordx4 {vr(T,4)}, v88, {W}, s53 offen {SC}
s_waitcnt lgkmcnt(0)
buffer_store_dwordx4 {vr(T+4,4)}, v88, {W}, s43 offen {SC}""")
    else:
        for j in range(8):
            A(f"""v_cvt_pk_bf16_f32 v{Y+j}, v{AC2+2*j+1}, v{AC2+2*j}
s_add_u32 s43, s53, {(4*(j>>1)+(j&1))*T2_ROW}
buffer_store_dword v{Y+j}, v3, {W}, s43 offen {SC}""")
    if OPT["ab"]:
        def drop(i):
            b = OPT["ab"]
            return ((b & 1 and i.mfma) or (b & 2 and i.valu and i.mn != "v_readfirstlane_b32") or
                    (b & 4 and i.mn in ("ds_read2st64_b32", "ds_read_b128", "ds_read_u16_d16_hi", "ds_write_b128")) or
                    (b & 8 and i.mn == "buffer_store_dword"))
        A.ins[abl0:] = [i for i in A.ins[abl0:] if not drop(i)]
    stamp(7)
    A("s_setprio 2")
    arrive(C_A2, LP2)
    A(f"s_lshl_b32 s41, s2, 7\ns_add_u32 s41, s41, {F2_OFF}")
    flagstore("s41", 8, 32768)
    A(f"{LP2}:")
    lds_wait(C_A2, 4, 4)
    A(f"{LNOA2}:")
    if OPT["g3"]: lds_wait(C_G2, 4, 2)
    wo_run(0)
    A("s_waitcnt vmcnt(0)")
    lds_add(C_WOA)
    stamp(12)
    A("; ---- A3 ----")
    TA, NY, AC3, ZB, AC4 = 16, 48, 64, 16, 112
    assert OPT["kn"]
    A(f"""s_mul_i32 s41, s50, {T2_ROW}
s_add_u32 s41, s41, {T2_OFF}
s_lshl_b32 s42, s40, 9
s_add_u32 s42, s42, s41
s_and_b32 s46, s2, 7
s_lshl_b32 s46, s46, 15
s_add_u32 s46, s46, {F2_OFF}
s_add_u32 s47, s46, {28*1024}""")
    srd(SO, P_OUT, OUT_BYTES)
    if OPT["y"] & 8: A(f"s_branch {END}")
    if not OPT["y"] & 4: spin(f"buffer_load_dword v10, v255, {W}, s46 offen {PM}", 10, OPT["sl3"])
    stamp(8)
    LA, LB = A.lab("a3l"), A.lab("a3l")
    for f in range(4):
        A(f"s_add_u32 s43, s42, {2*f*T2_Q}\nbuffer_load_dwordx4 {vr(TA+4*f,4)}, v251, {W}, s43 offen {SC}\n{'s_waitcnt vmcnt(%d)' % OPT['t2p'] if OPT['t2p'] >= 0 else ''}")
    A(f"s_cmp_eq_u32 s40, 3\ns_cbranch_scc1 {LA}")
    for f in range(4):
        A(f"s_add_u32 s43, s42, {2*f*T2_Q + 2048}\nbuffer_load_dwordx4 {vr(TA+16+4*f,4)}, v251, {W}, s43 offen {SC}\n{'s_waitcnt vmcnt(%d)' % OPT['t2p'] if OPT['t2p'] >= 0 else ''}")
    A(f"{LA}:\ns_cmp_lg_u32 s40, 0\ns_cbranch_scc1 {LB}")
    if not OPT["y"] & 4: spin(f"buffer_load_dword v10, v255, {W}, s47 offen {PM}", 10, OPT["sl3"], "s_mov_b64 exec, 0xff")
    for f in range(4):
        A(f"s_add_u32 s43, s41, {2*f*T2_Q}\nbuffer_load_dwordx4 {vr(NY+4*f,4)}, v252, {W}, s43 offen {SC}")
    A(f"{LB}:")
    if OPT["ze"]: lds_wait(C_MERGE, OPT["ze"], OPT["slg"])
    else: lds_wait(C_GO if OPT["gp"] < 2 else C_WOF, 4, OPT["slg"])
    A("s_setprio 0")
    if OPT["x"] not in (2, 3): stamp(10)
    LN3, LZ = A.lab("a3ny"), A.lab("a3z")
    A("s_waitcnt vmcnt(0)")
    setup = f"""v_lshlrev_b32 v5, 4, v0
s_lshl_b32 s43, s40, 11
s_add_u32 s43, s43, {ZOFF}
v_add_u32 v6, s43, v5
s_mul_i32 s43, s52, 14336
s_add_u32 s43, s43, {ZOFF}
v_add_u32 v5, s43, v5
s_lshr_b32 s46, s40, 1
s_lshl_b32 s46, s46, 3
v_add_u32 v7, s46, v15          ; 8p + h
v_and_b32 v9, 7, v14
v_xor_b32 v7, v7, v9
v_lshlrev_b32 v7, 4, v7
v_lshl_or_b32 v7, v14, 8, v7
s_lshl_b32 s46, s52, 13
s_add_u32 s46, s46, {YOFF}
v_add_u32 v7, s46, v7           ; Y write address
v_lshrrev_b32 v8, 3, v0
s_lshl_b32 s46, s40, 3
v_add_u32 v8, s46, v8           ; row (s1)
v_and_b32 v9, 7, v0             ; piece
v_lshlrev_b32 v10, 1, v9
v_and_b32 v11, 7, v8
v_xor_b32 v10, v10, v11
v_lshlrev_b32 v10, 4, v10
v_lshl_or_b32 v10, v8, 8, v10
v_add_u32 v10, {YOFF}, v10
v_xor_b32 v11, 16, v10
v_mul_u32_u24 v8, {64*1792}, v8
v_lshl_add_u32 v8, v9, 4, v8    ; out offset
s_mul_i32 s41, s50, 1792
s_lshl_b32 s42, s51, 7
s_add_u32 s41, s41, s42""".split("\n")
    for tt in range(2):
        for f in range(4):
            A(f"{MFMA} {vr(AC3+32*tt,16)}, {vr(TA+16*tt+4*f,4)}, {vr(ER+4*f,4)}, {vr(AC3+32*tt,16) if f else 0}")
            for _ in range(5):
                if setup: A(setup.pop(0))
    assert not setup
    A(f"s_cmp_eq_u32 s51, 3\ns_cselect_b32 s42, 4, 8\nv_cmp_gt_u32 s[48:49], s42, v9")
    A(f"s_cmp_lg_u32 s40, 0\ns_cbranch_scc1 {LN3}\ns_mov_b32 exec_lo, 1\ns_mov_b32 exec_hi, 1")
    for i in range(16): A(f"v_mov_b32 v{TA+i}, v{NY+i}")
    A(f"s_mov_b64 exec, -1\n{LN3}:\ns_nop 1")
    ZD = (NY, TA, NY+8, TA+8)
    def zcvt(tt, part):
        a = AC3+32*tt+16*part
        if OPT["kn"]:
            d = ZD[2*tt+part]
            return [f"v_cvt_pk_bf16_f32 v{d+4*e+i}, v{a+4*i+e}, v{a+4*i+e+2}" for e in range(2) for i in range(4)]
        return [f"v_cvt_pk_bf16_f32 v{a+i}, v{a+2*i}, v{a+2*i+1}" for i in range(8)]
    def zwr(tt, part):
        a = AC3+32*tt+16*part
        if OPT["kn"]: a = ZD[2*tt+part]
        return [f"ds_write_b128 v6, {vr(a+4*p,4)} offset:{14336*p+8192*tt+1024*part}" for p in range(2)]
    if OPT["ze"]:
        pend = zcvt(0, 0) + zcvt(1, 0)
        for tt in range(2):
            for f in range(4):
                A(f"{MFMA} {vr(AC3+32*tt+16,16)}, {vr(TA+16*tt+4*f,4)}, {vr(EI+4*f,4)}, {vr(AC3+32*tt+16,16) if f else 0}")
                for _ in range(3):
                    if pend: A(pend.pop(0))
        for x in pend + zcvt(0, 1) + zcvt(1, 1): A(x)
        lds_wait(C_GO, 4, 1)
        for x in zwr(0, 0) + zwr(0, 1): A(x)
        A(f"s_cmp_eq_u32 s40, 3\ns_cbranch_scc1 {LZ}")
        for x in zwr(1, 0) + zwr(1, 1): A(x)
    else:
        pend = zcvt(0, 0) + zwr(0, 0)
        for tt in range(2):
            for f in range(4):
                A(f"{MFMA} {vr(AC3+32*tt+16,16)}, {vr(TA+16*tt+4*f,4)}, {vr(EI+4*f,4)}, {vr(AC3+32*tt+16,16) if f else 0}")
                for _ in range(3):
                    if pend: A(pend.pop(0))
        for x in pend + zcvt(0, 1) + zwr(0, 1): A(x)
        A(f"s_cmp_eq_u32 s40, 3\ns_cbranch_scc1 {LZ}")
        for x in zcvt(1, 0) + zwr(1, 0) + zcvt(1, 1) + zwr(1, 1): A(x)
    A(f"{LZ}:")
    lds_sync(C_Z, 4, OPT["zs"])
    LEP = A.lab("ep")
    assert EPOCH_OFF == 0
    A(f"s_add_u32 s42, s2, s3\ns_cmp_lg_u32 s42, 0\ns_cbranch_scc1 {LEP}")
    flagstore("0", 1, 0, 72)
    A(f"{LEP}:")
    for i in range(14): A(f"ds_read_b128 {vr(ZB+4*i,4)}, v5 offset:{1024*i}")
    for i in range(14):
        A(f"s_waitcnt lgkmcnt({13-i})\n{MFMA} {vr(AC4,16)}, {vr(G+4*i,4)}, {vr(ZB+4*i,4)}, {vr(AC4,16) if i else 0}")
    for g in range(4):
        A(f"v_xor_b32 v9, {32*g}, v7\nds_write_b128 v9, {vr(AC4+4*g,4)}")
    lds_sync(C_Y, 4, OPT["zs"])
    A(f"""ds_read_b128 v[16:19], v10
ds_read_b128 v[20:23], v11
ds_read_b128 v[24:27], v10 offset:8192
ds_read_b128 v[28:31], v11 offset:8192
s_waitcnt lgkmcnt(0)""")
    for i in range(8): A(f"v_add_f32 v{32+i}, v{16+i}, v{24+i}\nv_sub_f32 v{40+i}, v{16+i}, v{24+i}")
    for i in range(8): A(f"v_cvt_pk_bf16_f32 v{48+i}, v{32+2*i}, v{33+2*i}")
    if OPT["so"]: lds_wait(C_OST, OPT["so"], 1)
    A(f"""s_mov_b64 exec, s[48:49]
buffer_store_dwordx4 v[48:51], v8, {sr(SO,4)}, s41 offen {OA}
buffer_store_dwordx4 v[52:55], v8, {sr(SO,4)}, s41 offen offset:448 {OA}
s_mov_b64 exec, -1
s_branch {END}""")

def fallback():
    A("; ==== softmax fallback: true row maximum, then the exact recomputation ====")
    resident(None, None)
    L1, L2 = A.lab("fb1"), A.lab("fb2")
    tl = tile_loads(0, 43)
    A(f"""{LFB}:
v_mov_b32_dpp v{Q+24+6}, v7 {HI}
v_mov_b32 v12, 0xff800000
s_mov_b32 s43, {KV_OFF}
{L1}:
{tl[0]}
{tl[1]}
s_waitcnt vmcnt(0)
{MFMA} {vr(S,16)}, {vr(kb(0,0),4)}, {q(3,0)}, 0
{MFMA} {vr(S,16)}, {vr(kb(0,1),4)}, {q(3,1)}, {vr(S,16)}""")
    for i in range(0, 16, 2): A(f"v_max3_f32 v12, v12, v{S+i}, v{S+i+1}")
    A(f"""s_add_u32 s43, s43, {KV_REC}
s_cmp_lt_u32 s43, {KV_OFF+64*KV_REC}
s_cbranch_scc1 {L1}
v_mov_b32 v13, v12
v_mov_b32 v14, v12
v_permlane32_swap_b32 v13, v14
v_max_f32 v12, v13, v14""")
    for i in range(16): A(f"v_mov_b32 v{OK+i}, 0")
    A(f"s_mov_b32 s43, {KV_OFF}\n{L2}:")
    for x in tl: A(x)
    A(f"""s_waitcnt vmcnt(0)
{MFMA} {vr(S,16)}, {vr(kb(0,0),4)}, {q(3,0)}, 0
{MFMA} {vr(S,16)}, {vr(kb(0,1),4)}, {q(3,1)}, {vr(S,16)}""")
    for i in range(16): A(f"v_sub_f32 v{S+i}, v{S+i}, v12")
    for i in range(16): A(f"v_exp_f32 v{S+i}, v{S+i}")
    A(f"""{SMF} {vr(OK,16)}, {vr(kb(0,2),4)}, {vr(S,8)}, v5
{SMF} {vr(OK,16)}, {vr(kb(0,3),4)}, {vr(S+8,8)}, v5
s_nop 15
s_add_u32 s43, s43, {KV_REC}
s_cmp_lt_u32 s43, {KV_OFF+64*KV_REC}
s_cbranch_scc1 {L2}
s_branch {LN}""")

def finish():
    A(f"{END}:")
    if OPT["probe"]:
        LQ = A.lab("probe")
        stamp(13)
        A(f"""s_cmp_lg_u32 s2, {OPT["pwg"]}
s_cbranch_scc1 {FIN}
s_cmp_lg_u32 s3, {OPT["pwave"]}
s_cbranch_scc1 {FIN}
s_waitcnt lgkmcnt(0)
s_sub_u32 s56, s{64+2*OPT["probe"]}, s66
s_mul_i32 s56, s56, 10
s_add_u32 s56, s56, s90
{LQ}:
s_memrealtime s[58:59]
s_waitcnt lgkmcnt(0)
s_sub_u32 s57, s58, s56
s_cmp_lt_i32 s57, 0
s_cbranch_scc1 {LQ}""")
    elif STAMPS:
        stamp(13)
        A(f"""s_waitcnt vmcnt(0)
s_memtime s[92:93]
s_memrealtime s[94:95]
s_waitcnt lgkmcnt(0)
{"s_getreg_b32 s64, hwreg(HW_REG_XCC_ID)" if STAMPS == 1 else ""}
{"s_getreg_b32 s92, hwreg(HW_REG_HW_ID)" if STAMPS == 1 else ""}
s_mov_b32 s56, s24
s_mov_b32 s57, s25
s_mov_b32 s58, 0x2000000
s_mov_b32 s59, 0x00020000
s_mov_b64 exec, 1
s_lshl_b32 s60, s2, 3
s_add_u32 s60, s60, s3
s_lshl_b32 s60, s60, 6
s_add_u32 s60, s60, {TS_OFF}
v_mov_b32 v1, 0""")
        for i in range(16):
            A(f"v_mov_b32 v2, s{64+2*i}\nbuffer_store_dword v2, v1, s[56:59], s60 offen offset:{4*i}")
    A(f"{FIN}:\ns_endpgm")

def b1c():
    resident(None, None)
    A("; ==== B1 compute waves ====")
    A(f"{LB1C}:\ns_setprio 2"); main_start()
    for i in range(64): A(f"v_mov_b32 v{ACC+i}, 0")
    A("s_waitcnt lgkmcnt(0)"); gettag()
    gen_pre(); b1_compute()
entry(); b1_loader()
if OPT["ord"] == 2: a1_dispatch_loader()
if OPT["ord"]: b1c()
if OPT["ord"] != 2: a1_dispatch_loader()
a1_gen(); a1_compute(); pub1(); helper()
if not OPT["ord"]: b1c()
attention(); fallback(); finish()


DOC = """; ---------------------------------------------------------------------------------------------------------
; One launch, 256 workgroups x 8 waves, one workgroup per CU (all co-resident; every global wait is bounded).
;
; Part B (attention):  B1 qkv = x @ wqkv (176 workgroups, 128x128 tiles, LDS-DMA ring)  ->  attention per
;   (head, 128 queries): each of 4 waves owns 512 keys, S^T = K Q^T by MFMA, P = exp2(S), O^T += V^T P by sparse
;   MFMA that reads the upper (bf16) half of the fp32 P registers; a row of ones behind V yields the row sums
;   ->  B3 out = O @ wo per (32 tokens, 128 columns).
;   Softmax guard: every row is shifted by its maximum over a sample of 16 real keys (subtracted inside the QK
;   MFMA through a spare contraction slot).  After the merge the row sum is range-checked (2^-40 .. 2^40, NaN
;   fails); a wave that finds an unsafe row recomputes its 32 rows with the true row maximum (L_fallback).
; Part A (GFNet): exact DFTs as MFMA products with generated twiddles, S = 2048 split as 32 x 64:
;   A1 rfft over D + 32-point stage over S (80 workgroups)  ->  A2 64-point stage, filter, inverse 64-point stage
; Hand-offs between workgroups: write-through (sc1) stores, s_waitcnt vmcnt(0), then a flag line holding this
;   launch's tag (= epoch word found in d_ws + constant; the epoch is advanced once every workgroup has read it),
;   consumers poll with sc1 loads and read the data with sc1 loads.  Workgroup ids are mapped for L2 locality
;   only; nothing depends on the placement.  Waves of one workgroup meet through counters in LDS.
; ---------------------------------------------------------------------------------------------------------
"""
HDR = open("cdna_kernels/%s.s.ref" % NAME).read().split("; Override")[0]
txt = HDR + f"; @launch grid=(256,1,1) block=(512,1,1) lds={LDS_BYTES}\n"
txt += DOC
txt += '.amdgcn_target "amdgcn-amd-amdhsa--gfx950"\n.text\n' + A.finish()
txt += f""".section .rodata,"a"
.p2align 6
.amdhsa_kernel {K}
  .amdhsa_next_free_vgpr 256
  .amdhsa_next_free_sgpr 102
  .amdhsa_accum_offset 256
  .amdhsa_group_segment_fixed_size 0
  .amdhsa_kernarg_size 72
  .amdhsa_user_sgpr_count 2
  .amdhsa_user_sgpr_kernarg_segment_ptr 1
  .amdhsa_system_sgpr_workgroup_id_x 1
.end_amdhsa_kernel
"""
out = args[0] if args else "cdna_kernels/%s.s" % NAME
open(out, "w").write(txt)
print("wrote", out, len(txt))
```

```python
import sys, struct
from emit import Asm
from layout import *
NAME = "concat_heads__spectral_gfnet__softmax_full_mha__prompt"
OPT = dict(stamps=0, r1=8, pf=1, sl1=1, sl2=8, sl3=16, rot=0, x=0, probe=0, pwave=4, pwg=100, pd=0, wos=-3, lp=13, slg=8, g2=1, ro=2, wm=1, tch=0, pda=0, oa=1, ob=1, gd=0, dyn=0, wsb=0, fl=1, pw=2, tw=0, sd=0, sp=0, td=0, ad=0, bn=0, gk=2, hp=2, hs=2, fo=1, ts=0, ap=0, pm=0, fm=0, al=0, pk=0, lg=2, hk=6, bp=0, ord=2, pfw=3, av=-1, rota=1, wa=0, ag=0, gdl=0, gl=1, wg=1, xt=1, map=1, y=0, ze=0, zs=0, pe=12, gp=0, bt=1, ln=1, kn=1, fs=1, pg=0, pa=0, pn=4, oe=1, vs=1, pvd=1, ad1=0, rt=3, le=1, sm=1, r4=1, w1=0, w2=4, wo2=0, ab=0, ft=1, g3=0, cl=0, km=0, xm=0, kr=0, bt2=1, bw=2, pb=1, k28=1, t2p=-1, tw2=1, so=4, tl=0, lt=0, la=0, wf=0, ol=0, b1x=0, tw3=0)
args = []
for a in sys.argv[1:]:
    if "=" in a: k, v = a.split("="); assert k in OPT, k; OPT[k] = int(v)
    else: args.append(a)
STAMPS = OPT["stamps"]
MODS = ['', 'sc1', 'nt', 'sc0 sc1']
OA, OBM = MODS[OPT['oa']], MODS[OPT['ob']]
def f32(x): return "0x%08x" % struct.unpack("<I", struct.pack("<f", x))[0]
def vr(a, n=1): return f"v{a}" if n == 1 else f"v[{a}:{a+n-1}]"
def sr(a, n=1): return f"s{a}" if n == 1 else f"s[{a}:{a+n-1}]"
P_AX, P_WR, P_WI, P_BX, P_WQKV, P_WO, P_OUT, P_DBG, P_WS = 8,10,12,14,16,18,20,22,24
MFMA = "v_mfma_f32_32x32x16_bf16"
SMF = "v_smfmac_f32_32x32x32_bf16"
SC = "sc1"
KM = ['sc1', '', 'nt', 'sc1 nt', 'sc0 sc1'][OPT['km']]
XM = ['', 'sc1', 'nt', 'sc1 nt'][OPT['xm']]
PM = ['sc1', 'sc0 sc1', 'sc1 nt', 'sc0 sc1 nt'][OPT['pm']]
FM = ['sc1', 'sc0 sc1', 'sc1 nt', 'sc0 sc1 nt'][OPT['fm']]
HI = "quad_perm:[0,1,2,3] row_mask:0xc bank_mask:0xf"
TAGC = 0x9E3779B9
TAG = 62
SWS = 36; W = sr(SWS,4)
SX, SW = 28, 32
SPIN = 200000
FOFF = 7*16384
WO, OST = 0, 0
QX, EX, TX, WX, CX = 0, 8192, 16384, 24576, 32768
MERGE = 114688
ZOFF, YOFF = MERGE, MERGE + 28672
CNT = 162816
LDS_BYTES = 163840
(C_P1, R_KV, C_MERGE, C_OST, R_A1, C_EX, C_A2, R_A2, C_Z, C_Y, C_WOA, C_WOF, C_GO, C_G2, C_Q, C_LF, C_T, C_W, C_X, C_H) = [CNT+16*i+12 for i in range(20)]

A = Asm()
LOCK = [False]
def stamp(i):
    if OPT["pwg"] < 0 and i != 13: return
    if OPT["ts"] == 3 and LOCK[0] and i in (10, 11, 12): return
    if OPT["ts"] == 4 and LOCK[0] and i in (4, 5, 6, 7, 8, 9): return
    if STAMPS: A(f"{'s_memtime' if STAMPS == 2 else 's_memrealtime'} s[{64+2*i}:{65+2*i}]")
def stampw(i):
    if STAMPS: stamp(i); A("s_waitcnt lgkmcnt(0)")
def srd(d, p, nbytes):
    A(f"s_mov_b32 s{d}, s{p}\ns_mov_b32 s{d+1}, s{p+1}\ns_mov_b32 s{d+2}, {nbytes}\ns_mov_b32 s{d+3}, 0x00020000")
def pi32(d, s, t):
    A(f"""v_and_b32 v{d}, 0x13, v{s}
v_and_b32 v{t}, 4, v{s}
v_lshl_or_b32 v{d}, v{t}, 1, v{d}
v_and_b32 v{t}, 8, v{s}
v_lshrrev_b32 v{t}, 1, v{t}
v_or_b32 v{d}, v{d}, v{t}""")
def mod7(d, t):
    A(f"s_mul_i32 s{t}, s{d}, 37\ns_lshr_b32 s{t}, s{t}, 8\ns_mul_i32 s{t}, s{t}, 7\ns_sub_u32 s{d}, s{d}, s{t}")
RB = [None]
def resident(b, o):
    RB[0] = (b, o) if b is not None else None
    if b is not None: A(f"v_mov_b32 v{b}, {CNT}\nv_mov_b32 v{o}, 1")
def cref(addr, setup=True, one=False):
    if RB[0]: return f"v{RB[0][0]}", f"v{RB[0][1]}", f" offset:{addr-CNT}"
    if setup: A(f"v_mov_b32 v12, {addr}")
    if one: A("v_mov_b32 v13, 1")
    return "v12", "v13", ""
def lds_add(addr):
    b, o, off = cref(addr, True, True)
    A(f"s_mov_b64 exec, 1\nds_add_u32 {b}, {o}{off}\ns_mov_b64 exec, -1")
def lds_wait(addr, target, sleep=0, setup=True):
    L, L2 = A.lab("lw"), A.lab("lwd")
    b, o, off = cref(addr, setup)
    A(f"""{L}:
ds_read_b32 v13, {b}{off}
s_waitcnt lgkmcnt(0)
v_readfirstlane_b32 s60, v13
s_cmp_ge_u32 s60, {target}""")
    if sleep: A(f"s_cbranch_scc1 {L2}\ns_sleep {sleep}\ns_branch {L}\n{L2}:")
    else: A(f"s_cbranch_scc0 {L}")
def lds_sync(addr, target, sleep=0, pre=None):
    L = A.lab("sy")
    b, o, off = cref(addr, True, True)
    A("s_mov_b64 exec, 1")
    if pre: A(pre)
    A(f"""ds_add_rtn_u32 v13, {b}, {o}{off}
s_mov_b64 exec, -1
s_waitcnt lgkmcnt(0)
v_readfirstlane_b32 s60, v13
s_cmp_eq_u32 s60, {target-1}
s_cbranch_scc1 {L}""")
    lds_wait(addr, target, sleep, False)
    A(f"{L}:")
def arrive(cnt, skip):
    b, o, off = cref(cnt, True, True)
    A(f"""s_mov_b64 exec, 1
s_waitcnt vmcnt(0)
ds_add_rtn_u32 v13, {b}, {o}{off}
s_mov_b64 exec, -1
s_waitcnt lgkmcnt(0)
v_readfirstlane_b32 s60, v13
s_cmp_lg_u32 s60, 3
s_cbranch_scc1 {skip}""")
def execmask(n): return f"s_bfm_b64 exec, {n}, 0"
def flagstore(soff, nrep, repstride, t=40, val=None):
    val = val or f"s{TAG}"
    if not OPT["fl"]:
        A(f"""v_mul_u32_u24 v12, {repstride}, v0
v_mov_b32 v13, {val}
s_mov_b64 exec, {(1<<nrep)-1}
buffer_store_dword v13, v12, {W}, {soff} offen {SC}
s_mov_b64 exec, -1""")
        return
    A(f"""v_lshrrev_b32 v12, 3, v0
v_mul_u32_u24 v12, {repstride}, v12
v_and_b32 v13, 7, v0
v_lshl_add_u32 v12, v13, 4, v12""")
    for i in range(4): A(f"v_mov_b32 v{t+i}, {val}")
    if nrep < 8: A(execmask(8*nrep))
    A(f"buffer_store_dwordx4 {vr(t,4)}, v12, {W}, {soff} offen {FM}")
    for _ in range(nrep//8 - 1): A(f"v_add_u32 v12, {8*repstride}, v12\nbuffer_store_dwordx4 {vr(t,4)}, v12, {W}, {soff} offen {FM}")
    if nrep < 8: A("s_mov_b64 exec, -1")
def publish(cnt, soff, nrep, repstride):
    L = A.lab("pub")
    if OPT["fl"]:
        A(f"v_lshrrev_b32 v10, 3, v0\nv_mul_u32_u24 v10, {repstride}, v10\nv_and_b32 v13, 7, v0\nv_lshl_add_u32 v10, v13, 4, v10")
        for i in range(4): A(f"v_mov_b32 v{36+i}, s{TAG}")
        arrive(cnt, L)
        if nrep < 8: A(execmask(8*nrep))
        A(f"buffer_store_dwordx4 v[36:39], v10, {W}, s{soff} offen {FM}")
        for _ in range(nrep//8 - 1): A(f"v_add_u32 v10, {8*repstride}, v10\nbuffer_store_dwordx4 v[36:39], v10, {W}, s{soff} offen {FM}")
        if nrep < 8: A("s_mov_b64 exec, -1")
    else:
        arrive(cnt, L); flagstore(f"s{soff}", nrep, repstride)
    lds_add(C_X); A(f"{L}:")
def acquire(rel, body, sleep, sleep2=1):
    LP, LD, LO, LE = A.lab("poll"), A.lab("pollok"), A.lab("pollw"), A.lab("polle")
    A(f"s_cmp_lg_u32 s40, 0\ns_cbranch_scc1 {LO}\ns_mov_b32 s61, {SPIN}\n{LP}:")
    body()
    A(f"""s_cbranch_vccz {LD}
s_sub_u32 s61, s61, 1
s_cmp_eq_u32 s61, 0
s_cbranch_scc1 {LD}
s_sleep {sleep}
s_branch {LP}
{LD}:""")
    lds_add(rel)
    A(f"s_branch {LE}\n{LO}:")
    lds_wait(rel, 1, sleep2)
    A(f"{LE}:")
def spin(load, reg, sleep, mask=None):
    if mask: load = f"{mask}\n{load}"
    LP, LD = A.lab("spin"), A.lab("spinok")
    A(f"""s_mov_b32 s61, {SPIN}
{LP}:
{load}
s_waitcnt vmcnt(0)
v_cmp_ne_u32 vcc, s{TAG}, v{reg}
s_cbranch_vccz {LD}
s_sub_u32 s61, s61, 1
s_cmp_eq_u32 s61, 0
s_cbranch_scc1 {LD}
s_sleep {sleep}
s_branch {LP}
{LD}:""")
    if mask: A("s_mov_b64 exec, -1")
def gettag():
    if OPT["wsb"]: A(f"s_add_u32 s24, s24, {OPT['wsb'] << 20}\ns_addc_u32 s25, s25, 0")
    A(f"s_load_dword s{TAG}, s[24:25], {EPOCH_OFF}")
    srd(SWS, P_WS, WS_USED)
def fixtag():
    A(f"s_waitcnt lgkmcnt(0)\ns_add_u32 s{TAG}, s{TAG}, {TAGC}")

FIN, END, ATT, PUB1, HELP2, GEN = "L_fin", "L_end", "L_att", "L_pub1", "L_help2", "L_gen"
LA1, LB1C, LB1G, LA1C, LV, LN, LFB = "L_a1", "L_b1c", "L_b1g", "L_a1c", "L_b1v", "L_norm", "L_fallback"
K = NAME + "_kernel"

def entry():
    A(f".globl {K}\n.p2align 8\n.type {K},@function\n{K}:")
    A(f"""s_cmp_ge_u32 s2, 256
s_cbranch_scc1 {FIN}
s_load_dwordx16 s[8:23], s[0:1], 0
s_load_dwordx2 s[24:25], s[0:1], 64
v_lshrrev_b32 v1, 6, v0
v_readfirstlane_b32 s3, v1
v_and_b32 v0, 63, v0""")
    if STAMPS:
        for i in range(2, 14): A(f"s_mov_b32 s{64+2*i}, 0")
        A("s_memtime s[64:65]\ns_memrealtime s[66:67]")
    if OPT["pf"]:
        L = A.lab("pf"); LP = A.lab("pc")
        A(f"""{"s_cmp_lg_u32 s3, 3" if OPT["pfw"] == 3 else "s_cmp_ge_u32 s3, %d" % OPT["pfw"]}
s_cbranch_scc1 {L}
s_getpc_b64 s[56:57]
{LP}:
s_lshr_b32 s58, s2, 3
s_add_u32 s58, s58, s3
s_and_b32 s58, s58, 3
s_lshl_b32 s58, s58, 13
v_lshlrev_b32 v1, 7, v0
v_add_u32 v1, s58, v1
v_min_u32 v1, {FIN}-{LP}, v1
global_load_dword v63, v1, s[56:57]
{L}:""")
    A(f"""s_and_b32 s4, s2, 7
s_lshr_b32 s5, s2, 3
s_lshl_b32 s6, s4, 1
s_and_b32 s7, s5, 1
s_or_b32 s6, s6, s7
s_lshr_b32 s7, s5, 1           ; column group 0..10 (B1), 11..15 (A1)
s_and_b32 s40, s3, 3
s_cmp_ge_u32 s7, 11
s_cbranch_scc1 {LA1}""")
    if OPT["map"] == 1:
        A("""s_and_b32 s26, s4, 1
s_mul_i32 s26, s26, 6
s_lshr_b32 s7, s5, 2
s_add_u32 s7, s7, s26
s_and_b32 s26, s6, 12
s_and_b32 s27, s5, 3
s_or_b32 s26, s26, s27
s_cmp_lt_u32 s5, 20
s_cselect_b32 s6, s26, s6
s_cselect_b32 s7, s7, 5""")
    if OPT["map"] == 2:
        A("""s_and_b32 s26, s4, 3
s_mul_i32 s26, s26, 22
s_add_u32 s26, s26, s5
s_lshr_b32 s7, s26, 3
s_and_b32 s26, s26, 7
s_and_b32 s6, s6, 8
s_or_b32 s6, s6, s26""")
    A(f"s_cmp_lt_u32 s3, 4\ns_cbranch_scc1 {LB1C}")

def xaddr(rs, d=2):
    A(f"""v_lshrrev_b32 v17, 3, v0
v_and_b32 v14, 7, v0
v_lshrrev_b32 v15, 4, v0
v_xor_b32 v14, v14, v15
v_lshlrev_b32 v14, 4, v14
v_xor_b32 v16, 64, v14
v_mul_u32_u24 v17, {rs}, v17
v_add_u32 v{d}, v17, v14
v_add_u32 v{d+1}, v17, v16
v_add_u32 v{d+1}, {8*rs-1024}, v{d+1}
v_add_u32 v{d+2}, {2*(8*rs-1024)}, v{d}
v_add_u32 v{d+3}, {2*(8*rs-1024)}, v{d+1}""")
def b1_loader():
    A("; ==== B1 loaders (waves 4-7): x and wqkv K-chunks into a 4-slot LDS ring ====")
    A("s_setprio 3")
    if OPT["rot"] == 2: A("s_mov_b32 s26, s7")
    elif OPT["rot"] == 3: A("s_and_b32 s26, s6, 1\ns_mul_i32 s26, s26, 3\ns_add_u32 s26, s26, s7")
    elif OPT["rot"] == 4: A("s_and_b32 s26, s6, 1\ns_mul_i32 s26, s26, 3")
    elif OPT["rot"] == 6: A("s_lshl_b32 s26, s6, 1\ns_add_u32 s26, s26, s7")
    elif OPT["rot"] == 7: A("s_mul_i32 s26, s7, 3\ns_add_u32 s26, s26, s6")
    elif OPT["rot"] == 5: A("s_lshr_b32 s26, s6, 1\ns_add_u32 s26, s26, s7")
    else: A("s_add_u32 s26, s6, s7")
    mod7(26, 27)
    if not OPT["rot"]: A("s_mov_b32 s26, 0")
    xaddr(896)
    A(f"""v_and_b32 v14, 15, v0
v_lshlrev_b32 v16, 2, v15
v_xor_b32 v14, v14, v16
v_lshlrev_b32 v14, 4, v14
v_mul_u32_u24 v15, 2688, v15
v_add_u32 v6, v14, v15
v_add_u32 v7, {4*2688-1024}, v6
v_add_u32 v8, {2*(4*2688-1024)}, v6
v_add_u32 v9, {3*(4*2688-1024)}, v6
s_lshl_b32 s41, s6, 2
s_add_u32 s47, s41, s40          ; token tile of this wave
s_mul_i32 s41, s47, {32*896}     ; x base
s_mul_i32 s42, s40, {16*2688}
s_lshl_b32 s43, s7, 8
s_add_u32 s42, s42, s43          ; w base
s_lshl_b32 s44, s40, 12          ; lds base of this wave""")
    if OPT["ts"] == 3: stamp(10)
    A("s_waitcnt lgkmcnt(0)")
    srd(SX, P_BX, X_BYTES); srd(SW, P_WQKV, WQKV_BYTES)
    def issue(a=0, b=8):
        if a == b: return
        if a == 0:
            A(f"""s_lshl_b32 s45, s26, 7
s_add_u32 s45, s45, s41
s_mul_i32 s46, s26, {64*2688}
s_add_u32 s46, s46, s42""")
        for z in range(a, b):
            isw = (z < 4) == bool(OPT["wf"]); i = z & 3
            if z == a or z == 4: A("s_add_u32 m0, s44, 16384" if isw else "s_mov_b32 m0, s44")
            if isw: A(f"buffer_load_dwordx4 v{6+i}, {sr(SW,4)}, s46 offen offset:{1024*i} {XM} lds")
            else: A(f"buffer_load_dwordx4 v{2+i}, {sr(SX,4)}, s45 offen offset:{1024*i} {XM} lds")
        if b == 8:
            A("""s_add_u32 s26, s26, 1
s_cmp_eq_u32 s26, 7
s_cselect_b32 s26, 0, s26
s_add_u32 s44, s44, 0x8000
s_and_b32 s44, s44, 0x1ffff""")
    LL = A.lab("b1ld")
    la = OPT["la"]
    if OPT["ts"] == 3: stamp(12)
    issue()
    if OPT["ts"] == 3: stamp(11)
    gettag()
    issue(0, la)
    def st4(n):
        if OPT["ts"] == 4: A(f"{'s_memtime' if STAMPS == 2 else 's_memrealtime'} s[{64+2*(4+n)}:{65+2*(4+n)}]")
    if OPT["ts"] == 4:
        for n in range(5):
            issue(la, 8); issue(0, la); A(f"s_waitcnt vmcnt({8+la})"); st4(n); A("s_barrier")
    else:
        A(f"s_mov_b32 s48, 5\n{LL}:")
        issue(la, 8); issue(0, la)
        A(f"s_waitcnt vmcnt({8+la})")
        if STAMPS:
            LX = A.lab("st"); A(f"s_cmp_lg_u32 s48, 5\ns_cbranch_scc1 {LX}"); stamp(2); A(f"{LX}:")
        A(f"""s_barrier
s_sub_u32 s48, s48, 1
s_cmp_lg_u32 s48, 0
s_cbranch_scc1 {LL}""")
    issue(la, 8)
    A("s_waitcnt vmcnt(8)"); st4(5); A("s_barrier")
    fixtag()
    if OPT["lt"]:
        srd(56, P_WR, W_BYTES); A(f"s_mov_b32 s54, s{P_WO}\ns_mov_b32 s55, s{P_WO+1}")
    A("s_waitcnt vmcnt(0)")
    stamp(3)
    A(f"s_barrier\ns_cmp_eq_u32 s7, 10\ns_cbranch_scc1 {ATT}")
    for x in WL[:OPT["wm"]]: A(x)
    A(f"s_branch {ATT}")

WL = [] if OPT["wg"] else [f"buffer_load_dwordx4 v[96:99], v248, {sr(SX,4)}, s55 offen", f"buffer_load_dwordx4 v[100:103], v248, s[56:59], s55 offen"]
def wsetup(force=False):
    if OPT["wg"] and not force: return
    LNY = A.lab("nyq")
    srd(SX, P_WR, W_BYTES); srd(56, P_WI, W_BYTES)
    A(f"""s_lshr_b32 s54, s2, 3          ; ko
s_mul_i32 s55, s4, {4*450}
s_mul_i32 s43, s40, {512*450}
s_add_u32 s55, s55, s43
s_lshl_b32 s43, s54, 4
s_add_u32 s55, s55, s43
s_cmp_lg_u32 s54, 28
s_cbranch_scc1 {LNY}""")
    srd(SX, P_WI, W_BYTES); srd(56, P_WR, W_BYTES)
    A(f"""s_sub_u32 s55, s55, 14
{LNY}:
v_lshrrev_b32 v9, 2, v0
v_and_b32 v10, 3, v0
v_lshl_add_u32 v9, v9, 5, v10
v_mul_u32_u24 v248, 450, v9""")
A1LD, ATT2 = "L_a1ld", "L_att2"
SXA = SX
def a1_dispatch_loader():
    A("; ==== A1 role: loaders prefetch, set up attention, then load x_A once the projection is nearly through ====")
    A(f"""{LA1}:
s_sub_u32 s5, s7, 11           ; g5
s_mul_i32 s26, s5, 3
s_lshr_b32 s26, s26, 1         ; e0 in 0,1,3,4,6""")
    if not OPT["rota"]: A("s_mov_b32 s26, 0")
    A(f"s_cmp_lt_u32 s3, 4\ns_cbranch_scc1 {LA1C}\ns_setprio 3")
    A(f"""s_lshl_b32 s96, s6, 2
s_add_u32 s96, s96, s40
s_mul_i32 s96, s96, 896
s_lshl_b32 s97, s40, 12
s_lshl_b32 s98, s26, 2
s_add_u32 s98, s98, 3
s_lshl_b32 s99, s6, 7
s_add_u32 s99, s99, {GO_OFF}""")
    mod7(98, 27)
    A("s_waitcnt lgkmcnt(0)")
    if OPT["bt2"]:
        LP1, LP2 = A.lab("pre"), A.lab("pre")
        srd(SX, P_BX, X_BYTES)
        A(f"""s_lshr_b32 s42, s2, 3
s_sub_u32 s42, s42, 22
v_lshlrev_b32 v1, 7, v0
s_cmp_eq_u32 s40, 3
s_cbranch_scc1 {LP1}
s_mul_i32 s43, s42, 3
s_add_u32 s43, s43, s40
s_min_u32 s43, s43, 27
s_lshl_b32 s43, s43, 13
s_mul_i32 s44, s4, {256*896}
s_add_u32 s43, s43, s44
buffer_load_dword v45, v1, {sr(SX,4)}, s43 offen
s_branch {LP2}
{LP1}:""")
        srd(SX, P_WQKV, WQKV_BYTES)
        A(f"""s_lshl_b32 s43, s42, 3
s_add_u32 s43, s43, s4
s_lshl_b32 s43, s43, 13
s_add_u32 s43, s43, {64*2688}
buffer_load_dword v45, v1, {sr(SX,4)}, s43 offen
s_add_u32 s43, s43, {80*8192}
buffer_load_dword v44, v1, {sr(SX,4)}, s43 offen
{LP2}:""")
        if OPT["bt2"] == 2: A("s_waitcnt vmcnt(0)")
    if OPT["xt"]:
        srd(SX, P_AX, X_BYTES)
        A(f"""s_lshl_b32 s44, s5, 7
s_add_u32 s43, s96, s44
s_cmp_lt_u32 s5, 2
s_cselect_b32 s44, 640, 0
v_lshrrev_b32 v1, 5, v0
v_mul_u32_u24 v1, s44, v1
v_and_b32 v2, 31, v0
v_mul_u32_u24 v2, {64*896}, v2
v_add_u32 v1, v1, v2
buffer_load_dword v46, v1, {sr(SX,4)}, s43 offen""")
    if OPT["bt2"] >= 3:
        c0 = OPT["bt2"] - 1
        srd(SX, P_WQKV, WQKV_BYTES)
        A(f"""v_lshlrev_b32 v1, 7, v0
s_lshl_b32 s43, s42, 2
s_add_u32 s43, s43, s40
s_lshl_b32 s43, s43, 13
s_add_u32 s43, s43, {c0*64*2688}""")
        if OPT["bw"]: A(f"s_waitcnt vmcnt({OPT['bw']-1})")
        for z in range(-(-(7-c0)*21 // 40)):
            A(f"buffer_load_dword v44, v1, {sr(SX,4)}, s43 offen\ns_add_u32 s43, s43, {40*8192}")
    gettag()
    if OPT["tw3"]:
        g = OPT["tw3"]
        LT = A.lab("tw")
        srd(SX, P_WS, WS_USED)
        for wv, (p, nb) in enumerate(((P_OUT, OUT_BYTES), (P_WR, W_BYTES), (P_WI, W_BYTES))):
            A(f"s_cmp_eq_u32 s40, {wv}\ns_cbranch_scc1 {LT}")
            srd(SX, p, nb)
        A(f"""{LT}:
s_lshr_b32 s42, s2, 3
s_sub_u32 s42, s42, 22
s_lshl_b32 s42, s42, {g}
v_mul_u32_u24 v1, {10 << g}, v0
buffer_load_dword v47, v1, {sr(SX,4)}, s42 offen offset:64""")
    wsetup()
    if not OPT["wa"]:
        for x in WL: A(x)
    A(f"s_mov_b32 s0, s{P_AX}\ns_mov_b32 s1, s{P_AX+1}")
    if OPT["lt"]:
        LT = A.lab("lt")
        srd(56, P_WR, W_BYTES)
        A(f"s_bitcmp0_b32 s40, 0\ns_cbranch_scc1 {LT}")
        srd(56, P_WI, W_BYTES)
        A(f"{LT}:\ns_mov_b32 s54, s{P_WO}\ns_mov_b32 s55, s{P_WO+1}")
    fixtag()
    if OPT["cl"]:
        A("v_and_b32 v14, 31, v0\nv_lshrrev_b32 v15, 5, v0")
        gen_c(80)
    A(f"s_branch {ATT}")
    A(f"{A1LD}:\ns_setprio 3\nv_mov_b32 v9, 0")
    xaddr(64*896, 48)
    if OPT["wa"] == 2:
        for x in WL: A(x)
    srd(SX, 0, X_BYTES)
    spin(f"buffer_load_dword v14, v9, {W}, s99 offen {PM}", 14, 2)
    stamp(2)
    LL = A.lab("a1ld")
    A(f"""s_mov_b32 s100, 0
{LL}:
s_lshl_b32 s42, s98, 7
s_add_u32 s42, s42, s96
s_lshl_b32 s43, s98, 14
s_add_u32 m0, s97, s43""")
    for i in range(4): A(f"buffer_load_dwordx4 v{48+i}, {sr(SXA,4)}, s42 offen offset:{1024*i} lds")
    A(f"""s_add_u32 s98, s98, 4
s_sub_u32 s43, s98, 7
s_cmp_ge_u32 s98, 7
s_cselect_b32 s98, s43, s98
s_add_u32 s100, s100, 1
s_cmp_lt_u32 s100, 3
s_cbranch_scc1 {LL}
s_waitcnt vmcnt(4)
s_barrier
s_cmp_lt_u32 s100, 7
s_cbranch_scc1 {LL}""")
    if OPT["lt"]:
        srd(SX, 54, WO_BYTES)
        A(f"""s_lshr_b32 s100, s2, 3
s_sub_u32 s100, s100, 22
s_lshl_b32 s100, s100, 2
s_add_u32 s100, s100, s40
s_lshr_b32 s42, s100, 1
s_mul_i32 s42, s42, {128*450}
s_and_b32 s43, s2, 7
s_mul_i32 s43, s43, {4*450}
s_add_u32 s42, s42, s43
s_and_b32 s42, s42, 0xffffff80
v_lshrrev_b32 v48, 4, v0
v_mul_u32_u24 v48, {32*450}, v48
v_and_b32 v49, 15, v0
v_lshl_add_u32 v48, v49, 7, v48
s_mul_i32 s43, s100, {12*896}
s_and_b32 s100, s2, 1
s_lshl_b32 s100, s100, 9
s_add_u32 s43, s43, s100
v_lshrrev_b32 v49, 2, v0
v_mul_u32_u24 v49, 896, v49
v_and_b32 v50, 3, v0
v_lshl_add_u32 v49, v50, 7, v49""")
    A("s_waitcnt vmcnt(0)")
    stamp(3)
    def ltouch():
        A(f"""buffer_load_dword v46, v48, s[56:59], s42 offen
s_mov_b32 exec_hi, 0xffff
buffer_load_dword v45, v49, {sr(SX,4)}, s43 offen
s_mov_b64 exec, -1""")
    if OPT["lt"] == 1: ltouch()
    A("s_barrier")
    if OPT["lt"] == 2: ltouch()
    if OPT["pa"] == 1: lds_wait(C_W, 4, 1)
    if OPT["pa"] == 2: lds_wait(C_LF, 4, 1)
    if OPT["pa"] == 3: lds_wait(C_P1, 1, 1)
    A(f"s_branch {ATT2}")

def main_start():
    A(f"""v_lshlrev_b32 v1, 4, v0
v_add_u32 v1, {CNT+12}, v1
v_mov_b32 v2, 0
ds_write_b32 v1, v2""")

C, ER, EI, G, GT = 128, 160, 176, 192, 16
def tlbwarm():
    g = OPT["tw"]
    if not g: return
    L = A.lab("tw")
    n = (WS_USED >> g) // 32 + 1
    A(f"""s_cmp_lg_u32 s3, 2
s_cbranch_scc1 {L}
s_lshr_b32 s60, s2, 3
s_mul_i32 s60, s60, {n << g}
v_lshlrev_b32 v12, {g}, v0""")
    for i in range(0, n, 64):
        k = min(64, n - i)
        if k < 64: A(f"s_bfm_b64 exec, {k}, 0")
        A(f"buffer_load_dword v255, v12, {W}, s60 offen offset:64")
        if i + 64 < n: A(f"s_add_u32 s60, s60, {64 << g}")
    A("s_mov_b64 exec, -1")
    m = (W_BYTES >> g) // 32 + 1
    srd(28, P_WR, W_BYTES); srd(32, P_WI, W_BYTES)
    A(f"""s_lshr_b32 s60, s2, 3
s_mul_i32 s60, s60, {m << g}
s_bfm_b64 exec, {m}, 0
buffer_load_dword v255, v12, s[28:31], s60 offen
buffer_load_dword v255, v12, s[32:35], s60 offen
s_mov_b64 exec, -1
{L}:""")
def prewrite():
    tlbwarm()
    if OPT["pw"] < 2: return
    L = A.lab("pw")
    A(f"""s_cmp_lg_u32 s3, 3
s_cbranch_scc1 {L}
s_sub_u32 s60, s{TAG}, {TAGC}
s_lshl_b32 s61, s7, 4
s_add_u32 s61, s61, s6
s_lshl_b32 s61, s61, 7
s_add_u32 s61, s61, {F1_OFF}""")
    flagstore("s61", OPT["r1"], 32768, 40, "s60")
    A(f"{L}:")
def touches(which):
    if "x" in which:
        srd(28, P_AX, X_BYTES)
        A(f"""s_lshl_b32 s43, s6, 2
s_add_u32 s43, s43, s3
s_mul_i32 s43, s43, 896
s_lshl_b32 s44, s5, 7
s_add_u32 s43, s43, s44
s_cmp_lt_u32 s5, 2
s_cselect_b32 s44, 640, 0
v_mul_u32_u24 v1, s44, v15
v_mul_u32_u24 v7, {64*896}, v14
v_add_u32 v1, v1, v7
buffer_load_dword v63, v1, s[28:31], s43 offen""")
    A(f"""s_lshr_b32 s45, s2, 3
s_sub_u32 s45, s45, 22
s_lshl_b32 s45, s45, 2
s_add_u32 s45, s45, s3""")
    if "w" in which:
        LT = A.lab("tch")
        srd(28, P_WR, W_BYTES)
        A(f"s_bitcmp0_b32 s45, 0\ns_cbranch_scc1 {LT}")
        srd(28, P_WI, W_BYTES)
        A(f"""{LT}:
s_lshr_b32 s43, s45, 1
s_mul_i32 s43, s43, {128*450}
s_mul_i32 s44, s4, {4*450}
s_add_u32 s43, s43, s44
s_and_b32 s43, s43, 0xffffff80
v_lshrrev_b32 v1, 4, v0
v_mul_u32_u24 v1, {32*450}, v1
v_and_b32 v7, 15, v0
v_lshl_add_u32 v1, v7, 7, v1
buffer_load_dword v63, v1, s[28:31], s43 offen""")
    if "o" in which:
        srd(28, P_WO, WO_BYTES)
        A(f"""s_mul_i32 s43, s45, {12*896}
s_and_b32 s44, s2, 1
s_lshl_b32 s44, s44, 9
s_add_u32 s43, s43, s44
v_lshrrev_b32 v1, 2, v0
v_mul_u32_u24 v1, 896, v1
v_and_b32 v7, 3, v0
v_lshl_add_u32 v1, v7, 7, v1
s_mov_b32 exec_hi, 0xffff
buffer_load_dword v63, v1, s[28:31], s43 offen
s_mov_b64 exec, -1""")
TCH = {0: ("", ""), 1: ("x", "wo"), 2: ("", "xwo"), 3: ("xwo", ""), 4: ("", "x"), 5: ("x", ""), 6: ("xw", "o"), 7: ("w", "xo")}[OPT["tch"]]
def gen_common():
    A(f"""v_and_b32 v14, 31, v0
v_lshrrev_b32 v15, 5, v0
s_lshr_b32 s50, s2, 5
s_lshl_b32 s50, s50, 3
s_or_b32 s50, s50, s4
s_bfe_u32 s51, s2, 0x20003       ; d quarter
s_and_b32 s52, s40, 1            ; parity e""")
def rot_gen(n, nblk, step, base, mult, dmult, out, scale=None):
    c, sn, t = GT, GT+8, GT+16
    A(f"v_mul_f32 v11, {f32(float(dmult))}, v{step}")
    for j in range(n): A(f"v_fmamk_f32 v{t+j}, v{step}, {f32(float(mult[j]))}, v{base}")
    A("v_cos_f32 v10, v11\nv_sin_f32 v12, v11")
    for j in range(n): A(f"v_cos_f32 v{c+j}, v{t+j}\nv_sin_f32 v{sn+j}, v{t+j}")
    A("v_mov_b32 v11, v10\nv_mov_b32 v13, v12")
    if scale is not None:
        for j in range(n): A(f"v_mul_f32 v{c+j}, {f32(scale)}, v{c+j}\nv_mul_f32 v{sn+j}, {f32(scale)}, v{sn+j}")
    for b in range(nblk):
        out(b)
        if b + 1 < nblk:
            for j in range(0, n, 2): A(f"v_pk_mul_f32 {vr(t+j,2)}, {vr(sn+j,2)}, v[12:13]")
            for j in range(0, n, 2): A(f"v_pk_mul_f32 {vr(sn+j,2)}, {vr(sn+j,2)}, v[10:11]")
            for j in range(0, n, 2): A(f"v_pk_fma_f32 {vr(sn+j,2)}, {vr(c+j,2)}, v[12:13], {vr(sn+j,2)}")
            for j in range(0, n, 2): A(f"v_pk_fma_f32 {vr(c+j,2)}, {vr(c+j,2)}, v[10:11], {vr(t+j,2)} neg_lo:[0,0,1] neg_hi:[0,0,1]")
def gen_c(C=C):
    A(f"""v_lshrrev_b32 v8, 1, v14
s_lshl_b32 s43, s40, 4
v_add_u32 v8, s43, v8
v_cvt_f32_u32 v8, v8
v_mul_f32 v8, {f32(1/64)}, v8    ; step = u2/64
v_and_b32 v9, 1, v14
v_cvt_f32_u32 v9, v9
v_mul_f32 v9, {f32(0.25)}, v9
v_lshlrev_b32 v10, 1, v15
v_cvt_f32_u32 v10, v10
v_fma_f32 v9, v8, v10, v9        ; base""")
    def out(f):
        for p in range(4): A(f"v_cvt_pk_bf16_f32 v{C+4*f+p}, v{GT+p}, v{GT+8+p}")
    rot_gen(4, 8, 8, 9, [0,1,4,5], 8, out)
def gen_e():
    A(f"""v_lshlrev_b32 v8, 6, v14
v_add_u32 v8, s50, v8
v_cvt_f32_u32 v8, v8
v_mul_f32 v8, {f32(1/2048)}, v8
v_lshlrev_b32 v9, 2, v15
v_cvt_f32_u32 v9, v9
v_mul_f32 v9, v8, v9""")
    def out(f):
        for p in range(4): A(f"v_cvt_pk_bf16_f32 v{ER+4*f+p}, v{GT+p}, -v{GT+8+p}")
        for p in range(4): A(f"v_cvt_pk_bf16_f32 v{EI+4*f+p}, v{GT+8+p}, v{GT+p}")
    rot_gen(4, 4, 8, 9, [0,1,2,3], 8, out, 2.0/(2048*448))
def gen_g():
    A(f"""s_lshr_b32 s44, s40, 1
s_lshl_b32 s45, s51, 1
s_add_u32 s44, s44, s45         ; d tile
s_lshl_b32 s46, s44, 5
v_add_u32 v8, s46, v14          ; d
v_cvt_f32_u32 v8, v8
v_mul_f32 v8, {f32(1/448)}, v8
v_lshlrev_b32 v9, {2 if OPT["kn"] else 3}, v15
v_add_u32 v9, s52, v9
v_cmp_eq_u32 vcc, 0, v9         ; lanes holding k = 0
v_cvt_f32_u32 v9, v9
v_mul_f32 v9, v8, v9""")
    def out(t):
        for j in range(4): A(f"v_cvt_pk_bf16_f32 v{G+8*t+j}, v{GT+2*j}, v{GT+2*j+1}")
        for j in range(4): A(f"v_cvt_pk_bf16_f32 v{G+8*t+4+j}, -v{GT+8+2*j}, -v{GT+9+2*j}")
    rot_gen(8, 7, 8, 9, [(8*(j>>1)+2*(j&1) if OPT["kn"] else 16*(j>>2)+2*(j&3)) for j in range(8)], 32, out)
    A(f"""v_and_b32 v8, 0xffff0000, v{G}
v_or_b32 v8, 0x3f00, v8
v_and_b32 v10, 1, v14
v_lshlrev_b32 v10, 15, v10
v_cndmask_b32 v{G}, v{G}, v8, vcc
v_and_b32 v8, 0xffff, v8
v_and_b32 v9, 0xffff0000, v{G+4}
v_or3_b32 v9, v9, v10, v8
v_cndmask_b32 v{G+4}, v{G+4}, v9, vcc""")
def gen_pre():
    gen_common()

ACC = 64
def acc(a, b): return ACC + 32*a + 16*b
LONES = "L_ones"
def b1_body(vtype):
    if vtype: pi32(48, 14, 49)
    else: A("v_mov_b32 v48, v14")
    A(f"""v_lshrrev_b32 v49, 1, v48
v_and_b32 v49, 7, v49
v_xor_b32 v49, v49, v15
v_lshlrev_b32 v49, 4, v49
v_lshl_or_b32 v50, v48, 7, v49
s_lshl_b32 s43, s41, 13
v_add_u32 v52, s43, v50
v_xor_b32 v53, 32, v52
v_xor_b32 v54, 64, v52
v_xor_b32 v55, 96, v52""")
    A(f"""v_bfe_u32 v48, v0, 2, 2        ; rr
v_and_b32 v49, 3, v0           ; cc""")
    if not vtype:
        A("""v_lshrrev_b32 v50, 1, v49
v_and_b32 v49, 1, v49
v_lshl_or_b32 v49, v49, 1, v50 ; sigma(cc)""")
    A(f"""v_bfe_u32 v50, v0, 4, 1        ; colhalf
v_lshlrev_b32 v50, 5, v50
v_lshl_or_b32 v50, v49, 3, v50
s_lshl_b32 s43, s42, 7
v_or_b32 v50, s43, v50          ; col byte
v_lshlrev_b32 v51, 6, v48
v_xor_b32 v50, v50, v51
v_lshl_add_u32 v51, v15, 3, v48 ; 8h+rr
v_lshl_or_b32 v56, v51, 8, v50
v_add_u32 v56, 16384, v56
v_xor_b32 v57, 64, v56""")
    A(f"""s_lshl_b32 s46, s6, 2
s_lshl_b32 s47, s41, 1
s_add_u32 s46, s46, s47
s_lshl_b32 s47, s7, 2
s_lshl_b32 s48, s42, 1
s_add_u32 s47, s47, s48        ; first col tile""")
    if not vtype:
        A(f"""s_lshl_b32 s48, s47, 11
v_lshlrev_b32 v2, 4, v0
s_cmp_ge_u32 s47, 14
s_cselect_b32 s49, {KV_REC - QK_TILE}, 0
s_cselect_b32 s43, {KV_OFF - Q_OFF - 14*2048}, 0
s_cselect_b32 s54, 1.0, {f32(QSCALE)}
s_mov_b32 s55, s54
s_add_u32 s49, s49, {QK_TILE}
s_mul_i32 s46, s46, s49
s_add_u32 s46, s46, s48
s_add_u32 s46, s46, s43
s_add_u32 s46, s46, {Q_OFF}
s_add_u32 s49, s46, s49""")
    else:
        A(f"""s_sub_u32 s45, s7, 7
s_lshl_b32 s45, s45, 7
s_add_u32 s45, s45, 27
s_mul_i32 s45, s45, 2341
s_lshr_b32 s45, s45, 16
v_lshrrev_b32 v10, 4, v0
v_add_u32 v10, s45, v10
v_lshrrev_b32 v11, 2, v0
v_lshlrev_b32 v11, 9, v11
s_lshl_b32 s45, s45, 11
v_add_u32 v11, s45, v11
v_cmp_gt_u32 s[56:57], 16, v10
v_and_b32 v4, 3, v0
v_lshl_or_b32 v4, v4, 4, v11
s_cmp_lt_u32 s7, 9
s_cselect_b32 s58, 0xffff, 0
s_mov_b32 s59, 0
s_lshl_b32 s54, s6, 2
s_add_u32 s54, s54, s40
s_mul_i32 s54, s54, {KV_REC}
s_add_u32 s54, s54, {KV_OFF + QK_TILE + 28*16}
s_add_u32 s55, s54, 8192
v_and_b32 v58, 1, v0
v_add_u32 v58, -1, v58
v_and_b32 v58, 0x3f803f80, v58
v_mov_b32 v59, v58
v_mov_b32 v60, v58
v_mov_b32 v61, v58
s_sub_u32 s47, s47, 28
s_mul_i32 s46, s46, {KV_REC}
s_add_u32 s46, s46, {KV_OFF + QK_TILE}
s_add_u32 s49, s46, {KV_REC}
s_lshl_b32 s48, s47, 5""")
        for b in range(2):
            A(f"""v_add_u32 v48, s48, v14
v_add_u32 v48, {32*b}, v48
v_mul_u32_u24 v49, 2341, v48
v_lshrrev_b32 v49, 16, v49     ; head
v_mul_u32_u24 v50, 28, v49
v_sub_u32 v48, v48, v50        ; d
v_lshlrev_b32 v48, 4, v48
v_lshl_or_b32 v48, v15, 9, v48
v_lshl_or_b32 v{2+b}, v49, 11, v48""")
    def ones(label):
        LO = A.lab("ones")
        if label: A(f"{LONES}:")
        A(f"""s_mov_b64 exec, s[56:57]
buffer_store_dwordx4 v[58:61], v4, {W}, s54 offen {SC}
s_mov_b64 exec, s[58:59]
s_cbranch_execz {LO}
buffer_store_dwordx4 v[58:61], v4, {W}, s55 offen {SC}
{LO}:
s_mov_b64 exec, -1""")
    SETS = (16, 32, 192, 208)
    def rx(kap, p, a): return f"ds_read_b128 {vr(SETS[p]+4*a,4)}, v{6+kap} offset:{4096*a}"
    def rw(kap, p, b): return [f"ds_read_b64_tr_b16 {vr(SETS[p]+8+4*b+2*u,2)}, v{10+b} offset:{(16*kap+4*u)*256}" for u in range(2)]
    def rdlist(kap, p): return [rx(kap,p,0)] + rw(kap,p,0) + rw(kap,p,1) + [rx(kap,p,1)]
    def setaddr(): return [f"v_add_u32 v{6+i}, s44, v{52+i}" for i in range(6)]
    def mf(a, b, p):
        x, w = vr(SETS[p]+4*a,4), vr(SETS[p]+8+4*b,4)
        o = (x, w) if vtype else (w, x)
        A(f"{MFMA} {vr(acc(a,b),16)}, {o[0]}, {o[1]}, {vr(acc(a,b),16)}")
    gb = []
    def fill(n):
        for _ in range(n):
            if gb:
                for x in gb.pop(0): A(x)
    def kstep(p, r, f):
        A("s_waitcnt lgkmcnt(3)")
        mf(0,0,p)
        for x in r[0:3]: A(x)
        fill(f[0])
        A("s_waitcnt lgkmcnt(4)")
        mf(0,1,p)
        for x in r[3:5]: A(x)
        fill(f[1])
        A("s_waitcnt lgkmcnt(5)")
        mf(1,0,p)
        for x in r[5:6]: A(x)
        fill(f[2])
        mf(1,1,p)
        if OPT["bn"]: A(f"s_nop {OPT['bn']}")
        fill(f[3])
    LL = A.lab("b1loop")
    if vtype:
        LI, LI2 = A.lab("idle"), A.lab("idle")
        A(f"s_cmp_lt_u32 s47, 14\ns_cbranch_scc1 {LI}")
        prewrite()
        for n in range(7):
            A("s_barrier")
            if n == OPT["gk"]:
                A(f"s_cmp_lg_u32 s3, 2\ns_cbranch_scc1 {LI2}\ns_lshl_b32 s61, s6, 7\ns_add_u32 s61, s61, {GO_OFF}")
                flagstore("s61", 1, 0)
                A(f"{LI2}:")
        if OPT["oe"]: ones(False)
        A(f"s_branch {LONES}\n{LI}:")
    A("s_mov_b32 s44, 0\ns_mov_b32 s45, 0")
    for x in setaddr(): A(x)
    prewrite()
    stampw(9)
    A("s_barrier")
    stampw(2)
    for x in rdlist(0, 0): A(x)
    A(f"{LL}:")
    ab0 = len(A.ins)
    kstep(0, rdlist(1, 1), (0,1,2,3))
    kstep(1, rdlist(2, 0), (0,1,2,3))
    A("s_add_u32 s44, s44, 0x8000\ns_and_b32 s44, s44, 0x1ffff\ns_add_u32 s45, s45, 1")
    kstep(0, rdlist(3, 1), (1,1,2,0))
    for x in setaddr(): A(x)
    if OPT["la"]: A("s_waitcnt lgkmcnt(0)")
    A("s_barrier")
    kstep(1, rdlist(0, 0), (1,1,1,1))
    assert not gb
    if OPT["b1x"]: A.ins[ab0:] = [i for i in A.ins[ab0:] if not ((OPT["b1x"] & 1 and i.mfma) or (OPT["b1x"] & 2 and i.ds) or (OPT["b1x"] & 4 and i.mn == "ds_read_b128") or (OPT["b1x"] & 8 and "tr" in i.mn))]
    A(f"s_cmp_lt_u32 s45, 6\ns_cbranch_scc1 {LL}")
    if OPT["x"] in (2, 3): A("s_memtime s[84:85]\ns_waitcnt lgkmcnt(0)")
    rd = []
    for kap in (1,2,3): rd += [rx(kap,kap,0)] + rw(kap,kap,0)
    for kap in (1,2,3): rd += rw(kap,kap,1)
    for kap in (1,2,3): rd += [rx(kap,kap,1)]
    order = [rdlist(0,0)[i] for i in range(6)] + rd
    def epi(a, b):
        e = []; t = acc(a,b)
        for i in range(8):
            if not vtype:
                if OPT["pk"] or (a, b) == (1, 1): e.append(f"v_pk_mul_f32 {vr(t+2*i,2)}, {vr(t+2*i,2)}, s[54:55]")
                else: e += [f"v_mul_f32 v{t+2*i}, s54, v{t+2*i}", f"v_mul_f32 v{t+2*i+1}, s54, v{t+2*i+1}"]
            e.append(f"v_cvt_pk_bf16_f32 v{t+i}, v{t+2*i}, v{t+2*i+1}" if OPT["x"] != -10 else f"v_mov_b32 v{t+i}, 0")
            if i & 3 == 3:
                if OPT["sd"] and (a, b, i) == (0, 0, 3): e.append(f"s_sleep {OPT['sd']}")
                if OPT["sp"]: e.append(f"s_sleep {OPT['sp']}")
                if vtype: e.append(f"buffer_store_dwordx4 {vr(t+i-3,4)}, v{2+b}, {W}, s{46 if a==0 else 49} offen offset:{1024*(i>>2)} {SC}")
                else: e.append(f"buffer_store_dwordx4 {vr(t+i-3,4)}, v2, {W}, s{46 if a==0 else 49} offen offset:{2048*b+1024*(i>>2)} {SC}")
        return e
    issued = 6; pend = []; lastw = None
    tiles = [(a,b) for a in range(2) for b in range(2)]
    seq = [(a,b,0) for a,b in tiles] + [(a,b,k) for a,b in tiles for k in (1,2,3)]
    for m, (a, b, kap) in enumerate(seq):
        need = max(order.index(x) for x in [rx(kap,kap,a)] + rw(kap,kap,b)) + 1
        while issued < need: A(order[issued]); issued += 1
        if lastw is None or need > lastw:
            A(f"s_waitcnt lgkmcnt({issued - need})"); lastw = need
        mf(a, b, kap)
        for _ in range(3):
            if issued < len(order) and issued - lastw < 14: A(order[issued]); issued += 1
        if m in (8, 11, 14): pend += epi(*tiles[(m-8)//3])
        if m == 5 and vtype and OPT["oe"]: ones(False)
        if m == 15: stamp(3)
        for _ in range((6 if OPT["pk"] else 8) if not vtype else 4):
            if pend: A(pend.pop(0))
    for x in pend + epi(1,1): A(x)
    if vtype:
        if OPT["oe"]: A(f"{LONES}:")
        else: ones(True)
    lds_add(C_LF)
    A(f"s_branch {PUB1}")
def b1_compute():
    A(f"""s_and_b32 s41, s3, 1           ; wr
s_lshr_b32 s42, s3, 1          ; wc""")
    fixtag()
    A(f"s_cmp_ge_u32 s7, 7\ns_cbranch_scc1 {LV}")
    b1_body(False)
    A(f"{LV}:")
    b1_body(True)

def a1_gen():
    A("; ==== A1 compute waves: DFT-448 fragments into LDS ====")
    LF, LE = A.lab("fgen"), A.lab("fend")
    A(f"{LA1C}:\ns_setprio 2")
    if OPT["gdl"]: A(f"s_sleep {OPT['gdl']}")
    gen_common()
    pi32(48, 14, 49)
    A(f"""v_lshlrev_b32 v61, 4, v0
v_add_u32 v61, {FOFF}, v61""")
    main_start()
    A(f"""v_lshrrev_b32 v48, 1, v48       ; k_local
s_mul_i32 s41, s5, 3
s_add_u32 s41, s41, s3
s_lshl_b32 s41, s41, 4
v_add_u32 v48, s41, v48
v_cvt_f32_u32 v48, v48
v_mul_f32 v56, {f32(1/448)}, v48 ; k/448
v_and_b32 v48, 1, v14
v_cvt_f32_u32 v48, v48
v_mul_f32 v59, {f32(0.25)}, v48  ; c/4
v_lshlrev_b32 v60, 3, v15
v_cvt_f32_u32 v60, v60
v_fma_f32 v59, v56, v60, v59
v_mul_f32 v58, {f32(16.0)}, v56
v_cos_f32 v58, v58
s_mul_i32 s41, s3, 14336
v_add_u32 v53, s41, v61""")
    for j in range(16): A(f"v_fmamk_f32 v{16+j}, v56, {f32(float(16*(j>>3)+(j&7)))}, v59")
    A("v_add_f32 v58, v58, v58")
    for j in range(16): A(f"v_cos_f32 v{16+j}, v{16+j}")
    A("s_waitcnt lgkmcnt(0)")
    gettag()
    A(f"s_cmp_eq_u32 s3, 3\ns_cbranch_scc1 {LE}\nv_mov_b32 v59, v58\ns_mov_b32 s42, 7\n{LF}:")
    for u in range(2):
        for j in range(4): A(f"v_cvt_pk_bf16_f32 v{32+4*u+j}, v{16+8*u+2*j}, v{17+8*u+2*j}")
        A(f"ds_write_b128 v53, {vr(32+4*u,4)} offset:{1024*u}")
        for j in range(4):
            a, b = 16+8*u+2*j, 16+8*(u^1)+2*j
            A(f"v_pk_fma_f32 {vr(a,2)}, {vr(b,2)}, v[58:59], {vr(a,2)} neg_lo:[0,0,1] neg_hi:[0,0,1]") if u == 0 else None
    for j in range(4):
        a, b = 24+2*j, 16+2*j
        A(f"v_pk_fma_f32 {vr(a,2)}, {vr(b,2)}, v[58:59], {vr(a,2)} neg_lo:[0,0,1] neg_hi:[0,0,1]")
    A(f"""v_add_u32 v53, 2048, v53
s_sub_u32 s42, s42, 1
s_cmp_lg_u32 s42, 0
s_cbranch_scc1 {LF}
{LE}:""")
E1R, E1I = 56, 248
TST = [f"buffer_store_dwordx4 {vr(40+4*z,4)}, v4, {W}, s{99+(z>>1)} offen offset:{1024*(z&1)} {SC}" for z in range(6)]
def a1_compute():
    A("; ==== constants of A3 (shared with the B1 role), then the A1 main loop ====")
    if TCH[0]: touches(TCH[0])
    if not OPT["ag"]:
        A(f"{GEN}:")
        gen_e()
        if OPT["pg"] == 4: lds_add(C_H)
        gen_g()
        A(f"s_cmp_lt_u32 s7, 11\ns_cbranch_scc1 {HELP2}")
    if TCH[1]: touches(TCH[1])
    A(f"""s_lshl_b32 s41, s6, 2
s_add_u32 s41, s41, s3          ; s2 index
v_lshlrev_b32 v9, 8, v15
v_add_u32 v9, s41, v9
v_mul_u32_u24 v9, v14, v9
v_cvt_f32_u32 v9, v9
v_mul_f32 v9, {f32(1/2048)}, v9
v_cvt_f32_u32 v8, v14
v_mul_f32 v8, {f32(1/32)}, v8
v_mov_b32 v5, v61
s_waitcnt vmcnt(0)""")
    def out(b):
        for j in range(4): A(f"v_cvt_pk_bf16_f32 v{E1R+4*b+j}, v{GT+2*j}, v{GT+2*j+1}")
        for j in range(4): A(f"v_cvt_pk_bf16_f32 v{E1I+4*b+j}, -v{GT+8+2*j}, -v{GT+9+2*j}")
    rot_gen(8, 2, 8, 9, [8*(j>>2)+(j&3) for j in range(8)], 16, out)
    A(f"""v_lshrrev_b32 v49, 1, v14
v_and_b32 v49, 7, v49
v_xor_b32 v49, v49, v15
v_lshlrev_b32 v49, 4, v49
v_lshl_or_b32 v6, v14, 7, v49
s_lshl_b32 s43, s3, 12
v_add_u32 v6, s43, v6
v_and_b32 v3, 2, v14
v_lshlrev_b32 v3, 30, v3
v_or_b32 v3, 1.0, v3            ; (-1)^k
v_mov_b32 v2, v3
v_lshlrev_b32 v4, 4, v0
s_mul_i32 s99, s41, {T_ROW}
s_mul_i32 s42, s5, 6144
s_add_u32 s99, s99, s42
s_add_u32 s99, s99, {T_OFF}
s_add_u32 s100, s99, 2048
s_add_u32 s101, s99, 4096""")
    egen = []
    A(f"s_mul_i32 s27, s26, 8256")
    def a1salu(adv=True):
        r = []
        if adv: r += ["s_add_u32 s27, s27, 8256", f"s_cmp_eq_u32 s27, {7*8256}", "s_cselect_b32 s27, 0, s27"]
        return r + ["s_and_b32 s43, s27, 0x1c040", f"s_add_u32 s44, s27, {7*8256}", "s_and_b32 s44, s44, 0x1c040",
                    "s_lshr_b32 s46, s27, 2", "s_and_b32 s46, s46, 0x7800"]
    a1valu = ["v_xor_b32 v8, s43, v6", "v_xor_b32 v10, s44, v6", "v_xor_b32 v9, 32, v8", "v_xor_b32 v11, 32, v10", "v_add_u32 v12, s46, v5"]
    def a1rd(t):
        b = 16 + 20*t
        return ([f"ds_read_b128 {vr(b,4)}, v{8+t}"] +
                [f"ds_read_b128 {vr(b+8+4*kgi,4)}, v12 offset:{1024*t+14336*kgi}" for kgi in range(3)] +
                [f"ds_read_b128 {vr(b+4,4)}, v{10+t}"])
    def a1step(t, nxt, first=False, fill=0, adv=False):
        b = 16 + 20*t
        r = list(nxt); issued = 0
        sa = a1salu() if adv else []; va = list(a1valu) if adv else []
        for m in range(6):
            hi, kgi = m // 3, m % 3
            need = (2, 3, 4, 5, 5, 5)[m]
            if not nxt: hi, kgi, need = m % 2, m // 2, (2, 5, 5, 5, 5, 5)[m]
            if m < (4 if nxt else 2): A(f"s_waitcnt lgkmcnt({5 - need + issued})")
            d = 64 + 32*kgi + 16*hi
            A(f"{MFMA} {vr(d,16)}, {vr(b+4*hi,4)}, {vr(b+8+4*kgi,4)}, {0 if first else vr(d,16)}")
            for _ in range(2 if m == 0 else 1):
                if r: A(r.pop(0)); issued += 1
            if m in (1, 2, 3):
                for _ in range(3):
                    if sa: A(sa.pop(0))
            if m == 4:
                while va: A(va.pop(0))
            for _ in range(fill if not (adv and m in (1,2,3,4)) else fill // 2):
                if egen: A(egen.pop(0))
    LL, LS, LNB = A.lab("a1loop"), A.lab("a1last"), A.lab("a1nb")
    for x in a1salu(False) + a1valu: A(x)
    fixtag()
    prewrite()
    for x in a1valu[4:]: A(x)
    stampw(9)
    A("s_barrier")
    stampw(2)
    if OPT["ad"]: A(f"s_sleep {OPT['ad']}")
    for x in a1rd(0): A(x)
    for n in range(1):
        a1step(0, a1rd(1), n == 0, 2, True)
        if OPT["gl"]: A("s_barrier")
        a1step(1, a1rd(0), False, 3)
    assert not egen
    A(f"s_mov_b32 s45, 1\n{LL}:")
    a1step(0, a1rd(1), adv=True)
    LH = A.lab("a1h")
    A(f"""s_add_u32 s45, s45, 1
s_cmp_eq_u32 s45, 7
s_cbranch_scc1 {LS}
s_nop 0""")
    if OPT["gl"]: A(f"s_cmp_eq_u32 s45, 6\ns_cbranch_scc1 {LNB}\ns_barrier\n{LNB}:")
    a1step(1, a1rd(0))
    A(f"s_branch {LL}\n{LS}:")
    a1step(1, [])
    stamp(3)
    def s1(kgi):
        P, Q = 64+32*kgi, 80+32*kgi
        e = []
        for i in range(8):
            if OPT["pk"]: e.append(f"v_pk_fma_f32 {vr(P+2*i,2)}, {vr(Q+2*i,2)}, v[2:3], {vr(P+2*i,2)}")
            else: e += [f"v_fmac_f32 v{P+2*i}, v3, v{Q+2*i}", f"v_fmac_f32 v{P+2*i+1}, v3, v{Q+2*i+1}"]
            e.append(f"v_cvt_pk_bf16_f32 v{16+8*kgi+i}, v{P+2*i}, v{P+2*i+1}")
        return e
    def mm(kgi):
        P, Q = 64+32*kgi, 80+32*kgi
        return [f"{MFMA} {vr(P,16)}, {vr(16+8*kgi,4)}, {vr(E1R,4)}, 0", f"{MFMA} {vr(Q,16)}, {vr(16+8*kgi,4)}, {vr(E1I,4)}, 0",
                f"{MFMA} {vr(P,16)}, {vr(20+8*kgi,4)}, {vr(E1R+4,4)}, {vr(P,16)}", f"{MFMA} {vr(Q,16)}, {vr(20+8*kgi,4)}, {vr(E1I+4,4)}, {vr(Q,16)}"]
    def s2(kgi):
        P, Q = 64+32*kgi, 80+32*kgi
        e = []
        for j in range(8):
            e += [f"v_sub_f32 v{P+2*j}, v{P+2*j}, v{Q+2*j+1}", f"v_add_f32 v{Q+2*j}, v{Q+2*j}, v{P+2*j+1}",
                  f"v_cvt_pk_bf16_f32 v{40+8*kgi+j}, v{P+2*j}, v{Q+2*j}"]
            if j & 3 == 3 and not OPT["tl"]: e.append(TST[2*kgi+(j>>2)])
        return e
    def weave(ms, vs):
        k = (len(vs) + len(ms) - 1) // len(ms)
        for m in ms:
            A(m)
            for _ in range(k):
                if vs: A(vs.pop(0))
    lds_add(C_LF)
    for x in s1(0): A(x)
    weave(mm(0), s1(1)); weave(mm(1), s1(2)); weave(mm(2), s2(0))
    for x in s2(1) + s2(2): A(x)

def pub1():
    A("; ==== publish phase 1, 64-point DFT fragments ====")
    A(f"""{PUB1}:
s_lshl_b32 s26, s7, 11
s_lshl_b32 s42, s6, 7
s_add_u32 s26, s26, s42
s_add_u32 s26, s26, {F1_OFF}""")
    stamp(4)
    if OPT["pa"] == 1: lds_add(C_W)
    LNP = A.lab("nopub")
    if OPT["tl"]: A(f"s_cmp_ge_u32 s7, 11\ns_cbranch_scc1 {LNP}")
    publish(C_P1, 26, OPT["r1"], 32768)
    stamp(5)
    A(f"{LNP}:")
    if OPT["cl"]: A(f"s_cmp_ge_u32 s7, 11\ns_cbranch_scc1 {HELP2}")
    gen_c()
    if OPT["pg"] == 3: lds_add(C_H)
    if OPT["ag"]: gen_e(); gen_g()
    else: A(f"s_cmp_lt_u32 s7, 11\ns_cbranch_scc1 {GEN}")

Q, S, O, KV = 16, 48, 112, 176
OK = O + 48
TB = 8
SO = 32
def q(j,i): return vr(Q+8*j+4*i, 4)
def kb(b,i): return KV+16*b+4*i
def tile_loads(b, so):
    return [f"buffer_load_dwordx4 {vr(kb(b,0),4)}, v1, {W}, s{so} offen {KM}",
            f"buffer_load_dwordx4 {vr(kb(b,1),4)}, v2, {W}, s{so} offen {KM}",
            f"buffer_load_dwordx4 {vr(kb(b,2),4)}, v3, {W}, s{so} offen {KM}",
            f"buffer_load_dwordx4 {vr(kb(b,3),4)}, v3, {W}, s{so} offen offset:1024 {KM}"]
def attention():
    LOCK[0] = True
    A("; ==== attention and output projection (waves 4-7) ====")
    resident(None, None)
    LNY, LNW = A.lab("nyq"), A.lab("now")
    A(f"{ATT}:\ns_setprio 0")
    A("s_mov_b32 s51, s7")

    srd(SO, P_OUT, OUT_BYTES)
    A(f"""s_lshl_b32 s4, s4, 1
s_bfe_u32 s5, s2, 0x10003
s_or_b32 s4, s4, s5            ; head
s_lshr_b32 s5, s2, 4           ; qb
s_mul_i32 s6, s4, 7
s_lshr_b32 s45, s6, 1
s_add_u32 s6, s6, 1
s_lshr_b32 s6, s6, 1
s_lshl_b32 s6, s6, 9
v_lshlrev_b32 v8, 4, v0
v_add_u32 v1, s6, v8
s_bitcmp1_b32 s4, 0
s_cselect_b32 s7, -2040, 0
v_add_u32 v2, 1024, v1
v_add_u32 v6, s7, v2
v_mov_b32 v4, 0x3f80
v_mov_b32_dpp v2, v6 {HI}
s_lshl_b32 s7, s4, 11
s_add_u32 s7, s7, {QK_TILE}
v_and_b32 v9, 30, v0           ; lanes 26,27 <-> rows 28,29
v_cmp_eq_u32 vcc, 26, v9
v_cmp_eq_u32 s[48:49], 28, v9
s_or_b64 vcc, vcc, s[48:49]
v_xor_b32 v9, 96, v8
v_cndmask_b32 v3, v8, v9, vcc
v_add_u32 v3, s7, v3           ; V offset
v_mov_b32 v5, 0xdddd
v_mov_b32 v7, 0
s_lshl_b32 s45, s45, 3         ; first column touched (Q part)
v_bfe_u32 v9, v0, 2, 1
v_mul_u32_u24 v10, 31, v9
v_add_u32 v10, s45, v10        ; Q column
v_add_u32 v11, 448, v10        ; K column
v_mul_u32_u24 v9, 27, v9
s_mul_i32 s46, s4, 28
s_add_u32 s46, s46, 896
v_add_u32 v9, s46, v9          ; V column
v_lshrrev_b32 v10, 7, v10
v_lshlrev_b32 v10, 11, v10
v_mov_b32_dpp v11, v9 quad_perm:[0,1,2,3] row_mask:0xa bank_mask:0xf
s_lshl_b32 s46, s5, 7
v_add_u32 v10, s46, v10
v_lshrrev_b32 v11, 7, v11
v_lshlrev_b32 v11, 11, v11
v_and_b32 v9, 3, v0
v_lshl_add_u32 v11, v9, 7, v11
s_lshl_b32 s46, s40, 9
v_add_u32 v11, s46, v11        ; K/V flag offsets of this wave's 4 token blocks
v_mov_b32_dpp v11, v10 {HI}
s_and_b32 s46, s2, {OPT["r1"]-1}
s_lshl_b32 s46, s46, 15
s_add_u32 s46, s46, {F1_OFF}
s_lshl_b32 s43, s5, 2
s_add_u32 s42, s40, s43
s_mul_i32 s42, s42, {QK_TILE}
s_add_u32 s50, s42, {Q_OFF}
s_mul_i32 s47, s40, {16*KV_REC}
s_add_u32 s47, s47, {KV_OFF}""")
    A(f"s_and_b32 s43, s5, {OPT['kr']}")
    for i in range(16):
        A(f"s_add_u32 s42, s43, {i}\ns_and_b32 s42, s42, 15\ns_mul_i32 s42, s42, {KV_REC}\ns_add_u32 s{TB+i}, s42, s47")
    for j in range(4):
        A(f"""s_add_u32 s42, s40, {j}
s_and_b32 s42, s42, 3
s_lshl_b32 s42, s42, 11
s_add_u32 s42, s42, {QX}
v_add_u32 v{240+j}, s42, v8
s_add_u32 s42, s40, {j+1}
s_and_b32 s42, s42, 3
s_mul_i32 s42, s42, 12288
s_add_u32 s42, s42, {MERGE + (4096*j if j < 3 else 0)}
v_add_u32 v{244+j}, s42, v8""")
    A(f"""s_add_u32 s41, s40, 3
s_and_b32 s41, s41, 3
s_lshl_b32 s43, s5, 2
s_add_u32 s41, s41, s43        ; token tile kept by this wave
s_lshl_b32 s26, s41, 15
s_lshl_b32 s42, s4, 11
s_add_u32 s26, s26, s42
s_add_u32 s26, s26, {O_OFF}
s_lshl_b32 s27, s41, 11
s_lshl_b32 s42, s4, 7
s_add_u32 s27, s27, s42
s_add_u32 s27, s27, {FO_OFF}
s_bfe_u32 s42, s2, 0x20001
s_or_b32 s43, s43, s42         ; token tile of the projection
s_and_b32 s53, s2, 1
s_and_b32 s52, s53, {OPT["ro"]-1}
s_lshl_b32 s53, s53, 1
s_bfe_u32 s42, s2, 0x10003
s_or_b32 s53, s53, s42
{"s_mov_b32 s52, s53" if OPT["ro"] == 4 else ""}
s_lshl_b32 s52, s52, 17
s_lshl_b32 s53, s53, 2
s_add_u32 s53, s53, s40        ; n tile
s_lshl_b32 s45, s43, 15
s_lshl_b32 s44, s40, 13
s_add_u32 s45, s45, s44
s_add_u32 s45, s45, {O_OFF}
s_add_u32 s47, s45, 4096
s_mul_i32 s41, s43, {32*1792}
s_lshl_b32 s42, s53, 6
s_add_u32 s41, s41, s42
s_add_u32 s41, s41, 896
s_lshl_b32 s42, s43, 11
s_add_u32 s52, s52, s42
s_lshl_b32 s42, s40, 9
{"s_add_u32 s52, s52, s42" if OPT["ol"] in (0, 3, 4) else ""}
s_add_u32 s52, s52, {FO_OFF}
v_and_b32 v249, {3 if OPT["ol"] in (0, 3, 4) else 15}, v0
v_lshlrev_b32 v249, 7, v249     ; flags polled
v_lshrrev_b32 v15, 5, v0
v_and_b32 v14, 31, v0
v_mul_u32_u24 v250, 1792, v14
v_lshl_add_u32 v250, v15, 4, v250
v_lshrrev_b32 v251, 3, v0
v_lshlrev_b32 v251, 17, v251
v_and_b32 v13, 7, v0
v_lshl_add_u32 v251, v13, 4, v251
v_bfe_u32 v9, v0, 2, 2        ; rr
v_and_b32 v10, 3, v0
v_lshrrev_b32 v12, 1, v10
v_and_b32 v10, 1, v10
v_lshl_or_b32 v10, v10, 1, v12    ; sigma(cc)
v_bfe_u32 v12, v0, 4, 1
v_lshlrev_b32 v12, 5, v12
v_lshl_or_b32 v10, v10, 3, v12
s_lshl_b32 s42, s40, 6
v_or_b32 v10, s42, v10          ; column byte
v_mul_u32_u24 v12, 320, v9
v_xor_b32 v252, v10, v12
v_lshl_add_u32 v252, v15, 10, v252  ; rows 4h+rr
v_lshl_or_b32 v9, v15, 1, v9
v_mul_u32_u24 v12, 320, v9
v_xor_b32 v253, v10, v12        ; rows rr (h=0) / 2,3,2,3 (h=1)
v_add_u32 v254, {224*256}, v252
v_add_u32 v255, {224*256}, v253
v_mov_b32 v6, v8""")
    if OPT["pw"]:
        A(f"s_sub_u32 s60, s{TAG}, {TAGC}")
        flagstore("s27", OPT["ro"], 131072, 40, "s60")
    for i in range(64): A(f"v_mov_b32 v{O+i}, 0")
    assert OPT["wg"]
    A(f"s_cmp_ge_u32 s51, 11\ns_cbranch_scc1 {A1LD}")
    if OPT["bp"]: A("s_setprio 3")
    if OPT["pg"] == 0: lds_wait(C_X, 1, 1)
    elif OPT["pg"] == 1: lds_wait(C_P1, 1, 1)
    elif OPT["pg"] == 2: lds_wait(C_LF, 4, 1)
    else: lds_wait(C_H, OPT["pn"], 1)
    for x in WL[OPT["wm"]:]: A(x)
    A(f"s_cmp_lg_u32 s51, 10\ns_cbranch_scc1 {ATT2}")
    for x in WL[:OPT["wm"]]: A(x)
    A(f"{ATT2}:\ns_setprio 3")
    stamp(5)
    resident(248, 15)
    kvp = f"buffer_load_dword v14, v11, {W}, s46 offen {PM}"
    MQK, MV = "s_mov_b32 exec_lo, 0xffff", "s_bfm_b64 exec, 16, 16"
    spin(kvp, 14, OPT["sl1"], MQK if OPT["vs"] else None)
    stamp(6)
    t0, t1 = tile_loads(0, TB), tile_loads(1, TB+1)
    A(f"""{t0[0]}
buffer_load_dwordx4 {q(0,0)}, v1, {W}, s50 offen {SC}
{t0[1]}
buffer_load_dwordx4 {q(0,1)}, v2, {W}, s50 offen {SC}""")
    if OPT["vs"] == 1: A(f"{MV}\n{kvp}\ns_mov_b64 exec, -1")
    F = OPT["ft"]
    issued = [(t, k) for t in range(1, F) for k in range(2)]
    for t, k in issued: A(tile_loads(t, TB+t)[k])
    lds_wait(C_LF, 4)
    if OPT["cl"]:
        LC_ = A.lab("noc")
        A(f"s_cmp_lt_u32 s51, 11\ns_cbranch_scc1 {LC_}\nv_add_u32 v9, s44, v6")
        for f in range(8): A(f"ds_write_b128 v9, {vr(S+32+4*f,4)} offset:{CX+1024*f}")
        A(f"{LC_}:")
    A(f"s_waitcnt vmcnt({len(issued)})")
    stamp(4)
    def vcheck():
        LV_ = A.lab("vok")
        A(f"{MV}\nv_cmp_ne_u32 vcc, s{TAG}, v14\ns_mov_b64 exec, -1\ns_cbranch_vccz {LV_}")
        spin(kvp, 14, OPT["sl1"], MV)
        A(f"{LV_}:")
    A(f"""v_mov_b32_dpp v{Q+6}, v7 {HI}
v_mov_b32_dpp v{Q+7}, v7 {HI}
v_mov_b32_dpp v{kb(0,1)+2}, v4 {HI}
{MFMA} {vr(S+16,16)}, {vr(kb(0,0),4)}, {q(0,0)}, 0""")
    if not OPT["vs"]: A(t0[2])
    A(f"{MFMA} {vr(S+16,16)}, {vr(kb(0,1),4)}, {q(0,1)}, {vr(S+16,16)}")
    if not OPT["vs"]: A(t0[3])
    A(f"""{MFMA} {vr(S,16)}, {vr(kb(0,0),4)}, {q(0,0)}, 0
ds_write_b128 v240, {q(0,0)}""")
    if not OPT["vs"]:
        for x in t1[:2]: A(x)
    s_ = S+16
    A("; softmax shift = row maximum over 16 keys of the first tile, negated into Q's spare slot (K holds 1.0 there)")
    A(f"v_max3_f32 v8, v{s_}, v{s_+1}, v{s_+2}\nv_max3_f32 v9, v{s_+3}, v{s_+4}, v{s_+5}")
    for i in range(6, 14, 4): A(f"v_max3_f32 v8, v8, v{s_+i}, v{s_+i+1}\nv_max3_f32 v9, v9, v{s_+i+2}, v{s_+i+3}")
    A(f"""v_max3_f32 v8, v8, v{s_+14}, v{s_+15}
v_max_f32 v8, v8, v9
v_cvt_pk_bf16_f32 v8, -v8, v7
v_mov_b32_dpp v{Q+6}, v8 {HI}
ds_write_b128 v240, {q(0,1)} offset:1024
{MFMA} {vr(S,16)}, {vr(kb(0,1),4)}, {q(0,1)}, {vr(S,16)}""")
    lds_add(C_Q)
    vcheck()
    more = [(0,2),(0,3),(1,0),(1,1),(1,2),(1,3)] if F == 1 else [(t, k) for t in range(F) for k in (2, 3)]
    for t, k in more: A(tile_loads(t, TB+t)[k])
    issued += more
    qreads = [f"ds_read_b128 {q(j,h)}, v{240+j} offset:{1024*h}" for j in range(1, 4) for h in range(2)]
    PE = OPT["pe"] if F == 1 else 0
    if F == 1:
        for e in range(PE): A(f"v_exp_f32 v{S+e}, v{S+e}")
        lds_wait(C_Q, 4, 0, False)
        for x in qreads: A(x)
        A("s_waitcnt lgkmcnt(0)")
        stamp(7)
        lds_add(C_G2)
        A("s_setprio 1")
    else:
        stampw(7)
        A("s_setprio 1")
        if OPT["g3"]: lds_add(C_H)
    def mwrites(j):
        return ([f"ds_write_b128 v{244+j}, {vr(O+16*j+4*g,4)} offset:{1024*g}" for g in range(3)] +
                [f"ds_write_b96 v{244+j}, {vr(O+16*j+12,3)} offset:3072"])
    assert OPT["vs"] and OPT["pvd"]
    R = OPT["rt"]
    steps = [(i, j) for i in range(16 - R) for j in range(4)] + [(i, j) for j in range(4) for i in range(16 - R, 16)]
    steps = [(i, 0) for i in range(F)] + [x for x in steps if not (x[1] == 0 and x[0] < F)]
    if OPT["r4"]:
        steps.remove((15 - R, 3)); steps.insert(64 - R - 1, (15 - R, 3))
    def qk(n, h):
        i, j = steps[n]; d = vr(S+16*(n&3),16)
        return f"{MFMA} {d}, {vr(kb(i&3,h),4)}, {q(j,h)}, {d if h else 0}"
    def pv(n, h):
        i, j = steps[n]
        return f"{SMF} {vr(O+16*j,16)}, {vr(kb(i&3,2+h),4)}, {vr(S+16*(n&3)+8*h,8)}, v5"
    slots = []
    seenk, seenv = {0}, set()
    pos = {}
    for n in range(64):
        ms = []
        if n < 63:
            t = steps[n+1][0]; first = t not in seenk; seenk.add(t)
            whole = F <= t <= 16 - max(R, 1)
            ms.append(dict(m=qk(n+1,0), need=[(t,k) for k in range(4 if whole else 2)] if first else None, use=(t,0),
                           after=[f"v_mov_b32_dpp v{kb(t&3,1)+2}, v4 {HI}"] if first else []))
            ms.append(dict(m=qk(n+1,1), need=None, after=[], use=(t,1)))
        ops = {0: [], 1: [], 2: [(0,0),(0,1)], 3: [(1,0),(1,1),(2,0)], 4: [(2,1),(3,0),(3,1)], 5: [(4,0),(4,1),(5,0)]}.get(n, [(n-1,1),(n,0)])
        if n == 63: ms += [dict(m=None, need=None, after=[])]
        for o in ops:
            t = steps[o[0]][0]
            ms.append(dict(m=pv(*o), need=[(t,2),(t,3)] if t not in seenv else None, after=[], op=o, use=(t,2+o[1]))); seenv.add(t)
            if n == 63 and o[1] == 1: ms.append(dict(m=None, need=None, after=[]))
        while len(ms) < 4: ms.append(dict(m=None, need=None, after=[]))
        e0 = PE if n == 0 else 0
        cnt = [(16-e0)//4]*4 if len(ms) == 4 else [3,3,3,3,4]
        for g, x in enumerate(ms):
            x["exps"] = [S+16*(n&3)+e for e in range(e0, e0+cnt[g])]; e0 += cnt[g]; x["step"] = n; x["g"] = g
            if "op" in x: pos[x["op"]] = len(slots)
            pos[("s", n, g)] = len(slots)
            slots.append(x)
    def addload(n, g, t, k): slots[pos[("s", n, g)]]["after"].append((t, k))
    early = [(t, k) for t in range(1, 4) for k in range(4) if (t, k) not in issued]
    p = 0
    while early:
        if slots[p]["m"]:
            for _ in range(2 if p < 2 and len(early) > 4 else 1):
                if early: slots[p]["after"].append(early.pop(0))
        p += 1
    for t in range(4, 16):
        for k in range(4):
            lastuse = max(z for z, x in enumerate(slots) if x.get("use") == (t-4, k))
            z = max(pos[("s", 4*(t-3) - 1 + k, OPT["lg"])], lastuse + 1, p)
            slots[z]["after"].append((t, k)); p = z + 1
    if F > 1:
        bq, oq, offq = cref(C_Q)
        z = pos[("s", F-1, 0)]
        rq = [f"ds_read_b32 v13, {bq}{offq}"] + qreads
        slots[z-2]["after"] += rq[:4]; slots[z-1]["after"] += rq[4:]
        slots[z]["qcheck"] = True
    p = 0; tailw = []
    for j in range(3):
        last = max(n for n in range(64) if steps[n][1] == j)
        p = max(p, pos[(last, 1)] + 3)
        for w in mwrites(j):
            if p < len(slots): slots[p]["after"].append(w); p += 1
            else: tailw.append(w)
    b_, o_, off_ = cref(C_MERGE)
    spec = OPT["sm"] and not tailw and p <= len(slots) - 4
    madd = ["s_mov_b64 exec, 1", f"ds_add_u32 {b_}, {o_}{off_}", "s_mov_b64 exec, -1"]
    mreads = [f"ds_read_b128 {vr(O+4*g,4)}, v247 offset:{1024*g}" for g in range(12)]
    if not tailw: slots[p-1]["after"] += madd
    if spec:
        rd_ = [f"ds_read_b32 v13, {b_}{off_}"] + mreads
        for z, k in (zip((-3, -2, -1), (5, 4, 4)) if OPT["sm"] == 1 else zip((-2, -1), (7, 6)) if OPT["sm"] == 2 else ((-1, 13),)):
            slots[z]["after"] += rd_[:k]; rd_ = rd_[k:]
    landed = -1
    if slots[0]["need"]:
        landed = max(issued.index(z) for z in slots[0]["need"]); A(f"s_waitcnt vmcnt({len(issued)-1-landed})")
    for p_, x in enumerate(slots):
        if x["g"] == 0:
            n = x["step"]
            if n == 32: stamp(8)
            if OPT["ts"] == 2 and n in (16, 48): stamp(2 if n == 16 else 3)
        if x.get("qcheck"):
            LQ = A.lab("qok")
            A(f"s_waitcnt lgkmcnt(0)\nv_readfirstlane_b32 s60, v13\ns_cmp_ge_u32 s60, 4\ns_cbranch_scc1 {LQ}")
            lds_wait(C_Q, 4)
            for y in qreads: A(y)
            A(f"s_waitcnt lgkmcnt(0)\n{LQ}:")
            x["after"] = x["after"] + ["s_mov_b64 exec, 1", f"ds_add_u32 {bq}, {oq} offset:{C_G2-CNT}", "s_mov_b64 exec, -1"]
        if x["m"]: A(x["m"])
        for y in x["after"]:
            if isinstance(y, tuple): A(tile_loads(y[0] & 3, TB+y[0])[y[1]]); issued.append(y)
            else: A(y)
        nx = slots[p_+1]["need"] if p_ + 1 < len(slots) else None
        late = bool(nx) and x["step"] < 6
        def wait():
            nonlocal landed
            if nx and max(issued.index(z) for z in nx) > landed:
                landed = max(issued.index(z) for z in nx); A(f"s_waitcnt vmcnt({len(issued)-1-landed})")
        if not late: wait()
        for r in x["exps"]: A(f"v_exp_f32 v{r}, v{r}")
        if late: wait()
    for x in tailw[:2]: A(x)
    A(pv(63, 1))
    for x in tailw[2:]: A(x)
    stamp(9)
    A("s_setprio 3")
    LMD = A.lab("merged")
    if spec: A(f"s_waitcnt lgkmcnt({0 if STAMPS else 12})\nv_readfirstlane_b32 s60, v13\ns_cmp_ge_u32 s60, 4\ns_cbranch_scc1 {LMD}")
    if tailw: lds_sync(C_MERGE, 4)
    else: lds_wait(C_MERGE, 4)
    for x in mreads: A(x)
    A(f"{LMD}:\ns_waitcnt lgkmcnt(4)")
    for i in list(range(14, -2, -2)): A(f"v_pk_add_f32 {vr(O+i,2)}, {vr(O+i,2)}, {vr(O+16+i,2)}")
    A("s_waitcnt lgkmcnt(0)")
    for i in list(range(14, -2, -2)): A(f"v_pk_add_f32 {vr(O+i,2)}, {vr(O+i,2)}, {vr(O+32+i,2)}")
    for i in list(range(14, -2, -2)): A(f"v_pk_add_f32 {vr(OK+i,2)}, {vr(OK+i,2)}, {vr(O+i,2)}")
    A("; run-time check of the softmax shift: row sums outside [2^-40, 2^40] (or NaN) take the true-max path")
    A(f"""v_cmp_nle_f32 vcc, {f32(2.0**-40)}, v{OK+14}
s_mov_b64 s[48:49], vcc
v_cmp_nge_f32 vcc, {f32(2.0**40)}, v{OK+14}
s_or_b64 vcc, vcc, s[48:49]
s_cbranch_vccnz {LFB}
{LN}:
v_rcp_f32 v10, v{OK+14}
v_mov_b32 v{S+7}, 0
v_mov_b32 v11, v10""")
    for i in range(0, 14, 2):
        A(f"v_pk_mul_f32 {vr(OK+i,2)}, {vr(OK+i,2)}, v[10:11]")
        A(f"v_cvt_pk_bf16_f32 v{S+i//2}, v{OK+i}, v{OK+i+1}")
        if i == 6: A(f"buffer_store_dwordx4 {vr(S,4)}, v6, {W}, s26 offen {SC}")
    A(f"buffer_store_dwordx4 {vr(S+4,4)}, v6, {W}, s26 offen offset:1024 {SC}")
    stamp(10)
    if OPT["gp"] == 0: lds_add(C_GO)
    A("; ---- B3: wo fragments go to registers while the O stores drain ----")
    WF = 112; BACC = 16; OB = 64; NB = 6
    assert WO == 0 and OST == 0
    K28 = OPT["k28"]
    def wo_frags(half, n0=0, n1=16):
        cnt = 0
        for n in range(n0, n1):
            hd, i = n >> 1, n & 1
            if K28 and i and hd & 3 == 3: continue
            b = WF + 64*half + 4*n
            row = 28*hd + 16*i
            A(f"ds_read_b64_tr_b16 {vr(b,2)}, v{252+2*half} offset:{row*256}")
            if K28 and i: A(f"ds_read_b64_tr_b16 {vr(b+2,2)}, v{16+3*half+(hd&3)} offset:{28*hd*256}")
            else: A(f"ds_read_b64_tr_b16 {vr(b+2,2)}, v{(253 if i else 252)+2*half} offset:{(row+8)*256}")
            cnt += 1
            if cnt % 6 == 0: A("s_waitcnt lgkmcnt(2)")
    if K28:
        A("""v_bfe_u32 v9, v0, 2, 2
v_mul_u32_u24 v10, 320, v9
v_lshrrev_b32 v11, 5, v0
v_lshl_add_u32 v10, v11, 10, v10
v_xor_b32 v10, v252, v10        ; column byte
v_cmp_gt_u32 vcc, 2, v9
v_lshl_add_u32 v7, v11, 1, v9   ; 2h + rr
v_lshl_add_u32 v8, v11, 2, v9   ; 4h + rr
v_add_u32 v9, 24, v7""")
        for z, (src, c) in enumerate(((8, 84+16-2), (8, 56+18-2), (7, 28+24-2))):
            A(f"""v_add_u32 v11, {c}, v{src}
v_cndmask_b32 v11, v11, v9, vcc
v_and_b32 v14, 3, v11
v_lshlrev_b32 v14, 6, v14
v_lshl_or_b32 v11, v11, 8, v14
v_xor_b32 v{16+z}, v10, v11
v_add_u32 v{19+z}, {224*256}, v{16+z}""")
    for i in range(4): A(f"v_mov_b32 v{40+i}, s{TAG}")
    lds_wait(C_WOA, 4)
    wo_frags(0)
    if OPT["fo"] >= 3: lds_add(C_WOF)
    A("s_waitcnt lgkmcnt(2)")
    if OPT["fo"] == 2: wo_frags(1)
    poll = f"buffer_load_dword v14, v249, {W}, s52 offen {PM}"
    A(f"""{execmask(8*OPT["ro"])}
s_waitcnt vmcnt(0)
buffer_store_dwordx4 v[40:43], v251, {W}, s27 offen {FM}
s_mov_b64 exec, -1""")
    if OPT["ts"] == 1: stamp(2)
    if OPT["gp"] == 1: lds_add(C_GO)
    if OPT["ap"]: A(poll)
    if OPT["fo"] == 4: wo_frags(1, 0, 8)
    if OPT["fo"] >= 3: lds_wait(C_WOF, 4)
    else:
        if OPT["fo"] != 2: wo_frags(1)
        lds_sync(C_WOF, 4)
    if OPT["ts"] == 1: stamp(3)
    def odma():
        for half in range(2):
            A(f"s_add_u32 m0, s44, {OST+4096*half}")
            for i in range(4):
                A(f"buffer_load_dwordx4 v6, {W}, s{47 if half else 45} offen offset:{1024*i} {SC} lds")
    def btsetup():
        if OPT["bt"]:
            A(f"""s_lshl_b32 s42, s40, 11
s_add_u32 s42, s42, 32768
v_and_b32 v9, 31, v0
v_lshrrev_b32 v10, 5, v0
v_bfe_u32 v11, v0, 1, 2
v_xor_b32 v10, v10, v11
v_lshlrev_b32 v10, 4, v10
v_lshl_or_b32 v1, v9, 6, v10
v_add_u32 v1, s42, v1
v_xor_b32 v2, 32, v1
v_bfe_u32 v9, v0, 3, 2
v_lshlrev_b32 v9, 4, v9
v_xor_b32 v3, v6, v9
v_add_u32 v3, s42, v3
v_lshrrev_b32 v9, 2, v0
v_mul_u32_u24 v9, 1792, v9
v_and_b32 v10, 3, v0
v_lshl_add_u32 v4, v10, 4, v9
s_add_u32 s42, s41, {16*1792}""")
    if not OPT["dyn"]:
        LR = A.lab("oready")
        if OPT["ap"]: A(f"s_waitcnt vmcnt(0)\nv_cmp_ne_u32 vcc, s{TAG}, v14\ns_cbranch_vccz {LR}")
        if OPT["ol"] == 1:
            acquire(R_KV, lambda: A(f"{poll}\ns_waitcnt vmcnt(0)\nv_cmp_ne_u32 vcc, s{TAG}, v14"), OPT["sl1"], 0)
        elif OPT["ol"] == 4:
            btsetup()
            LP_, LD_ = A.lab("op"), A.lab("opd")
            A(f"""s_mov_b32 s61, {SPIN}
s_mov_b32 s50, 15
{LP_}:
{poll}
s_sub_u32 s61, s61, 1
s_waitcnt vmcnt(0)
v_cmp_eq_u32 vcc, s{TAG}, v14
s_cmp_eq_u32 s61, 0
s_cselect_b32 s51, 15, vcc_lo
s_and_b32 s51, s51, s50
s_andn2_b32 s50, s50, s51""")
            for z in range(4):
                LN_ = A.lab("opn")
                A(f"""s_add_u32 m0, s44, {OST+4096*(z>>1)}
s_bitcmp0_b32 s51, {z}
s_cbranch_scc1 {LN_}
buffer_load_dwordx4 v6, {W}, s{47 if z>>1 else 45} offen offset:{2048*(z&1)} {SC} lds
buffer_load_dwordx4 v6, {W}, s{47 if z>>1 else 45} offen offset:{2048*(z&1)+1024} {SC} lds
{LN_}:""")
            A(f"s_cmp_lg_u32 s50, 0\ns_cbranch_scc1 {LP_}")
        else: spin(poll, 14, OPT["sl1"])
        if OPT["ol"] == 3: lds_sync(R_KV, 4)
        A(f"{LR}:")
        stamp(11)
        if OPT["ol"] != 4: odma(); btsetup()
        if OPT["fo"] == 3: wo_frags(1)
        if OPT["fo"] == 4: wo_frags(1, 8, 16)
        lds_sync(C_OST, 4, 0, "s_waitcnt vmcnt(0)")
        stampw(12)
        A(f"s_cmp_ge_u32 s53, 14\ns_cbranch_scc1 {END}")
        if K28:
            items = []
            for g4 in range(4):
                items.append((8*g4+7, -1))
                for n in range(8*g4, 8*g4+7): items.append((n, (n >> 1) & 3 if n & 1 else None))
            NBK = 8
            def buf(z): return (96 + 4*((items[z][0] >> 3) & 1)) if items[z][1] == -1 else OB + 4*(z % NBK)
            def rdk(z): A(f"ds_read_b128 {vr(buf(z),4)}, v6 offset:{1024*items[z][0]}")
            nrd = 6
            for z in range(nrd): rdk(z)
            first = True; waited = -1
            def ready(z):
                nonlocal waited
                if z > waited: A(f"s_waitcnt lgkmcnt({nrd-1-z})"); waited = z
                if items[z][1] is not None: A(f"v_mov_b32 v{buf(z)+3}, v{96 + 4*((items[z][0] >> 3) & 1) + items[z][1]}")
            ms = [z for z in range(32) if items[z][1] != -1]
            ready(ms[0])
            for k, z in enumerate(ms):
                A(f"{MFMA} {vr(BACC,16)}, {vr(WF+4*items[z][0],4)}, {vr(buf(z),4)}, {vr(BACC,16) if k else 0}")
                if k + 1 < len(ms): ready(ms[k+1])
                while nrd < 32 and nrd < z + 7: rdk(nrd); nrd += 1
        else:
            def rd(n): A(f"ds_read_b128 {vr(OB+4*(n%NB),4)}, v6 offset:{1024*n}")
            for n in range(NB-1): rd(n)
            for n in range(32):
                left = min(31, n+NB-2) - n
                A(f"s_waitcnt lgkmcnt({left})\n{MFMA} {vr(BACC,16)}, {vr(WF+4*n,4)}, {vr(OB+4*(n%NB),4)}, {vr(BACC,16) if n else 0}")
                if n + NB - 1 < 32: rd(n + NB - 1)
    else:
        LL, LM, LNONE, LC, LX = A.lab("b3l"), A.lab("b3m"), A.lab("b3n"), A.lab("b3c"), A.lab("b3x")
        LG = [A.lab("b3g") for _ in range(4)]
        GA = (16, 32, 48, 96) if OPT["dyn"] == 1 else (16, 16, 16, 16)
        btsetup()
        if OPT["dyn"] == 2:
            for i in range(16): A(f"v_mov_b32 v{16+i}, 0")
        A(f"""v_mov_b32 v12, {C_OST}
s_lshl_b32 s54, 1, s40
v_mov_b32 v10, s54
s_mov_b32 s50, 0
s_cmp_ge_u32 s53, 14
s_cselect_b32 s51, 15, 0
s_mov_b32 s61, {SPIN}
{LL}:
s_cmp_lg_u32 s50, 0
s_cbranch_scc1 {LM}
{poll}
{LM}:
ds_read_b32 v13, v12
s_waitcnt lgkmcnt(0)
v_readfirstlane_b32 s60, v13
s_andn2_b32 s60, s60, s51
s_cbranch_scc0 {LNONE}
s_ff1_i32_b32 s54, s60
s_bitset1_b32 s51, s54
s_cmp_eq_u32 s54, 1
s_cbranch_scc1 {LG[1]}
s_cmp_eq_u32 s54, 2
s_cbranch_scc1 {LG[2]}
s_cmp_eq_u32 s54, 3
s_cbranch_scc1 {LG[3]}""")
        for g in range(4):
            A(f"{LG[g]}:")
            for n in range(4): A(f"ds_read_b128 {vr(OB+4*n,4)}, v6 offset:{1024*(8*g+n)}")
            for n in range(8):
                left = min(7, n+3) - n
                c = vr(GA[g],16) if (n or OPT["dyn"] == 2) else 0
                A(f"s_waitcnt lgkmcnt({left})\n{MFMA} {vr(GA[g],16)}, {vr(WF+32*g+4*n,4)}, {vr(OB+4*n,4)}, {c}")
                if n + 4 < 8: A(f"ds_read_b128 {vr(OB+4*(n+4),4)}, v6 offset:{1024*(8*g+n+4)}")
            A(f"s_cmp_eq_u32 s51, 15\ns_cbranch_scc0 {LC}\ns_branch {LX}")
        A(f"""{LNONE}:
s_cmp_lg_u32 s50, 1
s_cbranch_scc1 {LC}
s_mov_b64 exec, 1
s_waitcnt vmcnt(0)
ds_or_b32 v12, v10
s_mov_b64 exec, -1
s_mov_b32 s50, 2
s_cmp_eq_u32 s51, 15
s_cbranch_scc1 {END}
s_branch {LM}
{LC}:
s_cmp_lg_u32 s50, 0
s_cbranch_scc1 {LM}
s_sub_u32 s61, s61, 1
s_waitcnt vmcnt(0)
v_cmp_ne_u32 vcc, s{TAG}, v14
s_cmp_eq_u32 s61, 0
s_cselect_b64 vcc, 0, vcc
s_cbranch_vccnz {LL}""")
        stamp(11)
        odma()
        A(f"s_mov_b32 s50, 1\ns_branch {LM}\n{LX}:\ns_nop 8")
        if OPT["dyn"] == 1:
            for i in range(0, 16, 2):
                A(f"v_pk_add_f32 {vr(16+i,2)}, {vr(16+i,2)}, {vr(32+i,2)}\nv_pk_add_f32 {vr(48+i,2)}, {vr(48+i,2)}, {vr(96+i,2)}")
            for i in range(0, 16, 2): A(f"v_pk_add_f32 {vr(16+i,2)}, {vr(16+i,2)}, {vr(48+i,2)}")
    if OPT["bt"]:
        for i in range(8):
            A(f"v_cvt_pk_bf16_f32 v{32+i}, v{BACC+2*i}, v{BACC+2*i+1}")
            if i == 3: A("ds_write_b128 v1, v[32:35]")
        A(f"""ds_write_b128 v2, v[36:39]
ds_read_b128 v[40:43], v3
ds_read_b128 v[44:47], v3 offset:1024
s_waitcnt lgkmcnt(1)
buffer_store_dwordx4 v[40:43], v4, {sr(SO,4)}, s41 offen {OBM}
s_waitcnt lgkmcnt(0)
buffer_store_dwordx4 v[44:47], v4, {sr(SO,4)}, s42 offen {OBM}
s_branch {END}""")
        return
    for i in range(8):
        A(f"v_cvt_pk_bf16_f32 v{32+i}, v{BACC+2*i}, v{BACC+2*i+1}")
        if i == 3: A(f"buffer_store_dwordx4 v[32:35], v250, {sr(SO,4)}, s41 offen {OBM}")
    A(f"""buffer_store_dwordx4 v[36:39], v250, {sr(SO,4)}, s41 offen offset:32 {OBM}
s_branch {END}""")

def helper():
    resident(None, None)
    A("; ==== helper waves: A2, staging of wo, A3 ====")
    SWO = 32
    def wo_run(upto):
        LW, LD = A.lab("wo"), A.lab("wod")
        A(f"""{LW}:
s_cmp_le_i32 s96, {upto}
s_cbranch_scc1 {LD}
s_mov_b32 m0, s98
s_waitcnt vmcnt({-OPT["wos"]})
buffer_load_dwordx4 v250, {sr(SWO,4)}, s97 offen lds
s_sub_u32 s98, s98, 4096
s_sub_u32 s97, s97, {16*896}
s_sub_u32 s96, s96, 1
s_branch {LW}
{LD}:""")
    T, AC2, WA, WB, Y = 16, 48, 64, 72, 80
    LNOA2, LNY2, LP2 = "L_noa2", A.lab("nyq"), A.lab("pub2")
    A(f"{HELP2}:")
    if OPT["x"] >= 4:
        lds_add(C_WOA); A(f"s_branch {END}")
    stamp(11)
    resident(253, 254)
    wsetup(True)
    A(f"""v_lshrrev_b32 v9, 4, v0
v_and_b32 v8, 15, v0
v_lshlrev_b32 v10, 2, v9
v_xor_b32 v8, v8, v10
v_lshlrev_b32 v8, 4, v8
v_mul_u32_u24 v9, 896, v9
v_add_u32 v250, v8, v9
v_mul_u32_u24 v252, {T2_Q}, v15
v_lshl_add_u32 v251, v14, 4, v252 ; T2 offset (A3)
v_add_u32 v252, {224*16}, v252  ; Nyquist column
s_cmp_eq_u32 s40, 3
s_cselect_b32 s42, 0, {16*1024}
v_mul_u32_u24 v255, s42, v15
v_lshl_add_u32 v255, v14, 7, v255
s_lshl_b32 s42, s40, 12
v_add_u32 v255, s42, v255       ; flags of the A2 units behind this wave's k tiles""")
    A(f"""s_lshr_b32 s5, s2, 3
v_lshrrev_b32 v8, 3, v0         ; LDS row (mod 8) = 2*p + h
v_and_b32 v9, 4, v8
v_bfe_u32 v10, v8, 1, 1
v_or_b32 v9, v9, v10
v_and_b32 v8, 1, v8
v_lshl_or_b32 v9, v8, 1, v9     ; s2 mod 8 = 4*(p>>1) + 2h + (p&1)
v_mul_u32_u24 v1, {T_ROW}, v9
v_bfe_u32 v8, v0, 2, 1
v_lshl_add_u32 v1, v8, 9, v1
v_and_b32 v8, 3, v0
v_lshl_add_u32 v1, v8, 4, v1    ; T offset
s_lshl_b32 s41, s5, 10
s_lshl_b32 s42, s4, 6
s_add_u32 s41, s41, s42
s_add_u32 s41, s41, {T_OFF}
s_mul_i32 s42, s40, {16*T_ROW}
s_add_u32 s41, s41, s42
s_mul_i32 s44, s5, 43
s_lshr_b32 s44, s44, 8          ; g5
s_lshl_b32 s45, s44, 11
s_and_b32 s46, s2, {OPT["r1"]-1}
s_lshl_b32 s46, s46, 15
s_add_u32 s46, s46, {F1_OFF + 11*2048}
v_and_b32 v9, 15, v0
v_lshlrev_b32 v9, 7, v9
v_add_u32 v9, s45, v9
s_lshl_b32 s43, s40, 11
s_add_u32 m0, s43, {TX}
s_add_u32 s47, s41, {8*T_ROW - 1024}
s_nop 0""")
    A(f"""v_lshlrev_b32 v4, 4, v0
s_cmp_eq_u32 s5, 28             ; Nyquist unit: filter times i, i.e. (re,im) = (-w_i, w_r)
s_cselect_b32 s45, 14, 0
{"v_and_b32 v8, 3, v14" if OPT["ln"] else "v_lshrrev_b32 v8, 3, v14"}        ; u1 local
{"v_lshrrev_b32 v7, 2, v14" if OPT["ln"] else "v_and_b32 v7, 7, v14"}            ; k local
v_lshl_add_u32 v2, v15, 3, v8
v_lshlrev_b32 v2, 4, v2
v_lshl_add_u32 v2, v7, 1, v2
s_add_u32 s42, s43, s45
s_add_u32 s42, s42, {WX}
v_add_u32 v2, s42, v2
v_mul_u32_u24 v3, {2*T2_ROW}, v15
v_lshl_add_u32 v3, v7, 4, v3
v_lshl_add_u32 v3, v8, 2, v3    ; T2 offset
v_lshrrev_b32 v5, 2, v7
v_lshl_add_u32 v5, v15, 1, v5
v_lshl_add_u32 v5, v5, 2, v8
v_and_b32 v10, 3, v7
v_lshl_add_u32 v5, v5, 2, v10
v_lshlrev_b32 v5, 2, v5
v_add_u32 v5, {TX}, v5
v_add_u32 v8, {EX}, v4
v_add_u32 v7, s43, v8
s_mul_i32 s53, s40, {16*T2_ROW}
s_mul_i32 s42, s4, {T2_Q}
s_add_u32 s53, s53, s42
s_lshl_b32 s42, s5, 7
s_add_u32 s53, s53, s42
s_add_u32 s53, s53, {T2_OFF}""")
    if OPT["tw2"]:
        A(f"""v_lshlrev_b32 v3, 2, v14
v_lshl_add_u32 v3, v15, 8, v3
s_add_u32 s42, s43, {WX}
v_add_u32 v3, s42, v3
v_add_u32 v6, 1024, v3
v_lshrrev_b32 v88, 3, v0
v_mul_u32_u24 v88, {T2_ROW}, v88
v_and_b32 v10, 7, v0
v_lshl_add_u32 v88, v10, 4, v88""")
    for i in range(16): A(f"v_mov_b32 v{WA+i}, 0")
    if OPT["wg"]:
        L1, L2, L3 = A.lab("tw"), A.lab("tw"), A.lab("tw")
        srd(32, P_WR, W_BYTES)
        A(f"""s_lshr_b32 s42, s2, 3
s_mul_i32 s48, s42, {64*450}
s_mul_i32 s49, s4, {4*450}
s_add_u32 s48, s48, s49
s_and_b32 s48, s48, 0xffffff80
v_bfe_u32 v249, v0, 4, 1
v_mul_u32_u24 v249, {32*450}, v249
v_and_b32 v10, 15, v0
v_lshl_add_u32 v249, v10, 7, v249
s_cmp_eq_u32 s40, 0
s_cbranch_scc1 {L1}""")
        srd(32, P_WI, W_BYTES)
        A(f"s_cmp_eq_u32 s40, 1\ns_cbranch_scc1 {L1}")
        srd(32, P_WO, WO_BYTES)
        A(f"""s_lshl_b32 s48, s42, 1
s_add_u32 s48, s48, s40
s_sub_u32 s48, s48, 2
s_mul_i32 s48, s48, {7*896}
s_and_b32 s49, s2, 1
s_lshl_b32 s49, s49, 9
s_add_u32 s48, s48, s49
v_bfe_u32 v249, v0, 2, 3
v_mul_u32_u24 v249, 896, v249
v_and_b32 v10, 3, v0
v_lshl_add_u32 v249, v10, 7, v249
{L1}:""")
        lds_wait(C_H if OPT["g3"] else C_G2, 4, 2)
        def tlate():
            LT_ = A.lab("tl")
            A(f"s_cmp_lt_u32 s7, 11\ns_cbranch_scc1 {LT_}")
            for x in TST: A(x)
            publish(C_P1, 26, OPT["r1"], 32768)
            stamp(5)
            A(f"{LT_}:")
        if OPT["tl"] == 1: tlate()
        if not OPT["y"] & 2 and not OPT["lt"]: A("s_mov_b32 exec_hi, 0\nbuffer_load_dword v89, v249, s[32:35], s48 offen\ns_mov_b64 exec, -1")
        if OPT["tl"] == 2: tlate()
        if OPT["cl"]: A("s_lshl_b32 s42, s40, 13\nv_add_u32 v249, s42, v4")
    if OPT["cl"]:
        LC_ = A.lab("noc")
        A(f"s_cmp_lt_u32 s7, 11\ns_cbranch_scc1 {LC_}")
        for f in range(8): A(f"ds_read_b128 {vr(C+4*f,4)}, v249 offset:{CX+1024*f}")
        A(f"{LC_}:")
    srd(SWO, P_WO, WO_BYTES)
    A(f"""s_and_b32 s97, s2, 1
s_lshl_b32 s97, s97, 1
s_bfe_u32 s98, s2, 0x10003
s_or_b32 s97, s97, s98
s_lshl_b32 s97, s97, 8
s_mul_i32 s98, s40, {4*896}
s_add_u32 s97, s97, s98
s_add_u32 s97, s97, {27*16*896}
s_lshl_b32 s98, s40, 10
s_add_u32 s98, s98, {27*4096}
s_mov_b32 s96, {0 if OPT["y"] & 1 else 28}
s_waitcnt vmcnt(0) lgkmcnt(0)""")
    A(f"s_cmp_ge_u32 s5, 29\ns_cbranch_scc1 {LNOA2}")
    if OPT["y"] & 4: A(f"s_branch {LNOA2}")
    if OPT["wg"] and not OPT["y"] & 2 and not OPT["wo2"]:
        A(f"s_add_u32 m0, s43, {WX}\ns_nop 0\nbuffer_load_dwordx4 v248, {sr(SX,4)}, s55 offen lds")
        if OPT["w1"]: wo_run(28 - OPT["w1"])
        else: A("s_waitcnt vmcnt(0)")
        A(f"s_add_u32 m0, s43, {WX+1024}\ns_nop 0\nbuffer_load_dwordx4 v248, s[56:59], s55 offen lds")
        if OPT["w1"]: wo_run(28 - 2*OPT["w1"])
        if not OPT["pb"]: A("s_waitcnt vmcnt(0)")
    def a1poll():
        A(f"""buffer_load_dword v10, v9, {W}, s46 offen {PM}
s_waitcnt vmcnt(0)
v_cmp_ne_u32 vcc, s{TAG}, v10""")
    if OPT["ad1"]: spin(f"buffer_load_dword v10, v9, {W}, s46 offen {PM}", 10, OPT["sl2"])
    else: acquire(R_A1, a1poll, OPT["sl2"], OPT["hs"])
    if OPT["pb"]: A("s_waitcnt vmcnt(0)")
    stamp(6)
    abl0 = len(A.ins)
    A(f"""s_add_u32 m0, s43, {TX}
s_setprio {OPT["hp"]}
buffer_load_dwordx4 v1, {W}, s41 offen {SC} lds
buffer_load_dwordx4 v1, {W}, s47 offen offset:1024 {SC} lds
s_nop 0""")

    def wreads():
        for j in range(8):
            A(f"ds_read_u16_d16_hi v{WA+j}, v2 offset:{(4*(j>>1)+(j&1))*64}")
        A("s_waitcnt lgkmcnt(4)")
        for j in range(8):
            A(f"ds_read_u16_d16_hi v{WB+j}, v2 offset:{(4*(j>>1)+(j&1))*64+1024}")
        A(f"s_waitcnt lgkmcnt(0)\ns_cmp_lg_u32 s5, 28\ns_cbranch_scc1 {LNY2}")
        for j in range(8): A(f"v_xor_b32 v{WA+j}, 0x80000000, v{WA+j}")
        A(f"{LNY2}:")
    if OPT["wo2"]:
        A(f"s_add_u32 m0, s43, {WX}\ns_nop 0\nbuffer_load_dwordx4 v248, {sr(SX,4)}, s55 offen lds")
    else: wreads()
    A("s_waitcnt vmcnt(0)")
    if OPT["wo2"]: A(f"s_add_u32 m0, s43, {WX+1024}\ns_nop 0\nbuffer_load_dwordx4 v248, s[56:59], s55 offen lds")
    lds_sync(C_T, 4, OPT["hs"])
    if OPT["w2"] and not OPT["wo2"]: wo_run(max(16, 28 - 2*OPT["w1"] - OPT["w2"]))
    for m in range(0, 28, 2): A(f"ds_read2st64_b32 {vr(T+m,2)}, v5 offset0:{m} offset1:{m+1}")
    for f in range(8):
        if f == 1:
            for m in range(28, 32, 2): A(f"ds_read2st64_b32 {vr(T+m,2)}, v5 offset0:{m} offset1:{m+1}")
        A(f"s_waitcnt lgkmcnt({12 if f == 0 else 14-2*f})\n{MFMA} {vr(AC2,16)}, {vr(C+4*f,4)}, {vr(T+4*f,4)}, {vr(AC2,16) if f else 0}")
    if OPT["wo2"]:
        A("s_waitcnt vmcnt(0)")
        if OPT["w2"]: wo_run(28 - OPT["w2"])
        wreads()
    for j in range(8):
        xr, xi = AC2+2*j, AC2+2*j+1
        A(f"""v_mul_f32 v10, v{xr}, v{WA+j}
v_mul_f32 v11, v{xr}, v{WB+j}
v_fma_f32 v10, -v{xi}, v{WB+j}, v10
v_fmac_f32 v11, v{xi}, v{WA+j}
v_cvt_pk_bf16_f32 v{Y+j}, v11, v10""")
        if j == 3: A(f"ds_write_b128 v7, {vr(Y,4)}")
    A(f"ds_write_b128 v7, {vr(Y+4,4)} offset:1024")
    lds_sync(C_EX, 4, OPT["hs"])
    if OPT["w2"]: wo_run(max(16, 28 - 2*OPT["w1"] - 2*OPT["w2"]))
    for f in range(8): A(f"ds_read_b128 {vr(T+4*f,4)}, v8 offset:{1024*f}")
    for f in range(8):
        A(f"s_waitcnt lgkmcnt({7-f})\n{MFMA} {vr(AC2,16)}, {vr(C+4*f,4)}, {vr(T+4*f,4)}, {vr(AC2,16) if f else 0}")
    if OPT["tw2"]:
        for j in range(8):
            A(f"v_cvt_pk_bf16_f32 v{Y+j}, v{AC2+2*j+1}, v{AC2+2*j}")
            if j & 1: A(f"ds_write2_b32 v3, v{Y+j-1}, v{Y+j} offset0:{128*((j>>1)&1)} offset1:{128*((j>>1)&1)+32}" if j < 4 else
                        f"ds_write2_b32 v6, v{Y+j-1}, v{Y+j} offset0:{128*((j>>1)&1)} offset1:{128*((j>>1)&1)+32}")
        A(f"""ds_read_b128 {vr(T,4)}, v7 offset:{WX-EX}
ds_read_b128 {vr(T+4,4)}, v7 offset:{WX-EX+1024}
s_add_u32 s43, s53, {8*T2_ROW}
s_waitcnt lgkmcnt(1)
buffer_store_dwordx4 {vr(T,4)}, v88, {W}, s53 offen {SC}
s_waitcnt lgkmcnt(0)
buffer_store_dwordx4 {vr(T+4,4)}, v88, {W}, s43 offen {SC}""")
    else:
        for j in range(8):
            A(f"""v_cvt_pk_bf16_f32 v{Y+j}, v{AC2+2*j+1}, v{AC2+2*j}
s_add_u32 s43, s53, {(4*(j>>1)+(j&1))*T2_ROW}
buffer_store_dword v{Y+j}, v3, {W}, s43 offen {SC}""")
    if OPT["ab"]:
        def drop(i):
            b = OPT["ab"]
            return ((b & 1 and i.mfma) or (b & 2 and i.valu and i.mn != "v_readfirstlane_b32") or
                    (b & 4 and i.mn in ("ds_read2st64_b32", "ds_read_b128", "ds_read_u16_d16_hi", "ds_write_b128")) or
                    (b & 8 and i.mn == "buffer_store_dword"))
        A.ins[abl0:] = [i for i in A.ins[abl0:] if not drop(i)]
    stamp(7)
    A("s_setprio 2")
    arrive(C_A2, LP2)
    A(f"s_lshl_b32 s41, s2, 7\ns_add_u32 s41, s41, {F2_OFF}")
    flagstore("s41", 8, 32768)
    A(f"{LP2}:")
    lds_wait(C_A2, 4, 4)
    A(f"{LNOA2}:")
    if OPT["g3"]: lds_wait(C_G2, 4, 2)
    wo_run(0)
    A("s_waitcnt vmcnt(0)")
    lds_add(C_WOA)
    stamp(12)
    A("; ---- A3 ----")
    TA, NY, AC3, ZB, AC4 = 16, 48, 64, 16, 112
    assert OPT["kn"]
    A(f"""s_mul_i32 s41, s50, {T2_ROW}
s_add_u32 s41, s41, {T2_OFF}
s_lshl_b32 s42, s40, 9
s_add_u32 s42, s42, s41
s_and_b32 s46, s2, 7
s_lshl_b32 s46, s46, 15
s_add_u32 s46, s46, {F2_OFF}
s_add_u32 s47, s46, {28*1024}""")
    srd(SO, P_OUT, OUT_BYTES)
    if OPT["y"] & 8: A(f"s_branch {END}")
    if not OPT["y"] & 4: spin(f"buffer_load_dword v10, v255, {W}, s46 offen {PM}", 10, OPT["sl3"])
    stamp(8)
    LA, LB = A.lab("a3l"), A.lab("a3l")
    for f in range(4):
        A(f"s_add_u32 s43, s42, {2*f*T2_Q}\nbuffer_load_dwordx4 {vr(TA+4*f,4)}, v251, {W}, s43 offen {SC}\n{'s_waitcnt vmcnt(%d)' % OPT['t2p'] if OPT['t2p'] >= 0 else ''}")
    A(f"s_cmp_eq_u32 s40, 3\ns_cbranch_scc1 {LA}")
    for f in range(4):
        A(f"s_add_u32 s43, s42, {2*f*T2_Q + 2048}\nbuffer_load_dwordx4 {vr(TA+16+4*f,4)}, v251, {W}, s43 offen {SC}\n{'s_waitcnt vmcnt(%d)' % OPT['t2p'] if OPT['t2p'] >= 0 else ''}")
    A(f"{LA}:\ns_cmp_lg_u32 s40, 0\ns_cbranch_scc1 {LB}")
    if not OPT["y"] & 4: spin(f"buffer_load_dword v10, v255, {W}, s47 offen {PM}", 10, OPT["sl3"], "s_mov_b64 exec, 0xff")
    for f in range(4):
        A(f"s_add_u32 s43, s41, {2*f*T2_Q}\nbuffer_load_dwordx4 {vr(NY+4*f,4)}, v252, {W}, s43 offen {SC}")
    A(f"{LB}:")
    if OPT["ze"]: lds_wait(C_MERGE, OPT["ze"], OPT["slg"])
    else: lds_wait(C_GO if OPT["gp"] < 2 else C_WOF, 4, OPT["slg"])
    A("s_setprio 0")
    if OPT["x"] not in (2, 3): stamp(10)
    LN3, LZ = A.lab("a3ny"), A.lab("a3z")
    A("s_waitcnt vmcnt(0)")
    setup = f"""v_lshlrev_b32 v5, 4, v0
s_lshl_b32 s43, s40, 11
s_add_u32 s43, s43, {ZOFF}
v_add_u32 v6, s43, v5
s_mul_i32 s43, s52, 14336
s_add_u32 s43, s43, {ZOFF}
v_add_u32 v5, s43, v5
s_lshr_b32 s46, s40, 1
s_lshl_b32 s46, s46, 3
v_add_u32 v7, s46, v15          ; 8p + h
v_and_b32 v9, 7, v14
v_xor_b32 v7, v7, v9
v_lshlrev_b32 v7, 4, v7
v_lshl_or_b32 v7, v14, 8, v7
s_lshl_b32 s46, s52, 13
s_add_u32 s46, s46, {YOFF}
v_add_u32 v7, s46, v7           ; Y write address
v_lshrrev_b32 v8, 3, v0
s_lshl_b32 s46, s40, 3
v_add_u32 v8, s46, v8           ; row (s1)
v_and_b32 v9, 7, v0             ; piece
v_lshlrev_b32 v10, 1, v9
v_and_b32 v11, 7, v8
v_xor_b32 v10, v10, v11
v_lshlrev_b32 v10, 4, v10
v_lshl_or_b32 v10, v8, 8, v10
v_add_u32 v10, {YOFF}, v10
v_xor_b32 v11, 16, v10
v_mul_u32_u24 v8, {64*1792}, v8
v_lshl_add_u32 v8, v9, 4, v8    ; out offset
s_mul_i32 s41, s50, 1792
s_lshl_b32 s42, s51, 7
s_add_u32 s41, s41, s42""".split("\n")
    for tt in range(2):
        for f in range(4):
            A(f"{MFMA} {vr(AC3+32*tt,16)}, {vr(TA+16*tt+4*f,4)}, {vr(ER+4*f,4)}, {vr(AC3+32*tt,16) if f else 0}")
            for _ in range(5):
                if setup: A(setup.pop(0))
    assert not setup
    A(f"s_cmp_eq_u32 s51, 3\ns_cselect_b32 s42, 4, 8\nv_cmp_gt_u32 s[48:49], s42, v9")
    A(f"s_cmp_lg_u32 s40, 0\ns_cbranch_scc1 {LN3}\ns_mov_b32 exec_lo, 1\ns_mov_b32 exec_hi, 1")
    for i in range(16): A(f"v_mov_b32 v{TA+i}, v{NY+i}")
    A(f"s_mov_b64 exec, -1\n{LN3}:\ns_nop 1")
    ZD = (NY, TA, NY+8, TA+8)
    def zcvt(tt, part):
        a = AC3+32*tt+16*part
        if OPT["kn"]:
            d = ZD[2*tt+part]
            return [f"v_cvt_pk_bf16_f32 v{d+4*e+i}, v{a+4*i+e}, v{a+4*i+e+2}" for e in range(2) for i in range(4)]
        return [f"v_cvt_pk_bf16_f32 v{a+i}, v{a+2*i}, v{a+2*i+1}" for i in range(8)]
    def zwr(tt, part):
        a = AC3+32*tt+16*part
        if OPT["kn"]: a = ZD[2*tt+part]
        return [f"ds_write_b128 v6, {vr(a+4*p,4)} offset:{14336*p+8192*tt+1024*part}" for p in range(2)]
    if OPT["ze"]:
        pend = zcvt(0, 0) + zcvt(1, 0)
        for tt in range(2):
            for f in range(4):
                A(f"{MFMA} {vr(AC3+32*tt+16,16)}, {vr(TA+16*tt+4*f,4)}, {vr(EI+4*f,4)}, {vr(AC3+32*tt+16,16) if f else 0}")
                for _ in range(3):
                    if pend: A(pend.pop(0))
        for x in pend + zcvt(0, 1) + zcvt(1, 1): A(x)
        lds_wait(C_GO, 4, 1)
        for x in zwr(0, 0) + zwr(0, 1): A(x)
        A(f"s_cmp_eq_u32 s40, 3\ns_cbranch_scc1 {LZ}")
        for x in zwr(1, 0) + zwr(1, 1): A(x)
    else:
        pend = zcvt(0, 0) + zwr(0, 0)
        for tt in range(2):
            for f in range(4):
                A(f"{MFMA} {vr(AC3+32*tt+16,16)}, {vr(TA+16*tt+4*f,4)}, {vr(EI+4*f,4)}, {vr(AC3+32*tt+16,16) if f else 0}")
                for _ in range(3):
                    if pend: A(pend.pop(0))
        for x in pend + zcvt(0, 1) + zwr(0, 1): A(x)
        A(f"s_cmp_eq_u32 s40, 3\ns_cbranch_scc1 {LZ}")
        for x in zcvt(1, 0) + zwr(1, 0) + zcvt(1, 1) + zwr(1, 1): A(x)
    A(f"{LZ}:")
    lds_sync(C_Z, 4, OPT["zs"])
    LEP = A.lab("ep")
    assert EPOCH_OFF == 0
    A(f"s_add_u32 s42, s2, s3\ns_cmp_lg_u32 s42, 0\ns_cbranch_scc1 {LEP}")
    flagstore("0", 1, 0, 72)
    A(f"{LEP}:")
    for i in range(14): A(f"ds_read_b128 {vr(ZB+4*i,4)}, v5 offset:{1024*i}")
    for i in range(14):
        A(f"s_waitcnt lgkmcnt({13-i})\n{MFMA} {vr(AC4,16)}, {vr(G+4*i,4)}, {vr(ZB+4*i,4)}, {vr(AC4,16) if i else 0}")
    for g in range(4):
        A(f"v_xor_b32 v9, {32*g}, v7\nds_write_b128 v9, {vr(AC4+4*g,4)}")
    lds_sync(C_Y, 4, OPT["zs"])
    A(f"""ds_read_b128 v[16:19], v10
ds_read_b128 v[20:23], v11
ds_read_b128 v[24:27], v10 offset:8192
ds_read_b128 v[28:31], v11 offset:8192
s_waitcnt lgkmcnt(0)""")
    for i in range(8): A(f"v_add_f32 v{32+i}, v{16+i}, v{24+i}\nv_sub_f32 v{40+i}, v{16+i}, v{24+i}")
    for i in range(8): A(f"v_cvt_pk_bf16_f32 v{48+i}, v{32+2*i}, v{33+2*i}")
    if OPT["so"]: lds_wait(C_OST, OPT["so"], 1)
    A(f"""s_mov_b64 exec, s[48:49]
buffer_store_dwordx4 v[48:51], v8, {sr(SO,4)}, s41 offen {OA}
buffer_store_dwordx4 v[52:55], v8, {sr(SO,4)}, s41 offen offset:448 {OA}
s_mov_b64 exec, -1
s_branch {END}""")

def fallback():
    A("; ==== softmax fallback: true row maximum, then the exact recomputation ====")
    resident(None, None)
    L1, L2 = A.lab("fb1"), A.lab("fb2")
    tl = tile_loads(0, 43)
    A(f"""{LFB}:
v_mov_b32_dpp v{Q+24+6}, v7 {HI}
v_mov_b32 v12, 0xff800000
s_mov_b32 s43, {KV_OFF}
{L1}:
{tl[0]}
{tl[1]}
s_waitcnt vmcnt(0)
{MFMA} {vr(S,16)}, {vr(kb(0,0),4)}, {q(3,0)}, 0
{MFMA} {vr(S,16)}, {vr(kb(0,1),4)}, {q(3,1)}, {vr(S,16)}""")
    for i in range(0, 16, 2): A(f"v_max3_f32 v12, v12, v{S+i}, v{S+i+1}")
    A(f"""s_add_u32 s43, s43, {KV_REC}
s_cmp_lt_u32 s43, {KV_OFF+64*KV_REC}
s_cbranch_scc1 {L1}
v_mov_b32 v13, v12
v_mov_b32 v14, v12
v_permlane32_swap_b32 v13, v14
v_max_f32 v12, v13, v14""")
    for i in range(16): A(f"v_mov_b32 v{OK+i}, 0")
    A(f"s_mov_b32 s43, {KV_OFF}\n{L2}:")
    for x in tl: A(x)
    A(f"""s_waitcnt vmcnt(0)
{MFMA} {vr(S,16)}, {vr(kb(0,0),4)}, {q(3,0)}, 0
{MFMA} {vr(S,16)}, {vr(kb(0,1),4)}, {q(3,1)}, {vr(S,16)}""")
    for i in range(16): A(f"v_sub_f32 v{S+i}, v{S+i}, v12")
    for i in range(16): A(f"v_exp_f32 v{S+i}, v{S+i}")
    A(f"""{SMF} {vr(OK,16)}, {vr(kb(0,2),4)}, {vr(S,8)}, v5
{SMF} {vr(OK,16)}, {vr(kb(0,3),4)}, {vr(S+8,8)}, v5
s_nop 15
s_add_u32 s43, s43, {KV_REC}
s_cmp_lt_u32 s43, {KV_OFF+64*KV_REC}
s_cbranch_scc1 {L2}
s_branch {LN}""")

def finish():
    A(f"{END}:")
    if OPT["probe"]:
        LQ = A.lab("probe")
        if OPT["pwg"] < 0: A("s_waitcnt vmcnt(0)")
        stamp(13)
        if OPT["pwg"] >= 0: A(f"""s_cmp_lg_u32 s2, {OPT["pwg"]}
s_cbranch_scc1 {FIN}
s_cmp_lg_u32 s3, {OPT["pwave"]}
s_cbranch_scc1 {FIN}""")
        A(f"""s_waitcnt lgkmcnt(0)
s_sub_u32 s56, s{64+2*OPT["probe"]}, s66
s_mul_i32 s56, s56, 10
s_add_u32 s56, s56, s90
{LQ}:
{"s_sleep 8" if OPT["pwg"] < 0 else ""}
s_memrealtime s[58:59]
s_waitcnt lgkmcnt(0)
s_sub_u32 s57, s58, s56
s_cmp_lt_i32 s57, 0
s_cbranch_scc1 {LQ}""")
    elif STAMPS:
        stamp(13)
        A(f"""s_waitcnt vmcnt(0)
s_memtime s[92:93]
s_memrealtime s[94:95]
s_waitcnt lgkmcnt(0)
{"s_getreg_b32 s64, hwreg(HW_REG_XCC_ID)" if STAMPS == 1 else ""}
{"s_getreg_b32 s92, hwreg(HW_REG_HW_ID)" if STAMPS == 1 else ""}
s_mov_b32 s56, s24
s_mov_b32 s57, s25
s_mov_b32 s58, 0x2000000
s_mov_b32 s59, 0x00020000
s_mov_b64 exec, 1
s_lshl_b32 s60, s2, 3
s_add_u32 s60, s60, s3
s_lshl_b32 s60, s60, 6
s_add_u32 s60, s60, {TS_OFF}
v_mov_b32 v1, 0""")
        for i in range(16):
            A(f"v_mov_b32 v2, s{64+2*i}\nbuffer_store_dword v2, v1, s[56:59], s60 offen offset:{4*i}")
    A(f"{FIN}:\ns_endpgm")

def b1c():
    resident(None, None)
    A("; ==== B1 compute waves ====")
    A(f"{LB1C}:\ns_setprio 2"); main_start()
    for i in range(64): A(f"v_mov_b32 v{ACC+i}, 0")
    A("s_waitcnt lgkmcnt(0)"); gettag()
    gen_pre(); b1_compute()
entry(); b1_loader()
if OPT["ord"] == 2: a1_dispatch_loader()
if OPT["ord"]: b1c()
if OPT["ord"] != 2: a1_dispatch_loader()
a1_gen(); a1_compute(); pub1(); helper()
if not OPT["ord"]: b1c()
attention(); fallback(); finish()


DOC = """; ---------------------------------------------------------------------------------------------------------
; One launch, 256 workgroups x 8 waves, one workgroup per CU (all co-resident; every global wait is bounded).
;
; Part B (attention):  B1 qkv = x @ wqkv (176 workgroups, 128x128 tiles, LDS-DMA ring)  ->  attention per
;   (head, 128 queries): each of 4 waves owns 512 keys, S^T = K Q^T by MFMA, P = exp2(S), O^T += V^T P by sparse
;   MFMA that reads the upper (bf16) half of the fp32 P registers; a row of ones behind V yields the row sums
;   ->  B3 out = O @ wo per (32 tokens, 128 columns).
;   Softmax guard: every row is shifted by its maximum over a sample of 16 real keys (subtracted inside the QK
;   MFMA through a spare contraction slot).  After the merge the row sum is range-checked (2^-40 .. 2^40, NaN
;   fails); a wave that finds an unsafe row recomputes its 32 rows with the true row maximum (L_fallback).
; Part A (GFNet): exact DFTs as MFMA products with generated twiddles, S = 2048 split as 32 x 64:
;   A1 rfft over D + 32-point stage over S (80 workgroups)  ->  A2 64-point stage, filter, inverse 64-point stage
; Hand-offs between workgroups: write-through (sc1) stores, s_waitcnt vmcnt(0), then a flag line holding this
;   launch's tag (= epoch word found in d_ws + constant; the epoch is advanced once every workgroup has read it),
;   consumers poll with sc1 loads and read the data with sc1 loads.  Workgroup ids are mapped for L2 locality
;   only; nothing depends on the placement.  Waves of one workgroup meet through counters in LDS.
; ---------------------------------------------------------------------------------------------------------
"""
HDR = open("cdna_kernels/%s.s.ref" % NAME).read().split("; Override")[0]
txt = HDR + f"; @launch grid=(256,1,1) block=(512,1,1) lds={LDS_BYTES}\n"
txt += DOC
txt += '.amdgcn_target "amdgcn-amd-amdhsa--gfx950"\n.text\n' + A.finish()
txt += f""".section .rodata,"a"
.p2align 6
.amdhsa_kernel {K}
  .amdhsa_next_free_vgpr 256
  .amdhsa_next_free_sgpr 102
  .amdhsa_accum_offset 256
  .amdhsa_group_segment_fixed_size 0
  .amdhsa_kernarg_size 72
  .amdhsa_user_sgpr_count 2
  .amdhsa_user_sgpr_kernarg_segment_ptr 1
  .amdhsa_system_sgpr_workgroup_id_x 1
.end_amdhsa_kernel
"""
out = args[0] if args else "cdna_kernels/%s.s" % NAME
open(out, "w").write(txt)
print("wrote", out, len(txt))
```
